```python
import torch

def _softmax(x, axis=-1):
    return torch.softmax(x, dim=axis)
def _gelu(x):
    return torch.nn.functional.gelu(x, approximate="tanh")
def _silu(x):
    return torch.nn.functional.silu(x)
def _sigmoid(x):
    return torch.sigmoid(x)
def _layernorm(x, axis=-1, eps=1e-5):
    m = x.mean(dim=axis, keepdim=True)
    v = x.var(dim=axis, keepdim=True, unbiased=False)
    return (x - m) / torch.sqrt(v + eps)
def _scatter_add(tgt, idx, src, axis=0):
    return tgt.clone().index_add_(axis, idx, src)
def _segment_sum(src, seg, n):
    out = torch.zeros((n,) + src.shape[1:], dtype=src.dtype)
    return out.index_add_(0, seg, src)
def _pad(x, pw):
    flat = tuple(v for pair in reversed(pw) for v in pair)
    return torch.nn.functional.pad(x, flat)

kernel_name = 'interleave_layers__sliding_block_cached__dense_activation_gelu__decode'

def setup_inputs():

    _w = (lambda a: (lambda t: t.to(torch.bfloat16) if t.is_floating_point() else t)(torch.as_tensor(a)))
    def _A_setup():
        B, Sq, D = 2, 1, 576
        Hq, Hkv, Sk, Dh = 32, 16, 4096, 128
        assert Hq % Hkv == 0, (Hq, Hkv)
        return {
            "x": _w((lambda *s: torch.randn(*s, dtype=torch.bfloat16) * 0.05)(B, Sq, D)),
            "k_cache": _w((lambda *s: torch.randn(*s, dtype=torch.bfloat16) * 1.6)(B, Hkv, Sk, Dh)),
            "v_cache": _w((lambda *s: torch.randn(*s, dtype=torch.bfloat16) * 0.4)(B, Hkv, Sk, Dh)),
            "wq": _w((lambda *s: torch.randn(*s, dtype=torch.bfloat16) * 1.6)(D, Hq * Dh) * (D ** -0.5)),
            "wo": _w((lambda *s: torch.randn(*s, dtype=torch.bfloat16) * 0.4)(Hq * Dh, D) * ((Hq * Dh) ** -0.5)),
        }
    _A_in = _A_setup()

    def _B_setup():
        B, S, D, F = 2, 1, 576, 4608
        return {
            "x": _w((lambda *s: torch.randn(*s, dtype=torch.bfloat16) * 0.05)(B, S, D)),
            "w1": _w((lambda *s: torch.randn(*s, dtype=torch.bfloat16) * 0.4)(D, F) * (D ** -0.5)),
            "b1": _w((lambda *s: torch.randn(*s, dtype=torch.bfloat16) * 12.8)(F) * 0.01),
            "w2": _w((lambda *s: torch.randn(*s, dtype=torch.bfloat16) * 0.2)(F, D) * (F ** -0.5)),
            "b2": _w((lambda *s: torch.randn(*s, dtype=torch.bfloat16) * 0.8)(D) * 0.01),
        }
    _B_in = _B_setup()

    return {
        "A_x": _A_in["x"],
        "A_k_cache": _A_in["k_cache"],
        "A_v_cache": _A_in["v_cache"],
        "A_wq": _A_in["wq"],
        "A_wo": _A_in["wo"],
        "B_x": _B_in["x"],
        "B_w1": _B_in["w1"],
        "B_b1": _B_in["b1"],
        "B_w2": _B_in["w2"],
        "B_b2": _B_in["b2"],
    }

def reference(A_x, A_k_cache, A_v_cache, A_wq, A_wo, B_x, B_w1, B_b1, B_w2, B_b2):
    def _A_ref(x, k_cache, v_cache, wq, wo):
        B, Sq, D = x.shape
        Hq, Dh = 32, 128
        Hkv, Sk = k_cache.shape[1], k_cache.shape[2]
        W = min(4096, max(256, Sk // 4))
        rep = Hq // Hkv
        q = (lambda x, *d: x.permute(*d))((x @ wq).reshape(B, Sq, Hq, Dh), 0, 2, 1, 3)
        k = (lambda x, n, axis: torch.repeat_interleave(x, n, dim=axis))(k_cache[:, :, Sk - W:, :], rep, axis=1)
        v = (lambda x, n, axis: torch.repeat_interleave(x, n, dim=axis))(v_cache[:, :, Sk - W:, :], rep, axis=1)
        scores = torch.einsum("bhqd,bhkd->bhqk", q, k) * (Dh ** -0.5)
        p = _softmax(scores, axis=-1)
        o = torch.einsum("bhqk,bhkd->bhqd", p, v)
        return (lambda x, *d: x.permute(*d))(o, 0, 2, 1, 3).reshape(B, Sq, Hq * Dh) @ wo

    def _B_ref(x, w1, b1, w2, b2):
        h = torch.einsum("bsd,df->bsf", x, w1) + b1
        h = _gelu(h)
        return torch.einsum("bsf,fd->bsd", h, w2) + b2

    x = A_x
    x = x + _A_ref(_layernorm(x, axis=-1), A_k_cache, A_v_cache, A_wq, A_wo)
    x = x + _B_ref(_layernorm(x, axis=-1), B_w1, B_b1, B_w2, B_b2)
    x = x + _A_ref(_layernorm(x, axis=-1), A_k_cache, A_v_cache, A_wq, A_wo)
    x = x + _B_ref(_layernorm(x, axis=-1), B_w1, B_b1, B_w2, B_b2)
    return x
```

```python
import re

def _regs(tok):
    tok = tok.strip()
    tok = re.sub(r'^-', '', tok)
    m = re.match(r'^abs\((.*)\)$', tok)
    if m: tok = m.group(1)
    m = re.match(r'^\|(.*)\|$', tok)
    if m: tok = m.group(1)
    m = re.match(r'^([vas])(\d+)$', tok)
    if m: return [(m.group(1), int(m.group(2)))]
    m = re.match(r'^([vas])\[(\d+):(\d+)\]$', tok)
    if m: return [(m.group(1), i) for i in range(int(m.group(2)), int(m.group(3)) + 1)]
    if tok in ('vcc', 'vcc_lo', 'vcc_hi'): return [('s', 'vcc')]
    if tok in ('exec', 'exec_lo', 'exec_hi'): return [('s', 'exec')]
    if tok == 'm0': return [('s', 'm0')]
    return []

TRANS = ('v_exp_f32', 'v_log_f32', 'v_rcp_f32', 'v_rsq_f32', 'v_sqrt_f32', 'v_sin_f32', 'v_cos_f32')

class Ins:
    def __init__(self, text):
        self.text = text
        t = text.split(';')[0].strip()
        parts = t.split(None, 1)
        self.op = parts[0]
        rest = parts[1] if len(parts) > 1 else ''
        ops = []; depth = 0; cur = ''
        for ch in rest:
            if ch in '[(': depth += 1
            if ch in '])': depth -= 1
            if ch == ',' and depth == 0: ops.append(cur); cur = ''
            else: cur += ch
        if cur.strip(): ops.append(cur)
        self.mods = ''
        if ops:
            l = ops[-1].strip().split(None, 1)
            ops[-1] = l[0]
            if len(l) > 1: self.mods = l[1]
        self.ops = [o.strip() for o in ops]
        op = self.op
        self.mfma = op.startswith('v_mfma') or op.startswith('v_smfmac')
        self.valu = op.startswith('v_') and not self.mfma
        self.dot = op.startswith('v_dot')
        self.trans = any(op.startswith(x) for x in TRANS)
        self.dpp = op.endswith('_dpp') or 'quad_perm' in self.mods or 'row_' in self.mods
        self.permlane = op.startswith('v_permlane')
        self.readlane = op.startswith('v_readlane') or op.startswith('v_readfirstlane')
        self.vmem = op.startswith('buffer_') or op.startswith('global_')
        self.ds = op.startswith('ds_')
        self.salu = op.startswith('s_')
        R = [_regs(o) for o in self.ops]
        self.w = []; self.r = []
        flat = lambda L: [x for l in L for x in l]
        if self.mfma:
            self.w = R[0]; self.r = flat(R[1:])
            self.srcc = R[0] if op.startswith('v_smfmac') else (R[3] if len(R) > 3 else [])
            self.ab = R[1] + R[2] + (R[3] if op.startswith('v_smfmac') else [])
            self.r = self.ab + self.srcc
        elif self.valu:
            if self.permlane or op.startswith('v_swap'):
                self.w = R[0] + R[1]; self.r = R[0] + R[1]
            elif op.startswith('v_cmp'):
                self.w = R[0]; self.r = flat(R[1:])
            elif op.startswith('v_cndmask') and len(R) == 3:
                self.w = R[0]; self.r = flat(R[1:]) + [('s', 'vcc')]
            else:
                self.w = R[0]; self.r = flat(R[1:])
                if op.startswith('v_fmac') or op.startswith('v_dot2c') or op.startswith('v_writelane') or self.dpp:
                    self.r += R[0]
                if '_co_' in op: self.w = self.w + R[1]
        elif self.vmem:
            if 'load' in op:
                if ' lds' in (' ' + self.mods): self.r = flat(R)
                else: self.w = R[0]; self.r = flat(R[1:])
            else:
                self.r = flat(R)
                if 'atomic' in op and 'sc0' in self.mods: self.w = R[0]
            self.store_data = []
            if 'store' in op and ('x3' in op or 'x4' in op):
                self.store_data = R[0] if op.startswith('buffer_') else R[1]
        elif self.ds:
            if 'read' in op or 'permute' in op or 'swizzle' in op: self.w = R[0]; self.r = flat(R[1:])
            else: self.r = flat(R)
        elif self.salu:
            if op.startswith('s_cmp') or op.startswith('s_cbranch') or op.startswith('s_bitcmp') or op in ('s_branch', 's_waitcnt', 's_nop', 's_barrier', 's_endpgm', 's_sleep', 's_setprio'):
                self.r = flat(R)
            else:
                self.w = R[0] if R else []; self.r = flat(R[1:])
                if 'saveexec' in op: self.w = self.w + [('s', 'exec')]
        self.states = 1
        if op == 's_nop': self.states = int(self.ops[0], 0) + 1

def need(p, c):
    n = 0
    W = set(p.w)
    rd = set(c.r); wr = set(c.w)
    if p.valu:
        vw = {x for x in W if x[0] in 'va'}; sw = {x for x in W if x[0] == 's'}
        if c.mfma and vw & rd: n = max(n, 2)
        if c.dpp and vw & rd: n = max(n, 2)
        if c.permlane and vw & rd: n = max(n, 2)
        if c.readlane and vw & rd: n = max(n, 1)
        if p.trans and c.valu and vw & rd: n = max(n, 1)
        if p.trans and (c.vmem or c.ds) and vw & rd: n = max(n, 1)
        if p.dot and not c.mfma and (vw & (rd | wr)):
            same = c.op == p.op
            if same and c.ops and p.ops and set(_regs(c.ops[0])) == vw and not (vw & set(_regs(c.ops[1]) + _regs(c.ops[2]))): pass
            else: n = max(n, 3)
        if p.dot and c.mfma and vw & rd: n = max(n, 3)
        if sw & rd:
            if c.valu: n = max(n, 4 if (c.readlane or c.op.startswith('v_writelane')) else 2)
            if c.vmem: n = max(n, 5)
            if c.salu and not c.op.startswith('s_cbranch'): n = max(n, 1)
        if p.op.startswith('v_cvt_pk') or 'op_sel' in p.mods or 'sdwa' in p.op:
            if c.valu and vw & rd and ('op_sel' in p.mods or 'sdwa' in p.op): n = max(n, 1)
    if p.mfma:
        D = W
        if c.mfma:
            if D & set(c.ab): n = max(n, 8)
            sc = set(c.srcc)
            if D & sc and (sc != D or c.op != p.op): n = max(n, 6)
        elif (c.valu or c.vmem or c.ds) and D & (rd | wr): n = max(n, 8)
        if c.valu and set(p.srcc) & wr: n = max(n, 3)
    if p.vmem and getattr(p, 'store_data', []) and set(p.store_data) & wr: n = max(n, 2)
    if p.salu and ('s', 'm0') in W and c.vmem and ' lds' in (' ' + c.mods): n = max(n, 1)
    return n

class Asm:
    def __init__(self):
        self.lines = []
        self.hist = []
        self.uid = 0
    def raw(self, s): self.lines.append(s)
    def label(self, name, safe=False):
        self.lines.append(f"{name}:")
    def newlabel(self, p='L'):
        self.uid += 1
        return f"{p}_{self.uid}"
    def __call__(self, s):
        for line in s.split('\n'):
            line = line.strip()
            if not line: continue
            if line.startswith(';'):
                self.lines.append('    ' + line); continue
            if line.endswith(':'):
                self.label(line[:-1]); continue
            c = Ins(line)
            dist = 0; pad = 0
            for p in reversed(self.hist):
                nn = need(p, c)
                if nn > dist: pad = max(pad, nn - dist)
                dist += p.states
                if dist > 12: break
            if pad:
                self.lines.append(f"    s_nop {pad-1}")
                self.hist.append(Ins(f"s_nop {pad-1}"))
            self.lines.append('    ' + line)
            self.hist.append(c)
            if c.op in ('s_branch', 's_endpgm'): self.hist = []
            self.hist = self.hist[-16:]
    def text(self): return '\n'.join(self.lines) + '\n'
```

```python
import sys, argparse, struct
sys.path.insert(0, 'dev')
from asmlib import Asm
NAME = "interleave_layers__sliding_block_cached__dense_activation_gelu__decode"
ap = argparse.ArgumentParser()
ap.add_argument('--stamps', action='store_true')
ap.add_argument('--pro', action='store_true')
ap.add_argument('--pQ', type=int, default=4)
ap.add_argument('--pL', default='6')
ap.add_argument('--pC', type=int, default=6)
ap.add_argument('--pT', type=int, default=4)
ap.add_argument('--wo0', type=int, default=8)
ap.add_argument('--wopos', default='q')
ap.add_argument('--di', type=int, default=3)
ap.add_argument('--dz', type=int, default=2)
ap.add_argument('--dxx', type=int, default=3)
ap.add_argument('--nt', default='nt')
ap.add_argument('--forcefb', action='store_true')
args = ap.parse_args()
NT = (' ' + args.nt) if args.nt != '-' else ''
ST = args.stamps

def f32(x): return '0x%08x' % struct.unpack('<I', struct.pack('<f', x))[0]

CLR = 1792
OP_O = 0
Y_O = OP_O + 131072
ST_O = Y_O + 82944
ST1_O = ST_O + 2048
Z1_O = ST1_O + 2048
Z2_O = Z1_O + 2304
Z3_O = Z2_O + 2304
assert Z3_O + 2304 <= 128 * CLR
QP_O = 128 * CLR
QP1_O = QP_O + 65536
FF_O = QP1_O + 65536
GB = FF_O + 1024
FB_O = 8 * GB
XP_O = 16 * GB
XPS = 36 * 8192
FL_O = XP_O + 4 * XPS
EP_O = FL_O + 8 * 1024
STAMP_O = 0x8000000
L_QT, L_STAT, L_OT, L_PT, L_HP, L_K, L_WQ, L_SIZE = 0, 512, 1024, 2560, 8192, 16384, 49152, 67584

rK, rV, rWQ, rWO, rW1, rW2, rWS, rX, rOUT, rT1, rT2 = 4, 8, 12, 16, 20, 24, 28, 32, 36, 44, 48
sTask, kv0, kv1, sFlag = 's40', 's41', 's42', 's43'
def srd(n): return f"s[{n}:{n+3}]"
sW, sX, sJ, sGf, sGp, sXoff, sTO, sMode, sL, sWo = [f"s{i}" for i in range(52, 62)]
t0, t1, t2, t3, t4, t5 = [f"s{i}" for i in range(62, 68)]
mLO8 = "s[68:69]"; mROW = "s[70:71]"
MXA = "0x00330033"
sRole = "s3"
(vL4, vL16, vIdxD, vIdxP, vIdxS, vXAq, vXAm, vQPst, vQPg, vL128, vQTw, vQTr, vPTw, vPTr, vSTst, vOPst, vSTg, vOPg, vOTw, vOTr,
 vYst, vMst, vHPw, vSTm, vRg, vSTATr, vXPst, vXPg, vZst, vXres, vB2, vB1, vCq, vZo, vXS1, vXS2, vWrow, vHPr, vOnes) = [f"v{i}" for i in range(1, 40)]
XA, D0, D1, DP, AO, SG, YG, XG, XS, FG, TM, EM, KA, SV, OG, QG = 40, 64, 68, 72, 76, 104, 120, 132, 136, 148, 152, 176, 180, 184, 188, 196
vQPg2 = 'v92'
ACC = 212
aWQ, aK, aV, aWO, aW1, aW2, aWOt, NACC = 0, 24, 56, 88, 120, 168, 200, 232
aW2t = aW1
def v(n, k=1): return f"v{n}" if k == 1 else f"v[{n}:{n+k-1}]"
def a(n, k=1): return f"a{n}" if k == 1 else f"a[{n}:{n+k-1}]"
CK = v(TM + 23); FN = v(TM + 22); vTag = v(TM + 21); DUM = v(TM + 20)
sEp, sXPo = kv0, kv1

A = Asm()
tail = []
nst = [0]
def pstamp(k):
    if args.pro: A(f"s_memrealtime s[{72+2*k}:{73+2*k}]")
def stamp():
    if ST and not args.pro:
        k = nst[0]; nst[0] += 1
        assert k < 13
        A(f"s_memrealtime s[{72+2*k}:{73+2*k}]")
def lg(n): return 0 if ST else n
def exec_xa(): return [f"s_mov_b32 exec_lo, {MXA}", f"s_mov_b32 exec_hi, {MXA}"]

def check_text(regs):
    regs = list(regs); o = []
    if len(regs) == 1: cur = regs[0]
    else:
        take = regs[:3]; regs = regs[3:]
        o.append(f"v_max3_u32 {CK}, {take[0]}, {take[1]}, {take[2]}" if len(take) == 3 else f"v_max_u32 {CK}, {take[0]}, {take[1]}")
        while regs:
            take = regs[:2]; regs = regs[2:]
            o.append(f"v_max3_u32 {CK}, {CK}, {take[0]}, {take[1]}" if len(take) == 2 else f"v_max_u32 {CK}, {CK}, {take[0]}")
        cur = CK
    o.append(f"v_cmp_eq_u32 vcc, -1, {cur}")
    return o
def nvm(loads): return sum(1 for l in loads if l.startswith('buffer_'))
def timeout(again, ok): return f"s_sub_u32 {sTO}, {sTO}, 1\ns_cbranch_scc0 {again}\ns_mov_b32 {sTO}, 0\ns_waitcnt vmcnt(0) lgkmcnt(0)\ns_branch {ok}"

def poll(loads, regs, depth=1, primed=0, extra_wait="", retry_pre="", ok_post="", chk=None):
    lp = A.newlabel('L_poll'); rt = A.newlabel('L_retry'); ok = A.newlabel('L_ok')
    for d in range(primed, depth):
        if d: A("s_sleep 1")
        for l in loads: A(l)
    A(f"{lp}:")
    A(f"s_waitcnt vmcnt({(depth-1)*nvm(loads)}){extra_wait}")
    for l in (chk or check_text(regs)): A(l)
    A(f"s_cbranch_vccnz {rt}")
    A(f"{ok}:")
    if ok_post: A(ok_post)
    tail.append(f"{rt}:\n{retry_pre}\n" + "\n".join(loads) + "\n" + timeout(lp, ok))

def sm(d, av, br, idx): A(f"v_smfmac_f32_16x16x64_bf16 {v(d,4)}, {v(av,4)}, {a(br,8)}, {idx}")
def xa_loads(rr, voff, so, n, fl, short_last=False):
    o = exec_xa()
    for i in range(n):
        if short_last and i == n - 1: o.append("s_mov_b64 exec, 0x33")
        o.append(f"buffer_load_dwordx4 {v(XA+4*i,4)}, {voff}, {srd(rr)}, {so} offen offset:{64*i}{fl}")
    return o + ["s_mov_b64 exec, -1"]
def poll_proj(voff, so, n, wbase, depth, short_last=False):
    loads = xa_loads(rWS, voff, so, n, ' sc1', short_last)
    lp = A.newlabel('L_poll'); rt = A.newlabel('L_retry'); ok = A.newlabel('L_ok')
    for d in range(depth):
        if d: A("s_sleep 1")
        for l in loads: A(l)
    A(f"{lp}:")
    A(f"s_waitcnt vmcnt({(depth-1)*n})")
    for i in range(n): sm(D0, XA+4*i, wbase+8*i, vIdxD)
    A(f"v_cmp_u_f32 vcc, {v(D0)}, {v(D0+1)}")
    A(f"s_cbranch_vccnz {rt}")
    A(f"{ok}:")
    ag = A.newlabel('L_again'); gen = A.newlabel('L_nan')
    z = "\n".join(f"v_mov_b32 {v(D0+i)}, 0" for i in range(4))
    mm = "\n".join(f"v_smfmac_f32_16x16x64_bf16 {v(D0,4)}, {v(XA+4*i,4)}, {a(wbase+8*i,8)}, {vIdxD}" for i in range(n))
    tail.append(f"{rt}:\n{z}\n" + "\n".join(check_text([v(XA+i) for i in range(4*n)])) + f"\ns_cbranch_vccz {gen}\n" + "\n".join(loads) +
                f"\ns_sub_u32 {sTO}, {sTO}, 1\ns_cbranch_scc0 {lp}\ns_mov_b32 {sTO}, 0\n{gen}:\n{mm}\ns_nop 7\ns_branch {ok}")

def pub(*fmts):
    for f in fmts: A(f.format(so=sGf, fl=''))
    sl = A.newlabel('L_slow'); bk = A.newlabel('L_back')
    A(f"s_cmp_lg_u32 {sMode}, 0")
    A(f"s_cbranch_scc1 {sl}")
    A(f"{bk}:")
    tail.append(f"{sl}:\n" + "\n".join(f.format(so=sGp, fl=' sc1') for f in fmts) + f"\ns_nop 1\ns_branch {bk}")

def rbf(dst, src):
    A(f"v_cvt_pk_bf16_f32 {dst}, {src}, {src}")
    A(f"v_and_b32 {dst}, 0xffff0000, {dst}")
def treduce(r):
    A(f"v_permlane32_swap_b32 {v(r)}, {v(r+2)}")
    A(f"v_permlane32_swap_b32 {v(r+1)}, {v(r+3)}")
    A(f"v_add_f32 {v(r)}, {v(r)}, {v(r+2)}")
    A(f"v_add_f32 {v(r+1)}, {v(r+1)}, {v(r+3)}")
    A(f"v_permlane16_swap_b32 {v(r)}, {v(r+1)}")
    A(f"v_add_f32 {v(r)}, {v(r)}, {v(r+1)}")
    A(f"v_add_f32_dpp {v(r)}, {v(r)}, {v(r)} row_ror:8 row_mask:0xf bank_mask:0xf")
S_, Q_ = v(TM), v(TM+1)
def stats(slot_off):
    S, Q = S_, Q_
    A(f"v_mov_b32 {S}, 0"); A(f"v_mov_b32 {Q}, 0")
    for i in range(9):
        A(f"v_dot2c_f32_bf16 {S}, {v(XS+i)}, {vOnes}")
        A(f"v_dot2c_f32_bf16 {Q}, {v(XS+i)}, {v(XS+i)}")
    A(f"v_lshrrev_b32 {v(TM+2)}, 5, v0"); A(f"v_lshlrev_b32 {v(TM+2)}, 3, {v(TM+2)}")
    A(f"v_permlane16_swap_b32 {S}, {Q}")
    A(f"v_add_f32 {S}, {S}, {Q}")
    for k in (8, 4, 2, 1):
        A(f"v_add_f32_dpp {S}, {S}, {S} row_ror:{k} row_mask:0xf bank_mask:0xf")
    A(f"v_mul_f32 {Q}, {f32(1/576)}, {S}")
    A(f"v_mul_f32 {S}, {f32(1/576)}, {S}")
    A(f"v_permlane16_swap_b32 {S}, {Q}")
    A(f"v_fma_f32 {Q}, -{S}, {S}, {Q}")
    A(f"v_max_f32 {Q}, 0, {Q}")
    A(f"v_cvt_pk_bf16_f32 {Q}, {S}, {Q}")
    A(f"v_lshlrev_b32 {S}, 16, {Q}")
    A(f"v_and_b32 {Q}, 0xffff0000, {Q}")
    A(f"v_add_f32 {Q}, {f32(1e-5)}, {Q}")
    rbf(Q, Q)
    A(f"v_sqrt_f32 {Q}, {Q}")
    rbf(Q, Q)
    A(f"v_rcp_f32 {Q}, {Q}")
    A(f"ds_write_b64 {v(TM+2)}, {v(TM,2)} offset:{L_STAT+slot_off}")
def zero(r, n=4):
    for i in range(n): A(f"v_mov_b32 {v(r+i)}, 0")
def xs_loads(rr, so, fl):
    return [f"buffer_load_dwordx4 {v(XS,4)}, {vXS1}, {srd(rr)}, {so} offen{fl}",
            f"buffer_load_dwordx4 {v(XS+4,4)}, {vXS1}, {srd(rr)}, {so} offen offset:512{fl}",
            f"buffer_load_dword {v(XS+8)}, {vXS2}, {srd(rr)}, {so} offen offset:1024{fl}"]

A.raw(f"; @launch grid=(256,1,1) block=(256,1,1) lds={L_SIZE}")
A.raw('.amdgcn_target "amdgcn-amd-amdhsa--gfx950"')
A.raw(".text")
A.raw(f".globl {NAME}_kernel")
A.raw(".p2align 8")
A.raw(f".type {NAME}_kernel,@function")
A.raw(f"{NAME}_kernel:")
if ST:
    A("s_memrealtime s[100:101]")
    for k in range(14): A(f"s_mov_b64 s[{72+2*k}:{73+2*k}], 0")
A("s_cmp_ge_u32 s2, 256")
A("s_cbranch_scc1 L_end")
for r, off in ((rWS, 96), (rX, 0), (rWQ, 24), (rK, 8), (rV, 16), (rWO, 32)):
    A(f"s_load_dwordx2 s[{r}:{r+1}], s[0:1], {off}")
A(f"v_lshrrev_b32 {v(TM)}, 6, v0")
A(f"v_and_b32 v0, 63, v0")
A(f"v_readfirstlane_b32 {sW}, {v(TM)}")
for r, n in ((rX, 2304), (rWQ, 4718592), (rK, 33554432), (rV, 33554432), (rWS, 268435456), (rWO, 4718592)):
    A(f"s_mov_b32 s{r+2}, {n}"); A(f"s_mov_b32 s{r+3}, 0x20000")
A(f"s_and_b32 {sX}, s2, 7")
A(f"s_lshr_b32 {sJ}, s2, 3")
A("s_mov_b32 s68, 0x00ff00ff"); A("s_mov_b32 s69, 0x00ff00ff")
G, C, B2 = v(TM+3), v(TM+4), v(TM+5)
A(f"v_lshrrev_b32 {G}, 4, v0")
A(f"v_and_b32 {C}, 15, v0")
A(f"v_lshlrev_b32 {vL16}, 4, v0")
A(f"v_lshlrev_b32 {vL128}, 7, v0")
for i in range(4): A(f"v_mov_b32 {v(EM+i)}, -1")
A(f"s_lshr_b32 {t0}, {sJ}, 4"); A(f"s_lshl_b32 {t3}, {sX}, 1"); A(f"s_add_u32 {t0}, {t0}, {t3}")
A(f"s_bfe_u32 {t1}, {sJ}, 0x10003")
A(f"s_and_b32 {t2}, {sJ}, 7")
A(f"s_mul_i32 {sGf}, {sX}, {GB}")
A(f"v_bfe_u32 {B2}, v0, 2, 1")
A(f"v_mul_u32_u24 {vXAm}, 1152, {B2}")
A(f"v_lshl_add_u32 {vXAm}, {G}, 4, {vXAm}")
A(f"s_mul_i32 {t4}, {t2}, 144")
A(f"v_add_u32 {vXAq}, {t4}, {vXAm}")
for i in range(12): A(f"v_mov_b32 {v(XA+i)}, 0x3f803f80")
A(f"v_lshlrev_b32 {v(TM+6)}, 13, {G}")
A(f"v_lshl_add_u32 {v(TM+6)}, {C}, 4, {v(TM+6)}")
A(f"s_mul_i32 {t3}, {t2}, 18"); A(f"s_add_u32 {t3}, {t3}, {sW}"); A(f"s_lshl_b32 {t3}, {t3}, 15")
A(f"s_lshl_b32 {t4}, {t0}, 9"); A(f"s_add_u32 {t3}, {t3}, {t4}"); A(f"s_lshl_b32 {t4}, {t1}, 8"); A(f"s_add_u32 {t3}, {t3}, {t4}")
A(f"s_lshl_b32 {t4}, {sW}, 10"); A(f"s_add_u32 m0, {t4}, {L_WQ}")
A(f"s_lshl_b32 {kv0}, {t1}, 24"); A(f"s_lshl_b32 {t4}, {t0}, 20"); A(f"s_add_u32 {kv0}, {kv0}, {t4}")
A(f"s_lshl_b32 {t4}, {t2}, 15"); A(f"s_add_u32 {kv0}, {kv0}, {t4}")
A(f"s_lshl_b32 {t4}, {sW}, 13"); A(f"s_add_u32 {kv0}, {kv0}, {t4}")
A(f"s_add_u32 {kv0}, {kv0}, {3072*256}"); A(f"s_add_u32 {kv1}, {kv0}, 4096")
A(f"v_xor_b32 {v(TM+7)}, {C}, {G}")
A(f"v_lshlrev_b32 {v(TM+7)}, 4, {v(TM+7)}")
A(f"v_lshl_add_u32 {v(KA)}, {G}, 8, {v(TM+7)}")
for i in range(1, 4): A(f"v_xor_b32 {v(KA+i)}, {64*i}, {v(KA)}")
A(f"s_lshl_b32 {sL}, {sJ}, 2"); A(f"s_add_u32 {sL}, {sL}, {sW}")
A(f"s_lshl_b32 {t4}, {sL}, 9"); A(f"s_add_u32 {t4}, {t4}, {QP_O}")
A(f"v_add_u32 {vQPst}, {t4}, {vL16}")
A(f"s_mov_b32 {t5}, {EP_O}")
A("s_waitcnt lgkmcnt(0)")
pstamp(0)
A("s_mov_b64 exec, 1")
A(f"buffer_load_dword {FN}, {vL16}, {srd(rWS)}, {t5} offen{NT}")
A("s_mov_b64 exec, -1")
def empty_share(base, fl):
    A(f"s_mul_i32 {t5}, {sL}, {CLR}"); A(f"s_add_u32 {t5}, {t5}, {base}")
    A(f"buffer_store_dwordx4 {v(EM,4)}, {vL16}, {srd(rWS)}, {t5} offen{fl}")
    A(f"buffer_store_dwordx4 {v(EM,4)}, {vL16}, {srd(rWS)}, {t5} offen offset:{CLR-1024}{fl}")
    A("s_mov_b32 exec_hi, 0")
    A(f"buffer_store_dwordx4 {v(EM,4)}, {vQPst}, {srd(rWS)}, {base} offen{fl}")
    A("s_mov_b32 exec_hi, -1")
for n in range(5):
    if n == 4:
        A(f"s_cmp_ge_u32 {sW}, 2"); A("s_cbranch_scc1 L_pro1")
    A(f"buffer_load_dwordx4 {v(TM+6)}, {srd(rWQ)}, {t3} offen{NT} lds")
    if n < 4: A(f"s_add_u32 {t3}, {t3}, {16*8192}"); A("s_add_u32 m0, m0, 4096")
A("L_pro1:")
for l in xa_loads(rX, vXAq, 0, 3, NT, True): A(l)
A(f"s_cmp_lg_u32 {sW}, 3")
A("s_cbranch_scc1 L_pro2")
A(f"v_lshrrev_b32 {v(TM+8)}, 5, v0"); A(f"v_and_b32 {v(TM+9)}, 31, v0")
A(f"v_mul_u32_u24 {vXS1}, 1152, {v(TM+8)}"); A(f"v_lshl_add_u32 {vXS2}, {v(TM+9)}, 2, {vXS1}"); A(f"v_lshl_add_u32 {vXS1}, {v(TM+9)}, 4, {vXS1}")
for l in xs_loads(rX, 0, NT): A(l)
A("L_pro2:")
empty_share(sGf, '')
A(f"s_add_u32 {t4}, {t4}, {sGf}")
A("s_mov_b64 exec, 15")
A(f"buffer_load_dword {DUM}, {vL128}, {srd(rWS)}, {t4} offen sc1{NT}")
A(f"s_add_u32 {sXoff}, {sGf}, {FF_O}")
A(f"buffer_load_dword {DUM}, {vL128}, {srd(rWS)}, {sXoff} offen sc1{NT}")
A("s_mov_b64 exec, -1")
A(f"s_lshl_b32 {t4}, {sW}, 13"); A(f"s_add_u32 m0, {t4}, {L_K}")
for i in range(8):
    if i == 4: A(f"s_add_u32 m0, m0, 4096")
    A(f"buffer_load_dwordx4 {v(KA+i%4)}, {srd(rK)}, {kv0 if i < 4 else kv1} offen offset:{1024*(i%4)}{NT} lds")

def constants():
    A(f"v_mul_u32_u24 {vWrow}, 1152, {G}")
    A(f"v_lshl_add_u32 {vWrow}, {C}, 4, {vWrow}")
    A(f"s_cmp_lt_u32 {sJ}, 18"); A(f"s_cselect_b32 {sRole}, 1, 0")
    A(f"s_cmp_ge_u32 {sJ}, 20"); A(f"s_cselect_b32 {t4}, 2, 0"); A(f"s_cmp_lt_u32 {sW}, 3"); A(f"s_cselect_b32 {t4}, {t4}, 0"); A(f"s_or_b32 {sRole}, {sRole}, {t4}")
    A(f"s_sub_u32 {sTask}, {sJ}, 20"); A(f"s_mul_i32 {sTask}, {sTask}, 3"); A(f"s_add_u32 {sTask}, {sTask}, {sW}"); A(f"s_min_u32 {sTask}, {sTask}, 35")
    A(f"s_lshl_b32 {t3}, {sX}, 4"); A(f"s_and_b32 {t4}, {sJ}, 15"); A(f"s_add_u32 {sWo}, {t3}, {t4}"); A(f"s_mul_i32 {sWo}, {sWo}, {32*1152}")
    A(f"s_lshl_b32 {t4}, {sW}, 8"); A(f"s_add_u32 {sWo}, {sWo}, {t4}")
    for r, n in ((rW1, 5308416), (rW2, 5308416), (rOUT, 2304), (rT1, 9216), (rT2, 1152)):
        A(f"s_mov_b32 s{r+2}, {n}"); A(f"s_mov_b32 s{r+3}, 0x20000")
    A("s_mov_b32 s70, 0xffff0000"); A("s_mov_b32 s71, 0xffff0000")
    A(f"v_lshlrev_b32 {vL4}, 2, v0")
    for i in range(12, 24): A(f"v_mov_b32 {v(XA+i)}, 0x3f803f80")
    A(f"s_lshl_b32 {t4}, {sW}, 13"); A(f"s_add_u32 {t4}, {t4}, {L_K}")
    A(f"v_lshl_add_u32 {v(KA)}, {C}, 8, {v(TM+7)}"); A(f"v_add_u32 {v(KA)}, {t4}, {v(KA)}")
    for i in range(1, 4): A(f"v_xor_b32 {v(KA+i)}, {64*i}, {v(KA)}")
    T_ = [v(TM+8+i) for i in range(10)]
    A(f"v_and_b32 {T_[0]}, 1, v0")
    A(f"v_mul_u32_u24 {vIdxP}, 0xaaaa, {T_[0]}"); A(f"v_add_u32 {vIdxP}, 0x4444, {vIdxP}")
    A(f"v_and_b32 {T_[1]}, 3, v0")
    A(f"v_mul_u32_u24 {vIdxS}, 0x5555, {T_[1]}")
    A(f"v_bfe_u32 {T_[2]}, v0, 4, 1")
    A(f"v_bfe_u32 {T_[3]}, v0, 2, 2")
    A(f"v_bfe_u32 {T_[4]}, v0, 3, 1")
    A(f"v_lshrrev_b32 {T_[5]}, 5, v0")
    A(f"v_and_b32 {T_[8]}, 7, v0")
    A(f"v_and_b32 {T_[9]}, 31, v0")
    A(f"s_lshr_b32 {t3}, {sJ}, 4")
    A(f"s_lshr_b32 {t5}, {sJ}, 3")
    A(f"s_lshl_b32 {t3}, {t3}, 1"); A(f"s_lshr_b32 {t4}, {sW}, 1"); A(f"s_add_u32 {t3}, {t3}, {t4}"); A(f"s_lshl_b32 {t3}, {t3}, 14")
    A(f"s_and_b32 {t4}, {sW}, 1"); A(f"s_lshl_b32 {t4}, {t4}, 10"); A(f"s_add_u32 {t3}, {t3}, {t4}")
    A(f"s_lshl_b32 {t4}, {t1}, 8"); A(f"s_add_u32 {t3}, {t3}, {t4}"); A(f"s_add_u32 {t3}, {t3}, {QP_O}")
    A(f"v_lshl_add_u32 {vQPg}, {T_[5]}, 4, {T_[2]}"); A(f"v_lshlrev_b32 {vQPg}, 9, {vQPg}"); A(f"v_lshl_add_u32 {vQPg}, {C}, 4, {vQPg}"); A(f"v_add_u32 {vQPg}, {t3}, {vQPg}")
    A(f"v_add_u32 {vQPg2}, 4096, {vQPg}")
    A(f"s_and_b32 {t3}, {sW}, 1"); A(f"s_lshl_b32 {t3}, {t3}, 8"); A(f"s_lshr_b32 {t4}, {sW}, 1"); A(f"s_lshl_b32 {t4}, {t4}, 7"); A(f"s_add_u32 {t3}, {t3}, {t4}")
    A(f"v_bfe_u32 {T_[6]}, v0, 3, 2"); A(f"v_bfe_u32 {T_[7]}, v0, 1, 2")
    A(f"v_lshlrev_b32 {vQTw}, 5, {T_[6]}"); A(f"v_lshl_add_u32 {vQTw}, {T_[0]}, 4, {vQTw}"); A(f"v_lshl_add_u32 {vQTw}, {T_[7]}, 2, {vQTw}")
    A(f"v_lshl_add_u32 {vQTw}, {T_[5]}, 1, {vQTw}"); A(f"v_add_u32 {vQTw}, {t3}, {vQTw}")
    A(f"v_lshlrev_b32 {vQTr}, 5, {G}"); A(f"v_lshl_add_u32 {vQTr}, {T_[4]}, 7, {vQTr}"); A(f"v_lshl_add_u32 {vQTr}, {T_[0]}, 4, {vQTr}")
    A(f"v_mul_u32_u24 {vOTr}, 640, {T_[4]}"); A(f"v_lshl_add_u32 {vOTr}, {G}, 5, {vOTr}"); A(f"v_lshl_add_u32 {vOTr}, {B2}, 4, {vOTr}")
    A(f"s_mul_i32 {t3}, {sW}, 1280"); A(f"s_add_u32 {t3}, {t3}, {L_PT}")
    A(f"v_add_u32 {vPTr}, {t3}, {vOTr}"); A(f"v_add_u32 {vOTr}, {L_OT}, {vOTr}")
    A(f"v_bfe_u32 {T_[6]}, v0, 1, 4")
    A(f"v_mul_u32_u24 {vPTw}, 640, {T_[5]}"); A(f"v_lshl_add_u32 {vPTw}, {T_[6]}, 5, {vPTw}"); A(f"v_lshl_add_u32 {vPTw}, {T_[0]}, 3, {vPTw}"); A(f"v_add_u32 {vPTw}, {t3}, {vPTw}")
    A(f"v_lshrrev_b32 {vHPr}, 1, v0"); A(f"v_lshlrev_b32 {vHPr}, 4, {vHPr}"); A(f"v_lshl_add_u32 {vHPr}, {T_[0]}, 2, {vHPr}"); A(f"v_add_u32 {vHPr}, {L_HP}, {vHPr}")
    A(f"s_lshl_b32 {t3}, {sW}, 9"); A(f"s_add_u32 {t3}, {t3}, {L_HP}"); A(f"v_add_u32 {vHPw}, {t3}, {vL16}")
    A(f"s_lshl_b32 {t3}, {t5}, 9"); A(f"s_add_u32 {t3}, {t3}, {ST_O}")
    A(f"s_lshl_b32 {t4}, {t2}, 2"); A(f"s_add_u32 {t4}, {t4}, {sW}"); A(f"s_lshl_b32 {t4}, {t4}, 2"); A(f"s_add_u32 {t4}, {t4}, {t3}")
    A(f"v_lshlrev_b32 {vSTst}, 8, {T_[5]}"); A(f"v_lshl_add_u32 {vSTst}, {T_[0]}, 7, {vSTst}"); A(f"v_add_u32 {vSTst}, {t4}, {vSTst}")
    A(f"s_lshl_b32 {t3}, {t1}, 1"); A(f"s_lshr_b32 {t4}, {sW}, 1"); A(f"s_add_u32 {t3}, {t3}, {t4}"); A(f"s_lshl_b32 {t3}, {t3}, 9"); A(f"s_add_u32 {t3}, {t3}, {ST_O}")
    A(f"s_lshr_b32 {t4}, {t2}, 2"); A(f"s_lshl_b32 {t4}, {t4}, 8"); A(f"s_add_u32 {t3}, {t3}, {t4}")
    A(f"v_lshrrev_b32 {T_[7]}, 3, v0")
    A(f"v_lshl_add_u32 {vSTg}, {T_[7]}, 4, {t3}")
    A(f"s_and_b32 {t4}, {sW}, 1"); A(f"s_lshl_b32 {t4}, {t4}, 3"); A(f"v_add_u32 {vSTm}, {t4}, {vSTg}")
    A(f"s_lshr_b32 {t3}, {sJ}, 4"); A(f"s_lshl_b32 {t3}, {t3}, 16"); A(f"s_lshl_b32 {t4}, {t1}, 12"); A(f"s_add_u32 {t3}, {t3}, {t4}")
    A(f"s_lshl_b32 {t4}, {sW}, 10"); A(f"s_add_u32 {t3}, {t3}, {t4}"); A(f"s_lshl_b32 {t4}, {t2}, 7"); A(f"s_add_u32 {t3}, {t3}, {t4}")
    A(f"v_lshlrev_b32 {T_[6]}, 5, {T_[1]}"); A(f"v_lshl_add_u32 {T_[6]}, {T_[2]}, 4, {T_[6]}")
    A(f"v_lshl_add_u32 {vOPst}, {T_[5]}, 2, {T_[3]}"); A(f"v_lshl_add_u32 {vOPst}, {vOPst}, 13, {T_[6]}"); A(f"v_add_u32 {vOPst}, {t3}, {vOPst}")
    A(f"s_and_b32 {t3}, {sJ}, 15"); A(f"s_lshl_b32 {t3}, {t3}, 13"); A(f"s_lshl_b32 {t4}, {sW}, 11"); A(f"s_add_u32 {t3}, {t3}, {t4}"); A(f"v_add_u32 {vOPg}, {t3}, {vL16}")
    A(f"s_lshr_b32 {t3}, {sW}, 1"); A(f"s_mul_i32 {t3}, {t3}, 640"); A(f"s_and_b32 {t4}, {sW}, 1"); A(f"s_lshl_b32 {t4}, {t4}, 1"); A(f"s_add_u32 {t3}, {t3}, {t4}"); A(f"s_add_u32 {t3}, {t3}, {L_OT}")
    A(f"v_mul_u32_u24 {vOTw}, 20, {T_[4]}"); A(f"v_lshl_add_u32 {vOTw}, {T_[8]}, 6, {vOTw}"); A(f"v_lshl_add_u32 {vOTw}, {T_[5]}, 5, {vOTw}")
    A(f"v_lshl_add_u32 {vOTw}, {T_[2]}, 3, {vOTw}"); A(f"v_add_u32 {vOTw}, {t3}, {vOTw}")
    A(f"s_mul_i32 {t3}, {sW}, {4*2304}"); A(f"s_lshl_b32 {t4}, {sJ}, 7"); A(f"s_add_u32 {t3}, {t3}, {t4}"); A(f"s_add_u32 {t3}, {t3}, {Y_O}")
    A(f"v_mul_u32_u24 {vMst}, 18, {T_[5]}"); A(f"v_add_u32 {vMst}, {vMst}, {T_[3]}"); A(f"v_mul_u32_u24 {vMst}, 2304, {vMst}")
    A(f"v_add3_u32 {vMst}, {vMst}, {T_[6]}, {t3}")
    A(f"v_subrev_u32 {vYst}, 2048, {vMst}")
    A(f"v_mul_u32_u24 {vXS1}, 1152, {T_[5]}"); A(f"v_lshl_add_u32 {vXS2}, {T_[9]}, 2, {vXS1}"); A(f"v_lshl_add_u32 {vXS1}, {T_[9]}, 4, {vXS1}")
    A(f"s_lshl_b32 {t3}, {t1}, 3"); A(f"s_add_u32 {t3}, {t3}, {L_STAT}"); A(f"v_mov_b32 {vSTATr}, {t3}")
    A(f"s_mul_i32 {t4}, {sW}, 384"); A(f"v_add_u32 {vXAm}, {t4}, {vXAm}")
    A(f"s_mul_i32 {t4}, {sX}, 18"); A(f"s_add_u32 {t4}, {t4}, {sJ}"); A(f"s_lshl_b32 {t5}, {t4}, 6")
    A(f"v_lshl_add_u32 {vB1}, {T_[9]}, 1, {t5}")
    A(f"s_mul_i32 {t4}, {sTask}, 2304"); A(f"s_add_u32 {t4}, {t4}, {Y_O}"); A(f"v_add_u32 {vRg}, {t4}, {vL16}")
    A(f"s_lshl_b32 {t4}, {sTask}, 13"); A(f"s_lshl_b32 {t5}, {sX}, 10"); A(f"s_add_u32 {t5}, {t5}, {t4}"); A(f"v_lshl_add_u32 {vXPg}, v0, 3, {t5}")
    A(f"v_lshl_add_u32 {T_[7]}, {T_[8]}, 2, {G}")
    A(f"s_lshl_b32 {t5}, {sX}, 7"); A(f"s_add_u32 {t4}, {t4}, {t5}"); A(f"v_lshl_add_u32 {vXPst}, {T_[7]}, 2, {t4}")
    A(f"v_lshl_add_u32 {vXPst}, {T_[4]}, 10, {vXPst}")
    A(f"v_lshl_add_u32 {T_[7]}, {C}, 1, {T_[5]}")
    A(f"s_lshl_b32 {t4}, {sTask}, 6"); A(f"v_lshl_add_u32 {vZo}, {T_[7]}, 1, {t4}")
    A(f"v_add_u32 {vZst}, {Z1_O}, {vZo}")
    A(f"s_and_b32 {t5}, {sTask}, 7"); A(f"s_cmp_eq_u32 {t5}, {sX}"); A(f"s_cselect_b32 {t5}, 4, 0"); A(f"s_or_b32 {sRole}, {sRole}, {t5}")
    A(f"s_cmp_ge_u32 {sTask}, 18"); A(f"s_cselect_b32 {t5}, 1152, 0")
    A(f"v_subrev_u32 {vB2}, {t5}, {vZo}")

def constants1():
    A(f"v_and_b32 {v(TM+8)}, 1, v0")
    A(f"v_mul_u32_u24 {vIdxD}, 0x5555, {v(TM+8)}"); A(f"v_add_u32 {vIdxD}, 0x8888, {vIdxD}")
    A(f"v_mov_b32 {vOnes}, 0x3f803f80")
    A(f"s_lshl_b32 {t3}, {sW}, 6"); A(f"s_add_u32 {t3}, {t3}, {L_WQ}")
    A(f"v_lshlrev_b32 {vCq}, 10, {G}"); A(f"v_lshl_add_u32 {vCq}, {C}, 2, {vCq}"); A(f"v_add_u32 {vCq}, {t3}, {vCq}")
    for i in range(16, 24): A(f"v_accvgpr_write_b32 {a(aWQ+i)}, 0")
    zero(D0, 8)
    A(f"ds_write_b128 {v(D0)}, {v(EM,4)} offset:{L_STAT}"); A(f"ds_write_b128 {v(D0)}, {v(EM,4)} offset:{L_STAT+16}")
    A(f"s_lshl_b32 {t3}, {sW}, 11"); A(f"v_add_u32 {v(TM+8)}, {t3}, {vL16}")
    A(f"ds_write_b128 {v(TM+8)}, {v(D1,4)} offset:1024"); A(f"ds_write_b128 {v(TM+8)}, {v(D1,4)} offset:2048")

fl_load = ["s_mov_b32 exec_hi, 0", f"buffer_load_dwordx4 {v(FG,4)}, {vL16}, {srd(rWS)}, {sXoff} offen sc1", "s_mov_b32 exec_hi, -1"]
qp_store = f"buffer_store_dwordx4 {v(D0,4)}, {vQPst}, {srd(rWS)}, {{so}} offen{{fl}}"
def qg(n): return [f"buffer_load_dwordx{n} {v(QG+4*p,n)}, {vQPg if p < 2 else vQPg2}, {srd(rWS)}, {sGp} offen offset:{2048*(p%2)} sc1" for p in range(4)]
qg4, qg2 = qg(4), qg(2)
pstamp(3)
for r, off in ((rW1, 48), (rW2, 64), (rOUT, 80), (rT1, 56), (rT2, 72)):
    A(f"s_load_dwordx2 s[{r}:{r+1}], s[0:1], {off}")
constants1()
A(f"s_mov_b32 {sTO}, 0x40000"); A(f"s_mov_b32 {sMode}, 0"); A(f"s_mov_b32 {sGp}, {sGf}")
cnt = [2 + 8]
mark = {}
def vm(s): A(s); cnt[0] += 1
def hookQ():
    A(f"s_lshl_b32 {t4}, {sL}, 2"); A(f"s_add_u32 {t4}, {t4}, {sXoff}")
    A(f"s_waitcnt vmcnt({cnt[0]}) lgkmcnt(0)")
    A(f"v_readfirstlane_b32 {sFlag}, {FN}")
    A(f"s_getreg_b32 {t3}, hwreg(HW_REG_XCC_ID)"); A(f"s_lshl_b32 {t3}, {t3}, 28")
    A(f"s_add_u32 {sFlag}, {sFlag}, 0x0e377901"); A(f"s_and_b32 {sFlag}, {sFlag}, 0x0fffffff"); A(f"s_or_b32 {sFlag}, {sFlag}, {t3}")
    A(f"v_mov_b32 {FN}, {sFlag}")
    A("s_mov_b64 exec, 1")
    vm(f"buffer_store_dword {FN}, {vL16}, {srd(rWS)}, {t4} offen")
    A("s_mov_b64 exec, -1")
    pstamp(1)
    A("s_barrier")
    pstamp(2)
    for i in range(2):
        for vv in range(0, 8, 2):
            row = 32*i + 16*(vv >> 2) + (vv & 3)
            A(f"ds_read2st64_b32 {a(aWQ+8*i+vv,2)}, {vCq} offset0:{row} offset1:{row+1}")
    A("s_mov_b32 exec_hi, 0")
    for vv in (0, 2): A(f"ds_read2st64_b32 {a(aWQ+16+vv,2)}, {vCq} offset0:{64+vv} offset1:{65+vv}")
    A("s_mov_b32 exec_hi, -1")
    A("s_waitcnt lgkmcnt(0)")
    for i in range(3): sm(D0, XA+4*i, aWQ+8*i, vIdxD)
    A("s_mov_b32 exec_hi, 0")
    vm(qp_store.format(so=sGf, fl=''))
    A("s_mov_b32 exec_hi, -1")
    A(f"s_cmp_lg_u32 {sW}, 3")
    A("s_cbranch_scc1 L_hQ")
    stats(0)
    A("L_hQ:")
def hookT():
    A(f"s_mul_i32 {t4}, {sL}, {CLR}"); A(f"s_add_u32 {t4}, {t4}, {sGf}")
    A(f"s_lshl_b32 {t5}, {sL}, 9"); A(f"s_add_u32 {t5}, {t5}, {sGf}"); A(f"s_add_u32 {t5}, {t5}, {QP1_O}")
    A("s_mov_b64 exec, 0x3fff")
    vm(f"buffer_load_dword {DUM}, {vL128}, {srd(rWS)}, {t4} offen sc1{NT}")
    A("s_mov_b64 exec, 15")
    vm(f"buffer_load_dword {DUM}, {vL128}, {srd(rWS)}, {t5} offen sc1{NT}")
    A("s_mov_b64 exec, -1")
def hookC():
    constants()
    pstamp(4)
    A("s_waitcnt lgkmcnt(0)")
    vm(f"buffer_load_ushort {vXres}, {vZo}, {srd(rX)}, 0 offen{NT}")
    vm(f"buffer_load_ushort {vB2}, {vB2}, {srd(rT2)}, 0 offen{NT}")
    vm(f"buffer_load_ushort {vB1}, {vB1}, {srd(rT1)}, 0 offen{NT}")
def hookL():
    A(fl_load[0]); vm(fl_load[1]); A(fl_load[2])
    mark.setdefault('L', []).append(cnt[0])
for k in range(9):
    if k == args.pQ: hookQ()
    if k == args.pT: hookT()
    if k == args.pC: hookC()
    if k in [int(p) for p in args.pL.split(',')]: hookL()
    if k < 8: vm(f"buffer_load_dwordx4 {a(aV+4*k,4)}, {vL16}, {srd(rV)}, {kv0 if k < 4 else kv1} offen offset:{1024*(k%4)}{NT}")
stamp()
pstamp(9)
A(f"s_waitcnt vmcnt({cnt[0]-mark['L'][0]})")
for T in range(2):
    for q in range(4): A(f"ds_read_b128 {a(aK+16*T+4*q,4)}, {v(KA+q)} offset:{4096*T}")
def flags_diff():
    A(f"v_xor_b32 {CK}, {sFlag}, {v(FG)}")
    for i in range(1, 4): A(f"v_bitop3_b32 {CK}, {CK}, {v(FG+i)}, {sFlag} bitop3:0xf6")
for n, m in enumerate(mark['L']):
    if n: A(f"s_waitcnt vmcnt({cnt[0]-m})")
    flags_diff()
    A(f"v_cmp_ne_u32 vcc, 0, {CK}")
    A("s_cmp_lg_u32 vcc_lo, 0")
    if args.forcefb: A("s_cmp_eq_u32 0, 0")
    A("s_cbranch_scc0 L_g0b" if n < len(mark['L']) - 1 else "s_cbranch_scc1 L_af2")
A("L_g0b:")
if ST and not args.pro: A(f"s_memrealtime s[74:75]")
pstamp(5)
for l in qg4: A(l)
A(f"s_mov_b32 {sL}, 0")
A(f"s_and_b32 {t3}, {sFlag}, 0xff"); A(f"v_mov_b32 {vTag}, {t3}")
A(f"s_mov_b32 {sXPo}, {XP_O}")
zero(D0)
qchk = check_text([v(QG+i) for i in range(16)] + [v(TM+1)])
st_rd = f"ds_read_b64 {v(TM,2)}, {vSTATr}"
def wo_loads(k0, k1, with_tail):
    for k in range(k0, k1):
        A(f"buffer_load_dwordx4 {a(aWO+4*k,4)}, {vWrow}, {srd(rWO)}, {sWo} offen{NT}")
        A(f"s_add_u32 {sWo}, {sWo}, 4608")
    if with_tail:
        l1 = A.newlabel('L_wt')
        A(f"s_cmp_lg_u32 {sW}, 3")
        A(f"s_cbranch_scc1 {l1}")
        A(f"s_mov_b64 exec, {mLO8}")
        for i in range(7, -1, -1):
            A(f"s_sub_u32 {sWo}, {sWo}, 4608")
            A(f"buffer_load_dwordx4 {a(aWOt+4*i,4)}, {vWrow}, {srd(rWO)}, {sWo} offen offset:256{NT}")
        A("s_mov_b64 exec, -1")
        A(f"{l1}:")
def wo_rest():
    l1 = A.newlabel('L_wr')
    A(f"s_lshr_b32 {t0}, {sJ}, 4"); A(f"s_andn2_b32 {t0}, {t0}, {sL}")
    A(f"s_cbranch_scc0 {l1}")
    wo_loads(args.wo0, 8, True)
    A(f"{l1}:")
A(st_rd)
A(f"s_cmp_lt_u32 {sJ}, 16")
A("s_cbranch_scc1 L_g1n")
A("s_barrier")
wo_loads(0, args.wo0, args.wo0 == 8)
pstamp(6)
A(f"s_waitcnt vmcnt({args.wo0+8}) lgkmcnt(0)")
if args.wo0 == 8:
    A(f"s_cmp_eq_u32 {sW}, 3"); A("s_cbranch_scc1 L_g1m")
A(f"s_waitcnt vmcnt({args.wo0})")
A("s_branch L_g1m")
A("L_g1n:")
pstamp(6)
A("s_waitcnt vmcnt(0) lgkmcnt(0)")
A("L_g1m:")
pstamp(7)
for l in qchk: A(l)
A("s_cbranch_vccnz L_g4")
A("L_g3:")
tail.append("L_g4:\n" + "\n".join(qg4) + f"\n{st_rd}\ns_waitcnt vmcnt(0) lgkmcnt(0)\n" + timeout("L_g1m", "L_g3"))
pstamp(8)
A(f"v_add_f32 {v(TM+2)}, {v(QG+2)}, {v(QG+6)}"); A(f"v_add_f32 {v(TM+3)}, {v(QG+3)}, {v(QG+7)}")
A(f"v_add_f32 {v(TM+4)}, {v(QG+10)}, {v(QG+14)}"); A(f"v_add_f32 {v(TM+5)}, {v(QG+11)}, {v(QG+15)}")
A(f"v_add_f32 {v(TM+2)}, {v(TM+2)}, {v(TM+4)}"); A(f"v_add_f32 {v(TM+3)}, {v(TM+3)}, {v(TM+5)}")
A(f"v_permlane32_swap_b32 {v(TM+2)}, {v(TM+3)}")
A(f"v_add_f32 {vCq}, {v(TM+2)}, {v(TM+3)}")
A("s_branch L_qfin")

A("L_layer:")
zero(D0, 8)
poll_proj(vXAq, sXoff, 3, aWQ, args.dz, True)
A("s_mov_b32 exec_hi, 0")
pub(qp_store)
A("s_mov_b32 exec_hi, -1")
zero(D0)
A(f"s_cmp_lg_u32 {sW}, 3")
A("s_cbranch_scc1 L_qdone")
poll(xs_loads(rWS, sXoff, ' sc1'), [v(XS+i) for i in range(9)], depth=args.dz)
stats(16)
A("L_qdone:")
nst[0] = 1
stamp()
poll(qg2 + [f"ds_read_b64 {v(TM,2)}, {vSTATr} offset:16"], [v(QG+4*p+i) for p in range(4) for i in range(2)] + [v(TM+1)], depth=args.di, extra_wait=" lgkmcnt(0)")
A("L_qfin:")
stamp()
A(f"v_add_f32 {v(TM+2)}, {v(QG)}, {v(QG+4)}"); A(f"v_add_f32 {v(TM+3)}, {v(QG+1)}, {v(QG+5)}")
A(f"v_add_f32 {v(TM+4)}, {v(QG+8)}, {v(QG+12)}"); A(f"v_add_f32 {v(TM+5)}, {v(QG+9)}, {v(QG+13)}")
A(f"v_add_f32 {v(TM+2)}, {v(TM+2)}, {v(TM+4)}"); A(f"v_add_f32 {v(TM+3)}, {v(TM+3)}, {v(TM+5)}")
A(f"v_permlane32_swap_b32 {v(TM+2)}, {v(TM+3)}")
A(f"v_fma_f32 {v(TM+2)}, -{v(TM)}, {vCq}, {v(TM+2)}")
A(f"v_add_f32 {v(TM+2)}, {v(TM+2)}, {v(TM+3)}")
A(f"v_mul_f32 {v(TM+2)}, {v(TM+2)}, {v(TM+1)}")
A(f"v_cvt_pk_bf16_f32 {v(TM+2)}, {v(TM+2)}, {v(TM+2)}")
A(f"ds_write_b16 {vQTw}, {v(TM+2)} offset:{L_QT}")
A("s_mov_b32 vcc_lo, 0xaaaaaaaa"); A("s_mov_b32 vcc_hi, 0xaaaaaaaa")
zero(DP)
if args.wopos == 'q' and args.wo0 < 8: wo_rest()
A("s_waitcnt lgkmcnt(0)")
A("s_barrier")
A(f"ds_read_b128 {v(AO,4)}, {vQTr} offset:{L_QT}")
A(f"ds_read_b128 {v(AO+4,4)}, {vQTr} offset:{L_QT+256}")
A(f"s_waitcnt lgkmcnt({lg(1)})")
sm(D0, AO, aK, vIdxP); sm(D1, AO, aK+16, vIdxP)
A("s_waitcnt lgkmcnt(0)")
sm(D0, AO+4, aK+8, vIdxP); sm(D1, AO+4, aK+24, vIdxP)
SC, MX, P_, LS, TT = v(TM), v(TM+1), v(TM+2), v(TM+3), v(TM+4)
A(f"v_add_f32 {SC}, {v(D0)}, {v(D0+1)}")
A(f"v_add_f32 {TT}, {v(D1)}, {v(D1+1)}")
A(f"v_cndmask_b32 {SC}, {SC}, {TT}, {mROW}")
rbf(SC, SC)
A(f"v_mul_f32 {SC}, {f32(128 ** -0.5)}, {SC}")
rbf(SC, SC)
A(f"v_mul_f32 {SC}, {f32(1.4426950408889634)}, {SC}")
zero(D0, 2)
A(f"v_max_f32_dpp {MX}, {SC}, {SC} row_ror:8 row_mask:0xf bank_mask:0xf")
for n, k in enumerate((4, 2, 1)):
    zero(D0+2+2*n, 2)
    A(f"v_max_f32_dpp {MX}, {MX}, {MX} row_ror:{k} row_mask:0xf bank_mask:0xf")
A(f"v_mov_b32 {TT}, {MX}")
A(f"v_permlane16_swap_b32 {MX}, {TT}")
A(f"v_max_f32 {MX}, {MX}, {TT}")
A(f"v_sub_f32 {P_}, {SC}, {MX}")
A(f"v_exp_f32 {P_}, {P_}")
A(f"v_cvt_pk_bf16_f32 {TT}, {P_}, 0")
A(f"ds_write2_b32 {vPTw}, {TT}, {TT} offset1:5")
for i in range(4): A(f"ds_read_b128 {v(AO+4*i,4)}, {vPTr} offset:{128*i}")
A(f"v_add_f32_dpp {LS}, {P_}, {P_} row_ror:8 row_mask:0xf bank_mask:0xf")
for k in (4, 2, 1): A(f"v_add_f32_dpp {LS}, {LS}, {LS} row_ror:{k} row_mask:0xf bank_mask:0xf")
A(f"v_mov_b32 {SC}, {LS}")
A(f"v_permlane16_swap_b32 {LS}, {SC}")
A(f"v_add_f32 {LS}, {LS}, {SC}")
A(f"v_cndmask_b32 {SC}, {MX}, {LS}, vcc")
A("s_mov_b32 exec_lo, 3"); A("s_mov_b32 exec_hi, 3")
pub(f"buffer_store_dword {SC}, {vSTst}, {srd(rWS)}, {{so}} offen{{fl}}")
A("s_mov_b64 exec, -1")
for i in range(4):
    A(f"s_waitcnt lgkmcnt({lg(3-i)})")
    sm(DP, AO+4*i, aV+8*i, vIdxS)
pub(f"buffer_store_dwordx4 {v(DP,4)}, {vOPst}, {srd(rWS)}, {{so}} offen{{fl}}")
stamp()
if args.wopos == 'o' and args.wo0 < 8: wo_rest()
A(f"s_cmp_lg_u32 {sL}, 0")
A("s_cbranch_scc1 L_o0")
A(f"v_add_u32 {vQPst}, {QP1_O-QP_O}, {vQPst}")
A("s_mov_b32 exec_hi, 0")
pub(f"buffer_store_dwordx4 {v(EM,4)}, {vQPst}, {srd(rWS)}, {{so}} offen{{fl}}")
A("s_mov_b32 exec_hi, -1")
A("L_o0:")
E = TM + 5
R = TM + 12
def tile_out(wb, tb, vst):
    l1 = A.newlabel('L_t'); l2 = A.newlabel('L_t')
    for i in range(4):
        A(f"s_waitcnt lgkmcnt({lg(3-i)})")
        sm(D0, AO+4*i, wb+8*i, vIdxS)
    A(f"s_cmp_lg_u32 {sW}, 3")
    A(f"s_cbranch_scc1 {l1}")
    for i in range(4): sm(D1, AO+4*i, tb+8*i, vIdxS)
    A(f"{l1}:")
    A("s_waitcnt vmcnt(0)")
    A("s_nop 4")
    pub(f"buffer_store_dwordx4 {v(D0,4)}, {vst}, {srd(rWS)}, {{so}} offen{{fl}}")
    A(f"s_cmp_lg_u32 {sW}, 3")
    A(f"s_cbranch_scc1 {l2}")
    A(f"s_mov_b64 exec, {mLO8}")
    pub(f"buffer_store_dwordx4 {v(D1,4)}, {v(E+2)}, {srd(rWS)}, {{so}} offen{{fl}}")
    A("s_mov_b64 exec, -1")
    A(f"{l2}:")
A(f"s_cmp_lt_u32 {sJ}, 16")
A("s_cbranch_scc1 L_mlp")
poll([f"buffer_load_dwordx4 {v(SG,4)}, {vSTg}, {srd(rWS)}, {sGp} offen sc1",
      f"buffer_load_dwordx4 {v(SG+4,4)}, {vSTg}, {srd(rWS)}, {sGp} offen offset:128 sc1",
      f"buffer_load_dwordx2 {v(SG+8,2)}, {vSTm}, {srd(rWS)}, {sGp} offen sc1"], [v(SG+i) for i in range(10)], depth=max(1, args.di - 1))
op_load = [f"buffer_load_dwordx4 {v(OG+4*i,4)}, {vOPg}, {srd(rWS)}, {sGp} offen offset:{1024*i} sc1" for i in range(2)]
for l in op_load: A(l)
A(f"v_max3_f32 {MX}, {v(SG)}, {v(SG+1)}, {v(SG+2)}")
A(f"v_max_f32 {MX}, {MX}, {v(SG+3)}")
A(f"v_max_f32_dpp {MX}, {MX}, {MX} row_ror:8 row_mask:0xf bank_mask:0xf")
for sw in ('16', '32'):
    A(f"v_mov_b32 {TT}, {MX}"); A(f"v_permlane{sw}_swap_b32 {MX}, {TT}"); A(f"v_max_f32 {MX}, {MX}, {TT}")
if args.di > 1:
    for l in op_load: A(l)
for n, i in enumerate((0, 1, 2, 3, 8, 9)): A(f"v_sub_f32 {v(E+n)}, {v(SG+i)}, {MX}")
for n in range(6): A(f"v_exp_f32 {v(E+n)}, {v(E+n)}")
A(f"v_mul_f32 {LS}, {v(E)}, {v(SG+4)}")
for i in (1, 2, 3): A(f"v_fmac_f32 {LS}, {v(E+i)}, {v(SG+4+i)}")
if args.di > 2:
    for l in op_load: A(l)
A(f"v_add_f32_dpp {LS}, {LS}, {LS} row_ror:8 row_mask:0xf bank_mask:0xf")
for sw in ('16', '32'):
    A(f"v_mov_b32 {TT}, {LS}"); A(f"v_permlane{sw}_swap_b32 {LS}, {TT}"); A(f"v_add_f32 {LS}, {LS}, {TT}")
A(f"v_rcp_f32 {LS}, {LS}")
A(f"v_add_u32 {v(E+2)}, {4*2304}, {vYst}")
A(f"v_mul_f32 {v(E+4)}, {LS}, {v(E+4)}"); A(f"v_mul_f32 {v(E+5)}, {LS}, {v(E+5)}")
poll(op_load, [v(OG+i) for i in range(8)], depth=args.di, primed=min(3, args.di))
stamp()
for i in range(4): A(f"v_mul_f32 {v(R+i)}, {v(OG+i)}, {v(E+4)}")
for i in range(4): A(f"v_fmac_f32 {v(R+i)}, {v(OG+4+i)}, {v(E+5)}")
treduce(R)
A(f"v_cvt_pk_bf16_f32 {TT}, {v(R)}, {v(R)}")
A(f"ds_write_b16 {vOTw}, {TT}")
pub(*[f"buffer_store_dwordx4 {v(EM,4)}, {vOPg}, {srd(rWS)}, {{so}} offen offset:{1024*i}{{fl}}" for i in range(2)])
A("s_waitcnt lgkmcnt(0)")
A("s_barrier")
for i in range(4): A(f"ds_read_b128 {v(AO+4*i,4)}, {vOTr} offset:{128*i}")
tile_out(aWO, aWOt, vYst)
stamp()

def reducer(kind):
    ld = [f"buffer_load_dwordx4 {v(YG+4*i,4)}, {vRg}, {srd(rWS)}, {sGp} offen offset:{1024*i} sc1" for i in range(2)]
    A(f"s_add_u32 {t3}, {sXPo}, 4096"); A(f"s_movk_i32 {t4}, 0xff")
    if kind == 'A':
        poll(ld, [v(YG+i) for i in range(8)], depth=args.di)
        for i in range(4): A(f"v_add_f32 {v(R+i)}, {v(YG+i)}, {v(YG+4+i)}")
    else:
        poll(ld + ["s_mov_b64 exec, 0xffff", f"buffer_load_dwordx4 {v(YG+8,4)}, {vRg}, {srd(rWS)}, {sGp} offen offset:2048 sc1", "s_mov_b64 exec, -1"],
             [v(YG+i) for i in range(12)], depth=args.di)
        for i in range(4): A(f"v_add_f32 {v(R+i)}, {v(YG+i)}, {v(YG+4+i)}")
        for i in range(4): A(f"v_add_f32 {v(R+i)}, {v(R+i)}, {v(YG+8+i)}")
    stamp()
    treduce(R)
    A(f"v_bfi_b32 {v(R)}, {t4}, {vTag}, {v(R)}")
    for k in range(4): A(f"buffer_store_dword {v(R)}, {vXPst}, {srd(rWS)}, {sXPo if k < 2 else t3} offen offset:{2048*(k%2)} sc1")
    if kind == 'M':
        A(f"s_lshl_b32 {t0}, {sL}, 2"); A(f"s_andn2_b32 {t0}, {t0}, {sRole}")
        A("s_cbranch_scc1 L_fin")
    cl = [f"buffer_store_dwordx4 {v(EM,4)}, {vRg}, {srd(rWS)}, {{so}} offen offset:{1024*i}{{fl}}" for i in range(2)]
    if kind == 'M': cl += ["s_mov_b64 exec, 0xffff", f"buffer_store_dwordx4 {v(EM,4)}, {vRg}, {srd(rWS)}, {{so}} offen offset:2048{{fl}}", "s_mov_b64 exec, -1"]
    pub(*cl)
    poll([f"buffer_load_dwordx2 {v(XG,2)}, {vXPg}, {srd(rWS)}, {sXPo} offen sc1",
          f"buffer_load_dwordx2 {v(XG+2,2)}, {vXPg}, {srd(rWS)}, {sXPo} offen offset:512 sc1"], None, depth=args.dxx,
         chk=[f"v_xor_b32 {v(R+i)}, {vTag}, {v(XG+i)}" for i in range(4)] +
             [f"v_or3_b32 {CK}, {v(R)}, {v(R+1)}, {v(R+2)}", f"v_bitop3_b32 {CK}, {CK}, {v(R+3)}, {t4} bitop3:0xa8", f"v_cmp_ne_u32 vcc, 0, {CK}"])
    stamp()
    Y = v(R)
    A(f"v_add_f32 {v(R)}, {v(R)}, {v(R+2)}"); A(f"v_add_f32 {v(R+1)}, {v(R+1)}, {v(R+3)}")
    A(f"v_permlane32_swap_b32 {v(R)}, {v(R+1)}")
    A(f"v_add_f32 {TT}, {v(R)}, {v(R+1)}"); A(f"v_add_f32 {Y}, {v(R)}, {v(R+1)}")
    A(f"v_permlane16_swap_b32 {Y}, {TT}"); A(f"v_add_f32 {Y}, {Y}, {TT}")
    rbf(Y, Y)
    if kind == 'M':
        A(f"v_add_f32 {Y}, {Y}, {vB2}"); rbf(Y, Y)
    A(f"v_add_f32 {TT}, {Y}, {vXres}")
    A(f"v_add_f32 {v(R+1)}, {Y}, {vXres}")
    A(f"v_add_f32 {Y}, {Y}, {vXres}")
    A("s_mov_b64 exec, -1")
    A(f"v_permlane32_swap_b32 {TT}, {v(R+1)}")
    A(f"v_cvt_pk_bf16_f32 {TT}, {TT}, {v(R+1)}")
    A("s_mov_b64 exec, 0xffff")
    if kind == 'M':
        A(f"s_cmp_lg_u32 {sL}, 0")
        A("s_cbranch_scc1 L_out")
    pub(f"buffer_store_dword {TT}, {vZst}, {srd(rWS)}, {{so}} offen{{fl}}")
    A("s_mov_b64 exec, -1")
    stamp()
    rbf(vXres, Y)
    A(f"v_add_u32 {vZst}, 2304, {vZst}")
    A(f"s_add_u32 {sXPo}, {sXPo}, {XPS}")

A(f"s_bitcmp1_b32 {sRole}, 0")
A("s_cbranch_scc1 L_mlp")
A(f"s_bitcmp1_b32 {sRole}, 1")
A("s_cbranch_scc0 L_next")
A(f"s_cmp_lg_u32 {sL}, 0")
A("s_cbranch_scc1 L_red")
A(f"v_lshlrev_b32 {vXres}, 16, {vXres}"); A(f"v_lshlrev_b32 {vB2}, 16, {vB2}")
zero(YG+8)
A("L_red:")
k0 = nst[0]
reducer('A'); reducer('M')
kr = nst[0]
A("s_branch L_next")
A("L_mlp:")
nst[0] = k0
A(f"s_cmp_lg_u32 {sL}, 0")
A("s_cbranch_scc1 L_m1")
A(f"s_mul_i32 {t0}, {sX}, 18"); A(f"s_add_u32 {t0}, {t0}, {sJ}")
A(f"s_lshl_b32 {t2}, {t0}, 6")
A(f"s_cmp_ge_u32 {sJ}, 16")
A("s_cbranch_scc1 L_m0b")
A(f"s_lshl_b32 {t1}, {sJ}, 2"); A(f"s_add_u32 {t1}, {t1}, {sW}")
A(f"s_mul_i32 {t4}, {sX}, 576"); A(f"s_add_u32 {t4}, {t4}, {t1}"); A(f"s_add_u32 {t4}, {t4}, 512"); A(f"s_mul_i32 {t4}, {t4}, 1152")
A(f"s_mul_i32 {t1}, {t1}, {9*9216}")
A(f"s_mul_i32 {t3}, {sX}, 1152"); A(f"s_add_u32 {t1}, {t1}, {t3}"); A(f"s_add_u32 {t3}, {t1}, {5*9216}")
A(f"v_mul_u32_u24 {TT}, 57, v0"); A(f"v_lshrrev_b32 {TT}, 9, {TT}"); A(f"v_mul_u32_u24 {TT}, {9216-1152}, {TT}"); A(f"v_add_u32 {TT}, {TT}, {vL128}")
A("s_mov_b32 exec_hi, 0x1fff")
A(f"buffer_load_dword {DUM}, {TT}, {srd(rW1)}, {t1} offen{NT}")
A("s_mov_b32 exec_hi, 15")
A(f"buffer_load_dword {DUM}, {TT}, {srd(rW1)}, {t3} offen{NT}")
A("s_mov_b64 exec, 0x1ff")
A(f"buffer_load_dword {DUM}, {vL128}, {srd(rW2)}, {t4} offen{NT}")
A("s_mov_b64 exec, -1")
A("L_m0b:")
A(f"s_mul_i32 {t0}, {t0}, {32*1152}")
A(f"s_lshl_b32 {t1}, {sW}, 8"); A(f"s_add_u32 {t1}, {t1}, {t0}")
for i in range(8):
    A(f"buffer_load_dwordx4 {a(aW2+4*i,4)}, {vWrow}, {srd(rW2)}, {t1} offen{NT}")
    if i < 7: A(f"s_add_u32 {t1}, {t1}, 4608")
A(f"s_cmp_lg_u32 {sW}, 3")
A("s_cbranch_scc1 L_m0a")
A(f"s_mov_b64 exec, {mLO8}")
for i in range(8):
    A(f"buffer_load_dwordx4 {a(aW2t+4*i,4)}, {vWrow}, {srd(rW2)}, {t0} offen offset:1024{NT}")
    if i < 7: A(f"s_add_u32 {t0}, {t0}, 4608")
A("s_mov_b64 exec, -1")
A("s_branch L_m0c")
A("L_m0a:")
A(f"v_lshrrev_b32 {TT}, 4, v0"); A(f"v_mul_u32_u24 {TT}, {4*9216}, {TT}"); A(f"v_and_b32 {LS}, 15, v0"); A(f"v_lshl_add_u32 {TT}, {LS}, 2, {TT}")
A(f"s_mul_i32 {t0}, {sW}, {192*9216}"); A(f"s_add_u32 {t0}, {t0}, {t2}")
prev = 0
for i in range(6):
    for vv in range(8):
        row = 32*i + 16*(vv >> 2) + (vv & 3)
        if row != prev: A(f"s_add_u32 {t0}, {t0}, {(row-prev)*9216}")
        prev = row
        A(f"buffer_load_dword {a(aW1+8*i+vv)}, {TT}, {srd(rW1)}, {t0} offen{NT}")
A("L_m0c:")
A("s_waitcnt vmcnt(16)")
A(f"v_lshlrev_b32 {vB1}, 16, {vB1}")
A("L_m1:")
zero(D0, 8)
c0 = -2 * 1.4426950408889634 * 0.7978845608028654
A(f"v_mov_b32 {v(E)}, {f32(c0)}")
A(f"v_lshrrev_b32 {v(E+1)}, 5, v0"); A(f"v_lshlrev_b32 {v(E+1)}, 3, {v(E+1)}")
A(f"v_add_u32 {v(E+2)}, {4*2304}, {vMst}")
A(f"s_mul_i32 {t0}, {sL}, {Z3_O-Z1_O}"); A(f"s_add_u32 {t0}, {t0}, {sGp}"); A(f"s_add_u32 {t0}, {t0}, {Z1_O}")
A(f"s_cmp_eq_u32 {sW}, 3")
A("s_cbranch_scc1 L_m2")
poll_proj(vXAm, t0, 6, aW1, args.dz)
A("s_mov_b32 exec_hi, 0")
A(f"ds_write_b128 {vHPw}, {v(D0,4)}")
A("s_mov_b32 exec_hi, -1")
A("s_branch L_m2b")
A("L_m2:")
poll(xs_loads(rWS, t0, ' sc1'), [v(XS+i) for i in range(9)], depth=args.dz)
stats(32)
A("L_m2b:")
stamp()
A("s_waitcnt lgkmcnt(0)")
A("s_barrier")
H = TM + 12
A(f"ds_read2_b32 {v(H,2)}, {vHPr} offset0:0 offset1:2")
A(f"ds_read2_b32 {v(H+2,2)}, {vHPr} offset0:128 offset1:130")
A(f"ds_read_b32 {v(H+4)}, {vHPr} offset:1024"); A(f"ds_read_b32 {v(H+5)}, {vHPr} offset:1032")
A(f"ds_read_b64 {v(TM,2)}, {v(E+1)} offset:{L_STAT+32}")
zero(D0)
A("s_waitcnt lgkmcnt(0)")
A(f"v_add_f32 {v(H)}, {v(H)}, {v(H+2)}"); A(f"v_add_f32 {v(H+1)}, {v(H+1)}, {v(H+3)}")
A(f"v_add_f32 {v(H)}, {v(H)}, {v(H+4)}"); A(f"v_add_f32 {v(H+1)}, {v(H+1)}, {v(H+5)}")
A(f"v_fma_f32 {v(H)}, -{S_}, {v(H+1)}, {v(H)}")
A(f"v_mul_f32 {v(H)}, {v(H)}, {Q_}")
rbf(v(H), v(H))
A(f"v_add_f32 {v(H)}, {v(H)}, {vB1}")
rbf(v(H), v(H))
A(f"v_mul_f32 {TT}, {v(H)}, {v(H)}")
A(f"v_fmac_f32 {v(E)}, {f32(c0*0.044715)}, {TT}")
A(f"v_mul_f32 {TT}, {v(E)}, {v(H)}")
A(f"v_exp_f32 {TT}, {TT}")
A(f"v_add_f32 {TT}, 1.0, {TT}")
A(f"v_rcp_f32 {TT}, {TT}")
A(f"v_mul_f32 {TT}, {TT}, {v(H)}")
A(f"v_cvt_pk_bf16_f32 {TT}, {TT}, 0")
A(f"ds_write2_b32 {vPTw}, {TT}, {TT} offset1:5")
for i in range(4): A(f"ds_read_b128 {v(AO+4*i,4)}, {vPTr} offset:{128*i}")
stamp()
tile_out(aW2, aW2t, vMst)
A("L_m4:")
stamp()
nst[0] = kr
A("L_next:")
A(f"s_cmp_lg_u32 {sL}, 0")
A("s_cbranch_scc1 L_fin")
if ST:
    A("s_waitcnt lgkmcnt(0)")
    for k in range(14): A(f"v_writelane_b32 {v(SV)}, s{72+2*k}, {1+k}")
    for k in range(14): A(f"s_mov_b64 s[{72+2*k}:{73+2*k}], 0")
A(f"s_mov_b32 {sL}, 1")
A(f"s_add_u32 {sXoff}, {sGp}, {Z2_O}")
A(f"v_add_u32 {vQPg}, {QP1_O-QP_O}, {vQPg}")
A(f"v_add_u32 {vQPg2}, {QP1_O-QP_O}, {vQPg2}")
for r in (vSTst, vSTg, vSTm): A(f"v_add_u32 {r}, {ST1_O-ST_O}, {r}")
A("s_branch L_layer")
A("L_out:")
A(f"buffer_store_dword {TT}, {vZo}, {srd(rOUT)}, 0 offen")
A(f"s_mov_b32 {t0}, {EP_O}")
A("s_mov_b64 exec, 1")
A(f"buffer_store_dword {FN}, {vL16}, {srd(rWS)}, {t0} offen")
if ST: A(f"s_memrealtime s[{72+2*13}:{73+2*13}]")
A("L_fin:")
if ST:
    A("s_mov_b64 exec, -1")
    A("s_waitcnt lgkmcnt(0)")
    A(f"v_writelane_b32 {v(SV)}, s100, 0")
    for k in range(14): A(f"v_writelane_b32 {v(SV)}, s{72+2*k}, {15+k}")
    A(f"s_lshl_b32 {t0}, s2, 2"); A(f"s_add_u32 {t0}, {t0}, {sW}"); A(f"s_lshl_b32 {t0}, {t0}, 8"); A(f"s_add_u32 {t0}, {t0}, {STAMP_O}")
    A(f"v_mov_b32 {v(SV+1)}, 0")
    A(f"v_lshlrev_b32 {v(SV+2)}, 3, v0")
    A("s_mov_b32 exec_hi, 0")
    A(f"buffer_store_dwordx2 {v(SV,2)}, {v(SV+2)}, {srd(rWS)}, {t0} offen")
A("L_end:")
A("s_endpgm")
A("L_af2:")
A(f"s_add_u32 {sMode}, {sMode}, 1")
A(f"s_lshl_b32 {t2}, {sX}, 10"); A(f"s_add_u32 {t2}, {t2}, {FL_O}")
A(f"s_lshl_b32 {t4}, {sL}, 2"); A(f"s_add_u32 {t1}, {t4}, {t2}")
A(f"s_cmp_lt_u32 {sMode}, {1 if args.forcefb else 24}")
A("s_cbranch_scc1 L_af5")
A("s_mov_b64 exec, 1")
A(f"buffer_store_dword {FN}, {vL16}, {srd(rWS)}, {t1} offen sc1")
A("s_mov_b32 exec_lo, -1")
A(f"buffer_load_dwordx4 {v(FG,4)}, {vL16}, {srd(rWS)}, {t2} offen sc1")
A("s_mov_b32 exec_hi, -1")
A("s_waitcnt vmcnt(0)")
flags_diff()
A(f"v_and_b32 {TT}, 0x0fffffff, {CK}")
A(f"v_cmp_ne_u32 vcc, 0, {TT}")
A("s_cmp_lg_u32 vcc_lo, 0")
A("s_cbranch_scc1 L_af5")
A(f"v_cmp_ne_u32 vcc, 0, {CK}")
A("s_cmp_lg_u32 vcc_lo, 0")
if args.forcefb: A("s_cmp_eq_u32 0, 0")
A("s_cbranch_scc1 L_spread")
A("L_af5:")
A("s_sleep 2")
for l in fl_load: A(l)
A("s_waitcnt vmcnt(0)")
flags_diff()
A(f"v_cmp_ne_u32 vcc, 0, {CK}")
A("s_cmp_lg_u32 vcc_lo, 0")
if args.forcefb: A("s_cmp_eq_u32 0, 0")
A("s_cbranch_scc0 L_af6")
A(f"s_sub_u32 {sTO}, {sTO}, 1")
A("s_cbranch_scc0 L_af2")
A(f"s_mov_b32 {sTO}, 0")
A("L_af6:")
A(f"s_mov_b32 {sMode}, 0")
A("s_branch L_g0b")
A("L_spread:")
A(f"s_mov_b32 {sMode}, {FB_O}")
A(f"s_add_u32 {sGp}, {sGf}, {FB_O}")
empty_share(sGp, ' sc1')
A("s_waitcnt vmcnt(0)")
A("s_mov_b64 exec, 1")
A(f"buffer_store_dword {FN}, {vL16}, {srd(rWS)}, {t1} offen offset:512 sc1")
A("s_mov_b32 exec_lo, -1")
A(qp_store.format(so=sGp, fl=' sc1'))
A("L_sp1:")
A("s_mov_b32 exec_hi, 0")
A(f"buffer_load_dwordx4 {v(FG,4)}, {vL16}, {srd(rWS)}, {t2} offen offset:512 sc1")
A("s_mov_b32 exec_hi, -1")
A("s_waitcnt vmcnt(0)")
flags_diff()
A(f"v_and_b32 {CK}, 0x0fffffff, {CK}")
A(f"v_cmp_ne_u32 vcc, 0, {CK}")
A("s_cmp_eq_u32 vcc_lo, 0")
A("s_cbranch_scc1 L_g0b")
A("s_sleep 4")
A(timeout("L_sp1", "L_g0b"))
for t in tail: A(t)
A.raw('.section .rodata,"a"')
A.raw(".p2align 6")
A.raw(f".amdhsa_kernel {NAME}_kernel")
A.raw(f"  .amdhsa_next_free_vgpr {ACC+NACC}")
A.raw("  .amdhsa_next_free_sgpr 102")
A.raw(f"  .amdhsa_accum_offset {ACC}")
A.raw("  .amdhsa_group_segment_fixed_size 0")
A.raw("  .amdhsa_kernarg_size 104")
A.raw("  .amdhsa_user_sgpr_count 2")
A.raw("  .amdhsa_user_sgpr_kernarg_segment_ptr 1")
A.raw("  .amdhsa_system_sgpr_workgroup_id_x 1")
A.raw(".end_amdhsa_kernel")
sys.stdout.write(A.text())
```

```python
import sys, argparse, struct
sys.path.insert(0, 'dev')
from asmlib import Asm
NAME = "interleave_layers__sliding_block_cached__dense_activation_gelu__decode"
ap = argparse.ArgumentParser()
ap.add_argument('--stamps', action='store_true')
ap.add_argument('--pro', action='store_true')
ap.add_argument('--cyc', action='store_true')
ap.add_argument('--xt', type=int, default=0)
ap.add_argument('--xd', type=int, default=11)
ap.add_argument('--enc', type=int, default=0)
ap.add_argument('--encj', default='0,32')
ap.add_argument('--only', default='')
ap.add_argument('--pQ', type=int, default=4)
ap.add_argument('--code', type=int, default=1)
ap.add_argument('--early', default='1')
ap.add_argument('--vw', type=int, default=3)
ap.add_argument('--di', type=int, default=1)
ap.add_argument('--dz', type=int, default=1)
ap.add_argument('--dxx', type=int, default=1)
ap.add_argument('--nt', default='-')
ap.add_argument('--forcefb', action='store_true')
args = ap.parse_args()
def ntf(c): return ' nt' if c in args.nt.split(',') else ''
NT = ntf('s'); NTK = ntf('k'); NTV = ntf('v'); NTQ = ntf('q'); NTO = ntf('o'); NTM = ntf('m'); NT2 = ntf('2')
ST = args.stamps

def f32(x): return '0x%08x' % struct.unpack('<I', struct.pack('<f', x))[0]

CLR = 1792
OP_O = 0
Y_O = OP_O + 131072
ST_O = Y_O + 82944
ST1_O = ST_O + 2048
Z1_O = ST1_O + 2048
Z2_O = Z1_O + 2304
Z3_O = Z2_O + 2304
assert Z3_O + 2304 <= 128 * CLR
QP_O = 128 * CLR
QP1_O = QP_O + 65536
FF_O = QP1_O + 65536
GB = FF_O + 1024
FB_O = 8 * GB
XP_O = 16 * GB
XPS = 36 * 8192
FL_O = XP_O + 4 * XPS
EP_O = FL_O + 8 * 1024
STAMP_O = 0x8000000
L_QT, L_STAT, L_OT, L_PT, L_HP, L_K, L_WQ, L_SIZE = 0, 512, 1024, 2560, 8192, 16384, 49152, 67584

rK, rV, rWQ, rWO, rW1, rW2, rWS, rX, rOUT, rT1, rT2 = 4, 8, 12, 16, 20, 24, 28, 32, 36, 44, 48
sTask, kv0, kv1, sFlag = 's40', 's41', 's42', 's43'
def srd(n): return f"s[{n}:{n+3}]"
sW, sX, sJ, sGf, sGp, sXoff, sTO, sMode, sL, sWo = [f"s{i}" for i in range(52, 62)]
t0, t1, t2, t3, t4, t5 = [f"s{i}" for i in range(62, 68)]
mLO8 = "s[68:69]"; mROW = "s[70:71]"
MXA = "0x00330033"
sRole = "s3"
(vL4, vL16, vIdxD, vIdxP, vIdxS, vXAq, vXAm, vQPst, vQPg, vL128, vQTw, vQTr, vPTw, vPTr, vSTst, vOPst, vSTg, vOPg, vOTw, vOTr,
 vYst, vMst, vHPw, vSTm, vRg, vSTATr, vXPst, vXPg, vZst, vXres, vB2, vB1, vCq, vZo, vXS1, vXS2, vWrow, vHPr, vOnes) = [f"v{i}" for i in range(1, 40)]
XA, D0, D1, DP, AO, SG, YG, XG, XS, FG, TM, EM, KA, SV, OG, QG = 40, 64, 68, 72, 76, 104, 120, 132, 136, 148, 152, 176, 180, 184, 188, 196
vQPg2 = 'v92'
ACC = 212
aWQ, aK, aV, aWO, aW1, aW2, aWOt, NACC = 0, 24, 56, 88, 120, 168, 200, 232
aW2t = aW1
def v(n, k=1): return f"v{n}" if k == 1 else f"v[{n}:{n+k-1}]"
def a(n, k=1): return f"a{n}" if k == 1 else f"a[{n}:{n+k-1}]"
CK = v(TM + 23); FN = v(TM + 22); vTag = v(TM + 21); DUM = v(TM + 20)
sEp, sXPo = kv0, kv1

A = Asm()
tail = []
nst = [0]
def pstamp(k):
    if args.pro: A(f"s_memrealtime s[{72+2*k}:{73+2*k}]")
def stamp():
    if ST and not args.pro:
        k = nst[0]; nst[0] += 1
        assert k < 13
        if ONLY is None or k in ONLY: A(f"s_memrealtime s[{72+2*k}:{73+2*k}]")
ONLY = set(int(x) for x in args.only.split(',')) if args.only else None
def lg(n): return 0 if (ST and ONLY is None) else n
def exec_xa(): return [f"s_mov_b32 exec_lo, {MXA}", f"s_mov_b32 exec_hi, {MXA}"]

def check_text(regs):
    regs = list(regs); o = []
    if len(regs) == 1: cur = regs[0]
    else:
        take = regs[:3]; regs = regs[3:]
        o.append(f"v_max3_u32 {CK}, {take[0]}, {take[1]}, {take[2]}" if len(take) == 3 else f"v_max_u32 {CK}, {take[0]}, {take[1]}")
        while regs:
            take = regs[:2]; regs = regs[2:]
            o.append(f"v_max3_u32 {CK}, {CK}, {take[0]}, {take[1]}" if len(take) == 2 else f"v_max_u32 {CK}, {CK}, {take[0]}")
        cur = CK
    o.append(f"v_cmp_eq_u32 vcc, -1, {cur}")
    return o
def nvm(loads): return sum(1 for l in loads if l.startswith('buffer_'))
def timeout(again, ok): return f"s_sub_u32 {sTO}, {sTO}, 1\ns_cbranch_scc0 {again}\ns_mov_b32 {sTO}, 0\ns_waitcnt vmcnt(0) lgkmcnt(0)\ns_branch {ok}"

def poll(loads, regs, depth=1, primed=0, extra_wait="", retry_pre="", ok_post="", chk=None):
    lp = A.newlabel('L_poll'); rt = A.newlabel('L_retry'); ok = A.newlabel('L_ok')
    for d in range(primed, depth):
        if d: A("s_sleep 1")
        for l in loads: A(l)
    A(f"{lp}:")
    A(f"s_waitcnt vmcnt({(depth-1)*nvm(loads)}){extra_wait}")
    for l in (chk or check_text(regs)): A(l)
    A(f"s_cbranch_vccnz {rt}")
    A(f"{ok}:")
    if ok_post: A(ok_post)
    tail.append(f"{rt}:\n{retry_pre}\n" + "\n".join(loads) + "\n" + timeout(lp, ok))

def sm(d, av, br, idx): A(f"v_smfmac_f32_16x16x64_bf16 {v(d,4)}, {v(av,4)}, {a(br,8)}, {idx}")
def xa_loads(rr, voff, so, n, fl, short_last=False):
    o = exec_xa()
    for i in range(n):
        if short_last and i == n - 1: o.append("s_mov_b64 exec, 0x33")
        o.append(f"buffer_load_dwordx4 {v(XA+4*i,4)}, {voff}, {srd(rr)}, {so} offen offset:{64*i}{fl}")
    return o + ["s_mov_b64 exec, -1"]
def poll_proj(voff, so, n, wbase, depth, short_last=False):
    loads = xa_loads(rWS, voff, so, n, ' sc1', short_last)
    lp = A.newlabel('L_poll'); rt = A.newlabel('L_retry'); ok = A.newlabel('L_ok')
    for d in range(depth):
        if d: A("s_sleep 1")
        for l in loads: A(l)
    A(f"{lp}:")
    A(f"s_waitcnt vmcnt({(depth-1)*n})")
    for i in range(n): sm(D0, XA+4*i, wbase+8*i, vIdxD)
    A(f"v_cmp_u_f32 vcc, {v(D0)}, {v(D0+1)}")
    A(f"s_cbranch_vccnz {rt}")
    A(f"{ok}:")
    ag = A.newlabel('L_again'); gen = A.newlabel('L_nan')
    z = "\n".join(f"v_mov_b32 {v(D0+i)}, 0" for i in range(4))
    mm = "\n".join(f"v_smfmac_f32_16x16x64_bf16 {v(D0,4)}, {v(XA+4*i,4)}, {a(wbase+8*i,8)}, {vIdxD}" for i in range(n))
    tail.append(f"{rt}:\n{z}\n" + "\n".join(check_text([v(XA+i) for i in range(4*n)])) + f"\ns_cbranch_vccz {gen}\n" + "\n".join(loads) +
                f"\ns_sub_u32 {sTO}, {sTO}, 1\ns_cbranch_scc0 {lp}\ns_mov_b32 {sTO}, 0\n{gen}:\n{mm}\ns_nop 7\ns_branch {ok}")

def pub(*fmts):
    for f in fmts: A(f.format(so=sGf, fl=''))
    sl = A.newlabel('L_slow'); bk = A.newlabel('L_back')
    A(f"s_cmp_lg_u32 {sMode}, 0")
    A(f"s_cbranch_scc1 {sl}")
    A(f"{bk}:")
    tail.append(f"{sl}:\n" + "\n".join(f.format(so=sGp, fl=' sc1') for f in fmts) + f"\ns_nop 1\ns_branch {bk}")

def rbf(dst, src):
    A(f"v_cvt_pk_bf16_f32 {dst}, {src}, {src}")
    A(f"v_and_b32 {dst}, 0xffff0000, {dst}")
def treduce(r):
    A(f"v_permlane32_swap_b32 {v(r)}, {v(r+2)}")
    A(f"v_permlane32_swap_b32 {v(r+1)}, {v(r+3)}")
    A(f"v_add_f32 {v(r)}, {v(r)}, {v(r+2)}")
    A(f"v_add_f32 {v(r+1)}, {v(r+1)}, {v(r+3)}")
    A(f"v_permlane16_swap_b32 {v(r)}, {v(r+1)}")
    A(f"v_add_f32 {v(r)}, {v(r)}, {v(r+1)}")
    A(f"v_add_f32_dpp {v(r)}, {v(r)}, {v(r)} row_ror:8 row_mask:0xf bank_mask:0xf")
S_, Q_ = v(TM), v(TM+1)
def stats(slot_off):
    S, Q = S_, Q_
    A(f"v_mov_b32 {S}, 0"); A(f"v_mov_b32 {Q}, 0")
    for i in range(9):
        A(f"v_dot2c_f32_bf16 {S}, {v(XS+i)}, {vOnes}")
        A(f"v_dot2c_f32_bf16 {Q}, {v(XS+i)}, {v(XS+i)}")
    A(f"v_lshrrev_b32 {v(TM+2)}, 5, v0"); A(f"v_lshlrev_b32 {v(TM+2)}, 3, {v(TM+2)}")
    A(f"v_permlane16_swap_b32 {S}, {Q}")
    A(f"v_add_f32 {S}, {S}, {Q}")
    for k in (8, 4, 2, 1):
        A(f"v_add_f32_dpp {S}, {S}, {S} row_ror:{k} row_mask:0xf bank_mask:0xf")
    A(f"v_mul_f32 {Q}, {f32(1/576)}, {S}")
    A(f"v_mul_f32 {S}, {f32(1/576)}, {S}")
    A(f"v_permlane16_swap_b32 {S}, {Q}")
    A(f"v_fma_f32 {Q}, -{S}, {S}, {Q}")
    A(f"v_max_f32 {Q}, 0, {Q}")
    A(f"v_cvt_pk_bf16_f32 {Q}, {S}, {Q}")
    A(f"v_lshlrev_b32 {S}, 16, {Q}")
    A(f"v_and_b32 {Q}, 0xffff0000, {Q}")
    A(f"v_add_f32 {Q}, {f32(1e-5)}, {Q}")
    rbf(Q, Q)
    A(f"v_sqrt_f32 {Q}, {Q}")
    rbf(Q, Q)
    A(f"v_rcp_f32 {Q}, {Q}")
    A(f"ds_write_b64 {v(TM+2)}, {v(TM,2)} offset:{L_STAT+slot_off}")
def zero(r, n=4):
    for i in range(n): A(f"v_mov_b32 {v(r+i)}, 0")
def xs_loads(rr, so, fl):
    return [f"buffer_load_dwordx4 {v(XS,4)}, {vXS1}, {srd(rr)}, {so} offen{fl}",
            f"buffer_load_dwordx4 {v(XS+4,4)}, {vXS1}, {srd(rr)}, {so} offen offset:512{fl}",
            f"buffer_load_dword {v(XS+8)}, {vXS2}, {srd(rr)}, {so} offen offset:1024{fl}"]

A.raw(f"; @launch grid=(256,1,1) block=(256,1,1) lds={L_SIZE}")
A.raw('.amdgcn_target "amdgcn-amd-amdhsa--gfx950"')
A.raw(".text")
A.raw(f".globl {NAME}_kernel")
A.raw(".p2align 8")
A.raw(f".type {NAME}_kernel,@function")
A.raw(f"{NAME}_kernel:")
if ST:
    A("s_memrealtime s[100:101]")
    for k in range(14): A(f"s_mov_b64 s[{72+2*k}:{73+2*k}], 0")
A("s_cmp_ge_u32 s2, 256")
A("s_cbranch_scc1 L_end")
for r, off in ((rWS, 96), (rX, 0), (rWQ, 24), (rK, 8), (rV, 16), (rWO, 32)):
    A(f"s_load_dwordx2 s[{r}:{r+1}], s[0:1], {off}")
A(f"v_lshrrev_b32 {v(TM)}, 6, v0")
A(f"v_and_b32 v0, 63, v0")
A(f"v_readfirstlane_b32 {sW}, {v(TM)}")
for r, n in ((rX, 2304), (rWQ, 4718592), (rK, 33554432), (rV, 33554432), (rWS, 268435456), (rWO, 4718592)):
    A(f"s_mov_b32 s{r+2}, {n}"); A(f"s_mov_b32 s{r+3}, 0x20000")
A(f"s_and_b32 {sX}, s2, 7")
A(f"s_lshr_b32 {sJ}, s2, 3")
A("s_mov_b32 s68, 0x00ff00ff"); A("s_mov_b32 s69, 0x00ff00ff")
G, C, B2 = v(TM+3), v(TM+4), v(TM+5)
A(f"v_lshrrev_b32 {G}, 4, v0")
A(f"v_and_b32 {C}, 15, v0")
A(f"v_lshlrev_b32 {vL16}, 4, v0")
A(f"v_lshlrev_b32 {vL128}, 7, v0")
for i in range(4): A(f"v_mov_b32 {v(EM+i)}, -1")
A(f"s_lshr_b32 {t0}, {sJ}, 4"); A(f"s_lshl_b32 {t3}, {sX}, 1"); A(f"s_add_u32 {t0}, {t0}, {t3}")
A(f"s_bfe_u32 {t1}, {sJ}, 0x10003")
A(f"s_and_b32 {t2}, {sJ}, 7")
A(f"s_mul_i32 {sGf}, {sX}, {GB}")
A(f"v_bfe_u32 {B2}, v0, 2, 1")
A(f"v_mul_u32_u24 {vXAm}, 1152, {B2}")
A(f"v_lshl_add_u32 {vXAm}, {G}, 4, {vXAm}")
A(f"s_mul_i32 {t4}, {t2}, 144")
A(f"v_add_u32 {vXAq}, {t4}, {vXAm}")
for i in range(12): A(f"v_mov_b32 {v(XA+i)}, 0x3f803f80")
A(f"v_lshlrev_b32 {v(TM+6)}, 13, {G}")
A(f"v_lshl_add_u32 {v(TM+6)}, {C}, 4, {v(TM+6)}")
A(f"s_mul_i32 {t3}, {t2}, 18"); A(f"s_add_u32 {t3}, {t3}, {sW}"); A(f"s_lshl_b32 {t3}, {t3}, 15")
A(f"s_lshl_b32 {t4}, {t0}, 9"); A(f"s_add_u32 {t3}, {t3}, {t4}"); A(f"s_lshl_b32 {t4}, {t1}, 8"); A(f"s_add_u32 {t3}, {t3}, {t4}")
A(f"s_lshl_b32 {t4}, {sW}, 10"); A(f"s_add_u32 m0, {t4}, {L_WQ}")
A(f"s_lshl_b32 {kv0}, {t1}, 24"); A(f"s_lshl_b32 {t4}, {t0}, 20"); A(f"s_add_u32 {kv0}, {kv0}, {t4}")
A(f"s_lshl_b32 {t4}, {t2}, 15"); A(f"s_add_u32 {kv0}, {kv0}, {t4}")
A(f"s_lshl_b32 {t4}, {sW}, 13"); A(f"s_add_u32 {kv0}, {kv0}, {t4}")
A(f"s_add_u32 {kv0}, {kv0}, {3072*256}"); A(f"s_add_u32 {kv1}, {kv0}, 4096")
A(f"v_xor_b32 {v(TM+7)}, {C}, {G}")
A(f"v_lshlrev_b32 {v(TM+7)}, 4, {v(TM+7)}")
A(f"v_lshl_add_u32 {v(KA)}, {G}, 8, {v(TM+7)}")
for i in range(1, 4): A(f"v_xor_b32 {v(KA+i)}, {64*i}, {v(KA)}")
A(f"s_lshl_b32 {sL}, {sJ}, 2"); A(f"s_add_u32 {sL}, {sL}, {sW}")
A(f"s_lshl_b32 {t4}, {sL}, 9"); A(f"s_add_u32 {t4}, {t4}, {QP_O}")
A(f"v_add_u32 {vQPst}, {t4}, {vL16}")
A(f"s_mov_b32 {t5}, {EP_O}")
A("s_waitcnt lgkmcnt(0)")
pstamp(0)
A("s_mov_b64 exec, 1")
A(f"buffer_load_dword {FN}, {vL16}, {srd(rWS)}, {t5} offen{NT}")
A("s_mov_b64 exec, -1")
def empty_share(base, fl):
    A(f"s_mul_i32 {t5}, {sL}, {CLR}"); A(f"s_add_u32 {t5}, {t5}, {base}")
    A(f"buffer_store_dwordx4 {v(EM,4)}, {vL16}, {srd(rWS)}, {t5} offen{fl}")
    A(f"buffer_store_dwordx4 {v(EM,4)}, {vL16}, {srd(rWS)}, {t5} offen offset:{CLR-1024}{fl}")
for n in range(5):
    if n == 4:
        A(f"s_cmp_ge_u32 {sW}, 2"); A("s_cbranch_scc1 L_pro1")
    A(f"buffer_load_dwordx4 {v(TM+6)}, {srd(rWQ)}, {t3} offen{NTQ} lds")
    if n < 4: A(f"s_add_u32 {t3}, {t3}, {16*8192}"); A("s_add_u32 m0, m0, 4096")
A("L_pro1:")
for l in xa_loads(rX, vXAq, 0, 3, NT, True): A(l)
A(f"s_cmp_lg_u32 {sW}, 3")
A("s_cbranch_scc1 L_pro2")
A(f"v_lshrrev_b32 {v(TM+8)}, 5, v0"); A(f"v_and_b32 {v(TM+9)}, 31, v0")
A(f"v_mul_u32_u24 {vXS1}, 1152, {v(TM+8)}"); A(f"v_lshl_add_u32 {vXS2}, {v(TM+9)}, 2, {vXS1}"); A(f"v_lshl_add_u32 {vXS1}, {v(TM+9)}, 4, {vXS1}")
for l in xs_loads(rX, 0, NT): A(l)
A("L_pro2:")
empty_share(sGf, '')
A(f"s_lshl_b32 {t4}, {sW}, 13"); A(f"s_add_u32 m0, {t4}, {L_K}")
for i in range(8):
    if i == 4: A(f"s_add_u32 m0, m0, 4096")
    A(f"buffer_load_dwordx4 {v(KA+i%4)}, {srd(rK)}, {kv0 if i < 4 else kv1} offen offset:{1024*(i%4)}{NTK} lds")

def constants():
    A(f"v_mul_u32_u24 {vWrow}, 1152, {G}")
    A(f"v_lshl_add_u32 {vWrow}, {C}, 4, {vWrow}")
    A(f"s_cmp_lt_u32 {sJ}, 18"); A(f"s_cselect_b32 {sRole}, 1, 0")
    A(f"s_cmp_ge_u32 {sJ}, 20"); A(f"s_cselect_b32 {t4}, 2, 0"); A(f"s_cmp_lt_u32 {sW}, 3"); A(f"s_cselect_b32 {t4}, {t4}, 0"); A(f"s_or_b32 {sRole}, {sRole}, {t4}")
    A(f"s_sub_u32 {sTask}, {sJ}, 20"); A(f"s_mul_i32 {sTask}, {sTask}, 3"); A(f"s_add_u32 {sTask}, {sTask}, {sW}"); A(f"s_min_u32 {sTask}, {sTask}, 35")
    A(f"s_lshl_b32 {t3}, {sX}, 4"); A(f"s_and_b32 {t4}, {sJ}, 15"); A(f"s_add_u32 {sWo}, {t3}, {t4}"); A(f"s_mul_i32 {sWo}, {sWo}, {32*1152}")
    A(f"s_lshl_b32 {t4}, {sW}, 8"); A(f"s_add_u32 {sWo}, {sWo}, {t4}")
    for r, n in ((rW1, 5308416), (rW2, 5308416), (rOUT, 2304), (rT1, 9216), (rT2, 1152)):
        A(f"s_mov_b32 s{r+2}, {n}"); A(f"s_mov_b32 s{r+3}, 0x20000")
    A("s_mov_b32 s70, 0xffff0000"); A("s_mov_b32 s71, 0xffff0000")
    A(f"v_lshlrev_b32 {vL4}, 2, v0")
    for i in range(12, 24): A(f"v_mov_b32 {v(XA+i)}, 0x3f803f80")
    A(f"s_lshl_b32 {t4}, {sW}, 13"); A(f"s_add_u32 {t4}, {t4}, {L_K}")
    A(f"v_lshl_add_u32 {v(KA)}, {C}, 8, {v(TM+7)}"); A(f"v_add_u32 {v(KA)}, {t4}, {v(KA)}")
    for i in range(1, 4): A(f"v_xor_b32 {v(KA+i)}, {64*i}, {v(KA)}")
    T_ = [v(TM+8+i) for i in range(10)]
    A(f"v_and_b32 {T_[0]}, 1, v0")
    A(f"v_mul_u32_u24 {vIdxP}, 0xaaaa, {T_[0]}"); A(f"v_add_u32 {vIdxP}, 0x4444, {vIdxP}")
    A(f"v_and_b32 {T_[1]}, 3, v0")
    A(f"v_mul_u32_u24 {vIdxS}, 0x5555, {T_[1]}")
    A(f"v_bfe_u32 {T_[2]}, v0, 4, 1")
    A(f"v_bfe_u32 {T_[3]}, v0, 2, 2")
    A(f"v_bfe_u32 {T_[4]}, v0, 3, 1")
    A(f"v_lshrrev_b32 {T_[5]}, 5, v0")
    A(f"v_and_b32 {T_[8]}, 7, v0")
    A(f"v_and_b32 {T_[9]}, 31, v0")
    A(f"s_lshr_b32 {t3}, {sJ}, 4")
    A(f"s_lshr_b32 {t5}, {sJ}, 3")
    A(f"s_lshl_b32 {t3}, {t3}, 1"); A(f"s_lshr_b32 {t4}, {sW}, 1"); A(f"s_add_u32 {t3}, {t3}, {t4}"); A(f"s_lshl_b32 {t3}, {t3}, 14")
    A(f"s_and_b32 {t4}, {sW}, 1"); A(f"s_lshl_b32 {t4}, {t4}, 10"); A(f"s_add_u32 {t3}, {t3}, {t4}")
    A(f"s_lshl_b32 {t4}, {t1}, 8"); A(f"s_add_u32 {t3}, {t3}, {t4}"); A(f"s_add_u32 {t3}, {t3}, {QP_O}")
    A(f"v_lshl_add_u32 {vQPg}, {T_[5]}, 4, {T_[2]}"); A(f"v_lshlrev_b32 {vQPg}, 9, {vQPg}"); A(f"v_lshl_add_u32 {vQPg}, {C}, 4, {vQPg}"); A(f"v_add_u32 {vQPg}, {t3}, {vQPg}")
    A(f"v_add_u32 {vQPg2}, 4096, {vQPg}")
    A(f"s_and_b32 {t3}, {sW}, 1"); A(f"s_lshl_b32 {t3}, {t3}, 8"); A(f"s_lshr_b32 {t4}, {sW}, 1"); A(f"s_lshl_b32 {t4}, {t4}, 7"); A(f"s_add_u32 {t3}, {t3}, {t4}")
    A(f"v_bfe_u32 {T_[6]}, v0, 3, 2"); A(f"v_bfe_u32 {T_[7]}, v0, 1, 2")
    A(f"v_lshlrev_b32 {vQTw}, 5, {T_[6]}"); A(f"v_lshl_add_u32 {vQTw}, {T_[0]}, 4, {vQTw}"); A(f"v_lshl_add_u32 {vQTw}, {T_[7]}, 2, {vQTw}")
    A(f"v_lshl_add_u32 {vQTw}, {T_[5]}, 1, {vQTw}"); A(f"v_add_u32 {vQTw}, {t3}, {vQTw}")
    A(f"v_lshlrev_b32 {vQTr}, 5, {G}"); A(f"v_lshl_add_u32 {vQTr}, {T_[4]}, 7, {vQTr}"); A(f"v_lshl_add_u32 {vQTr}, {T_[0]}, 4, {vQTr}")
    A(f"v_mul_u32_u24 {vOTr}, 640, {T_[4]}"); A(f"v_lshl_add_u32 {vOTr}, {G}, 5, {vOTr}"); A(f"v_lshl_add_u32 {vOTr}, {B2}, 4, {vOTr}")
    A(f"s_mul_i32 {t3}, {sW}, 1280"); A(f"s_add_u32 {t3}, {t3}, {L_PT}")
    A(f"v_add_u32 {vPTr}, {t3}, {vOTr}"); A(f"v_add_u32 {vOTr}, {L_OT}, {vOTr}")
    A(f"v_bfe_u32 {T_[6]}, v0, 1, 4")
    A(f"v_mul_u32_u24 {vPTw}, 640, {T_[5]}"); A(f"v_lshl_add_u32 {vPTw}, {T_[6]}, 5, {vPTw}"); A(f"v_lshl_add_u32 {vPTw}, {T_[0]}, 3, {vPTw}"); A(f"v_add_u32 {vPTw}, {t3}, {vPTw}")
    A(f"v_lshrrev_b32 {vHPr}, 1, v0"); A(f"v_lshlrev_b32 {vHPr}, 4, {vHPr}"); A(f"v_lshl_add_u32 {vHPr}, {T_[0]}, 2, {vHPr}"); A(f"v_add_u32 {vHPr}, {L_HP}, {vHPr}")
    A(f"s_lshl_b32 {t3}, {sW}, 9"); A(f"s_add_u32 {t3}, {t3}, {L_HP}"); A(f"v_add_u32 {vHPw}, {t3}, {vL16}")
    A(f"s_lshl_b32 {t3}, {t5}, 9"); A(f"s_add_u32 {t3}, {t3}, {ST_O}")
    A(f"s_lshl_b32 {t4}, {t2}, 2"); A(f"s_add_u32 {t4}, {t4}, {sW}"); A(f"s_lshl_b32 {t4}, {t4}, 2"); A(f"s_add_u32 {t4}, {t4}, {t3}")
    A(f"v_lshlrev_b32 {vSTst}, 8, {T_[5]}"); A(f"v_lshl_add_u32 {vSTst}, {T_[0]}, 7, {vSTst}"); A(f"v_add_u32 {vSTst}, {t4}, {vSTst}")
    A(f"s_lshl_b32 {t3}, {t1}, 1"); A(f"s_lshr_b32 {t4}, {sW}, 1"); A(f"s_add_u32 {t3}, {t3}, {t4}"); A(f"s_lshl_b32 {t3}, {t3}, 9"); A(f"s_add_u32 {t3}, {t3}, {ST_O}")
    A(f"s_lshr_b32 {t4}, {t2}, 2"); A(f"s_lshl_b32 {t4}, {t4}, 8"); A(f"s_add_u32 {t3}, {t3}, {t4}")
    A(f"v_lshrrev_b32 {T_[7]}, 3, v0")
    A(f"v_lshl_add_u32 {vSTg}, {T_[7]}, 4, {t3}")
    A(f"s_and_b32 {t4}, {sW}, 1"); A(f"s_lshl_b32 {t4}, {t4}, 3"); A(f"v_add_u32 {vSTm}, {t4}, {vSTg}")
    A(f"s_lshr_b32 {t3}, {sJ}, 4"); A(f"s_lshl_b32 {t3}, {t3}, 16"); A(f"s_lshl_b32 {t4}, {t1}, 12"); A(f"s_add_u32 {t3}, {t3}, {t4}")
    A(f"s_lshl_b32 {t4}, {sW}, 10"); A(f"s_add_u32 {t3}, {t3}, {t4}"); A(f"s_lshl_b32 {t4}, {t2}, 7"); A(f"s_add_u32 {t3}, {t3}, {t4}")
    A(f"v_lshlrev_b32 {T_[6]}, 5, {T_[1]}"); A(f"v_lshl_add_u32 {T_[6]}, {T_[2]}, 4, {T_[6]}")
    A(f"v_lshl_add_u32 {vOPst}, {T_[5]}, 2, {T_[3]}"); A(f"v_lshl_add_u32 {vOPst}, {vOPst}, 13, {T_[6]}"); A(f"v_add_u32 {vOPst}, {t3}, {vOPst}")
    A(f"s_and_b32 {t3}, {sJ}, 15"); A(f"s_lshl_b32 {t3}, {t3}, 13"); A(f"s_lshl_b32 {t4}, {sW}, 11"); A(f"s_add_u32 {t3}, {t3}, {t4}"); A(f"v_add_u32 {vOPg}, {t3}, {vL16}")
    A(f"s_lshr_b32 {t3}, {sW}, 1"); A(f"s_mul_i32 {t3}, {t3}, 640"); A(f"s_and_b32 {t4}, {sW}, 1"); A(f"s_lshl_b32 {t4}, {t4}, 1"); A(f"s_add_u32 {t3}, {t3}, {t4}"); A(f"s_add_u32 {t3}, {t3}, {L_OT}")
    A(f"v_mul_u32_u24 {vOTw}, 20, {T_[4]}"); A(f"v_lshl_add_u32 {vOTw}, {T_[8]}, 6, {vOTw}"); A(f"v_lshl_add_u32 {vOTw}, {T_[5]}, 5, {vOTw}")
    A(f"v_lshl_add_u32 {vOTw}, {T_[2]}, 3, {vOTw}"); A(f"v_add_u32 {vOTw}, {t3}, {vOTw}")
    A(f"s_mul_i32 {t3}, {sW}, {4*2304}"); A(f"s_lshl_b32 {t4}, {sJ}, 7"); A(f"s_add_u32 {t3}, {t3}, {t4}"); A(f"s_add_u32 {t3}, {t3}, {Y_O}")
    A(f"v_mul_u32_u24 {vMst}, 18, {T_[5]}"); A(f"v_add_u32 {vMst}, {vMst}, {T_[3]}"); A(f"v_mul_u32_u24 {vMst}, 2304, {vMst}")
    A(f"v_add3_u32 {vMst}, {vMst}, {T_[6]}, {t3}")
    A(f"v_subrev_u32 {vYst}, 2048, {vMst}")
    A(f"v_mul_u32_u24 {vXS1}, 1152, {T_[5]}"); A(f"v_lshl_add_u32 {vXS2}, {T_[9]}, 2, {vXS1}"); A(f"v_lshl_add_u32 {vXS1}, {T_[9]}, 4, {vXS1}")
    A(f"s_lshl_b32 {t3}, {t1}, 3"); A(f"s_add_u32 {t3}, {t3}, {L_STAT}"); A(f"v_mov_b32 {vSTATr}, {t3}")
    A(f"s_mul_i32 {t4}, {sW}, 384"); A(f"v_add_u32 {vXAm}, {t4}, {vXAm}")
    A(f"s_mul_i32 {t4}, {sX}, 18"); A(f"s_add_u32 {t4}, {t4}, {sJ}"); A(f"s_lshl_b32 {t5}, {t4}, 6")
    A(f"v_lshl_add_u32 {vB1}, {T_[9]}, 1, {t5}")
    A(f"s_mul_i32 {t4}, {sTask}, 2304"); A(f"s_add_u32 {t4}, {t4}, {Y_O}"); A(f"v_add_u32 {vRg}, {t4}, {vL16}")
    A(f"s_lshl_b32 {t4}, {sTask}, 13"); A(f"s_lshl_b32 {t5}, {sX}, 10"); A(f"s_add_u32 {t5}, {t5}, {t4}"); A(f"v_lshl_add_u32 {vXPg}, v0, 3, {t5}")
    A(f"s_lshl_b32 {t5}, {sX}, 7"); A(f"s_add_u32 {t4}, {t4}, {t5}"); A(f"v_lshl_add_u32 {vXPst}, {T_[8]}, 4, {t4}")
    A(f"v_lshrrev_b32 {T_[7]}, 3, v0"); A(f"v_lshl_add_u32 {vXPst}, {T_[7]}, 10, {vXPst}")
    A(f"v_lshl_add_u32 {T_[7]}, {C}, 1, {T_[5]}")
    A(f"s_lshl_b32 {t4}, {sTask}, 6"); A(f"v_lshl_add_u32 {vZo}, {T_[7]}, 1, {t4}")
    A(f"v_add_u32 {vZst}, {Z1_O}, {vZo}")
    A(f"s_and_b32 {t5}, {sTask}, 7"); A(f"s_cmp_eq_u32 {t5}, {sX}"); A(f"s_cselect_b32 {t5}, 4, 0"); A(f"s_or_b32 {sRole}, {sRole}, {t5}")
    A(f"s_cmp_ge_u32 {sTask}, 18"); A(f"s_cselect_b32 {t5}, 1152, 0")
    A(f"v_subrev_u32 {vB2}, {t5}, {vZo}")

def constants1():
    A(f"v_and_b32 {v(TM+8)}, 1, v0")
    A(f"v_mul_u32_u24 {vIdxD}, 0x5555, {v(TM+8)}"); A(f"v_add_u32 {vIdxD}, 0x8888, {vIdxD}")
    A(f"v_mov_b32 {vOnes}, 0x3f803f80")
    A(f"s_lshl_b32 {t3}, {sW}, 6"); A(f"s_add_u32 {t3}, {t3}, {L_WQ}")
    A(f"v_lshlrev_b32 {vCq}, 10, {G}"); A(f"v_lshl_add_u32 {vCq}, {C}, 2, {vCq}"); A(f"v_add_u32 {vCq}, {t3}, {vCq}")
    for i in range(16, 24): A(f"v_accvgpr_write_b32 {a(aWQ+i)}, 0")
    zero(D0, 8)
    A(f"ds_write_b128 {v(D0)}, {v(EM,4)} offset:{L_STAT}"); A(f"ds_write_b128 {v(D0)}, {v(EM,4)} offset:{L_STAT+16}")
    A(f"s_lshl_b32 {t3}, {sW}, 11"); A(f"v_add_u32 {v(TM+8)}, {t3}, {vL16}")
    A(f"ds_write_b128 {v(TM+8)}, {v(D1,4)} offset:1024"); A(f"ds_write_b128 {v(TM+8)}, {v(D1,4)} offset:2048")

fl_load = ["s_mov_b32 exec_hi, 0", f"buffer_load_dwordx4 {v(FG,4)}, {vL16}, {srd(rWS)}, {sXoff} offen sc1", "s_mov_b32 exec_hi, -1"]
qp_store = f"buffer_store_dwordx4 {v(D0,4)}, {vQPst}, {srd(rWS)}, {{so}} offen{{fl}}"
def qg(n): return [f"buffer_load_dwordx{n} {v(QG+4*p,n)}, {vQPg if p < 2 else vQPg2}, {srd(rWS)}, {sGp} offen offset:{2048*(p%2)} sc1" for p in range(4)]
qg4, qg2 = qg(4), qg(2)
pstamp(3)
for r, off in ((rW1, 48), (rW2, 64), (rOUT, 80), (rT1, 56), (rT2, 72)):
    A(f"s_load_dwordx2 s[{r}:{r+1}], s[0:1], {off}")
if args.code:
    A(f"s_cmp_ge_u32 {sL}, 2"); A("s_cbranch_scc1 L_nc")
    A("s_getpc_b64 s[66:67]")
    A("L_pc:")
    A(f"s_lshl_b32 {t3}, {sL}, 13"); A(f"v_add_u32 {v(TM+8)}, {t3}, {vL128}")
    A(f"v_min_u32 {v(TM+8)}, L_codeend-L_pc-4, {v(TM+8)}")
    A(f"global_load_dword {DUM}, {v(TM+8)}, s[66:67]")
    A("L_nc:")
constants1()
A(f"s_mov_b32 {sTO}, 0x40000"); A(f"s_mov_b32 {sMode}, 0"); A(f"s_mov_b32 {sGp}, {sGf}")
cnt = [8]
mark = {'K': 8}
def vm(s): A(s); cnt[0] += 1
A(f"s_lshl_b32 {t4}, {sL}, 9"); A(f"s_add_u32 {t4}, {t4}, {sGf}"); A(f"s_add_u32 {t4}, {t4}, {QP_O}")
A(f"s_add_u32 {sXoff}, {sGf}, {FF_O}")
A("s_mov_b64 exec, 15")
vm(f"buffer_load_dword {DUM}, {vL128}, {srd(rWS)}, {t4} offen sc1{NT}")
vm(f"buffer_load_dword {DUM}, {vL128}, {srd(rWS)}, {sXoff} offen sc1{NT}")
A("s_mov_b64 exec, -1")
def hookQ():
    A(f"s_lshl_b32 {t4}, {sL}, 2"); A(f"s_add_u32 {t4}, {t4}, {sXoff}")
    A(f"s_getreg_b32 {t3}, hwreg(HW_REG_XCC_ID)"); A(f"s_lshl_b32 {t3}, {t3}, 28")
    A(f"s_waitcnt vmcnt({cnt[0]}) lgkmcnt(0)")
    A("s_barrier")
    pstamp(2)
    for i in range(2):
        for vv in range(0, 8, 2):
            row = 32*i + 16*(vv >> 2) + (vv & 3)
            A(f"ds_read2st64_b32 {a(aWQ+8*i+vv,2)}, {vCq} offset0:{row} offset1:{row+1}")
    A("s_mov_b32 exec_hi, 0")
    for vv in (0, 2): A(f"ds_read2st64_b32 {a(aWQ+16+vv,2)}, {vCq} offset0:{64+vv} offset1:{65+vv}")
    A("s_mov_b32 exec_hi, -1")
    A(f"v_readfirstlane_b32 {sFlag}, {FN}")
    A(f"s_add_u32 {sFlag}, {sFlag}, 0x0e377901"); A(f"s_and_b32 {sFlag}, {sFlag}, 0x0fffffff"); A(f"s_or_b32 {sFlag}, {sFlag}, {t3}")
    A(f"v_mov_b32 {FN}, {sFlag}")
    A("s_mov_b64 exec, 1")
    vm(f"buffer_store_dword {FN}, {vL16}, {srd(rWS)}, {t4} offen")
    A("s_mov_b64 exec, -1")
    A(f"v_and_b32 {vTag}, 0xff, {FN}"); A(f"s_movk_i32 {t4}, 0xff")
    A("s_waitcnt lgkmcnt(0)")
    for i in range(3): sm(D0, XA+4*i, aWQ+8*i, vIdxD)
    for i in range(4): A(f"v_bfi_b32 {v(D0+i)}, {t4}, {vTag}, {v(D0+i)}")
    A("s_mov_b32 exec_hi, 0")
    vm(qp_store.format(so=sGf, fl=''))
    A("s_mov_b32 exec_hi, -1")
    pstamp(1)
    A(f"s_cmp_lg_u32 {sW}, 3")
    A("s_cbranch_scc1 L_hQ")
    stats(0)
    A("L_hQ:")
for k in range(9):
    if k == args.pQ: hookQ()
    if k == 8 - args.vw: mark['V'] = cnt[0]
    if k < 8: vm(f"buffer_load_dwordx4 {a(aV+4*k,4)}, {vL16}, {srd(rV)}, {kv0 if k < 4 else kv1} offen offset:{1024*(k%4)}{NTV}")
    if k == 7: pstamp(9)
TT = v(TM+4)
def slots_touch():
    A(f"s_lshl_b32 {t1}, {sJ}, 2"); A(f"s_add_u32 {t1}, {t1}, {sW}")
    A(f"s_mul_i32 {t3}, {t1}, 1536"); A(f"s_add_u32 {t3}, {t3}, {sGf}"); A(f"s_add_u32 {t3}, {t3}, {Y_O}")
    A(f"s_lshl_b32 {t1}, {t1}, 10"); A(f"s_add_u32 {t1}, {t1}, {QP1_O}"); A(f"s_add_u32 {t1}, {t1}, {sGf}")
    A("s_mov_b64 exec, 0xfff")
    A(f"buffer_load_dword {DUM}, {vL128}, {srd(rWS)}, {t3} offen sc1{NT}")
    A("s_mov_b64 exec, 0xff")
    A(f"buffer_load_dword {DUM}, {vL128}, {srd(rWS)}, {t1} offen sc1{NT}")
    A("s_mov_b64 exec, -1")
def slots_clear():
    A(f"s_lshl_b32 {t1}, {sJ}, 2"); A(f"s_add_u32 {t1}, {t1}, {sW}")
    A(f"s_lshl_b32 {t1}, {t1}, 10"); A(f"s_add_u32 {t1}, {t1}, {QP1_O}"); A(f"v_add_u32 {TT}, {t1}, {vL16}")
    pub(f"buffer_store_dwordx4 {v(EM,4)}, {TT}, {srd(rWS)}, {{so}} offen{{fl}}")
assert Y_O + 64 * 1536 >= Z3_O + 2304
def w1_touch():
    A(f"s_lshl_b32 {t1}, {sJ}, 2"); A(f"s_add_u32 {t1}, {t1}, {sW}")
    A(f"s_mul_i32 {t4}, {sX}, 576"); A(f"s_add_u32 {t4}, {t4}, {t1}"); A(f"s_add_u32 {t4}, {t4}, 512"); A(f"s_mul_i32 {t4}, {t4}, 1152")
    A(f"s_mul_i32 {t1}, {t1}, {9*9216}")
    A(f"s_mul_i32 {t3}, {sX}, 1152"); A(f"s_add_u32 {t1}, {t1}, {t3}"); A(f"s_add_u32 {t3}, {t1}, {5*9216}")
    A(f"v_mul_u32_u24 {TT}, 57, v0"); A(f"v_lshrrev_b32 {TT}, 9, {TT}"); A(f"v_mul_u32_u24 {TT}, {9216-1152}, {TT}"); A(f"v_add_u32 {TT}, {TT}, {vL128}")
    A("s_mov_b32 exec_hi, 0x1fff")
    A(f"buffer_load_dword {DUM}, {TT}, {srd(rW1)}, {t1} offen{NTM}")
    A("s_mov_b32 exec_hi, 15")
    A(f"buffer_load_dword {DUM}, {TT}, {srd(rW1)}, {t3} offen{NTM}")
    A("s_mov_b64 exec, 0x1ff")
    A(f"buffer_load_dword {DUM}, {vL128}, {srd(rW2)}, {t4} offen{NTM}")
    A("s_mov_b64 exec, -1")
def w2_loads():
    l1 = A.newlabel('L_w2')
    A(f"s_mul_i32 {t0}, {sX}, 18"); A(f"s_add_u32 {t0}, {t0}, {sJ}"); A(f"s_mul_i32 {t0}, {t0}, {32*1152}")
    A(f"s_lshl_b32 {t1}, {sW}, 8"); A(f"s_add_u32 {t1}, {t1}, {t0}")
    for i in range(8):
        A(f"buffer_load_dwordx4 {a(aW2+4*i,4)}, {vWrow}, {srd(rW2)}, {t1} offen{NT2}")
        if i < 7: A(f"s_add_u32 {t1}, {t1}, 4608")
    A(f"s_cmp_lg_u32 {sW}, 3")
    A(f"s_cbranch_scc1 {l1}")
    A(f"s_mov_b64 exec, {mLO8}")
    for i in range(8):
        A(f"buffer_load_dwordx4 {a(aW2t+4*i,4)}, {vWrow}, {srd(rW2)}, {t0} offen offset:1024{NT2}")
        if i < 7: A(f"s_add_u32 {t0}, {t0}, 4608")
    A("s_mov_b64 exec, -1")
    A(f"{l1}:")
def wo_loads(k0, k1, with_tail):
    for k in range(k0, k1):
        A(f"buffer_load_dwordx4 {a(aWO+4*k,4)}, {vWrow}, {srd(rWO)}, {sWo} offen{NTO}")
        A(f"s_add_u32 {sWo}, {sWo}, 4608")
    if with_tail:
        l1 = A.newlabel('L_wt')
        A(f"s_cmp_lg_u32 {sW}, 3")
        A(f"s_cbranch_scc1 {l1}")
        A(f"s_mov_b64 exec, {mLO8}")
        for i in range(7, -1, -1):
            A(f"s_sub_u32 {sWo}, {sWo}, 4608")
            A(f"buffer_load_dwordx4 {a(aWOt+4*i,4)}, {vWrow}, {srd(rWO)}, {sWo} offen offset:256{NTO}")
        A("s_mov_b64 exec, -1")
        A(f"{l1}:")
constants()
pstamp(4)
stamp()
A(f"s_waitcnt vmcnt({cnt[0]-mark['K']})")
for T in range(2):
    for q in range(4): A(f"ds_read_b128 {a(aK+16*T+4*q,4)}, {v(KA+q)} offset:{4096*T}")
A(f"s_mov_b32 {sXPo}, {XP_O}")
A(f"s_cmp_lt_u32 {sJ}, 16")
A("s_cbranch_scc1 L_g1n")
A(f"v_readfirstlane_b32 {t4}, {vOPg}"); A(f"v_readfirstlane_b32 {t5}, {vSTg}")
A(f"s_add_u32 {t4}, {t4}, {sGf}"); A(f"s_add_u32 {t5}, {t5}, {sGf}")
A("s_mov_b64 exec, 0xffff")
A(f"buffer_load_dword {DUM}, {vL128}, {srd(rWS)}, {t4} offen sc1{NT}")
A("s_mov_b64 exec, 3")
A(f"buffer_load_dword {DUM}, {vL128}, {srd(rWS)}, {t5} offen sc1{NT}")
A("s_mov_b64 exec, -1")
A(f"buffer_load_ushort {vXres}, {vZo}, {srd(rX)}, 0 offen{NT}")
A(f"buffer_load_ushort {vB2}, {vB2}, {srd(rT2)}, 0 offen{NT}")
wo_loads(0, 8, True)
A("s_branch L_g1o")
A("L_g1n:")
if 's' in args.early: slots_touch()
if '1' in args.early: w1_touch()
if '2' in args.early: w2_loads()
A("L_g1o:")
pstamp(6)
A(f"s_waitcnt vmcnt({args.vw})")
if ST and not args.pro and ONLY is None: A(f"s_memrealtime s[74:75]")
pstamp(5)
def flags_diff():
    A(f"v_xor_b32 {CK}, {sFlag}, {v(FG)}")
    for i in range(1, 4): A(f"v_bitop3_b32 {CK}, {CK}, {v(FG+i)}, {sFlag} bitop3:0xf6")
st_rd = f"ds_read_b64 {v(TM,2)}, {vSTATr}"
A("L_g4:")
for l in fl_load + qg4 + [st_rd]: A(l)
A("s_waitcnt vmcnt(0) lgkmcnt(0)")
pstamp(7)
flags_diff()
A(f"v_cmp_ne_u32 vcc, 0, {CK}")
A("s_cmp_lg_u32 vcc_lo, 0")
if args.forcefb: A("s_cmp_eq_u32 0, 0")
A("s_cbranch_scc1 L_af2")
A(f"s_mov_b32 {sMode}, 0")
A("L_g2:")
for i in range(16): A(f"v_xor_b32 {v(QG+i)}, {vTag}, {v(QG+i)}")
A(f"v_or3_b32 {CK}, {v(QG)}, {v(QG+1)}, {v(QG+2)}")
for i in range(3, 15, 2): A(f"v_or3_b32 {CK}, {CK}, {v(QG+i)}, {v(QG+i+1)}")
A(f"v_or_b32 {CK}, {CK}, {v(QG+15)}")
A(f"v_cmp_eq_u32 s[62:63], -1, {v(TM+1)}")
A(f"v_and_b32 {CK}, 0xff, {CK}")
A(f"v_cmp_ne_u32 vcc, 0, {CK}")
A("s_or_b64 vcc, vcc, s[62:63]")
A("s_cbranch_scc1 L_g5")
A("L_g3:")
A(f"s_mov_b32 {sL}, 0")
zero(D0)
tail.append("L_g5:\n" + timeout("L_g4", "L_g3"))
pstamp(8)
A(f"v_add_f32 {v(TM+2)}, {v(QG+2)}, {v(QG+6)}"); A(f"v_add_f32 {v(TM+3)}, {v(QG+3)}, {v(QG+7)}")
A(f"v_add_f32 {v(TM+4)}, {v(QG+10)}, {v(QG+14)}"); A(f"v_add_f32 {v(TM+5)}, {v(QG+11)}, {v(QG+15)}")
A(f"v_add_f32 {v(TM+2)}, {v(TM+2)}, {v(TM+4)}"); A(f"v_add_f32 {v(TM+3)}, {v(TM+3)}, {v(TM+5)}")
A(f"v_permlane32_swap_b32 {v(TM+2)}, {v(TM+3)}")
A(f"v_add_f32 {vCq}, {v(TM+2)}, {v(TM+3)}")
A("s_branch L_qfin")

A("L_layer:")
zero(D0, 8)
poll_proj(vXAq, sXoff, 3, aWQ, args.dz, True)
A("s_mov_b32 exec_hi, 0")
pub(qp_store)
A("s_mov_b32 exec_hi, -1")
zero(D0)
A(f"s_cmp_lg_u32 {sW}, 3")
A("s_cbranch_scc1 L_qdone")
poll(xs_loads(rWS, sXoff, ' sc1'), [v(XS+i) for i in range(9)], depth=args.dz)
stats(16)
A("L_qdone:")
nst[0] = 1
stamp()
poll(qg2 + [f"ds_read_b64 {v(TM,2)}, {vSTATr} offset:16"], [v(QG+4*p+i) for p in range(4) for i in range(2)] + [v(TM+1)], depth=args.di, extra_wait=" lgkmcnt(0)")
A("L_qfin:")
stamp()
A(f"v_add_f32 {v(TM+2)}, {v(QG)}, {v(QG+4)}"); A(f"v_add_f32 {v(TM+3)}, {v(QG+1)}, {v(QG+5)}")
A(f"v_add_f32 {v(TM+4)}, {v(QG+8)}, {v(QG+12)}"); A(f"v_add_f32 {v(TM+5)}, {v(QG+9)}, {v(QG+13)}")
A(f"v_add_f32 {v(TM+2)}, {v(TM+2)}, {v(TM+4)}"); A(f"v_add_f32 {v(TM+3)}, {v(TM+3)}, {v(TM+5)}")
A(f"v_permlane32_swap_b32 {v(TM+2)}, {v(TM+3)}")
A(f"v_fma_f32 {v(TM+2)}, -{v(TM)}, {vCq}, {v(TM+2)}")
A(f"v_add_f32 {v(TM+2)}, {v(TM+2)}, {v(TM+3)}")
A(f"v_mul_f32 {v(TM+2)}, {v(TM+2)}, {v(TM+1)}")
A(f"v_cvt_pk_bf16_f32 {v(TM+2)}, {v(TM+2)}, {v(TM+2)}")
A(f"ds_write_b16 {vQTw}, {v(TM+2)} offset:{L_QT}")
A("s_mov_b32 vcc_lo, 0xaaaaaaaa"); A("s_mov_b32 vcc_hi, 0xaaaaaaaa")
zero(DP)
A("s_waitcnt lgkmcnt(0)")
A("s_barrier")
A(f"ds_read_b128 {v(AO,4)}, {vQTr} offset:{L_QT}")
A(f"ds_read_b128 {v(AO+4,4)}, {vQTr} offset:{L_QT+256}")
A(f"s_waitcnt lgkmcnt({lg(1)})")
sm(D0, AO, aK, vIdxP); sm(D1, AO, aK+16, vIdxP)
A("s_waitcnt lgkmcnt(0)")
sm(D0, AO+4, aK+8, vIdxP); sm(D1, AO+4, aK+24, vIdxP)
SC, MX, P_, LS, TT = v(TM), v(TM+1), v(TM+2), v(TM+3), v(TM+4)
A(f"v_add_f32 {SC}, {v(D0)}, {v(D0+1)}")
A(f"v_add_f32 {TT}, {v(D1)}, {v(D1+1)}")
A(f"v_cndmask_b32 {SC}, {SC}, {TT}, {mROW}")
rbf(SC, SC)
A(f"v_mul_f32 {SC}, {f32(128 ** -0.5)}, {SC}")
rbf(SC, SC)
A(f"v_mul_f32 {SC}, {f32(1.4426950408889634)}, {SC}")
zero(D0, 2)
A(f"v_max_f32_dpp {MX}, {SC}, {SC} row_ror:8 row_mask:0xf bank_mask:0xf")
for n, k in enumerate((4, 2, 1)):
    zero(D0+2+2*n, 2)
    A(f"v_max_f32_dpp {MX}, {MX}, {MX} row_ror:{k} row_mask:0xf bank_mask:0xf")
A(f"v_mov_b32 {TT}, {MX}")
A(f"v_permlane16_swap_b32 {MX}, {TT}")
A(f"v_max_f32 {MX}, {MX}, {TT}")
A(f"v_sub_f32 {P_}, {SC}, {MX}")
A(f"v_exp_f32 {P_}, {P_}")
A(f"v_cvt_pk_bf16_f32 {TT}, {P_}, 0")
A(f"ds_write2_b32 {vPTw}, {TT}, {TT} offset1:5")
for i in range(4): A(f"ds_read_b128 {v(AO+4*i,4)}, {vPTr} offset:{128*i}")
A(f"v_add_f32_dpp {LS}, {P_}, {P_} row_ror:8 row_mask:0xf bank_mask:0xf")
for k in (4, 2, 1): A(f"v_add_f32_dpp {LS}, {LS}, {LS} row_ror:{k} row_mask:0xf bank_mask:0xf")
A(f"v_mov_b32 {SC}, {LS}")
A(f"v_permlane16_swap_b32 {LS}, {SC}")
A(f"v_add_f32 {LS}, {LS}, {SC}")
A(f"v_cndmask_b32 {SC}, {MX}, {LS}, vcc")
A("s_mov_b32 exec_lo, 3"); A("s_mov_b32 exec_hi, 3")
pub(f"buffer_store_dword {SC}, {vSTst}, {srd(rWS)}, {{so}} offen{{fl}}")
A("s_mov_b64 exec, -1")
for i in range(4):
    A(f"s_waitcnt lgkmcnt({lg(3-i)})")
    sm(DP, AO+4*i, aV+8*i, vIdxS)
pub(f"buffer_store_dwordx4 {v(DP,4)}, {vOPst}, {srd(rWS)}, {{so}} offen{{fl}}")
stamp()
E = TM + 5
R = TM + 12
def tile_out(wb, tb, vst):
    l1 = A.newlabel('L_t'); l2 = A.newlabel('L_t')
    for i in range(4):
        A(f"s_waitcnt lgkmcnt({lg(3-i)})")
        sm(D0, AO+4*i, wb+8*i, vIdxS)
    A(f"s_cmp_lg_u32 {sW}, 3")
    A(f"s_cbranch_scc1 {l1}")
    for i in range(4): sm(D1, AO+4*i, tb+8*i, vIdxS)
    A(f"{l1}:")
    A("s_waitcnt vmcnt(0)")
    A("s_nop 4")
    pub(f"buffer_store_dwordx4 {v(D0,4)}, {vst}, {srd(rWS)}, {{so}} offen{{fl}}")
    A(f"s_cmp_lg_u32 {sW}, 3")
    A(f"s_cbranch_scc1 {l2}")
    A(f"s_mov_b64 exec, {mLO8}")
    pub(f"buffer_store_dwordx4 {v(D1,4)}, {v(E+2)}, {srd(rWS)}, {{so}} offen{{fl}}")
    A("s_mov_b64 exec, -1")
    A(f"{l2}:")
A(f"s_cmp_lt_u32 {sJ}, 16")
A("s_cbranch_scc1 L_mlp")
poll([f"buffer_load_dwordx4 {v(SG,4)}, {vSTg}, {srd(rWS)}, {sGp} offen sc1",
      f"buffer_load_dwordx4 {v(SG+4,4)}, {vSTg}, {srd(rWS)}, {sGp} offen offset:128 sc1",
      f"buffer_load_dwordx2 {v(SG+8,2)}, {vSTm}, {srd(rWS)}, {sGp} offen sc1"], [v(SG+i) for i in range(10)], depth=max(1, args.di - 1))
op_load = [f"buffer_load_dwordx4 {v(OG+4*i,4)}, {vOPg}, {srd(rWS)}, {sGp} offen offset:{1024*i} sc1" for i in range(2)]
for l in op_load: A(l)
A(f"v_max3_f32 {MX}, {v(SG)}, {v(SG+1)}, {v(SG+2)}")
A(f"v_max_f32 {MX}, {MX}, {v(SG+3)}")
A(f"v_max_f32_dpp {MX}, {MX}, {MX} row_ror:8 row_mask:0xf bank_mask:0xf")
for sw in ('16', '32'):
    A(f"v_mov_b32 {TT}, {MX}"); A(f"v_permlane{sw}_swap_b32 {MX}, {TT}"); A(f"v_max_f32 {MX}, {MX}, {TT}")
if args.di > 1:
    for l in op_load: A(l)
for n, i in enumerate((0, 1, 2, 3, 8, 9)): A(f"v_sub_f32 {v(E+n)}, {v(SG+i)}, {MX}")
for n in range(6): A(f"v_exp_f32 {v(E+n)}, {v(E+n)}")
A(f"v_mul_f32 {LS}, {v(E)}, {v(SG+4)}")
for i in (1, 2, 3): A(f"v_fmac_f32 {LS}, {v(E+i)}, {v(SG+4+i)}")
if args.di > 2:
    for l in op_load: A(l)
A(f"v_add_f32_dpp {LS}, {LS}, {LS} row_ror:8 row_mask:0xf bank_mask:0xf")
for sw in ('16', '32'):
    A(f"v_mov_b32 {TT}, {LS}"); A(f"v_permlane{sw}_swap_b32 {LS}, {TT}"); A(f"v_add_f32 {LS}, {LS}, {TT}")
A(f"v_rcp_f32 {LS}, {LS}")
A(f"v_add_u32 {v(E+2)}, {4*2304}, {vYst}")
A(f"v_mul_f32 {v(E+4)}, {LS}, {v(E+4)}"); A(f"v_mul_f32 {v(E+5)}, {LS}, {v(E+5)}")
poll(op_load, [v(OG+i) for i in range(8)], depth=args.di, primed=min(3, args.di))
stamp()
for i in range(4): A(f"v_mul_f32 {v(R+i)}, {v(OG+i)}, {v(E+4)}")
for i in range(4): A(f"v_fmac_f32 {v(R+i)}, {v(OG+4+i)}, {v(E+5)}")
treduce(R)
A(f"v_cvt_pk_bf16_f32 {TT}, {v(R)}, {v(R)}")
A(f"ds_write_b16 {vOTw}, {TT}")
pub(*[f"buffer_store_dwordx4 {v(EM,4)}, {vOPg}, {srd(rWS)}, {{so}} offen offset:{1024*i}{{fl}}" for i in range(2)])
A("s_waitcnt lgkmcnt(0)")
A("s_barrier")
for i in range(4): A(f"ds_read_b128 {v(AO+4*i,4)}, {vOTr} offset:{128*i}")
tile_out(aWO, aWOt, vYst)
stamp()

def reducer(kind):
    ld = [f"buffer_load_dwordx4 {v(YG+4*i,4)}, {vRg}, {srd(rWS)}, {sGp} offen offset:{1024*i} sc1" for i in range(2)]
    A(f"s_movk_i32 {t4}, 0xff")
    if kind == 'A':
        poll(ld, [v(YG+i) for i in range(8)], depth=args.di)
        for i in range(4): A(f"v_add_f32 {v(R+i)}, {v(YG+i)}, {v(YG+4+i)}")
    else:
        poll(ld + ["s_mov_b64 exec, 0xffff", f"buffer_load_dwordx4 {v(YG+8,4)}, {vRg}, {srd(rWS)}, {sGp} offen offset:2048 sc1", "s_mov_b64 exec, -1"],
             [v(YG+i) for i in range(12)], depth=args.di)
        for i in range(4): A(f"v_add_f32 {v(R+i)}, {v(YG+i)}, {v(YG+4+i)}")
        for i in range(4): A(f"v_add_f32 {v(R+i)}, {v(R+i)}, {v(YG+8+i)}")
    stamp()
    treduce(R)
    A(f"v_bfi_b32 {v(R+1)}, {t4}, {vTag}, {v(R)}"); A(f"v_bfi_b32 {v(R)}, {t4}, {vTag}, {v(R)}")
    A(f"v_permlane16_swap_b32 {v(R)}, {v(R+1)}")
    A(f"v_mov_b32 {v(R+2)}, {v(R)}"); A(f"v_mov_b32 {v(R+3)}, {v(R+1)}")
    A(f"v_permlane32_swap_b32 {v(R)}, {v(R+2)}"); A(f"v_permlane32_swap_b32 {v(R+1)}, {v(R+3)}")
    A(f"buffer_store_dwordx4 {v(R,4)}, {vXPst}, {srd(rWS)}, {sXPo} offen sc1")
    if kind == 'M':
        A(f"s_lshl_b32 {t0}, {sL}, 2"); A(f"s_andn2_b32 {t0}, {t0}, {sRole}")
        A("s_cbranch_scc1 L_fin")
    cl = [f"buffer_store_dwordx4 {v(EM,4)}, {vRg}, {srd(rWS)}, {{so}} offen offset:{1024*i}{{fl}}" for i in range(2)]
    if kind == 'M': cl += ["s_mov_b64 exec, 0xffff", f"buffer_store_dwordx4 {v(EM,4)}, {vRg}, {srd(rWS)}, {{so}} offen offset:2048{{fl}}", "s_mov_b64 exec, -1"]
    pub(*cl)
    if args.xd: A(f"s_sleep {args.xd}")
    poll([f"buffer_load_dwordx2 {v(XG,2)}, {vXPg}, {srd(rWS)}, {sXPo} offen sc1",
          f"buffer_load_dwordx2 {v(XG+2,2)}, {vXPg}, {srd(rWS)}, {sXPo} offen offset:512 sc1"], None, depth=args.dxx,
         chk=[f"v_xor_b32 {v(R+i)}, {vTag}, {v(XG+i)}" for i in range(4)] +
             [f"v_or3_b32 {CK}, {v(R)}, {v(R+1)}, {v(R+2)}", f"v_bitop3_b32 {CK}, {CK}, {v(R+3)}, {t4} bitop3:0xa8", f"v_cmp_ne_u32 vcc, 0, {CK}"])
    stamp()
    Y = v(R)
    A(f"v_add_f32 {v(R)}, {v(R)}, {v(R+2)}"); A(f"v_add_f32 {v(R+1)}, {v(R+1)}, {v(R+3)}")
    A(f"v_permlane32_swap_b32 {v(R)}, {v(R+1)}")
    A(f"v_add_f32 {TT}, {v(R)}, {v(R+1)}"); A(f"v_add_f32 {Y}, {v(R)}, {v(R+1)}")
    A(f"v_permlane16_swap_b32 {Y}, {TT}"); A(f"v_add_f32 {Y}, {Y}, {TT}")
    rbf(Y, Y)
    if kind == 'M':
        A(f"v_add_f32 {Y}, {Y}, {vB2}"); rbf(Y, Y)
    A(f"v_add_f32 {TT}, {Y}, {vXres}")
    A(f"v_add_f32 {v(R+1)}, {Y}, {vXres}")
    A(f"v_add_f32 {Y}, {Y}, {vXres}")
    A("s_mov_b64 exec, -1")
    A(f"v_permlane32_swap_b32 {TT}, {v(R+1)}")
    A(f"v_cvt_pk_bf16_f32 {TT}, {TT}, {v(R+1)}")
    A("s_mov_b64 exec, 0xffff")
    if kind == 'M':
        A(f"s_cmp_lg_u32 {sL}, 0")
        A("s_cbranch_scc1 L_out")
    pub(f"buffer_store_dword {TT}, {vZst}, {srd(rWS)}, {{so}} offen{{fl}}")
    A("s_mov_b64 exec, -1")
    stamp()
    rbf(vXres, Y)
    A(f"v_add_u32 {vZst}, 2304, {vZst}")
    A(f"s_add_u32 {sXPo}, {sXPo}, {XPS}")

A(f"s_bitcmp1_b32 {sRole}, 0")
A("s_cbranch_scc1 L_mlp")
A(f"s_bitcmp1_b32 {sRole}, 1")
A("s_cbranch_scc0 L_next")
A(f"s_cmp_lg_u32 {sL}, 0")
A("s_cbranch_scc1 L_red")
A(f"v_lshlrev_b32 {vXres}, 16, {vXres}"); A(f"v_lshlrev_b32 {vB2}, 16, {vB2}")
zero(YG+8)
A("L_red:")
k0 = nst[0]
reducer('A'); reducer('M')
kr = nst[0]
A("s_branch L_next")
A("L_mlp:")
nst[0] = k0
A(f"s_cmp_lg_u32 {sL}, 0")
A("s_cbranch_scc1 L_m1")
A(f"s_mul_i32 {t0}, {sX}, 18"); A(f"s_add_u32 {t0}, {t0}, {sJ}")
A(f"s_lshl_b32 {t2}, {t0}, 6")
A(f"buffer_load_ushort {vB1}, {vB1}, {srd(rT1)}, 0 offen{NT}")
A(f"s_cmp_ge_u32 {sJ}, 16")
A("s_cbranch_scc1 L_m0b")
if 's' not in args.early: slots_touch()
if '1' not in args.early: w1_touch()
slots_clear()
if '2' in args.early: A("s_branch L_m0d")
A("L_m0b:")
w2_loads()
A("L_m0d:")
A(f"s_cmp_eq_u32 {sW}, 3")
A("s_cbranch_scc1 L_m0c")
A("L_m0a:")
A(f"v_lshrrev_b32 {TT}, 4, v0"); A(f"v_mul_u32_u24 {TT}, {4*9216}, {TT}"); A(f"v_and_b32 {LS}, 15, v0"); A(f"v_lshl_add_u32 {TT}, {LS}, 2, {TT}")
A(f"s_mul_i32 {t0}, {sW}, {192*9216}"); A(f"s_add_u32 {t0}, {t0}, {t2}")
prev = 0
for i in range(6):
    for vv in range(8):
        row = 32*i + 16*(vv >> 2) + (vv & 3)
        if row != prev: A(f"s_add_u32 {t0}, {t0}, {(row-prev)*9216}")
        prev = row
        A(f"buffer_load_dword {a(aW1+8*i+vv)}, {TT}, {srd(rW1)}, {t0} offen{NTM}")
A("L_m0c:")
if ST: A("s_memrealtime s[94:95]"); A("s_waitcnt vmcnt(0)"); A("s_memrealtime s[96:97]")
A("s_waitcnt vmcnt(0)")
A(f"v_lshlrev_b32 {vB1}, 16, {vB1}")
A("L_m1:")
zero(D0, 8)
c0 = -2 * 1.4426950408889634 * 0.7978845608028654
A(f"v_mov_b32 {v(E)}, {f32(c0)}")
A(f"v_lshrrev_b32 {v(E+1)}, 5, v0"); A(f"v_lshlrev_b32 {v(E+1)}, 3, {v(E+1)}")
A(f"v_add_u32 {v(E+2)}, {4*2304}, {vMst}")
A(f"s_mul_i32 {t0}, {sL}, {Z3_O-Z1_O}"); A(f"s_add_u32 {t0}, {t0}, {sGp}"); A(f"s_add_u32 {t0}, {t0}, {Z1_O}")
A(f"s_cmp_eq_u32 {sW}, 3")
A("s_cbranch_scc1 L_m2")
poll_proj(vXAm, t0, 6, aW1, args.dz)
A("s_mov_b32 exec_hi, 0")
A(f"ds_write_b128 {vHPw}, {v(D0,4)}")
A("s_mov_b32 exec_hi, -1")
A("s_branch L_m2b")
A("L_m2:")
poll(xs_loads(rWS, t0, ' sc1'), [v(XS+i) for i in range(9)], depth=args.dz)
stats(32)
A("L_m2b:")
stamp()
A("s_waitcnt lgkmcnt(0)")
A("s_barrier")
H = TM + 12
A(f"ds_read2_b32 {v(H,2)}, {vHPr} offset0:0 offset1:2")
A(f"ds_read2_b32 {v(H+2,2)}, {vHPr} offset0:128 offset1:130")
A(f"ds_read_b32 {v(H+4)}, {vHPr} offset:1024"); A(f"ds_read_b32 {v(H+5)}, {vHPr} offset:1032")
A(f"ds_read_b64 {v(TM,2)}, {v(E+1)} offset:{L_STAT+32}")
zero(D0)
A("s_waitcnt lgkmcnt(0)")
A(f"v_add_f32 {v(H)}, {v(H)}, {v(H+2)}"); A(f"v_add_f32 {v(H+1)}, {v(H+1)}, {v(H+3)}")
A(f"v_add_f32 {v(H)}, {v(H)}, {v(H+4)}"); A(f"v_add_f32 {v(H+1)}, {v(H+1)}, {v(H+5)}")
A(f"v_fma_f32 {v(H)}, -{S_}, {v(H+1)}, {v(H)}")
A(f"v_mul_f32 {v(H)}, {v(H)}, {Q_}")
rbf(v(H), v(H))
A(f"v_add_f32 {v(H)}, {v(H)}, {vB1}")
rbf(v(H), v(H))
A(f"v_mul_f32 {TT}, {v(H)}, {v(H)}")
A(f"v_fmac_f32 {v(E)}, {f32(c0*0.044715)}, {TT}")
A(f"v_mul_f32 {TT}, {v(E)}, {v(H)}")
A(f"v_exp_f32 {TT}, {TT}")
A(f"v_add_f32 {TT}, 1.0, {TT}")
A(f"v_rcp_f32 {TT}, {TT}")
A(f"v_mul_f32 {TT}, {TT}, {v(H)}")
A(f"v_cvt_pk_bf16_f32 {TT}, {TT}, 0")
A(f"ds_write2_b32 {vPTw}, {TT}, {TT} offset1:5")
for i in range(4): A(f"ds_read_b128 {v(AO+4*i,4)}, {vPTr} offset:{128*i}")
stamp()
tile_out(aW2, aW2t, vMst)
A("L_m4:")
stamp()
nst[0] = kr
A("L_next:")
A(f"s_cmp_lg_u32 {sL}, 0")
A("s_cbranch_scc1 L_fin")
if ST:
    A("s_waitcnt lgkmcnt(0)")
    for k in range(14): A(f"v_writelane_b32 {v(SV)}, s{72+2*k}, {1+k}")
    for k in range(14): A(f"s_mov_b64 s[{72+2*k}:{73+2*k}], 0")
A(f"s_mov_b32 {sL}, 1")
A(f"s_add_u32 {sXoff}, {sGp}, {Z2_O}")
A(f"v_add_u32 {vQPg}, {QP1_O-QP_O}, {vQPg}"); A(f"v_add_u32 {vQPst}, {QP1_O-QP_O}, {vQPst}")
A(f"v_add_u32 {vQPg2}, {QP1_O-QP_O}, {vQPg2}")
for r in (vSTst, vSTg, vSTm): A(f"v_add_u32 {r}, {ST1_O-ST_O}, {r}")
A("s_branch L_layer")
A("L_out:")
A(f"buffer_store_dword {TT}, {vZo}, {srd(rOUT)}, 0 offen")
A(f"s_mov_b32 {t0}, {EP_O}")
A("s_mov_b64 exec, 1")
A(f"buffer_store_dword {FN}, {vL16}, {srd(rWS)}, {t0} offen")
if ST: A(f"s_memrealtime s[{72+2*13}:{73+2*13}]")
A("L_fin:")
if args.enc:
    j0, j1 = [int(x) for x in args.encj.split(',')]
    A("s_memrealtime s[66:67]")
    A("s_waitcnt lgkmcnt(0)")
    if args.enc <= 14: A(f"v_readlane_b32 {t0}, {v(SV)}, {args.enc}"); A("s_nop 3")
    else: A(f"s_mov_b32 {t0}, s{72+2*(args.enc-15)}")
    A(f"s_cmp_eq_u32 {t0}, 0"); A("s_cbranch_scc1 L_enc2")
    A(f"s_cmp_lt_u32 {sJ}, {j0}"); A("s_cbranch_scc1 L_enc2")
    A(f"s_cmp_ge_u32 {sJ}, {j1}"); A("s_cbranch_scc1 L_enc2")
    A(f"s_sub_u32 {t0}, {t0}, s100"); A(f"s_min_u32 {t0}, {t0}, 10000"); A(f"s_lshl_b32 {t0}, {t0}, 3"); A(f"s_add_u32 {t0}, {t0}, s66")
    A("L_enc:")
    A("s_sleep 8")
    A("s_memrealtime s[64:65]"); A("s_waitcnt lgkmcnt(0)")
    A(f"s_sub_u32 {t1}, s64, {t0}"); A(f"s_cmp_lt_i32 {t1}, 0"); A("s_cbranch_scc1 L_enc")
    A("L_enc2:")
if ST:
    A("s_mov_b64 exec, -1")
    A("s_waitcnt lgkmcnt(0)")
    A(f"v_writelane_b32 {v(SV)}, s100, 0")
    for k in range(14): A(f"v_writelane_b32 {v(SV)}, s{72+2*k}, {15+k}")
    A(f"s_lshl_b32 {t0}, s2, 2"); A(f"s_add_u32 {t0}, {t0}, {sW}"); A(f"s_lshl_b32 {t0}, {t0}, 8"); A(f"s_add_u32 {t0}, {t0}, {STAMP_O}")
    A(f"v_mov_b32 {v(SV+1)}, 0")
    A(f"v_lshlrev_b32 {v(SV+2)}, 3, v0")
    A("s_mov_b32 exec_hi, 0")
    A(f"buffer_store_dwordx2 {v(SV,2)}, {v(SV+2)}, {srd(rWS)}, {t0} offen")
A("L_end:")
A("s_endpgm")
A("L_af2:")
A(f"s_cmp_eq_u32 {sMode}, {FB_O}")
A("s_cbranch_scc1 L_g2")
A(f"s_add_u32 {sMode}, {sMode}, 1")
A(f"s_lshl_b32 {t2}, {sX}, 10"); A(f"s_add_u32 {t2}, {t2}, {FL_O}")
A(f"s_lshl_b32 {t4}, {sL}, 2"); A(f"s_add_u32 {t1}, {t4}, {t2}")
A(f"s_cmp_lt_u32 {sMode}, {1 if args.forcefb else 40}")
A("s_cbranch_scc1 L_af5")
A("s_mov_b64 exec, 1")
A(f"buffer_store_dword {FN}, {vL16}, {srd(rWS)}, {t1} offen sc1")
A("s_mov_b32 exec_lo, -1")
A(f"buffer_load_dwordx4 {v(FG,4)}, {vL16}, {srd(rWS)}, {t2} offen sc1")
A("s_mov_b32 exec_hi, -1")
A("s_waitcnt vmcnt(0)")
flags_diff()
A(f"v_and_b32 {TT}, 0x0fffffff, {CK}")
A(f"v_cmp_ne_u32 vcc, 0, {TT}")
A("s_cmp_lg_u32 vcc_lo, 0")
A("s_cbranch_scc1 L_af5")
A(f"v_cmp_ne_u32 vcc, 0, {CK}")
A("s_cmp_lg_u32 vcc_lo, 0")
if args.forcefb: A("s_cmp_eq_u32 0, 0")
A("s_cbranch_scc1 L_spread")
A("L_af5:")
A(f"s_sub_u32 {sTO}, {sTO}, 1")
A("s_cbranch_scc0 L_g4")
A(f"s_mov_b32 {sTO}, 0")
A(f"s_mov_b32 {sMode}, 0")
A("s_branch L_g2")
A("L_spread:")
A(f"s_mov_b32 {sMode}, {FB_O}")
A(f"s_add_u32 {sGp}, {sGf}, {FB_O}")
empty_share(sGp, ' sc1')
A("s_mov_b32 exec_hi, 0")
A(qp_store.format(so=sGp, fl=' sc1'))
A("s_waitcnt vmcnt(0)")
A("s_mov_b64 exec, 1")
A(f"buffer_store_dword {FN}, {vL16}, {srd(rWS)}, {t1} offen offset:512 sc1")
A("s_mov_b32 exec_lo, -1")
A("L_sp1:")
A("s_mov_b32 exec_hi, 0")
A(f"buffer_load_dwordx4 {v(FG,4)}, {vL16}, {srd(rWS)}, {t2} offen offset:512 sc1")
A("s_mov_b32 exec_hi, -1")
A("s_waitcnt vmcnt(0)")
flags_diff()
A(f"v_and_b32 {CK}, 0x0fffffff, {CK}")
A(f"v_cmp_ne_u32 vcc, 0, {CK}")
A("s_cmp_eq_u32 vcc_lo, 0")
A("s_cbranch_scc1 L_g4")
A("s_sleep 4")
A(timeout("L_sp1", "L_g4"))
for t in tail: A(t)
A.raw('L_codeend:')
A.raw('.section .rodata,"a"')
A.raw(".p2align 6")
A.raw(f".amdhsa_kernel {NAME}_kernel")
A.raw(f"  .amdhsa_next_free_vgpr {ACC+NACC}")
A.raw("  .amdhsa_next_free_sgpr 102")
A.raw(f"  .amdhsa_accum_offset {ACC}")
A.raw("  .amdhsa_group_segment_fixed_size 0")
A.raw("  .amdhsa_kernarg_size 104")
A.raw("  .amdhsa_user_sgpr_count 2")
A.raw("  .amdhsa_user_sgpr_kernarg_segment_ptr 1")
A.raw("  .amdhsa_system_sgpr_workgroup_id_x 1")
A.raw(".end_amdhsa_kernel")
txt = A.text()
if args.cyc: txt = txt.replace('s_memrealtime', 's_memtime')
sys.stdout.write(txt)
```

```python
import sys, argparse, struct
sys.path.insert(0, 'dev')
from asmlib import Asm
NAME = "interleave_layers__sliding_block_cached__dense_activation_gelu__decode"
ap = argparse.ArgumentParser()
ap.add_argument('--stamps', action='store_true')
ap.add_argument('--pro', action='store_true')
ap.add_argument('--cyc', action='store_true')
ap.add_argument('--xt', type=int, default=0)
ap.add_argument('--xd', type=int, default=11)
ap.add_argument('--enc', type=int, default=0)
ap.add_argument('--encj', default='0,32')
ap.add_argument('--only', default='')
ap.add_argument('--pQ', type=int, default=4)
ap.add_argument('--code', type=int, default=1)
ap.add_argument('--early', default='0')
ap.add_argument('--vw', type=int, default=1)
ap.add_argument('--di', type=int, default=1)
ap.add_argument('--dz', type=int, default=1)
ap.add_argument('--dxx', type=int, default=1)
ap.add_argument('--nt', default='k,v')
ap.add_argument('--forcefb', action='store_true')
args = ap.parse_args()
def ntf(c): return ' nt' if c in args.nt.split(',') else ''
NT = ntf('s'); NTK = ntf('k'); NTV = ntf('v'); NTQ = ntf('q'); NTO = ntf('o'); NTM = ntf('m'); NT2 = ntf('2')
ST = args.stamps

def f32(x): return '0x%08x' % struct.unpack('<I', struct.pack('<f', x))[0]

CLR = 1792
OP_O = 0
Y_O = OP_O + 131072
ST_O = Y_O + 82944
ST1_O = ST_O + 2048
Z1_O = ST1_O + 2048
Z2_O = Z1_O + 2304
Z3_O = Z2_O + 2304
assert Z3_O + 2304 <= 128 * CLR
QP_O = 128 * CLR
QP1_O = QP_O + 65536
FF_O = QP1_O + 65536
GB = FF_O + 1024
FB_O = 8 * GB
XP_O = 16 * GB
XPS = 36 * 8192
FL_O = XP_O + 4 * XPS
EP_O = FL_O + 8 * 1024
STAMP_O = 0x8000000
L_X = 640
L_QT, L_STAT, L_OT, L_PT, L_HP, L_K, L_WQ, L_SIZE = 0, 512, 1024, 2560, 8192, 16384, 49152, 67584

rK, rV, rWQ, rWO, rW1, rW2, rWS, rX, rOUT, rT1, rT2 = 4, 8, 12, 16, 20, 24, 28, 32, 36, 44, 48
sTask, kv0, kv1, sFlag = 's40', 's41', 's42', 's43'
def srd(n): return f"s[{n}:{n+3}]"
sW, sX, sJ, sGf, sGp, sXoff, sTO, sMode, sL, sWo = [f"s{i}" for i in range(52, 62)]
t0, t1, t2, t3, t4, t5 = [f"s{i}" for i in range(62, 68)]
mLO8 = "s[68:69]"; mROW = "s[70:71]"
MXA = "0x00330033"
sRole = "s3"
(vL4, vL16, vIdxD, vIdxP, vIdxS, vXAq, vXAm, vQPst, vQPg, vL128, vQTw, vQTr, vPTw, vPTr, vSTst, vOPst, vSTg, vOPg, vOTw, vOTr,
 vYst, vMst, vHPw, vSTm, vRg, vSTATr, vXPst, vXPg, vZst, vXres, vB2, vB1, vCq, vZo, vXS1, vXS2, vWrow, vHPr, vOnes) = [f"v{i}" for i in range(1, 40)]
XA, D0, D1, DP, AO, SG, YG, XG, XS, FG, TM, EM, KA, SV, OG, QG = 40, 64, 68, 72, 76, 104, 120, 132, 136, 148, 152, 176, 180, 184, 188, 196
vQPg2 = 'v92'
ACC = 212
aWQ, aK, aV, aWO, aW1, aW2, aWOt, NACC = 0, 24, 56, 88, 120, 168, 200, 232
aW2t = aW1
def v(n, k=1): return f"v{n}" if k == 1 else f"v[{n}:{n+k-1}]"
def a(n, k=1): return f"a{n}" if k == 1 else f"a[{n}:{n+k-1}]"
CK = v(TM + 23); FN = v(TM + 22); vTag = v(TM + 21); DUM = v(TM + 20)
sEp, sXPo = kv0, kv1

A = Asm()
tail = []
nst = [0]
def pstamp(k):
    if args.pro: A(f"s_memrealtime s[{72+2*k}:{73+2*k}]")
def stamp():
    if ST and not args.pro:
        k = nst[0]; nst[0] += 1
        assert k < 13
        if ONLY is None or k in ONLY: A(f"s_memrealtime s[{72+2*k}:{73+2*k}]")
ONLY = set(int(x) for x in args.only.split(',')) if args.only else None
def lg(n): return 0 if (ST and ONLY is None) else n
def exec_xa(): return [f"s_mov_b32 exec_lo, {MXA}", f"s_mov_b32 exec_hi, {MXA}"]

def check_text(regs):
    regs = list(regs); o = []
    if len(regs) == 1: cur = regs[0]
    else:
        take = regs[:3]; regs = regs[3:]
        o.append(f"v_max3_u32 {CK}, {take[0]}, {take[1]}, {take[2]}" if len(take) == 3 else f"v_max_u32 {CK}, {take[0]}, {take[1]}")
        while regs:
            take = regs[:2]; regs = regs[2:]
            o.append(f"v_max3_u32 {CK}, {CK}, {take[0]}, {take[1]}" if len(take) == 2 else f"v_max_u32 {CK}, {CK}, {take[0]}")
        cur = CK
    o.append(f"v_cmp_eq_u32 vcc, -1, {cur}")
    return o
def nvm(loads): return sum(1 for l in loads if l.startswith('buffer_'))
def timeout(again, ok): return f"s_sub_u32 {sTO}, {sTO}, 1\ns_cbranch_scc0 {again}\ns_mov_b32 {sTO}, 0\ns_waitcnt vmcnt(0) lgkmcnt(0)\ns_branch {ok}"

def poll(loads, regs, depth=1, primed=0, extra_wait="", retry_pre="", ok_post="", chk=None):
    lp = A.newlabel('L_poll'); rt = A.newlabel('L_retry'); ok = A.newlabel('L_ok')
    for d in range(primed, depth):
        if d: A("s_sleep 1")
        for l in loads: A(l)
    A(f"{lp}:")
    A(f"s_waitcnt vmcnt({(depth-1)*nvm(loads)}){extra_wait}")
    for l in (chk or check_text(regs)): A(l)
    A(f"s_cbranch_vccnz {rt}")
    A(f"{ok}:")
    if ok_post: A(ok_post)
    tail.append(f"{rt}:\n{retry_pre}\n" + "\n".join(loads) + "\n" + timeout(lp, ok))

def sm(d, av, br, idx): A(f"v_smfmac_f32_16x16x64_bf16 {v(d,4)}, {v(av,4)}, {a(br,8)}, {idx}")
def xa_loads(rr, voff, so, n, fl, short_last=False):
    o = exec_xa()
    for i in range(n):
        if short_last and i == n - 1: o.append("s_mov_b64 exec, 0x33")
        o.append(f"buffer_load_dwordx4 {v(XA+4*i,4)}, {voff}, {srd(rr)}, {so} offen offset:{64*i}{fl}")
    return o + ["s_mov_b64 exec, -1"]
def poll_proj(voff, so, n, wbase, depth, short_last=False):
    loads = xa_loads(rWS, voff, so, n, ' sc1', short_last)
    lp = A.newlabel('L_poll'); rt = A.newlabel('L_retry'); ok = A.newlabel('L_ok')
    for d in range(depth):
        if d: A("s_sleep 1")
        for l in loads: A(l)
    A(f"{lp}:")
    A(f"s_waitcnt vmcnt({(depth-1)*n})")
    for i in range(n): sm(D0, XA+4*i, wbase+8*i, vIdxD)
    A(f"v_cmp_u_f32 vcc, {v(D0)}, {v(D0+1)}")
    A(f"s_cbranch_vccnz {rt}")
    A(f"{ok}:")
    ag = A.newlabel('L_again'); gen = A.newlabel('L_nan')
    z = "\n".join(f"v_mov_b32 {v(D0+i)}, 0" for i in range(4))
    mm = "\n".join(f"v_smfmac_f32_16x16x64_bf16 {v(D0,4)}, {v(XA+4*i,4)}, {a(wbase+8*i,8)}, {vIdxD}" for i in range(n))
    tail.append(f"{rt}:\n{z}\n" + "\n".join(check_text([v(XA+i) for i in range(4*n)])) + f"\ns_cbranch_vccz {gen}\n" + "\n".join(loads) +
                f"\ns_sub_u32 {sTO}, {sTO}, 1\ns_cbranch_scc0 {lp}\ns_mov_b32 {sTO}, 0\n{gen}:\n{mm}\ns_nop 7\ns_branch {ok}")

def pub(*fmts):
    for f in fmts: A(f.format(so=sGf, fl=''))
    sl = A.newlabel('L_slow'); bk = A.newlabel('L_back')
    A(f"s_cmp_lg_u32 {sMode}, 0")
    A(f"s_cbranch_scc1 {sl}")
    A(f"{bk}:")
    tail.append(f"{sl}:\n" + "\n".join(f.format(so=sGp, fl=' sc1') for f in fmts) + f"\ns_nop 1\ns_branch {bk}")

def rbf(dst, src):
    A(f"v_cvt_pk_bf16_f32 {dst}, {src}, {src}")
    A(f"v_and_b32 {dst}, 0xffff0000, {dst}")
def treduce(r):
    A(f"v_permlane32_swap_b32 {v(r)}, {v(r+2)}")
    A(f"v_permlane32_swap_b32 {v(r+1)}, {v(r+3)}")
    A(f"v_add_f32 {v(r)}, {v(r)}, {v(r+2)}")
    A(f"v_add_f32 {v(r+1)}, {v(r+1)}, {v(r+3)}")
    A(f"v_permlane16_swap_b32 {v(r)}, {v(r+1)}")
    A(f"v_add_f32 {v(r)}, {v(r)}, {v(r+1)}")
    A(f"v_add_f32_dpp {v(r)}, {v(r)}, {v(r)} row_ror:8 row_mask:0xf bank_mask:0xf")
S_, Q_ = v(TM), v(TM+1)
def stats(slot_off, write=True):
    S, Q = S_, Q_
    A(f"v_mov_b32 {S}, 0"); A(f"v_mov_b32 {Q}, 0")
    for i in range(9):
        A(f"v_dot2c_f32_bf16 {S}, {v(XS+i)}, {vOnes}")
        A(f"v_dot2c_f32_bf16 {Q}, {v(XS+i)}, {v(XS+i)}")
    A(f"v_lshrrev_b32 {v(TM+2)}, 5, v0"); A(f"v_lshlrev_b32 {v(TM+2)}, 3, {v(TM+2)}")
    A(f"v_permlane16_swap_b32 {S}, {Q}")
    A(f"v_add_f32 {S}, {S}, {Q}")
    for k in (8, 4, 2, 1):
        A(f"v_add_f32_dpp {S}, {S}, {S} row_ror:{k} row_mask:0xf bank_mask:0xf")
    A(f"v_mul_f32 {Q}, {f32(1/576)}, {S}")
    A(f"v_mul_f32 {S}, {f32(1/576)}, {S}")
    A(f"v_permlane16_swap_b32 {S}, {Q}")
    A(f"v_fma_f32 {Q}, -{S}, {S}, {Q}")
    A(f"v_max_f32 {Q}, 0, {Q}")
    A(f"v_cvt_pk_bf16_f32 {Q}, {S}, {Q}")
    A(f"v_lshlrev_b32 {S}, 16, {Q}")
    A(f"v_and_b32 {Q}, 0xffff0000, {Q}")
    A(f"v_add_f32 {Q}, {f32(1e-5)}, {Q}")
    rbf(Q, Q)
    A(f"v_sqrt_f32 {Q}, {Q}")
    rbf(Q, Q)
    A(f"v_rcp_f32 {Q}, {Q}")
    if write: A(f"ds_write_b64 {v(TM+2)}, {v(TM,2)} offset:{L_STAT+slot_off}")
def zero(r, n=4):
    for i in range(n): A(f"v_mov_b32 {v(r+i)}, 0")
def xs_loads(rr, so, fl):
    return [f"buffer_load_dwordx4 {v(XS,4)}, {vXS1}, {srd(rr)}, {so} offen{fl}",
            f"buffer_load_dwordx4 {v(XS+4,4)}, {vXS1}, {srd(rr)}, {so} offen offset:512{fl}",
            f"buffer_load_dword {v(XS+8)}, {vXS2}, {srd(rr)}, {so} offen offset:1024{fl}"]

A.raw(f"; @launch grid=(256,1,1) block=(256,1,1) lds={L_SIZE}")
A.raw('.amdgcn_target "amdgcn-amd-amdhsa--gfx950"')
A.raw(".text")
A.raw(f".globl {NAME}_kernel")
A.raw(".p2align 8")
A.raw(f".type {NAME}_kernel,@function")
A.raw(f"{NAME}_kernel:")
if ST:
    A("s_memrealtime s[100:101]")
    for k in range(14): A(f"s_mov_b64 s[{72+2*k}:{73+2*k}], 0")
A("s_cmp_ge_u32 s2, 256")
A("s_cbranch_scc1 L_end")
for r, off in ((rWS, 96), (rX, 0), (rWQ, 24), (rK, 8), (rV, 16), (rWO, 32)):
    A(f"s_load_dwordx2 s[{r}:{r+1}], s[0:1], {off}")
A(f"v_lshrrev_b32 {v(TM)}, 6, v0")
A(f"v_and_b32 v0, 63, v0")
A(f"v_readfirstlane_b32 {sW}, {v(TM)}")
for r, n in ((rX, 2304), (rWQ, 4718592), (rK, 33554432), (rV, 33554432), (rWS, 268435456), (rWO, 4718592)):
    A(f"s_mov_b32 s{r+2}, {n}"); A(f"s_mov_b32 s{r+3}, 0x20000")
A(f"s_and_b32 {sX}, s2, 7")
A(f"s_lshr_b32 {sJ}, s2, 3")
A("s_mov_b32 s68, 0x00ff00ff"); A("s_mov_b32 s69, 0x00ff00ff")
G, C, B2 = v(TM+3), v(TM+4), v(TM+5)
A(f"v_lshrrev_b32 {G}, 4, v0")
A(f"v_and_b32 {C}, 15, v0")
A(f"v_lshlrev_b32 {vL16}, 4, v0")
A(f"v_lshlrev_b32 {vL128}, 7, v0")
for i in range(4): A(f"v_mov_b32 {v(EM+i)}, -1")
A(f"s_lshr_b32 {t0}, {sJ}, 4"); A(f"s_lshl_b32 {t3}, {sX}, 1"); A(f"s_add_u32 {t0}, {t0}, {t3}")
A(f"s_bfe_u32 {t1}, {sJ}, 0x10003")
A(f"s_and_b32 {t2}, {sJ}, 7")
A(f"s_mul_i32 {sGf}, {sX}, {GB}")
A(f"v_bfe_u32 {B2}, v0, 2, 1")
A(f"v_mul_u32_u24 {vXAm}, 1152, {B2}")
A(f"v_lshl_add_u32 {vXAm}, {G}, 4, {vXAm}")
A(f"s_mul_i32 {t4}, {t2}, 144")
A(f"v_add_u32 {vXAq}, {t4}, {vXAm}")
for i in range(12): A(f"v_mov_b32 {v(XA+i)}, 0x3f803f80")
A(f"v_lshlrev_b32 {v(TM+6)}, 13, {G}")
A(f"v_lshl_add_u32 {v(TM+6)}, {C}, 4, {v(TM+6)}")
A(f"s_mul_i32 {t3}, {t2}, 18"); A(f"s_add_u32 {t3}, {t3}, {sW}"); A(f"s_lshl_b32 {t3}, {t3}, 15")
A(f"s_lshl_b32 {t4}, {t0}, 9"); A(f"s_add_u32 {t3}, {t3}, {t4}"); A(f"s_lshl_b32 {t4}, {t1}, 8"); A(f"s_add_u32 {t3}, {t3}, {t4}")
A(f"s_lshl_b32 {t4}, {sW}, 10"); A(f"s_add_u32 m0, {t4}, {L_WQ}")
A(f"s_lshl_b32 {kv0}, {t1}, 24"); A(f"s_lshl_b32 {t4}, {t0}, 20"); A(f"s_add_u32 {kv0}, {kv0}, {t4}")
A(f"s_lshl_b32 {t4}, {t2}, 15"); A(f"s_add_u32 {kv0}, {kv0}, {t4}")
A(f"s_lshl_b32 {t4}, {sW}, 13"); A(f"s_add_u32 {kv0}, {kv0}, {t4}")
A(f"s_add_u32 {kv0}, {kv0}, {3072*256}"); A(f"s_add_u32 {kv1}, {kv0}, 4096")
A(f"v_xor_b32 {v(TM+7)}, {C}, {G}")
A(f"v_lshlrev_b32 {v(TM+7)}, 4, {v(TM+7)}")
A(f"v_lshl_add_u32 {v(KA)}, {G}, 8, {v(TM+7)}")
for i in range(1, 4): A(f"v_xor_b32 {v(KA+i)}, {64*i}, {v(KA)}")
A(f"s_lshl_b32 {sL}, {sJ}, 2"); A(f"s_add_u32 {sL}, {sL}, {sW}")
A(f"s_lshl_b32 {t4}, {sL}, 9"); A(f"s_add_u32 {t4}, {t4}, {QP_O}")
A(f"v_add_u32 {vQPst}, {t4}, {vL16}")
A(f"s_mov_b32 {t5}, {EP_O}")
A("s_waitcnt lgkmcnt(0)")
pstamp(0)
A("s_mov_b64 exec, 1")
A(f"buffer_load_dword {FN}, {vL16}, {srd(rWS)}, {t5} offen{NT}")
A("s_mov_b64 exec, -1")
def empty_share(base, fl):
    A(f"s_mul_i32 {t5}, {sL}, {CLR}"); A(f"s_add_u32 {t5}, {t5}, {base}")
    A(f"buffer_store_dwordx4 {v(EM,4)}, {vL16}, {srd(rWS)}, {t5} offen{fl}")
    A(f"buffer_store_dwordx4 {v(EM,4)}, {vL16}, {srd(rWS)}, {t5} offen offset:{CLR-1024}{fl}")
A(f"s_cmp_lg_u32 {sW}, 3")
A("s_cbranch_scc1 L_pro2")
A(f"v_lshrrev_b32 {v(TM+8)}, 5, v0"); A(f"v_and_b32 {v(TM+9)}, 31, v0")
A(f"v_mul_u32_u24 {vXS1}, 1152, {v(TM+8)}"); A(f"v_lshl_add_u32 {vXS2}, {v(TM+9)}, 2, {vXS1}"); A(f"v_lshl_add_u32 {v(TM+10)}, {v(TM+9)}, 3, {vXS1}"); A(f"v_lshl_add_u32 {vXS1}, {v(TM+9)}, 4, {vXS1}")
for l in xs_loads(rX, 0, NT): A(l)
A(f"s_mul_i32 {t5}, {t2}, 144")
A(f"buffer_load_dwordx2 {v(XG,2)}, {v(TM+10)}, {srd(rX)}, {t5} offen{NT}")
A("L_pro2:")
for n in range(5):
    if n == 4:
        A(f"s_cmp_ge_u32 {sW}, 2"); A("s_cbranch_scc1 L_pro1")
    A(f"buffer_load_dwordx4 {v(TM+6)}, {srd(rWQ)}, {t3} offen{NTQ} lds")
    if n < 4: A(f"s_add_u32 {t3}, {t3}, {16*8192}"); A("s_add_u32 m0, m0, 4096")
A("L_pro1:")
empty_share(sGf, '')
A(f"s_lshl_b32 {t4}, {sW}, 13"); A(f"s_add_u32 m0, {t4}, {L_K}")
for i in range(8):
    if i == 4: A(f"s_add_u32 m0, m0, 4096")
    A(f"buffer_load_dwordx4 {v(KA+i%4)}, {srd(rK)}, {kv0 if i < 4 else kv1} offen offset:{1024*(i%4)}{NTK} lds")

def constants():
    A(f"v_mul_u32_u24 {vWrow}, 1152, {G}")
    A(f"v_lshl_add_u32 {vWrow}, {C}, 4, {vWrow}")
    A(f"s_cmp_lt_u32 {sJ}, 18"); A(f"s_cselect_b32 {sRole}, 1, 0")
    A(f"s_cmp_ge_u32 {sJ}, 20"); A(f"s_cselect_b32 {t4}, 2, 0"); A(f"s_cmp_lt_u32 {sW}, 3"); A(f"s_cselect_b32 {t4}, {t4}, 0"); A(f"s_or_b32 {sRole}, {sRole}, {t4}")
    A(f"s_sub_u32 {sTask}, {sJ}, 20"); A(f"s_mul_i32 {sTask}, {sTask}, 3"); A(f"s_add_u32 {sTask}, {sTask}, {sW}"); A(f"s_min_u32 {sTask}, {sTask}, 35")
    A(f"s_lshl_b32 {t3}, {sX}, 4"); A(f"s_and_b32 {t4}, {sJ}, 15"); A(f"s_add_u32 {sWo}, {t3}, {t4}"); A(f"s_mul_i32 {sWo}, {sWo}, {32*1152}")
    A(f"s_lshl_b32 {t4}, {sW}, 8"); A(f"s_add_u32 {sWo}, {sWo}, {t4}")
    for r, n in ((rW1, 5308416), (rW2, 5308416), (rOUT, 2304), (rT1, 9216), (rT2, 1152)):
        A(f"s_mov_b32 s{r+2}, {n}"); A(f"s_mov_b32 s{r+3}, 0x20000")
    A("s_mov_b32 s70, 0xffff0000"); A("s_mov_b32 s71, 0xffff0000")
    A(f"v_lshlrev_b32 {vL4}, 2, v0")
    for i in range(12, 24): A(f"v_mov_b32 {v(XA+i)}, 0x3f803f80")
    A(f"s_lshl_b32 {t4}, {sW}, 13"); A(f"s_add_u32 {t4}, {t4}, {L_K}")
    A(f"v_lshl_add_u32 {v(KA)}, {C}, 8, {v(TM+7)}"); A(f"v_add_u32 {v(KA)}, {t4}, {v(KA)}")
    for i in range(1, 4): A(f"v_xor_b32 {v(KA+i)}, {64*i}, {v(KA)}")
    T_ = [v(TM+8+i) for i in range(10)]
    A(f"v_and_b32 {T_[0]}, 1, v0")
    A(f"v_mul_u32_u24 {vIdxP}, 0xaaaa, {T_[0]}"); A(f"v_add_u32 {vIdxP}, 0x4444, {vIdxP}")
    A(f"v_and_b32 {T_[1]}, 3, v0")
    A(f"v_mul_u32_u24 {vIdxS}, 0x5555, {T_[1]}")
    A(f"v_bfe_u32 {T_[2]}, v0, 4, 1")
    A(f"v_bfe_u32 {T_[3]}, v0, 2, 2")
    A(f"v_bfe_u32 {T_[4]}, v0, 3, 1")
    A(f"v_lshrrev_b32 {T_[5]}, 5, v0")
    A(f"v_and_b32 {T_[8]}, 7, v0")
    A(f"v_and_b32 {T_[9]}, 31, v0")
    A(f"s_lshr_b32 {t3}, {sJ}, 4")
    A(f"s_lshr_b32 {t5}, {sJ}, 3")
    A(f"s_lshl_b32 {t3}, {t3}, 1"); A(f"s_lshr_b32 {t4}, {sW}, 1"); A(f"s_add_u32 {t3}, {t3}, {t4}"); A(f"s_lshl_b32 {t3}, {t3}, 14")
    A(f"s_and_b32 {t4}, {sW}, 1"); A(f"s_lshl_b32 {t4}, {t4}, 10"); A(f"s_add_u32 {t3}, {t3}, {t4}")
    A(f"s_lshl_b32 {t4}, {t1}, 8"); A(f"s_add_u32 {t3}, {t3}, {t4}"); A(f"s_add_u32 {t3}, {t3}, {QP_O}")
    A(f"v_lshl_add_u32 {vQPg}, {T_[5]}, 4, {T_[2]}"); A(f"v_lshlrev_b32 {vQPg}, 9, {vQPg}"); A(f"v_lshl_add_u32 {vQPg}, {C}, 4, {vQPg}"); A(f"v_add_u32 {vQPg}, {t3}, {vQPg}")
    A(f"v_add_u32 {vQPg2}, 4096, {vQPg}")
    A(f"s_and_b32 {t3}, {sW}, 1"); A(f"s_lshl_b32 {t3}, {t3}, 8"); A(f"s_lshr_b32 {t4}, {sW}, 1"); A(f"s_lshl_b32 {t4}, {t4}, 7"); A(f"s_add_u32 {t3}, {t3}, {t4}")
    A(f"v_bfe_u32 {T_[6]}, v0, 3, 2"); A(f"v_bfe_u32 {T_[7]}, v0, 1, 2")
    A(f"v_lshlrev_b32 {vQTw}, 5, {T_[6]}"); A(f"v_lshl_add_u32 {vQTw}, {T_[0]}, 4, {vQTw}"); A(f"v_lshl_add_u32 {vQTw}, {T_[7]}, 2, {vQTw}")
    A(f"v_lshl_add_u32 {vQTw}, {T_[5]}, 1, {vQTw}"); A(f"v_add_u32 {vQTw}, {t3}, {vQTw}")
    A(f"v_lshlrev_b32 {vQTr}, 5, {G}"); A(f"v_lshl_add_u32 {vQTr}, {T_[4]}, 7, {vQTr}"); A(f"v_lshl_add_u32 {vQTr}, {T_[0]}, 4, {vQTr}")
    A(f"v_mul_u32_u24 {vOTr}, 640, {T_[4]}"); A(f"v_lshl_add_u32 {vOTr}, {G}, 5, {vOTr}"); A(f"v_lshl_add_u32 {vOTr}, {B2}, 4, {vOTr}")
    A(f"s_mul_i32 {t3}, {sW}, 1280"); A(f"s_add_u32 {t3}, {t3}, {L_PT}")
    A(f"v_add_u32 {vPTr}, {t3}, {vOTr}"); A(f"v_add_u32 {vOTr}, {L_OT}, {vOTr}")
    A(f"v_bfe_u32 {T_[6]}, v0, 1, 4")
    A(f"v_mul_u32_u24 {vPTw}, 640, {T_[5]}"); A(f"v_lshl_add_u32 {vPTw}, {T_[6]}, 5, {vPTw}"); A(f"v_lshl_add_u32 {vPTw}, {T_[0]}, 3, {vPTw}"); A(f"v_add_u32 {vPTw}, {t3}, {vPTw}")
    A(f"v_lshrrev_b32 {vHPr}, 1, v0"); A(f"v_lshlrev_b32 {vHPr}, 4, {vHPr}"); A(f"v_lshl_add_u32 {vHPr}, {T_[0]}, 2, {vHPr}"); A(f"v_add_u32 {vHPr}, {L_HP}, {vHPr}")
    A(f"s_lshl_b32 {t3}, {sW}, 9"); A(f"s_add_u32 {t3}, {t3}, {L_HP}"); A(f"v_add_u32 {vHPw}, {t3}, {vL16}")
    A(f"s_lshl_b32 {t3}, {t5}, 9"); A(f"s_add_u32 {t3}, {t3}, {ST_O}")
    A(f"s_lshl_b32 {t4}, {t2}, 2"); A(f"s_add_u32 {t4}, {t4}, {sW}"); A(f"s_lshl_b32 {t4}, {t4}, 2"); A(f"s_add_u32 {t4}, {t4}, {t3}")
    A(f"v_lshlrev_b32 {vSTst}, 8, {T_[5]}"); A(f"v_lshl_add_u32 {vSTst}, {T_[0]}, 7, {vSTst}"); A(f"v_add_u32 {vSTst}, {t4}, {vSTst}")
    A(f"s_lshl_b32 {t3}, {t1}, 1"); A(f"s_lshr_b32 {t4}, {sW}, 1"); A(f"s_add_u32 {t3}, {t3}, {t4}"); A(f"s_lshl_b32 {t3}, {t3}, 9"); A(f"s_add_u32 {t3}, {t3}, {ST_O}")
    A(f"s_lshr_b32 {t4}, {t2}, 2"); A(f"s_lshl_b32 {t4}, {t4}, 8"); A(f"s_add_u32 {t3}, {t3}, {t4}")
    A(f"v_lshrrev_b32 {T_[7]}, 3, v0")
    A(f"v_lshl_add_u32 {vSTg}, {T_[7]}, 4, {t3}")
    A(f"s_and_b32 {t4}, {sW}, 1"); A(f"s_lshl_b32 {t4}, {t4}, 3"); A(f"v_add_u32 {vSTm}, {t4}, {vSTg}")
    A(f"s_lshr_b32 {t3}, {sJ}, 4"); A(f"s_lshl_b32 {t3}, {t3}, 16"); A(f"s_lshl_b32 {t4}, {t1}, 12"); A(f"s_add_u32 {t3}, {t3}, {t4}")
    A(f"s_lshl_b32 {t4}, {sW}, 10"); A(f"s_add_u32 {t3}, {t3}, {t4}"); A(f"s_lshl_b32 {t4}, {t2}, 7"); A(f"s_add_u32 {t3}, {t3}, {t4}")
    A(f"v_lshlrev_b32 {T_[6]}, 5, {T_[1]}"); A(f"v_lshl_add_u32 {T_[6]}, {T_[2]}, 4, {T_[6]}")
    A(f"v_lshl_add_u32 {vOPst}, {T_[5]}, 2, {T_[3]}"); A(f"v_lshl_add_u32 {vOPst}, {vOPst}, 13, {T_[6]}"); A(f"v_add_u32 {vOPst}, {t3}, {vOPst}")
    A(f"s_and_b32 {t3}, {sJ}, 15"); A(f"s_lshl_b32 {t3}, {t3}, 13"); A(f"s_lshl_b32 {t4}, {sW}, 11"); A(f"s_add_u32 {t3}, {t3}, {t4}"); A(f"v_add_u32 {vOPg}, {t3}, {vL16}")
    A(f"s_lshr_b32 {t3}, {sW}, 1"); A(f"s_mul_i32 {t3}, {t3}, 640"); A(f"s_and_b32 {t4}, {sW}, 1"); A(f"s_lshl_b32 {t4}, {t4}, 1"); A(f"s_add_u32 {t3}, {t3}, {t4}"); A(f"s_add_u32 {t3}, {t3}, {L_OT}")
    A(f"v_mul_u32_u24 {vOTw}, 20, {T_[4]}"); A(f"v_lshl_add_u32 {vOTw}, {T_[8]}, 6, {vOTw}"); A(f"v_lshl_add_u32 {vOTw}, {T_[5]}, 5, {vOTw}")
    A(f"v_lshl_add_u32 {vOTw}, {T_[2]}, 3, {vOTw}"); A(f"v_add_u32 {vOTw}, {t3}, {vOTw}")
    A(f"s_mul_i32 {t3}, {sW}, {4*2304}"); A(f"s_lshl_b32 {t4}, {sJ}, 7"); A(f"s_add_u32 {t3}, {t3}, {t4}"); A(f"s_add_u32 {t3}, {t3}, {Y_O}")
    A(f"v_mul_u32_u24 {vMst}, 18, {T_[5]}"); A(f"v_add_u32 {vMst}, {vMst}, {T_[3]}"); A(f"v_mul_u32_u24 {vMst}, 2304, {vMst}")
    A(f"v_add3_u32 {vMst}, {vMst}, {T_[6]}, {t3}")
    A(f"v_subrev_u32 {vYst}, 2048, {vMst}")
    A(f"v_mul_u32_u24 {vXS1}, 1152, {T_[5]}"); A(f"v_lshl_add_u32 {vXS2}, {T_[9]}, 2, {vXS1}"); A(f"v_lshl_add_u32 {vXS1}, {T_[9]}, 4, {vXS1}")
    A(f"s_lshl_b32 {t3}, {t1}, 3"); A(f"s_add_u32 {t3}, {t3}, {L_STAT}"); A(f"v_mov_b32 {vSTATr}, {t3}")
    A(f"s_mul_i32 {t4}, {sW}, 384"); A(f"v_add_u32 {vXAm}, {t4}, {vXAm}")
    A(f"s_mul_i32 {t4}, {sX}, 18"); A(f"s_add_u32 {t4}, {t4}, {sJ}"); A(f"s_lshl_b32 {t5}, {t4}, 6")
    A(f"v_lshl_add_u32 {vB1}, {T_[9]}, 1, {t5}")
    A(f"s_mul_i32 {t4}, {sTask}, 2304"); A(f"s_add_u32 {t4}, {t4}, {Y_O}"); A(f"v_add_u32 {vRg}, {t4}, {vL16}")
    A(f"s_lshl_b32 {t4}, {sTask}, 13"); A(f"s_lshl_b32 {t5}, {sX}, 10"); A(f"s_add_u32 {t5}, {t5}, {t4}"); A(f"v_lshl_add_u32 {vXPg}, v0, 3, {t5}")
    A(f"s_lshl_b32 {t5}, {sX}, 7"); A(f"s_add_u32 {t4}, {t4}, {t5}"); A(f"v_lshl_add_u32 {vXPst}, {T_[8]}, 4, {t4}")
    A(f"v_lshrrev_b32 {T_[7]}, 3, v0"); A(f"v_lshl_add_u32 {vXPst}, {T_[7]}, 10, {vXPst}")
    A(f"v_lshl_add_u32 {T_[7]}, {C}, 1, {T_[5]}")
    A(f"s_lshl_b32 {t4}, {sTask}, 6"); A(f"v_lshl_add_u32 {vZo}, {T_[7]}, 1, {t4}")
    A(f"v_add_u32 {vZst}, {Z1_O}, {vZo}")
    A(f"s_and_b32 {t5}, {sTask}, 7"); A(f"s_cmp_eq_u32 {t5}, {sX}"); A(f"s_cselect_b32 {t5}, 4, 0"); A(f"s_or_b32 {sRole}, {sRole}, {t5}")
    A(f"s_cmp_ge_u32 {sTask}, 18"); A(f"s_cselect_b32 {t5}, 1152, 0")
    A(f"v_subrev_u32 {vB2}, {t5}, {vZo}")

def constants1():
    A(f"v_and_b32 {v(TM+8)}, 1, v0")
    A(f"v_mul_u32_u24 {vIdxD}, 0x5555, {v(TM+8)}"); A(f"v_add_u32 {vIdxD}, 0x8888, {vIdxD}")
    A(f"v_mov_b32 {vOnes}, 0x3f803f80")
    A(f"s_lshl_b32 {t3}, {sW}, 6"); A(f"s_add_u32 {t3}, {t3}, {L_WQ}")
    A(f"v_lshlrev_b32 {vCq}, 10, {G}"); A(f"v_lshl_add_u32 {vCq}, {C}, 2, {vCq}"); A(f"v_add_u32 {vCq}, {t3}, {vCq}")
    for i in range(16, 24): A(f"v_accvgpr_write_b32 {a(aWQ+i)}, 0")
    zero(D0, 8)
    A(f"ds_write_b128 {v(D0)}, {v(EM,4)} offset:{L_STAT+16}")
    A(f"s_cmp_lg_u32 {sW}, 3")
    A("s_cbranch_scc1 L_c1")
    A(f"s_waitcnt vmcnt({4+2+8})")
    stats(0, False)
    for i in range(2):
        lo, hi = v(TM+8), v(TM+9)
        A(f"v_lshlrev_b32 {lo}, 16, {v(XG+i)}"); A(f"v_and_b32 {hi}, 0xffff0000, {v(XG+i)}")
        A(f"v_sub_f32 {lo}, {lo}, {S_}"); A(f"v_sub_f32 {hi}, {hi}, {S_}")
        A(f"v_cvt_pk_bf16_f32 {v(XG+i)}, {lo}, {hi}")
        A(f"v_lshlrev_b32 {lo}, 16, {v(XG+i)}"); A(f"v_and_b32 {hi}, 0xffff0000, {v(XG+i)}")
        A(f"v_mul_f32 {lo}, {lo}, {Q_}"); A(f"v_mul_f32 {hi}, {hi}, {Q_}")
        A(f"v_cvt_pk_bf16_f32 {v(XG+i)}, {lo}, {hi}")
    A(f"v_lshrrev_b32 {v(TM+8)}, 5, v0"); A(f"v_mul_u32_u24 {v(TM+8)}, 144, {v(TM+8)}"); A(f"v_and_b32 {v(TM+9)}, 31, v0"); A(f"v_lshl_add_u32 {v(TM+8)}, {v(TM+9)}, 3, {v(TM+8)}")
    A("s_mov_b32 exec_lo, 0x3ffff"); A("s_mov_b32 exec_hi, 0x3ffff")
    A(f"ds_write_b64 {v(TM+8)}, {v(XG,2)} offset:{L_X}")
    A("s_mov_b64 exec, -1")
    A("L_c1:")
    A(f"v_mul_u32_u24 {v(TM+10)}, 144, {B2}"); A(f"v_lshl_add_u32 {v(TM+10)}, {G}, 4, {v(TM+10)}")
    A(f"s_lshl_b32 {t3}, {sW}, 11"); A(f"v_add_u32 {v(TM+8)}, {t3}, {vL16}")
    A(f"ds_write_b128 {v(TM+8)}, {v(D1,4)} offset:1024"); A(f"ds_write_b128 {v(TM+8)}, {v(D1,4)} offset:2048")

fl_load = ["s_mov_b32 exec_hi, 0", f"buffer_load_dwordx4 {v(FG,4)}, {vL16}, {srd(rWS)}, {sXoff} offen sc1", "s_mov_b32 exec_hi, -1"]
qp_store = f"buffer_store_dwordx4 {v(D0,4)}, {vQPst}, {srd(rWS)}, {{so}} offen{{fl}}"
def qg(n): return [f"buffer_load_dwordx{n} {v(QG+4*p,n)}, {vQPg if p < 2 else vQPg2}, {srd(rWS)}, {sGp} offen offset:{2048*(p%2)} sc1" for p in range(4)]
qg4, qg2 = qg(4), qg(2)
pstamp(3)
for r, off in ((rW1, 48), (rW2, 64), (rOUT, 80), (rT1, 56), (rT2, 72)):
    A(f"s_load_dwordx2 s[{r}:{r+1}], s[0:1], {off}")
if args.code:
    A(f"s_cmp_ge_u32 {sL}, 2"); A("s_cbranch_scc1 L_nc")
    A("s_getpc_b64 s[66:67]")
    A("L_pc:")
    A(f"s_lshl_b32 {t3}, {sL}, 13"); A(f"v_add_u32 {v(TM+8)}, {t3}, {vL128}")
    A(f"v_min_u32 {v(TM+8)}, L_codeend-L_pc-4, {v(TM+8)}")
    A(f"global_load_dword {DUM}, {v(TM+8)}, s[66:67]")
    A("L_nc:")
constants1()
A(f"s_mov_b32 {sTO}, 0x40000"); A(f"s_mov_b32 {sMode}, 0"); A(f"s_mov_b32 {sGp}, {sGf}")
cnt = [8]
mark = {'K': 8}
def vm(s): A(s); cnt[0] += 1
A(f"s_lshl_b32 {t4}, {sL}, 9"); A(f"s_add_u32 {t4}, {t4}, {sGf}"); A(f"s_add_u32 {t4}, {t4}, {QP_O}")
A(f"s_add_u32 {sXoff}, {sGf}, {FF_O}")
A("s_mov_b64 exec, 15")
vm(f"buffer_load_dword {DUM}, {vL128}, {srd(rWS)}, {t4} offen sc1{NT}")
vm(f"buffer_load_dword {DUM}, {vL128}, {srd(rWS)}, {sXoff} offen sc1{NT}")
A("s_mov_b64 exec, -1")
def hookQ():
    A(f"s_lshl_b32 {t4}, {sL}, 2"); A(f"s_add_u32 {t4}, {t4}, {sXoff}")
    A(f"s_getreg_b32 {t3}, hwreg(HW_REG_XCC_ID)"); A(f"s_lshl_b32 {t3}, {t3}, 28")
    A(f"s_waitcnt vmcnt({cnt[0]}) lgkmcnt(0)")
    A("s_barrier")
    pstamp(2)
    for l in exec_xa(): A(l)
    for i in range(3):
        if i == 2: A("s_mov_b64 exec, 0x33")
        A(f"ds_read_b128 {v(XA+4*i,4)}, {v(TM+10)} offset:{L_X+64*i}")
    A("s_mov_b64 exec, -1")
    for i in range(2):
        for vv in range(0, 8, 2):
            row = 32*i + 16*(vv >> 2) + (vv & 3)
            A(f"ds_read2st64_b32 {a(aWQ+8*i+vv,2)}, {vCq} offset0:{row} offset1:{row+1}")
    A("s_mov_b32 exec_hi, 0")
    for vv in (0, 2): A(f"ds_read2st64_b32 {a(aWQ+16+vv,2)}, {vCq} offset0:{64+vv} offset1:{65+vv}")
    A("s_mov_b32 exec_hi, -1")
    A(f"v_readfirstlane_b32 {sFlag}, {FN}")
    A(f"s_add_u32 {sFlag}, {sFlag}, 0x0e377901"); A(f"s_and_b32 {sFlag}, {sFlag}, 0x0fffffff"); A(f"s_or_b32 {sFlag}, {sFlag}, {t3}")
    A(f"v_mov_b32 {FN}, {sFlag}")
    A("s_mov_b64 exec, 1")
    vm(f"buffer_store_dword {FN}, {vL16}, {srd(rWS)}, {t4} offen")
    A("s_mov_b64 exec, -1")
    A(f"v_and_b32 {vTag}, 0xff, {FN}"); A(f"s_movk_i32 {t4}, 0xff")
    A("s_waitcnt lgkmcnt(0)")
    for i in range(3): sm(D0, XA+4*i, aWQ+8*i, vIdxD)
    for i in range(4): A(f"v_bfi_b32 {v(D0+i)}, {t4}, {vTag}, {v(D0+i)}")
    A("s_mov_b32 exec_hi, 0")
    vm(qp_store.format(so=sGf, fl=''))
    A("s_mov_b32 exec_hi, -1")
    pstamp(1)
for k in range(9):
    if k == args.pQ: hookQ()
    if k == 8 - args.vw: mark['V'] = cnt[0]
    if k < 8: vm(f"buffer_load_dwordx4 {a(aV+4*k,4)}, {vL16}, {srd(rV)}, {kv0 if k < 4 else kv1} offen offset:{1024*(k%4)}{NTV}")
    if k == 7: pstamp(9)
TT = v(TM+4)
def slots_touch():
    A(f"s_lshl_b32 {t1}, {sJ}, 2"); A(f"s_add_u32 {t1}, {t1}, {sW}")
    A(f"s_mul_i32 {t3}, {t1}, 1536"); A(f"s_add_u32 {t3}, {t3}, {sGf}"); A(f"s_add_u32 {t3}, {t3}, {Y_O}")
    A(f"s_lshl_b32 {t1}, {t1}, 10"); A(f"s_add_u32 {t1}, {t1}, {QP1_O}"); A(f"s_add_u32 {t1}, {t1}, {sGf}")
    A("s_mov_b64 exec, 0xfff")
    A(f"buffer_load_dword {DUM}, {vL128}, {srd(rWS)}, {t3} offen sc1{NT}")
    A("s_mov_b64 exec, 0xff")
    A(f"buffer_load_dword {DUM}, {vL128}, {srd(rWS)}, {t1} offen sc1{NT}")
    A("s_mov_b64 exec, -1")
def slots_clear():
    A(f"s_lshl_b32 {t1}, {sJ}, 2"); A(f"s_add_u32 {t1}, {t1}, {sW}")
    A(f"s_lshl_b32 {t1}, {t1}, 10"); A(f"s_add_u32 {t1}, {t1}, {QP1_O}"); A(f"v_add_u32 {TT}, {t1}, {vL16}")
    pub(f"buffer_store_dwordx4 {v(EM,4)}, {TT}, {srd(rWS)}, {{so}} offen{{fl}}")
assert Y_O + 64 * 1536 >= Z3_O + 2304
def w1_touch():
    A(f"s_lshl_b32 {t1}, {sJ}, 2"); A(f"s_add_u32 {t1}, {t1}, {sW}")
    A(f"s_mul_i32 {t4}, {sX}, 576"); A(f"s_add_u32 {t4}, {t4}, {t1}"); A(f"s_add_u32 {t4}, {t4}, 512"); A(f"s_mul_i32 {t4}, {t4}, 1152")
    A(f"s_mul_i32 {t1}, {t1}, {9*9216}")
    A(f"s_mul_i32 {t3}, {sX}, 1152"); A(f"s_add_u32 {t1}, {t1}, {t3}"); A(f"s_add_u32 {t3}, {t1}, {5*9216}")
    A(f"v_mul_u32_u24 {TT}, 57, v0"); A(f"v_lshrrev_b32 {TT}, 9, {TT}"); A(f"v_mul_u32_u24 {TT}, {9216-1152}, {TT}"); A(f"v_add_u32 {TT}, {TT}, {vL128}")
    A("s_mov_b32 exec_hi, 0x1fff")
    A(f"buffer_load_dword {DUM}, {TT}, {srd(rW1)}, {t1} offen{NTM}")
    A("s_mov_b32 exec_hi, 15")
    A(f"buffer_load_dword {DUM}, {TT}, {srd(rW1)}, {t3} offen{NTM}")
    A("s_mov_b64 exec, 0x1ff")
    A(f"buffer_load_dword {DUM}, {vL128}, {srd(rW2)}, {t4} offen{NTM}")
    A("s_mov_b64 exec, -1")
def w2_loads():
    l1 = A.newlabel('L_w2')
    A(f"s_mul_i32 {t0}, {sX}, 18"); A(f"s_add_u32 {t0}, {t0}, {sJ}"); A(f"s_mul_i32 {t0}, {t0}, {32*1152}")
    A(f"s_lshl_b32 {t1}, {sW}, 8"); A(f"s_add_u32 {t1}, {t1}, {t0}")
    for i in range(8):
        A(f"buffer_load_dwordx4 {a(aW2+4*i,4)}, {vWrow}, {srd(rW2)}, {t1} offen{NT2}")
        if i < 7: A(f"s_add_u32 {t1}, {t1}, 4608")
    A(f"s_cmp_lg_u32 {sW}, 3")
    A(f"s_cbranch_scc1 {l1}")
    A(f"s_mov_b64 exec, {mLO8}")
    for i in range(8):
        A(f"buffer_load_dwordx4 {a(aW2t+4*i,4)}, {vWrow}, {srd(rW2)}, {t0} offen offset:1024{NT2}")
        if i < 7: A(f"s_add_u32 {t0}, {t0}, 4608")
    A("s_mov_b64 exec, -1")
    A(f"{l1}:")
def wo_loads(k0, k1, with_tail):
    for k in range(k0, k1):
        A(f"buffer_load_dwordx4 {a(aWO+4*k,4)}, {vWrow}, {srd(rWO)}, {sWo} offen{NTO}")
        A(f"s_add_u32 {sWo}, {sWo}, 4608")
    if with_tail:
        l1 = A.newlabel('L_wt')
        A(f"s_cmp_lg_u32 {sW}, 3")
        A(f"s_cbranch_scc1 {l1}")
        A(f"s_mov_b64 exec, {mLO8}")
        for i in range(7, -1, -1):
            A(f"s_sub_u32 {sWo}, {sWo}, 4608")
            A(f"buffer_load_dwordx4 {a(aWOt+4*i,4)}, {vWrow}, {srd(rWO)}, {sWo} offen offset:256{NTO}")
        A("s_mov_b64 exec, -1")
        A(f"{l1}:")
constants()
pstamp(4)
stamp()
A(f"s_waitcnt vmcnt({cnt[0]-mark['K']})")
for T in range(2):
    for q in range(4): A(f"ds_read_b128 {a(aK+16*T+4*q,4)}, {v(KA+q)} offset:{4096*T}")
A(f"s_mov_b32 {sXPo}, {XP_O}")
A(f"s_cmp_lt_u32 {sJ}, 16")
A("s_cbranch_scc1 L_g1n")
A(f"v_readfirstlane_b32 {t4}, {vOPg}"); A(f"v_readfirstlane_b32 {t5}, {vSTg}")
A(f"s_add_u32 {t4}, {t4}, {sGf}"); A(f"s_add_u32 {t5}, {t5}, {sGf}")
A("s_mov_b64 exec, 0xffff")
A(f"buffer_load_dword {DUM}, {vL128}, {srd(rWS)}, {t4} offen sc1{NT}")
A("s_mov_b64 exec, 3")
A(f"buffer_load_dword {DUM}, {vL128}, {srd(rWS)}, {t5} offen sc1{NT}")
A("s_mov_b64 exec, -1")
A(f"buffer_load_ushort {vXres}, {vZo}, {srd(rX)}, 0 offen{NT}")
A(f"buffer_load_ushort {vB2}, {vB2}, {srd(rT2)}, 0 offen{NT}")
wo_loads(0, 8, True)
A("s_branch L_g1o")
A("L_g1n:")
if 's' in args.early: slots_touch()
if '1' in args.early: w1_touch()
if '2' in args.early: w2_loads()
A("L_g1o:")
pstamp(6)
A(f"s_waitcnt vmcnt({args.vw})")
if ST and not args.pro and ONLY is None: A(f"s_memrealtime s[74:75]")
pstamp(5)
def flags_diff():
    A(f"v_xor_b32 {CK}, {sFlag}, {v(FG)}")
    for i in range(1, 4): A(f"v_bitop3_b32 {CK}, {CK}, {v(FG+i)}, {sFlag} bitop3:0xf6")
st_rd = f"ds_read_b64 {v(TM,2)}, {vSTATr}"
A("L_g4:")
for l in fl_load + qg4: A(l)
A("s_waitcnt vmcnt(0)")
pstamp(7)
flags_diff()
A(f"v_cmp_ne_u32 vcc, 0, {CK}")
A("s_cmp_lg_u32 vcc_lo, 0")
if args.forcefb: A("s_cmp_eq_u32 0, 0")
A("s_cbranch_scc1 L_af2")
A(f"s_mov_b32 {sMode}, 0")
A("L_g2:")
for i in range(16): A(f"v_xor_b32 {v(QG+i)}, {vTag}, {v(QG+i)}")
A(f"v_or3_b32 {CK}, {v(QG)}, {v(QG+1)}, {v(QG+2)}")
for i in range(3, 15, 2): A(f"v_or3_b32 {CK}, {CK}, {v(QG+i)}, {v(QG+i+1)}")
A(f"v_or_b32 {CK}, {CK}, {v(QG+15)}")
A(f"v_and_b32 {CK}, 0xff, {CK}")
A(f"v_cmp_ne_u32 vcc, 0, {CK}")
A("s_cbranch_vccnz L_g5")
A("L_g3:")
A(f"s_mov_b32 {sL}, 0")
zero(D0)
A(f"v_mov_b32 {v(TM)}, 0"); A(f"v_mov_b32 {v(TM+1)}, 1.0")
tail.append("L_g5:\n" + timeout("L_g4", "L_g3"))
pstamp(8)
A(f"v_add_f32 {v(TM+2)}, {v(QG+2)}, {v(QG+6)}"); A(f"v_add_f32 {v(TM+3)}, {v(QG+3)}, {v(QG+7)}")
A(f"v_add_f32 {v(TM+4)}, {v(QG+10)}, {v(QG+14)}"); A(f"v_add_f32 {v(TM+5)}, {v(QG+11)}, {v(QG+15)}")
A(f"v_add_f32 {v(TM+2)}, {v(TM+2)}, {v(TM+4)}"); A(f"v_add_f32 {v(TM+3)}, {v(TM+3)}, {v(TM+5)}")
A(f"v_permlane32_swap_b32 {v(TM+2)}, {v(TM+3)}")
A(f"v_add_f32 {vCq}, {v(TM+2)}, {v(TM+3)}")
A("s_branch L_qfin")

A("L_layer:")
zero(D0, 8)
poll_proj(vXAq, sXoff, 3, aWQ, args.dz, True)
A("s_mov_b32 exec_hi, 0")
pub(qp_store)
A("s_mov_b32 exec_hi, -1")
zero(D0)
A(f"s_cmp_lg_u32 {sW}, 3")
A("s_cbranch_scc1 L_qdone")
poll(xs_loads(rWS, sXoff, ' sc1'), [v(XS+i) for i in range(9)], depth=args.dz)
stats(16)
A("L_qdone:")
nst[0] = 1
stamp()
poll(qg2 + [f"ds_read_b64 {v(TM,2)}, {vSTATr} offset:16"], [v(QG+4*p+i) for p in range(4) for i in range(2)] + [v(TM+1)], depth=args.di, extra_wait=" lgkmcnt(0)")
A("L_qfin:")
stamp()
A(f"v_add_f32 {v(TM+2)}, {v(QG)}, {v(QG+4)}"); A(f"v_add_f32 {v(TM+3)}, {v(QG+1)}, {v(QG+5)}")
A(f"v_add_f32 {v(TM+4)}, {v(QG+8)}, {v(QG+12)}"); A(f"v_add_f32 {v(TM+5)}, {v(QG+9)}, {v(QG+13)}")
A(f"v_add_f32 {v(TM+2)}, {v(TM+2)}, {v(TM+4)}"); A(f"v_add_f32 {v(TM+3)}, {v(TM+3)}, {v(TM+5)}")
A(f"v_permlane32_swap_b32 {v(TM+2)}, {v(TM+3)}")
A(f"v_fma_f32 {v(TM+2)}, -{v(TM)}, {vCq}, {v(TM+2)}")
A(f"v_add_f32 {v(TM+2)}, {v(TM+2)}, {v(TM+3)}")
A(f"v_mul_f32 {v(TM+2)}, {v(TM+2)}, {v(TM+1)}")
A(f"v_cvt_pk_bf16_f32 {v(TM+2)}, {v(TM+2)}, {v(TM+2)}")
A(f"ds_write_b16 {vQTw}, {v(TM+2)} offset:{L_QT}")
A("s_mov_b32 vcc_lo, 0xaaaaaaaa"); A("s_mov_b32 vcc_hi, 0xaaaaaaaa")
zero(DP)
A("s_waitcnt lgkmcnt(0)")
A("s_barrier")
A(f"ds_read_b128 {v(AO,4)}, {vQTr} offset:{L_QT}")
A(f"ds_read_b128 {v(AO+4,4)}, {vQTr} offset:{L_QT+256}")
A(f"s_waitcnt lgkmcnt({lg(1)})")
sm(D0, AO, aK, vIdxP); sm(D1, AO, aK+16, vIdxP)
A("s_waitcnt lgkmcnt(0)")
sm(D0, AO+4, aK+8, vIdxP); sm(D1, AO+4, aK+24, vIdxP)
SC, MX, P_, LS, TT = v(TM), v(TM+1), v(TM+2), v(TM+3), v(TM+4)
A(f"v_add_f32 {SC}, {v(D0)}, {v(D0+1)}")
A(f"v_add_f32 {TT}, {v(D1)}, {v(D1+1)}")
A(f"v_cndmask_b32 {SC}, {SC}, {TT}, {mROW}")
rbf(SC, SC)
A(f"v_mul_f32 {SC}, {f32(128 ** -0.5)}, {SC}")
rbf(SC, SC)
A(f"v_mul_f32 {SC}, {f32(1.4426950408889634)}, {SC}")
zero(D0, 2)
A(f"v_max_f32_dpp {MX}, {SC}, {SC} row_ror:8 row_mask:0xf bank_mask:0xf")
for n, k in enumerate((4, 2, 1)):
    zero(D0+2+2*n, 2)
    A(f"v_max_f32_dpp {MX}, {MX}, {MX} row_ror:{k} row_mask:0xf bank_mask:0xf")
A(f"v_mov_b32 {TT}, {MX}")
A(f"v_permlane16_swap_b32 {MX}, {TT}")
A(f"v_max_f32 {MX}, {MX}, {TT}")
A(f"v_sub_f32 {P_}, {SC}, {MX}")
A(f"v_exp_f32 {P_}, {P_}")
A(f"v_cvt_pk_bf16_f32 {TT}, {P_}, 0")
A(f"ds_write2_b32 {vPTw}, {TT}, {TT} offset1:5")
for i in range(4): A(f"ds_read_b128 {v(AO+4*i,4)}, {vPTr} offset:{128*i}")
A(f"v_add_f32_dpp {LS}, {P_}, {P_} row_ror:8 row_mask:0xf bank_mask:0xf")
for k in (4, 2, 1): A(f"v_add_f32_dpp {LS}, {LS}, {LS} row_ror:{k} row_mask:0xf bank_mask:0xf")
A(f"v_mov_b32 {SC}, {LS}")
A(f"v_permlane16_swap_b32 {LS}, {SC}")
A(f"v_add_f32 {LS}, {LS}, {SC}")
A(f"v_cndmask_b32 {SC}, {MX}, {LS}, vcc")
A("s_mov_b32 exec_lo, 3"); A("s_mov_b32 exec_hi, 3")
pub(f"buffer_store_dword {SC}, {vSTst}, {srd(rWS)}, {{so}} offen{{fl}}")
A("s_mov_b64 exec, -1")
for i in range(4):
    A(f"s_waitcnt lgkmcnt({lg(3-i)})")
    sm(DP, AO+4*i, aV+8*i, vIdxS)
pub(f"buffer_store_dwordx4 {v(DP,4)}, {vOPst}, {srd(rWS)}, {{so}} offen{{fl}}")
stamp()
E = TM + 5
R = TM + 12
def tile_out(wb, tb, vst):
    l1 = A.newlabel('L_t'); l2 = A.newlabel('L_t')
    for i in range(4):
        A(f"s_waitcnt lgkmcnt({lg(3-i)})")
        sm(D0, AO+4*i, wb+8*i, vIdxS)
    A(f"s_cmp_lg_u32 {sW}, 3")
    A(f"s_cbranch_scc1 {l1}")
    for i in range(4): sm(D1, AO+4*i, tb+8*i, vIdxS)
    A(f"{l1}:")
    A("s_waitcnt vmcnt(0)")
    A("s_nop 4")
    pub(f"buffer_store_dwordx4 {v(D0,4)}, {vst}, {srd(rWS)}, {{so}} offen{{fl}}")
    A(f"s_cmp_lg_u32 {sW}, 3")
    A(f"s_cbranch_scc1 {l2}")
    A(f"s_mov_b64 exec, {mLO8}")
    pub(f"buffer_store_dwordx4 {v(D1,4)}, {v(E+2)}, {srd(rWS)}, {{so}} offen{{fl}}")
    A("s_mov_b64 exec, -1")
    A(f"{l2}:")
A(f"s_cmp_lt_u32 {sJ}, 16")
A("s_cbranch_scc1 L_mlp")
poll([f"buffer_load_dwordx4 {v(SG,4)}, {vSTg}, {srd(rWS)}, {sGp} offen sc1",
      f"buffer_load_dwordx4 {v(SG+4,4)}, {vSTg}, {srd(rWS)}, {sGp} offen offset:128 sc1",
      f"buffer_load_dwordx2 {v(SG+8,2)}, {vSTm}, {srd(rWS)}, {sGp} offen sc1"], [v(SG+i) for i in range(10)], depth=max(1, args.di - 1))
op_load = [f"buffer_load_dwordx4 {v(OG+4*i,4)}, {vOPg}, {srd(rWS)}, {sGp} offen offset:{1024*i} sc1" for i in range(2)]
for l in op_load: A(l)
A(f"v_max3_f32 {MX}, {v(SG)}, {v(SG+1)}, {v(SG+2)}")
A(f"v_max_f32 {MX}, {MX}, {v(SG+3)}")
A(f"v_max_f32_dpp {MX}, {MX}, {MX} row_ror:8 row_mask:0xf bank_mask:0xf")
for sw in ('16', '32'):
    A(f"v_mov_b32 {TT}, {MX}"); A(f"v_permlane{sw}_swap_b32 {MX}, {TT}"); A(f"v_max_f32 {MX}, {MX}, {TT}")
if args.di > 1:
    for l in op_load: A(l)
for n, i in enumerate((0, 1, 2, 3, 8, 9)): A(f"v_sub_f32 {v(E+n)}, {v(SG+i)}, {MX}")
for n in range(6): A(f"v_exp_f32 {v(E+n)}, {v(E+n)}")
A(f"v_mul_f32 {LS}, {v(E)}, {v(SG+4)}")
for i in (1, 2, 3): A(f"v_fmac_f32 {LS}, {v(E+i)}, {v(SG+4+i)}")
if args.di > 2:
    for l in op_load: A(l)
A(f"v_add_f32_dpp {LS}, {LS}, {LS} row_ror:8 row_mask:0xf bank_mask:0xf")
for sw in ('16', '32'):
    A(f"v_mov_b32 {TT}, {LS}"); A(f"v_permlane{sw}_swap_b32 {LS}, {TT}"); A(f"v_add_f32 {LS}, {LS}, {TT}")
A(f"v_rcp_f32 {LS}, {LS}")
A(f"v_add_u32 {v(E+2)}, {4*2304}, {vYst}")
A(f"v_mul_f32 {v(E+4)}, {LS}, {v(E+4)}"); A(f"v_mul_f32 {v(E+5)}, {LS}, {v(E+5)}")
poll(op_load, [v(OG+i) for i in range(8)], depth=args.di, primed=min(3, args.di))
stamp()
for i in range(4): A(f"v_mul_f32 {v(R+i)}, {v(OG+i)}, {v(E+4)}")
for i in range(4): A(f"v_fmac_f32 {v(R+i)}, {v(OG+4+i)}, {v(E+5)}")
treduce(R)
A(f"v_cvt_pk_bf16_f32 {TT}, {v(R)}, {v(R)}")
A(f"ds_write_b16 {vOTw}, {TT}")
pub(*[f"buffer_store_dwordx4 {v(EM,4)}, {vOPg}, {srd(rWS)}, {{so}} offen offset:{1024*i}{{fl}}" for i in range(2)])
A("s_waitcnt lgkmcnt(0)")
A("s_barrier")
for i in range(4): A(f"ds_read_b128 {v(AO+4*i,4)}, {vOTr} offset:{128*i}")
tile_out(aWO, aWOt, vYst)
stamp()

def reducer(kind):
    ld = [f"buffer_load_dwordx4 {v(YG+4*i,4)}, {vRg}, {srd(rWS)}, {sGp} offen offset:{1024*i} sc1" for i in range(2)]
    A(f"s_movk_i32 {t4}, 0xff")
    if kind == 'A':
        poll(ld, [v(YG+i) for i in range(8)], depth=args.di)
        for i in range(4): A(f"v_add_f32 {v(R+i)}, {v(YG+i)}, {v(YG+4+i)}")
    else:
        poll(ld + ["s_mov_b64 exec, 0xffff", f"buffer_load_dwordx4 {v(YG+8,4)}, {vRg}, {srd(rWS)}, {sGp} offen offset:2048 sc1", "s_mov_b64 exec, -1"],
             [v(YG+i) for i in range(12)], depth=args.di)
        for i in range(4): A(f"v_add_f32 {v(R+i)}, {v(YG+i)}, {v(YG+4+i)}")
        for i in range(4): A(f"v_add_f32 {v(R+i)}, {v(R+i)}, {v(YG+8+i)}")
    stamp()
    treduce(R)
    A(f"v_bfi_b32 {v(R+1)}, {t4}, {vTag}, {v(R)}"); A(f"v_bfi_b32 {v(R)}, {t4}, {vTag}, {v(R)}")
    A(f"v_permlane16_swap_b32 {v(R)}, {v(R+1)}")
    A(f"v_mov_b32 {v(R+2)}, {v(R)}"); A(f"v_mov_b32 {v(R+3)}, {v(R+1)}")
    A(f"v_permlane32_swap_b32 {v(R)}, {v(R+2)}"); A(f"v_permlane32_swap_b32 {v(R+1)}, {v(R+3)}")
    A(f"buffer_store_dwordx4 {v(R,4)}, {vXPst}, {srd(rWS)}, {sXPo} offen sc1")
    if kind == 'M':
        A(f"s_lshl_b32 {t0}, {sL}, 2"); A(f"s_andn2_b32 {t0}, {t0}, {sRole}")
        A("s_cbranch_scc1 L_fin")
    cl = [f"buffer_store_dwordx4 {v(EM,4)}, {vRg}, {srd(rWS)}, {{so}} offen offset:{1024*i}{{fl}}" for i in range(2)]
    if kind == 'M': cl += ["s_mov_b64 exec, 0xffff", f"buffer_store_dwordx4 {v(EM,4)}, {vRg}, {srd(rWS)}, {{so}} offen offset:2048{{fl}}", "s_mov_b64 exec, -1"]
    pub(*cl)
    if args.xd: A(f"s_sleep {args.xd}")
    poll([f"buffer_load_dwordx2 {v(XG,2)}, {vXPg}, {srd(rWS)}, {sXPo} offen sc1",
          f"buffer_load_dwordx2 {v(XG+2,2)}, {vXPg}, {srd(rWS)}, {sXPo} offen offset:512 sc1"], None, depth=args.dxx,
         chk=[f"v_xor_b32 {v(R+i)}, {vTag}, {v(XG+i)}" for i in range(4)] +
             [f"v_or3_b32 {CK}, {v(R)}, {v(R+1)}, {v(R+2)}", f"v_bitop3_b32 {CK}, {CK}, {v(R+3)}, {t4} bitop3:0xa8", f"v_cmp_ne_u32 vcc, 0, {CK}"])
    stamp()
    Y = v(R)
    A(f"v_add_f32 {v(R)}, {v(R)}, {v(R+2)}"); A(f"v_add_f32 {v(R+1)}, {v(R+1)}, {v(R+3)}")
    A(f"v_permlane32_swap_b32 {v(R)}, {v(R+1)}")
    A(f"v_add_f32 {TT}, {v(R)}, {v(R+1)}"); A(f"v_add_f32 {Y}, {v(R)}, {v(R+1)}")
    A(f"v_permlane16_swap_b32 {Y}, {TT}"); A(f"v_add_f32 {Y}, {Y}, {TT}")
    rbf(Y, Y)
    if kind == 'M':
        A(f"v_add_f32 {Y}, {Y}, {vB2}"); rbf(Y, Y)
    A(f"v_add_f32 {TT}, {Y}, {vXres}")
    A(f"v_add_f32 {v(R+1)}, {Y}, {vXres}")
    A(f"v_add_f32 {Y}, {Y}, {vXres}")
    A("s_mov_b64 exec, -1")
    A(f"v_permlane32_swap_b32 {TT}, {v(R+1)}")
    A(f"v_cvt_pk_bf16_f32 {TT}, {TT}, {v(R+1)}")
    A("s_mov_b64 exec, 0xffff")
    if kind == 'M':
        A(f"s_cmp_lg_u32 {sL}, 0")
        A("s_cbranch_scc1 L_out")
    pub(f"buffer_store_dword {TT}, {vZst}, {srd(rWS)}, {{so}} offen{{fl}}")
    A("s_mov_b64 exec, -1")
    stamp()
    rbf(vXres, Y)
    A(f"v_add_u32 {vZst}, 2304, {vZst}")
    A(f"s_add_u32 {sXPo}, {sXPo}, {XPS}")

A(f"s_bitcmp1_b32 {sRole}, 0")
A("s_cbranch_scc1 L_mlp")
A(f"s_bitcmp1_b32 {sRole}, 1")
A("s_cbranch_scc0 L_next")
A(f"s_cmp_lg_u32 {sL}, 0")
A("s_cbranch_scc1 L_red")
A(f"v_lshlrev_b32 {vXres}, 16, {vXres}"); A(f"v_lshlrev_b32 {vB2}, 16, {vB2}")
zero(YG+8)
A("L_red:")
k0 = nst[0]
reducer('A'); reducer('M')
kr = nst[0]
A("s_branch L_next")
A("L_mlp:")
nst[0] = k0
A(f"s_cmp_lg_u32 {sL}, 0")
A("s_cbranch_scc1 L_m1")
A(f"s_mul_i32 {t0}, {sX}, 18"); A(f"s_add_u32 {t0}, {t0}, {sJ}")
A(f"s_lshl_b32 {t2}, {t0}, 6")
A(f"buffer_load_ushort {vB1}, {vB1}, {srd(rT1)}, 0 offen{NT}")
A(f"s_cmp_ge_u32 {sJ}, 16")
A("s_cbranch_scc1 L_m0b")
if 's' not in args.early: slots_touch()
if '1' not in args.early: w1_touch()
slots_clear()
if '2' in args.early: A("s_branch L_m0d")
A("L_m0b:")
w2_loads()
A("L_m0d:")
A(f"s_cmp_eq_u32 {sW}, 3")
A("s_cbranch_scc1 L_m0c")
A("L_m0a:")
A(f"v_lshrrev_b32 {TT}, 4, v0"); A(f"v_mul_u32_u24 {TT}, {4*9216}, {TT}"); A(f"v_and_b32 {LS}, 15, v0"); A(f"v_lshl_add_u32 {TT}, {LS}, 2, {TT}")
A(f"s_mul_i32 {t0}, {sW}, {192*9216}"); A(f"s_add_u32 {t0}, {t0}, {t2}")
prev = 0
for i in range(6):
    for vv in range(8):
        row = 32*i + 16*(vv >> 2) + (vv & 3)
        if row != prev: A(f"s_add_u32 {t0}, {t0}, {(row-prev)*9216}")
        prev = row
        A(f"buffer_load_dword {a(aW1+8*i+vv)}, {TT}, {srd(rW1)}, {t0} offen{NTM}")
A("L_m0c:")
if ST: A("s_memrealtime s[94:95]"); A("s_waitcnt vmcnt(0)"); A("s_memrealtime s[96:97]")
A("s_waitcnt vmcnt(0)")
A(f"v_lshlrev_b32 {vB1}, 16, {vB1}")
A("L_m1:")
zero(D0, 8)
c0 = -2 * 1.4426950408889634 * 0.7978845608028654
A(f"v_mov_b32 {v(E)}, {f32(c0)}")
A(f"v_lshrrev_b32 {v(E+1)}, 5, v0"); A(f"v_lshlrev_b32 {v(E+1)}, 3, {v(E+1)}")
A(f"v_add_u32 {v(E+2)}, {4*2304}, {vMst}")
A(f"s_mul_i32 {t0}, {sL}, {Z3_O-Z1_O}"); A(f"s_add_u32 {t0}, {t0}, {sGp}"); A(f"s_add_u32 {t0}, {t0}, {Z1_O}")
A(f"s_cmp_eq_u32 {sW}, 3")
A("s_cbranch_scc1 L_m2")
poll_proj(vXAm, t0, 6, aW1, args.dz)
A("s_mov_b32 exec_hi, 0")
A(f"ds_write_b128 {vHPw}, {v(D0,4)}")
A("s_mov_b32 exec_hi, -1")
A("s_branch L_m2b")
A("L_m2:")
poll(xs_loads(rWS, t0, ' sc1'), [v(XS+i) for i in range(9)], depth=args.dz)
stats(32)
A("L_m2b:")
stamp()
A("s_waitcnt lgkmcnt(0)")
A("s_barrier")
H = TM + 12
A(f"ds_read2_b32 {v(H,2)}, {vHPr} offset0:0 offset1:2")
A(f"ds_read2_b32 {v(H+2,2)}, {vHPr} offset0:128 offset1:130")
A(f"ds_read_b32 {v(H+4)}, {vHPr} offset:1024"); A(f"ds_read_b32 {v(H+5)}, {vHPr} offset:1032")
A(f"ds_read_b64 {v(TM,2)}, {v(E+1)} offset:{L_STAT+32}")
zero(D0)
A("s_waitcnt lgkmcnt(0)")
A(f"v_add_f32 {v(H)}, {v(H)}, {v(H+2)}"); A(f"v_add_f32 {v(H+1)}, {v(H+1)}, {v(H+3)}")
A(f"v_add_f32 {v(H)}, {v(H)}, {v(H+4)}"); A(f"v_add_f32 {v(H+1)}, {v(H+1)}, {v(H+5)}")
A(f"v_fma_f32 {v(H)}, -{S_}, {v(H+1)}, {v(H)}")
A(f"v_mul_f32 {v(H)}, {v(H)}, {Q_}")
rbf(v(H), v(H))
A(f"v_add_f32 {v(H)}, {v(H)}, {vB1}")
rbf(v(H), v(H))
A(f"v_mul_f32 {TT}, {v(H)}, {v(H)}")
A(f"v_fmac_f32 {v(E)}, {f32(c0*0.044715)}, {TT}")
A(f"v_mul_f32 {TT}, {v(E)}, {v(H)}")
A(f"v_exp_f32 {TT}, {TT}")
A(f"v_add_f32 {TT}, 1.0, {TT}")
A(f"v_rcp_f32 {TT}, {TT}")
A(f"v_mul_f32 {TT}, {TT}, {v(H)}")
A(f"v_cvt_pk_bf16_f32 {TT}, {TT}, 0")
A(f"ds_write2_b32 {vPTw}, {TT}, {TT} offset1:5")
for i in range(4): A(f"ds_read_b128 {v(AO+4*i,4)}, {vPTr} offset:{128*i}")
stamp()
tile_out(aW2, aW2t, vMst)
A("L_m4:")
stamp()
nst[0] = kr
A("L_next:")
A(f"s_cmp_lg_u32 {sL}, 0")
A("s_cbranch_scc1 L_fin")
if ST:
    A("s_waitcnt lgkmcnt(0)")
    for k in range(14): A(f"v_writelane_b32 {v(SV)}, s{72+2*k}, {1+k}")
    for k in range(14): A(f"s_mov_b64 s[{72+2*k}:{73+2*k}], 0")
A(f"s_mov_b32 {sL}, 1")
A(f"s_add_u32 {sXoff}, {sGp}, {Z2_O}")
A(f"v_add_u32 {vQPg}, {QP1_O-QP_O}, {vQPg}"); A(f"v_add_u32 {vQPst}, {QP1_O-QP_O}, {vQPst}")
A(f"v_add_u32 {vQPg2}, {QP1_O-QP_O}, {vQPg2}")
for r in (vSTst, vSTg, vSTm): A(f"v_add_u32 {r}, {ST1_O-ST_O}, {r}")
A("s_branch L_layer")
A("L_out:")
A(f"buffer_store_dword {TT}, {vZo}, {srd(rOUT)}, 0 offen")
A(f"s_mov_b32 {t0}, {EP_O}")
A("s_mov_b64 exec, 1")
A(f"buffer_store_dword {FN}, {vL16}, {srd(rWS)}, {t0} offen")
if ST: A(f"s_memrealtime s[{72+2*13}:{73+2*13}]")
A("L_fin:")
if args.enc:
    j0, j1 = [int(x) for x in args.encj.split(',')]
    A("s_memrealtime s[66:67]")
    A("s_waitcnt lgkmcnt(0)")
    if args.enc <= 14: A(f"v_readlane_b32 {t0}, {v(SV)}, {args.enc}"); A("s_nop 3")
    else: A(f"s_mov_b32 {t0}, s{72+2*(args.enc-15)}")
    A(f"s_cmp_eq_u32 {t0}, 0"); A("s_cbranch_scc1 L_enc2")
    A(f"s_cmp_lt_u32 {sJ}, {j0}"); A("s_cbranch_scc1 L_enc2")
    A(f"s_cmp_ge_u32 {sJ}, {j1}"); A("s_cbranch_scc1 L_enc2")
    A(f"s_sub_u32 {t0}, {t0}, s100"); A(f"s_min_u32 {t0}, {t0}, 10000"); A(f"s_lshl_b32 {t0}, {t0}, 3"); A(f"s_add_u32 {t0}, {t0}, s66")
    A("L_enc:")
    A("s_sleep 8")
    A("s_memrealtime s[64:65]"); A("s_waitcnt lgkmcnt(0)")
    A(f"s_sub_u32 {t1}, s64, {t0}"); A(f"s_cmp_lt_i32 {t1}, 0"); A("s_cbranch_scc1 L_enc")
    A("L_enc2:")
if ST:
    A("s_mov_b64 exec, -1")
    A("s_waitcnt lgkmcnt(0)")
    A(f"v_writelane_b32 {v(SV)}, s100, 0")
    for k in range(14): A(f"v_writelane_b32 {v(SV)}, s{72+2*k}, {15+k}")
    A(f"s_lshl_b32 {t0}, s2, 2"); A(f"s_add_u32 {t0}, {t0}, {sW}"); A(f"s_lshl_b32 {t0}, {t0}, 8"); A(f"s_add_u32 {t0}, {t0}, {STAMP_O}")
    A(f"v_mov_b32 {v(SV+1)}, 0")
    A(f"v_lshlrev_b32 {v(SV+2)}, 3, v0")
    A("s_mov_b32 exec_hi, 0")
    A(f"buffer_store_dwordx2 {v(SV,2)}, {v(SV+2)}, {srd(rWS)}, {t0} offen")
A("L_end:")
A("s_endpgm")
A("L_af2:")
A(f"s_cmp_eq_u32 {sMode}, {FB_O}")
A("s_cbranch_scc1 L_g2")
A(f"s_add_u32 {sMode}, {sMode}, 1")
A(f"s_lshl_b32 {t2}, {sX}, 10"); A(f"s_add_u32 {t2}, {t2}, {FL_O}")
A(f"s_lshl_b32 {t4}, {sL}, 2"); A(f"s_add_u32 {t1}, {t4}, {t2}")
A(f"s_cmp_lt_u32 {sMode}, {1 if args.forcefb else 40}")
A("s_cbranch_scc1 L_af5")
A("s_mov_b64 exec, 1")
A(f"buffer_store_dword {FN}, {vL16}, {srd(rWS)}, {t1} offen sc1")
A("s_mov_b32 exec_lo, -1")
A(f"buffer_load_dwordx4 {v(FG,4)}, {vL16}, {srd(rWS)}, {t2} offen sc1")
A("s_mov_b32 exec_hi, -1")
A("s_waitcnt vmcnt(0)")
flags_diff()
A(f"v_and_b32 {TT}, 0x0fffffff, {CK}")
A(f"v_cmp_ne_u32 vcc, 0, {TT}")
A("s_cmp_lg_u32 vcc_lo, 0")
A("s_cbranch_scc1 L_af5")
A(f"v_cmp_ne_u32 vcc, 0, {CK}")
A("s_cmp_lg_u32 vcc_lo, 0")
if args.forcefb: A("s_cmp_eq_u32 0, 0")
A("s_cbranch_scc1 L_spread")
A("L_af5:")
A(f"s_sub_u32 {sTO}, {sTO}, 1")
A("s_cbranch_scc0 L_g4")
A(f"s_mov_b32 {sTO}, 0")
A(f"s_mov_b32 {sMode}, 0")
A("s_branch L_g2")
A("L_spread:")
A(f"s_mov_b32 {sMode}, {FB_O}")
A(f"s_add_u32 {sGp}, {sGf}, {FB_O}")
empty_share(sGp, ' sc1')
A("s_mov_b32 exec_hi, 0")
A(qp_store.format(so=sGp, fl=' sc1'))
A("s_waitcnt vmcnt(0)")
A("s_mov_b64 exec, 1")
A(f"buffer_store_dword {FN}, {vL16}, {srd(rWS)}, {t1} offen offset:512 sc1")
A("s_mov_b32 exec_lo, -1")
A("L_sp1:")
A("s_mov_b32 exec_hi, 0")
A(f"buffer_load_dwordx4 {v(FG,4)}, {vL16}, {srd(rWS)}, {t2} offen offset:512 sc1")
A("s_mov_b32 exec_hi, -1")
A("s_waitcnt vmcnt(0)")
flags_diff()
A(f"v_and_b32 {CK}, 0x0fffffff, {CK}")
A(f"v_cmp_ne_u32 vcc, 0, {CK}")
A("s_cmp_eq_u32 vcc_lo, 0")
A("s_cbranch_scc1 L_g4")
A("s_sleep 4")
A(timeout("L_sp1", "L_g4"))
for t in tail: A(t)
A.raw('L_codeend:')
A.raw('.section .rodata,"a"')
A.raw(".p2align 6")
A.raw(f".amdhsa_kernel {NAME}_kernel")
A.raw(f"  .amdhsa_next_free_vgpr {ACC+NACC}")
A.raw("  .amdhsa_next_free_sgpr 102")
A.raw(f"  .amdhsa_accum_offset {ACC}")
A.raw("  .amdhsa_group_segment_fixed_size 0")
A.raw("  .amdhsa_kernarg_size 104")
A.raw("  .amdhsa_user_sgpr_count 2")
A.raw("  .amdhsa_user_sgpr_kernarg_segment_ptr 1")
A.raw("  .amdhsa_system_sgpr_workgroup_id_x 1")
A.raw(".end_amdhsa_kernel")
txt = A.text()
if args.cyc: txt = txt.replace('s_memrealtime', 's_memtime')
sys.stdout.write(txt)
```

```python
import sys, argparse, struct
sys.path.insert(0, 'dev')
from asmlib import Asm
NAME = "interleave_layers__sliding_block_cached__dense_activation_gelu__decode"
ap = argparse.ArgumentParser()
ap.add_argument('--stamps', action='store_true')
ap.add_argument('--pro', action='store_true')
ap.add_argument('--cyc', action='store_true')
ap.add_argument('--xt', type=int, default=0)
ap.add_argument('--xd', type=int, default=11)
ap.add_argument('--enc', type=int, default=0)
ap.add_argument('--encj', default='0,32')
ap.add_argument('--only', default='')
ap.add_argument('--pQ', type=int, default=4)
ap.add_argument('--code', type=int, default=1)
ap.add_argument('--early', default='0')
ap.add_argument('--mid', default='')
ap.add_argument('--w1dma', type=int, default=1)
ap.add_argument('--vw', type=int, default=1)
ap.add_argument('--di', type=int, default=1)
ap.add_argument('--dz', type=int, default=1)
ap.add_argument('--dxx', type=int, default=1)
ap.add_argument('--nt', default='k,v')
ap.add_argument('--forcefb', action='store_true')
args = ap.parse_args()
def ntf(c): return ' nt' if c in args.nt.split(',') else ''
NT = ntf('s'); NTK = ntf('k'); NTV = ntf('v'); NTQ = ntf('q'); NTO = ntf('o'); NTM = ntf('m'); NT2 = ntf('2')
ST = args.stamps

def f32(x): return '0x%08x' % struct.unpack('<I', struct.pack('<f', x))[0]

CLR = 1792
OP_O = 0
Y_O = OP_O + 131072
ST_O = Y_O + 82944
ST1_O = ST_O + 2048
Z1_O = ST1_O + 2048
Z2_O = Z1_O + 2304
Z3_O = Z2_O + 2304
assert Z3_O + 2304 <= 128 * CLR
QP_O = 128 * CLR
QP1_O = QP_O + 65536
FF_O = QP1_O + 65536
GB = FF_O + 1024
FB_O = 8 * GB
XP_O = 16 * GB
XPS = 36 * 8192
FL_O = XP_O + 4 * XPS
EP_O = FL_O + 8 * 1024
STAMP_O = 0x8000000
L_X = 640
L_QT, L_STAT, L_OT, L_PT, L_HP, L_K, L_WQ, L_SIZE = 0, 512, 1024, 2560, 8192, 16384, 49152, 67584

rK, rV, rWQ, rWO, rW1, rW2, rWS, rX, rOUT, rT1, rT2 = 4, 8, 12, 16, 20, 24, 28, 32, 36, 44, 48
sTask, kv0, kv1, sFlag = 's40', 's41', 's42', 's43'
def srd(n): return f"s[{n}:{n+3}]"
sW, sX, sJ, sGf, sGp, sXoff, sTO, sMode, sL, sWo = [f"s{i}" for i in range(52, 62)]
t0, t1, t2, t3, t4, t5 = [f"s{i}" for i in range(62, 68)]
mLO8 = "s[68:69]"; mROW = "s[70:71]"
MXA = "0x00330033"
sRole = "s3"
(vL4, vL16, vIdxD, vIdxP, vIdxS, vXAq, vXAm, vQPst, vQPg, vL128, vQTw, vQTr, vPTw, vPTr, vSTst, vOPst, vSTg, vOPg, vOTw, vOTr,
 vYst, vMst, vHPw, vSTm, vRg, vSTATr, vXPst, vXPg, vZst, vXres, vB2, vB1, vCq, vZo, vXS1, vXS2, vWrow, vHPr, vOnes) = [f"v{i}" for i in range(1, 40)]
XA, D0, D1, DP, AO, SG, YG, XG, XS, FG, TM, EM, KA, SV, OG, QG = 40, 64, 68, 72, 76, 104, 120, 132, 136, 148, 152, 176, 180, 184, 188, 196
vQPg2 = 'v92'
ACC = 212
aWQ, aK, aV, aWO, aW1, aW2, aWOt, NACC = 0, 24, 56, 88, 120, 168, 200, 232
aW2t = aW1
def v(n, k=1): return f"v{n}" if k == 1 else f"v[{n}:{n+k-1}]"
def a(n, k=1): return f"a{n}" if k == 1 else f"a[{n}:{n+k-1}]"
CK = v(TM + 23); FN = v(TM + 22); vTag = v(TM + 21); DUM = v(TM + 20)
sEp, sXPo = kv0, kv1

A = Asm()
tail = []
nst = [0]
def pstamp(k):
    if args.pro: A(f"s_memrealtime s[{72+2*k}:{73+2*k}]")
def stamp():
    if ST and not args.pro:
        k = nst[0]; nst[0] += 1
        assert k < 13
        if ONLY is None or k in ONLY: A(f"s_memrealtime s[{72+2*k}:{73+2*k}]")
ONLY = set(int(x) for x in args.only.split(',')) if args.only else None
def lg(n): return 0 if (ST and ONLY is None) else n
def exec_xa(): return [f"s_mov_b32 exec_lo, {MXA}", f"s_mov_b32 exec_hi, {MXA}"]

def check_text(regs):
    regs = list(regs); o = []
    if len(regs) == 1: cur = regs[0]
    else:
        take = regs[:3]; regs = regs[3:]
        o.append(f"v_max3_u32 {CK}, {take[0]}, {take[1]}, {take[2]}" if len(take) == 3 else f"v_max_u32 {CK}, {take[0]}, {take[1]}")
        while regs:
            take = regs[:2]; regs = regs[2:]
            o.append(f"v_max3_u32 {CK}, {CK}, {take[0]}, {take[1]}" if len(take) == 2 else f"v_max_u32 {CK}, {CK}, {take[0]}")
        cur = CK
    o.append(f"v_cmp_eq_u32 vcc, -1, {cur}")
    return o
def nvm(loads): return sum(1 for l in loads if l.startswith('buffer_'))
def timeout(again, ok): return f"s_sub_u32 {sTO}, {sTO}, 1\ns_cbranch_scc0 {again}\ns_mov_b32 {sTO}, 0\ns_waitcnt vmcnt(0) lgkmcnt(0)\ns_branch {ok}"

def poll(loads, regs, depth=1, primed=0, extra_wait="", retry_pre="", ok_post="", chk=None):
    lp = A.newlabel('L_poll'); rt = A.newlabel('L_retry'); ok = A.newlabel('L_ok')
    for d in range(primed, depth):
        if d: A("s_sleep 1")
        for l in loads: A(l)
    A(f"{lp}:")
    A(f"s_waitcnt vmcnt({(depth-1)*nvm(loads)}){extra_wait}")
    for l in (chk or check_text(regs)): A(l)
    A(f"s_cbranch_vccnz {rt}")
    A(f"{ok}:")
    if ok_post: A(ok_post)
    tail.append(f"{rt}:\n{retry_pre}\n" + "\n".join(loads) + "\n" + timeout(lp, ok))

def sm(d, av, br, idx): A(f"v_smfmac_f32_16x16x64_bf16 {v(d,4)}, {v(av,4)}, {a(br,8)}, {idx}")
def xa_loads(rr, voff, so, n, fl, short_last=False):
    o = exec_xa()
    for i in range(n):
        if short_last and i == n - 1: o.append("s_mov_b64 exec, 0x33")
        o.append(f"buffer_load_dwordx4 {v(XA+4*i,4)}, {voff}, {srd(rr)}, {so} offen offset:{64*i}{fl}")
    return o + ["s_mov_b64 exec, -1"]
def poll_proj(voff, so, n, wbase, depth, short_last=False):
    loads = xa_loads(rWS, voff, so, n, ' sc1', short_last)
    lp = A.newlabel('L_poll'); rt = A.newlabel('L_retry'); ok = A.newlabel('L_ok')
    for d in range(depth):
        if d: A("s_sleep 1")
        for l in loads: A(l)
    A(f"{lp}:")
    A(f"s_waitcnt vmcnt({(depth-1)*n})")
    for i in range(n): sm(D0, XA+4*i, wbase+8*i, vIdxD)
    A(f"v_cmp_u_f32 vcc, {v(D0)}, {v(D0+1)}")
    A(f"s_cbranch_vccnz {rt}")
    A(f"{ok}:")
    ag = A.newlabel('L_again'); gen = A.newlabel('L_nan')
    z = "\n".join(f"v_mov_b32 {v(D0+i)}, 0" for i in range(4))
    mm = "\n".join(f"v_smfmac_f32_16x16x64_bf16 {v(D0,4)}, {v(XA+4*i,4)}, {a(wbase+8*i,8)}, {vIdxD}" for i in range(n))
    tail.append(f"{rt}:\n{z}\n" + "\n".join(check_text([v(XA+i) for i in range(4*n)])) + f"\ns_cbranch_vccz {gen}\n" + "\n".join(loads) +
                f"\ns_sub_u32 {sTO}, {sTO}, 1\ns_cbranch_scc0 {lp}\ns_mov_b32 {sTO}, 0\n{gen}:\n{mm}\ns_nop 7\ns_branch {ok}")

def pub(*fmts):
    for f in fmts: A(f.format(so=sGf, fl=''))
    sl = A.newlabel('L_slow'); bk = A.newlabel('L_back')
    A(f"s_cmp_lg_u32 {sMode}, 0")
    A(f"s_cbranch_scc1 {sl}")
    A(f"{bk}:")
    tail.append(f"{sl}:\n" + "\n".join(f.format(so=sGp, fl=' sc1') for f in fmts) + f"\ns_nop 1\ns_branch {bk}")

def rbf(dst, src):
    A(f"v_cvt_pk_bf16_f32 {dst}, {src}, {src}")
    A(f"v_and_b32 {dst}, 0xffff0000, {dst}")
def treduce(r):
    A(f"v_permlane32_swap_b32 {v(r)}, {v(r+2)}")
    A(f"v_permlane32_swap_b32 {v(r+1)}, {v(r+3)}")
    A(f"v_add_f32 {v(r)}, {v(r)}, {v(r+2)}")
    A(f"v_add_f32 {v(r+1)}, {v(r+1)}, {v(r+3)}")
    A(f"v_permlane16_swap_b32 {v(r)}, {v(r+1)}")
    A(f"v_add_f32 {v(r)}, {v(r)}, {v(r+1)}")
    A(f"v_add_f32_dpp {v(r)}, {v(r)}, {v(r)} row_ror:8 row_mask:0xf bank_mask:0xf")
S_, Q_ = v(TM), v(TM+1)
def stats(slot_off, write=True):
    S, Q = S_, Q_
    A(f"v_mov_b32 {S}, 0"); A(f"v_mov_b32 {Q}, 0")
    for i in range(9):
        A(f"v_dot2c_f32_bf16 {S}, {v(XS+i)}, {vOnes}")
        A(f"v_dot2c_f32_bf16 {Q}, {v(XS+i)}, {v(XS+i)}")
    A(f"v_lshrrev_b32 {v(TM+2)}, 5, v0"); A(f"v_lshlrev_b32 {v(TM+2)}, 3, {v(TM+2)}")
    A(f"v_permlane16_swap_b32 {S}, {Q}")
    A(f"v_add_f32 {S}, {S}, {Q}")
    for k in (8, 4, 2, 1):
        A(f"v_add_f32_dpp {S}, {S}, {S} row_ror:{k} row_mask:0xf bank_mask:0xf")
    A(f"v_mul_f32 {Q}, {f32(1/576)}, {S}")
    A(f"v_mul_f32 {S}, {f32(1/576)}, {S}")
    A(f"v_permlane16_swap_b32 {S}, {Q}")
    A(f"v_fma_f32 {Q}, -{S}, {S}, {Q}")
    A(f"v_max_f32 {Q}, 0, {Q}")
    A(f"v_cvt_pk_bf16_f32 {Q}, {S}, {Q}")
    A(f"v_lshlrev_b32 {S}, 16, {Q}")
    A(f"v_and_b32 {Q}, 0xffff0000, {Q}")
    A(f"v_add_f32 {Q}, {f32(1e-5)}, {Q}")
    rbf(Q, Q)
    A(f"v_sqrt_f32 {Q}, {Q}")
    rbf(Q, Q)
    A(f"v_rcp_f32 {Q}, {Q}")
    if write: A(f"ds_write_b64 {v(TM+2)}, {v(TM,2)} offset:{L_STAT+slot_off}")
def zero(r, n=4):
    for i in range(n): A(f"v_mov_b32 {v(r+i)}, 0")
def xs_loads(rr, so, fl):
    return [f"buffer_load_dwordx4 {v(XS,4)}, {vXS1}, {srd(rr)}, {so} offen{fl}",
            f"buffer_load_dwordx4 {v(XS+4,4)}, {vXS1}, {srd(rr)}, {so} offen offset:512{fl}",
            f"buffer_load_dword {v(XS+8)}, {vXS2}, {srd(rr)}, {so} offen offset:1024{fl}"]

A.raw(f"; @launch grid=(256,1,1) block=(256,1,1) lds={L_SIZE}")
A.raw('.amdgcn_target "amdgcn-amd-amdhsa--gfx950"')
A.raw(".text")
A.raw(f".globl {NAME}_kernel")
A.raw(".p2align 8")
A.raw(f".type {NAME}_kernel,@function")
A.raw(f"{NAME}_kernel:")
if ST:
    A("s_memrealtime s[100:101]")
    for k in range(14): A(f"s_mov_b64 s[{72+2*k}:{73+2*k}], 0")
A("s_cmp_ge_u32 s2, 256")
A("s_cbranch_scc1 L_end")
for r, off in ((rWS, 96), (rX, 0), (rWQ, 24), (rK, 8), (rV, 16), (rWO, 32)):
    A(f"s_load_dwordx2 s[{r}:{r+1}], s[0:1], {off}")
A(f"v_lshrrev_b32 {v(TM)}, 6, v0")
A(f"v_and_b32 v0, 63, v0")
A(f"v_readfirstlane_b32 {sW}, {v(TM)}")
for r, n in ((rX, 2304), (rWQ, 4718592), (rK, 33554432), (rV, 33554432), (rWS, 268435456), (rWO, 4718592)):
    A(f"s_mov_b32 s{r+2}, {n}"); A(f"s_mov_b32 s{r+3}, 0x20000")
A(f"s_and_b32 {sX}, s2, 7")
A(f"s_lshr_b32 {sJ}, s2, 3")
A("s_mov_b32 s68, 0x00ff00ff"); A("s_mov_b32 s69, 0x00ff00ff")
G, C, B2 = v(TM+3), v(TM+4), v(TM+5)
A(f"v_lshrrev_b32 {G}, 4, v0")
A(f"v_and_b32 {C}, 15, v0")
A(f"v_lshlrev_b32 {vL16}, 4, v0")
A(f"v_lshlrev_b32 {vL128}, 7, v0")
for i in range(4): A(f"v_mov_b32 {v(EM+i)}, -1")
A(f"s_lshr_b32 {t0}, {sJ}, 4"); A(f"s_lshl_b32 {t3}, {sX}, 1"); A(f"s_add_u32 {t0}, {t0}, {t3}")
A(f"s_bfe_u32 {t1}, {sJ}, 0x10003")
A(f"s_and_b32 {t2}, {sJ}, 7")
A(f"s_mul_i32 {sGf}, {sX}, {GB}")
A(f"v_bfe_u32 {B2}, v0, 2, 1")
A(f"v_mul_u32_u24 {vXAm}, 1152, {B2}")
A(f"v_lshl_add_u32 {vXAm}, {G}, 4, {vXAm}")
A(f"s_mul_i32 {t4}, {t2}, 144")
A(f"v_add_u32 {vXAq}, {t4}, {vXAm}")
for i in range(12): A(f"v_mov_b32 {v(XA+i)}, 0x3f803f80")
A(f"v_lshlrev_b32 {v(TM+6)}, 13, {G}")
A(f"v_lshl_add_u32 {v(TM+6)}, {C}, 4, {v(TM+6)}")
A(f"s_mul_i32 {t3}, {t2}, 18"); A(f"s_add_u32 {t3}, {t3}, {sW}"); A(f"s_lshl_b32 {t3}, {t3}, 15")
A(f"s_lshl_b32 {t4}, {t0}, 9"); A(f"s_add_u32 {t3}, {t3}, {t4}"); A(f"s_lshl_b32 {t4}, {t1}, 8"); A(f"s_add_u32 {t3}, {t3}, {t4}")
A(f"s_lshl_b32 {t4}, {sW}, 10"); A(f"s_add_u32 m0, {t4}, {L_WQ}")
A(f"s_lshl_b32 {kv0}, {t1}, 24"); A(f"s_lshl_b32 {t4}, {t0}, 20"); A(f"s_add_u32 {kv0}, {kv0}, {t4}")
A(f"s_lshl_b32 {t4}, {t2}, 15"); A(f"s_add_u32 {kv0}, {kv0}, {t4}")
A(f"s_lshl_b32 {t4}, {sW}, 13"); A(f"s_add_u32 {kv0}, {kv0}, {t4}")
A(f"s_add_u32 {kv0}, {kv0}, {3072*256}"); A(f"s_add_u32 {kv1}, {kv0}, 4096")
A(f"v_xor_b32 {v(TM+7)}, {C}, {G}")
A(f"v_lshlrev_b32 {v(TM+7)}, 4, {v(TM+7)}")
A(f"v_lshl_add_u32 {v(KA)}, {G}, 8, {v(TM+7)}")
for i in range(1, 4): A(f"v_xor_b32 {v(KA+i)}, {64*i}, {v(KA)}")
A(f"s_lshl_b32 {sL}, {sJ}, 2"); A(f"s_add_u32 {sL}, {sL}, {sW}")
A(f"s_lshl_b32 {t4}, {sL}, 9"); A(f"s_add_u32 {t4}, {t4}, {QP_O}")
A(f"v_add_u32 {vQPst}, {t4}, {vL16}")
A(f"s_mov_b32 {t5}, {EP_O}")
A("s_waitcnt lgkmcnt(0)")
pstamp(0)
A("s_mov_b64 exec, 1")
A(f"buffer_load_dword {FN}, {vL16}, {srd(rWS)}, {t5} offen{NT}")
A("s_mov_b64 exec, -1")
def empty_share(base, fl):
    A(f"s_mul_i32 {t5}, {sL}, {CLR}"); A(f"s_add_u32 {t5}, {t5}, {base}")
    A(f"buffer_store_dwordx4 {v(EM,4)}, {vL16}, {srd(rWS)}, {t5} offen{fl}")
    A(f"buffer_store_dwordx4 {v(EM,4)}, {vL16}, {srd(rWS)}, {t5} offen offset:{CLR-1024}{fl}")
A(f"s_cmp_lg_u32 {sW}, 3")
A("s_cbranch_scc1 L_pro2")
A(f"v_lshrrev_b32 {v(TM+8)}, 5, v0"); A(f"v_and_b32 {v(TM+9)}, 31, v0")
A(f"v_mul_u32_u24 {vXS1}, 1152, {v(TM+8)}"); A(f"v_lshl_add_u32 {vXS2}, {v(TM+9)}, 2, {vXS1}"); A(f"v_lshl_add_u32 {v(TM+10)}, {v(TM+9)}, 3, {vXS1}"); A(f"v_lshl_add_u32 {vXS1}, {v(TM+9)}, 4, {vXS1}")
for l in xs_loads(rX, 0, NT): A(l)
A(f"s_mul_i32 {t5}, {t2}, 144")
A(f"buffer_load_dwordx2 {v(XG,2)}, {v(TM+10)}, {srd(rX)}, {t5} offen{NT}")
A("L_pro2:")
for n in range(5):
    if n == 4:
        A(f"s_cmp_ge_u32 {sW}, 2"); A("s_cbranch_scc1 L_pro1")
    A(f"buffer_load_dwordx4 {v(TM+6)}, {srd(rWQ)}, {t3} offen{NTQ} lds")
    if n < 4: A(f"s_add_u32 {t3}, {t3}, {16*8192}"); A("s_add_u32 m0, m0, 4096")
A("L_pro1:")
empty_share(sGf, '')
A(f"s_lshl_b32 {t4}, {sW}, 13"); A(f"s_add_u32 m0, {t4}, {L_K}")
for i in range(8):
    if i == 4: A(f"s_add_u32 m0, m0, 4096")
    A(f"buffer_load_dwordx4 {v(KA+i%4)}, {srd(rK)}, {kv0 if i < 4 else kv1} offen offset:{1024*(i%4)}{NTK} lds")

def constants():
    A(f"v_mul_u32_u24 {vWrow}, 1152, {G}")
    A(f"v_lshl_add_u32 {vWrow}, {C}, 4, {vWrow}")
    A(f"s_cmp_lt_u32 {sJ}, 18"); A(f"s_cselect_b32 {sRole}, 1, 0")
    A(f"s_cmp_ge_u32 {sJ}, 20"); A(f"s_cselect_b32 {t4}, 2, 0"); A(f"s_cmp_lt_u32 {sW}, 3"); A(f"s_cselect_b32 {t4}, {t4}, 0"); A(f"s_or_b32 {sRole}, {sRole}, {t4}")
    A(f"s_sub_u32 {sTask}, {sJ}, 20"); A(f"s_mul_i32 {sTask}, {sTask}, 3"); A(f"s_add_u32 {sTask}, {sTask}, {sW}"); A(f"s_min_u32 {sTask}, {sTask}, 35")
    A(f"s_lshl_b32 {t3}, {sX}, 4"); A(f"s_and_b32 {t4}, {sJ}, 15"); A(f"s_add_u32 {sWo}, {t3}, {t4}"); A(f"s_mul_i32 {sWo}, {sWo}, {32*1152}")
    A(f"s_lshl_b32 {t4}, {sW}, 8"); A(f"s_add_u32 {sWo}, {sWo}, {t4}")
    for r, n in ((rW1, 5308416), (rW2, 5308416), (rOUT, 2304), (rT1, 9216), (rT2, 1152)):
        A(f"s_mov_b32 s{r+2}, {n}"); A(f"s_mov_b32 s{r+3}, 0x20000")
    A("s_mov_b32 s70, 0xffff0000"); A("s_mov_b32 s71, 0xffff0000")
    A(f"v_lshlrev_b32 {vL4}, 2, v0")
    for i in range(12, 24): A(f"v_mov_b32 {v(XA+i)}, 0x3f803f80")
    A(f"s_lshl_b32 {t4}, {sW}, 13"); A(f"s_add_u32 {t4}, {t4}, {L_K}")
    A(f"v_lshl_add_u32 {v(KA)}, {C}, 8, {v(TM+7)}"); A(f"v_add_u32 {v(KA)}, {t4}, {v(KA)}")
    for i in range(1, 4): A(f"v_xor_b32 {v(KA+i)}, {64*i}, {v(KA)}")
    T_ = [v(TM+8+i) for i in range(10)]
    A(f"v_and_b32 {T_[0]}, 1, v0")
    A(f"v_mul_u32_u24 {vIdxP}, 0xaaaa, {T_[0]}"); A(f"v_add_u32 {vIdxP}, 0x4444, {vIdxP}")
    A(f"v_and_b32 {T_[1]}, 3, v0")
    A(f"v_mul_u32_u24 {vIdxS}, 0x5555, {T_[1]}")
    A(f"v_bfe_u32 {T_[2]}, v0, 4, 1")
    A(f"v_bfe_u32 {T_[3]}, v0, 2, 2")
    A(f"v_bfe_u32 {T_[4]}, v0, 3, 1")
    A(f"v_lshrrev_b32 {T_[5]}, 5, v0")
    A(f"v_and_b32 {T_[8]}, 7, v0")
    A(f"v_and_b32 {T_[9]}, 31, v0")
    A(f"s_lshr_b32 {t3}, {sJ}, 4")
    A(f"s_lshr_b32 {t5}, {sJ}, 3")
    A(f"s_lshl_b32 {t3}, {t3}, 1"); A(f"s_lshr_b32 {t4}, {sW}, 1"); A(f"s_add_u32 {t3}, {t3}, {t4}"); A(f"s_lshl_b32 {t3}, {t3}, 14")
    A(f"s_and_b32 {t4}, {sW}, 1"); A(f"s_lshl_b32 {t4}, {t4}, 10"); A(f"s_add_u32 {t3}, {t3}, {t4}")
    A(f"s_lshl_b32 {t4}, {t1}, 8"); A(f"s_add_u32 {t3}, {t3}, {t4}"); A(f"s_add_u32 {t3}, {t3}, {QP_O}")
    A(f"v_lshl_add_u32 {vQPg}, {T_[5]}, 4, {T_[2]}"); A(f"v_lshlrev_b32 {vQPg}, 9, {vQPg}"); A(f"v_lshl_add_u32 {vQPg}, {C}, 4, {vQPg}"); A(f"v_add_u32 {vQPg}, {t3}, {vQPg}")
    A(f"v_add_u32 {vQPg2}, 4096, {vQPg}")
    A(f"s_and_b32 {t3}, {sW}, 1"); A(f"s_lshl_b32 {t3}, {t3}, 8"); A(f"s_lshr_b32 {t4}, {sW}, 1"); A(f"s_lshl_b32 {t4}, {t4}, 7"); A(f"s_add_u32 {t3}, {t3}, {t4}")
    A(f"v_bfe_u32 {T_[6]}, v0, 3, 2"); A(f"v_bfe_u32 {T_[7]}, v0, 1, 2")
    A(f"v_lshlrev_b32 {vQTw}, 5, {T_[6]}"); A(f"v_lshl_add_u32 {vQTw}, {T_[0]}, 4, {vQTw}"); A(f"v_lshl_add_u32 {vQTw}, {T_[7]}, 2, {vQTw}")
    A(f"v_lshl_add_u32 {vQTw}, {T_[5]}, 1, {vQTw}"); A(f"v_add_u32 {vQTw}, {t3}, {vQTw}")
    A(f"v_lshlrev_b32 {vQTr}, 5, {G}"); A(f"v_lshl_add_u32 {vQTr}, {T_[4]}, 7, {vQTr}"); A(f"v_lshl_add_u32 {vQTr}, {T_[0]}, 4, {vQTr}")
    A(f"v_mul_u32_u24 {vOTr}, 640, {T_[4]}"); A(f"v_lshl_add_u32 {vOTr}, {G}, 5, {vOTr}"); A(f"v_lshl_add_u32 {vOTr}, {B2}, 4, {vOTr}")
    A(f"s_mul_i32 {t3}, {sW}, 1280"); A(f"s_add_u32 {t3}, {t3}, {L_PT}")
    A(f"v_add_u32 {vPTr}, {t3}, {vOTr}"); A(f"v_add_u32 {vOTr}, {L_OT}, {vOTr}")
    A(f"v_bfe_u32 {T_[6]}, v0, 1, 4")
    A(f"v_mul_u32_u24 {vPTw}, 640, {T_[5]}"); A(f"v_lshl_add_u32 {vPTw}, {T_[6]}, 5, {vPTw}"); A(f"v_lshl_add_u32 {vPTw}, {T_[0]}, 3, {vPTw}"); A(f"v_add_u32 {vPTw}, {t3}, {vPTw}")
    A(f"v_lshrrev_b32 {vHPr}, 1, v0"); A(f"v_lshlrev_b32 {vHPr}, 4, {vHPr}"); A(f"v_lshl_add_u32 {vHPr}, {T_[0]}, 2, {vHPr}"); A(f"v_add_u32 {vHPr}, {L_HP}, {vHPr}")
    A(f"s_lshl_b32 {t3}, {sW}, 9"); A(f"s_add_u32 {t3}, {t3}, {L_HP}"); A(f"v_add_u32 {vHPw}, {t3}, {vL16}")
    A(f"s_lshl_b32 {t3}, {t5}, 9"); A(f"s_add_u32 {t3}, {t3}, {ST_O}")
    A(f"s_lshl_b32 {t4}, {t2}, 2"); A(f"s_add_u32 {t4}, {t4}, {sW}"); A(f"s_lshl_b32 {t4}, {t4}, 2"); A(f"s_add_u32 {t4}, {t4}, {t3}")
    A(f"v_lshlrev_b32 {vSTst}, 8, {T_[5]}"); A(f"v_lshl_add_u32 {vSTst}, {T_[0]}, 7, {vSTst}"); A(f"v_add_u32 {vSTst}, {t4}, {vSTst}")
    A(f"s_lshl_b32 {t3}, {t1}, 1"); A(f"s_lshr_b32 {t4}, {sW}, 1"); A(f"s_add_u32 {t3}, {t3}, {t4}"); A(f"s_lshl_b32 {t3}, {t3}, 9"); A(f"s_add_u32 {t3}, {t3}, {ST_O}")
    A(f"s_lshr_b32 {t4}, {t2}, 2"); A(f"s_lshl_b32 {t4}, {t4}, 8"); A(f"s_add_u32 {t3}, {t3}, {t4}")
    A(f"v_lshrrev_b32 {T_[7]}, 3, v0")
    A(f"v_lshl_add_u32 {vSTg}, {T_[7]}, 4, {t3}")
    A(f"s_and_b32 {t4}, {sW}, 1"); A(f"s_lshl_b32 {t4}, {t4}, 3"); A(f"v_add_u32 {vSTm}, {t4}, {vSTg}")
    A(f"s_lshr_b32 {t3}, {sJ}, 4"); A(f"s_lshl_b32 {t3}, {t3}, 16"); A(f"s_lshl_b32 {t4}, {t1}, 12"); A(f"s_add_u32 {t3}, {t3}, {t4}")
    A(f"s_lshl_b32 {t4}, {sW}, 10"); A(f"s_add_u32 {t3}, {t3}, {t4}"); A(f"s_lshl_b32 {t4}, {t2}, 7"); A(f"s_add_u32 {t3}, {t3}, {t4}")
    A(f"v_lshlrev_b32 {T_[6]}, 5, {T_[1]}"); A(f"v_lshl_add_u32 {T_[6]}, {T_[2]}, 4, {T_[6]}")
    A(f"v_lshl_add_u32 {vOPst}, {T_[5]}, 2, {T_[3]}"); A(f"v_lshl_add_u32 {vOPst}, {vOPst}, 13, {T_[6]}"); A(f"v_add_u32 {vOPst}, {t3}, {vOPst}")
    A(f"s_and_b32 {t3}, {sJ}, 15"); A(f"s_lshl_b32 {t3}, {t3}, 13"); A(f"s_lshl_b32 {t4}, {sW}, 11"); A(f"s_add_u32 {t3}, {t3}, {t4}"); A(f"v_add_u32 {vOPg}, {t3}, {vL16}")
    A(f"s_lshr_b32 {t3}, {sW}, 1"); A(f"s_mul_i32 {t3}, {t3}, 640"); A(f"s_and_b32 {t4}, {sW}, 1"); A(f"s_lshl_b32 {t4}, {t4}, 1"); A(f"s_add_u32 {t3}, {t3}, {t4}"); A(f"s_add_u32 {t3}, {t3}, {L_OT}")
    A(f"v_mul_u32_u24 {vOTw}, 20, {T_[4]}"); A(f"v_lshl_add_u32 {vOTw}, {T_[8]}, 6, {vOTw}"); A(f"v_lshl_add_u32 {vOTw}, {T_[5]}, 5, {vOTw}")
    A(f"v_lshl_add_u32 {vOTw}, {T_[2]}, 3, {vOTw}"); A(f"v_add_u32 {vOTw}, {t3}, {vOTw}")
    A(f"s_mul_i32 {t3}, {sW}, {4*2304}"); A(f"s_lshl_b32 {t4}, {sJ}, 7"); A(f"s_add_u32 {t3}, {t3}, {t4}"); A(f"s_add_u32 {t3}, {t3}, {Y_O}")
    A(f"v_mul_u32_u24 {vMst}, 18, {T_[5]}"); A(f"v_add_u32 {vMst}, {vMst}, {T_[3]}"); A(f"v_mul_u32_u24 {vMst}, 2304, {vMst}")
    A(f"v_add3_u32 {vMst}, {vMst}, {T_[6]}, {t3}")
    A(f"v_subrev_u32 {vYst}, 2048, {vMst}")
    A(f"v_mul_u32_u24 {vXS1}, 1152, {T_[5]}"); A(f"v_lshl_add_u32 {vXS2}, {T_[9]}, 2, {vXS1}"); A(f"v_lshl_add_u32 {vXS1}, {T_[9]}, 4, {vXS1}")
    A(f"s_lshl_b32 {t3}, {t1}, 3"); A(f"s_add_u32 {t3}, {t3}, {L_STAT}"); A(f"v_mov_b32 {vSTATr}, {t3}")
    A(f"s_mul_i32 {t4}, {sW}, 384"); A(f"v_add_u32 {vXAm}, {t4}, {vXAm}")
    A(f"s_mul_i32 {t4}, {sX}, 18"); A(f"s_add_u32 {t4}, {t4}, {sJ}"); A(f"s_lshl_b32 {t5}, {t4}, 6")
    A(f"v_lshl_add_u32 {vB1}, {T_[9]}, 1, {t5}")
    A(f"s_mul_i32 {t4}, {sTask}, 2304"); A(f"s_add_u32 {t4}, {t4}, {Y_O}"); A(f"v_add_u32 {vRg}, {t4}, {vL16}")
    A(f"s_lshl_b32 {t4}, {sTask}, 13"); A(f"s_lshl_b32 {t5}, {sX}, 10"); A(f"s_add_u32 {t5}, {t5}, {t4}"); A(f"v_lshl_add_u32 {vXPg}, v0, 3, {t5}")
    A(f"s_lshl_b32 {t5}, {sX}, 7"); A(f"s_add_u32 {t4}, {t4}, {t5}"); A(f"v_lshl_add_u32 {vXPst}, {T_[8]}, 4, {t4}")
    A(f"v_lshrrev_b32 {T_[7]}, 3, v0"); A(f"v_lshl_add_u32 {vXPst}, {T_[7]}, 10, {vXPst}")
    A(f"v_lshl_add_u32 {T_[7]}, {C}, 1, {T_[5]}")
    A(f"s_lshl_b32 {t4}, {sTask}, 6"); A(f"v_lshl_add_u32 {vZo}, {T_[7]}, 1, {t4}")
    A(f"v_add_u32 {vZst}, {Z1_O}, {vZo}")
    A(f"s_and_b32 {t5}, {sTask}, 7"); A(f"s_cmp_eq_u32 {t5}, {sX}"); A(f"s_cselect_b32 {t5}, 4, 0"); A(f"s_or_b32 {sRole}, {sRole}, {t5}")
    A(f"s_cmp_ge_u32 {sTask}, 18"); A(f"s_cselect_b32 {t5}, 1152, 0")
    A(f"v_subrev_u32 {vB2}, {t5}, {vZo}")

def constants1():
    A(f"v_and_b32 {v(TM+8)}, 1, v0")
    A(f"v_mul_u32_u24 {vIdxD}, 0x5555, {v(TM+8)}"); A(f"v_add_u32 {vIdxD}, 0x8888, {vIdxD}")
    A(f"v_mov_b32 {vOnes}, 0x3f803f80")
    A(f"s_lshl_b32 {t3}, {sW}, 6"); A(f"s_add_u32 {t3}, {t3}, {L_WQ}")
    A(f"v_lshlrev_b32 {vCq}, 10, {G}"); A(f"v_lshl_add_u32 {vCq}, {C}, 2, {vCq}"); A(f"v_add_u32 {vCq}, {t3}, {vCq}")
    for i in range(16, 24): A(f"v_accvgpr_write_b32 {a(aWQ+i)}, 0")
    zero(D0, 8)
    A(f"ds_write_b128 {v(D0)}, {v(EM,4)} offset:{L_STAT+16}")
    A(f"s_cmp_lg_u32 {sW}, 3")
    A("s_cbranch_scc1 L_c1")
    A(f"s_waitcnt vmcnt({4+2+8})")
    stats(0, False)
    for i in range(2):
        lo, hi = v(TM+8), v(TM+9)
        A(f"v_lshlrev_b32 {lo}, 16, {v(XG+i)}"); A(f"v_and_b32 {hi}, 0xffff0000, {v(XG+i)}")
        A(f"v_sub_f32 {lo}, {lo}, {S_}"); A(f"v_sub_f32 {hi}, {hi}, {S_}")
        A(f"v_cvt_pk_bf16_f32 {v(XG+i)}, {lo}, {hi}")
        A(f"v_lshlrev_b32 {lo}, 16, {v(XG+i)}"); A(f"v_and_b32 {hi}, 0xffff0000, {v(XG+i)}")
        A(f"v_mul_f32 {lo}, {lo}, {Q_}"); A(f"v_mul_f32 {hi}, {hi}, {Q_}")
        A(f"v_cvt_pk_bf16_f32 {v(XG+i)}, {lo}, {hi}")
    A(f"v_lshrrev_b32 {v(TM+8)}, 5, v0"); A(f"v_mul_u32_u24 {v(TM+8)}, 144, {v(TM+8)}"); A(f"v_and_b32 {v(TM+9)}, 31, v0"); A(f"v_lshl_add_u32 {v(TM+8)}, {v(TM+9)}, 3, {v(TM+8)}")
    A("s_mov_b32 exec_lo, 0x3ffff"); A("s_mov_b32 exec_hi, 0x3ffff")
    A(f"ds_write_b64 {v(TM+8)}, {v(XG,2)} offset:{L_X}")
    A("s_mov_b64 exec, -1")
    A("L_c1:")
    A(f"v_mul_u32_u24 {v(TM+10)}, 144, {B2}"); A(f"v_lshl_add_u32 {v(TM+10)}, {G}, 4, {v(TM+10)}")
    A(f"s_lshl_b32 {t3}, {sW}, 11"); A(f"v_add_u32 {v(TM+8)}, {t3}, {vL16}")
    A(f"ds_write_b128 {v(TM+8)}, {v(D1,4)} offset:1024"); A(f"ds_write_b128 {v(TM+8)}, {v(D1,4)} offset:2048")

fl_load = ["s_mov_b32 exec_hi, 0", f"buffer_load_dwordx4 {v(FG,4)}, {vL16}, {srd(rWS)}, {sXoff} offen sc1", "s_mov_b32 exec_hi, -1"]
qp_store = f"buffer_store_dwordx4 {v(D0,4)}, {vQPst}, {srd(rWS)}, {{so}} offen{{fl}}"
def qg(n): return [f"buffer_load_dwordx{n} {v(QG+4*p,n)}, {vQPg if p < 2 else vQPg2}, {srd(rWS)}, {sGp} offen offset:{2048*(p%2)} sc1" for p in range(4)]
qg4, qg2 = qg(4), qg(2)
pstamp(3)
for r, off in ((rW1, 48), (rW2, 64), (rOUT, 80), (rT1, 56), (rT2, 72)):
    A(f"s_load_dwordx2 s[{r}:{r+1}], s[0:1], {off}")
if args.code:
    A(f"s_cmp_ge_u32 {sL}, 2"); A("s_cbranch_scc1 L_nc")
    A("s_getpc_b64 s[66:67]")
    A("L_pc:")
    A(f"s_lshl_b32 {t3}, {sL}, 13"); A(f"v_add_u32 {v(TM+8)}, {t3}, {vL128}")
    A(f"v_min_u32 {v(TM+8)}, L_codeend-L_pc-4, {v(TM+8)}")
    A(f"global_load_dword {DUM}, {v(TM+8)}, s[66:67]")
    A("L_nc:")
constants1()
A(f"s_mov_b32 {sTO}, 0x40000"); A(f"s_mov_b32 {sMode}, 0"); A(f"s_mov_b32 {sGp}, {sGf}")
cnt = [8]
mark = {'K': 8}
def vm(s): A(s); cnt[0] += 1
A(f"s_lshl_b32 {t4}, {sL}, 9"); A(f"s_add_u32 {t4}, {t4}, {sGf}"); A(f"s_add_u32 {t4}, {t4}, {QP_O}")
A(f"s_add_u32 {sXoff}, {sGf}, {FF_O}")
A("s_mov_b64 exec, 15")
vm(f"buffer_load_dword {DUM}, {vL128}, {srd(rWS)}, {t4} offen sc1{NT}")
vm(f"buffer_load_dword {DUM}, {vL128}, {srd(rWS)}, {sXoff} offen sc1{NT}")
A("s_mov_b64 exec, -1")
def hookQ():
    A(f"s_lshl_b32 {t4}, {sL}, 2"); A(f"s_add_u32 {t4}, {t4}, {sXoff}")
    A(f"s_getreg_b32 {t3}, hwreg(HW_REG_XCC_ID)"); A(f"s_lshl_b32 {t3}, {t3}, 28")
    A(f"s_waitcnt vmcnt({cnt[0]}) lgkmcnt(0)")
    A("s_barrier")
    pstamp(2)
    for l in exec_xa(): A(l)
    for i in range(3):
        if i == 2: A("s_mov_b64 exec, 0x33")
        A(f"ds_read_b128 {v(XA+4*i,4)}, {v(TM+10)} offset:{L_X+64*i}")
    A("s_mov_b64 exec, -1")
    for i in range(2):
        for vv in range(0, 8, 2):
            row = 32*i + 16*(vv >> 2) + (vv & 3)
            A(f"ds_read2st64_b32 {a(aWQ+8*i+vv,2)}, {vCq} offset0:{row} offset1:{row+1}")
    A("s_mov_b32 exec_hi, 0")
    for vv in (0, 2): A(f"ds_read2st64_b32 {a(aWQ+16+vv,2)}, {vCq} offset0:{64+vv} offset1:{65+vv}")
    A("s_mov_b32 exec_hi, -1")
    A(f"v_readfirstlane_b32 {sFlag}, {FN}")
    A(f"s_add_u32 {sFlag}, {sFlag}, 0x0e377901"); A(f"s_and_b32 {sFlag}, {sFlag}, 0x0fffffff"); A(f"s_or_b32 {sFlag}, {sFlag}, {t3}")
    A(f"v_mov_b32 {FN}, {sFlag}")
    A("s_mov_b64 exec, 1")
    vm(f"buffer_store_dword {FN}, {vL16}, {srd(rWS)}, {t4} offen")
    A("s_mov_b64 exec, -1")
    A(f"v_and_b32 {vTag}, 0xff, {FN}"); A(f"s_movk_i32 {t4}, 0xff")
    A("s_waitcnt lgkmcnt(0)")
    for i in range(3): sm(D0, XA+4*i, aWQ+8*i, vIdxD)
    for i in range(4): A(f"v_bfi_b32 {v(D0+i)}, {t4}, {vTag}, {v(D0+i)}")
    A("s_mov_b32 exec_hi, 0")
    vm(qp_store.format(so=sGf, fl=''))
    A("s_mov_b32 exec_hi, -1")
    pstamp(1)
for k in range(9):
    if k == args.pQ: hookQ()
    if k == 8 - args.vw: mark['V'] = cnt[0]
    if k < 8: vm(f"buffer_load_dwordx4 {a(aV+4*k,4)}, {vL16}, {srd(rV)}, {kv0 if k < 4 else kv1} offen offset:{1024*(k%4)}{NTV}")
    if k == 7: pstamp(9)
TT = v(TM+4)
def slots_touch():
    A(f"s_lshl_b32 {t1}, {sJ}, 2"); A(f"s_add_u32 {t1}, {t1}, {sW}")
    A(f"s_mul_i32 {t3}, {t1}, 1536"); A(f"s_add_u32 {t3}, {t3}, {sGf}"); A(f"s_add_u32 {t3}, {t3}, {Y_O}")
    A(f"s_lshl_b32 {t1}, {t1}, 10"); A(f"s_add_u32 {t1}, {t1}, {QP1_O}"); A(f"s_add_u32 {t1}, {t1}, {sGf}")
    A("s_mov_b64 exec, 0xfff")
    A(f"buffer_load_dword {DUM}, {vL128}, {srd(rWS)}, {t3} offen sc1{NT}")
    A("s_mov_b64 exec, 0xff")
    A(f"buffer_load_dword {DUM}, {vL128}, {srd(rWS)}, {t1} offen sc1{NT}")
    A("s_mov_b64 exec, -1")
def slots_clear():
    A(f"s_lshl_b32 {t1}, {sJ}, 2"); A(f"s_add_u32 {t1}, {t1}, {sW}")
    A(f"s_lshl_b32 {t1}, {t1}, 10"); A(f"s_add_u32 {t1}, {t1}, {QP1_O}"); A(f"v_add_u32 {TT}, {t1}, {vL16}")
    pub(f"buffer_store_dwordx4 {v(EM,4)}, {TT}, {srd(rWS)}, {{so}} offen{{fl}}")
assert Y_O + 64 * 1536 >= Z3_O + 2304
def w1_touch():
    A(f"s_lshl_b32 {t1}, {sJ}, 2"); A(f"s_add_u32 {t1}, {t1}, {sW}")
    A(f"s_mul_i32 {t4}, {sX}, 576"); A(f"s_add_u32 {t4}, {t4}, {t1}"); A(f"s_add_u32 {t4}, {t4}, 512"); A(f"s_mul_i32 {t4}, {t4}, 1152")
    A(f"s_mul_i32 {t1}, {t1}, {9*9216}")
    A(f"s_mul_i32 {t3}, {sX}, 1152"); A(f"s_add_u32 {t1}, {t1}, {t3}"); A(f"s_add_u32 {t3}, {t1}, {5*9216}")
    A(f"v_mul_u32_u24 {TT}, 57, v0"); A(f"v_lshrrev_b32 {TT}, 9, {TT}"); A(f"v_mul_u32_u24 {TT}, {9216-1152}, {TT}"); A(f"v_add_u32 {TT}, {TT}, {vL128}")
    A("s_mov_b32 exec_hi, 0x1fff")
    A(f"buffer_load_dword {DUM}, {TT}, {srd(rW1)}, {t1} offen{NTM}")
    A("s_mov_b32 exec_hi, 15")
    A(f"buffer_load_dword {DUM}, {TT}, {srd(rW1)}, {t3} offen{NTM}")
    A("s_mov_b64 exec, 0x1ff")
    A(f"buffer_load_dword {DUM}, {vL128}, {srd(rW2)}, {t4} offen{NTM}")
    A("s_mov_b64 exec, -1")
def w2_loads():
    l1 = A.newlabel('L_w2')
    A(f"s_mul_i32 {t0}, {sX}, 18"); A(f"s_add_u32 {t0}, {t0}, {sJ}"); A(f"s_mul_i32 {t0}, {t0}, {32*1152}")
    A(f"s_lshl_b32 {t1}, {sW}, 8"); A(f"s_add_u32 {t1}, {t1}, {t0}")
    for i in range(8):
        A(f"buffer_load_dwordx4 {a(aW2+4*i,4)}, {vWrow}, {srd(rW2)}, {t1} offen{NT2}")
        if i < 7: A(f"s_add_u32 {t1}, {t1}, 4608")
    A(f"s_cmp_lg_u32 {sW}, 3")
    A(f"s_cbranch_scc1 {l1}")
    A(f"s_mov_b64 exec, {mLO8}")
    for i in range(8):
        A(f"buffer_load_dwordx4 {a(aW2t+4*i,4)}, {vWrow}, {srd(rW2)}, {t0} offen offset:1024{NT2}")
        if i < 7: A(f"s_add_u32 {t0}, {t0}, 4608")
    A("s_mov_b64 exec, -1")
    A(f"{l1}:")
def wo_loads(k0, k1, with_tail):
    for k in range(k0, k1):
        A(f"buffer_load_dwordx4 {a(aWO+4*k,4)}, {vWrow}, {srd(rWO)}, {sWo} offen{NTO}")
        A(f"s_add_u32 {sWo}, {sWo}, 4608")
    if with_tail:
        l1 = A.newlabel('L_wt')
        A(f"s_cmp_lg_u32 {sW}, 3")
        A(f"s_cbranch_scc1 {l1}")
        A(f"s_mov_b64 exec, {mLO8}")
        for i in range(7, -1, -1):
            A(f"s_sub_u32 {sWo}, {sWo}, 4608")
            A(f"buffer_load_dwordx4 {a(aWOt+4*i,4)}, {vWrow}, {srd(rWO)}, {sWo} offen offset:256{NTO}")
        A("s_mov_b64 exec, -1")
        A(f"{l1}:")
constants()
pstamp(4)
stamp()
A(f"s_waitcnt vmcnt({cnt[0]-mark['K']})")
for T in range(2):
    for q in range(4): A(f"ds_read_b128 {a(aK+16*T+4*q,4)}, {v(KA+q)} offset:{4096*T}")
A(f"s_mov_b32 {sXPo}, {XP_O}")
A(f"s_cmp_lt_u32 {sJ}, 16")
A("s_cbranch_scc1 L_g1n")
A(f"v_readfirstlane_b32 {t4}, {vOPg}"); A(f"v_readfirstlane_b32 {t5}, {vSTg}")
A(f"s_add_u32 {t4}, {t4}, {sGf}"); A(f"s_add_u32 {t5}, {t5}, {sGf}")
A("s_mov_b64 exec, 0xffff")
A(f"buffer_load_dword {DUM}, {vL128}, {srd(rWS)}, {t4} offen sc1{NT}")
A("s_mov_b64 exec, 3")
A(f"buffer_load_dword {DUM}, {vL128}, {srd(rWS)}, {t5} offen sc1{NT}")
A("s_mov_b64 exec, -1")
A(f"buffer_load_ushort {vXres}, {vZo}, {srd(rX)}, 0 offen{NT}")
A(f"buffer_load_ushort {vB2}, {vB2}, {srd(rT2)}, 0 offen{NT}")
wo_loads(0, 8, True)
A("s_branch L_g1o")
A("L_g1n:")
if 's' in args.early: slots_touch()
if '1' in args.early: w1_touch()
if '2' in args.early: w2_loads()
A("L_g1o:")
pstamp(6)
A(f"s_waitcnt vmcnt({args.vw})")
if ST and not args.pro and ONLY is None: A(f"s_memrealtime s[74:75]")
pstamp(5)
def flags_diff():
    A(f"v_xor_b32 {CK}, {sFlag}, {v(FG)}")
    for i in range(1, 4): A(f"v_bitop3_b32 {CK}, {CK}, {v(FG+i)}, {sFlag} bitop3:0xf6")
st_rd = f"ds_read_b64 {v(TM,2)}, {vSTATr}"
A("L_g4:")
for l in fl_load + qg4: A(l)
A("s_waitcnt vmcnt(0)")
pstamp(7)
flags_diff()
A(f"v_cmp_ne_u32 vcc, 0, {CK}")
A("s_cmp_lg_u32 vcc_lo, 0")
if args.forcefb: A("s_cmp_eq_u32 0, 0")
A("s_cbranch_scc1 L_af2")
A(f"s_mov_b32 {sMode}, 0")
A("L_g2:")
for i in range(16): A(f"v_xor_b32 {v(QG+i)}, {vTag}, {v(QG+i)}")
A(f"v_or3_b32 {CK}, {v(QG)}, {v(QG+1)}, {v(QG+2)}")
for i in range(3, 15, 2): A(f"v_or3_b32 {CK}, {CK}, {v(QG+i)}, {v(QG+i+1)}")
A(f"v_or_b32 {CK}, {CK}, {v(QG+15)}")
A(f"v_and_b32 {CK}, 0xff, {CK}")
A(f"v_cmp_ne_u32 vcc, 0, {CK}")
A("s_cbranch_vccnz L_g5")
A("L_g3:")
A(f"s_mov_b32 {sL}, 0")
zero(D0)
A(f"v_mov_b32 {v(TM)}, 0"); A(f"v_mov_b32 {v(TM+1)}, 1.0")
tail.append("L_g5:\n" + timeout("L_g4", "L_g3"))
pstamp(8)
A(f"v_add_f32 {v(TM+2)}, {v(QG+2)}, {v(QG+6)}"); A(f"v_add_f32 {v(TM+3)}, {v(QG+3)}, {v(QG+7)}")
A(f"v_add_f32 {v(TM+4)}, {v(QG+10)}, {v(QG+14)}"); A(f"v_add_f32 {v(TM+5)}, {v(QG+11)}, {v(QG+15)}")
A(f"v_add_f32 {v(TM+2)}, {v(TM+2)}, {v(TM+4)}"); A(f"v_add_f32 {v(TM+3)}, {v(TM+3)}, {v(TM+5)}")
A(f"v_permlane32_swap_b32 {v(TM+2)}, {v(TM+3)}")
A(f"v_add_f32 {vCq}, {v(TM+2)}, {v(TM+3)}")
A("s_branch L_qfin")

A("L_layer:")
zero(D0, 8)
poll_proj(vXAq, sXoff, 3, aWQ, args.dz, True)
A("s_mov_b32 exec_hi, 0")
pub(qp_store)
A("s_mov_b32 exec_hi, -1")
zero(D0)
A(f"s_cmp_lg_u32 {sW}, 3")
A("s_cbranch_scc1 L_qdone")
poll(xs_loads(rWS, sXoff, ' sc1'), [v(XS+i) for i in range(9)], depth=args.dz)
stats(16)
A("L_qdone:")
nst[0] = 1
stamp()
poll(qg2 + [f"ds_read_b64 {v(TM,2)}, {vSTATr} offset:16"], [v(QG+4*p+i) for p in range(4) for i in range(2)] + [v(TM+1)], depth=args.di, extra_wait=" lgkmcnt(0)")
A("L_qfin:")
stamp()
A(f"v_add_f32 {v(TM+2)}, {v(QG)}, {v(QG+4)}"); A(f"v_add_f32 {v(TM+3)}, {v(QG+1)}, {v(QG+5)}")
A(f"v_add_f32 {v(TM+4)}, {v(QG+8)}, {v(QG+12)}"); A(f"v_add_f32 {v(TM+5)}, {v(QG+9)}, {v(QG+13)}")
A(f"v_add_f32 {v(TM+2)}, {v(TM+2)}, {v(TM+4)}"); A(f"v_add_f32 {v(TM+3)}, {v(TM+3)}, {v(TM+5)}")
A(f"v_permlane32_swap_b32 {v(TM+2)}, {v(TM+3)}")
A(f"v_fma_f32 {v(TM+2)}, -{v(TM)}, {vCq}, {v(TM+2)}")
A(f"v_add_f32 {v(TM+2)}, {v(TM+2)}, {v(TM+3)}")
A(f"v_mul_f32 {v(TM+2)}, {v(TM+2)}, {v(TM+1)}")
A(f"v_cvt_pk_bf16_f32 {v(TM+2)}, {v(TM+2)}, {v(TM+2)}")
A(f"ds_write_b16 {vQTw}, {v(TM+2)} offset:{L_QT}")
A("s_mov_b32 vcc_lo, 0xaaaaaaaa"); A("s_mov_b32 vcc_hi, 0xaaaaaaaa")
zero(DP)
A("s_waitcnt lgkmcnt(0)")
A("s_barrier")
A(f"ds_read_b128 {v(AO,4)}, {vQTr} offset:{L_QT}")
A(f"ds_read_b128 {v(AO+4,4)}, {vQTr} offset:{L_QT+256}")
if args.mid:
    A(f"s_lshr_b32 {t0}, {sJ}, 4"); A(f"s_or_b32 {t0}, {t0}, {sL}")
    A("s_cbranch_scc1 L_mid")
    if 's' in args.mid: slots_touch()
    if '1' in args.mid: w1_touch()
    if '2' in args.mid: w2_loads()
    A("L_mid:")
A(f"s_waitcnt lgkmcnt({lg(1)})")
sm(D0, AO, aK, vIdxP); sm(D1, AO, aK+16, vIdxP)
A("s_waitcnt lgkmcnt(0)")
sm(D0, AO+4, aK+8, vIdxP); sm(D1, AO+4, aK+24, vIdxP)
SC, MX, P_, LS, TT = v(TM), v(TM+1), v(TM+2), v(TM+3), v(TM+4)
A(f"v_add_f32 {SC}, {v(D0)}, {v(D0+1)}")
A(f"v_add_f32 {TT}, {v(D1)}, {v(D1+1)}")
A(f"v_cndmask_b32 {SC}, {SC}, {TT}, {mROW}")
rbf(SC, SC)
A(f"v_mul_f32 {SC}, {f32(128 ** -0.5)}, {SC}")
rbf(SC, SC)
A(f"v_mul_f32 {SC}, {f32(1.4426950408889634)}, {SC}")
zero(D0, 2)
A(f"v_max_f32_dpp {MX}, {SC}, {SC} row_ror:8 row_mask:0xf bank_mask:0xf")
for n, k in enumerate((4, 2, 1)):
    zero(D0+2+2*n, 2)
    A(f"v_max_f32_dpp {MX}, {MX}, {MX} row_ror:{k} row_mask:0xf bank_mask:0xf")
A(f"v_mov_b32 {TT}, {MX}")
A(f"v_permlane16_swap_b32 {MX}, {TT}")
A(f"v_max_f32 {MX}, {MX}, {TT}")
A(f"v_sub_f32 {P_}, {SC}, {MX}")
A(f"v_exp_f32 {P_}, {P_}")
A(f"v_cvt_pk_bf16_f32 {TT}, {P_}, 0")
A(f"ds_write2_b32 {vPTw}, {TT}, {TT} offset1:5")
for i in range(4): A(f"ds_read_b128 {v(AO+4*i,4)}, {vPTr} offset:{128*i}")
A(f"v_add_f32_dpp {LS}, {P_}, {P_} row_ror:8 row_mask:0xf bank_mask:0xf")
for k in (4, 2, 1): A(f"v_add_f32_dpp {LS}, {LS}, {LS} row_ror:{k} row_mask:0xf bank_mask:0xf")
A(f"v_mov_b32 {SC}, {LS}")
A(f"v_permlane16_swap_b32 {LS}, {SC}")
A(f"v_add_f32 {LS}, {LS}, {SC}")
A(f"v_cndmask_b32 {SC}, {MX}, {LS}, vcc")
A("s_mov_b32 exec_lo, 3"); A("s_mov_b32 exec_hi, 3")
pub(f"buffer_store_dword {SC}, {vSTst}, {srd(rWS)}, {{so}} offen{{fl}}")
A("s_mov_b64 exec, -1")
for i in range(4):
    A(f"s_waitcnt lgkmcnt({lg(3-i)})")
    sm(DP, AO+4*i, aV+8*i, vIdxS)
pub(f"buffer_store_dwordx4 {v(DP,4)}, {vOPst}, {srd(rWS)}, {{so}} offen{{fl}}")
stamp()
E = TM + 5
R = TM + 12
def tile_out(wb, tb, vst):
    l1 = A.newlabel('L_t'); l2 = A.newlabel('L_t')
    for i in range(4):
        A(f"s_waitcnt lgkmcnt({lg(3-i)})")
        sm(D0, AO+4*i, wb+8*i, vIdxS)
    A(f"s_cmp_lg_u32 {sW}, 3")
    A(f"s_cbranch_scc1 {l1}")
    for i in range(4): sm(D1, AO+4*i, tb+8*i, vIdxS)
    A(f"{l1}:")
    A("s_waitcnt vmcnt(0)")
    A("s_nop 4")
    pub(f"buffer_store_dwordx4 {v(D0,4)}, {vst}, {srd(rWS)}, {{so}} offen{{fl}}")
    A(f"s_cmp_lg_u32 {sW}, 3")
    A(f"s_cbranch_scc1 {l2}")
    A(f"s_mov_b64 exec, {mLO8}")
    pub(f"buffer_store_dwordx4 {v(D1,4)}, {v(E+2)}, {srd(rWS)}, {{so}} offen{{fl}}")
    A("s_mov_b64 exec, -1")
    A(f"{l2}:")
A(f"s_cmp_lt_u32 {sJ}, 16")
A("s_cbranch_scc1 L_mlp")
poll([f"buffer_load_dwordx4 {v(SG,4)}, {vSTg}, {srd(rWS)}, {sGp} offen sc1",
      f"buffer_load_dwordx4 {v(SG+4,4)}, {vSTg}, {srd(rWS)}, {sGp} offen offset:128 sc1",
      f"buffer_load_dwordx2 {v(SG+8,2)}, {vSTm}, {srd(rWS)}, {sGp} offen sc1"], [v(SG+i) for i in range(10)], depth=max(1, args.di - 1))
op_load = [f"buffer_load_dwordx4 {v(OG+4*i,4)}, {vOPg}, {srd(rWS)}, {sGp} offen offset:{1024*i} sc1" for i in range(2)]
for l in op_load: A(l)
A(f"v_max3_f32 {MX}, {v(SG)}, {v(SG+1)}, {v(SG+2)}")
A(f"v_max_f32 {MX}, {MX}, {v(SG+3)}")
A(f"v_max_f32_dpp {MX}, {MX}, {MX} row_ror:8 row_mask:0xf bank_mask:0xf")
for sw in ('16', '32'):
    A(f"v_mov_b32 {TT}, {MX}"); A(f"v_permlane{sw}_swap_b32 {MX}, {TT}"); A(f"v_max_f32 {MX}, {MX}, {TT}")
if args.di > 1:
    for l in op_load: A(l)
for n, i in enumerate((0, 1, 2, 3, 8, 9)): A(f"v_sub_f32 {v(E+n)}, {v(SG+i)}, {MX}")
for n in range(6): A(f"v_exp_f32 {v(E+n)}, {v(E+n)}")
A(f"v_mul_f32 {LS}, {v(E)}, {v(SG+4)}")
for i in (1, 2, 3): A(f"v_fmac_f32 {LS}, {v(E+i)}, {v(SG+4+i)}")
if args.di > 2:
    for l in op_load: A(l)
A(f"v_add_f32_dpp {LS}, {LS}, {LS} row_ror:8 row_mask:0xf bank_mask:0xf")
for sw in ('16', '32'):
    A(f"v_mov_b32 {TT}, {LS}"); A(f"v_permlane{sw}_swap_b32 {LS}, {TT}"); A(f"v_add_f32 {LS}, {LS}, {TT}")
A(f"v_rcp_f32 {LS}, {LS}")
A(f"v_add_u32 {v(E+2)}, {4*2304}, {vYst}")
A(f"v_mul_f32 {v(E+4)}, {LS}, {v(E+4)}"); A(f"v_mul_f32 {v(E+5)}, {LS}, {v(E+5)}")
poll(op_load, [v(OG+i) for i in range(8)], depth=args.di, primed=min(3, args.di))
stamp()
for i in range(4): A(f"v_mul_f32 {v(R+i)}, {v(OG+i)}, {v(E+4)}")
for i in range(4): A(f"v_fmac_f32 {v(R+i)}, {v(OG+4+i)}, {v(E+5)}")
treduce(R)
A(f"v_cvt_pk_bf16_f32 {TT}, {v(R)}, {v(R)}")
A(f"ds_write_b16 {vOTw}, {TT}")
pub(*[f"buffer_store_dwordx4 {v(EM,4)}, {vOPg}, {srd(rWS)}, {{so}} offen offset:{1024*i}{{fl}}" for i in range(2)])
A("s_waitcnt lgkmcnt(0)")
A("s_barrier")
for i in range(4): A(f"ds_read_b128 {v(AO+4*i,4)}, {vOTr} offset:{128*i}")
tile_out(aWO, aWOt, vYst)
stamp()

def reducer(kind):
    ld = [f"buffer_load_dwordx4 {v(YG+4*i,4)}, {vRg}, {srd(rWS)}, {sGp} offen offset:{1024*i} sc1" for i in range(2)]
    A(f"s_movk_i32 {t4}, 0xff")
    if kind == 'A':
        poll(ld, [v(YG+i) for i in range(8)], depth=args.di)
        for i in range(4): A(f"v_add_f32 {v(R+i)}, {v(YG+i)}, {v(YG+4+i)}")
    else:
        poll(ld + ["s_mov_b64 exec, 0xffff", f"buffer_load_dwordx4 {v(YG+8,4)}, {vRg}, {srd(rWS)}, {sGp} offen offset:2048 sc1", "s_mov_b64 exec, -1"],
             [v(YG+i) for i in range(12)], depth=args.di)
        for i in range(4): A(f"v_add_f32 {v(R+i)}, {v(YG+i)}, {v(YG+4+i)}")
        for i in range(4): A(f"v_add_f32 {v(R+i)}, {v(R+i)}, {v(YG+8+i)}")
    stamp()
    treduce(R)
    A(f"v_bfi_b32 {v(R+1)}, {t4}, {vTag}, {v(R)}"); A(f"v_bfi_b32 {v(R)}, {t4}, {vTag}, {v(R)}")
    A(f"v_permlane16_swap_b32 {v(R)}, {v(R+1)}")
    A(f"v_mov_b32 {v(R+2)}, {v(R)}"); A(f"v_mov_b32 {v(R+3)}, {v(R+1)}")
    A(f"v_permlane32_swap_b32 {v(R)}, {v(R+2)}"); A(f"v_permlane32_swap_b32 {v(R+1)}, {v(R+3)}")
    A(f"buffer_store_dwordx4 {v(R,4)}, {vXPst}, {srd(rWS)}, {sXPo} offen sc1")
    if kind == 'M':
        A(f"s_lshl_b32 {t0}, {sL}, 2"); A(f"s_andn2_b32 {t0}, {t0}, {sRole}")
        A("s_cbranch_scc1 L_fin")
    cl = [f"buffer_store_dwordx4 {v(EM,4)}, {vRg}, {srd(rWS)}, {{so}} offen offset:{1024*i}{{fl}}" for i in range(2)]
    if kind == 'M': cl += ["s_mov_b64 exec, 0xffff", f"buffer_store_dwordx4 {v(EM,4)}, {vRg}, {srd(rWS)}, {{so}} offen offset:2048{{fl}}", "s_mov_b64 exec, -1"]
    pub(*cl)
    if args.xd: A(f"s_sleep {args.xd}")
    poll([f"buffer_load_dwordx2 {v(XG,2)}, {vXPg}, {srd(rWS)}, {sXPo} offen sc1",
          f"buffer_load_dwordx2 {v(XG+2,2)}, {vXPg}, {srd(rWS)}, {sXPo} offen offset:512 sc1"], None, depth=args.dxx,
         chk=[f"v_xor_b32 {v(R+i)}, {vTag}, {v(XG+i)}" for i in range(4)] +
             [f"v_or3_b32 {CK}, {v(R)}, {v(R+1)}, {v(R+2)}", f"v_bitop3_b32 {CK}, {CK}, {v(R+3)}, {t4} bitop3:0xa8", f"v_cmp_ne_u32 vcc, 0, {CK}"])
    stamp()
    Y = v(R)
    A(f"v_add_f32 {v(R)}, {v(R)}, {v(R+2)}"); A(f"v_add_f32 {v(R+1)}, {v(R+1)}, {v(R+3)}")
    A(f"v_permlane32_swap_b32 {v(R)}, {v(R+1)}")
    A(f"v_add_f32 {TT}, {v(R)}, {v(R+1)}"); A(f"v_add_f32 {Y}, {v(R)}, {v(R+1)}")
    A(f"v_permlane16_swap_b32 {Y}, {TT}"); A(f"v_add_f32 {Y}, {Y}, {TT}")
    rbf(Y, Y)
    if kind == 'M':
        A(f"v_add_f32 {Y}, {Y}, {vB2}"); rbf(Y, Y)
    A(f"v_add_f32 {TT}, {Y}, {vXres}")
    A(f"v_add_f32 {v(R+1)}, {Y}, {vXres}")
    A(f"v_add_f32 {Y}, {Y}, {vXres}")
    A("s_mov_b64 exec, -1")
    A(f"v_permlane32_swap_b32 {TT}, {v(R+1)}")
    A(f"v_cvt_pk_bf16_f32 {TT}, {TT}, {v(R+1)}")
    A("s_mov_b64 exec, 0xffff")
    if kind == 'M':
        A(f"s_cmp_lg_u32 {sL}, 0")
        A("s_cbranch_scc1 L_out")
    pub(f"buffer_store_dword {TT}, {vZst}, {srd(rWS)}, {{so}} offen{{fl}}")
    A("s_mov_b64 exec, -1")
    stamp()
    rbf(vXres, Y)
    A(f"v_add_u32 {vZst}, 2304, {vZst}")
    A(f"s_add_u32 {sXPo}, {sXPo}, {XPS}")

A(f"s_bitcmp1_b32 {sRole}, 0")
A("s_cbranch_scc1 L_mlp")
A(f"s_bitcmp1_b32 {sRole}, 1")
A("s_cbranch_scc0 L_next")
A(f"s_cmp_lg_u32 {sL}, 0")
A("s_cbranch_scc1 L_red")
A(f"v_lshlrev_b32 {vXres}, 16, {vXres}"); A(f"v_lshlrev_b32 {vB2}, 16, {vB2}")
zero(YG+8)
A("L_red:")
k0 = nst[0]
reducer('A'); reducer('M')
kr = nst[0]
A("s_branch L_next")
A("L_mlp:")
nst[0] = k0
A(f"s_cmp_lg_u32 {sL}, 0")
A("s_cbranch_scc1 L_m1")
A(f"s_mul_i32 {t0}, {sX}, 18"); A(f"s_add_u32 {t0}, {t0}, {sJ}")
A(f"s_lshl_b32 {t2}, {t0}, 6")
A(f"buffer_load_ushort {vB1}, {vB1}, {srd(rT1)}, 0 offen{NT}")
A(f"s_cmp_ge_u32 {sJ}, 16")
A("s_cbranch_scc1 L_m0b")
if 's' not in args.early + args.mid: slots_touch()
if '1' not in args.early + args.mid: w1_touch()
slots_clear()
if '2' in args.early + args.mid: A("s_branch L_m0d")
A("L_m0b:")
w2_loads()
A("L_m0d:")
A(f"s_cmp_eq_u32 {sW}, 3")
A("s_cbranch_scc1 L_m0c")
A("L_m0a:")
A(f"s_mul_i32 {t0}, {sW}, {192*9216}"); A(f"s_add_u32 {t0}, {t0}, {t2}")
if args.w1dma:
    A(f"v_lshrrev_b32 {TT}, 2, v0"); A(f"v_mul_u32_u24 {TT}, 9216, {TT}"); A(f"v_and_b32 {LS}, 3, v0"); A(f"v_lshl_add_u32 {TT}, {LS}, 4, {TT}")
    A(f"s_mul_i32 {t1}, {sW}, 12288"); A(f"s_add_u32 {t1}, {t1}, {L_K}"); A(f"s_mov_b32 m0, {t1}")
    for i in range(12):
        A(f"buffer_load_dwordx4 {TT}, {srd(rW1)}, {t0} offen{NTM} lds")
        if i < 11: A(f"s_add_u32 {t0}, {t0}, {16*9216}"); A("s_add_u32 m0, m0, 1024")
    A(f"v_lshrrev_b32 {TT}, 4, v0"); A(f"v_lshlrev_b32 {TT}, 8, {TT}"); A(f"v_and_b32 {LS}, 15, v0"); A(f"v_lshl_add_u32 {TT}, {LS}, 2, {TT}"); A(f"v_add_u32 {TT}, {t1}, {TT}")
    A("s_waitcnt vmcnt(0)")
    for i in range(6):
        for hh in range(2):
            for p in range(2):
                A(f"ds_read2_b32 {a(aW1+8*i+4*hh+2*p,2)}, {TT} offset0:{32*p} offset1:{32*p+16}")
            if (i, hh) != (5, 1): A(f"v_add_u32 {TT}, 1024, {TT}")
    A("s_waitcnt lgkmcnt(0)")
else:
    A(f"v_lshrrev_b32 {TT}, 4, v0"); A(f"v_mul_u32_u24 {TT}, {4*9216}, {TT}"); A(f"v_and_b32 {LS}, 15, v0"); A(f"v_lshl_add_u32 {TT}, {LS}, 2, {TT}")
    prev = 0
    for i in range(6):
        for vv in range(8):
            row = 32*i + 16*(vv >> 2) + (vv & 3)
            if row != prev: A(f"s_add_u32 {t0}, {t0}, {(row-prev)*9216}")
            prev = row
            A(f"buffer_load_dword {a(aW1+8*i+vv)}, {TT}, {srd(rW1)}, {t0} offen{NTM}")
A("L_m0c:")
if ST: A("s_memrealtime s[94:95]"); A("s_waitcnt vmcnt(0)"); A("s_memrealtime s[96:97]")
A("s_waitcnt vmcnt(0)")
A(f"v_lshlrev_b32 {vB1}, 16, {vB1}")
A("L_m1:")
zero(D0, 8)
c0 = -2 * 1.4426950408889634 * 0.7978845608028654
A(f"v_mov_b32 {v(E)}, {f32(c0)}")
A(f"v_lshrrev_b32 {v(E+1)}, 5, v0"); A(f"v_lshlrev_b32 {v(E+1)}, 3, {v(E+1)}")
A(f"v_add_u32 {v(E+2)}, {4*2304}, {vMst}")
A(f"s_mul_i32 {t0}, {sL}, {Z3_O-Z1_O}"); A(f"s_add_u32 {t0}, {t0}, {sGp}"); A(f"s_add_u32 {t0}, {t0}, {Z1_O}")
A(f"s_cmp_eq_u32 {sW}, 3")
A("s_cbranch_scc1 L_m2")
poll_proj(vXAm, t0, 6, aW1, args.dz)
A("s_mov_b32 exec_hi, 0")
A(f"ds_write_b128 {vHPw}, {v(D0,4)}")
A("s_mov_b32 exec_hi, -1")
A("s_branch L_m2b")
A("L_m2:")
poll(xs_loads(rWS, t0, ' sc1'), [v(XS+i) for i in range(9)], depth=args.dz)
stats(32)
A("L_m2b:")
stamp()
A("s_waitcnt lgkmcnt(0)")
A("s_barrier")
H = TM + 12
A(f"ds_read2_b32 {v(H,2)}, {vHPr} offset0:0 offset1:2")
A(f"ds_read2_b32 {v(H+2,2)}, {vHPr} offset0:128 offset1:130")
A(f"ds_read_b32 {v(H+4)}, {vHPr} offset:1024"); A(f"ds_read_b32 {v(H+5)}, {vHPr} offset:1032")
A(f"ds_read_b64 {v(TM,2)}, {v(E+1)} offset:{L_STAT+32}")
zero(D0)
A("s_waitcnt lgkmcnt(0)")
A(f"v_add_f32 {v(H)}, {v(H)}, {v(H+2)}"); A(f"v_add_f32 {v(H+1)}, {v(H+1)}, {v(H+3)}")
A(f"v_add_f32 {v(H)}, {v(H)}, {v(H+4)}"); A(f"v_add_f32 {v(H+1)}, {v(H+1)}, {v(H+5)}")
A(f"v_fma_f32 {v(H)}, -{S_}, {v(H+1)}, {v(H)}")
A(f"v_mul_f32 {v(H)}, {v(H)}, {Q_}")
rbf(v(H), v(H))
A(f"v_add_f32 {v(H)}, {v(H)}, {vB1}")
rbf(v(H), v(H))
A(f"v_mul_f32 {TT}, {v(H)}, {v(H)}")
A(f"v_fmac_f32 {v(E)}, {f32(c0*0.044715)}, {TT}")
A(f"v_mul_f32 {TT}, {v(E)}, {v(H)}")
A(f"v_exp_f32 {TT}, {TT}")
A(f"v_add_f32 {TT}, 1.0, {TT}")
A(f"v_rcp_f32 {TT}, {TT}")
A(f"v_mul_f32 {TT}, {TT}, {v(H)}")
A(f"v_cvt_pk_bf16_f32 {TT}, {TT}, 0")
A(f"ds_write2_b32 {vPTw}, {TT}, {TT} offset1:5")
for i in range(4): A(f"ds_read_b128 {v(AO+4*i,4)}, {vPTr} offset:{128*i}")
stamp()
tile_out(aW2, aW2t, vMst)
A("L_m4:")
stamp()
nst[0] = kr
A("L_next:")
A(f"s_cmp_lg_u32 {sL}, 0")
A("s_cbranch_scc1 L_fin")
if ST:
    A("s_waitcnt lgkmcnt(0)")
    for k in range(14): A(f"v_writelane_b32 {v(SV)}, s{72+2*k}, {1+k}")
    for k in range(14): A(f"s_mov_b64 s[{72+2*k}:{73+2*k}], 0")
A(f"s_mov_b32 {sL}, 1")
A(f"s_add_u32 {sXoff}, {sGp}, {Z2_O}")
A(f"v_add_u32 {vQPg}, {QP1_O-QP_O}, {vQPg}"); A(f"v_add_u32 {vQPst}, {QP1_O-QP_O}, {vQPst}")
A(f"v_add_u32 {vQPg2}, {QP1_O-QP_O}, {vQPg2}")
for r in (vSTst, vSTg, vSTm): A(f"v_add_u32 {r}, {ST1_O-ST_O}, {r}")
A("s_branch L_layer")
A("L_out:")
A(f"buffer_store_dword {TT}, {vZo}, {srd(rOUT)}, 0 offen")
A(f"s_mov_b32 {t0}, {EP_O}")
A("s_mov_b64 exec, 1")
A(f"buffer_store_dword {FN}, {vL16}, {srd(rWS)}, {t0} offen")
if ST: A(f"s_memrealtime s[{72+2*13}:{73+2*13}]")
A("L_fin:")
if args.enc:
    j0, j1 = [int(x) for x in args.encj.split(',')]
    A("s_memrealtime s[66:67]")
    A("s_waitcnt lgkmcnt(0)")
    if args.enc <= 14: A(f"v_readlane_b32 {t0}, {v(SV)}, {args.enc}"); A("s_nop 3")
    else: A(f"s_mov_b32 {t0}, s{72+2*(args.enc-15)}")
    A(f"s_cmp_eq_u32 {t0}, 0"); A("s_cbranch_scc1 L_enc2")
    A(f"s_cmp_lt_u32 {sJ}, {j0}"); A("s_cbranch_scc1 L_enc2")
    A(f"s_cmp_ge_u32 {sJ}, {j1}"); A("s_cbranch_scc1 L_enc2")
    A(f"s_sub_u32 {t0}, {t0}, s100"); A(f"s_min_u32 {t0}, {t0}, 10000"); A(f"s_lshl_b32 {t0}, {t0}, 3"); A(f"s_add_u32 {t0}, {t0}, s66")
    A("L_enc:")
    A("s_sleep 8")
    A("s_memrealtime s[64:65]"); A("s_waitcnt lgkmcnt(0)")
    A(f"s_sub_u32 {t1}, s64, {t0}"); A(f"s_cmp_lt_i32 {t1}, 0"); A("s_cbranch_scc1 L_enc")
    A("L_enc2:")
if ST:
    A("s_mov_b64 exec, -1")
    A("s_waitcnt lgkmcnt(0)")
    A(f"v_writelane_b32 {v(SV)}, s100, 0")
    for k in range(14): A(f"v_writelane_b32 {v(SV)}, s{72+2*k}, {15+k}")
    A(f"s_lshl_b32 {t0}, s2, 2"); A(f"s_add_u32 {t0}, {t0}, {sW}"); A(f"s_lshl_b32 {t0}, {t0}, 8"); A(f"s_add_u32 {t0}, {t0}, {STAMP_O}")
    A(f"v_mov_b32 {v(SV+1)}, 0")
    A(f"v_lshlrev_b32 {v(SV+2)}, 3, v0")
    A("s_mov_b32 exec_hi, 0")
    A(f"buffer_store_dwordx2 {v(SV,2)}, {v(SV+2)}, {srd(rWS)}, {t0} offen")
A("L_end:")
A("s_endpgm")
A("L_af2:")
A(f"s_cmp_eq_u32 {sMode}, {FB_O}")
A("s_cbranch_scc1 L_g2")
A(f"s_add_u32 {sMode}, {sMode}, 1")
A(f"s_lshl_b32 {t2}, {sX}, 10"); A(f"s_add_u32 {t2}, {t2}, {FL_O}")
A(f"s_lshl_b32 {t4}, {sL}, 2"); A(f"s_add_u32 {t1}, {t4}, {t2}")
A(f"s_cmp_lt_u32 {sMode}, {1 if args.forcefb else 40}")
A("s_cbranch_scc1 L_af5")
A("s_mov_b64 exec, 1")
A(f"buffer_store_dword {FN}, {vL16}, {srd(rWS)}, {t1} offen sc1")
A("s_mov_b32 exec_lo, -1")
A(f"buffer_load_dwordx4 {v(FG,4)}, {vL16}, {srd(rWS)}, {t2} offen sc1")
A("s_mov_b32 exec_hi, -1")
A("s_waitcnt vmcnt(0)")
flags_diff()
A(f"v_and_b32 {TT}, 0x0fffffff, {CK}")
A(f"v_cmp_ne_u32 vcc, 0, {TT}")
A("s_cmp_lg_u32 vcc_lo, 0")
A("s_cbranch_scc1 L_af5")
A(f"v_cmp_ne_u32 vcc, 0, {CK}")
A("s_cmp_lg_u32 vcc_lo, 0")
if args.forcefb: A("s_cmp_eq_u32 0, 0")
A("s_cbranch_scc1 L_spread")
A("L_af5:")
A(f"s_sub_u32 {sTO}, {sTO}, 1")
A("s_cbranch_scc0 L_g4")
A(f"s_mov_b32 {sTO}, 0")
A(f"s_mov_b32 {sMode}, 0")
A("s_branch L_g2")
A("L_spread:")
A(f"s_mov_b32 {sMode}, {FB_O}")
A(f"s_add_u32 {sGp}, {sGf}, {FB_O}")
empty_share(sGp, ' sc1')
A("s_mov_b32 exec_hi, 0")
A(qp_store.format(so=sGp, fl=' sc1'))
A("s_waitcnt vmcnt(0)")
A("s_mov_b64 exec, 1")
A(f"buffer_store_dword {FN}, {vL16}, {srd(rWS)}, {t1} offen offset:512 sc1")
A("s_mov_b32 exec_lo, -1")
A("L_sp1:")
A("s_mov_b32 exec_hi, 0")
A(f"buffer_load_dwordx4 {v(FG,4)}, {vL16}, {srd(rWS)}, {t2} offen offset:512 sc1")
A("s_mov_b32 exec_hi, -1")
A("s_waitcnt vmcnt(0)")
flags_diff()
A(f"v_and_b32 {CK}, 0x0fffffff, {CK}")
A(f"v_cmp_ne_u32 vcc, 0, {CK}")
A("s_cmp_eq_u32 vcc_lo, 0")
A("s_cbranch_scc1 L_g4")
A("s_sleep 4")
A(timeout("L_sp1", "L_g4"))
for t in tail: A(t)
A.raw('L_codeend:')
A.raw('.section .rodata,"a"')
A.raw(".p2align 6")
A.raw(f".amdhsa_kernel {NAME}_kernel")
A.raw(f"  .amdhsa_next_free_vgpr {ACC+NACC}")
A.raw("  .amdhsa_next_free_sgpr 102")
A.raw(f"  .amdhsa_accum_offset {ACC}")
A.raw("  .amdhsa_group_segment_fixed_size 0")
A.raw("  .amdhsa_kernarg_size 104")
A.raw("  .amdhsa_user_sgpr_count 2")
A.raw("  .amdhsa_user_sgpr_kernarg_segment_ptr 1")
A.raw("  .amdhsa_system_sgpr_workgroup_id_x 1")
A.raw(".end_amdhsa_kernel")
txt = A.text()
if args.cyc: txt = txt.replace('s_memrealtime', 's_memtime')
sys.stdout.write(txt)
```

```python
import sys, argparse, struct
sys.path.insert(0, 'dev')
from asmlib import Asm
NAME = "interleave_layers__sliding_block_cached__dense_activation_gelu__decode"
ap = argparse.ArgumentParser()
ap.add_argument('--stamps', action='store_true')
ap.add_argument('--pro', action='store_true')
ap.add_argument('--cyc', action='store_true')
ap.add_argument('--xt', type=int, default=0)
ap.add_argument('--xd', type=int, default=11)
ap.add_argument('--enc', type=int, default=0)
ap.add_argument('--encj', default='0,32')
ap.add_argument('--only', default='')
ap.add_argument('--pQ', type=int, default=4)
ap.add_argument('--code', type=int, default=1)
ap.add_argument('--early', default='0')
ap.add_argument('--mid', default='')
ap.add_argument('--w1dma', type=int, default=0)
ap.add_argument('--near', type=int, default=1)
ap.add_argument('--p2', default='sy')
ap.add_argument('--vw', type=int, default=1)
ap.add_argument('--di', type=int, default=1)
ap.add_argument('--dz', type=int, default=1)
ap.add_argument('--dxx', type=int, default=1)
ap.add_argument('--nt', default='k,v')
ap.add_argument('--forcefb', action='store_true')
args = ap.parse_args()
def ntf(c): return ' nt' if c in args.nt.split(',') else ''
NT = ntf('s'); NTK = ntf('k'); NTV = ntf('v'); NTQ = ntf('q'); NTO = ntf('o'); NTM = ntf('m'); NT2 = ntf('2')
ST = args.stamps

def f32(x): return '0x%08x' % struct.unpack('<I', struct.pack('<f', x))[0]

CLR = 1792
OP_O = 0
Y_O = OP_O + 131072
ST_O = Y_O + 82944
ST1_O = ST_O + 2048
Z1_O = ST1_O + 2048
Z2_O = Z1_O + 2304
Z3_O = Z2_O + 2304
assert Z3_O + 2304 <= 128 * CLR
QP_O = 128 * CLR
QP1_O = QP_O + 65536
FF_O = QP1_O + 65536
GB = FF_O + 1024
FB_O = 8 * GB
XP_O = 6 << 20
assert XP_O >= 16 * GB
XPS = 16384
FL_O = XP_O + 12 * 262144
EP_O = FL_O + 8 * 1024
STAMP_O = 0x8000000
L_NEAR = 8176
L_X = 640
L_QT, L_STAT, L_OT, L_PT, L_HP, L_K, L_WQ, L_SIZE = 0, 512, 1024, 2560, 8192, 16384, 49152, 67584

rK, rV, rWQ, rWO, rW1, rW2, rWS, rX, rOUT, rT1, rT2 = 4, 8, 12, 16, 20, 24, 28, 32, 36, 44, 48
sTask, kv0, kv1, sFlag = 's40', 's41', 's42', 's43'
def srd(n): return f"s[{n}:{n+3}]"
sW, sX, sJ, sGf, sGp, sXoff, sTO, sMode, sL, sWo = [f"s{i}" for i in range(52, 62)]
t0, t1, t2, t3, t4, t5 = [f"s{i}" for i in range(62, 68)]
mLO8 = "s[68:69]"; mROW = "s[70:71]"
MXA = "0x00330033"
sRole = "s3"
(vL4, vL16, vIdxD, vIdxP, vIdxS, vXAq, vXAm, vQPst, vQPg, vL128, vQTw, vQTr, vPTw, vPTr, vSTst, vOPst, vSTg, vOPg, vOTw, vOTr,
 vYst, vMst, vHPw, vSTm, vRg, vSTATr, vXPst, vXPg, vZst, vXres, vB2, vB1, vCq, vZo, vXS1, vXS2, vWrow, vHPr, vOnes) = [f"v{i}" for i in range(1, 40)]
XA, D0, D1, DP, AO, SG, YG, XG, XS, FG, TM, EM, KA, SV, OG, QG = 40, 64, 68, 72, 76, 104, 120, 132, 136, 148, 152, 176, 180, 184, 188, 196
vQPg2 = 'v92'
ACC = 212
aWQ, aK, aV, aWO, aW1, aW2, aWOt, NACC = 0, 24, 56, 88, 120, 168, 200, 232
aW2t = aW1
def v(n, k=1): return f"v{n}" if k == 1 else f"v[{n}:{n+k-1}]"
def a(n, k=1): return f"a{n}" if k == 1 else f"a[{n}:{n+k-1}]"
CK = v(TM + 23); FN = v(TM + 22); vTag = v(TM + 21); DUM = v(TM + 20)
sEp, sXPo = kv0, kv1

A = Asm()
tail = []
nst = [0]
def pstamp(k):
    if args.pro: A(f"s_memrealtime s[{72+2*k}:{73+2*k}]")
def stamp():
    if ST and not args.pro:
        k = nst[0]; nst[0] += 1
        assert k < 13
        if ONLY is None or k in ONLY: A(f"s_memrealtime s[{72+2*k}:{73+2*k}]")
ONLY = set(int(x) for x in args.only.split(',')) if args.only else None
def lg(n): return 0 if (ST and ONLY is None) else n
def exec_xa(): return [f"s_mov_b32 exec_lo, {MXA}", f"s_mov_b32 exec_hi, {MXA}"]

def check_text(regs):
    regs = list(regs); o = []
    if len(regs) == 1: cur = regs[0]
    else:
        take = regs[:3]; regs = regs[3:]
        o.append(f"v_max3_u32 {CK}, {take[0]}, {take[1]}, {take[2]}" if len(take) == 3 else f"v_max_u32 {CK}, {take[0]}, {take[1]}")
        while regs:
            take = regs[:2]; regs = regs[2:]
            o.append(f"v_max3_u32 {CK}, {CK}, {take[0]}, {take[1]}" if len(take) == 2 else f"v_max_u32 {CK}, {CK}, {take[0]}")
        cur = CK
    o.append(f"v_cmp_eq_u32 vcc, -1, {cur}")
    return o
def nvm(loads): return sum(1 for l in loads if l.startswith('buffer_'))
def timeout(again, ok): return f"s_sub_u32 {sTO}, {sTO}, 1\ns_cbranch_scc0 {again}\ns_mov_b32 {sTO}, 0\ns_waitcnt vmcnt(0) lgkmcnt(0)\ns_branch {ok}"

def poll(loads, regs, primed=False, extra_wait="", chk=None, site=''):
    lp = A.newlabel('L_poll'); to = A.newlabel('L_to'); ok = A.newlabel('L_ok'); en = A.newlabel('L_in')
    if primed:
        A(f"s_waitcnt vmcnt(0){extra_wait}")
        for l in (chk or check_text(regs)): A(l)
        A(f"s_cbranch_vccnz {lp}")
        A(f"{ok}:")
        tail.append(f"{lp}:\n" + "\n".join(loads) + f"\ns_sub_u32 {sTO}, {sTO}, 1\ns_cbranch_scc1 {to}\ns_waitcnt vmcnt(0){extra_wait}\n" +
                    "\n".join(chk or check_text(regs)) + f"\ns_cbranch_vccnz {lp}\ns_branch {ok}\n{to}:\ns_mov_b32 {sTO}, 0\ns_waitcnt vmcnt(0) lgkmcnt(0)\ns_branch {ok}")
        return
    two = site and site in args.p2
    if two:
        for l in loads: A(l)
        A("s_sleep 2")
    A(f"{lp}:")
    for l in loads: A(l)
    A(f"s_sub_u32 {sTO}, {sTO}, 1")
    A(f"s_cbranch_scc1 {to}")
    A(f"s_waitcnt vmcnt({nvm(loads) if two else 0}){extra_wait}")
    for l in (chk or check_text(regs)): A(l)
    A(f"s_cbranch_vccnz {lp}")
    A(f"{ok}:")
    tail.append(f"{to}:\ns_mov_b32 {sTO}, 0\ns_waitcnt vmcnt(0) lgkmcnt(0)\ns_branch {ok}")

def sm(d, av, br, idx): A(f"v_smfmac_f32_16x16x64_bf16 {v(d,4)}, {v(av,4)}, {a(br,8)}, {idx}")
def xa_loads(rr, voff, so, n, fl, short_last=False):
    o = exec_xa()
    for i in range(n):
        if short_last and i == n - 1: o.append("s_mov_b64 exec, 0x33")
        o.append(f"buffer_load_dwordx4 {v(XA+4*i,4)}, {voff}, {srd(rr)}, {so} offen offset:{64*i}{fl}")
    return o + ["s_mov_b64 exec, -1"]
def poll_proj(voff, so, n, wbase, short_last=False):
    loads = xa_loads(rWS, voff, so, n, ' sc1', short_last)
    lds = [l for l in loads if l.startswith('buffer_')]
    lp = A.newlabel('L_poll'); rt = A.newlabel('L_retry'); ok = A.newlabel('L_ok'); gen = A.newlabel('L_nan')
    for l in loads: A(l)
    A(f"{lp}:")
    A("s_waitcnt vmcnt(0)")
    for i in range(n): sm(D0, XA+4*i, wbase+8*i, vIdxD)
    for l in loads: A(l)
    A(f"v_cmp_u_f32 vcc, {v(D0)}, {v(D0+1)}")
    A(f"s_cbranch_vccnz {rt}")
    A(f"{ok}:")
    z = "\n".join(f"v_mov_b32 {v(D0+i)}, 0" for i in range(4))
    mm = "\n".join(f"v_smfmac_f32_16x16x64_bf16 {v(D0,4)}, {v(XA+4*i,4)}, {a(wbase+8*i,8)}, {vIdxD}" for i in range(n))
    tail.append(f"{rt}:\n{z}\ns_sub_u32 {sTO}, {sTO}, 1\ns_cbranch_scc1 {gen}\ns_and_b32 {t5}, {sTO}, 15\ns_cbranch_scc1 {lp}\n" +
                "\n".join(check_text([v(XA+i) for i in range(4*n)])) + f"\ns_cbranch_vccnz {lp}\n{gen}:\ns_max_i32 {sTO}, {sTO}, 0\n{mm}\ns_nop 7\ns_branch {ok}")

def pub(*fmts):
    for f in fmts: A(f.format(so=sGf, fl=''))
    sl = A.newlabel('L_slow'); bk = A.newlabel('L_back')
    A(f"s_cmp_lg_u32 {sMode}, 0")
    A(f"s_cbranch_scc1 {sl}")
    A(f"{bk}:")
    tail.append(f"{sl}:\n" + "\n".join(f.format(so=sGp, fl=' sc1') for f in fmts) + f"\ns_nop 1\ns_branch {bk}")

def rbf(dst, src):
    A(f"v_cvt_pk_bf16_f32 {dst}, {src}, {src}")
    A(f"v_and_b32 {dst}, 0xffff0000, {dst}")
def treduce(r):
    A(f"v_permlane32_swap_b32 {v(r)}, {v(r+2)}")
    A(f"v_permlane32_swap_b32 {v(r+1)}, {v(r+3)}")
    A(f"v_add_f32 {v(r)}, {v(r)}, {v(r+2)}")
    A(f"v_add_f32 {v(r+1)}, {v(r+1)}, {v(r+3)}")
    A(f"v_permlane16_swap_b32 {v(r)}, {v(r+1)}")
    A(f"v_add_f32 {v(r)}, {v(r)}, {v(r+1)}")
    A(f"v_add_f32_dpp {v(r)}, {v(r)}, {v(r)} row_ror:8 row_mask:0xf bank_mask:0xf")
S_, Q_ = v(TM), v(TM+1)
def stats(slot_off, write=True, early=None, late=None):
    S, Q = S_, Q_
    A(f"v_mov_b32 {S}, 0"); A(f"v_mov_b32 {Q}, 0")
    for i in range(9):
        A(f"v_dot2c_f32_bf16 {S}, {v(XS+i)}, {vOnes}")
        A(f"v_dot2c_f32_bf16 {Q}, {v(XS+i)}, {v(XS+i)}")
        if i == 2 and early: early()
    A(f"v_lshrrev_b32 {v(TM+2)}, 5, v0"); A(f"v_lshlrev_b32 {v(TM+2)}, 3, {v(TM+2)}")
    A(f"v_permlane16_swap_b32 {S}, {Q}")
    A(f"v_add_f32 {S}, {S}, {Q}")
    for k in (8, 4, 2, 1):
        A(f"v_add_f32_dpp {S}, {S}, {S} row_ror:{k} row_mask:0xf bank_mask:0xf")
    A(f"v_mul_f32 {Q}, {f32(1/576)}, {S}")
    A(f"v_mul_f32 {S}, {f32(1/576)}, {S}")
    if late: late()
    A(f"v_permlane16_swap_b32 {S}, {Q}")
    A(f"v_fma_f32 {Q}, -{S}, {S}, {Q}")
    A(f"v_max_f32 {Q}, 0, {Q}")
    A(f"v_cvt_pk_bf16_f32 {Q}, {S}, {Q}")
    A(f"v_lshlrev_b32 {S}, 16, {Q}")
    A(f"v_and_b32 {Q}, 0xffff0000, {Q}")
    A(f"v_add_f32 {Q}, {f32(1e-5)}, {Q}")
    rbf(Q, Q)
    A(f"v_sqrt_f32 {Q}, {Q}")
    rbf(Q, Q)
    A(f"v_rcp_f32 {Q}, {Q}")
    if write: A(f"ds_write_b64 {v(TM+2)}, {v(TM,2)} offset:{L_STAT+slot_off}")
def zero(r, n=4):
    for i in range(n): A(f"v_mov_b32 {v(r+i)}, 0")
def xs_loads(rr, so, fl):
    return [f"buffer_load_dwordx4 {v(XS,4)}, {vXS1}, {srd(rr)}, {so} offen{fl}",
            f"buffer_load_dwordx4 {v(XS+4,4)}, {vXS1}, {srd(rr)}, {so} offen offset:512{fl}",
            f"buffer_load_dword {v(XS+8)}, {vXS2}, {srd(rr)}, {so} offen offset:1024{fl}"]

A.raw(f"; @launch grid=(256,1,1) block=(256,1,1) lds={L_SIZE}")
A.raw('.amdgcn_target "amdgcn-amd-amdhsa--gfx950"')
A.raw(".text")
A.raw(f".globl {NAME}_kernel")
A.raw(".p2align 8")
A.raw(f".type {NAME}_kernel,@function")
A.raw(f"{NAME}_kernel:")
if ST:
    A("s_memrealtime s[100:101]")
    for k in range(14): A(f"s_mov_b64 s[{72+2*k}:{73+2*k}], 0")
A("s_cmp_ge_u32 s2, 256")
A("s_cbranch_scc1 L_end")
for r, off in ((rWS, 96), (rX, 0), (rWQ, 24), (rK, 8), (rV, 16), (rWO, 32)):
    A(f"s_load_dwordx2 s[{r}:{r+1}], s[0:1], {off}")
A(f"v_lshrrev_b32 {v(TM)}, 6, v0")
A(f"v_and_b32 v0, 63, v0")
A(f"v_readfirstlane_b32 {sW}, {v(TM)}")
for r, n in ((rX, 2304), (rWQ, 4718592), (rK, 33554432), (rV, 33554432), (rWS, 268435456), (rWO, 4718592)):
    A(f"s_mov_b32 s{r+2}, {n}"); A(f"s_mov_b32 s{r+3}, 0x20000")
A(f"s_and_b32 {sX}, s2, 7")
A(f"s_lshr_b32 {sJ}, s2, 3")
A("s_mov_b32 s68, 0x00ff00ff"); A("s_mov_b32 s69, 0x00ff00ff")
G, C, B2 = v(TM+3), v(TM+4), v(TM+5)
A(f"v_lshrrev_b32 {G}, 4, v0")
A(f"v_and_b32 {C}, 15, v0")
A(f"v_lshlrev_b32 {vL16}, 4, v0")
A(f"v_lshlrev_b32 {vL128}, 7, v0")
for i in range(4): A(f"v_mov_b32 {v(EM+i)}, -1")
A(f"s_lshr_b32 {t0}, {sJ}, 4"); A(f"s_lshl_b32 {t3}, {sX}, 1"); A(f"s_add_u32 {t0}, {t0}, {t3}")
A(f"s_bfe_u32 {t1}, {sJ}, 0x10003")
A(f"s_and_b32 {t2}, {sJ}, 7")
A(f"s_mul_i32 {sGf}, {sX}, {GB}")
A(f"v_bfe_u32 {B2}, v0, 2, 1")
A(f"v_mul_u32_u24 {vXAm}, 1152, {B2}")
A(f"v_lshl_add_u32 {vXAm}, {G}, 4, {vXAm}")
A(f"s_mul_i32 {t4}, {t2}, 144")
A(f"v_add_u32 {vXAq}, {t4}, {vXAm}")
for i in range(12): A(f"v_mov_b32 {v(XA+i)}, 0x3f803f80")
A(f"v_lshlrev_b32 {v(TM+6)}, 13, {G}")
A(f"v_lshl_add_u32 {v(TM+6)}, {C}, 4, {v(TM+6)}")
A(f"s_mul_i32 {t3}, {t2}, 18"); A(f"s_add_u32 {t3}, {t3}, {sW}"); A(f"s_lshl_b32 {t3}, {t3}, 15")
A(f"s_lshl_b32 {t4}, {t0}, 9"); A(f"s_add_u32 {t3}, {t3}, {t4}"); A(f"s_lshl_b32 {t4}, {t1}, 8"); A(f"s_add_u32 {t3}, {t3}, {t4}")
A(f"s_lshl_b32 {t4}, {sW}, 10"); A(f"s_add_u32 m0, {t4}, {L_WQ}")
A(f"s_lshl_b32 {kv0}, {t1}, 24"); A(f"s_lshl_b32 {t4}, {t0}, 20"); A(f"s_add_u32 {kv0}, {kv0}, {t4}")
A(f"s_lshl_b32 {t4}, {t2}, 15"); A(f"s_add_u32 {kv0}, {kv0}, {t4}")
A(f"s_lshl_b32 {t4}, {sW}, 13"); A(f"s_add_u32 {kv0}, {kv0}, {t4}")
A(f"s_add_u32 {kv0}, {kv0}, {3072*256}"); A(f"s_add_u32 {kv1}, {kv0}, 4096")
A(f"v_xor_b32 {v(TM+7)}, {C}, {G}")
A(f"v_lshlrev_b32 {v(TM+7)}, 4, {v(TM+7)}")
A(f"v_lshl_add_u32 {v(KA)}, {G}, 8, {v(TM+7)}")
for i in range(1, 4): A(f"v_xor_b32 {v(KA+i)}, {64*i}, {v(KA)}")
A(f"s_lshl_b32 {sL}, {sJ}, 2"); A(f"s_add_u32 {sL}, {sL}, {sW}")
A(f"s_lshl_b32 {t4}, {sL}, 9"); A(f"s_add_u32 {t4}, {t4}, {QP_O}")
A(f"v_add_u32 {vQPst}, {t4}, {vL16}")
A(f"s_mov_b32 {t5}, {EP_O}")
A("s_waitcnt lgkmcnt(0)")
pstamp(0)
A("s_mov_b64 exec, 1")
A(f"buffer_load_dword {FN}, {vL16}, {srd(rWS)}, {t5} offen{NT}")
A("s_mov_b64 exec, -1")
def empty_share(base, fl):
    A(f"s_mul_i32 {t5}, {sL}, {CLR}"); A(f"s_add_u32 {t5}, {t5}, {base}")
    A(f"buffer_store_dwordx4 {v(EM,4)}, {vL16}, {srd(rWS)}, {t5} offen{fl}")
    A(f"buffer_store_dwordx4 {v(EM,4)}, {vL16}, {srd(rWS)}, {t5} offen offset:{CLR-1024}{fl}")
A(f"s_cmp_lg_u32 {sW}, 3")
A("s_cbranch_scc1 L_pro2")
A(f"v_lshrrev_b32 {v(TM+8)}, 5, v0"); A(f"v_and_b32 {v(TM+9)}, 31, v0")
A(f"v_mul_u32_u24 {vXS1}, 1152, {v(TM+8)}"); A(f"v_lshl_add_u32 {vXS2}, {v(TM+9)}, 2, {vXS1}"); A(f"v_lshl_add_u32 {v(TM+10)}, {v(TM+9)}, 3, {vXS1}"); A(f"v_lshl_add_u32 {vXS1}, {v(TM+9)}, 4, {vXS1}")
for l in xs_loads(rX, 0, NT): A(l)
A(f"s_mul_i32 {t5}, {t2}, 144")
A(f"buffer_load_dwordx2 {v(XG,2)}, {v(TM+10)}, {srd(rX)}, {t5} offen{NT}")
A("L_pro2:")
for n in range(5):
    if n == 4:
        A(f"s_cmp_ge_u32 {sW}, 2"); A("s_cbranch_scc1 L_pro1")
    A(f"buffer_load_dwordx4 {v(TM+6)}, {srd(rWQ)}, {t3} offen{NTQ} lds")
    if n < 4: A(f"s_add_u32 {t3}, {t3}, {16*8192}"); A("s_add_u32 m0, m0, 4096")
A("L_pro1:")
empty_share(sGf, '')
A(f"s_lshl_b32 {t4}, {sW}, 13"); A(f"s_add_u32 m0, {t4}, {L_K}")
for i in range(8):
    if i == 4: A(f"s_add_u32 m0, m0, 4096")
    A(f"buffer_load_dwordx4 {v(KA+i%4)}, {srd(rK)}, {kv0 if i < 4 else kv1} offen offset:{1024*(i%4)}{NTK} lds")

def constants():
    A(f"v_mul_u32_u24 {vWrow}, 1152, {G}")
    A(f"v_lshl_add_u32 {vWrow}, {C}, 4, {vWrow}")
    A(f"s_cmp_lt_u32 {sJ}, 18"); A(f"s_cselect_b32 {sRole}, 1, 0")
    A(f"s_cmp_ge_u32 {sJ}, 20"); A(f"s_cselect_b32 {t4}, 2, 0"); A(f"s_cmp_lt_u32 {sW}, 3"); A(f"s_cselect_b32 {t4}, {t4}, 0"); A(f"s_or_b32 {sRole}, {sRole}, {t4}")
    A(f"s_sub_u32 {sTask}, {sJ}, 20"); A(f"s_mul_i32 {sTask}, {sTask}, 3"); A(f"s_add_u32 {sTask}, {sTask}, {sW}"); A(f"s_min_u32 {sTask}, {sTask}, 35")
    A(f"s_lshl_b32 {t3}, {sX}, 4"); A(f"s_and_b32 {t4}, {sJ}, 15"); A(f"s_add_u32 {sWo}, {t3}, {t4}"); A(f"s_mul_i32 {sWo}, {sWo}, {32*1152}")
    A(f"s_lshl_b32 {t4}, {sW}, 8"); A(f"s_add_u32 {sWo}, {sWo}, {t4}")
    for r, n in ((rW1, 5308416), (rW2, 5308416), (rOUT, 2304), (rT1, 9216), (rT2, 1152)):
        A(f"s_mov_b32 s{r+2}, {n}"); A(f"s_mov_b32 s{r+3}, 0x20000")
    A("s_mov_b32 s70, 0xffff0000"); A("s_mov_b32 s71, 0xffff0000")
    A(f"v_lshlrev_b32 {vL4}, 2, v0")
    for i in range(12, 24): A(f"v_mov_b32 {v(XA+i)}, 0x3f803f80")
    A(f"s_lshl_b32 {t4}, {sW}, 13"); A(f"s_add_u32 {t4}, {t4}, {L_K}")
    A(f"v_lshl_add_u32 {v(KA)}, {C}, 8, {v(TM+7)}"); A(f"v_add_u32 {v(KA)}, {t4}, {v(KA)}")
    for i in range(1, 4): A(f"v_xor_b32 {v(KA+i)}, {64*i}, {v(KA)}")
    T_ = [v(TM+8+i) for i in range(10)]
    A(f"v_and_b32 {T_[0]}, 1, v0")
    A(f"v_mul_u32_u24 {vIdxP}, 0xaaaa, {T_[0]}"); A(f"v_add_u32 {vIdxP}, 0x4444, {vIdxP}")
    A(f"v_and_b32 {T_[1]}, 3, v0")
    A(f"v_mul_u32_u24 {vIdxS}, 0x5555, {T_[1]}")
    A(f"v_bfe_u32 {T_[2]}, v0, 4, 1")
    A(f"v_bfe_u32 {T_[3]}, v0, 2, 2")
    A(f"v_bfe_u32 {T_[4]}, v0, 3, 1")
    A(f"v_lshrrev_b32 {T_[5]}, 5, v0")
    A(f"v_and_b32 {T_[8]}, 7, v0")
    A(f"v_and_b32 {T_[9]}, 31, v0")
    A(f"s_lshr_b32 {t3}, {sJ}, 4")
    A(f"s_lshr_b32 {t5}, {sJ}, 3")
    A(f"s_lshl_b32 {t3}, {t3}, 1"); A(f"s_lshr_b32 {t4}, {sW}, 1"); A(f"s_add_u32 {t3}, {t3}, {t4}"); A(f"s_lshl_b32 {t3}, {t3}, 14")
    A(f"s_and_b32 {t4}, {sW}, 1"); A(f"s_lshl_b32 {t4}, {t4}, 10"); A(f"s_add_u32 {t3}, {t3}, {t4}")
    A(f"s_lshl_b32 {t4}, {t1}, 8"); A(f"s_add_u32 {t3}, {t3}, {t4}"); A(f"s_add_u32 {t3}, {t3}, {QP_O}")
    A(f"v_lshl_add_u32 {vQPg}, {T_[5]}, 4, {T_[2]}"); A(f"v_lshlrev_b32 {vQPg}, 9, {vQPg}"); A(f"v_lshl_add_u32 {vQPg}, {C}, 4, {vQPg}"); A(f"v_add_u32 {vQPg}, {t3}, {vQPg}")
    A(f"v_add_u32 {vQPg2}, 4096, {vQPg}")
    A(f"s_and_b32 {t3}, {sW}, 1"); A(f"s_lshl_b32 {t3}, {t3}, 8"); A(f"s_lshr_b32 {t4}, {sW}, 1"); A(f"s_lshl_b32 {t4}, {t4}, 7"); A(f"s_add_u32 {t3}, {t3}, {t4}")
    A(f"v_bfe_u32 {T_[6]}, v0, 3, 2"); A(f"v_bfe_u32 {T_[7]}, v0, 1, 2")
    A(f"v_lshlrev_b32 {vQTw}, 5, {T_[6]}"); A(f"v_lshl_add_u32 {vQTw}, {T_[0]}, 4, {vQTw}"); A(f"v_lshl_add_u32 {vQTw}, {T_[7]}, 2, {vQTw}")
    A(f"v_lshl_add_u32 {vQTw}, {T_[5]}, 1, {vQTw}"); A(f"v_add_u32 {vQTw}, {t3}, {vQTw}")
    A(f"v_lshlrev_b32 {vQTr}, 5, {G}"); A(f"v_lshl_add_u32 {vQTr}, {T_[4]}, 7, {vQTr}"); A(f"v_lshl_add_u32 {vQTr}, {T_[0]}, 4, {vQTr}")
    A(f"v_mul_u32_u24 {vOTr}, 640, {T_[4]}"); A(f"v_lshl_add_u32 {vOTr}, {G}, 5, {vOTr}"); A(f"v_lshl_add_u32 {vOTr}, {B2}, 4, {vOTr}")
    A(f"s_mul_i32 {t3}, {sW}, 1280"); A(f"s_add_u32 {t3}, {t3}, {L_PT}")
    A(f"v_add_u32 {vPTr}, {t3}, {vOTr}"); A(f"v_add_u32 {vOTr}, {L_OT}, {vOTr}")
    A(f"v_bfe_u32 {T_[6]}, v0, 1, 4")
    A(f"v_mul_u32_u24 {vPTw}, 640, {T_[5]}"); A(f"v_lshl_add_u32 {vPTw}, {T_[6]}, 5, {vPTw}"); A(f"v_lshl_add_u32 {vPTw}, {T_[0]}, 3, {vPTw}"); A(f"v_add_u32 {vPTw}, {t3}, {vPTw}")
    A(f"v_lshrrev_b32 {vHPr}, 1, v0"); A(f"v_lshlrev_b32 {vHPr}, 4, {vHPr}"); A(f"v_lshl_add_u32 {vHPr}, {T_[0]}, 2, {vHPr}"); A(f"v_add_u32 {vHPr}, {L_HP}, {vHPr}")
    A(f"s_lshl_b32 {t3}, {sW}, 9"); A(f"s_add_u32 {t3}, {t3}, {L_HP}"); A(f"v_add_u32 {vHPw}, {t3}, {vL16}")
    A(f"s_lshl_b32 {t3}, {t5}, 9"); A(f"s_add_u32 {t3}, {t3}, {ST_O}")
    A(f"s_lshl_b32 {t4}, {t2}, 2"); A(f"s_add_u32 {t4}, {t4}, {sW}"); A(f"s_lshl_b32 {t4}, {t4}, 2"); A(f"s_add_u32 {t4}, {t4}, {t3}")
    A(f"v_lshlrev_b32 {vSTst}, 8, {T_[5]}"); A(f"v_lshl_add_u32 {vSTst}, {T_[0]}, 7, {vSTst}"); A(f"v_add_u32 {vSTst}, {t4}, {vSTst}")
    A(f"s_lshl_b32 {t3}, {t1}, 1"); A(f"s_lshr_b32 {t4}, {sW}, 1"); A(f"s_add_u32 {t3}, {t3}, {t4}"); A(f"s_lshl_b32 {t3}, {t3}, 9"); A(f"s_add_u32 {t3}, {t3}, {ST_O}")
    A(f"s_lshr_b32 {t4}, {t2}, 2"); A(f"s_lshl_b32 {t4}, {t4}, 8"); A(f"s_add_u32 {t3}, {t3}, {t4}")
    A(f"v_lshrrev_b32 {T_[7]}, 3, v0")
    A(f"v_lshl_add_u32 {vSTg}, {T_[7]}, 4, {t3}")
    A(f"s_and_b32 {t4}, {sW}, 1"); A(f"s_lshl_b32 {t4}, {t4}, 3"); A(f"v_add_u32 {vSTm}, {t4}, {vSTg}")
    A(f"s_lshr_b32 {t3}, {sJ}, 4"); A(f"s_lshl_b32 {t3}, {t3}, 16"); A(f"s_lshl_b32 {t4}, {t1}, 12"); A(f"s_add_u32 {t3}, {t3}, {t4}")
    A(f"s_lshl_b32 {t4}, {sW}, 10"); A(f"s_add_u32 {t3}, {t3}, {t4}"); A(f"s_lshl_b32 {t4}, {t2}, 7"); A(f"s_add_u32 {t3}, {t3}, {t4}")
    A(f"v_lshlrev_b32 {T_[6]}, 5, {T_[1]}"); A(f"v_lshl_add_u32 {T_[6]}, {T_[2]}, 4, {T_[6]}")
    A(f"v_lshl_add_u32 {vOPst}, {T_[5]}, 2, {T_[3]}"); A(f"v_lshl_add_u32 {vOPst}, {vOPst}, 13, {T_[6]}"); A(f"v_add_u32 {vOPst}, {t3}, {vOPst}")
    A(f"s_and_b32 {t3}, {sJ}, 15"); A(f"s_lshl_b32 {t3}, {t3}, 13"); A(f"s_lshl_b32 {t4}, {sW}, 11"); A(f"s_add_u32 {t3}, {t3}, {t4}"); A(f"v_add_u32 {vOPg}, {t3}, {vL16}")
    A(f"s_lshr_b32 {t3}, {sW}, 1"); A(f"s_mul_i32 {t3}, {t3}, 640"); A(f"s_and_b32 {t4}, {sW}, 1"); A(f"s_lshl_b32 {t4}, {t4}, 1"); A(f"s_add_u32 {t3}, {t3}, {t4}"); A(f"s_add_u32 {t3}, {t3}, {L_OT}")
    A(f"v_mul_u32_u24 {vOTw}, 20, {T_[4]}"); A(f"v_lshl_add_u32 {vOTw}, {T_[8]}, 6, {vOTw}"); A(f"v_lshl_add_u32 {vOTw}, {T_[5]}, 5, {vOTw}")
    A(f"v_lshl_add_u32 {vOTw}, {T_[2]}, 3, {vOTw}"); A(f"v_add_u32 {vOTw}, {t3}, {vOTw}")
    A(f"s_mul_i32 {t3}, {sW}, {4*2304}"); A(f"s_lshl_b32 {t4}, {sJ}, 7"); A(f"s_add_u32 {t3}, {t3}, {t4}"); A(f"s_add_u32 {t3}, {t3}, {Y_O}")
    A(f"v_mul_u32_u24 {vMst}, 18, {T_[5]}"); A(f"v_add_u32 {vMst}, {vMst}, {T_[3]}"); A(f"v_mul_u32_u24 {vMst}, 2304, {vMst}")
    A(f"v_add3_u32 {vMst}, {vMst}, {T_[6]}, {t3}")
    A(f"v_subrev_u32 {vYst}, 2048, {vMst}")
    A(f"v_mul_u32_u24 {vXS1}, 1152, {T_[5]}"); A(f"v_lshl_add_u32 {vXS2}, {T_[9]}, 2, {vXS1}"); A(f"v_lshl_add_u32 {vXS1}, {T_[9]}, 4, {vXS1}")
    A(f"s_lshl_b32 {t3}, {t1}, 3"); A(f"s_add_u32 {t3}, {t3}, {L_STAT}"); A(f"v_mov_b32 {vSTATr}, {t3}")
    A(f"s_mul_i32 {t4}, {sW}, 384"); A(f"v_add_u32 {vXAm}, {t4}, {vXAm}")
    A(f"s_mul_i32 {t4}, {sX}, 18"); A(f"s_add_u32 {t4}, {t4}, {sJ}"); A(f"s_lshl_b32 {t5}, {t4}, 6")
    A(f"v_lshl_add_u32 {vB1}, {T_[9]}, 1, {t5}")
    A(f"s_mul_i32 {t4}, {sTask}, 2304"); A(f"s_add_u32 {t4}, {t4}, {Y_O}"); A(f"v_add_u32 {vRg}, {t4}, {vL16}")
    A(f"s_sub_u32 {t4}, {sL}, 80"); A(f"s_and_b32 {t4}, {t4}, 63"); A(f"s_lshl_b32 {t4}, {t4}, 16")
    A(f"s_lshl_b32 {t5}, {sX}, 10"); A(f"s_add_u32 {t5}, {t5}, {t4}"); A(f"v_lshl_add_u32 {vXPg}, v0, 3, {t5}")
    A(f"s_lshl_b32 {t5}, {sX}, 7"); A(f"s_add_u32 {t4}, {t4}, {t5}"); A(f"v_lshl_add_u32 {vXPst}, {T_[8]}, 4, {t4}")
    A(f"v_lshrrev_b32 {T_[7]}, 3, v0"); A(f"v_lshl_add_u32 {vXPst}, {T_[7]}, 10, {vXPst}")
    A(f"v_lshl_add_u32 {T_[7]}, {C}, 1, {T_[5]}")
    A(f"s_lshl_b32 {t4}, {sTask}, 6"); A(f"v_lshl_add_u32 {vZo}, {T_[7]}, 1, {t4}")
    A(f"v_add_u32 {vZst}, {Z1_O}, {vZo}")
    A(f"s_and_b32 {t5}, {sTask}, 7"); A(f"s_cmp_eq_u32 {t5}, {sX}"); A(f"s_cselect_b32 {t5}, 4, 0"); A(f"s_or_b32 {sRole}, {sRole}, {t5}")
    A(f"s_cmp_ge_u32 {sTask}, 18"); A(f"s_cselect_b32 {t5}, 1152, 0")
    A(f"v_subrev_u32 {vB2}, {t5}, {vZo}")

def constants1():
    A(f"v_and_b32 {v(TM+8)}, 1, v0")
    A(f"v_mul_u32_u24 {vIdxD}, 0x5555, {v(TM+8)}"); A(f"v_add_u32 {vIdxD}, 0x8888, {vIdxD}")
    A(f"v_mov_b32 {vOnes}, 0x3f803f80")
    A(f"s_lshl_b32 {t3}, {sW}, 6"); A(f"s_add_u32 {t3}, {t3}, {L_WQ}")
    A(f"v_lshlrev_b32 {vCq}, 10, {G}"); A(f"v_lshl_add_u32 {vCq}, {C}, 2, {vCq}"); A(f"v_add_u32 {vCq}, {t3}, {vCq}")
    for i in range(16, 24): A(f"v_accvgpr_write_b32 {a(aWQ+i)}, 0")
    zero(D0, 8)
    A(f"ds_write_b128 {v(D0)}, {v(EM,4)} offset:{L_STAT+16}")
    A(f"s_cmp_lg_u32 {sW}, 3")
    A("s_cbranch_scc1 L_c1")
    A(f"s_waitcnt vmcnt({4+2+8})")
    stats(0, False)
    for i in range(2):
        lo, hi = v(TM+8), v(TM+9)
        A(f"v_lshlrev_b32 {lo}, 16, {v(XG+i)}"); A(f"v_and_b32 {hi}, 0xffff0000, {v(XG+i)}")
        A(f"v_sub_f32 {lo}, {lo}, {S_}"); A(f"v_sub_f32 {hi}, {hi}, {S_}")
        A(f"v_cvt_pk_bf16_f32 {v(XG+i)}, {lo}, {hi}")
        A(f"v_lshlrev_b32 {lo}, 16, {v(XG+i)}"); A(f"v_and_b32 {hi}, 0xffff0000, {v(XG+i)}")
        A(f"v_mul_f32 {lo}, {lo}, {Q_}"); A(f"v_mul_f32 {hi}, {hi}, {Q_}")
        A(f"v_cvt_pk_bf16_f32 {v(XG+i)}, {lo}, {hi}")
    A(f"v_lshrrev_b32 {v(TM+8)}, 5, v0"); A(f"v_mul_u32_u24 {v(TM+8)}, 144, {v(TM+8)}"); A(f"v_and_b32 {v(TM+9)}, 31, v0"); A(f"v_lshl_add_u32 {v(TM+8)}, {v(TM+9)}, 3, {v(TM+8)}")
    A("s_mov_b32 exec_lo, 0x3ffff"); A("s_mov_b32 exec_hi, 0x3ffff")
    A(f"ds_write_b64 {v(TM+8)}, {v(XG,2)} offset:{L_X}")
    A("s_mov_b64 exec, -1")
    A("L_c1:")
    A(f"v_mul_u32_u24 {v(TM+10)}, 144, {B2}"); A(f"v_lshl_add_u32 {v(TM+10)}, {G}, 4, {v(TM+10)}")
    A(f"s_lshl_b32 {t3}, {sW}, 11"); A(f"v_add_u32 {v(TM+8)}, {t3}, {vL16}")
    A(f"ds_write_b128 {v(TM+8)}, {v(D1,4)} offset:1024"); A(f"ds_write_b128 {v(TM+8)}, {v(D1,4)} offset:2048")

fl_load = ["s_mov_b32 exec_hi, 0", f"buffer_load_dwordx4 {v(FG,4)}, {vL16}, {srd(rWS)}, {sXoff} offen sc1", "s_mov_b32 exec_hi, -1"]
qp_store = f"buffer_store_dwordx4 {v(D0,4)}, {vQPst}, {srd(rWS)}, {{so}} offen{{fl}}"
def qg(n): return [f"buffer_load_dwordx{n} {v(QG+4*p,n)}, {vQPg if p < 2 else vQPg2}, {srd(rWS)}, {sGp} offen offset:{2048*(p%2)} sc1" for p in range(4)]
qg4, qg2 = qg(4), qg(2)
pstamp(3)
for r, off in ((rW1, 48), (rW2, 64), (rOUT, 80), (rT1, 56), (rT2, 72)):
    A(f"s_load_dwordx2 s[{r}:{r+1}], s[0:1], {off}")
if args.code:
    A(f"s_cmp_ge_u32 {sL}, 2"); A("s_cbranch_scc1 L_nc")
    A("s_getpc_b64 s[66:67]")
    A("L_pc:")
    A(f"s_lshl_b32 {t3}, {sL}, 13"); A(f"v_add_u32 {v(TM+8)}, {t3}, {vL128}")
    A(f"v_min_u32 {v(TM+8)}, L_codeend-L_pc-4, {v(TM+8)}")
    A(f"global_load_dword {DUM}, {v(TM+8)}, s[66:67]")
    A("L_nc:")
constants1()
A(f"s_mov_b32 {sTO}, 0x40000"); A(f"s_mov_b32 {sMode}, 0"); A(f"s_mov_b32 {sGp}, {sGf}")
cnt = [8]
mark = {'K': 8}
def vm(s): A(s); cnt[0] += 1
A(f"s_lshl_b32 {t4}, {sL}, 9"); A(f"s_add_u32 {t4}, {t4}, {sGf}"); A(f"s_add_u32 {t4}, {t4}, {QP_O}")
A(f"s_add_u32 {sXoff}, {sGf}, {FF_O}")
A("s_mov_b64 exec, 15")
vm(f"buffer_load_dword {DUM}, {vL128}, {srd(rWS)}, {t4} offen sc1{NT}")
vm(f"buffer_load_dword {DUM}, {vL128}, {srd(rWS)}, {sXoff} offen sc1{NT}")
A("s_mov_b64 exec, -1")
def hookQ():
    A(f"s_lshl_b32 {t4}, {sL}, 2"); A(f"s_add_u32 {t4}, {t4}, {sXoff}")
    A(f"s_getreg_b32 {t3}, hwreg(HW_REG_XCC_ID)"); A(f"s_lshl_b32 {t3}, {t3}, 28")
    A(f"s_waitcnt vmcnt({cnt[0]}) lgkmcnt(0)")
    A("s_barrier")
    pstamp(2)
    for l in exec_xa(): A(l)
    for i in range(3):
        if i == 2: A("s_mov_b64 exec, 0x33")
        A(f"ds_read_b128 {v(XA+4*i,4)}, {v(TM+10)} offset:{L_X+64*i}")
    A("s_mov_b64 exec, -1")
    for i in range(2):
        for vv in range(0, 8, 2):
            row = 32*i + 16*(vv >> 2) + (vv & 3)
            A(f"ds_read2st64_b32 {a(aWQ+8*i+vv,2)}, {vCq} offset0:{row} offset1:{row+1}")
    A("s_mov_b32 exec_hi, 0")
    for vv in (0, 2): A(f"ds_read2st64_b32 {a(aWQ+16+vv,2)}, {vCq} offset0:{64+vv} offset1:{65+vv}")
    A("s_mov_b32 exec_hi, -1")
    A(f"v_readfirstlane_b32 {sFlag}, {FN}")
    A(f"s_add_u32 {sFlag}, {sFlag}, 0x0e377901"); A(f"s_and_b32 {sFlag}, {sFlag}, 0x0fffffff"); A(f"s_or_b32 {sFlag}, {sFlag}, {t3}")
    A(f"v_mov_b32 {FN}, {sFlag}")
    A("s_mov_b64 exec, 1")
    vm(f"buffer_store_dword {FN}, {vL16}, {srd(rWS)}, {t4} offen")
    A("s_mov_b64 exec, -1")
    A(f"v_and_b32 {vTag}, 0xff, {FN}"); A(f"s_movk_i32 {t4}, 0xff")
    A("s_waitcnt lgkmcnt(0)")
    for i in range(3): sm(D0, XA+4*i, aWQ+8*i, vIdxD)
    for i in range(4): A(f"v_bfi_b32 {v(D0+i)}, {t4}, {vTag}, {v(D0+i)}")
    A("s_mov_b32 exec_hi, 0")
    vm(qp_store.format(so=sGf, fl=''))
    A("s_mov_b32 exec_hi, -1")
    pstamp(1)
for k in range(9):
    if k == args.pQ: hookQ()
    if k == 8 - args.vw: mark['V'] = cnt[0]
    if k < 8: vm(f"buffer_load_dwordx4 {a(aV+4*k,4)}, {vL16}, {srd(rV)}, {kv0 if k < 4 else kv1} offen offset:{1024*(k%4)}{NTV}")
    if k == 7: pstamp(9)
TT = v(TM+4)
def slots_touch():
    A(f"s_lshl_b32 {t1}, {sJ}, 2"); A(f"s_add_u32 {t1}, {t1}, {sW}")
    A(f"s_mul_i32 {t3}, {t1}, 1536"); A(f"s_add_u32 {t3}, {t3}, {sGf}"); A(f"s_add_u32 {t3}, {t3}, {Y_O}")
    A(f"s_lshl_b32 {t1}, {t1}, 10"); A(f"s_add_u32 {t1}, {t1}, {QP1_O}"); A(f"s_add_u32 {t1}, {t1}, {sGf}")
    A("s_mov_b64 exec, 0xfff")
    A(f"buffer_load_dword {DUM}, {vL128}, {srd(rWS)}, {t3} offen sc1{NT}")
    A("s_mov_b64 exec, 0xff")
    A(f"buffer_load_dword {DUM}, {vL128}, {srd(rWS)}, {t1} offen sc1{NT}")
    A("s_mov_b64 exec, -1")
def slots_clear():
    A(f"s_lshl_b32 {t1}, {sJ}, 2"); A(f"s_add_u32 {t1}, {t1}, {sW}")
    A(f"s_lshl_b32 {t1}, {t1}, 10"); A(f"s_add_u32 {t1}, {t1}, {QP1_O}"); A(f"v_add_u32 {TT}, {t1}, {vL16}")
    pub(f"buffer_store_dwordx4 {v(EM,4)}, {TT}, {srd(rWS)}, {{so}} offen{{fl}}")
assert Y_O + 64 * 1536 >= Z3_O + 2304
def w1_touch():
    A(f"s_lshl_b32 {t1}, {sJ}, 2"); A(f"s_add_u32 {t1}, {t1}, {sW}")
    A(f"s_mul_i32 {t4}, {sX}, 576"); A(f"s_add_u32 {t4}, {t4}, {t1}"); A(f"s_add_u32 {t4}, {t4}, 512"); A(f"s_mul_i32 {t4}, {t4}, 1152")
    A(f"s_mul_i32 {t1}, {t1}, {9*9216}")
    A(f"s_mul_i32 {t3}, {sX}, 1152"); A(f"s_add_u32 {t1}, {t1}, {t3}"); A(f"s_add_u32 {t3}, {t1}, {5*9216}")
    A(f"v_mul_u32_u24 {TT}, 57, v0"); A(f"v_lshrrev_b32 {TT}, 9, {TT}"); A(f"v_mul_u32_u24 {TT}, {9216-1152}, {TT}"); A(f"v_add_u32 {TT}, {TT}, {vL128}")
    A("s_mov_b32 exec_hi, 0x1fff")
    A(f"buffer_load_dword {DUM}, {TT}, {srd(rW1)}, {t1} offen{NTM}")
    A("s_mov_b32 exec_hi, 15")
    A(f"buffer_load_dword {DUM}, {TT}, {srd(rW1)}, {t3} offen{NTM}")
    A("s_mov_b64 exec, 0x1ff")
    A(f"buffer_load_dword {DUM}, {vL128}, {srd(rW2)}, {t4} offen{NTM}")
    A("s_mov_b64 exec, -1")
def w2_loads():
    l1 = A.newlabel('L_w2')
    A(f"s_mul_i32 {t0}, {sX}, 18"); A(f"s_add_u32 {t0}, {t0}, {sJ}"); A(f"s_mul_i32 {t0}, {t0}, {32*1152}")
    A(f"s_lshl_b32 {t1}, {sW}, 8"); A(f"s_add_u32 {t1}, {t1}, {t0}")
    for i in range(8):
        A(f"buffer_load_dwordx4 {a(aW2+4*i,4)}, {vWrow}, {srd(rW2)}, {t1} offen{NT2}")
        if i < 7: A(f"s_add_u32 {t1}, {t1}, 4608")
    A(f"s_cmp_lg_u32 {sW}, 3")
    A(f"s_cbranch_scc1 {l1}")
    A(f"s_mov_b64 exec, {mLO8}")
    for i in range(8):
        A(f"buffer_load_dwordx4 {a(aW2t+4*i,4)}, {vWrow}, {srd(rW2)}, {t0} offen offset:1024{NT2}")
        if i < 7: A(f"s_add_u32 {t0}, {t0}, 4608")
    A("s_mov_b64 exec, -1")
    A(f"{l1}:")
def wo_loads(k0, k1, with_tail):
    for k in range(k0, k1):
        A(f"buffer_load_dwordx4 {a(aWO+4*k,4)}, {vWrow}, {srd(rWO)}, {sWo} offen{NTO}")
        A(f"s_add_u32 {sWo}, {sWo}, 4608")
    if with_tail:
        l1 = A.newlabel('L_wt')
        A(f"s_cmp_lg_u32 {sW}, 3")
        A(f"s_cbranch_scc1 {l1}")
        A(f"s_mov_b64 exec, {mLO8}")
        for i in range(7, -1, -1):
            A(f"s_sub_u32 {sWo}, {sWo}, 4608")
            A(f"buffer_load_dwordx4 {a(aWOt+4*i,4)}, {vWrow}, {srd(rWO)}, {sWo} offen offset:256{NTO}")
        A("s_mov_b64 exec, -1")
        A(f"{l1}:")
constants()
pstamp(4)
stamp()
A(f"s_waitcnt vmcnt({cnt[0]-mark['K']})")
for T in range(2):
    for q in range(4): A(f"ds_read_b128 {a(aK+16*T+4*q,4)}, {v(KA+q)} offset:{4096*T}")
A(f"s_mov_b32 {sXPo}, {XP_O}")
A(f"s_cmp_lt_u32 {sJ}, 16")
A("s_cbranch_scc1 L_g1n")
A(f"v_readfirstlane_b32 {t4}, {vOPg}"); A(f"v_readfirstlane_b32 {t5}, {vSTg}")
A(f"s_add_u32 {t4}, {t4}, {sGf}"); A(f"s_add_u32 {t5}, {t5}, {sGf}")
A("s_mov_b64 exec, 0xffff")
A(f"buffer_load_dword {DUM}, {vL128}, {srd(rWS)}, {t4} offen sc1{NT}")
A("s_mov_b64 exec, 3")
A(f"buffer_load_dword {DUM}, {vL128}, {srd(rWS)}, {t5} offen sc1{NT}")
A("s_mov_b64 exec, -1")
A(f"buffer_load_ushort {vXres}, {vZo}, {srd(rX)}, 0 offen{NT}")
A(f"buffer_load_ushort {vB2}, {vB2}, {srd(rT2)}, 0 offen{NT}")
wo_loads(0, 8, True)
A("s_branch L_g1o")
A("L_g1n:")
if 's' in args.early: slots_touch()
if '1' in args.early: w1_touch()
if '2' in args.early: w2_loads()
A("L_g1o:")
pstamp(6)
A(f"s_waitcnt vmcnt({args.vw})")
if ST and not args.pro and ONLY is None: A(f"s_memrealtime s[74:75]")
pstamp(5)
def flags_diff():
    A(f"v_xor_b32 {CK}, {sFlag}, {v(FG)}")
    for i in range(1, 4): A(f"v_bitop3_b32 {CK}, {CK}, {v(FG+i)}, {sFlag} bitop3:0xf6")
st_rd = f"ds_read_b64 {v(TM,2)}, {vSTATr}"
A("L_g4:")
for l in fl_load + qg4: A(l)
A("s_waitcnt vmcnt(0)")
pstamp(7)
flags_diff()
A(f"v_cmp_ne_u32 vcc, 0, {CK}")
A("s_cmp_lg_u32 vcc_lo, 0")
if args.forcefb: A("s_cmp_eq_u32 0, 0")
A("s_cbranch_scc1 L_af2")
A(f"s_mov_b32 {sMode}, 0")
A("L_g2:")
for i in range(16): A(f"v_xor_b32 {v(QG+i)}, {vTag}, {v(QG+i)}")
A(f"v_or3_b32 {CK}, {v(QG)}, {v(QG+1)}, {v(QG+2)}")
for i in range(3, 15, 2): A(f"v_or3_b32 {CK}, {CK}, {v(QG+i)}, {v(QG+i+1)}")
A(f"v_or_b32 {CK}, {CK}, {v(QG+15)}")
A(f"v_and_b32 {CK}, 0xff, {CK}")
A(f"v_cmp_ne_u32 vcc, 0, {CK}")
A("s_cbranch_vccnz L_g5")
A("L_g3:")
A(f"s_mov_b32 {sL}, 0")
zero(D0)
A(f"v_mov_b32 {v(TM)}, 0"); A(f"v_mov_b32 {v(TM+1)}, 1.0")
tail.append("L_g5:\n" + timeout("L_g4", "L_g3"))
pstamp(8)
A(f"v_add_f32 {v(TM+2)}, {v(QG+2)}, {v(QG+6)}"); A(f"v_add_f32 {v(TM+3)}, {v(QG+3)}, {v(QG+7)}")
A(f"v_add_f32 {v(TM+4)}, {v(QG+10)}, {v(QG+14)}"); A(f"v_add_f32 {v(TM+5)}, {v(QG+11)}, {v(QG+15)}")
A(f"v_add_f32 {v(TM+2)}, {v(TM+2)}, {v(TM+4)}"); A(f"v_add_f32 {v(TM+3)}, {v(TM+3)}, {v(TM+5)}")
A(f"v_permlane32_swap_b32 {v(TM+2)}, {v(TM+3)}")
A(f"v_add_f32 {vCq}, {v(TM+2)}, {v(TM+3)}")
A("s_branch L_qfin")

A("L_layer:")
zero(D0, 8)
def q_pub():
    A("s_mov_b32 exec_hi, 0")
    pub(qp_store)
    A("s_mov_b32 exec_hi, -1")
A(f"s_cmp_eq_u32 {sW}, 3")
A("s_cbranch_scc1 L_q3")
poll_proj(vXAq, sXoff, 3, aWQ, True)
q_pub()
nst[0] = 1
stamp()
zero(D0)
qregs = [v(QG+4*p+i) for p in range(4) for i in range(2)]
poll(qg2, qregs, site='q')
A("s_branch L_q4")
A("L_q3:")
poll(xs_loads(rWS, sXoff, ' sc1') + xa_loads(rWS, vXAq, sXoff, 3, ' sc1', True), [v(XS+i) for i in range(9)], site='z')
if 'z' in args.p2: A("s_waitcnt vmcnt(0)")
for i in range(3): sm(D0, XA+4*i, aWQ+8*i, vIdxD)
stats(16, early=q_pub, late=lambda: [A(l) for l in qg2])
nst[0] = 1
stamp()
zero(D0)
poll(qg2, qregs, primed=True)
A("L_q4:")
A(f"ds_read_b64 {v(TM,2)}, {vSTATr} offset:16")
A("L_qfin:")
stamp()
A(f"v_add_f32 {v(TM+2)}, {v(QG)}, {v(QG+4)}"); A(f"v_add_f32 {v(TM+3)}, {v(QG+1)}, {v(QG+5)}")
A(f"v_add_f32 {v(TM+4)}, {v(QG+8)}, {v(QG+12)}"); A(f"v_add_f32 {v(TM+5)}, {v(QG+9)}, {v(QG+13)}")
A(f"v_add_f32 {v(TM+2)}, {v(TM+2)}, {v(TM+4)}"); A(f"v_add_f32 {v(TM+3)}, {v(TM+3)}, {v(TM+5)}")
A(f"v_permlane32_swap_b32 {v(TM+2)}, {v(TM+3)}")
A(f"v_add_f32 {v(TM+2)}, {v(TM+2)}, {v(TM+3)}")
A("L_q5:")
A("s_waitcnt lgkmcnt(0)")
A(f"v_cmp_eq_u32 vcc, -1, {v(TM+1)}")
A("s_cbranch_vccnz L_q6")
A("L_q7:")
tail.append(f"L_q6:\nds_read_b64 {v(TM,2)}, {vSTATr} offset:16\n" + timeout("L_q5", "L_q7"))
A(f"v_fma_f32 {v(TM+2)}, -{v(TM)}, {vCq}, {v(TM+2)}")
A(f"v_mul_f32 {v(TM+2)}, {v(TM+2)}, {v(TM+1)}")
A(f"v_cvt_pk_bf16_f32 {v(TM+2)}, {v(TM+2)}, {v(TM+2)}")
A(f"ds_write_b16 {vQTw}, {v(TM+2)} offset:{L_QT}")
A("s_mov_b32 vcc_lo, 0xaaaaaaaa"); A("s_mov_b32 vcc_hi, 0xaaaaaaaa")
zero(DP)
A("s_waitcnt lgkmcnt(0)")
A("s_barrier")
A(f"ds_read_b128 {v(AO,4)}, {vQTr} offset:{L_QT}")
A(f"ds_read_b128 {v(AO+4,4)}, {vQTr} offset:{L_QT+256}")
if args.mid:
    A(f"s_lshr_b32 {t0}, {sJ}, 4"); A(f"s_or_b32 {t0}, {t0}, {sL}")
    A("s_cbranch_scc1 L_mid")
    if 's' in args.mid: slots_touch()
    if '1' in args.mid: w1_touch()
    if '2' in args.mid: w2_loads()
    A("L_mid:")
A(f"s_waitcnt lgkmcnt({lg(1)})")
sm(D0, AO, aK, vIdxP); sm(D1, AO, aK+16, vIdxP)
A("s_waitcnt lgkmcnt(0)")
sm(D0, AO+4, aK+8, vIdxP); sm(D1, AO+4, aK+24, vIdxP)
SC, MX, P_, LS, TT = v(TM), v(TM+1), v(TM+2), v(TM+3), v(TM+4)
A(f"v_add_f32 {SC}, {v(D0)}, {v(D0+1)}")
A(f"v_add_f32 {TT}, {v(D1)}, {v(D1+1)}")
A(f"v_cndmask_b32 {SC}, {SC}, {TT}, {mROW}")
rbf(SC, SC)
A(f"v_mul_f32 {SC}, {f32(128 ** -0.5)}, {SC}")
rbf(SC, SC)
A(f"v_mul_f32 {SC}, {f32(1.4426950408889634)}, {SC}")
zero(D0, 2)
A(f"v_max_f32_dpp {MX}, {SC}, {SC} row_ror:8 row_mask:0xf bank_mask:0xf")
for n, k in enumerate((4, 2, 1)):
    zero(D0+2+2*n, 2)
    if k == 1: A(f"v_max_f32_dpp {TT}, {MX}, {MX} row_ror:{k} row_mask:0xf bank_mask:0xf")
    A(f"v_max_f32_dpp {MX}, {MX}, {MX} row_ror:{k} row_mask:0xf bank_mask:0xf")
A(f"v_permlane16_swap_b32 {MX}, {TT}")
A(f"v_max_f32 {MX}, {MX}, {TT}")
A(f"v_sub_f32 {P_}, {SC}, {MX}")
A(f"v_exp_f32 {P_}, {P_}")
A(f"v_cvt_pk_bf16_f32 {TT}, {P_}, 0")
A(f"ds_write2_b32 {vPTw}, {TT}, {TT} offset1:5")
for i in range(4): A(f"ds_read_b128 {v(AO+4*i,4)}, {vPTr} offset:{128*i}")
A(f"v_add_f32_dpp {LS}, {P_}, {P_} row_ror:8 row_mask:0xf bank_mask:0xf")
for k in (4, 2, 1): A(f"v_add_f32_dpp {LS}, {LS}, {LS} row_ror:{k} row_mask:0xf bank_mask:0xf")
A(f"v_mov_b32 {SC}, {LS}")
A(f"v_permlane16_swap_b32 {LS}, {SC}")
A(f"v_add_f32 {LS}, {LS}, {SC}")
A(f"v_cndmask_b32 {SC}, {MX}, {LS}, vcc")
A("s_mov_b32 exec_lo, 3"); A("s_mov_b32 exec_hi, 3")
pub(f"buffer_store_dword {SC}, {vSTst}, {srd(rWS)}, {{so}} offen{{fl}}")
A("s_mov_b64 exec, -1")
for i in range(4):
    A(f"s_waitcnt lgkmcnt({lg(3-i)})")
    sm(DP, AO+4*i, aV+8*i, vIdxS)
pub(f"buffer_store_dwordx4 {v(DP,4)}, {vOPst}, {srd(rWS)}, {{so}} offen{{fl}}")
stamp()
E = TM + 5
R = TM + 12
def tile_out(wb, tb, vst):
    l1 = A.newlabel('L_t'); l2 = A.newlabel('L_t')
    for i in range(4):
        A(f"s_waitcnt lgkmcnt({lg(3-i)})")
        sm(D0, AO+4*i, wb+8*i, vIdxS)
    A(f"s_cmp_lg_u32 {sW}, 3")
    A(f"s_cbranch_scc1 {l1}")
    for i in range(4): sm(D1, AO+4*i, tb+8*i, vIdxS)
    A(f"{l1}:")
    A("s_waitcnt vmcnt(0)")
    A("s_nop 4")
    pub(f"buffer_store_dwordx4 {v(D0,4)}, {vst}, {srd(rWS)}, {{so}} offen{{fl}}")
    A(f"s_cmp_lg_u32 {sW}, 3")
    A(f"s_cbranch_scc1 {l2}")
    A(f"s_mov_b64 exec, {mLO8}")
    pub(f"buffer_store_dwordx4 {v(D1,4)}, {v(E+2)}, {srd(rWS)}, {{so}} offen{{fl}}")
    A("s_mov_b64 exec, -1")
    A(f"{l2}:")
A(f"s_cmp_lt_u32 {sJ}, 16")
A("s_cbranch_scc1 L_mlp")
op_load = [f"buffer_load_dwordx4 {v(OG+4*i,4)}, {vOPg}, {srd(rWS)}, {sGp} offen offset:{1024*i} sc1" for i in range(2)]
A(f"v_add_u32 {v(E+6)}, {4*2304}, {vYst}")
poll([f"buffer_load_dwordx4 {v(SG,4)}, {vSTg}, {srd(rWS)}, {sGp} offen sc1",
      f"buffer_load_dwordx4 {v(SG+4,4)}, {vSTg}, {srd(rWS)}, {sGp} offen offset:128 sc1",
      f"buffer_load_dwordx2 {v(SG+8,2)}, {vSTm}, {srd(rWS)}, {sGp} offen sc1"], [v(SG+i) for i in range(10 if 's' in args.p2 else 8)], site='s')
for l in op_load: A(l)
A(f"v_max3_f32 {MX}, {v(SG)}, {v(SG+1)}, {v(SG+2)}")
A(f"v_max_f32 {MX}, {MX}, {v(SG+3)}")
A(f"v_max_f32_dpp {TT}, {MX}, {MX} row_ror:8 row_mask:0xf bank_mask:0xf")
A(f"v_max_f32_dpp {MX}, {MX}, {MX} row_ror:8 row_mask:0xf bank_mask:0xf")
A(f"v_permlane16_swap_b32 {MX}, {TT}"); A(f"v_max_f32 {SC}, {MX}, {TT}"); A(f"v_max_f32 {MX}, {MX}, {TT}")
A(f"v_permlane32_swap_b32 {MX}, {SC}"); A(f"v_max_f32 {MX}, {MX}, {SC}")
for n, i in enumerate((0, 1, 2, 3, 8, 9)): A(f"v_sub_f32 {v(E+n)}, {v(SG+i)}, {MX}")
for n in range(6): A(f"v_exp_f32 {v(E+n)}, {v(E+n)}")
A(f"v_mul_f32 {LS}, {v(E)}, {v(SG+4)}")
for i in (1, 2, 3): A(f"v_fmac_f32 {LS}, {v(E+i)}, {v(SG+4+i)}")
A(f"v_add_f32_dpp {TT}, {LS}, {LS} row_ror:8 row_mask:0xf bank_mask:0xf")
A(f"v_add_f32_dpp {LS}, {LS}, {LS} row_ror:8 row_mask:0xf bank_mask:0xf")
A(f"v_permlane16_swap_b32 {LS}, {TT}"); A(f"v_add_f32 {SC}, {LS}, {TT}"); A(f"v_add_f32 {LS}, {LS}, {TT}")
poll(op_load, [v(OG+i) for i in range(8)], primed=True)
stamp()
A(f"v_permlane32_swap_b32 {LS}, {SC}")
for i in range(4): A(f"v_mul_f32 {v(R+i)}, {v(OG+i)}, {v(E+4)}")
for i in range(4): A(f"v_fmac_f32 {v(R+i)}, {v(OG+4+i)}, {v(E+5)}")
A(f"v_add_f32 {LS}, {LS}, {SC}")
A(f"v_mov_b32 {v(E+2)}, {v(E+6)}")
A(f"v_permlane32_swap_b32 {v(R)}, {v(R+2)}")
A(f"v_permlane32_swap_b32 {v(R+1)}, {v(R+3)}")
A(f"v_add_f32 {v(R)}, {v(R)}, {v(R+2)}")
A(f"v_add_f32 {v(R+1)}, {v(R+1)}, {v(R+3)}")
A(f"v_rcp_f32 {LS}, {LS}")
A(f"v_permlane16_swap_b32 {v(R)}, {v(R+1)}")
A(f"v_add_f32 {v(R)}, {v(R)}, {v(R+1)}")
A(f"v_add_f32_dpp {v(R)}, {v(R)}, {v(R)} row_ror:8 row_mask:0xf bank_mask:0xf")
A(f"v_mul_f32 {v(R)}, {v(R)}, {LS}")
A(f"v_cvt_pk_bf16_f32 {TT}, {v(R)}, {v(R)}")
A(f"ds_write_b16 {vOTw}, {TT}")
pub(*[f"buffer_store_dwordx4 {v(EM,4)}, {vOPg}, {srd(rWS)}, {{so}} offen offset:{1024*i}{{fl}}" for i in range(2)])
A("s_waitcnt lgkmcnt(0)")
A("s_barrier")
for i in range(4): A(f"ds_read_b128 {v(AO+4*i,4)}, {vOTr} offset:{128*i}")
tile_out(aWO, aWOt, vYst)
stamp()

def reducer(kind):
    ld = [f"buffer_load_dwordx4 {v(YG+4*i,4)}, {vRg}, {srd(rWS)}, {sGp} offen offset:{1024*i} sc1" for i in range(2)]
    A(f"s_movk_i32 {t4}, 0xff"); A(f"s_add_u32 {t3}, {sXPo}, 8192")
    if kind == 'A':
        poll(ld, [v(YG+i) for i in range(8)], site='y')
        for i in range(4): A(f"v_add_f32 {v(R+i)}, {v(YG+i)}, {v(YG+4+i)}")
    else:
        poll(ld + ["s_mov_b64 exec, 0xffff", f"buffer_load_dwordx4 {v(YG+8,4)}, {vRg}, {srd(rWS)}, {sGp} offen offset:2048 sc1", "s_mov_b64 exec, -1"],
             [v(YG+i) for i in range(12)], site='y')
        for i in range(4): A(f"v_add_f32 {v(R+i)}, {v(YG+i)}, {v(YG+4+i)}")
        for i in range(4): A(f"v_add_f32 {v(R+i)}, {v(R+i)}, {v(YG+8+i)}")
    stamp()
    treduce(R)
    A(f"v_bfi_b32 {v(R+1)}, {t4}, {vTag}, {v(R)}"); A(f"v_bfi_b32 {v(R)}, {t4}, {vTag}, {v(R)}")
    A(f"v_permlane16_swap_b32 {v(R)}, {v(R+1)}")
    A(f"v_mov_b32 {v(R+2)}, {v(R)}"); A(f"v_mov_b32 {v(R+3)}, {v(R+1)}")
    A(f"v_permlane32_swap_b32 {v(R)}, {v(R+2)}"); A(f"v_permlane32_swap_b32 {v(R+1)}, {v(R+3)}")
    A(f"buffer_store_dwordx4 {v(R,4)}, {vXPst}, {srd(rWS)}, {sXPo} offen sc1")
    if args.near: A(f"buffer_store_dwordx4 {v(R,4)}, {vXPst}, {srd(rWS)}, {t3} offen sc1")
    if kind == 'M':
        A(f"s_lshl_b32 {t0}, {sL}, 2"); A(f"s_andn2_b32 {t0}, {t0}, {sRole}")
        A("s_cbranch_scc1 L_fin")
    cl = [f"buffer_store_dwordx4 {v(EM,4)}, {vRg}, {srd(rWS)}, {{so}} offen offset:{1024*i}{{fl}}" for i in range(2)]
    if kind == 'M': cl += ["s_mov_b64 exec, 0xffff", f"buffer_store_dwordx4 {v(EM,4)}, {vRg}, {srd(rWS)}, {{so}} offen offset:2048{{fl}}", "s_mov_b64 exec, -1"]
    pub(*cl)
    if args.near:
        A(f"v_mov_b32 {TT}, 0")
        A(f"ds_read_b32 {TT}, {TT} offset:{L_NEAR}")
    if args.xd: A(f"s_sleep {args.xd}")
    if args.near:
        A("s_waitcnt lgkmcnt(0)")
        A(f"v_or_b32 {vXPg}, {vXPg}, {TT}")
    poll([f"buffer_load_dwordx2 {v(XG,2)}, {vXPg}, {srd(rWS)}, {sXPo} offen sc1",
          f"buffer_load_dwordx2 {v(XG+2,2)}, {vXPg}, {srd(rWS)}, {sXPo} offen offset:512 sc1"], None,
         chk=[f"v_xor_b32 {v(R+i)}, {vTag}, {v(XG+i)}" for i in range(4)] +
             [f"v_or3_b32 {CK}, {v(R)}, {v(R+1)}, {v(R+2)}", f"v_bitop3_b32 {CK}, {CK}, {v(R+3)}, {t4} bitop3:0xa8", f"v_cmp_ne_u32 vcc, 0, {CK}"])
    stamp()
    Y = v(R)
    A(f"v_add_f32 {v(R)}, {v(R)}, {v(R+2)}"); A(f"v_add_f32 {v(R+1)}, {v(R+1)}, {v(R+3)}")
    A(f"v_permlane32_swap_b32 {v(R)}, {v(R+1)}")
    A(f"v_add_f32 {TT}, {v(R)}, {v(R+1)}"); A(f"v_add_f32 {Y}, {v(R)}, {v(R+1)}")
    A(f"v_permlane16_swap_b32 {Y}, {TT}"); A(f"v_add_f32 {Y}, {Y}, {TT}")
    rbf(Y, Y)
    if kind == 'M':
        A(f"v_add_f32 {Y}, {Y}, {vB2}"); rbf(Y, Y)
    A(f"v_add_f32 {TT}, {Y}, {vXres}")
    A(f"v_add_f32 {v(R+1)}, {Y}, {vXres}")
    A(f"v_add_f32 {Y}, {Y}, {vXres}")
    A("s_mov_b64 exec, -1")
    A(f"v_permlane32_swap_b32 {TT}, {v(R+1)}")
    A(f"v_cvt_pk_bf16_f32 {TT}, {TT}, {v(R+1)}")
    A("s_mov_b64 exec, 0xffff")
    if kind == 'M':
        A(f"s_cmp_lg_u32 {sL}, 0")
        A("s_cbranch_scc1 L_out")
    pub(f"buffer_store_dword {TT}, {vZst}, {srd(rWS)}, {{so}} offen{{fl}}")
    A("s_mov_b64 exec, -1")
    stamp()
    rbf(vXres, Y)
    A(f"v_add_u32 {vZst}, 2304, {vZst}")
    A(f"s_add_u32 {sXPo}, {sXPo}, {XPS}")

A(f"s_bitcmp1_b32 {sRole}, 0")
A("s_cbranch_scc1 L_mlp")
A(f"s_bitcmp1_b32 {sRole}, 1")
A("s_cbranch_scc0 L_probe" if args.near else "s_cbranch_scc0 L_next")
A(f"s_cmp_lg_u32 {sL}, 0")
A("s_cbranch_scc1 L_red")
A(f"v_lshlrev_b32 {vXres}, 16, {vXres}"); A(f"v_lshlrev_b32 {vB2}, 16, {vB2}")
zero(YG+8)
A("L_red:")
k0 = nst[0]
reducer('A'); reducer('M')
kr = nst[0]
A("s_branch L_next")
A("L_mlp:")
nst[0] = k0
A(f"s_cmp_lg_u32 {sL}, 0")
A("s_cbranch_scc1 L_m1")
A(f"s_mul_i32 {t0}, {sX}, 18"); A(f"s_add_u32 {t0}, {t0}, {sJ}")
A(f"s_lshl_b32 {t2}, {t0}, 6")
A(f"buffer_load_ushort {vB1}, {vB1}, {srd(rT1)}, 0 offen{NT}")
A(f"s_cmp_ge_u32 {sJ}, 16")
A("s_cbranch_scc1 L_m0b")
if 's' not in args.early + args.mid: slots_touch()
if '1' not in args.early + args.mid: w1_touch()
slots_clear()
if '2' in args.early + args.mid: A("s_branch L_m0d")
A("L_m0b:")
w2_loads()
A("L_m0d:")
A(f"s_cmp_eq_u32 {sW}, 3")
A("s_cbranch_scc1 L_m0c")
A("L_m0a:")
A(f"s_mul_i32 {t0}, {sW}, {192*9216}"); A(f"s_add_u32 {t0}, {t0}, {t2}")
if args.w1dma:
    A(f"v_lshrrev_b32 {TT}, 2, v0"); A(f"v_mul_u32_u24 {TT}, 9216, {TT}"); A(f"v_and_b32 {LS}, 3, v0"); A(f"v_lshl_add_u32 {TT}, {LS}, 4, {TT}")
    A(f"s_mul_i32 {t1}, {sW}, 12288"); A(f"s_add_u32 {t1}, {t1}, {L_K}"); A(f"s_mov_b32 m0, {t1}")
    for i in range(12):
        A(f"buffer_load_dwordx4 {TT}, {srd(rW1)}, {t0} offen{NTM} lds")
        if i < 11: A(f"s_add_u32 {t0}, {t0}, {16*9216}"); A("s_add_u32 m0, m0, 1024")
    A(f"v_lshrrev_b32 {TT}, 4, v0"); A(f"v_lshlrev_b32 {TT}, 8, {TT}"); A(f"v_and_b32 {LS}, 15, v0"); A(f"v_lshl_add_u32 {TT}, {LS}, 2, {TT}"); A(f"v_add_u32 {TT}, {t1}, {TT}")
    A("s_waitcnt vmcnt(0)")
    for i in range(6):
        for hh in range(2):
            for p in range(2):
                A(f"ds_read2_b32 {a(aW1+8*i+4*hh+2*p,2)}, {TT} offset0:{32*p} offset1:{32*p+16}")
            if (i, hh) != (5, 1): A(f"v_add_u32 {TT}, 1024, {TT}")
    A("s_waitcnt lgkmcnt(0)")
else:
    A(f"v_lshrrev_b32 {TT}, 4, v0"); A(f"v_mul_u32_u24 {TT}, {4*9216}, {TT}"); A(f"v_and_b32 {LS}, 15, v0"); A(f"v_lshl_add_u32 {TT}, {LS}, 2, {TT}")
    prev = 0
    for i in range(6):
        for vv in range(8):
            row = 32*i + 16*(vv >> 2) + (vv & 3)
            if row != prev: A(f"s_add_u32 {t0}, {t0}, {(row-prev)*9216}")
            prev = row
            A(f"buffer_load_dword {a(aW1+8*i+vv)}, {TT}, {srd(rW1)}, {t0} offen{NTM}")
A("L_m0c:")
if ST: A("s_memrealtime s[94:95]"); A("s_waitcnt vmcnt(0)"); A("s_memrealtime s[96:97]")
A("s_waitcnt vmcnt(0)")
A(f"v_lshlrev_b32 {vB1}, 16, {vB1}")
A("L_m1:")
zero(D0, 8)
c0 = -2 * 1.4426950408889634 * 0.7978845608028654
A(f"v_mov_b32 {v(E)}, {f32(c0)}")
A(f"v_lshrrev_b32 {v(E+1)}, 5, v0"); A(f"v_lshlrev_b32 {v(E+1)}, 3, {v(E+1)}")
A(f"v_add_u32 {v(E+2)}, {4*2304}, {vMst}")
A(f"s_mul_i32 {t0}, {sL}, {Z3_O-Z1_O}"); A(f"s_add_u32 {t0}, {t0}, {sGp}"); A(f"s_add_u32 {t0}, {t0}, {Z1_O}")
A(f"s_cmp_eq_u32 {sW}, 3")
A("s_cbranch_scc1 L_m2")
poll_proj(vXAm, t0, 6, aW1)
A("s_mov_b32 exec_hi, 0")
A(f"ds_write_b128 {vHPw}, {v(D0,4)}")
A("s_mov_b32 exec_hi, -1")
A("s_branch L_m2b")
A("L_m2:")
poll(xs_loads(rWS, t0, ' sc1'), [v(XS+i) for i in range(9)], site='z')
stats(32)
A("L_m2b:")
stamp()
A("s_waitcnt lgkmcnt(0)")
A("s_barrier")
H = TM + 12
A(f"ds_read2_b32 {v(H,2)}, {vHPr} offset0:0 offset1:2")
A(f"ds_read2_b32 {v(H+2,2)}, {vHPr} offset0:128 offset1:130")
A(f"ds_read_b32 {v(H+4)}, {vHPr} offset:1024"); A(f"ds_read_b32 {v(H+5)}, {vHPr} offset:1032")
A(f"ds_read_b64 {v(TM,2)}, {v(E+1)} offset:{L_STAT+32}")
zero(D0)
A("s_waitcnt lgkmcnt(0)")
A(f"v_add_f32 {v(H)}, {v(H)}, {v(H+2)}"); A(f"v_add_f32 {v(H+1)}, {v(H+1)}, {v(H+3)}")
A(f"v_add_f32 {v(H)}, {v(H)}, {v(H+4)}"); A(f"v_add_f32 {v(H+1)}, {v(H+1)}, {v(H+5)}")
A(f"v_fma_f32 {v(H)}, -{S_}, {v(H+1)}, {v(H)}")
A(f"v_mul_f32 {v(H)}, {v(H)}, {Q_}")
rbf(v(H), v(H))
A(f"v_add_f32 {v(H)}, {v(H)}, {vB1}")
rbf(v(H), v(H))
A(f"v_mul_f32 {TT}, {v(H)}, {v(H)}")
A(f"v_fmac_f32 {v(E)}, {f32(c0*0.044715)}, {TT}")
A(f"v_mul_f32 {TT}, {v(E)}, {v(H)}")
A(f"v_exp_f32 {TT}, {TT}")
A(f"v_add_f32 {TT}, 1.0, {TT}")
A(f"v_rcp_f32 {TT}, {TT}")
A(f"v_mul_f32 {TT}, {TT}, {v(H)}")
A(f"v_cvt_pk_bf16_f32 {TT}, {TT}, 0")
A(f"ds_write2_b32 {vPTw}, {TT}, {TT} offset1:5")
for i in range(4): A(f"ds_read_b128 {v(AO+4*i,4)}, {vPTr} offset:{128*i}")
stamp()
tile_out(aW2, aW2t, vMst)
A("L_m4:")
stamp()
nst[0] = kr
A("L_next:")
A(f"s_cmp_lg_u32 {sL}, 0")
A("s_cbranch_scc1 L_fin")
if ST:
    A("s_waitcnt lgkmcnt(0)")
    for k in range(14): A(f"v_writelane_b32 {v(SV)}, s{72+2*k}, {1+k}")
    for k in range(14): A(f"s_mov_b64 s[{72+2*k}:{73+2*k}], 0")
A(f"s_mov_b32 {sL}, 1")
A(f"s_add_u32 {sXoff}, {sGp}, {Z2_O}")
A(f"v_add_u32 {vQPg}, {QP1_O-QP_O}, {vQPg}"); A(f"v_add_u32 {vQPst}, {QP1_O-QP_O}, {vQPst}")
A(f"v_add_u32 {vQPg2}, {QP1_O-QP_O}, {vQPg2}")
for r in (vSTst, vSTg, vSTm): A(f"v_add_u32 {r}, {ST1_O-ST_O}, {r}")
A("s_branch L_layer")
A("L_out:")
A(f"buffer_store_dword {TT}, {vZo}, {srd(rOUT)}, 0 offen")
A(f"s_mov_b32 {t0}, {EP_O}")
A("s_mov_b64 exec, 1")
A(f"buffer_store_dword {FN}, {vL16}, {srd(rWS)}, {t0} offen")
if ST: A(f"s_memrealtime s[{72+2*13}:{73+2*13}]")
A("L_fin:")
if args.enc:
    j0, j1 = [int(x) for x in args.encj.split(',')]
    A("s_memrealtime s[66:67]")
    A("s_waitcnt lgkmcnt(0)")
    if args.enc <= 14: A(f"v_readlane_b32 {t0}, {v(SV)}, {args.enc}"); A("s_nop 3")
    else: A(f"s_mov_b32 {t0}, s{72+2*(args.enc-15)}")
    A(f"s_cmp_eq_u32 {t0}, 0"); A("s_cbranch_scc1 L_enc2")
    A(f"s_cmp_lt_u32 {sJ}, {j0}"); A("s_cbranch_scc1 L_enc2")
    A(f"s_cmp_ge_u32 {sJ}, {j1}"); A("s_cbranch_scc1 L_enc2")
    A(f"s_sub_u32 {t0}, {t0}, s100"); A(f"s_min_u32 {t0}, {t0}, 10000"); A(f"s_lshl_b32 {t0}, {t0}, 3"); A(f"s_add_u32 {t0}, {t0}, s66")
    A("L_enc:")
    A("s_sleep 8")
    A("s_memrealtime s[64:65]"); A("s_waitcnt lgkmcnt(0)")
    A(f"s_sub_u32 {t1}, s64, {t0}"); A(f"s_cmp_lt_i32 {t1}, 0"); A("s_cbranch_scc1 L_enc")
    A("L_enc2:")
if ST:
    A("s_mov_b64 exec, -1")
    A("s_waitcnt lgkmcnt(0)")
    A(f"v_writelane_b32 {v(SV)}, s100, 0")
    for k in range(14): A(f"v_writelane_b32 {v(SV)}, s{72+2*k}, {15+k}")
    A(f"s_lshl_b32 {t0}, s2, 2"); A(f"s_add_u32 {t0}, {t0}, {sW}"); A(f"s_lshl_b32 {t0}, {t0}, 8"); A(f"s_add_u32 {t0}, {t0}, {STAMP_O}")
    A(f"v_mov_b32 {v(SV+1)}, 0")
    A(f"v_lshlrev_b32 {v(SV+2)}, 3, v0")
    A("s_mov_b32 exec_hi, 0")
    A(f"buffer_store_dwordx2 {v(SV,2)}, {v(SV+2)}, {srd(rWS)}, {t0} offen")
A("L_end:")
A("s_endpgm")
if args.near:
    A("L_probe:")
    A(f"s_cmp_lt_u32 {sJ}, 20"); A("s_cbranch_scc1 L_next")
    A(f"s_cmp_lg_u32 {sL}, 0"); A("s_cbranch_scc1 L_next")
    A(f"s_sub_u32 {t0}, {sJ}, 20"); A(f"s_lshl_b32 {t0}, {t0}, 18"); A(f"s_lshl_b32 {t1}, {sX}, 10"); A(f"s_add_u32 {t0}, {t0}, {t1}"); A(f"s_add_u32 {t0}, {t0}, {XP_O + 3*65536}")
    A(f"s_add_u32 s44, s{rWS}, {t0}"); A(f"s_addc_u32 s45, s{rWS+1}, 0")
    A(f"s_mov_b32 {t2}, -1"); A(f"s_mov_b32 {t3}, -1"); A(f"s_mov_b32 {t4}, 3")
    A("L_pr1:")
    A("s_memtime s[46:47]"); A("s_waitcnt lgkmcnt(0)")
    A(f"s_load_dword {t5}, s[44:45], 0 glc"); A("s_waitcnt lgkmcnt(0)")
    A("s_memtime s[48:49]"); A("s_waitcnt lgkmcnt(0)")
    A(f"s_load_dword {t5}, s[44:45], 0x2000 glc"); A("s_waitcnt lgkmcnt(0)")
    A("s_memtime s[50:51]"); A("s_waitcnt lgkmcnt(0)")
    A(f"s_sub_u32 {t0}, s48, s46"); A(f"s_sub_u32 {t1}, s50, s48")
    A(f"s_min_u32 {t2}, {t2}, {t0}"); A(f"s_min_u32 {t3}, {t3}, {t1}")
    A(f"s_sub_u32 {t4}, {t4}, 1"); A(f"s_cmp_lg_u32 {t4}, 0"); A("s_cbranch_scc1 L_pr1")
    A(f"s_cmp_lt_u32 {t3}, {t2}"); A(f"s_cselect_b32 {t0}, 0x2000, 0")
    A(f"v_mov_b32 {TT}, 0"); A(f"v_mov_b32 {LS}, {t0}")
    A(f"ds_write_b32 {TT}, {LS} offset:{L_NEAR}")
    A("s_branch L_next")
A("L_af2:")
A(f"s_cmp_eq_u32 {sMode}, {FB_O}")
A("s_cbranch_scc1 L_g2")
A(f"s_add_u32 {sMode}, {sMode}, 1")
A(f"s_lshl_b32 {t2}, {sX}, 10"); A(f"s_add_u32 {t2}, {t2}, {FL_O}")
A(f"s_lshl_b32 {t4}, {sL}, 2"); A(f"s_add_u32 {t1}, {t4}, {t2}")
A(f"s_cmp_lt_u32 {sMode}, {1 if args.forcefb else 40}")
A("s_cbranch_scc1 L_af5")
A("s_mov_b64 exec, 1")
A(f"buffer_store_dword {FN}, {vL16}, {srd(rWS)}, {t1} offen sc1")
A("s_mov_b32 exec_lo, -1")
A(f"buffer_load_dwordx4 {v(FG,4)}, {vL16}, {srd(rWS)}, {t2} offen sc1")
A("s_mov_b32 exec_hi, -1")
A("s_waitcnt vmcnt(0)")
flags_diff()
A(f"v_and_b32 {TT}, 0x0fffffff, {CK}")
A(f"v_cmp_ne_u32 vcc, 0, {TT}")
A("s_cmp_lg_u32 vcc_lo, 0")
A("s_cbranch_scc1 L_af5")
A(f"v_cmp_ne_u32 vcc, 0, {CK}")
A("s_cmp_lg_u32 vcc_lo, 0")
if args.forcefb: A("s_cmp_eq_u32 0, 0")
A("s_cbranch_scc1 L_spread")
A("L_af5:")
A(f"s_sub_u32 {sTO}, {sTO}, 1")
A("s_cbranch_scc0 L_g4")
A(f"s_mov_b32 {sTO}, 0")
A(f"s_mov_b32 {sMode}, 0")
A("s_branch L_g2")
A("L_spread:")
A(f"s_mov_b32 {sMode}, {FB_O}")
A(f"s_add_u32 {sGp}, {sGf}, {FB_O}")
empty_share(sGp, ' sc1')
A("s_mov_b32 exec_hi, 0")
A(qp_store.format(so=sGp, fl=' sc1'))
A("s_waitcnt vmcnt(0)")
A("s_mov_b64 exec, 1")
A(f"buffer_store_dword {FN}, {vL16}, {srd(rWS)}, {t1} offen offset:512 sc1")
A("s_mov_b32 exec_lo, -1")
A("L_sp1:")
A("s_mov_b32 exec_hi, 0")
A(f"buffer_load_dwordx4 {v(FG,4)}, {vL16}, {srd(rWS)}, {t2} offen offset:512 sc1")
A("s_mov_b32 exec_hi, -1")
A("s_waitcnt vmcnt(0)")
flags_diff()
A(f"v_and_b32 {CK}, 0x0fffffff, {CK}")
A(f"v_cmp_ne_u32 vcc, 0, {CK}")
A("s_cmp_eq_u32 vcc_lo, 0")
A("s_cbranch_scc1 L_g4")
A("s_sleep 4")
A(timeout("L_sp1", "L_g4"))
for t in tail: A(t)
A.raw('L_codeend:')
A.raw('.section .rodata,"a"')
A.raw(".p2align 6")
A.raw(f".amdhsa_kernel {NAME}_kernel")
A.raw(f"  .amdhsa_next_free_vgpr {ACC+NACC}")
A.raw("  .amdhsa_next_free_sgpr 102")
A.raw(f"  .amdhsa_accum_offset {ACC}")
A.raw("  .amdhsa_group_segment_fixed_size 0")
A.raw("  .amdhsa_kernarg_size 104")
A.raw("  .amdhsa_user_sgpr_count 2")
A.raw("  .amdhsa_user_sgpr_kernarg_segment_ptr 1")
A.raw("  .amdhsa_system_sgpr_workgroup_id_x 1")
A.raw(".end_amdhsa_kernel")
txt = A.text()
if args.cyc: txt = txt.replace('s_memrealtime', 's_memtime')
sys.stdout.write(txt)
```

```python
import sys, argparse, struct
sys.path.insert(0, 'dev')
from asmlib import Asm
NAME = "interleave_layers__sliding_block_cached__dense_activation_gelu__decode"
ap = argparse.ArgumentParser()
ap.add_argument('--stamps', action='store_true')
ap.add_argument('--pro', action='store_true')
ap.add_argument('--cyc', action='store_true')
ap.add_argument('--xt', type=int, default=0)
ap.add_argument('--xd', type=int, default=11)
ap.add_argument('--enc', type=int, default=0)
ap.add_argument('--encj', default='0,32')
ap.add_argument('--only', default='')
ap.add_argument('--pQ', type=int, default=4)
ap.add_argument('--code', type=int, default=1)
ap.add_argument('--early', default='0')
ap.add_argument('--mid', default='')
ap.add_argument('--w1dma', type=int, default=0)
ap.add_argument('--near', type=int, default=1)
ap.add_argument('--p2', default='sy')
ap.add_argument('--wb', type=int, default=0)
ap.add_argument('--dirty', type=int, default=0)
ap.add_argument('--vw', type=int, default=1)
ap.add_argument('--di', type=int, default=1)
ap.add_argument('--dz', type=int, default=1)
ap.add_argument('--dxx', type=int, default=1)
ap.add_argument('--nt', default='k,v')
ap.add_argument('--forcefb', action='store_true')
args = ap.parse_args()
def ntf(c): return ' nt' if c in args.nt.split(',') else ''
NT = ntf('s'); NTK = ntf('k'); NTV = ntf('v'); NTQ = ntf('q'); NTO = ntf('o'); NTM = ntf('m'); NT2 = ntf('2')
ST = args.stamps

def f32(x): return '0x%08x' % struct.unpack('<I', struct.pack('<f', x))[0]

CLR = 1792
OP_O = 0
Y_O = OP_O + 131072
ST_O = Y_O + 82944
ST1_O = ST_O + 2048
Z1_O = ST1_O + 2048
Z2_O = Z1_O + 2304
Z3_O = Z2_O + 2304
assert Z3_O + 2304 <= 128 * CLR
QP_O = 128 * CLR
QP1_O = QP_O + 65536
FF_O = QP1_O + 65536
GB = FF_O + 1024
FB_O = 8 * GB
XP_O = 6 << 20
assert XP_O >= 16 * GB
XPS = 16384
FL_O = XP_O + 12 * 262144
EP_O = FL_O + 8 * 1024
STAMP_O = 0x8000000
L_NEAR = 8176
L_X = 640
L_QT, L_STAT, L_OT, L_PT, L_HP, L_K, L_WQ, L_SIZE = 0, 512, 1024, 2560, 8192, 16384, 49152, 67584

rK, rV, rWQ, rWO, rW1, rW2, rWS, rX, rOUT, rT1, rT2 = 4, 8, 12, 16, 20, 24, 28, 32, 36, 44, 48
sTask, kv0, kv1, sFlag = 's40', 's41', 's42', 's43'
def srd(n): return f"s[{n}:{n+3}]"
sW, sX, sJ, sGf, sGp, sXoff, sTO, sMode, sL, sWo = [f"s{i}" for i in range(52, 62)]
t0, t1, t2, t3, t4, t5 = [f"s{i}" for i in range(62, 68)]
mLO8 = "s[68:69]"; mROW = "s[70:71]"
MXA = "0x00330033"
sRole = "s3"
(vL4, vL16, vIdxD, vIdxP, vIdxS, vXAq, vXAm, vQPst, vQPg, vL128, vQTw, vQTr, vPTw, vPTr, vSTst, vOPst, vSTg, vOPg, vOTw, vOTr,
 vYst, vMst, vHPw, vSTm, vRg, vSTATr, vXPst, vXPg, vZst, vXres, vB2, vB1, vCq, vZo, vXS1, vXS2, vWrow, vHPr, vOnes) = [f"v{i}" for i in range(1, 40)]
XA, D0, D1, DP, AO, SG, YG, XG, XS, FG, TM, EM, KA, SV, OG, QG = 40, 64, 68, 72, 76, 104, 120, 132, 136, 148, 152, 176, 180, 184, 188, 196
vQPg2 = 'v92'
ACC = 212
aWQ, aK, aV, aWO, aW1, aW2, aWOt, NACC = 0, 24, 56, 88, 120, 168, 200, 232
aW2t = aW1
def v(n, k=1): return f"v{n}" if k == 1 else f"v[{n}:{n+k-1}]"
def a(n, k=1): return f"a{n}" if k == 1 else f"a[{n}:{n+k-1}]"
CK = v(TM + 23); FN = v(TM + 22); vTag = v(TM + 21); DUM = v(TM + 20)
sEp, sXPo = kv0, kv1

A = Asm()
tail = []
nst = [0]
def pstamp(k):
    if args.pro: A(f"s_memrealtime s[{72+2*k}:{73+2*k}]")
def stamp():
    if ST and not args.pro:
        k = nst[0]; nst[0] += 1
        assert k < 13
        if ONLY is None or k in ONLY: A(f"s_memrealtime s[{72+2*k}:{73+2*k}]")
ONLY = set(int(x) for x in args.only.split(',')) if args.only else None
def lg(n): return 0 if (ST and ONLY is None) else n
def exec_xa(): return [f"s_mov_b32 exec_lo, {MXA}", f"s_mov_b32 exec_hi, {MXA}"]

def check_text(regs):
    regs = list(regs); o = []
    if len(regs) == 1: cur = regs[0]
    else:
        take = regs[:3]; regs = regs[3:]
        o.append(f"v_max3_u32 {CK}, {take[0]}, {take[1]}, {take[2]}" if len(take) == 3 else f"v_max_u32 {CK}, {take[0]}, {take[1]}")
        while regs:
            take = regs[:2]; regs = regs[2:]
            o.append(f"v_max3_u32 {CK}, {CK}, {take[0]}, {take[1]}" if len(take) == 2 else f"v_max_u32 {CK}, {CK}, {take[0]}")
        cur = CK
    o.append(f"v_cmp_eq_u32 vcc, -1, {cur}")
    return o
def nvm(loads): return sum(1 for l in loads if l.startswith('buffer_'))
def timeout(again, ok): return f"s_sub_u32 {sTO}, {sTO}, 1\ns_cbranch_scc0 {again}\ns_mov_b32 {sTO}, 0\ns_waitcnt vmcnt(0) lgkmcnt(0)\ns_branch {ok}"

def poll(loads, regs, primed=False, extra_wait="", chk=None, site=''):
    lp = A.newlabel('L_poll'); to = A.newlabel('L_to'); ok = A.newlabel('L_ok'); en = A.newlabel('L_in')
    if primed:
        A(f"s_waitcnt vmcnt(0){extra_wait}")
        for l in (chk or check_text(regs)): A(l)
        A(f"s_cbranch_vccnz {lp}")
        A(f"{ok}:")
        tail.append(f"{lp}:\n" + "\n".join(loads) + f"\ns_sub_u32 {sTO}, {sTO}, 1\ns_cbranch_scc1 {to}\ns_waitcnt vmcnt(0){extra_wait}\n" +
                    "\n".join(chk or check_text(regs)) + f"\ns_cbranch_vccnz {lp}\ns_branch {ok}\n{to}:\ns_mov_b32 {sTO}, 0\ns_waitcnt vmcnt(0) lgkmcnt(0)\ns_branch {ok}")
        return
    two = site and site in args.p2
    if two:
        for l in loads: A(l)
        A("s_sleep 2")
    A(f"{lp}:")
    for l in loads: A(l)
    A(f"s_sub_u32 {sTO}, {sTO}, 1")
    A(f"s_cbranch_scc1 {to}")
    A(f"s_waitcnt vmcnt({nvm(loads) if two else 0}){extra_wait}")
    for l in (chk or check_text(regs)): A(l)
    A(f"s_cbranch_vccnz {lp}")
    A(f"{ok}:")
    tail.append(f"{to}:\ns_mov_b32 {sTO}, 0\ns_waitcnt vmcnt(0) lgkmcnt(0)\ns_branch {ok}")

def sm(d, av, br, idx): A(f"v_smfmac_f32_16x16x64_bf16 {v(d,4)}, {v(av,4)}, {a(br,8)}, {idx}")
def xa_loads(rr, voff, so, n, fl, short_last=False):
    o = exec_xa()
    for i in range(n):
        if short_last and i == n - 1: o.append("s_mov_b64 exec, 0x33")
        o.append(f"buffer_load_dwordx4 {v(XA+4*i,4)}, {voff}, {srd(rr)}, {so} offen offset:{64*i}{fl}")
    return o + ["s_mov_b64 exec, -1"]
def poll_proj(voff, so, n, wbase, short_last=False):
    loads = xa_loads(rWS, voff, so, n, ' sc1', short_last)
    lds = [l for l in loads if l.startswith('buffer_')]
    lp = A.newlabel('L_poll'); rt = A.newlabel('L_retry'); ok = A.newlabel('L_ok'); gen = A.newlabel('L_nan')
    for l in loads: A(l)
    A(f"{lp}:")
    A("s_waitcnt vmcnt(0)")
    for i in range(n): sm(D0, XA+4*i, wbase+8*i, vIdxD)
    for l in loads: A(l)
    A(f"v_cmp_u_f32 vcc, {v(D0)}, {v(D0+1)}")
    A(f"s_cbranch_vccnz {rt}")
    A(f"{ok}:")
    z = "\n".join(f"v_mov_b32 {v(D0+i)}, 0" for i in range(4))
    mm = "\n".join(f"v_smfmac_f32_16x16x64_bf16 {v(D0,4)}, {v(XA+4*i,4)}, {a(wbase+8*i,8)}, {vIdxD}" for i in range(n))
    tail.append(f"{rt}:\n{z}\ns_sub_u32 {sTO}, {sTO}, 1\ns_cbranch_scc1 {gen}\ns_and_b32 {t5}, {sTO}, 15\ns_cbranch_scc1 {lp}\n" +
                "\n".join(check_text([v(XA+i) for i in range(4*n)])) + f"\ns_cbranch_vccnz {lp}\n{gen}:\ns_max_i32 {sTO}, {sTO}, 0\n{mm}\ns_nop 7\ns_branch {ok}")

def pub(*fmts):
    for f in fmts: A(f.format(so=sGf, fl=''))
    sl = A.newlabel('L_slow'); bk = A.newlabel('L_back')
    A(f"s_cmp_lg_u32 {sMode}, 0")
    A(f"s_cbranch_scc1 {sl}")
    A(f"{bk}:")
    tail.append(f"{sl}:\n" + "\n".join(f.format(so=sGp, fl=' sc1') for f in fmts) + f"\ns_nop 1\ns_branch {bk}")

def rbf(dst, src):
    A(f"v_cvt_pk_bf16_f32 {dst}, {src}, {src}")
    A(f"v_and_b32 {dst}, 0xffff0000, {dst}")
def treduce(r):
    A(f"v_permlane32_swap_b32 {v(r)}, {v(r+2)}")
    A(f"v_permlane32_swap_b32 {v(r+1)}, {v(r+3)}")
    A(f"v_add_f32 {v(r)}, {v(r)}, {v(r+2)}")
    A(f"v_add_f32 {v(r+1)}, {v(r+1)}, {v(r+3)}")
    A(f"v_permlane16_swap_b32 {v(r)}, {v(r+1)}")
    A(f"v_add_f32 {v(r)}, {v(r)}, {v(r+1)}")
    A(f"v_add_f32_dpp {v(r)}, {v(r)}, {v(r)} row_ror:8 row_mask:0xf bank_mask:0xf")
S_, Q_ = v(TM), v(TM+1)
def stats(slot_off, write=True, early=None, late=None):
    S, Q = S_, Q_
    A(f"v_mov_b32 {S}, 0"); A(f"v_mov_b32 {Q}, 0")
    for i in range(9):
        A(f"v_dot2c_f32_bf16 {S}, {v(XS+i)}, {vOnes}")
        A(f"v_dot2c_f32_bf16 {Q}, {v(XS+i)}, {v(XS+i)}")
        if i == 2 and early: early()
    A(f"v_lshrrev_b32 {v(TM+2)}, 5, v0"); A(f"v_lshlrev_b32 {v(TM+2)}, 3, {v(TM+2)}")
    A(f"v_permlane16_swap_b32 {S}, {Q}")
    A(f"v_add_f32 {S}, {S}, {Q}")
    for k in (8, 4, 2, 1):
        A(f"v_add_f32_dpp {S}, {S}, {S} row_ror:{k} row_mask:0xf bank_mask:0xf")
    A(f"v_mul_f32 {Q}, {f32(1/576)}, {S}")
    A(f"v_mul_f32 {S}, {f32(1/576)}, {S}")
    if late: late()
    A(f"v_permlane16_swap_b32 {S}, {Q}")
    A(f"v_fma_f32 {Q}, -{S}, {S}, {Q}")
    A(f"v_max_f32 {Q}, 0, {Q}")
    A(f"v_cvt_pk_bf16_f32 {Q}, {S}, {Q}")
    A(f"v_lshlrev_b32 {S}, 16, {Q}")
    A(f"v_and_b32 {Q}, 0xffff0000, {Q}")
    A(f"v_add_f32 {Q}, {f32(1e-5)}, {Q}")
    rbf(Q, Q)
    A(f"v_sqrt_f32 {Q}, {Q}")
    rbf(Q, Q)
    A(f"v_rcp_f32 {Q}, {Q}")
    if write: A(f"ds_write_b64 {v(TM+2)}, {v(TM,2)} offset:{L_STAT+slot_off}")
def zero(r, n=4):
    for i in range(n): A(f"v_mov_b32 {v(r+i)}, 0")
def xs_loads(rr, so, fl):
    return [f"buffer_load_dwordx4 {v(XS,4)}, {vXS1}, {srd(rr)}, {so} offen{fl}",
            f"buffer_load_dwordx4 {v(XS+4,4)}, {vXS1}, {srd(rr)}, {so} offen offset:512{fl}",
            f"buffer_load_dword {v(XS+8)}, {vXS2}, {srd(rr)}, {so} offen offset:1024{fl}"]

A.raw(f"; @launch grid=(256,1,1) block=(256,1,1) lds={L_SIZE}")
A.raw('.amdgcn_target "amdgcn-amd-amdhsa--gfx950"')
A.raw(".text")
A.raw(f".globl {NAME}_kernel")
A.raw(".p2align 8")
A.raw(f".type {NAME}_kernel,@function")
A.raw(f"{NAME}_kernel:")
if ST:
    A("s_memrealtime s[100:101]")
    for k in range(14): A(f"s_mov_b64 s[{72+2*k}:{73+2*k}], 0")
A("s_cmp_ge_u32 s2, 256")
A("s_cbranch_scc1 L_end")
for r, off in ((rWS, 96), (rX, 0), (rWQ, 24), (rK, 8), (rV, 16), (rWO, 32)):
    A(f"s_load_dwordx2 s[{r}:{r+1}], s[0:1], {off}")
A(f"v_lshrrev_b32 {v(TM)}, 6, v0")
A(f"v_and_b32 v0, 63, v0")
A(f"v_readfirstlane_b32 {sW}, {v(TM)}")
for r, n in ((rX, 2304), (rWQ, 4718592), (rK, 33554432), (rV, 33554432), (rWS, 268435456), (rWO, 4718592)):
    A(f"s_mov_b32 s{r+2}, {n}"); A(f"s_mov_b32 s{r+3}, 0x20000")
A(f"s_and_b32 {sX}, s2, 7")
A(f"s_lshr_b32 {sJ}, s2, 3")
A("s_mov_b32 s68, 0x00ff00ff"); A("s_mov_b32 s69, 0x00ff00ff")
G, C, B2 = v(TM+3), v(TM+4), v(TM+5)
A(f"v_lshrrev_b32 {G}, 4, v0")
A(f"v_and_b32 {C}, 15, v0")
A(f"v_lshlrev_b32 {vL16}, 4, v0")
A(f"v_lshlrev_b32 {vL128}, 7, v0")
for i in range(4): A(f"v_mov_b32 {v(EM+i)}, -1")
A(f"s_lshr_b32 {t0}, {sJ}, 4"); A(f"s_lshl_b32 {t3}, {sX}, 1"); A(f"s_add_u32 {t0}, {t0}, {t3}")
A(f"s_bfe_u32 {t1}, {sJ}, 0x10003")
A(f"s_and_b32 {t2}, {sJ}, 7")
A(f"s_mul_i32 {sGf}, {sX}, {GB}")
A(f"v_bfe_u32 {B2}, v0, 2, 1")
A(f"v_mul_u32_u24 {vXAm}, 1152, {B2}")
A(f"v_lshl_add_u32 {vXAm}, {G}, 4, {vXAm}")
A(f"s_mul_i32 {t4}, {t2}, 144")
A(f"v_add_u32 {vXAq}, {t4}, {vXAm}")
for i in range(12): A(f"v_mov_b32 {v(XA+i)}, 0x3f803f80")
A(f"v_lshlrev_b32 {v(TM+6)}, 13, {G}")
A(f"v_lshl_add_u32 {v(TM+6)}, {C}, 4, {v(TM+6)}")
A(f"s_mul_i32 {t3}, {t2}, 18"); A(f"s_add_u32 {t3}, {t3}, {sW}"); A(f"s_lshl_b32 {t3}, {t3}, 15")
A(f"s_lshl_b32 {t4}, {t0}, 9"); A(f"s_add_u32 {t3}, {t3}, {t4}"); A(f"s_lshl_b32 {t4}, {t1}, 8"); A(f"s_add_u32 {t3}, {t3}, {t4}")
A(f"s_lshl_b32 {t4}, {sW}, 10"); A(f"s_add_u32 m0, {t4}, {L_WQ}")
A(f"s_lshl_b32 {kv0}, {t1}, 24"); A(f"s_lshl_b32 {t4}, {t0}, 20"); A(f"s_add_u32 {kv0}, {kv0}, {t4}")
A(f"s_lshl_b32 {t4}, {t2}, 15"); A(f"s_add_u32 {kv0}, {kv0}, {t4}")
A(f"s_lshl_b32 {t4}, {sW}, 13"); A(f"s_add_u32 {kv0}, {kv0}, {t4}")
A(f"s_add_u32 {kv0}, {kv0}, {3072*256}"); A(f"s_add_u32 {kv1}, {kv0}, 4096")
A(f"v_xor_b32 {v(TM+7)}, {C}, {G}")
A(f"v_lshlrev_b32 {v(TM+7)}, 4, {v(TM+7)}")
A(f"v_lshl_add_u32 {v(KA)}, {G}, 8, {v(TM+7)}")
for i in range(1, 4): A(f"v_xor_b32 {v(KA+i)}, {64*i}, {v(KA)}")
A(f"s_lshl_b32 {sL}, {sJ}, 2"); A(f"s_add_u32 {sL}, {sL}, {sW}")
A(f"s_lshl_b32 {t4}, {sL}, 9"); A(f"s_add_u32 {t4}, {t4}, {QP_O}")
A(f"v_add_u32 {vQPst}, {t4}, {vL16}")
A(f"s_mov_b32 {t5}, {EP_O}")
A("s_waitcnt lgkmcnt(0)")
pstamp(0)
A("s_mov_b64 exec, 1")
A(f"buffer_load_dword {FN}, {vL16}, {srd(rWS)}, {t5} offen{NT}")
A("s_mov_b64 exec, -1")
def empty_share(base, fl):
    A(f"s_mul_i32 {t5}, {sL}, {CLR}"); A(f"s_add_u32 {t5}, {t5}, {base}")
    A(f"buffer_store_dwordx4 {v(EM,4)}, {vL16}, {srd(rWS)}, {t5} offen{fl}")
    A(f"buffer_store_dwordx4 {v(EM,4)}, {vL16}, {srd(rWS)}, {t5} offen offset:{CLR-1024}{fl}")
A(f"s_cmp_lg_u32 {sW}, 3")
A("s_cbranch_scc1 L_pro2")
A(f"v_lshrrev_b32 {v(TM+8)}, 5, v0"); A(f"v_and_b32 {v(TM+9)}, 31, v0")
A(f"v_mul_u32_u24 {vXS1}, 1152, {v(TM+8)}"); A(f"v_lshl_add_u32 {vXS2}, {v(TM+9)}, 2, {vXS1}"); A(f"v_lshl_add_u32 {v(TM+10)}, {v(TM+9)}, 3, {vXS1}"); A(f"v_lshl_add_u32 {vXS1}, {v(TM+9)}, 4, {vXS1}")
for l in xs_loads(rX, 0, NT): A(l)
A(f"s_mul_i32 {t5}, {t2}, 144")
A(f"buffer_load_dwordx2 {v(XG,2)}, {v(TM+10)}, {srd(rX)}, {t5} offen{NT}")
A("L_pro2:")
for n in range(5):
    if n == 4:
        A(f"s_cmp_ge_u32 {sW}, 2"); A("s_cbranch_scc1 L_pro1")
    A(f"buffer_load_dwordx4 {v(TM+6)}, {srd(rWQ)}, {t3} offen{NTQ} lds")
    if n < 4: A(f"s_add_u32 {t3}, {t3}, {16*8192}"); A("s_add_u32 m0, m0, 4096")
A("L_pro1:")
empty_share(sGf, '')
A(f"s_lshl_b32 {t4}, {sW}, 13"); A(f"s_add_u32 m0, {t4}, {L_K}")
for i in range(8):
    if i == 4: A(f"s_add_u32 m0, m0, 4096")
    A(f"buffer_load_dwordx4 {v(KA+i%4)}, {srd(rK)}, {kv0 if i < 4 else kv1} offen offset:{1024*(i%4)}{NTK} lds")

def constants():
    A(f"v_mul_u32_u24 {vWrow}, 1152, {G}")
    A(f"v_lshl_add_u32 {vWrow}, {C}, 4, {vWrow}")
    A(f"s_cmp_lt_u32 {sJ}, 18"); A(f"s_cselect_b32 {sRole}, 1, 0")
    A(f"s_cmp_ge_u32 {sJ}, 20"); A(f"s_cselect_b32 {t4}, 2, 0"); A(f"s_cmp_lt_u32 {sW}, 3"); A(f"s_cselect_b32 {t4}, {t4}, 0"); A(f"s_or_b32 {sRole}, {sRole}, {t4}")
    A(f"s_sub_u32 {sTask}, {sJ}, 20"); A(f"s_mul_i32 {sTask}, {sTask}, 3"); A(f"s_add_u32 {sTask}, {sTask}, {sW}"); A(f"s_min_u32 {sTask}, {sTask}, 35")
    A(f"s_lshl_b32 {t3}, {sX}, 4"); A(f"s_and_b32 {t4}, {sJ}, 15"); A(f"s_add_u32 {sWo}, {t3}, {t4}"); A(f"s_mul_i32 {sWo}, {sWo}, {32*1152}")
    A(f"s_lshl_b32 {t4}, {sW}, 8"); A(f"s_add_u32 {sWo}, {sWo}, {t4}")
    for r, n in ((rW1, 5308416), (rW2, 5308416), (rOUT, 2304), (rT1, 9216), (rT2, 1152)):
        A(f"s_mov_b32 s{r+2}, {n}"); A(f"s_mov_b32 s{r+3}, 0x20000")
    A("s_mov_b32 s70, 0xffff0000"); A("s_mov_b32 s71, 0xffff0000")
    A(f"v_lshlrev_b32 {vL4}, 2, v0")
    for i in range(12, 24): A(f"v_mov_b32 {v(XA+i)}, 0x3f803f80")
    A(f"s_lshl_b32 {t4}, {sW}, 13"); A(f"s_add_u32 {t4}, {t4}, {L_K}")
    A(f"v_lshl_add_u32 {v(KA)}, {C}, 8, {v(TM+7)}"); A(f"v_add_u32 {v(KA)}, {t4}, {v(KA)}")
    for i in range(1, 4): A(f"v_xor_b32 {v(KA+i)}, {64*i}, {v(KA)}")
    T_ = [v(TM+8+i) for i in range(10)]
    A(f"v_and_b32 {T_[0]}, 1, v0")
    A(f"v_mul_u32_u24 {vIdxP}, 0xaaaa, {T_[0]}"); A(f"v_add_u32 {vIdxP}, 0x4444, {vIdxP}")
    A(f"v_and_b32 {T_[1]}, 3, v0")
    A(f"v_mul_u32_u24 {vIdxS}, 0x5555, {T_[1]}")
    A(f"v_bfe_u32 {T_[2]}, v0, 4, 1")
    A(f"v_bfe_u32 {T_[3]}, v0, 2, 2")
    A(f"v_bfe_u32 {T_[4]}, v0, 3, 1")
    A(f"v_lshrrev_b32 {T_[5]}, 5, v0")
    A(f"v_and_b32 {T_[8]}, 7, v0")
    A(f"v_and_b32 {T_[9]}, 31, v0")
    A(f"s_lshr_b32 {t3}, {sJ}, 4")
    A(f"s_lshr_b32 {t5}, {sJ}, 3")
    A(f"s_lshl_b32 {t3}, {t3}, 1"); A(f"s_lshr_b32 {t4}, {sW}, 1"); A(f"s_add_u32 {t3}, {t3}, {t4}"); A(f"s_lshl_b32 {t3}, {t3}, 14")
    A(f"s_and_b32 {t4}, {sW}, 1"); A(f"s_lshl_b32 {t4}, {t4}, 10"); A(f"s_add_u32 {t3}, {t3}, {t4}")
    A(f"s_lshl_b32 {t4}, {t1}, 8"); A(f"s_add_u32 {t3}, {t3}, {t4}"); A(f"s_add_u32 {t3}, {t3}, {QP_O}")
    A(f"v_lshl_add_u32 {vQPg}, {T_[5]}, 4, {T_[2]}"); A(f"v_lshlrev_b32 {vQPg}, 9, {vQPg}"); A(f"v_lshl_add_u32 {vQPg}, {C}, 4, {vQPg}"); A(f"v_add_u32 {vQPg}, {t3}, {vQPg}")
    A(f"v_add_u32 {vQPg2}, 4096, {vQPg}")
    A(f"s_and_b32 {t3}, {sW}, 1"); A(f"s_lshl_b32 {t3}, {t3}, 8"); A(f"s_lshr_b32 {t4}, {sW}, 1"); A(f"s_lshl_b32 {t4}, {t4}, 7"); A(f"s_add_u32 {t3}, {t3}, {t4}")
    A(f"v_bfe_u32 {T_[6]}, v0, 3, 2"); A(f"v_bfe_u32 {T_[7]}, v0, 1, 2")
    A(f"v_lshlrev_b32 {vQTw}, 5, {T_[6]}"); A(f"v_lshl_add_u32 {vQTw}, {T_[0]}, 4, {vQTw}"); A(f"v_lshl_add_u32 {vQTw}, {T_[7]}, 2, {vQTw}")
    A(f"v_lshl_add_u32 {vQTw}, {T_[5]}, 1, {vQTw}"); A(f"v_add_u32 {vQTw}, {t3}, {vQTw}")
    A(f"v_lshlrev_b32 {vQTr}, 5, {G}"); A(f"v_lshl_add_u32 {vQTr}, {T_[4]}, 7, {vQTr}"); A(f"v_lshl_add_u32 {vQTr}, {T_[0]}, 4, {vQTr}")
    A(f"v_mul_u32_u24 {vOTr}, 640, {T_[4]}"); A(f"v_lshl_add_u32 {vOTr}, {G}, 5, {vOTr}"); A(f"v_lshl_add_u32 {vOTr}, {B2}, 4, {vOTr}")
    A(f"s_mul_i32 {t3}, {sW}, 1280"); A(f"s_add_u32 {t3}, {t3}, {L_PT}")
    A(f"v_add_u32 {vPTr}, {t3}, {vOTr}"); A(f"v_add_u32 {vOTr}, {L_OT}, {vOTr}")
    A(f"v_bfe_u32 {T_[6]}, v0, 1, 4")
    A(f"v_mul_u32_u24 {vPTw}, 640, {T_[5]}"); A(f"v_lshl_add_u32 {vPTw}, {T_[6]}, 5, {vPTw}"); A(f"v_lshl_add_u32 {vPTw}, {T_[0]}, 3, {vPTw}"); A(f"v_add_u32 {vPTw}, {t3}, {vPTw}")
    A(f"v_lshrrev_b32 {vHPr}, 1, v0"); A(f"v_lshlrev_b32 {vHPr}, 4, {vHPr}"); A(f"v_lshl_add_u32 {vHPr}, {T_[0]}, 2, {vHPr}"); A(f"v_add_u32 {vHPr}, {L_HP}, {vHPr}")
    A(f"s_lshl_b32 {t3}, {sW}, 9"); A(f"s_add_u32 {t3}, {t3}, {L_HP}"); A(f"v_add_u32 {vHPw}, {t3}, {vL16}")
    A(f"s_lshl_b32 {t3}, {t5}, 9"); A(f"s_add_u32 {t3}, {t3}, {ST_O}")
    A(f"s_lshl_b32 {t4}, {t2}, 2"); A(f"s_add_u32 {t4}, {t4}, {sW}"); A(f"s_lshl_b32 {t4}, {t4}, 2"); A(f"s_add_u32 {t4}, {t4}, {t3}")
    A(f"v_lshlrev_b32 {vSTst}, 8, {T_[5]}"); A(f"v_lshl_add_u32 {vSTst}, {T_[0]}, 7, {vSTst}"); A(f"v_add_u32 {vSTst}, {t4}, {vSTst}")
    A(f"s_lshl_b32 {t3}, {t1}, 1"); A(f"s_lshr_b32 {t4}, {sW}, 1"); A(f"s_add_u32 {t3}, {t3}, {t4}"); A(f"s_lshl_b32 {t3}, {t3}, 9"); A(f"s_add_u32 {t3}, {t3}, {ST_O}")
    A(f"s_lshr_b32 {t4}, {t2}, 2"); A(f"s_lshl_b32 {t4}, {t4}, 8"); A(f"s_add_u32 {t3}, {t3}, {t4}")
    A(f"v_lshrrev_b32 {T_[7]}, 3, v0")
    A(f"v_lshl_add_u32 {vSTg}, {T_[7]}, 4, {t3}")
    A(f"s_and_b32 {t4}, {sW}, 1"); A(f"s_lshl_b32 {t4}, {t4}, 3"); A(f"v_add_u32 {vSTm}, {t4}, {vSTg}")
    A(f"s_lshr_b32 {t3}, {sJ}, 4"); A(f"s_lshl_b32 {t3}, {t3}, 16"); A(f"s_lshl_b32 {t4}, {t1}, 12"); A(f"s_add_u32 {t3}, {t3}, {t4}")
    A(f"s_lshl_b32 {t4}, {sW}, 10"); A(f"s_add_u32 {t3}, {t3}, {t4}"); A(f"s_lshl_b32 {t4}, {t2}, 7"); A(f"s_add_u32 {t3}, {t3}, {t4}")
    A(f"v_lshlrev_b32 {T_[6]}, 5, {T_[1]}"); A(f"v_lshl_add_u32 {T_[6]}, {T_[2]}, 4, {T_[6]}")
    A(f"v_lshl_add_u32 {vOPst}, {T_[5]}, 2, {T_[3]}"); A(f"v_lshl_add_u32 {vOPst}, {vOPst}, 13, {T_[6]}"); A(f"v_add_u32 {vOPst}, {t3}, {vOPst}")
    A(f"s_and_b32 {t3}, {sJ}, 15"); A(f"s_lshl_b32 {t3}, {t3}, 13"); A(f"s_lshl_b32 {t4}, {sW}, 11"); A(f"s_add_u32 {t3}, {t3}, {t4}"); A(f"v_add_u32 {vOPg}, {t3}, {vL16}")
    A(f"s_lshr_b32 {t3}, {sW}, 1"); A(f"s_mul_i32 {t3}, {t3}, 640"); A(f"s_and_b32 {t4}, {sW}, 1"); A(f"s_lshl_b32 {t4}, {t4}, 1"); A(f"s_add_u32 {t3}, {t3}, {t4}"); A(f"s_add_u32 {t3}, {t3}, {L_OT}")
    A(f"v_mul_u32_u24 {vOTw}, 20, {T_[4]}"); A(f"v_lshl_add_u32 {vOTw}, {T_[8]}, 6, {vOTw}"); A(f"v_lshl_add_u32 {vOTw}, {T_[5]}, 5, {vOTw}")
    A(f"v_lshl_add_u32 {vOTw}, {T_[2]}, 3, {vOTw}"); A(f"v_add_u32 {vOTw}, {t3}, {vOTw}")
    A(f"s_mul_i32 {t3}, {sW}, {4*2304}"); A(f"s_lshl_b32 {t4}, {sJ}, 7"); A(f"s_add_u32 {t3}, {t3}, {t4}"); A(f"s_add_u32 {t3}, {t3}, {Y_O}")
    A(f"v_mul_u32_u24 {vMst}, 18, {T_[5]}"); A(f"v_add_u32 {vMst}, {vMst}, {T_[3]}"); A(f"v_mul_u32_u24 {vMst}, 2304, {vMst}")
    A(f"v_add3_u32 {vMst}, {vMst}, {T_[6]}, {t3}")
    A(f"v_subrev_u32 {vYst}, 2048, {vMst}")
    A(f"v_mul_u32_u24 {vXS1}, 1152, {T_[5]}"); A(f"v_lshl_add_u32 {vXS2}, {T_[9]}, 2, {vXS1}"); A(f"v_lshl_add_u32 {vXS1}, {T_[9]}, 4, {vXS1}")
    A(f"s_lshl_b32 {t3}, {t1}, 3"); A(f"s_add_u32 {t3}, {t3}, {L_STAT}"); A(f"v_mov_b32 {vSTATr}, {t3}")
    A(f"s_mul_i32 {t4}, {sW}, 384"); A(f"v_add_u32 {vXAm}, {t4}, {vXAm}")
    A(f"s_mul_i32 {t4}, {sX}, 18"); A(f"s_add_u32 {t4}, {t4}, {sJ}"); A(f"s_lshl_b32 {t5}, {t4}, 6")
    A(f"v_lshl_add_u32 {vB1}, {T_[9]}, 1, {t5}")
    A(f"s_mul_i32 {t4}, {sTask}, 2304"); A(f"s_add_u32 {t4}, {t4}, {Y_O}"); A(f"v_add_u32 {vRg}, {t4}, {vL16}")
    A(f"s_sub_u32 {t4}, {sL}, 80"); A(f"s_and_b32 {t4}, {t4}, 63"); A(f"s_lshl_b32 {t4}, {t4}, 16")
    A(f"s_lshl_b32 {t5}, {sX}, 10"); A(f"s_add_u32 {t5}, {t5}, {t4}"); A(f"v_lshl_add_u32 {vXPg}, v0, 3, {t5}")
    A(f"s_lshl_b32 {t5}, {sX}, 7"); A(f"s_add_u32 {t4}, {t4}, {t5}"); A(f"v_lshl_add_u32 {vXPst}, {T_[8]}, 4, {t4}")
    A(f"v_lshrrev_b32 {T_[7]}, 3, v0"); A(f"v_lshl_add_u32 {vXPst}, {T_[7]}, 10, {vXPst}")
    A(f"v_lshl_add_u32 {T_[7]}, {C}, 1, {T_[5]}")
    A(f"s_lshl_b32 {t4}, {sTask}, 6"); A(f"v_lshl_add_u32 {vZo}, {T_[7]}, 1, {t4}")
    A(f"v_add_u32 {vZst}, {Z1_O}, {vZo}")
    A(f"s_and_b32 {t5}, {sTask}, 7"); A(f"s_cmp_eq_u32 {t5}, {sX}"); A(f"s_cselect_b32 {t5}, 4, 0"); A(f"s_or_b32 {sRole}, {sRole}, {t5}")
    A(f"s_cmp_ge_u32 {sTask}, 18"); A(f"s_cselect_b32 {t5}, 1152, 0")
    A(f"v_subrev_u32 {vB2}, {t5}, {vZo}")

def constants1():
    A(f"v_and_b32 {v(TM+8)}, 1, v0")
    A(f"v_mul_u32_u24 {vIdxD}, 0x5555, {v(TM+8)}"); A(f"v_add_u32 {vIdxD}, 0x8888, {vIdxD}")
    A(f"v_mov_b32 {vOnes}, 0x3f803f80")
    A(f"s_lshl_b32 {t3}, {sW}, 6"); A(f"s_add_u32 {t3}, {t3}, {L_WQ}")
    A(f"v_lshlrev_b32 {vCq}, 10, {G}"); A(f"v_lshl_add_u32 {vCq}, {C}, 2, {vCq}"); A(f"v_add_u32 {vCq}, {t3}, {vCq}")
    for i in range(16, 24): A(f"v_accvgpr_write_b32 {a(aWQ+i)}, 0")
    zero(D0, 8)
    A(f"ds_write_b128 {v(D0)}, {v(EM,4)} offset:{L_STAT+16}")
    A(f"s_cmp_lg_u32 {sW}, 3")
    A("s_cbranch_scc1 L_c1")
    A(f"s_waitcnt vmcnt({4+2+8})")
    stats(0, False)
    for i in range(2):
        lo, hi = v(TM+8), v(TM+9)
        A(f"v_lshlrev_b32 {lo}, 16, {v(XG+i)}"); A(f"v_and_b32 {hi}, 0xffff0000, {v(XG+i)}")
        A(f"v_sub_f32 {lo}, {lo}, {S_}"); A(f"v_sub_f32 {hi}, {hi}, {S_}")
        A(f"v_cvt_pk_bf16_f32 {v(XG+i)}, {lo}, {hi}")
        A(f"v_lshlrev_b32 {lo}, 16, {v(XG+i)}"); A(f"v_and_b32 {hi}, 0xffff0000, {v(XG+i)}")
        A(f"v_mul_f32 {lo}, {lo}, {Q_}"); A(f"v_mul_f32 {hi}, {hi}, {Q_}")
        A(f"v_cvt_pk_bf16_f32 {v(XG+i)}, {lo}, {hi}")
    A(f"v_lshrrev_b32 {v(TM+8)}, 5, v0"); A(f"v_mul_u32_u24 {v(TM+8)}, 144, {v(TM+8)}"); A(f"v_and_b32 {v(TM+9)}, 31, v0"); A(f"v_lshl_add_u32 {v(TM+8)}, {v(TM+9)}, 3, {v(TM+8)}")
    A("s_mov_b32 exec_lo, 0x3ffff"); A("s_mov_b32 exec_hi, 0x3ffff")
    A(f"ds_write_b64 {v(TM+8)}, {v(XG,2)} offset:{L_X}")
    A("s_mov_b64 exec, -1")
    A("L_c1:")
    A(f"v_mul_u32_u24 {v(TM+10)}, 144, {B2}"); A(f"v_lshl_add_u32 {v(TM+10)}, {G}, 4, {v(TM+10)}")
    A(f"s_lshl_b32 {t3}, {sW}, 11"); A(f"v_add_u32 {v(TM+8)}, {t3}, {vL16}")
    A(f"ds_write_b128 {v(TM+8)}, {v(D1,4)} offset:1024"); A(f"ds_write_b128 {v(TM+8)}, {v(D1,4)} offset:2048")

fl_load = ["s_mov_b32 exec_hi, 0", f"buffer_load_dwordx4 {v(FG,4)}, {vL16}, {srd(rWS)}, {sXoff} offen sc1", "s_mov_b32 exec_hi, -1"]
qp_store = f"buffer_store_dwordx4 {v(D0,4)}, {vQPst}, {srd(rWS)}, {{so}} offen{{fl}}"
def qg(n): return [f"buffer_load_dwordx{n} {v(QG+4*p,n)}, {vQPg if p < 2 else vQPg2}, {srd(rWS)}, {sGp} offen offset:{2048*(p%2)} sc1" for p in range(4)]
qg4, qg2 = qg(4), qg(2)
pstamp(3)
for r, off in ((rW1, 48), (rW2, 64), (rOUT, 80), (rT1, 56), (rT2, 72)):
    A(f"s_load_dwordx2 s[{r}:{r+1}], s[0:1], {off}")
if args.code:
    A(f"s_cmp_ge_u32 {sL}, 2"); A("s_cbranch_scc1 L_nc")
    A("s_getpc_b64 s[66:67]")
    A("L_pc:")
    A(f"s_lshl_b32 {t3}, {sL}, 13"); A(f"v_add_u32 {v(TM+8)}, {t3}, {vL128}")
    A(f"v_min_u32 {v(TM+8)}, L_codeend-L_pc-4, {v(TM+8)}")
    A(f"global_load_dword {DUM}, {v(TM+8)}, s[66:67]")
    A("L_nc:")
constants1()
A(f"s_mov_b32 {sTO}, 0x40000"); A(f"s_mov_b32 {sMode}, 0"); A(f"s_mov_b32 {sGp}, {sGf}")
cnt = [8]
mark = {'K': 8}
def vm(s): A(s); cnt[0] += 1
A(f"s_lshl_b32 {t4}, {sL}, 9"); A(f"s_add_u32 {t4}, {t4}, {sGf}"); A(f"s_add_u32 {t4}, {t4}, {QP_O}")
A(f"s_add_u32 {sXoff}, {sGf}, {FF_O}")
A("s_mov_b64 exec, 15")
vm(f"buffer_load_dword {DUM}, {vL128}, {srd(rWS)}, {t4} offen sc1{NT}")
vm(f"buffer_load_dword {DUM}, {vL128}, {srd(rWS)}, {sXoff} offen sc1{NT}")
A("s_mov_b64 exec, -1")
def hookQ():
    A(f"s_lshl_b32 {t4}, {sL}, 2"); A(f"s_add_u32 {t4}, {t4}, {sXoff}")
    A(f"s_getreg_b32 {t3}, hwreg(HW_REG_XCC_ID)"); A(f"s_lshl_b32 {t3}, {t3}, 28")
    A(f"s_waitcnt vmcnt({cnt[0]}) lgkmcnt(0)")
    A("s_barrier")
    pstamp(2)
    for l in exec_xa(): A(l)
    for i in range(3):
        if i == 2: A("s_mov_b64 exec, 0x33")
        A(f"ds_read_b128 {v(XA+4*i,4)}, {v(TM+10)} offset:{L_X+64*i}")
    A("s_mov_b64 exec, -1")
    for i in range(2):
        for vv in range(0, 8, 2):
            row = 32*i + 16*(vv >> 2) + (vv & 3)
            A(f"ds_read2st64_b32 {a(aWQ+8*i+vv,2)}, {vCq} offset0:{row} offset1:{row+1}")
    A("s_mov_b32 exec_hi, 0")
    for vv in (0, 2): A(f"ds_read2st64_b32 {a(aWQ+16+vv,2)}, {vCq} offset0:{64+vv} offset1:{65+vv}")
    A("s_mov_b32 exec_hi, -1")
    A(f"v_readfirstlane_b32 {sFlag}, {FN}")
    A(f"s_add_u32 {sFlag}, {sFlag}, 0x0e377901"); A(f"s_and_b32 {sFlag}, {sFlag}, 0x0fffffff"); A(f"s_or_b32 {sFlag}, {sFlag}, {t3}")
    A(f"v_mov_b32 {FN}, {sFlag}")
    A("s_mov_b64 exec, 1")
    vm(f"buffer_store_dword {FN}, {vL16}, {srd(rWS)}, {t4} offen")
    A("s_mov_b64 exec, -1")
    A(f"v_and_b32 {vTag}, 0xff, {FN}"); A(f"s_movk_i32 {t4}, 0xff")
    A("s_waitcnt lgkmcnt(0)")
    for i in range(3): sm(D0, XA+4*i, aWQ+8*i, vIdxD)
    for i in range(4): A(f"v_bfi_b32 {v(D0+i)}, {t4}, {vTag}, {v(D0+i)}")
    A("s_mov_b32 exec_hi, 0")
    vm(qp_store.format(so=sGf, fl=''))
    A("s_mov_b32 exec_hi, -1")
    pstamp(1)
for k in range(9):
    if k == args.pQ: hookQ()
    if k == 8 - args.vw: mark['V'] = cnt[0]
    if k < 8: vm(f"buffer_load_dwordx4 {a(aV+4*k,4)}, {vL16}, {srd(rV)}, {kv0 if k < 4 else kv1} offen offset:{1024*(k%4)}{NTV}")
    if k == 7: pstamp(9)
TT = v(TM+4)
def slots_touch():
    A(f"s_lshl_b32 {t1}, {sJ}, 2"); A(f"s_add_u32 {t1}, {t1}, {sW}")
    A(f"s_mul_i32 {t3}, {t1}, 1536"); A(f"s_add_u32 {t3}, {t3}, {sGf}"); A(f"s_add_u32 {t3}, {t3}, {Y_O}")
    A(f"s_lshl_b32 {t1}, {t1}, 10"); A(f"s_add_u32 {t1}, {t1}, {QP1_O}"); A(f"s_add_u32 {t1}, {t1}, {sGf}")
    A("s_mov_b64 exec, 0xfff")
    A(f"buffer_load_dword {DUM}, {vL128}, {srd(rWS)}, {t3} offen sc1{NT}")
    A("s_mov_b64 exec, 0xff")
    A(f"buffer_load_dword {DUM}, {vL128}, {srd(rWS)}, {t1} offen sc1{NT}")
    A("s_mov_b64 exec, -1")
def slots_clear():
    A(f"s_lshl_b32 {t1}, {sJ}, 2"); A(f"s_add_u32 {t1}, {t1}, {sW}")
    A(f"s_lshl_b32 {t1}, {t1}, 10"); A(f"s_add_u32 {t1}, {t1}, {QP1_O}"); A(f"v_add_u32 {TT}, {t1}, {vL16}")
    pub(f"buffer_store_dwordx4 {v(EM,4)}, {TT}, {srd(rWS)}, {{so}} offen{{fl}}")
assert Y_O + 64 * 1536 >= Z3_O + 2304
def w1_touch():
    A(f"s_lshl_b32 {t1}, {sJ}, 2"); A(f"s_add_u32 {t1}, {t1}, {sW}")
    A(f"s_mul_i32 {t4}, {sX}, 576"); A(f"s_add_u32 {t4}, {t4}, {t1}"); A(f"s_add_u32 {t4}, {t4}, 512"); A(f"s_mul_i32 {t4}, {t4}, 1152")
    A(f"s_mul_i32 {t1}, {t1}, {9*9216}")
    A(f"s_mul_i32 {t3}, {sX}, 1152"); A(f"s_add_u32 {t1}, {t1}, {t3}"); A(f"s_add_u32 {t3}, {t1}, {5*9216}")
    A(f"v_mul_u32_u24 {TT}, 57, v0"); A(f"v_lshrrev_b32 {TT}, 9, {TT}"); A(f"v_mul_u32_u24 {TT}, {9216-1152}, {TT}"); A(f"v_add_u32 {TT}, {TT}, {vL128}")
    A("s_mov_b32 exec_hi, 0x1fff")
    A(f"buffer_load_dword {DUM}, {TT}, {srd(rW1)}, {t1} offen{NTM}")
    A("s_mov_b32 exec_hi, 15")
    A(f"buffer_load_dword {DUM}, {TT}, {srd(rW1)}, {t3} offen{NTM}")
    A("s_mov_b64 exec, 0x1ff")
    A(f"buffer_load_dword {DUM}, {vL128}, {srd(rW2)}, {t4} offen{NTM}")
    A("s_mov_b64 exec, -1")
def w2_loads():
    l1 = A.newlabel('L_w2')
    A(f"s_mul_i32 {t0}, {sX}, 18"); A(f"s_add_u32 {t0}, {t0}, {sJ}"); A(f"s_mul_i32 {t0}, {t0}, {32*1152}")
    A(f"s_lshl_b32 {t1}, {sW}, 8"); A(f"s_add_u32 {t1}, {t1}, {t0}")
    for i in range(8):
        A(f"buffer_load_dwordx4 {a(aW2+4*i,4)}, {vWrow}, {srd(rW2)}, {t1} offen{NT2}")
        if i < 7: A(f"s_add_u32 {t1}, {t1}, 4608")
    A(f"s_cmp_lg_u32 {sW}, 3")
    A(f"s_cbranch_scc1 {l1}")
    A(f"s_mov_b64 exec, {mLO8}")
    for i in range(8):
        A(f"buffer_load_dwordx4 {a(aW2t+4*i,4)}, {vWrow}, {srd(rW2)}, {t0} offen offset:1024{NT2}")
        if i < 7: A(f"s_add_u32 {t0}, {t0}, 4608")
    A("s_mov_b64 exec, -1")
    A(f"{l1}:")
def wo_loads(k0, k1, with_tail):
    for k in range(k0, k1):
        A(f"buffer_load_dwordx4 {a(aWO+4*k,4)}, {vWrow}, {srd(rWO)}, {sWo} offen{NTO}")
        A(f"s_add_u32 {sWo}, {sWo}, 4608")
    if with_tail:
        l1 = A.newlabel('L_wt')
        A(f"s_cmp_lg_u32 {sW}, 3")
        A(f"s_cbranch_scc1 {l1}")
        A(f"s_mov_b64 exec, {mLO8}")
        for i in range(7, -1, -1):
            A(f"s_sub_u32 {sWo}, {sWo}, 4608")
            A(f"buffer_load_dwordx4 {a(aWOt+4*i,4)}, {vWrow}, {srd(rWO)}, {sWo} offen offset:256{NTO}")
        A("s_mov_b64 exec, -1")
        A(f"{l1}:")
constants()
pstamp(4)
stamp()
A(f"s_waitcnt vmcnt({cnt[0]-mark['K']})")
for T in range(2):
    for q in range(4): A(f"ds_read_b128 {a(aK+16*T+4*q,4)}, {v(KA+q)} offset:{4096*T}")
A(f"s_mov_b32 {sXPo}, {XP_O}")
A(f"s_cmp_lt_u32 {sJ}, 16")
A("s_cbranch_scc1 L_g1n")
A(f"v_readfirstlane_b32 {t4}, {vOPg}"); A(f"v_readfirstlane_b32 {t5}, {vSTg}")
A(f"s_add_u32 {t4}, {t4}, {sGf}"); A(f"s_add_u32 {t5}, {t5}, {sGf}")
A("s_mov_b64 exec, 0xffff")
A(f"buffer_load_dword {DUM}, {vL128}, {srd(rWS)}, {t4} offen sc1{NT}")
A("s_mov_b64 exec, 3")
A(f"buffer_load_dword {DUM}, {vL128}, {srd(rWS)}, {t5} offen sc1{NT}")
A("s_mov_b64 exec, -1")
A(f"buffer_load_ushort {vXres}, {vZo}, {srd(rX)}, 0 offen{NT}")
A(f"buffer_load_ushort {vB2}, {vB2}, {srd(rT2)}, 0 offen{NT}")
wo_loads(0, 8, True)
A("s_branch L_g1o")
A("L_g1n:")
if 's' in args.early: slots_touch()
if '1' in args.early: w1_touch()
if '2' in args.early: w2_loads()
A("L_g1o:")
pstamp(6)
A(f"s_waitcnt vmcnt({args.vw})")
if ST and not args.pro and ONLY is None: A(f"s_memrealtime s[74:75]")
pstamp(5)
def flags_diff():
    A(f"v_xor_b32 {CK}, {sFlag}, {v(FG)}")
    for i in range(1, 4): A(f"v_bitop3_b32 {CK}, {CK}, {v(FG+i)}, {sFlag} bitop3:0xf6")
st_rd = f"ds_read_b64 {v(TM,2)}, {vSTATr}"
A("L_g4:")
for l in fl_load + qg4: A(l)
A("s_waitcnt vmcnt(0)")
pstamp(7)
flags_diff()
A(f"v_cmp_ne_u32 vcc, 0, {CK}")
A("s_cmp_lg_u32 vcc_lo, 0")
if args.forcefb: A("s_cmp_eq_u32 0, 0")
A("s_cbranch_scc1 L_af2")
A(f"s_mov_b32 {sMode}, 0")
A("L_g2:")
for i in range(16): A(f"v_xor_b32 {v(QG+i)}, {vTag}, {v(QG+i)}")
A(f"v_or3_b32 {CK}, {v(QG)}, {v(QG+1)}, {v(QG+2)}")
for i in range(3, 15, 2): A(f"v_or3_b32 {CK}, {CK}, {v(QG+i)}, {v(QG+i+1)}")
A(f"v_or_b32 {CK}, {CK}, {v(QG+15)}")
A(f"v_and_b32 {CK}, 0xff, {CK}")
A(f"v_cmp_ne_u32 vcc, 0, {CK}")
A("s_cbranch_vccnz L_g5")
A("L_g3:")
A(f"s_mov_b32 {sL}, 0")
zero(D0)
A(f"v_mov_b32 {v(TM)}, 0"); A(f"v_mov_b32 {v(TM+1)}, 1.0")
tail.append("L_g5:\n" + timeout("L_g4", "L_g3"))
pstamp(8)
A(f"v_add_f32 {v(TM+2)}, {v(QG+2)}, {v(QG+6)}"); A(f"v_add_f32 {v(TM+3)}, {v(QG+3)}, {v(QG+7)}")
A(f"v_add_f32 {v(TM+4)}, {v(QG+10)}, {v(QG+14)}"); A(f"v_add_f32 {v(TM+5)}, {v(QG+11)}, {v(QG+15)}")
A(f"v_add_f32 {v(TM+2)}, {v(TM+2)}, {v(TM+4)}"); A(f"v_add_f32 {v(TM+3)}, {v(TM+3)}, {v(TM+5)}")
A(f"v_permlane32_swap_b32 {v(TM+2)}, {v(TM+3)}")
A(f"v_add_f32 {vCq}, {v(TM+2)}, {v(TM+3)}")
A("s_branch L_qfin")

A("L_layer:")
zero(D0, 8)
def q_pub():
    A("s_mov_b32 exec_hi, 0")
    pub(qp_store)
    A("s_mov_b32 exec_hi, -1")
A(f"s_cmp_eq_u32 {sW}, 3")
A("s_cbranch_scc1 L_q3")
poll_proj(vXAq, sXoff, 3, aWQ, True)
q_pub()
nst[0] = 1
stamp()
zero(D0)
qregs = [v(QG+4*p+i) for p in range(4) for i in range(2)]
poll(qg2, qregs, site='q')
A("s_branch L_q4")
A("L_q3:")
poll(xs_loads(rWS, sXoff, ' sc1') + xa_loads(rWS, vXAq, sXoff, 3, ' sc1', True), [v(XS+i) for i in range(9)], site='z')
if 'z' in args.p2: A("s_waitcnt vmcnt(0)")
for i in range(3): sm(D0, XA+4*i, aWQ+8*i, vIdxD)
stats(16, early=q_pub, late=lambda: [A(l) for l in qg2])
nst[0] = 1
stamp()
zero(D0)
poll(qg2, qregs, primed=True)
A("L_q4:")
A(f"ds_read_b64 {v(TM,2)}, {vSTATr} offset:16")
A("L_qfin:")
stamp()
A(f"v_add_f32 {v(TM+2)}, {v(QG)}, {v(QG+4)}"); A(f"v_add_f32 {v(TM+3)}, {v(QG+1)}, {v(QG+5)}")
A(f"v_add_f32 {v(TM+4)}, {v(QG+8)}, {v(QG+12)}"); A(f"v_add_f32 {v(TM+5)}, {v(QG+9)}, {v(QG+13)}")
A(f"v_add_f32 {v(TM+2)}, {v(TM+2)}, {v(TM+4)}"); A(f"v_add_f32 {v(TM+3)}, {v(TM+3)}, {v(TM+5)}")
A(f"v_permlane32_swap_b32 {v(TM+2)}, {v(TM+3)}")
A(f"v_add_f32 {v(TM+2)}, {v(TM+2)}, {v(TM+3)}")
A("L_q5:")
A("s_waitcnt lgkmcnt(0)")
A(f"v_cmp_eq_u32 vcc, -1, {v(TM+1)}")
A("s_cbranch_vccnz L_q6")
A("L_q7:")
tail.append(f"L_q6:\nds_read_b64 {v(TM,2)}, {vSTATr} offset:16\n" + timeout("L_q5", "L_q7"))
A(f"v_fma_f32 {v(TM+2)}, -{v(TM)}, {vCq}, {v(TM+2)}")
A(f"v_mul_f32 {v(TM+2)}, {v(TM+2)}, {v(TM+1)}")
A(f"v_cvt_pk_bf16_f32 {v(TM+2)}, {v(TM+2)}, {v(TM+2)}")
A(f"ds_write_b16 {vQTw}, {v(TM+2)} offset:{L_QT}")
A("s_mov_b32 vcc_lo, 0xaaaaaaaa"); A("s_mov_b32 vcc_hi, 0xaaaaaaaa")
zero(DP)
A("s_waitcnt lgkmcnt(0)")
A("s_barrier")
A(f"ds_read_b128 {v(AO,4)}, {vQTr} offset:{L_QT}")
A(f"ds_read_b128 {v(AO+4,4)}, {vQTr} offset:{L_QT+256}")
if args.mid:
    A(f"s_lshr_b32 {t0}, {sJ}, 4"); A(f"s_or_b32 {t0}, {t0}, {sL}")
    A("s_cbranch_scc1 L_mid")
    if 's' in args.mid: slots_touch()
    if '1' in args.mid: w1_touch()
    if '2' in args.mid: w2_loads()
    A("L_mid:")
A(f"s_waitcnt lgkmcnt({lg(1)})")
sm(D0, AO, aK, vIdxP); sm(D1, AO, aK+16, vIdxP)
A("s_waitcnt lgkmcnt(0)")
sm(D0, AO+4, aK+8, vIdxP); sm(D1, AO+4, aK+24, vIdxP)
SC, MX, P_, LS, TT = v(TM), v(TM+1), v(TM+2), v(TM+3), v(TM+4)
A(f"v_add_f32 {SC}, {v(D0)}, {v(D0+1)}")
A(f"v_add_f32 {TT}, {v(D1)}, {v(D1+1)}")
A(f"v_cndmask_b32 {SC}, {SC}, {TT}, {mROW}")
rbf(SC, SC)
A(f"v_mul_f32 {SC}, {f32(128 ** -0.5)}, {SC}")
rbf(SC, SC)
A(f"v_mul_f32 {SC}, {f32(1.4426950408889634)}, {SC}")
zero(D0, 2)
A(f"v_max_f32_dpp {MX}, {SC}, {SC} row_ror:8 row_mask:0xf bank_mask:0xf")
for n, k in enumerate((4, 2, 1)):
    zero(D0+2+2*n, 2)
    if k == 1: A(f"v_max_f32_dpp {TT}, {MX}, {MX} row_ror:{k} row_mask:0xf bank_mask:0xf")
    A(f"v_max_f32_dpp {MX}, {MX}, {MX} row_ror:{k} row_mask:0xf bank_mask:0xf")
A(f"v_permlane16_swap_b32 {MX}, {TT}")
A(f"v_max_f32 {MX}, {MX}, {TT}")
A(f"v_sub_f32 {P_}, {SC}, {MX}")
A(f"v_exp_f32 {P_}, {P_}")
A(f"v_cvt_pk_bf16_f32 {TT}, {P_}, 0")
A(f"ds_write2_b32 {vPTw}, {TT}, {TT} offset1:5")
for i in range(4): A(f"ds_read_b128 {v(AO+4*i,4)}, {vPTr} offset:{128*i}")
A(f"v_add_f32_dpp {LS}, {P_}, {P_} row_ror:8 row_mask:0xf bank_mask:0xf")
for k in (4, 2, 1): A(f"v_add_f32_dpp {LS}, {LS}, {LS} row_ror:{k} row_mask:0xf bank_mask:0xf")
A(f"v_mov_b32 {SC}, {LS}")
A(f"v_permlane16_swap_b32 {LS}, {SC}")
A(f"v_add_f32 {LS}, {LS}, {SC}")
A(f"v_cndmask_b32 {SC}, {MX}, {LS}, vcc")
A("s_mov_b32 exec_lo, 3"); A("s_mov_b32 exec_hi, 3")
pub(f"buffer_store_dword {SC}, {vSTst}, {srd(rWS)}, {{so}} offen{{fl}}")
A("s_mov_b64 exec, -1")
for i in range(4):
    A(f"s_waitcnt lgkmcnt({lg(3-i)})")
    sm(DP, AO+4*i, aV+8*i, vIdxS)
pub(f"buffer_store_dwordx4 {v(DP,4)}, {vOPst}, {srd(rWS)}, {{so}} offen{{fl}}")
stamp()
E = TM + 5
R = TM + 12
def tile_out(wb, tb, vst):
    l1 = A.newlabel('L_t'); l2 = A.newlabel('L_t')
    for i in range(4):
        A(f"s_waitcnt lgkmcnt({lg(3-i)})")
        sm(D0, AO+4*i, wb+8*i, vIdxS)
    A(f"s_cmp_lg_u32 {sW}, 3")
    A(f"s_cbranch_scc1 {l1}")
    for i in range(4): sm(D1, AO+4*i, tb+8*i, vIdxS)
    A(f"{l1}:")
    A("s_waitcnt vmcnt(0)")
    A("s_nop 4")
    pub(f"buffer_store_dwordx4 {v(D0,4)}, {vst}, {srd(rWS)}, {{so}} offen{{fl}}")
    A(f"s_cmp_lg_u32 {sW}, 3")
    A(f"s_cbranch_scc1 {l2}")
    A(f"s_mov_b64 exec, {mLO8}")
    pub(f"buffer_store_dwordx4 {v(D1,4)}, {v(E+2)}, {srd(rWS)}, {{so}} offen{{fl}}")
    A("s_mov_b64 exec, -1")
    A(f"{l2}:")
A(f"s_cmp_lt_u32 {sJ}, 16")
A("s_cbranch_scc1 L_mlp")
op_load = [f"buffer_load_dwordx4 {v(OG+4*i,4)}, {vOPg}, {srd(rWS)}, {sGp} offen offset:{1024*i} sc1" for i in range(2)]
A(f"v_add_u32 {v(E+6)}, {4*2304}, {vYst}")
poll([f"buffer_load_dwordx4 {v(SG,4)}, {vSTg}, {srd(rWS)}, {sGp} offen sc1",
      f"buffer_load_dwordx4 {v(SG+4,4)}, {vSTg}, {srd(rWS)}, {sGp} offen offset:128 sc1",
      f"buffer_load_dwordx2 {v(SG+8,2)}, {vSTm}, {srd(rWS)}, {sGp} offen sc1"], [v(SG+i) for i in range(10 if 's' in args.p2 else 8)], site='s')
for l in op_load: A(l)
A(f"v_max3_f32 {MX}, {v(SG)}, {v(SG+1)}, {v(SG+2)}")
A(f"v_max_f32 {MX}, {MX}, {v(SG+3)}")
A(f"v_max_f32_dpp {TT}, {MX}, {MX} row_ror:8 row_mask:0xf bank_mask:0xf")
A(f"v_max_f32_dpp {MX}, {MX}, {MX} row_ror:8 row_mask:0xf bank_mask:0xf")
A(f"v_permlane16_swap_b32 {MX}, {TT}"); A(f"v_max_f32 {SC}, {MX}, {TT}"); A(f"v_max_f32 {MX}, {MX}, {TT}")
A(f"v_permlane32_swap_b32 {MX}, {SC}"); A(f"v_max_f32 {MX}, {MX}, {SC}")
for n, i in enumerate((0, 1, 2, 3, 8, 9)): A(f"v_sub_f32 {v(E+n)}, {v(SG+i)}, {MX}")
for n in range(6): A(f"v_exp_f32 {v(E+n)}, {v(E+n)}")
A(f"v_mul_f32 {LS}, {v(E)}, {v(SG+4)}")
for i in (1, 2, 3): A(f"v_fmac_f32 {LS}, {v(E+i)}, {v(SG+4+i)}")
A(f"v_add_f32_dpp {TT}, {LS}, {LS} row_ror:8 row_mask:0xf bank_mask:0xf")
A(f"v_add_f32_dpp {LS}, {LS}, {LS} row_ror:8 row_mask:0xf bank_mask:0xf")
A(f"v_permlane16_swap_b32 {LS}, {TT}"); A(f"v_add_f32 {SC}, {LS}, {TT}"); A(f"v_add_f32 {LS}, {LS}, {TT}")
poll(op_load, [v(OG+i) for i in range(8)], primed=True)
stamp()
A(f"v_permlane32_swap_b32 {LS}, {SC}")
for i in range(4): A(f"v_mul_f32 {v(R+i)}, {v(OG+i)}, {v(E+4)}")
for i in range(4): A(f"v_fmac_f32 {v(R+i)}, {v(OG+4+i)}, {v(E+5)}")
A(f"v_add_f32 {LS}, {LS}, {SC}")
A(f"v_mov_b32 {v(E+2)}, {v(E+6)}")
A(f"v_permlane32_swap_b32 {v(R)}, {v(R+2)}")
A(f"v_permlane32_swap_b32 {v(R+1)}, {v(R+3)}")
A(f"v_add_f32 {v(R)}, {v(R)}, {v(R+2)}")
A(f"v_add_f32 {v(R+1)}, {v(R+1)}, {v(R+3)}")
A(f"v_rcp_f32 {LS}, {LS}")
A(f"v_permlane16_swap_b32 {v(R)}, {v(R+1)}")
A(f"v_add_f32 {v(R)}, {v(R)}, {v(R+1)}")
A(f"v_add_f32_dpp {v(R)}, {v(R)}, {v(R)} row_ror:8 row_mask:0xf bank_mask:0xf")
A(f"v_mul_f32 {v(R)}, {v(R)}, {LS}")
A(f"v_cvt_pk_bf16_f32 {TT}, {v(R)}, {v(R)}")
A(f"ds_write_b16 {vOTw}, {TT}")
pub(*[f"buffer_store_dwordx4 {v(EM,4)}, {vOPg}, {srd(rWS)}, {{so}} offen offset:{1024*i}{{fl}}" for i in range(2)])
A("s_waitcnt lgkmcnt(0)")
A("s_barrier")
for i in range(4): A(f"ds_read_b128 {v(AO+4*i,4)}, {vOTr} offset:{128*i}")
tile_out(aWO, aWOt, vYst)
stamp()

def reducer(kind):
    ld = [f"buffer_load_dwordx4 {v(YG+4*i,4)}, {vRg}, {srd(rWS)}, {sGp} offen offset:{1024*i} sc1" for i in range(2)]
    A(f"s_movk_i32 {t4}, 0xff"); A(f"s_add_u32 {t3}, {sXPo}, 8192")
    if kind == 'A':
        poll(ld, [v(YG+i) for i in range(8)], site='y')
        for i in range(4): A(f"v_add_f32 {v(R+i)}, {v(YG+i)}, {v(YG+4+i)}")
    else:
        poll(ld + ["s_mov_b64 exec, 0xffff", f"buffer_load_dwordx4 {v(YG+8,4)}, {vRg}, {srd(rWS)}, {sGp} offen offset:2048 sc1", "s_mov_b64 exec, -1"],
             [v(YG+i) for i in range(12)], site='y')
        for i in range(4): A(f"v_add_f32 {v(R+i)}, {v(YG+i)}, {v(YG+4+i)}")
        for i in range(4): A(f"v_add_f32 {v(R+i)}, {v(R+i)}, {v(YG+8+i)}")
    stamp()
    treduce(R)
    A(f"v_bfi_b32 {v(R+1)}, {t4}, {vTag}, {v(R)}"); A(f"v_bfi_b32 {v(R)}, {t4}, {vTag}, {v(R)}")
    A(f"v_permlane16_swap_b32 {v(R)}, {v(R+1)}")
    A(f"v_mov_b32 {v(R+2)}, {v(R)}"); A(f"v_mov_b32 {v(R+3)}, {v(R+1)}")
    A(f"v_permlane32_swap_b32 {v(R)}, {v(R+2)}"); A(f"v_permlane32_swap_b32 {v(R+1)}, {v(R+3)}")
    A(f"buffer_store_dwordx4 {v(R,4)}, {vXPst}, {srd(rWS)}, {sXPo} offen sc1")
    if args.near: A(f"buffer_store_dwordx4 {v(R,4)}, {vXPst}, {srd(rWS)}, {t3} offen sc1")
    if kind == 'M':
        A(f"s_lshl_b32 {t0}, {sL}, 2"); A(f"s_andn2_b32 {t0}, {t0}, {sRole}")
        A("s_cbranch_scc1 L_fin")
    cl = [f"buffer_store_dwordx4 {v(EM,4)}, {vRg}, {srd(rWS)}, {{so}} offen offset:{1024*i}{{fl}}" for i in range(2)]
    if kind == 'M': cl += ["s_mov_b64 exec, 0xffff", f"buffer_store_dwordx4 {v(EM,4)}, {vRg}, {srd(rWS)}, {{so}} offen offset:2048{{fl}}", "s_mov_b64 exec, -1"]
    pub(*cl)
    if args.near:
        A(f"v_mov_b32 {TT}, 0")
        A(f"ds_read_b32 {TT}, {TT} offset:{L_NEAR}")
    if args.xd: A(f"s_sleep {args.xd}")
    if args.near:
        A("s_waitcnt lgkmcnt(0)")
        A(f"v_or_b32 {vXPg}, {vXPg}, {TT}")
    poll([f"buffer_load_dwordx2 {v(XG,2)}, {vXPg}, {srd(rWS)}, {sXPo} offen sc1",
          f"buffer_load_dwordx2 {v(XG+2,2)}, {vXPg}, {srd(rWS)}, {sXPo} offen offset:512 sc1"], None,
         chk=[f"v_xor_b32 {v(R+i)}, {vTag}, {v(XG+i)}" for i in range(4)] +
             [f"v_or3_b32 {CK}, {v(R)}, {v(R+1)}, {v(R+2)}", f"v_bitop3_b32 {CK}, {CK}, {v(R+3)}, {t4} bitop3:0xa8", f"v_cmp_ne_u32 vcc, 0, {CK}"])
    stamp()
    Y = v(R)
    A(f"v_add_f32 {v(R)}, {v(R)}, {v(R+2)}"); A(f"v_add_f32 {v(R+1)}, {v(R+1)}, {v(R+3)}")
    A(f"v_permlane32_swap_b32 {v(R)}, {v(R+1)}")
    A(f"v_add_f32 {TT}, {v(R)}, {v(R+1)}"); A(f"v_add_f32 {Y}, {v(R)}, {v(R+1)}")
    A(f"v_permlane16_swap_b32 {Y}, {TT}"); A(f"v_add_f32 {Y}, {Y}, {TT}")
    rbf(Y, Y)
    if kind == 'M':
        A(f"v_add_f32 {Y}, {Y}, {vB2}"); rbf(Y, Y)
    A(f"v_add_f32 {TT}, {Y}, {vXres}")
    A(f"v_add_f32 {v(R+1)}, {Y}, {vXres}")
    A(f"v_add_f32 {Y}, {Y}, {vXres}")
    A("s_mov_b64 exec, -1")
    A(f"v_permlane32_swap_b32 {TT}, {v(R+1)}")
    A(f"v_cvt_pk_bf16_f32 {TT}, {TT}, {v(R+1)}")
    A("s_mov_b64 exec, 0xffff")
    if kind == 'M':
        A(f"s_cmp_lg_u32 {sL}, 0")
        A("s_cbranch_scc1 L_out")
    pub(f"buffer_store_dword {TT}, {vZst}, {srd(rWS)}, {{so}} offen{{fl}}")
    A("s_mov_b64 exec, -1")
    stamp()
    rbf(vXres, Y)
    A(f"v_add_u32 {vZst}, 2304, {vZst}")
    A(f"s_add_u32 {sXPo}, {sXPo}, {XPS}")

A(f"s_bitcmp1_b32 {sRole}, 0")
A("s_cbranch_scc1 L_mlp")
A(f"s_bitcmp1_b32 {sRole}, 1")
A("s_cbranch_scc0 L_probe" if args.near else "s_cbranch_scc0 L_next")
A(f"s_cmp_lg_u32 {sL}, 0")
A("s_cbranch_scc1 L_red")
A(f"v_lshlrev_b32 {vXres}, 16, {vXres}"); A(f"v_lshlrev_b32 {vB2}, 16, {vB2}")
zero(YG+8)
A("L_red:")
k0 = nst[0]
reducer('A'); reducer('M')
kr = nst[0]
A("s_branch L_next")
A("L_mlp:")
nst[0] = k0
A(f"s_cmp_lg_u32 {sL}, 0")
A("s_cbranch_scc1 L_m1")
A(f"s_mul_i32 {t0}, {sX}, 18"); A(f"s_add_u32 {t0}, {t0}, {sJ}")
A(f"s_lshl_b32 {t2}, {t0}, 6")
A(f"buffer_load_ushort {vB1}, {vB1}, {srd(rT1)}, 0 offen{NT}")
A(f"s_cmp_ge_u32 {sJ}, 16")
A("s_cbranch_scc1 L_m0b")
if 's' not in args.early + args.mid: slots_touch()
if '1' not in args.early + args.mid: w1_touch()
slots_clear()
if '2' in args.early + args.mid: A("s_branch L_m0d")
A("L_m0b:")
w2_loads()
A("L_m0d:")
A(f"s_cmp_eq_u32 {sW}, 3")
A("s_cbranch_scc1 L_m0c")
A("L_m0a:")
A(f"s_mul_i32 {t0}, {sW}, {192*9216}"); A(f"s_add_u32 {t0}, {t0}, {t2}")
if args.w1dma:
    A(f"v_lshrrev_b32 {TT}, 2, v0"); A(f"v_mul_u32_u24 {TT}, 9216, {TT}"); A(f"v_and_b32 {LS}, 3, v0"); A(f"v_lshl_add_u32 {TT}, {LS}, 4, {TT}")
    A(f"s_mul_i32 {t1}, {sW}, 12288"); A(f"s_add_u32 {t1}, {t1}, {L_K}"); A(f"s_mov_b32 m0, {t1}")
    for i in range(12):
        A(f"buffer_load_dwordx4 {TT}, {srd(rW1)}, {t0} offen{NTM} lds")
        if i < 11: A(f"s_add_u32 {t0}, {t0}, {16*9216}"); A("s_add_u32 m0, m0, 1024")
    A(f"v_lshrrev_b32 {TT}, 4, v0"); A(f"v_lshlrev_b32 {TT}, 8, {TT}"); A(f"v_and_b32 {LS}, 15, v0"); A(f"v_lshl_add_u32 {TT}, {LS}, 2, {TT}"); A(f"v_add_u32 {TT}, {t1}, {TT}")
    A("s_waitcnt vmcnt(0)")
    for i in range(6):
        for hh in range(2):
            for p in range(2):
                A(f"ds_read2_b32 {a(aW1+8*i+4*hh+2*p,2)}, {TT} offset0:{32*p} offset1:{32*p+16}")
            if (i, hh) != (5, 1): A(f"v_add_u32 {TT}, 1024, {TT}")
    A("s_waitcnt lgkmcnt(0)")
else:
    A(f"v_lshrrev_b32 {TT}, 4, v0"); A(f"v_mul_u32_u24 {TT}, {4*9216}, {TT}"); A(f"v_and_b32 {LS}, 15, v0"); A(f"v_lshl_add_u32 {TT}, {LS}, 2, {TT}")
    prev = 0
    for i in range(6):
        for vv in range(8):
            row = 32*i + 16*(vv >> 2) + (vv & 3)
            if row != prev: A(f"s_add_u32 {t0}, {t0}, {(row-prev)*9216}")
            prev = row
            A(f"buffer_load_dword {a(aW1+8*i+vv)}, {TT}, {srd(rW1)}, {t0} offen{NTM}")
A("L_m0c:")
if ST: A("s_memrealtime s[94:95]"); A("s_waitcnt vmcnt(0)"); A("s_memrealtime s[96:97]")
A("s_waitcnt vmcnt(0)")
A(f"v_lshlrev_b32 {vB1}, 16, {vB1}")
A("L_m1:")
zero(D0, 8)
c0 = -2 * 1.4426950408889634 * 0.7978845608028654
A(f"v_mov_b32 {v(E)}, {f32(c0)}")
A(f"v_lshrrev_b32 {v(E+1)}, 5, v0"); A(f"v_lshlrev_b32 {v(E+1)}, 3, {v(E+1)}")
A(f"v_add_u32 {v(E+2)}, {4*2304}, {vMst}")
A(f"s_mul_i32 {t0}, {sL}, {Z3_O-Z1_O}"); A(f"s_add_u32 {t0}, {t0}, {sGp}"); A(f"s_add_u32 {t0}, {t0}, {Z1_O}")
A(f"s_cmp_eq_u32 {sW}, 3")
A("s_cbranch_scc1 L_m2")
poll_proj(vXAm, t0, 6, aW1)
A("s_mov_b32 exec_hi, 0")
A(f"ds_write_b128 {vHPw}, {v(D0,4)}")
A("s_mov_b32 exec_hi, -1")
A("s_branch L_m2b")
A("L_m2:")
poll(xs_loads(rWS, t0, ' sc1'), [v(XS+i) for i in range(9)], site='z')
stats(32)
A("L_m2b:")
stamp()
A("s_waitcnt lgkmcnt(0)")
A("s_barrier")
H = TM + 12
A(f"ds_read2_b32 {v(H,2)}, {vHPr} offset0:0 offset1:2")
A(f"ds_read2_b32 {v(H+2,2)}, {vHPr} offset0:128 offset1:130")
A(f"ds_read_b32 {v(H+4)}, {vHPr} offset:1024"); A(f"ds_read_b32 {v(H+5)}, {vHPr} offset:1032")
A(f"ds_read_b64 {v(TM,2)}, {v(E+1)} offset:{L_STAT+32}")
zero(D0)
A("s_waitcnt lgkmcnt(0)")
A(f"v_add_f32 {v(H)}, {v(H)}, {v(H+2)}"); A(f"v_add_f32 {v(H+1)}, {v(H+1)}, {v(H+3)}")
A(f"v_add_f32 {v(H)}, {v(H)}, {v(H+4)}"); A(f"v_add_f32 {v(H+1)}, {v(H+1)}, {v(H+5)}")
A(f"v_fma_f32 {v(H)}, -{S_}, {v(H+1)}, {v(H)}")
A(f"v_mul_f32 {v(H)}, {v(H)}, {Q_}")
rbf(v(H), v(H))
A(f"v_add_f32 {v(H)}, {v(H)}, {vB1}")
rbf(v(H), v(H))
A(f"v_mul_f32 {TT}, {v(H)}, {v(H)}")
A(f"v_fmac_f32 {v(E)}, {f32(c0*0.044715)}, {TT}")
A(f"v_mul_f32 {TT}, {v(E)}, {v(H)}")
A(f"v_exp_f32 {TT}, {TT}")
A(f"v_add_f32 {TT}, 1.0, {TT}")
A(f"v_rcp_f32 {TT}, {TT}")
A(f"v_mul_f32 {TT}, {TT}, {v(H)}")
A(f"v_cvt_pk_bf16_f32 {TT}, {TT}, 0")
A(f"ds_write2_b32 {vPTw}, {TT}, {TT} offset1:5")
for i in range(4): A(f"ds_read_b128 {v(AO+4*i,4)}, {vPTr} offset:{128*i}")
stamp()
tile_out(aW2, aW2t, vMst)
A("L_m4:")
stamp()
nst[0] = kr
A("L_next:")
A(f"s_cmp_lg_u32 {sL}, 0")
A("s_cbranch_scc1 L_fin")
if ST:
    A("s_waitcnt lgkmcnt(0)")
    for k in range(14): A(f"v_writelane_b32 {v(SV)}, s{72+2*k}, {1+k}")
    for k in range(14): A(f"s_mov_b64 s[{72+2*k}:{73+2*k}], 0")
A(f"s_mov_b32 {sL}, 1")
if args.dirty:
    A(f"s_cmp_ge_u32 {sJ}, 16"); A("s_cbranch_scc1 L_dd")
    A(f"s_lshl_b32 {t0}, s2, 2"); A(f"s_add_u32 {t0}, {t0}, {sW}"); A(f"s_lshl_b32 {t0}, {t0}, 14"); A(f"s_add_u32 {t0}, {t0}, 0x2000000")
    for i in range(args.dirty):
        A(f"buffer_store_dwordx4 {v(EM,4)}, {vL16}, {srd(rWS)}, {t0} offen"); A(f"s_add_u32 {t0}, {t0}, 1024")
    A("L_dd:")
A(f"s_add_u32 {sXoff}, {sGp}, {Z2_O}")
A(f"v_add_u32 {vQPg}, {QP1_O-QP_O}, {vQPg}"); A(f"v_add_u32 {vQPst}, {QP1_O-QP_O}, {vQPst}")
A(f"v_add_u32 {vQPg2}, {QP1_O-QP_O}, {vQPg2}")
for r in (vSTst, vSTg, vSTm): A(f"v_add_u32 {r}, {ST1_O-ST_O}, {r}")
A("s_branch L_layer")
A("L_out:")
A(f"buffer_store_dword {TT}, {vZo}, {srd(rOUT)}, 0 offen")
A(f"s_mov_b32 {t0}, {EP_O}")
A("s_mov_b64 exec, 1")
A(f"buffer_store_dword {FN}, {vL16}, {srd(rWS)}, {t0} offen")
if ST: A(f"s_memrealtime s[{72+2*13}:{73+2*13}]")
A("L_fin:")
if args.wb:
    A(f"s_cmp_lg_u32 {sJ}, 18"); A("s_cbranch_scc1 L_wb")
    A(f"s_cmp_lg_u32 {sW}, 0"); A("s_cbranch_scc1 L_wb")
    A("buffer_wbl2 sc1")
    A("L_wb:")
if args.enc:
    j0, j1 = [int(x) for x in args.encj.split(',')]
    A("s_memrealtime s[66:67]")
    A("s_waitcnt lgkmcnt(0)")
    if args.enc <= 14: A(f"v_readlane_b32 {t0}, {v(SV)}, {args.enc}"); A("s_nop 3")
    else: A(f"s_mov_b32 {t0}, s{72+2*(args.enc-15)}")
    A(f"s_cmp_eq_u32 {t0}, 0"); A("s_cbranch_scc1 L_enc2")
    A(f"s_cmp_lt_u32 {sJ}, {j0}"); A("s_cbranch_scc1 L_enc2")
    A(f"s_cmp_ge_u32 {sJ}, {j1}"); A("s_cbranch_scc1 L_enc2")
    A(f"s_sub_u32 {t0}, {t0}, s100"); A(f"s_min_u32 {t0}, {t0}, 10000"); A(f"s_lshl_b32 {t0}, {t0}, 3"); A(f"s_add_u32 {t0}, {t0}, s66")
    A("L_enc:")
    A("s_sleep 8")
    A("s_memrealtime s[64:65]"); A("s_waitcnt lgkmcnt(0)")
    A(f"s_sub_u32 {t1}, s64, {t0}"); A(f"s_cmp_lt_i32 {t1}, 0"); A("s_cbranch_scc1 L_enc")
    A("L_enc2:")
if ST:
    A("s_mov_b64 exec, -1")
    A("s_waitcnt lgkmcnt(0)")
    A(f"v_writelane_b32 {v(SV)}, s100, 0")
    for k in range(14): A(f"v_writelane_b32 {v(SV)}, s{72+2*k}, {15+k}")
    A(f"s_lshl_b32 {t0}, s2, 2"); A(f"s_add_u32 {t0}, {t0}, {sW}"); A(f"s_lshl_b32 {t0}, {t0}, 8"); A(f"s_add_u32 {t0}, {t0}, {STAMP_O}")
    A(f"v_mov_b32 {v(SV+1)}, 0")
    A(f"v_lshlrev_b32 {v(SV+2)}, 3, v0")
    A("s_mov_b32 exec_hi, 0")
    A(f"buffer_store_dwordx2 {v(SV,2)}, {v(SV+2)}, {srd(rWS)}, {t0} offen")
A("L_end:")
A("s_endpgm")
if args.near:
    A("L_probe:")
    A(f"s_cmp_lt_u32 {sJ}, 20"); A("s_cbranch_scc1 L_next")
    A(f"s_cmp_lg_u32 {sL}, 0"); A("s_cbranch_scc1 L_next")
    A(f"s_sub_u32 {t0}, {sJ}, 20"); A(f"s_lshl_b32 {t0}, {t0}, 18"); A(f"s_lshl_b32 {t1}, {sX}, 10"); A(f"s_add_u32 {t0}, {t0}, {t1}"); A(f"s_add_u32 {t0}, {t0}, {XP_O + 3*65536}")
    A(f"s_add_u32 s44, s{rWS}, {t0}"); A(f"s_addc_u32 s45, s{rWS+1}, 0")
    A(f"s_mov_b32 {t2}, -1"); A(f"s_mov_b32 {t3}, -1"); A(f"s_mov_b32 {t4}, 3")
    A("L_pr1:")
    A("s_memtime s[46:47]"); A("s_waitcnt lgkmcnt(0)")
    A(f"s_load_dword {t5}, s[44:45], 0 glc"); A("s_waitcnt lgkmcnt(0)")
    A("s_memtime s[48:49]"); A("s_waitcnt lgkmcnt(0)")
    A(f"s_load_dword {t5}, s[44:45], 0x2000 glc"); A("s_waitcnt lgkmcnt(0)")
    A("s_memtime s[50:51]"); A("s_waitcnt lgkmcnt(0)")
    A(f"s_sub_u32 {t0}, s48, s46"); A(f"s_sub_u32 {t1}, s50, s48")
    A(f"s_min_u32 {t2}, {t2}, {t0}"); A(f"s_min_u32 {t3}, {t3}, {t1}")
    A(f"s_sub_u32 {t4}, {t4}, 1"); A(f"s_cmp_lg_u32 {t4}, 0"); A("s_cbranch_scc1 L_pr1")
    A(f"s_cmp_lt_u32 {t3}, {t2}"); A(f"s_cselect_b32 {t0}, 0x2000, 0")
    A(f"v_mov_b32 {TT}, 0"); A(f"v_mov_b32 {LS}, {t0}")
    A(f"ds_write_b32 {TT}, {LS} offset:{L_NEAR}")
    A("s_branch L_next")
A("L_af2:")
A(f"s_cmp_eq_u32 {sMode}, {FB_O}")
A("s_cbranch_scc1 L_g2")
A(f"s_add_u32 {sMode}, {sMode}, 1")
A(f"s_lshl_b32 {t2}, {sX}, 10"); A(f"s_add_u32 {t2}, {t2}, {FL_O}")
A(f"s_lshl_b32 {t4}, {sL}, 2"); A(f"s_add_u32 {t1}, {t4}, {t2}")
A(f"s_cmp_lt_u32 {sMode}, {1 if args.forcefb else 40}")
A("s_cbranch_scc1 L_af5")
A("s_mov_b64 exec, 1")
A(f"buffer_store_dword {FN}, {vL16}, {srd(rWS)}, {t1} offen sc1")
A("s_mov_b32 exec_lo, -1")
A(f"buffer_load_dwordx4 {v(FG,4)}, {vL16}, {srd(rWS)}, {t2} offen sc1")
A("s_mov_b32 exec_hi, -1")
A("s_waitcnt vmcnt(0)")
flags_diff()
A(f"v_and_b32 {TT}, 0x0fffffff, {CK}")
A(f"v_cmp_ne_u32 vcc, 0, {TT}")
A("s_cmp_lg_u32 vcc_lo, 0")
A("s_cbranch_scc1 L_af5")
A(f"v_cmp_ne_u32 vcc, 0, {CK}")
A("s_cmp_lg_u32 vcc_lo, 0")
if args.forcefb: A("s_cmp_eq_u32 0, 0")
A("s_cbranch_scc1 L_spread")
A("L_af5:")
A(f"s_sub_u32 {sTO}, {sTO}, 1")
A("s_cbranch_scc0 L_g4")
A(f"s_mov_b32 {sTO}, 0")
A(f"s_mov_b32 {sMode}, 0")
A("s_branch L_g2")
A("L_spread:")
A(f"s_mov_b32 {sMode}, {FB_O}")
A(f"s_add_u32 {sGp}, {sGf}, {FB_O}")
empty_share(sGp, ' sc1')
A("s_mov_b32 exec_hi, 0")
A(qp_store.format(so=sGp, fl=' sc1'))
A("s_waitcnt vmcnt(0)")
A("s_mov_b64 exec, 1")
A(f"buffer_store_dword {FN}, {vL16}, {srd(rWS)}, {t1} offen offset:512 sc1")
A("s_mov_b32 exec_lo, -1")
A("L_sp1:")
A("s_mov_b32 exec_hi, 0")
A(f"buffer_load_dwordx4 {v(FG,4)}, {vL16}, {srd(rWS)}, {t2} offen offset:512 sc1")
A("s_mov_b32 exec_hi, -1")
A("s_waitcnt vmcnt(0)")
flags_diff()
A(f"v_and_b32 {CK}, 0x0fffffff, {CK}")
A(f"v_cmp_ne_u32 vcc, 0, {CK}")
A("s_cmp_eq_u32 vcc_lo, 0")
A("s_cbranch_scc1 L_g4")
A("s_sleep 4")
A(timeout("L_sp1", "L_g4"))
for t in tail: A(t)
A.raw('L_codeend:')
A.raw('.section .rodata,"a"')
A.raw(".p2align 6")
A.raw(f".amdhsa_kernel {NAME}_kernel")
A.raw(f"  .amdhsa_next_free_vgpr {ACC+NACC}")
A.raw("  .amdhsa_next_free_sgpr 102")
A.raw(f"  .amdhsa_accum_offset {ACC}")
A.raw("  .amdhsa_group_segment_fixed_size 0")
A.raw("  .amdhsa_kernarg_size 104")
A.raw("  .amdhsa_user_sgpr_count 2")
A.raw("  .amdhsa_user_sgpr_kernarg_segment_ptr 1")
A.raw("  .amdhsa_system_sgpr_workgroup_id_x 1")
A.raw(".end_amdhsa_kernel")
txt = A.text()
if args.cyc: txt = txt.replace('s_memrealtime', 's_memtime')
sys.stdout.write(txt)
```

```python
import sys, argparse, struct
sys.path.insert(0, 'dev')
from asmlib import Asm
NAME = "interleave_layers__sliding_block_cached__dense_activation_gelu__decode"
ap = argparse.ArgumentParser()
ap.add_argument('--stamps', action='store_true')
ap.add_argument('--pro', action='store_true')
ap.add_argument('--cyc', action='store_true')
ap.add_argument('--xt', type=int, default=0)
ap.add_argument('--xd', type=int, default=11)
ap.add_argument('--enc', type=int, default=0)
ap.add_argument('--encj', default='0,32')
ap.add_argument('--only', default='')
ap.add_argument('--pQ', type=int, default=4)
ap.add_argument('--code', type=int, default=1)
ap.add_argument('--early', default='0')
ap.add_argument('--mid', default='')
ap.add_argument('--w1dma', type=int, default=0)
ap.add_argument('--near', type=int, default=1)
ap.add_argument('--p2', default='sy')
ap.add_argument('--wb', type=int, default=0)
ap.add_argument('--dirty', type=int, default=0)
ap.add_argument('--vw', type=int, default=1)
ap.add_argument('--di', type=int, default=1)
ap.add_argument('--dz', type=int, default=1)
ap.add_argument('--dxx', type=int, default=1)
ap.add_argument('--nt', default='k,v')
ap.add_argument('--forcefb', action='store_true')
args = ap.parse_args()
def ntf(c): return ' nt' if c in args.nt.split(',') else ''
NT = ntf('s'); NTK = ntf('k'); NTV = ntf('v'); NTQ = ntf('q'); NTO = ntf('o'); NTM = ntf('m'); NT2 = ntf('2')
ST = args.stamps

def f32(x): return '0x%08x' % struct.unpack('<I', struct.pack('<f', x))[0]

CLR = 928
OP_O = 0
Y_O = OP_O + 65536
ST_O = Y_O + 41472
ST1_O = ST_O + 2048
Z1_O = ST1_O + 2048
Z2_O = Z1_O + 2304
Z3_O = Z2_O + 2304
assert Z3_O + 2304 <= 128 * CLR and (128 * CLR) % 128 == 0
QP_O = 128 * CLR
FF_O = QP_O + 65536
GB = FF_O + 1024
FB_O = 8 * GB
XP_O = 6 << 20
assert XP_O >= 16 * GB
XPS = 16384
FL_O = XP_O + 12 * 262144
EP_O = FL_O + 8 * 1024
STAMP_O = 0x8000000
L_NEAR = 8176
L_X = 640
L_QT, L_STAT, L_OT, L_PT, L_HP, L_K, L_WQ, L_SIZE = 0, 512, 1024, 2560, 8192, 16384, 49152, 67584

rK, rV, rWQ, rWO, rW1, rW2, rWS, rX, rOUT, rT1, rT2 = 4, 8, 12, 16, 20, 24, 28, 32, 36, 44, 48
sTask, kv0, kv1, sFlag = 's40', 's41', 's42', 's43'
def srd(n): return f"s[{n}:{n+3}]"
sW, sX, sJ, sGf, sGp, sXoff, sTO, sMode, sL, sWo = [f"s{i}" for i in range(52, 62)]
t0, t1, t2, t3, t4, t5 = [f"s{i}" for i in range(62, 68)]
mLO8 = "s[68:69]"; mROW = "s[70:71]"
MXA = "0x00330033"
sRole = "s3"
(vL4, vL16, vIdxD, vIdxP, vIdxS, vXAq, vXAm, vQPst, vQPg, vL128, vQTw, vQTr, vPTw, vPTr, vSTst, vOPst, vSTg, vOPg, vOTw, vOTr,
 vYst, vMst, vHPw, vSTm, vRg, vSTATr, vXPst, vXPg, vZst, vXres, vB2, vB1, vCq, vZo, vXS1, vXS2, vWrow, vHPr, vOnes) = [f"v{i}" for i in range(1, 40)]
XA, D0, D1, DP, AO, SG, YG, XG, XS, FG, TM, EM, KA, SV, OG, QG = 40, 64, 68, 72, 76, 104, 120, 132, 136, 148, 152, 176, 180, 184, 188, 196
vQPg2 = 'v92'
ACC = 212
aWQ, aK, aV, aWO, aW1, aW2, aWOt, NACC = 0, 24, 56, 88, 120, 168, 200, 232
aW2t = aW1
def v(n, k=1): return f"v{n}" if k == 1 else f"v[{n}:{n+k-1}]"
def a(n, k=1): return f"a{n}" if k == 1 else f"a[{n}:{n+k-1}]"
CK = v(TM + 23); FN = v(TM + 22); vTag = v(TM + 21); DUM = v(TM + 20)
sEp, sXPo = kv0, kv1

A = Asm()
tail = []
nst = [0]
def pstamp(k):
    if args.pro: A(f"s_memrealtime s[{72+2*k}:{73+2*k}]")
def stamp():
    if ST and not args.pro:
        k = nst[0]; nst[0] += 1
        assert k < 13
        if ONLY is None or k in ONLY: A(f"s_memrealtime s[{72+2*k}:{73+2*k}]")
ONLY = set(int(x) for x in args.only.split(',')) if args.only else None
def lg(n): return 0 if (ST and ONLY is None) else n
def exec_xa(): return [f"s_mov_b32 exec_lo, {MXA}", f"s_mov_b32 exec_hi, {MXA}"]

def check_text(regs):
    regs = list(regs); o = []
    if len(regs) == 1: cur = regs[0]
    else:
        take = regs[:3]; regs = regs[3:]
        o.append(f"v_max3_u32 {CK}, {take[0]}, {take[1]}, {take[2]}" if len(take) == 3 else f"v_max_u32 {CK}, {take[0]}, {take[1]}")
        while regs:
            take = regs[:2]; regs = regs[2:]
            o.append(f"v_max3_u32 {CK}, {CK}, {take[0]}, {take[1]}" if len(take) == 2 else f"v_max_u32 {CK}, {CK}, {take[0]}")
        cur = CK
    o.append(f"v_cmp_eq_u32 vcc, -1, {cur}")
    return o
def nvm(loads): return sum(1 for l in loads if l.startswith('buffer_'))
def timeout(again, ok): return f"s_sub_u32 {sTO}, {sTO}, 1\ns_cbranch_scc0 {again}\ns_mov_b32 {sTO}, 0\ns_waitcnt vmcnt(0) lgkmcnt(0)\ns_branch {ok}"

def poll(loads, regs, primed=False, extra_wait="", chk=None, site=''):
    lp = A.newlabel('L_poll'); to = A.newlabel('L_to'); ok = A.newlabel('L_ok'); en = A.newlabel('L_in')
    if primed:
        A(f"s_waitcnt vmcnt(0){extra_wait}")
        for l in (chk or check_text(regs)): A(l)
        A(f"s_cbranch_vccnz {lp}")
        A(f"{ok}:")
        tail.append(f"{lp}:\n" + "\n".join(loads) + f"\ns_sub_u32 {sTO}, {sTO}, 1\ns_cbranch_scc1 {to}\ns_waitcnt vmcnt(0){extra_wait}\n" +
                    "\n".join(chk or check_text(regs)) + f"\ns_cbranch_vccnz {lp}\ns_branch {ok}\n{to}:\ns_mov_b32 {sTO}, 0\ns_waitcnt vmcnt(0) lgkmcnt(0)\ns_branch {ok}")
        return
    two = site and site in args.p2
    if two:
        for l in loads: A(l)
        A("s_sleep 2")
    A(f"{lp}:")
    for l in loads: A(l)
    A(f"s_sub_u32 {sTO}, {sTO}, 1")
    A(f"s_cbranch_scc1 {to}")
    A(f"s_waitcnt vmcnt({nvm(loads) if two else 0}){extra_wait}")
    for l in (chk or check_text(regs)): A(l)
    A(f"s_cbranch_vccnz {lp}")
    A(f"{ok}:")
    tail.append(f"{to}:\ns_mov_b32 {sTO}, 0\ns_waitcnt vmcnt(0) lgkmcnt(0)\ns_branch {ok}")

def sm(d, av, br, idx): A(f"v_smfmac_f32_16x16x64_bf16 {v(d,4)}, {v(av,4)}, {a(br,8)}, {idx}")
def xa_loads(rr, voff, so, n, fl, short_last=False):
    o = exec_xa()
    for i in range(n):
        if short_last and i == n - 1: o.append("s_mov_b64 exec, 0x33")
        o.append(f"buffer_load_dwordx4 {v(XA+4*i,4)}, {voff}, {srd(rr)}, {so} offen offset:{64*i}{fl}")
    return o + ["s_mov_b64 exec, -1"]
def poll_proj(voff, so, n, wbase, short_last=False):
    loads = xa_loads(rWS, voff, so, n, ' sc1', short_last)
    lds = [l for l in loads if l.startswith('buffer_')]
    lp = A.newlabel('L_poll'); rt = A.newlabel('L_retry'); ok = A.newlabel('L_ok'); gen = A.newlabel('L_nan')
    for l in loads: A(l)
    A(f"{lp}:")
    A("s_waitcnt vmcnt(0)")
    for i in range(n): sm(D0, XA+4*i, wbase+8*i, vIdxD)
    for l in loads: A(l)
    A(f"v_cmp_u_f32 vcc, {v(D0)}, {v(D0+1)}")
    A(f"s_cbranch_vccnz {rt}")
    A(f"{ok}:")
    z = "\n".join(f"v_mov_b32 {v(D0+i)}, 0" for i in range(4))
    mm = "\n".join(f"v_smfmac_f32_16x16x64_bf16 {v(D0,4)}, {v(XA+4*i,4)}, {a(wbase+8*i,8)}, {vIdxD}" for i in range(n))
    tail.append(f"{rt}:\n{z}\ns_sub_u32 {sTO}, {sTO}, 1\ns_cbranch_scc1 {gen}\ns_and_b32 {t5}, {sTO}, 15\ns_cbranch_scc1 {lp}\n" +
                "\n".join(check_text([v(XA+i) for i in range(4*n)])) + f"\ns_cbranch_vccnz {lp}\n{gen}:\ns_max_i32 {sTO}, {sTO}, 0\n{mm}\ns_nop 7\ns_branch {ok}")

def pub(*fmts):
    for f in fmts: A(f.format(so=sGf, fl=''))
    sl = A.newlabel('L_slow'); bk = A.newlabel('L_back')
    A(f"s_cmp_lg_u32 {sMode}, 0")
    A(f"s_cbranch_scc1 {sl}")
    A(f"{bk}:")
    tail.append(f"{sl}:\n" + "\n".join(f.format(so=sGp, fl=' sc1') for f in fmts) + f"\ns_nop 1\ns_branch {bk}")

def rbf(dst, src):
    A(f"v_cvt_pk_bf16_f32 {dst}, {src}, {src}")
    A(f"v_and_b32 {dst}, 0xffff0000, {dst}")
def treduce(r):
    A(f"v_permlane32_swap_b32 {v(r)}, {v(r+2)}")
    A(f"v_permlane32_swap_b32 {v(r+1)}, {v(r+3)}")
    A(f"v_add_f32 {v(r)}, {v(r)}, {v(r+2)}")
    A(f"v_add_f32 {v(r+1)}, {v(r+1)}, {v(r+3)}")
    A(f"v_permlane16_swap_b32 {v(r)}, {v(r+1)}")
    A(f"v_add_f32 {v(r)}, {v(r)}, {v(r+1)}")
    A(f"v_add_f32_dpp {v(r)}, {v(r)}, {v(r)} row_ror:8 row_mask:0xf bank_mask:0xf")
S_, Q_ = v(TM), v(TM+1)
def stats(slot_off, write=True, early=None, late=None):
    S, Q = S_, Q_
    A(f"v_mov_b32 {S}, 0"); A(f"v_mov_b32 {Q}, 0")
    for i in range(9):
        A(f"v_dot2c_f32_bf16 {S}, {v(XS+i)}, {vOnes}")
        A(f"v_dot2c_f32_bf16 {Q}, {v(XS+i)}, {v(XS+i)}")
        if i == 2 and early: early()
    A(f"v_lshrrev_b32 {v(TM+2)}, 5, v0"); A(f"v_lshlrev_b32 {v(TM+2)}, 3, {v(TM+2)}")
    A(f"v_permlane16_swap_b32 {S}, {Q}")
    A(f"v_add_f32 {S}, {S}, {Q}")
    for k in (8, 4, 2, 1):
        A(f"v_add_f32_dpp {S}, {S}, {S} row_ror:{k} row_mask:0xf bank_mask:0xf")
    A(f"v_mul_f32 {Q}, {f32(1/576)}, {S}")
    A(f"v_mul_f32 {S}, {f32(1/576)}, {S}")
    if late: late()
    A(f"v_permlane16_swap_b32 {S}, {Q}")
    A(f"v_fma_f32 {Q}, -{S}, {S}, {Q}")
    A(f"v_max_f32 {Q}, 0, {Q}")
    A(f"v_cvt_pk_bf16_f32 {Q}, {S}, {Q}")
    A(f"v_lshlrev_b32 {S}, 16, {Q}")
    A(f"v_and_b32 {Q}, 0xffff0000, {Q}")
    A(f"v_add_f32 {Q}, {f32(1e-5)}, {Q}")
    rbf(Q, Q)
    A(f"v_sqrt_f32 {Q}, {Q}")
    rbf(Q, Q)
    A(f"v_rcp_f32 {Q}, {Q}")
    if write: A(f"ds_write_b64 {v(TM+2)}, {v(TM,2)} offset:{L_STAT+slot_off}")
def zero(r, n=4):
    for i in range(n): A(f"v_mov_b32 {v(r+i)}, 0")
def xs_loads(rr, so, fl):
    return [f"buffer_load_dwordx4 {v(XS,4)}, {vXS1}, {srd(rr)}, {so} offen{fl}",
            f"buffer_load_dwordx4 {v(XS+4,4)}, {vXS1}, {srd(rr)}, {so} offen offset:512{fl}",
            f"buffer_load_dword {v(XS+8)}, {vXS2}, {srd(rr)}, {so} offen offset:1024{fl}"]

A.raw(f"; @launch grid=(256,1,1) block=(256,1,1) lds={L_SIZE}")
A.raw('.amdgcn_target "amdgcn-amd-amdhsa--gfx950"')
A.raw(".text")
A.raw(f".globl {NAME}_kernel")
A.raw(".p2align 8")
A.raw(f".type {NAME}_kernel,@function")
A.raw(f"{NAME}_kernel:")
if ST:
    A("s_memrealtime s[100:101]")
    for k in range(14): A(f"s_mov_b64 s[{72+2*k}:{73+2*k}], 0")
A("s_cmp_ge_u32 s2, 256")
A("s_cbranch_scc1 L_end")
for r, off in ((rWS, 96), (rX, 0), (rWQ, 24), (rK, 8), (rV, 16), (rWO, 32)):
    A(f"s_load_dwordx2 s[{r}:{r+1}], s[0:1], {off}")
A(f"v_lshrrev_b32 {v(TM)}, 6, v0")
A(f"v_and_b32 v0, 63, v0")
A(f"v_readfirstlane_b32 {sW}, {v(TM)}")
for r, n in ((rX, 2304), (rWQ, 4718592), (rK, 33554432), (rV, 33554432), (rWS, 268435456), (rWO, 4718592)):
    A(f"s_mov_b32 s{r+2}, {n}"); A(f"s_mov_b32 s{r+3}, 0x20000")
A(f"s_and_b32 {sX}, s2, 7")
A(f"s_lshr_b32 {sJ}, s2, 3")
A("s_mov_b32 s68, 0x00ff00ff"); A("s_mov_b32 s69, 0x00ff00ff")
G, C, B2 = v(TM+3), v(TM+4), v(TM+5)
A(f"v_lshrrev_b32 {G}, 4, v0")
A(f"v_and_b32 {C}, 15, v0")
A(f"v_lshlrev_b32 {vL16}, 4, v0")
A(f"v_lshlrev_b32 {vL128}, 7, v0")
for i in range(4): A(f"v_mov_b32 {v(EM+i)}, -1")
A(f"s_lshr_b32 {t0}, {sJ}, 4"); A(f"s_lshl_b32 {t3}, {sX}, 1"); A(f"s_add_u32 {t0}, {t0}, {t3}")
A(f"s_bfe_u32 {t1}, {sJ}, 0x10003")
A(f"s_and_b32 {t2}, {sJ}, 7")
A(f"s_mul_i32 {sGf}, {sX}, {GB}")
A(f"v_bfe_u32 {B2}, v0, 2, 1")
A(f"v_mul_u32_u24 {vXAm}, 1152, {B2}")
A(f"v_lshl_add_u32 {vXAm}, {G}, 4, {vXAm}")
A(f"s_mul_i32 {t4}, {t2}, 144")
A(f"v_add_u32 {vXAq}, {t4}, {vXAm}")
for i in range(12): A(f"v_mov_b32 {v(XA+i)}, 0x3f803f80")
A(f"v_lshlrev_b32 {v(TM+6)}, 13, {G}")
A(f"v_lshl_add_u32 {v(TM+6)}, {C}, 4, {v(TM+6)}")
A(f"s_mul_i32 {t3}, {t2}, 18"); A(f"s_add_u32 {t3}, {t3}, {sW}"); A(f"s_lshl_b32 {t3}, {t3}, 15")
A(f"s_lshl_b32 {t4}, {t0}, 9"); A(f"s_add_u32 {t3}, {t3}, {t4}"); A(f"s_lshl_b32 {t4}, {t1}, 8"); A(f"s_add_u32 {t3}, {t3}, {t4}")
A(f"s_lshl_b32 {t4}, {sW}, 10"); A(f"s_add_u32 m0, {t4}, {L_WQ}")
A(f"s_lshl_b32 {kv0}, {t1}, 24"); A(f"s_lshl_b32 {t4}, {t0}, 20"); A(f"s_add_u32 {kv0}, {kv0}, {t4}")
A(f"s_lshl_b32 {t4}, {t2}, 15"); A(f"s_add_u32 {kv0}, {kv0}, {t4}")
A(f"s_lshl_b32 {t4}, {sW}, 13"); A(f"s_add_u32 {kv0}, {kv0}, {t4}")
A(f"s_add_u32 {kv0}, {kv0}, {3072*256}"); A(f"s_add_u32 {kv1}, {kv0}, 4096")
A(f"v_xor_b32 {v(TM+7)}, {C}, {G}")
A(f"v_lshlrev_b32 {v(TM+7)}, 4, {v(TM+7)}")
A(f"v_lshl_add_u32 {v(KA)}, {G}, 8, {v(TM+7)}")
for i in range(1, 4): A(f"v_xor_b32 {v(KA+i)}, {64*i}, {v(KA)}")
A(f"s_lshl_b32 {sL}, {sJ}, 2"); A(f"s_add_u32 {sL}, {sL}, {sW}")
A(f"s_lshl_b32 {t4}, {sL}, 9"); A(f"s_add_u32 {t4}, {t4}, {QP_O}")
A(f"v_add_u32 {vQPst}, {t4}, {vL16}")
A(f"s_mov_b32 {t5}, {EP_O}")
A("s_waitcnt lgkmcnt(0)")
pstamp(0)
A("s_mov_b64 exec, 1")
A(f"buffer_load_dword {FN}, {vL16}, {srd(rWS)}, {t5} offen{NT}")
A("s_mov_b64 exec, -1")
def empty_share(base, fl):
    A(f"s_mul_i32 {t5}, {sL}, {CLR}"); A(f"s_add_u32 {t5}, {t5}, {base}")
    A(f"s_mov_b32 exec_hi, {(1 << (CLR//16-32)) - 1}")
    A(f"buffer_store_dwordx4 {v(EM,4)}, {vL16}, {srd(rWS)}, {t5} offen{fl}")
    A("s_mov_b32 exec_hi, -1")
A(f"s_cmp_lg_u32 {sW}, 3")
A("s_cbranch_scc1 L_pro2")
A(f"v_lshrrev_b32 {v(TM+8)}, 5, v0"); A(f"v_and_b32 {v(TM+9)}, 31, v0")
A(f"v_mul_u32_u24 {vXS1}, 1152, {v(TM+8)}"); A(f"v_lshl_add_u32 {vXS2}, {v(TM+9)}, 2, {vXS1}"); A(f"v_lshl_add_u32 {v(TM+10)}, {v(TM+9)}, 3, {vXS1}"); A(f"v_lshl_add_u32 {vXS1}, {v(TM+9)}, 4, {vXS1}")
for l in xs_loads(rX, 0, NT): A(l)
A(f"s_mul_i32 {t5}, {t2}, 144")
A(f"buffer_load_dwordx2 {v(XG,2)}, {v(TM+10)}, {srd(rX)}, {t5} offen{NT}")
A("L_pro2:")
for n in range(5):
    if n == 4:
        A(f"s_cmp_ge_u32 {sW}, 2"); A("s_cbranch_scc1 L_pro1")
    A(f"buffer_load_dwordx4 {v(TM+6)}, {srd(rWQ)}, {t3} offen{NTQ} lds")
    if n < 4: A(f"s_add_u32 {t3}, {t3}, {16*8192}"); A("s_add_u32 m0, m0, 4096")
A("L_pro1:")
empty_share(sGf, '')
A(f"s_lshl_b32 {t4}, {sW}, 13"); A(f"s_add_u32 m0, {t4}, {L_K}")
for i in range(8):
    if i == 4: A(f"s_add_u32 m0, m0, 4096")
    A(f"buffer_load_dwordx4 {v(KA+i%4)}, {srd(rK)}, {kv0 if i < 4 else kv1} offen offset:{1024*(i%4)}{NTK} lds")

def constants():
    A(f"v_mul_u32_u24 {vWrow}, 1152, {G}")
    A(f"v_lshl_add_u32 {vWrow}, {C}, 4, {vWrow}")
    A(f"s_cmp_lt_u32 {sJ}, 18"); A(f"s_cselect_b32 {sRole}, 1, 0")
    A(f"s_cmp_ge_u32 {sJ}, 20"); A(f"s_cselect_b32 {t4}, 2, 0"); A(f"s_cmp_lt_u32 {sW}, 3"); A(f"s_cselect_b32 {t4}, {t4}, 0"); A(f"s_or_b32 {sRole}, {sRole}, {t4}")
    A(f"s_sub_u32 {sTask}, {sJ}, 20"); A(f"s_mul_i32 {sTask}, {sTask}, 3"); A(f"s_add_u32 {sTask}, {sTask}, {sW}"); A(f"s_min_u32 {sTask}, {sTask}, 35")
    A(f"s_lshl_b32 {t3}, {sX}, 4"); A(f"s_and_b32 {t4}, {sJ}, 15"); A(f"s_add_u32 {sWo}, {t3}, {t4}"); A(f"s_mul_i32 {sWo}, {sWo}, {32*1152}")
    A(f"s_lshl_b32 {t4}, {sW}, 8"); A(f"s_add_u32 {sWo}, {sWo}, {t4}")
    for r, n in ((rW1, 5308416), (rW2, 5308416), (rOUT, 2304), (rT1, 9216), (rT2, 1152)):
        A(f"s_mov_b32 s{r+2}, {n}"); A(f"s_mov_b32 s{r+3}, 0x20000")
    A("s_mov_b32 s70, 0xffff0000"); A("s_mov_b32 s71, 0xffff0000")
    A(f"v_lshlrev_b32 {vL4}, 2, v0")
    for i in range(12, 24): A(f"v_mov_b32 {v(XA+i)}, 0x3f803f80")
    A(f"s_lshl_b32 {t4}, {sW}, 13"); A(f"s_add_u32 {t4}, {t4}, {L_K}")
    A(f"v_lshl_add_u32 {v(KA)}, {C}, 8, {v(TM+7)}"); A(f"v_add_u32 {v(KA)}, {t4}, {v(KA)}")
    for i in range(1, 4): A(f"v_xor_b32 {v(KA+i)}, {64*i}, {v(KA)}")
    T_ = [v(TM+8+i) for i in range(10)]
    A(f"v_and_b32 {T_[0]}, 1, v0")
    A(f"v_mul_u32_u24 {vIdxP}, 0xaaaa, {T_[0]}"); A(f"v_add_u32 {vIdxP}, 0x4444, {vIdxP}")
    A(f"v_and_b32 {T_[1]}, 3, v0")
    A(f"v_mul_u32_u24 {vIdxS}, 0x5555, {T_[1]}")
    A(f"v_bfe_u32 {T_[2]}, v0, 4, 1")
    A(f"v_bfe_u32 {T_[3]}, v0, 2, 2")
    A(f"v_bfe_u32 {T_[4]}, v0, 3, 1")
    A(f"v_lshrrev_b32 {T_[5]}, 5, v0")
    A(f"v_and_b32 {T_[8]}, 7, v0")
    A(f"v_and_b32 {T_[9]}, 31, v0")
    A(f"s_lshr_b32 {t3}, {sJ}, 4")
    A(f"s_lshr_b32 {t5}, {sJ}, 3")
    A(f"s_lshl_b32 {t3}, {t3}, 1"); A(f"s_lshr_b32 {t4}, {sW}, 1"); A(f"s_add_u32 {t3}, {t3}, {t4}"); A(f"s_lshl_b32 {t3}, {t3}, 14")
    A(f"s_and_b32 {t4}, {sW}, 1"); A(f"s_lshl_b32 {t4}, {t4}, 10"); A(f"s_add_u32 {t3}, {t3}, {t4}")
    A(f"s_lshl_b32 {t4}, {t1}, 8"); A(f"s_add_u32 {t3}, {t3}, {t4}"); A(f"s_add_u32 {t3}, {t3}, {QP_O}")
    A(f"v_lshl_add_u32 {vQPg}, {T_[5]}, 4, {T_[2]}"); A(f"v_lshlrev_b32 {vQPg}, 9, {vQPg}"); A(f"v_lshl_add_u32 {vQPg}, {C}, 4, {vQPg}"); A(f"v_add_u32 {vQPg}, {t3}, {vQPg}")
    A(f"v_add_u32 {vQPg2}, 4096, {vQPg}")
    A(f"s_and_b32 {t3}, {sW}, 1"); A(f"s_lshl_b32 {t3}, {t3}, 8"); A(f"s_lshr_b32 {t4}, {sW}, 1"); A(f"s_lshl_b32 {t4}, {t4}, 7"); A(f"s_add_u32 {t3}, {t3}, {t4}")
    A(f"v_bfe_u32 {T_[6]}, v0, 3, 2"); A(f"v_bfe_u32 {T_[7]}, v0, 1, 2")
    A(f"v_lshlrev_b32 {vQTw}, 5, {T_[6]}"); A(f"v_lshl_add_u32 {vQTw}, {T_[0]}, 4, {vQTw}"); A(f"v_lshl_add_u32 {vQTw}, {T_[7]}, 2, {vQTw}")
    A(f"v_lshl_add_u32 {vQTw}, {T_[5]}, 1, {vQTw}"); A(f"v_add_u32 {vQTw}, {t3}, {vQTw}")
    A(f"v_lshlrev_b32 {vQTr}, 5, {G}"); A(f"v_lshl_add_u32 {vQTr}, {T_[4]}, 7, {vQTr}"); A(f"v_lshl_add_u32 {vQTr}, {T_[0]}, 4, {vQTr}")
    A(f"v_mul_u32_u24 {vOTr}, 640, {T_[4]}"); A(f"v_lshl_add_u32 {vOTr}, {G}, 5, {vOTr}"); A(f"v_lshl_add_u32 {vOTr}, {B2}, 4, {vOTr}")
    A(f"s_mul_i32 {t3}, {sW}, 1280"); A(f"s_add_u32 {t3}, {t3}, {L_PT}")
    A(f"v_add_u32 {vPTr}, {t3}, {vOTr}"); A(f"v_add_u32 {vOTr}, {L_OT}, {vOTr}")
    A(f"v_bfe_u32 {T_[6]}, v0, 1, 4")
    A(f"v_mul_u32_u24 {vPTw}, 640, {T_[5]}"); A(f"v_lshl_add_u32 {vPTw}, {T_[6]}, 5, {vPTw}"); A(f"v_lshl_add_u32 {vPTw}, {T_[0]}, 3, {vPTw}"); A(f"v_add_u32 {vPTw}, {t3}, {vPTw}")
    A(f"v_lshrrev_b32 {vHPr}, 1, v0"); A(f"v_lshlrev_b32 {vHPr}, 4, {vHPr}"); A(f"v_lshl_add_u32 {vHPr}, {T_[0]}, 2, {vHPr}"); A(f"v_add_u32 {vHPr}, {L_HP}, {vHPr}")
    A(f"s_lshl_b32 {t3}, {sW}, 9"); A(f"s_add_u32 {t3}, {t3}, {L_HP}"); A(f"v_add_u32 {vHPw}, {t3}, {vL16}")
    A(f"s_lshl_b32 {t3}, {t5}, 9"); A(f"s_add_u32 {t3}, {t3}, {ST_O}")
    A(f"s_lshl_b32 {t4}, {t2}, 2"); A(f"s_add_u32 {t4}, {t4}, {sW}"); A(f"s_lshl_b32 {t4}, {t4}, 2"); A(f"s_add_u32 {t4}, {t4}, {t3}")
    A(f"v_lshlrev_b32 {vSTst}, 8, {T_[5]}"); A(f"v_lshl_add_u32 {vSTst}, {T_[0]}, 7, {vSTst}"); A(f"v_add_u32 {vSTst}, {t4}, {vSTst}")
    A(f"s_lshl_b32 {t3}, {t1}, 1"); A(f"s_lshr_b32 {t4}, {sW}, 1"); A(f"s_add_u32 {t3}, {t3}, {t4}"); A(f"s_lshl_b32 {t3}, {t3}, 9"); A(f"s_add_u32 {t3}, {t3}, {ST_O}")
    A(f"s_lshr_b32 {t4}, {t2}, 2"); A(f"s_lshl_b32 {t4}, {t4}, 8"); A(f"s_add_u32 {t3}, {t3}, {t4}")
    A(f"v_lshrrev_b32 {T_[7]}, 3, v0")
    A(f"v_lshl_add_u32 {vSTg}, {T_[7]}, 4, {t3}")
    A(f"s_and_b32 {t4}, {sW}, 1"); A(f"s_lshl_b32 {t4}, {t4}, 3"); A(f"v_add_u32 {vSTm}, {t4}, {vSTg}")
    A(f"s_lshr_b32 {t3}, {sJ}, 4"); A(f"s_lshl_b32 {t3}, {t3}, 15"); A(f"s_lshl_b32 {t4}, {t1}, 11"); A(f"s_add_u32 {t3}, {t3}, {t4}")
    A(f"s_lshl_b32 {t4}, {sW}, 9"); A(f"s_add_u32 {t3}, {t3}, {t4}"); A(f"s_lshl_b32 {t4}, {t2}, 6"); A(f"s_add_u32 {t3}, {t3}, {t4}")
    A(f"v_lshlrev_b32 {T_[6]}, 4, {T_[1]}"); A(f"v_lshl_add_u32 {T_[6]}, {T_[2]}, 3, {T_[6]}")
    A(f"v_lshl_add_u32 {vOPst}, {T_[5]}, 2, {T_[3]}"); A(f"v_lshl_add_u32 {vOPst}, {vOPst}, 12, {T_[6]}"); A(f"v_add_u32 {vOPst}, {t3}, {vOPst}")
    A(f"s_and_b32 {t3}, {sJ}, 15"); A(f"s_lshl_b32 {t3}, {t3}, 12"); A(f"s_lshl_b32 {t4}, {sW}, 10"); A(f"s_add_u32 {t3}, {t3}, {t4}"); A(f"v_lshl_add_u32 {vOPg}, v0, 3, {t3}")
    A(f"s_lshr_b32 {t3}, {sW}, 1"); A(f"s_mul_i32 {t3}, {t3}, 640"); A(f"s_and_b32 {t4}, {sW}, 1"); A(f"s_lshl_b32 {t4}, {t4}, 1"); A(f"s_add_u32 {t3}, {t3}, {t4}"); A(f"s_add_u32 {t3}, {t3}, {L_OT}")
    A(f"v_mul_u32_u24 {vOTw}, 20, {T_[4]}"); A(f"v_lshl_add_u32 {vOTw}, {T_[8]}, 6, {vOTw}"); A(f"v_lshl_add_u32 {vOTw}, {T_[5]}, 5, {vOTw}")
    A(f"v_lshl_add_u32 {vOTw}, {T_[2]}, 3, {vOTw}"); A(f"v_add_u32 {vOTw}, {t3}, {vOTw}")
    A(f"s_mul_i32 {t3}, {sW}, {4*1152}"); A(f"s_lshl_b32 {t4}, {sJ}, 6"); A(f"s_add_u32 {t3}, {t3}, {t4}"); A(f"s_add_u32 {t3}, {t3}, {Y_O}")
    A(f"v_mul_u32_u24 {vMst}, 18, {T_[5]}"); A(f"v_add_u32 {vMst}, {vMst}, {T_[3]}"); A(f"v_mul_u32_u24 {vMst}, 1152, {vMst}")
    A(f"v_add3_u32 {vMst}, {vMst}, {T_[6]}, {t3}")
    A(f"v_subrev_u32 {vYst}, 1024, {vMst}")
    A(f"v_mul_u32_u24 {vXS1}, 1152, {T_[5]}"); A(f"v_lshl_add_u32 {vXS2}, {T_[9]}, 2, {vXS1}"); A(f"v_lshl_add_u32 {vXS1}, {T_[9]}, 4, {vXS1}")
    A(f"s_lshl_b32 {t3}, {t1}, 3"); A(f"s_add_u32 {t3}, {t3}, {L_STAT}"); A(f"v_mov_b32 {vSTATr}, {t3}")
    A(f"s_mul_i32 {t4}, {sW}, 384"); A(f"v_add_u32 {vXAm}, {t4}, {vXAm}")
    A(f"s_mul_i32 {t4}, {sX}, 18"); A(f"s_add_u32 {t4}, {t4}, {sJ}"); A(f"s_lshl_b32 {t5}, {t4}, 6")
    A(f"v_lshl_add_u32 {vB1}, {T_[9]}, 1, {t5}")
    A(f"s_mul_i32 {t4}, {sTask}, 1152"); A(f"s_add_u32 {t4}, {t4}, {Y_O}"); A(f"v_lshl_add_u32 {vRg}, v0, 3, {t4}")
    A(f"s_sub_u32 {t4}, {sL}, 80"); A(f"s_and_b32 {t4}, {t4}, 63"); A(f"s_lshl_b32 {t4}, {t4}, 16")
    A(f"s_lshl_b32 {t5}, {sX}, 10"); A(f"s_add_u32 {t5}, {t5}, {t4}"); A(f"v_lshl_add_u32 {vXPg}, v0, 3, {t5}")
    A(f"s_lshl_b32 {t5}, {sX}, 7"); A(f"s_add_u32 {t4}, {t4}, {t5}"); A(f"v_lshl_add_u32 {vXPst}, {T_[8]}, 4, {t4}")
    A(f"v_lshrrev_b32 {T_[7]}, 3, v0"); A(f"v_lshl_add_u32 {vXPst}, {T_[7]}, 10, {vXPst}")
    A(f"v_lshl_add_u32 {T_[7]}, {C}, 1, {T_[5]}")
    A(f"s_lshl_b32 {t4}, {sTask}, 6"); A(f"v_lshl_add_u32 {vZo}, {T_[7]}, 1, {t4}")
    A(f"v_add_u32 {vZst}, {Z1_O}, {vZo}")
    A(f"s_and_b32 {t5}, {sTask}, 7"); A(f"s_cmp_eq_u32 {t5}, {sX}"); A(f"s_cselect_b32 {t5}, 4, 0"); A(f"s_or_b32 {sRole}, {sRole}, {t5}")
    A(f"s_cmp_ge_u32 {sTask}, 18"); A(f"s_cselect_b32 {t5}, 1152, 0")
    A(f"v_subrev_u32 {vB2}, {t5}, {vZo}")

def constants1():
    A(f"v_and_b32 {v(TM+8)}, 1, v0")
    A(f"v_mul_u32_u24 {vIdxD}, 0x5555, {v(TM+8)}"); A(f"v_add_u32 {vIdxD}, 0x8888, {vIdxD}")
    A(f"v_mov_b32 {vOnes}, 0x3f803f80")
    A(f"s_lshl_b32 {t3}, {sW}, 6"); A(f"s_add_u32 {t3}, {t3}, {L_WQ}")
    A(f"v_lshlrev_b32 {vCq}, 10, {G}"); A(f"v_lshl_add_u32 {vCq}, {C}, 2, {vCq}"); A(f"v_add_u32 {vCq}, {t3}, {vCq}")
    for i in range(16, 24): A(f"v_accvgpr_write_b32 {a(aWQ+i)}, 0")
    zero(D0, 8)
    A(f"ds_write_b128 {v(D0)}, {v(EM,4)} offset:{L_STAT+16}")
    A(f"s_cmp_lg_u32 {sW}, 3")
    A("s_cbranch_scc1 L_c1")
    A(f"s_waitcnt vmcnt({4+1+8})")
    stats(0, False)
    for i in range(2):
        lo, hi = v(TM+8), v(TM+9)
        A(f"v_lshlrev_b32 {lo}, 16, {v(XG+i)}"); A(f"v_and_b32 {hi}, 0xffff0000, {v(XG+i)}")
        A(f"v_sub_f32 {lo}, {lo}, {S_}"); A(f"v_sub_f32 {hi}, {hi}, {S_}")
        A(f"v_cvt_pk_bf16_f32 {v(XG+i)}, {lo}, {hi}")
        A(f"v_lshlrev_b32 {lo}, 16, {v(XG+i)}"); A(f"v_and_b32 {hi}, 0xffff0000, {v(XG+i)}")
        A(f"v_mul_f32 {lo}, {lo}, {Q_}"); A(f"v_mul_f32 {hi}, {hi}, {Q_}")
        A(f"v_cvt_pk_bf16_f32 {v(XG+i)}, {lo}, {hi}")
    A(f"v_lshrrev_b32 {v(TM+8)}, 5, v0"); A(f"v_mul_u32_u24 {v(TM+8)}, 144, {v(TM+8)}"); A(f"v_and_b32 {v(TM+9)}, 31, v0"); A(f"v_lshl_add_u32 {v(TM+8)}, {v(TM+9)}, 3, {v(TM+8)}")
    A("s_mov_b32 exec_lo, 0x3ffff"); A("s_mov_b32 exec_hi, 0x3ffff")
    A(f"ds_write_b64 {v(TM+8)}, {v(XG,2)} offset:{L_X}")
    A("s_mov_b64 exec, -1")
    A("L_c1:")
    A(f"v_mul_u32_u24 {v(TM+10)}, 144, {B2}"); A(f"v_lshl_add_u32 {v(TM+10)}, {G}, 4, {v(TM+10)}")
    A(f"s_lshl_b32 {t3}, {sW}, 11"); A(f"v_add_u32 {v(TM+8)}, {t3}, {vL16}")
    A(f"ds_write_b128 {v(TM+8)}, {v(D1,4)} offset:1024"); A(f"ds_write_b128 {v(TM+8)}, {v(D1,4)} offset:2048")

fl_load = ["s_mov_b32 exec_hi, 0", f"buffer_load_dwordx4 {v(FG,4)}, {vL16}, {srd(rWS)}, {sXoff} offen sc1", "s_mov_b32 exec_hi, -1"]
qp_store = f"buffer_store_dwordx4 {v(D0,4)}, {vQPst}, {srd(rWS)}, {{so}} offen{{fl}}"
def qg(n): return [f"buffer_load_dwordx{n} {v(QG+4*p,n)}, {vQPg if p < 2 else vQPg2}, {srd(rWS)}, {sGp} offen offset:{2048*(p%2)} sc1" for p in range(4)]
qg4, qg2 = qg(4), qg(2)
pstamp(3)
for r, off in ((rW1, 48), (rW2, 64), (rOUT, 80), (rT1, 56), (rT2, 72)):
    A(f"s_load_dwordx2 s[{r}:{r+1}], s[0:1], {off}")
if args.code:
    A(f"s_cmp_ge_u32 {sL}, 2"); A("s_cbranch_scc1 L_nc")
    A("s_getpc_b64 s[66:67]")
    A("L_pc:")
    A(f"s_lshl_b32 {t3}, {sL}, 13"); A(f"v_add_u32 {v(TM+8)}, {t3}, {vL128}")
    A(f"v_min_u32 {v(TM+8)}, L_codeend-L_pc-4, {v(TM+8)}")
    A(f"global_load_dword {DUM}, {v(TM+8)}, s[66:67]")
    A("L_nc:")
constants1()
A(f"s_mov_b32 {sTO}, 0x40000"); A(f"s_mov_b32 {sMode}, 0"); A(f"s_mov_b32 {sGp}, {sGf}")
cnt = [8]
mark = {'K': 8}
def vm(s): A(s); cnt[0] += 1
A(f"s_lshl_b32 {t4}, {sL}, 9"); A(f"s_add_u32 {t4}, {t4}, {sGf}"); A(f"s_add_u32 {t4}, {t4}, {QP_O}")
A(f"s_add_u32 {sXoff}, {sGf}, {FF_O}")
A("s_mov_b64 exec, 15")
vm(f"buffer_load_dword {DUM}, {vL128}, {srd(rWS)}, {t4} offen sc1{NT}")
vm(f"buffer_load_dword {DUM}, {vL128}, {srd(rWS)}, {sXoff} offen sc1{NT}")
A("s_mov_b64 exec, -1")
def hookQ():
    A(f"s_lshl_b32 {t4}, {sL}, 2"); A(f"s_add_u32 {t4}, {t4}, {sXoff}")
    A(f"s_getreg_b32 {t3}, hwreg(HW_REG_XCC_ID)"); A(f"s_lshl_b32 {t3}, {t3}, 28"); A(f"s_or_b32 {t3}, {t3}, 1")
    A(f"s_waitcnt vmcnt({cnt[0]}) lgkmcnt(0)")
    A("s_barrier")
    pstamp(2)
    for l in exec_xa(): A(l)
    for i in range(3):
        if i == 2: A("s_mov_b64 exec, 0x33")
        A(f"ds_read_b128 {v(XA+4*i,4)}, {v(TM+10)} offset:{L_X+64*i}")
    A("s_mov_b64 exec, -1")
    for i in range(2):
        for vv in range(0, 8, 2):
            row = 32*i + 16*(vv >> 2) + (vv & 3)
            A(f"ds_read2st64_b32 {a(aWQ+8*i+vv,2)}, {vCq} offset0:{row} offset1:{row+1}")
    A("s_mov_b32 exec_hi, 0")
    for vv in (0, 2): A(f"ds_read2st64_b32 {a(aWQ+16+vv,2)}, {vCq} offset0:{64+vv} offset1:{65+vv}")
    A("s_mov_b32 exec_hi, -1")
    A(f"v_readfirstlane_b32 {sFlag}, {FN}")
    A(f"s_add_u32 {sFlag}, {sFlag}, 0x0e377902"); A(f"s_and_b32 {sFlag}, {sFlag}, 0x0fffffff"); A(f"s_or_b32 {sFlag}, {sFlag}, {t3}")
    A(f"v_mov_b32 {FN}, {sFlag}")
    A("s_mov_b64 exec, 1")
    vm(f"buffer_store_dword {FN}, {vL16}, {srd(rWS)}, {t4} offen")
    A("s_mov_b64 exec, -1")
    A(f"v_and_b32 {vTag}, 0xff, {FN}"); A(f"s_movk_i32 {t4}, 0xff")
    A("s_waitcnt lgkmcnt(0)")
    for i in range(3): sm(D0, XA+4*i, aWQ+8*i, vIdxD)
    for i in range(4): A(f"v_bfi_b32 {v(D0+i)}, {t4}, {vTag}, {v(D0+i)}")
    A("s_mov_b32 exec_hi, 0")
    vm(qp_store.format(so=sGf, fl=''))
    A("s_mov_b32 exec_hi, -1")
    pstamp(1)
for k in range(9):
    if k == args.pQ: hookQ()
    if k == 8 - args.vw: mark['V'] = cnt[0]
    if k < 8: vm(f"buffer_load_dwordx4 {a(aV+4*k,4)}, {vL16}, {srd(rV)}, {kv0 if k < 4 else kv1} offen offset:{1024*(k%4)}{NTV}")
    if k == 7: pstamp(9)
TT = v(TM+4)
def slots_touch():
    A(f"s_lshl_b32 {t1}, {sJ}, 2"); A(f"s_add_u32 {t1}, {t1}, {sW}")
    A(f"s_mul_i32 {t3}, {t1}, 896"); A(f"s_add_u32 {t3}, {t3}, {sGf}"); A(f"s_add_u32 {t3}, {t3}, {Y_O}")
    A("s_mov_b64 exec, 0x7f")
    A(f"buffer_load_dword {DUM}, {vL128}, {srd(rWS)}, {t3} offen sc1{NT}")
    A("s_mov_b64 exec, -1")
assert Y_O + 64 * 896 >= Z3_O + 2304
def w1_touch():
    A(f"s_lshl_b32 {t1}, {sJ}, 2"); A(f"s_add_u32 {t1}, {t1}, {sW}")
    A(f"s_mul_i32 {t4}, {sX}, 576"); A(f"s_add_u32 {t4}, {t4}, {t1}"); A(f"s_add_u32 {t4}, {t4}, 512"); A(f"s_mul_i32 {t4}, {t4}, 1152")
    A(f"s_mul_i32 {t1}, {t1}, {9*9216}")
    A(f"s_mul_i32 {t3}, {sX}, 1152"); A(f"s_add_u32 {t1}, {t1}, {t3}"); A(f"s_add_u32 {t3}, {t1}, {5*9216}")
    A(f"v_mul_u32_u24 {TT}, 57, v0"); A(f"v_lshrrev_b32 {TT}, 9, {TT}"); A(f"v_mul_u32_u24 {TT}, {9216-1152}, {TT}"); A(f"v_add_u32 {TT}, {TT}, {vL128}")
    A("s_mov_b32 exec_hi, 0x1fff")
    A(f"buffer_load_dword {DUM}, {TT}, {srd(rW1)}, {t1} offen{NTM}")
    A("s_mov_b32 exec_hi, 15")
    A(f"buffer_load_dword {DUM}, {TT}, {srd(rW1)}, {t3} offen{NTM}")
    A("s_mov_b64 exec, 0x1ff")
    A(f"buffer_load_dword {DUM}, {vL128}, {srd(rW2)}, {t4} offen{NTM}")
    A("s_mov_b64 exec, -1")
def w2_loads():
    l1 = A.newlabel('L_w2')
    A(f"s_mul_i32 {t0}, {sX}, 18"); A(f"s_add_u32 {t0}, {t0}, {sJ}"); A(f"s_mul_i32 {t0}, {t0}, {32*1152}")
    A(f"s_lshl_b32 {t1}, {sW}, 8"); A(f"s_add_u32 {t1}, {t1}, {t0}")
    for i in range(8):
        A(f"buffer_load_dwordx4 {a(aW2+4*i,4)}, {vWrow}, {srd(rW2)}, {t1} offen{NT2}")
        if i < 7: A(f"s_add_u32 {t1}, {t1}, 4608")
    A(f"s_cmp_lg_u32 {sW}, 3")
    A(f"s_cbranch_scc1 {l1}")
    A(f"s_mov_b64 exec, {mLO8}")
    for i in range(8):
        A(f"buffer_load_dwordx4 {a(aW2t+4*i,4)}, {vWrow}, {srd(rW2)}, {t0} offen offset:1024{NT2}")
        if i < 7: A(f"s_add_u32 {t0}, {t0}, 4608")
    A("s_mov_b64 exec, -1")
    A(f"{l1}:")
def wo_loads(k0, k1, with_tail):
    for k in range(k0, k1):
        A(f"buffer_load_dwordx4 {a(aWO+4*k,4)}, {vWrow}, {srd(rWO)}, {sWo} offen{NTO}")
        A(f"s_add_u32 {sWo}, {sWo}, 4608")
    if with_tail:
        l1 = A.newlabel('L_wt')
        A(f"s_cmp_lg_u32 {sW}, 3")
        A(f"s_cbranch_scc1 {l1}")
        A(f"s_mov_b64 exec, {mLO8}")
        for i in range(7, -1, -1):
            A(f"s_sub_u32 {sWo}, {sWo}, 4608")
            A(f"buffer_load_dwordx4 {a(aWOt+4*i,4)}, {vWrow}, {srd(rWO)}, {sWo} offen offset:256{NTO}")
        A("s_mov_b64 exec, -1")
        A(f"{l1}:")
constants()
pstamp(4)
stamp()
A(f"s_waitcnt vmcnt({cnt[0]-mark['K']})")
for T in range(2):
    for q in range(4): A(f"ds_read_b128 {a(aK+16*T+4*q,4)}, {v(KA+q)} offset:{4096*T}")
A(f"s_mov_b32 {sXPo}, {XP_O}")
A(f"s_cmp_lt_u32 {sJ}, 16")
A("s_cbranch_scc1 L_g1n")
A(f"v_readfirstlane_b32 {t4}, {vOPg}"); A(f"v_readfirstlane_b32 {t5}, {vSTg}")
A(f"s_add_u32 {t4}, {t4}, {sGf}"); A(f"s_add_u32 {t5}, {t5}, {sGf}")
A("s_mov_b64 exec, 0xff")
A(f"buffer_load_dword {DUM}, {vL128}, {srd(rWS)}, {t4} offen sc1{NT}")
A("s_mov_b64 exec, 3")
A(f"buffer_load_dword {DUM}, {vL128}, {srd(rWS)}, {t5} offen sc1{NT}")
A("s_mov_b64 exec, -1")
A(f"buffer_load_ushort {vXres}, {vZo}, {srd(rX)}, 0 offen{NT}")
A(f"buffer_load_ushort {vB2}, {vB2}, {srd(rT2)}, 0 offen{NT}")
wo_loads(0, 8, True)
A("s_branch L_g1o")
A("L_g1n:")
if 's' in args.early: slots_touch()
if '1' in args.early: w1_touch()
if '2' in args.early: w2_loads()
A("L_g1o:")
pstamp(6)
A(f"s_waitcnt vmcnt({args.vw})")
if ST and not args.pro and ONLY is None: A(f"s_memrealtime s[74:75]")
pstamp(5)
def flags_diff():
    A(f"v_xor_b32 {CK}, {sFlag}, {v(FG)}")
    for i in range(1, 4): A(f"v_bitop3_b32 {CK}, {CK}, {v(FG+i)}, {sFlag} bitop3:0xf6")
st_rd = f"ds_read_b64 {v(TM,2)}, {vSTATr}"
A("L_g4:")
for l in fl_load + qg4: A(l)
A("s_waitcnt vmcnt(0)")
pstamp(7)
flags_diff()
A(f"v_cmp_ne_u32 vcc, 0, {CK}")
A("s_cmp_lg_u32 vcc_lo, 0")
if args.forcefb: A("s_cmp_eq_u32 0, 0")
A("s_cbranch_scc1 L_af2")
A(f"s_mov_b32 {sMode}, 0")
A("L_g2:")
for i in range(16): A(f"v_xor_b32 {v(QG+i)}, {vTag}, {v(QG+i)}")
A(f"v_or3_b32 {CK}, {v(QG)}, {v(QG+1)}, {v(QG+2)}")
for i in range(3, 15, 2): A(f"v_or3_b32 {CK}, {CK}, {v(QG+i)}, {v(QG+i+1)}")
A(f"v_or_b32 {CK}, {CK}, {v(QG+15)}")
A(f"v_and_b32 {CK}, 0xff, {CK}")
A(f"v_cmp_ne_u32 vcc, 0, {CK}")
A("s_cbranch_vccnz L_g5")
A("L_g3:")
A(f"s_mov_b32 {sL}, 0")
zero(D0)
A(f"v_mov_b32 {v(TM)}, 0"); A(f"v_mov_b32 {v(TM+1)}, 1.0")
tail.append("L_g5:\n" + timeout("L_g4", "L_g3"))
pstamp(8)
A(f"v_add_f32 {v(TM+2)}, {v(QG+2)}, {v(QG+6)}"); A(f"v_add_f32 {v(TM+3)}, {v(QG+3)}, {v(QG+7)}")
A(f"v_add_f32 {v(TM+4)}, {v(QG+10)}, {v(QG+14)}"); A(f"v_add_f32 {v(TM+5)}, {v(QG+11)}, {v(QG+15)}")
A(f"v_add_f32 {v(TM+2)}, {v(TM+2)}, {v(TM+4)}"); A(f"v_add_f32 {v(TM+3)}, {v(TM+3)}, {v(TM+5)}")
A(f"v_permlane32_swap_b32 {v(TM+2)}, {v(TM+3)}")
A(f"v_add_f32 {vCq}, {v(TM+2)}, {v(TM+3)}")
A("s_branch L_qfin")

A("L_layer:")
zero(D0, 8)
def q_pub():
    A(f"v_and_b32 {v(D0)}, -2, {v(D0)}"); A(f"v_and_b32 {v(D0+1)}, -2, {v(D0+1)}")
    A("s_mov_b32 exec_hi, 0")
    pub(f"buffer_store_dwordx2 {v(D0,2)}, {vQPst}, {srd(rWS)}, {{so}} offen{{fl}}")
    A("s_mov_b32 exec_hi, -1")
A(f"s_cmp_eq_u32 {sW}, 3")
A("s_cbranch_scc1 L_q3")
poll_proj(vXAq, sXoff, 3, aWQ, True)
q_pub()
nst[0] = 1
stamp()
zero(D0)
qregs = [v(QG+4*p+i) for p in range(4) for i in range(2)]
qchk1 = [f"v_or3_b32 {CK}, {qregs[0]}, {qregs[1]}, {qregs[2]}", f"v_or3_b32 {CK}, {CK}, {qregs[3]}, {qregs[4]}", f"v_or3_b32 {CK}, {CK}, {qregs[5]}, {qregs[6]}",
         f"v_bitop3_b32 {CK}, {CK}, {qregs[7]}, 1 bitop3:0xa8", f"v_cmp_ne_u32 vcc, 0, {CK}"]
poll(qg2, qregs, site='q', chk=qchk1)
A("s_branch L_q4")
A("L_q3:")
poll(xs_loads(rWS, sXoff, ' sc1') + xa_loads(rWS, vXAq, sXoff, 3, ' sc1', True), [v(XS+i) for i in range(9)], site='z')
if 'z' in args.p2: A("s_waitcnt vmcnt(0)")
for i in range(3): sm(D0, XA+4*i, aWQ+8*i, vIdxD)
stats(16, early=q_pub, late=lambda: [A(l) for l in qg2])
nst[0] = 1
stamp()
zero(D0)
poll(qg2, qregs, primed=True, chk=qchk1)
A("L_q4:")
A(f"ds_read_b64 {v(TM,2)}, {vSTATr} offset:16")
A("L_qfin:")
stamp()
A(f"v_add_f32 {v(TM+2)}, {v(QG)}, {v(QG+4)}"); A(f"v_add_f32 {v(TM+3)}, {v(QG+1)}, {v(QG+5)}")
A(f"v_add_f32 {v(TM+4)}, {v(QG+8)}, {v(QG+12)}"); A(f"v_add_f32 {v(TM+5)}, {v(QG+9)}, {v(QG+13)}")
A(f"v_add_f32 {v(TM+2)}, {v(TM+2)}, {v(TM+4)}"); A(f"v_add_f32 {v(TM+3)}, {v(TM+3)}, {v(TM+5)}")
A(f"v_permlane32_swap_b32 {v(TM+2)}, {v(TM+3)}")
A(f"v_add_f32 {v(TM+2)}, {v(TM+2)}, {v(TM+3)}")
A("L_q5:")
A("s_waitcnt lgkmcnt(0)")
A(f"v_cmp_eq_u32 vcc, -1, {v(TM+1)}")
A("s_cbranch_vccnz L_q6")
A("L_q7:")
tail.append(f"L_q6:\nds_read_b64 {v(TM,2)}, {vSTATr} offset:16\n" + timeout("L_q5", "L_q7"))
A(f"v_fma_f32 {v(TM+2)}, -{v(TM)}, {vCq}, {v(TM+2)}")
A(f"v_mul_f32 {v(TM+2)}, {v(TM+2)}, {v(TM+1)}")
A(f"v_cvt_pk_bf16_f32 {v(TM+2)}, {v(TM+2)}, {v(TM+2)}")
A(f"ds_write_b16 {vQTw}, {v(TM+2)} offset:{L_QT}")
A("s_mov_b32 vcc_lo, 0xaaaaaaaa"); A("s_mov_b32 vcc_hi, 0xaaaaaaaa")
zero(DP)
A("s_waitcnt lgkmcnt(0)")
A("s_barrier")
A(f"ds_read_b128 {v(AO,4)}, {vQTr} offset:{L_QT}")
A(f"ds_read_b128 {v(AO+4,4)}, {vQTr} offset:{L_QT+256}")
if args.mid:
    A(f"s_lshr_b32 {t0}, {sJ}, 4"); A(f"s_or_b32 {t0}, {t0}, {sL}")
    A("s_cbranch_scc1 L_mid")
    if 's' in args.mid: slots_touch()
    if '1' in args.mid: w1_touch()
    if '2' in args.mid: w2_loads()
    A("L_mid:")
A(f"s_waitcnt lgkmcnt({lg(1)})")
sm(D0, AO, aK, vIdxP); sm(D1, AO, aK+16, vIdxP)
A("s_waitcnt lgkmcnt(0)")
sm(D0, AO+4, aK+8, vIdxP); sm(D1, AO+4, aK+24, vIdxP)
SC, MX, P_, LS, TT = v(TM), v(TM+1), v(TM+2), v(TM+3), v(TM+4)
A(f"v_add_f32 {SC}, {v(D0)}, {v(D0+1)}")
A(f"v_add_f32 {TT}, {v(D1)}, {v(D1+1)}")
A(f"v_cndmask_b32 {SC}, {SC}, {TT}, {mROW}")
rbf(SC, SC)
A(f"v_mul_f32 {SC}, {f32(128 ** -0.5)}, {SC}")
rbf(SC, SC)
A(f"v_mul_f32 {SC}, {f32(1.4426950408889634)}, {SC}")
zero(D0, 2)
A(f"v_max_f32_dpp {MX}, {SC}, {SC} row_ror:8 row_mask:0xf bank_mask:0xf")
for n, k in enumerate((4, 2, 1)):
    zero(D0+2+2*n, 2)
    if k == 1: A(f"v_max_f32_dpp {TT}, {MX}, {MX} row_ror:{k} row_mask:0xf bank_mask:0xf")
    A(f"v_max_f32_dpp {MX}, {MX}, {MX} row_ror:{k} row_mask:0xf bank_mask:0xf")
A(f"v_permlane16_swap_b32 {MX}, {TT}")
A(f"v_max_f32 {MX}, {MX}, {TT}")
A(f"v_sub_f32 {P_}, {SC}, {MX}")
A(f"v_exp_f32 {P_}, {P_}")
A(f"v_cvt_pk_bf16_f32 {TT}, {P_}, 0")
A(f"ds_write2_b32 {vPTw}, {TT}, {TT} offset1:5")
for i in range(4): A(f"ds_read_b128 {v(AO+4*i,4)}, {vPTr} offset:{128*i}")
A(f"v_add_f32_dpp {LS}, {P_}, {P_} row_ror:8 row_mask:0xf bank_mask:0xf")
for k in (4, 2, 1): A(f"v_add_f32_dpp {LS}, {LS}, {LS} row_ror:{k} row_mask:0xf bank_mask:0xf")
A(f"v_mov_b32 {SC}, {LS}")
A(f"v_permlane16_swap_b32 {LS}, {SC}")
A(f"v_add_f32 {LS}, {LS}, {SC}")
A(f"v_cndmask_b32 {SC}, {MX}, {LS}, vcc")
A("s_mov_b32 exec_lo, 3"); A("s_mov_b32 exec_hi, 3")
pub(f"buffer_store_dword {SC}, {vSTst}, {srd(rWS)}, {{so}} offen{{fl}}")
A("s_mov_b64 exec, -1")
for i in range(4):
    A(f"s_waitcnt lgkmcnt({lg(3-i)})")
    sm(DP, AO+4*i, aV+8*i, vIdxS)
def pack4(d):
    A(f"v_cvt_pk_bf16_f32 {v(d)}, {v(d)}, {v(d+1)}"); A(f"v_cvt_pk_bf16_f32 {v(d+1)}, {v(d+2)}, {v(d+3)}")
pack4(DP)
pub(f"buffer_store_dwordx2 {v(DP,2)}, {vOPst}, {srd(rWS)}, {{so}} offen{{fl}}")
stamp()
E = TM + 5
R = TM + 12
def tile_out(wb, tb, vst):
    l1 = A.newlabel('L_t'); l2 = A.newlabel('L_t')
    for i in range(4):
        A(f"s_waitcnt lgkmcnt({lg(3-i)})")
        sm(D0, AO+4*i, wb+8*i, vIdxS)
    A(f"s_cmp_lg_u32 {sW}, 3")
    A(f"s_cbranch_scc1 {l1}")
    for i in range(4): sm(D1, AO+4*i, tb+8*i, vIdxS)
    A(f"{l1}:")
    A("s_waitcnt vmcnt(0)")
    A("s_nop 4")
    pack4(D0)
    pub(f"buffer_store_dwordx2 {v(D0,2)}, {vst}, {srd(rWS)}, {{so}} offen{{fl}}")
    A(f"s_cmp_lg_u32 {sW}, 3")
    A(f"s_cbranch_scc1 {l2}")
    pack4(D1)
    A(f"s_mov_b64 exec, {mLO8}")
    pub(f"buffer_store_dwordx2 {v(D1,2)}, {v(E+2)}, {srd(rWS)}, {{so}} offen{{fl}}")
    A("s_mov_b64 exec, -1")
    A(f"{l2}:")
A(f"s_cmp_lt_u32 {sJ}, 16")
A("s_cbranch_scc1 L_mlp")
op_load = [f"buffer_load_dwordx2 {v(OG+2*i,2)}, {vOPg}, {srd(rWS)}, {sGp} offen offset:{512*i} sc1" for i in range(2)]
A(f"v_add_u32 {v(E+6)}, {4*1152}, {vYst}")
poll([f"buffer_load_dwordx4 {v(SG,4)}, {vSTg}, {srd(rWS)}, {sGp} offen sc1",
      f"buffer_load_dwordx4 {v(SG+4,4)}, {vSTg}, {srd(rWS)}, {sGp} offen offset:128 sc1",
      f"buffer_load_dwordx2 {v(SG+8,2)}, {vSTm}, {srd(rWS)}, {sGp} offen sc1"], [v(SG+i) for i in range(10 if 's' in args.p2 else 8)], site='s')
for l in op_load: A(l)
A(f"v_max3_f32 {MX}, {v(SG)}, {v(SG+1)}, {v(SG+2)}")
A(f"v_max_f32 {MX}, {MX}, {v(SG+3)}")
A(f"v_max_f32_dpp {TT}, {MX}, {MX} row_ror:8 row_mask:0xf bank_mask:0xf")
A(f"v_max_f32_dpp {MX}, {MX}, {MX} row_ror:8 row_mask:0xf bank_mask:0xf")
A(f"v_permlane16_swap_b32 {MX}, {TT}"); A(f"v_max_f32 {SC}, {MX}, {TT}"); A(f"v_max_f32 {MX}, {MX}, {TT}")
A(f"v_permlane32_swap_b32 {MX}, {SC}"); A(f"v_max_f32 {MX}, {MX}, {SC}")
for n, i in enumerate((0, 1, 2, 3, 8, 9)): A(f"v_sub_f32 {v(E+n)}, {v(SG+i)}, {MX}")
for n in range(6): A(f"v_exp_f32 {v(E+n)}, {v(E+n)}")
A(f"v_mul_f32 {LS}, {v(E)}, {v(SG+4)}")
for i in (1, 2, 3): A(f"v_fmac_f32 {LS}, {v(E+i)}, {v(SG+4+i)}")
A(f"v_add_f32_dpp {TT}, {LS}, {LS} row_ror:8 row_mask:0xf bank_mask:0xf")
A(f"v_add_f32_dpp {LS}, {LS}, {LS} row_ror:8 row_mask:0xf bank_mask:0xf")
A(f"v_permlane16_swap_b32 {LS}, {TT}"); A(f"v_add_f32 {SC}, {LS}, {TT}"); A(f"v_add_f32 {LS}, {LS}, {TT}")
poll(op_load, [v(OG+i) for i in range(4)], primed=True)
stamp()
A(f"v_permlane32_swap_b32 {LS}, {SC}")
def unpack2(dst, src):
    for i in range(2):
        A(f"v_lshlrev_b32 {v(dst+2*i)}, 16, {v(src+i)}"); A(f"v_and_b32 {v(dst+2*i+1)}, 0xffff0000, {v(src+i)}")
unpack2(R, OG); unpack2(OG+4, OG+2)
for i in (0, 2): A(f"v_pk_mul_f32 {v(R+i,2)}, {v(R+i,2)}, {v(E+3,2)} op_sel:[0,1] op_sel_hi:[1,1]")
for i in (0, 2): A(f"v_pk_fma_f32 {v(R+i,2)}, {v(OG+4+i,2)}, {v(E+5,2)}, {v(R+i,2)} op_sel_hi:[1,0,1]")
A(f"v_add_f32 {LS}, {LS}, {SC}")
A(f"v_mov_b32 {v(E+2)}, {v(E+6)}")
A(f"v_permlane32_swap_b32 {v(R)}, {v(R+2)}")
A(f"v_permlane32_swap_b32 {v(R+1)}, {v(R+3)}")
A(f"v_add_f32 {v(R)}, {v(R)}, {v(R+2)}")
A(f"v_add_f32 {v(R+1)}, {v(R+1)}, {v(R+3)}")
A(f"v_rcp_f32 {LS}, {LS}")
A(f"v_permlane16_swap_b32 {v(R)}, {v(R+1)}")
A(f"v_add_f32 {v(R)}, {v(R)}, {v(R+1)}")
A(f"v_add_f32_dpp {v(R)}, {v(R)}, {v(R)} row_ror:8 row_mask:0xf bank_mask:0xf")
A(f"v_mul_f32 {v(R)}, {v(R)}, {LS}")
A(f"v_cvt_pk_bf16_f32 {TT}, {v(R)}, {v(R)}")
A(f"ds_write_b16 {vOTw}, {TT}")
pub(*[f"buffer_store_dwordx2 {v(EM,2)}, {vOPg}, {srd(rWS)}, {{so}} offen offset:{512*i}{{fl}}" for i in range(2)])
A("s_waitcnt lgkmcnt(0)")
A("s_barrier")
for i in range(4): A(f"ds_read_b128 {v(AO+4*i,4)}, {vOTr} offset:{128*i}")
tile_out(aWO, aWOt, vYst)
stamp()

def reducer(kind):
    ld = [f"buffer_load_dwordx2 {v(YG+2*i,2)}, {vRg}, {srd(rWS)}, {sGp} offen offset:{512*i} sc1" for i in range(2)]
    A(f"s_movk_i32 {t4}, 0xff"); A(f"s_add_u32 {t3}, {sXPo}, 8192")
    if kind == 'A':
        poll(ld, [v(YG+i) for i in range(4)], site='y')
    else:
        poll(ld + ["s_mov_b64 exec, 0xffff", f"buffer_load_dwordx2 {v(YG+4,2)}, {vRg}, {srd(rWS)}, {sGp} offen offset:1024 sc1", "s_mov_b64 exec, -1"],
             [v(YG+i) for i in range(6)], site='y')
    unpack2(R, YG); unpack2(YG+8, YG+2)
    for i in (0, 2): A(f"v_pk_add_f32 {v(R+i,2)}, {v(R+i,2)}, {v(YG+8+i,2)}")
    if kind == 'M':
        unpack2(YG+8, YG+4)
        for i in (0, 2): A(f"v_pk_add_f32 {v(R+i,2)}, {v(R+i,2)}, {v(YG+8+i,2)}")
    stamp()
    treduce(R)
    A(f"v_bfi_b32 {v(R+1)}, {t4}, {vTag}, {v(R)}"); A(f"v_bfi_b32 {v(R)}, {t4}, {vTag}, {v(R)}")
    A(f"v_permlane16_swap_b32 {v(R)}, {v(R+1)}")
    A(f"v_mov_b32 {v(R+2)}, {v(R)}"); A(f"v_mov_b32 {v(R+3)}, {v(R+1)}")
    A(f"v_permlane32_swap_b32 {v(R)}, {v(R+2)}"); A(f"v_permlane32_swap_b32 {v(R+1)}, {v(R+3)}")
    A(f"buffer_store_dwordx4 {v(R,4)}, {vXPst}, {srd(rWS)}, {sXPo} offen sc1")
    if args.near: A(f"buffer_store_dwordx4 {v(R,4)}, {vXPst}, {srd(rWS)}, {t3} offen sc1")
    if kind == 'M':
        A(f"s_lshl_b32 {t0}, {sL}, 2"); A(f"s_andn2_b32 {t0}, {t0}, {sRole}")
        A("s_cbranch_scc1 L_fin")
    cl = [f"buffer_store_dwordx2 {v(EM,2)}, {vRg}, {srd(rWS)}, {{so}} offen offset:{512*i}{{fl}}" for i in range(2)]
    if kind == 'M': cl += ["s_mov_b64 exec, 0xffff", f"buffer_store_dwordx2 {v(EM,2)}, {vRg}, {srd(rWS)}, {{so}} offen offset:1024{{fl}}", "s_mov_b64 exec, -1"]
    pub(*cl)
    if args.near:
        A(f"v_mov_b32 {TT}, 0")
        A(f"ds_read_b32 {TT}, {TT} offset:{L_NEAR}")
    if args.xd: A(f"s_sleep {args.xd}")
    if args.near:
        A("s_waitcnt lgkmcnt(0)")
        A(f"v_or_b32 {vXPg}, {vXPg}, {TT}")
    poll([f"buffer_load_dwordx2 {v(XG,2)}, {vXPg}, {srd(rWS)}, {sXPo} offen sc1",
          f"buffer_load_dwordx2 {v(XG+2,2)}, {vXPg}, {srd(rWS)}, {sXPo} offen offset:512 sc1"], None,
         chk=[f"v_xor_b32 {v(R+i)}, {vTag}, {v(XG+i)}" for i in range(4)] +
             [f"v_or3_b32 {CK}, {v(R)}, {v(R+1)}, {v(R+2)}", f"v_bitop3_b32 {CK}, {CK}, {v(R+3)}, {t4} bitop3:0xa8", f"v_cmp_ne_u32 vcc, 0, {CK}"])
    stamp()
    Y = v(R)
    A(f"v_add_f32 {v(R)}, {v(R)}, {v(R+2)}"); A(f"v_add_f32 {v(R+1)}, {v(R+1)}, {v(R+3)}")
    A(f"v_permlane32_swap_b32 {v(R)}, {v(R+1)}")
    A(f"v_add_f32 {TT}, {v(R)}, {v(R+1)}"); A(f"v_add_f32 {Y}, {v(R)}, {v(R+1)}")
    A(f"v_permlane16_swap_b32 {Y}, {TT}"); A(f"v_add_f32 {Y}, {Y}, {TT}")
    rbf(Y, Y)
    if kind == 'M':
        A(f"v_add_f32 {Y}, {Y}, {vB2}"); rbf(Y, Y)
    A(f"v_add_f32 {TT}, {Y}, {vXres}")
    A(f"v_add_f32 {v(R+1)}, {Y}, {vXres}")
    A(f"v_add_f32 {Y}, {Y}, {vXres}")
    A("s_mov_b64 exec, -1")
    A(f"v_permlane32_swap_b32 {TT}, {v(R+1)}")
    A(f"v_cvt_pk_bf16_f32 {TT}, {TT}, {v(R+1)}")
    A("s_mov_b64 exec, 0xffff")
    if kind == 'M':
        A(f"s_cmp_lg_u32 {sL}, 0")
        A("s_cbranch_scc1 L_out")
    pub(f"buffer_store_dword {TT}, {vZst}, {srd(rWS)}, {{so}} offen{{fl}}")
    A("s_mov_b64 exec, -1")
    stamp()
    rbf(vXres, Y)
    A(f"v_add_u32 {vZst}, 2304, {vZst}")
    A(f"s_add_u32 {sXPo}, {sXPo}, {XPS}")

A(f"s_bitcmp1_b32 {sRole}, 0")
A("s_cbranch_scc1 L_mlp")
A(f"s_bitcmp1_b32 {sRole}, 1")
A("s_cbranch_scc0 L_probe" if args.near else "s_cbranch_scc0 L_next")
A(f"s_cmp_lg_u32 {sL}, 0")
A("s_cbranch_scc1 L_red")
A(f"v_lshlrev_b32 {vXres}, 16, {vXres}"); A(f"v_lshlrev_b32 {vB2}, 16, {vB2}")
zero(YG+4, 2)
A("L_red:")
k0 = nst[0]
reducer('A'); reducer('M')
kr = nst[0]
A("s_branch L_next")
A("L_mlp:")
nst[0] = k0
A(f"s_cmp_lg_u32 {sL}, 0")
A("s_cbranch_scc1 L_m1")
A(f"s_mul_i32 {t0}, {sX}, 18"); A(f"s_add_u32 {t0}, {t0}, {sJ}")
A(f"s_lshl_b32 {t2}, {t0}, 6")
A(f"buffer_load_ushort {vB1}, {vB1}, {srd(rT1)}, 0 offen{NT}")
A(f"s_cmp_ge_u32 {sJ}, 16")
A("s_cbranch_scc1 L_m0b")
if 's' not in args.early + args.mid: slots_touch()
if '1' not in args.early + args.mid: w1_touch()
if '2' in args.early + args.mid: A("s_branch L_m0d")
A("L_m0b:")
w2_loads()
A("L_m0d:")
A(f"s_cmp_eq_u32 {sW}, 3")
A("s_cbranch_scc1 L_m0c")
A("L_m0a:")
A(f"s_mul_i32 {t0}, {sW}, {192*9216}"); A(f"s_add_u32 {t0}, {t0}, {t2}")
if args.w1dma:
    A(f"v_lshrrev_b32 {TT}, 2, v0"); A(f"v_mul_u32_u24 {TT}, 9216, {TT}"); A(f"v_and_b32 {LS}, 3, v0"); A(f"v_lshl_add_u32 {TT}, {LS}, 4, {TT}")
    A(f"s_mul_i32 {t1}, {sW}, 12288"); A(f"s_add_u32 {t1}, {t1}, {L_K}"); A(f"s_mov_b32 m0, {t1}")
    for i in range(12):
        A(f"buffer_load_dwordx4 {TT}, {srd(rW1)}, {t0} offen{NTM} lds")
        if i < 11: A(f"s_add_u32 {t0}, {t0}, {16*9216}"); A("s_add_u32 m0, m0, 1024")
    A(f"v_lshrrev_b32 {TT}, 4, v0"); A(f"v_lshlrev_b32 {TT}, 8, {TT}"); A(f"v_and_b32 {LS}, 15, v0"); A(f"v_lshl_add_u32 {TT}, {LS}, 2, {TT}"); A(f"v_add_u32 {TT}, {t1}, {TT}")
    A("s_waitcnt vmcnt(0)")
    for i in range(6):
        for hh in range(2):
            for p in range(2):
                A(f"ds_read2_b32 {a(aW1+8*i+4*hh+2*p,2)}, {TT} offset0:{32*p} offset1:{32*p+16}")
            if (i, hh) != (5, 1): A(f"v_add_u32 {TT}, 1024, {TT}")
    A("s_waitcnt lgkmcnt(0)")
else:
    A(f"v_lshrrev_b32 {TT}, 4, v0"); A(f"v_mul_u32_u24 {TT}, {4*9216}, {TT}"); A(f"v_and_b32 {LS}, 15, v0"); A(f"v_lshl_add_u32 {TT}, {LS}, 2, {TT}")
    prev = 0
    for i in range(6):
        for vv in range(8):
            row = 32*i + 16*(vv >> 2) + (vv & 3)
            if row != prev: A(f"s_add_u32 {t0}, {t0}, {(row-prev)*9216}")
            prev = row
            A(f"buffer_load_dword {a(aW1+8*i+vv)}, {TT}, {srd(rW1)}, {t0} offen{NTM}")
A("L_m0c:")
if ST: A("s_memrealtime s[94:95]"); A("s_waitcnt vmcnt(0)"); A("s_memrealtime s[96:97]")
A("s_waitcnt vmcnt(0)")
A(f"v_lshlrev_b32 {vB1}, 16, {vB1}")
A("L_m1:")
zero(D0, 8)
c0 = -2 * 1.4426950408889634 * 0.7978845608028654
A(f"v_mov_b32 {v(E)}, {f32(c0)}")
A(f"v_lshrrev_b32 {v(E+1)}, 5, v0"); A(f"v_lshlrev_b32 {v(E+1)}, 3, {v(E+1)}")
A(f"v_add_u32 {v(E+2)}, {4*1152}, {vMst}")
A(f"s_mul_i32 {t0}, {sL}, {Z3_O-Z1_O}"); A(f"s_add_u32 {t0}, {t0}, {sGp}"); A(f"s_add_u32 {t0}, {t0}, {Z1_O}")
A(f"s_cmp_eq_u32 {sW}, 3")
A("s_cbranch_scc1 L_m2")
poll_proj(vXAm, t0, 6, aW1)
A("s_mov_b32 exec_hi, 0")
A(f"ds_write_b128 {vHPw}, {v(D0,4)}")
A("s_mov_b32 exec_hi, -1")
A("s_branch L_m2b")
A("L_m2:")
poll(xs_loads(rWS, t0, ' sc1'), [v(XS+i) for i in range(9)], site='z')
stats(32)
A("L_m2b:")
stamp()
A("s_waitcnt lgkmcnt(0)")
A("s_barrier")
H = TM + 12
A(f"ds_read2_b32 {v(H,2)}, {vHPr} offset0:0 offset1:2")
A(f"ds_read2_b32 {v(H+2,2)}, {vHPr} offset0:128 offset1:130")
A(f"ds_read_b32 {v(H+4)}, {vHPr} offset:1024"); A(f"ds_read_b32 {v(H+5)}, {vHPr} offset:1032")
A(f"ds_read_b64 {v(TM,2)}, {v(E+1)} offset:{L_STAT+32}")
zero(D0)
A("s_waitcnt lgkmcnt(0)")
A(f"v_add_f32 {v(H)}, {v(H)}, {v(H+2)}"); A(f"v_add_f32 {v(H+1)}, {v(H+1)}, {v(H+3)}")
A(f"v_add_f32 {v(H)}, {v(H)}, {v(H+4)}"); A(f"v_add_f32 {v(H+1)}, {v(H+1)}, {v(H+5)}")
A(f"v_fma_f32 {v(H)}, -{S_}, {v(H+1)}, {v(H)}")
A(f"v_mul_f32 {v(H)}, {v(H)}, {Q_}")
rbf(v(H), v(H))
A(f"v_add_f32 {v(H)}, {v(H)}, {vB1}")
rbf(v(H), v(H))
A(f"v_mul_f32 {TT}, {v(H)}, {v(H)}")
A(f"v_fmac_f32 {v(E)}, {f32(c0*0.044715)}, {TT}")
A(f"v_mul_f32 {TT}, {v(E)}, {v(H)}")
A(f"v_exp_f32 {TT}, {TT}")
A(f"v_add_f32 {TT}, 1.0, {TT}")
A(f"v_rcp_f32 {TT}, {TT}")
A(f"v_mul_f32 {TT}, {TT}, {v(H)}")
A(f"v_cvt_pk_bf16_f32 {TT}, {TT}, 0")
A(f"ds_write2_b32 {vPTw}, {TT}, {TT} offset1:5")
for i in range(4): A(f"ds_read_b128 {v(AO+4*i,4)}, {vPTr} offset:{128*i}")
stamp()
tile_out(aW2, aW2t, vMst)
A("L_m4:")
stamp()
nst[0] = kr
A("L_next:")
A(f"s_cmp_lg_u32 {sL}, 0")
A("s_cbranch_scc1 L_fin")
if ST:
    A("s_waitcnt lgkmcnt(0)")
    for k in range(14): A(f"v_writelane_b32 {v(SV)}, s{72+2*k}, {1+k}")
    for k in range(14): A(f"s_mov_b64 s[{72+2*k}:{73+2*k}], 0")
A(f"s_mov_b32 {sL}, 1")
if args.dirty:
    A(f"s_cmp_ge_u32 {sJ}, 16"); A("s_cbranch_scc1 L_dd")
    A(f"s_lshl_b32 {t0}, s2, 2"); A(f"s_add_u32 {t0}, {t0}, {sW}"); A(f"s_lshl_b32 {t0}, {t0}, 14"); A(f"s_add_u32 {t0}, {t0}, 0x2000000")
    for i in range(args.dirty):
        A(f"buffer_store_dwordx4 {v(EM,4)}, {vL16}, {srd(rWS)}, {t0} offen"); A(f"s_add_u32 {t0}, {t0}, 1024")
    A("L_dd:")
A(f"s_add_u32 {sXoff}, {sGp}, {Z2_O}")
for r in (vSTst, vSTg, vSTm): A(f"v_add_u32 {r}, {ST1_O-ST_O}, {r}")
A("s_branch L_layer")
A("L_out:")
A(f"buffer_store_dword {TT}, {vZo}, {srd(rOUT)}, 0 offen")
A(f"s_mov_b32 {t0}, {EP_O}")
A("s_mov_b64 exec, 1")
A(f"buffer_store_dword {FN}, {vL16}, {srd(rWS)}, {t0} offen")
if ST: A(f"s_memrealtime s[{72+2*13}:{73+2*13}]")
A("L_fin:")
if args.wb:
    A(f"s_cmp_lg_u32 {sJ}, 18"); A("s_cbranch_scc1 L_wb")
    A(f"s_cmp_lg_u32 {sW}, 0"); A("s_cbranch_scc1 L_wb")
    A("buffer_wbl2 sc1")
    A("L_wb:")
if args.enc:
    j0, j1 = [int(x) for x in args.encj.split(',')]
    A("s_memrealtime s[66:67]")
    A("s_waitcnt lgkmcnt(0)")
    if args.enc <= 14: A(f"v_readlane_b32 {t0}, {v(SV)}, {args.enc}"); A("s_nop 3")
    else: A(f"s_mov_b32 {t0}, s{72+2*(args.enc-15)}")
    A(f"s_cmp_eq_u32 {t0}, 0"); A("s_cbranch_scc1 L_enc2")
    A(f"s_cmp_lt_u32 {sJ}, {j0}"); A("s_cbranch_scc1 L_enc2")
    A(f"s_cmp_ge_u32 {sJ}, {j1}"); A("s_cbranch_scc1 L_enc2")
    A(f"s_sub_u32 {t0}, {t0}, s100"); A(f"s_min_u32 {t0}, {t0}, 10000"); A(f"s_lshl_b32 {t0}, {t0}, 3"); A(f"s_add_u32 {t0}, {t0}, s66")
    A("L_enc:")
    A("s_sleep 8")
    A("s_memrealtime s[64:65]"); A("s_waitcnt lgkmcnt(0)")
    A(f"s_sub_u32 {t1}, s64, {t0}"); A(f"s_cmp_lt_i32 {t1}, 0"); A("s_cbranch_scc1 L_enc")
    A("L_enc2:")
if ST:
    A("s_mov_b64 exec, -1")
    A("s_waitcnt lgkmcnt(0)")
    A(f"v_writelane_b32 {v(SV)}, s100, 0")
    for k in range(14): A(f"v_writelane_b32 {v(SV)}, s{72+2*k}, {15+k}")
    A(f"s_lshl_b32 {t0}, s2, 2"); A(f"s_add_u32 {t0}, {t0}, {sW}"); A(f"s_lshl_b32 {t0}, {t0}, 8"); A(f"s_add_u32 {t0}, {t0}, {STAMP_O}")
    A(f"v_mov_b32 {v(SV+1)}, 0")
    A(f"v_lshlrev_b32 {v(SV+2)}, 3, v0")
    A("s_mov_b32 exec_hi, 0")
    A(f"buffer_store_dwordx2 {v(SV,2)}, {v(SV+2)}, {srd(rWS)}, {t0} offen")
A("L_end:")
A("s_endpgm")
if args.near:
    A("L_probe:")
    A(f"s_cmp_lt_u32 {sJ}, 20"); A("s_cbranch_scc1 L_next")
    A(f"s_cmp_lg_u32 {sL}, 0"); A("s_cbranch_scc1 L_next")
    A(f"s_sub_u32 {t0}, {sJ}, 20"); A(f"s_lshl_b32 {t0}, {t0}, 18"); A(f"s_lshl_b32 {t1}, {sX}, 10"); A(f"s_add_u32 {t0}, {t0}, {t1}"); A(f"s_add_u32 {t0}, {t0}, {XP_O + 3*65536}")
    A(f"s_add_u32 s44, s{rWS}, {t0}"); A(f"s_addc_u32 s45, s{rWS+1}, 0")
    A(f"s_mov_b32 {t2}, -1"); A(f"s_mov_b32 {t3}, -1"); A(f"s_mov_b32 {t4}, 3")
    A("L_pr1:")
    A("s_memtime s[46:47]"); A("s_waitcnt lgkmcnt(0)")
    A(f"s_load_dword {t5}, s[44:45], 0 glc"); A("s_waitcnt lgkmcnt(0)")
    A("s_memtime s[48:49]"); A("s_waitcnt lgkmcnt(0)")
    A(f"s_load_dword {t5}, s[44:45], 0x2000 glc"); A("s_waitcnt lgkmcnt(0)")
    A("s_memtime s[50:51]"); A("s_waitcnt lgkmcnt(0)")
    A(f"s_sub_u32 {t0}, s48, s46"); A(f"s_sub_u32 {t1}, s50, s48")
    A(f"s_min_u32 {t2}, {t2}, {t0}"); A(f"s_min_u32 {t3}, {t3}, {t1}")
    A(f"s_sub_u32 {t4}, {t4}, 1"); A(f"s_cmp_lg_u32 {t4}, 0"); A("s_cbranch_scc1 L_pr1")
    A(f"s_cmp_lt_u32 {t3}, {t2}"); A(f"s_cselect_b32 {t0}, 0x2000, 0")
    A(f"v_mov_b32 {TT}, 0"); A(f"v_mov_b32 {LS}, {t0}")
    A(f"ds_write_b32 {TT}, {LS} offset:{L_NEAR}")
    A("s_branch L_next")
A("L_af2:")
A(f"s_cmp_eq_u32 {sMode}, {FB_O}")
A("s_cbranch_scc1 L_g2")
A(f"s_add_u32 {sMode}, {sMode}, 1")
A(f"s_lshl_b32 {t2}, {sX}, 10"); A(f"s_add_u32 {t2}, {t2}, {FL_O}")
A(f"s_lshl_b32 {t4}, {sL}, 2"); A(f"s_add_u32 {t1}, {t4}, {t2}")
A(f"s_cmp_lt_u32 {sMode}, {1 if args.forcefb else 40}")
A("s_cbranch_scc1 L_af5")
A("s_mov_b64 exec, 1")
A(f"buffer_store_dword {FN}, {vL16}, {srd(rWS)}, {t1} offen sc1")
A("s_mov_b32 exec_lo, -1")
A(f"buffer_load_dwordx4 {v(FG,4)}, {vL16}, {srd(rWS)}, {t2} offen sc1")
A("s_mov_b32 exec_hi, -1")
A("s_waitcnt vmcnt(0)")
flags_diff()
A(f"v_and_b32 {TT}, 0x0fffffff, {CK}")
A(f"v_cmp_ne_u32 vcc, 0, {TT}")
A("s_cmp_lg_u32 vcc_lo, 0")
A("s_cbranch_scc1 L_af5")
A(f"v_cmp_ne_u32 vcc, 0, {CK}")
A("s_cmp_lg_u32 vcc_lo, 0")
if args.forcefb: A("s_cmp_eq_u32 0, 0")
A("s_cbranch_scc1 L_spread")
A("L_af5:")
A(f"s_sub_u32 {sTO}, {sTO}, 1")
A("s_cbranch_scc0 L_g4")
A(f"s_mov_b32 {sTO}, 0")
A(f"s_mov_b32 {sMode}, 0")
A("s_branch L_g2")
A("L_spread:")
A(f"s_mov_b32 {sMode}, {FB_O}")
A(f"s_add_u32 {sGp}, {sGf}, {FB_O}")
empty_share(sGp, ' sc1')
A("s_mov_b32 exec_hi, 0")
A(qp_store.format(so=sGp, fl=' sc1'))
A("s_waitcnt vmcnt(0)")
A("s_mov_b64 exec, 1")
A(f"buffer_store_dword {FN}, {vL16}, {srd(rWS)}, {t1} offen offset:512 sc1")
A("s_mov_b32 exec_lo, -1")
A("L_sp1:")
A("s_mov_b32 exec_hi, 0")
A(f"buffer_load_dwordx4 {v(FG,4)}, {vL16}, {srd(rWS)}, {t2} offen offset:512 sc1")
A("s_mov_b32 exec_hi, -1")
A("s_waitcnt vmcnt(0)")
flags_diff()
A(f"v_and_b32 {CK}, 0x0fffffff, {CK}")
A(f"v_cmp_ne_u32 vcc, 0, {CK}")
A("s_cmp_eq_u32 vcc_lo, 0")
A("s_cbranch_scc1 L_g4")
A("s_sleep 4")
A(timeout("L_sp1", "L_g4"))
for t in tail: A(t)
A.raw('L_codeend:')
A.raw('.section .rodata,"a"')
A.raw(".p2align 6")
A.raw(f".amdhsa_kernel {NAME}_kernel")
A.raw(f"  .amdhsa_next_free_vgpr {ACC+NACC}")
A.raw("  .amdhsa_next_free_sgpr 102")
A.raw(f"  .amdhsa_accum_offset {ACC}")
A.raw("  .amdhsa_group_segment_fixed_size 0")
A.raw("  .amdhsa_kernarg_size 104")
A.raw("  .amdhsa_user_sgpr_count 2")
A.raw("  .amdhsa_user_sgpr_kernarg_segment_ptr 1")
A.raw("  .amdhsa_system_sgpr_workgroup_id_x 1")
A.raw(".end_amdhsa_kernel")
txt = A.text()
if args.cyc: txt = txt.replace('s_memrealtime', 's_memtime')
sys.stdout.write(txt)
```

```python
import sys, argparse, struct
sys.path.insert(0, 'dev')
from asmlib import Asm
NAME = "interleave_layers__sliding_block_cached__dense_activation_gelu__decode"
ap = argparse.ArgumentParser()
ap.add_argument('--stamps', action='store_true')
ap.add_argument('--pro', action='store_true')
ap.add_argument('--cyc', action='store_true')
ap.add_argument('--xt', type=int, default=0)
ap.add_argument('--xd', type=int, default=11)
ap.add_argument('--enc', type=int, default=0)
ap.add_argument('--encj', default='0,32')
ap.add_argument('--only', default='')
ap.add_argument('--pQ', type=int, default=4)
ap.add_argument('--code', type=int, default=1)
ap.add_argument('--early', default='0')
ap.add_argument('--mid', default='')
ap.add_argument('--w1dma', type=int, default=0)
ap.add_argument('--near', type=int, default=1)
ap.add_argument('--p2', default='sy')
ap.add_argument('--wb', type=int, default=0)
ap.add_argument('--dirty', type=int, default=0)
ap.add_argument('--vw', type=int, default=1)
ap.add_argument('--di', type=int, default=1)
ap.add_argument('--dz', type=int, default=1)
ap.add_argument('--dxx', type=int, default=1)
ap.add_argument('--nt', default='k,v')
ap.add_argument('--forcefb', action='store_true')
args = ap.parse_args()
def ntf(c): return ' nt' if c in args.nt.split(',') else ''
NT = ntf('s'); NTK = ntf('k'); NTV = ntf('v'); NTQ = ntf('q'); NTO = ntf('o'); NTM = ntf('m'); NT2 = ntf('2')
ST = args.stamps

def f32(x): return '0x%08x' % struct.unpack('<I', struct.pack('<f', x))[0]

CLR = 928
OP_O = 0
Y_O = OP_O + 65536
ST_O = Y_O + 41472
ST1_O = ST_O + 2048
Z1_O = ST1_O + 2048
Z2_O = Z1_O + 2304
Z3_O = Z2_O + 2304
assert Z3_O + 2304 <= 128 * CLR and (128 * CLR) % 128 == 0
QP_O = 128 * CLR
FF_O = QP_O + 65536
GB = FF_O + 1024
FB_O = 8 * GB
XP_O = 6 << 20
assert XP_O >= 16 * GB
XPS = 16384
FL_O = XP_O + 12 * 262144
EP_O = FL_O + 8 * 1024
STAMP_O = 0x8000000
L_NEAR = 8176
L_X = 640
L_QT, L_STAT, L_OT, L_PT, L_HP, L_K, L_WQ, L_SIZE = 0, 512, 1024, 2560, 8192, 16384, 49152, 67584

rK, rV, rWQ, rWO, rW1, rW2, rWS, rX, rOUT, rT1, rT2 = 4, 8, 12, 16, 20, 24, 28, 32, 36, 44, 48
sTask, kv0, kv1, sFlag = 's40', 's41', 's42', 's43'
def srd(n): return f"s[{n}:{n+3}]"
sW, sX, sJ, sGf, sGp, sXoff, sTO, sMode, sL, sWo = [f"s{i}" for i in range(52, 62)]
t0, t1, t2, t3, t4, t5 = [f"s{i}" for i in range(62, 68)]
mLO8 = "s[68:69]"; mROW = "s[70:71]"
MXA = "0x00330033"
sRole = "s3"
(vL4, vL16, vIdxD, vIdxP, vIdxS, vXAq, vXAm, vQPst, vQPg, vL128, vQTw, vQTr, vPTw, vPTr, vSTst, vOPst, vSTg, vOPg, vOTw, vOTr,
 vYst, vMst, vHPw, vSTm, vRg, vSTATr, vXPst, vXPg, vZst, vXres, vB2, vB1, vCq, vZo, vXS1, vXS2, vWrow, vHPr, vOnes) = [f"v{i}" for i in range(1, 40)]
XA, D0, D1, DP, AO, SG, YG, XG, XS, FG, TM, EM, KA, SV, OG, QG = 40, 64, 68, 72, 76, 104, 120, 132, 136, 148, 152, 176, 180, 184, 188, 196
vQPg2 = 'v92'
ACC = 212
aWQ, aK, aV, aWO, aW1, aW2, aWOt, NACC = 0, 24, 56, 88, 120, 168, 200, 232
aW2t = aW1
def v(n, k=1): return f"v{n}" if k == 1 else f"v[{n}:{n+k-1}]"
def a(n, k=1): return f"a{n}" if k == 1 else f"a[{n}:{n+k-1}]"
CK = v(TM + 23); FN = v(TM + 22); vTag = v(TM + 21); DUM = v(TM + 20)
sEp, sXPo = kv0, kv1

A = Asm()
tail = []
nst = [0]
def pstamp(k):
    if args.pro: A(f"s_memrealtime s[{72+2*k}:{73+2*k}]")
def stamp():
    if ST and not args.pro:
        k = nst[0]; nst[0] += 1
        assert k < 13
        if ONLY is None or k in ONLY: A(f"s_memrealtime s[{72+2*k}:{73+2*k}]")
ONLY = set(int(x) for x in args.only.split(',')) if args.only else None
def lg(n): return 0 if (ST and ONLY is None) else n
def exec_xa(): return [f"s_mov_b32 exec_lo, {MXA}", f"s_mov_b32 exec_hi, {MXA}"]

def check_text(regs):
    regs = list(regs); o = []
    if len(regs) == 1: cur = regs[0]
    else:
        take = regs[:3]; regs = regs[3:]
        o.append(f"v_max3_u32 {CK}, {take[0]}, {take[1]}, {take[2]}" if len(take) == 3 else f"v_max_u32 {CK}, {take[0]}, {take[1]}")
        while regs:
            take = regs[:2]; regs = regs[2:]
            o.append(f"v_max3_u32 {CK}, {CK}, {take[0]}, {take[1]}" if len(take) == 2 else f"v_max_u32 {CK}, {CK}, {take[0]}")
        cur = CK
    o.append(f"v_cmp_eq_u32 vcc, -1, {cur}")
    return o
def nvm(loads): return sum(1 for l in loads if l.startswith('buffer_'))
def timeout(again, ok): return f"s_sub_u32 {sTO}, {sTO}, 1\ns_cbranch_scc0 {again}\ns_mov_b32 {sTO}, 0\ns_waitcnt vmcnt(0) lgkmcnt(0)\ns_branch {ok}"

def poll(loads, regs, primed=False, extra_wait="", chk=None, site=''):
    lp = A.newlabel('L_poll'); to = A.newlabel('L_to'); ok = A.newlabel('L_ok'); en = A.newlabel('L_in')
    if primed:
        A(f"s_waitcnt vmcnt(0){extra_wait}")
        for l in (chk or check_text(regs)): A(l)
        A(f"s_cbranch_vccnz {lp}")
        A(f"{ok}:")
        tail.append(f"{lp}:\n" + "\n".join(loads) + f"\ns_sub_u32 {sTO}, {sTO}, 1\ns_cbranch_scc1 {to}\ns_waitcnt vmcnt(0){extra_wait}\n" +
                    "\n".join(chk or check_text(regs)) + f"\ns_cbranch_vccnz {lp}\ns_branch {ok}\n{to}:\ns_mov_b32 {sTO}, 0\ns_waitcnt vmcnt(0) lgkmcnt(0)\ns_branch {ok}")
        return
    two = site and site in args.p2
    if two:
        for l in loads: A(l)
        A("s_sleep 2")
    A(f"{lp}:")
    for l in loads: A(l)
    A(f"s_sub_u32 {sTO}, {sTO}, 1")
    A(f"s_cbranch_scc1 {to}")
    A(f"s_waitcnt vmcnt({nvm(loads) if two else 0}){extra_wait}")
    for l in (chk or check_text(regs)): A(l)
    A(f"s_cbranch_vccnz {lp}")
    A(f"{ok}:")
    tail.append(f"{to}:\ns_mov_b32 {sTO}, 0\ns_waitcnt vmcnt(0) lgkmcnt(0)\ns_branch {ok}")

def sm(d, av, br, idx): A(f"v_smfmac_f32_16x16x64_bf16 {v(d,4)}, {v(av,4)}, {a(br,8)}, {idx}")
def xa_loads(rr, voff, so, n, fl, short_last=False):
    o = exec_xa()
    for i in range(n):
        if short_last and i == n - 1: o.append("s_mov_b64 exec, 0x33")
        o.append(f"buffer_load_dwordx4 {v(XA+4*i,4)}, {voff}, {srd(rr)}, {so} offen offset:{64*i}{fl}")
    return o + ["s_mov_b64 exec, -1"]
def poll_proj(voff, so, n, wbase, short_last=False):
    loads = xa_loads(rWS, voff, so, n, ' sc1', short_last)
    lds = [l for l in loads if l.startswith('buffer_')]
    lp = A.newlabel('L_poll'); rt = A.newlabel('L_retry'); ok = A.newlabel('L_ok'); gen = A.newlabel('L_nan')
    for l in loads: A(l)
    A(f"{lp}:")
    A("s_waitcnt vmcnt(0)")
    for i in range(n): sm(D0, XA+4*i, wbase+8*i, vIdxD)
    for l in loads: A(l)
    A(f"v_cmp_u_f32 vcc, {v(D0)}, {v(D0+1)}")
    A(f"s_cbranch_vccnz {rt}")
    A(f"{ok}:")
    z = "\n".join(f"v_mov_b32 {v(D0+i)}, 0" for i in range(4))
    mm = "\n".join(f"v_smfmac_f32_16x16x64_bf16 {v(D0,4)}, {v(XA+4*i,4)}, {a(wbase+8*i,8)}, {vIdxD}" for i in range(n))
    tail.append(f"{rt}:\n{z}\ns_sub_u32 {sTO}, {sTO}, 1\ns_cbranch_scc1 {gen}\ns_and_b32 {t5}, {sTO}, 15\ns_cbranch_scc1 {lp}\n" +
                "\n".join(check_text([v(XA+i) for i in range(4*n)])) + f"\ns_cbranch_vccnz {lp}\n{gen}:\ns_max_i32 {sTO}, {sTO}, 0\n{mm}\ns_nop 7\ns_branch {ok}")

def pub(*fmts):
    for f in fmts: A(f.format(so=sGf, fl=''))
    sl = A.newlabel('L_slow'); bk = A.newlabel('L_back')
    A(f"s_cmp_lg_u32 {sMode}, 0")
    A(f"s_cbranch_scc1 {sl}")
    A(f"{bk}:")
    tail.append(f"{sl}:\n" + "\n".join(f.format(so=sGp, fl=' sc1') for f in fmts) + f"\ns_nop 1\ns_branch {bk}")

def rbf(dst, src):
    A(f"v_cvt_pk_bf16_f32 {dst}, {src}, {src}")
    A(f"v_and_b32 {dst}, 0xffff0000, {dst}")
def treduce(r):
    A(f"v_permlane32_swap_b32 {v(r)}, {v(r+2)}")
    A(f"v_permlane32_swap_b32 {v(r+1)}, {v(r+3)}")
    A(f"v_add_f32 {v(r)}, {v(r)}, {v(r+2)}")
    A(f"v_add_f32 {v(r+1)}, {v(r+1)}, {v(r+3)}")
    A(f"v_permlane16_swap_b32 {v(r)}, {v(r+1)}")
    A(f"v_add_f32 {v(r)}, {v(r)}, {v(r+1)}")
    A(f"v_add_f32_dpp {v(r)}, {v(r)}, {v(r)} row_ror:8 row_mask:0xf bank_mask:0xf")
S_, Q_ = v(TM), v(TM+1)
def stats(slot_off, write=True, early=None, late=None):
    S, Q = S_, Q_
    A(f"v_mov_b32 {S}, 0"); A(f"v_mov_b32 {Q}, 0")
    for i in range(9):
        A(f"v_dot2c_f32_bf16 {S}, {v(XS+i)}, {vOnes}")
        A(f"v_dot2c_f32_bf16 {Q}, {v(XS+i)}, {v(XS+i)}")
        if i == 2 and early: early()
    A(f"v_lshrrev_b32 {v(TM+2)}, 5, v0"); A(f"v_lshlrev_b32 {v(TM+2)}, 3, {v(TM+2)}")
    A(f"v_permlane16_swap_b32 {S}, {Q}")
    A(f"v_add_f32 {S}, {S}, {Q}")
    for k in (8, 4, 2, 1):
        A(f"v_add_f32_dpp {S}, {S}, {S} row_ror:{k} row_mask:0xf bank_mask:0xf")
    A(f"v_mul_f32 {Q}, {f32(1/576)}, {S}")
    A(f"v_mul_f32 {S}, {f32(1/576)}, {S}")
    if late: late()
    A(f"v_permlane16_swap_b32 {S}, {Q}")
    A(f"v_fma_f32 {Q}, -{S}, {S}, {Q}")
    A(f"v_max_f32 {Q}, 0, {Q}")
    A(f"v_cvt_pk_bf16_f32 {Q}, {S}, {Q}")
    A(f"v_lshlrev_b32 {S}, 16, {Q}")
    A(f"v_and_b32 {Q}, 0xffff0000, {Q}")
    A(f"v_add_f32 {Q}, {f32(1e-5)}, {Q}")
    rbf(Q, Q)
    A(f"v_sqrt_f32 {Q}, {Q}")
    rbf(Q, Q)
    A(f"v_rcp_f32 {Q}, {Q}")
    if write: A(f"ds_write_b64 {v(TM+2)}, {v(TM,2)} offset:{L_STAT+slot_off}")
def zero(r, n=4):
    for i in range(n): A(f"v_mov_b32 {v(r+i)}, 0")
def xs_loads(rr, so, fl):
    return [f"buffer_load_dwordx4 {v(XS,4)}, {vXS1}, {srd(rr)}, {so} offen{fl}",
            f"buffer_load_dwordx4 {v(XS+4,4)}, {vXS1}, {srd(rr)}, {so} offen offset:512{fl}",
            f"buffer_load_dword {v(XS+8)}, {vXS2}, {srd(rr)}, {so} offen offset:1024{fl}"]

A.raw(f"; @launch grid=(256,1,1) block=(256,1,1) lds={L_SIZE}")
A.raw('.amdgcn_target "amdgcn-amd-amdhsa--gfx950"')
A.raw(".text")
A.raw(f".globl {NAME}_kernel")
A.raw(".p2align 8")
A.raw(f".type {NAME}_kernel,@function")
A.raw(f"{NAME}_kernel:")
if ST:
    A("s_memrealtime s[100:101]")
    for k in range(14): A(f"s_mov_b64 s[{72+2*k}:{73+2*k}], 0")
A("s_cmp_ge_u32 s2, 256")
A("s_cbranch_scc1 L_end")
for r, off in ((rWS, 96), (rX, 0), (rWQ, 24), (rK, 8), (rV, 16), (rWO, 32)):
    A(f"s_load_dwordx2 s[{r}:{r+1}], s[0:1], {off}")
A(f"v_lshrrev_b32 {v(TM)}, 6, v0")
A(f"v_and_b32 v0, 63, v0")
A(f"v_readfirstlane_b32 {sW}, {v(TM)}")
for r, n in ((rX, 2304), (rWQ, 4718592), (rK, 33554432), (rV, 33554432), (rWS, 268435456), (rWO, 4718592)):
    A(f"s_mov_b32 s{r+2}, {n}"); A(f"s_mov_b32 s{r+3}, 0x20000")
A(f"s_and_b32 {sX}, s2, 7")
A(f"s_lshr_b32 {sJ}, s2, 3")
A("s_mov_b32 s68, 0x00ff00ff"); A("s_mov_b32 s69, 0x00ff00ff")
G, C, B2 = v(TM+3), v(TM+4), v(TM+5)
A(f"v_lshrrev_b32 {G}, 4, v0")
A(f"v_and_b32 {C}, 15, v0")
A(f"v_lshlrev_b32 {vL16}, 4, v0")
A(f"v_lshlrev_b32 {vL128}, 7, v0")
for i in range(4): A(f"v_mov_b32 {v(EM+i)}, -1")
A(f"s_lshr_b32 {t0}, {sJ}, 4"); A(f"s_lshl_b32 {t3}, {sX}, 1"); A(f"s_add_u32 {t0}, {t0}, {t3}")
A(f"s_bfe_u32 {t1}, {sJ}, 0x10003")
A(f"s_and_b32 {t2}, {sJ}, 7")
A(f"s_mul_i32 {sGf}, {sX}, {GB}")
A(f"v_bfe_u32 {B2}, v0, 2, 1")
A(f"v_mul_u32_u24 {vXAm}, 1152, {B2}")
A(f"v_lshl_add_u32 {vXAm}, {G}, 4, {vXAm}")
A(f"s_mul_i32 {t4}, {t2}, 144")
A(f"v_add_u32 {vXAq}, {t4}, {vXAm}")
for i in range(12): A(f"v_mov_b32 {v(XA+i)}, 0x3f803f80")
A(f"v_lshlrev_b32 {v(TM+6)}, 13, {G}")
A(f"v_lshl_add_u32 {v(TM+6)}, {C}, 4, {v(TM+6)}")
A(f"s_mul_i32 {t3}, {t2}, 18"); A(f"s_add_u32 {t3}, {t3}, {sW}"); A(f"s_lshl_b32 {t3}, {t3}, 15")
A(f"s_lshl_b32 {t4}, {t0}, 9"); A(f"s_add_u32 {t3}, {t3}, {t4}"); A(f"s_lshl_b32 {t4}, {t1}, 8"); A(f"s_add_u32 {t3}, {t3}, {t4}")
A(f"s_lshl_b32 {t4}, {sW}, 10"); A(f"s_add_u32 m0, {t4}, {L_WQ}")
A(f"s_lshl_b32 {kv0}, {t1}, 24"); A(f"s_lshl_b32 {t4}, {t0}, 20"); A(f"s_add_u32 {kv0}, {kv0}, {t4}")
A(f"s_lshl_b32 {t4}, {t2}, 15"); A(f"s_add_u32 {kv0}, {kv0}, {t4}")
A(f"s_lshl_b32 {t4}, {sW}, 13"); A(f"s_add_u32 {kv0}, {kv0}, {t4}")
A(f"s_add_u32 {kv0}, {kv0}, {3072*256}"); A(f"s_add_u32 {kv1}, {kv0}, 4096")
A(f"v_xor_b32 {v(TM+7)}, {C}, {G}")
A(f"v_lshlrev_b32 {v(TM+7)}, 4, {v(TM+7)}")
A(f"v_lshl_add_u32 {v(KA)}, {G}, 8, {v(TM+7)}")
for i in range(1, 4): A(f"v_xor_b32 {v(KA+i)}, {64*i}, {v(KA)}")
A(f"s_lshl_b32 {sL}, {sJ}, 2"); A(f"s_add_u32 {sL}, {sL}, {sW}")
A(f"s_lshl_b32 {t4}, {sL}, 9"); A(f"s_add_u32 {t4}, {t4}, {QP_O}")
A(f"v_add_u32 {vQPst}, {t4}, {vL16}")
A(f"s_mov_b32 {t5}, {EP_O}")
A("s_waitcnt lgkmcnt(0)")
pstamp(0)
A("s_mov_b64 exec, 1")
A(f"buffer_load_dword {FN}, {vL16}, {srd(rWS)}, {t5} offen{NT}")
A("s_mov_b64 exec, -1")
def empty_share(base, fl):
    A(f"s_mul_i32 {t5}, {sL}, {CLR}"); A(f"s_add_u32 {t5}, {t5}, {base}")
    A(f"s_mov_b32 exec_hi, {(1 << (CLR//16-32)) - 1}")
    A(f"buffer_store_dwordx4 {v(EM,4)}, {vL16}, {srd(rWS)}, {t5} offen{fl}")
    A("s_mov_b32 exec_hi, -1")
A(f"s_cmp_lg_u32 {sW}, 3")
A("s_cbranch_scc1 L_pro2")
A(f"v_lshrrev_b32 {v(TM+8)}, 5, v0"); A(f"v_and_b32 {v(TM+9)}, 31, v0")
A(f"v_mul_u32_u24 {vXS1}, 1152, {v(TM+8)}"); A(f"v_lshl_add_u32 {vXS2}, {v(TM+9)}, 2, {vXS1}"); A(f"v_lshl_add_u32 {v(TM+10)}, {v(TM+9)}, 3, {vXS1}"); A(f"v_lshl_add_u32 {vXS1}, {v(TM+9)}, 4, {vXS1}")
for l in xs_loads(rX, 0, NT): A(l)
A(f"s_mul_i32 {t5}, {t2}, 144")
A(f"buffer_load_dwordx2 {v(XG,2)}, {v(TM+10)}, {srd(rX)}, {t5} offen{NT}")
A("L_pro2:")
for n in range(5):
    if n == 4:
        A(f"s_cmp_ge_u32 {sW}, 2"); A("s_cbranch_scc1 L_pro1")
    A(f"buffer_load_dwordx4 {v(TM+6)}, {srd(rWQ)}, {t3} offen{NTQ} lds")
    if n < 4: A(f"s_add_u32 {t3}, {t3}, {16*8192}"); A("s_add_u32 m0, m0, 4096")
A("L_pro1:")
empty_share(sGf, '')
A(f"s_lshl_b32 {t4}, {sW}, 13"); A(f"s_add_u32 m0, {t4}, {L_K}")
for i in range(8):
    if i == 4: A(f"s_add_u32 m0, m0, 4096")
    A(f"buffer_load_dwordx4 {v(KA+i%4)}, {srd(rK)}, {kv0 if i < 4 else kv1} offen offset:{1024*(i%4)}{NTK} lds")

def constants():
    A(f"v_mul_u32_u24 {vWrow}, 1152, {G}")
    A(f"v_lshl_add_u32 {vWrow}, {C}, 4, {vWrow}")
    A(f"s_cmp_lt_u32 {sJ}, 18"); A(f"s_cselect_b32 {sRole}, 1, 0")
    A(f"s_cmp_ge_u32 {sJ}, 20"); A(f"s_cselect_b32 {t4}, 2, 0"); A(f"s_cmp_lt_u32 {sW}, 3"); A(f"s_cselect_b32 {t4}, {t4}, 0"); A(f"s_or_b32 {sRole}, {sRole}, {t4}")
    A(f"s_sub_u32 {sTask}, {sJ}, 20"); A(f"s_mul_i32 {sTask}, {sTask}, 3"); A(f"s_add_u32 {sTask}, {sTask}, {sW}"); A(f"s_min_u32 {sTask}, {sTask}, 35")
    A(f"s_lshl_b32 {t3}, {sX}, 4"); A(f"s_and_b32 {t4}, {sJ}, 15"); A(f"s_add_u32 {sWo}, {t3}, {t4}"); A(f"s_mul_i32 {sWo}, {sWo}, {32*1152}")
    A(f"s_lshl_b32 {t4}, {sW}, 8"); A(f"s_add_u32 {sWo}, {sWo}, {t4}")
    for r, n in ((rW1, 5308416), (rW2, 5308416), (rOUT, 2304), (rT1, 9216), (rT2, 1152)):
        A(f"s_mov_b32 s{r+2}, {n}"); A(f"s_mov_b32 s{r+3}, 0x20000")
    A("s_mov_b32 s70, 0xffff0000"); A("s_mov_b32 s71, 0xffff0000")
    A(f"v_lshlrev_b32 {vL4}, 2, v0")
    for i in range(12, 24): A(f"v_mov_b32 {v(XA+i)}, 0x3f803f80")
    A(f"s_lshl_b32 {t4}, {sW}, 13"); A(f"s_add_u32 {t4}, {t4}, {L_K}")
    A(f"v_lshl_add_u32 {v(KA)}, {C}, 8, {v(TM+7)}"); A(f"v_add_u32 {v(KA)}, {t4}, {v(KA)}")
    for i in range(1, 4): A(f"v_xor_b32 {v(KA+i)}, {64*i}, {v(KA)}")
    T_ = [v(TM+8+i) for i in range(10)]
    A(f"v_and_b32 {T_[0]}, 1, v0")
    A(f"v_mul_u32_u24 {vIdxP}, 0xaaaa, {T_[0]}"); A(f"v_add_u32 {vIdxP}, 0x4444, {vIdxP}")
    A(f"v_and_b32 {T_[1]}, 3, v0")
    A(f"v_mul_u32_u24 {vIdxS}, 0x5555, {T_[1]}")
    A(f"v_bfe_u32 {T_[2]}, v0, 4, 1")
    A(f"v_bfe_u32 {T_[3]}, v0, 2, 2")
    A(f"v_bfe_u32 {T_[4]}, v0, 3, 1")
    A(f"v_lshrrev_b32 {T_[5]}, 5, v0")
    A(f"v_and_b32 {T_[8]}, 7, v0")
    A(f"v_and_b32 {T_[9]}, 31, v0")
    A(f"s_lshr_b32 {t3}, {sJ}, 4")
    A(f"s_lshr_b32 {t5}, {sJ}, 3")
    A(f"s_lshl_b32 {t3}, {t3}, 1"); A(f"s_lshr_b32 {t4}, {sW}, 1"); A(f"s_add_u32 {t3}, {t3}, {t4}"); A(f"s_lshl_b32 {t3}, {t3}, 14")
    A(f"s_and_b32 {t4}, {sW}, 1"); A(f"s_lshl_b32 {t4}, {t4}, 10"); A(f"s_add_u32 {t3}, {t3}, {t4}")
    A(f"s_lshl_b32 {t4}, {t1}, 8"); A(f"s_add_u32 {t3}, {t3}, {t4}"); A(f"s_add_u32 {t3}, {t3}, {QP_O}")
    A(f"v_lshl_add_u32 {vQPg}, {T_[5]}, 4, {T_[2]}"); A(f"v_lshlrev_b32 {vQPg}, 9, {vQPg}"); A(f"v_lshl_add_u32 {vQPg}, {C}, 4, {vQPg}"); A(f"v_add_u32 {vQPg}, {t3}, {vQPg}")
    A(f"v_add_u32 {vQPg2}, 4096, {vQPg}")
    A(f"s_and_b32 {t3}, {sW}, 1"); A(f"s_lshl_b32 {t3}, {t3}, 8"); A(f"s_lshr_b32 {t4}, {sW}, 1"); A(f"s_lshl_b32 {t4}, {t4}, 7"); A(f"s_add_u32 {t3}, {t3}, {t4}")
    A(f"v_bfe_u32 {T_[6]}, v0, 3, 2"); A(f"v_bfe_u32 {T_[7]}, v0, 1, 2")
    A(f"v_lshlrev_b32 {vQTw}, 5, {T_[6]}"); A(f"v_lshl_add_u32 {vQTw}, {T_[0]}, 4, {vQTw}"); A(f"v_lshl_add_u32 {vQTw}, {T_[7]}, 2, {vQTw}")
    A(f"v_lshl_add_u32 {vQTw}, {T_[5]}, 1, {vQTw}"); A(f"v_add_u32 {vQTw}, {t3}, {vQTw}")
    A(f"v_lshlrev_b32 {vQTr}, 5, {G}"); A(f"v_lshl_add_u32 {vQTr}, {T_[4]}, 7, {vQTr}"); A(f"v_lshl_add_u32 {vQTr}, {T_[0]}, 4, {vQTr}")
    A(f"v_mul_u32_u24 {vOTr}, 640, {T_[4]}"); A(f"v_lshl_add_u32 {vOTr}, {G}, 5, {vOTr}"); A(f"v_lshl_add_u32 {vOTr}, {B2}, 4, {vOTr}")
    A(f"s_mul_i32 {t3}, {sW}, 1280"); A(f"s_add_u32 {t3}, {t3}, {L_PT}")
    A(f"v_add_u32 {vPTr}, {t3}, {vOTr}"); A(f"v_add_u32 {vOTr}, {L_OT}, {vOTr}")
    A(f"v_bfe_u32 {T_[6]}, v0, 1, 4")
    A(f"v_mul_u32_u24 {vPTw}, 640, {T_[5]}"); A(f"v_lshl_add_u32 {vPTw}, {T_[6]}, 5, {vPTw}"); A(f"v_lshl_add_u32 {vPTw}, {T_[0]}, 3, {vPTw}"); A(f"v_add_u32 {vPTw}, {t3}, {vPTw}")
    A(f"v_lshrrev_b32 {vHPr}, 1, v0"); A(f"v_lshlrev_b32 {vHPr}, 4, {vHPr}"); A(f"v_lshl_add_u32 {vHPr}, {T_[0]}, 2, {vHPr}"); A(f"v_add_u32 {vHPr}, {L_HP}, {vHPr}")
    A(f"s_lshl_b32 {t3}, {sW}, 9"); A(f"s_add_u32 {t3}, {t3}, {L_HP}"); A(f"v_add_u32 {vHPw}, {t3}, {vL16}")
    A(f"s_lshl_b32 {t3}, {t5}, 9"); A(f"s_add_u32 {t3}, {t3}, {ST_O}")
    A(f"s_lshl_b32 {t4}, {t2}, 2"); A(f"s_add_u32 {t4}, {t4}, {sW}"); A(f"s_lshl_b32 {t4}, {t4}, 2"); A(f"s_add_u32 {t4}, {t4}, {t3}")
    A(f"v_lshlrev_b32 {vSTst}, 8, {T_[5]}"); A(f"v_lshl_add_u32 {vSTst}, {T_[0]}, 7, {vSTst}"); A(f"v_add_u32 {vSTst}, {t4}, {vSTst}")
    A(f"s_lshl_b32 {t3}, {t1}, 1"); A(f"s_lshr_b32 {t4}, {sW}, 1"); A(f"s_add_u32 {t3}, {t3}, {t4}"); A(f"s_lshl_b32 {t3}, {t3}, 9"); A(f"s_add_u32 {t3}, {t3}, {ST_O}")
    A(f"s_lshr_b32 {t4}, {t2}, 2"); A(f"s_lshl_b32 {t4}, {t4}, 8"); A(f"s_add_u32 {t3}, {t3}, {t4}")
    A(f"v_lshrrev_b32 {T_[7]}, 3, v0")
    A(f"v_lshl_add_u32 {vSTg}, {T_[7]}, 4, {t3}")
    A(f"s_and_b32 {t4}, {sW}, 1"); A(f"s_lshl_b32 {t4}, {t4}, 3"); A(f"v_add_u32 {vSTm}, {t4}, {vSTg}")
    A(f"s_lshr_b32 {t3}, {sJ}, 4"); A(f"s_lshl_b32 {t3}, {t3}, 15"); A(f"s_lshl_b32 {t4}, {t1}, 11"); A(f"s_add_u32 {t3}, {t3}, {t4}")
    A(f"s_lshl_b32 {t4}, {sW}, 9"); A(f"s_add_u32 {t3}, {t3}, {t4}"); A(f"s_lshl_b32 {t4}, {t2}, 6"); A(f"s_add_u32 {t3}, {t3}, {t4}")
    A(f"v_lshlrev_b32 {T_[6]}, 4, {T_[1]}"); A(f"v_lshl_add_u32 {T_[6]}, {T_[2]}, 3, {T_[6]}")
    A(f"v_lshl_add_u32 {vOPst}, {T_[5]}, 2, {T_[3]}"); A(f"v_lshl_add_u32 {vOPst}, {vOPst}, 12, {T_[6]}"); A(f"v_add_u32 {vOPst}, {t3}, {vOPst}")
    A(f"s_and_b32 {t3}, {sJ}, 15"); A(f"s_lshl_b32 {t3}, {t3}, 12"); A(f"s_lshl_b32 {t4}, {sW}, 10"); A(f"s_add_u32 {t3}, {t3}, {t4}"); A(f"v_lshl_add_u32 {vOPg}, v0, 3, {t3}")
    A(f"s_lshr_b32 {t3}, {sW}, 1"); A(f"s_mul_i32 {t3}, {t3}, 640"); A(f"s_and_b32 {t4}, {sW}, 1"); A(f"s_lshl_b32 {t4}, {t4}, 1"); A(f"s_add_u32 {t3}, {t3}, {t4}"); A(f"s_add_u32 {t3}, {t3}, {L_OT}")
    A(f"v_mul_u32_u24 {vOTw}, 20, {T_[4]}"); A(f"v_lshl_add_u32 {vOTw}, {T_[8]}, 6, {vOTw}"); A(f"v_lshl_add_u32 {vOTw}, {T_[5]}, 5, {vOTw}")
    A(f"v_lshl_add_u32 {vOTw}, {T_[2]}, 3, {vOTw}"); A(f"v_add_u32 {vOTw}, {t3}, {vOTw}")
    A(f"s_mul_i32 {t3}, {sW}, {4*1152}"); A(f"s_lshl_b32 {t4}, {sJ}, 6"); A(f"s_add_u32 {t3}, {t3}, {t4}"); A(f"s_add_u32 {t3}, {t3}, {Y_O}")
    A(f"v_mul_u32_u24 {vMst}, 18, {T_[5]}"); A(f"v_add_u32 {vMst}, {vMst}, {T_[3]}"); A(f"v_mul_u32_u24 {vMst}, 1152, {vMst}")
    A(f"v_add3_u32 {vMst}, {vMst}, {T_[6]}, {t3}")
    A(f"v_subrev_u32 {vYst}, 1024, {vMst}")
    A(f"v_mul_u32_u24 {vXS1}, 1152, {T_[5]}"); A(f"v_lshl_add_u32 {vXS2}, {T_[9]}, 2, {vXS1}"); A(f"v_lshl_add_u32 {vXS1}, {T_[9]}, 4, {vXS1}")
    A(f"s_lshl_b32 {t3}, {t1}, 3"); A(f"s_add_u32 {t3}, {t3}, {L_STAT}"); A(f"v_mov_b32 {vSTATr}, {t3}")
    A(f"s_mul_i32 {t4}, {sW}, 384"); A(f"v_add_u32 {vXAm}, {t4}, {vXAm}")
    A(f"s_mul_i32 {t4}, {sX}, 18"); A(f"s_add_u32 {t4}, {t4}, {sJ}"); A(f"s_lshl_b32 {t5}, {t4}, 6")
    A(f"v_lshl_add_u32 {vB1}, {T_[9]}, 1, {t5}")
    A(f"s_mul_i32 {t4}, {sTask}, 1152"); A(f"s_add_u32 {t4}, {t4}, {Y_O}"); A(f"v_lshl_add_u32 {vRg}, v0, 3, {t4}")
    A(f"s_sub_u32 {t4}, {sL}, 80"); A(f"s_and_b32 {t4}, {t4}, 63"); A(f"s_lshl_b32 {t4}, {t4}, 16")
    A(f"s_lshl_b32 {t5}, {sX}, 10"); A(f"s_add_u32 {t5}, {t5}, {t4}"); A(f"v_lshl_add_u32 {vXPg}, v0, 3, {t5}")
    A(f"s_lshl_b32 {t5}, {sX}, 7"); A(f"s_add_u32 {t4}, {t4}, {t5}"); A(f"v_lshl_add_u32 {vXPst}, {T_[8]}, 4, {t4}")
    A(f"v_lshrrev_b32 {T_[7]}, 3, v0"); A(f"v_lshl_add_u32 {vXPst}, {T_[7]}, 10, {vXPst}")
    A(f"v_lshl_add_u32 {T_[7]}, {C}, 1, {T_[5]}")
    A(f"s_lshl_b32 {t4}, {sTask}, 6"); A(f"v_lshl_add_u32 {vZo}, {T_[7]}, 1, {t4}")
    A(f"v_add_u32 {vZst}, {Z1_O}, {vZo}")
    A(f"s_and_b32 {t5}, {sTask}, 7"); A(f"s_cmp_eq_u32 {t5}, {sX}"); A(f"s_cselect_b32 {t5}, 4, 0"); A(f"s_or_b32 {sRole}, {sRole}, {t5}")
    A(f"s_cmp_ge_u32 {sTask}, 18"); A(f"s_cselect_b32 {t5}, 1152, 0")
    A(f"v_subrev_u32 {vB2}, {t5}, {vZo}")

def constants1():
    A(f"v_and_b32 {v(TM+8)}, 1, v0")
    A(f"v_mul_u32_u24 {vIdxD}, 0x5555, {v(TM+8)}"); A(f"v_add_u32 {vIdxD}, 0x8888, {vIdxD}")
    A(f"v_mov_b32 {vOnes}, 0x3f803f80")
    A(f"s_lshl_b32 {t3}, {sW}, 6"); A(f"s_add_u32 {t3}, {t3}, {L_WQ}")
    A(f"v_lshlrev_b32 {vCq}, 10, {G}"); A(f"v_lshl_add_u32 {vCq}, {C}, 2, {vCq}"); A(f"v_add_u32 {vCq}, {t3}, {vCq}")
    for i in range(16, 24): A(f"v_accvgpr_write_b32 {a(aWQ+i)}, 0")
    zero(D0, 8)
    A(f"ds_write_b128 {v(D0)}, {v(EM,4)} offset:{L_STAT+16}")
    A(f"s_cmp_lg_u32 {sW}, 3")
    A("s_cbranch_scc1 L_c1")
    A(f"s_waitcnt vmcnt({4+1+8})")
    stats(0, False)
    for i in range(2):
        lo, hi = v(TM+8), v(TM+9)
        A(f"v_lshlrev_b32 {lo}, 16, {v(XG+i)}"); A(f"v_and_b32 {hi}, 0xffff0000, {v(XG+i)}")
        A(f"v_sub_f32 {lo}, {lo}, {S_}"); A(f"v_sub_f32 {hi}, {hi}, {S_}")
        A(f"v_cvt_pk_bf16_f32 {v(XG+i)}, {lo}, {hi}")
        A(f"v_lshlrev_b32 {lo}, 16, {v(XG+i)}"); A(f"v_and_b32 {hi}, 0xffff0000, {v(XG+i)}")
        A(f"v_mul_f32 {lo}, {lo}, {Q_}"); A(f"v_mul_f32 {hi}, {hi}, {Q_}")
        A(f"v_cvt_pk_bf16_f32 {v(XG+i)}, {lo}, {hi}")
    A(f"v_lshrrev_b32 {v(TM+8)}, 5, v0"); A(f"v_mul_u32_u24 {v(TM+8)}, 144, {v(TM+8)}"); A(f"v_and_b32 {v(TM+9)}, 31, v0"); A(f"v_lshl_add_u32 {v(TM+8)}, {v(TM+9)}, 3, {v(TM+8)}")
    A("s_mov_b32 exec_lo, 0x3ffff"); A("s_mov_b32 exec_hi, 0x3ffff")
    A(f"ds_write_b64 {v(TM+8)}, {v(XG,2)} offset:{L_X}")
    A("s_mov_b64 exec, -1")
    A("L_c1:")
    A(f"v_mul_u32_u24 {v(TM+10)}, 144, {B2}"); A(f"v_lshl_add_u32 {v(TM+10)}, {G}, 4, {v(TM+10)}")
    A(f"s_lshl_b32 {t3}, {sW}, 11"); A(f"v_add_u32 {v(TM+8)}, {t3}, {vL16}")
    A(f"ds_write_b128 {v(TM+8)}, {v(D1,4)} offset:1024"); A(f"ds_write_b128 {v(TM+8)}, {v(D1,4)} offset:2048")

fl_load = ["s_mov_b32 exec_hi, 0", f"buffer_load_dwordx4 {v(FG,4)}, {vL16}, {srd(rWS)}, {sXoff} offen sc1", "s_mov_b32 exec_hi, -1"]
qp_store = f"buffer_store_dwordx4 {v(D0,4)}, {vQPst}, {srd(rWS)}, {{so}} offen{{fl}}"
def qg(n): return [f"buffer_load_dwordx{n} {v(QG+4*p,n)}, {vQPg if p < 2 else vQPg2}, {srd(rWS)}, {sGp} offen offset:{2048*(p%2)} sc1" for p in range(4)]
qg4, qg2 = qg(4), qg(2)
pstamp(3)
for r, off in ((rW1, 48), (rW2, 64), (rOUT, 80), (rT1, 56), (rT2, 72)):
    A(f"s_load_dwordx2 s[{r}:{r+1}], s[0:1], {off}")
if args.code:
    A(f"s_cmp_ge_u32 {sL}, 2"); A("s_cbranch_scc1 L_nc")
    A("s_getpc_b64 s[66:67]")
    A("L_pc:")
    A(f"s_lshl_b32 {t3}, {sL}, 13"); A(f"v_add_u32 {v(TM+8)}, {t3}, {vL128}")
    A(f"v_min_u32 {v(TM+8)}, L_codeend-L_pc-4, {v(TM+8)}")
    A(f"global_load_dword {DUM}, {v(TM+8)}, s[66:67]")
    A("L_nc:")
constants1()
A(f"s_mov_b32 {sTO}, 0x40000"); A(f"s_mov_b32 {sMode}, 0"); A(f"s_mov_b32 {sGp}, {sGf}")
cnt = [8]
mark = {'K': 8}
def vm(s): A(s); cnt[0] += 1
A(f"s_lshl_b32 {t4}, {sL}, 9"); A(f"s_add_u32 {t4}, {t4}, {sGf}"); A(f"s_add_u32 {t4}, {t4}, {QP_O}")
A(f"s_add_u32 {sXoff}, {sGf}, {FF_O}")
A("s_mov_b64 exec, 15")
vm(f"buffer_load_dword {DUM}, {vL128}, {srd(rWS)}, {t4} offen sc1{NT}")
vm(f"buffer_load_dword {DUM}, {vL128}, {srd(rWS)}, {sXoff} offen sc1{NT}")
A("s_mov_b64 exec, -1")
def hookQ():
    A(f"s_lshl_b32 {t4}, {sL}, 2"); A(f"s_add_u32 {t4}, {t4}, {sXoff}")
    A(f"s_getreg_b32 {t3}, hwreg(HW_REG_XCC_ID)"); A(f"s_lshl_b32 {t3}, {t3}, 28"); A(f"s_or_b32 {t3}, {t3}, 1")
    A(f"s_waitcnt vmcnt({cnt[0]}) lgkmcnt(0)")
    A("s_barrier")
    pstamp(2)
    for l in exec_xa(): A(l)
    for i in range(3):
        if i == 2: A("s_mov_b64 exec, 0x33")
        A(f"ds_read_b128 {v(XA+4*i,4)}, {v(TM+10)} offset:{L_X+64*i}")
    A("s_mov_b64 exec, -1")
    for i in range(2):
        for vv in range(0, 8, 2):
            row = 32*i + 16*(vv >> 2) + (vv & 3)
            A(f"ds_read2st64_b32 {a(aWQ+8*i+vv,2)}, {vCq} offset0:{row} offset1:{row+1}")
    A("s_mov_b32 exec_hi, 0")
    for vv in (0, 2): A(f"ds_read2st64_b32 {a(aWQ+16+vv,2)}, {vCq} offset0:{64+vv} offset1:{65+vv}")
    A("s_mov_b32 exec_hi, -1")
    A(f"v_readfirstlane_b32 {sFlag}, {FN}")
    A(f"s_add_u32 {sFlag}, {sFlag}, 0x0e377902"); A(f"s_and_b32 {sFlag}, {sFlag}, 0x0fffffff"); A(f"s_or_b32 {sFlag}, {sFlag}, {t3}")
    A(f"v_mov_b32 {FN}, {sFlag}")
    A("s_mov_b64 exec, 1")
    vm(f"buffer_store_dword {FN}, {vL16}, {srd(rWS)}, {t4} offen")
    A("s_mov_b64 exec, -1")
    A(f"v_and_b32 {vTag}, 0xff, {FN}"); A(f"s_movk_i32 {t4}, 0xff")
    A("s_waitcnt lgkmcnt(0)")
    for i in range(3): sm(D0, XA+4*i, aWQ+8*i, vIdxD)
    for i in range(4): A(f"v_bfi_b32 {v(D0+i)}, {t4}, {vTag}, {v(D0+i)}")
    A("s_mov_b32 exec_hi, 0")
    vm(qp_store.format(so=sGf, fl=''))
    A("s_mov_b32 exec_hi, -1")
    pstamp(1)
for k in range(9):
    if k == args.pQ: hookQ()
    if k == 8 - args.vw: mark['V'] = cnt[0]
    if k < 8: vm(f"buffer_load_dwordx4 {a(aV+4*k,4)}, {vL16}, {srd(rV)}, {kv0 if k < 4 else kv1} offen offset:{1024*(k%4)}{NTV}")
    if k == 7: pstamp(9)
TT = v(TM+4)
def slots_touch():
    A(f"s_lshl_b32 {t1}, {sJ}, 2"); A(f"s_add_u32 {t1}, {t1}, {sW}")
    A(f"s_mul_i32 {t3}, {t1}, 896"); A(f"s_add_u32 {t3}, {t3}, {sGf}"); A(f"s_add_u32 {t3}, {t3}, {Y_O}")
    A("s_mov_b64 exec, 0x7f")
    A(f"buffer_load_dword {DUM}, {vL128}, {srd(rWS)}, {t3} offen sc1{NT}")
    A("s_mov_b64 exec, -1")
assert Y_O + 64 * 896 >= Z3_O + 2304
def w1_touch():
    A(f"s_lshl_b32 {t1}, {sJ}, 2"); A(f"s_add_u32 {t1}, {t1}, {sW}")
    A(f"s_mul_i32 {t4}, {sX}, 576"); A(f"s_add_u32 {t4}, {t4}, {t1}"); A(f"s_add_u32 {t4}, {t4}, 512"); A(f"s_mul_i32 {t4}, {t4}, 1152")
    A(f"s_mul_i32 {t1}, {t1}, {9*9216}")
    A(f"s_mul_i32 {t3}, {sX}, 1152"); A(f"s_add_u32 {t1}, {t1}, {t3}"); A(f"s_add_u32 {t3}, {t1}, {5*9216}")
    A(f"v_mul_u32_u24 {TT}, 57, v0"); A(f"v_lshrrev_b32 {TT}, 9, {TT}"); A(f"v_mul_u32_u24 {TT}, {9216-1152}, {TT}"); A(f"v_add_u32 {TT}, {TT}, {vL128}")
    A("s_mov_b32 exec_hi, 0x1fff")
    A(f"buffer_load_dword {DUM}, {TT}, {srd(rW1)}, {t1} offen{NTM}")
    A("s_mov_b32 exec_hi, 15")
    A(f"buffer_load_dword {DUM}, {TT}, {srd(rW1)}, {t3} offen{NTM}")
    A("s_mov_b64 exec, 0x1ff")
    A(f"buffer_load_dword {DUM}, {vL128}, {srd(rW2)}, {t4} offen{NTM}")
    A("s_mov_b64 exec, -1")
def w2_loads():
    l1 = A.newlabel('L_w2')
    A(f"s_mul_i32 {t0}, {sX}, 18"); A(f"s_add_u32 {t0}, {t0}, {sJ}"); A(f"s_mul_i32 {t0}, {t0}, {32*1152}")
    A(f"s_lshl_b32 {t1}, {sW}, 8"); A(f"s_add_u32 {t1}, {t1}, {t0}")
    for i in range(8):
        A(f"buffer_load_dwordx4 {a(aW2+4*i,4)}, {vWrow}, {srd(rW2)}, {t1} offen{NT2}")
        if i < 7: A(f"s_add_u32 {t1}, {t1}, 4608")
    A(f"s_cmp_lg_u32 {sW}, 3")
    A(f"s_cbranch_scc1 {l1}")
    A(f"s_mov_b64 exec, {mLO8}")
    for i in range(8):
        A(f"buffer_load_dwordx4 {a(aW2t+4*i,4)}, {vWrow}, {srd(rW2)}, {t0} offen offset:1024{NT2}")
        if i < 7: A(f"s_add_u32 {t0}, {t0}, 4608")
    A("s_mov_b64 exec, -1")
    A(f"{l1}:")
def wo_loads(k0, k1, with_tail):
    for k in range(k0, k1):
        A(f"buffer_load_dwordx4 {a(aWO+4*k,4)}, {vWrow}, {srd(rWO)}, {sWo} offen{NTO}")
        A(f"s_add_u32 {sWo}, {sWo}, 4608")
    if with_tail:
        l1 = A.newlabel('L_wt')
        A(f"s_cmp_lg_u32 {sW}, 3")
        A(f"s_cbranch_scc1 {l1}")
        A(f"s_mov_b64 exec, {mLO8}")
        for i in range(7, -1, -1):
            A(f"s_sub_u32 {sWo}, {sWo}, 4608")
            A(f"buffer_load_dwordx4 {a(aWOt+4*i,4)}, {vWrow}, {srd(rWO)}, {sWo} offen offset:256{NTO}")
        A("s_mov_b64 exec, -1")
        A(f"{l1}:")
constants()
pstamp(4)
stamp()
A(f"s_waitcnt vmcnt({cnt[0]-mark['K']})")
for T in range(2):
    for q in range(4): A(f"ds_read_b128 {a(aK+16*T+4*q,4)}, {v(KA+q)} offset:{4096*T}")
A(f"s_mov_b32 {sXPo}, {XP_O}")
A(f"s_cmp_lt_u32 {sJ}, 16")
A("s_cbranch_scc1 L_g1n")
A(f"v_readfirstlane_b32 {t4}, {vOPg}"); A(f"v_readfirstlane_b32 {t5}, {vSTg}")
A(f"s_add_u32 {t4}, {t4}, {sGf}"); A(f"s_add_u32 {t5}, {t5}, {sGf}")
A("s_mov_b64 exec, 0xff")
A(f"buffer_load_dword {DUM}, {vL128}, {srd(rWS)}, {t4} offen sc1{NT}")
A("s_mov_b64 exec, 3")
A(f"buffer_load_dword {DUM}, {vL128}, {srd(rWS)}, {t5} offen sc1{NT}")
A("s_mov_b64 exec, -1")
A(f"buffer_load_ushort {vXres}, {vZo}, {srd(rX)}, 0 offen{NT}")
A(f"buffer_load_ushort {vB2}, {vB2}, {srd(rT2)}, 0 offen{NT}")
wo_loads(0, 8, True)
A("s_branch L_g1o")
A("L_g1n:")
if 's' in args.early: slots_touch()
if '1' in args.early: w1_touch()
if '2' in args.early: w2_loads()
A("L_g1o:")
pstamp(6)
A(f"s_waitcnt vmcnt({args.vw})")
if ST and not args.pro and ONLY is None: A(f"s_memrealtime s[74:75]")
pstamp(5)
def flags_diff():
    A(f"v_xor_b32 {CK}, {sFlag}, {v(FG)}")
    for i in range(1, 4): A(f"v_bitop3_b32 {CK}, {CK}, {v(FG+i)}, {sFlag} bitop3:0xf6")
st_rd = f"ds_read_b64 {v(TM,2)}, {vSTATr}"
A("L_g4:")
for l in fl_load + qg4: A(l)
A("s_waitcnt vmcnt(0)")
pstamp(7)
flags_diff()
A(f"v_cmp_ne_u32 vcc, 0, {CK}")
A("s_cmp_lg_u32 vcc_lo, 0")
if args.forcefb: A("s_cmp_eq_u32 0, 0")
A("s_cbranch_scc1 L_af2")
A(f"s_mov_b32 {sMode}, 0")
A("L_g2:")
for i in range(16): A(f"v_xor_b32 {v(QG+i)}, {vTag}, {v(QG+i)}")
A(f"v_or3_b32 {CK}, {v(QG)}, {v(QG+1)}, {v(QG+2)}")
for i in range(3, 15, 2): A(f"v_or3_b32 {CK}, {CK}, {v(QG+i)}, {v(QG+i+1)}")
A(f"v_or_b32 {CK}, {CK}, {v(QG+15)}")
A(f"v_and_b32 {CK}, 0xff, {CK}")
A(f"v_cmp_ne_u32 vcc, 0, {CK}")
A("s_cbranch_vccnz L_g5")
A("L_g3:")
A(f"s_mov_b32 {sL}, 0")
zero(D0)
A(f"v_mov_b32 {v(TM)}, 0"); A(f"v_mov_b32 {v(TM+1)}, 1.0")
tail.append("L_g5:\n" + timeout("L_g4", "L_g3"))
pstamp(8)
A(f"v_add_f32 {v(TM+2)}, {v(QG+2)}, {v(QG+6)}"); A(f"v_add_f32 {v(TM+3)}, {v(QG+3)}, {v(QG+7)}")
A(f"v_add_f32 {v(TM+4)}, {v(QG+10)}, {v(QG+14)}"); A(f"v_add_f32 {v(TM+5)}, {v(QG+11)}, {v(QG+15)}")
A(f"v_add_f32 {v(TM+2)}, {v(TM+2)}, {v(TM+4)}"); A(f"v_add_f32 {v(TM+3)}, {v(TM+3)}, {v(TM+5)}")
A(f"v_permlane32_swap_b32 {v(TM+2)}, {v(TM+3)}")
A(f"v_add_f32 {vCq}, {v(TM+2)}, {v(TM+3)}")
A("s_branch L_qfin")

A("L_layer:")
zero(D0, 8)
def q_pub():
    A(f"v_and_b32 {v(D0)}, -2, {v(D0)}"); A(f"v_and_b32 {v(D0+1)}, -2, {v(D0+1)}")
    A("s_mov_b32 exec_hi, 0")
    pub(f"buffer_store_dwordx2 {v(D0,2)}, {vQPst}, {srd(rWS)}, {{so}} offen{{fl}}")
    A("s_mov_b32 exec_hi, -1")
A(f"s_cmp_eq_u32 {sW}, 3")
A("s_cbranch_scc1 L_q3")
poll_proj(vXAq, sXoff, 3, aWQ, True)
q_pub()
nst[0] = 1
stamp()
zero(D0)
qregs = [v(QG+4*p+i) for p in range(4) for i in range(2)]
qchk1 = [f"v_or3_b32 {CK}, {qregs[0]}, {qregs[1]}, {qregs[2]}", f"v_or3_b32 {CK}, {CK}, {qregs[3]}, {qregs[4]}", f"v_or3_b32 {CK}, {CK}, {qregs[5]}, {qregs[6]}",
         f"v_bitop3_b32 {CK}, {CK}, {qregs[7]}, 1 bitop3:0xa8", f"v_cmp_ne_u32 vcc, 0, {CK}"]
poll(qg2, qregs, site='q', chk=qchk1)
A("s_branch L_q4")
A("L_q3:")
poll(xs_loads(rWS, sXoff, ' sc1') + xa_loads(rWS, vXAq, sXoff, 3, ' sc1', True), [v(XS+i) for i in range(9)], site='z')
if 'z' in args.p2: A("s_waitcnt vmcnt(0)")
for i in range(3): sm(D0, XA+4*i, aWQ+8*i, vIdxD)
stats(16, early=q_pub, late=lambda: [A(l) for l in qg2])
nst[0] = 1
stamp()
zero(D0)
poll(qg2, qregs, primed=True, chk=qchk1)
A("L_q4:")
A(f"ds_read_b64 {v(TM,2)}, {vSTATr} offset:16")
A("L_qfin:")
stamp()
A(f"v_add_f32 {v(TM+2)}, {v(QG)}, {v(QG+4)}"); A(f"v_add_f32 {v(TM+3)}, {v(QG+1)}, {v(QG+5)}")
A(f"v_add_f32 {v(TM+4)}, {v(QG+8)}, {v(QG+12)}"); A(f"v_add_f32 {v(TM+5)}, {v(QG+9)}, {v(QG+13)}")
A(f"v_add_f32 {v(TM+2)}, {v(TM+2)}, {v(TM+4)}"); A(f"v_add_f32 {v(TM+3)}, {v(TM+3)}, {v(TM+5)}")
A(f"v_permlane32_swap_b32 {v(TM+2)}, {v(TM+3)}")
A(f"v_add_f32 {v(TM+2)}, {v(TM+2)}, {v(TM+3)}")
A("L_q5:")
A("s_waitcnt lgkmcnt(0)")
A(f"v_cmp_eq_u32 vcc, -1, {v(TM+1)}")
A("s_cbranch_vccnz L_q6")
A("L_q7:")
tail.append(f"L_q6:\nds_read_b64 {v(TM,2)}, {vSTATr} offset:16\n" + timeout("L_q5", "L_q7"))
A(f"v_fma_f32 {v(TM+2)}, -{v(TM)}, {vCq}, {v(TM+2)}")
A(f"v_mul_f32 {v(TM+2)}, {v(TM+2)}, {v(TM+1)}")
A(f"v_cvt_pk_bf16_f32 {v(TM+2)}, {v(TM+2)}, {v(TM+2)}")
A(f"ds_write_b16 {vQTw}, {v(TM+2)} offset:{L_QT}")
A("s_mov_b32 vcc_lo, 0xaaaaaaaa"); A("s_mov_b32 vcc_hi, 0xaaaaaaaa")
zero(DP)
A("s_waitcnt lgkmcnt(0)")
A("s_barrier")
A(f"ds_read_b128 {v(AO,4)}, {vQTr} offset:{L_QT}")
A(f"ds_read_b128 {v(AO+4,4)}, {vQTr} offset:{L_QT+256}")
if args.mid:
    A(f"s_lshr_b32 {t0}, {sJ}, 4"); A(f"s_or_b32 {t0}, {t0}, {sL}")
    A("s_cbranch_scc1 L_mid")
    if 's' in args.mid: slots_touch()
    if '1' in args.mid: w1_touch()
    if '2' in args.mid: w2_loads()
    A("L_mid:")
A(f"s_waitcnt lgkmcnt({lg(1)})")
sm(D0, AO, aK, vIdxP); sm(D1, AO, aK+16, vIdxP)
A("s_waitcnt lgkmcnt(0)")
sm(D0, AO+4, aK+8, vIdxP); sm(D1, AO+4, aK+24, vIdxP)
SC, MX, P_, LS, TT = v(TM), v(TM+1), v(TM+2), v(TM+3), v(TM+4)
A(f"v_add_f32 {SC}, {v(D0)}, {v(D0+1)}")
A(f"v_add_f32 {TT}, {v(D1)}, {v(D1+1)}")
A(f"v_cndmask_b32 {SC}, {SC}, {TT}, {mROW}")
rbf(SC, SC)
A(f"v_mul_f32 {SC}, {f32(128 ** -0.5)}, {SC}")
rbf(SC, SC)
A(f"v_mul_f32 {SC}, {f32(1.4426950408889634)}, {SC}")
zero(D0, 2)
A(f"v_max_f32_dpp {MX}, {SC}, {SC} row_ror:8 row_mask:0xf bank_mask:0xf")
for n, k in enumerate((4, 2, 1)):
    zero(D0+2+2*n, 2)
    if k == 1: A(f"v_max_f32_dpp {TT}, {MX}, {MX} row_ror:{k} row_mask:0xf bank_mask:0xf")
    A(f"v_max_f32_dpp {MX}, {MX}, {MX} row_ror:{k} row_mask:0xf bank_mask:0xf")
A(f"v_permlane16_swap_b32 {MX}, {TT}")
A(f"v_max_f32 {MX}, {MX}, {TT}")
A(f"v_sub_f32 {P_}, {SC}, {MX}")
A(f"v_exp_f32 {P_}, {P_}")
A(f"v_cvt_pk_bf16_f32 {TT}, {P_}, 0")
A(f"ds_write2_b32 {vPTw}, {TT}, {TT} offset1:5")
for i in range(4): A(f"ds_read_b128 {v(AO+4*i,4)}, {vPTr} offset:{128*i}")
A(f"v_add_f32_dpp {LS}, {P_}, {P_} row_ror:8 row_mask:0xf bank_mask:0xf")
for k in (4, 2, 1): A(f"v_add_f32_dpp {LS}, {LS}, {LS} row_ror:{k} row_mask:0xf bank_mask:0xf")
A(f"v_mov_b32 {SC}, {LS}")
A(f"v_permlane16_swap_b32 {LS}, {SC}")
A(f"v_add_f32 {LS}, {LS}, {SC}")
A(f"v_cndmask_b32 {SC}, {MX}, {LS}, vcc")
A("s_mov_b32 exec_lo, 3"); A("s_mov_b32 exec_hi, 3")
pub(f"buffer_store_dword {SC}, {vSTst}, {srd(rWS)}, {{so}} offen{{fl}}")
A("s_mov_b64 exec, -1")
for i in range(4):
    A(f"s_waitcnt lgkmcnt({lg(3-i)})")
    sm(DP, AO+4*i, aV+8*i, vIdxS)
def pack4(d):
    A(f"v_cvt_pk_bf16_f32 {v(d)}, {v(d)}, {v(d+1)}"); A(f"v_cvt_pk_bf16_f32 {v(d+1)}, {v(d+2)}, {v(d+3)}")
pack4(DP)
pub(f"buffer_store_dwordx2 {v(DP,2)}, {vOPst}, {srd(rWS)}, {{so}} offen{{fl}}")
stamp()
E = TM + 5
R = TM + 12
def tile_out(wb, tb, vst):
    l1 = A.newlabel('L_t'); l2 = A.newlabel('L_t')
    for i in range(4):
        A(f"s_waitcnt lgkmcnt({lg(3-i)})")
        sm(D0, AO+4*i, wb+8*i, vIdxS)
    A(f"s_cmp_lg_u32 {sW}, 3")
    A(f"s_cbranch_scc1 {l1}")
    for i in range(4): sm(D1, AO+4*i, tb+8*i, vIdxS)
    A(f"{l1}:")
    A("s_waitcnt vmcnt(0)")
    A("s_nop 4")
    pack4(D0)
    pub(f"buffer_store_dwordx2 {v(D0,2)}, {vst}, {srd(rWS)}, {{so}} offen{{fl}}")
    A(f"s_cmp_lg_u32 {sW}, 3")
    A(f"s_cbranch_scc1 {l2}")
    pack4(D1)
    A(f"s_mov_b64 exec, {mLO8}")
    pub(f"buffer_store_dwordx2 {v(D1,2)}, {v(E+2)}, {srd(rWS)}, {{so}} offen{{fl}}")
    A("s_mov_b64 exec, -1")
    A(f"{l2}:")
A(f"s_cmp_lt_u32 {sJ}, 16")
A("s_cbranch_scc1 L_mlp")
op_load = [f"buffer_load_dwordx2 {v(OG+2*i,2)}, {vOPg}, {srd(rWS)}, {sGp} offen offset:{512*i} sc1" for i in range(2)]
A(f"v_add_u32 {v(E+6)}, {4*1152}, {vYst}")
poll([f"buffer_load_dwordx4 {v(SG,4)}, {vSTg}, {srd(rWS)}, {sGp} offen sc1",
      f"buffer_load_dwordx4 {v(SG+4,4)}, {vSTg}, {srd(rWS)}, {sGp} offen offset:128 sc1",
      f"buffer_load_dwordx2 {v(SG+8,2)}, {vSTm}, {srd(rWS)}, {sGp} offen sc1"], [v(SG+i) for i in range(10 if 's' in args.p2 else 8)], site='s')
for l in op_load: A(l)
A(f"v_max3_f32 {MX}, {v(SG)}, {v(SG+1)}, {v(SG+2)}")
A(f"v_max_f32 {MX}, {MX}, {v(SG+3)}")
A(f"v_max_f32_dpp {TT}, {MX}, {MX} row_ror:8 row_mask:0xf bank_mask:0xf")
A(f"v_max_f32_dpp {MX}, {MX}, {MX} row_ror:8 row_mask:0xf bank_mask:0xf")
A(f"v_permlane16_swap_b32 {MX}, {TT}"); A(f"v_max_f32 {SC}, {MX}, {TT}"); A(f"v_max_f32 {MX}, {MX}, {TT}")
A(f"v_permlane32_swap_b32 {MX}, {SC}"); A(f"v_max_f32 {MX}, {MX}, {SC}")
for n, i in enumerate((0, 1, 2, 3, 8, 9)): A(f"v_sub_f32 {v(E+n)}, {v(SG+i)}, {MX}")
for n in range(6): A(f"v_exp_f32 {v(E+n)}, {v(E+n)}")
A(f"v_mul_f32 {LS}, {v(E)}, {v(SG+4)}")
for i in (1, 2, 3): A(f"v_fmac_f32 {LS}, {v(E+i)}, {v(SG+4+i)}")
A(f"v_add_f32_dpp {TT}, {LS}, {LS} row_ror:8 row_mask:0xf bank_mask:0xf")
A(f"v_add_f32_dpp {LS}, {LS}, {LS} row_ror:8 row_mask:0xf bank_mask:0xf")
A(f"v_permlane16_swap_b32 {LS}, {TT}"); A(f"v_add_f32 {SC}, {LS}, {TT}"); A(f"v_add_f32 {LS}, {LS}, {TT}")
poll(op_load, [v(OG+i) for i in range(4)], primed=True)
stamp()
A(f"v_permlane32_swap_b32 {LS}, {SC}")
def unpack2(dst, src):
    for i in range(2):
        A(f"v_lshlrev_b32 {v(dst+2*i)}, 16, {v(src+i)}"); A(f"v_and_b32 {v(dst+2*i+1)}, 0xffff0000, {v(src+i)}")
unpack2(R, OG); unpack2(OG+4, OG+2)
for i in (0, 2): A(f"v_pk_mul_f32 {v(R+i,2)}, {v(R+i,2)}, {v(E+3,2)} op_sel:[0,1] op_sel_hi:[1,1]")
for i in (0, 2): A(f"v_pk_fma_f32 {v(R+i,2)}, {v(OG+4+i,2)}, {v(E+5,2)}, {v(R+i,2)} op_sel_hi:[1,0,1]")
A(f"v_add_f32 {LS}, {LS}, {SC}")
A(f"v_mov_b32 {v(E+2)}, {v(E+6)}")
A(f"v_permlane32_swap_b32 {v(R)}, {v(R+2)}")
A(f"v_permlane32_swap_b32 {v(R+1)}, {v(R+3)}")
A(f"v_add_f32 {v(R)}, {v(R)}, {v(R+2)}")
A(f"v_add_f32 {v(R+1)}, {v(R+1)}, {v(R+3)}")
A(f"v_rcp_f32 {LS}, {LS}")
A(f"v_permlane16_swap_b32 {v(R)}, {v(R+1)}")
A(f"v_add_f32 {v(R)}, {v(R)}, {v(R+1)}")
A(f"v_add_f32_dpp {v(R)}, {v(R)}, {v(R)} row_ror:8 row_mask:0xf bank_mask:0xf")
A(f"v_mul_f32 {v(R)}, {v(R)}, {LS}")
A(f"v_cvt_pk_bf16_f32 {TT}, {v(R)}, {v(R)}")
A(f"ds_write_b16 {vOTw}, {TT}")
pub(*[f"buffer_store_dwordx2 {v(EM,2)}, {vOPg}, {srd(rWS)}, {{so}} offen offset:{512*i}{{fl}}" for i in range(2)])
A("s_waitcnt lgkmcnt(0)")
A("s_barrier")
for i in range(4): A(f"ds_read_b128 {v(AO+4*i,4)}, {vOTr} offset:{128*i}")
tile_out(aWO, aWOt, vYst)
stamp()

def reducer(kind):
    ld = [f"buffer_load_dwordx2 {v(YG+2*i,2)}, {vRg}, {srd(rWS)}, {sGp} offen offset:{512*i} sc1" for i in range(2)]
    A(f"s_movk_i32 {t4}, 0xff"); A(f"s_add_u32 {t3}, {sXPo}, 8192")
    if kind == 'A':
        poll(ld, [v(YG+i) for i in range(4)], site='y')
    else:
        poll(ld + ["s_mov_b64 exec, 0xffff", f"buffer_load_dwordx2 {v(YG+4,2)}, {vRg}, {srd(rWS)}, {sGp} offen offset:1024 sc1", "s_mov_b64 exec, -1"],
             [v(YG+i) for i in range(6)], site='y')
    unpack2(R, YG); unpack2(YG+8, YG+2)
    for i in (0, 2): A(f"v_pk_add_f32 {v(R+i,2)}, {v(R+i,2)}, {v(YG+8+i,2)}")
    if kind == 'M':
        unpack2(YG+8, YG+4)
        for i in (0, 2): A(f"v_pk_add_f32 {v(R+i,2)}, {v(R+i,2)}, {v(YG+8+i,2)}")
    stamp()
    treduce(R)
    A(f"v_bfi_b32 {v(R+1)}, {t4}, {vTag}, {v(R)}"); A(f"v_bfi_b32 {v(R)}, {t4}, {vTag}, {v(R)}")
    A(f"v_permlane16_swap_b32 {v(R)}, {v(R+1)}")
    A(f"v_mov_b32 {v(R+2)}, {v(R)}"); A(f"v_mov_b32 {v(R+3)}, {v(R+1)}")
    A(f"v_permlane32_swap_b32 {v(R)}, {v(R+2)}"); A(f"v_permlane32_swap_b32 {v(R+1)}, {v(R+3)}")
    A(f"buffer_store_dwordx4 {v(R,4)}, {vXPst}, {srd(rWS)}, {sXPo} offen sc1")
    if args.near: A(f"buffer_store_dwordx4 {v(R,4)}, {vXPst}, {srd(rWS)}, {t3} offen sc1")
    if kind == 'M':
        A(f"s_lshl_b32 {t0}, {sL}, 2"); A(f"s_andn2_b32 {t0}, {t0}, {sRole}")
        A("s_cbranch_scc1 L_fin")
    cl = [f"buffer_store_dwordx2 {v(EM,2)}, {vRg}, {srd(rWS)}, {{so}} offen offset:{512*i}{{fl}}" for i in range(2)]
    if kind == 'M': cl += ["s_mov_b64 exec, 0xffff", f"buffer_store_dwordx2 {v(EM,2)}, {vRg}, {srd(rWS)}, {{so}} offen offset:1024{{fl}}", "s_mov_b64 exec, -1"]
    pub(*cl)
    if args.near:
        A(f"v_mov_b32 {TT}, 0")
        A(f"ds_read_b32 {TT}, {TT} offset:{L_NEAR}")
    if args.xd: A(f"s_sleep {args.xd}")
    if args.near:
        A("s_waitcnt lgkmcnt(0)")
        A(f"v_or_b32 {vXPg}, {vXPg}, {TT}")
    poll([f"buffer_load_dwordx2 {v(XG,2)}, {vXPg}, {srd(rWS)}, {sXPo} offen sc1",
          f"buffer_load_dwordx2 {v(XG+2,2)}, {vXPg}, {srd(rWS)}, {sXPo} offen offset:512 sc1"], None,
         chk=[f"v_xor_b32 {v(R+i)}, {vTag}, {v(XG+i)}" for i in range(4)] +
             [f"v_or3_b32 {CK}, {v(R)}, {v(R+1)}, {v(R+2)}", f"v_bitop3_b32 {CK}, {CK}, {v(R+3)}, {t4} bitop3:0xa8", f"v_cmp_ne_u32 vcc, 0, {CK}"])
    stamp()
    Y = v(R)
    A(f"v_add_f32 {v(R)}, {v(R)}, {v(R+2)}"); A(f"v_add_f32 {v(R+1)}, {v(R+1)}, {v(R+3)}")
    A(f"v_permlane32_swap_b32 {v(R)}, {v(R+1)}")
    A(f"v_add_f32 {TT}, {v(R)}, {v(R+1)}"); A(f"v_add_f32 {Y}, {v(R)}, {v(R+1)}")
    A(f"v_permlane16_swap_b32 {Y}, {TT}"); A(f"v_add_f32 {Y}, {Y}, {TT}")
    rbf(Y, Y)
    if kind == 'M':
        A(f"v_add_f32 {Y}, {Y}, {vB2}"); rbf(Y, Y)
    A(f"v_add_f32 {TT}, {Y}, {vXres}")
    A(f"v_add_f32 {v(R+1)}, {Y}, {vXres}")
    A(f"v_add_f32 {Y}, {Y}, {vXres}")
    A("s_mov_b64 exec, -1")
    A(f"v_permlane32_swap_b32 {TT}, {v(R+1)}")
    A(f"v_cvt_pk_bf16_f32 {TT}, {TT}, {v(R+1)}")
    A("s_mov_b64 exec, 0xffff")
    if kind == 'M':
        A(f"s_cmp_lg_u32 {sL}, 0")
        A("s_cbranch_scc1 L_out")
    pub(f"buffer_store_dword {TT}, {vZst}, {srd(rWS)}, {{so}} offen{{fl}}")
    A("s_mov_b64 exec, -1")
    stamp()
    rbf(vXres, Y)
    A(f"v_add_u32 {vZst}, 2304, {vZst}")
    A(f"s_add_u32 {sXPo}, {sXPo}, {XPS}")

A(f"s_bitcmp1_b32 {sRole}, 0")
A("s_cbranch_scc1 L_mlp")
A(f"s_bitcmp1_b32 {sRole}, 1")
A("s_cbranch_scc0 L_probe" if args.near else "s_cbranch_scc0 L_next")
A(f"s_cmp_lg_u32 {sL}, 0")
A("s_cbranch_scc1 L_red")
A(f"v_lshlrev_b32 {vXres}, 16, {vXres}"); A(f"v_lshlrev_b32 {vB2}, 16, {vB2}")
zero(YG+4, 2)
A("L_red:")
k0 = nst[0]
reducer('A'); reducer('M')
kr = nst[0]
A("s_branch L_next")
A("L_mlp:")
nst[0] = k0
A(f"s_cmp_lg_u32 {sL}, 0")
A("s_cbranch_scc1 L_m1")
A(f"s_mul_i32 {t0}, {sX}, 18"); A(f"s_add_u32 {t0}, {t0}, {sJ}")
A(f"s_lshl_b32 {t2}, {t0}, 6")
A(f"buffer_load_ushort {vB1}, {vB1}, {srd(rT1)}, 0 offen{NT}")
A(f"s_cmp_ge_u32 {sJ}, 16")
A("s_cbranch_scc1 L_m0b")
if args.xt:
    A(f"s_lshl_b32 {t1}, {sJ}, 2"); A(f"s_add_u32 {t1}, {t1}, {sW}"); A(f"s_mul_i32 {t1}, {t1}, 36")
    A(f"v_add_u32 {TT}, {t1}, v0")
    A(f"v_lshrrev_b32 {LS}, 6, {TT}"); A(f"v_mul_u32_u24 {MX}, 43, {LS}"); A(f"v_lshrrev_b32 {MX}, 7, {MX}"); A(f"v_add_u32 {LS}, {LS}, {MX}")
    A(f"v_bfe_u32 {MX}, {TT}, 3, 3"); A(f"v_lshl_add_u32 {LS}, {LS}, 3, {MX}"); A(f"v_and_b32 {TT}, 7, {TT}"); A(f"v_lshlrev_b32 {TT}, 7, {TT}"); A(f"v_lshl_add_u32 {TT}, {LS}, 13, {TT}")
    A(f"s_lshl_b32 {t1}, {sX}, 10"); A(f"s_add_u32 {t1}, {t1}, {XP_O}")
    A(f"v_mov_b32 {LS}, 0")
    A("s_mov_b32 exec_hi, 15")
    A(f"buffer_atomic_or {LS}, {TT}, {srd(rWS)}, {t1} offen")
    A("s_mov_b32 exec_hi, -1")
if 's' not in args.early + args.mid: slots_touch()
if '1' not in args.early + args.mid: w1_touch()
if '2' in args.early + args.mid: A("s_branch L_m0d")
A("L_m0b:")
w2_loads()
A("L_m0d:")
A(f"s_cmp_eq_u32 {sW}, 3")
A("s_cbranch_scc1 L_m0c")
A("L_m0a:")
A(f"s_mul_i32 {t0}, {sW}, {192*9216}"); A(f"s_add_u32 {t0}, {t0}, {t2}")
if args.w1dma:
    A(f"v_lshrrev_b32 {TT}, 2, v0"); A(f"v_mul_u32_u24 {TT}, 9216, {TT}"); A(f"v_and_b32 {LS}, 3, v0"); A(f"v_lshl_add_u32 {TT}, {LS}, 4, {TT}")
    A(f"s_mul_i32 {t1}, {sW}, 12288"); A(f"s_add_u32 {t1}, {t1}, {L_K}"); A(f"s_mov_b32 m0, {t1}")
    for i in range(12):
        A(f"buffer_load_dwordx4 {TT}, {srd(rW1)}, {t0} offen{NTM} lds")
        if i < 11: A(f"s_add_u32 {t0}, {t0}, {16*9216}"); A("s_add_u32 m0, m0, 1024")
    A(f"v_lshrrev_b32 {TT}, 4, v0"); A(f"v_lshlrev_b32 {TT}, 8, {TT}"); A(f"v_and_b32 {LS}, 15, v0"); A(f"v_lshl_add_u32 {TT}, {LS}, 2, {TT}"); A(f"v_add_u32 {TT}, {t1}, {TT}")
    A("s_waitcnt vmcnt(0)")
    for i in range(6):
        for hh in range(2):
            for p in range(2):
                A(f"ds_read2_b32 {a(aW1+8*i+4*hh+2*p,2)}, {TT} offset0:{32*p} offset1:{32*p+16}")
            if (i, hh) != (5, 1): A(f"v_add_u32 {TT}, 1024, {TT}")
    A("s_waitcnt lgkmcnt(0)")
else:
    A(f"v_lshrrev_b32 {TT}, 4, v0"); A(f"v_mul_u32_u24 {TT}, {4*9216}, {TT}"); A(f"v_and_b32 {LS}, 15, v0"); A(f"v_lshl_add_u32 {TT}, {LS}, 2, {TT}")
    prev = 0
    for i in range(6):
        for vv in range(8):
            row = 32*i + 16*(vv >> 2) + (vv & 3)
            if row != prev: A(f"s_add_u32 {t0}, {t0}, {(row-prev)*9216}")
            prev = row
            A(f"buffer_load_dword {a(aW1+8*i+vv)}, {TT}, {srd(rW1)}, {t0} offen{NTM}")
A("L_m0c:")
if ST: A("s_memrealtime s[94:95]"); A("s_waitcnt vmcnt(0)"); A("s_memrealtime s[96:97]")
A("s_waitcnt vmcnt(0)")
A(f"v_lshlrev_b32 {vB1}, 16, {vB1}")
A("L_m1:")
zero(D0, 8)
c0 = -2 * 1.4426950408889634 * 0.7978845608028654
A(f"v_mov_b32 {v(E)}, {f32(c0)}")
A(f"v_lshrrev_b32 {v(E+1)}, 5, v0"); A(f"v_lshlrev_b32 {v(E+1)}, 3, {v(E+1)}")
A(f"v_add_u32 {v(E+2)}, {4*1152}, {vMst}")
A(f"s_mul_i32 {t0}, {sL}, {Z3_O-Z1_O}"); A(f"s_add_u32 {t0}, {t0}, {sGp}"); A(f"s_add_u32 {t0}, {t0}, {Z1_O}")
A(f"s_cmp_eq_u32 {sW}, 3")
A("s_cbranch_scc1 L_m2")
poll_proj(vXAm, t0, 6, aW1)
A("s_mov_b32 exec_hi, 0")
A(f"ds_write_b128 {vHPw}, {v(D0,4)}")
A("s_mov_b32 exec_hi, -1")
A("s_branch L_m2b")
A("L_m2:")
poll(xs_loads(rWS, t0, ' sc1'), [v(XS+i) for i in range(9)], site='z')
stats(32)
A("L_m2b:")
stamp()
A("s_waitcnt lgkmcnt(0)")
A("s_barrier")
H = TM + 12
A(f"ds_read2_b32 {v(H,2)}, {vHPr} offset0:0 offset1:2")
A(f"ds_read2_b32 {v(H+2,2)}, {vHPr} offset0:128 offset1:130")
A(f"ds_read_b32 {v(H+4)}, {vHPr} offset:1024"); A(f"ds_read_b32 {v(H+5)}, {vHPr} offset:1032")
A(f"ds_read_b64 {v(TM,2)}, {v(E+1)} offset:{L_STAT+32}")
zero(D0)
A("s_waitcnt lgkmcnt(0)")
A(f"v_add_f32 {v(H)}, {v(H)}, {v(H+2)}"); A(f"v_add_f32 {v(H+1)}, {v(H+1)}, {v(H+3)}")
A(f"v_add_f32 {v(H)}, {v(H)}, {v(H+4)}"); A(f"v_add_f32 {v(H+1)}, {v(H+1)}, {v(H+5)}")
A(f"v_fma_f32 {v(H)}, -{S_}, {v(H+1)}, {v(H)}")
A(f"v_mul_f32 {v(H)}, {v(H)}, {Q_}")
rbf(v(H), v(H))
A(f"v_add_f32 {v(H)}, {v(H)}, {vB1}")
rbf(v(H), v(H))
A(f"v_mul_f32 {TT}, {v(H)}, {v(H)}")
A(f"v_fmac_f32 {v(E)}, {f32(c0*0.044715)}, {TT}")
A(f"v_mul_f32 {TT}, {v(E)}, {v(H)}")
A(f"v_exp_f32 {TT}, {TT}")
A(f"v_add_f32 {TT}, 1.0, {TT}")
A(f"v_rcp_f32 {TT}, {TT}")
A(f"v_mul_f32 {TT}, {TT}, {v(H)}")
A(f"v_cvt_pk_bf16_f32 {TT}, {TT}, 0")
A(f"ds_write2_b32 {vPTw}, {TT}, {TT} offset1:5")
for i in range(4): A(f"ds_read_b128 {v(AO+4*i,4)}, {vPTr} offset:{128*i}")
stamp()
tile_out(aW2, aW2t, vMst)
A("L_m4:")
stamp()
nst[0] = kr
A("L_next:")
A(f"s_cmp_lg_u32 {sL}, 0")
A("s_cbranch_scc1 L_fin")
if ST:
    A("s_waitcnt lgkmcnt(0)")
    for k in range(14): A(f"v_writelane_b32 {v(SV)}, s{72+2*k}, {1+k}")
    for k in range(14): A(f"s_mov_b64 s[{72+2*k}:{73+2*k}], 0")
A(f"s_mov_b32 {sL}, 1")
if args.dirty:
    A(f"s_cmp_ge_u32 {sJ}, 16"); A("s_cbranch_scc1 L_dd")
    A(f"s_lshl_b32 {t0}, s2, 2"); A(f"s_add_u32 {t0}, {t0}, {sW}"); A(f"s_lshl_b32 {t0}, {t0}, 14"); A(f"s_add_u32 {t0}, {t0}, 0x2000000")
    for i in range(args.dirty):
        A(f"buffer_store_dwordx4 {v(EM,4)}, {vL16}, {srd(rWS)}, {t0} offen"); A(f"s_add_u32 {t0}, {t0}, 1024")
    A("L_dd:")
A(f"s_add_u32 {sXoff}, {sGp}, {Z2_O}")
for r in (vSTst, vSTg, vSTm): A(f"v_add_u32 {r}, {ST1_O-ST_O}, {r}")
A("s_branch L_layer")
A("L_out:")
A(f"buffer_store_dword {TT}, {vZo}, {srd(rOUT)}, 0 offen")
A(f"s_mov_b32 {t0}, {EP_O}")
A("s_mov_b64 exec, 1")
A(f"buffer_store_dword {FN}, {vL16}, {srd(rWS)}, {t0} offen")
if ST: A(f"s_memrealtime s[{72+2*13}:{73+2*13}]")
A("L_fin:")
if args.wb:
    A(f"s_cmp_lg_u32 {sJ}, 18"); A("s_cbranch_scc1 L_wb")
    A(f"s_cmp_lg_u32 {sW}, 0"); A("s_cbranch_scc1 L_wb")
    A("buffer_wbl2 sc1")
    A("L_wb:")
if args.enc:
    j0, j1 = [int(x) for x in args.encj.split(',')]
    A("s_memrealtime s[66:67]")
    A("s_waitcnt lgkmcnt(0)")
    if args.enc <= 14: A(f"v_readlane_b32 {t0}, {v(SV)}, {args.enc}"); A("s_nop 3")
    else: A(f"s_mov_b32 {t0}, s{72+2*(args.enc-15)}")
    A(f"s_cmp_eq_u32 {t0}, 0"); A("s_cbranch_scc1 L_enc2")
    A(f"s_cmp_lt_u32 {sJ}, {j0}"); A("s_cbranch_scc1 L_enc2")
    A(f"s_cmp_ge_u32 {sJ}, {j1}"); A("s_cbranch_scc1 L_enc2")
    A(f"s_sub_u32 {t0}, {t0}, s100"); A(f"s_min_u32 {t0}, {t0}, 10000"); A(f"s_lshl_b32 {t0}, {t0}, 3"); A(f"s_add_u32 {t0}, {t0}, s66")
    A("L_enc:")
    A("s_sleep 8")
    A("s_memrealtime s[64:65]"); A("s_waitcnt lgkmcnt(0)")
    A(f"s_sub_u32 {t1}, s64, {t0}"); A(f"s_cmp_lt_i32 {t1}, 0"); A("s_cbranch_scc1 L_enc")
    A("L_enc2:")
if ST:
    A("s_mov_b64 exec, -1")
    A("s_waitcnt lgkmcnt(0)")
    A(f"v_writelane_b32 {v(SV)}, s100, 0")
    for k in range(14): A(f"v_writelane_b32 {v(SV)}, s{72+2*k}, {15+k}")
    A(f"s_lshl_b32 {t0}, s2, 2"); A(f"s_add_u32 {t0}, {t0}, {sW}"); A(f"s_lshl_b32 {t0}, {t0}, 8"); A(f"s_add_u32 {t0}, {t0}, {STAMP_O}")
    A(f"v_mov_b32 {v(SV+1)}, 0")
    A(f"v_lshlrev_b32 {v(SV+2)}, 3, v0")
    A("s_mov_b32 exec_hi, 0")
    A(f"buffer_store_dwordx2 {v(SV,2)}, {v(SV+2)}, {srd(rWS)}, {t0} offen")
A("L_end:")
A("s_endpgm")
if args.near:
    A("L_probe:")
    A(f"s_cmp_lt_u32 {sJ}, 20"); A("s_cbranch_scc1 L_next")
    A(f"s_cmp_lg_u32 {sL}, 0"); A("s_cbranch_scc1 L_next")
    A(f"s_sub_u32 {t0}, {sJ}, 20"); A(f"s_lshl_b32 {t0}, {t0}, 18"); A(f"s_lshl_b32 {t1}, {sX}, 10"); A(f"s_add_u32 {t0}, {t0}, {t1}"); A(f"s_add_u32 {t0}, {t0}, {XP_O + 3*65536}")
    A(f"s_add_u32 s44, s{rWS}, {t0}"); A(f"s_addc_u32 s45, s{rWS+1}, 0")
    A(f"s_mov_b32 {t2}, -1"); A(f"s_mov_b32 {t3}, -1"); A(f"s_mov_b32 {t4}, 3")
    A("L_pr1:")
    A("s_memtime s[46:47]"); A("s_waitcnt lgkmcnt(0)")
    A(f"s_load_dword {t5}, s[44:45], 0 glc"); A("s_waitcnt lgkmcnt(0)")
    A("s_memtime s[48:49]"); A("s_waitcnt lgkmcnt(0)")
    A(f"s_load_dword {t5}, s[44:45], 0x2000 glc"); A("s_waitcnt lgkmcnt(0)")
    A("s_memtime s[50:51]"); A("s_waitcnt lgkmcnt(0)")
    A(f"s_sub_u32 {t0}, s48, s46"); A(f"s_sub_u32 {t1}, s50, s48")
    A(f"s_min_u32 {t2}, {t2}, {t0}"); A(f"s_min_u32 {t3}, {t3}, {t1}")
    A(f"s_sub_u32 {t4}, {t4}, 1"); A(f"s_cmp_lg_u32 {t4}, 0"); A("s_cbranch_scc1 L_pr1")
    A(f"s_cmp_lt_u32 {t3}, {t2}"); A(f"s_cselect_b32 {t0}, 0x2000, 0")
    A(f"v_mov_b32 {TT}, 0"); A(f"v_mov_b32 {LS}, {t0}")
    A(f"ds_write_b32 {TT}, {LS} offset:{L_NEAR}")
    A("s_branch L_next")
A("L_af2:")
A(f"s_cmp_eq_u32 {sMode}, {FB_O}")
A("s_cbranch_scc1 L_g2")
A(f"s_add_u32 {sMode}, {sMode}, 1")
A(f"s_lshl_b32 {t2}, {sX}, 10"); A(f"s_add_u32 {t2}, {t2}, {FL_O}")
A(f"s_lshl_b32 {t4}, {sL}, 2"); A(f"s_add_u32 {t1}, {t4}, {t2}")
A(f"s_cmp_lt_u32 {sMode}, {1 if args.forcefb else 40}")
A("s_cbranch_scc1 L_af5")
A("s_mov_b64 exec, 1")
A(f"buffer_store_dword {FN}, {vL16}, {srd(rWS)}, {t1} offen sc1")
A("s_mov_b32 exec_lo, -1")
A(f"buffer_load_dwordx4 {v(FG,4)}, {vL16}, {srd(rWS)}, {t2} offen sc1")
A("s_mov_b32 exec_hi, -1")
A("s_waitcnt vmcnt(0)")
flags_diff()
A(f"v_and_b32 {TT}, 0x0fffffff, {CK}")
A(f"v_cmp_ne_u32 vcc, 0, {TT}")
A("s_cmp_lg_u32 vcc_lo, 0")
A("s_cbranch_scc1 L_af5")
A(f"v_cmp_ne_u32 vcc, 0, {CK}")
A("s_cmp_lg_u32 vcc_lo, 0")
if args.forcefb: A("s_cmp_eq_u32 0, 0")
A("s_cbranch_scc1 L_spread")
A("L_af5:")
A(f"s_sub_u32 {sTO}, {sTO}, 1")
A("s_cbranch_scc0 L_g4")
A(f"s_mov_b32 {sTO}, 0")
A(f"s_mov_b32 {sMode}, 0")
A("s_branch L_g2")
A("L_spread:")
A(f"s_mov_b32 {sMode}, {FB_O}")
A(f"s_add_u32 {sGp}, {sGf}, {FB_O}")
empty_share(sGp, ' sc1')
A("s_mov_b32 exec_hi, 0")
A(qp_store.format(so=sGp, fl=' sc1'))
A("s_waitcnt vmcnt(0)")
A("s_mov_b64 exec, 1")
A(f"buffer_store_dword {FN}, {vL16}, {srd(rWS)}, {t1} offen offset:512 sc1")
A("s_mov_b32 exec_lo, -1")
A("L_sp1:")
A("s_mov_b32 exec_hi, 0")
A(f"buffer_load_dwordx4 {v(FG,4)}, {vL16}, {srd(rWS)}, {t2} offen offset:512 sc1")
A("s_mov_b32 exec_hi, -1")
A("s_waitcnt vmcnt(0)")
flags_diff()
A(f"v_and_b32 {CK}, 0x0fffffff, {CK}")
A(f"v_cmp_ne_u32 vcc, 0, {CK}")
A("s_cmp_eq_u32 vcc_lo, 0")
A("s_cbranch_scc1 L_g4")
A("s_sleep 4")
A(timeout("L_sp1", "L_g4"))
for t in tail: A(t)
A.raw('L_codeend:')
A.raw('.section .rodata,"a"')
A.raw(".p2align 6")
A.raw(f".amdhsa_kernel {NAME}_kernel")
A.raw(f"  .amdhsa_next_free_vgpr {ACC+NACC}")
A.raw("  .amdhsa_next_free_sgpr 102")
A.raw(f"  .amdhsa_accum_offset {ACC}")
A.raw("  .amdhsa_group_segment_fixed_size 0")
A.raw("  .amdhsa_kernarg_size 104")
A.raw("  .amdhsa_user_sgpr_count 2")
A.raw("  .amdhsa_user_sgpr_kernarg_segment_ptr 1")
A.raw("  .amdhsa_system_sgpr_workgroup_id_x 1")
A.raw(".end_amdhsa_kernel")
txt = A.text()
if args.cyc: txt = txt.replace('s_memrealtime', 's_memtime')
sys.stdout.write(txt)
```

```python
import sys, argparse, struct
sys.path.insert(0, 'dev')
from asmlib import Asm
NAME = "interleave_layers__sliding_block_cached__dense_activation_gelu__decode"
ap = argparse.ArgumentParser()
ap.add_argument('--stamps', action='store_true')
ap.add_argument('--pro', action='store_true')
ap.add_argument('--cyc', action='store_true')
ap.add_argument('--xt', type=int, default=0)
ap.add_argument('--xd', type=int, default=11)
ap.add_argument('--enc', type=int, default=0)
ap.add_argument('--encref', type=int, default=0)
ap.add_argument('--encj', default='0,32')
ap.add_argument('--only', default='')
ap.add_argument('--pQ', type=int, default=4)
ap.add_argument('--code', type=int, default=1)
ap.add_argument('--early', default='0')
ap.add_argument('--mid', default='')
ap.add_argument('--w1dma', type=int, default=0)
ap.add_argument('--near', type=int, default=1)
ap.add_argument('--p2', default='sy')
ap.add_argument('--wb', type=int, default=0)
ap.add_argument('--dirty', type=int, default=0)
ap.add_argument('--vw', type=int, default=1)
ap.add_argument('--di', type=int, default=1)
ap.add_argument('--dz', type=int, default=1)
ap.add_argument('--dxx', type=int, default=1)
ap.add_argument('--nt', default='k,v')
ap.add_argument('--forcefb', action='store_true')
args = ap.parse_args()
def ntf(c): return ' nt' if c in args.nt.split(',') else ''
NT = ntf('s'); NTK = ntf('k'); NTV = ntf('v'); NTQ = ntf('q'); NTO = ntf('o'); NTM = ntf('m'); NT2 = ntf('2')
ST = args.stamps

def f32(x): return '0x%08x' % struct.unpack('<I', struct.pack('<f', x))[0]

CLR = 928
OP_O = 0
Y_O = OP_O + 65536
ST_O = Y_O + 41472
ST1_O = ST_O + 2048
Z1_O = ST1_O + 2048
Z2_O = Z1_O + 2304
Z3_O = Z2_O + 2304
assert Z3_O + 2304 <= 128 * CLR and (128 * CLR) % 128 == 0
QP_O = 128 * CLR
FF_O = QP_O + 65536
GB = FF_O + 1024
FB_O = 8 * GB
XP_O = 6 << 20
assert XP_O >= 16 * GB
XPS = 16384
FL_O = XP_O + 12 * 262144
EP_O = FL_O + 8 * 1024
STAMP_O = 0x8000000
L_NEAR = 8176
L_X = 640
L_QT, L_STAT, L_OT, L_PT, L_HP, L_K, L_WQ, L_SIZE = 0, 512, 1024, 2560, 8192, 16384, 49152, 67584

rK, rV, rWQ, rWO, rW1, rW2, rWS, rX, rOUT, rT1, rT2 = 4, 8, 12, 16, 20, 24, 28, 32, 36, 44, 48
sTask, kv0, kv1, sFlag = 's40', 's41', 's42', 's43'
def srd(n): return f"s[{n}:{n+3}]"
sW, sX, sJ, sGf, sGp, sXoff, sTO, sMode, sL, sWo = [f"s{i}" for i in range(52, 62)]
t0, t1, t2, t3, t4, t5 = [f"s{i}" for i in range(62, 68)]
mLO8 = "s[68:69]"; mROW = "s[70:71]"
MXA = "0x00330033"
sRole = "s3"
(vL4, vL16, vIdxD, vIdxP, vIdxS, vXAq, vXAm, vQPst, vQPg, vL128, vQTw, vQTr, vPTw, vPTr, vSTst, vOPst, vSTg, vOPg, vOTw, vOTr,
 vYst, vMst, vHPw, vSTm, vRg, vSTATr, vXPst, vXPg, vZst, vXres, vB2, vB1, vCq, vZo, vXS1, vXS2, vWrow, vHPr, vOnes) = [f"v{i}" for i in range(1, 40)]
XA, D0, D1, DP, AO, SG, YG, XG, XS, FG, TM, EM, KA, SV, OG, QG = 40, 64, 68, 72, 76, 104, 120, 132, 136, 148, 152, 176, 180, 184, 188, 196
vQPg2 = 'v92'
ACC = 212
aWQ, aK, aV, aWO, aW1, aW2, aWOt, NACC = 0, 24, 56, 88, 120, 168, 200, 232
aW2t = aW1
def v(n, k=1): return f"v{n}" if k == 1 else f"v[{n}:{n+k-1}]"
def a(n, k=1): return f"a{n}" if k == 1 else f"a[{n}:{n+k-1}]"
CK = v(TM + 23); FN = v(TM + 22); vTag = v(TM + 21); DUM = v(TM + 20)
sEp, sXPo = kv0, kv1

A = Asm()
tail = []
nst = [0]
def pstamp(k):
    if args.pro: A(f"s_memrealtime s[{72+2*k}:{73+2*k}]")
def stamp():
    if ST and not args.pro:
        k = nst[0]; nst[0] += 1
        assert k < 13
        if ONLY is None or k in ONLY: A(f"s_memrealtime s[{72+2*k}:{73+2*k}]")
ONLY = set(int(x) for x in args.only.split(',')) if args.only else None
def lg(n): return 0 if (ST and ONLY is None) else n
def exec_xa(): return [f"s_mov_b32 exec_lo, {MXA}", f"s_mov_b32 exec_hi, {MXA}"]

def check_text(regs):
    regs = list(regs); o = []
    if len(regs) == 1: cur = regs[0]
    else:
        take = regs[:3]; regs = regs[3:]
        o.append(f"v_max3_u32 {CK}, {take[0]}, {take[1]}, {take[2]}" if len(take) == 3 else f"v_max_u32 {CK}, {take[0]}, {take[1]}")
        while regs:
            take = regs[:2]; regs = regs[2:]
            o.append(f"v_max3_u32 {CK}, {CK}, {take[0]}, {take[1]}" if len(take) == 2 else f"v_max_u32 {CK}, {CK}, {take[0]}")
        cur = CK
    o.append(f"v_cmp_eq_u32 vcc, -1, {cur}")
    return o
def nvm(loads): return sum(1 for l in loads if l.startswith('buffer_'))
def timeout(again, ok): return f"s_sub_u32 {sTO}, {sTO}, 1\ns_cbranch_scc0 {again}\ns_mov_b32 {sTO}, 0\ns_waitcnt vmcnt(0) lgkmcnt(0)\ns_branch {ok}"

def poll(loads, regs, primed=False, extra_wait="", chk=None, site=''):
    lp = A.newlabel('L_poll'); to = A.newlabel('L_to'); ok = A.newlabel('L_ok'); en = A.newlabel('L_in')
    if primed:
        A(f"s_waitcnt vmcnt(0){extra_wait}")
        for l in (chk or check_text(regs)): A(l)
        A(f"s_cbranch_vccnz {lp}")
        A(f"{ok}:")
        tail.append(f"{lp}:\n" + "\n".join(loads) + f"\ns_sub_u32 {sTO}, {sTO}, 1\ns_cbranch_scc1 {to}\ns_waitcnt vmcnt(0){extra_wait}\n" +
                    "\n".join(chk or check_text(regs)) + f"\ns_cbranch_vccnz {lp}\ns_branch {ok}\n{to}:\ns_mov_b32 {sTO}, 0\ns_waitcnt vmcnt(0) lgkmcnt(0)\ns_branch {ok}")
        return
    two = site and site in args.p2
    if two:
        for l in loads: A(l)
        A("s_sleep 2")
    A(f"{lp}:")
    for l in loads: A(l)
    A(f"s_sub_u32 {sTO}, {sTO}, 1")
    A(f"s_cbranch_scc1 {to}")
    A(f"s_waitcnt vmcnt({nvm(loads) if two else 0}){extra_wait}")
    for l in (chk or check_text(regs)): A(l)
    A(f"s_cbranch_vccnz {lp}")
    A(f"{ok}:")
    tail.append(f"{to}:\ns_mov_b32 {sTO}, 0\ns_waitcnt vmcnt(0) lgkmcnt(0)\ns_branch {ok}")

def sm(d, av, br, idx): A(f"v_smfmac_f32_16x16x64_bf16 {v(d,4)}, {v(av,4)}, {a(br,8)}, {idx}")
def xa_loads(rr, voff, so, n, fl, short_last=False):
    o = exec_xa()
    for i in range(n):
        if short_last and i == n - 1: o.append("s_mov_b64 exec, 0x33")
        o.append(f"buffer_load_dwordx4 {v(XA+4*i,4)}, {voff}, {srd(rr)}, {so} offen offset:{64*i}{fl}")
    return o + ["s_mov_b64 exec, -1"]
def poll_proj(voff, so, n, wbase, short_last=False):
    loads = xa_loads(rWS, voff, so, n, ' sc1', short_last)
    lds = [l for l in loads if l.startswith('buffer_')]
    lp = A.newlabel('L_poll'); rt = A.newlabel('L_retry'); ok = A.newlabel('L_ok'); gen = A.newlabel('L_nan')
    for l in loads: A(l)
    A(f"{lp}:")
    A("s_waitcnt vmcnt(0)")
    for i in range(n): sm(D0, XA+4*i, wbase+8*i, vIdxD)
    for l in loads: A(l)
    A(f"v_cmp_u_f32 vcc, {v(D0)}, {v(D0+1)}")
    A(f"s_cbranch_vccnz {rt}")
    A(f"{ok}:")
    z = "\n".join(f"v_mov_b32 {v(D0+i)}, 0" for i in range(4))
    mm = "\n".join(f"v_smfmac_f32_16x16x64_bf16 {v(D0,4)}, {v(XA+4*i,4)}, {a(wbase+8*i,8)}, {vIdxD}" for i in range(n))
    tail.append(f"{rt}:\n{z}\ns_sub_u32 {sTO}, {sTO}, 1\ns_cbranch_scc1 {gen}\ns_and_b32 {t5}, {sTO}, 15\ns_cbranch_scc1 {lp}\n" +
                "\n".join(check_text([v(XA+i) for i in range(4*n)])) + f"\ns_cbranch_vccnz {lp}\n{gen}:\ns_max_i32 {sTO}, {sTO}, 0\n{mm}\ns_nop 7\ns_branch {ok}")

def pub(*fmts):
    for f in fmts: A(f.format(so=sGf, fl=''))
    sl = A.newlabel('L_slow'); bk = A.newlabel('L_back')
    A(f"s_cmp_lg_u32 {sMode}, 0")
    A(f"s_cbranch_scc1 {sl}")
    A(f"{bk}:")
    tail.append(f"{sl}:\n" + "\n".join(f.format(so=sGp, fl=' sc1') for f in fmts) + f"\ns_nop 1\ns_branch {bk}")

def rbf(dst, src):
    A(f"v_cvt_pk_bf16_f32 {dst}, {src}, {src}")
    A(f"v_and_b32 {dst}, 0xffff0000, {dst}")
def treduce(r):
    A(f"v_permlane32_swap_b32 {v(r)}, {v(r+2)}")
    A(f"v_permlane32_swap_b32 {v(r+1)}, {v(r+3)}")
    A(f"v_add_f32 {v(r)}, {v(r)}, {v(r+2)}")
    A(f"v_add_f32 {v(r+1)}, {v(r+1)}, {v(r+3)}")
    A(f"v_permlane16_swap_b32 {v(r)}, {v(r+1)}")
    A(f"v_add_f32 {v(r)}, {v(r)}, {v(r+1)}")
    A(f"v_add_f32_dpp {v(r)}, {v(r)}, {v(r)} row_ror:8 row_mask:0xf bank_mask:0xf")
S_, Q_ = v(TM), v(TM+1)
def stats(slot_off, write=True, early=None, late=None):
    S, Q = S_, Q_
    A(f"v_mov_b32 {S}, 0"); A(f"v_mov_b32 {Q}, 0")
    for i in range(9):
        A(f"v_dot2c_f32_bf16 {S}, {v(XS+i)}, {vOnes}")
        A(f"v_dot2c_f32_bf16 {Q}, {v(XS+i)}, {v(XS+i)}")
        if i == 2 and early: early()
    A(f"v_lshrrev_b32 {v(TM+2)}, 5, v0"); A(f"v_lshlrev_b32 {v(TM+2)}, 3, {v(TM+2)}")
    A(f"v_permlane16_swap_b32 {S}, {Q}")
    A(f"v_add_f32 {S}, {S}, {Q}")
    for k in (8, 4, 2, 1):
        A(f"v_add_f32_dpp {S}, {S}, {S} row_ror:{k} row_mask:0xf bank_mask:0xf")
    A(f"v_mul_f32 {Q}, {f32(1/576)}, {S}")
    A(f"v_mul_f32 {S}, {f32(1/576)}, {S}")
    if late: late()
    A(f"v_permlane16_swap_b32 {S}, {Q}")
    A(f"v_fma_f32 {Q}, -{S}, {S}, {Q}")
    A(f"v_max_f32 {Q}, 0, {Q}")
    A(f"v_cvt_pk_bf16_f32 {Q}, {S}, {Q}")
    A(f"v_lshlrev_b32 {S}, 16, {Q}")
    A(f"v_and_b32 {Q}, 0xffff0000, {Q}")
    A(f"v_add_f32 {Q}, {f32(1e-5)}, {Q}")
    rbf(Q, Q)
    A(f"v_sqrt_f32 {Q}, {Q}")
    rbf(Q, Q)
    A(f"v_rcp_f32 {Q}, {Q}")
    if write: A(f"ds_write_b64 {v(TM+2)}, {v(TM,2)} offset:{L_STAT+slot_off}")
def zero(r, n=4):
    for i in range(n): A(f"v_mov_b32 {v(r+i)}, 0")
def xs_loads(rr, so, fl):
    return [f"buffer_load_dwordx4 {v(XS,4)}, {vXS1}, {srd(rr)}, {so} offen{fl}",
            f"buffer_load_dwordx4 {v(XS+4,4)}, {vXS1}, {srd(rr)}, {so} offen offset:512{fl}",
            f"buffer_load_dword {v(XS+8)}, {vXS2}, {srd(rr)}, {so} offen offset:1024{fl}"]

A.raw(f"; @launch grid=(256,1,1) block=(256,1,1) lds={L_SIZE}")
A.raw('.amdgcn_target "amdgcn-amd-amdhsa--gfx950"')
A.raw(".text")
A.raw(f".globl {NAME}_kernel")
A.raw(".p2align 8")
A.raw(f".type {NAME}_kernel,@function")
A.raw(f"{NAME}_kernel:")
if ST:
    A("s_memrealtime s[100:101]")
    for k in range(14): A(f"s_mov_b64 s[{72+2*k}:{73+2*k}], 0")
A("s_cmp_ge_u32 s2, 256")
A("s_cbranch_scc1 L_end")
for r, off in ((rWS, 96), (rX, 0), (rWQ, 24), (rK, 8), (rV, 16), (rWO, 32)):
    A(f"s_load_dwordx2 s[{r}:{r+1}], s[0:1], {off}")
A(f"v_lshrrev_b32 {v(TM)}, 6, v0")
A(f"v_and_b32 v0, 63, v0")
A(f"v_readfirstlane_b32 {sW}, {v(TM)}")
for r, n in ((rX, 2304), (rWQ, 4718592), (rK, 33554432), (rV, 33554432), (rWS, 268435456), (rWO, 4718592)):
    A(f"s_mov_b32 s{r+2}, {n}"); A(f"s_mov_b32 s{r+3}, 0x20000")
A(f"s_and_b32 {sX}, s2, 7")
A(f"s_lshr_b32 {sJ}, s2, 3")
A("s_mov_b32 s68, 0x00ff00ff"); A("s_mov_b32 s69, 0x00ff00ff")
G, C, B2 = v(TM+3), v(TM+4), v(TM+5)
A(f"v_lshrrev_b32 {G}, 4, v0")
A(f"v_and_b32 {C}, 15, v0")
A(f"v_lshlrev_b32 {vL16}, 4, v0")
A(f"v_lshlrev_b32 {vL128}, 7, v0")
for i in range(4): A(f"v_mov_b32 {v(EM+i)}, -1")
A(f"s_lshr_b32 {t0}, {sJ}, 4"); A(f"s_lshl_b32 {t3}, {sX}, 1"); A(f"s_add_u32 {t0}, {t0}, {t3}")
A(f"s_bfe_u32 {t1}, {sJ}, 0x10003")
A(f"s_and_b32 {t2}, {sJ}, 7")
A(f"s_mul_i32 {sGf}, {sX}, {GB}")
A(f"v_bfe_u32 {B2}, v0, 2, 1")
A(f"v_mul_u32_u24 {vXAm}, 1152, {B2}")
A(f"v_lshl_add_u32 {vXAm}, {G}, 4, {vXAm}")
A(f"s_mul_i32 {t4}, {t2}, 144")
A(f"v_add_u32 {vXAq}, {t4}, {vXAm}")
for i in range(12): A(f"v_mov_b32 {v(XA+i)}, 0x3f803f80")
A(f"v_lshlrev_b32 {v(TM+6)}, 13, {G}")
A(f"v_lshl_add_u32 {v(TM+6)}, {C}, 4, {v(TM+6)}")
A(f"s_mul_i32 {t3}, {t2}, 18"); A(f"s_add_u32 {t3}, {t3}, {sW}"); A(f"s_lshl_b32 {t3}, {t3}, 15")
A(f"s_lshl_b32 {t4}, {t0}, 9"); A(f"s_add_u32 {t3}, {t3}, {t4}"); A(f"s_lshl_b32 {t4}, {t1}, 8"); A(f"s_add_u32 {t3}, {t3}, {t4}")
A(f"s_lshl_b32 {t4}, {sW}, 10"); A(f"s_add_u32 m0, {t4}, {L_WQ}")
A(f"s_lshl_b32 {kv0}, {t1}, 24"); A(f"s_lshl_b32 {t4}, {t0}, 20"); A(f"s_add_u32 {kv0}, {kv0}, {t4}")
A(f"s_lshl_b32 {t4}, {t2}, 15"); A(f"s_add_u32 {kv0}, {kv0}, {t4}")
A(f"s_lshl_b32 {t4}, {sW}, 13"); A(f"s_add_u32 {kv0}, {kv0}, {t4}")
A(f"s_add_u32 {kv0}, {kv0}, {3072*256}"); A(f"s_add_u32 {kv1}, {kv0}, 4096")
A(f"v_xor_b32 {v(TM+7)}, {C}, {G}")
A(f"v_lshlrev_b32 {v(TM+7)}, 4, {v(TM+7)}")
A(f"v_lshl_add_u32 {v(KA)}, {G}, 8, {v(TM+7)}")
for i in range(1, 4): A(f"v_xor_b32 {v(KA+i)}, {64*i}, {v(KA)}")
A(f"s_lshl_b32 {sL}, {sJ}, 2"); A(f"s_add_u32 {sL}, {sL}, {sW}")
A(f"s_lshl_b32 {t4}, {sL}, 9"); A(f"s_add_u32 {t4}, {t4}, {QP_O}")
A(f"v_add_u32 {vQPst}, {t4}, {vL16}")
A(f"s_mov_b32 {t5}, {EP_O}")
A("s_waitcnt lgkmcnt(0)")
pstamp(0)
A("s_mov_b64 exec, 1")
A(f"buffer_load_dword {FN}, {vL16}, {srd(rWS)}, {t5} offen{NT}")
A("s_mov_b64 exec, -1")
def empty_share(base, fl):
    A(f"s_mul_i32 {t5}, {sL}, {CLR}"); A(f"s_add_u32 {t5}, {t5}, {base}")
    A(f"s_mov_b32 exec_hi, {(1 << (CLR//16-32)) - 1}")
    A(f"buffer_store_dwordx4 {v(EM,4)}, {vL16}, {srd(rWS)}, {t5} offen{fl}")
    A("s_mov_b32 exec_hi, -1")
A(f"s_cmp_lg_u32 {sW}, 3")
A("s_cbranch_scc1 L_pro2")
A(f"v_lshrrev_b32 {v(TM+8)}, 5, v0"); A(f"v_and_b32 {v(TM+9)}, 31, v0")
A(f"v_mul_u32_u24 {vXS1}, 1152, {v(TM+8)}"); A(f"v_lshl_add_u32 {vXS2}, {v(TM+9)}, 2, {vXS1}"); A(f"v_lshl_add_u32 {v(TM+10)}, {v(TM+9)}, 3, {vXS1}"); A(f"v_lshl_add_u32 {vXS1}, {v(TM+9)}, 4, {vXS1}")
for l in xs_loads(rX, 0, NT): A(l)
A(f"s_mul_i32 {t5}, {t2}, 144")
A(f"buffer_load_dwordx2 {v(XG,2)}, {v(TM+10)}, {srd(rX)}, {t5} offen{NT}")
A("L_pro2:")
for n in range(5):
    if n == 4:
        A(f"s_cmp_ge_u32 {sW}, 2"); A("s_cbranch_scc1 L_pro1")
    A(f"buffer_load_dwordx4 {v(TM+6)}, {srd(rWQ)}, {t3} offen{NTQ} lds")
    if n < 4: A(f"s_add_u32 {t3}, {t3}, {16*8192}"); A("s_add_u32 m0, m0, 4096")
A("L_pro1:")
empty_share(sGf, '')
A(f"s_lshl_b32 {t4}, {sW}, 13"); A(f"s_add_u32 m0, {t4}, {L_K}")
for i in range(8):
    if i == 4: A(f"s_add_u32 m0, m0, 4096")
    A(f"buffer_load_dwordx4 {v(KA+i%4)}, {srd(rK)}, {kv0 if i < 4 else kv1} offen offset:{1024*(i%4)}{NTK} lds")

def constants():
    A(f"v_mul_u32_u24 {vWrow}, 1152, {G}")
    A(f"v_lshl_add_u32 {vWrow}, {C}, 4, {vWrow}")
    A(f"s_cmp_lt_u32 {sJ}, 18"); A(f"s_cselect_b32 {sRole}, 1, 0")
    A(f"s_cmp_ge_u32 {sJ}, 20"); A(f"s_cselect_b32 {t4}, 2, 0"); A(f"s_cmp_lt_u32 {sW}, 3"); A(f"s_cselect_b32 {t4}, {t4}, 0"); A(f"s_or_b32 {sRole}, {sRole}, {t4}")
    A(f"s_sub_u32 {sTask}, {sJ}, 20"); A(f"s_mul_i32 {sTask}, {sTask}, 3"); A(f"s_add_u32 {sTask}, {sTask}, {sW}"); A(f"s_min_u32 {sTask}, {sTask}, 35")
    A(f"s_lshl_b32 {t3}, {sX}, 4"); A(f"s_and_b32 {t4}, {sJ}, 15"); A(f"s_add_u32 {sWo}, {t3}, {t4}"); A(f"s_mul_i32 {sWo}, {sWo}, {32*1152}")
    A(f"s_lshl_b32 {t4}, {sW}, 8"); A(f"s_add_u32 {sWo}, {sWo}, {t4}")
    for r, n in ((rW1, 5308416), (rW2, 5308416), (rOUT, 2304), (rT1, 9216), (rT2, 1152)):
        A(f"s_mov_b32 s{r+2}, {n}"); A(f"s_mov_b32 s{r+3}, 0x20000")
    A("s_mov_b32 s70, 0xffff0000"); A("s_mov_b32 s71, 0xffff0000")
    A(f"v_lshlrev_b32 {vL4}, 2, v0")
    for i in range(12, 24): A(f"v_mov_b32 {v(XA+i)}, 0x3f803f80")
    A(f"s_lshl_b32 {t4}, {sW}, 13"); A(f"s_add_u32 {t4}, {t4}, {L_K}")
    A(f"v_lshl_add_u32 {v(KA)}, {C}, 8, {v(TM+7)}"); A(f"v_add_u32 {v(KA)}, {t4}, {v(KA)}")
    for i in range(1, 4): A(f"v_xor_b32 {v(KA+i)}, {64*i}, {v(KA)}")
    T_ = [v(TM+8+i) for i in range(10)]
    A(f"v_and_b32 {T_[0]}, 1, v0")
    A(f"v_mul_u32_u24 {vIdxP}, 0xaaaa, {T_[0]}"); A(f"v_add_u32 {vIdxP}, 0x4444, {vIdxP}")
    A(f"v_and_b32 {T_[1]}, 3, v0")
    A(f"v_mul_u32_u24 {vIdxS}, 0x5555, {T_[1]}")
    A(f"v_bfe_u32 {T_[2]}, v0, 4, 1")
    A(f"v_bfe_u32 {T_[3]}, v0, 2, 2")
    A(f"v_bfe_u32 {T_[4]}, v0, 3, 1")
    A(f"v_lshrrev_b32 {T_[5]}, 5, v0")
    A(f"v_and_b32 {T_[8]}, 7, v0")
    A(f"v_and_b32 {T_[9]}, 31, v0")
    A(f"s_lshr_b32 {t3}, {sJ}, 4")
    A(f"s_lshr_b32 {t5}, {sJ}, 3")
    A(f"s_lshl_b32 {t3}, {t3}, 1"); A(f"s_lshr_b32 {t4}, {sW}, 1"); A(f"s_add_u32 {t3}, {t3}, {t4}"); A(f"s_lshl_b32 {t3}, {t3}, 14")
    A(f"s_and_b32 {t4}, {sW}, 1"); A(f"s_lshl_b32 {t4}, {t4}, 10"); A(f"s_add_u32 {t3}, {t3}, {t4}")
    A(f"s_lshl_b32 {t4}, {t1}, 8"); A(f"s_add_u32 {t3}, {t3}, {t4}"); A(f"s_add_u32 {t3}, {t3}, {QP_O}")
    A(f"v_lshl_add_u32 {vQPg}, {T_[5]}, 4, {T_[2]}"); A(f"v_lshlrev_b32 {vQPg}, 9, {vQPg}"); A(f"v_lshl_add_u32 {vQPg}, {C}, 4, {vQPg}"); A(f"v_add_u32 {vQPg}, {t3}, {vQPg}")
    A(f"v_add_u32 {vQPg2}, 4096, {vQPg}")
    A(f"s_and_b32 {t3}, {sW}, 1"); A(f"s_lshl_b32 {t3}, {t3}, 8"); A(f"s_lshr_b32 {t4}, {sW}, 1"); A(f"s_lshl_b32 {t4}, {t4}, 7"); A(f"s_add_u32 {t3}, {t3}, {t4}")
    A(f"v_bfe_u32 {T_[6]}, v0, 3, 2"); A(f"v_bfe_u32 {T_[7]}, v0, 1, 2")
    A(f"v_lshlrev_b32 {vQTw}, 5, {T_[6]}"); A(f"v_lshl_add_u32 {vQTw}, {T_[0]}, 4, {vQTw}"); A(f"v_lshl_add_u32 {vQTw}, {T_[7]}, 2, {vQTw}")
    A(f"v_lshl_add_u32 {vQTw}, {T_[5]}, 1, {vQTw}"); A(f"v_add_u32 {vQTw}, {t3}, {vQTw}")
    A(f"v_lshlrev_b32 {vQTr}, 5, {G}"); A(f"v_lshl_add_u32 {vQTr}, {T_[4]}, 7, {vQTr}"); A(f"v_lshl_add_u32 {vQTr}, {T_[0]}, 4, {vQTr}")
    A(f"v_mul_u32_u24 {vOTr}, 640, {T_[4]}"); A(f"v_lshl_add_u32 {vOTr}, {G}, 5, {vOTr}"); A(f"v_lshl_add_u32 {vOTr}, {B2}, 4, {vOTr}")
    A(f"s_mul_i32 {t3}, {sW}, 1280"); A(f"s_add_u32 {t3}, {t3}, {L_PT}")
    A(f"v_add_u32 {vPTr}, {t3}, {vOTr}"); A(f"v_add_u32 {vOTr}, {L_OT}, {vOTr}")
    A(f"v_bfe_u32 {T_[6]}, v0, 1, 4")
    A(f"v_mul_u32_u24 {vPTw}, 640, {T_[5]}"); A(f"v_lshl_add_u32 {vPTw}, {T_[6]}, 5, {vPTw}"); A(f"v_lshl_add_u32 {vPTw}, {T_[0]}, 3, {vPTw}"); A(f"v_add_u32 {vPTw}, {t3}, {vPTw}")
    A(f"v_lshrrev_b32 {vHPr}, 1, v0"); A(f"v_lshlrev_b32 {vHPr}, 4, {vHPr}"); A(f"v_lshl_add_u32 {vHPr}, {T_[0]}, 2, {vHPr}"); A(f"v_add_u32 {vHPr}, {L_HP}, {vHPr}")
    A(f"s_lshl_b32 {t3}, {sW}, 9"); A(f"s_add_u32 {t3}, {t3}, {L_HP}"); A(f"v_add_u32 {vHPw}, {t3}, {vL16}")
    A(f"s_lshl_b32 {t3}, {t5}, 9"); A(f"s_add_u32 {t3}, {t3}, {ST_O}")
    A(f"s_lshl_b32 {t4}, {t2}, 2"); A(f"s_add_u32 {t4}, {t4}, {sW}"); A(f"s_lshl_b32 {t4}, {t4}, 2"); A(f"s_add_u32 {t4}, {t4}, {t3}")
    A(f"v_lshlrev_b32 {vSTst}, 8, {T_[5]}"); A(f"v_lshl_add_u32 {vSTst}, {T_[0]}, 7, {vSTst}"); A(f"v_add_u32 {vSTst}, {t4}, {vSTst}")
    A(f"s_lshl_b32 {t3}, {t1}, 1"); A(f"s_lshr_b32 {t4}, {sW}, 1"); A(f"s_add_u32 {t3}, {t3}, {t4}"); A(f"s_lshl_b32 {t3}, {t3}, 9"); A(f"s_add_u32 {t3}, {t3}, {ST_O}")
    A(f"s_lshr_b32 {t4}, {t2}, 2"); A(f"s_lshl_b32 {t4}, {t4}, 8"); A(f"s_add_u32 {t3}, {t3}, {t4}")
    A(f"v_lshrrev_b32 {T_[7]}, 3, v0")
    A(f"v_lshl_add_u32 {vSTg}, {T_[7]}, 4, {t3}")
    A(f"s_and_b32 {t4}, {sW}, 1"); A(f"s_lshl_b32 {t4}, {t4}, 3"); A(f"v_add_u32 {vSTm}, {t4}, {vSTg}")
    A(f"s_lshr_b32 {t3}, {sJ}, 4"); A(f"s_lshl_b32 {t3}, {t3}, 15"); A(f"s_lshl_b32 {t4}, {t1}, 11"); A(f"s_add_u32 {t3}, {t3}, {t4}")
    A(f"s_lshl_b32 {t4}, {sW}, 9"); A(f"s_add_u32 {t3}, {t3}, {t4}"); A(f"s_lshl_b32 {t4}, {t2}, 6"); A(f"s_add_u32 {t3}, {t3}, {t4}")
    A(f"v_lshlrev_b32 {T_[6]}, 4, {T_[1]}"); A(f"v_lshl_add_u32 {T_[6]}, {T_[2]}, 3, {T_[6]}")
    A(f"v_lshl_add_u32 {vOPst}, {T_[5]}, 2, {T_[3]}"); A(f"v_lshl_add_u32 {vOPst}, {vOPst}, 12, {T_[6]}"); A(f"v_add_u32 {vOPst}, {t3}, {vOPst}")
    A(f"s_and_b32 {t3}, {sJ}, 15"); A(f"s_lshl_b32 {t3}, {t3}, 12"); A(f"s_lshl_b32 {t4}, {sW}, 10"); A(f"s_add_u32 {t3}, {t3}, {t4}"); A(f"v_lshl_add_u32 {vOPg}, v0, 3, {t3}")
    A(f"s_lshr_b32 {t3}, {sW}, 1"); A(f"s_mul_i32 {t3}, {t3}, 640"); A(f"s_and_b32 {t4}, {sW}, 1"); A(f"s_lshl_b32 {t4}, {t4}, 1"); A(f"s_add_u32 {t3}, {t3}, {t4}"); A(f"s_add_u32 {t3}, {t3}, {L_OT}")
    A(f"v_mul_u32_u24 {vOTw}, 20, {T_[4]}"); A(f"v_lshl_add_u32 {vOTw}, {T_[8]}, 6, {vOTw}"); A(f"v_lshl_add_u32 {vOTw}, {T_[5]}, 5, {vOTw}")
    A(f"v_lshl_add_u32 {vOTw}, {T_[2]}, 3, {vOTw}"); A(f"v_add_u32 {vOTw}, {t3}, {vOTw}")
    A(f"s_mul_i32 {t3}, {sW}, {4*1152}"); A(f"s_lshl_b32 {t4}, {sJ}, 6"); A(f"s_add_u32 {t3}, {t3}, {t4}"); A(f"s_add_u32 {t3}, {t3}, {Y_O}")
    A(f"v_mul_u32_u24 {vMst}, 18, {T_[5]}"); A(f"v_add_u32 {vMst}, {vMst}, {T_[3]}"); A(f"v_mul_u32_u24 {vMst}, 1152, {vMst}")
    A(f"v_add3_u32 {vMst}, {vMst}, {T_[6]}, {t3}")
    A(f"v_subrev_u32 {vYst}, 1024, {vMst}")
    A(f"v_mul_u32_u24 {vXS1}, 1152, {T_[5]}"); A(f"v_lshl_add_u32 {vXS2}, {T_[9]}, 2, {vXS1}"); A(f"v_lshl_add_u32 {vXS1}, {T_[9]}, 4, {vXS1}")
    A(f"s_lshl_b32 {t3}, {t1}, 3"); A(f"s_add_u32 {t3}, {t3}, {L_STAT}"); A(f"v_mov_b32 {vSTATr}, {t3}")
    A(f"s_mul_i32 {t4}, {sW}, 384"); A(f"v_add_u32 {vXAm}, {t4}, {vXAm}")
    A(f"s_mul_i32 {t4}, {sX}, 18"); A(f"s_add_u32 {t4}, {t4}, {sJ}"); A(f"s_lshl_b32 {t5}, {t4}, 6")
    A(f"v_lshl_add_u32 {vB1}, {T_[9]}, 1, {t5}")
    A(f"s_mul_i32 {t4}, {sTask}, 1152"); A(f"s_add_u32 {t4}, {t4}, {Y_O}"); A(f"v_lshl_add_u32 {vRg}, v0, 3, {t4}")
    A(f"s_sub_u32 {t4}, {sL}, 80"); A(f"s_and_b32 {t4}, {t4}, 63"); A(f"s_lshl_b32 {t4}, {t4}, 16")
    A(f"s_lshl_b32 {t5}, {sX}, 10"); A(f"s_add_u32 {t5}, {t5}, {t4}"); A(f"v_lshl_add_u32 {vXPg}, v0, 3, {t5}")
    A(f"s_lshl_b32 {t5}, {sX}, 7"); A(f"s_add_u32 {t4}, {t4}, {t5}"); A(f"v_lshl_add_u32 {vXPst}, {T_[8]}, 4, {t4}")
    A(f"v_lshrrev_b32 {T_[7]}, 3, v0"); A(f"v_lshl_add_u32 {vXPst}, {T_[7]}, 10, {vXPst}")
    A(f"v_lshl_add_u32 {T_[7]}, {C}, 1, {T_[5]}")
    A(f"s_lshl_b32 {t4}, {sTask}, 6"); A(f"v_lshl_add_u32 {vZo}, {T_[7]}, 1, {t4}")
    A(f"v_add_u32 {vZst}, {Z1_O}, {vZo}")
    A(f"s_and_b32 {t5}, {sTask}, 7"); A(f"s_cmp_eq_u32 {t5}, {sX}"); A(f"s_cselect_b32 {t5}, 4, 0"); A(f"s_or_b32 {sRole}, {sRole}, {t5}")
    A(f"s_cmp_ge_u32 {sTask}, 18"); A(f"s_cselect_b32 {t5}, 1152, 0")
    A(f"v_subrev_u32 {vB2}, {t5}, {vZo}")

def constants1():
    A(f"v_and_b32 {v(TM+8)}, 1, v0")
    A(f"v_mul_u32_u24 {vIdxD}, 0x5555, {v(TM+8)}"); A(f"v_add_u32 {vIdxD}, 0x8888, {vIdxD}")
    A(f"v_mov_b32 {vOnes}, 0x3f803f80")
    A(f"s_lshl_b32 {t3}, {sW}, 6"); A(f"s_add_u32 {t3}, {t3}, {L_WQ}")
    A(f"v_lshlrev_b32 {vCq}, 10, {G}"); A(f"v_lshl_add_u32 {vCq}, {C}, 2, {vCq}"); A(f"v_add_u32 {vCq}, {t3}, {vCq}")
    for i in range(16, 24): A(f"v_accvgpr_write_b32 {a(aWQ+i)}, 0")
    zero(D0, 8)
    A(f"ds_write_b128 {v(D0)}, {v(EM,4)} offset:{L_STAT+16}")
    A(f"s_cmp_lg_u32 {sW}, 3")
    A("s_cbranch_scc1 L_c1")
    A(f"s_waitcnt vmcnt({4+1+8})")
    stats(0, False)
    for i in range(2):
        lo, hi = v(TM+8), v(TM+9)
        A(f"v_lshlrev_b32 {lo}, 16, {v(XG+i)}"); A(f"v_and_b32 {hi}, 0xffff0000, {v(XG+i)}")
        A(f"v_sub_f32 {lo}, {lo}, {S_}"); A(f"v_sub_f32 {hi}, {hi}, {S_}")
        A(f"v_cvt_pk_bf16_f32 {v(XG+i)}, {lo}, {hi}")
        A(f"v_lshlrev_b32 {lo}, 16, {v(XG+i)}"); A(f"v_and_b32 {hi}, 0xffff0000, {v(XG+i)}")
        A(f"v_mul_f32 {lo}, {lo}, {Q_}"); A(f"v_mul_f32 {hi}, {hi}, {Q_}")
        A(f"v_cvt_pk_bf16_f32 {v(XG+i)}, {lo}, {hi}")
    A(f"v_lshrrev_b32 {v(TM+8)}, 5, v0"); A(f"v_mul_u32_u24 {v(TM+8)}, 144, {v(TM+8)}"); A(f"v_and_b32 {v(TM+9)}, 31, v0"); A(f"v_lshl_add_u32 {v(TM+8)}, {v(TM+9)}, 3, {v(TM+8)}")
    A("s_mov_b32 exec_lo, 0x3ffff"); A("s_mov_b32 exec_hi, 0x3ffff")
    A(f"ds_write_b64 {v(TM+8)}, {v(XG,2)} offset:{L_X}")
    A("s_mov_b64 exec, -1")
    A("L_c1:")
    A(f"v_mul_u32_u24 {v(TM+10)}, 144, {B2}"); A(f"v_lshl_add_u32 {v(TM+10)}, {G}, 4, {v(TM+10)}")
    A(f"s_lshl_b32 {t3}, {sW}, 11"); A(f"v_add_u32 {v(TM+8)}, {t3}, {vL16}")
    A(f"ds_write_b128 {v(TM+8)}, {v(D1,4)} offset:1024"); A(f"ds_write_b128 {v(TM+8)}, {v(D1,4)} offset:2048")

fl_load = ["s_mov_b32 exec_hi, 0", f"buffer_load_dwordx4 {v(FG,4)}, {vL16}, {srd(rWS)}, {sXoff} offen sc1", "s_mov_b32 exec_hi, -1"]
qp_store = f"buffer_store_dwordx4 {v(D0,4)}, {vQPst}, {srd(rWS)}, {{so}} offen{{fl}}"
def qg(n): return [f"buffer_load_dwordx{n} {v(QG+4*p,n)}, {vQPg if p < 2 else vQPg2}, {srd(rWS)}, {sGp} offen offset:{2048*(p%2)} sc1" for p in range(4)]
qg4, qg2 = qg(4), qg(2)
pstamp(3)
for r, off in ((rW1, 48), (rW2, 64), (rOUT, 80), (rT1, 56), (rT2, 72)):
    A(f"s_load_dwordx2 s[{r}:{r+1}], s[0:1], {off}")
if args.code:
    A(f"s_cmp_ge_u32 {sL}, 2"); A("s_cbranch_scc1 L_nc")
    A("s_getpc_b64 s[66:67]")
    A("L_pc:")
    A(f"s_lshl_b32 {t3}, {sL}, 13"); A(f"v_add_u32 {v(TM+8)}, {t3}, {vL128}")
    A(f"v_min_u32 {v(TM+8)}, L_codeend-L_pc-4, {v(TM+8)}")
    A(f"global_load_dword {DUM}, {v(TM+8)}, s[66:67]")
    A("L_nc:")
constants1()
A(f"s_mov_b32 {sTO}, 0x40000"); A(f"s_mov_b32 {sMode}, 0"); A(f"s_mov_b32 {sGp}, {sGf}")
cnt = [8]
mark = {'K': 8}
def vm(s): A(s); cnt[0] += 1
A(f"s_lshl_b32 {t4}, {sL}, 9"); A(f"s_add_u32 {t4}, {t4}, {sGf}"); A(f"s_add_u32 {t4}, {t4}, {QP_O}")
A(f"s_add_u32 {sXoff}, {sGf}, {FF_O}")
A("s_mov_b64 exec, 15")
vm(f"buffer_load_dword {DUM}, {vL128}, {srd(rWS)}, {t4} offen sc1{NT}")
vm(f"buffer_load_dword {DUM}, {vL128}, {srd(rWS)}, {sXoff} offen sc1{NT}")
A("s_mov_b64 exec, -1")
def hookQ():
    A(f"s_lshl_b32 {t4}, {sL}, 2"); A(f"s_add_u32 {t4}, {t4}, {sXoff}")
    A(f"s_getreg_b32 {t3}, hwreg(HW_REG_XCC_ID)"); A(f"s_lshl_b32 {t3}, {t3}, 28"); A(f"s_or_b32 {t3}, {t3}, 1")
    A(f"s_waitcnt vmcnt({cnt[0]}) lgkmcnt(0)")
    A("s_barrier")
    pstamp(2)
    for l in exec_xa(): A(l)
    for i in range(3):
        if i == 2: A("s_mov_b64 exec, 0x33")
        A(f"ds_read_b128 {v(XA+4*i,4)}, {v(TM+10)} offset:{L_X+64*i}")
    A("s_mov_b64 exec, -1")
    for i in range(2):
        for vv in range(0, 8, 2):
            row = 32*i + 16*(vv >> 2) + (vv & 3)
            A(f"ds_read2st64_b32 {a(aWQ+8*i+vv,2)}, {vCq} offset0:{row} offset1:{row+1}")
    A("s_mov_b32 exec_hi, 0")
    for vv in (0, 2): A(f"ds_read2st64_b32 {a(aWQ+16+vv,2)}, {vCq} offset0:{64+vv} offset1:{65+vv}")
    A("s_mov_b32 exec_hi, -1")
    A(f"v_readfirstlane_b32 {sFlag}, {FN}")
    A(f"s_add_u32 {sFlag}, {sFlag}, 0x0e377902"); A(f"s_and_b32 {sFlag}, {sFlag}, 0x0fffffff"); A(f"s_or_b32 {sFlag}, {sFlag}, {t3}")
    A(f"v_mov_b32 {FN}, {sFlag}")
    A("s_mov_b64 exec, 1")
    vm(f"buffer_store_dword {FN}, {vL16}, {srd(rWS)}, {t4} offen")
    A("s_mov_b64 exec, -1")
    A(f"v_and_b32 {vTag}, 0xff, {FN}"); A(f"s_movk_i32 {t4}, 0xff")
    A("s_waitcnt lgkmcnt(0)")
    for i in range(3): sm(D0, XA+4*i, aWQ+8*i, vIdxD)
    for i in range(4): A(f"v_bfi_b32 {v(D0+i)}, {t4}, {vTag}, {v(D0+i)}")
    A("s_mov_b32 exec_hi, 0")
    vm(qp_store.format(so=sGf, fl=''))
    A("s_mov_b32 exec_hi, -1")
    pstamp(1)
for k in range(9):
    if k == args.pQ: hookQ()
    if k == 8 - args.vw: mark['V'] = cnt[0]
    if k < 8: vm(f"buffer_load_dwordx4 {a(aV+4*k,4)}, {vL16}, {srd(rV)}, {kv0 if k < 4 else kv1} offen offset:{1024*(k%4)}{NTV}")
    if k == 7: pstamp(9)
TT = v(TM+4)
def slots_touch():
    A(f"s_lshl_b32 {t1}, {sJ}, 2"); A(f"s_add_u32 {t1}, {t1}, {sW}")
    A(f"s_mul_i32 {t3}, {t1}, 896"); A(f"s_add_u32 {t3}, {t3}, {sGf}"); A(f"s_add_u32 {t3}, {t3}, {Y_O}")
    A("s_mov_b64 exec, 0x7f")
    A(f"buffer_load_dword {DUM}, {vL128}, {srd(rWS)}, {t3} offen sc1{NT}")
    A("s_mov_b64 exec, -1")
assert Y_O + 64 * 896 >= Z3_O + 2304
def w1_touch():
    A(f"s_lshl_b32 {t1}, {sJ}, 2"); A(f"s_add_u32 {t1}, {t1}, {sW}")
    A(f"s_mul_i32 {t4}, {sX}, 576"); A(f"s_add_u32 {t4}, {t4}, {t1}"); A(f"s_add_u32 {t4}, {t4}, 512"); A(f"s_mul_i32 {t4}, {t4}, 1152")
    A(f"s_mul_i32 {t1}, {t1}, {9*9216}")
    A(f"s_mul_i32 {t3}, {sX}, 1152"); A(f"s_add_u32 {t1}, {t1}, {t3}"); A(f"s_add_u32 {t3}, {t1}, {5*9216}")
    A(f"v_mul_u32_u24 {TT}, 57, v0"); A(f"v_lshrrev_b32 {TT}, 9, {TT}"); A(f"v_mul_u32_u24 {TT}, {9216-1152}, {TT}"); A(f"v_add_u32 {TT}, {TT}, {vL128}")
    A("s_mov_b32 exec_hi, 0x1fff")
    A(f"buffer_load_dword {DUM}, {TT}, {srd(rW1)}, {t1} offen{NTM}")
    A("s_mov_b32 exec_hi, 15")
    A(f"buffer_load_dword {DUM}, {TT}, {srd(rW1)}, {t3} offen{NTM}")
    A("s_mov_b64 exec, 0x1ff")
    A(f"buffer_load_dword {DUM}, {vL128}, {srd(rW2)}, {t4} offen{NTM}")
    A("s_mov_b64 exec, -1")
def w2_loads():
    l1 = A.newlabel('L_w2')
    A(f"s_mul_i32 {t0}, {sX}, 18"); A(f"s_add_u32 {t0}, {t0}, {sJ}"); A(f"s_mul_i32 {t0}, {t0}, {32*1152}")
    A(f"s_lshl_b32 {t1}, {sW}, 8"); A(f"s_add_u32 {t1}, {t1}, {t0}")
    for i in range(8):
        A(f"buffer_load_dwordx4 {a(aW2+4*i,4)}, {vWrow}, {srd(rW2)}, {t1} offen{NT2}")
        if i < 7: A(f"s_add_u32 {t1}, {t1}, 4608")
    A(f"s_cmp_lg_u32 {sW}, 3")
    A(f"s_cbranch_scc1 {l1}")
    A(f"s_mov_b64 exec, {mLO8}")
    for i in range(8):
        A(f"buffer_load_dwordx4 {a(aW2t+4*i,4)}, {vWrow}, {srd(rW2)}, {t0} offen offset:1024{NT2}")
        if i < 7: A(f"s_add_u32 {t0}, {t0}, 4608")
    A("s_mov_b64 exec, -1")
    A(f"{l1}:")
def wo_loads(k0, k1, with_tail):
    for k in range(k0, k1):
        A(f"buffer_load_dwordx4 {a(aWO+4*k,4)}, {vWrow}, {srd(rWO)}, {sWo} offen{NTO}")
        A(f"s_add_u32 {sWo}, {sWo}, 4608")
    if with_tail:
        l1 = A.newlabel('L_wt')
        A(f"s_cmp_lg_u32 {sW}, 3")
        A(f"s_cbranch_scc1 {l1}")
        A(f"s_mov_b64 exec, {mLO8}")
        for i in range(7, -1, -1):
            A(f"s_sub_u32 {sWo}, {sWo}, 4608")
            A(f"buffer_load_dwordx4 {a(aWOt+4*i,4)}, {vWrow}, {srd(rWO)}, {sWo} offen offset:256{NTO}")
        A("s_mov_b64 exec, -1")
        A(f"{l1}:")
constants()
pstamp(4)
stamp()
A(f"s_waitcnt vmcnt({cnt[0]-mark['K']})")
for T in range(2):
    for q in range(4): A(f"ds_read_b128 {a(aK+16*T+4*q,4)}, {v(KA+q)} offset:{4096*T}")
A(f"s_mov_b32 {sXPo}, {XP_O}")
A(f"s_cmp_lt_u32 {sJ}, 16")
A("s_cbranch_scc1 L_g1n")
A(f"v_readfirstlane_b32 {t4}, {vOPg}"); A(f"v_readfirstlane_b32 {t5}, {vSTg}")
A(f"s_add_u32 {t4}, {t4}, {sGf}"); A(f"s_add_u32 {t5}, {t5}, {sGf}")
A("s_mov_b64 exec, 0xff")
A(f"buffer_load_dword {DUM}, {vL128}, {srd(rWS)}, {t4} offen sc1{NT}")
A("s_mov_b64 exec, 3")
A(f"buffer_load_dword {DUM}, {vL128}, {srd(rWS)}, {t5} offen sc1{NT}")
A("s_mov_b64 exec, -1")
A(f"buffer_load_ushort {vXres}, {vZo}, {srd(rX)}, 0 offen{NT}")
A(f"buffer_load_ushort {vB2}, {vB2}, {srd(rT2)}, 0 offen{NT}")
wo_loads(0, 8, True)
A("s_branch L_g1o")
A("L_g1n:")
if 's' in args.early: slots_touch()
if '1' in args.early: w1_touch()
if '2' in args.early: w2_loads()
A("L_g1o:")
pstamp(6)
A(f"s_waitcnt vmcnt({args.vw})")
if ST and not args.pro and ONLY is None: A(f"s_memrealtime s[74:75]")
pstamp(5)
def flags_diff():
    A(f"v_xor_b32 {CK}, {sFlag}, {v(FG)}")
    for i in range(1, 4): A(f"v_bitop3_b32 {CK}, {CK}, {v(FG+i)}, {sFlag} bitop3:0xf6")
st_rd = f"ds_read_b64 {v(TM,2)}, {vSTATr}"
A("L_g4:")
for l in fl_load + qg4: A(l)
A("s_waitcnt vmcnt(0)")
pstamp(7)
flags_diff()
A(f"v_cmp_ne_u32 vcc, 0, {CK}")
A("s_cmp_lg_u32 vcc_lo, 0")
if args.forcefb: A("s_cmp_eq_u32 0, 0")
A("s_cbranch_scc1 L_af2")
A(f"s_mov_b32 {sMode}, 0")
A("L_g2:")
for i in range(16): A(f"v_xor_b32 {v(QG+i)}, {vTag}, {v(QG+i)}")
A(f"v_or3_b32 {CK}, {v(QG)}, {v(QG+1)}, {v(QG+2)}")
for i in range(3, 15, 2): A(f"v_or3_b32 {CK}, {CK}, {v(QG+i)}, {v(QG+i+1)}")
A(f"v_or_b32 {CK}, {CK}, {v(QG+15)}")
A(f"v_and_b32 {CK}, 0xff, {CK}")
A(f"v_cmp_ne_u32 vcc, 0, {CK}")
A("s_cbranch_vccnz L_g5")
A("L_g3:")
A(f"s_mov_b32 {sL}, 0")
zero(D0)
A(f"v_mov_b32 {v(TM)}, 0"); A(f"v_mov_b32 {v(TM+1)}, 1.0")
tail.append("L_g5:\n" + timeout("L_g4", "L_g3"))
pstamp(8)
A(f"v_add_f32 {v(TM+2)}, {v(QG+2)}, {v(QG+6)}"); A(f"v_add_f32 {v(TM+3)}, {v(QG+3)}, {v(QG+7)}")
A(f"v_add_f32 {v(TM+4)}, {v(QG+10)}, {v(QG+14)}"); A(f"v_add_f32 {v(TM+5)}, {v(QG+11)}, {v(QG+15)}")
A(f"v_add_f32 {v(TM+2)}, {v(TM+2)}, {v(TM+4)}"); A(f"v_add_f32 {v(TM+3)}, {v(TM+3)}, {v(TM+5)}")
A(f"v_permlane32_swap_b32 {v(TM+2)}, {v(TM+3)}")
A(f"v_add_f32 {vCq}, {v(TM+2)}, {v(TM+3)}")
A("s_branch L_qfin")

A("L_layer:")
zero(D0, 8)
def q_pub():
    A(f"v_and_b32 {v(D0)}, -2, {v(D0)}"); A(f"v_and_b32 {v(D0+1)}, -2, {v(D0+1)}")
    A("s_mov_b32 exec_hi, 0")
    pub(f"buffer_store_dwordx2 {v(D0,2)}, {vQPst}, {srd(rWS)}, {{so}} offen{{fl}}")
    A("s_mov_b32 exec_hi, -1")
A(f"s_cmp_eq_u32 {sW}, 3")
A("s_cbranch_scc1 L_q3")
poll_proj(vXAq, sXoff, 3, aWQ, True)
q_pub()
nst[0] = 1
stamp()
zero(D0)
qregs = [v(QG+4*p+i) for p in range(4) for i in range(2)]
qchk1 = [f"v_or3_b32 {CK}, {qregs[0]}, {qregs[1]}, {qregs[2]}", f"v_or3_b32 {CK}, {CK}, {qregs[3]}, {qregs[4]}", f"v_or3_b32 {CK}, {CK}, {qregs[5]}, {qregs[6]}",
         f"v_bitop3_b32 {CK}, {CK}, {qregs[7]}, 1 bitop3:0xa8", f"v_cmp_ne_u32 vcc, 0, {CK}"]
poll(qg2, qregs, site='q', chk=qchk1)
A("s_branch L_q4")
A("L_q3:")
poll(xs_loads(rWS, sXoff, ' sc1') + xa_loads(rWS, vXAq, sXoff, 3, ' sc1', True), [v(XS+i) for i in range(9)], site='z')
if 'z' in args.p2: A("s_waitcnt vmcnt(0)")
for i in range(3): sm(D0, XA+4*i, aWQ+8*i, vIdxD)
stats(16, early=q_pub, late=lambda: [A(l) for l in qg2])
nst[0] = 1
stamp()
zero(D0)
poll(qg2, qregs, primed=True, chk=qchk1)
A("L_q4:")
A(f"ds_read_b64 {v(TM,2)}, {vSTATr} offset:16")
A("L_qfin:")
stamp()
A(f"v_add_f32 {v(TM+2)}, {v(QG)}, {v(QG+4)}"); A(f"v_add_f32 {v(TM+3)}, {v(QG+1)}, {v(QG+5)}")
A(f"v_add_f32 {v(TM+4)}, {v(QG+8)}, {v(QG+12)}"); A(f"v_add_f32 {v(TM+5)}, {v(QG+9)}, {v(QG+13)}")
A(f"v_add_f32 {v(TM+2)}, {v(TM+2)}, {v(TM+4)}"); A(f"v_add_f32 {v(TM+3)}, {v(TM+3)}, {v(TM+5)}")
A(f"v_permlane32_swap_b32 {v(TM+2)}, {v(TM+3)}")
A(f"v_add_f32 {v(TM+2)}, {v(TM+2)}, {v(TM+3)}")
A("L_q5:")
A("s_waitcnt lgkmcnt(0)")
A(f"v_cmp_eq_u32 vcc, -1, {v(TM+1)}")
A("s_cbranch_vccnz L_q6")
A("L_q7:")
tail.append(f"L_q6:\nds_read_b64 {v(TM,2)}, {vSTATr} offset:16\n" + timeout("L_q5", "L_q7"))
A(f"v_fma_f32 {v(TM+2)}, -{v(TM)}, {vCq}, {v(TM+2)}")
A(f"v_mul_f32 {v(TM+2)}, {v(TM+2)}, {v(TM+1)}")
A(f"v_cvt_pk_bf16_f32 {v(TM+2)}, {v(TM+2)}, {v(TM+2)}")
A(f"ds_write_b16 {vQTw}, {v(TM+2)} offset:{L_QT}")
A("s_mov_b32 vcc_lo, 0xaaaaaaaa"); A("s_mov_b32 vcc_hi, 0xaaaaaaaa")
zero(DP)
A("s_waitcnt lgkmcnt(0)")
A("s_barrier")
A(f"ds_read_b128 {v(AO,4)}, {vQTr} offset:{L_QT}")
A(f"ds_read_b128 {v(AO+4,4)}, {vQTr} offset:{L_QT+256}")
if args.mid:
    A(f"s_lshr_b32 {t0}, {sJ}, 4"); A(f"s_or_b32 {t0}, {t0}, {sL}")
    A("s_cbranch_scc1 L_mid")
    if 's' in args.mid: slots_touch()
    if '1' in args.mid: w1_touch()
    if '2' in args.mid: w2_loads()
    A("L_mid:")
A(f"s_waitcnt lgkmcnt({lg(1)})")
sm(D0, AO, aK, vIdxP); sm(D1, AO, aK+16, vIdxP)
A("s_waitcnt lgkmcnt(0)")
sm(D0, AO+4, aK+8, vIdxP); sm(D1, AO+4, aK+24, vIdxP)
SC, MX, P_, LS, TT = v(TM), v(TM+1), v(TM+2), v(TM+3), v(TM+4)
A(f"v_add_f32 {SC}, {v(D0)}, {v(D0+1)}")
A(f"v_add_f32 {TT}, {v(D1)}, {v(D1+1)}")
A(f"v_cndmask_b32 {SC}, {SC}, {TT}, {mROW}")
rbf(SC, SC)
A(f"v_mul_f32 {SC}, {f32(128 ** -0.5)}, {SC}")
rbf(SC, SC)
A(f"v_mul_f32 {SC}, {f32(1.4426950408889634)}, {SC}")
zero(D0, 2)
A(f"v_max_f32_dpp {MX}, {SC}, {SC} row_ror:8 row_mask:0xf bank_mask:0xf")
for n, k in enumerate((4, 2, 1)):
    zero(D0+2+2*n, 2)
    if k == 1: A(f"v_max_f32_dpp {TT}, {MX}, {MX} row_ror:{k} row_mask:0xf bank_mask:0xf")
    A(f"v_max_f32_dpp {MX}, {MX}, {MX} row_ror:{k} row_mask:0xf bank_mask:0xf")
A(f"v_permlane16_swap_b32 {MX}, {TT}")
A(f"v_max_f32 {MX}, {MX}, {TT}")
A(f"v_sub_f32 {P_}, {SC}, {MX}")
A(f"v_exp_f32 {P_}, {P_}")
A(f"v_cvt_pk_bf16_f32 {TT}, {P_}, 0")
A(f"ds_write2_b32 {vPTw}, {TT}, {TT} offset1:5")
for i in range(4): A(f"ds_read_b128 {v(AO+4*i,4)}, {vPTr} offset:{128*i}")
A(f"v_add_f32_dpp {LS}, {P_}, {P_} row_ror:8 row_mask:0xf bank_mask:0xf")
for k in (4, 2, 1): A(f"v_add_f32_dpp {LS}, {LS}, {LS} row_ror:{k} row_mask:0xf bank_mask:0xf")
A(f"v_mov_b32 {SC}, {LS}")
A(f"v_permlane16_swap_b32 {LS}, {SC}")
A(f"v_add_f32 {LS}, {LS}, {SC}")
A(f"v_cndmask_b32 {SC}, {MX}, {LS}, vcc")
A("s_mov_b32 exec_lo, 3"); A("s_mov_b32 exec_hi, 3")
pub(f"buffer_store_dword {SC}, {vSTst}, {srd(rWS)}, {{so}} offen{{fl}}")
A("s_mov_b64 exec, -1")
for i in range(4):
    A(f"s_waitcnt lgkmcnt({lg(3-i)})")
    sm(DP, AO+4*i, aV+8*i, vIdxS)
def pack4(d):
    A(f"v_cvt_pk_bf16_f32 {v(d)}, {v(d)}, {v(d+1)}"); A(f"v_cvt_pk_bf16_f32 {v(d+1)}, {v(d+2)}, {v(d+3)}")
pack4(DP)
pub(f"buffer_store_dwordx2 {v(DP,2)}, {vOPst}, {srd(rWS)}, {{so}} offen{{fl}}")
stamp()
E = TM + 5
R = TM + 12
def tile_out(wb, tb, vst, drain):
    l1 = A.newlabel('L_t'); l2 = A.newlabel('L_t')
    for i in range(4):
        A(f"s_waitcnt lgkmcnt({lg(3-i)})")
        sm(D0, AO+4*i, wb+8*i, vIdxS)
    A(f"s_cmp_lg_u32 {sW}, 3")
    A(f"s_cbranch_scc1 {l1}")
    for i in range(4): sm(D1, AO+4*i, tb+8*i, vIdxS)
    A(f"{l1}:")
    A("s_waitcnt vmcnt(0)" if drain else "s_nop 0")
    A("s_nop 4")
    pack4(D0)
    pub(f"buffer_store_dwordx2 {v(D0,2)}, {vst}, {srd(rWS)}, {{so}} offen{{fl}}")
    A(f"s_cmp_lg_u32 {sW}, 3")
    A(f"s_cbranch_scc1 {l2}")
    pack4(D1)
    A(f"s_mov_b64 exec, {mLO8}")
    pub(f"buffer_store_dwordx2 {v(D1,2)}, {v(E+2)}, {srd(rWS)}, {{so}} offen{{fl}}")
    A("s_mov_b64 exec, -1")
    A(f"{l2}:")
A(f"s_cmp_lt_u32 {sJ}, 16")
A("s_cbranch_scc1 L_mlp")
op_load = [f"buffer_load_dwordx2 {v(OG+2*i,2)}, {vOPg}, {srd(rWS)}, {sGp} offen offset:{512*i} sc1" for i in range(2)]
A(f"v_add_u32 {v(E+6)}, {4*1152}, {vYst}")
poll([f"buffer_load_dwordx4 {v(SG,4)}, {vSTg}, {srd(rWS)}, {sGp} offen sc1",
      f"buffer_load_dwordx4 {v(SG+4,4)}, {vSTg}, {srd(rWS)}, {sGp} offen offset:128 sc1",
      f"buffer_load_dwordx2 {v(SG+8,2)}, {vSTm}, {srd(rWS)}, {sGp} offen sc1"], [v(SG+i) for i in range(10 if 's' in args.p2 else 8)], site='s')
for l in op_load: A(l)
A(f"v_max3_f32 {MX}, {v(SG)}, {v(SG+1)}, {v(SG+2)}")
A(f"v_max_f32 {MX}, {MX}, {v(SG+3)}")
A(f"v_max_f32_dpp {TT}, {MX}, {MX} row_ror:8 row_mask:0xf bank_mask:0xf")
A(f"v_max_f32_dpp {MX}, {MX}, {MX} row_ror:8 row_mask:0xf bank_mask:0xf")
A(f"v_permlane16_swap_b32 {MX}, {TT}"); A(f"v_max_f32 {SC}, {MX}, {TT}"); A(f"v_max_f32 {MX}, {MX}, {TT}")
A(f"v_permlane32_swap_b32 {MX}, {SC}"); A(f"v_max_f32 {MX}, {MX}, {SC}")
for n, i in enumerate((0, 1, 2, 3, 8, 9)): A(f"v_sub_f32 {v(E+n)}, {v(SG+i)}, {MX}")
for n in range(6): A(f"v_exp_f32 {v(E+n)}, {v(E+n)}")
A(f"v_mul_f32 {LS}, {v(E)}, {v(SG+4)}")
for i in (1, 2, 3): A(f"v_fmac_f32 {LS}, {v(E+i)}, {v(SG+4+i)}")
A(f"v_add_f32_dpp {TT}, {LS}, {LS} row_ror:8 row_mask:0xf bank_mask:0xf")
A(f"v_add_f32_dpp {LS}, {LS}, {LS} row_ror:8 row_mask:0xf bank_mask:0xf")
A(f"v_permlane16_swap_b32 {LS}, {TT}"); A(f"v_add_f32 {SC}, {LS}, {TT}"); A(f"v_add_f32 {LS}, {LS}, {TT}")
poll(op_load, [v(OG+i) for i in range(4)], primed=True)
stamp()
A(f"v_permlane32_swap_b32 {LS}, {SC}")
def unpack2(dst, src):
    for i in range(2):
        A(f"v_lshlrev_b32 {v(dst+2*i)}, 16, {v(src+i)}"); A(f"v_and_b32 {v(dst+2*i+1)}, 0xffff0000, {v(src+i)}")
unpack2(R, OG); unpack2(OG+4, OG+2)
for i in (0, 2): A(f"v_pk_mul_f32 {v(R+i,2)}, {v(R+i,2)}, {v(E+3,2)} op_sel:[0,1] op_sel_hi:[1,1]")
for i in (0, 2): A(f"v_pk_fma_f32 {v(R+i,2)}, {v(OG+4+i,2)}, {v(E+5,2)}, {v(R+i,2)} op_sel_hi:[1,0,1]")
A(f"v_add_f32 {LS}, {LS}, {SC}")
A(f"v_mov_b32 {v(E+2)}, {v(E+6)}")
A(f"v_permlane32_swap_b32 {v(R)}, {v(R+2)}")
A(f"v_permlane32_swap_b32 {v(R+1)}, {v(R+3)}")
A(f"v_add_f32 {v(R)}, {v(R)}, {v(R+2)}")
A(f"v_add_f32 {v(R+1)}, {v(R+1)}, {v(R+3)}")
A(f"v_rcp_f32 {LS}, {LS}")
A(f"v_permlane16_swap_b32 {v(R)}, {v(R+1)}")
A(f"v_add_f32 {v(R)}, {v(R)}, {v(R+1)}")
A(f"v_add_f32_dpp {v(R)}, {v(R)}, {v(R)} row_ror:8 row_mask:0xf bank_mask:0xf")
A(f"v_mul_f32 {v(R)}, {v(R)}, {LS}")
A(f"v_cvt_pk_bf16_f32 {TT}, {v(R)}, {v(R)}")
A(f"ds_write_b16 {vOTw}, {TT}")
A(f"s_cmp_lg_u32 {sL}, 0")
A("s_cbranch_scc1 L_o3")
pub(*[f"buffer_store_dwordx2 {v(EM,2)}, {vOPg}, {srd(rWS)}, {{so}} offen offset:{512*i}{{fl}}" for i in range(2)])
A("L_o3:")
A("s_waitcnt lgkmcnt(0)")
A("s_barrier")
for i in range(4): A(f"ds_read_b128 {v(AO+4*i,4)}, {vOTr} offset:{128*i}")
tile_out(aWO, aWOt, vYst, True)
stamp()

def reducer(kind):
    ld = [f"buffer_load_dwordx2 {v(YG+2*i,2)}, {vRg}, {srd(rWS)}, {sGp} offen offset:{512*i} sc1" for i in range(2)]
    A(f"s_movk_i32 {t4}, 0xff"); A(f"s_add_u32 {t3}, {sXPo}, 8192")
    zero(R)
    if kind == 'A': zero(YG+4, 2)
    if kind == 'A':
        poll(ld, [v(YG+i) for i in range(4)], site='y')
    else:
        poll(ld + ["s_mov_b64 exec, 0xffff", f"buffer_load_dwordx2 {v(YG+4,2)}, {vRg}, {srd(rWS)}, {sGp} offen offset:1024 sc1", "s_mov_b64 exec, -1"],
             [v(YG+i) for i in range(6)], site='y')
    stamp()
    A(f"v_smfmac_f32_16x16x64_bf16 {v(R,4)}, {v(YG+8,4)}, {v(YG,8)}, {vIdxS}")
    for i in range(4): A(f"v_add_f32_dpp {v(R+i)}, {v(R+i)}, {v(R+i)} row_ror:8 row_mask:0xf bank_mask:0xf")
    for i in range(4): A(f"v_bfi_b32 {v(R+i)}, {t4}, {vTag}, {v(R+i)}")
    A(f"buffer_store_dwordx4 {v(R,4)}, {vXPst}, {srd(rWS)}, {sXPo} offen sc1")
    if args.near: A(f"buffer_store_dwordx4 {v(R,4)}, {vXPst}, {srd(rWS)}, {t3} offen sc1")
    if kind == 'M':
        A(f"s_lshl_b32 {t0}, {sL}, 2"); A(f"s_andn2_b32 {t0}, {t0}, {sRole}")
        A("s_cbranch_scc1 L_fin")
    cl = [f"buffer_store_dwordx2 {v(EM,2)}, {vRg}, {srd(rWS)}, {{so}} offen offset:{512*i}{{fl}}" for i in range(2)]
    if kind == 'M': cl += ["s_mov_b64 exec, 0xffff", f"buffer_store_dwordx2 {v(EM,2)}, {vRg}, {srd(rWS)}, {{so}} offen offset:1024{{fl}}", "s_mov_b64 exec, -1"]
    pub(*cl)
    if args.near:
        A(f"v_mov_b32 {TT}, 0")
        A(f"ds_read_b32 {TT}, {TT} offset:{L_NEAR}")
    if args.xd: A(f"s_sleep {args.xd}")
    if args.near:
        A("s_waitcnt lgkmcnt(0)")
        A(f"v_or_b32 {vXPg}, {vXPg}, {TT}")
    poll([f"buffer_load_dwordx2 {v(XG,2)}, {vXPg}, {srd(rWS)}, {sXPo} offen sc1",
          f"buffer_load_dwordx2 {v(XG+2,2)}, {vXPg}, {srd(rWS)}, {sXPo} offen offset:512 sc1"], None,
         chk=[f"v_xor_b32 {v(R+i)}, {vTag}, {v(XG+i)}" for i in range(4)] +
             [f"v_or3_b32 {CK}, {v(R)}, {v(R+1)}, {v(R+2)}", f"v_bitop3_b32 {CK}, {CK}, {v(R+3)}, {t4} bitop3:0xa8", f"v_cmp_ne_u32 vcc, 0, {CK}"])
    stamp()
    Y = v(R)
    A(f"v_add_f32 {v(R)}, {v(R)}, {v(R+2)}"); A(f"v_add_f32 {v(R+1)}, {v(R+1)}, {v(R+3)}")
    A(f"v_permlane32_swap_b32 {v(R)}, {v(R+1)}")
    A(f"v_add_f32 {TT}, {v(R)}, {v(R+1)}"); A(f"v_add_f32 {Y}, {v(R)}, {v(R+1)}")
    A(f"v_permlane16_swap_b32 {Y}, {TT}"); A(f"v_add_f32 {Y}, {Y}, {TT}")
    rbf(Y, Y)
    if kind == 'M':
        A(f"v_add_f32 {Y}, {Y}, {vB2}"); rbf(Y, Y)
    A(f"v_add_f32 {TT}, {Y}, {vXres}")
    A(f"v_add_f32 {v(R+1)}, {Y}, {vXres}")
    A(f"v_add_f32 {Y}, {Y}, {vXres}")
    A("s_mov_b64 exec, -1")
    A(f"v_permlane32_swap_b32 {TT}, {v(R+1)}")
    A(f"v_cvt_pk_bf16_f32 {TT}, {TT}, {v(R+1)}")
    A("s_mov_b64 exec, 0xffff")
    if kind == 'M':
        A(f"s_cmp_lg_u32 {sL}, 0")
        A("s_cbranch_scc1 L_out")
    pub(f"buffer_store_dword {TT}, {vZst}, {srd(rWS)}, {{so}} offen{{fl}}")
    A("s_mov_b64 exec, -1")
    stamp()
    rbf(vXres, Y)
    A(f"v_add_u32 {vZst}, 2304, {vZst}")
    A(f"s_add_u32 {sXPo}, {sXPo}, {XPS}")

A(f"s_bitcmp1_b32 {sRole}, 0")
A("s_cbranch_scc1 L_mlp")
A(f"s_bitcmp1_b32 {sRole}, 1")
A("s_cbranch_scc0 L_probe" if args.near else "s_cbranch_scc0 L_next")
A(f"s_cmp_lg_u32 {sL}, 0")
A("s_cbranch_scc1 L_red")
A(f"v_lshlrev_b32 {vXres}, 16, {vXres}"); A(f"v_lshlrev_b32 {vB2}, 16, {vB2}")
zero(YG+6, 2)
for i in range(4): A(f"v_mov_b32 {v(YG+8+i)}, 0x3f80")
A("L_red:")
k0 = nst[0]
reducer('A'); reducer('M')
kr = nst[0]
A("s_branch L_next")
A("L_mlp:")
nst[0] = k0
A(f"s_cmp_lg_u32 {sL}, 0")
A("s_cbranch_scc1 L_m1")
A(f"s_mul_i32 {t0}, {sX}, 18"); A(f"s_add_u32 {t0}, {t0}, {sJ}")
A(f"s_lshl_b32 {t2}, {t0}, 6")
A(f"buffer_load_ushort {vB1}, {vB1}, {srd(rT1)}, 0 offen{NT}")
A(f"s_cmp_ge_u32 {sJ}, 16")
A("s_cbranch_scc1 L_m0b")
if args.xt:
    A(f"s_lshl_b32 {t1}, {sJ}, 2"); A(f"s_add_u32 {t1}, {t1}, {sW}"); A(f"s_mul_i32 {t1}, {t1}, 36")
    A(f"v_add_u32 {TT}, {t1}, v0")
    A(f"v_lshrrev_b32 {LS}, 6, {TT}"); A(f"v_mul_u32_u24 {MX}, 43, {LS}"); A(f"v_lshrrev_b32 {MX}, 7, {MX}"); A(f"v_add_u32 {LS}, {LS}, {MX}")
    A(f"v_bfe_u32 {MX}, {TT}, 3, 3"); A(f"v_lshl_add_u32 {LS}, {LS}, 3, {MX}"); A(f"v_and_b32 {TT}, 7, {TT}"); A(f"v_lshlrev_b32 {TT}, 7, {TT}"); A(f"v_lshl_add_u32 {TT}, {LS}, 13, {TT}")
    A(f"s_lshl_b32 {t1}, {sX}, 10"); A(f"s_add_u32 {t1}, {t1}, {XP_O}")
    A(f"v_mov_b32 {LS}, 0")
    A("s_mov_b32 exec_hi, 15")
    A(f"buffer_atomic_or {LS}, {TT}, {srd(rWS)}, {t1} offen")
    A("s_mov_b32 exec_hi, -1")
if 's' not in args.early + args.mid: slots_touch()
if '1' not in args.early + args.mid: w1_touch()
if '2' in args.early + args.mid: A("s_branch L_m0d")
A("L_m0b:")
w2_loads()
A("L_m0d:")
A(f"s_cmp_eq_u32 {sW}, 3")
A("s_cbranch_scc1 L_m0c")
A("L_m0a:")
A(f"s_mul_i32 {t0}, {sW}, {192*9216}"); A(f"s_add_u32 {t0}, {t0}, {t2}")
if args.w1dma:
    A(f"v_lshrrev_b32 {TT}, 2, v0"); A(f"v_mul_u32_u24 {TT}, 9216, {TT}"); A(f"v_and_b32 {LS}, 3, v0"); A(f"v_lshl_add_u32 {TT}, {LS}, 4, {TT}")
    A(f"s_mul_i32 {t1}, {sW}, 12288"); A(f"s_add_u32 {t1}, {t1}, {L_K}"); A(f"s_mov_b32 m0, {t1}")
    for i in range(12):
        A(f"buffer_load_dwordx4 {TT}, {srd(rW1)}, {t0} offen{NTM} lds")
        if i < 11: A(f"s_add_u32 {t0}, {t0}, {16*9216}"); A("s_add_u32 m0, m0, 1024")
    A(f"v_lshrrev_b32 {TT}, 4, v0"); A(f"v_lshlrev_b32 {TT}, 8, {TT}"); A(f"v_and_b32 {LS}, 15, v0"); A(f"v_lshl_add_u32 {TT}, {LS}, 2, {TT}"); A(f"v_add_u32 {TT}, {t1}, {TT}")
    A("s_waitcnt vmcnt(0)")
    for i in range(6):
        for hh in range(2):
            for p in range(2):
                A(f"ds_read2_b32 {a(aW1+8*i+4*hh+2*p,2)}, {TT} offset0:{32*p} offset1:{32*p+16}")
            if (i, hh) != (5, 1): A(f"v_add_u32 {TT}, 1024, {TT}")
    A("s_waitcnt lgkmcnt(0)")
else:
    A(f"v_lshrrev_b32 {TT}, 4, v0"); A(f"v_mul_u32_u24 {TT}, {4*9216}, {TT}"); A(f"v_and_b32 {LS}, 15, v0"); A(f"v_lshl_add_u32 {TT}, {LS}, 2, {TT}")
    prev = 0
    for i in range(6):
        for vv in range(8):
            row = 32*i + 16*(vv >> 2) + (vv & 3)
            if row != prev: A(f"s_add_u32 {t0}, {t0}, {(row-prev)*9216}")
            prev = row
            A(f"buffer_load_dword {a(aW1+8*i+vv)}, {TT}, {srd(rW1)}, {t0} offen{NTM}")
A("L_m0c:")
if ST: A("s_memrealtime s[94:95]"); A("s_waitcnt vmcnt(0)"); A("s_memrealtime s[96:97]")
A("s_waitcnt vmcnt(0)")
A(f"v_lshlrev_b32 {vB1}, 16, {vB1}")
A("L_m1:")
zero(D0, 8)
c0 = -2 * 1.4426950408889634 * 0.7978845608028654
A(f"v_mov_b32 {v(E)}, {f32(c0)}")
A(f"v_lshrrev_b32 {v(E+1)}, 5, v0"); A(f"v_lshlrev_b32 {v(E+1)}, 3, {v(E+1)}")
A(f"v_add_u32 {v(E+2)}, {4*1152}, {vMst}")
A(f"s_mul_i32 {t0}, {sL}, {Z3_O-Z1_O}"); A(f"s_add_u32 {t0}, {t0}, {sGp}"); A(f"s_add_u32 {t0}, {t0}, {Z1_O}")
A(f"s_cmp_eq_u32 {sW}, 3")
A("s_cbranch_scc1 L_m2")
poll_proj(vXAm, t0, 6, aW1)
A("s_mov_b32 exec_hi, 0")
A(f"ds_write_b128 {vHPw}, {v(D0,4)}")
A("s_mov_b32 exec_hi, -1")
A("s_branch L_m2b")
A("L_m2:")
poll(xs_loads(rWS, t0, ' sc1'), [v(XS+i) for i in range(9)], site='z')
stats(32)
A("L_m2b:")
stamp()
A("s_waitcnt lgkmcnt(0)")
A("s_barrier")
H = TM + 12
A(f"ds_read2_b32 {v(H,2)}, {vHPr} offset0:0 offset1:2")
A(f"ds_read2_b32 {v(H+2,2)}, {vHPr} offset0:128 offset1:130")
A(f"ds_read_b32 {v(H+4)}, {vHPr} offset:1024"); A(f"ds_read_b32 {v(H+5)}, {vHPr} offset:1032")
A(f"ds_read_b64 {v(TM,2)}, {v(E+1)} offset:{L_STAT+32}")
zero(D0)
A("s_waitcnt lgkmcnt(0)")
A(f"v_add_f32 {v(H)}, {v(H)}, {v(H+2)}"); A(f"v_add_f32 {v(H+1)}, {v(H+1)}, {v(H+3)}")
A(f"v_add_f32 {v(H)}, {v(H)}, {v(H+4)}"); A(f"v_add_f32 {v(H+1)}, {v(H+1)}, {v(H+5)}")
A(f"v_fma_f32 {v(H)}, -{S_}, {v(H+1)}, {v(H)}")
A(f"v_mul_f32 {v(H)}, {v(H)}, {Q_}")
rbf(v(H), v(H))
A(f"v_add_f32 {v(H)}, {v(H)}, {vB1}")
rbf(v(H), v(H))
A(f"v_mul_f32 {TT}, {v(H)}, {v(H)}")
A(f"v_fmac_f32 {v(E)}, {f32(c0*0.044715)}, {TT}")
A(f"v_mul_f32 {TT}, {v(E)}, {v(H)}")
A(f"v_exp_f32 {TT}, {TT}")
A(f"v_add_f32 {TT}, 1.0, {TT}")
A(f"v_rcp_f32 {TT}, {TT}")
A(f"v_mul_f32 {TT}, {TT}, {v(H)}")
A(f"v_cvt_pk_bf16_f32 {TT}, {TT}, 0")
A(f"ds_write2_b32 {vPTw}, {TT}, {TT} offset1:5")
for i in range(4): A(f"ds_read_b128 {v(AO+4*i,4)}, {vPTr} offset:{128*i}")
stamp()
tile_out(aW2, aW2t, vMst, False)
A("L_m4:")
stamp()
nst[0] = kr
A("L_next:")
A(f"s_cmp_lg_u32 {sL}, 0")
A("s_cbranch_scc1 L_fin")
if ST:
    A("s_waitcnt lgkmcnt(0)")
    for k in range(14): A(f"v_writelane_b32 {v(SV)}, s{72+2*k}, {1+k}")
    for k in range(14): A(f"s_mov_b64 s[{72+2*k}:{73+2*k}], 0")
A(f"s_mov_b32 {sL}, 1")
if args.dirty:
    A(f"s_cmp_ge_u32 {sJ}, 16"); A("s_cbranch_scc1 L_dd")
    A(f"s_lshl_b32 {t0}, s2, 2"); A(f"s_add_u32 {t0}, {t0}, {sW}"); A(f"s_lshl_b32 {t0}, {t0}, 14"); A(f"s_add_u32 {t0}, {t0}, 0x2000000")
    for i in range(args.dirty):
        A(f"buffer_store_dwordx4 {v(EM,4)}, {vL16}, {srd(rWS)}, {t0} offen"); A(f"s_add_u32 {t0}, {t0}, 1024")
    A("L_dd:")
A(f"s_add_u32 {sXoff}, {sGp}, {Z2_O}")
for r in (vSTst, vSTg, vSTm): A(f"v_add_u32 {r}, {ST1_O-ST_O}, {r}")
A("s_branch L_layer")
A("L_out:")
A(f"buffer_store_dword {TT}, {vZo}, {srd(rOUT)}, 0 offen")
A(f"s_mov_b32 {t0}, {EP_O}")
A("s_mov_b64 exec, 1")
A(f"buffer_store_dword {FN}, {vL16}, {srd(rWS)}, {t0} offen")
if ST: A(f"s_memrealtime s[{72+2*13}:{73+2*13}]")
A("L_fin:")
if args.wb:
    A(f"s_cmp_lg_u32 {sJ}, 18"); A("s_cbranch_scc1 L_wb")
    A(f"s_cmp_lg_u32 {sW}, 0"); A("s_cbranch_scc1 L_wb")
    A("buffer_wbl2 sc1")
    A("L_wb:")
if args.enc:
    j0, j1 = [int(x) for x in args.encj.split(',')]
    A("s_memrealtime s[66:67]")
    A("s_waitcnt lgkmcnt(0)")
    if args.enc <= 14: A(f"v_readlane_b32 {t0}, {v(SV)}, {args.enc}"); A("s_nop 3")
    else: A(f"s_mov_b32 {t0}, s{72+2*(args.enc-15)}")
    A(f"s_cmp_eq_u32 {t0}, 0"); A("s_cbranch_scc1 L_enc2")
    A(f"s_cmp_lt_u32 {sJ}, {j0}"); A("s_cbranch_scc1 L_enc2")
    A(f"s_cmp_ge_u32 {sJ}, {j1}"); A("s_cbranch_scc1 L_enc2")
    if args.encref == 0: A(f"s_mov_b32 {t1}, s100")
    elif args.encref <= 14: A(f"v_readlane_b32 {t1}, {v(SV)}, {args.encref}"); A("s_nop 3")
    else: A(f"s_mov_b32 {t1}, s{72+2*(args.encref-15)}")
    A(f"s_sub_u32 {t0}, {t0}, {t1}"); A(f"s_min_u32 {t0}, {t0}, 10000"); A(f"s_lshl_b32 {t0}, {t0}, {4 if args.encref else 3}"); A(f"s_add_u32 {t0}, {t0}, s66")
    A("L_enc:")
    A("s_sleep 8")
    A("s_memrealtime s[64:65]"); A("s_waitcnt lgkmcnt(0)")
    A(f"s_sub_u32 {t1}, s64, {t0}"); A(f"s_cmp_lt_i32 {t1}, 0"); A("s_cbranch_scc1 L_enc")
    A("L_enc2:")
if ST:
    A("s_mov_b64 exec, -1")
    A("s_waitcnt lgkmcnt(0)")
    A(f"v_writelane_b32 {v(SV)}, s100, 0")
    for k in range(14): A(f"v_writelane_b32 {v(SV)}, s{72+2*k}, {15+k}")
    A(f"s_lshl_b32 {t0}, s2, 2"); A(f"s_add_u32 {t0}, {t0}, {sW}"); A(f"s_lshl_b32 {t0}, {t0}, 8"); A(f"s_add_u32 {t0}, {t0}, {STAMP_O}")
    A(f"v_mov_b32 {v(SV+1)}, 0")
    A(f"v_lshlrev_b32 {v(SV+2)}, 3, v0")
    A("s_mov_b32 exec_hi, 0")
    A(f"buffer_store_dwordx2 {v(SV,2)}, {v(SV+2)}, {srd(rWS)}, {t0} offen")
A("L_end:")
A("s_endpgm")
if args.near:
    A("L_probe:")
    A(f"s_cmp_lt_u32 {sJ}, 20"); A("s_cbranch_scc1 L_next")
    A(f"s_cmp_lg_u32 {sL}, 0"); A("s_cbranch_scc1 L_next")
    A(f"s_sub_u32 {t0}, {sJ}, 20"); A(f"s_lshl_b32 {t0}, {t0}, 18"); A(f"s_lshl_b32 {t1}, {sX}, 10"); A(f"s_add_u32 {t0}, {t0}, {t1}"); A(f"s_add_u32 {t0}, {t0}, {XP_O + 3*65536}")
    A(f"s_add_u32 s44, s{rWS}, {t0}"); A(f"s_addc_u32 s45, s{rWS+1}, 0")
    A(f"s_mov_b32 {t2}, -1"); A(f"s_mov_b32 {t3}, -1"); A(f"s_mov_b32 {t4}, 3")
    A("L_pr1:")
    A("s_memtime s[46:47]"); A("s_waitcnt lgkmcnt(0)")
    A(f"s_load_dword {t5}, s[44:45], 0 glc"); A("s_waitcnt lgkmcnt(0)")
    A("s_memtime s[48:49]"); A("s_waitcnt lgkmcnt(0)")
    A(f"s_load_dword {t5}, s[44:45], 0x2000 glc"); A("s_waitcnt lgkmcnt(0)")
    A("s_memtime s[50:51]"); A("s_waitcnt lgkmcnt(0)")
    A(f"s_sub_u32 {t0}, s48, s46"); A(f"s_sub_u32 {t1}, s50, s48")
    A(f"s_min_u32 {t2}, {t2}, {t0}"); A(f"s_min_u32 {t3}, {t3}, {t1}")
    A(f"s_sub_u32 {t4}, {t4}, 1"); A(f"s_cmp_lg_u32 {t4}, 0"); A("s_cbranch_scc1 L_pr1")
    A(f"s_cmp_lt_u32 {t3}, {t2}"); A(f"s_cselect_b32 {t0}, 0x2000, 0")
    A(f"v_mov_b32 {TT}, 0"); A(f"v_mov_b32 {LS}, {t0}")
    A(f"ds_write_b32 {TT}, {LS} offset:{L_NEAR}")
    A("s_branch L_next")
A("L_af2:")
A(f"s_cmp_eq_u32 {sMode}, {FB_O}")
A("s_cbranch_scc1 L_g2")
A(f"s_add_u32 {sMode}, {sMode}, 1")
A(f"s_lshl_b32 {t2}, {sX}, 10"); A(f"s_add_u32 {t2}, {t2}, {FL_O}")
A(f"s_lshl_b32 {t4}, {sL}, 2"); A(f"s_add_u32 {t1}, {t4}, {t2}")
A(f"s_cmp_lt_u32 {sMode}, {1 if args.forcefb else 40}")
A("s_cbranch_scc1 L_af5")
A("s_mov_b64 exec, 1")
A(f"buffer_store_dword {FN}, {vL16}, {srd(rWS)}, {t1} offen sc1")
A("s_mov_b32 exec_lo, -1")
A(f"buffer_load_dwordx4 {v(FG,4)}, {vL16}, {srd(rWS)}, {t2} offen sc1")
A("s_mov_b32 exec_hi, -1")
A("s_waitcnt vmcnt(0)")
flags_diff()
A(f"v_and_b32 {TT}, 0x0fffffff, {CK}")
A(f"v_cmp_ne_u32 vcc, 0, {TT}")
A("s_cmp_lg_u32 vcc_lo, 0")
A("s_cbranch_scc1 L_af5")
A(f"v_cmp_ne_u32 vcc, 0, {CK}")
A("s_cmp_lg_u32 vcc_lo, 0")
if args.forcefb: A("s_cmp_eq_u32 0, 0")
A("s_cbranch_scc1 L_spread")
A("L_af5:")
A(f"s_sub_u32 {sTO}, {sTO}, 1")
A("s_cbranch_scc0 L_g4")
A(f"s_mov_b32 {sTO}, 0")
A(f"s_mov_b32 {sMode}, 0")
A("s_branch L_g2")
A("L_spread:")
A(f"s_mov_b32 {sMode}, {FB_O}")
A(f"s_add_u32 {sGp}, {sGf}, {FB_O}")
empty_share(sGp, ' sc1')
A("s_mov_b32 exec_hi, 0")
A(qp_store.format(so=sGp, fl=' sc1'))
A("s_waitcnt vmcnt(0)")
A("s_mov_b64 exec, 1")
A(f"buffer_store_dword {FN}, {vL16}, {srd(rWS)}, {t1} offen offset:512 sc1")
A("s_mov_b32 exec_lo, -1")
A("L_sp1:")
A("s_mov_b32 exec_hi, 0")
A(f"buffer_load_dwordx4 {v(FG,4)}, {vL16}, {srd(rWS)}, {t2} offen offset:512 sc1")
A("s_mov_b32 exec_hi, -1")
A("s_waitcnt vmcnt(0)")
flags_diff()
A(f"v_and_b32 {CK}, 0x0fffffff, {CK}")
A(f"v_cmp_ne_u32 vcc, 0, {CK}")
A("s_cmp_eq_u32 vcc_lo, 0")
A("s_cbranch_scc1 L_g4")
A("s_sleep 4")
A(timeout("L_sp1", "L_g4"))
for t in tail: A(t)
A.raw('L_codeend:')
A.raw('.section .rodata,"a"')
A.raw(".p2align 6")
A.raw(f".amdhsa_kernel {NAME}_kernel")
A.raw(f"  .amdhsa_next_free_vgpr {ACC+NACC}")
A.raw("  .amdhsa_next_free_sgpr 102")
A.raw(f"  .amdhsa_accum_offset {ACC}")
A.raw("  .amdhsa_group_segment_fixed_size 0")
A.raw("  .amdhsa_kernarg_size 104")
A.raw("  .amdhsa_user_sgpr_count 2")
A.raw("  .amdhsa_user_sgpr_kernarg_segment_ptr 1")
A.raw("  .amdhsa_system_sgpr_workgroup_id_x 1")
A.raw(".end_amdhsa_kernel")
txt = A.text()
if args.cyc: txt = txt.replace('s_memrealtime', 's_memtime')
sys.stdout.write(txt)
```

```python
import sys, argparse, struct
sys.path.insert(0, 'dev')
from asmlib import Asm
NAME = "interleave_layers__sliding_block_cached__dense_activation_gelu__decode"
ap = argparse.ArgumentParser()
ap.add_argument('--stamps', action='store_true')
ap.add_argument('--pro', action='store_true')
ap.add_argument('--cyc', action='store_true')
ap.add_argument('--xt', type=int, default=0)
ap.add_argument('--xd', type=int, default=11)
ap.add_argument('--enc', type=int, default=0)
ap.add_argument('--encref', type=int, default=0)
ap.add_argument('--encj', default='0,32')
ap.add_argument('--only', default='')
ap.add_argument('--pQ', type=int, default=4)
ap.add_argument('--code', type=int, default=1)
ap.add_argument('--early', default='0')
ap.add_argument('--mid', default='')
ap.add_argument('--w1dma', type=int, default=0)
ap.add_argument('--near', type=int, default=1)
ap.add_argument('--p2', default='sy')
ap.add_argument('--wb', type=int, default=0)
ap.add_argument('--dirty', type=int, default=0)
ap.add_argument('--vw', type=int, default=1)
ap.add_argument('--di', type=int, default=1)
ap.add_argument('--dz', type=int, default=1)
ap.add_argument('--dxx', type=int, default=1)
ap.add_argument('--nt', default='k,v')
ap.add_argument('--forcefb', action='store_true')
args = ap.parse_args()
def ntf(c): return ' nt' if c in args.nt.split(',') else ''
NT = ntf('s'); NTK = ntf('k'); NTV = ntf('v'); NTQ = ntf('q'); NTO = ntf('o'); NTM = ntf('m'); NT2 = ntf('2')
ST = args.stamps

def f32(x): return '0x%08x' % struct.unpack('<I', struct.pack('<f', x))[0]

CLR = 928
OP_O = 0
Y_O = OP_O + 65536
ST_O = Y_O + 41472
ST1_O = ST_O + 2048
Z1_O = ST1_O + 2048
Z2_O = Z1_O + 2304
Z3_O = Z2_O + 2304
assert Z3_O + 2304 <= 128 * CLR and (128 * CLR) % 128 == 0
QP_O = 128 * CLR
FF_O = QP_O + 65536
GB = FF_O + 1024
FB_O = 8 * GB
XP_O = 6 << 20
assert XP_O >= 16 * GB
XPS = 16384
FL_O = XP_O + 12 * 262144
EP_O = FL_O + 8 * 1024
STAMP_O = 0x8000000
L_NEAR = 8176
L_X = 640
L_QT, L_STAT, L_OT, L_PT, L_HP, L_K, L_WQ, L_SIZE = 0, 512, 1024, 2560, 8192, 16384, 49152, 67584

rK, rV, rWQ, rWO, rW1, rW2, rWS, rX, rOUT, rT1, rT2 = 4, 8, 12, 16, 20, 24, 28, 32, 36, 44, 48
sTask, kv0, kv1, sFlag = 's40', 's41', 's42', 's43'
def srd(n): return f"s[{n}:{n+3}]"
sW, sX, sJ, sGf, sGp, sXoff, sTO, sMode, sL, sWo = [f"s{i}" for i in range(52, 62)]
t0, t1, t2, t3, t4, t5 = [f"s{i}" for i in range(62, 68)]
mLO8 = "s[68:69]"; mROW = "s[70:71]"
MXA = "0x00330033"
sRole = "s3"
(vL4, vL16, vIdxD, vIdxP, vIdxS, vXAq, vXAm, vQPst, vQPg, vL128, vQTw, vQTr, vPTw, vPTr, vSTst, vOPst, vSTg, vOPg, vOTw, vOTr,
 vYst, vMst, vHPw, vSTm, vRg, vSTATr, vXPst, vXPg, vZst, vXres, vB2, vB1, vCq, vZo, vXS1, vXS2, vWrow, vHPr, vOnes) = [f"v{i}" for i in range(1, 40)]
XA, D0, D1, DP, AO, SG, YG, XG, XS, FG, TM, EM, KA, SV, OG, QG = 40, 64, 68, 72, 76, 104, 120, 132, 136, 148, 152, 176, 180, 184, 188, 196
vQPg2 = 'v92'
ACC = 212
aWQ, aK, aV, aWO, aW1, aW2, aWOt, NACC = 0, 24, 56, 88, 120, 168, 200, 232
aW2t = aW1
def v(n, k=1): return f"v{n}" if k == 1 else f"v[{n}:{n+k-1}]"
def a(n, k=1): return f"a{n}" if k == 1 else f"a[{n}:{n+k-1}]"
CK = v(TM + 23); FN = v(TM + 22); vTag = v(TM + 21); DUM = v(TM + 20)
sEp, sXPo = kv0, kv1

A = Asm()
tail = []
nst = [0]
def pstamp(k):
    if args.pro: A(f"s_memrealtime s[{72+2*k}:{73+2*k}]")
def stamp():
    if ST and not args.pro:
        k = nst[0]; nst[0] += 1
        assert k < 13
        if ONLY is None or k in ONLY: A(f"s_memrealtime s[{72+2*k}:{73+2*k}]")
ONLY = set(int(x) for x in args.only.split(',')) if args.only else None
def lg(n): return 0 if (ST and ONLY is None) else n
def exec_xa(): return [f"s_mov_b32 exec_lo, {MXA}", f"s_mov_b32 exec_hi, {MXA}"]

def check_text(regs):
    regs = list(regs); o = []
    if len(regs) == 1: cur = regs[0]
    else:
        take = regs[:3]; regs = regs[3:]
        o.append(f"v_max3_u32 {CK}, {take[0]}, {take[1]}, {take[2]}" if len(take) == 3 else f"v_max_u32 {CK}, {take[0]}, {take[1]}")
        while regs:
            take = regs[:2]; regs = regs[2:]
            o.append(f"v_max3_u32 {CK}, {CK}, {take[0]}, {take[1]}" if len(take) == 2 else f"v_max_u32 {CK}, {CK}, {take[0]}")
        cur = CK
    o.append(f"v_cmp_eq_u32 vcc, -1, {cur}")
    return o
def nvm(loads): return sum(1 for l in loads if l.startswith('buffer_'))
def timeout(again, ok): return f"s_sub_u32 {sTO}, {sTO}, 1\ns_cbranch_scc0 {again}\ns_mov_b32 {sTO}, 0\ns_waitcnt vmcnt(0) lgkmcnt(0)\ns_branch {ok}"

def poll(loads, regs, primed=False, extra_wait="", chk=None, site=''):
    lp = A.newlabel('L_poll'); to = A.newlabel('L_to'); ok = A.newlabel('L_ok'); en = A.newlabel('L_in')
    if primed:
        A(f"s_waitcnt vmcnt(0){extra_wait}")
        for l in (chk or check_text(regs)): A(l)
        A(f"s_cbranch_vccnz {lp}")
        A(f"{ok}:")
        tail.append(f"{lp}:\n" + "\n".join(loads) + f"\ns_sub_u32 {sTO}, {sTO}, 1\ns_cbranch_scc1 {to}\ns_waitcnt vmcnt(0){extra_wait}\n" +
                    "\n".join(chk or check_text(regs)) + f"\ns_cbranch_vccnz {lp}\ns_branch {ok}\n{to}:\ns_mov_b32 {sTO}, 0\ns_waitcnt vmcnt(0) lgkmcnt(0)\ns_branch {ok}")
        return
    two = site and site in args.p2
    if two:
        for l in loads: A(l)
        A("s_sleep 2")
    A(f"{lp}:")
    for l in loads: A(l)
    A(f"s_sub_u32 {sTO}, {sTO}, 1")
    A(f"s_cbranch_scc1 {to}")
    A(f"s_waitcnt vmcnt({nvm(loads) if two else 0}){extra_wait}")
    for l in (chk or check_text(regs)): A(l)
    A(f"s_cbranch_vccnz {lp}")
    A(f"{ok}:")
    tail.append(f"{to}:\ns_mov_b32 {sTO}, 0\ns_waitcnt vmcnt(0) lgkmcnt(0)\ns_branch {ok}")

def sm(d, av, br, idx): A(f"v_smfmac_f32_16x16x64_bf16 {v(d,4)}, {v(av,4)}, {a(br,8)}, {idx}")
def xa_loads(rr, voff, so, n, fl, short_last=False):
    o = exec_xa()
    for i in range(n):
        if short_last and i == n - 1: o.append("s_mov_b64 exec, 0x33")
        o.append(f"buffer_load_dwordx4 {v(XA+4*i,4)}, {voff}, {srd(rr)}, {so} offen offset:{64*i}{fl}")
    return o + ["s_mov_b64 exec, -1"]
def poll_proj(voff, so, n, wbase, short_last=False):
    loads = xa_loads(rWS, voff, so, n, ' sc1', short_last)
    lds = [l for l in loads if l.startswith('buffer_')]
    lp = A.newlabel('L_poll'); rt = A.newlabel('L_retry'); ok = A.newlabel('L_ok'); gen = A.newlabel('L_nan')
    for l in loads: A(l)
    A(f"{lp}:")
    A("s_waitcnt vmcnt(0)")
    for i in range(n): sm(D0, XA+4*i, wbase+8*i, vIdxD)
    for l in loads: A(l)
    A(f"v_cmp_u_f32 vcc, {v(D0)}, {v(D0+1)}")
    A(f"s_cbranch_vccnz {rt}")
    A(f"{ok}:")
    z = "\n".join(f"v_mov_b32 {v(D0+i)}, 0" for i in range(4))
    mm = "\n".join(f"v_smfmac_f32_16x16x64_bf16 {v(D0,4)}, {v(XA+4*i,4)}, {a(wbase+8*i,8)}, {vIdxD}" for i in range(n))
    tail.append(f"{rt}:\n{z}\ns_sub_u32 {sTO}, {sTO}, 1\ns_cbranch_scc1 {gen}\ns_and_b32 {t5}, {sTO}, 15\ns_cbranch_scc1 {lp}\n" +
                "\n".join(check_text([v(XA+i) for i in range(4*n)])) + f"\ns_cbranch_vccnz {lp}\n{gen}:\ns_max_i32 {sTO}, {sTO}, 0\n{mm}\ns_nop 7\ns_branch {ok}")

def pub(*fmts):
    for f in fmts: A(f.format(so=sGf, fl=''))
    sl = A.newlabel('L_slow'); bk = A.newlabel('L_back')
    A(f"s_cmp_lg_u32 {sMode}, 0")
    A(f"s_cbranch_scc1 {sl}")
    A(f"{bk}:")
    tail.append(f"{sl}:\n" + "\n".join(f.format(so=sGp, fl=' sc1') for f in fmts) + f"\ns_nop 1\ns_branch {bk}")

def rbf(dst, src):
    A(f"v_cvt_pk_bf16_f32 {dst}, {src}, {src}")
    A(f"v_and_b32 {dst}, 0xffff0000, {dst}")
def treduce(r):
    A(f"v_permlane32_swap_b32 {v(r)}, {v(r+2)}")
    A(f"v_permlane32_swap_b32 {v(r+1)}, {v(r+3)}")
    A(f"v_add_f32 {v(r)}, {v(r)}, {v(r+2)}")
    A(f"v_add_f32 {v(r+1)}, {v(r+1)}, {v(r+3)}")
    A(f"v_permlane16_swap_b32 {v(r)}, {v(r+1)}")
    A(f"v_add_f32 {v(r)}, {v(r)}, {v(r+1)}")
    A(f"v_add_f32_dpp {v(r)}, {v(r)}, {v(r)} row_ror:8 row_mask:0xf bank_mask:0xf")
S_, Q_ = v(TM), v(TM+1)
def stats(slot_off, write=True, early=None, late=None):
    S, Q = S_, Q_
    A(f"v_mov_b32 {S}, 0"); A(f"v_mov_b32 {Q}, 0")
    for i in range(9):
        A(f"v_dot2c_f32_bf16 {S}, {v(XS+i)}, {vOnes}")
        A(f"v_dot2c_f32_bf16 {Q}, {v(XS+i)}, {v(XS+i)}")
        if i == 2 and early: early()
    A(f"v_lshrrev_b32 {v(TM+2)}, 5, v0"); A(f"v_lshlrev_b32 {v(TM+2)}, 3, {v(TM+2)}")
    A(f"v_permlane16_swap_b32 {S}, {Q}")
    A(f"v_add_f32 {S}, {S}, {Q}")
    for k in (8, 4, 2, 1):
        A(f"v_add_f32_dpp {S}, {S}, {S} row_ror:{k} row_mask:0xf bank_mask:0xf")
    A(f"v_mul_f32 {Q}, {f32(1/576)}, {S}")
    A(f"v_mul_f32 {S}, {f32(1/576)}, {S}")
    if late: late()
    A(f"v_permlane16_swap_b32 {S}, {Q}")
    A(f"v_fma_f32 {Q}, -{S}, {S}, {Q}")
    A(f"v_max_f32 {Q}, 0, {Q}")
    A(f"v_cvt_pk_bf16_f32 {Q}, {S}, {Q}")
    A(f"v_lshlrev_b32 {S}, 16, {Q}")
    A(f"v_and_b32 {Q}, 0xffff0000, {Q}")
    A(f"v_add_f32 {Q}, {f32(1e-5)}, {Q}")
    rbf(Q, Q)
    A(f"v_sqrt_f32 {Q}, {Q}")
    rbf(Q, Q)
    A(f"v_rcp_f32 {Q}, {Q}")
    if write: A(f"ds_write_b64 {v(TM+2)}, {v(TM,2)} offset:{L_STAT+slot_off}")
def zero(r, n=4):
    for i in range(n): A(f"v_mov_b32 {v(r+i)}, 0")
def xs_loads(rr, so, fl):
    return [f"buffer_load_dwordx4 {v(XS,4)}, {vXS1}, {srd(rr)}, {so} offen{fl}",
            f"buffer_load_dwordx4 {v(XS+4,4)}, {vXS1}, {srd(rr)}, {so} offen offset:512{fl}",
            f"buffer_load_dword {v(XS+8)}, {vXS2}, {srd(rr)}, {so} offen offset:1024{fl}"]

A.raw(f"; @launch grid=(256,1,1) block=(256,1,1) lds={L_SIZE}")
A.raw('.amdgcn_target "amdgcn-amd-amdhsa--gfx950"')
A.raw(".text")
A.raw(f".globl {NAME}_kernel")
A.raw(".p2align 8")
A.raw(f".type {NAME}_kernel,@function")
A.raw(f"{NAME}_kernel:")
if ST:
    A("s_memrealtime s[100:101]")
    for k in range(14): A(f"s_mov_b64 s[{72+2*k}:{73+2*k}], 0")
A("s_cmp_ge_u32 s2, 256")
A("s_cbranch_scc1 L_end")
for r, off in ((rWS, 96), (rX, 0), (rWQ, 24), (rK, 8), (rV, 16), (rWO, 32)):
    A(f"s_load_dwordx2 s[{r}:{r+1}], s[0:1], {off}")
A(f"v_lshrrev_b32 {v(TM)}, 6, v0")
A(f"v_and_b32 v0, 63, v0")
A(f"v_readfirstlane_b32 {sW}, {v(TM)}")
for r, n in ((rX, 2304), (rWQ, 4718592), (rK, 33554432), (rV, 33554432), (rWS, 268435456), (rWO, 4718592)):
    A(f"s_mov_b32 s{r+2}, {n}"); A(f"s_mov_b32 s{r+3}, 0x20000")
A(f"s_and_b32 {sX}, s2, 7")
A(f"s_lshr_b32 {sJ}, s2, 3")
A("s_mov_b32 s68, 0x00ff00ff"); A("s_mov_b32 s69, 0x00ff00ff")
G, C, B2 = v(TM+3), v(TM+4), v(TM+5)
A(f"v_lshrrev_b32 {G}, 4, v0")
A(f"v_and_b32 {C}, 15, v0")
A(f"v_lshlrev_b32 {vL16}, 4, v0")
A(f"v_lshlrev_b32 {vL128}, 7, v0")
for i in range(4): A(f"v_mov_b32 {v(EM+i)}, -1")
A(f"s_lshr_b32 {t0}, {sJ}, 4"); A(f"s_lshl_b32 {t3}, {sX}, 1"); A(f"s_add_u32 {t0}, {t0}, {t3}")
A(f"s_bfe_u32 {t1}, {sJ}, 0x10003")
A(f"s_and_b32 {t2}, {sJ}, 7")
A(f"s_mul_i32 {sGf}, {sX}, {GB}")
A(f"v_bfe_u32 {B2}, v0, 2, 1")
A(f"v_mul_u32_u24 {vXAm}, 1152, {B2}")
A(f"v_lshl_add_u32 {vXAm}, {G}, 4, {vXAm}")
A(f"s_mul_i32 {t4}, {t2}, 144")
A(f"v_add_u32 {vXAq}, {t4}, {vXAm}")
for i in range(12): A(f"v_mov_b32 {v(XA+i)}, 0x3f803f80")
A(f"v_lshlrev_b32 {v(TM+6)}, 13, {G}")
A(f"v_lshl_add_u32 {v(TM+6)}, {C}, 4, {v(TM+6)}")
A(f"s_mul_i32 {t3}, {t2}, 18"); A(f"s_add_u32 {t3}, {t3}, {sW}"); A(f"s_lshl_b32 {t3}, {t3}, 15")
A(f"s_lshl_b32 {t4}, {t0}, 9"); A(f"s_add_u32 {t3}, {t3}, {t4}"); A(f"s_lshl_b32 {t4}, {t1}, 8"); A(f"s_add_u32 {t3}, {t3}, {t4}")
A(f"s_lshl_b32 {t4}, {sW}, 10"); A(f"s_add_u32 m0, {t4}, {L_WQ}")
A(f"s_lshl_b32 {kv0}, {t1}, 24"); A(f"s_lshl_b32 {t4}, {t0}, 20"); A(f"s_add_u32 {kv0}, {kv0}, {t4}")
A(f"s_lshl_b32 {t4}, {t2}, 15"); A(f"s_add_u32 {kv0}, {kv0}, {t4}")
A(f"s_lshl_b32 {t4}, {sW}, 13"); A(f"s_add_u32 {kv0}, {kv0}, {t4}")
A(f"s_add_u32 {kv0}, {kv0}, {3072*256}"); A(f"s_add_u32 {kv1}, {kv0}, 4096")
A(f"v_xor_b32 {v(TM+7)}, {C}, {G}")
A(f"v_lshlrev_b32 {v(TM+7)}, 4, {v(TM+7)}")
A(f"v_lshl_add_u32 {v(KA)}, {G}, 8, {v(TM+7)}")
for i in range(1, 4): A(f"v_xor_b32 {v(KA+i)}, {64*i}, {v(KA)}")
A(f"s_lshl_b32 {sL}, {sJ}, 2"); A(f"s_add_u32 {sL}, {sL}, {sW}")
A(f"s_lshl_b32 {t4}, {sL}, 9"); A(f"s_add_u32 {t4}, {t4}, {QP_O}")
A(f"v_add_u32 {vQPst}, {t4}, {vL16}")
A(f"s_mov_b32 {t5}, {EP_O}")
A("s_waitcnt lgkmcnt(0)")
pstamp(0)
A("s_mov_b64 exec, 1")
A(f"buffer_load_dword {FN}, {vL16}, {srd(rWS)}, {t5} offen{NT}")
A("s_mov_b64 exec, -1")
def empty_share(base, fl):
    A(f"s_mul_i32 {t5}, {sL}, {CLR}"); A(f"s_add_u32 {t5}, {t5}, {base}")
    A(f"s_mov_b32 exec_hi, {(1 << (CLR//16-32)) - 1}")
    A(f"buffer_store_dwordx4 {v(EM,4)}, {vL16}, {srd(rWS)}, {t5} offen{fl}")
    A("s_mov_b32 exec_hi, -1")
A(f"s_cmp_lg_u32 {sW}, 3")
A("s_cbranch_scc1 L_pro2")
A(f"v_lshrrev_b32 {v(TM+8)}, 5, v0"); A(f"v_and_b32 {v(TM+9)}, 31, v0")
A(f"v_mul_u32_u24 {vXS1}, 1152, {v(TM+8)}"); A(f"v_lshl_add_u32 {vXS2}, {v(TM+9)}, 2, {vXS1}"); A(f"v_lshl_add_u32 {v(TM+10)}, {v(TM+9)}, 3, {vXS1}"); A(f"v_lshl_add_u32 {vXS1}, {v(TM+9)}, 4, {vXS1}")
for l in xs_loads(rX, 0, NT): A(l)
A(f"s_mul_i32 {t5}, {t2}, 144")
A(f"buffer_load_dwordx2 {v(XG,2)}, {v(TM+10)}, {srd(rX)}, {t5} offen{NT}")
A("L_pro2:")
for n in range(5):
    if n == 4:
        A(f"s_cmp_ge_u32 {sW}, 2"); A("s_cbranch_scc1 L_pro1")
    A(f"buffer_load_dwordx4 {v(TM+6)}, {srd(rWQ)}, {t3} offen{NTQ} lds")
    if n < 4: A(f"s_add_u32 {t3}, {t3}, {16*8192}"); A("s_add_u32 m0, m0, 4096")
A("L_pro1:")
empty_share(sGf, '')
A(f"s_lshl_b32 {t4}, {sW}, 13"); A(f"s_add_u32 m0, {t4}, {L_K}")
for i in range(8):
    if i == 4: A(f"s_add_u32 m0, m0, 4096")
    A(f"buffer_load_dwordx4 {v(KA+i%4)}, {srd(rK)}, {kv0 if i < 4 else kv1} offen offset:{1024*(i%4)}{NTK} lds")

def constants():
    A(f"v_mul_u32_u24 {vWrow}, 1152, {G}")
    A(f"v_lshl_add_u32 {vWrow}, {C}, 4, {vWrow}")
    A(f"s_cmp_lt_u32 {sJ}, 18"); A(f"s_cselect_b32 {sRole}, 1, 0")
    A(f"s_cmp_ge_u32 {sJ}, 20"); A(f"s_cselect_b32 {t4}, 2, 0"); A(f"s_cmp_lt_u32 {sW}, 3"); A(f"s_cselect_b32 {t4}, {t4}, 0"); A(f"s_or_b32 {sRole}, {sRole}, {t4}")
    A(f"s_sub_u32 {sTask}, {sJ}, 20"); A(f"s_mul_i32 {sTask}, {sTask}, 3"); A(f"s_add_u32 {sTask}, {sTask}, {sW}"); A(f"s_min_u32 {sTask}, {sTask}, 35")
    A(f"s_lshl_b32 {t3}, {sX}, 4"); A(f"s_and_b32 {t4}, {sJ}, 15"); A(f"s_add_u32 {sWo}, {t3}, {t4}"); A(f"s_mul_i32 {sWo}, {sWo}, {32*1152}")
    A(f"s_lshl_b32 {t4}, {sW}, 8"); A(f"s_add_u32 {sWo}, {sWo}, {t4}")
    for r, n in ((rW1, 5308416), (rW2, 5308416), (rOUT, 2304), (rT1, 9216), (rT2, 1152)):
        A(f"s_mov_b32 s{r+2}, {n}"); A(f"s_mov_b32 s{r+3}, 0x20000")
    A("s_mov_b32 s70, 0xffff0000"); A("s_mov_b32 s71, 0xffff0000")
    A(f"v_lshlrev_b32 {vL4}, 2, v0")
    for i in range(12, 24): A(f"v_mov_b32 {v(XA+i)}, 0x3f803f80")
    A(f"s_lshl_b32 {t4}, {sW}, 13"); A(f"s_add_u32 {t4}, {t4}, {L_K}")
    A(f"v_lshl_add_u32 {v(KA)}, {C}, 8, {v(TM+7)}"); A(f"v_add_u32 {v(KA)}, {t4}, {v(KA)}")
    for i in range(1, 4): A(f"v_xor_b32 {v(KA+i)}, {64*i}, {v(KA)}")
    T_ = [v(TM+8+i) for i in range(10)]
    A(f"v_and_b32 {T_[0]}, 1, v0")
    A(f"v_mul_u32_u24 {vIdxP}, 0xaaaa, {T_[0]}"); A(f"v_add_u32 {vIdxP}, 0x4444, {vIdxP}")
    A(f"v_and_b32 {T_[1]}, 3, v0")
    A(f"v_mul_u32_u24 {vIdxS}, 0x5555, {T_[1]}")
    A(f"v_bfe_u32 {T_[2]}, v0, 4, 1")
    A(f"v_bfe_u32 {T_[3]}, v0, 2, 2")
    A(f"v_bfe_u32 {T_[4]}, v0, 3, 1")
    A(f"v_lshrrev_b32 {T_[5]}, 5, v0")
    A(f"v_and_b32 {T_[8]}, 7, v0")
    A(f"v_and_b32 {T_[9]}, 31, v0")
    A(f"s_lshr_b32 {t3}, {sJ}, 4")
    A(f"s_lshr_b32 {t5}, {sJ}, 3")
    A(f"s_lshl_b32 {t3}, {t3}, 1"); A(f"s_lshr_b32 {t4}, {sW}, 1"); A(f"s_add_u32 {t3}, {t3}, {t4}"); A(f"s_lshl_b32 {t3}, {t3}, 14")
    A(f"s_and_b32 {t4}, {sW}, 1"); A(f"s_lshl_b32 {t4}, {t4}, 10"); A(f"s_add_u32 {t3}, {t3}, {t4}")
    A(f"s_lshl_b32 {t4}, {t1}, 8"); A(f"s_add_u32 {t3}, {t3}, {t4}"); A(f"s_add_u32 {t3}, {t3}, {QP_O}")
    A(f"v_lshl_add_u32 {vQPg}, {T_[5]}, 4, {T_[2]}"); A(f"v_lshlrev_b32 {vQPg}, 9, {vQPg}"); A(f"v_lshl_add_u32 {vQPg}, {C}, 4, {vQPg}"); A(f"v_add_u32 {vQPg}, {t3}, {vQPg}")
    A(f"v_add_u32 {vQPg2}, 4096, {vQPg}")
    A(f"s_and_b32 {t3}, {sW}, 1"); A(f"s_lshl_b32 {t3}, {t3}, 8"); A(f"s_lshr_b32 {t4}, {sW}, 1"); A(f"s_lshl_b32 {t4}, {t4}, 7"); A(f"s_add_u32 {t3}, {t3}, {t4}")
    A(f"v_bfe_u32 {T_[6]}, v0, 3, 2"); A(f"v_bfe_u32 {T_[7]}, v0, 1, 2")
    A(f"v_lshlrev_b32 {vQTw}, 5, {T_[6]}"); A(f"v_lshl_add_u32 {vQTw}, {T_[0]}, 4, {vQTw}"); A(f"v_lshl_add_u32 {vQTw}, {T_[7]}, 2, {vQTw}")
    A(f"v_lshl_add_u32 {vQTw}, {T_[5]}, 1, {vQTw}"); A(f"v_add_u32 {vQTw}, {t3}, {vQTw}")
    A(f"v_lshlrev_b32 {vQTr}, 5, {G}"); A(f"v_lshl_add_u32 {vQTr}, {T_[4]}, 7, {vQTr}"); A(f"v_lshl_add_u32 {vQTr}, {T_[0]}, 4, {vQTr}")
    A(f"v_mul_u32_u24 {vOTr}, 640, {T_[4]}"); A(f"v_lshl_add_u32 {vOTr}, {G}, 5, {vOTr}"); A(f"v_lshl_add_u32 {vOTr}, {B2}, 4, {vOTr}")
    A(f"s_mul_i32 {t3}, {sW}, 1280"); A(f"s_add_u32 {t3}, {t3}, {L_PT}")
    A(f"v_add_u32 {vPTr}, {t3}, {vOTr}"); A(f"v_add_u32 {vOTr}, {L_OT}, {vOTr}")
    A(f"v_bfe_u32 {T_[6]}, v0, 1, 4")
    A(f"v_mul_u32_u24 {vPTw}, 640, {T_[5]}"); A(f"v_lshl_add_u32 {vPTw}, {T_[6]}, 5, {vPTw}"); A(f"v_lshl_add_u32 {vPTw}, {T_[0]}, 3, {vPTw}"); A(f"v_add_u32 {vPTw}, {t3}, {vPTw}")
    A(f"v_lshrrev_b32 {vHPr}, 1, v0"); A(f"v_lshlrev_b32 {vHPr}, 4, {vHPr}"); A(f"v_lshl_add_u32 {vHPr}, {T_[0]}, 2, {vHPr}"); A(f"v_add_u32 {vHPr}, {L_HP}, {vHPr}")
    A(f"s_lshl_b32 {t3}, {sW}, 9"); A(f"s_add_u32 {t3}, {t3}, {L_HP}"); A(f"v_add_u32 {vHPw}, {t3}, {vL16}")
    A(f"s_lshl_b32 {t3}, {t5}, 9"); A(f"s_add_u32 {t3}, {t3}, {ST_O}")
    A(f"s_lshl_b32 {t4}, {t2}, 2"); A(f"s_add_u32 {t4}, {t4}, {sW}"); A(f"s_lshl_b32 {t4}, {t4}, 2"); A(f"s_add_u32 {t4}, {t4}, {t3}")
    A(f"v_lshlrev_b32 {vSTst}, 8, {T_[5]}"); A(f"v_lshl_add_u32 {vSTst}, {T_[0]}, 7, {vSTst}"); A(f"v_add_u32 {vSTst}, {t4}, {vSTst}")
    A(f"s_lshl_b32 {t3}, {t1}, 1"); A(f"s_lshr_b32 {t4}, {sW}, 1"); A(f"s_add_u32 {t3}, {t3}, {t4}"); A(f"s_lshl_b32 {t3}, {t3}, 9"); A(f"s_add_u32 {t3}, {t3}, {ST_O}")
    A(f"s_lshr_b32 {t4}, {t2}, 2"); A(f"s_lshl_b32 {t4}, {t4}, 8"); A(f"s_add_u32 {t3}, {t3}, {t4}")
    A(f"v_lshrrev_b32 {T_[7]}, 3, v0")
    A(f"v_lshl_add_u32 {vSTg}, {T_[7]}, 4, {t3}")
    A(f"s_and_b32 {t4}, {sW}, 1"); A(f"s_lshl_b32 {t4}, {t4}, 3"); A(f"v_add_u32 {vSTm}, {t4}, {vSTg}")
    A(f"s_lshr_b32 {t3}, {sJ}, 4"); A(f"s_lshl_b32 {t3}, {t3}, 15"); A(f"s_lshl_b32 {t4}, {t1}, 11"); A(f"s_add_u32 {t3}, {t3}, {t4}")
    A(f"s_lshl_b32 {t4}, {sW}, 9"); A(f"s_add_u32 {t3}, {t3}, {t4}"); A(f"s_lshl_b32 {t4}, {t2}, 6"); A(f"s_add_u32 {t3}, {t3}, {t4}")
    A(f"v_lshlrev_b32 {T_[6]}, 4, {T_[1]}"); A(f"v_lshl_add_u32 {T_[6]}, {T_[2]}, 3, {T_[6]}")
    A(f"v_lshl_add_u32 {vOPst}, {T_[5]}, 2, {T_[3]}"); A(f"v_lshl_add_u32 {vOPst}, {vOPst}, 12, {T_[6]}"); A(f"v_add_u32 {vOPst}, {t3}, {vOPst}")
    A(f"s_and_b32 {t3}, {sJ}, 15"); A(f"s_lshl_b32 {t3}, {t3}, 12"); A(f"s_lshl_b32 {t4}, {sW}, 10"); A(f"s_add_u32 {t3}, {t3}, {t4}"); A(f"v_lshl_add_u32 {vOPg}, v0, 3, {t3}")
    A(f"s_lshr_b32 {t3}, {sW}, 1"); A(f"s_mul_i32 {t3}, {t3}, 640"); A(f"s_and_b32 {t4}, {sW}, 1"); A(f"s_lshl_b32 {t4}, {t4}, 1"); A(f"s_add_u32 {t3}, {t3}, {t4}"); A(f"s_add_u32 {t3}, {t3}, {L_OT}")
    A(f"v_mul_u32_u24 {vOTw}, 20, {T_[4]}"); A(f"v_lshl_add_u32 {vOTw}, {T_[8]}, 6, {vOTw}"); A(f"v_lshl_add_u32 {vOTw}, {T_[5]}, 5, {vOTw}")
    A(f"v_lshl_add_u32 {vOTw}, {T_[2]}, 3, {vOTw}"); A(f"v_add_u32 {vOTw}, {t3}, {vOTw}")
    A(f"s_mul_i32 {t3}, {sW}, {4*1152}"); A(f"s_lshl_b32 {t4}, {sJ}, 6"); A(f"s_add_u32 {t3}, {t3}, {t4}"); A(f"s_add_u32 {t3}, {t3}, {Y_O}")
    A(f"v_mul_u32_u24 {vMst}, 18, {T_[5]}"); A(f"v_add_u32 {vMst}, {vMst}, {T_[3]}"); A(f"v_mul_u32_u24 {vMst}, 1152, {vMst}")
    A(f"v_add3_u32 {vMst}, {vMst}, {T_[6]}, {t3}")
    A(f"v_subrev_u32 {vYst}, 1024, {vMst}")
    A(f"v_mul_u32_u24 {vXS1}, 1152, {T_[5]}"); A(f"v_lshl_add_u32 {vXS2}, {T_[9]}, 2, {vXS1}"); A(f"v_lshl_add_u32 {vXS1}, {T_[9]}, 4, {vXS1}")
    A(f"s_lshl_b32 {t3}, {t1}, 3"); A(f"s_add_u32 {t3}, {t3}, {L_STAT}"); A(f"v_mov_b32 {vSTATr}, {t3}")
    A(f"s_mul_i32 {t4}, {sW}, 384"); A(f"v_add_u32 {vXAm}, {t4}, {vXAm}")
    A(f"s_mul_i32 {t4}, {sX}, 18"); A(f"s_add_u32 {t4}, {t4}, {sJ}"); A(f"s_lshl_b32 {t5}, {t4}, 6")
    A(f"v_lshl_add_u32 {vB1}, {T_[9]}, 1, {t5}")
    A(f"s_mul_i32 {t4}, {sTask}, 1152"); A(f"s_add_u32 {t4}, {t4}, {Y_O}"); A(f"v_lshl_add_u32 {vRg}, v0, 3, {t4}")
    A(f"s_sub_u32 {t4}, {sL}, 80"); A(f"s_and_b32 {t4}, {t4}, 63"); A(f"s_lshl_b32 {t4}, {t4}, 16")
    A(f"s_lshl_b32 {t5}, {sX}, 10"); A(f"s_add_u32 {t5}, {t5}, {t4}"); A(f"v_lshl_add_u32 {vXPg}, v0, 3, {t5}")
    A(f"s_lshl_b32 {t5}, {sX}, 7"); A(f"s_add_u32 {t4}, {t4}, {t5}"); A(f"v_lshl_add_u32 {vXPst}, {T_[8]}, 4, {t4}")
    A(f"v_lshrrev_b32 {T_[7]}, 3, v0"); A(f"v_lshl_add_u32 {vXPst}, {T_[7]}, 10, {vXPst}")
    A(f"v_lshl_add_u32 {T_[7]}, {C}, 1, {T_[5]}")
    A(f"s_lshl_b32 {t4}, {sTask}, 6"); A(f"v_lshl_add_u32 {vZo}, {T_[7]}, 1, {t4}")
    A(f"v_add_u32 {vZst}, {Z1_O}, {vZo}")
    A(f"s_and_b32 {t5}, {sTask}, 7"); A(f"s_cmp_eq_u32 {t5}, {sX}"); A(f"s_cselect_b32 {t5}, 4, 0"); A(f"s_or_b32 {sRole}, {sRole}, {t5}")
    A(f"s_cmp_ge_u32 {sTask}, 18"); A(f"s_cselect_b32 {t5}, 1152, 0")
    A(f"v_subrev_u32 {vB2}, {t5}, {vZo}")

def constants1():
    A(f"v_and_b32 {v(TM+8)}, 1, v0")
    A(f"v_mul_u32_u24 {vIdxD}, 0x5555, {v(TM+8)}"); A(f"v_add_u32 {vIdxD}, 0x8888, {vIdxD}")
    A(f"v_mov_b32 {vOnes}, 0x3f803f80")
    A(f"s_lshl_b32 {t3}, {sW}, 6"); A(f"s_add_u32 {t3}, {t3}, {L_WQ}")
    A(f"v_lshlrev_b32 {vCq}, 10, {G}"); A(f"v_lshl_add_u32 {vCq}, {C}, 2, {vCq}"); A(f"v_add_u32 {vCq}, {t3}, {vCq}")
    for i in range(16, 24): A(f"v_accvgpr_write_b32 {a(aWQ+i)}, 0")
    zero(D0, 8)
    A(f"ds_write_b128 {v(D0)}, {v(EM,4)} offset:{L_STAT+16}")
    A(f"s_cmp_lg_u32 {sW}, 3")
    A("s_cbranch_scc1 L_c1")
    A(f"s_waitcnt vmcnt({4+1+8})")
    stats(0, False)
    for i in range(2):
        lo, hi = v(TM+8), v(TM+9)
        A(f"v_lshlrev_b32 {lo}, 16, {v(XG+i)}"); A(f"v_and_b32 {hi}, 0xffff0000, {v(XG+i)}")
        A(f"v_sub_f32 {lo}, {lo}, {S_}"); A(f"v_sub_f32 {hi}, {hi}, {S_}")
        A(f"v_cvt_pk_bf16_f32 {v(XG+i)}, {lo}, {hi}")
        A(f"v_lshlrev_b32 {lo}, 16, {v(XG+i)}"); A(f"v_and_b32 {hi}, 0xffff0000, {v(XG+i)}")
        A(f"v_mul_f32 {lo}, {lo}, {Q_}"); A(f"v_mul_f32 {hi}, {hi}, {Q_}")
        A(f"v_cvt_pk_bf16_f32 {v(XG+i)}, {lo}, {hi}")
    A(f"v_lshrrev_b32 {v(TM+8)}, 5, v0"); A(f"v_mul_u32_u24 {v(TM+8)}, 144, {v(TM+8)}"); A(f"v_and_b32 {v(TM+9)}, 31, v0"); A(f"v_lshl_add_u32 {v(TM+8)}, {v(TM+9)}, 3, {v(TM+8)}")
    A("s_mov_b32 exec_lo, 0x3ffff"); A("s_mov_b32 exec_hi, 0x3ffff")
    A(f"ds_write_b64 {v(TM+8)}, {v(XG,2)} offset:{L_X}")
    A("s_mov_b64 exec, -1")
    A("L_c1:")
    A(f"v_mul_u32_u24 {v(TM+10)}, 144, {B2}"); A(f"v_lshl_add_u32 {v(TM+10)}, {G}, 4, {v(TM+10)}")
    A(f"s_lshl_b32 {t3}, {sW}, 11"); A(f"v_add_u32 {v(TM+8)}, {t3}, {vL16}")
    A(f"ds_write_b128 {v(TM+8)}, {v(D1,4)} offset:1024"); A(f"ds_write_b128 {v(TM+8)}, {v(D1,4)} offset:2048")

fl_load = ["s_mov_b32 exec_hi, 0", f"buffer_load_dwordx4 {v(FG,4)}, {vL16}, {srd(rWS)}, {sXoff} offen sc1", "s_mov_b32 exec_hi, -1"]
qp_store = f"buffer_store_dwordx4 {v(D0,4)}, {vQPst}, {srd(rWS)}, {{so}} offen{{fl}}"
def qg(n): return [f"buffer_load_dwordx{n} {v(QG+4*p,n)}, {vQPg if p < 2 else vQPg2}, {srd(rWS)}, {sGp} offen offset:{2048*(p%2)} sc1" for p in range(4)]
qg4, qg2 = qg(4), qg(2)
pstamp(3)
for r, off in ((rW1, 48), (rW2, 64), (rOUT, 80), (rT1, 56), (rT2, 72)):
    A(f"s_load_dwordx2 s[{r}:{r+1}], s[0:1], {off}")
if args.code:
    A(f"s_cmp_ge_u32 {sL}, 2"); A("s_cbranch_scc1 L_nc")
    A("s_getpc_b64 s[66:67]")
    A("L_pc:")
    A(f"s_lshl_b32 {t3}, {sL}, 13"); A(f"v_add_u32 {v(TM+8)}, {t3}, {vL128}")
    A(f"v_min_u32 {v(TM+8)}, L_codeend-L_pc-4, {v(TM+8)}")
    A(f"global_load_dword {DUM}, {v(TM+8)}, s[66:67]")
    A("L_nc:")
constants1()
A(f"s_mov_b32 {sTO}, 0x40000"); A(f"s_mov_b32 {sMode}, 0"); A(f"s_mov_b32 {sGp}, {sGf}")
cnt = [8]
mark = {'K': 8}
def vm(s): A(s); cnt[0] += 1
A(f"s_lshl_b32 {t4}, {sL}, 9"); A(f"s_add_u32 {t4}, {t4}, {sGf}"); A(f"s_add_u32 {t4}, {t4}, {QP_O}")
A(f"s_add_u32 {sXoff}, {sGf}, {FF_O}")
A("s_mov_b64 exec, 15")
vm(f"buffer_load_dword {DUM}, {vL128}, {srd(rWS)}, {t4} offen sc1{NT}")
vm(f"buffer_load_dword {DUM}, {vL128}, {srd(rWS)}, {sXoff} offen sc1{NT}")
A("s_mov_b64 exec, -1")
def hookQ():
    A(f"s_lshl_b32 {t4}, {sL}, 2"); A(f"s_add_u32 {t4}, {t4}, {sXoff}")
    A(f"s_getreg_b32 {t3}, hwreg(HW_REG_XCC_ID)"); A(f"s_lshl_b32 {t3}, {t3}, 28"); A(f"s_or_b32 {t3}, {t3}, 1")
    A(f"s_waitcnt vmcnt({cnt[0]}) lgkmcnt(0)")
    A("s_barrier")
    pstamp(2)
    for l in exec_xa(): A(l)
    for i in range(3):
        if i == 2: A("s_mov_b64 exec, 0x33")
        A(f"ds_read_b128 {v(XA+4*i,4)}, {v(TM+10)} offset:{L_X+64*i}")
    A("s_mov_b64 exec, -1")
    for i in range(2):
        for vv in range(0, 8, 2):
            row = 32*i + 16*(vv >> 2) + (vv & 3)
            A(f"ds_read2st64_b32 {a(aWQ+8*i+vv,2)}, {vCq} offset0:{row} offset1:{row+1}")
    A("s_mov_b32 exec_hi, 0")
    for vv in (0, 2): A(f"ds_read2st64_b32 {a(aWQ+16+vv,2)}, {vCq} offset0:{64+vv} offset1:{65+vv}")
    A("s_mov_b32 exec_hi, -1")
    A(f"v_readfirstlane_b32 {sFlag}, {FN}")
    A(f"s_add_u32 {sFlag}, {sFlag}, 0x0e377902"); A(f"s_and_b32 {sFlag}, {sFlag}, 0x0fffffff"); A(f"s_or_b32 {sFlag}, {sFlag}, {t3}")
    A(f"v_mov_b32 {FN}, {sFlag}")
    A("s_mov_b64 exec, 1")
    vm(f"buffer_store_dword {FN}, {vL16}, {srd(rWS)}, {t4} offen")
    A("s_mov_b64 exec, -1")
    A(f"v_and_b32 {vTag}, 0xff, {FN}"); A(f"s_movk_i32 {t4}, 0xff")
    A("s_waitcnt lgkmcnt(0)")
    for i in range(3): sm(D0, XA+4*i, aWQ+8*i, vIdxD)
    for i in range(4): A(f"v_bfi_b32 {v(D0+i)}, {t4}, {vTag}, {v(D0+i)}")
    A("s_mov_b32 exec_hi, 0")
    vm(qp_store.format(so=sGf, fl=''))
    A("s_mov_b32 exec_hi, -1")
    pstamp(1)
for k in range(9):
    if k == args.pQ: hookQ()
    if k == 8 - args.vw: mark['V'] = cnt[0]
    if k < 8: vm(f"buffer_load_dwordx4 {a(aV+4*k,4)}, {vL16}, {srd(rV)}, {kv0 if k < 4 else kv1} offen offset:{1024*(k%4)}{NTV}")
    if k == 7: pstamp(9)
TT = v(TM+4)
def slots_touch():
    A(f"s_lshl_b32 {t1}, {sJ}, 2"); A(f"s_add_u32 {t1}, {t1}, {sW}")
    A(f"s_mul_i32 {t3}, {t1}, 896"); A(f"s_add_u32 {t3}, {t3}, {sGf}"); A(f"s_add_u32 {t3}, {t3}, {Y_O}")
    A("s_mov_b64 exec, 0x7f")
    A(f"buffer_load_dword {DUM}, {vL128}, {srd(rWS)}, {t3} offen sc1{NT}")
    A("s_mov_b64 exec, -1")
assert Y_O + 64 * 896 >= Z3_O + 2304
def w1_touch():
    A(f"s_lshl_b32 {t1}, {sJ}, 2"); A(f"s_add_u32 {t1}, {t1}, {sW}")
    A(f"s_mul_i32 {t4}, {sX}, 576"); A(f"s_add_u32 {t4}, {t4}, {t1}"); A(f"s_add_u32 {t4}, {t4}, 512"); A(f"s_mul_i32 {t4}, {t4}, 1152")
    A(f"s_mul_i32 {t1}, {t1}, {9*9216}")
    A(f"s_mul_i32 {t3}, {sX}, 1152"); A(f"s_add_u32 {t1}, {t1}, {t3}"); A(f"s_add_u32 {t3}, {t1}, {5*9216}")
    A(f"v_mul_u32_u24 {TT}, 57, v0"); A(f"v_lshrrev_b32 {TT}, 9, {TT}"); A(f"v_mul_u32_u24 {TT}, {9216-1152}, {TT}"); A(f"v_add_u32 {TT}, {TT}, {vL128}")
    A("s_mov_b32 exec_hi, 0x1fff")
    A(f"buffer_load_dword {DUM}, {TT}, {srd(rW1)}, {t1} offen{NTM}")
    A("s_mov_b32 exec_hi, 15")
    A(f"buffer_load_dword {DUM}, {TT}, {srd(rW1)}, {t3} offen{NTM}")
    A("s_mov_b64 exec, 0x1ff")
    A(f"buffer_load_dword {DUM}, {vL128}, {srd(rW2)}, {t4} offen{NTM}")
    A("s_mov_b64 exec, -1")
def w2_loads():
    l1 = A.newlabel('L_w2')
    A(f"s_mul_i32 {t0}, {sX}, 18"); A(f"s_add_u32 {t0}, {t0}, {sJ}"); A(f"s_mul_i32 {t0}, {t0}, {32*1152}")
    A(f"s_lshl_b32 {t1}, {sW}, 8"); A(f"s_add_u32 {t1}, {t1}, {t0}")
    for i in range(8):
        A(f"buffer_load_dwordx4 {a(aW2+4*i,4)}, {vWrow}, {srd(rW2)}, {t1} offen{NT2}")
        if i < 7: A(f"s_add_u32 {t1}, {t1}, 4608")
    A(f"s_cmp_lg_u32 {sW}, 3")
    A(f"s_cbranch_scc1 {l1}")
    A(f"s_mov_b64 exec, {mLO8}")
    for i in range(8):
        A(f"buffer_load_dwordx4 {a(aW2t+4*i,4)}, {vWrow}, {srd(rW2)}, {t0} offen offset:1024{NT2}")
        if i < 7: A(f"s_add_u32 {t0}, {t0}, 4608")
    A("s_mov_b64 exec, -1")
    A(f"{l1}:")
def wo_loads(k0, k1, with_tail):
    for k in range(k0, k1):
        A(f"buffer_load_dwordx4 {a(aWO+4*k,4)}, {vWrow}, {srd(rWO)}, {sWo} offen{NTO}")
        A(f"s_add_u32 {sWo}, {sWo}, 4608")
    if with_tail:
        l1 = A.newlabel('L_wt')
        A(f"s_cmp_lg_u32 {sW}, 3")
        A(f"s_cbranch_scc1 {l1}")
        A(f"s_mov_b64 exec, {mLO8}")
        for i in range(7, -1, -1):
            A(f"s_sub_u32 {sWo}, {sWo}, 4608")
            A(f"buffer_load_dwordx4 {a(aWOt+4*i,4)}, {vWrow}, {srd(rWO)}, {sWo} offen offset:256{NTO}")
        A("s_mov_b64 exec, -1")
        A(f"{l1}:")
constants()
pstamp(4)
stamp()
A(f"s_waitcnt vmcnt({cnt[0]-mark['K']})")
for T in range(2):
    for q in range(4): A(f"ds_read_b128 {a(aK+16*T+4*q,4)}, {v(KA+q)} offset:{4096*T}")
A(f"s_mov_b32 {sXPo}, {XP_O}")
A(f"s_cmp_lt_u32 {sJ}, 16")
A("s_cbranch_scc1 L_g1n")
A(f"v_readfirstlane_b32 {t4}, {vOPg}"); A(f"v_readfirstlane_b32 {t5}, {vSTg}")
A(f"s_add_u32 {t4}, {t4}, {sGf}"); A(f"s_add_u32 {t5}, {t5}, {sGf}")
A("s_mov_b64 exec, 0xff")
A(f"buffer_load_dword {DUM}, {vL128}, {srd(rWS)}, {t4} offen sc1{NT}")
A("s_mov_b64 exec, 3")
A(f"buffer_load_dword {DUM}, {vL128}, {srd(rWS)}, {t5} offen sc1{NT}")
A("s_mov_b64 exec, -1")
A(f"buffer_load_ushort {vXres}, {vZo}, {srd(rX)}, 0 offen{NT}")
A(f"buffer_load_ushort {vB2}, {vB2}, {srd(rT2)}, 0 offen{NT}")
wo_loads(0, 8, True)
A("s_branch L_g1o")
A("L_g1n:")
if 's' in args.early: slots_touch()
if '1' in args.early: w1_touch()
if '2' in args.early: w2_loads()
A("L_g1o:")
pstamp(6)
A(f"s_waitcnt vmcnt({args.vw})")
if ST and not args.pro and ONLY is None: A(f"s_memrealtime s[74:75]")
pstamp(5)
def flags_diff():
    A(f"v_xor_b32 {CK}, {sFlag}, {v(FG)}")
    for i in range(1, 4): A(f"v_bitop3_b32 {CK}, {CK}, {v(FG+i)}, {sFlag} bitop3:0xf6")
st_rd = f"ds_read_b64 {v(TM,2)}, {vSTATr}"
A("L_g4:")
for l in fl_load + qg4: A(l)
A("s_waitcnt vmcnt(0)")
pstamp(7)
flags_diff()
A(f"v_cmp_ne_u32 vcc, 0, {CK}")
A("s_cmp_lg_u32 vcc_lo, 0")
if args.forcefb: A("s_cmp_eq_u32 0, 0")
A("s_cbranch_scc1 L_af2")
A(f"s_mov_b32 {sMode}, 0")
A("L_g2:")
for i in range(16): A(f"v_xor_b32 {v(QG+i)}, {vTag}, {v(QG+i)}")
A(f"v_or3_b32 {CK}, {v(QG)}, {v(QG+1)}, {v(QG+2)}")
for i in range(3, 15, 2): A(f"v_or3_b32 {CK}, {CK}, {v(QG+i)}, {v(QG+i+1)}")
A(f"v_or_b32 {CK}, {CK}, {v(QG+15)}")
A(f"v_and_b32 {CK}, 0xff, {CK}")
A(f"v_cmp_ne_u32 vcc, 0, {CK}")
A("s_cbranch_vccnz L_g5")
A("L_g3:")
A(f"s_mov_b32 {sL}, 0")
zero(D0)
A(f"v_mov_b32 {v(TM)}, 0"); A(f"v_mov_b32 {v(TM+1)}, 1.0")
tail.append("L_g5:\n" + timeout("L_g4", "L_g3"))
pstamp(8)
A(f"v_add_f32 {v(TM+2)}, {v(QG+2)}, {v(QG+6)}"); A(f"v_add_f32 {v(TM+3)}, {v(QG+3)}, {v(QG+7)}")
A(f"v_add_f32 {v(TM+4)}, {v(QG+10)}, {v(QG+14)}"); A(f"v_add_f32 {v(TM+5)}, {v(QG+11)}, {v(QG+15)}")
A(f"v_add_f32 {v(TM+2)}, {v(TM+2)}, {v(TM+4)}"); A(f"v_add_f32 {v(TM+3)}, {v(TM+3)}, {v(TM+5)}")
A(f"v_permlane32_swap_b32 {v(TM+2)}, {v(TM+3)}")
A(f"v_add_f32 {vCq}, {v(TM+2)}, {v(TM+3)}")
A("s_branch L_qfin")

A("L_layer:")
zero(D0, 8)
def q_pub():
    A(f"v_and_b32 {v(D0)}, -2, {v(D0)}"); A(f"v_and_b32 {v(D0+1)}, -2, {v(D0+1)}")
    A("s_mov_b32 exec_hi, 0")
    pub(f"buffer_store_dwordx2 {v(D0,2)}, {vQPst}, {srd(rWS)}, {{so}} offen{{fl}}")
    A("s_mov_b32 exec_hi, -1")
A(f"s_cmp_eq_u32 {sW}, 3")
A("s_cbranch_scc1 L_q3")
poll_proj(vXAq, sXoff, 3, aWQ, True)
q_pub()
nst[0] = 1
stamp()
zero(D0)
qregs = [v(QG+4*p+i) for p in range(4) for i in range(2)]
qchk1 = [f"v_or3_b32 {CK}, {qregs[0]}, {qregs[1]}, {qregs[2]}", f"v_or3_b32 {CK}, {CK}, {qregs[3]}, {qregs[4]}", f"v_or3_b32 {CK}, {CK}, {qregs[5]}, {qregs[6]}",
         f"v_bitop3_b32 {CK}, {CK}, {qregs[7]}, 1 bitop3:0xa8", f"v_cmp_ne_u32 vcc, 0, {CK}"]
poll(qg2, qregs, site='q', chk=qchk1)
A("s_branch L_q4")
A("L_q3:")
poll(xs_loads(rWS, sXoff, ' sc1') + xa_loads(rWS, vXAq, sXoff, 3, ' sc1', True), [v(XS+i) for i in range(9)], site='z')
if 'z' in args.p2: A("s_waitcnt vmcnt(0)")
for i in range(3): sm(D0, XA+4*i, aWQ+8*i, vIdxD)
stats(16, early=q_pub, late=lambda: [A(l) for l in qg2])
nst[0] = 1
stamp()
zero(D0)
poll(qg2, qregs, primed=True, chk=qchk1)
A("L_q4:")
A(f"ds_read_b64 {v(TM,2)}, {vSTATr} offset:16")
A("L_qfin:")
stamp()
A(f"v_add_f32 {v(TM+2)}, {v(QG)}, {v(QG+4)}"); A(f"v_add_f32 {v(TM+3)}, {v(QG+1)}, {v(QG+5)}")
A(f"v_add_f32 {v(TM+4)}, {v(QG+8)}, {v(QG+12)}"); A(f"v_add_f32 {v(TM+5)}, {v(QG+9)}, {v(QG+13)}")
A(f"v_add_f32 {v(TM+2)}, {v(TM+2)}, {v(TM+4)}"); A(f"v_add_f32 {v(TM+3)}, {v(TM+3)}, {v(TM+5)}")
A(f"v_permlane32_swap_b32 {v(TM+2)}, {v(TM+3)}")
A(f"v_add_f32 {v(TM+2)}, {v(TM+2)}, {v(TM+3)}")
A("L_q5:")
A("s_waitcnt lgkmcnt(0)")
A(f"v_cmp_eq_u32 vcc, -1, {v(TM+1)}")
A("s_cbranch_vccnz L_q6")
A("L_q7:")
tail.append(f"L_q6:\nds_read_b64 {v(TM,2)}, {vSTATr} offset:16\n" + timeout("L_q5", "L_q7"))
A(f"v_fma_f32 {v(TM+2)}, -{v(TM)}, {vCq}, {v(TM+2)}")
A(f"v_mul_f32 {v(TM+2)}, {v(TM+2)}, {v(TM+1)}")
A(f"v_cvt_pk_bf16_f32 {v(TM+2)}, {v(TM+2)}, {v(TM+2)}")
A(f"ds_write_b16 {vQTw}, {v(TM+2)} offset:{L_QT}")
A("s_mov_b32 vcc_lo, 0xaaaaaaaa"); A("s_mov_b32 vcc_hi, 0xaaaaaaaa")
zero(DP)
A("s_waitcnt lgkmcnt(0)")
A("s_barrier")
A(f"ds_read_b128 {v(AO,4)}, {vQTr} offset:{L_QT}")
A(f"ds_read_b128 {v(AO+4,4)}, {vQTr} offset:{L_QT+256}")
if args.mid:
    A(f"s_lshr_b32 {t0}, {sJ}, 4"); A(f"s_or_b32 {t0}, {t0}, {sL}")
    A("s_cbranch_scc1 L_mid")
    if 's' in args.mid: slots_touch()
    if '1' in args.mid: w1_touch()
    if '2' in args.mid: w2_loads()
    A("L_mid:")
A(f"s_waitcnt lgkmcnt({lg(1)})")
sm(D0, AO, aK, vIdxP); sm(D1, AO, aK+16, vIdxP)
A("s_waitcnt lgkmcnt(0)")
sm(D0, AO+4, aK+8, vIdxP); sm(D1, AO+4, aK+24, vIdxP)
SC, MX, P_, LS, TT = v(TM), v(TM+1), v(TM+2), v(TM+3), v(TM+4)
A(f"v_add_f32 {SC}, {v(D0)}, {v(D0+1)}")
A(f"v_add_f32 {TT}, {v(D1)}, {v(D1+1)}")
A(f"v_cndmask_b32 {SC}, {SC}, {TT}, {mROW}")
rbf(SC, SC)
A(f"v_mul_f32 {SC}, {f32(128 ** -0.5)}, {SC}")
rbf(SC, SC)
A(f"v_mul_f32 {SC}, {f32(1.4426950408889634)}, {SC}")
zero(D0, 2)
A(f"v_max_f32_dpp {MX}, {SC}, {SC} row_ror:8 row_mask:0xf bank_mask:0xf")
for n, k in enumerate((4, 2, 1)):
    zero(D0+2+2*n, 2)
    if k == 1: A(f"v_max_f32_dpp {TT}, {MX}, {MX} row_ror:{k} row_mask:0xf bank_mask:0xf")
    A(f"v_max_f32_dpp {MX}, {MX}, {MX} row_ror:{k} row_mask:0xf bank_mask:0xf")
A(f"v_permlane16_swap_b32 {MX}, {TT}")
A(f"v_max_f32 {MX}, {MX}, {TT}")
A(f"v_sub_f32 {P_}, {SC}, {MX}")
A(f"v_exp_f32 {P_}, {P_}")
A(f"v_cvt_pk_bf16_f32 {TT}, {P_}, 0")
A(f"ds_write2_b32 {vPTw}, {TT}, {TT} offset1:5")
for i in range(4): A(f"ds_read_b128 {v(AO+4*i,4)}, {vPTr} offset:{128*i}")
A(f"v_add_f32_dpp {LS}, {P_}, {P_} row_ror:8 row_mask:0xf bank_mask:0xf")
for k in (4, 2, 1): A(f"v_add_f32_dpp {LS}, {LS}, {LS} row_ror:{k} row_mask:0xf bank_mask:0xf")
A(f"v_mov_b32 {SC}, {LS}")
A(f"v_permlane16_swap_b32 {LS}, {SC}")
A(f"v_add_f32 {LS}, {LS}, {SC}")
A(f"v_cndmask_b32 {SC}, {MX}, {LS}, vcc")
A("s_mov_b32 exec_lo, 3"); A("s_mov_b32 exec_hi, 3")
pub(f"buffer_store_dword {SC}, {vSTst}, {srd(rWS)}, {{so}} offen{{fl}}")
A("s_mov_b64 exec, -1")
for i in range(4):
    A(f"s_waitcnt lgkmcnt({lg(3-i)})")
    sm(DP, AO+4*i, aV+8*i, vIdxS)
def pack4(d):
    A(f"v_cvt_pk_bf16_f32 {v(d)}, {v(d)}, {v(d+1)}"); A(f"v_cvt_pk_bf16_f32 {v(d+1)}, {v(d+2)}, {v(d+3)}")
pack4(DP)
pub(f"buffer_store_dwordx2 {v(DP,2)}, {vOPst}, {srd(rWS)}, {{so}} offen{{fl}}")
stamp()
E = TM + 5
R = TM + 12
def tile_out(wb, tb, vst):
    l1 = A.newlabel('L_t'); l2 = A.newlabel('L_t')
    for i in range(4):
        A(f"s_waitcnt lgkmcnt({lg(3-i)})")
        sm(D0, AO+4*i, wb+8*i, vIdxS)
    A(f"s_cmp_lg_u32 {sW}, 3")
    A(f"s_cbranch_scc1 {l1}")
    for i in range(4): sm(D1, AO+4*i, tb+8*i, vIdxS)
    A(f"{l1}:")
    A("s_waitcnt vmcnt(0)")
    A("s_nop 4")
    pack4(D0)
    pub(f"buffer_store_dwordx2 {v(D0,2)}, {vst}, {srd(rWS)}, {{so}} offen{{fl}}")
    A(f"s_cmp_lg_u32 {sW}, 3")
    A(f"s_cbranch_scc1 {l2}")
    pack4(D1)
    A(f"s_mov_b64 exec, {mLO8}")
    pub(f"buffer_store_dwordx2 {v(D1,2)}, {v(E+2)}, {srd(rWS)}, {{so}} offen{{fl}}")
    A("s_mov_b64 exec, -1")
    A(f"{l2}:")
A(f"s_cmp_lt_u32 {sJ}, 16")
A("s_cbranch_scc1 L_mlp")
op_load = [f"buffer_load_dwordx2 {v(OG+2*i,2)}, {vOPg}, {srd(rWS)}, {sGp} offen offset:{512*i} sc1" for i in range(2)]
A(f"v_add_u32 {v(E+6)}, {4*1152}, {vYst}")
poll([f"buffer_load_dwordx4 {v(SG,4)}, {vSTg}, {srd(rWS)}, {sGp} offen sc1",
      f"buffer_load_dwordx4 {v(SG+4,4)}, {vSTg}, {srd(rWS)}, {sGp} offen offset:128 sc1",
      f"buffer_load_dwordx2 {v(SG+8,2)}, {vSTm}, {srd(rWS)}, {sGp} offen sc1"], [v(SG+i) for i in range(10 if 's' in args.p2 else 8)], site='s')
for l in op_load: A(l)
A(f"v_max3_f32 {MX}, {v(SG)}, {v(SG+1)}, {v(SG+2)}")
A(f"v_max_f32 {MX}, {MX}, {v(SG+3)}")
A(f"v_max_f32_dpp {TT}, {MX}, {MX} row_ror:8 row_mask:0xf bank_mask:0xf")
A(f"v_max_f32_dpp {MX}, {MX}, {MX} row_ror:8 row_mask:0xf bank_mask:0xf")
A(f"v_permlane16_swap_b32 {MX}, {TT}"); A(f"v_max_f32 {SC}, {MX}, {TT}"); A(f"v_max_f32 {MX}, {MX}, {TT}")
A(f"v_permlane32_swap_b32 {MX}, {SC}"); A(f"v_max_f32 {MX}, {MX}, {SC}")
for n, i in enumerate((0, 1, 2, 3, 8, 9)): A(f"v_sub_f32 {v(E+n)}, {v(SG+i)}, {MX}")
for n in range(6): A(f"v_exp_f32 {v(E+n)}, {v(E+n)}")
A(f"v_mul_f32 {LS}, {v(E)}, {v(SG+4)}")
for i in (1, 2, 3): A(f"v_fmac_f32 {LS}, {v(E+i)}, {v(SG+4+i)}")
A(f"v_add_f32_dpp {TT}, {LS}, {LS} row_ror:8 row_mask:0xf bank_mask:0xf")
A(f"v_add_f32_dpp {LS}, {LS}, {LS} row_ror:8 row_mask:0xf bank_mask:0xf")
A(f"v_permlane16_swap_b32 {LS}, {TT}"); A(f"v_add_f32 {SC}, {LS}, {TT}"); A(f"v_add_f32 {LS}, {LS}, {TT}")
poll(op_load, [v(OG+i) for i in range(4)], primed=True)
stamp()
A(f"v_permlane32_swap_b32 {LS}, {SC}")
def unpack2(dst, src):
    for i in range(2):
        A(f"v_lshlrev_b32 {v(dst+2*i)}, 16, {v(src+i)}"); A(f"v_and_b32 {v(dst+2*i+1)}, 0xffff0000, {v(src+i)}")
unpack2(R, OG); unpack2(OG+4, OG+2)
for i in (0, 2): A(f"v_pk_mul_f32 {v(R+i,2)}, {v(R+i,2)}, {v(E+3,2)} op_sel:[0,1] op_sel_hi:[1,1]")
for i in (0, 2): A(f"v_pk_fma_f32 {v(R+i,2)}, {v(OG+4+i,2)}, {v(E+5,2)}, {v(R+i,2)} op_sel_hi:[1,0,1]")
A(f"v_add_f32 {LS}, {LS}, {SC}")
A(f"v_mov_b32 {v(E+2)}, {v(E+6)}")
A(f"v_permlane32_swap_b32 {v(R)}, {v(R+2)}")
A(f"v_permlane32_swap_b32 {v(R+1)}, {v(R+3)}")
A(f"v_add_f32 {v(R)}, {v(R)}, {v(R+2)}")
A(f"v_add_f32 {v(R+1)}, {v(R+1)}, {v(R+3)}")
A(f"v_rcp_f32 {LS}, {LS}")
A(f"v_permlane16_swap_b32 {v(R)}, {v(R+1)}")
A(f"v_add_f32 {v(R)}, {v(R)}, {v(R+1)}")
A(f"v_add_f32_dpp {v(R)}, {v(R)}, {v(R)} row_ror:8 row_mask:0xf bank_mask:0xf")
A(f"v_mul_f32 {v(R)}, {v(R)}, {LS}")
A(f"v_cvt_pk_bf16_f32 {TT}, {v(R)}, {v(R)}")
A(f"ds_write_b16 {vOTw}, {TT}")
pub(*[f"buffer_store_dwordx2 {v(EM,2)}, {vOPg}, {srd(rWS)}, {{so}} offen offset:{512*i}{{fl}}" for i in range(2)])
A("s_waitcnt lgkmcnt(0)")
A("s_barrier")
for i in range(4): A(f"ds_read_b128 {v(AO+4*i,4)}, {vOTr} offset:{128*i}")
tile_out(aWO, aWOt, vYst)
stamp()

def reducer(kind):
    ld = [f"buffer_load_dwordx2 {v(YG+2*i,2)}, {vRg}, {srd(rWS)}, {sGp} offen offset:{512*i} sc1" for i in range(2)]
    A(f"s_movk_i32 {t4}, 0xff"); A(f"s_add_u32 {t3}, {sXPo}, 8192")
    if kind == 'A':
        poll(ld, [v(YG+i) for i in range(4)], site='y')
    else:
        poll(ld + ["s_mov_b64 exec, 0xffff", f"buffer_load_dwordx2 {v(YG+4,2)}, {vRg}, {srd(rWS)}, {sGp} offen offset:1024 sc1", "s_mov_b64 exec, -1"],
             [v(YG+i) for i in range(6)], site='y')
    unpack2(R, YG); unpack2(YG+8, YG+2)
    for i in (0, 2): A(f"v_pk_add_f32 {v(R+i,2)}, {v(R+i,2)}, {v(YG+8+i,2)}")
    if kind == 'M':
        unpack2(YG+8, YG+4)
        for i in (0, 2): A(f"v_pk_add_f32 {v(R+i,2)}, {v(R+i,2)}, {v(YG+8+i,2)}")
    stamp()
    treduce(R)
    A(f"v_bfi_b32 {v(R+1)}, {t4}, {vTag}, {v(R)}"); A(f"v_bfi_b32 {v(R)}, {t4}, {vTag}, {v(R)}")
    A(f"v_permlane16_swap_b32 {v(R)}, {v(R+1)}")
    A(f"v_mov_b32 {v(R+2)}, {v(R)}"); A(f"v_mov_b32 {v(R+3)}, {v(R+1)}")
    A(f"v_permlane32_swap_b32 {v(R)}, {v(R+2)}"); A(f"v_permlane32_swap_b32 {v(R+1)}, {v(R+3)}")
    A(f"buffer_store_dwordx4 {v(R,4)}, {vXPst}, {srd(rWS)}, {sXPo} offen sc1")
    if args.near: A(f"buffer_store_dwordx4 {v(R,4)}, {vXPst}, {srd(rWS)}, {t3} offen sc1")
    if kind == 'M':
        A(f"s_lshl_b32 {t0}, {sL}, 2"); A(f"s_andn2_b32 {t0}, {t0}, {sRole}")
        A("s_cbranch_scc1 L_fin")
    cl = [f"buffer_store_dwordx2 {v(EM,2)}, {vRg}, {srd(rWS)}, {{so}} offen offset:{512*i}{{fl}}" for i in range(2)]
    if kind == 'M': cl += ["s_mov_b64 exec, 0xffff", f"buffer_store_dwordx2 {v(EM,2)}, {vRg}, {srd(rWS)}, {{so}} offen offset:1024{{fl}}", "s_mov_b64 exec, -1"]
    pub(*cl)
    if args.near:
        A(f"v_mov_b32 {TT}, 0")
        A(f"ds_read_b32 {TT}, {TT} offset:{L_NEAR}")
    if args.xd: A(f"s_sleep {args.xd}")
    if args.near:
        A("s_waitcnt lgkmcnt(0)")
        A(f"v_or_b32 {vXPg}, {vXPg}, {TT}")
    poll([f"buffer_load_dwordx2 {v(XG,2)}, {vXPg}, {srd(rWS)}, {sXPo} offen sc1",
          f"buffer_load_dwordx2 {v(XG+2,2)}, {vXPg}, {srd(rWS)}, {sXPo} offen offset:512 sc1"], None,
         chk=[f"v_xor_b32 {v(R+i)}, {vTag}, {v(XG+i)}" for i in range(4)] +
             [f"v_or3_b32 {CK}, {v(R)}, {v(R+1)}, {v(R+2)}", f"v_bitop3_b32 {CK}, {CK}, {v(R+3)}, {t4} bitop3:0xa8", f"v_cmp_ne_u32 vcc, 0, {CK}"])
    stamp()
    Y = v(R)
    A(f"v_add_f32 {v(R)}, {v(R)}, {v(R+2)}"); A(f"v_add_f32 {v(R+1)}, {v(R+1)}, {v(R+3)}")
    A(f"v_permlane32_swap_b32 {v(R)}, {v(R+1)}")
    A(f"v_add_f32 {TT}, {v(R)}, {v(R+1)}"); A(f"v_add_f32 {Y}, {v(R)}, {v(R+1)}")
    A(f"v_permlane16_swap_b32 {Y}, {TT}"); A(f"v_add_f32 {Y}, {Y}, {TT}")
    rbf(Y, Y)
    if kind == 'M':
        A(f"v_add_f32 {Y}, {Y}, {vB2}"); rbf(Y, Y)
    A(f"v_add_f32 {TT}, {Y}, {vXres}")
    A(f"v_add_f32 {v(R+1)}, {Y}, {vXres}")
    A(f"v_add_f32 {Y}, {Y}, {vXres}")
    A("s_mov_b64 exec, -1")
    A(f"v_permlane32_swap_b32 {TT}, {v(R+1)}")
    A(f"v_cvt_pk_bf16_f32 {TT}, {TT}, {v(R+1)}")
    A("s_mov_b64 exec, 0xffff")
    if kind == 'M':
        A(f"s_cmp_lg_u32 {sL}, 0")
        A("s_cbranch_scc1 L_out")
    pub(f"buffer_store_dword {TT}, {vZst}, {srd(rWS)}, {{so}} offen{{fl}}")
    A("s_mov_b64 exec, -1")
    stamp()
    rbf(vXres, Y)
    A(f"v_add_u32 {vZst}, 2304, {vZst}")
    A(f"s_add_u32 {sXPo}, {sXPo}, {XPS}")

A(f"s_bitcmp1_b32 {sRole}, 0")
A("s_cbranch_scc1 L_mlp")
A(f"s_bitcmp1_b32 {sRole}, 1")
A("s_cbranch_scc0 L_probe" if args.near else "s_cbranch_scc0 L_next")
A(f"s_cmp_lg_u32 {sL}, 0")
A("s_cbranch_scc1 L_red")
A(f"v_lshlrev_b32 {vXres}, 16, {vXres}"); A(f"v_lshlrev_b32 {vB2}, 16, {vB2}")
zero(YG+4, 2)
A("L_red:")
k0 = nst[0]
reducer('A'); reducer('M')
kr = nst[0]
A("s_branch L_next")
A("L_mlp:")
nst[0] = k0
A(f"s_cmp_lg_u32 {sL}, 0")
A("s_cbranch_scc1 L_m1")
A(f"s_mul_i32 {t0}, {sX}, 18"); A(f"s_add_u32 {t0}, {t0}, {sJ}")
A(f"s_lshl_b32 {t2}, {t0}, 6")
A(f"buffer_load_ushort {vB1}, {vB1}, {srd(rT1)}, 0 offen{NT}")
A(f"s_cmp_ge_u32 {sJ}, 16")
A("s_cbranch_scc1 L_m0b")
if args.xt:
    A(f"s_lshl_b32 {t1}, {sJ}, 2"); A(f"s_add_u32 {t1}, {t1}, {sW}"); A(f"s_mul_i32 {t1}, {t1}, 36")
    A(f"v_add_u32 {TT}, {t1}, v0")
    A(f"v_lshrrev_b32 {LS}, 6, {TT}"); A(f"v_mul_u32_u24 {MX}, 43, {LS}"); A(f"v_lshrrev_b32 {MX}, 7, {MX}"); A(f"v_add_u32 {LS}, {LS}, {MX}")
    A(f"v_bfe_u32 {MX}, {TT}, 3, 3"); A(f"v_lshl_add_u32 {LS}, {LS}, 3, {MX}"); A(f"v_and_b32 {TT}, 7, {TT}"); A(f"v_lshlrev_b32 {TT}, 7, {TT}"); A(f"v_lshl_add_u32 {TT}, {LS}, 13, {TT}")
    A(f"s_lshl_b32 {t1}, {sX}, 10"); A(f"s_add_u32 {t1}, {t1}, {XP_O}")
    A(f"v_mov_b32 {LS}, 0")
    A("s_mov_b32 exec_hi, 15")
    A(f"buffer_atomic_or {LS}, {TT}, {srd(rWS)}, {t1} offen")
    A("s_mov_b32 exec_hi, -1")
if 's' not in args.early + args.mid: slots_touch()
if '1' not in args.early + args.mid: w1_touch()
if '2' in args.early + args.mid: A("s_branch L_m0d")
A("L_m0b:")
w2_loads()
A("L_m0d:")
A(f"s_cmp_eq_u32 {sW}, 3")
A("s_cbranch_scc1 L_m0c")
A("L_m0a:")
A(f"s_mul_i32 {t0}, {sW}, {192*9216}"); A(f"s_add_u32 {t0}, {t0}, {t2}")
if args.w1dma:
    A(f"v_lshrrev_b32 {TT}, 2, v0"); A(f"v_mul_u32_u24 {TT}, 9216, {TT}"); A(f"v_and_b32 {LS}, 3, v0"); A(f"v_lshl_add_u32 {TT}, {LS}, 4, {TT}")
    A(f"s_mul_i32 {t1}, {sW}, 12288"); A(f"s_add_u32 {t1}, {t1}, {L_K}"); A(f"s_mov_b32 m0, {t1}")
    for i in range(12):
        A(f"buffer_load_dwordx4 {TT}, {srd(rW1)}, {t0} offen{NTM} lds")
        if i < 11: A(f"s_add_u32 {t0}, {t0}, {16*9216}"); A("s_add_u32 m0, m0, 1024")
    A(f"v_lshrrev_b32 {TT}, 4, v0"); A(f"v_lshlrev_b32 {TT}, 8, {TT}"); A(f"v_and_b32 {LS}, 15, v0"); A(f"v_lshl_add_u32 {TT}, {LS}, 2, {TT}"); A(f"v_add_u32 {TT}, {t1}, {TT}")
    A("s_waitcnt vmcnt(0)")
    for i in range(6):
        for hh in range(2):
            for p in range(2):
                A(f"ds_read2_b32 {a(aW1+8*i+4*hh+2*p,2)}, {TT} offset0:{32*p} offset1:{32*p+16}")
            if (i, hh) != (5, 1): A(f"v_add_u32 {TT}, 1024, {TT}")
    A("s_waitcnt lgkmcnt(0)")
else:
    A(f"v_lshrrev_b32 {TT}, 4, v0"); A(f"v_mul_u32_u24 {TT}, {4*9216}, {TT}"); A(f"v_and_b32 {LS}, 15, v0"); A(f"v_lshl_add_u32 {TT}, {LS}, 2, {TT}")
    prev = 0
    for i in range(6):
        for vv in range(8):
            row = 32*i + 16*(vv >> 2) + (vv & 3)
            if row != prev: A(f"s_add_u32 {t0}, {t0}, {(row-prev)*9216}")
            prev = row
            A(f"buffer_load_dword {a(aW1+8*i+vv)}, {TT}, {srd(rW1)}, {t0} offen{NTM}")
A("L_m0c:")
if ST: A("s_memrealtime s[94:95]"); A("s_waitcnt vmcnt(0)"); A("s_memrealtime s[96:97]")
A("s_waitcnt vmcnt(0)")
A(f"v_lshlrev_b32 {vB1}, 16, {vB1}")
A("L_m1:")
zero(D0, 8)
c0 = -2 * 1.4426950408889634 * 0.7978845608028654
A(f"v_mov_b32 {v(E)}, {f32(c0)}")
A(f"v_lshrrev_b32 {v(E+1)}, 5, v0"); A(f"v_lshlrev_b32 {v(E+1)}, 3, {v(E+1)}")
A(f"v_add_u32 {v(E+2)}, {4*1152}, {vMst}")
A(f"s_mul_i32 {t0}, {sL}, {Z3_O-Z1_O}"); A(f"s_add_u32 {t0}, {t0}, {sGp}"); A(f"s_add_u32 {t0}, {t0}, {Z1_O}")
A(f"s_cmp_eq_u32 {sW}, 3")
A("s_cbranch_scc1 L_m2")
poll_proj(vXAm, t0, 6, aW1)
A("s_mov_b32 exec_hi, 0")
A(f"ds_write_b128 {vHPw}, {v(D0,4)}")
A("s_mov_b32 exec_hi, -1")
A("s_branch L_m2b")
A("L_m2:")
poll(xs_loads(rWS, t0, ' sc1'), [v(XS+i) for i in range(9)], site='z')
stats(32)
A("L_m2b:")
stamp()
A("s_waitcnt lgkmcnt(0)")
A("s_barrier")
H = TM + 12
A(f"ds_read2_b32 {v(H,2)}, {vHPr} offset0:0 offset1:2")
A(f"ds_read2_b32 {v(H+2,2)}, {vHPr} offset0:128 offset1:130")
A(f"ds_read_b32 {v(H+4)}, {vHPr} offset:1024"); A(f"ds_read_b32 {v(H+5)}, {vHPr} offset:1032")
A(f"ds_read_b64 {v(TM,2)}, {v(E+1)} offset:{L_STAT+32}")
zero(D0)
A("s_waitcnt lgkmcnt(0)")
A(f"v_add_f32 {v(H)}, {v(H)}, {v(H+2)}"); A(f"v_add_f32 {v(H+1)}, {v(H+1)}, {v(H+3)}")
A(f"v_add_f32 {v(H)}, {v(H)}, {v(H+4)}"); A(f"v_add_f32 {v(H+1)}, {v(H+1)}, {v(H+5)}")
A(f"v_fma_f32 {v(H)}, -{S_}, {v(H+1)}, {v(H)}")
A(f"v_mul_f32 {v(H)}, {v(H)}, {Q_}")
rbf(v(H), v(H))
A(f"v_add_f32 {v(H)}, {v(H)}, {vB1}")
rbf(v(H), v(H))
A(f"v_mul_f32 {TT}, {v(H)}, {v(H)}")
A(f"v_fmac_f32 {v(E)}, {f32(c0*0.044715)}, {TT}")
A(f"v_mul_f32 {TT}, {v(E)}, {v(H)}")
A(f"v_exp_f32 {TT}, {TT}")
A(f"v_add_f32 {TT}, 1.0, {TT}")
A(f"v_rcp_f32 {TT}, {TT}")
A(f"v_mul_f32 {TT}, {TT}, {v(H)}")
A(f"v_cvt_pk_bf16_f32 {TT}, {TT}, 0")
A(f"ds_write2_b32 {vPTw}, {TT}, {TT} offset1:5")
for i in range(4): A(f"ds_read_b128 {v(AO+4*i,4)}, {vPTr} offset:{128*i}")
stamp()
tile_out(aW2, aW2t, vMst)
A("L_m4:")
stamp()
nst[0] = kr
A("L_next:")
A(f"s_cmp_lg_u32 {sL}, 0")
A("s_cbranch_scc1 L_fin")
if ST:
    A("s_waitcnt lgkmcnt(0)")
    for k in range(14): A(f"v_writelane_b32 {v(SV)}, s{72+2*k}, {1+k}")
    for k in range(14): A(f"s_mov_b64 s[{72+2*k}:{73+2*k}], 0")
A(f"s_mov_b32 {sL}, 1")
if args.dirty:
    A(f"s_cmp_ge_u32 {sJ}, 16"); A("s_cbranch_scc1 L_dd")
    A(f"s_lshl_b32 {t0}, s2, 2"); A(f"s_add_u32 {t0}, {t0}, {sW}"); A(f"s_lshl_b32 {t0}, {t0}, 14"); A(f"s_add_u32 {t0}, {t0}, 0x2000000")
    for i in range(args.dirty):
        A(f"buffer_store_dwordx4 {v(EM,4)}, {vL16}, {srd(rWS)}, {t0} offen"); A(f"s_add_u32 {t0}, {t0}, 1024")
    A("L_dd:")
A(f"s_add_u32 {sXoff}, {sGp}, {Z2_O}")
for r in (vSTst, vSTg, vSTm): A(f"v_add_u32 {r}, {ST1_O-ST_O}, {r}")
A("s_branch L_layer")
A("L_out:")
A(f"buffer_store_dword {TT}, {vZo}, {srd(rOUT)}, 0 offen")
A(f"s_mov_b32 {t0}, {EP_O}")
A("s_mov_b64 exec, 1")
A(f"buffer_store_dword {FN}, {vL16}, {srd(rWS)}, {t0} offen")
if ST: A(f"s_memrealtime s[{72+2*13}:{73+2*13}]")
A("L_fin:")
if args.wb:
    A(f"s_cmp_lg_u32 {sJ}, 18"); A("s_cbranch_scc1 L_wb")
    A(f"s_cmp_lg_u32 {sW}, 0"); A("s_cbranch_scc1 L_wb")
    A("buffer_wbl2 sc1")
    A("L_wb:")
if args.enc:
    j0, j1 = [int(x) for x in args.encj.split(',')]
    A("s_memrealtime s[66:67]")
    A("s_waitcnt lgkmcnt(0)")
    if args.enc <= 14: A(f"v_readlane_b32 {t0}, {v(SV)}, {args.enc}"); A("s_nop 3")
    else: A(f"s_mov_b32 {t0}, s{72+2*(args.enc-15)}")
    A(f"s_cmp_eq_u32 {t0}, 0"); A("s_cbranch_scc1 L_enc2")
    A(f"s_cmp_lt_u32 {sJ}, {j0}"); A("s_cbranch_scc1 L_enc2")
    A(f"s_cmp_ge_u32 {sJ}, {j1}"); A("s_cbranch_scc1 L_enc2")
    if args.encref == 0: A(f"s_mov_b32 {t1}, s100")
    elif args.encref <= 14: A(f"v_readlane_b32 {t1}, {v(SV)}, {args.encref}"); A("s_nop 3")
    else: A(f"s_mov_b32 {t1}, s{72+2*(args.encref-15)}")
    A(f"s_sub_u32 {t0}, {t0}, {t1}"); A(f"s_min_u32 {t0}, {t0}, 10000"); A(f"s_lshl_b32 {t0}, {t0}, {4 if args.encref else 3}"); A(f"s_add_u32 {t0}, {t0}, s66")
    A("L_enc:")
    A("s_sleep 8")
    A("s_memrealtime s[64:65]"); A("s_waitcnt lgkmcnt(0)")
    A(f"s_sub_u32 {t1}, s64, {t0}"); A(f"s_cmp_lt_i32 {t1}, 0"); A("s_cbranch_scc1 L_enc")
    A("L_enc2:")
if ST:
    A("s_mov_b64 exec, -1")
    A("s_waitcnt lgkmcnt(0)")
    A(f"v_writelane_b32 {v(SV)}, s100, 0")
    for k in range(14): A(f"v_writelane_b32 {v(SV)}, s{72+2*k}, {15+k}")
    A(f"s_lshl_b32 {t0}, s2, 2"); A(f"s_add_u32 {t0}, {t0}, {sW}"); A(f"s_lshl_b32 {t0}, {t0}, 8"); A(f"s_add_u32 {t0}, {t0}, {STAMP_O}")
    A(f"v_mov_b32 {v(SV+1)}, 0")
    A(f"v_lshlrev_b32 {v(SV+2)}, 3, v0")
    A("s_mov_b32 exec_hi, 0")
    A(f"buffer_store_dwordx2 {v(SV,2)}, {v(SV+2)}, {srd(rWS)}, {t0} offen")
A("L_end:")
A("s_endpgm")
if args.near:
    A("L_probe:")
    A(f"s_cmp_lt_u32 {sJ}, 20"); A("s_cbranch_scc1 L_next")
    A(f"s_cmp_lg_u32 {sL}, 0"); A("s_cbranch_scc1 L_next")
    A(f"s_sub_u32 {t0}, {sJ}, 20"); A(f"s_lshl_b32 {t0}, {t0}, 18"); A(f"s_lshl_b32 {t1}, {sX}, 10"); A(f"s_add_u32 {t0}, {t0}, {t1}"); A(f"s_add_u32 {t0}, {t0}, {XP_O + 3*65536}")
    A(f"s_add_u32 s44, s{rWS}, {t0}"); A(f"s_addc_u32 s45, s{rWS+1}, 0")
    A(f"s_mov_b32 {t2}, -1"); A(f"s_mov_b32 {t3}, -1"); A(f"s_mov_b32 {t4}, 3")
    A("L_pr1:")
    A("s_memtime s[46:47]"); A("s_waitcnt lgkmcnt(0)")
    A(f"s_load_dword {t5}, s[44:45], 0 glc"); A("s_waitcnt lgkmcnt(0)")
    A("s_memtime s[48:49]"); A("s_waitcnt lgkmcnt(0)")
    A(f"s_load_dword {t5}, s[44:45], 0x2000 glc"); A("s_waitcnt lgkmcnt(0)")
    A("s_memtime s[50:51]"); A("s_waitcnt lgkmcnt(0)")
    A(f"s_sub_u32 {t0}, s48, s46"); A(f"s_sub_u32 {t1}, s50, s48")
    A(f"s_min_u32 {t2}, {t2}, {t0}"); A(f"s_min_u32 {t3}, {t3}, {t1}")
    A(f"s_sub_u32 {t4}, {t4}, 1"); A(f"s_cmp_lg_u32 {t4}, 0"); A("s_cbranch_scc1 L_pr1")
    A(f"s_cmp_lt_u32 {t3}, {t2}"); A(f"s_cselect_b32 {t0}, 0x2000, 0")
    A(f"v_mov_b32 {TT}, 0"); A(f"v_mov_b32 {LS}, {t0}")
    A(f"ds_write_b32 {TT}, {LS} offset:{L_NEAR}")
    A("s_branch L_next")
A("L_af2:")
A(f"s_cmp_eq_u32 {sMode}, {FB_O}")
A("s_cbranch_scc1 L_g2")
A(f"s_add_u32 {sMode}, {sMode}, 1")
A(f"s_lshl_b32 {t2}, {sX}, 10"); A(f"s_add_u32 {t2}, {t2}, {FL_O}")
A(f"s_lshl_b32 {t4}, {sL}, 2"); A(f"s_add_u32 {t1}, {t4}, {t2}")
A(f"s_cmp_lt_u32 {sMode}, {1 if args.forcefb else 40}")
A("s_cbranch_scc1 L_af5")
A("s_mov_b64 exec, 1")
A(f"buffer_store_dword {FN}, {vL16}, {srd(rWS)}, {t1} offen sc1")
A("s_mov_b32 exec_lo, -1")
A(f"buffer_load_dwordx4 {v(FG,4)}, {vL16}, {srd(rWS)}, {t2} offen sc1")
A("s_mov_b32 exec_hi, -1")
A("s_waitcnt vmcnt(0)")
flags_diff()
A(f"v_and_b32 {TT}, 0x0fffffff, {CK}")
A(f"v_cmp_ne_u32 vcc, 0, {TT}")
A("s_cmp_lg_u32 vcc_lo, 0")
A("s_cbranch_scc1 L_af5")
A(f"v_cmp_ne_u32 vcc, 0, {CK}")
A("s_cmp_lg_u32 vcc_lo, 0")
if args.forcefb: A("s_cmp_eq_u32 0, 0")
A("s_cbranch_scc1 L_spread")
A("L_af5:")
A(f"s_sub_u32 {sTO}, {sTO}, 1")
A("s_cbranch_scc0 L_g4")
A(f"s_mov_b32 {sTO}, 0")
A(f"s_mov_b32 {sMode}, 0")
A("s_branch L_g2")
A("L_spread:")
A(f"s_mov_b32 {sMode}, {FB_O}")
A(f"s_add_u32 {sGp}, {sGf}, {FB_O}")
empty_share(sGp, ' sc1')
A("s_mov_b32 exec_hi, 0")
A(qp_store.format(so=sGp, fl=' sc1'))
A("s_waitcnt vmcnt(0)")
A("s_mov_b64 exec, 1")
A(f"buffer_store_dword {FN}, {vL16}, {srd(rWS)}, {t1} offen offset:512 sc1")
A("s_mov_b32 exec_lo, -1")
A("L_sp1:")
A("s_mov_b32 exec_hi, 0")
A(f"buffer_load_dwordx4 {v(FG,4)}, {vL16}, {srd(rWS)}, {t2} offen offset:512 sc1")
A("s_mov_b32 exec_hi, -1")
A("s_waitcnt vmcnt(0)")
flags_diff()
A(f"v_and_b32 {CK}, 0x0fffffff, {CK}")
A(f"v_cmp_ne_u32 vcc, 0, {CK}")
A("s_cmp_eq_u32 vcc_lo, 0")
A("s_cbranch_scc1 L_g4")
A("s_sleep 4")
A(timeout("L_sp1", "L_g4"))
for t in tail: A(t)
A.raw('L_codeend:')
A.raw('.section .rodata,"a"')
A.raw(".p2align 6")
A.raw(f".amdhsa_kernel {NAME}_kernel")
A.raw(f"  .amdhsa_next_free_vgpr {ACC+NACC}")
A.raw("  .amdhsa_next_free_sgpr 102")
A.raw(f"  .amdhsa_accum_offset {ACC}")
A.raw("  .amdhsa_group_segment_fixed_size 0")
A.raw("  .amdhsa_kernarg_size 104")
A.raw("  .amdhsa_user_sgpr_count 2")
A.raw("  .amdhsa_user_sgpr_kernarg_segment_ptr 1")
A.raw("  .amdhsa_system_sgpr_workgroup_id_x 1")
A.raw(".end_amdhsa_kernel")
txt = A.text()
if args.cyc: txt = txt.replace('s_memrealtime', 's_memtime')
sys.stdout.write(txt)
```

```python
import sys, argparse, struct
sys.path.insert(0, 'dev')
from asmlib import Asm
NAME = "interleave_layers__sliding_block_cached__dense_activation_gelu__decode"
ap = argparse.ArgumentParser()
ap.add_argument('--stamps', action='store_true')
ap.add_argument('--pro', action='store_true')
ap.add_argument('--cyc', action='store_true')
ap.add_argument('--xt', type=int, default=0)
ap.add_argument('--xd', type=int, default=11)
ap.add_argument('--enc', type=int, default=0)
ap.add_argument('--encref', type=int, default=0)
ap.add_argument('--encj', default='0,32')
ap.add_argument('--only', default='')
ap.add_argument('--pQ', type=int, default=4)
ap.add_argument('--code', type=int, default=1)
ap.add_argument('--early', default='0')
ap.add_argument('--mid', default='')
ap.add_argument('--w1dma', type=int, default=0)
ap.add_argument('--near', type=int, default=1)
ap.add_argument('--pd', default='s22,y22,o22')
ap.add_argument('--wb', type=int, default=0)
ap.add_argument('--dirty', type=int, default=0)
ap.add_argument('--pre', type=int, default=1)
ap.add_argument('--qd', type=int, default=0)
ap.add_argument('--zs', type=int, default=0)
ap.add_argument('--sd', type=int, default=0)
ap.add_argument('--yd', type=int, default=0)
ap.add_argument('--zd', type=int, default=0)
ap.add_argument('--qc', type=int, default=1)
ap.add_argument('--ms', default='x')
ap.add_argument('--exp', default='')
ap.add_argument('--vw', type=int, default=1)
ap.add_argument('--di', type=int, default=1)
ap.add_argument('--dz', type=int, default=1)
ap.add_argument('--dxx', type=int, default=1)
ap.add_argument('--nt', default='k,v')
ap.add_argument('--forcefb', action='store_true')
args = ap.parse_args()
def ntf(c): return ' nt' if c in args.nt.split(',') else ''
NT = ntf('s'); NTK = ntf('k'); NTV = ntf('v'); NTQ = ntf('q'); NTO = ntf('o'); NTM = ntf('m'); NT2 = ntf('2')
ST = args.stamps
PD = {x[0]: (int(x[1]), int(x[2:])) for x in args.pd.split(',') if x}

def f32(x): return '0x%08x' % struct.unpack('<I', struct.pack('<f', x))[0]

CLR = 944
OP_O = 0
Y_O = OP_O + 65536
ST_O = Y_O + 41472
ST1_O = ST_O + 2048
Z1_O = ST1_O + 2048
Z2_O = Z1_O + 2304
Z3_O = Z2_O + 2304
AN_O = Z3_O + 2304
ZS_O = AN_O + 128
assert ZS_O + 1536 <= 128 * CLR and (128 * CLR) % 128 == 0
QP_O = 128 * CLR
FF_O = QP_O + 65536
GB = FF_O + 1024
FB_O = 8 * GB
XP_O = 6 << 20
assert XP_O >= 16 * GB
XPS = 16384
FL_O = XP_O + 12 * 262144
EP_O = FL_O + 8 * 1024
STAMP_O = 0x8000000
L_NEAR = 8176
L_X = 640
L_QT, L_STAT, L_OT, L_PT, L_HP, L_K, L_WQ, L_SIZE = 0, 512, 1024, 2560, 8192, 16384, 49152, 67584

rK, rV, rWQ, rWO, rW1, rW2, rWS, rX, rOUT, rT1, rT2 = 4, 8, 12, 16, 20, 24, 28, 32, 36, 44, 48
sTask, kv0, kv1, sFlag = 's40', 's41', 's42', 's43'
def srd(n): return f"s[{n}:{n+3}]"
sW, sX, sJ, sGf, sGp, sXoff, sTO, sMode, sL, sWo = [f"s{i}" for i in range(52, 62)]
t0, t1, t2, t3, t4, t5 = [f"s{i}" for i in range(62, 68)]
mLO8 = "s[68:69]"; mROW = "s[70:71]"
MXA = "0x00330033"
sRole = "s3"
(vL4, vL16, vIdxD, vIdxP, vIdxS, vXAq, vXAm, vQPst, vQPg, vL128, vQTw, vQTr, vPTw, vPTr, vSTst, vOPst, vSTg, vOPg, vOTw, vOTr,
 vYst, vMst, vHPw, vSTm, vRg, vSTATr, vXPst, vXPg, vZst, vXres, vB2, vB1, vCq, vZo, vXS1, vXS2, vWrow, vHPr, vOnes) = [f"v{i}" for i in range(1, 40)]
XA, D0, D1, DP, AO, SG, YG, XG, XS, FG, TM, EM, KA, SV, OG, QG = 40, 64, 68, 72, 76, 104, 120, 132, 136, 148, 152, 176, 180, 184, 188, 196
vQPg2, vZSst, vZSg = 'v92', 'v93', 'v94'
ZG = 96
ACC = 212
aWQ, aK, aV, aWO, aW1, aW2, aWOt, NACC = 0, 24, 56, 88, 120, 168, 200, 232
aW2t = aW1
def v(n, k=1): return f"v{n}" if k == 1 else f"v[{n}:{n+k-1}]"
def a(n, k=1): return f"a{n}" if k == 1 else f"a[{n}:{n+k-1}]"
CK = v(TM + 23); FN = v(TM + 22); vTag = v(TM + 21); DUM = v(TM + 20)
sEp, sXPo = kv0, kv1

A = Asm()
tail = []
nst = [0]
def pstamp(k):
    if args.pro: A(f"s_memrealtime s[{72+2*k}:{73+2*k}]")
def stamp():
    if ST and not args.pro:
        k = nst[0]; nst[0] += 1
        assert k < 13
        if ONLY is None or k in ONLY: A(f"s_memrealtime s[{72+2*k}:{73+2*k}]")
ONLY = set(int(x) for x in args.only.split(',')) if args.only else None
def lg(n): return 0 if (ST and ONLY is None) else n
def exec_xa(): return [f"s_mov_b32 exec_lo, {MXA}", f"s_mov_b32 exec_hi, {MXA}"]

def check_text(regs):
    regs = list(regs); o = []
    if len(regs) == 1: cur = regs[0]
    else:
        take = regs[:3]; regs = regs[3:]
        o.append(f"v_max3_u32 {CK}, {take[0]}, {take[1]}, {take[2]}" if len(take) == 3 else f"v_max_u32 {CK}, {take[0]}, {take[1]}")
        while regs:
            take = regs[:2]; regs = regs[2:]
            o.append(f"v_max3_u32 {CK}, {CK}, {take[0]}, {take[1]}" if len(take) == 2 else f"v_max_u32 {CK}, {CK}, {take[0]}")
        cur = CK
    o.append(f"v_cmp_eq_u32 vcc, -1, {cur}")
    return o
def nvm(loads): return sum(1 for l in loads if l.startswith('buffer_'))
def timeout(again, ok): return f"s_sub_u32 {sTO}, {sTO}, 1\ns_cbranch_scc0 {again}\ns_mov_b32 {sTO}, 0\ns_waitcnt vmcnt(0) lgkmcnt(0)\ns_branch {ok}"

def poll(loads, regs, primed=False, extra_wait="", chk=None, site=''):
    lp = A.newlabel('L_poll'); to = A.newlabel('L_to'); ok = A.newlabel('L_ok')
    depth, gap = PD.get(site, (1, 0))
    ck = chk or check_text(regs)
    pre = []
    for d in range(depth - 1):
        pre += loads + ([f"s_sleep {gap}"] if gap else [])
    loop = [f"{lp}:"] + loads + [f"s_sub_u32 {sTO}, {sTO}, 1", f"s_cbranch_scc1 {to}", f"s_waitcnt vmcnt({(depth-1)*nvm(loads)}){extra_wait}"] + ck + [f"s_cbranch_vccnz {lp}"]
    tmo = f"{to}:\ns_mov_b32 {sTO}, 0\ns_waitcnt vmcnt(0) lgkmcnt(0)\ns_branch {ok}"
    if primed:
        st = A.newlabel('L_more')
        A(f"s_waitcnt vmcnt(0){extra_wait}")
        for l in ck: A(l)
        A(f"s_cbranch_vccnz {st}")
        A(f"{ok}:")
        tail.append(f"{st}:\n" + "\n".join(pre + loop) + f"\ns_branch {ok}\n" + tmo)
        return
    for l in pre + loop: A(l)
    A(f"{ok}:")
    tail.append(tmo)

def sm(d, av, br, idx): A(f"v_smfmac_f32_16x16x64_bf16 {v(d,4)}, {v(av,4)}, {a(br,8)}, {idx}")
def xa_loads(rr, voff, so, n, fl, short_last=False):
    o = exec_xa()
    for i in range(n):
        if short_last and i == n - 1: o.append("s_mov_b64 exec, 0x33")
        o.append(f"buffer_load_dwordx4 {v(XA+4*i,4)}, {voff}, {srd(rr)}, {so} offen offset:{64*i}{fl}")
    return o + ["s_mov_b64 exec, -1"]
def poll_proj(voff, so, n, wbase, short_last=False, extra=[]):
    loads = extra[:-1] + xa_loads(rWS, voff, so, n, ' sc1', short_last)
    lds = [l for l in loads if l.startswith('buffer_')]
    lp = A.newlabel('L_poll'); rt = A.newlabel('L_retry'); ok = A.newlabel('L_ok'); gen = A.newlabel('L_nan')
    depth, gap = PD.get('p', (1, 0))
    for d in range(depth):
        if d: A(f"s_sleep {gap}")
        for l in loads: A(l)
    A(f"{lp}:")
    A(f"s_waitcnt vmcnt({(depth-1)*n})")
    for i in range(n): sm(D0, XA+4*i, wbase+8*i, vIdxD)
    for l in loads: A(l)
    A(f"v_cmp_u_f32 vcc, {v(D0)}, {v(D0+1)}")
    A(f"s_cbranch_vccnz {rt}")
    A(f"{ok}:")
    z = "\n".join(f"v_mov_b32 {v(D0+i)}, 0" for i in range(4))
    mm = "\n".join(f"v_smfmac_f32_16x16x64_bf16 {v(D0,4)}, {v(XA+4*i,4)}, {a(wbase+8*i,8)}, {vIdxD}" for i in range(n))
    if args.zs: z += f"\ns_sleep {args.zs}"
    tail.append(f"{rt}:\n{z}\ns_sub_u32 {sTO}, {sTO}, 1\ns_cbranch_scc1 {gen}\ns_and_b32 {t5}, {sTO}, 15\ns_cbranch_scc1 {lp}\n" +
                "\n".join(check_text([v(XA+i) for i in range(4*n)])) + f"\ns_cbranch_vccnz {lp}\n{gen}:\ns_max_i32 {sTO}, {sTO}, 0\n{mm}\ns_nop 7\ns_branch {ok}")

def pub(*fmts):
    for f in fmts: A(f.format(so=sGf, fl=''))
    sl = A.newlabel('L_slow'); bk = A.newlabel('L_back')
    A(f"s_cmp_lg_u32 {sMode}, 0")
    A(f"s_cbranch_scc1 {sl}")
    A(f"{bk}:")
    tail.append(f"{sl}:\n" + "\n".join(f.format(so=sGp, fl=' sc1') for f in fmts) + f"\ns_nop 1\ns_branch {bk}")

def rbf(dst, src):
    A(f"v_cvt_pk_bf16_f32 {dst}, {src}, {src}")
    A(f"v_and_b32 {dst}, 0xffff0000, {dst}")
def treduce(r):
    A(f"v_permlane32_swap_b32 {v(r)}, {v(r+2)}")
    A(f"v_permlane32_swap_b32 {v(r+1)}, {v(r+3)}")
    A(f"v_add_f32 {v(r)}, {v(r)}, {v(r+2)}")
    A(f"v_add_f32 {v(r+1)}, {v(r+1)}, {v(r+3)}")
    A(f"v_permlane16_swap_b32 {v(r)}, {v(r+1)}")
    A(f"v_add_f32 {v(r)}, {v(r)}, {v(r+1)}")
    A(f"v_add_f32_dpp {v(r)}, {v(r)}, {v(r)} row_ror:8 row_mask:0xf bank_mask:0xf")
S_, Q_ = v(TM), v(TM+1)
def stats_tail1():
    S, Q = S_, Q_
    A(f"v_permlane16_swap_b32 {S}, {Q}")
    A(f"v_add_f32 {S}, {S}, {Q}")
    for k in (8, 4, 2, 1):
        A(f"v_add_f32_dpp {S}, {S}, {S} row_ror:{k} row_mask:0xf bank_mask:0xf")
    A(f"v_mul_f32 {Q}, {f32(1/576)}, {S}")
    A(f"v_mul_f32 {S}, {f32(1/576)}, {S}")
def stats_tail2():
    S, Q = S_, Q_
    A(f"v_permlane16_swap_b32 {S}, {Q}")
    A(f"v_fma_f32 {Q}, -{S}, {S}, {Q}")
    A(f"v_max_f32 {Q}, 0, {Q}")
    A(f"v_cvt_pk_bf16_f32 {Q}, {S}, {Q}")
    A(f"v_lshlrev_b32 {S}, 16, {Q}")
    A(f"v_and_b32 {Q}, 0xffff0000, {Q}")
    A(f"v_add_f32 {Q}, {f32(1e-5)}, {Q}")
    rbf(Q, Q)
    A(f"v_sqrt_f32 {Q}, {Q}")
    rbf(Q, Q)
    A(f"v_rcp_f32 {Q}, {Q}")
def stats_x():
    A(f"v_mov_b32 {S_}, 0"); A(f"v_mov_b32 {Q_}, 0")
    for i in range(9):
        A(f"v_dot2c_f32_bf16 {S_}, {v(XS+i)}, {vOnes}")
        A(f"v_dot2c_f32_bf16 {Q_}, {v(XS+i)}, {v(XS+i)}")
    stats_tail1(); stats_tail2()
def zs_load(voff, so):
    return ["s_mov_b32 exec_lo, 0x3ffff", "s_mov_b32 exec_hi, 0x3ffff", f"buffer_load_dwordx2 {v(ZG,2)}, {voff}, {srd(rWS)}, {so} offen sc1", "s_mov_b64 exec, -1"]
def zero(r, n=4):
    for i in range(n): A(f"v_mov_b32 {v(r+i)}, 0")
def xs_loads(rr, so, fl):
    return [f"buffer_load_dwordx4 {v(XS,4)}, {vXS1}, {srd(rr)}, {so} offen{fl}",
            f"buffer_load_dwordx4 {v(XS+4,4)}, {vXS1}, {srd(rr)}, {so} offen offset:512{fl}",
            f"buffer_load_dword {v(XS+8)}, {vXS2}, {srd(rr)}, {so} offen offset:1024{fl}"]

A.raw(f"; @launch grid=(256,1,1) block=(256,1,1) lds={L_SIZE}")
A.raw('.amdgcn_target "amdgcn-amd-amdhsa--gfx950"')
A.raw(".text")
A.raw(f".globl {NAME}_kernel")
A.raw(".p2align 8")
A.raw(f".type {NAME}_kernel,@function")
A.raw(f"{NAME}_kernel:")
if ST:
    A("s_memrealtime s[100:101]")
    for k in range(14): A(f"s_mov_b64 s[{72+2*k}:{73+2*k}], 0")
A("s_cmp_ge_u32 s2, 256")
A("s_cbranch_scc1 L_end")
for r, off in ((rWS, 96), (rX, 0), (rWQ, 24), (rK, 8), (rV, 16), (rWO, 32)):
    A(f"s_load_dwordx2 s[{r}:{r+1}], s[0:1], {off}")
A(f"v_lshrrev_b32 {v(TM)}, 6, v0")
A(f"v_and_b32 v0, 63, v0")
A(f"v_readfirstlane_b32 {sW}, {v(TM)}")
for r, n in ((rX, 2304), (rWQ, 4718592), (rK, 33554432), (rV, 33554432), (rWS, 268435456), (rWO, 4718592)):
    A(f"s_mov_b32 s{r+2}, {n}"); A(f"s_mov_b32 s{r+3}, 0x20000")
A(f"s_and_b32 {sX}, s2, 7")
A(f"s_lshr_b32 {sJ}, s2, 3")
A("s_mov_b32 s68, 0x00ff00ff"); A("s_mov_b32 s69, 0x00ff00ff")
G, C, B2 = v(TM+3), v(TM+4), v(TM+5)
A(f"v_lshrrev_b32 {G}, 4, v0")
A(f"v_and_b32 {C}, 15, v0")
A(f"v_lshlrev_b32 {vL16}, 4, v0")
A(f"v_lshlrev_b32 {vL128}, 7, v0")
for i in range(4): A(f"v_mov_b32 {v(EM+i)}, -1")
A(f"s_lshr_b32 {t0}, {sJ}, 4"); A(f"s_lshl_b32 {t3}, {sX}, 1"); A(f"s_add_u32 {t0}, {t0}, {t3}")
A(f"s_bfe_u32 {t1}, {sJ}, 0x10003")
A(f"s_and_b32 {t2}, {sJ}, 7")
A(f"s_mul_i32 {sGf}, {sX}, {GB}")
A(f"v_bfe_u32 {B2}, v0, 2, 1")
A(f"v_mul_u32_u24 {vXAm}, 1152, {B2}")
A(f"v_lshl_add_u32 {vXAm}, {G}, 4, {vXAm}")
A(f"s_mul_i32 {t4}, {t2}, 144")
A(f"v_add_u32 {vXAq}, {t4}, {vXAm}")
for i in range(12): A(f"v_mov_b32 {v(XA+i)}, 0x3f803f80")
A(f"v_lshlrev_b32 {v(TM+6)}, 13, {G}")
A(f"v_lshl_add_u32 {v(TM+6)}, {C}, 4, {v(TM+6)}")
A(f"s_mul_i32 {t3}, {t2}, 18"); A(f"s_add_u32 {t3}, {t3}, {sW}"); A(f"s_lshl_b32 {t3}, {t3}, 15")
A(f"s_lshl_b32 {t4}, {t0}, 9"); A(f"s_add_u32 {t3}, {t3}, {t4}"); A(f"s_lshl_b32 {t4}, {t1}, 8"); A(f"s_add_u32 {t3}, {t3}, {t4}")
A(f"s_lshl_b32 {t4}, {sW}, 10"); A(f"s_add_u32 m0, {t4}, {L_WQ}")
A(f"s_lshl_b32 {kv0}, {t1}, 24"); A(f"s_lshl_b32 {t4}, {t0}, 20"); A(f"s_add_u32 {kv0}, {kv0}, {t4}")
A(f"s_lshl_b32 {t4}, {t2}, 15"); A(f"s_add_u32 {kv0}, {kv0}, {t4}")
A(f"s_lshl_b32 {t4}, {sW}, 13"); A(f"s_add_u32 {kv0}, {kv0}, {t4}")
A(f"s_add_u32 {kv0}, {kv0}, {3072*256}"); A(f"s_add_u32 {kv1}, {kv0}, 4096")
A(f"v_xor_b32 {v(TM+7)}, {C}, {G}")
A(f"v_lshlrev_b32 {v(TM+7)}, 4, {v(TM+7)}")
A(f"v_lshl_add_u32 {v(KA)}, {G}, 8, {v(TM+7)}")
for i in range(1, 4): A(f"v_xor_b32 {v(KA+i)}, {64*i}, {v(KA)}")
A(f"s_lshl_b32 {sL}, {sJ}, 2"); A(f"s_add_u32 {sL}, {sL}, {sW}")
A(f"s_lshl_b32 {t4}, {sL}, 9"); A(f"s_add_u32 {t4}, {t4}, {QP_O}")
A(f"v_add_u32 {vQPst}, {t4}, {vL16}")
A(f"s_mov_b32 {t5}, {EP_O}")
A("s_waitcnt lgkmcnt(0)")
pstamp(0)
A("s_mov_b64 exec, 1")
A(f"buffer_load_dword {FN}, {vL16}, {srd(rWS)}, {t5} offen{NT}")
A("s_mov_b64 exec, -1")
def empty_share(base, fl):
    A(f"s_mul_i32 {t5}, {sL}, {CLR}"); A(f"s_add_u32 {t5}, {t5}, {base}")
    A(f"s_mov_b32 exec_hi, {(1 << (CLR//16-32)) - 1}")
    A(f"buffer_store_dwordx4 {v(EM,4)}, {vL16}, {srd(rWS)}, {t5} offen{fl}")
    A("s_mov_b32 exec_hi, -1")
A(f"s_cmp_lg_u32 {sW}, 3")
A("s_cbranch_scc1 L_pro2")
A(f"v_lshrrev_b32 {v(TM+8)}, 5, v0"); A(f"v_and_b32 {v(TM+9)}, 31, v0")
A(f"v_mul_u32_u24 {vXS1}, 1152, {v(TM+8)}"); A(f"v_lshl_add_u32 {vXS2}, {v(TM+9)}, 2, {vXS1}"); A(f"v_lshl_add_u32 {v(TM+10)}, {v(TM+9)}, 3, {vXS1}"); A(f"v_lshl_add_u32 {vXS1}, {v(TM+9)}, 4, {vXS1}")
for l in xs_loads(rX, 0, NT): A(l)
A(f"s_mul_i32 {t5}, {t2}, 144")
A(f"buffer_load_dwordx2 {v(XG,2)}, {v(TM+10)}, {srd(rX)}, {t5} offen{NT}")
A("L_pro2:")
for n in range(5):
    if n == 4:
        A(f"s_cmp_ge_u32 {sW}, 2"); A("s_cbranch_scc1 L_pro1")
    A(f"buffer_load_dwordx4 {v(TM+6)}, {srd(rWQ)}, {t3} offen{NTQ} lds")
    if n < 4: A(f"s_add_u32 {t3}, {t3}, {16*8192}"); A("s_add_u32 m0, m0, 4096")
A("L_pro1:")
empty_share(sGf, '')
A(f"s_lshl_b32 {t4}, {sW}, 13"); A(f"s_add_u32 m0, {t4}, {L_K}")
for i in range(8):
    if i == 4: A(f"s_add_u32 m0, m0, 4096")
    A(f"buffer_load_dwordx4 {v(KA+i%4)}, {srd(rK)}, {kv0 if i < 4 else kv1} offen offset:{1024*(i%4)}{NTK} lds")

def constants():
    A(f"v_mul_u32_u24 {vWrow}, 1152, {G}")
    A(f"v_lshl_add_u32 {vWrow}, {C}, 4, {vWrow}")
    A(f"s_cmp_lt_u32 {sJ}, 18"); A(f"s_cselect_b32 {sRole}, 1, 0")
    A(f"s_cmp_ge_u32 {sJ}, 20"); A(f"s_cselect_b32 {t4}, 2, 0"); A(f"s_cmp_lt_u32 {sW}, 3"); A(f"s_cselect_b32 {t4}, {t4}, 0"); A(f"s_or_b32 {sRole}, {sRole}, {t4}")
    A(f"s_sub_u32 {sTask}, {sJ}, 20"); A(f"s_mul_i32 {sTask}, {sTask}, 3"); A(f"s_add_u32 {sTask}, {sTask}, {sW}"); A(f"s_min_u32 {sTask}, {sTask}, 35")
    A(f"s_lshl_b32 {t3}, {sX}, 4"); A(f"s_and_b32 {t4}, {sJ}, 15"); A(f"s_add_u32 {sWo}, {t3}, {t4}"); A(f"s_mul_i32 {sWo}, {sWo}, {32*1152}")
    A(f"s_lshl_b32 {t4}, {sW}, 8"); A(f"s_add_u32 {sWo}, {sWo}, {t4}")
    for r, n in ((rW1, 5308416), (rW2, 5308416), (rOUT, 2304), (rT1, 9216), (rT2, 1152)):
        A(f"s_mov_b32 s{r+2}, {n}"); A(f"s_mov_b32 s{r+3}, 0x20000")
    A("s_mov_b32 s70, 0xffff0000"); A("s_mov_b32 s71, 0xffff0000")
    A(f"v_lshlrev_b32 {vL4}, 2, v0")
    for i in range(12, 24): A(f"v_mov_b32 {v(XA+i)}, 0x3f803f80")
    A(f"s_lshl_b32 {t4}, {sW}, 13"); A(f"s_add_u32 {t4}, {t4}, {L_K}")
    A(f"v_lshl_add_u32 {v(KA)}, {C}, 8, {v(TM+7)}"); A(f"v_add_u32 {v(KA)}, {t4}, {v(KA)}")
    for i in range(1, 4): A(f"v_xor_b32 {v(KA+i)}, {64*i}, {v(KA)}")
    T_ = [v(TM+8+i) for i in range(10)]
    A(f"v_and_b32 {T_[0]}, 1, v0")
    A(f"v_mul_u32_u24 {vIdxP}, 0xaaaa, {T_[0]}"); A(f"v_add_u32 {vIdxP}, 0x4444, {vIdxP}")
    A(f"v_and_b32 {T_[1]}, 3, v0")
    A(f"v_mul_u32_u24 {vIdxS}, 0x5555, {T_[1]}")
    A(f"v_bfe_u32 {T_[2]}, v0, 4, 1")
    A(f"v_bfe_u32 {T_[3]}, v0, 2, 2")
    A(f"v_bfe_u32 {T_[4]}, v0, 3, 1")
    A(f"v_lshrrev_b32 {T_[5]}, 5, v0")
    A(f"v_and_b32 {T_[8]}, 7, v0")
    A(f"v_and_b32 {T_[9]}, 31, v0")
    A(f"s_lshr_b32 {t3}, {sJ}, 4")
    A(f"s_lshr_b32 {t5}, {sJ}, 3")
    A(f"s_lshl_b32 {t3}, {t3}, 1"); A(f"s_lshr_b32 {t4}, {sW}, 1"); A(f"s_add_u32 {t3}, {t3}, {t4}"); A(f"s_lshl_b32 {t3}, {t3}, 14")
    A(f"s_and_b32 {t4}, {sW}, 1"); A(f"s_lshl_b32 {t4}, {t4}, 10"); A(f"s_add_u32 {t3}, {t3}, {t4}")
    A(f"s_lshl_b32 {t4}, {t1}, 8"); A(f"s_add_u32 {t3}, {t3}, {t4}"); A(f"s_add_u32 {t3}, {t3}, {QP_O}")
    A(f"v_lshl_add_u32 {vQPg}, {T_[5]}, 4, {T_[2]}"); A(f"v_lshlrev_b32 {vQPg}, 9, {vQPg}"); A(f"v_lshl_add_u32 {vQPg}, {C}, 4, {vQPg}"); A(f"v_add_u32 {vQPg}, {t3}, {vQPg}")
    A(f"v_add_u32 {vQPg2}, 4096, {vQPg}")
    A(f"s_and_b32 {t3}, {sW}, 1"); A(f"s_lshl_b32 {t3}, {t3}, 8"); A(f"s_lshr_b32 {t4}, {sW}, 1"); A(f"s_lshl_b32 {t4}, {t4}, 7"); A(f"s_add_u32 {t3}, {t3}, {t4}")
    A(f"v_bfe_u32 {T_[6]}, v0, 3, 2"); A(f"v_bfe_u32 {T_[7]}, v0, 1, 2")
    A(f"v_lshlrev_b32 {vQTw}, 5, {T_[6]}"); A(f"v_lshl_add_u32 {vQTw}, {T_[0]}, 4, {vQTw}"); A(f"v_lshl_add_u32 {vQTw}, {T_[7]}, 2, {vQTw}")
    A(f"v_lshl_add_u32 {vQTw}, {T_[5]}, 1, {vQTw}"); A(f"v_add_u32 {vQTw}, {t3}, {vQTw}")
    A(f"v_lshlrev_b32 {vQTr}, 5, {G}"); A(f"v_lshl_add_u32 {vQTr}, {T_[4]}, 7, {vQTr}"); A(f"v_lshl_add_u32 {vQTr}, {T_[0]}, 4, {vQTr}")
    A(f"v_mul_u32_u24 {vOTr}, 640, {T_[4]}"); A(f"v_lshl_add_u32 {vOTr}, {G}, 5, {vOTr}"); A(f"v_lshl_add_u32 {vOTr}, {B2}, 4, {vOTr}")
    A(f"s_mul_i32 {t3}, {sW}, 1280"); A(f"s_add_u32 {t3}, {t3}, {L_PT}")
    A(f"v_add_u32 {vPTr}, {t3}, {vOTr}"); A(f"v_add_u32 {vOTr}, {L_OT}, {vOTr}")
    A(f"v_bfe_u32 {T_[6]}, v0, 1, 4")
    A(f"v_mul_u32_u24 {vPTw}, 640, {T_[5]}"); A(f"v_lshl_add_u32 {vPTw}, {T_[6]}, 5, {vPTw}"); A(f"v_lshl_add_u32 {vPTw}, {T_[0]}, 3, {vPTw}"); A(f"v_add_u32 {vPTw}, {t3}, {vPTw}")
    A(f"v_lshrrev_b32 {vHPr}, 1, v0"); A(f"v_lshlrev_b32 {vHPr}, 4, {vHPr}"); A(f"v_lshl_add_u32 {vHPr}, {T_[0]}, 2, {vHPr}"); A(f"v_add_u32 {vHPr}, {L_HP}, {vHPr}")
    A(f"s_lshl_b32 {t3}, {sW}, 9"); A(f"s_add_u32 {t3}, {t3}, {L_HP}"); A(f"v_add_u32 {vHPw}, {t3}, {vL16}")
    A(f"s_lshl_b32 {t3}, {t5}, 9"); A(f"s_add_u32 {t3}, {t3}, {ST_O}")
    A(f"s_lshl_b32 {t4}, {t2}, 2"); A(f"s_add_u32 {t4}, {t4}, {sW}"); A(f"s_lshl_b32 {t4}, {t4}, 2"); A(f"s_add_u32 {t4}, {t4}, {t3}")
    A(f"v_lshlrev_b32 {vSTst}, 8, {T_[5]}"); A(f"v_lshl_add_u32 {vSTst}, {T_[0]}, 7, {vSTst}"); A(f"v_add_u32 {vSTst}, {t4}, {vSTst}")
    A(f"s_lshl_b32 {t3}, {t1}, 1"); A(f"s_lshr_b32 {t4}, {sW}, 1"); A(f"s_add_u32 {t3}, {t3}, {t4}"); A(f"s_lshl_b32 {t3}, {t3}, 9"); A(f"s_add_u32 {t3}, {t3}, {ST_O}")
    A(f"s_lshr_b32 {t4}, {t2}, 2"); A(f"s_lshl_b32 {t4}, {t4}, 8"); A(f"s_add_u32 {t3}, {t3}, {t4}")
    A(f"v_lshrrev_b32 {T_[7]}, 3, v0")
    A(f"v_lshl_add_u32 {vSTg}, {T_[7]}, 4, {t3}")
    A(f"s_and_b32 {t4}, {sW}, 1"); A(f"s_lshl_b32 {t4}, {t4}, 3"); A(f"v_add_u32 {vSTm}, {t4}, {vSTg}")
    A(f"s_lshr_b32 {t3}, {sJ}, 4"); A(f"s_lshl_b32 {t3}, {t3}, 15"); A(f"s_lshl_b32 {t4}, {t1}, 11"); A(f"s_add_u32 {t3}, {t3}, {t4}")
    A(f"s_lshl_b32 {t4}, {sW}, 9"); A(f"s_add_u32 {t3}, {t3}, {t4}"); A(f"s_lshl_b32 {t4}, {t2}, 6"); A(f"s_add_u32 {t3}, {t3}, {t4}")
    A(f"v_lshlrev_b32 {T_[6]}, 4, {T_[1]}"); A(f"v_lshl_add_u32 {T_[6]}, {T_[2]}, 3, {T_[6]}")
    A(f"v_lshl_add_u32 {vOPst}, {T_[5]}, 2, {T_[3]}"); A(f"v_lshl_add_u32 {vOPst}, {vOPst}, 12, {T_[6]}"); A(f"v_add_u32 {vOPst}, {t3}, {vOPst}")
    A(f"s_and_b32 {t3}, {sJ}, 15"); A(f"s_lshl_b32 {t3}, {t3}, 12"); A(f"s_lshl_b32 {t4}, {sW}, 10"); A(f"s_add_u32 {t3}, {t3}, {t4}"); A(f"v_lshl_add_u32 {vOPg}, v0, 3, {t3}")
    A(f"s_lshr_b32 {t3}, {sW}, 1"); A(f"s_mul_i32 {t3}, {t3}, 640"); A(f"s_and_b32 {t4}, {sW}, 1"); A(f"s_lshl_b32 {t4}, {t4}, 1"); A(f"s_add_u32 {t3}, {t3}, {t4}"); A(f"s_add_u32 {t3}, {t3}, {L_OT}")
    A(f"v_mul_u32_u24 {vOTw}, 20, {T_[4]}"); A(f"v_lshl_add_u32 {vOTw}, {T_[8]}, 6, {vOTw}"); A(f"v_lshl_add_u32 {vOTw}, {T_[5]}, 5, {vOTw}")
    A(f"v_lshl_add_u32 {vOTw}, {T_[2]}, 3, {vOTw}"); A(f"v_add_u32 {vOTw}, {t3}, {vOTw}")
    A(f"s_mul_i32 {t3}, {sW}, {4*1152}"); A(f"s_lshl_b32 {t4}, {sJ}, 6"); A(f"s_add_u32 {t3}, {t3}, {t4}"); A(f"s_add_u32 {t3}, {t3}, {Y_O}")
    A(f"v_mul_u32_u24 {vMst}, 18, {T_[5]}"); A(f"v_add_u32 {vMst}, {vMst}, {T_[3]}"); A(f"v_mul_u32_u24 {vMst}, 1152, {vMst}")
    A(f"v_add3_u32 {vMst}, {vMst}, {T_[6]}, {t3}")
    A(f"v_subrev_u32 {vYst}, 1024, {vMst}")
    A(f"v_lshlrev_b32 {vZSg}, 3, v0")
    A(f"s_lshl_b32 {t3}, {t1}, 8"); A(f"s_add_u32 {t3}, {t3}, {ZS_O+512}"); A(f"v_lshl_add_u32 {vSTATr}, {T_[9]}, 3, {t3}")
    zero(ZG, 2)
    A(f"v_mul_u32_u24 {vXS1}, 1152, {T_[5]}"); A(f"v_lshl_add_u32 {vXS2}, {T_[9]}, 2, {vXS1}"); A(f"v_lshl_add_u32 {vXS1}, {T_[9]}, 4, {vXS1}")
    A(f"s_mul_i32 {t4}, {sW}, 384"); A(f"v_add_u32 {vXAm}, {t4}, {vXAm}")
    A(f"s_mul_i32 {t4}, {sX}, 18"); A(f"s_add_u32 {t4}, {t4}, {sJ}"); A(f"s_lshl_b32 {t5}, {t4}, 6")
    A(f"v_lshl_add_u32 {vB1}, {T_[9]}, 1, {t5}")
    A(f"s_mul_i32 {t4}, {sTask}, 1152"); A(f"s_add_u32 {t4}, {t4}, {Y_O}"); A(f"v_lshl_add_u32 {vRg}, v0, 3, {t4}")
    A(f"s_sub_u32 {t4}, {sL}, 80"); A(f"s_and_b32 {t4}, {t4}, 63"); A(f"s_lshl_b32 {t4}, {t4}, 16")
    A(f"s_lshl_b32 {t5}, {sX}, 10"); A(f"s_add_u32 {t5}, {t5}, {t4}"); A(f"v_lshl_add_u32 {vXPg}, v0, 3, {t5}")
    A(f"s_lshl_b32 {t5}, {sX}, 7"); A(f"s_add_u32 {t4}, {t4}, {t5}"); A(f"v_lshl_add_u32 {vXPst}, {T_[8]}, 4, {t4}")
    A(f"v_lshrrev_b32 {T_[7]}, 3, v0"); A(f"v_lshl_add_u32 {vXPst}, {T_[7]}, 10, {vXPst}")
    A(f"v_lshl_add_u32 {T_[7]}, {C}, 1, {T_[5]}")
    A(f"s_lshl_b32 {t4}, {sTask}, 6"); A(f"v_lshl_add_u32 {vZo}, {T_[7]}, 1, {t4}")
    A(f"v_add_u32 {vZst}, {Z1_O}, {vZo}")
    A(f"s_and_b32 {t5}, {sTask}, 7"); A(f"s_cmp_eq_u32 {t5}, {sX}"); A(f"s_cselect_b32 {t5}, 4, 0"); A(f"s_or_b32 {sRole}, {sRole}, {t5}")
    A(f"s_cmp_ge_u32 {sTask}, 18"); A(f"s_cselect_b32 {t5}, 1152, 0")
    A(f"v_subrev_u32 {vB2}, {t5}, {vZo}")
    A(f"s_cselect_b32 {t5}, {256-18*8}, 0"); A(f"s_lshl_b32 {t4}, {sTask}, 3"); A(f"s_add_u32 {t4}, {t4}, {t5}"); A(f"s_add_u32 {t4}, {t4}, {ZS_O}")
    A(f"v_lshl_add_u32 {vZSst}, {T_[2]}, 2, {t4}")

def constants1():
    A(f"v_and_b32 {v(TM+8)}, 1, v0")
    A(f"v_mul_u32_u24 {vIdxD}, 0x5555, {v(TM+8)}"); A(f"v_add_u32 {vIdxD}, 0x8888, {vIdxD}")
    A(f"v_mov_b32 {vOnes}, 0x3f803f80")
    A(f"s_lshl_b32 {t3}, {sW}, 6"); A(f"s_add_u32 {t3}, {t3}, {L_WQ}")
    A(f"v_lshlrev_b32 {vCq}, 10, {G}"); A(f"v_lshl_add_u32 {vCq}, {C}, 2, {vCq}"); A(f"v_add_u32 {vCq}, {t3}, {vCq}")
    for i in range(16, 24): A(f"v_accvgpr_write_b32 {a(aWQ+i)}, 0")
    zero(D0, 8)
    A(f"s_cmp_lg_u32 {sW}, 3")
    A("s_cbranch_scc1 L_c1")
    A(f"s_waitcnt vmcnt({4+1+8})")
    stats_x()
    for i in range(2):
        lo, hi = v(TM+8), v(TM+9)
        A(f"v_lshlrev_b32 {lo}, 16, {v(XG+i)}"); A(f"v_and_b32 {hi}, 0xffff0000, {v(XG+i)}")
        A(f"v_sub_f32 {lo}, {lo}, {S_}"); A(f"v_sub_f32 {hi}, {hi}, {S_}")
        A(f"v_cvt_pk_bf16_f32 {v(XG+i)}, {lo}, {hi}")
        A(f"v_lshlrev_b32 {lo}, 16, {v(XG+i)}"); A(f"v_and_b32 {hi}, 0xffff0000, {v(XG+i)}")
        A(f"v_mul_f32 {lo}, {lo}, {Q_}"); A(f"v_mul_f32 {hi}, {hi}, {Q_}")
        A(f"v_cvt_pk_bf16_f32 {v(XG+i)}, {lo}, {hi}")
    A(f"v_lshrrev_b32 {v(TM+8)}, 5, v0"); A(f"v_mul_u32_u24 {v(TM+8)}, 144, {v(TM+8)}"); A(f"v_and_b32 {v(TM+9)}, 31, v0"); A(f"v_lshl_add_u32 {v(TM+8)}, {v(TM+9)}, 3, {v(TM+8)}")
    A("s_mov_b32 exec_lo, 0x3ffff"); A("s_mov_b32 exec_hi, 0x3ffff")
    A(f"ds_write_b64 {v(TM+8)}, {v(XG,2)} offset:{L_X}")
    A("s_mov_b64 exec, -1")
    A("L_c1:")
    A(f"v_mul_u32_u24 {v(TM+10)}, 144, {B2}"); A(f"v_lshl_add_u32 {v(TM+10)}, {G}, 4, {v(TM+10)}")
    A(f"s_lshl_b32 {t3}, {sW}, 11"); A(f"v_add_u32 {v(TM+8)}, {t3}, {vL16}")
    A(f"ds_write_b128 {v(TM+8)}, {v(D1,4)} offset:1024"); A(f"ds_write_b128 {v(TM+8)}, {v(D1,4)} offset:2048")

fl_load = ["s_mov_b32 exec_hi, 0", f"buffer_load_dwordx4 {v(FG,4)}, {vL16}, {srd(rWS)}, {sXoff} offen sc1", "s_mov_b32 exec_hi, -1"]
qp_store = f"buffer_store_dwordx4 {v(D0,4)}, {vQPst}, {srd(rWS)}, {{so}} offen{{fl}}"
def qg(n): return [f"buffer_load_dwordx{n} {v(QG+4*p,n)}, {vQPg if p < 2 else vQPg2}, {srd(rWS)}, {sGp} offen offset:{2048*(p%2)} sc1" for p in range(4)]
qg4, qg2 = qg(4), qg(2)
pstamp(3)
for r, off in ((rW1, 48), (rW2, 64), (rOUT, 80), (rT1, 56), (rT2, 72)):
    A(f"s_load_dwordx2 s[{r}:{r+1}], s[0:1], {off}")
if args.code:
    A(f"s_cmp_ge_u32 {sL}, 2"); A("s_cbranch_scc1 L_nc")
    A("s_getpc_b64 s[66:67]")
    A("L_pc:")
    A(f"s_lshl_b32 {t3}, {sL}, 13"); A(f"v_add_u32 {v(TM+8)}, {t3}, {vL128}")
    A(f"v_min_u32 {v(TM+8)}, L_codeend-L_pc-4, {v(TM+8)}")
    A(f"global_load_dword {DUM}, {v(TM+8)}, s[66:67]")
    A("L_nc:")
constants1()
A(f"s_mov_b32 {sTO}, 0x40000"); A(f"s_mov_b32 {sMode}, 0"); A(f"s_mov_b32 {sGp}, {sGf}")
cnt = [8]
mark = {'K': 8}
def vm(s): A(s); cnt[0] += 1
A(f"s_lshl_b32 {t4}, {sL}, 9"); A(f"s_add_u32 {t4}, {t4}, {sGf}"); A(f"s_add_u32 {t4}, {t4}, {QP_O}")
A(f"s_add_u32 {sXoff}, {sGf}, {FF_O}")
A("s_mov_b64 exec, 15")
vm(f"buffer_load_dword {DUM}, {vL128}, {srd(rWS)}, {t4} offen sc1{NT}")
vm(f"buffer_load_dword {DUM}, {vL128}, {srd(rWS)}, {sXoff} offen sc1{NT}")
A("s_mov_b64 exec, -1")
def hookQ():
    A(f"s_lshl_b32 {t4}, {sL}, 2"); A(f"s_add_u32 {t4}, {t4}, {sXoff}")
    A(f"s_getreg_b32 {t3}, hwreg(HW_REG_XCC_ID)"); A(f"s_lshl_b32 {t3}, {t3}, 28"); A(f"s_or_b32 {t3}, {t3}, 1")
    A(f"s_waitcnt vmcnt({cnt[0]}) lgkmcnt(0)")
    A("s_barrier")
    pstamp(2)
    for l in exec_xa(): A(l)
    for i in range(3):
        if i == 2: A("s_mov_b64 exec, 0x33")
        A(f"ds_read_b128 {v(XA+4*i,4)}, {v(TM+10)} offset:{L_X+64*i}")
    A("s_mov_b64 exec, -1")
    for i in range(2):
        for vv in range(0, 8, 2):
            row = 32*i + 16*(vv >> 2) + (vv & 3)
            A(f"ds_read2st64_b32 {a(aWQ+8*i+vv,2)}, {vCq} offset0:{row} offset1:{row+1}")
    A("s_mov_b32 exec_hi, 0")
    for vv in (0, 2): A(f"ds_read2st64_b32 {a(aWQ+16+vv,2)}, {vCq} offset0:{64+vv} offset1:{65+vv}")
    A("s_mov_b32 exec_hi, -1")
    A(f"v_readfirstlane_b32 {sFlag}, {FN}")
    A(f"s_add_u32 {sFlag}, {sFlag}, 0x0e377902"); A(f"s_and_b32 {sFlag}, {sFlag}, 0x0fffffff"); A(f"s_or_b32 {sFlag}, {sFlag}, {t3}")
    A(f"v_mov_b32 {FN}, {sFlag}")
    A("s_mov_b64 exec, 1")
    vm(f"buffer_store_dword {FN}, {vL16}, {srd(rWS)}, {t4} offen")
    A("s_mov_b64 exec, -1")
    A(f"v_and_b32 {vTag}, 0xff, {FN}"); A(f"s_movk_i32 {t4}, 0xff")
    A("s_waitcnt lgkmcnt(0)")
    for i in range(3): sm(D0, XA+4*i, aWQ+8*i, vIdxD)
    for i in range(4): A(f"v_bfi_b32 {v(D0+i)}, {t4}, {vTag}, {v(D0+i)}")
    A("s_mov_b32 exec_hi, 0")
    vm(qp_store.format(so=sGf, fl=''))
    A("s_mov_b32 exec_hi, -1")
    pstamp(1)
for k in range(9):
    if k == args.pQ: hookQ()
    if k == 8 - args.vw: mark['V'] = cnt[0]
    if k < 8: vm(f"buffer_load_dwordx4 {a(aV+4*k,4)}, {vL16}, {srd(rV)}, {kv0 if k < 4 else kv1} offen offset:{1024*(k%4)}{NTV}")
    if k == 7: pstamp(9)
TT = v(TM+4)
def slots_touch():
    A(f"s_lshl_b32 {t1}, {sJ}, 2"); A(f"s_add_u32 {t1}, {t1}, {sW}")
    A(f"s_mul_i32 {t3}, {t1}, 896"); A(f"s_add_u32 {t3}, {t3}, {sGf}"); A(f"s_add_u32 {t3}, {t3}, {Y_O}")
    A("s_mov_b64 exec, 0x7f")
    A(f"buffer_load_dword {DUM}, {vL128}, {srd(rWS)}, {t3} offen sc1{NT}")
    A("s_mov_b64 exec, -1")
assert Y_O + 64 * 896 >= ZS_O + 1536
def w1_touch():
    A(f"s_lshl_b32 {t1}, {sJ}, 2"); A(f"s_add_u32 {t1}, {t1}, {sW}")
    A(f"s_mul_i32 {t4}, {sX}, 576"); A(f"s_add_u32 {t4}, {t4}, {t1}"); A(f"s_add_u32 {t4}, {t4}, 512"); A(f"s_mul_i32 {t4}, {t4}, 1152")
    A(f"s_mul_i32 {t1}, {t1}, {9*9216}")
    A(f"s_mul_i32 {t3}, {sX}, 1152"); A(f"s_add_u32 {t1}, {t1}, {t3}"); A(f"s_add_u32 {t3}, {t1}, {5*9216}")
    A(f"v_mul_u32_u24 {TT}, 57, v0"); A(f"v_lshrrev_b32 {TT}, 9, {TT}"); A(f"v_mul_u32_u24 {TT}, {9216-1152}, {TT}"); A(f"v_add_u32 {TT}, {TT}, {vL128}")
    A("s_mov_b32 exec_hi, 0x1fff")
    A(f"buffer_load_dword {DUM}, {TT}, {srd(rW1)}, {t1} offen{NTM}")
    A("s_mov_b32 exec_hi, 15")
    A(f"buffer_load_dword {DUM}, {TT}, {srd(rW1)}, {t3} offen{NTM}")
    A("s_mov_b64 exec, 0x1ff")
    A(f"buffer_load_dword {DUM}, {vL128}, {srd(rW2)}, {t4} offen{NTM}")
    A("s_mov_b64 exec, -1")
def w2_loads():
    l1 = A.newlabel('L_w2')
    A(f"s_mul_i32 {t0}, {sX}, 18"); A(f"s_add_u32 {t0}, {t0}, {sJ}"); A(f"s_mul_i32 {t0}, {t0}, {32*1152}")
    A(f"s_lshl_b32 {t1}, {sW}, 8"); A(f"s_add_u32 {t1}, {t1}, {t0}")
    for i in range(8):
        A(f"buffer_load_dwordx4 {a(aW2+4*i,4)}, {vWrow}, {srd(rW2)}, {t1} offen{NT2}")
        if i < 7: A(f"s_add_u32 {t1}, {t1}, 4608")
    A(f"s_cmp_lg_u32 {sW}, 3")
    A(f"s_cbranch_scc1 {l1}")
    A(f"s_mov_b64 exec, {mLO8}")
    for i in range(8):
        A(f"buffer_load_dwordx4 {a(aW2t+4*i,4)}, {vWrow}, {srd(rW2)}, {t0} offen offset:1024{NT2}")
        if i < 7: A(f"s_add_u32 {t0}, {t0}, 4608")
    A("s_mov_b64 exec, -1")
    A(f"{l1}:")
def wo_loads(k0, k1, with_tail):
    for k in range(k0, k1):
        A(f"buffer_load_dwordx4 {a(aWO+4*k,4)}, {vWrow}, {srd(rWO)}, {sWo} offen{NTO}")
        A(f"s_add_u32 {sWo}, {sWo}, 4608")
    if with_tail:
        l1 = A.newlabel('L_wt')
        A(f"s_cmp_lg_u32 {sW}, 3")
        A(f"s_cbranch_scc1 {l1}")
        A(f"s_mov_b64 exec, {mLO8}")
        for i in range(7, -1, -1):
            A(f"s_sub_u32 {sWo}, {sWo}, 4608")
            A(f"buffer_load_dwordx4 {a(aWOt+4*i,4)}, {vWrow}, {srd(rWO)}, {sWo} offen offset:256{NTO}")
        A("s_mov_b64 exec, -1")
        A(f"{l1}:")
constants()
pstamp(4)
stamp()
A(f"s_waitcnt vmcnt({cnt[0]-mark['K']})")
for T in range(2):
    for q in range(4): A(f"ds_read_b128 {a(aK+16*T+4*q,4)}, {v(KA+q)} offset:{4096*T}")
A(f"s_mov_b32 {sXPo}, {XP_O}")
A(f"s_cmp_lt_u32 {sJ}, 16")
A("s_cbranch_scc1 L_g1n")
A(f"v_readfirstlane_b32 {t4}, {vOPg}"); A(f"v_readfirstlane_b32 {t5}, {vSTg}")
A(f"s_add_u32 {t4}, {t4}, {sGf}"); A(f"s_add_u32 {t5}, {t5}, {sGf}")
A("s_mov_b64 exec, 0xff")
A(f"buffer_load_dword {DUM}, {vL128}, {srd(rWS)}, {t4} offen sc1{NT}")
A("s_mov_b64 exec, 3")
A(f"buffer_load_dword {DUM}, {vL128}, {srd(rWS)}, {t5} offen sc1{NT}")
A("s_mov_b64 exec, -1")
A(f"buffer_load_ushort {vXres}, {vZo}, {srd(rX)}, 0 offen{NT}")
A(f"buffer_load_ushort {vB2}, {vB2}, {srd(rT2)}, 0 offen{NT}")
wo_loads(0, 8, True)
A("s_branch L_g1o")
A("L_g1n:")
if 's' in args.early: slots_touch()
if '1' in args.early: w1_touch()
if '2' in args.early: w2_loads()
A("L_g1o:")
pstamp(6)
A(f"s_waitcnt vmcnt({args.vw})")
if ST and not args.pro and ONLY is None: A(f"s_memrealtime s[74:75]")
pstamp(5)
def flags_diff():
    A(f"v_xor_b32 {CK}, {sFlag}, {v(FG)}")
    for i in range(1, 4): A(f"v_bitop3_b32 {CK}, {CK}, {v(FG+i)}, {sFlag} bitop3:0xf6")
st_rd = f"ds_read_b64 {v(TM,2)}, {vSTATr}"
A("L_g4:")
for l in fl_load + qg4: A(l)
A("s_waitcnt vmcnt(0)")
pstamp(7)
flags_diff()
A(f"v_cmp_ne_u32 vcc, 0, {CK}")
A("s_cmp_lg_u32 vcc_lo, 0")
if args.forcefb: A("s_cmp_eq_u32 0, 0")
A("s_cbranch_scc1 L_af2")
A(f"s_mov_b32 {sMode}, 0")
A("L_g2:")
for i in range(16): A(f"v_xor_b32 {v(QG+i)}, {vTag}, {v(QG+i)}")
A(f"v_or3_b32 {CK}, {v(QG)}, {v(QG+1)}, {v(QG+2)}")
for i in range(3, 15, 2): A(f"v_or3_b32 {CK}, {CK}, {v(QG+i)}, {v(QG+i+1)}")
A(f"v_or_b32 {CK}, {CK}, {v(QG+15)}")
A(f"v_and_b32 {CK}, 0xff, {CK}")
A(f"v_cmp_ne_u32 vcc, 0, {CK}")
A("s_cbranch_vccnz L_g5")
A("L_g3:")
A(f"s_mov_b32 {sL}, 0")
zero(D0)
A(f"v_mov_b32 {v(TM)}, 0"); A(f"v_mov_b32 {v(TM+1)}, 1.0")
tail.append("L_g5:\n" + timeout("L_g4", "L_g3"))
pstamp(8)
A(f"v_add_f32 {v(TM+2)}, {v(QG+2)}, {v(QG+6)}"); A(f"v_add_f32 {v(TM+3)}, {v(QG+3)}, {v(QG+7)}")
A(f"v_add_f32 {v(TM+4)}, {v(QG+10)}, {v(QG+14)}"); A(f"v_add_f32 {v(TM+5)}, {v(QG+11)}, {v(QG+15)}")
A(f"v_add_f32 {v(TM+2)}, {v(TM+2)}, {v(TM+4)}"); A(f"v_add_f32 {v(TM+3)}, {v(TM+3)}, {v(TM+5)}")
A(f"v_permlane32_swap_b32 {v(TM+2)}, {v(TM+3)}")
A(f"v_add_f32 {vCq}, {v(TM+2)}, {v(TM+3)}")
A("s_branch L_qfin")

A("L_layer:")
zero(D0, 8)
def quiet_wait(so_add):
    if not args.pre: return
    A(f"s_add_u32 {t5}, {sGp}, {so_add}")
    A("s_mov_b64 exec, 1")
    poll([f"buffer_load_dword {DUM}, {vL16}, {srd(rWS)}, {t5} offen sc1"] + ([f"s_sleep {args.pre-1}"] if args.pre > 1 else []), [DUM])
    A("s_mov_b64 exec, -1")
    if args.zd: A(f"s_sleep {args.zd}")
if args.pre:
    A(f"s_bitcmp1_b32 {sRole}, 1"); A("s_cbranch_scc1 L_q0")
    quiet_wait(AN_O)
    A("L_q0:")
def q_pub():
    A(f"v_and_b32 {v(D0)}, -2, {v(D0)}"); A(f"v_and_b32 {v(D0+1)}, -2, {v(D0+1)}")
    A("s_mov_b32 exec_hi, 0")
    pub(f"buffer_store_dwordx2 {v(D0,2)}, {vQPst}, {srd(rWS)}, {{so}} offen{{fl}}")
    A("s_mov_b32 exec_hi, -1")
poll_proj(vXAq, sXoff, 3, aWQ, True)
q_pub()
nst[0] = 1
stamp()
zero(D0)
qregs = [v(QG+4*p+i) for p in range(4) for i in range(2)]
qchk1 = [f"v_or3_b32 {CK}, {qregs[0]}, {qregs[1]}, {qregs[2]}", f"v_or3_b32 {CK}, {CK}, {qregs[3]}, {qregs[4]}", f"v_or3_b32 {CK}, {CK}, {qregs[5]}, {qregs[6]}",
         f"v_bitop3_b32 {CK}, {CK}, {qregs[7]}, 1 bitop3:0xa8", f"v_cmp_ne_u32 vcc, 0, {CK}"]
poll(zs_load(vSTATr, sGp), [v(ZG), v(ZG+1)])
for l in qg2: A(l)
A(f"v_mov_b32 {S_}, {v(ZG)}"); A(f"v_mov_b32 {Q_}, {v(ZG+1)}")
stats_tail1(); stats_tail2()
poll(qg2, qregs, primed=True, chk=qchk1, site='q')
A("L_qfin:")
stamp()
A(f"v_add_f32 {v(TM+2)}, {v(QG)}, {v(QG+4)}"); A(f"v_add_f32 {v(TM+3)}, {v(QG+1)}, {v(QG+5)}")
A(f"v_add_f32 {v(TM+4)}, {v(QG+8)}, {v(QG+12)}"); A(f"v_add_f32 {v(TM+5)}, {v(QG+9)}, {v(QG+13)}")
A(f"v_add_f32 {v(TM+2)}, {v(TM+2)}, {v(TM+4)}"); A(f"v_add_f32 {v(TM+3)}, {v(TM+3)}, {v(TM+5)}")
A(f"v_permlane32_swap_b32 {v(TM+2)}, {v(TM+3)}")
A(f"v_add_f32 {v(TM+2)}, {v(TM+2)}, {v(TM+3)}")
A(f"v_fma_f32 {v(TM+2)}, -{v(TM)}, {vCq}, {v(TM+2)}")
A(f"v_mul_f32 {v(TM+2)}, {v(TM+2)}, {v(TM+1)}")
A(f"v_cvt_pk_bf16_f32 {v(TM+2)}, {v(TM+2)}, {v(TM+2)}")
A(f"ds_write_b16 {vQTw}, {v(TM+2)} offset:{L_QT}")
A("s_mov_b32 vcc_lo, 0xaaaaaaaa"); A("s_mov_b32 vcc_hi, 0xaaaaaaaa")
zero(DP)
A("s_waitcnt lgkmcnt(0)")
A("s_barrier")
A(f"ds_read_b128 {v(AO,4)}, {vQTr} offset:{L_QT}")
A(f"ds_read_b128 {v(AO+4,4)}, {vQTr} offset:{L_QT+256}")
if args.mid:
    A(f"s_lshr_b32 {t0}, {sJ}, 4"); A(f"s_or_b32 {t0}, {t0}, {sL}")
    A("s_cbranch_scc1 L_mid")
    if 's' in args.mid: slots_touch()
    if '1' in args.mid: w1_touch()
    if '2' in args.mid: w2_loads()
    A("L_mid:")
A(f"s_waitcnt lgkmcnt({lg(1)})")
sm(D0, AO, aK, vIdxP); sm(D1, AO, aK+16, vIdxP)
A("s_waitcnt lgkmcnt(0)")
sm(D0, AO+4, aK+8, vIdxP); sm(D1, AO+4, aK+24, vIdxP)
SC, MX, P_, LS, TT = v(TM), v(TM+1), v(TM+2), v(TM+3), v(TM+4)
A(f"v_add_f32 {SC}, {v(D0)}, {v(D0+1)}")
A(f"v_add_f32 {TT}, {v(D1)}, {v(D1+1)}")
A(f"v_cndmask_b32 {SC}, {SC}, {TT}, {mROW}")
rbf(SC, SC)
A(f"v_mul_f32 {SC}, {f32(128 ** -0.5)}, {SC}")
rbf(SC, SC)
A(f"v_mul_f32 {SC}, {f32(1.4426950408889634)}, {SC}")
zero(D0, 2)
A(f"v_max_f32_dpp {MX}, {SC}, {SC} row_ror:8 row_mask:0xf bank_mask:0xf")
for n, k in enumerate((4, 2, 1)):
    zero(D0+2+2*n, 2)
    if k == 1: A(f"v_max_f32_dpp {TT}, {MX}, {MX} row_ror:{k} row_mask:0xf bank_mask:0xf")
    A(f"v_max_f32_dpp {MX}, {MX}, {MX} row_ror:{k} row_mask:0xf bank_mask:0xf")
A(f"v_permlane16_swap_b32 {MX}, {TT}")
A(f"v_max_f32 {MX}, {MX}, {TT}")
A(f"v_sub_f32 {P_}, {SC}, {MX}")
A(f"v_exp_f32 {P_}, {P_}")
A(f"v_cvt_pk_bf16_f32 {TT}, {P_}, 0")
A(f"ds_write2_b32 {vPTw}, {TT}, {TT} offset1:5")
for i in range(4): A(f"ds_read_b128 {v(AO+4*i,4)}, {vPTr} offset:{128*i}")
A(f"v_add_f32_dpp {LS}, {P_}, {P_} row_ror:8 row_mask:0xf bank_mask:0xf")
for k in (4, 2, 1): A(f"v_add_f32_dpp {LS}, {LS}, {LS} row_ror:{k} row_mask:0xf bank_mask:0xf")
A(f"v_mov_b32 {SC}, {LS}")
A(f"v_permlane16_swap_b32 {LS}, {SC}")
A(f"v_add_f32 {LS}, {LS}, {SC}")
A(f"v_cndmask_b32 {SC}, {MX}, {LS}, vcc")
A("s_mov_b32 exec_lo, 3"); A("s_mov_b32 exec_hi, 3")
pub(f"buffer_store_dword {SC}, {vSTst}, {srd(rWS)}, {{so}} offen{{fl}}")
A("s_mov_b64 exec, -1")
for i in range(4):
    A(f"s_waitcnt lgkmcnt({lg(3-i)})")
    sm(DP, AO+4*i, aV+8*i, vIdxS)
def pack4(d):
    A(f"v_cvt_pk_bf16_f32 {v(d)}, {v(d)}, {v(d+1)}"); A(f"v_cvt_pk_bf16_f32 {v(d+1)}, {v(d+2)}, {v(d+3)}")
pack4(DP)
pub(f"buffer_store_dwordx2 {v(DP,2)}, {vOPst}, {srd(rWS)}, {{so}} offen{{fl}}")
stamp()
E = TM + 5
R = TM + 12
def tile_out(wb, tb, vst, drain):
    l1 = A.newlabel('L_t'); l2 = A.newlabel('L_t')
    for i in range(4):
        A(f"s_waitcnt lgkmcnt({lg(3-i)})")
        sm(D0, AO+4*i, wb+8*i, vIdxS)
    A(f"s_cmp_lg_u32 {sW}, 3")
    A(f"s_cbranch_scc1 {l1}")
    for i in range(1 if 'notail' in args.exp else 4): sm(D1, AO+4*i, tb+8*i, vIdxS)
    A(f"{l1}:")
    A("s_waitcnt vmcnt(0)" if drain else "s_nop 0")
    A("s_nop 4")
    pack4(D0)
    pub(f"buffer_store_dwordx2 {v(D0,2)}, {vst}, {srd(rWS)}, {{so}} offen{{fl}}")
    A(f"s_cmp_lg_u32 {sW}, 3")
    A(f"s_cbranch_scc1 {l2}")
    pack4(D1)
    A(f"s_mov_b64 exec, {mLO8}")
    pub(f"buffer_store_dwordx2 {v(D1,2)}, {v(E+2)}, {srd(rWS)}, {{so}} offen{{fl}}")
    A("s_mov_b64 exec, -1")
    A(f"{l2}:")
A(f"s_cmp_lt_u32 {sJ}, 16")
A("s_cbranch_scc1 L_mlp")
op_load = [f"buffer_load_dwordx2 {v(OG+2*i,2)}, {vOPg}, {srd(rWS)}, {sGp} offen offset:{512*i} sc1" for i in range(2)]
A(f"v_add_u32 {v(E+6)}, {4*1152}, {vYst}")
if args.sd: A(f"s_sleep {args.sd}")
if 'nost' not in args.exp.split(','): poll([f"buffer_load_dwordx4 {v(SG,4)}, {vSTg}, {srd(rWS)}, {sGp} offen sc1",
      f"buffer_load_dwordx4 {v(SG+4,4)}, {vSTg}, {srd(rWS)}, {sGp} offen offset:128 sc1",
      f"buffer_load_dwordx2 {v(SG+8,2)}, {vSTm}, {srd(rWS)}, {sGp} offen sc1"], [v(SG+i) for i in range(10 if 's' in PD else 8)], site='s')
for l in op_load: A(l)
if 'noweights' in args.exp: A("s_branch L_exw")
A(f"v_max3_f32 {MX}, {v(SG)}, {v(SG+1)}, {v(SG+2)}")
A(f"v_max_f32 {MX}, {MX}, {v(SG+3)}")
A(f"v_max_f32_dpp {TT}, {MX}, {MX} row_ror:8 row_mask:0xf bank_mask:0xf")
A(f"v_max_f32_dpp {MX}, {MX}, {MX} row_ror:8 row_mask:0xf bank_mask:0xf")
A(f"v_permlane16_swap_b32 {MX}, {TT}"); A(f"v_max_f32 {SC}, {MX}, {TT}"); A(f"v_max_f32 {MX}, {MX}, {TT}")
A(f"v_permlane32_swap_b32 {MX}, {SC}"); A(f"v_max_f32 {MX}, {MX}, {SC}")
for n, i in enumerate((0, 1, 2, 3, 8, 9)): A(f"v_sub_f32 {v(E+n)}, {v(SG+i)}, {MX}")
for n in range(6): A(f"v_exp_f32 {v(E+n)}, {v(E+n)}")
A(f"v_mul_f32 {LS}, {v(E)}, {v(SG+4)}")
for i in (1, 2, 3): A(f"v_fmac_f32 {LS}, {v(E+i)}, {v(SG+4+i)}")
A(f"v_add_f32_dpp {TT}, {LS}, {LS} row_ror:8 row_mask:0xf bank_mask:0xf")
A(f"v_add_f32_dpp {LS}, {LS}, {LS} row_ror:8 row_mask:0xf bank_mask:0xf")
A(f"v_permlane16_swap_b32 {LS}, {TT}"); A(f"v_add_f32 {SC}, {LS}, {TT}"); A(f"v_add_f32 {LS}, {LS}, {TT}")
A("L_exw:")
poll(op_load, [v(OG+i) for i in range(4)], primed=True, site='o')
stamp()
A(f"v_permlane32_swap_b32 {LS}, {SC}")
def unpack2(dst, src):
    for i in range(2):
        A(f"v_lshlrev_b32 {v(dst+2*i)}, 16, {v(src+i)}"); A(f"v_and_b32 {v(dst+2*i+1)}, 0xffff0000, {v(src+i)}")
unpack2(R, OG); unpack2(OG+4, OG+2)
for i in (0, 2): A(f"v_pk_mul_f32 {v(R+i,2)}, {v(R+i,2)}, {v(E+3,2)} op_sel:[0,1] op_sel_hi:[1,1]")
for i in (0, 2): A(f"v_pk_fma_f32 {v(R+i,2)}, {v(OG+4+i,2)}, {v(E+5,2)}, {v(R+i,2)} op_sel_hi:[1,0,1]")
A(f"v_add_f32 {LS}, {LS}, {SC}")
A(f"v_mov_b32 {v(E+2)}, {v(E+6)}")
A(f"v_permlane32_swap_b32 {v(R)}, {v(R+2)}")
A(f"v_permlane32_swap_b32 {v(R+1)}, {v(R+3)}")
A(f"v_add_f32 {v(R)}, {v(R)}, {v(R+2)}")
A(f"v_add_f32 {v(R+1)}, {v(R+1)}, {v(R+3)}")
A(f"v_rcp_f32 {LS}, {LS}")
A(f"v_permlane16_swap_b32 {v(R)}, {v(R+1)}")
A(f"v_add_f32 {v(R)}, {v(R)}, {v(R+1)}")
A(f"v_add_f32_dpp {v(R)}, {v(R)}, {v(R)} row_ror:8 row_mask:0xf bank_mask:0xf")
A(f"v_mul_f32 {v(R)}, {v(R)}, {LS}")
A(f"v_cvt_pk_bf16_f32 {TT}, {v(R)}, {v(R)}")
A(f"ds_write_b16 {vOTw}, {TT}")
A(f"s_cmp_lg_u32 {sL}, 0")
A("s_cbranch_scc1 L_o3")
pub(*[f"buffer_store_dwordx2 {v(EM,2)}, {vOPg}, {srd(rWS)}, {{so}} offen offset:{512*i}{{fl}}" for i in range(2)])
A("L_o3:")
A("s_waitcnt lgkmcnt(0)")
A("s_barrier")
for i in range(4): A(f"ds_read_b128 {v(AO+4*i,4)}, {vOTr} offset:{128*i}")
tile_out(aWO, aWOt, vYst, True)
stamp()

def reducer(kind):
    ld = [f"buffer_load_dwordx2 {v(YG+2*i,2)}, {vRg}, {srd(rWS)}, {sGp} offen offset:{512*i} sc1" for i in range(2)]
    A(f"s_movk_i32 {t4}, 0xff"); A(f"s_add_u32 {t3}, {sXPo}, 8192")
    zero(R)
    if kind == 'A': zero(YG+4, 2)
    if kind == 'A':
        if args.yd: A(f"s_sleep {args.yd}")
        poll(ld, [v(YG+i) for i in range(4)], site='y')
    else:
        poll(ld + ["s_mov_b64 exec, 0xffff", f"buffer_load_dwordx2 {v(YG+4,2)}, {vRg}, {srd(rWS)}, {sGp} offen offset:1024 sc1", "s_mov_b64 exec, -1"],
             [v(YG+i) for i in range(6)], site='y')
    stamp()
    A(f"v_smfmac_f32_16x16x64_bf16 {v(R,4)}, {v(YG+8,4)}, {v(YG,8)}, {vIdxS}")
    for i in range(4): A(f"v_add_f32_dpp {v(R+i)}, {v(R+i)}, {v(R+i)} row_ror:8 row_mask:0xf bank_mask:0xf")
    for i in range(4): A(f"v_bfi_b32 {v(R+i)}, {t4}, {vTag}, {v(R+i)}")
    A(f"buffer_store_dwordx4 {v(R,4)}, {vXPst}, {srd(rWS)}, {sXPo} offen sc1")
    if args.near: A(f"buffer_store_dwordx4 {v(R,4)}, {vXPst}, {srd(rWS)}, {t3} offen sc1")
    if kind == 'M':
        A(f"s_lshl_b32 {t0}, {sL}, 2"); A(f"s_andn2_b32 {t0}, {t0}, {sRole}")
        A("s_cbranch_scc1 L_fin")
    cl = [f"buffer_store_dwordx2 {v(EM,2)}, {vRg}, {srd(rWS)}, {{so}} offen offset:{512*i}{{fl}}" for i in range(2)]
    if kind == 'M': cl += ["s_mov_b64 exec, 0xffff", f"buffer_store_dwordx2 {v(EM,2)}, {vRg}, {srd(rWS)}, {{so}} offen offset:1024{{fl}}", "s_mov_b64 exec, -1"]
    pub(*cl)
    if args.pre:
        lb = A.newlabel('L_an')
        A(f"s_cmp_lg_u32 {sTask}, 0"); A(f"s_cbranch_scc1 {lb}")
        if kind == 'A': A(f"s_cmp_eq_u32 {sL}, 0"); A(f"s_cbranch_scc1 {lb}")
        A(f"v_mov_b32 {TT}, {AN_O + (0 if kind == 'M' else 4)}")
        A("s_mov_b64 exec, 1")
        pub(f"buffer_store_dword {vL16}, {TT}, {srd(rWS)}, {{so}} offen{{fl}}")
        A("s_mov_b64 exec, -1")
        A(f"{lb}:")
    if args.near:
        A(f"v_mov_b32 {TT}, 0")
        A(f"ds_read_b32 {TT}, {TT} offset:{L_NEAR}")
    if args.xd: A(f"s_sleep {args.xd}")
    if args.near:
        A("s_waitcnt lgkmcnt(0)")
        A(f"v_or_b32 {vXPg}, {vXPg}, {TT}")
    poll([f"buffer_load_dwordx2 {v(XG,2)}, {vXPg}, {srd(rWS)}, {sXPo} offen sc1",
          f"buffer_load_dwordx2 {v(XG+2,2)}, {vXPg}, {srd(rWS)}, {sXPo} offen offset:512 sc1"], None, site='x',
         chk=[f"v_xor_b32 {v(R+i)}, {vTag}, {v(XG+i)}" for i in range(4)] +
             [f"v_or3_b32 {CK}, {v(R)}, {v(R+1)}, {v(R+2)}", f"v_bitop3_b32 {CK}, {CK}, {v(R+3)}, {t4} bitop3:0xa8", f"v_cmp_ne_u32 vcc, 0, {CK}"])
    stamp()
    Y = v(R)
    A(f"v_add_f32 {v(R)}, {v(R)}, {v(R+2)}"); A(f"v_add_f32 {v(R+1)}, {v(R+1)}, {v(R+3)}")
    A(f"v_permlane32_swap_b32 {v(R)}, {v(R+1)}")
    A(f"v_add_f32 {TT}, {v(R)}, {v(R+1)}"); A(f"v_add_f32 {Y}, {v(R)}, {v(R+1)}")
    A(f"v_permlane16_swap_b32 {Y}, {TT}"); A(f"v_add_f32 {Y}, {Y}, {TT}")
    rbf(Y, Y)
    if kind == 'M':
        A(f"v_add_f32 {Y}, {Y}, {vB2}"); rbf(Y, Y)
    A(f"v_add_f32 {TT}, {Y}, {vXres}")
    A(f"v_add_f32 {v(R+1)}, {Y}, {vXres}")
    A(f"v_add_f32 {Y}, {Y}, {vXres}")
    A("s_mov_b64 exec, -1")
    A(f"v_permlane32_swap_b32 {TT}, {v(R+1)}")
    A(f"v_cvt_pk_bf16_f32 {TT}, {TT}, {v(R+1)}")
    A("s_mov_b64 exec, 0xffff")
    if kind == 'M':
        A(f"s_cmp_lg_u32 {sL}, 0")
        A("s_cbranch_scc1 L_out")
    pub(f"buffer_store_dword {TT}, {vZst}, {srd(rWS)}, {{so}} offen{{fl}}")
    A("s_mov_b64 exec, -1")
    stamp()
    rbf(vXres, Y)
    if kind == 'M' or args.ms != 'x':
        A(f"v_mul_f32 {TT}, {vXres}, {vXres}")
        A(f"v_cndmask_b32 {TT}, {vXres}, {TT}, {mROW}")
        for k in (8, 4, 2): A(f"v_add_f32_dpp {TT}, {TT}, {TT} row_ror:{k} row_mask:0xf bank_mask:0xf")
        A(f"v_add_f32_dpp {Y}, {TT}, {TT} row_ror:1 row_mask:0xf bank_mask:0xf")
        A(f"v_add_f32_dpp {TT}, {TT}, {TT} row_ror:1 row_mask:0xf bank_mask:0xf")
        A(f"v_permlane32_swap_b32 {TT}, {Y}")
        A(f"v_add_f32 {TT}, {TT}, {Y}")
        A("s_mov_b64 exec, 0x10001")
        pub(f"buffer_store_dword {TT}, {vZSst}, {srd(rWS)}, {{so}} offen{{fl}}")
        A("s_mov_b64 exec, -1")
    A(f"v_add_u32 {vZSst}, 512, {vZSst}")
    A(f"v_add_u32 {vZst}, 2304, {vZst}")
    A(f"s_add_u32 {sXPo}, {sXPo}, {XPS}")

A(f"s_bitcmp1_b32 {sRole}, 0")
A("s_cbranch_scc1 L_mlp")
A(f"s_bitcmp1_b32 {sRole}, 1")
A("s_cbranch_scc0 L_probe" if args.near else "s_cbranch_scc0 L_next")
A(f"s_cmp_lg_u32 {sL}, 0")
A("s_cbranch_scc1 L_red")
A(f"v_lshlrev_b32 {vXres}, 16, {vXres}"); A(f"v_lshlrev_b32 {vB2}, 16, {vB2}")
zero(YG+6, 2)
for i in range(4): A(f"v_mov_b32 {v(YG+8+i)}, 0x3f80")
A("L_red:")
k0 = nst[0]
reducer('A'); reducer('M')
kr = nst[0]
A("s_branch L_next")
A("L_mlp:")
nst[0] = k0
A(f"s_cmp_lg_u32 {sL}, 0")
A("s_cbranch_scc1 L_m1")
A(f"s_mul_i32 {t0}, {sX}, 18"); A(f"s_add_u32 {t0}, {t0}, {sJ}")
A(f"s_lshl_b32 {t2}, {t0}, 6")
A(f"buffer_load_ushort {vB1}, {vB1}, {srd(rT1)}, 0 offen{NT}")
A(f"s_cmp_ge_u32 {sJ}, 16")
A("s_cbranch_scc1 L_m0b")
if args.xt:
    A(f"s_lshl_b32 {t1}, {sJ}, 2"); A(f"s_add_u32 {t1}, {t1}, {sW}"); A(f"s_mul_i32 {t1}, {t1}, 36")
    A(f"v_add_u32 {TT}, {t1}, v0")
    A(f"v_lshrrev_b32 {LS}, 6, {TT}"); A(f"v_mul_u32_u24 {MX}, 43, {LS}"); A(f"v_lshrrev_b32 {MX}, 7, {MX}"); A(f"v_add_u32 {LS}, {LS}, {MX}")
    A(f"v_bfe_u32 {MX}, {TT}, 3, 3"); A(f"v_lshl_add_u32 {LS}, {LS}, 3, {MX}"); A(f"v_and_b32 {TT}, 7, {TT}"); A(f"v_lshlrev_b32 {TT}, 7, {TT}"); A(f"v_lshl_add_u32 {TT}, {LS}, 13, {TT}")
    A(f"s_lshl_b32 {t1}, {sX}, 10"); A(f"s_add_u32 {t1}, {t1}, {XP_O}")
    A(f"v_mov_b32 {LS}, 0")
    A("s_mov_b32 exec_hi, 15")
    A(f"buffer_atomic_or {LS}, {TT}, {srd(rWS)}, {t1} offen")
    A("s_mov_b32 exec_hi, -1")
if 's' not in args.early + args.mid: slots_touch()
if '1' not in args.early + args.mid: w1_touch()
if '2' in args.early + args.mid: A("s_branch L_m0d")
A("L_m0b:")
w2_loads()
A("L_m0d:")
A(f"s_cmp_eq_u32 {sW}, 3")
A("s_cbranch_scc1 L_m0c")
A("L_m0a:")
A(f"s_mul_i32 {t0}, {sW}, {192*9216}"); A(f"s_add_u32 {t0}, {t0}, {t2}")
if args.w1dma:
    A(f"v_lshrrev_b32 {TT}, 2, v0"); A(f"v_mul_u32_u24 {TT}, 9216, {TT}"); A(f"v_and_b32 {LS}, 3, v0"); A(f"v_lshl_add_u32 {TT}, {LS}, 4, {TT}")
    A(f"s_mul_i32 {t1}, {sW}, 12288"); A(f"s_add_u32 {t1}, {t1}, {L_K}"); A(f"s_mov_b32 m0, {t1}")
    for i in range(12):
        A(f"buffer_load_dwordx4 {TT}, {srd(rW1)}, {t0} offen{NTM} lds")
        if i < 11: A(f"s_add_u32 {t0}, {t0}, {16*9216}"); A("s_add_u32 m0, m0, 1024")
    A(f"v_lshrrev_b32 {TT}, 4, v0"); A(f"v_lshlrev_b32 {TT}, 8, {TT}"); A(f"v_and_b32 {LS}, 15, v0"); A(f"v_lshl_add_u32 {TT}, {LS}, 2, {TT}"); A(f"v_add_u32 {TT}, {t1}, {TT}")
    A("s_waitcnt vmcnt(0)")
    for i in range(6):
        for hh in range(2):
            for p in range(2):
                A(f"ds_read2_b32 {a(aW1+8*i+4*hh+2*p,2)}, {TT} offset0:{32*p} offset1:{32*p+16}")
            if (i, hh) != (5, 1): A(f"v_add_u32 {TT}, 1024, {TT}")
    A("s_waitcnt lgkmcnt(0)")
else:
    A(f"v_lshrrev_b32 {TT}, 4, v0"); A(f"v_mul_u32_u24 {TT}, {4*9216}, {TT}"); A(f"v_and_b32 {LS}, 15, v0"); A(f"v_lshl_add_u32 {TT}, {LS}, 2, {TT}")
    prev = 0
    for i in range(6):
        for vv in range(8):
            row = 32*i + 16*(vv >> 2) + (vv & 3)
            if row != prev: A(f"s_add_u32 {t0}, {t0}, {(row-prev)*9216}")
            prev = row
            A(f"buffer_load_dword {a(aW1+8*i+vv)}, {TT}, {srd(rW1)}, {t0} offen{NTM}")
A("L_m0c:")
if ST: A("s_memrealtime s[94:95]"); A("s_waitcnt vmcnt(0)"); A("s_memrealtime s[96:97]")
A("s_waitcnt vmcnt(0)")
A(f"v_lshlrev_b32 {vB1}, 16, {vB1}")
A("L_m1:")
zero(D0, 8)
c0 = -2 * 1.4426950408889634 * 0.7978845608028654
A(f"v_mov_b32 {v(E)}, {f32(c0)}")
A(f"v_add_u32 {v(E+2)}, {4*1152}, {vMst}")
A(f"s_mul_i32 {t0}, {sL}, {Z3_O-Z1_O}"); A(f"s_add_u32 {t0}, {t0}, {sGp}"); A(f"s_add_u32 {t0}, {t0}, {Z1_O}")
if args.pre:
    A(f"s_cmp_eq_u32 {sL}, 0"); A("s_cbranch_scc1 L_m1b")
    quiet_wait(AN_O + 4)
    A("L_m1b:")
A(f"s_lshl_b32 {t1}, {sL}, 10"); A(f"s_add_u32 {t1}, {t1}, {sGp}"); A(f"s_add_u32 {t1}, {t1}, {ZS_O}")
A(f"v_lshrrev_b32 {v(E+1)}, 5, v0"); A(f"v_lshlrev_b32 {v(E+1)}, 3, {v(E+1)}")
A(f"s_cmp_eq_u32 {sW}, 3")
A("s_cbranch_scc1 L_m2")
poll_proj(vXAm, t0, 6, aW1)
A("s_mov_b32 exec_hi, 0")
A(f"ds_write_b128 {vHPw}, {v(D0,4)}")
A("s_mov_b32 exec_hi, -1")
A("s_branch L_m2b")
A("L_m2:")
if args.ms == 'x':
    if 'nostat' not in args.exp:
        poll(xs_loads(rWS, t0, ' sc1'), [v(XS+i) for i in range(9)], site='z')
        stats_x()
    else: A(f"v_mov_b32 {S_}, 0"); A(f"v_mov_b32 {Q_}, 1.0")
else:
    poll(zs_load(vZSg, t1), [v(ZG), v(ZG+1)], site='z')
    A(f"v_mov_b32 {S_}, {v(ZG)}"); A(f"v_mov_b32 {Q_}, {v(ZG+1)}")
    stats_tail1(); stats_tail2()
A(f"ds_write_b64 {v(E+1)}, {v(TM,2)} offset:{L_STAT}")
A("L_m2b:")
stamp()
A("s_waitcnt lgkmcnt(0)")
A("s_barrier")
H = TM + 12
A(f"ds_read2_b32 {v(H,2)}, {vHPr} offset0:0 offset1:2")
A(f"ds_read2_b32 {v(H+2,2)}, {vHPr} offset0:128 offset1:130")
A(f"ds_read_b32 {v(H+4)}, {vHPr} offset:1024"); A(f"ds_read_b32 {v(H+5)}, {vHPr} offset:1032")
A(f"ds_read_b64 {v(TM,2)}, {v(E+1)} offset:{L_STAT}")
zero(D0)
A("s_waitcnt lgkmcnt(0)")
A(f"v_add_f32 {v(H)}, {v(H)}, {v(H+2)}"); A(f"v_add_f32 {v(H+1)}, {v(H+1)}, {v(H+3)}")
A(f"v_add_f32 {v(H)}, {v(H)}, {v(H+4)}"); A(f"v_add_f32 {v(H+1)}, {v(H+1)}, {v(H+5)}")
A(f"v_fma_f32 {v(H)}, -{S_}, {v(H+1)}, {v(H)}")
A(f"v_mul_f32 {v(H)}, {v(H)}, {Q_}")
rbf(v(H), v(H))
A(f"v_add_f32 {v(H)}, {v(H)}, {vB1}")
rbf(v(H), v(H))
A(f"v_mul_f32 {TT}, {v(H)}, {v(H)}")
A(f"v_fmac_f32 {v(E)}, {f32(c0*0.044715)}, {TT}")
A(f"v_mul_f32 {TT}, {v(E)}, {v(H)}")
A(f"v_exp_f32 {TT}, {TT}")
A(f"v_add_f32 {TT}, 1.0, {TT}")
A(f"v_rcp_f32 {TT}, {TT}")
A(f"v_mul_f32 {TT}, {TT}, {v(H)}")
A(f"v_cvt_pk_bf16_f32 {TT}, {TT}, 0")
A(f"ds_write2_b32 {vPTw}, {TT}, {TT} offset1:5")
for i in range(4): A(f"ds_read_b128 {v(AO+4*i,4)}, {vPTr} offset:{128*i}")
stamp()
tile_out(aW2, aW2t, vMst, False)
A("L_m4:")
stamp()
nst[0] = kr
A("L_next:")
A(f"s_cmp_lg_u32 {sL}, 0")
A("s_cbranch_scc1 L_fin")
if ST:
    A("s_waitcnt lgkmcnt(0)")
    for k in range(14): A(f"v_writelane_b32 {v(SV)}, s{72+2*k}, {1+k}")
    for k in range(14): A(f"s_mov_b64 s[{72+2*k}:{73+2*k}], 0")
A(f"s_mov_b32 {sL}, 1")
if args.dirty:
    A(f"s_cmp_ge_u32 {sJ}, 16"); A("s_cbranch_scc1 L_dd")
    A(f"s_lshl_b32 {t0}, s2, 2"); A(f"s_add_u32 {t0}, {t0}, {sW}"); A(f"s_lshl_b32 {t0}, {t0}, 14"); A(f"s_add_u32 {t0}, {t0}, 0x2000000")
    for i in range(args.dirty):
        A(f"buffer_store_dwordx4 {v(EM,4)}, {vL16}, {srd(rWS)}, {t0} offen"); A(f"s_add_u32 {t0}, {t0}, 1024")
    A("L_dd:")
A(f"s_add_u32 {sXoff}, {sGp}, {Z2_O}")
for r in (vSTst, vSTg, vSTm): A(f"v_add_u32 {r}, {ST1_O-ST_O}, {r}")
if args.qc:
    assert QP_O % 512 == 0
    for r in (vQPst, vQPg):
        A(f"v_bfe_u32 {TT}, {r}, 1, 8"); A(f"v_and_b32 {r}, 0xfffffe00, {r}"); A(f"v_add_u32 {r}, {r}, {TT}")
    A(f"v_add_u32 {vQPg2}, 4096, {vQPg}")
A("s_branch L_layer")
A("L_out:")
A(f"buffer_store_dword {TT}, {vZo}, {srd(rOUT)}, 0 offen")
A(f"s_mov_b32 {t0}, {EP_O}")
A("s_mov_b64 exec, 1")
A(f"buffer_store_dword {FN}, {vL16}, {srd(rWS)}, {t0} offen")
if ST: A(f"s_memrealtime s[{72+2*13}:{73+2*13}]")
A("L_fin:")
if args.wb:
    A(f"s_cmp_lg_u32 {sJ}, 18"); A("s_cbranch_scc1 L_wb")
    A(f"s_cmp_lg_u32 {sW}, 0"); A("s_cbranch_scc1 L_wb")
    A("buffer_wbl2 sc1")
    A("L_wb:")
if args.enc:
    j0, j1 = [int(x) for x in args.encj.split(',')]
    A("s_memrealtime s[66:67]")
    A("s_waitcnt lgkmcnt(0)")
    if args.enc <= 14: A(f"v_readlane_b32 {t0}, {v(SV)}, {args.enc}"); A("s_nop 3")
    else: A(f"s_mov_b32 {t0}, s{72+2*(args.enc-15)}")
    A(f"s_cmp_eq_u32 {t0}, 0"); A("s_cbranch_scc1 L_enc2")
    A(f"s_cmp_lt_u32 {sJ}, {j0}"); A("s_cbranch_scc1 L_enc2")
    A(f"s_cmp_ge_u32 {sJ}, {j1}"); A("s_cbranch_scc1 L_enc2")
    if args.encref == 0: A(f"s_mov_b32 {t1}, s100")
    elif args.encref <= 14: A(f"v_readlane_b32 {t1}, {v(SV)}, {args.encref}"); A("s_nop 3")
    else: A(f"s_mov_b32 {t1}, s{72+2*(args.encref-15)}")
    A(f"s_sub_u32 {t0}, {t0}, {t1}"); A(f"s_min_u32 {t0}, {t0}, 10000"); A(f"s_lshl_b32 {t0}, {t0}, {4 if args.encref else 3}"); A(f"s_add_u32 {t0}, {t0}, s66")
    A("L_enc:")
    A("s_sleep 8")
    A("s_memrealtime s[64:65]"); A("s_waitcnt lgkmcnt(0)")
    A(f"s_sub_u32 {t1}, s64, {t0}"); A(f"s_cmp_lt_i32 {t1}, 0"); A("s_cbranch_scc1 L_enc")
    A("L_enc2:")
if ST:
    A("s_mov_b64 exec, -1")
    A("s_waitcnt lgkmcnt(0)")
    A(f"v_writelane_b32 {v(SV)}, s100, 0")
    for k in range(14): A(f"v_writelane_b32 {v(SV)}, s{72+2*k}, {15+k}")
    A(f"s_lshl_b32 {t0}, s2, 2"); A(f"s_add_u32 {t0}, {t0}, {sW}"); A(f"s_lshl_b32 {t0}, {t0}, 8"); A(f"s_add_u32 {t0}, {t0}, {STAMP_O}")
    A(f"v_mov_b32 {v(SV+1)}, 0")
    A(f"v_lshlrev_b32 {v(SV+2)}, 3, v0")
    A("s_mov_b32 exec_hi, 0")
    A(f"buffer_store_dwordx2 {v(SV,2)}, {v(SV+2)}, {srd(rWS)}, {t0} offen")
A("L_end:")
A("s_endpgm")
if args.near:
    A("L_probe:")
    A(f"s_cmp_lt_u32 {sJ}, 20"); A("s_cbranch_scc1 L_next")
    A(f"s_cmp_lg_u32 {sL}, 0"); A("s_cbranch_scc1 L_next")
    A(f"s_sub_u32 {t0}, {sJ}, 20"); A(f"s_lshl_b32 {t0}, {t0}, 18"); A(f"s_lshl_b32 {t1}, {sX}, 10"); A(f"s_add_u32 {t0}, {t0}, {t1}"); A(f"s_add_u32 {t0}, {t0}, {XP_O + 3*65536}")
    A(f"s_add_u32 s4, s{rWS}, {t0}"); A(f"s_addc_u32 s5, s{rWS+1}, 0")
    A(f"s_mov_b32 {t2}, -1"); A(f"s_mov_b32 {t3}, -1"); A(f"s_mov_b32 {t4}, 3")
    A("L_pr1:")
    A("s_memtime s[6:7]"); A("s_waitcnt lgkmcnt(0)")
    A(f"s_load_dword {t5}, s[4:5], 0 glc"); A("s_waitcnt lgkmcnt(0)")
    A("s_memtime s[8:9]"); A("s_waitcnt lgkmcnt(0)")
    A(f"s_load_dword {t5}, s[4:5], 0x2000 glc"); A("s_waitcnt lgkmcnt(0)")
    A("s_memtime s[10:11]"); A("s_waitcnt lgkmcnt(0)")
    A(f"s_sub_u32 {t0}, s8, s6"); A(f"s_sub_u32 {t1}, s10, s8")
    A(f"s_min_u32 {t2}, {t2}, {t0}"); A(f"s_min_u32 {t3}, {t3}, {t1}")
    A(f"s_sub_u32 {t4}, {t4}, 1"); A(f"s_cmp_lg_u32 {t4}, 0"); A("s_cbranch_scc1 L_pr1")
    A(f"s_cmp_lt_u32 {t3}, {t2}"); A(f"s_cselect_b32 {t0}, 0x2000, 0")
    A(f"v_mov_b32 {TT}, 0"); A(f"v_mov_b32 {LS}, {t0}")
    A(f"ds_write_b32 {TT}, {LS} offset:{L_NEAR}")
    A("s_branch L_next")
A("L_af2:")
A(f"s_cmp_eq_u32 {sMode}, {FB_O}")
A("s_cbranch_scc1 L_g2")
A(f"s_add_u32 {sMode}, {sMode}, 1")
A(f"s_lshl_b32 {t2}, {sX}, 10"); A(f"s_add_u32 {t2}, {t2}, {FL_O}")
A(f"s_lshl_b32 {t4}, {sL}, 2"); A(f"s_add_u32 {t1}, {t4}, {t2}")
A(f"s_cmp_lt_u32 {sMode}, {1 if args.forcefb else 40}")
A("s_cbranch_scc1 L_af5")
A("s_mov_b64 exec, 1")
A(f"buffer_store_dword {FN}, {vL16}, {srd(rWS)}, {t1} offen sc1")
A("s_mov_b32 exec_lo, -1")
A(f"buffer_load_dwordx4 {v(FG,4)}, {vL16}, {srd(rWS)}, {t2} offen sc1")
A("s_mov_b32 exec_hi, -1")
A("s_waitcnt vmcnt(0)")
flags_diff()
A(f"v_and_b32 {TT}, 0x0fffffff, {CK}")
A(f"v_cmp_ne_u32 vcc, 0, {TT}")
A("s_cmp_lg_u32 vcc_lo, 0")
A("s_cbranch_scc1 L_af5")
A(f"v_cmp_ne_u32 vcc, 0, {CK}")
A("s_cmp_lg_u32 vcc_lo, 0")
if args.forcefb: A("s_cmp_eq_u32 0, 0")
A("s_cbranch_scc1 L_spread")
A("L_af5:")
A(f"s_sub_u32 {sTO}, {sTO}, 1")
A("s_cbranch_scc0 L_g4")
A(f"s_mov_b32 {sTO}, 0")
A(f"s_mov_b32 {sMode}, 0")
A("s_branch L_g2")
A("L_spread:")
A(f"s_mov_b32 {sMode}, {FB_O}")
A(f"s_add_u32 {sGp}, {sGf}, {FB_O}")
empty_share(sGp, ' sc1')
A("s_mov_b32 exec_hi, 0")
A(qp_store.format(so=sGp, fl=' sc1'))
A("s_waitcnt vmcnt(0)")
A("s_mov_b64 exec, 1")
A(f"buffer_store_dword {FN}, {vL16}, {srd(rWS)}, {t1} offen offset:512 sc1")
A("s_mov_b32 exec_lo, -1")
A("L_sp1:")
A("s_mov_b32 exec_hi, 0")
A(f"buffer_load_dwordx4 {v(FG,4)}, {vL16}, {srd(rWS)}, {t2} offen offset:512 sc1")
A("s_mov_b32 exec_hi, -1")
A("s_waitcnt vmcnt(0)")
flags_diff()
A(f"v_and_b32 {CK}, 0x0fffffff, {CK}")
A(f"v_cmp_ne_u32 vcc, 0, {CK}")
A("s_cmp_eq_u32 vcc_lo, 0")
A("s_cbranch_scc1 L_g4")
A("s_sleep 4")
A(timeout("L_sp1", "L_g4"))
for t in tail: A(t)
A.raw('L_codeend:')
A.raw('.section .rodata,"a"')
A.raw(".p2align 6")
A.raw(f".amdhsa_kernel {NAME}_kernel")
A.raw(f"  .amdhsa_next_free_vgpr {ACC+NACC}")
A.raw("  .amdhsa_next_free_sgpr 102")
A.raw(f"  .amdhsa_accum_offset {ACC}")
A.raw("  .amdhsa_group_segment_fixed_size 0")
A.raw("  .amdhsa_kernarg_size 104")
A.raw("  .amdhsa_user_sgpr_count 2")
A.raw("  .amdhsa_user_sgpr_kernarg_segment_ptr 1")
A.raw("  .amdhsa_system_sgpr_workgroup_id_x 1")
A.raw(".end_amdhsa_kernel")
txt = A.text()
if args.cyc: txt = txt.replace('s_memrealtime', 's_memtime')
sys.stdout.write(txt)
```

```python
import sys, argparse, struct
sys.path.insert(0, 'dev')
from asmlib import Asm
NAME = "interleave_layers__sliding_block_cached__dense_activation_gelu__decode"
ap = argparse.ArgumentParser()
ap.add_argument('--stamps', action='store_true')
ap.add_argument('--pro', action='store_true')
ap.add_argument('--cyc', action='store_true')
ap.add_argument('--xt', type=int, default=0)
ap.add_argument('--xd', type=int, default=11)
ap.add_argument('--enc', type=int, default=0)
ap.add_argument('--encref', type=int, default=0)
ap.add_argument('--encj', default='0,32')
ap.add_argument('--only', default='')
ap.add_argument('--pQ', type=int, default=4)
ap.add_argument('--code', type=int, default=1)
ap.add_argument('--early', default='0')
ap.add_argument('--mid', default='')
ap.add_argument('--w1dma', type=int, default=0)
ap.add_argument('--near', type=int, default=1)
ap.add_argument('--pd', default='s22,y22,o22')
ap.add_argument('--wb', type=int, default=0)
ap.add_argument('--dirty', type=int, default=0)
ap.add_argument('--pre', type=int, default=1)
ap.add_argument('--qd', type=int, default=0)
ap.add_argument('--zs', type=int, default=0)
ap.add_argument('--sd', type=int, default=0)
ap.add_argument('--yd', type=int, default=0)
ap.add_argument('--zd', type=int, default=0)
ap.add_argument('--qc', type=int, default=1)
ap.add_argument('--ms', default='x')
ap.add_argument('--exp', default='')
ap.add_argument('--tlb', type=int, default=0)
ap.add_argument('--vw', type=int, default=1)
ap.add_argument('--di', type=int, default=1)
ap.add_argument('--dz', type=int, default=1)
ap.add_argument('--dxx', type=int, default=1)
ap.add_argument('--nt', default='k,v')
ap.add_argument('--forcefb', action='store_true')
args = ap.parse_args()
def ntf(c): return ' nt' if c in args.nt.split(',') else ''
NT = ntf('s'); NTK = ntf('k'); NTV = ntf('v'); NTQ = ntf('q'); NTO = ntf('o'); NTM = ntf('m'); NT2 = ntf('2')
ST = args.stamps
PD = {x[0]: (int(x[1]), int(x[2:])) for x in args.pd.split(',') if x}

def f32(x): return '0x%08x' % struct.unpack('<I', struct.pack('<f', x))[0]

CLR = 944
OP_O = 0
Y_O = OP_O + 65536
ST_O = Y_O + 41472
ST1_O = ST_O + 2048
Z1_O = ST1_O + 2048
Z2_O = Z1_O + 2304
Z3_O = Z2_O + 2304
AN_O = Z3_O + 2304
ZS_O = AN_O + 128
assert ZS_O + 1536 <= 128 * CLR and (128 * CLR) % 128 == 0
QP_O = 128 * CLR
FF_O = QP_O + 65536
GB = FF_O + 1024
FB_O = 8 * GB
XP_O = 6 << 20
assert XP_O >= 16 * GB
XPS = 16384
FL_O = XP_O + 12 * 262144
EP_O = FL_O + 8 * 1024
STAMP_O = 0x8000000
L_NEAR = 8176
L_X = 640
L_QT, L_STAT, L_OT, L_PT, L_HP, L_K, L_WQ, L_SIZE = 0, 512, 1024, 2560, 8192, 16384, 49152, 67584

rK, rV, rWQ, rWO, rW1, rW2, rWS, rX, rOUT, rT1, rT2 = 4, 8, 12, 16, 20, 24, 28, 32, 36, 44, 48
sTask, kv0, kv1, sFlag = 's40', 's41', 's42', 's43'
def srd(n): return f"s[{n}:{n+3}]"
sW, sX, sJ, sGf, sGp, sXoff, sTO, sMode, sL, sWo = [f"s{i}" for i in range(52, 62)]
t0, t1, t2, t3, t4, t5 = [f"s{i}" for i in range(62, 68)]
mLO8 = "s[68:69]"; mROW = "s[70:71]"
MXA = "0x00330033"
sRole = "s3"
(vL4, vL16, vIdxD, vIdxP, vIdxS, vXAq, vXAm, vQPst, vQPg, vL128, vQTw, vQTr, vPTw, vPTr, vSTst, vOPst, vSTg, vOPg, vOTw, vOTr,
 vYst, vMst, vHPw, vSTm, vRg, vSTATr, vXPst, vXPg, vZst, vXres, vB2, vB1, vCq, vZo, vXS1, vXS2, vWrow, vHPr, vOnes) = [f"v{i}" for i in range(1, 40)]
XA, D0, D1, DP, AO, SG, YG, XG, XS, FG, TM, EM, KA, SV, OG, QG = 40, 64, 68, 72, 76, 104, 120, 132, 136, 148, 152, 176, 180, 184, 188, 196
vQPg2, vZSst, vZSg = 'v92', 'v93', 'v94'
ZG = 96
ACC = 212
aWQ, aK, aV, aWO, aW1, aW2, aWOt, NACC = 0, 24, 56, 88, 120, 168, 200, 232
aW2t = aW1
def v(n, k=1): return f"v{n}" if k == 1 else f"v[{n}:{n+k-1}]"
def a(n, k=1): return f"a{n}" if k == 1 else f"a[{n}:{n+k-1}]"
CK = v(TM + 23); FN = v(TM + 22); vTag = v(TM + 21); DUM = v(TM + 20)
sEp, sXPo = kv0, kv1

A = Asm()
tail = []
nst = [0]
def pstamp(k):
    if args.pro: A(f"s_memrealtime s[{72+2*k}:{73+2*k}]")
def stamp():
    if ST and not args.pro:
        k = nst[0]; nst[0] += 1
        assert k < 13
        if ONLY is None or k in ONLY: A(f"s_memrealtime s[{72+2*k}:{73+2*k}]")
ONLY = set(int(x) for x in args.only.split(',')) if args.only else None
def lg(n): return 0 if (ST and ONLY is None) else n
def exec_xa(): return [f"s_mov_b32 exec_lo, {MXA}", f"s_mov_b32 exec_hi, {MXA}"]

def check_text(regs):
    regs = list(regs); o = []
    if len(regs) == 1: cur = regs[0]
    else:
        take = regs[:3]; regs = regs[3:]
        o.append(f"v_max3_u32 {CK}, {take[0]}, {take[1]}, {take[2]}" if len(take) == 3 else f"v_max_u32 {CK}, {take[0]}, {take[1]}")
        while regs:
            take = regs[:2]; regs = regs[2:]
            o.append(f"v_max3_u32 {CK}, {CK}, {take[0]}, {take[1]}" if len(take) == 2 else f"v_max_u32 {CK}, {CK}, {take[0]}")
        cur = CK
    o.append(f"v_cmp_eq_u32 vcc, -1, {cur}")
    return o
def nvm(loads): return sum(1 for l in loads if l.startswith('buffer_'))
def timeout(again, ok): return f"s_sub_u32 {sTO}, {sTO}, 1\ns_cbranch_scc0 {again}\ns_mov_b32 {sTO}, 0\ns_waitcnt vmcnt(0) lgkmcnt(0)\ns_branch {ok}"

def poll(loads, regs, primed=False, extra_wait="", chk=None, site=''):
    lp = A.newlabel('L_poll'); to = A.newlabel('L_to'); ok = A.newlabel('L_ok')
    depth, gap = PD.get(site, (1, 0))
    ck = chk or check_text(regs)
    pre = []
    for d in range(depth - 1):
        pre += loads + ([f"s_sleep {gap}"] if gap else [])
    loop = [f"{lp}:"] + loads + [f"s_sub_u32 {sTO}, {sTO}, 1", f"s_cbranch_scc1 {to}", f"s_waitcnt vmcnt({(depth-1)*nvm(loads)}){extra_wait}"] + ck + [f"s_cbranch_vccnz {lp}"]
    tmo = f"{to}:\ns_mov_b32 {sTO}, 0\ns_waitcnt vmcnt(0) lgkmcnt(0)\ns_branch {ok}"
    if primed:
        st = A.newlabel('L_more')
        A(f"s_waitcnt vmcnt(0){extra_wait}")
        for l in ck: A(l)
        A(f"s_cbranch_vccnz {st}")
        A(f"{ok}:")
        tail.append(f"{st}:\n" + "\n".join(pre + loop) + f"\ns_branch {ok}\n" + tmo)
        return
    for l in pre + loop: A(l)
    A(f"{ok}:")
    tail.append(tmo)

def sm(d, av, br, idx): A(f"v_smfmac_f32_16x16x64_bf16 {v(d,4)}, {v(av,4)}, {a(br,8)}, {idx}")
def xa_loads(rr, voff, so, n, fl, short_last=False):
    o = exec_xa()
    for i in range(n):
        if short_last and i == n - 1: o.append("s_mov_b64 exec, 0x33")
        o.append(f"buffer_load_dwordx4 {v(XA+4*i,4)}, {voff}, {srd(rr)}, {so} offen offset:{64*i}{fl}")
    return o + ["s_mov_b64 exec, -1"]
def poll_proj(voff, so, n, wbase, short_last=False, extra=[]):
    loads = extra[:-1] + xa_loads(rWS, voff, so, n, ' sc1', short_last)
    lds = [l for l in loads if l.startswith('buffer_')]
    lp = A.newlabel('L_poll'); rt = A.newlabel('L_retry'); ok = A.newlabel('L_ok'); gen = A.newlabel('L_nan')
    depth, gap = PD.get('p', (1, 0))
    for d in range(depth):
        if d: A(f"s_sleep {gap}")
        for l in loads: A(l)
    A(f"{lp}:")
    A(f"s_waitcnt vmcnt({(depth-1)*n})")
    for i in range(n): sm(D0, XA+4*i, wbase+8*i, vIdxD)
    for l in loads: A(l)
    A(f"v_cmp_u_f32 vcc, {v(D0)}, {v(D0+1)}")
    A(f"s_cbranch_vccnz {rt}")
    A(f"{ok}:")
    z = "\n".join(f"v_mov_b32 {v(D0+i)}, 0" for i in range(4))
    mm = "\n".join(f"v_smfmac_f32_16x16x64_bf16 {v(D0,4)}, {v(XA+4*i,4)}, {a(wbase+8*i,8)}, {vIdxD}" for i in range(n))
    if args.zs: z += f"\ns_sleep {args.zs}"
    tail.append(f"{rt}:\n{z}\ns_sub_u32 {sTO}, {sTO}, 1\ns_cbranch_scc1 {gen}\ns_and_b32 {t5}, {sTO}, 15\ns_cbranch_scc1 {lp}\n" +
                "\n".join(check_text([v(XA+i) for i in range(4*n)])) + f"\ns_cbranch_vccnz {lp}\n{gen}:\ns_max_i32 {sTO}, {sTO}, 0\n{mm}\ns_nop 7\ns_branch {ok}")

def pub(*fmts):
    for f in fmts: A(f.format(so=sGf, fl=''))
    sl = A.newlabel('L_slow'); bk = A.newlabel('L_back')
    A(f"s_cmp_lg_u32 {sMode}, 0")
    A(f"s_cbranch_scc1 {sl}")
    A(f"{bk}:")
    tail.append(f"{sl}:\n" + "\n".join(f.format(so=sGp, fl=' sc1') for f in fmts) + f"\ns_nop 1\ns_branch {bk}")

def rbf(dst, src):
    A(f"v_cvt_pk_bf16_f32 {dst}, {src}, {src}")
    A(f"v_and_b32 {dst}, 0xffff0000, {dst}")
def treduce(r):
    A(f"v_permlane32_swap_b32 {v(r)}, {v(r+2)}")
    A(f"v_permlane32_swap_b32 {v(r+1)}, {v(r+3)}")
    A(f"v_add_f32 {v(r)}, {v(r)}, {v(r+2)}")
    A(f"v_add_f32 {v(r+1)}, {v(r+1)}, {v(r+3)}")
    A(f"v_permlane16_swap_b32 {v(r)}, {v(r+1)}")
    A(f"v_add_f32 {v(r)}, {v(r)}, {v(r+1)}")
    A(f"v_add_f32_dpp {v(r)}, {v(r)}, {v(r)} row_ror:8 row_mask:0xf bank_mask:0xf")
S_, Q_ = v(TM), v(TM+1)
def stats_tail1():
    S, Q = S_, Q_
    A(f"v_permlane16_swap_b32 {S}, {Q}")
    A(f"v_add_f32 {S}, {S}, {Q}")
    for k in (8, 4, 2, 1):
        A(f"v_add_f32_dpp {S}, {S}, {S} row_ror:{k} row_mask:0xf bank_mask:0xf")
    A(f"v_mul_f32 {Q}, {f32(1/576)}, {S}")
    A(f"v_mul_f32 {S}, {f32(1/576)}, {S}")
def stats_tail2():
    S, Q = S_, Q_
    A(f"v_permlane16_swap_b32 {S}, {Q}")
    A(f"v_fma_f32 {Q}, -{S}, {S}, {Q}")
    A(f"v_max_f32 {Q}, 0, {Q}")
    A(f"v_cvt_pk_bf16_f32 {Q}, {S}, {Q}")
    A(f"v_lshlrev_b32 {S}, 16, {Q}")
    A(f"v_and_b32 {Q}, 0xffff0000, {Q}")
    A(f"v_add_f32 {Q}, {f32(1e-5)}, {Q}")
    rbf(Q, Q)
    A(f"v_sqrt_f32 {Q}, {Q}")
    rbf(Q, Q)
    A(f"v_rcp_f32 {Q}, {Q}")
def stats_x():
    A(f"v_mov_b32 {S_}, 0"); A(f"v_mov_b32 {Q_}, 0")
    for i in range(9):
        A(f"v_dot2c_f32_bf16 {S_}, {v(XS+i)}, {vOnes}")
        A(f"v_dot2c_f32_bf16 {Q_}, {v(XS+i)}, {v(XS+i)}")
    stats_tail1(); stats_tail2()
def zs_load(voff, so):
    return ["s_mov_b32 exec_lo, 0x3ffff", "s_mov_b32 exec_hi, 0x3ffff", f"buffer_load_dwordx2 {v(ZG,2)}, {voff}, {srd(rWS)}, {so} offen sc1", "s_mov_b64 exec, -1"]
def zero(r, n=4):
    for i in range(n): A(f"v_mov_b32 {v(r+i)}, 0")
def xs_loads(rr, so, fl):
    return [f"buffer_load_dwordx4 {v(XS,4)}, {vXS1}, {srd(rr)}, {so} offen{fl}",
            f"buffer_load_dwordx4 {v(XS+4,4)}, {vXS1}, {srd(rr)}, {so} offen offset:512{fl}",
            f"buffer_load_dword {v(XS+8)}, {vXS2}, {srd(rr)}, {so} offen offset:1024{fl}"]

A.raw(f"; @launch grid=(256,1,1) block=(256,1,1) lds={L_SIZE}")
A.raw('.amdgcn_target "amdgcn-amd-amdhsa--gfx950"')
A.raw(".text")
A.raw(f".globl {NAME}_kernel")
A.raw(".p2align 8")
A.raw(f".type {NAME}_kernel,@function")
A.raw(f"{NAME}_kernel:")
if ST:
    A("s_memrealtime s[100:101]")
    for k in range(14): A(f"s_mov_b64 s[{72+2*k}:{73+2*k}], 0")
A("s_cmp_ge_u32 s2, 256")
A("s_cbranch_scc1 L_end")
for r, off in ((rWS, 96), (rX, 0), (rWQ, 24), (rK, 8), (rV, 16), (rWO, 32)) + (((rW1, 48), (rW2, 64)) if args.tlb > 1 else ()):
    A(f"s_load_dwordx2 s[{r}:{r+1}], s[0:1], {off}")
if args.code:
    A(f"s_cmp_ge_u32 s2, {8*args.code}"); A("s_cbranch_scc1 L_nc")
    A("s_getpc_b64 s[66:67]")
    A("L_pc:")
    A(f"v_lshlrev_b32 {v(TM+8)}, 7, v0")
    A(f"v_cmp_gt_u32 vcc, L_codeend-L_pc, {v(TM+8)}")
    A("s_and_saveexec_b64 s[64:65], vcc")
    A("s_cbranch_execz L_nc2")
    A(f"global_load_dword {DUM}, {v(TM+8)}, s[66:67]")
    A("L_nc2:")
    A("s_mov_b64 exec, s[64:65]")
    A("L_nc:")
A(f"v_lshrrev_b32 {v(TM)}, 6, v0")
A(f"v_and_b32 v0, 63, v0")
A(f"v_readfirstlane_b32 {sW}, {v(TM)}")
for r, n in ((rX, 2304), (rWQ, 4718592), (rK, 33554432), (rV, 33554432), (rWS, 268435456), (rWO, 4718592)):
    A(f"s_mov_b32 s{r+2}, {n}"); A(f"s_mov_b32 s{r+3}, 0x20000")
A(f"s_and_b32 {sX}, s2, 7")
A(f"s_lshr_b32 {sJ}, s2, 3")
A("s_mov_b32 s68, 0x00ff00ff"); A("s_mov_b32 s69, 0x00ff00ff")
G, C, B2 = v(TM+3), v(TM+4), v(TM+5)
A(f"v_lshrrev_b32 {G}, 4, v0")
A(f"v_and_b32 {C}, 15, v0")
A(f"v_lshlrev_b32 {vL16}, 4, v0")
A(f"v_lshlrev_b32 {vL128}, 7, v0")
for i in range(4): A(f"v_mov_b32 {v(EM+i)}, -1")
A(f"s_lshr_b32 {t0}, {sJ}, 4"); A(f"s_lshl_b32 {t3}, {sX}, 1"); A(f"s_add_u32 {t0}, {t0}, {t3}")
A(f"s_bfe_u32 {t1}, {sJ}, 0x10003")
A(f"s_and_b32 {t2}, {sJ}, 7")
A(f"s_mul_i32 {sGf}, {sX}, {GB}")
A(f"v_bfe_u32 {B2}, v0, 2, 1")
A(f"v_mul_u32_u24 {vXAm}, 1152, {B2}")
A(f"v_lshl_add_u32 {vXAm}, {G}, 4, {vXAm}")
A(f"s_mul_i32 {t4}, {t2}, 144")
A(f"v_add_u32 {vXAq}, {t4}, {vXAm}")
for i in range(12): A(f"v_mov_b32 {v(XA+i)}, 0x3f803f80")
A(f"v_lshlrev_b32 {v(TM+6)}, 13, {G}")
A(f"v_lshl_add_u32 {v(TM+6)}, {C}, 4, {v(TM+6)}")
A(f"s_mul_i32 {t3}, {t2}, 18"); A(f"s_add_u32 {t3}, {t3}, {sW}"); A(f"s_lshl_b32 {t3}, {t3}, 15")
A(f"s_lshl_b32 {t4}, {t0}, 9"); A(f"s_add_u32 {t3}, {t3}, {t4}"); A(f"s_lshl_b32 {t4}, {t1}, 8"); A(f"s_add_u32 {t3}, {t3}, {t4}")
A(f"s_lshl_b32 {t4}, {sW}, 10"); A(f"s_add_u32 m0, {t4}, {L_WQ}")
A(f"s_lshl_b32 {kv0}, {t1}, 24"); A(f"s_lshl_b32 {t4}, {t0}, 20"); A(f"s_add_u32 {kv0}, {kv0}, {t4}")
A(f"s_lshl_b32 {t4}, {t2}, 15"); A(f"s_add_u32 {kv0}, {kv0}, {t4}")
A(f"s_lshl_b32 {t4}, {sW}, 13"); A(f"s_add_u32 {kv0}, {kv0}, {t4}")
A(f"s_add_u32 {kv0}, {kv0}, {3072*256}"); A(f"s_add_u32 {kv1}, {kv0}, 4096")
A(f"v_xor_b32 {v(TM+7)}, {C}, {G}")
A(f"v_lshlrev_b32 {v(TM+7)}, 4, {v(TM+7)}")
A(f"v_lshl_add_u32 {v(KA)}, {G}, 8, {v(TM+7)}")
for i in range(1, 4): A(f"v_xor_b32 {v(KA+i)}, {64*i}, {v(KA)}")
A(f"s_lshl_b32 {sL}, {sJ}, 2"); A(f"s_add_u32 {sL}, {sL}, {sW}")
A(f"s_lshl_b32 {t4}, {sL}, 9"); A(f"s_add_u32 {t4}, {t4}, {QP_O}")
A(f"v_add_u32 {vQPst}, {t4}, {vL16}")
A(f"s_mov_b32 {t5}, {EP_O}")
A("s_waitcnt lgkmcnt(0)")
pstamp(0)
if args.tlb:
    A(f"s_load_dword s36, s[{rK}:{rK+1}], {kv0}")
    A(f"s_load_dword s37, s[{rV}:{rV+1}], {kv0}")
    A(f"s_load_dword s44, s[{rWQ}:{rWQ+1}], {t3}")
    A(f"s_load_dword s45, s[{rWS}:{rWS+1}], {sGf}")
    if args.tlb > 1:
        A(f"s_mul_i32 {sTO}, {sX}, {512*1152}"); A(f"s_mul_i32 {sMode}, {sW}, {192*9216-64}"); A(f"s_mul_i32 {sGp}, {sX}, {576*1152}")
        A(f"s_load_dword s48, s[{rWO}:{rWO+1}], {sTO}")
        A(f"s_load_dword s49, s[{rW1}:{rW1+1}], {sMode}")
        A(f"s_load_dword {sTask}, s[{rW2}:{rW2+1}], {sGp}")
A("s_mov_b64 exec, 1")
A(f"buffer_load_dword {FN}, {vL16}, {srd(rWS)}, {t5} offen{NT}")
A("s_mov_b64 exec, -1")
def empty_share(base, fl):
    A(f"s_mul_i32 {t5}, {sL}, {CLR}"); A(f"s_add_u32 {t5}, {t5}, {base}")
    A(f"s_mov_b32 exec_hi, {(1 << (CLR//16-32)) - 1}")
    A(f"buffer_store_dwordx4 {v(EM,4)}, {vL16}, {srd(rWS)}, {t5} offen{fl}")
    A("s_mov_b32 exec_hi, -1")
A(f"s_cmp_lg_u32 {sW}, 3")
A("s_cbranch_scc1 L_pro2")
A(f"v_lshrrev_b32 {v(TM+8)}, 5, v0"); A(f"v_and_b32 {v(TM+9)}, 31, v0")
A(f"v_mul_u32_u24 {vXS1}, 1152, {v(TM+8)}"); A(f"v_lshl_add_u32 {vXS2}, {v(TM+9)}, 2, {vXS1}"); A(f"v_lshl_add_u32 {v(TM+10)}, {v(TM+9)}, 3, {vXS1}"); A(f"v_lshl_add_u32 {vXS1}, {v(TM+9)}, 4, {vXS1}")
for l in xs_loads(rX, 0, NT): A(l)
A(f"s_mul_i32 {t5}, {t2}, 144")
A(f"buffer_load_dwordx2 {v(XG,2)}, {v(TM+10)}, {srd(rX)}, {t5} offen{NT}")
A("L_pro2:")
for n in range(5):
    if n == 4:
        A(f"s_cmp_ge_u32 {sW}, 2"); A("s_cbranch_scc1 L_pro1")
    A(f"buffer_load_dwordx4 {v(TM+6)}, {srd(rWQ)}, {t3} offen{NTQ} lds")
    if n < 4: A(f"s_add_u32 {t3}, {t3}, {16*8192}"); A("s_add_u32 m0, m0, 4096")
A("L_pro1:")
empty_share(sGf, '')
A(f"s_lshl_b32 {t4}, {sW}, 13"); A(f"s_add_u32 m0, {t4}, {L_K}")
for i in range(8):
    if i == 4: A(f"s_add_u32 m0, m0, 4096")
    A(f"buffer_load_dwordx4 {v(KA+i%4)}, {srd(rK)}, {kv0 if i < 4 else kv1} offen offset:{1024*(i%4)}{NTK} lds")

def constants():
    A(f"v_mul_u32_u24 {vWrow}, 1152, {G}")
    A(f"v_lshl_add_u32 {vWrow}, {C}, 4, {vWrow}")
    A(f"s_cmp_lt_u32 {sJ}, 18"); A(f"s_cselect_b32 {sRole}, 1, 0")
    A(f"s_cmp_ge_u32 {sJ}, 20"); A(f"s_cselect_b32 {t4}, 2, 0"); A(f"s_cmp_lt_u32 {sW}, 3"); A(f"s_cselect_b32 {t4}, {t4}, 0"); A(f"s_or_b32 {sRole}, {sRole}, {t4}")
    A(f"s_sub_u32 {sTask}, {sJ}, 20"); A(f"s_mul_i32 {sTask}, {sTask}, 3"); A(f"s_add_u32 {sTask}, {sTask}, {sW}"); A(f"s_min_u32 {sTask}, {sTask}, 35")
    A(f"s_lshl_b32 {t3}, {sX}, 4"); A(f"s_and_b32 {t4}, {sJ}, 15"); A(f"s_add_u32 {sWo}, {t3}, {t4}"); A(f"s_mul_i32 {sWo}, {sWo}, {32*1152}")
    A(f"s_lshl_b32 {t4}, {sW}, 8"); A(f"s_add_u32 {sWo}, {sWo}, {t4}")
    for r, n in ((rW1, 5308416), (rW2, 5308416), (rOUT, 2304), (rT1, 9216), (rT2, 1152)):
        A(f"s_mov_b32 s{r+2}, {n}"); A(f"s_mov_b32 s{r+3}, 0x20000")
    A("s_mov_b32 s70, 0xffff0000"); A("s_mov_b32 s71, 0xffff0000")
    A(f"v_lshlrev_b32 {vL4}, 2, v0")
    for i in range(12, 24): A(f"v_mov_b32 {v(XA+i)}, 0x3f803f80")
    A(f"s_lshl_b32 {t4}, {sW}, 13"); A(f"s_add_u32 {t4}, {t4}, {L_K}")
    A(f"v_lshl_add_u32 {v(KA)}, {C}, 8, {v(TM+7)}"); A(f"v_add_u32 {v(KA)}, {t4}, {v(KA)}")
    for i in range(1, 4): A(f"v_xor_b32 {v(KA+i)}, {64*i}, {v(KA)}")
    T_ = [v(TM+8+i) for i in range(10)]
    A(f"v_and_b32 {T_[0]}, 1, v0")
    A(f"v_mul_u32_u24 {vIdxP}, 0xaaaa, {T_[0]}"); A(f"v_add_u32 {vIdxP}, 0x4444, {vIdxP}")
    A(f"v_and_b32 {T_[1]}, 3, v0")
    A(f"v_mul_u32_u24 {vIdxS}, 0x5555, {T_[1]}")
    A(f"v_bfe_u32 {T_[2]}, v0, 4, 1")
    A(f"v_bfe_u32 {T_[3]}, v0, 2, 2")
    A(f"v_bfe_u32 {T_[4]}, v0, 3, 1")
    A(f"v_lshrrev_b32 {T_[5]}, 5, v0")
    A(f"v_and_b32 {T_[8]}, 7, v0")
    A(f"v_and_b32 {T_[9]}, 31, v0")
    A(f"s_lshr_b32 {t3}, {sJ}, 4")
    A(f"s_lshr_b32 {t5}, {sJ}, 3")
    A(f"s_lshl_b32 {t3}, {t3}, 1"); A(f"s_lshr_b32 {t4}, {sW}, 1"); A(f"s_add_u32 {t3}, {t3}, {t4}"); A(f"s_lshl_b32 {t3}, {t3}, 14")
    A(f"s_and_b32 {t4}, {sW}, 1"); A(f"s_lshl_b32 {t4}, {t4}, 10"); A(f"s_add_u32 {t3}, {t3}, {t4}")
    A(f"s_lshl_b32 {t4}, {t1}, 8"); A(f"s_add_u32 {t3}, {t3}, {t4}"); A(f"s_add_u32 {t3}, {t3}, {QP_O}")
    A(f"v_lshl_add_u32 {vQPg}, {T_[5]}, 4, {T_[2]}"); A(f"v_lshlrev_b32 {vQPg}, 9, {vQPg}"); A(f"v_lshl_add_u32 {vQPg}, {C}, 4, {vQPg}"); A(f"v_add_u32 {vQPg}, {t3}, {vQPg}")
    A(f"v_add_u32 {vQPg2}, 4096, {vQPg}")
    A(f"s_and_b32 {t3}, {sW}, 1"); A(f"s_lshl_b32 {t3}, {t3}, 8"); A(f"s_lshr_b32 {t4}, {sW}, 1"); A(f"s_lshl_b32 {t4}, {t4}, 7"); A(f"s_add_u32 {t3}, {t3}, {t4}")
    A(f"v_bfe_u32 {T_[6]}, v0, 3, 2"); A(f"v_bfe_u32 {T_[7]}, v0, 1, 2")
    A(f"v_lshlrev_b32 {vQTw}, 5, {T_[6]}"); A(f"v_lshl_add_u32 {vQTw}, {T_[0]}, 4, {vQTw}"); A(f"v_lshl_add_u32 {vQTw}, {T_[7]}, 2, {vQTw}")
    A(f"v_lshl_add_u32 {vQTw}, {T_[5]}, 1, {vQTw}"); A(f"v_add_u32 {vQTw}, {t3}, {vQTw}")
    A(f"v_lshlrev_b32 {vQTr}, 5, {G}"); A(f"v_lshl_add_u32 {vQTr}, {T_[4]}, 7, {vQTr}"); A(f"v_lshl_add_u32 {vQTr}, {T_[0]}, 4, {vQTr}")
    A(f"v_mul_u32_u24 {vOTr}, 640, {T_[4]}"); A(f"v_lshl_add_u32 {vOTr}, {G}, 5, {vOTr}"); A(f"v_lshl_add_u32 {vOTr}, {B2}, 4, {vOTr}")
    A(f"s_mul_i32 {t3}, {sW}, 1280"); A(f"s_add_u32 {t3}, {t3}, {L_PT}")
    A(f"v_add_u32 {vPTr}, {t3}, {vOTr}"); A(f"v_add_u32 {vOTr}, {L_OT}, {vOTr}")
    A(f"v_bfe_u32 {T_[6]}, v0, 1, 4")
    A(f"v_mul_u32_u24 {vPTw}, 640, {T_[5]}"); A(f"v_lshl_add_u32 {vPTw}, {T_[6]}, 5, {vPTw}"); A(f"v_lshl_add_u32 {vPTw}, {T_[0]}, 3, {vPTw}"); A(f"v_add_u32 {vPTw}, {t3}, {vPTw}")
    A(f"v_lshrrev_b32 {vHPr}, 1, v0"); A(f"v_lshlrev_b32 {vHPr}, 4, {vHPr}"); A(f"v_lshl_add_u32 {vHPr}, {T_[0]}, 2, {vHPr}"); A(f"v_add_u32 {vHPr}, {L_HP}, {vHPr}")
    A(f"s_lshl_b32 {t3}, {sW}, 9"); A(f"s_add_u32 {t3}, {t3}, {L_HP}"); A(f"v_add_u32 {vHPw}, {t3}, {vL16}")
    A(f"s_lshl_b32 {t3}, {t5}, 9"); A(f"s_add_u32 {t3}, {t3}, {ST_O}")
    A(f"s_lshl_b32 {t4}, {t2}, 2"); A(f"s_add_u32 {t4}, {t4}, {sW}"); A(f"s_lshl_b32 {t4}, {t4}, 2"); A(f"s_add_u32 {t4}, {t4}, {t3}")
    A(f"v_lshlrev_b32 {vSTst}, 8, {T_[5]}"); A(f"v_lshl_add_u32 {vSTst}, {T_[0]}, 7, {vSTst}"); A(f"v_add_u32 {vSTst}, {t4}, {vSTst}")
    A(f"s_lshl_b32 {t3}, {t1}, 1"); A(f"s_lshr_b32 {t4}, {sW}, 1"); A(f"s_add_u32 {t3}, {t3}, {t4}"); A(f"s_lshl_b32 {t3}, {t3}, 9"); A(f"s_add_u32 {t3}, {t3}, {ST_O}")
    A(f"s_lshr_b32 {t4}, {t2}, 2"); A(f"s_lshl_b32 {t4}, {t4}, 8"); A(f"s_add_u32 {t3}, {t3}, {t4}")
    A(f"v_lshrrev_b32 {T_[7]}, 3, v0")
    A(f"v_lshl_add_u32 {vSTg}, {T_[7]}, 4, {t3}")
    A(f"s_and_b32 {t4}, {sW}, 1"); A(f"s_lshl_b32 {t4}, {t4}, 3"); A(f"v_add_u32 {vSTm}, {t4}, {vSTg}")
    A(f"s_lshr_b32 {t3}, {sJ}, 4"); A(f"s_lshl_b32 {t3}, {t3}, 15"); A(f"s_lshl_b32 {t4}, {t1}, 11"); A(f"s_add_u32 {t3}, {t3}, {t4}")
    A(f"s_lshl_b32 {t4}, {sW}, 9"); A(f"s_add_u32 {t3}, {t3}, {t4}"); A(f"s_lshl_b32 {t4}, {t2}, 6"); A(f"s_add_u32 {t3}, {t3}, {t4}")
    A(f"v_lshlrev_b32 {T_[6]}, 4, {T_[1]}"); A(f"v_lshl_add_u32 {T_[6]}, {T_[2]}, 3, {T_[6]}")
    A(f"v_lshl_add_u32 {vOPst}, {T_[5]}, 2, {T_[3]}"); A(f"v_lshl_add_u32 {vOPst}, {vOPst}, 12, {T_[6]}"); A(f"v_add_u32 {vOPst}, {t3}, {vOPst}")
    A(f"s_and_b32 {t3}, {sJ}, 15"); A(f"s_lshl_b32 {t3}, {t3}, 12"); A(f"s_lshl_b32 {t4}, {sW}, 10"); A(f"s_add_u32 {t3}, {t3}, {t4}"); A(f"v_lshl_add_u32 {vOPg}, v0, 3, {t3}")
    A(f"s_lshr_b32 {t3}, {sW}, 1"); A(f"s_mul_i32 {t3}, {t3}, 640"); A(f"s_and_b32 {t4}, {sW}, 1"); A(f"s_lshl_b32 {t4}, {t4}, 1"); A(f"s_add_u32 {t3}, {t3}, {t4}"); A(f"s_add_u32 {t3}, {t3}, {L_OT}")
    A(f"v_mul_u32_u24 {vOTw}, 20, {T_[4]}"); A(f"v_lshl_add_u32 {vOTw}, {T_[8]}, 6, {vOTw}"); A(f"v_lshl_add_u32 {vOTw}, {T_[5]}, 5, {vOTw}")
    A(f"v_lshl_add_u32 {vOTw}, {T_[2]}, 3, {vOTw}"); A(f"v_add_u32 {vOTw}, {t3}, {vOTw}")
    A(f"s_mul_i32 {t3}, {sW}, {4*1152}"); A(f"s_lshl_b32 {t4}, {sJ}, 6"); A(f"s_add_u32 {t3}, {t3}, {t4}"); A(f"s_add_u32 {t3}, {t3}, {Y_O}")
    A(f"v_mul_u32_u24 {vMst}, 18, {T_[5]}"); A(f"v_add_u32 {vMst}, {vMst}, {T_[3]}"); A(f"v_mul_u32_u24 {vMst}, 1152, {vMst}")
    A(f"v_add3_u32 {vMst}, {vMst}, {T_[6]}, {t3}")
    A(f"v_subrev_u32 {vYst}, 1024, {vMst}")
    A(f"v_lshlrev_b32 {vZSg}, 3, v0")
    A(f"s_lshl_b32 {t3}, {t1}, 8"); A(f"s_add_u32 {t3}, {t3}, {ZS_O+512}"); A(f"v_lshl_add_u32 {vSTATr}, {T_[9]}, 3, {t3}")
    zero(ZG, 2)
    A(f"v_mul_u32_u24 {vXS1}, 1152, {T_[5]}"); A(f"v_lshl_add_u32 {vXS2}, {T_[9]}, 2, {vXS1}"); A(f"v_lshl_add_u32 {vXS1}, {T_[9]}, 4, {vXS1}")
    A(f"s_mul_i32 {t4}, {sW}, 384"); A(f"v_add_u32 {vXAm}, {t4}, {vXAm}")
    A(f"s_mul_i32 {t4}, {sX}, 18"); A(f"s_add_u32 {t4}, {t4}, {sJ}"); A(f"s_lshl_b32 {t5}, {t4}, 6")
    A(f"v_lshl_add_u32 {vB1}, {T_[9]}, 1, {t5}")
    A(f"s_mul_i32 {t4}, {sTask}, 1152"); A(f"s_add_u32 {t4}, {t4}, {Y_O}"); A(f"v_lshl_add_u32 {vRg}, v0, 3, {t4}")
    A(f"s_sub_u32 {t4}, {sL}, 80"); A(f"s_and_b32 {t4}, {t4}, 63"); A(f"s_lshl_b32 {t4}, {t4}, 16")
    A(f"s_lshl_b32 {t5}, {sX}, 10"); A(f"s_add_u32 {t5}, {t5}, {t4}"); A(f"v_lshl_add_u32 {vXPg}, v0, 3, {t5}")
    A(f"s_lshl_b32 {t5}, {sX}, 7"); A(f"s_add_u32 {t4}, {t4}, {t5}"); A(f"v_lshl_add_u32 {vXPst}, {T_[8]}, 4, {t4}")
    A(f"v_lshrrev_b32 {T_[7]}, 3, v0"); A(f"v_lshl_add_u32 {vXPst}, {T_[7]}, 10, {vXPst}")
    A(f"v_lshl_add_u32 {T_[7]}, {C}, 1, {T_[5]}")
    A(f"s_lshl_b32 {t4}, {sTask}, 6"); A(f"v_lshl_add_u32 {vZo}, {T_[7]}, 1, {t4}")
    A(f"v_add_u32 {vZst}, {Z1_O}, {vZo}")
    A(f"s_and_b32 {t5}, {sTask}, 7"); A(f"s_cmp_eq_u32 {t5}, {sX}"); A(f"s_cselect_b32 {t5}, 4, 0"); A(f"s_or_b32 {sRole}, {sRole}, {t5}")
    A(f"s_cmp_ge_u32 {sTask}, 18"); A(f"s_cselect_b32 {t5}, 1152, 0")
    A(f"v_subrev_u32 {vB2}, {t5}, {vZo}")
    A(f"s_cselect_b32 {t5}, {256-18*8}, 0"); A(f"s_lshl_b32 {t4}, {sTask}, 3"); A(f"s_add_u32 {t4}, {t4}, {t5}"); A(f"s_add_u32 {t4}, {t4}, {ZS_O}")
    A(f"v_lshl_add_u32 {vZSst}, {T_[2]}, 2, {t4}")

def constants1():
    A(f"v_and_b32 {v(TM+8)}, 1, v0")
    A(f"v_mul_u32_u24 {vIdxD}, 0x5555, {v(TM+8)}"); A(f"v_add_u32 {vIdxD}, 0x8888, {vIdxD}")
    A(f"v_mov_b32 {vOnes}, 0x3f803f80")
    A(f"s_lshl_b32 {t3}, {sW}, 6"); A(f"s_add_u32 {t3}, {t3}, {L_WQ}")
    A(f"v_lshlrev_b32 {vCq}, 10, {G}"); A(f"v_lshl_add_u32 {vCq}, {C}, 2, {vCq}"); A(f"v_add_u32 {vCq}, {t3}, {vCq}")
    for i in range(16, 24): A(f"v_accvgpr_write_b32 {a(aWQ+i)}, 0")
    zero(D0, 8)
    A(f"s_cmp_lg_u32 {sW}, 3")
    A("s_cbranch_scc1 L_c1")
    A(f"s_waitcnt vmcnt({4+1+8})")
    stats_x()
    for i in range(2):
        lo, hi = v(TM+8), v(TM+9)
        A(f"v_lshlrev_b32 {lo}, 16, {v(XG+i)}"); A(f"v_and_b32 {hi}, 0xffff0000, {v(XG+i)}")
        A(f"v_sub_f32 {lo}, {lo}, {S_}"); A(f"v_sub_f32 {hi}, {hi}, {S_}")
        A(f"v_cvt_pk_bf16_f32 {v(XG+i)}, {lo}, {hi}")
        A(f"v_lshlrev_b32 {lo}, 16, {v(XG+i)}"); A(f"v_and_b32 {hi}, 0xffff0000, {v(XG+i)}")
        A(f"v_mul_f32 {lo}, {lo}, {Q_}"); A(f"v_mul_f32 {hi}, {hi}, {Q_}")
        A(f"v_cvt_pk_bf16_f32 {v(XG+i)}, {lo}, {hi}")
    A(f"v_lshrrev_b32 {v(TM+8)}, 5, v0"); A(f"v_mul_u32_u24 {v(TM+8)}, 144, {v(TM+8)}"); A(f"v_and_b32 {v(TM+9)}, 31, v0"); A(f"v_lshl_add_u32 {v(TM+8)}, {v(TM+9)}, 3, {v(TM+8)}")
    A("s_mov_b32 exec_lo, 0x3ffff"); A("s_mov_b32 exec_hi, 0x3ffff")
    A(f"ds_write_b64 {v(TM+8)}, {v(XG,2)} offset:{L_X}")
    A("s_mov_b64 exec, -1")
    A("L_c1:")
    A(f"v_mul_u32_u24 {v(TM+10)}, 144, {B2}"); A(f"v_lshl_add_u32 {v(TM+10)}, {G}, 4, {v(TM+10)}")
    A(f"s_lshl_b32 {t3}, {sW}, 11"); A(f"v_add_u32 {v(TM+8)}, {t3}, {vL16}")
    A(f"ds_write_b128 {v(TM+8)}, {v(D1,4)} offset:1024"); A(f"ds_write_b128 {v(TM+8)}, {v(D1,4)} offset:2048")

fl_load = ["s_mov_b32 exec_hi, 0", f"buffer_load_dwordx4 {v(FG,4)}, {vL16}, {srd(rWS)}, {sXoff} offen sc1", "s_mov_b32 exec_hi, -1"]
qp_store = f"buffer_store_dwordx4 {v(D0,4)}, {vQPst}, {srd(rWS)}, {{so}} offen{{fl}}"
def qg(n): return [f"buffer_load_dwordx{n} {v(QG+4*p,n)}, {vQPg if p < 2 else vQPg2}, {srd(rWS)}, {sGp} offen offset:{2048*(p%2)} sc1" for p in range(4)]
qg4, qg2 = qg(4), qg(2)
pstamp(3)
if args.tlb: A("s_waitcnt lgkmcnt(0)")
for r, off in (() if args.tlb > 1 else ((rW1, 48), (rW2, 64))) + ((rOUT, 80), (rT1, 56), (rT2, 72)):
    A(f"s_load_dwordx2 s[{r}:{r+1}], s[0:1], {off}")
constants1()
A(f"s_mov_b32 {sTO}, 0x40000"); A(f"s_mov_b32 {sMode}, 0"); A(f"s_mov_b32 {sGp}, {sGf}")
cnt = [8]
mark = {'K': 8}
def vm(s): A(s); cnt[0] += 1
A(f"s_lshl_b32 {t4}, {sL}, 9"); A(f"s_add_u32 {t4}, {t4}, {sGf}"); A(f"s_add_u32 {t4}, {t4}, {QP_O}")
A(f"s_add_u32 {sXoff}, {sGf}, {FF_O}")
A("s_mov_b64 exec, 15")
vm(f"buffer_load_dword {DUM}, {vL128}, {srd(rWS)}, {t4} offen sc1{NT}")
vm(f"buffer_load_dword {DUM}, {vL128}, {srd(rWS)}, {sXoff} offen sc1{NT}")
A("s_mov_b64 exec, -1")
def hookQ():
    A(f"s_lshl_b32 {t4}, {sL}, 2"); A(f"s_add_u32 {t4}, {t4}, {sXoff}")
    A(f"s_getreg_b32 {t3}, hwreg(HW_REG_XCC_ID)"); A(f"s_lshl_b32 {t3}, {t3}, 28"); A(f"s_or_b32 {t3}, {t3}, 1")
    A(f"s_waitcnt vmcnt({cnt[0]}) lgkmcnt(0)")
    A("s_barrier")
    pstamp(2)
    for l in exec_xa(): A(l)
    for i in range(3):
        if i == 2: A("s_mov_b64 exec, 0x33")
        A(f"ds_read_b128 {v(XA+4*i,4)}, {v(TM+10)} offset:{L_X+64*i}")
    A("s_mov_b64 exec, -1")
    for i in range(2):
        for vv in range(0, 8, 2):
            row = 32*i + 16*(vv >> 2) + (vv & 3)
            A(f"ds_read2st64_b32 {a(aWQ+8*i+vv,2)}, {vCq} offset0:{row} offset1:{row+1}")
    A("s_mov_b32 exec_hi, 0")
    for vv in (0, 2): A(f"ds_read2st64_b32 {a(aWQ+16+vv,2)}, {vCq} offset0:{64+vv} offset1:{65+vv}")
    A("s_mov_b32 exec_hi, -1")
    A(f"v_readfirstlane_b32 {sFlag}, {FN}")
    A(f"s_add_u32 {sFlag}, {sFlag}, 0x0e377902"); A(f"s_and_b32 {sFlag}, {sFlag}, 0x0fffffff"); A(f"s_or_b32 {sFlag}, {sFlag}, {t3}")
    A(f"v_mov_b32 {FN}, {sFlag}")
    A("s_mov_b64 exec, 1")
    vm(f"buffer_store_dword {FN}, {vL16}, {srd(rWS)}, {t4} offen")
    A("s_mov_b64 exec, -1")
    A(f"v_and_b32 {vTag}, 0xff, {FN}"); A(f"s_movk_i32 {t4}, 0xff")
    A("s_waitcnt lgkmcnt(0)")
    for i in range(3): sm(D0, XA+4*i, aWQ+8*i, vIdxD)
    for i in range(4): A(f"v_bfi_b32 {v(D0+i)}, {t4}, {vTag}, {v(D0+i)}")
    A("s_mov_b32 exec_hi, 0")
    vm(qp_store.format(so=sGf, fl=''))
    A("s_mov_b32 exec_hi, -1")
    pstamp(1)
for k in range(9):
    if k == args.pQ: hookQ()
    if k == 8 - args.vw: mark['V'] = cnt[0]
    if k < 8: vm(f"buffer_load_dwordx4 {a(aV+4*k,4)}, {vL16}, {srd(rV)}, {kv0 if k < 4 else kv1} offen offset:{1024*(k%4)}{NTV}")
    if k == 7: pstamp(9)
TT = v(TM+4)
def slots_touch():
    A(f"s_lshl_b32 {t1}, {sJ}, 2"); A(f"s_add_u32 {t1}, {t1}, {sW}")
    A(f"s_mul_i32 {t3}, {t1}, 896"); A(f"s_add_u32 {t3}, {t3}, {sGf}"); A(f"s_add_u32 {t3}, {t3}, {Y_O}")
    A("s_mov_b64 exec, 0x7f")
    A(f"buffer_load_dword {DUM}, {vL128}, {srd(rWS)}, {t3} offen sc1{NT}")
    A("s_mov_b64 exec, -1")
assert Y_O + 64 * 896 >= ZS_O + 1536
def w1_touch():
    A(f"s_lshl_b32 {t1}, {sJ}, 2"); A(f"s_add_u32 {t1}, {t1}, {sW}")
    A(f"s_mul_i32 {t4}, {sX}, 576"); A(f"s_add_u32 {t4}, {t4}, {t1}"); A(f"s_add_u32 {t4}, {t4}, 512"); A(f"s_mul_i32 {t4}, {t4}, 1152")
    A(f"s_mul_i32 {t1}, {t1}, {9*9216}")
    A(f"s_mul_i32 {t3}, {sX}, 1152"); A(f"s_add_u32 {t1}, {t1}, {t3}"); A(f"s_add_u32 {t3}, {t1}, {5*9216}")
    A(f"v_mul_u32_u24 {TT}, 57, v0"); A(f"v_lshrrev_b32 {TT}, 9, {TT}"); A(f"v_mul_u32_u24 {TT}, {9216-1152}, {TT}"); A(f"v_add_u32 {TT}, {TT}, {vL128}")
    A("s_mov_b32 exec_hi, 0x1fff")
    A(f"buffer_load_dword {DUM}, {TT}, {srd(rW1)}, {t1} offen{NTM}")
    A("s_mov_b32 exec_hi, 15")
    A(f"buffer_load_dword {DUM}, {TT}, {srd(rW1)}, {t3} offen{NTM}")
    A("s_mov_b64 exec, 0x1ff")
    A(f"buffer_load_dword {DUM}, {vL128}, {srd(rW2)}, {t4} offen{NTM}")
    A("s_mov_b64 exec, -1")
def w2_loads():
    l1 = A.newlabel('L_w2')
    A(f"s_mul_i32 {t0}, {sX}, 18"); A(f"s_add_u32 {t0}, {t0}, {sJ}"); A(f"s_mul_i32 {t0}, {t0}, {32*1152}")
    A(f"s_lshl_b32 {t1}, {sW}, 8"); A(f"s_add_u32 {t1}, {t1}, {t0}")
    for i in range(8):
        A(f"buffer_load_dwordx4 {a(aW2+4*i,4)}, {vWrow}, {srd(rW2)}, {t1} offen{NT2}")
        if i < 7: A(f"s_add_u32 {t1}, {t1}, 4608")
    A(f"s_cmp_lg_u32 {sW}, 3")
    A(f"s_cbranch_scc1 {l1}")
    A(f"s_mov_b64 exec, {mLO8}")
    for i in range(8):
        A(f"buffer_load_dwordx4 {a(aW2t+4*i,4)}, {vWrow}, {srd(rW2)}, {t0} offen offset:1024{NT2}")
        if i < 7: A(f"s_add_u32 {t0}, {t0}, 4608")
    A("s_mov_b64 exec, -1")
    A(f"{l1}:")
def wo_loads(k0, k1, with_tail):
    for k in range(k0, k1):
        A(f"buffer_load_dwordx4 {a(aWO+4*k,4)}, {vWrow}, {srd(rWO)}, {sWo} offen{NTO}")
        A(f"s_add_u32 {sWo}, {sWo}, 4608")
    if with_tail:
        l1 = A.newlabel('L_wt')
        A(f"s_cmp_lg_u32 {sW}, 3")
        A(f"s_cbranch_scc1 {l1}")
        A(f"s_mov_b64 exec, {mLO8}")
        for i in range(7, -1, -1):
            A(f"s_sub_u32 {sWo}, {sWo}, 4608")
            A(f"buffer_load_dwordx4 {a(aWOt+4*i,4)}, {vWrow}, {srd(rWO)}, {sWo} offen offset:256{NTO}")
        A("s_mov_b64 exec, -1")
        A(f"{l1}:")
constants()
pstamp(4)
stamp()
A(f"s_waitcnt vmcnt({cnt[0]-mark['K']})")
for T in range(2):
    for q in range(4): A(f"ds_read_b128 {a(aK+16*T+4*q,4)}, {v(KA+q)} offset:{4096*T}")
A(f"s_mov_b32 {sXPo}, {XP_O}")
A(f"s_cmp_lt_u32 {sJ}, 16")
A("s_cbranch_scc1 L_g1n")
A(f"v_readfirstlane_b32 {t4}, {vOPg}"); A(f"v_readfirstlane_b32 {t5}, {vSTg}")
A(f"s_add_u32 {t4}, {t4}, {sGf}"); A(f"s_add_u32 {t5}, {t5}, {sGf}")
A("s_mov_b64 exec, 0xff")
A(f"buffer_load_dword {DUM}, {vL128}, {srd(rWS)}, {t4} offen sc1{NT}")
A("s_mov_b64 exec, 3")
A(f"buffer_load_dword {DUM}, {vL128}, {srd(rWS)}, {t5} offen sc1{NT}")
A("s_mov_b64 exec, -1")
A(f"buffer_load_ushort {vXres}, {vZo}, {srd(rX)}, 0 offen{NT}")
A(f"buffer_load_ushort {vB2}, {vB2}, {srd(rT2)}, 0 offen{NT}")
wo_loads(0, 8, True)
A("s_branch L_g1o")
A("L_g1n:")
if 's' in args.early: slots_touch()
if '1' in args.early: w1_touch()
if '2' in args.early: w2_loads()
A("L_g1o:")
pstamp(6)
A(f"s_waitcnt vmcnt({args.vw})")
if ST and not args.pro and ONLY is None: A(f"s_memrealtime s[74:75]")
pstamp(5)
def flags_diff():
    A(f"v_xor_b32 {CK}, {sFlag}, {v(FG)}")
    for i in range(1, 4): A(f"v_bitop3_b32 {CK}, {CK}, {v(FG+i)}, {sFlag} bitop3:0xf6")
st_rd = f"ds_read_b64 {v(TM,2)}, {vSTATr}"
A("L_g4:")
for l in fl_load + qg4: A(l)
A("s_waitcnt vmcnt(0)")
pstamp(7)
flags_diff()
A(f"v_cmp_ne_u32 vcc, 0, {CK}")
A("s_cmp_lg_u32 vcc_lo, 0")
if args.forcefb: A("s_cmp_eq_u32 0, 0")
A("s_cbranch_scc1 L_af2")
A(f"s_mov_b32 {sMode}, 0")
A("L_g2:")
for i in range(16): A(f"v_xor_b32 {v(QG+i)}, {vTag}, {v(QG+i)}")
A(f"v_or3_b32 {CK}, {v(QG)}, {v(QG+1)}, {v(QG+2)}")
for i in range(3, 15, 2): A(f"v_or3_b32 {CK}, {CK}, {v(QG+i)}, {v(QG+i+1)}")
A(f"v_or_b32 {CK}, {CK}, {v(QG+15)}")
A(f"v_and_b32 {CK}, 0xff, {CK}")
A(f"v_cmp_ne_u32 vcc, 0, {CK}")
A("s_cbranch_vccnz L_g5")
A("L_g3:")
A(f"s_mov_b32 {sL}, 0")
zero(D0)
A(f"v_mov_b32 {v(TM)}, 0"); A(f"v_mov_b32 {v(TM+1)}, 1.0")
tail.append("L_g5:\n" + timeout("L_g4", "L_g3"))
pstamp(8)
A(f"v_add_f32 {v(TM+2)}, {v(QG+2)}, {v(QG+6)}"); A(f"v_add_f32 {v(TM+3)}, {v(QG+3)}, {v(QG+7)}")
A(f"v_add_f32 {v(TM+4)}, {v(QG+10)}, {v(QG+14)}"); A(f"v_add_f32 {v(TM+5)}, {v(QG+11)}, {v(QG+15)}")
A(f"v_add_f32 {v(TM+2)}, {v(TM+2)}, {v(TM+4)}"); A(f"v_add_f32 {v(TM+3)}, {v(TM+3)}, {v(TM+5)}")
A(f"v_permlane32_swap_b32 {v(TM+2)}, {v(TM+3)}")
A(f"v_add_f32 {vCq}, {v(TM+2)}, {v(TM+3)}")
A("s_branch L_qfin")

A("L_layer:")
zero(D0, 8)
def quiet_wait(so_add):
    if not args.pre: return
    A(f"s_add_u32 {t5}, {sGp}, {so_add}")
    A("s_mov_b64 exec, 1")
    poll([f"buffer_load_dword {DUM}, {vL16}, {srd(rWS)}, {t5} offen sc1"] + ([f"s_sleep {args.pre-1}"] if args.pre > 1 else []), [DUM])
    A("s_mov_b64 exec, -1")
    if args.zd: A(f"s_sleep {args.zd}")
if args.pre:
    A(f"s_bitcmp1_b32 {sRole}, 1"); A("s_cbranch_scc1 L_q0")
    quiet_wait(AN_O)
    A("L_q0:")
def q_pub():
    A(f"v_and_b32 {v(D0)}, -2, {v(D0)}"); A(f"v_and_b32 {v(D0+1)}, -2, {v(D0+1)}")
    A("s_mov_b32 exec_hi, 0")
    pub(f"buffer_store_dwordx2 {v(D0,2)}, {vQPst}, {srd(rWS)}, {{so}} offen{{fl}}")
    A("s_mov_b32 exec_hi, -1")
poll_proj(vXAq, sXoff, 3, aWQ, True)
q_pub()
nst[0] = 1
stamp()
zero(D0)
qregs = [v(QG+4*p+i) for p in range(4) for i in range(2)]
qchk1 = [f"v_or3_b32 {CK}, {qregs[0]}, {qregs[1]}, {qregs[2]}", f"v_or3_b32 {CK}, {CK}, {qregs[3]}, {qregs[4]}", f"v_or3_b32 {CK}, {CK}, {qregs[5]}, {qregs[6]}",
         f"v_bitop3_b32 {CK}, {CK}, {qregs[7]}, 1 bitop3:0xa8", f"v_cmp_ne_u32 vcc, 0, {CK}"]
poll(zs_load(vSTATr, sGp), [v(ZG), v(ZG+1)])
for l in qg2: A(l)
A(f"v_mov_b32 {S_}, {v(ZG)}"); A(f"v_mov_b32 {Q_}, {v(ZG+1)}")
stats_tail1(); stats_tail2()
poll(qg2, qregs, primed=True, chk=qchk1, site='q')
A("L_qfin:")
stamp()
A(f"v_add_f32 {v(TM+2)}, {v(QG)}, {v(QG+4)}"); A(f"v_add_f32 {v(TM+3)}, {v(QG+1)}, {v(QG+5)}")
A(f"v_add_f32 {v(TM+4)}, {v(QG+8)}, {v(QG+12)}"); A(f"v_add_f32 {v(TM+5)}, {v(QG+9)}, {v(QG+13)}")
A(f"v_add_f32 {v(TM+2)}, {v(TM+2)}, {v(TM+4)}"); A(f"v_add_f32 {v(TM+3)}, {v(TM+3)}, {v(TM+5)}")
A(f"v_permlane32_swap_b32 {v(TM+2)}, {v(TM+3)}")
A(f"v_add_f32 {v(TM+2)}, {v(TM+2)}, {v(TM+3)}")
A(f"v_fma_f32 {v(TM+2)}, -{v(TM)}, {vCq}, {v(TM+2)}")
A(f"v_mul_f32 {v(TM+2)}, {v(TM+2)}, {v(TM+1)}")
A(f"v_cvt_pk_bf16_f32 {v(TM+2)}, {v(TM+2)}, {v(TM+2)}")
A(f"ds_write_b16 {vQTw}, {v(TM+2)} offset:{L_QT}")
A("s_mov_b32 vcc_lo, 0xaaaaaaaa"); A("s_mov_b32 vcc_hi, 0xaaaaaaaa")
zero(DP)
A("s_waitcnt lgkmcnt(0)")
A("s_barrier")
A(f"ds_read_b128 {v(AO,4)}, {vQTr} offset:{L_QT}")
A(f"ds_read_b128 {v(AO+4,4)}, {vQTr} offset:{L_QT+256}")
if args.mid:
    A(f"s_lshr_b32 {t0}, {sJ}, 4"); A(f"s_or_b32 {t0}, {t0}, {sL}")
    A("s_cbranch_scc1 L_mid")
    if 's' in args.mid: slots_touch()
    if '1' in args.mid: w1_touch()
    if '2' in args.mid: w2_loads()
    A("L_mid:")
A(f"s_waitcnt lgkmcnt({lg(1)})")
sm(D0, AO, aK, vIdxP); sm(D1, AO, aK+16, vIdxP)
A("s_waitcnt lgkmcnt(0)")
sm(D0, AO+4, aK+8, vIdxP); sm(D1, AO+4, aK+24, vIdxP)
SC, MX, P_, LS, TT = v(TM), v(TM+1), v(TM+2), v(TM+3), v(TM+4)
A(f"v_add_f32 {SC}, {v(D0)}, {v(D0+1)}")
A(f"v_add_f32 {TT}, {v(D1)}, {v(D1+1)}")
A(f"v_cndmask_b32 {SC}, {SC}, {TT}, {mROW}")
rbf(SC, SC)
A(f"v_mul_f32 {SC}, {f32(128 ** -0.5)}, {SC}")
rbf(SC, SC)
A(f"v_mul_f32 {SC}, {f32(1.4426950408889634)}, {SC}")
zero(D0, 2)
A(f"v_max_f32_dpp {MX}, {SC}, {SC} row_ror:8 row_mask:0xf bank_mask:0xf")
for n, k in enumerate((4, 2, 1)):
    zero(D0+2+2*n, 2)
    if k == 1: A(f"v_max_f32_dpp {TT}, {MX}, {MX} row_ror:{k} row_mask:0xf bank_mask:0xf")
    A(f"v_max_f32_dpp {MX}, {MX}, {MX} row_ror:{k} row_mask:0xf bank_mask:0xf")
A(f"v_permlane16_swap_b32 {MX}, {TT}")
A(f"v_max_f32 {MX}, {MX}, {TT}")
A(f"v_sub_f32 {P_}, {SC}, {MX}")
A(f"v_exp_f32 {P_}, {P_}")
A(f"v_cvt_pk_bf16_f32 {TT}, {P_}, 0")
A(f"ds_write2_b32 {vPTw}, {TT}, {TT} offset1:5")
for i in range(4): A(f"ds_read_b128 {v(AO+4*i,4)}, {vPTr} offset:{128*i}")
A(f"v_add_f32_dpp {LS}, {P_}, {P_} row_ror:8 row_mask:0xf bank_mask:0xf")
for k in (4, 2, 1): A(f"v_add_f32_dpp {LS}, {LS}, {LS} row_ror:{k} row_mask:0xf bank_mask:0xf")
A(f"v_mov_b32 {SC}, {LS}")
A(f"v_permlane16_swap_b32 {LS}, {SC}")
A(f"v_add_f32 {LS}, {LS}, {SC}")
A(f"v_cndmask_b32 {SC}, {MX}, {LS}, vcc")
A("s_mov_b32 exec_lo, 3"); A("s_mov_b32 exec_hi, 3")
pub(f"buffer_store_dword {SC}, {vSTst}, {srd(rWS)}, {{so}} offen{{fl}}")
A("s_mov_b64 exec, -1")
for i in range(4):
    A(f"s_waitcnt lgkmcnt({lg(3-i)})")
    sm(DP, AO+4*i, aV+8*i, vIdxS)
def pack4(d):
    A(f"v_cvt_pk_bf16_f32 {v(d)}, {v(d)}, {v(d+1)}"); A(f"v_cvt_pk_bf16_f32 {v(d+1)}, {v(d+2)}, {v(d+3)}")
pack4(DP)
pub(f"buffer_store_dwordx2 {v(DP,2)}, {vOPst}, {srd(rWS)}, {{so}} offen{{fl}}")
stamp()
E = TM + 5
R = TM + 12
def tile_out(wb, tb, vst, drain):
    l1 = A.newlabel('L_t'); l2 = A.newlabel('L_t')
    for i in range(4):
        A(f"s_waitcnt lgkmcnt({lg(3-i)})")
        sm(D0, AO+4*i, wb+8*i, vIdxS)
    A(f"s_cmp_lg_u32 {sW}, 3")
    A(f"s_cbranch_scc1 {l1}")
    for i in range(1 if 'notail' in args.exp else 4): sm(D1, AO+4*i, tb+8*i, vIdxS)
    A(f"{l1}:")
    A("s_waitcnt vmcnt(0)" if drain else "s_nop 0")
    A("s_nop 4")
    pack4(D0)
    pub(f"buffer_store_dwordx2 {v(D0,2)}, {vst}, {srd(rWS)}, {{so}} offen{{fl}}")
    A(f"s_cmp_lg_u32 {sW}, 3")
    A(f"s_cbranch_scc1 {l2}")
    pack4(D1)
    A(f"s_mov_b64 exec, {mLO8}")
    pub(f"buffer_store_dwordx2 {v(D1,2)}, {v(E+2)}, {srd(rWS)}, {{so}} offen{{fl}}")
    A("s_mov_b64 exec, -1")
    A(f"{l2}:")
A(f"s_cmp_lt_u32 {sJ}, 16")
A("s_cbranch_scc1 L_mlp")
op_load = [f"buffer_load_dwordx2 {v(OG+2*i,2)}, {vOPg}, {srd(rWS)}, {sGp} offen offset:{512*i} sc1" for i in range(2)]
A(f"v_add_u32 {v(E+6)}, {4*1152}, {vYst}")
if args.sd: A(f"s_sleep {args.sd}")
if 'nost' not in args.exp.split(','): poll([f"buffer_load_dwordx4 {v(SG,4)}, {vSTg}, {srd(rWS)}, {sGp} offen sc1",
      f"buffer_load_dwordx4 {v(SG+4,4)}, {vSTg}, {srd(rWS)}, {sGp} offen offset:128 sc1",
      f"buffer_load_dwordx2 {v(SG+8,2)}, {vSTm}, {srd(rWS)}, {sGp} offen sc1"], [v(SG+i) for i in range(10 if 's' in PD else 8)], site='s')
for l in op_load: A(l)
if 'noweights' in args.exp: A("s_branch L_exw")
A(f"v_max3_f32 {MX}, {v(SG)}, {v(SG+1)}, {v(SG+2)}")
A(f"v_max_f32 {MX}, {MX}, {v(SG+3)}")
A(f"v_max_f32_dpp {TT}, {MX}, {MX} row_ror:8 row_mask:0xf bank_mask:0xf")
A(f"v_max_f32_dpp {MX}, {MX}, {MX} row_ror:8 row_mask:0xf bank_mask:0xf")
A(f"v_permlane16_swap_b32 {MX}, {TT}"); A(f"v_max_f32 {SC}, {MX}, {TT}"); A(f"v_max_f32 {MX}, {MX}, {TT}")
A(f"v_permlane32_swap_b32 {MX}, {SC}"); A(f"v_max_f32 {MX}, {MX}, {SC}")
for n, i in enumerate((0, 1, 2, 3, 8, 9)): A(f"v_sub_f32 {v(E+n)}, {v(SG+i)}, {MX}")
for n in range(6): A(f"v_exp_f32 {v(E+n)}, {v(E+n)}")
A(f"v_mul_f32 {LS}, {v(E)}, {v(SG+4)}")
for i in (1, 2, 3): A(f"v_fmac_f32 {LS}, {v(E+i)}, {v(SG+4+i)}")
A(f"v_add_f32_dpp {TT}, {LS}, {LS} row_ror:8 row_mask:0xf bank_mask:0xf")
A(f"v_add_f32_dpp {LS}, {LS}, {LS} row_ror:8 row_mask:0xf bank_mask:0xf")
A(f"v_permlane16_swap_b32 {LS}, {TT}"); A(f"v_add_f32 {SC}, {LS}, {TT}"); A(f"v_add_f32 {LS}, {LS}, {TT}")
A("L_exw:")
poll(op_load, [v(OG+i) for i in range(4)], primed=True, site='o')
stamp()
A(f"v_permlane32_swap_b32 {LS}, {SC}")
def unpack2(dst, src):
    for i in range(2):
        A(f"v_lshlrev_b32 {v(dst+2*i)}, 16, {v(src+i)}"); A(f"v_and_b32 {v(dst+2*i+1)}, 0xffff0000, {v(src+i)}")
unpack2(R, OG); unpack2(OG+4, OG+2)
for i in (0, 2): A(f"v_pk_mul_f32 {v(R+i,2)}, {v(R+i,2)}, {v(E+3,2)} op_sel:[0,1] op_sel_hi:[1,1]")
for i in (0, 2): A(f"v_pk_fma_f32 {v(R+i,2)}, {v(OG+4+i,2)}, {v(E+5,2)}, {v(R+i,2)} op_sel_hi:[1,0,1]")
A(f"v_add_f32 {LS}, {LS}, {SC}")
A(f"v_mov_b32 {v(E+2)}, {v(E+6)}")
A(f"v_permlane32_swap_b32 {v(R)}, {v(R+2)}")
A(f"v_permlane32_swap_b32 {v(R+1)}, {v(R+3)}")
A(f"v_add_f32 {v(R)}, {v(R)}, {v(R+2)}")
A(f"v_add_f32 {v(R+1)}, {v(R+1)}, {v(R+3)}")
A(f"v_rcp_f32 {LS}, {LS}")
A(f"v_permlane16_swap_b32 {v(R)}, {v(R+1)}")
A(f"v_add_f32 {v(R)}, {v(R)}, {v(R+1)}")
A(f"v_add_f32_dpp {v(R)}, {v(R)}, {v(R)} row_ror:8 row_mask:0xf bank_mask:0xf")
A(f"v_mul_f32 {v(R)}, {v(R)}, {LS}")
A(f"v_cvt_pk_bf16_f32 {TT}, {v(R)}, {v(R)}")
A(f"ds_write_b16 {vOTw}, {TT}")
A(f"s_cmp_lg_u32 {sL}, 0")
A("s_cbranch_scc1 L_o3")
pub(*[f"buffer_store_dwordx2 {v(EM,2)}, {vOPg}, {srd(rWS)}, {{so}} offen offset:{512*i}{{fl}}" for i in range(2)])
A("L_o3:")
A("s_waitcnt lgkmcnt(0)")
A("s_barrier")
for i in range(4): A(f"ds_read_b128 {v(AO+4*i,4)}, {vOTr} offset:{128*i}")
tile_out(aWO, aWOt, vYst, True)
stamp()

def reducer(kind):
    ld = [f"buffer_load_dwordx2 {v(YG+2*i,2)}, {vRg}, {srd(rWS)}, {sGp} offen offset:{512*i} sc1" for i in range(2)]
    A(f"s_movk_i32 {t4}, 0xff"); A(f"s_add_u32 {t3}, {sXPo}, 8192")
    zero(R)
    if kind == 'A': zero(YG+4, 2)
    if kind == 'A':
        if args.yd: A(f"s_sleep {args.yd}")
        poll(ld, [v(YG+i) for i in range(4)], site='y')
    else:
        poll(ld + ["s_mov_b64 exec, 0xffff", f"buffer_load_dwordx2 {v(YG+4,2)}, {vRg}, {srd(rWS)}, {sGp} offen offset:1024 sc1", "s_mov_b64 exec, -1"],
             [v(YG+i) for i in range(6)], site='y')
    stamp()
    A(f"v_smfmac_f32_16x16x64_bf16 {v(R,4)}, {v(YG+8,4)}, {v(YG,8)}, {vIdxS}")
    for i in range(4): A(f"v_add_f32_dpp {v(R+i)}, {v(R+i)}, {v(R+i)} row_ror:8 row_mask:0xf bank_mask:0xf")
    for i in range(4): A(f"v_bfi_b32 {v(R+i)}, {t4}, {vTag}, {v(R+i)}")
    A(f"buffer_store_dwordx4 {v(R,4)}, {vXPst}, {srd(rWS)}, {sXPo} offen sc1")
    if args.near: A(f"buffer_store_dwordx4 {v(R,4)}, {vXPst}, {srd(rWS)}, {t3} offen sc1")
    if kind == 'M':
        A(f"s_lshl_b32 {t0}, {sL}, 2"); A(f"s_andn2_b32 {t0}, {t0}, {sRole}")
        A("s_cbranch_scc1 L_fin")
    cl = [f"buffer_store_dwordx2 {v(EM,2)}, {vRg}, {srd(rWS)}, {{so}} offen offset:{512*i}{{fl}}" for i in range(2)]
    if kind == 'M': cl += ["s_mov_b64 exec, 0xffff", f"buffer_store_dwordx2 {v(EM,2)}, {vRg}, {srd(rWS)}, {{so}} offen offset:1024{{fl}}", "s_mov_b64 exec, -1"]
    pub(*cl)
    if args.pre:
        lb = A.newlabel('L_an')
        A(f"s_cmp_lg_u32 {sTask}, 0"); A(f"s_cbranch_scc1 {lb}")
        if kind == 'A': A(f"s_cmp_eq_u32 {sL}, 0"); A(f"s_cbranch_scc1 {lb}")
        A(f"v_mov_b32 {TT}, {AN_O + (0 if kind == 'M' else 4)}")
        A("s_mov_b64 exec, 1")
        pub(f"buffer_store_dword {vL16}, {TT}, {srd(rWS)}, {{so}} offen{{fl}}")
        A("s_mov_b64 exec, -1")
        A(f"{lb}:")
    if args.near:
        A(f"v_mov_b32 {TT}, 0")
        A(f"ds_read_b32 {TT}, {TT} offset:{L_NEAR}")
    if args.xd: A(f"s_sleep {args.xd}")
    if args.near:
        A("s_waitcnt lgkmcnt(0)")
        A(f"v_or_b32 {vXPg}, {vXPg}, {TT}")
    poll([f"buffer_load_dwordx2 {v(XG,2)}, {vXPg}, {srd(rWS)}, {sXPo} offen sc1",
          f"buffer_load_dwordx2 {v(XG+2,2)}, {vXPg}, {srd(rWS)}, {sXPo} offen offset:512 sc1"], None, site='x',
         chk=[f"v_xor_b32 {v(R+i)}, {vTag}, {v(XG+i)}" for i in range(4)] +
             [f"v_or3_b32 {CK}, {v(R)}, {v(R+1)}, {v(R+2)}", f"v_bitop3_b32 {CK}, {CK}, {v(R+3)}, {t4} bitop3:0xa8", f"v_cmp_ne_u32 vcc, 0, {CK}"])
    stamp()
    Y = v(R)
    A(f"v_add_f32 {v(R)}, {v(R)}, {v(R+2)}"); A(f"v_add_f32 {v(R+1)}, {v(R+1)}, {v(R+3)}")
    A(f"v_permlane32_swap_b32 {v(R)}, {v(R+1)}")
    A(f"v_add_f32 {TT}, {v(R)}, {v(R+1)}"); A(f"v_add_f32 {Y}, {v(R)}, {v(R+1)}")
    A(f"v_permlane16_swap_b32 {Y}, {TT}"); A(f"v_add_f32 {Y}, {Y}, {TT}")
    rbf(Y, Y)
    if kind == 'M':
        A(f"v_add_f32 {Y}, {Y}, {vB2}"); rbf(Y, Y)
    A(f"v_add_f32 {TT}, {Y}, {vXres}")
    A(f"v_add_f32 {v(R+1)}, {Y}, {vXres}")
    A(f"v_add_f32 {Y}, {Y}, {vXres}")
    A("s_mov_b64 exec, -1")
    A(f"v_permlane32_swap_b32 {TT}, {v(R+1)}")
    A(f"v_cvt_pk_bf16_f32 {TT}, {TT}, {v(R+1)}")
    A("s_mov_b64 exec, 0xffff")
    if kind == 'M':
        A(f"s_cmp_lg_u32 {sL}, 0")
        A("s_cbranch_scc1 L_out")
    pub(f"buffer_store_dword {TT}, {vZst}, {srd(rWS)}, {{so}} offen{{fl}}")
    A("s_mov_b64 exec, -1")
    stamp()
    rbf(vXres, Y)
    if kind == 'M' or args.ms != 'x':
        A(f"v_mul_f32 {TT}, {vXres}, {vXres}")
        A(f"v_cndmask_b32 {TT}, {vXres}, {TT}, {mROW}")
        for k in (8, 4, 2): A(f"v_add_f32_dpp {TT}, {TT}, {TT} row_ror:{k} row_mask:0xf bank_mask:0xf")
        A(f"v_add_f32_dpp {Y}, {TT}, {TT} row_ror:1 row_mask:0xf bank_mask:0xf")
        A(f"v_add_f32_dpp {TT}, {TT}, {TT} row_ror:1 row_mask:0xf bank_mask:0xf")
        A(f"v_permlane32_swap_b32 {TT}, {Y}")
        A(f"v_add_f32 {TT}, {TT}, {Y}")
        A("s_mov_b64 exec, 0x10001")
        pub(f"buffer_store_dword {TT}, {vZSst}, {srd(rWS)}, {{so}} offen{{fl}}")
        A("s_mov_b64 exec, -1")
    A(f"v_add_u32 {vZSst}, 512, {vZSst}")
    A(f"v_add_u32 {vZst}, 2304, {vZst}")
    A(f"s_add_u32 {sXPo}, {sXPo}, {XPS}")

A(f"s_bitcmp1_b32 {sRole}, 0")
A("s_cbranch_scc1 L_mlp")
A(f"s_bitcmp1_b32 {sRole}, 1")
A("s_cbranch_scc0 L_probe" if args.near else "s_cbranch_scc0 L_next")
A(f"s_cmp_lg_u32 {sL}, 0")
A("s_cbranch_scc1 L_red")
A(f"v_lshlrev_b32 {vXres}, 16, {vXres}"); A(f"v_lshlrev_b32 {vB2}, 16, {vB2}")
zero(YG+6, 2)
for i in range(4): A(f"v_mov_b32 {v(YG+8+i)}, 0x3f80")
A("L_red:")
k0 = nst[0]
reducer('A'); reducer('M')
kr = nst[0]
A("s_branch L_next")
A("L_mlp:")
nst[0] = k0
A(f"s_cmp_lg_u32 {sL}, 0")
A("s_cbranch_scc1 L_m1")
A(f"s_mul_i32 {t0}, {sX}, 18"); A(f"s_add_u32 {t0}, {t0}, {sJ}")
A(f"s_lshl_b32 {t2}, {t0}, 6")
A(f"buffer_load_ushort {vB1}, {vB1}, {srd(rT1)}, 0 offen{NT}")
A(f"s_cmp_ge_u32 {sJ}, 16")
A("s_cbranch_scc1 L_m0b")
if args.xt:
    A(f"s_lshl_b32 {t1}, {sJ}, 2"); A(f"s_add_u32 {t1}, {t1}, {sW}"); A(f"s_mul_i32 {t1}, {t1}, 36")
    A(f"v_add_u32 {TT}, {t1}, v0")
    A(f"v_lshrrev_b32 {LS}, 6, {TT}"); A(f"v_mul_u32_u24 {MX}, 43, {LS}"); A(f"v_lshrrev_b32 {MX}, 7, {MX}"); A(f"v_add_u32 {LS}, {LS}, {MX}")
    A(f"v_bfe_u32 {MX}, {TT}, 3, 3"); A(f"v_lshl_add_u32 {LS}, {LS}, 3, {MX}"); A(f"v_and_b32 {TT}, 7, {TT}"); A(f"v_lshlrev_b32 {TT}, 7, {TT}"); A(f"v_lshl_add_u32 {TT}, {LS}, 13, {TT}")
    A(f"s_lshl_b32 {t1}, {sX}, 10"); A(f"s_add_u32 {t1}, {t1}, {XP_O}")
    A(f"v_mov_b32 {LS}, 0")
    A("s_mov_b32 exec_hi, 15")
    A(f"buffer_atomic_or {LS}, {TT}, {srd(rWS)}, {t1} offen")
    A("s_mov_b32 exec_hi, -1")
if 's' not in args.early + args.mid: slots_touch()
if '1' not in args.early + args.mid: w1_touch()
if '2' in args.early + args.mid: A("s_branch L_m0d")
A("L_m0b:")
w2_loads()
A("L_m0d:")
A(f"s_cmp_eq_u32 {sW}, 3")
A("s_cbranch_scc1 L_m0c")
A("L_m0a:")
A(f"s_mul_i32 {t0}, {sW}, {192*9216}"); A(f"s_add_u32 {t0}, {t0}, {t2}")
if args.w1dma:
    A(f"v_lshrrev_b32 {TT}, 2, v0"); A(f"v_mul_u32_u24 {TT}, 9216, {TT}"); A(f"v_and_b32 {LS}, 3, v0"); A(f"v_lshl_add_u32 {TT}, {LS}, 4, {TT}")
    A(f"s_mul_i32 {t1}, {sW}, 12288"); A(f"s_add_u32 {t1}, {t1}, {L_K}"); A(f"s_mov_b32 m0, {t1}")
    for i in range(12):
        A(f"buffer_load_dwordx4 {TT}, {srd(rW1)}, {t0} offen{NTM} lds")
        if i < 11: A(f"s_add_u32 {t0}, {t0}, {16*9216}"); A("s_add_u32 m0, m0, 1024")
    A(f"v_lshrrev_b32 {TT}, 4, v0"); A(f"v_lshlrev_b32 {TT}, 8, {TT}"); A(f"v_and_b32 {LS}, 15, v0"); A(f"v_lshl_add_u32 {TT}, {LS}, 2, {TT}"); A(f"v_add_u32 {TT}, {t1}, {TT}")
    A("s_waitcnt vmcnt(0)")
    for i in range(6):
        for hh in range(2):
            for p in range(2):
                A(f"ds_read2_b32 {a(aW1+8*i+4*hh+2*p,2)}, {TT} offset0:{32*p} offset1:{32*p+16}")
            if (i, hh) != (5, 1): A(f"v_add_u32 {TT}, 1024, {TT}")
    A("s_waitcnt lgkmcnt(0)")
else:
    A(f"v_lshrrev_b32 {TT}, 4, v0"); A(f"v_mul_u32_u24 {TT}, {4*9216}, {TT}"); A(f"v_and_b32 {LS}, 15, v0"); A(f"v_lshl_add_u32 {TT}, {LS}, 2, {TT}")
    prev = 0
    for i in range(6):
        for vv in range(8):
            row = 32*i + 16*(vv >> 2) + (vv & 3)
            if row != prev: A(f"s_add_u32 {t0}, {t0}, {(row-prev)*9216}")
            prev = row
            A(f"buffer_load_dword {a(aW1+8*i+vv)}, {TT}, {srd(rW1)}, {t0} offen{NTM}")
A("L_m0c:")
if ST: A("s_memrealtime s[94:95]"); A("s_waitcnt vmcnt(0)"); A("s_memrealtime s[96:97]")
A("s_waitcnt vmcnt(0)")
A(f"v_lshlrev_b32 {vB1}, 16, {vB1}")
A("L_m1:")
zero(D0, 8)
c0 = -2 * 1.4426950408889634 * 0.7978845608028654
A(f"v_mov_b32 {v(E)}, {f32(c0)}")
A(f"v_add_u32 {v(E+2)}, {4*1152}, {vMst}")
A(f"s_mul_i32 {t0}, {sL}, {Z3_O-Z1_O}"); A(f"s_add_u32 {t0}, {t0}, {sGp}"); A(f"s_add_u32 {t0}, {t0}, {Z1_O}")
if args.pre:
    A(f"s_cmp_eq_u32 {sL}, 0"); A("s_cbranch_scc1 L_m1b")
    quiet_wait(AN_O + 4)
    A("L_m1b:")
A(f"s_lshl_b32 {t1}, {sL}, 10"); A(f"s_add_u32 {t1}, {t1}, {sGp}"); A(f"s_add_u32 {t1}, {t1}, {ZS_O}")
A(f"v_lshrrev_b32 {v(E+1)}, 5, v0"); A(f"v_lshlrev_b32 {v(E+1)}, 3, {v(E+1)}")
A(f"s_cmp_eq_u32 {sW}, 3")
A("s_cbranch_scc1 L_m2")
poll_proj(vXAm, t0, 6, aW1)
A("s_mov_b32 exec_hi, 0")
A(f"ds_write_b128 {vHPw}, {v(D0,4)}")
A("s_mov_b32 exec_hi, -1")
A("s_branch L_m2b")
A("L_m2:")
if args.ms == 'x':
    if 'nostat' not in args.exp:
        poll(xs_loads(rWS, t0, ' sc1'), [v(XS+i) for i in range(9)], site='z')
        stats_x()
    else: A(f"v_mov_b32 {S_}, 0"); A(f"v_mov_b32 {Q_}, 1.0")
else:
    poll(zs_load(vZSg, t1), [v(ZG), v(ZG+1)], site='z')
    A(f"v_mov_b32 {S_}, {v(ZG)}"); A(f"v_mov_b32 {Q_}, {v(ZG+1)}")
    stats_tail1(); stats_tail2()
A(f"ds_write_b64 {v(E+1)}, {v(TM,2)} offset:{L_STAT}")
A("L_m2b:")
stamp()
A("s_waitcnt lgkmcnt(0)")
A("s_barrier")
H = TM + 12
A(f"ds_read2_b32 {v(H,2)}, {vHPr} offset0:0 offset1:2")
A(f"ds_read2_b32 {v(H+2,2)}, {vHPr} offset0:128 offset1:130")
A(f"ds_read_b32 {v(H+4)}, {vHPr} offset:1024"); A(f"ds_read_b32 {v(H+5)}, {vHPr} offset:1032")
A(f"ds_read_b64 {v(TM,2)}, {v(E+1)} offset:{L_STAT}")
zero(D0)
A("s_waitcnt lgkmcnt(0)")
A(f"v_add_f32 {v(H)}, {v(H)}, {v(H+2)}"); A(f"v_add_f32 {v(H+1)}, {v(H+1)}, {v(H+3)}")
A(f"v_add_f32 {v(H)}, {v(H)}, {v(H+4)}"); A(f"v_add_f32 {v(H+1)}, {v(H+1)}, {v(H+5)}")
A(f"v_fma_f32 {v(H)}, -{S_}, {v(H+1)}, {v(H)}")
A(f"v_mul_f32 {v(H)}, {v(H)}, {Q_}")
rbf(v(H), v(H))
A(f"v_add_f32 {v(H)}, {v(H)}, {vB1}")
rbf(v(H), v(H))
A(f"v_mul_f32 {TT}, {v(H)}, {v(H)}")
A(f"v_fmac_f32 {v(E)}, {f32(c0*0.044715)}, {TT}")
A(f"v_mul_f32 {TT}, {v(E)}, {v(H)}")
A(f"v_exp_f32 {TT}, {TT}")
A(f"v_add_f32 {TT}, 1.0, {TT}")
A(f"v_rcp_f32 {TT}, {TT}")
A(f"v_mul_f32 {TT}, {TT}, {v(H)}")
A(f"v_cvt_pk_bf16_f32 {TT}, {TT}, 0")
A(f"ds_write2_b32 {vPTw}, {TT}, {TT} offset1:5")
for i in range(4): A(f"ds_read_b128 {v(AO+4*i,4)}, {vPTr} offset:{128*i}")
stamp()
tile_out(aW2, aW2t, vMst, False)
A("L_m4:")
stamp()
nst[0] = kr
A("L_next:")
A(f"s_cmp_lg_u32 {sL}, 0")
A("s_cbranch_scc1 L_fin")
if ST:
    A("s_waitcnt lgkmcnt(0)")
    for k in range(14): A(f"v_writelane_b32 {v(SV)}, s{72+2*k}, {1+k}")
    for k in range(14): A(f"s_mov_b64 s[{72+2*k}:{73+2*k}], 0")
A(f"s_mov_b32 {sL}, 1")
if args.dirty:
    A(f"s_cmp_ge_u32 {sJ}, 16"); A("s_cbranch_scc1 L_dd")
    A(f"s_lshl_b32 {t0}, s2, 2"); A(f"s_add_u32 {t0}, {t0}, {sW}"); A(f"s_lshl_b32 {t0}, {t0}, 14"); A(f"s_add_u32 {t0}, {t0}, 0x2000000")
    for i in range(args.dirty):
        A(f"buffer_store_dwordx4 {v(EM,4)}, {vL16}, {srd(rWS)}, {t0} offen"); A(f"s_add_u32 {t0}, {t0}, 1024")
    A("L_dd:")
A(f"s_add_u32 {sXoff}, {sGp}, {Z2_O}")
for r in (vSTst, vSTg, vSTm): A(f"v_add_u32 {r}, {ST1_O-ST_O}, {r}")
if args.qc:
    assert QP_O % 512 == 0
    for r in (vQPst, vQPg):
        A(f"v_bfe_u32 {TT}, {r}, 1, 8"); A(f"v_and_b32 {r}, 0xfffffe00, {r}"); A(f"v_add_u32 {r}, {r}, {TT}")
    A(f"v_add_u32 {vQPg2}, 4096, {vQPg}")
A("s_branch L_layer")
A("L_out:")
A(f"buffer_store_dword {TT}, {vZo}, {srd(rOUT)}, 0 offen")
A(f"s_mov_b32 {t0}, {EP_O}")
A("s_mov_b64 exec, 1")
A(f"buffer_store_dword {FN}, {vL16}, {srd(rWS)}, {t0} offen")
if ST: A(f"s_memrealtime s[{72+2*13}:{73+2*13}]")
A("L_fin:")
if args.wb:
    A(f"s_cmp_lg_u32 {sJ}, 18"); A("s_cbranch_scc1 L_wb")
    A(f"s_cmp_lg_u32 {sW}, 0"); A("s_cbranch_scc1 L_wb")
    A("buffer_wbl2 sc1")
    A("L_wb:")
if args.enc:
    j0, j1 = [int(x) for x in args.encj.split(',')]
    A("s_memrealtime s[66:67]")
    A("s_waitcnt lgkmcnt(0)")
    if args.enc <= 14: A(f"v_readlane_b32 {t0}, {v(SV)}, {args.enc}"); A("s_nop 3")
    else: A(f"s_mov_b32 {t0}, s{72+2*(args.enc-15)}")
    A(f"s_cmp_eq_u32 {t0}, 0"); A("s_cbranch_scc1 L_enc2")
    A(f"s_cmp_lt_u32 {sJ}, {j0}"); A("s_cbranch_scc1 L_enc2")
    A(f"s_cmp_ge_u32 {sJ}, {j1}"); A("s_cbranch_scc1 L_enc2")
    if args.encref == 0: A(f"s_mov_b32 {t1}, s100")
    elif args.encref <= 14: A(f"v_readlane_b32 {t1}, {v(SV)}, {args.encref}"); A("s_nop 3")
    else: A(f"s_mov_b32 {t1}, s{72+2*(args.encref-15)}")
    A(f"s_sub_u32 {t0}, {t0}, {t1}"); A(f"s_min_u32 {t0}, {t0}, 10000"); A(f"s_lshl_b32 {t0}, {t0}, {4 if args.encref else 3}"); A(f"s_add_u32 {t0}, {t0}, s66")
    A("L_enc:")
    A("s_sleep 8")
    A("s_memrealtime s[64:65]"); A("s_waitcnt lgkmcnt(0)")
    A(f"s_sub_u32 {t1}, s64, {t0}"); A(f"s_cmp_lt_i32 {t1}, 0"); A("s_cbranch_scc1 L_enc")
    A("L_enc2:")
if ST:
    A("s_mov_b64 exec, -1")
    A("s_waitcnt lgkmcnt(0)")
    A(f"v_writelane_b32 {v(SV)}, s100, 0")
    for k in range(14): A(f"v_writelane_b32 {v(SV)}, s{72+2*k}, {15+k}")
    A(f"s_lshl_b32 {t0}, s2, 2"); A(f"s_add_u32 {t0}, {t0}, {sW}"); A(f"s_lshl_b32 {t0}, {t0}, 8"); A(f"s_add_u32 {t0}, {t0}, {STAMP_O}")
    A(f"v_mov_b32 {v(SV+1)}, 0")
    A(f"v_lshlrev_b32 {v(SV+2)}, 3, v0")
    A("s_mov_b32 exec_hi, 0")
    A(f"buffer_store_dwordx2 {v(SV,2)}, {v(SV+2)}, {srd(rWS)}, {t0} offen")
A("L_end:")
A("s_endpgm")
if args.near:
    A("L_probe:")
    A(f"s_cmp_lt_u32 {sJ}, 20"); A("s_cbranch_scc1 L_next")
    A(f"s_cmp_lg_u32 {sL}, 0"); A("s_cbranch_scc1 L_next")
    A(f"s_sub_u32 {t0}, {sJ}, 20"); A(f"s_lshl_b32 {t0}, {t0}, 18"); A(f"s_lshl_b32 {t1}, {sX}, 10"); A(f"s_add_u32 {t0}, {t0}, {t1}"); A(f"s_add_u32 {t0}, {t0}, {XP_O + 3*65536}")
    A(f"s_add_u32 s4, s{rWS}, {t0}"); A(f"s_addc_u32 s5, s{rWS+1}, 0")
    A(f"s_mov_b32 {t2}, -1"); A(f"s_mov_b32 {t3}, -1"); A(f"s_mov_b32 {t4}, 3")
    A("L_pr1:")
    A("s_memtime s[6:7]"); A("s_waitcnt lgkmcnt(0)")
    A(f"s_load_dword {t5}, s[4:5], 0 glc"); A("s_waitcnt lgkmcnt(0)")
    A("s_memtime s[8:9]"); A("s_waitcnt lgkmcnt(0)")
    A(f"s_load_dword {t5}, s[4:5], 0x2000 glc"); A("s_waitcnt lgkmcnt(0)")
    A("s_memtime s[10:11]"); A("s_waitcnt lgkmcnt(0)")
    A(f"s_sub_u32 {t0}, s8, s6"); A(f"s_sub_u32 {t1}, s10, s8")
    A(f"s_min_u32 {t2}, {t2}, {t0}"); A(f"s_min_u32 {t3}, {t3}, {t1}")
    A(f"s_sub_u32 {t4}, {t4}, 1"); A(f"s_cmp_lg_u32 {t4}, 0"); A("s_cbranch_scc1 L_pr1")
    A(f"s_cmp_lt_u32 {t3}, {t2}"); A(f"s_cselect_b32 {t0}, 0x2000, 0")
    A(f"v_mov_b32 {TT}, 0"); A(f"v_mov_b32 {LS}, {t0}")
    A(f"ds_write_b32 {TT}, {LS} offset:{L_NEAR}")
    A("s_branch L_next")
A("L_af2:")
A(f"s_cmp_eq_u32 {sMode}, {FB_O}")
A("s_cbranch_scc1 L_g2")
A(f"s_add_u32 {sMode}, {sMode}, 1")
A(f"s_lshl_b32 {t2}, {sX}, 10"); A(f"s_add_u32 {t2}, {t2}, {FL_O}")
A(f"s_lshl_b32 {t4}, {sL}, 2"); A(f"s_add_u32 {t1}, {t4}, {t2}")
A(f"s_cmp_lt_u32 {sMode}, {1 if args.forcefb else 40}")
A("s_cbranch_scc1 L_af5")
A("s_mov_b64 exec, 1")
A(f"buffer_store_dword {FN}, {vL16}, {srd(rWS)}, {t1} offen sc1")
A("s_mov_b32 exec_lo, -1")
A(f"buffer_load_dwordx4 {v(FG,4)}, {vL16}, {srd(rWS)}, {t2} offen sc1")
A("s_mov_b32 exec_hi, -1")
A("s_waitcnt vmcnt(0)")
flags_diff()
A(f"v_and_b32 {TT}, 0x0fffffff, {CK}")
A(f"v_cmp_ne_u32 vcc, 0, {TT}")
A("s_cmp_lg_u32 vcc_lo, 0")
A("s_cbranch_scc1 L_af5")
A(f"v_cmp_ne_u32 vcc, 0, {CK}")
A("s_cmp_lg_u32 vcc_lo, 0")
if args.forcefb: A("s_cmp_eq_u32 0, 0")
A("s_cbranch_scc1 L_spread")
A("L_af5:")
A(f"s_sub_u32 {sTO}, {sTO}, 1")
A("s_cbranch_scc0 L_g4")
A(f"s_mov_b32 {sTO}, 0")
A(f"s_mov_b32 {sMode}, 0")
A("s_branch L_g2")
A("L_spread:")
A(f"s_mov_b32 {sMode}, {FB_O}")
A(f"s_add_u32 {sGp}, {sGf}, {FB_O}")
empty_share(sGp, ' sc1')
A("s_mov_b32 exec_hi, 0")
A(qp_store.format(so=sGp, fl=' sc1'))
A("s_waitcnt vmcnt(0)")
A("s_mov_b64 exec, 1")
A(f"buffer_store_dword {FN}, {vL16}, {srd(rWS)}, {t1} offen offset:512 sc1")
A("s_mov_b32 exec_lo, -1")
A("L_sp1:")
A("s_mov_b32 exec_hi, 0")
A(f"buffer_load_dwordx4 {v(FG,4)}, {vL16}, {srd(rWS)}, {t2} offen offset:512 sc1")
A("s_mov_b32 exec_hi, -1")
A("s_waitcnt vmcnt(0)")
flags_diff()
A(f"v_and_b32 {CK}, 0x0fffffff, {CK}")
A(f"v_cmp_ne_u32 vcc, 0, {CK}")
A("s_cmp_eq_u32 vcc_lo, 0")
A("s_cbranch_scc1 L_g4")
A("s_sleep 4")
A(timeout("L_sp1", "L_g4"))
for t in tail: A(t)
A.raw('L_codeend:')
A.raw('    s_endpgm')
A.raw('.section .rodata,"a"')
A.raw(".p2align 6")
A.raw(f".amdhsa_kernel {NAME}_kernel")
A.raw(f"  .amdhsa_next_free_vgpr {ACC+NACC}")
A.raw("  .amdhsa_next_free_sgpr 102")
A.raw(f"  .amdhsa_accum_offset {ACC}")
A.raw("  .amdhsa_group_segment_fixed_size 0")
A.raw("  .amdhsa_kernarg_size 104")
A.raw("  .amdhsa_user_sgpr_count 2")
A.raw("  .amdhsa_user_sgpr_kernarg_segment_ptr 1")
A.raw("  .amdhsa_system_sgpr_workgroup_id_x 1")
A.raw(".end_amdhsa_kernel")
txt = A.text()
if args.cyc: txt = txt.replace('s_memrealtime', 's_memtime')
sys.stdout.write(txt)
```

```python
import sys, argparse, struct
sys.path.insert(0, 'dev')
from asmlib import Asm
NAME = "interleave_layers__sliding_block_cached__dense_activation_gelu__decode"
ap = argparse.ArgumentParser()
ap.add_argument('--stamps', action='store_true')
ap.add_argument('--pro', action='store_true')
ap.add_argument('--cyc', action='store_true')
ap.add_argument('--xt', type=int, default=0)
ap.add_argument('--xd', type=int, default=11)
ap.add_argument('--enc', type=int, default=0)
ap.add_argument('--encref', type=int, default=0)
ap.add_argument('--encj', default='0,32')
ap.add_argument('--only', default='')
ap.add_argument('--pQ', type=int, default=4)
ap.add_argument('--code', type=int, default=1)
ap.add_argument('--early', default='0')
ap.add_argument('--mid', default='')
ap.add_argument('--w1dma', type=int, default=0)
ap.add_argument('--near', type=int, default=1)
ap.add_argument('--pd', default='s22,y22,o22')
ap.add_argument('--wb', type=int, default=0)
ap.add_argument('--dirty', type=int, default=0)
ap.add_argument('--pre', type=int, default=1)
ap.add_argument('--qd', type=int, default=0)
ap.add_argument('--zs', type=int, default=0)
ap.add_argument('--sd', type=int, default=0)
ap.add_argument('--yd', type=int, default=0)
ap.add_argument('--zd', type=int, default=0)
ap.add_argument('--qc', type=int, default=1)
ap.add_argument('--ms', default='x')
ap.add_argument('--exp', default='')
ap.add_argument('--tlb', type=int, default=0)
ap.add_argument('--vw', type=int, default=1)
ap.add_argument('--di', type=int, default=1)
ap.add_argument('--dz', type=int, default=1)
ap.add_argument('--dxx', type=int, default=1)
ap.add_argument('--nt', default='k,v,2')
ap.add_argument('--forcefb', action='store_true')
args = ap.parse_args()
def ntf(c): return ' nt' if c in args.nt.split(',') else ''
NT = ntf('s'); NTK = ntf('k'); NTV = ntf('v'); NTQ = ntf('q'); NTO = ntf('o'); NTM = ntf('m'); NT2 = ntf('2'); NTT = ntf('t')
ST = args.stamps
PD = {x[0]: (int(x[1]), int(x[2:])) for x in args.pd.split(',') if x}

def f32(x): return '0x%08x' % struct.unpack('<I', struct.pack('<f', x))[0]

CLR = 944
OP_O = 0
Y_O = OP_O + 65536
ST_O = Y_O + 41472
ST1_O = ST_O + 2048
Z1_O = ST1_O + 2048
Z2_O = Z1_O + 2304
Z3_O = Z2_O + 2304
AN_O = Z3_O + 2304
ZS_O = AN_O + 128
assert ZS_O + 1536 <= 128 * CLR and (128 * CLR) % 128 == 0
QP_O = 128 * CLR
FF_O = QP_O + 65536
GB = FF_O + 1024
FB_O = 8 * GB
XP_O = 6 << 20
assert XP_O >= 16 * GB
XPS = 16384
FL_O = XP_O + 12 * 262144
EP_O = FL_O + 8 * 1024
STAMP_O = 0x8000000
L_NEAR = 8176
L_X = 640
L_QT, L_STAT, L_OT, L_PT, L_HP, L_K, L_WQ, L_SIZE = 0, 512, 1024, 2560, 8192, 16384, 49152, 67584

rK, rV, rWQ, rWO, rW1, rW2, rWS, rX, rOUT, rT1, rT2 = 4, 8, 12, 16, 20, 24, 28, 32, 36, 44, 48
sTask, kv0, kv1, sFlag = 's40', 's41', 's42', 's43'
def srd(n): return f"s[{n}:{n+3}]"
sW, sX, sJ, sGf, sGp, sXoff, sTO, sMode, sL, sWo = [f"s{i}" for i in range(52, 62)]
t0, t1, t2, t3, t4, t5 = [f"s{i}" for i in range(62, 68)]
mLO8 = "s[68:69]"; mROW = "s[70:71]"
MXA = "0x00330033"
sRole = "s3"
(vL4, vL16, vIdxD, vIdxP, vIdxS, vXAq, vXAm, vQPst, vQPg, vL128, vQTw, vQTr, vPTw, vPTr, vSTst, vOPst, vSTg, vOPg, vOTw, vOTr,
 vYst, vMst, vHPw, vSTm, vRg, vSTATr, vXPst, vXPg, vZst, vXres, vB2, vB1, vCq, vZo, vXS1, vXS2, vWrow, vHPr, vOnes) = [f"v{i}" for i in range(1, 40)]
XA, D0, D1, DP, AO, SG, YG, XG, XS, FG, TM, EM, KA, SV, OG, QG = 40, 64, 68, 72, 76, 104, 120, 132, 136, 148, 152, 176, 180, 184, 188, 196
vQPg2, vZSst, vZSg = 'v92', 'v93', 'v94'
ZG = 96
ACC = 212
aWQ, aK, aV, aWO, aW1, aW2, aWOt, NACC = 0, 24, 56, 88, 120, 168, 200, 232
aW2t = aW1
def v(n, k=1): return f"v{n}" if k == 1 else f"v[{n}:{n+k-1}]"
def a(n, k=1): return f"a{n}" if k == 1 else f"a[{n}:{n+k-1}]"
CK = v(TM + 23); FN = v(TM + 22); vTag = v(TM + 21); DUM = v(TM + 20)
sEp, sXPo = kv0, kv1

A = Asm()
tail = []
nst = [0]
def pstamp(k):
    if args.pro: A(f"s_memrealtime s[{72+2*k}:{73+2*k}]")
def stamp():
    if ST and not args.pro:
        k = nst[0]; nst[0] += 1
        assert k < 13
        if ONLY is None or k in ONLY: A(f"s_memrealtime s[{72+2*k}:{73+2*k}]")
ONLY = set(int(x) for x in args.only.split(',')) if args.only else None
def lg(n): return 0 if (ST and ONLY is None) else n
def exec_xa(): return [f"s_mov_b32 exec_lo, {MXA}", f"s_mov_b32 exec_hi, {MXA}"]

def check_text(regs):
    regs = list(regs); o = []
    if len(regs) == 1: cur = regs[0]
    else:
        take = regs[:3]; regs = regs[3:]
        o.append(f"v_max3_u32 {CK}, {take[0]}, {take[1]}, {take[2]}" if len(take) == 3 else f"v_max_u32 {CK}, {take[0]}, {take[1]}")
        while regs:
            take = regs[:2]; regs = regs[2:]
            o.append(f"v_max3_u32 {CK}, {CK}, {take[0]}, {take[1]}" if len(take) == 2 else f"v_max_u32 {CK}, {CK}, {take[0]}")
        cur = CK
    o.append(f"v_cmp_eq_u32 vcc, -1, {cur}")
    return o
def nvm(loads): return sum(1 for l in loads if l.startswith('buffer_'))
def timeout(again, ok): return f"s_sub_u32 {sTO}, {sTO}, 1\ns_cbranch_scc0 {again}\ns_mov_b32 {sTO}, 0\ns_waitcnt vmcnt(0) lgkmcnt(0)\ns_branch {ok}"

def poll(loads, regs, primed=False, extra_wait="", chk=None, site=''):
    lp = A.newlabel('L_poll'); to = A.newlabel('L_to'); ok = A.newlabel('L_ok')
    depth, gap = PD.get(site, (1, 0))
    ck = chk or check_text(regs)
    pre = []
    for d in range(depth - 1):
        pre += loads + ([f"s_sleep {gap}"] if gap else [])
    loop = [f"{lp}:"] + loads + [f"s_sub_u32 {sTO}, {sTO}, 1", f"s_cbranch_scc1 {to}", f"s_waitcnt vmcnt({(depth-1)*nvm(loads)}){extra_wait}"] + ck + [f"s_cbranch_vccnz {lp}"]
    tmo = f"{to}:\ns_mov_b32 {sTO}, 0\ns_waitcnt vmcnt(0) lgkmcnt(0)\ns_branch {ok}"
    if primed:
        st = A.newlabel('L_more')
        A(f"s_waitcnt vmcnt(0){extra_wait}")
        for l in ck: A(l)
        A(f"s_cbranch_vccnz {st}")
        A(f"{ok}:")
        tail.append(f"{st}:\n" + "\n".join(pre + loop) + f"\ns_branch {ok}\n" + tmo)
        return
    for l in pre + loop: A(l)
    A(f"{ok}:")
    tail.append(tmo)

def sm(d, av, br, idx): A(f"v_smfmac_f32_16x16x64_bf16 {v(d,4)}, {v(av,4)}, {a(br,8)}, {idx}")
def xa_loads(rr, voff, so, n, fl, short_last=False):
    o = exec_xa()
    for i in range(n):
        if short_last and i == n - 1: o.append("s_mov_b64 exec, 0x33")
        o.append(f"buffer_load_dwordx4 {v(XA+4*i,4)}, {voff}, {srd(rr)}, {so} offen offset:{64*i}{fl}")
    return o + ["s_mov_b64 exec, -1"]
def poll_proj(voff, so, n, wbase, short_last=False, extra=[]):
    loads = extra[:-1] + xa_loads(rWS, voff, so, n, ' sc1', short_last)
    lds = [l for l in loads if l.startswith('buffer_')]
    lp = A.newlabel('L_poll'); rt = A.newlabel('L_retry'); ok = A.newlabel('L_ok'); gen = A.newlabel('L_nan')
    depth, gap = PD.get('p', (1, 0))
    for d in range(depth):
        if d: A(f"s_sleep {gap}")
        for l in loads: A(l)
    A(f"{lp}:")
    A(f"s_waitcnt vmcnt({(depth-1)*n})")
    for i in range(n): sm(D0, XA+4*i, wbase+8*i, vIdxD)
    for l in loads: A(l)
    A(f"v_cmp_u_f32 vcc, {v(D0)}, {v(D0+1)}")
    A(f"s_cbranch_vccnz {rt}")
    A(f"{ok}:")
    z = "\n".join(f"v_mov_b32 {v(D0+i)}, 0" for i in range(4))
    mm = "\n".join(f"v_smfmac_f32_16x16x64_bf16 {v(D0,4)}, {v(XA+4*i,4)}, {a(wbase+8*i,8)}, {vIdxD}" for i in range(n))
    if args.zs: z += f"\ns_sleep {args.zs}"
    tail.append(f"{rt}:\n{z}\ns_sub_u32 {sTO}, {sTO}, 1\ns_cbranch_scc1 {gen}\ns_and_b32 {t5}, {sTO}, 15\ns_cbranch_scc1 {lp}\n" +
                "\n".join(check_text([v(XA+i) for i in range(4*n)])) + f"\ns_cbranch_vccnz {lp}\n{gen}:\ns_max_i32 {sTO}, {sTO}, 0\n{mm}\ns_nop 7\ns_branch {ok}")

def pub(*fmts):
    for f in fmts: A(f.format(so=sGf, fl=''))
    sl = A.newlabel('L_slow'); bk = A.newlabel('L_back')
    A(f"s_cmp_lg_u32 {sMode}, 0")
    A(f"s_cbranch_scc1 {sl}")
    A(f"{bk}:")
    tail.append(f"{sl}:\n" + "\n".join(f.format(so=sGp, fl=' sc1') for f in fmts) + f"\ns_nop 1\ns_branch {bk}")

def rbf(dst, src):
    A(f"v_cvt_pk_bf16_f32 {dst}, {src}, {src}")
    A(f"v_and_b32 {dst}, 0xffff0000, {dst}")
def treduce(r):
    A(f"v_permlane32_swap_b32 {v(r)}, {v(r+2)}")
    A(f"v_permlane32_swap_b32 {v(r+1)}, {v(r+3)}")
    A(f"v_add_f32 {v(r)}, {v(r)}, {v(r+2)}")
    A(f"v_add_f32 {v(r+1)}, {v(r+1)}, {v(r+3)}")
    A(f"v_permlane16_swap_b32 {v(r)}, {v(r+1)}")
    A(f"v_add_f32 {v(r)}, {v(r)}, {v(r+1)}")
    A(f"v_add_f32_dpp {v(r)}, {v(r)}, {v(r)} row_ror:8 row_mask:0xf bank_mask:0xf")
S_, Q_ = v(TM), v(TM+1)
def stats_tail1():
    S, Q = S_, Q_
    A(f"v_permlane16_swap_b32 {S}, {Q}")
    A(f"v_add_f32 {S}, {S}, {Q}")
    for k in (8, 4, 2, 1):
        A(f"v_add_f32_dpp {S}, {S}, {S} row_ror:{k} row_mask:0xf bank_mask:0xf")
    A(f"v_mul_f32 {Q}, {f32(1/576)}, {S}")
    A(f"v_mul_f32 {S}, {f32(1/576)}, {S}")
def stats_tail2():
    S, Q = S_, Q_
    A(f"v_permlane16_swap_b32 {S}, {Q}")
    A(f"v_fma_f32 {Q}, -{S}, {S}, {Q}")
    A(f"v_max_f32 {Q}, 0, {Q}")
    A(f"v_cvt_pk_bf16_f32 {Q}, {S}, {Q}")
    A(f"v_lshlrev_b32 {S}, 16, {Q}")
    A(f"v_and_b32 {Q}, 0xffff0000, {Q}")
    A(f"v_add_f32 {Q}, {f32(1e-5)}, {Q}")
    rbf(Q, Q)
    A(f"v_sqrt_f32 {Q}, {Q}")
    rbf(Q, Q)
    A(f"v_rcp_f32 {Q}, {Q}")
def stats_x():
    A(f"v_mov_b32 {S_}, 0"); A(f"v_mov_b32 {Q_}, 0")
    for i in range(9):
        A(f"v_dot2c_f32_bf16 {S_}, {v(XS+i)}, {vOnes}")
        A(f"v_dot2c_f32_bf16 {Q_}, {v(XS+i)}, {v(XS+i)}")
    stats_tail1(); stats_tail2()
def zs_load(voff, so):
    return ["s_mov_b32 exec_lo, 0x3ffff", "s_mov_b32 exec_hi, 0x3ffff", f"buffer_load_dwordx2 {v(ZG,2)}, {voff}, {srd(rWS)}, {so} offen sc1", "s_mov_b64 exec, -1"]
def zero(r, n=4):
    for i in range(n): A(f"v_mov_b32 {v(r+i)}, 0")
def xs_loads(rr, so, fl):
    return [f"buffer_load_dwordx4 {v(XS,4)}, {vXS1}, {srd(rr)}, {so} offen{fl}",
            f"buffer_load_dwordx4 {v(XS+4,4)}, {vXS1}, {srd(rr)}, {so} offen offset:512{fl}",
            f"buffer_load_dword {v(XS+8)}, {vXS2}, {srd(rr)}, {so} offen offset:1024{fl}"]

A.raw(f"; @launch grid=(256,1,1) block=(256,1,1) lds={L_SIZE}")
A.raw('.amdgcn_target "amdgcn-amd-amdhsa--gfx950"')
A.raw(".text")
A.raw(f".globl {NAME}_kernel")
A.raw(".p2align 8")
A.raw(f".type {NAME}_kernel,@function")
A.raw(f"{NAME}_kernel:")
if ST:
    A("s_memrealtime s[100:101]")
    for k in range(14): A(f"s_mov_b64 s[{72+2*k}:{73+2*k}], 0")
A("s_cmp_ge_u32 s2, 256")
A("s_cbranch_scc1 L_end")
for r, off in ((rWS, 96), (rX, 0), (rWQ, 24), (rK, 8), (rV, 16), (rWO, 32)) + (((rW1, 48), (rW2, 64)) if args.tlb > 1 else ()):
    A(f"s_load_dwordx2 s[{r}:{r+1}], s[0:1], {off}")
if args.code:
    A(f"s_cmp_ge_u32 s2, {8*args.code}"); A("s_cbranch_scc1 L_nc")
    A("s_getpc_b64 s[66:67]")
    A("L_pc:")
    A(f"v_lshlrev_b32 {v(TM+8)}, 7, v0")
    A(f"v_cmp_gt_u32 vcc, L_codeend-L_pc, {v(TM+8)}")
    A("s_and_saveexec_b64 s[64:65], vcc")
    A("s_cbranch_execz L_nc2")
    A(f"global_load_dword {DUM}, {v(TM+8)}, s[66:67]")
    A("L_nc2:")
    A("s_mov_b64 exec, s[64:65]")
    A("L_nc:")
A(f"v_lshrrev_b32 {v(TM)}, 6, v0")
A(f"v_and_b32 v0, 63, v0")
A(f"v_readfirstlane_b32 {sW}, {v(TM)}")
for r, n in ((rX, 2304), (rWQ, 4718592), (rK, 33554432), (rV, 33554432), (rWS, 268435456), (rWO, 4718592)):
    A(f"s_mov_b32 s{r+2}, {n}"); A(f"s_mov_b32 s{r+3}, 0x20000")
A(f"s_and_b32 {sX}, s2, 7")
A(f"s_lshr_b32 {sJ}, s2, 3")
A("s_mov_b32 s68, 0x00ff00ff"); A("s_mov_b32 s69, 0x00ff00ff")
G, C, B2 = v(TM+3), v(TM+4), v(TM+5)
A(f"v_lshrrev_b32 {G}, 4, v0")
A(f"v_and_b32 {C}, 15, v0")
A(f"v_lshlrev_b32 {vL16}, 4, v0")
A(f"v_lshlrev_b32 {vL128}, 7, v0")
for i in range(4): A(f"v_mov_b32 {v(EM+i)}, -1")
A(f"s_lshr_b32 {t0}, {sJ}, 4"); A(f"s_lshl_b32 {t3}, {sX}, 1"); A(f"s_add_u32 {t0}, {t0}, {t3}")
A(f"s_bfe_u32 {t1}, {sJ}, 0x10003")
A(f"s_and_b32 {t2}, {sJ}, 7")
A(f"s_mul_i32 {sGf}, {sX}, {GB}")
A(f"v_bfe_u32 {B2}, v0, 2, 1")
A(f"v_mul_u32_u24 {vXAm}, 1152, {B2}")
A(f"v_lshl_add_u32 {vXAm}, {G}, 4, {vXAm}")
A(f"s_mul_i32 {t4}, {t2}, 144")
A(f"v_add_u32 {vXAq}, {t4}, {vXAm}")
for i in range(12): A(f"v_mov_b32 {v(XA+i)}, 0x3f803f80")
A(f"v_lshlrev_b32 {v(TM+6)}, 13, {G}")
A(f"v_lshl_add_u32 {v(TM+6)}, {C}, 4, {v(TM+6)}")
A(f"s_mul_i32 {t3}, {t2}, 18"); A(f"s_add_u32 {t3}, {t3}, {sW}"); A(f"s_lshl_b32 {t3}, {t3}, 15")
A(f"s_lshl_b32 {t4}, {t0}, 9"); A(f"s_add_u32 {t3}, {t3}, {t4}"); A(f"s_lshl_b32 {t4}, {t1}, 8"); A(f"s_add_u32 {t3}, {t3}, {t4}")
A(f"s_lshl_b32 {t4}, {sW}, 10"); A(f"s_add_u32 m0, {t4}, {L_WQ}")
A(f"s_lshl_b32 {kv0}, {t1}, 24"); A(f"s_lshl_b32 {t4}, {t0}, 20"); A(f"s_add_u32 {kv0}, {kv0}, {t4}")
A(f"s_lshl_b32 {t4}, {t2}, 15"); A(f"s_add_u32 {kv0}, {kv0}, {t4}")
A(f"s_lshl_b32 {t4}, {sW}, 13"); A(f"s_add_u32 {kv0}, {kv0}, {t4}")
A(f"s_add_u32 {kv0}, {kv0}, {3072*256}"); A(f"s_add_u32 {kv1}, {kv0}, 4096")
A(f"v_xor_b32 {v(TM+7)}, {C}, {G}")
A(f"v_lshlrev_b32 {v(TM+7)}, 4, {v(TM+7)}")
A(f"v_lshl_add_u32 {v(KA)}, {G}, 8, {v(TM+7)}")
for i in range(1, 4): A(f"v_xor_b32 {v(KA+i)}, {64*i}, {v(KA)}")
A(f"s_lshl_b32 {sL}, {sJ}, 2"); A(f"s_add_u32 {sL}, {sL}, {sW}")
A(f"s_lshl_b32 {t4}, {sL}, 9"); A(f"s_add_u32 {t4}, {t4}, {QP_O}")
A(f"v_add_u32 {vQPst}, {t4}, {vL16}")
A(f"s_mov_b32 {t5}, {EP_O}")
A("s_waitcnt lgkmcnt(0)")
pstamp(0)
if args.tlb:
    A(f"s_load_dword s36, s[{rK}:{rK+1}], {kv0}")
    A(f"s_load_dword s37, s[{rV}:{rV+1}], {kv0}")
    A(f"s_load_dword s44, s[{rWQ}:{rWQ+1}], {t3}")
    A(f"s_load_dword s45, s[{rWS}:{rWS+1}], {sGf}")
    if args.tlb > 1:
        A(f"s_mul_i32 {sTO}, {sX}, {512*1152}"); A(f"s_mul_i32 {sMode}, {sW}, {192*9216-64}"); A(f"s_mul_i32 {sGp}, {sX}, {576*1152}")
        A(f"s_load_dword s48, s[{rWO}:{rWO+1}], {sTO}")
        A(f"s_load_dword s49, s[{rW1}:{rW1+1}], {sMode}")
        A(f"s_load_dword {sTask}, s[{rW2}:{rW2+1}], {sGp}")
A("s_mov_b64 exec, 1")
A(f"buffer_load_dword {FN}, {vL16}, {srd(rWS)}, {t5} offen{NT}")
A("s_mov_b64 exec, -1")
def empty_share(base, fl):
    A(f"s_mul_i32 {t5}, {sL}, {CLR}"); A(f"s_add_u32 {t5}, {t5}, {base}")
    A(f"s_mov_b32 exec_hi, {(1 << (CLR//16-32)) - 1}")
    A(f"buffer_store_dwordx4 {v(EM,4)}, {vL16}, {srd(rWS)}, {t5} offen{fl}")
    A("s_mov_b32 exec_hi, -1")
A(f"s_cmp_lg_u32 {sW}, 3")
A("s_cbranch_scc1 L_pro2")
A(f"v_lshrrev_b32 {v(TM+8)}, 5, v0"); A(f"v_and_b32 {v(TM+9)}, 31, v0")
A(f"v_mul_u32_u24 {vXS1}, 1152, {v(TM+8)}"); A(f"v_lshl_add_u32 {vXS2}, {v(TM+9)}, 2, {vXS1}"); A(f"v_lshl_add_u32 {v(TM+10)}, {v(TM+9)}, 3, {vXS1}"); A(f"v_lshl_add_u32 {vXS1}, {v(TM+9)}, 4, {vXS1}")
for l in xs_loads(rX, 0, NT): A(l)
A(f"s_mul_i32 {t5}, {t2}, 144")
A(f"buffer_load_dwordx2 {v(XG,2)}, {v(TM+10)}, {srd(rX)}, {t5} offen{NT}")
A("L_pro2:")
for n in range(5):
    if n == 4:
        A(f"s_cmp_ge_u32 {sW}, 2"); A("s_cbranch_scc1 L_pro1")
    A(f"buffer_load_dwordx4 {v(TM+6)}, {srd(rWQ)}, {t3} offen{NTQ} lds")
    if n < 4: A(f"s_add_u32 {t3}, {t3}, {16*8192}"); A("s_add_u32 m0, m0, 4096")
A("L_pro1:")
empty_share(sGf, '')
A(f"s_lshl_b32 {t4}, {sW}, 13"); A(f"s_add_u32 m0, {t4}, {L_K}")
for i in range(8):
    if i == 4: A(f"s_add_u32 m0, m0, 4096")
    A(f"buffer_load_dwordx4 {v(KA+i%4)}, {srd(rK)}, {kv0 if i < 4 else kv1} offen offset:{1024*(i%4)}{NTK} lds")

def constants():
    A(f"v_mul_u32_u24 {vWrow}, 1152, {G}")
    A(f"v_lshl_add_u32 {vWrow}, {C}, 4, {vWrow}")
    A(f"s_cmp_lt_u32 {sJ}, 18"); A(f"s_cselect_b32 {sRole}, 1, 0")
    A(f"s_cmp_ge_u32 {sJ}, 20"); A(f"s_cselect_b32 {t4}, 2, 0"); A(f"s_cmp_lt_u32 {sW}, 3"); A(f"s_cselect_b32 {t4}, {t4}, 0"); A(f"s_or_b32 {sRole}, {sRole}, {t4}")
    A(f"s_sub_u32 {sTask}, {sJ}, 20"); A(f"s_mul_i32 {sTask}, {sTask}, 3"); A(f"s_add_u32 {sTask}, {sTask}, {sW}"); A(f"s_min_u32 {sTask}, {sTask}, 35")
    A(f"s_lshl_b32 {t3}, {sX}, 4"); A(f"s_and_b32 {t4}, {sJ}, 15"); A(f"s_add_u32 {sWo}, {t3}, {t4}"); A(f"s_mul_i32 {sWo}, {sWo}, {32*1152}")
    A(f"s_lshl_b32 {t4}, {sW}, 8"); A(f"s_add_u32 {sWo}, {sWo}, {t4}")
    for r, n in ((rW1, 5308416), (rW2, 5308416), (rOUT, 2304), (rT1, 9216), (rT2, 1152)):
        A(f"s_mov_b32 s{r+2}, {n}"); A(f"s_mov_b32 s{r+3}, 0x20000")
    A("s_mov_b32 s70, 0xffff0000"); A("s_mov_b32 s71, 0xffff0000")
    A(f"v_lshlrev_b32 {vL4}, 2, v0")
    for i in range(12, 24): A(f"v_mov_b32 {v(XA+i)}, 0x3f803f80")
    A(f"s_lshl_b32 {t4}, {sW}, 13"); A(f"s_add_u32 {t4}, {t4}, {L_K}")
    A(f"v_lshl_add_u32 {v(KA)}, {C}, 8, {v(TM+7)}"); A(f"v_add_u32 {v(KA)}, {t4}, {v(KA)}")
    for i in range(1, 4): A(f"v_xor_b32 {v(KA+i)}, {64*i}, {v(KA)}")
    T_ = [v(TM+8+i) for i in range(10)]
    A(f"v_and_b32 {T_[0]}, 1, v0")
    A(f"v_mul_u32_u24 {vIdxP}, 0xaaaa, {T_[0]}"); A(f"v_add_u32 {vIdxP}, 0x4444, {vIdxP}")
    A(f"v_and_b32 {T_[1]}, 3, v0")
    A(f"v_mul_u32_u24 {vIdxS}, 0x5555, {T_[1]}")
    A(f"v_bfe_u32 {T_[2]}, v0, 4, 1")
    A(f"v_bfe_u32 {T_[3]}, v0, 2, 2")
    A(f"v_bfe_u32 {T_[4]}, v0, 3, 1")
    A(f"v_lshrrev_b32 {T_[5]}, 5, v0")
    A(f"v_and_b32 {T_[8]}, 7, v0")
    A(f"v_and_b32 {T_[9]}, 31, v0")
    A(f"s_lshr_b32 {t3}, {sJ}, 4")
    A(f"s_lshr_b32 {t5}, {sJ}, 3")
    A(f"s_lshl_b32 {t3}, {t3}, 1"); A(f"s_lshr_b32 {t4}, {sW}, 1"); A(f"s_add_u32 {t3}, {t3}, {t4}"); A(f"s_lshl_b32 {t3}, {t3}, 14")
    A(f"s_and_b32 {t4}, {sW}, 1"); A(f"s_lshl_b32 {t4}, {t4}, 10"); A(f"s_add_u32 {t3}, {t3}, {t4}")
    A(f"s_lshl_b32 {t4}, {t1}, 8"); A(f"s_add_u32 {t3}, {t3}, {t4}"); A(f"s_add_u32 {t3}, {t3}, {QP_O}")
    A(f"v_lshl_add_u32 {vQPg}, {T_[5]}, 4, {T_[2]}"); A(f"v_lshlrev_b32 {vQPg}, 9, {vQPg}"); A(f"v_lshl_add_u32 {vQPg}, {C}, 4, {vQPg}"); A(f"v_add_u32 {vQPg}, {t3}, {vQPg}")
    A(f"v_add_u32 {vQPg2}, 4096, {vQPg}")
    A(f"s_and_b32 {t3}, {sW}, 1"); A(f"s_lshl_b32 {t3}, {t3}, 8"); A(f"s_lshr_b32 {t4}, {sW}, 1"); A(f"s_lshl_b32 {t4}, {t4}, 7"); A(f"s_add_u32 {t3}, {t3}, {t4}")
    A(f"v_bfe_u32 {T_[6]}, v0, 3, 2"); A(f"v_bfe_u32 {T_[7]}, v0, 1, 2")
    A(f"v_lshlrev_b32 {vQTw}, 5, {T_[6]}"); A(f"v_lshl_add_u32 {vQTw}, {T_[0]}, 4, {vQTw}"); A(f"v_lshl_add_u32 {vQTw}, {T_[7]}, 2, {vQTw}")
    A(f"v_lshl_add_u32 {vQTw}, {T_[5]}, 1, {vQTw}"); A(f"v_add_u32 {vQTw}, {t3}, {vQTw}")
    A(f"v_lshlrev_b32 {vQTr}, 5, {G}"); A(f"v_lshl_add_u32 {vQTr}, {T_[4]}, 7, {vQTr}"); A(f"v_lshl_add_u32 {vQTr}, {T_[0]}, 4, {vQTr}")
    A(f"v_mul_u32_u24 {vOTr}, 640, {T_[4]}"); A(f"v_lshl_add_u32 {vOTr}, {G}, 5, {vOTr}"); A(f"v_lshl_add_u32 {vOTr}, {B2}, 4, {vOTr}")
    A(f"s_mul_i32 {t3}, {sW}, 1280"); A(f"s_add_u32 {t3}, {t3}, {L_PT}")
    A(f"v_add_u32 {vPTr}, {t3}, {vOTr}"); A(f"v_add_u32 {vOTr}, {L_OT}, {vOTr}")
    A(f"v_bfe_u32 {T_[6]}, v0, 1, 4")
    A(f"v_mul_u32_u24 {vPTw}, 640, {T_[5]}"); A(f"v_lshl_add_u32 {vPTw}, {T_[6]}, 5, {vPTw}"); A(f"v_lshl_add_u32 {vPTw}, {T_[0]}, 3, {vPTw}"); A(f"v_add_u32 {vPTw}, {t3}, {vPTw}")
    A(f"v_lshrrev_b32 {vHPr}, 1, v0"); A(f"v_lshlrev_b32 {vHPr}, 4, {vHPr}"); A(f"v_lshl_add_u32 {vHPr}, {T_[0]}, 2, {vHPr}"); A(f"v_add_u32 {vHPr}, {L_HP}, {vHPr}")
    A(f"s_lshl_b32 {t3}, {sW}, 9"); A(f"s_add_u32 {t3}, {t3}, {L_HP}"); A(f"v_add_u32 {vHPw}, {t3}, {vL16}")
    A(f"s_lshl_b32 {t3}, {t5}, 9"); A(f"s_add_u32 {t3}, {t3}, {ST_O}")
    A(f"s_lshl_b32 {t4}, {t2}, 2"); A(f"s_add_u32 {t4}, {t4}, {sW}"); A(f"s_lshl_b32 {t4}, {t4}, 2"); A(f"s_add_u32 {t4}, {t4}, {t3}")
    A(f"v_lshlrev_b32 {vSTst}, 8, {T_[5]}"); A(f"v_lshl_add_u32 {vSTst}, {T_[0]}, 7, {vSTst}"); A(f"v_add_u32 {vSTst}, {t4}, {vSTst}")
    A(f"s_lshl_b32 {t3}, {t1}, 1"); A(f"s_lshr_b32 {t4}, {sW}, 1"); A(f"s_add_u32 {t3}, {t3}, {t4}"); A(f"s_lshl_b32 {t3}, {t3}, 9"); A(f"s_add_u32 {t3}, {t3}, {ST_O}")
    A(f"s_lshr_b32 {t4}, {t2}, 2"); A(f"s_lshl_b32 {t4}, {t4}, 8"); A(f"s_add_u32 {t3}, {t3}, {t4}")
    A(f"v_lshrrev_b32 {T_[7]}, 3, v0")
    A(f"v_lshl_add_u32 {vSTg}, {T_[7]}, 4, {t3}")
    A(f"s_and_b32 {t4}, {sW}, 1"); A(f"s_lshl_b32 {t4}, {t4}, 3"); A(f"v_add_u32 {vSTm}, {t4}, {vSTg}")
    A(f"s_lshr_b32 {t3}, {sJ}, 4"); A(f"s_lshl_b32 {t3}, {t3}, 15"); A(f"s_lshl_b32 {t4}, {t1}, 11"); A(f"s_add_u32 {t3}, {t3}, {t4}")
    A(f"s_lshl_b32 {t4}, {sW}, 9"); A(f"s_add_u32 {t3}, {t3}, {t4}"); A(f"s_lshl_b32 {t4}, {t2}, 6"); A(f"s_add_u32 {t3}, {t3}, {t4}")
    A(f"v_lshlrev_b32 {T_[6]}, 4, {T_[1]}"); A(f"v_lshl_add_u32 {T_[6]}, {T_[2]}, 3, {T_[6]}")
    A(f"v_lshl_add_u32 {vOPst}, {T_[5]}, 2, {T_[3]}"); A(f"v_lshl_add_u32 {vOPst}, {vOPst}, 12, {T_[6]}"); A(f"v_add_u32 {vOPst}, {t3}, {vOPst}")
    A(f"s_and_b32 {t3}, {sJ}, 15"); A(f"s_lshl_b32 {t3}, {t3}, 12"); A(f"s_lshl_b32 {t4}, {sW}, 10"); A(f"s_add_u32 {t3}, {t3}, {t4}"); A(f"v_lshl_add_u32 {vOPg}, v0, 3, {t3}")
    A(f"s_lshr_b32 {t3}, {sW}, 1"); A(f"s_mul_i32 {t3}, {t3}, 640"); A(f"s_and_b32 {t4}, {sW}, 1"); A(f"s_lshl_b32 {t4}, {t4}, 1"); A(f"s_add_u32 {t3}, {t3}, {t4}"); A(f"s_add_u32 {t3}, {t3}, {L_OT}")
    A(f"v_mul_u32_u24 {vOTw}, 20, {T_[4]}"); A(f"v_lshl_add_u32 {vOTw}, {T_[8]}, 6, {vOTw}"); A(f"v_lshl_add_u32 {vOTw}, {T_[5]}, 5, {vOTw}")
    A(f"v_lshl_add_u32 {vOTw}, {T_[2]}, 3, {vOTw}"); A(f"v_add_u32 {vOTw}, {t3}, {vOTw}")
    A(f"s_mul_i32 {t3}, {sW}, {4*1152}"); A(f"s_lshl_b32 {t4}, {sJ}, 6"); A(f"s_add_u32 {t3}, {t3}, {t4}"); A(f"s_add_u32 {t3}, {t3}, {Y_O}")
    A(f"v_mul_u32_u24 {vMst}, 18, {T_[5]}"); A(f"v_add_u32 {vMst}, {vMst}, {T_[3]}"); A(f"v_mul_u32_u24 {vMst}, 1152, {vMst}")
    A(f"v_add3_u32 {vMst}, {vMst}, {T_[6]}, {t3}")
    A(f"v_subrev_u32 {vYst}, 1024, {vMst}")
    A(f"v_lshlrev_b32 {vZSg}, 3, v0")
    A(f"s_lshl_b32 {t3}, {t1}, 8"); A(f"s_add_u32 {t3}, {t3}, {ZS_O+512}"); A(f"v_lshl_add_u32 {vSTATr}, {T_[9]}, 3, {t3}")
    zero(ZG, 2)
    A(f"v_mul_u32_u24 {vXS1}, 1152, {T_[5]}"); A(f"v_lshl_add_u32 {vXS2}, {T_[9]}, 2, {vXS1}"); A(f"v_lshl_add_u32 {vXS1}, {T_[9]}, 4, {vXS1}")
    A(f"s_mul_i32 {t4}, {sW}, 384"); A(f"v_add_u32 {vXAm}, {t4}, {vXAm}")
    A(f"s_mul_i32 {t4}, {sX}, 18"); A(f"s_add_u32 {t4}, {t4}, {sJ}"); A(f"s_lshl_b32 {t5}, {t4}, 6")
    A(f"v_lshl_add_u32 {vB1}, {T_[9]}, 1, {t5}")
    A(f"s_mul_i32 {t4}, {sTask}, 1152"); A(f"s_add_u32 {t4}, {t4}, {Y_O}"); A(f"v_lshl_add_u32 {vRg}, v0, 3, {t4}")
    A(f"s_sub_u32 {t4}, {sL}, 80"); A(f"s_and_b32 {t4}, {t4}, 63"); A(f"s_lshl_b32 {t4}, {t4}, 16")
    A(f"s_lshl_b32 {t5}, {sX}, 10"); A(f"s_add_u32 {t5}, {t5}, {t4}"); A(f"v_lshl_add_u32 {vXPg}, v0, 3, {t5}")
    A(f"s_lshl_b32 {t5}, {sX}, 7"); A(f"s_add_u32 {t4}, {t4}, {t5}"); A(f"v_lshl_add_u32 {vXPst}, {T_[8]}, 4, {t4}")
    A(f"v_lshrrev_b32 {T_[7]}, 3, v0"); A(f"v_lshl_add_u32 {vXPst}, {T_[7]}, 10, {vXPst}")
    A(f"v_lshl_add_u32 {T_[7]}, {C}, 1, {T_[5]}")
    A(f"s_lshl_b32 {t4}, {sTask}, 6"); A(f"v_lshl_add_u32 {vZo}, {T_[7]}, 1, {t4}")
    A(f"v_add_u32 {vZst}, {Z1_O}, {vZo}")
    A(f"s_and_b32 {t5}, {sTask}, 7"); A(f"s_cmp_eq_u32 {t5}, {sX}"); A(f"s_cselect_b32 {t5}, 4, 0"); A(f"s_or_b32 {sRole}, {sRole}, {t5}")
    A(f"s_cmp_ge_u32 {sTask}, 18"); A(f"s_cselect_b32 {t5}, 1152, 0")
    A(f"v_subrev_u32 {vB2}, {t5}, {vZo}")
    A(f"s_cselect_b32 {t5}, {256-18*8}, 0"); A(f"s_lshl_b32 {t4}, {sTask}, 3"); A(f"s_add_u32 {t4}, {t4}, {t5}"); A(f"s_add_u32 {t4}, {t4}, {ZS_O}")
    A(f"v_lshl_add_u32 {vZSst}, {T_[2]}, 2, {t4}")

def constants1():
    A(f"v_and_b32 {v(TM+8)}, 1, v0")
    A(f"v_mul_u32_u24 {vIdxD}, 0x5555, {v(TM+8)}"); A(f"v_add_u32 {vIdxD}, 0x8888, {vIdxD}")
    A(f"v_mov_b32 {vOnes}, 0x3f803f80")
    A(f"s_lshl_b32 {t3}, {sW}, 6"); A(f"s_add_u32 {t3}, {t3}, {L_WQ}")
    A(f"v_lshlrev_b32 {vCq}, 10, {G}"); A(f"v_lshl_add_u32 {vCq}, {C}, 2, {vCq}"); A(f"v_add_u32 {vCq}, {t3}, {vCq}")
    for i in range(16, 24): A(f"v_accvgpr_write_b32 {a(aWQ+i)}, 0")
    zero(D0, 8)
    A(f"s_cmp_lg_u32 {sW}, 3")
    A("s_cbranch_scc1 L_c1")
    A(f"s_waitcnt vmcnt({4+1+8})")
    stats_x()
    for i in range(2):
        lo, hi = v(TM+8), v(TM+9)
        A(f"v_lshlrev_b32 {lo}, 16, {v(XG+i)}"); A(f"v_and_b32 {hi}, 0xffff0000, {v(XG+i)}")
        A(f"v_sub_f32 {lo}, {lo}, {S_}"); A(f"v_sub_f32 {hi}, {hi}, {S_}")
        A(f"v_cvt_pk_bf16_f32 {v(XG+i)}, {lo}, {hi}")
        A(f"v_lshlrev_b32 {lo}, 16, {v(XG+i)}"); A(f"v_and_b32 {hi}, 0xffff0000, {v(XG+i)}")
        A(f"v_mul_f32 {lo}, {lo}, {Q_}"); A(f"v_mul_f32 {hi}, {hi}, {Q_}")
        A(f"v_cvt_pk_bf16_f32 {v(XG+i)}, {lo}, {hi}")
    A(f"v_lshrrev_b32 {v(TM+8)}, 5, v0"); A(f"v_mul_u32_u24 {v(TM+8)}, 144, {v(TM+8)}"); A(f"v_and_b32 {v(TM+9)}, 31, v0"); A(f"v_lshl_add_u32 {v(TM+8)}, {v(TM+9)}, 3, {v(TM+8)}")
    A("s_mov_b32 exec_lo, 0x3ffff"); A("s_mov_b32 exec_hi, 0x3ffff")
    A(f"ds_write_b64 {v(TM+8)}, {v(XG,2)} offset:{L_X}")
    A("s_mov_b64 exec, -1")
    A("L_c1:")
    A(f"v_mul_u32_u24 {v(TM+10)}, 144, {B2}"); A(f"v_lshl_add_u32 {v(TM+10)}, {G}, 4, {v(TM+10)}")
    A(f"s_lshl_b32 {t3}, {sW}, 11"); A(f"v_add_u32 {v(TM+8)}, {t3}, {vL16}")
    A(f"ds_write_b128 {v(TM+8)}, {v(D1,4)} offset:1024"); A(f"ds_write_b128 {v(TM+8)}, {v(D1,4)} offset:2048")

fl_load = ["s_mov_b32 exec_hi, 0", f"buffer_load_dwordx4 {v(FG,4)}, {vL16}, {srd(rWS)}, {sXoff} offen sc1", "s_mov_b32 exec_hi, -1"]
qp_store = f"buffer_store_dwordx4 {v(D0,4)}, {vQPst}, {srd(rWS)}, {{so}} offen{{fl}}"
def qg(n): return [f"buffer_load_dwordx{n} {v(QG+4*p,n)}, {vQPg if p < 2 else vQPg2}, {srd(rWS)}, {sGp} offen offset:{2048*(p%2)} sc1" for p in range(4)]
qg4, qg2 = qg(4), qg(2)
pstamp(3)
if args.tlb: A("s_waitcnt lgkmcnt(0)")
for r, off in (() if args.tlb > 1 else ((rW1, 48), (rW2, 64))) + ((rOUT, 80), (rT1, 56), (rT2, 72)):
    A(f"s_load_dwordx2 s[{r}:{r+1}], s[0:1], {off}")
constants1()
A(f"s_mov_b32 {sTO}, 0x40000"); A(f"s_mov_b32 {sMode}, 0"); A(f"s_mov_b32 {sGp}, {sGf}")
cnt = [8]
mark = {'K': 8}
def vm(s): A(s); cnt[0] += 1
A(f"s_lshl_b32 {t4}, {sL}, 9"); A(f"s_add_u32 {t4}, {t4}, {sGf}"); A(f"s_add_u32 {t4}, {t4}, {QP_O}")
A(f"s_add_u32 {sXoff}, {sGf}, {FF_O}")
A("s_mov_b64 exec, 15")
vm(f"buffer_load_dword {DUM}, {vL128}, {srd(rWS)}, {t4} offen sc1{NT}")
vm(f"buffer_load_dword {DUM}, {vL128}, {srd(rWS)}, {sXoff} offen sc1{NT}")
A("s_mov_b64 exec, -1")
def hookQ():
    A(f"s_lshl_b32 {t4}, {sL}, 2"); A(f"s_add_u32 {t4}, {t4}, {sXoff}")
    A(f"s_getreg_b32 {t3}, hwreg(HW_REG_XCC_ID)"); A(f"s_lshl_b32 {t3}, {t3}, 28"); A(f"s_or_b32 {t3}, {t3}, 1")
    A(f"s_waitcnt vmcnt({cnt[0]}) lgkmcnt(0)")
    A("s_barrier")
    pstamp(2)
    for l in exec_xa(): A(l)
    for i in range(3):
        if i == 2: A("s_mov_b64 exec, 0x33")
        A(f"ds_read_b128 {v(XA+4*i,4)}, {v(TM+10)} offset:{L_X+64*i}")
    A("s_mov_b64 exec, -1")
    for i in range(2):
        for vv in range(0, 8, 2):
            row = 32*i + 16*(vv >> 2) + (vv & 3)
            A(f"ds_read2st64_b32 {a(aWQ+8*i+vv,2)}, {vCq} offset0:{row} offset1:{row+1}")
    A("s_mov_b32 exec_hi, 0")
    for vv in (0, 2): A(f"ds_read2st64_b32 {a(aWQ+16+vv,2)}, {vCq} offset0:{64+vv} offset1:{65+vv}")
    A("s_mov_b32 exec_hi, -1")
    A(f"v_readfirstlane_b32 {sFlag}, {FN}")
    A(f"s_add_u32 {sFlag}, {sFlag}, 0x0e377902"); A(f"s_and_b32 {sFlag}, {sFlag}, 0x0fffffff"); A(f"s_or_b32 {sFlag}, {sFlag}, {t3}")
    A(f"v_mov_b32 {FN}, {sFlag}")
    A("s_mov_b64 exec, 1")
    vm(f"buffer_store_dword {FN}, {vL16}, {srd(rWS)}, {t4} offen")
    A("s_mov_b64 exec, -1")
    A(f"v_and_b32 {vTag}, 0xff, {FN}"); A(f"s_movk_i32 {t4}, 0xff")
    A("s_waitcnt lgkmcnt(0)")
    for i in range(3): sm(D0, XA+4*i, aWQ+8*i, vIdxD)
    for i in range(4): A(f"v_bfi_b32 {v(D0+i)}, {t4}, {vTag}, {v(D0+i)}")
    A("s_mov_b32 exec_hi, 0")
    vm(qp_store.format(so=sGf, fl=''))
    A("s_mov_b32 exec_hi, -1")
    pstamp(1)
for k in range(9):
    if k == args.pQ: hookQ()
    if k == 8 - args.vw: mark['V'] = cnt[0]
    if k < 8: vm(f"buffer_load_dwordx4 {a(aV+4*k,4)}, {vL16}, {srd(rV)}, {kv0 if k < 4 else kv1} offen offset:{1024*(k%4)}{NTV}")
    if k == 7: pstamp(9)
TT = v(TM+4)
def slots_touch():
    A(f"s_lshl_b32 {t1}, {sJ}, 2"); A(f"s_add_u32 {t1}, {t1}, {sW}")
    A(f"s_mul_i32 {t3}, {t1}, 896"); A(f"s_add_u32 {t3}, {t3}, {sGf}"); A(f"s_add_u32 {t3}, {t3}, {Y_O}")
    A("s_mov_b64 exec, 0x7f")
    A(f"buffer_load_dword {DUM}, {vL128}, {srd(rWS)}, {t3} offen sc1{NT}")
    A("s_mov_b64 exec, -1")
assert Y_O + 64 * 896 >= ZS_O + 1536
def w1_touch():
    A(f"s_lshl_b32 {t1}, {sJ}, 2"); A(f"s_add_u32 {t1}, {t1}, {sW}")
    A(f"s_mul_i32 {t4}, {sX}, 576"); A(f"s_add_u32 {t4}, {t4}, {t1}"); A(f"s_add_u32 {t4}, {t4}, 512"); A(f"s_mul_i32 {t4}, {t4}, 1152")
    A(f"s_mul_i32 {t1}, {t1}, {9*9216}")
    A(f"s_mul_i32 {t3}, {sX}, 1152"); A(f"s_add_u32 {t1}, {t1}, {t3}"); A(f"s_add_u32 {t3}, {t1}, {5*9216}")
    A(f"v_mul_u32_u24 {TT}, 57, v0"); A(f"v_lshrrev_b32 {TT}, 9, {TT}"); A(f"v_mul_u32_u24 {TT}, {9216-1152}, {TT}"); A(f"v_add_u32 {TT}, {TT}, {vL128}")
    A("s_mov_b32 exec_hi, 0x1fff")
    A(f"buffer_load_dword {DUM}, {TT}, {srd(rW1)}, {t1} offen{NTT}")
    A("s_mov_b32 exec_hi, 15")
    A(f"buffer_load_dword {DUM}, {TT}, {srd(rW1)}, {t3} offen{NTT}")
    A("s_mov_b64 exec, 0x1ff")
    A(f"buffer_load_dword {DUM}, {vL128}, {srd(rW2)}, {t4} offen{NTT}")
    A("s_mov_b64 exec, -1")
def w2_loads():
    l1 = A.newlabel('L_w2')
    A(f"s_mul_i32 {t0}, {sX}, 18"); A(f"s_add_u32 {t0}, {t0}, {sJ}"); A(f"s_mul_i32 {t0}, {t0}, {32*1152}")
    A(f"s_lshl_b32 {t1}, {sW}, 8"); A(f"s_add_u32 {t1}, {t1}, {t0}")
    for i in range(8):
        A(f"buffer_load_dwordx4 {a(aW2+4*i,4)}, {vWrow}, {srd(rW2)}, {t1} offen{NT2}")
        if i < 7: A(f"s_add_u32 {t1}, {t1}, 4608")
    A(f"s_cmp_lg_u32 {sW}, 3")
    A(f"s_cbranch_scc1 {l1}")
    A(f"s_mov_b64 exec, {mLO8}")
    for i in range(8):
        A(f"buffer_load_dwordx4 {a(aW2t+4*i,4)}, {vWrow}, {srd(rW2)}, {t0} offen offset:1024{NT2}")
        if i < 7: A(f"s_add_u32 {t0}, {t0}, 4608")
    A("s_mov_b64 exec, -1")
    A(f"{l1}:")
def wo_loads(k0, k1, with_tail):
    for k in range(k0, k1):
        A(f"buffer_load_dwordx4 {a(aWO+4*k,4)}, {vWrow}, {srd(rWO)}, {sWo} offen{NTO}")
        A(f"s_add_u32 {sWo}, {sWo}, 4608")
    if with_tail:
        l1 = A.newlabel('L_wt')
        A(f"s_cmp_lg_u32 {sW}, 3")
        A(f"s_cbranch_scc1 {l1}")
        A(f"s_mov_b64 exec, {mLO8}")
        for i in range(7, -1, -1):
            A(f"s_sub_u32 {sWo}, {sWo}, 4608")
            A(f"buffer_load_dwordx4 {a(aWOt+4*i,4)}, {vWrow}, {srd(rWO)}, {sWo} offen offset:256{NTO}")
        A("s_mov_b64 exec, -1")
        A(f"{l1}:")
constants()
pstamp(4)
stamp()
A(f"s_waitcnt vmcnt({cnt[0]-mark['K']})")
for T in range(2):
    for q in range(4): A(f"ds_read_b128 {a(aK+16*T+4*q,4)}, {v(KA+q)} offset:{4096*T}")
A(f"s_mov_b32 {sXPo}, {XP_O}")
A(f"s_cmp_lt_u32 {sJ}, 16")
A("s_cbranch_scc1 L_g1n")
A(f"v_readfirstlane_b32 {t4}, {vOPg}"); A(f"v_readfirstlane_b32 {t5}, {vSTg}")
A(f"s_add_u32 {t4}, {t4}, {sGf}"); A(f"s_add_u32 {t5}, {t5}, {sGf}")
A("s_mov_b64 exec, 0xff")
A(f"buffer_load_dword {DUM}, {vL128}, {srd(rWS)}, {t4} offen sc1{NT}")
A("s_mov_b64 exec, 3")
A(f"buffer_load_dword {DUM}, {vL128}, {srd(rWS)}, {t5} offen sc1{NT}")
A("s_mov_b64 exec, -1")
A(f"buffer_load_ushort {vXres}, {vZo}, {srd(rX)}, 0 offen{NT}")
A(f"buffer_load_ushort {vB2}, {vB2}, {srd(rT2)}, 0 offen{NT}")
wo_loads(0, 8, True)
A("s_branch L_g1o")
A("L_g1n:")
if 's' in args.early: slots_touch()
if '1' in args.early: w1_touch()
if '2' in args.early: w2_loads()
A("L_g1o:")
pstamp(6)
A(f"s_waitcnt vmcnt({args.vw})")
if ST and not args.pro and ONLY is None: A(f"s_memrealtime s[74:75]")
pstamp(5)
def flags_diff():
    A(f"v_xor_b32 {CK}, {sFlag}, {v(FG)}")
    for i in range(1, 4): A(f"v_bitop3_b32 {CK}, {CK}, {v(FG+i)}, {sFlag} bitop3:0xf6")
st_rd = f"ds_read_b64 {v(TM,2)}, {vSTATr}"
A("L_g4:")
for l in fl_load + qg4: A(l)
A("s_waitcnt vmcnt(0)")
pstamp(7)
flags_diff()
A(f"v_cmp_ne_u32 vcc, 0, {CK}")
A("s_cmp_lg_u32 vcc_lo, 0")
if args.forcefb: A("s_cmp_eq_u32 0, 0")
A("s_cbranch_scc1 L_af2")
A(f"s_mov_b32 {sMode}, 0")
A("L_g2:")
for i in range(16): A(f"v_xor_b32 {v(QG+i)}, {vTag}, {v(QG+i)}")
A(f"v_or3_b32 {CK}, {v(QG)}, {v(QG+1)}, {v(QG+2)}")
for i in range(3, 15, 2): A(f"v_or3_b32 {CK}, {CK}, {v(QG+i)}, {v(QG+i+1)}")
A(f"v_or_b32 {CK}, {CK}, {v(QG+15)}")
A(f"v_and_b32 {CK}, 0xff, {CK}")
A(f"v_cmp_ne_u32 vcc, 0, {CK}")
A("s_cbranch_vccnz L_g5")
A("L_g3:")
A(f"s_mov_b32 {sL}, 0")
zero(D0)
A(f"v_mov_b32 {v(TM)}, 0"); A(f"v_mov_b32 {v(TM+1)}, 1.0")
tail.append("L_g5:\n" + timeout("L_g4", "L_g3"))
pstamp(8)
A(f"v_add_f32 {v(TM+2)}, {v(QG+2)}, {v(QG+6)}"); A(f"v_add_f32 {v(TM+3)}, {v(QG+3)}, {v(QG+7)}")
A(f"v_add_f32 {v(TM+4)}, {v(QG+10)}, {v(QG+14)}"); A(f"v_add_f32 {v(TM+5)}, {v(QG+11)}, {v(QG+15)}")
A(f"v_add_f32 {v(TM+2)}, {v(TM+2)}, {v(TM+4)}"); A(f"v_add_f32 {v(TM+3)}, {v(TM+3)}, {v(TM+5)}")
A(f"v_permlane32_swap_b32 {v(TM+2)}, {v(TM+3)}")
A(f"v_add_f32 {vCq}, {v(TM+2)}, {v(TM+3)}")
A("s_branch L_qfin")

A("L_layer:")
zero(D0, 8)
def quiet_wait(so_add):
    if not args.pre: return
    A(f"s_add_u32 {t5}, {sGp}, {so_add}")
    A("s_mov_b64 exec, 1")
    poll([f"buffer_load_dword {DUM}, {vL16}, {srd(rWS)}, {t5} offen sc1"] + ([f"s_sleep {args.pre-1}"] if args.pre > 1 else []), [DUM])
    A("s_mov_b64 exec, -1")
    if args.zd: A(f"s_sleep {args.zd}")
if args.pre:
    A(f"s_bitcmp1_b32 {sRole}, 1"); A("s_cbranch_scc1 L_q0")
    quiet_wait(AN_O)
    A("L_q0:")
def q_pub():
    A(f"v_and_b32 {v(D0)}, -2, {v(D0)}"); A(f"v_and_b32 {v(D0+1)}, -2, {v(D0+1)}")
    A("s_mov_b32 exec_hi, 0")
    pub(f"buffer_store_dwordx2 {v(D0,2)}, {vQPst}, {srd(rWS)}, {{so}} offen{{fl}}")
    A("s_mov_b32 exec_hi, -1")
poll_proj(vXAq, sXoff, 3, aWQ, True)
q_pub()
nst[0] = 1
stamp()
zero(D0)
qregs = [v(QG+4*p+i) for p in range(4) for i in range(2)]
qchk1 = [f"v_or3_b32 {CK}, {qregs[0]}, {qregs[1]}, {qregs[2]}", f"v_or3_b32 {CK}, {CK}, {qregs[3]}, {qregs[4]}", f"v_or3_b32 {CK}, {CK}, {qregs[5]}, {qregs[6]}",
         f"v_bitop3_b32 {CK}, {CK}, {qregs[7]}, 1 bitop3:0xa8", f"v_cmp_ne_u32 vcc, 0, {CK}"]
poll(zs_load(vSTATr, sGp), [v(ZG), v(ZG+1)])
for l in qg2: A(l)
A(f"v_mov_b32 {S_}, {v(ZG)}"); A(f"v_mov_b32 {Q_}, {v(ZG+1)}")
stats_tail1(); stats_tail2()
poll(qg2, qregs, primed=True, chk=qchk1, site='q')
A("L_qfin:")
stamp()
A(f"v_add_f32 {v(TM+2)}, {v(QG)}, {v(QG+4)}"); A(f"v_add_f32 {v(TM+3)}, {v(QG+1)}, {v(QG+5)}")
A(f"v_add_f32 {v(TM+4)}, {v(QG+8)}, {v(QG+12)}"); A(f"v_add_f32 {v(TM+5)}, {v(QG+9)}, {v(QG+13)}")
A(f"v_add_f32 {v(TM+2)}, {v(TM+2)}, {v(TM+4)}"); A(f"v_add_f32 {v(TM+3)}, {v(TM+3)}, {v(TM+5)}")
A(f"v_permlane32_swap_b32 {v(TM+2)}, {v(TM+3)}")
A(f"v_add_f32 {v(TM+2)}, {v(TM+2)}, {v(TM+3)}")
A(f"v_fma_f32 {v(TM+2)}, -{v(TM)}, {vCq}, {v(TM+2)}")
A(f"v_mul_f32 {v(TM+2)}, {v(TM+2)}, {v(TM+1)}")
A(f"v_cvt_pk_bf16_f32 {v(TM+2)}, {v(TM+2)}, {v(TM+2)}")
A(f"ds_write_b16 {vQTw}, {v(TM+2)} offset:{L_QT}")
A("s_mov_b32 vcc_lo, 0xaaaaaaaa"); A("s_mov_b32 vcc_hi, 0xaaaaaaaa")
zero(DP)
A("s_waitcnt lgkmcnt(0)")
A("s_barrier")
A(f"ds_read_b128 {v(AO,4)}, {vQTr} offset:{L_QT}")
A(f"ds_read_b128 {v(AO+4,4)}, {vQTr} offset:{L_QT+256}")
if args.mid:
    A(f"s_lshr_b32 {t0}, {sJ}, 4"); A(f"s_or_b32 {t0}, {t0}, {sL}")
    A("s_cbranch_scc1 L_mid")
    if 's' in args.mid: slots_touch()
    if '1' in args.mid: w1_touch()
    if '2' in args.mid: w2_loads()
    A("L_mid:")
A(f"s_waitcnt lgkmcnt({lg(1)})")
sm(D0, AO, aK, vIdxP); sm(D1, AO, aK+16, vIdxP)
A("s_waitcnt lgkmcnt(0)")
sm(D0, AO+4, aK+8, vIdxP); sm(D1, AO+4, aK+24, vIdxP)
SC, MX, P_, LS, TT = v(TM), v(TM+1), v(TM+2), v(TM+3), v(TM+4)
A(f"v_add_f32 {SC}, {v(D0)}, {v(D0+1)}")
A(f"v_add_f32 {TT}, {v(D1)}, {v(D1+1)}")
A(f"v_cndmask_b32 {SC}, {SC}, {TT}, {mROW}")
rbf(SC, SC)
A(f"v_mul_f32 {SC}, {f32(128 ** -0.5)}, {SC}")
rbf(SC, SC)
A(f"v_mul_f32 {SC}, {f32(1.4426950408889634)}, {SC}")
zero(D0, 2)
A(f"v_max_f32_dpp {MX}, {SC}, {SC} row_ror:8 row_mask:0xf bank_mask:0xf")
for n, k in enumerate((4, 2, 1)):
    zero(D0+2+2*n, 2)
    if k == 1: A(f"v_max_f32_dpp {TT}, {MX}, {MX} row_ror:{k} row_mask:0xf bank_mask:0xf")
    A(f"v_max_f32_dpp {MX}, {MX}, {MX} row_ror:{k} row_mask:0xf bank_mask:0xf")
A(f"v_permlane16_swap_b32 {MX}, {TT}")
A(f"v_max_f32 {MX}, {MX}, {TT}")
A(f"v_sub_f32 {P_}, {SC}, {MX}")
A(f"v_exp_f32 {P_}, {P_}")
A(f"v_cvt_pk_bf16_f32 {TT}, {P_}, 0")
A(f"ds_write2_b32 {vPTw}, {TT}, {TT} offset1:5")
for i in range(4): A(f"ds_read_b128 {v(AO+4*i,4)}, {vPTr} offset:{128*i}")
A(f"v_add_f32_dpp {LS}, {P_}, {P_} row_ror:8 row_mask:0xf bank_mask:0xf")
for k in (4, 2, 1): A(f"v_add_f32_dpp {LS}, {LS}, {LS} row_ror:{k} row_mask:0xf bank_mask:0xf")
A(f"v_mov_b32 {SC}, {LS}")
A(f"v_permlane16_swap_b32 {LS}, {SC}")
A(f"v_add_f32 {LS}, {LS}, {SC}")
A(f"v_cndmask_b32 {SC}, {MX}, {LS}, vcc")
A("s_mov_b32 exec_lo, 3"); A("s_mov_b32 exec_hi, 3")
pub(f"buffer_store_dword {SC}, {vSTst}, {srd(rWS)}, {{so}} offen{{fl}}")
A("s_mov_b64 exec, -1")
for i in range(4):
    A(f"s_waitcnt lgkmcnt({lg(3-i)})")
    sm(DP, AO+4*i, aV+8*i, vIdxS)
def pack4(d):
    A(f"v_cvt_pk_bf16_f32 {v(d)}, {v(d)}, {v(d+1)}"); A(f"v_cvt_pk_bf16_f32 {v(d+1)}, {v(d+2)}, {v(d+3)}")
pack4(DP)
pub(f"buffer_store_dwordx2 {v(DP,2)}, {vOPst}, {srd(rWS)}, {{so}} offen{{fl}}")
stamp()
E = TM + 5
R = TM + 12
def tile_out(wb, tb, vst, drain):
    l1 = A.newlabel('L_t'); l2 = A.newlabel('L_t')
    for i in range(4):
        A(f"s_waitcnt lgkmcnt({lg(3-i)})")
        sm(D0, AO+4*i, wb+8*i, vIdxS)
    A(f"s_cmp_lg_u32 {sW}, 3")
    A(f"s_cbranch_scc1 {l1}")
    for i in range(1 if 'notail' in args.exp else 4): sm(D1, AO+4*i, tb+8*i, vIdxS)
    A(f"{l1}:")
    A("s_waitcnt vmcnt(0)" if drain else "s_nop 0")
    A("s_nop 4")
    pack4(D0)
    pub(f"buffer_store_dwordx2 {v(D0,2)}, {vst}, {srd(rWS)}, {{so}} offen{{fl}}")
    A(f"s_cmp_lg_u32 {sW}, 3")
    A(f"s_cbranch_scc1 {l2}")
    pack4(D1)
    A(f"s_mov_b64 exec, {mLO8}")
    pub(f"buffer_store_dwordx2 {v(D1,2)}, {v(E+2)}, {srd(rWS)}, {{so}} offen{{fl}}")
    A("s_mov_b64 exec, -1")
    A(f"{l2}:")
A(f"s_cmp_lt_u32 {sJ}, 16")
A("s_cbranch_scc1 L_mlp")
op_load = [f"buffer_load_dwordx2 {v(OG+2*i,2)}, {vOPg}, {srd(rWS)}, {sGp} offen offset:{512*i} sc1" for i in range(2)]
A(f"v_add_u32 {v(E+6)}, {4*1152}, {vYst}")
if args.sd: A(f"s_sleep {args.sd}")
if 'nost' not in args.exp.split(','): poll([f"buffer_load_dwordx4 {v(SG,4)}, {vSTg}, {srd(rWS)}, {sGp} offen sc1",
      f"buffer_load_dwordx4 {v(SG+4,4)}, {vSTg}, {srd(rWS)}, {sGp} offen offset:128 sc1",
      f"buffer_load_dwordx2 {v(SG+8,2)}, {vSTm}, {srd(rWS)}, {sGp} offen sc1"], [v(SG+i) for i in range(10 if 's' in PD else 8)], site='s')
for l in op_load: A(l)
if 'noweights' in args.exp: A("s_branch L_exw")
A(f"v_max3_f32 {MX}, {v(SG)}, {v(SG+1)}, {v(SG+2)}")
A(f"v_max_f32 {MX}, {MX}, {v(SG+3)}")
A(f"v_max_f32_dpp {TT}, {MX}, {MX} row_ror:8 row_mask:0xf bank_mask:0xf")
A(f"v_max_f32_dpp {MX}, {MX}, {MX} row_ror:8 row_mask:0xf bank_mask:0xf")
A(f"v_permlane16_swap_b32 {MX}, {TT}"); A(f"v_max_f32 {SC}, {MX}, {TT}"); A(f"v_max_f32 {MX}, {MX}, {TT}")
A(f"v_permlane32_swap_b32 {MX}, {SC}"); A(f"v_max_f32 {MX}, {MX}, {SC}")
for n, i in enumerate((0, 1, 2, 3, 8, 9)): A(f"v_sub_f32 {v(E+n)}, {v(SG+i)}, {MX}")
for n in range(6): A(f"v_exp_f32 {v(E+n)}, {v(E+n)}")
A(f"v_mul_f32 {LS}, {v(E)}, {v(SG+4)}")
for i in (1, 2, 3): A(f"v_fmac_f32 {LS}, {v(E+i)}, {v(SG+4+i)}")
A(f"v_add_f32_dpp {TT}, {LS}, {LS} row_ror:8 row_mask:0xf bank_mask:0xf")
A(f"v_add_f32_dpp {LS}, {LS}, {LS} row_ror:8 row_mask:0xf bank_mask:0xf")
A(f"v_permlane16_swap_b32 {LS}, {TT}"); A(f"v_add_f32 {SC}, {LS}, {TT}"); A(f"v_add_f32 {LS}, {LS}, {TT}")
A("L_exw:")
poll(op_load, [v(OG+i) for i in range(4)], primed=True, site='o')
stamp()
A(f"v_permlane32_swap_b32 {LS}, {SC}")
def unpack2(dst, src):
    for i in range(2):
        A(f"v_lshlrev_b32 {v(dst+2*i)}, 16, {v(src+i)}"); A(f"v_and_b32 {v(dst+2*i+1)}, 0xffff0000, {v(src+i)}")
unpack2(R, OG); unpack2(OG+4, OG+2)
for i in (0, 2): A(f"v_pk_mul_f32 {v(R+i,2)}, {v(R+i,2)}, {v(E+3,2)} op_sel:[0,1] op_sel_hi:[1,1]")
for i in (0, 2): A(f"v_pk_fma_f32 {v(R+i,2)}, {v(OG+4+i,2)}, {v(E+5,2)}, {v(R+i,2)} op_sel_hi:[1,0,1]")
A(f"v_add_f32 {LS}, {LS}, {SC}")
A(f"v_mov_b32 {v(E+2)}, {v(E+6)}")
A(f"v_permlane32_swap_b32 {v(R)}, {v(R+2)}")
A(f"v_permlane32_swap_b32 {v(R+1)}, {v(R+3)}")
A(f"v_add_f32 {v(R)}, {v(R)}, {v(R+2)}")
A(f"v_add_f32 {v(R+1)}, {v(R+1)}, {v(R+3)}")
A(f"v_rcp_f32 {LS}, {LS}")
A(f"v_permlane16_swap_b32 {v(R)}, {v(R+1)}")
A(f"v_add_f32 {v(R)}, {v(R)}, {v(R+1)}")
A(f"v_add_f32_dpp {v(R)}, {v(R)}, {v(R)} row_ror:8 row_mask:0xf bank_mask:0xf")
A(f"v_mul_f32 {v(R)}, {v(R)}, {LS}")
A(f"v_cvt_pk_bf16_f32 {TT}, {v(R)}, {v(R)}")
A(f"ds_write_b16 {vOTw}, {TT}")
A(f"s_cmp_lg_u32 {sL}, 0")
A("s_cbranch_scc1 L_o3")
pub(*[f"buffer_store_dwordx2 {v(EM,2)}, {vOPg}, {srd(rWS)}, {{so}} offen offset:{512*i}{{fl}}" for i in range(2)])
A("L_o3:")
A("s_waitcnt lgkmcnt(0)")
A("s_barrier")
for i in range(4): A(f"ds_read_b128 {v(AO+4*i,4)}, {vOTr} offset:{128*i}")
tile_out(aWO, aWOt, vYst, True)
stamp()

def reducer(kind):
    ld = [f"buffer_load_dwordx2 {v(YG+2*i,2)}, {vRg}, {srd(rWS)}, {sGp} offen offset:{512*i} sc1" for i in range(2)]
    A(f"s_movk_i32 {t4}, 0xff"); A(f"s_add_u32 {t3}, {sXPo}, 8192")
    zero(R)
    if kind == 'A': zero(YG+4, 2)
    if kind == 'A':
        if args.yd: A(f"s_sleep {args.yd}")
        poll(ld, [v(YG+i) for i in range(4)], site='y')
    else:
        poll(ld + ["s_mov_b64 exec, 0xffff", f"buffer_load_dwordx2 {v(YG+4,2)}, {vRg}, {srd(rWS)}, {sGp} offen offset:1024 sc1", "s_mov_b64 exec, -1"],
             [v(YG+i) for i in range(6)], site='y')
    stamp()
    A(f"v_smfmac_f32_16x16x64_bf16 {v(R,4)}, {v(YG+8,4)}, {v(YG,8)}, {vIdxS}")
    for i in range(4): A(f"v_add_f32_dpp {v(R+i)}, {v(R+i)}, {v(R+i)} row_ror:8 row_mask:0xf bank_mask:0xf")
    for i in range(4): A(f"v_bfi_b32 {v(R+i)}, {t4}, {vTag}, {v(R+i)}")
    A(f"buffer_store_dwordx4 {v(R,4)}, {vXPst}, {srd(rWS)}, {sXPo} offen sc1")
    if args.near: A(f"buffer_store_dwordx4 {v(R,4)}, {vXPst}, {srd(rWS)}, {t3} offen sc1")
    if kind == 'M':
        A(f"s_lshl_b32 {t0}, {sL}, 2"); A(f"s_andn2_b32 {t0}, {t0}, {sRole}")
        A("s_cbranch_scc1 L_fin")
    cl = [f"buffer_store_dwordx2 {v(EM,2)}, {vRg}, {srd(rWS)}, {{so}} offen offset:{512*i}{{fl}}" for i in range(2)]
    if kind == 'M': cl += ["s_mov_b64 exec, 0xffff", f"buffer_store_dwordx2 {v(EM,2)}, {vRg}, {srd(rWS)}, {{so}} offen offset:1024{{fl}}", "s_mov_b64 exec, -1"]
    pub(*cl)
    if args.pre:
        lb = A.newlabel('L_an')
        A(f"s_cmp_lg_u32 {sTask}, 0"); A(f"s_cbranch_scc1 {lb}")
        if kind == 'A': A(f"s_cmp_eq_u32 {sL}, 0"); A(f"s_cbranch_scc1 {lb}")
        A(f"v_mov_b32 {TT}, {AN_O + (0 if kind == 'M' else 4)}")
        A("s_mov_b64 exec, 1")
        pub(f"buffer_store_dword {vL16}, {TT}, {srd(rWS)}, {{so}} offen{{fl}}")
        A("s_mov_b64 exec, -1")
        A(f"{lb}:")
    if args.near:
        A(f"v_mov_b32 {TT}, 0")
        A(f"ds_read_b32 {TT}, {TT} offset:{L_NEAR}")
    if args.xd: A(f"s_sleep {args.xd}")
    if args.near:
        A("s_waitcnt lgkmcnt(0)")
        A(f"v_or_b32 {vXPg}, {vXPg}, {TT}")
    poll([f"buffer_load_dwordx2 {v(XG,2)}, {vXPg}, {srd(rWS)}, {sXPo} offen sc1",
          f"buffer_load_dwordx2 {v(XG+2,2)}, {vXPg}, {srd(rWS)}, {sXPo} offen offset:512 sc1"], None, site='x',
         chk=[f"v_xor_b32 {v(R+i)}, {vTag}, {v(XG+i)}" for i in range(4)] +
             [f"v_or3_b32 {CK}, {v(R)}, {v(R+1)}, {v(R+2)}", f"v_bitop3_b32 {CK}, {CK}, {v(R+3)}, {t4} bitop3:0xa8", f"v_cmp_ne_u32 vcc, 0, {CK}"])
    stamp()
    Y = v(R)
    A(f"v_add_f32 {v(R)}, {v(R)}, {v(R+2)}"); A(f"v_add_f32 {v(R+1)}, {v(R+1)}, {v(R+3)}")
    A(f"v_permlane32_swap_b32 {v(R)}, {v(R+1)}")
    A(f"v_add_f32 {TT}, {v(R)}, {v(R+1)}"); A(f"v_add_f32 {Y}, {v(R)}, {v(R+1)}")
    A(f"v_permlane16_swap_b32 {Y}, {TT}"); A(f"v_add_f32 {Y}, {Y}, {TT}")
    rbf(Y, Y)
    if kind == 'M':
        A(f"v_add_f32 {Y}, {Y}, {vB2}"); rbf(Y, Y)
    A(f"v_add_f32 {TT}, {Y}, {vXres}")
    A(f"v_add_f32 {v(R+1)}, {Y}, {vXres}")
    A(f"v_add_f32 {Y}, {Y}, {vXres}")
    A("s_mov_b64 exec, -1")
    A(f"v_permlane32_swap_b32 {TT}, {v(R+1)}")
    A(f"v_cvt_pk_bf16_f32 {TT}, {TT}, {v(R+1)}")
    A("s_mov_b64 exec, 0xffff")
    if kind == 'M':
        A(f"s_cmp_lg_u32 {sL}, 0")
        A("s_cbranch_scc1 L_out")
    pub(f"buffer_store_dword {TT}, {vZst}, {srd(rWS)}, {{so}} offen{{fl}}")
    A("s_mov_b64 exec, -1")
    stamp()
    rbf(vXres, Y)
    if kind == 'M' or args.ms != 'x':
        A(f"v_mul_f32 {TT}, {vXres}, {vXres}")
        A(f"v_cndmask_b32 {TT}, {vXres}, {TT}, {mROW}")
        for k in (8, 4, 2): A(f"v_add_f32_dpp {TT}, {TT}, {TT} row_ror:{k} row_mask:0xf bank_mask:0xf")
        A(f"v_add_f32_dpp {Y}, {TT}, {TT} row_ror:1 row_mask:0xf bank_mask:0xf")
        A(f"v_add_f32_dpp {TT}, {TT}, {TT} row_ror:1 row_mask:0xf bank_mask:0xf")
        A(f"v_permlane32_swap_b32 {TT}, {Y}")
        A(f"v_add_f32 {TT}, {TT}, {Y}")
        A("s_mov_b64 exec, 0x10001")
        pub(f"buffer_store_dword {TT}, {vZSst}, {srd(rWS)}, {{so}} offen{{fl}}")
        A("s_mov_b64 exec, -1")
    A(f"v_add_u32 {vZSst}, 512, {vZSst}")
    A(f"v_add_u32 {vZst}, 2304, {vZst}")
    A(f"s_add_u32 {sXPo}, {sXPo}, {XPS}")

A(f"s_bitcmp1_b32 {sRole}, 0")
A("s_cbranch_scc1 L_mlp")
A(f"s_bitcmp1_b32 {sRole}, 1")
A("s_cbranch_scc0 L_probe" if args.near else "s_cbranch_scc0 L_next")
A(f"s_cmp_lg_u32 {sL}, 0")
A("s_cbranch_scc1 L_red")
A(f"v_lshlrev_b32 {vXres}, 16, {vXres}"); A(f"v_lshlrev_b32 {vB2}, 16, {vB2}")
zero(YG+6, 2)
for i in range(4): A(f"v_mov_b32 {v(YG+8+i)}, 0x3f80")
A("L_red:")
k0 = nst[0]
reducer('A'); reducer('M')
kr = nst[0]
A("s_branch L_next")
A("L_mlp:")
nst[0] = k0
A(f"s_cmp_lg_u32 {sL}, 0")
A("s_cbranch_scc1 L_m1")
A(f"s_mul_i32 {t0}, {sX}, 18"); A(f"s_add_u32 {t0}, {t0}, {sJ}")
A(f"s_lshl_b32 {t2}, {t0}, 6")
A(f"buffer_load_ushort {vB1}, {vB1}, {srd(rT1)}, 0 offen{NT}")
A(f"s_cmp_ge_u32 {sJ}, 16")
A("s_cbranch_scc1 L_m0b")
if args.xt:
    A(f"s_lshl_b32 {t1}, {sJ}, 2"); A(f"s_add_u32 {t1}, {t1}, {sW}"); A(f"s_mul_i32 {t1}, {t1}, 36")
    A(f"v_add_u32 {TT}, {t1}, v0")
    A(f"v_lshrrev_b32 {LS}, 6, {TT}"); A(f"v_mul_u32_u24 {MX}, 43, {LS}"); A(f"v_lshrrev_b32 {MX}, 7, {MX}"); A(f"v_add_u32 {LS}, {LS}, {MX}")
    A(f"v_bfe_u32 {MX}, {TT}, 3, 3"); A(f"v_lshl_add_u32 {LS}, {LS}, 3, {MX}"); A(f"v_and_b32 {TT}, 7, {TT}"); A(f"v_lshlrev_b32 {TT}, 7, {TT}"); A(f"v_lshl_add_u32 {TT}, {LS}, 13, {TT}")
    A(f"s_lshl_b32 {t1}, {sX}, 10"); A(f"s_add_u32 {t1}, {t1}, {XP_O}")
    A(f"v_mov_b32 {LS}, 0")
    A("s_mov_b32 exec_hi, 15")
    A(f"buffer_atomic_or {LS}, {TT}, {srd(rWS)}, {t1} offen")
    A("s_mov_b32 exec_hi, -1")
if 's' not in args.early + args.mid: slots_touch()
if '1' not in args.early + args.mid: w1_touch()
if '2' in args.early + args.mid: A("s_branch L_m0d")
A("L_m0b:")
w2_loads()
A("L_m0d:")
A(f"s_cmp_eq_u32 {sW}, 3")
A("s_cbranch_scc1 L_m0c")
A("L_m0a:")
A(f"s_mul_i32 {t0}, {sW}, {192*9216}"); A(f"s_add_u32 {t0}, {t0}, {t2}")
if args.w1dma:
    A(f"v_lshrrev_b32 {TT}, 2, v0"); A(f"v_mul_u32_u24 {TT}, 9216, {TT}"); A(f"v_and_b32 {LS}, 3, v0"); A(f"v_lshl_add_u32 {TT}, {LS}, 4, {TT}")
    A(f"s_mul_i32 {t1}, {sW}, 12288"); A(f"s_add_u32 {t1}, {t1}, {L_K}"); A(f"s_mov_b32 m0, {t1}")
    for i in range(12):
        A(f"buffer_load_dwordx4 {TT}, {srd(rW1)}, {t0} offen{NTM} lds")
        if i < 11: A(f"s_add_u32 {t0}, {t0}, {16*9216}"); A("s_add_u32 m0, m0, 1024")
    A(f"v_lshrrev_b32 {TT}, 4, v0"); A(f"v_lshlrev_b32 {TT}, 8, {TT}"); A(f"v_and_b32 {LS}, 15, v0"); A(f"v_lshl_add_u32 {TT}, {LS}, 2, {TT}"); A(f"v_add_u32 {TT}, {t1}, {TT}")
    A("s_waitcnt vmcnt(0)")
    for i in range(6):
        for hh in range(2):
            for p in range(2):
                A(f"ds_read2_b32 {a(aW1+8*i+4*hh+2*p,2)}, {TT} offset0:{32*p} offset1:{32*p+16}")
            if (i, hh) != (5, 1): A(f"v_add_u32 {TT}, 1024, {TT}")
    A("s_waitcnt lgkmcnt(0)")
else:
    A(f"v_lshrrev_b32 {TT}, 4, v0"); A(f"v_mul_u32_u24 {TT}, {4*9216}, {TT}"); A(f"v_and_b32 {LS}, 15, v0"); A(f"v_lshl_add_u32 {TT}, {LS}, 2, {TT}")
    prev = 0
    for i in range(6):
        for vv in range(8):
            row = 32*i + 16*(vv >> 2) + (vv & 3)
            if row != prev: A(f"s_add_u32 {t0}, {t0}, {(row-prev)*9216}")
            prev = row
            A(f"buffer_load_dword {a(aW1+8*i+vv)}, {TT}, {srd(rW1)}, {t0} offen{NTM}")
A("L_m0c:")
if ST: A("s_memrealtime s[94:95]"); A("s_waitcnt vmcnt(0)"); A("s_memrealtime s[96:97]")
A("s_waitcnt vmcnt(0)")
A(f"v_lshlrev_b32 {vB1}, 16, {vB1}")
A("L_m1:")
zero(D0, 8)
c0 = -2 * 1.4426950408889634 * 0.7978845608028654
A(f"v_mov_b32 {v(E)}, {f32(c0)}")
A(f"v_add_u32 {v(E+2)}, {4*1152}, {vMst}")
A(f"s_mul_i32 {t0}, {sL}, {Z3_O-Z1_O}"); A(f"s_add_u32 {t0}, {t0}, {sGp}"); A(f"s_add_u32 {t0}, {t0}, {Z1_O}")
if args.pre:
    A(f"s_cmp_eq_u32 {sL}, 0"); A("s_cbranch_scc1 L_m1b")
    quiet_wait(AN_O + 4)
    A("L_m1b:")
A(f"s_lshl_b32 {t1}, {sL}, 10"); A(f"s_add_u32 {t1}, {t1}, {sGp}"); A(f"s_add_u32 {t1}, {t1}, {ZS_O}")
A(f"v_lshrrev_b32 {v(E+1)}, 5, v0"); A(f"v_lshlrev_b32 {v(E+1)}, 3, {v(E+1)}")
A(f"s_cmp_eq_u32 {sW}, 3")
A("s_cbranch_scc1 L_m2")
poll_proj(vXAm, t0, 6, aW1)
A("s_mov_b32 exec_hi, 0")
A(f"ds_write_b128 {vHPw}, {v(D0,4)}")
A("s_mov_b32 exec_hi, -1")
A("s_branch L_m2b")
A("L_m2:")
if args.ms == 'x':
    if 'nostat' not in args.exp:
        poll(xs_loads(rWS, t0, ' sc1'), [v(XS+i) for i in range(9)], site='z')
        stats_x()
    else: A(f"v_mov_b32 {S_}, 0"); A(f"v_mov_b32 {Q_}, 1.0")
else:
    poll(zs_load(vZSg, t1), [v(ZG), v(ZG+1)], site='z')
    A(f"v_mov_b32 {S_}, {v(ZG)}"); A(f"v_mov_b32 {Q_}, {v(ZG+1)}")
    stats_tail1(); stats_tail2()
A(f"ds_write_b64 {v(E+1)}, {v(TM,2)} offset:{L_STAT}")
A("L_m2b:")
stamp()
A("s_waitcnt lgkmcnt(0)")
A("s_barrier")
H = TM + 12
A(f"ds_read2_b32 {v(H,2)}, {vHPr} offset0:0 offset1:2")
A(f"ds_read2_b32 {v(H+2,2)}, {vHPr} offset0:128 offset1:130")
A(f"ds_read_b32 {v(H+4)}, {vHPr} offset:1024"); A(f"ds_read_b32 {v(H+5)}, {vHPr} offset:1032")
A(f"ds_read_b64 {v(TM,2)}, {v(E+1)} offset:{L_STAT}")
zero(D0)
A("s_waitcnt lgkmcnt(0)")
A(f"v_add_f32 {v(H)}, {v(H)}, {v(H+2)}"); A(f"v_add_f32 {v(H+1)}, {v(H+1)}, {v(H+3)}")
A(f"v_add_f32 {v(H)}, {v(H)}, {v(H+4)}"); A(f"v_add_f32 {v(H+1)}, {v(H+1)}, {v(H+5)}")
A(f"v_fma_f32 {v(H)}, -{S_}, {v(H+1)}, {v(H)}")
A(f"v_mul_f32 {v(H)}, {v(H)}, {Q_}")
rbf(v(H), v(H))
A(f"v_add_f32 {v(H)}, {v(H)}, {vB1}")
rbf(v(H), v(H))
A(f"v_mul_f32 {TT}, {v(H)}, {v(H)}")
A(f"v_fmac_f32 {v(E)}, {f32(c0*0.044715)}, {TT}")
A(f"v_mul_f32 {TT}, {v(E)}, {v(H)}")
A(f"v_exp_f32 {TT}, {TT}")
A(f"v_add_f32 {TT}, 1.0, {TT}")
A(f"v_rcp_f32 {TT}, {TT}")
A(f"v_mul_f32 {TT}, {TT}, {v(H)}")
A(f"v_cvt_pk_bf16_f32 {TT}, {TT}, 0")
A(f"ds_write2_b32 {vPTw}, {TT}, {TT} offset1:5")
for i in range(4): A(f"ds_read_b128 {v(AO+4*i,4)}, {vPTr} offset:{128*i}")
stamp()
tile_out(aW2, aW2t, vMst, False)
A("L_m4:")
stamp()
nst[0] = kr
A("L_next:")
A(f"s_cmp_lg_u32 {sL}, 0")
A("s_cbranch_scc1 L_fin")
if ST:
    A("s_waitcnt lgkmcnt(0)")
    for k in range(14): A(f"v_writelane_b32 {v(SV)}, s{72+2*k}, {1+k}")
    for k in range(14): A(f"s_mov_b64 s[{72+2*k}:{73+2*k}], 0")
A(f"s_mov_b32 {sL}, 1")
if args.dirty:
    A(f"s_cmp_ge_u32 {sJ}, 16"); A("s_cbranch_scc1 L_dd")
    A(f"s_lshl_b32 {t0}, s2, 2"); A(f"s_add_u32 {t0}, {t0}, {sW}"); A(f"s_lshl_b32 {t0}, {t0}, 14"); A(f"s_add_u32 {t0}, {t0}, 0x2000000")
    for i in range(args.dirty):
        A(f"buffer_store_dwordx4 {v(EM,4)}, {vL16}, {srd(rWS)}, {t0} offen"); A(f"s_add_u32 {t0}, {t0}, 1024")
    A("L_dd:")
A(f"s_add_u32 {sXoff}, {sGp}, {Z2_O}")
for r in (vSTst, vSTg, vSTm): A(f"v_add_u32 {r}, {ST1_O-ST_O}, {r}")
if args.qc:
    assert QP_O % 512 == 0
    for r in (vQPst, vQPg):
        A(f"v_bfe_u32 {TT}, {r}, 1, 8"); A(f"v_and_b32 {r}, 0xfffffe00, {r}"); A(f"v_add_u32 {r}, {r}, {TT}")
    A(f"v_add_u32 {vQPg2}, 4096, {vQPg}")
A("s_branch L_layer")
A("L_out:")
A(f"buffer_store_dword {TT}, {vZo}, {srd(rOUT)}, 0 offen")
A(f"s_mov_b32 {t0}, {EP_O}")
A("s_mov_b64 exec, 1")
A(f"buffer_store_dword {FN}, {vL16}, {srd(rWS)}, {t0} offen")
if ST: A(f"s_memrealtime s[{72+2*13}:{73+2*13}]")
A("L_fin:")
if args.wb:
    A(f"s_cmp_lg_u32 {sJ}, 18"); A("s_cbranch_scc1 L_wb")
    A(f"s_cmp_lg_u32 {sW}, 0"); A("s_cbranch_scc1 L_wb")
    A("buffer_wbl2 sc1")
    A("L_wb:")
if args.enc:
    j0, j1 = [int(x) for x in args.encj.split(',')]
    A("s_memrealtime s[66:67]")
    A("s_waitcnt lgkmcnt(0)")
    if args.enc <= 14: A(f"v_readlane_b32 {t0}, {v(SV)}, {args.enc}"); A("s_nop 3")
    else: A(f"s_mov_b32 {t0}, s{72+2*(args.enc-15)}")
    A(f"s_cmp_eq_u32 {t0}, 0"); A("s_cbranch_scc1 L_enc2")
    A(f"s_cmp_lt_u32 {sJ}, {j0}"); A("s_cbranch_scc1 L_enc2")
    A(f"s_cmp_ge_u32 {sJ}, {j1}"); A("s_cbranch_scc1 L_enc2")
    if args.encref == 0: A(f"s_mov_b32 {t1}, s100")
    elif args.encref <= 14: A(f"v_readlane_b32 {t1}, {v(SV)}, {args.encref}"); A("s_nop 3")
    else: A(f"s_mov_b32 {t1}, s{72+2*(args.encref-15)}")
    A(f"s_sub_u32 {t0}, {t0}, {t1}"); A(f"s_min_u32 {t0}, {t0}, 10000"); A(f"s_lshl_b32 {t0}, {t0}, {4 if args.encref else 3}"); A(f"s_add_u32 {t0}, {t0}, s66")
    A("L_enc:")
    A("s_sleep 8")
    A("s_memrealtime s[64:65]"); A("s_waitcnt lgkmcnt(0)")
    A(f"s_sub_u32 {t1}, s64, {t0}"); A(f"s_cmp_lt_i32 {t1}, 0"); A("s_cbranch_scc1 L_enc")
    A("L_enc2:")
if ST:
    A("s_mov_b64 exec, -1")
    A("s_waitcnt lgkmcnt(0)")
    A(f"v_writelane_b32 {v(SV)}, s100, 0")
    for k in range(14): A(f"v_writelane_b32 {v(SV)}, s{72+2*k}, {15+k}")
    A(f"s_lshl_b32 {t0}, s2, 2"); A(f"s_add_u32 {t0}, {t0}, {sW}"); A(f"s_lshl_b32 {t0}, {t0}, 8"); A(f"s_add_u32 {t0}, {t0}, {STAMP_O}")
    A(f"v_mov_b32 {v(SV+1)}, 0")
    A(f"v_lshlrev_b32 {v(SV+2)}, 3, v0")
    A("s_mov_b32 exec_hi, 0")
    A(f"buffer_store_dwordx2 {v(SV,2)}, {v(SV+2)}, {srd(rWS)}, {t0} offen")
A("L_end:")
A("s_endpgm")
if args.near:
    A("L_probe:")
    A(f"s_cmp_lt_u32 {sJ}, 20"); A("s_cbranch_scc1 L_next")
    A(f"s_cmp_lg_u32 {sL}, 0"); A("s_cbranch_scc1 L_next")
    A(f"s_sub_u32 {t0}, {sJ}, 20"); A(f"s_lshl_b32 {t0}, {t0}, 18"); A(f"s_lshl_b32 {t1}, {sX}, 10"); A(f"s_add_u32 {t0}, {t0}, {t1}"); A(f"s_add_u32 {t0}, {t0}, {XP_O + 3*65536}")
    A(f"s_add_u32 s4, s{rWS}, {t0}"); A(f"s_addc_u32 s5, s{rWS+1}, 0")
    A(f"s_mov_b32 {t2}, -1"); A(f"s_mov_b32 {t3}, -1"); A(f"s_mov_b32 {t4}, 3")
    A("L_pr1:")
    A("s_memtime s[6:7]"); A("s_waitcnt lgkmcnt(0)")
    A(f"s_load_dword {t5}, s[4:5], 0 glc"); A("s_waitcnt lgkmcnt(0)")
    A("s_memtime s[8:9]"); A("s_waitcnt lgkmcnt(0)")
    A(f"s_load_dword {t5}, s[4:5], 0x2000 glc"); A("s_waitcnt lgkmcnt(0)")
    A("s_memtime s[10:11]"); A("s_waitcnt lgkmcnt(0)")
    A(f"s_sub_u32 {t0}, s8, s6"); A(f"s_sub_u32 {t1}, s10, s8")
    A(f"s_min_u32 {t2}, {t2}, {t0}"); A(f"s_min_u32 {t3}, {t3}, {t1}")
    A(f"s_sub_u32 {t4}, {t4}, 1"); A(f"s_cmp_lg_u32 {t4}, 0"); A("s_cbranch_scc1 L_pr1")
    A(f"s_cmp_lt_u32 {t3}, {t2}"); A(f"s_cselect_b32 {t0}, 0x2000, 0")
    A(f"v_mov_b32 {TT}, 0"); A(f"v_mov_b32 {LS}, {t0}")
    A(f"ds_write_b32 {TT}, {LS} offset:{L_NEAR}")
    A("s_branch L_next")
A("L_af2:")
A(f"s_cmp_eq_u32 {sMode}, {FB_O}")
A("s_cbranch_scc1 L_g2")
A(f"s_add_u32 {sMode}, {sMode}, 1")
A(f"s_lshl_b32 {t2}, {sX}, 10"); A(f"s_add_u32 {t2}, {t2}, {FL_O}")
A(f"s_lshl_b32 {t4}, {sL}, 2"); A(f"s_add_u32 {t1}, {t4}, {t2}")
A(f"s_cmp_lt_u32 {sMode}, {1 if args.forcefb else 40}")
A("s_cbranch_scc1 L_af5")
A("s_mov_b64 exec, 1")
A(f"buffer_store_dword {FN}, {vL16}, {srd(rWS)}, {t1} offen sc1")
A("s_mov_b32 exec_lo, -1")
A(f"buffer_load_dwordx4 {v(FG,4)}, {vL16}, {srd(rWS)}, {t2} offen sc1")
A("s_mov_b32 exec_hi, -1")
A("s_waitcnt vmcnt(0)")
flags_diff()
A(f"v_and_b32 {TT}, 0x0fffffff, {CK}")
A(f"v_cmp_ne_u32 vcc, 0, {TT}")
A("s_cmp_lg_u32 vcc_lo, 0")
A("s_cbranch_scc1 L_af5")
A(f"v_cmp_ne_u32 vcc, 0, {CK}")
A("s_cmp_lg_u32 vcc_lo, 0")
if args.forcefb: A("s_cmp_eq_u32 0, 0")
A("s_cbranch_scc1 L_spread")
A("L_af5:")
A(f"s_sub_u32 {sTO}, {sTO}, 1")
A("s_cbranch_scc0 L_g4")
A(f"s_mov_b32 {sTO}, 0")
A(f"s_mov_b32 {sMode}, 0")
A("s_branch L_g2")
A("L_spread:")
A(f"s_mov_b32 {sMode}, {FB_O}")
A(f"s_add_u32 {sGp}, {sGf}, {FB_O}")
empty_share(sGp, ' sc1')
A("s_mov_b32 exec_hi, 0")
A(qp_store.format(so=sGp, fl=' sc1'))
A("s_waitcnt vmcnt(0)")
A("s_mov_b64 exec, 1")
A(f"buffer_store_dword {FN}, {vL16}, {srd(rWS)}, {t1} offen offset:512 sc1")
A("s_mov_b32 exec_lo, -1")
A("L_sp1:")
A("s_mov_b32 exec_hi, 0")
A(f"buffer_load_dwordx4 {v(FG,4)}, {vL16}, {srd(rWS)}, {t2} offen offset:512 sc1")
A("s_mov_b32 exec_hi, -1")
A("s_waitcnt vmcnt(0)")
flags_diff()
A(f"v_and_b32 {CK}, 0x0fffffff, {CK}")
A(f"v_cmp_ne_u32 vcc, 0, {CK}")
A("s_cmp_eq_u32 vcc_lo, 0")
A("s_cbranch_scc1 L_g4")
A("s_sleep 4")
A(timeout("L_sp1", "L_g4"))
for t in tail: A(t)
A.raw('L_codeend:')
A.raw('    s_endpgm')
A.raw('.section .rodata,"a"')
A.raw(".p2align 6")
A.raw(f".amdhsa_kernel {NAME}_kernel")
A.raw(f"  .amdhsa_next_free_vgpr {ACC+NACC}")
A.raw("  .amdhsa_next_free_sgpr 102")
A.raw(f"  .amdhsa_accum_offset {ACC}")
A.raw("  .amdhsa_group_segment_fixed_size 0")
A.raw("  .amdhsa_kernarg_size 104")
A.raw("  .amdhsa_user_sgpr_count 2")
A.raw("  .amdhsa_user_sgpr_kernarg_segment_ptr 1")
A.raw("  .amdhsa_system_sgpr_workgroup_id_x 1")
A.raw(".end_amdhsa_kernel")
txt = A.text()
if args.cyc: txt = txt.replace('s_memrealtime', 's_memtime')
sys.stdout.write(txt)
```

```python
import sys, argparse, struct
sys.path.insert(0, 'dev')
from asmlib import Asm
NAME = "interleave_layers__sliding_block_cached__dense_activation_gelu__decode"
ap = argparse.ArgumentParser()
ap.add_argument('--stamps', action='store_true')
ap.add_argument('--pro', action='store_true')
ap.add_argument('--cyc', action='store_true')
ap.add_argument('--xt', type=int, default=0)
ap.add_argument('--xd', type=int, default=11)
ap.add_argument('--enc', type=int, default=0)
ap.add_argument('--encref', type=int, default=0)
ap.add_argument('--encj', default='0,32')
ap.add_argument('--only', default='')
ap.add_argument('--pQ', type=int, default=4)
ap.add_argument('--code', type=int, default=1)
ap.add_argument('--early', default='0')
ap.add_argument('--mid', default='')
ap.add_argument('--w1dma', type=int, default=0)
ap.add_argument('--near', type=int, default=1)
ap.add_argument('--pd', default='s22,y22,o22')
ap.add_argument('--wb', type=int, default=0)
ap.add_argument('--dirty', type=int, default=0)
ap.add_argument('--pre', type=int, default=1)
ap.add_argument('--qd', type=int, default=0)
ap.add_argument('--zs', type=int, default=0)
ap.add_argument('--sd', type=int, default=0)
ap.add_argument('--yd', type=int, default=0)
ap.add_argument('--zd', type=int, default=0)
ap.add_argument('--qc', type=int, default=1)
ap.add_argument('--ms', default='x')
ap.add_argument('--exp', default='')
ap.add_argument('--tlb', type=int, default=0)
ap.add_argument('--prew', type=int, default=2)
ap.add_argument('--vw', type=int, default=1)
ap.add_argument('--di', type=int, default=1)
ap.add_argument('--dz', type=int, default=1)
ap.add_argument('--dxx', type=int, default=1)
ap.add_argument('--nt', default='k,v,2')
ap.add_argument('--forcefb', action='store_true')
args = ap.parse_args()
def ntf(c): return ' nt' if c in args.nt.split(',') else ''
NT = ntf('s'); NTK = ntf('k'); NTV = ntf('v'); NTQ = ntf('q'); NTO = ntf('o'); NTM = ntf('m'); NT2 = ntf('2'); NTT = ntf('t')
ST = args.stamps
PD = {x[0]: (int(x[1]), int(x[2:])) for x in args.pd.split(',') if x}

def f32(x): return '0x%08x' % struct.unpack('<I', struct.pack('<f', x))[0]

CLR = 944
OP_O = 0
Y_O = OP_O + 65536
ST_O = Y_O + 41472
ST1_O = ST_O + 2048
Z1_O = ST1_O + 2048
Z2_O = Z1_O + 2304
Z3_O = Z2_O + 2304
AN_O = Z3_O + 2304
ZS_O = AN_O + 128
assert ZS_O + 1536 <= 128 * CLR and (128 * CLR) % 128 == 0
QP_O = 128 * CLR
FF_O = QP_O + 65536
GB = FF_O + 1024
FB_O = 8 * GB
XP_O = 6 << 20
assert XP_O >= 16 * GB
XPS = 16384
FL_O = XP_O + 12 * 262144
EP_O = FL_O + 8 * 1024
STAMP_O = 0x8000000
L_NEAR = 8176
L_X = 640
L_QT, L_STAT, L_OT, L_PT, L_HP, L_K, L_WQ, L_SIZE = 0, 512, 1024, 2560, 8192, 16384, 49152, 67584

rK, rV, rWQ, rWO, rW1, rW2, rWS, rX, rOUT, rT1, rT2 = 4, 8, 12, 16, 20, 24, 28, 32, 36, 44, 48
sTask, kv0, kv1, sFlag = 's40', 's41', 's42', 's43'
def srd(n): return f"s[{n}:{n+3}]"
sW, sX, sJ, sGf, sGp, sXoff, sTO, sMode, sL, sWo = [f"s{i}" for i in range(52, 62)]
t0, t1, t2, t3, t4, t5 = [f"s{i}" for i in range(62, 68)]
mLO8 = "s[68:69]"; mROW = "s[70:71]"
MXA = "0x00330033"
sRole = "s3"
(vL4, vL16, vIdxD, vIdxP, vIdxS, vXAq, vXAm, vQPst, vQPg, vL128, vQTw, vQTr, vPTw, vPTr, vSTst, vOPst, vSTg, vOPg, vOTw, vOTr,
 vYst, vMst, vHPw, vSTm, vRg, vSTATr, vXPst, vXPg, vZst, vXres, vB2, vB1, vCq, vZo, vXS1, vXS2, vWrow, vHPr, vOnes) = [f"v{i}" for i in range(1, 40)]
XA, D0, D1, DP, AO, SG, YG, XG, XS, FG, TM, EM, KA, SV, OG, QG = 40, 64, 68, 72, 76, 104, 120, 132, 136, 148, 152, 176, 180, 184, 188, 196
vQPg2, vZSst, vZSg = 'v92', 'v93', 'v94'
ZG = 96; vLXr = 'v98'; KR = 100
ACC = 212
aWQ, aK, aV, aWO, aW1, aW2, aWOt, NACC = 0, 24, 56, 88, 120, 168, 200, 232
aW2t = aW1
def v(n, k=1): return f"v{n}" if k == 1 else f"v[{n}:{n+k-1}]"
def a(n, k=1): return f"a{n}" if k == 1 else f"a[{n}:{n+k-1}]"
CK = v(TM + 23); FN = v(TM + 22); vTag = v(TM + 21); DUM = v(TM + 20)
sEp, sXPo = kv0, kv1

A = Asm()
tail = []
nst = [0]
def pstamp(k):
    if args.pro: A(f"s_memrealtime s[{72+2*k}:{73+2*k}]")
def stamp():
    if ST and not args.pro:
        k = nst[0]; nst[0] += 1
        assert k < 13
        if ONLY is None or k in ONLY: A(f"s_memrealtime s[{72+2*k}:{73+2*k}]")
ONLY = set(int(x) for x in args.only.split(',')) if args.only else None
def lg(n): return 0 if (ST and ONLY is None) else n
def exec_xa(): return [f"s_mov_b32 exec_lo, {MXA}", f"s_mov_b32 exec_hi, {MXA}"]

def check_text(regs):
    regs = list(regs); o = []
    if len(regs) == 1: cur = regs[0]
    else:
        take = regs[:3]; regs = regs[3:]
        o.append(f"v_max3_u32 {CK}, {take[0]}, {take[1]}, {take[2]}" if len(take) == 3 else f"v_max_u32 {CK}, {take[0]}, {take[1]}")
        while regs:
            take = regs[:2]; regs = regs[2:]
            o.append(f"v_max3_u32 {CK}, {CK}, {take[0]}, {take[1]}" if len(take) == 2 else f"v_max_u32 {CK}, {CK}, {take[0]}")
        cur = CK
    o.append(f"v_cmp_eq_u32 vcc, -1, {cur}")
    return o
def nvm(loads): return sum(1 for l in loads if l.startswith('buffer_'))
def timeout(again, ok): return f"s_sub_u32 {sTO}, {sTO}, 1\ns_cbranch_scc0 {again}\ns_mov_b32 {sTO}, 0\ns_waitcnt vmcnt(0) lgkmcnt(0)\ns_branch {ok}"

def poll(loads, regs, primed=False, extra_wait="", chk=None, site=''):
    lp = A.newlabel('L_poll'); to = A.newlabel('L_to'); ok = A.newlabel('L_ok')
    depth, gap = PD.get(site, (1, 0))
    ck = chk or check_text(regs)
    pre = []
    for d in range(depth - 1):
        pre += loads + ([f"s_sleep {gap}"] if gap else [])
    loop = [f"{lp}:"] + loads + [f"s_sub_u32 {sTO}, {sTO}, 1", f"s_cbranch_scc1 {to}", f"s_waitcnt vmcnt({(depth-1)*nvm(loads)}){extra_wait}"] + ck + [f"s_cbranch_vccnz {lp}"]
    tmo = f"{to}:\ns_mov_b32 {sTO}, 0\ns_waitcnt vmcnt(0) lgkmcnt(0)\ns_branch {ok}"
    if primed:
        st = A.newlabel('L_more')
        A(f"s_waitcnt vmcnt(0){extra_wait}")
        for l in ck: A(l)
        A(f"s_cbranch_vccnz {st}")
        A(f"{ok}:")
        tail.append(f"{st}:\n" + "\n".join(pre + loop) + f"\ns_branch {ok}\n" + tmo)
        return
    for l in pre + loop: A(l)
    A(f"{ok}:")
    tail.append(tmo)

def sm(d, av, br, idx): A(f"v_smfmac_f32_16x16x64_bf16 {v(d,4)}, {v(av,4)}, {a(br,8)}, {idx}")
def xa_loads(rr, voff, so, n, fl, short_last=False):
    o = exec_xa()
    for i in range(n):
        if short_last and i == n - 1: o.append("s_mov_b64 exec, 0x33")
        o.append(f"buffer_load_dwordx4 {v(XA+4*i,4)}, {voff}, {srd(rr)}, {so} offen offset:{64*i}{fl}")
    return o + ["s_mov_b64 exec, -1"]
def poll_proj(voff, so, n, wbase, short_last=False, extra=[]):
    loads = extra[:-1] + xa_loads(rWS, voff, so, n, ' sc1', short_last)
    lds = [l for l in loads if l.startswith('buffer_')]
    lp = A.newlabel('L_poll'); rt = A.newlabel('L_retry'); ok = A.newlabel('L_ok'); gen = A.newlabel('L_nan')
    depth, gap = PD.get('p', (1, 0))
    for d in range(depth):
        if d: A(f"s_sleep {gap}")
        for l in loads: A(l)
    A(f"{lp}:")
    A(f"s_waitcnt vmcnt({(depth-1)*n})")
    for i in range(n): sm(D0, XA+4*i, wbase+8*i, vIdxD)
    for l in loads: A(l)
    A(f"v_cmp_u_f32 vcc, {v(D0)}, {v(D0+1)}")
    A(f"s_cbranch_vccnz {rt}")
    A(f"{ok}:")
    z = "\n".join(f"v_mov_b32 {v(D0+i)}, 0" for i in range(4))
    mm = "\n".join(f"v_smfmac_f32_16x16x64_bf16 {v(D0,4)}, {v(XA+4*i,4)}, {a(wbase+8*i,8)}, {vIdxD}" for i in range(n))
    if args.zs: z += f"\ns_sleep {args.zs}"
    tail.append(f"{rt}:\n{z}\ns_sub_u32 {sTO}, {sTO}, 1\ns_cbranch_scc1 {gen}\ns_and_b32 {t5}, {sTO}, 15\ns_cbranch_scc1 {lp}\n" +
                "\n".join(check_text([v(XA+i) for i in range(4*n)])) + f"\ns_cbranch_vccnz {lp}\n{gen}:\ns_max_i32 {sTO}, {sTO}, 0\n{mm}\ns_nop 7\ns_branch {ok}")

def pub(*fmts):
    for f in fmts: A(f.format(so=sGf, fl=''))
    sl = A.newlabel('L_slow'); bk = A.newlabel('L_back')
    A(f"s_cmp_lg_u32 {sMode}, 0")
    A(f"s_cbranch_scc1 {sl}")
    A(f"{bk}:")
    tail.append(f"{sl}:\n" + "\n".join(f.format(so=sGp, fl=' sc1') for f in fmts) + f"\ns_nop 1\ns_branch {bk}")

def rbf(dst, src):
    A(f"v_cvt_pk_bf16_f32 {dst}, {src}, {src}")
    A(f"v_and_b32 {dst}, 0xffff0000, {dst}")
def treduce(r):
    A(f"v_permlane32_swap_b32 {v(r)}, {v(r+2)}")
    A(f"v_permlane32_swap_b32 {v(r+1)}, {v(r+3)}")
    A(f"v_add_f32 {v(r)}, {v(r)}, {v(r+2)}")
    A(f"v_add_f32 {v(r+1)}, {v(r+1)}, {v(r+3)}")
    A(f"v_permlane16_swap_b32 {v(r)}, {v(r+1)}")
    A(f"v_add_f32 {v(r)}, {v(r)}, {v(r+1)}")
    A(f"v_add_f32_dpp {v(r)}, {v(r)}, {v(r)} row_ror:8 row_mask:0xf bank_mask:0xf")
S_, Q_ = v(TM), v(TM+1)
def stats_tail1():
    S, Q = S_, Q_
    A(f"v_permlane16_swap_b32 {S}, {Q}")
    A(f"v_add_f32 {S}, {S}, {Q}")
    for k in (8, 4, 2, 1):
        A(f"v_add_f32_dpp {S}, {S}, {S} row_ror:{k} row_mask:0xf bank_mask:0xf")
    A(f"v_mul_f32 {Q}, {f32(1/576)}, {S}")
    A(f"v_mul_f32 {S}, {f32(1/576)}, {S}")
def stats_tail2():
    S, Q = S_, Q_
    A(f"v_permlane16_swap_b32 {S}, {Q}")
    A(f"v_fma_f32 {Q}, -{S}, {S}, {Q}")
    A(f"v_max_f32 {Q}, 0, {Q}")
    A(f"v_cvt_pk_bf16_f32 {Q}, {S}, {Q}")
    A(f"v_lshlrev_b32 {S}, 16, {Q}")
    A(f"v_and_b32 {Q}, 0xffff0000, {Q}")
    A(f"v_add_f32 {Q}, {f32(1e-5)}, {Q}")
    rbf(Q, Q)
    A(f"v_sqrt_f32 {Q}, {Q}")
    rbf(Q, Q)
    A(f"v_rcp_f32 {Q}, {Q}")
def stats_x():
    A(f"v_mov_b32 {S_}, 0"); A(f"v_mov_b32 {Q_}, 0")
    for i in range(9):
        A(f"v_dot2c_f32_bf16 {S_}, {v(XS+i)}, {vOnes}")
        A(f"v_dot2c_f32_bf16 {Q_}, {v(XS+i)}, {v(XS+i)}")
    stats_tail1(); stats_tail2()
def zs_load(voff, so):
    return ["s_mov_b32 exec_lo, 0x3ffff", "s_mov_b32 exec_hi, 0x3ffff", f"buffer_load_dwordx2 {v(ZG,2)}, {voff}, {srd(rWS)}, {so} offen sc1", "s_mov_b64 exec, -1"]
def zero(r, n=4):
    for i in range(n): A(f"v_mov_b32 {v(r+i)}, 0")
def xs_loads(rr, so, fl):
    return [f"buffer_load_dwordx4 {v(XS,4)}, {vXS1}, {srd(rr)}, {so} offen{fl}",
            f"buffer_load_dwordx4 {v(XS+4,4)}, {vXS1}, {srd(rr)}, {so} offen offset:512{fl}",
            f"buffer_load_dword {v(XS+8)}, {vXS2}, {srd(rr)}, {so} offen offset:1024{fl}"]

A.raw(f"; @launch grid=(256,1,1) block=(256,1,1) lds={L_SIZE}")
A.raw('.amdgcn_target "amdgcn-amd-amdhsa--gfx950"')
A.raw(".text")
A.raw(f".globl {NAME}_kernel")
A.raw(".p2align 8")
A.raw(f".type {NAME}_kernel,@function")
A.raw(f"{NAME}_kernel:")
if ST:
    A("s_memrealtime s[100:101]")
    for k in range(14): A(f"s_mov_b64 s[{72+2*k}:{73+2*k}], 0")
A("s_cmp_ge_u32 s2, 256")
A("s_cbranch_scc1 L_end")
for r, off in ((rWS, 96), (rX, 0), (rWQ, 24), (rK, 8), (rV, 16), (rWO, 32)):
    A(f"s_load_dwordx2 s[{r}:{r+1}], s[0:1], {off}")
if 'kw' in args.exp: A("s_waitcnt lgkmcnt(0)"); pstamp(10)
if args.code:
    A(f"s_cmp_ge_u32 s2, {8*args.code}"); A("s_cbranch_scc1 L_nc")
    A("s_getpc_b64 s[66:67]")
    A("L_pc:")
    A(f"v_lshlrev_b32 {v(TM+8)}, 7, v0")
    A(f"v_cmp_gt_u32 vcc, L_codeend-L_pc, {v(TM+8)}")
    A("s_and_saveexec_b64 s[64:65], vcc")
    A("s_cbranch_execz L_nc2")
    A(f"global_load_dword {DUM}, {v(TM+8)}, s[66:67]")
    A("L_nc2:")
    A("s_mov_b64 exec, s[64:65]")
    A("L_nc:")
A(f"v_lshrrev_b32 {v(TM)}, 6, v0")
A(f"v_and_b32 v0, 63, v0")
A(f"v_readfirstlane_b32 {sW}, {v(TM)}")
for r, n in ((rX, 2304), (rWQ, 4718592), (rK, 33554432), (rV, 33554432), (rWS, 268435456), (rWO, 4718592)):
    A(f"s_mov_b32 s{r+2}, {n}"); A(f"s_mov_b32 s{r+3}, 0x20000")
A(f"s_and_b32 {sX}, s2, 7")
A(f"s_lshr_b32 {sJ}, s2, 3")
A("s_mov_b32 s68, 0x00ff00ff"); A("s_mov_b32 s69, 0x00ff00ff")
G, C, B2 = v(TM+3), v(TM+4), v(TM+5)
A(f"v_lshrrev_b32 {G}, 4, v0")
A(f"v_and_b32 {C}, 15, v0")
A(f"v_lshlrev_b32 {vL16}, 4, v0")
A(f"v_lshlrev_b32 {vL128}, 7, v0")
for i in range(4): A(f"v_mov_b32 {v(EM+i)}, -1")
A(f"s_lshr_b32 {t0}, {sJ}, 4"); A(f"s_lshl_b32 {t3}, {sX}, 1"); A(f"s_add_u32 {t0}, {t0}, {t3}")
A(f"s_bfe_u32 {t1}, {sJ}, 0x10003")
A(f"s_and_b32 {t2}, {sJ}, 7")
A(f"s_mul_i32 {sGf}, {sX}, {GB}")
A(f"v_bfe_u32 {B2}, v0, 2, 1")
A(f"v_mul_u32_u24 {vXAm}, 1152, {B2}")
A(f"v_lshl_add_u32 {vXAm}, {G}, 4, {vXAm}")
A(f"s_mul_i32 {t4}, {t2}, 144")
A(f"v_add_u32 {vXAq}, {t4}, {vXAm}")
for i in range(12): A(f"v_mov_b32 {v(XA+i)}, 0x3f803f80")
A(f"v_lshlrev_b32 {v(TM+6)}, 13, {G}")
A(f"v_lshl_add_u32 {v(TM+6)}, {C}, 4, {v(TM+6)}")
A(f"s_mul_i32 {t3}, {t2}, 18"); A(f"s_add_u32 {t3}, {t3}, {sW}"); A(f"s_lshl_b32 {t3}, {t3}, 15")
A(f"s_lshl_b32 {t4}, {t0}, 9"); A(f"s_add_u32 {t3}, {t3}, {t4}"); A(f"s_lshl_b32 {t4}, {t1}, 8"); A(f"s_add_u32 {sXoff}, {t3}, {t4}")
A(f"s_lshl_b32 {t4}, {sW}, 10"); A(f"s_add_u32 m0, {t4}, {L_WQ}")
A(f"s_lshl_b32 {kv0}, {t1}, 24"); A(f"s_lshl_b32 {t4}, {t0}, 20"); A(f"s_add_u32 {kv0}, {kv0}, {t4}")
A(f"s_lshl_b32 {t4}, {t2}, 15"); A(f"s_add_u32 {kv0}, {kv0}, {t4}")
A(f"s_lshl_b32 {t4}, {sW}, 13"); A(f"s_add_u32 {kv0}, {kv0}, {t4}")
A(f"s_add_u32 {kv0}, {kv0}, {3072*256}"); A(f"s_add_u32 {kv1}, {kv0}, 4096")
A(f"v_xor_b32 {v(TM+7)}, {C}, {G}")
A(f"v_lshlrev_b32 {v(TM+7)}, 4, {v(TM+7)}")
A(f"v_lshl_add_u32 {v(KA)}, {G}, 8, {v(TM+7)}")
for i in range(1, 4): A(f"v_xor_b32 {v(KA+i)}, {64*i}, {v(KA)}")
A(f"s_lshl_b32 {sL}, {sJ}, 2"); A(f"s_add_u32 {sL}, {sL}, {sW}")
A(f"s_lshl_b32 {t4}, {sL}, 9"); A(f"s_add_u32 {t4}, {t4}, {QP_O}")
A(f"v_add_u32 {vQPst}, {t4}, {vL16}")
def constants():
    A(f"v_mul_u32_u24 {vWrow}, 1152, {G}")
    A(f"v_lshl_add_u32 {vWrow}, {C}, 4, {vWrow}")
    A(f"s_cmp_lt_u32 {sJ}, 18"); A(f"s_cselect_b32 {sRole}, 1, 0")
    A(f"s_cmp_ge_u32 {sJ}, 20"); A(f"s_cselect_b32 {t4}, 2, 0"); A(f"s_cmp_lt_u32 {sW}, 3"); A(f"s_cselect_b32 {t4}, {t4}, 0"); A(f"s_or_b32 {sRole}, {sRole}, {t4}")
    A(f"s_sub_u32 {sTask}, {sJ}, 20"); A(f"s_mul_i32 {sTask}, {sTask}, 3"); A(f"s_add_u32 {sTask}, {sTask}, {sW}"); A(f"s_min_u32 {sTask}, {sTask}, 35")
    A(f"s_lshl_b32 {t3}, {sX}, 4"); A(f"s_and_b32 {t4}, {sJ}, 15"); A(f"s_add_u32 {sWo}, {t3}, {t4}"); A(f"s_mul_i32 {sWo}, {sWo}, {32*1152}")
    A(f"s_lshl_b32 {t4}, {sW}, 8"); A(f"s_add_u32 {sWo}, {sWo}, {t4}")
    for r, n in ((rW1, 5308416), (rW2, 5308416), (rOUT, 2304), (rT1, 9216), (rT2, 1152)):
        A(f"s_mov_b32 s{r+2}, {n}"); A(f"s_mov_b32 s{r+3}, 0x20000")
    A("s_mov_b32 s70, 0xffff0000"); A("s_mov_b32 s71, 0xffff0000")
    A(f"v_lshlrev_b32 {vL4}, 2, v0")
    for i in range(12, 24): A(f"v_mov_b32 {v(XA+i)}, 0x3f803f80")
    A(f"s_lshl_b32 {t4}, {sW}, 13"); A(f"s_add_u32 {t4}, {t4}, {L_K}")
    A(f"v_lshl_add_u32 {v(KR)}, {C}, 8, {v(TM+7)}"); A(f"v_add_u32 {v(KR)}, {t4}, {v(KR)}")
    for i in range(1, 4): A(f"v_xor_b32 {v(KR+i)}, {64*i}, {v(KR)}")
    T_ = [v(TM+8+i) for i in range(10)]
    A(f"v_and_b32 {T_[0]}, 1, v0")
    A(f"v_mul_u32_u24 {vIdxP}, 0xaaaa, {T_[0]}"); A(f"v_add_u32 {vIdxP}, 0x4444, {vIdxP}")
    A(f"v_and_b32 {T_[1]}, 3, v0")
    A(f"v_mul_u32_u24 {vIdxS}, 0x5555, {T_[1]}")
    A(f"v_bfe_u32 {T_[2]}, v0, 4, 1")
    A(f"v_bfe_u32 {T_[3]}, v0, 2, 2")
    A(f"v_bfe_u32 {T_[4]}, v0, 3, 1")
    A(f"v_lshrrev_b32 {T_[5]}, 5, v0")
    A(f"v_and_b32 {T_[8]}, 7, v0")
    A(f"v_and_b32 {T_[9]}, 31, v0")
    A(f"s_lshr_b32 {t3}, {sJ}, 4")
    A(f"s_lshr_b32 {t5}, {sJ}, 3")
    A(f"s_lshl_b32 {t3}, {t3}, 1"); A(f"s_lshr_b32 {t4}, {sW}, 1"); A(f"s_add_u32 {t3}, {t3}, {t4}"); A(f"s_lshl_b32 {t3}, {t3}, 14")
    A(f"s_and_b32 {t4}, {sW}, 1"); A(f"s_lshl_b32 {t4}, {t4}, 10"); A(f"s_add_u32 {t3}, {t3}, {t4}")
    A(f"s_lshl_b32 {t4}, {t1}, 8"); A(f"s_add_u32 {t3}, {t3}, {t4}"); A(f"s_add_u32 {t3}, {t3}, {QP_O}")
    A(f"v_lshl_add_u32 {vQPg}, {T_[5]}, 4, {T_[2]}"); A(f"v_lshlrev_b32 {vQPg}, 9, {vQPg}"); A(f"v_lshl_add_u32 {vQPg}, {C}, 4, {vQPg}"); A(f"v_add_u32 {vQPg}, {t3}, {vQPg}")
    A(f"v_add_u32 {vQPg2}, 4096, {vQPg}")
    A(f"s_and_b32 {t3}, {sW}, 1"); A(f"s_lshl_b32 {t3}, {t3}, 8"); A(f"s_lshr_b32 {t4}, {sW}, 1"); A(f"s_lshl_b32 {t4}, {t4}, 7"); A(f"s_add_u32 {t3}, {t3}, {t4}")
    A(f"v_bfe_u32 {T_[6]}, v0, 3, 2"); A(f"v_bfe_u32 {T_[7]}, v0, 1, 2")
    A(f"v_lshlrev_b32 {vQTw}, 5, {T_[6]}"); A(f"v_lshl_add_u32 {vQTw}, {T_[0]}, 4, {vQTw}"); A(f"v_lshl_add_u32 {vQTw}, {T_[7]}, 2, {vQTw}")
    A(f"v_lshl_add_u32 {vQTw}, {T_[5]}, 1, {vQTw}"); A(f"v_add_u32 {vQTw}, {t3}, {vQTw}")
    A(f"v_lshlrev_b32 {vQTr}, 5, {G}"); A(f"v_lshl_add_u32 {vQTr}, {T_[4]}, 7, {vQTr}"); A(f"v_lshl_add_u32 {vQTr}, {T_[0]}, 4, {vQTr}")
    A(f"v_mul_u32_u24 {vOTr}, 640, {T_[4]}"); A(f"v_lshl_add_u32 {vOTr}, {G}, 5, {vOTr}"); A(f"v_lshl_add_u32 {vOTr}, {B2}, 4, {vOTr}")
    A(f"s_mul_i32 {t3}, {sW}, 1280"); A(f"s_add_u32 {t3}, {t3}, {L_PT}")
    A(f"v_add_u32 {vPTr}, {t3}, {vOTr}"); A(f"v_add_u32 {vOTr}, {L_OT}, {vOTr}")
    A(f"v_bfe_u32 {T_[6]}, v0, 1, 4")
    A(f"v_mul_u32_u24 {vPTw}, 640, {T_[5]}"); A(f"v_lshl_add_u32 {vPTw}, {T_[6]}, 5, {vPTw}"); A(f"v_lshl_add_u32 {vPTw}, {T_[0]}, 3, {vPTw}"); A(f"v_add_u32 {vPTw}, {t3}, {vPTw}")
    A(f"v_lshrrev_b32 {vHPr}, 1, v0"); A(f"v_lshlrev_b32 {vHPr}, 4, {vHPr}"); A(f"v_lshl_add_u32 {vHPr}, {T_[0]}, 2, {vHPr}"); A(f"v_add_u32 {vHPr}, {L_HP}, {vHPr}")
    A(f"s_lshl_b32 {t3}, {sW}, 9"); A(f"s_add_u32 {t3}, {t3}, {L_HP}"); A(f"v_add_u32 {vHPw}, {t3}, {vL16}")
    A(f"s_lshl_b32 {t3}, {t5}, 9"); A(f"s_add_u32 {t3}, {t3}, {ST_O}")
    A(f"s_lshl_b32 {t4}, {t2}, 2"); A(f"s_add_u32 {t4}, {t4}, {sW}"); A(f"s_lshl_b32 {t4}, {t4}, 2"); A(f"s_add_u32 {t4}, {t4}, {t3}")
    A(f"v_lshlrev_b32 {vSTst}, 8, {T_[5]}"); A(f"v_lshl_add_u32 {vSTst}, {T_[0]}, 7, {vSTst}"); A(f"v_add_u32 {vSTst}, {t4}, {vSTst}")
    A(f"s_lshl_b32 {t3}, {t1}, 1"); A(f"s_lshr_b32 {t4}, {sW}, 1"); A(f"s_add_u32 {t3}, {t3}, {t4}"); A(f"s_lshl_b32 {t3}, {t3}, 9"); A(f"s_add_u32 {t3}, {t3}, {ST_O}")
    A(f"s_lshr_b32 {t4}, {t2}, 2"); A(f"s_lshl_b32 {t4}, {t4}, 8"); A(f"s_add_u32 {t3}, {t3}, {t4}")
    A(f"v_lshrrev_b32 {T_[7]}, 3, v0")
    A(f"v_lshl_add_u32 {vSTg}, {T_[7]}, 4, {t3}")
    A(f"s_and_b32 {t4}, {sW}, 1"); A(f"s_lshl_b32 {t4}, {t4}, 3"); A(f"v_add_u32 {vSTm}, {t4}, {vSTg}")
    A(f"s_lshr_b32 {t3}, {sJ}, 4"); A(f"s_lshl_b32 {t3}, {t3}, 15"); A(f"s_lshl_b32 {t4}, {t1}, 11"); A(f"s_add_u32 {t3}, {t3}, {t4}")
    A(f"s_lshl_b32 {t4}, {sW}, 9"); A(f"s_add_u32 {t3}, {t3}, {t4}"); A(f"s_lshl_b32 {t4}, {t2}, 6"); A(f"s_add_u32 {t3}, {t3}, {t4}")
    A(f"v_lshlrev_b32 {T_[6]}, 4, {T_[1]}"); A(f"v_lshl_add_u32 {T_[6]}, {T_[2]}, 3, {T_[6]}")
    A(f"v_lshl_add_u32 {vOPst}, {T_[5]}, 2, {T_[3]}"); A(f"v_lshl_add_u32 {vOPst}, {vOPst}, 12, {T_[6]}"); A(f"v_add_u32 {vOPst}, {t3}, {vOPst}")
    A(f"s_and_b32 {t3}, {sJ}, 15"); A(f"s_lshl_b32 {t3}, {t3}, 12"); A(f"s_lshl_b32 {t4}, {sW}, 10"); A(f"s_add_u32 {t3}, {t3}, {t4}"); A(f"v_lshl_add_u32 {vOPg}, v0, 3, {t3}")
    A(f"s_lshr_b32 {t3}, {sW}, 1"); A(f"s_mul_i32 {t3}, {t3}, 640"); A(f"s_and_b32 {t4}, {sW}, 1"); A(f"s_lshl_b32 {t4}, {t4}, 1"); A(f"s_add_u32 {t3}, {t3}, {t4}"); A(f"s_add_u32 {t3}, {t3}, {L_OT}")
    A(f"v_mul_u32_u24 {vOTw}, 20, {T_[4]}"); A(f"v_lshl_add_u32 {vOTw}, {T_[8]}, 6, {vOTw}"); A(f"v_lshl_add_u32 {vOTw}, {T_[5]}, 5, {vOTw}")
    A(f"v_lshl_add_u32 {vOTw}, {T_[2]}, 3, {vOTw}"); A(f"v_add_u32 {vOTw}, {t3}, {vOTw}")
    A(f"s_mul_i32 {t3}, {sW}, {4*1152}"); A(f"s_lshl_b32 {t4}, {sJ}, 6"); A(f"s_add_u32 {t3}, {t3}, {t4}"); A(f"s_add_u32 {t3}, {t3}, {Y_O}")
    A(f"v_mul_u32_u24 {vMst}, 18, {T_[5]}"); A(f"v_add_u32 {vMst}, {vMst}, {T_[3]}"); A(f"v_mul_u32_u24 {vMst}, 1152, {vMst}")
    A(f"v_add3_u32 {vMst}, {vMst}, {T_[6]}, {t3}")
    A(f"v_subrev_u32 {vYst}, 1024, {vMst}")
    A(f"v_lshlrev_b32 {vZSg}, 3, v0")
    A(f"s_lshl_b32 {t3}, {t1}, 8"); A(f"s_add_u32 {t3}, {t3}, {ZS_O+512}"); A(f"v_lshl_add_u32 {vSTATr}, {T_[9]}, 3, {t3}")
    zero(ZG, 2)
    A(f"v_mul_u32_u24 {vXS1}, 1152, {T_[5]}"); A(f"v_lshl_add_u32 {vXS2}, {T_[9]}, 2, {vXS1}"); A(f"v_lshl_add_u32 {vXS1}, {T_[9]}, 4, {vXS1}")
    A(f"s_mul_i32 {t4}, {sW}, 384"); A(f"v_add_u32 {vXAm}, {t4}, {vXAm}")
    A(f"s_mul_i32 {t4}, {sX}, 18"); A(f"s_add_u32 {t4}, {t4}, {sJ}"); A(f"s_lshl_b32 {t5}, {t4}, 6")
    A(f"v_lshl_add_u32 {vB1}, {T_[9]}, 1, {t5}")
    A(f"s_mul_i32 {t4}, {sTask}, 1152"); A(f"s_add_u32 {t4}, {t4}, {Y_O}"); A(f"v_lshl_add_u32 {vRg}, v0, 3, {t4}")
    A(f"s_sub_u32 {t4}, {sL}, 80"); A(f"s_and_b32 {t4}, {t4}, 63"); A(f"s_lshl_b32 {t4}, {t4}, 16")
    A(f"s_lshl_b32 {t5}, {sX}, 10"); A(f"s_add_u32 {t5}, {t5}, {t4}"); A(f"v_lshl_add_u32 {vXPg}, v0, 3, {t5}")
    A(f"s_lshl_b32 {t5}, {sX}, 7"); A(f"s_add_u32 {t4}, {t4}, {t5}"); A(f"v_lshl_add_u32 {vXPst}, {T_[8]}, 4, {t4}")
    A(f"v_lshrrev_b32 {T_[7]}, 3, v0"); A(f"v_lshl_add_u32 {vXPst}, {T_[7]}, 10, {vXPst}")
    A(f"v_lshl_add_u32 {T_[7]}, {C}, 1, {T_[5]}")
    A(f"s_lshl_b32 {t4}, {sTask}, 6"); A(f"v_lshl_add_u32 {vZo}, {T_[7]}, 1, {t4}")
    A(f"v_add_u32 {vZst}, {Z1_O}, {vZo}")
    A(f"s_and_b32 {t5}, {sTask}, 7"); A(f"s_cmp_eq_u32 {t5}, {sX}"); A(f"s_cselect_b32 {t5}, 4, 0"); A(f"s_or_b32 {sRole}, {sRole}, {t5}")
    A(f"s_cmp_ge_u32 {sTask}, 18"); A(f"s_cselect_b32 {t5}, 1152, 0")
    A(f"v_subrev_u32 {vB2}, {t5}, {vZo}")
    A(f"s_cselect_b32 {t5}, {256-18*8}, 0"); A(f"s_lshl_b32 {t4}, {sTask}, 3"); A(f"s_add_u32 {t4}, {t4}, {t5}"); A(f"s_add_u32 {t4}, {t4}, {ZS_O}")
    A(f"v_lshl_add_u32 {vZSst}, {T_[2]}, 2, {t4}")

def constants1():
    A(f"v_and_b32 {v(TM+8)}, 1, v0")
    A(f"v_mul_u32_u24 {vIdxD}, 0x5555, {v(TM+8)}"); A(f"v_add_u32 {vIdxD}, 0x8888, {vIdxD}")
    A(f"v_mov_b32 {vOnes}, 0x3f803f80")
    A(f"s_lshl_b32 {t3}, {sW}, 6"); A(f"s_add_u32 {t3}, {t3}, {L_WQ}")
    A(f"v_lshlrev_b32 {vCq}, 10, {G}"); A(f"v_lshl_add_u32 {vCq}, {C}, 2, {vCq}"); A(f"v_add_u32 {vCq}, {t3}, {vCq}")
    for i in range(16, 24): A(f"v_accvgpr_write_b32 {a(aWQ+i)}, 0")
    zero(D0, 8)
    A(f"v_mul_u32_u24 {vLXr}, 144, {B2}"); A(f"v_lshl_add_u32 {vLXr}, {G}, 4, {vLXr}")
    A(f"s_lshl_b32 {t3}, {sW}, 11"); A(f"v_add_u32 {v(TM+8)}, {t3}, {vL16}")
    A(f"ds_write_b128 {v(TM+8)}, {v(D1,4)} offset:1024"); A(f"ds_write_b128 {v(TM+8)}, {v(D1,4)} offset:2048")
    A(f"s_mov_b32 {sTO}, 0x40000"); A(f"s_mov_b32 {sMode}, 0"); A(f"s_mov_b32 {sGp}, {sGf}")
def ln0(n_after):
    A(f"s_cmp_lg_u32 {sW}, 3")
    A("s_cbranch_scc1 L_c1")
    A(f"s_waitcnt vmcnt({n_after})")
    stats_x()
    for i in range(2):
        lo, hi = v(TM+8), v(TM+9)
        A(f"v_lshlrev_b32 {lo}, 16, {v(XG+i)}"); A(f"v_and_b32 {hi}, 0xffff0000, {v(XG+i)}")
        A(f"v_sub_f32 {lo}, {lo}, {S_}"); A(f"v_sub_f32 {hi}, {hi}, {S_}")
        A(f"v_cvt_pk_bf16_f32 {v(XG+i)}, {lo}, {hi}")
        A(f"v_lshlrev_b32 {lo}, 16, {v(XG+i)}"); A(f"v_and_b32 {hi}, 0xffff0000, {v(XG+i)}")
        A(f"v_mul_f32 {lo}, {lo}, {Q_}"); A(f"v_mul_f32 {hi}, {hi}, {Q_}")
        A(f"v_cvt_pk_bf16_f32 {v(XG+i)}, {lo}, {hi}")
    A(f"v_lshrrev_b32 {v(TM+8)}, 5, v0"); A(f"v_mul_u32_u24 {v(TM+8)}, 144, {v(TM+8)}"); A(f"v_and_b32 {v(TM+9)}, 31, v0"); A(f"v_lshl_add_u32 {v(TM+8)}, {v(TM+9)}, 3, {v(TM+8)}")
    A("s_mov_b32 exec_lo, 0x3ffff"); A("s_mov_b32 exec_hi, 0x3ffff")
    A(f"ds_write_b64 {v(TM+8)}, {v(XG,2)} offset:{L_X}")
    A("s_mov_b64 exec, -1")
    A("L_c1:")

fl_load = ["s_mov_b32 exec_hi, 0", f"buffer_load_dwordx4 {v(FG,4)}, {vL16}, {srd(rWS)}, {sXoff} offen sc1", "s_mov_b32 exec_hi, -1"]
qp_store = f"buffer_store_dwordx4 {v(D0,4)}, {vQPst}, {srd(rWS)}, {{so}} offen{{fl}}"
def qg(n): return [f"buffer_load_dwordx{n} {v(QG+4*p,n)}, {vQPg if p < 2 else vQPg2}, {srd(rWS)}, {sGp} offen offset:{2048*(p%2)} sc1" for p in range(4)]
qg4, qg2 = qg(4), qg(2)
if args.prew >= 1: constants1()
if args.prew >= 2: constants()
A(f"s_mov_b32 {t5}, {EP_O}")
A("s_waitcnt lgkmcnt(0)")
pstamp(0)
A("s_mov_b64 exec, 1")
A(f"buffer_load_dword {FN}, {vL16}, {srd(rWS)}, {t5} offen{NT}")
A("s_mov_b64 exec, -1")
def empty_share(base, fl):
    A(f"s_mul_i32 {t5}, {sL}, {CLR}"); A(f"s_add_u32 {t5}, {t5}, {base}")
    A(f"s_mov_b32 exec_hi, {(1 << (CLR//16-32)) - 1}")
    A(f"buffer_store_dwordx4 {v(EM,4)}, {vL16}, {srd(rWS)}, {t5} offen{fl}")
    A("s_mov_b32 exec_hi, -1")
A(f"s_cmp_lg_u32 {sW}, 3")
A("s_cbranch_scc1 L_pro2")
A(f"v_lshrrev_b32 {v(TM+8)}, 5, v0"); A(f"v_and_b32 {v(TM+9)}, 31, v0")
A(f"v_mul_u32_u24 {vXS1}, 1152, {v(TM+8)}"); A(f"v_lshl_add_u32 {vXS2}, {v(TM+9)}, 2, {vXS1}"); A(f"v_lshl_add_u32 {v(TM+10)}, {v(TM+9)}, 3, {vXS1}"); A(f"v_lshl_add_u32 {vXS1}, {v(TM+9)}, 4, {vXS1}")
for l in xs_loads(rX, 0, NT): A(l)
A(f"s_mul_i32 {t5}, {t2}, 144")
A(f"buffer_load_dwordx2 {v(XG,2)}, {v(TM+10)}, {srd(rX)}, {t5} offen{NT}")
A("L_pro2:")
for n in range(5):
    if n == 4:
        A(f"s_cmp_ge_u32 {sW}, 2"); A("s_cbranch_scc1 L_pro1")
    A(f"buffer_load_dwordx4 {v(TM+6)}, {srd(rWQ)}, {sXoff} offen{NTQ} lds")
    if n < 4: A(f"s_add_u32 {sXoff}, {sXoff}, {16*8192}"); A("s_add_u32 m0, m0, 4096")
A("L_pro1:")
empty_share(sGf, '')
A(f"s_lshl_b32 {t4}, {sW}, 13"); A(f"s_add_u32 m0, {t4}, {L_K}")
for i in range(8):
    if i == 4: A(f"s_add_u32 m0, m0, 4096")
    A(f"buffer_load_dwordx4 {v(KA+i%4)}, {srd(rK)}, {kv0 if i < 4 else kv1} offen offset:{1024*(i%4)}{NTK} lds")

pstamp(3)
for r, off in ((rW1, 48), (rW2, 64), (rOUT, 80), (rT1, 56), (rT2, 72)):
    A(f"s_load_dwordx2 s[{r}:{r+1}], s[0:1], {off}")
if args.prew < 1: constants1()
cnt = [8]
mark = {'K': 8}
def vm(s): A(s); cnt[0] += 1
A(f"s_lshl_b32 {t4}, {sL}, 9"); A(f"s_add_u32 {t4}, {t4}, {sGf}"); A(f"s_add_u32 {t4}, {t4}, {QP_O}")
A(f"s_add_u32 {sXoff}, {sGf}, {FF_O}")
A("s_mov_b64 exec, 15")
vm(f"buffer_load_dword {DUM}, {vL128}, {srd(rWS)}, {t4} offen sc1{NT}")
vm(f"buffer_load_dword {DUM}, {vL128}, {srd(rWS)}, {sXoff} offen sc1{NT}")
A("s_mov_b64 exec, -1")
def hookQ():
    ln0(4 + 1 + cnt[0])
    A(f"s_lshl_b32 {t4}, {sL}, 2"); A(f"s_add_u32 {t4}, {t4}, {sXoff}")
    A(f"s_getreg_b32 {t3}, hwreg(HW_REG_XCC_ID)"); A(f"s_lshl_b32 {t3}, {t3}, 28"); A(f"s_or_b32 {t3}, {t3}, 1")
    A(f"s_waitcnt vmcnt({cnt[0]}) lgkmcnt(0)")
    A("s_barrier")
    pstamp(2)
    for l in exec_xa(): A(l)
    for i in range(3):
        if i == 2: A("s_mov_b64 exec, 0x33")
        A(f"ds_read_b128 {v(XA+4*i,4)}, {vLXr} offset:{L_X+64*i}")
    A("s_mov_b64 exec, -1")
    for i in range(2):
        for vv in range(0, 8, 2):
            row = 32*i + 16*(vv >> 2) + (vv & 3)
            A(f"ds_read2st64_b32 {a(aWQ+8*i+vv,2)}, {vCq} offset0:{row} offset1:{row+1}")
    A("s_mov_b32 exec_hi, 0")
    for vv in (0, 2): A(f"ds_read2st64_b32 {a(aWQ+16+vv,2)}, {vCq} offset0:{64+vv} offset1:{65+vv}")
    A("s_mov_b32 exec_hi, -1")
    A(f"v_readfirstlane_b32 {sFlag}, {FN}")
    A(f"s_add_u32 {sFlag}, {sFlag}, 0x0e377902"); A(f"s_and_b32 {sFlag}, {sFlag}, 0x0fffffff"); A(f"s_or_b32 {sFlag}, {sFlag}, {t3}")
    A(f"v_mov_b32 {FN}, {sFlag}")
    A("s_mov_b64 exec, 1")
    vm(f"buffer_store_dword {FN}, {vL16}, {srd(rWS)}, {t4} offen")
    A("s_mov_b64 exec, -1")
    A(f"v_and_b32 {vTag}, 0xff, {FN}"); A(f"s_movk_i32 {t4}, 0xff")
    A("s_waitcnt lgkmcnt(0)")
    for i in range(3): sm(D0, XA+4*i, aWQ+8*i, vIdxD)
    for i in range(4): A(f"v_bfi_b32 {v(D0+i)}, {t4}, {vTag}, {v(D0+i)}")
    A("s_mov_b32 exec_hi, 0")
    vm(qp_store.format(so=sGf, fl=''))
    A("s_mov_b32 exec_hi, -1")
    pstamp(1)
for k in range(9):
    if k == args.pQ: hookQ()
    if k == 8 - args.vw: mark['V'] = cnt[0]
    if k < 8: vm(f"buffer_load_dwordx4 {a(aV+4*k,4)}, {vL16}, {srd(rV)}, {kv0 if k < 4 else kv1} offen offset:{1024*(k%4)}{NTV}")
    if k == 7: pstamp(9)
TT = v(TM+4)
def slots_touch():
    A(f"s_lshl_b32 {t1}, {sJ}, 2"); A(f"s_add_u32 {t1}, {t1}, {sW}")
    A(f"s_mul_i32 {t3}, {t1}, 896"); A(f"s_add_u32 {t3}, {t3}, {sGf}"); A(f"s_add_u32 {t3}, {t3}, {Y_O}")
    A("s_mov_b64 exec, 0x7f")
    A(f"buffer_load_dword {DUM}, {vL128}, {srd(rWS)}, {t3} offen sc1{NT}")
    A("s_mov_b64 exec, -1")
assert Y_O + 64 * 896 >= ZS_O + 1536
def w1_touch():
    A(f"s_lshl_b32 {t1}, {sJ}, 2"); A(f"s_add_u32 {t1}, {t1}, {sW}")
    A(f"s_mul_i32 {t4}, {sX}, 576"); A(f"s_add_u32 {t4}, {t4}, {t1}"); A(f"s_add_u32 {t4}, {t4}, 512"); A(f"s_mul_i32 {t4}, {t4}, 1152")
    A(f"s_mul_i32 {t1}, {t1}, {9*9216}")
    A(f"s_mul_i32 {t3}, {sX}, 1152"); A(f"s_add_u32 {t1}, {t1}, {t3}"); A(f"s_add_u32 {t3}, {t1}, {5*9216}")
    A(f"v_mul_u32_u24 {TT}, 57, v0"); A(f"v_lshrrev_b32 {TT}, 9, {TT}"); A(f"v_mul_u32_u24 {TT}, {9216-1152}, {TT}"); A(f"v_add_u32 {TT}, {TT}, {vL128}")
    A("s_mov_b32 exec_hi, 0x1fff")
    A(f"buffer_load_dword {DUM}, {TT}, {srd(rW1)}, {t1} offen{NTT}")
    A("s_mov_b32 exec_hi, 15")
    A(f"buffer_load_dword {DUM}, {TT}, {srd(rW1)}, {t3} offen{NTT}")
    A("s_mov_b64 exec, 0x1ff")
    A(f"buffer_load_dword {DUM}, {vL128}, {srd(rW2)}, {t4} offen{NTT}")
    A("s_mov_b64 exec, -1")
def w2_loads():
    l1 = A.newlabel('L_w2')
    A(f"s_mul_i32 {t0}, {sX}, 18"); A(f"s_add_u32 {t0}, {t0}, {sJ}"); A(f"s_mul_i32 {t0}, {t0}, {32*1152}")
    A(f"s_lshl_b32 {t1}, {sW}, 8"); A(f"s_add_u32 {t1}, {t1}, {t0}")
    for i in range(8):
        A(f"buffer_load_dwordx4 {a(aW2+4*i,4)}, {vWrow}, {srd(rW2)}, {t1} offen{NT2}")
        if i < 7: A(f"s_add_u32 {t1}, {t1}, 4608")
    A(f"s_cmp_lg_u32 {sW}, 3")
    A(f"s_cbranch_scc1 {l1}")
    A(f"s_mov_b64 exec, {mLO8}")
    for i in range(8):
        A(f"buffer_load_dwordx4 {a(aW2t+4*i,4)}, {vWrow}, {srd(rW2)}, {t0} offen offset:1024{NT2}")
        if i < 7: A(f"s_add_u32 {t0}, {t0}, 4608")
    A("s_mov_b64 exec, -1")
    A(f"{l1}:")
def wo_loads(k0, k1, with_tail):
    for k in range(k0, k1):
        A(f"buffer_load_dwordx4 {a(aWO+4*k,4)}, {vWrow}, {srd(rWO)}, {sWo} offen{NTO}")
        A(f"s_add_u32 {sWo}, {sWo}, 4608")
    if with_tail:
        l1 = A.newlabel('L_wt')
        A(f"s_cmp_lg_u32 {sW}, 3")
        A(f"s_cbranch_scc1 {l1}")
        A(f"s_mov_b64 exec, {mLO8}")
        for i in range(7, -1, -1):
            A(f"s_sub_u32 {sWo}, {sWo}, 4608")
            A(f"buffer_load_dwordx4 {a(aWOt+4*i,4)}, {vWrow}, {srd(rWO)}, {sWo} offen offset:256{NTO}")
        A("s_mov_b64 exec, -1")
        A(f"{l1}:")
if args.prew < 2: constants()
pstamp(4)
stamp()
A("s_waitcnt lgkmcnt(0)")
A(f"s_mov_b32 {sXPo}, {XP_O}")
A(f"s_cmp_lt_u32 {sJ}, 16")
A("s_cbranch_scc1 L_g1n")
A(f"v_readfirstlane_b32 {t4}, {vOPg}"); A(f"v_readfirstlane_b32 {t5}, {vSTg}")
A(f"s_add_u32 {t4}, {t4}, {sGf}"); A(f"s_add_u32 {t5}, {t5}, {sGf}")
A("s_mov_b64 exec, 0xff")
A(f"buffer_load_dword {DUM}, {vL128}, {srd(rWS)}, {t4} offen sc1{NT}")
A("s_mov_b64 exec, 3")
A(f"buffer_load_dword {DUM}, {vL128}, {srd(rWS)}, {t5} offen sc1{NT}")
A("s_mov_b64 exec, -1")
A(f"buffer_load_ushort {vXres}, {vZo}, {srd(rX)}, 0 offen{NT}")
A(f"buffer_load_ushort {vB2}, {vB2}, {srd(rT2)}, 0 offen{NT}")
wo_loads(0, 8, True)
A("s_branch L_g1o")
A("L_g1n:")
if 's' in args.early: slots_touch()
if '1' in args.early: w1_touch()
if '2' in args.early: w2_loads()
A("L_g1o:")
pstamp(6)
A("s_waitcnt vmcnt(8)")
for T in range(2):
    for q in range(4): A(f"ds_read_b128 {a(aK+16*T+4*q,4)}, {v(KR+q)} offset:{4096*T}")
A(f"s_waitcnt vmcnt({args.vw})")
if ST and not args.pro and ONLY is None: A(f"s_memrealtime s[74:75]")
pstamp(5)
def flags_diff():
    A(f"v_xor_b32 {CK}, {sFlag}, {v(FG)}")
    for i in range(1, 4): A(f"v_bitop3_b32 {CK}, {CK}, {v(FG+i)}, {sFlag} bitop3:0xf6")
st_rd = f"ds_read_b64 {v(TM,2)}, {vSTATr}"
A("L_g4:")
for l in fl_load + qg4: A(l)
A("s_waitcnt vmcnt(0)")
pstamp(7)
flags_diff()
A(f"v_cmp_ne_u32 vcc, 0, {CK}")
A("s_cmp_lg_u32 vcc_lo, 0")
if args.forcefb: A("s_cmp_eq_u32 0, 0")
A("s_cbranch_scc1 L_af2")
A(f"s_mov_b32 {sMode}, 0")
A("L_g2:")
for i in range(16): A(f"v_xor_b32 {v(QG+i)}, {vTag}, {v(QG+i)}")
A(f"v_or3_b32 {CK}, {v(QG)}, {v(QG+1)}, {v(QG+2)}")
for i in range(3, 15, 2): A(f"v_or3_b32 {CK}, {CK}, {v(QG+i)}, {v(QG+i+1)}")
A(f"v_or_b32 {CK}, {CK}, {v(QG+15)}")
A(f"v_and_b32 {CK}, 0xff, {CK}")
A(f"v_cmp_ne_u32 vcc, 0, {CK}")
A("s_cbranch_vccnz L_g5")
A("L_g3:")
A(f"s_mov_b32 {sL}, 0")
zero(D0)
A(f"v_mov_b32 {v(TM)}, 0"); A(f"v_mov_b32 {v(TM+1)}, 1.0")
tail.append("L_g5:\n" + timeout("L_g4", "L_g3"))
pstamp(8)
A(f"v_add_f32 {v(TM+2)}, {v(QG+2)}, {v(QG+6)}"); A(f"v_add_f32 {v(TM+3)}, {v(QG+3)}, {v(QG+7)}")
A(f"v_add_f32 {v(TM+4)}, {v(QG+10)}, {v(QG+14)}"); A(f"v_add_f32 {v(TM+5)}, {v(QG+11)}, {v(QG+15)}")
A(f"v_add_f32 {v(TM+2)}, {v(TM+2)}, {v(TM+4)}"); A(f"v_add_f32 {v(TM+3)}, {v(TM+3)}, {v(TM+5)}")
A(f"v_permlane32_swap_b32 {v(TM+2)}, {v(TM+3)}")
A(f"v_add_f32 {vCq}, {v(TM+2)}, {v(TM+3)}")
A("s_branch L_qfin")

A("L_layer:")
zero(D0, 8)
def quiet_wait(so_add):
    if not args.pre: return
    A(f"s_add_u32 {t5}, {sGp}, {so_add}")
    A("s_mov_b64 exec, 1")
    poll([f"buffer_load_dword {DUM}, {vL16}, {srd(rWS)}, {t5} offen sc1"] + ([f"s_sleep {args.pre-1}"] if args.pre > 1 else []), [DUM])
    A("s_mov_b64 exec, -1")
    if args.zd: A(f"s_sleep {args.zd}")
if args.pre:
    A(f"s_bitcmp1_b32 {sRole}, 1"); A("s_cbranch_scc1 L_q0")
    quiet_wait(AN_O)
    A("L_q0:")
def q_pub():
    A(f"v_and_b32 {v(D0)}, -2, {v(D0)}"); A(f"v_and_b32 {v(D0+1)}, -2, {v(D0+1)}")
    A("s_mov_b32 exec_hi, 0")
    pub(f"buffer_store_dwordx2 {v(D0,2)}, {vQPst}, {srd(rWS)}, {{so}} offen{{fl}}")
    A("s_mov_b32 exec_hi, -1")
poll_proj(vXAq, sXoff, 3, aWQ, True)
q_pub()
nst[0] = 1
stamp()
zero(D0)
qregs = [v(QG+4*p+i) for p in range(4) for i in range(2)]
qchk1 = [f"v_or3_b32 {CK}, {qregs[0]}, {qregs[1]}, {qregs[2]}", f"v_or3_b32 {CK}, {CK}, {qregs[3]}, {qregs[4]}", f"v_or3_b32 {CK}, {CK}, {qregs[5]}, {qregs[6]}",
         f"v_bitop3_b32 {CK}, {CK}, {qregs[7]}, 1 bitop3:0xa8", f"v_cmp_ne_u32 vcc, 0, {CK}"]
poll(zs_load(vSTATr, sGp), [v(ZG), v(ZG+1)])
for l in qg2: A(l)
A(f"v_mov_b32 {S_}, {v(ZG)}"); A(f"v_mov_b32 {Q_}, {v(ZG+1)}")
stats_tail1(); stats_tail2()
poll(qg2, qregs, primed=True, chk=qchk1, site='q')
A("L_qfin:")
stamp()
A(f"v_add_f32 {v(TM+2)}, {v(QG)}, {v(QG+4)}"); A(f"v_add_f32 {v(TM+3)}, {v(QG+1)}, {v(QG+5)}")
A(f"v_add_f32 {v(TM+4)}, {v(QG+8)}, {v(QG+12)}"); A(f"v_add_f32 {v(TM+5)}, {v(QG+9)}, {v(QG+13)}")
A(f"v_add_f32 {v(TM+2)}, {v(TM+2)}, {v(TM+4)}"); A(f"v_add_f32 {v(TM+3)}, {v(TM+3)}, {v(TM+5)}")
A(f"v_permlane32_swap_b32 {v(TM+2)}, {v(TM+3)}")
A(f"v_add_f32 {v(TM+2)}, {v(TM+2)}, {v(TM+3)}")
A(f"v_fma_f32 {v(TM+2)}, -{v(TM)}, {vCq}, {v(TM+2)}")
A(f"v_mul_f32 {v(TM+2)}, {v(TM+2)}, {v(TM+1)}")
A(f"v_cvt_pk_bf16_f32 {v(TM+2)}, {v(TM+2)}, {v(TM+2)}")
A(f"ds_write_b16 {vQTw}, {v(TM+2)} offset:{L_QT}")
A("s_mov_b32 vcc_lo, 0xaaaaaaaa"); A("s_mov_b32 vcc_hi, 0xaaaaaaaa")
zero(DP)
A("s_waitcnt lgkmcnt(0)")
A("s_barrier")
A(f"ds_read_b128 {v(AO,4)}, {vQTr} offset:{L_QT}")
A(f"ds_read_b128 {v(AO+4,4)}, {vQTr} offset:{L_QT+256}")
if args.mid:
    A(f"s_lshr_b32 {t0}, {sJ}, 4"); A(f"s_or_b32 {t0}, {t0}, {sL}")
    A("s_cbranch_scc1 L_mid")
    if 's' in args.mid: slots_touch()
    if '1' in args.mid: w1_touch()
    if '2' in args.mid: w2_loads()
    A("L_mid:")
A(f"s_waitcnt lgkmcnt({lg(1)})")
sm(D0, AO, aK, vIdxP); sm(D1, AO, aK+16, vIdxP)
A("s_waitcnt lgkmcnt(0)")
sm(D0, AO+4, aK+8, vIdxP); sm(D1, AO+4, aK+24, vIdxP)
SC, MX, P_, LS, TT = v(TM), v(TM+1), v(TM+2), v(TM+3), v(TM+4)
A(f"v_add_f32 {SC}, {v(D0)}, {v(D0+1)}")
A(f"v_add_f32 {TT}, {v(D1)}, {v(D1+1)}")
A(f"v_cndmask_b32 {SC}, {SC}, {TT}, {mROW}")
rbf(SC, SC)
A(f"v_mul_f32 {SC}, {f32(128 ** -0.5)}, {SC}")
rbf(SC, SC)
A(f"v_mul_f32 {SC}, {f32(1.4426950408889634)}, {SC}")
zero(D0, 2)
A(f"v_max_f32_dpp {MX}, {SC}, {SC} row_ror:8 row_mask:0xf bank_mask:0xf")
for n, k in enumerate((4, 2, 1)):
    zero(D0+2+2*n, 2)
    if k == 1: A(f"v_max_f32_dpp {TT}, {MX}, {MX} row_ror:{k} row_mask:0xf bank_mask:0xf")
    A(f"v_max_f32_dpp {MX}, {MX}, {MX} row_ror:{k} row_mask:0xf bank_mask:0xf")
A(f"v_permlane16_swap_b32 {MX}, {TT}")
A(f"v_max_f32 {MX}, {MX}, {TT}")
A(f"v_sub_f32 {P_}, {SC}, {MX}")
A(f"v_exp_f32 {P_}, {P_}")
A(f"v_cvt_pk_bf16_f32 {TT}, {P_}, 0")
A(f"ds_write2_b32 {vPTw}, {TT}, {TT} offset1:5")
for i in range(4): A(f"ds_read_b128 {v(AO+4*i,4)}, {vPTr} offset:{128*i}")
A(f"v_add_f32_dpp {LS}, {P_}, {P_} row_ror:8 row_mask:0xf bank_mask:0xf")
for k in (4, 2, 1): A(f"v_add_f32_dpp {LS}, {LS}, {LS} row_ror:{k} row_mask:0xf bank_mask:0xf")
A(f"v_mov_b32 {SC}, {LS}")
A(f"v_permlane16_swap_b32 {LS}, {SC}")
A(f"v_add_f32 {LS}, {LS}, {SC}")
A(f"v_cndmask_b32 {SC}, {MX}, {LS}, vcc")
A("s_mov_b32 exec_lo, 3"); A("s_mov_b32 exec_hi, 3")
pub(f"buffer_store_dword {SC}, {vSTst}, {srd(rWS)}, {{so}} offen{{fl}}")
A("s_mov_b64 exec, -1")
for i in range(4):
    A(f"s_waitcnt lgkmcnt({lg(3-i)})")
    sm(DP, AO+4*i, aV+8*i, vIdxS)
def pack4(d):
    A(f"v_cvt_pk_bf16_f32 {v(d)}, {v(d)}, {v(d+1)}"); A(f"v_cvt_pk_bf16_f32 {v(d+1)}, {v(d+2)}, {v(d+3)}")
pack4(DP)
pub(f"buffer_store_dwordx2 {v(DP,2)}, {vOPst}, {srd(rWS)}, {{so}} offen{{fl}}")
stamp()
E = TM + 5
R = TM + 12
def tile_out(wb, tb, vst, drain):
    l1 = A.newlabel('L_t'); l2 = A.newlabel('L_t')
    for i in range(4):
        A(f"s_waitcnt lgkmcnt({lg(3-i)})")
        sm(D0, AO+4*i, wb+8*i, vIdxS)
    A(f"s_cmp_lg_u32 {sW}, 3")
    A(f"s_cbranch_scc1 {l1}")
    for i in range(1 if 'notail' in args.exp else 4): sm(D1, AO+4*i, tb+8*i, vIdxS)
    A(f"{l1}:")
    A("s_waitcnt vmcnt(0)" if drain else "s_nop 0")
    A("s_nop 4")
    pack4(D0)
    pub(f"buffer_store_dwordx2 {v(D0,2)}, {vst}, {srd(rWS)}, {{so}} offen{{fl}}")
    A(f"s_cmp_lg_u32 {sW}, 3")
    A(f"s_cbranch_scc1 {l2}")
    pack4(D1)
    A(f"s_mov_b64 exec, {mLO8}")
    pub(f"buffer_store_dwordx2 {v(D1,2)}, {v(E+2)}, {srd(rWS)}, {{so}} offen{{fl}}")
    A("s_mov_b64 exec, -1")
    A(f"{l2}:")
A(f"s_cmp_lt_u32 {sJ}, 16")
A("s_cbranch_scc1 L_mlp")
op_load = [f"buffer_load_dwordx2 {v(OG+2*i,2)}, {vOPg}, {srd(rWS)}, {sGp} offen offset:{512*i} sc1" for i in range(2)]
A(f"v_add_u32 {v(E+6)}, {4*1152}, {vYst}")
if args.sd: A(f"s_sleep {args.sd}")
if 'nost' not in args.exp.split(','): poll([f"buffer_load_dwordx4 {v(SG,4)}, {vSTg}, {srd(rWS)}, {sGp} offen sc1",
      f"buffer_load_dwordx4 {v(SG+4,4)}, {vSTg}, {srd(rWS)}, {sGp} offen offset:128 sc1",
      f"buffer_load_dwordx2 {v(SG+8,2)}, {vSTm}, {srd(rWS)}, {sGp} offen sc1"], [v(SG+i) for i in range(10 if 's' in PD else 8)], site='s')
for l in op_load: A(l)
if 'noweights' in args.exp: A("s_branch L_exw")
A(f"v_max3_f32 {MX}, {v(SG)}, {v(SG+1)}, {v(SG+2)}")
A(f"v_max_f32 {MX}, {MX}, {v(SG+3)}")
A(f"v_max_f32_dpp {TT}, {MX}, {MX} row_ror:8 row_mask:0xf bank_mask:0xf")
A(f"v_max_f32_dpp {MX}, {MX}, {MX} row_ror:8 row_mask:0xf bank_mask:0xf")
A(f"v_permlane16_swap_b32 {MX}, {TT}"); A(f"v_max_f32 {SC}, {MX}, {TT}"); A(f"v_max_f32 {MX}, {MX}, {TT}")
A(f"v_permlane32_swap_b32 {MX}, {SC}"); A(f"v_max_f32 {MX}, {MX}, {SC}")
for n, i in enumerate((0, 1, 2, 3, 8, 9)): A(f"v_sub_f32 {v(E+n)}, {v(SG+i)}, {MX}")
for n in range(6): A(f"v_exp_f32 {v(E+n)}, {v(E+n)}")
A(f"v_mul_f32 {LS}, {v(E)}, {v(SG+4)}")
for i in (1, 2, 3): A(f"v_fmac_f32 {LS}, {v(E+i)}, {v(SG+4+i)}")
A(f"v_add_f32_dpp {TT}, {LS}, {LS} row_ror:8 row_mask:0xf bank_mask:0xf")
A(f"v_add_f32_dpp {LS}, {LS}, {LS} row_ror:8 row_mask:0xf bank_mask:0xf")
A(f"v_permlane16_swap_b32 {LS}, {TT}"); A(f"v_add_f32 {SC}, {LS}, {TT}"); A(f"v_add_f32 {LS}, {LS}, {TT}")
A("L_exw:")
poll(op_load, [v(OG+i) for i in range(4)], primed=True, site='o')
stamp()
A(f"v_permlane32_swap_b32 {LS}, {SC}")
def unpack2(dst, src):
    for i in range(2):
        A(f"v_lshlrev_b32 {v(dst+2*i)}, 16, {v(src+i)}"); A(f"v_and_b32 {v(dst+2*i+1)}, 0xffff0000, {v(src+i)}")
unpack2(R, OG); unpack2(OG+4, OG+2)
for i in (0, 2): A(f"v_pk_mul_f32 {v(R+i,2)}, {v(R+i,2)}, {v(E+3,2)} op_sel:[0,1] op_sel_hi:[1,1]")
for i in (0, 2): A(f"v_pk_fma_f32 {v(R+i,2)}, {v(OG+4+i,2)}, {v(E+5,2)}, {v(R+i,2)} op_sel_hi:[1,0,1]")
A(f"v_add_f32 {LS}, {LS}, {SC}")
A(f"v_mov_b32 {v(E+2)}, {v(E+6)}")
A(f"v_permlane32_swap_b32 {v(R)}, {v(R+2)}")
A(f"v_permlane32_swap_b32 {v(R+1)}, {v(R+3)}")
A(f"v_add_f32 {v(R)}, {v(R)}, {v(R+2)}")
A(f"v_add_f32 {v(R+1)}, {v(R+1)}, {v(R+3)}")
A(f"v_rcp_f32 {LS}, {LS}")
A(f"v_permlane16_swap_b32 {v(R)}, {v(R+1)}")
A(f"v_add_f32 {v(R)}, {v(R)}, {v(R+1)}")
A(f"v_add_f32_dpp {v(R)}, {v(R)}, {v(R)} row_ror:8 row_mask:0xf bank_mask:0xf")
A(f"v_mul_f32 {v(R)}, {v(R)}, {LS}")
A(f"v_cvt_pk_bf16_f32 {TT}, {v(R)}, {v(R)}")
A(f"ds_write_b16 {vOTw}, {TT}")
A(f"s_cmp_lg_u32 {sL}, 0")
A("s_cbranch_scc1 L_o3")
pub(*[f"buffer_store_dwordx2 {v(EM,2)}, {vOPg}, {srd(rWS)}, {{so}} offen offset:{512*i}{{fl}}" for i in range(2)])
A("L_o3:")
A("s_waitcnt lgkmcnt(0)")
A("s_barrier")
for i in range(4): A(f"ds_read_b128 {v(AO+4*i,4)}, {vOTr} offset:{128*i}")
tile_out(aWO, aWOt, vYst, True)
stamp()

def reducer(kind):
    ld = [f"buffer_load_dwordx2 {v(YG+2*i,2)}, {vRg}, {srd(rWS)}, {sGp} offen offset:{512*i} sc1" for i in range(2)]
    A(f"s_movk_i32 {t4}, 0xff"); A(f"s_add_u32 {t3}, {sXPo}, 8192")
    zero(R)
    if kind == 'A': zero(YG+4, 2)
    if kind == 'A':
        if args.yd: A(f"s_sleep {args.yd}")
        poll(ld, [v(YG+i) for i in range(4)], site='y')
    else:
        poll(ld + ["s_mov_b64 exec, 0xffff", f"buffer_load_dwordx2 {v(YG+4,2)}, {vRg}, {srd(rWS)}, {sGp} offen offset:1024 sc1", "s_mov_b64 exec, -1"],
             [v(YG+i) for i in range(6)], site='y')
    stamp()
    A(f"v_smfmac_f32_16x16x64_bf16 {v(R,4)}, {v(YG+8,4)}, {v(YG,8)}, {vIdxS}")
    for i in range(4): A(f"v_add_f32_dpp {v(R+i)}, {v(R+i)}, {v(R+i)} row_ror:8 row_mask:0xf bank_mask:0xf")
    for i in range(4): A(f"v_bfi_b32 {v(R+i)}, {t4}, {vTag}, {v(R+i)}")
    A(f"buffer_store_dwordx4 {v(R,4)}, {vXPst}, {srd(rWS)}, {sXPo} offen sc1")
    if args.near: A(f"buffer_store_dwordx4 {v(R,4)}, {vXPst}, {srd(rWS)}, {t3} offen sc1")
    if kind == 'M':
        A(f"s_lshl_b32 {t0}, {sL}, 2"); A(f"s_andn2_b32 {t0}, {t0}, {sRole}")
        A("s_cbranch_scc1 L_fin")
    cl = [f"buffer_store_dwordx2 {v(EM,2)}, {vRg}, {srd(rWS)}, {{so}} offen offset:{512*i}{{fl}}" for i in range(2)]
    if kind == 'M': cl += ["s_mov_b64 exec, 0xffff", f"buffer_store_dwordx2 {v(EM,2)}, {vRg}, {srd(rWS)}, {{so}} offen offset:1024{{fl}}", "s_mov_b64 exec, -1"]
    pub(*cl)
    if args.pre:
        lb = A.newlabel('L_an')
        A(f"s_cmp_lg_u32 {sTask}, 0"); A(f"s_cbranch_scc1 {lb}")
        if kind == 'A': A(f"s_cmp_eq_u32 {sL}, 0"); A(f"s_cbranch_scc1 {lb}")
        A(f"v_mov_b32 {TT}, {AN_O + (0 if kind == 'M' else 4)}")
        A("s_mov_b64 exec, 1")
        pub(f"buffer_store_dword {vL16}, {TT}, {srd(rWS)}, {{so}} offen{{fl}}")
        A("s_mov_b64 exec, -1")
        A(f"{lb}:")
    if args.near:
        A(f"v_mov_b32 {TT}, 0")
        A(f"ds_read_b32 {TT}, {TT} offset:{L_NEAR}")
    if args.xd: A(f"s_sleep {args.xd}")
    if args.near:
        A("s_waitcnt lgkmcnt(0)")
        A(f"v_or_b32 {vXPg}, {vXPg}, {TT}")
    poll([f"buffer_load_dwordx2 {v(XG,2)}, {vXPg}, {srd(rWS)}, {sXPo} offen sc1",
          f"buffer_load_dwordx2 {v(XG+2,2)}, {vXPg}, {srd(rWS)}, {sXPo} offen offset:512 sc1"], None, site='x',
         chk=[f"v_xor_b32 {v(R+i)}, {vTag}, {v(XG+i)}" for i in range(4)] +
             [f"v_or3_b32 {CK}, {v(R)}, {v(R+1)}, {v(R+2)}", f"v_bitop3_b32 {CK}, {CK}, {v(R+3)}, {t4} bitop3:0xa8", f"v_cmp_ne_u32 vcc, 0, {CK}"])
    stamp()
    Y = v(R)
    A(f"v_add_f32 {v(R)}, {v(R)}, {v(R+2)}"); A(f"v_add_f32 {v(R+1)}, {v(R+1)}, {v(R+3)}")
    A(f"v_permlane32_swap_b32 {v(R)}, {v(R+1)}")
    A(f"v_add_f32 {TT}, {v(R)}, {v(R+1)}"); A(f"v_add_f32 {Y}, {v(R)}, {v(R+1)}")
    A(f"v_permlane16_swap_b32 {Y}, {TT}"); A(f"v_add_f32 {Y}, {Y}, {TT}")
    rbf(Y, Y)
    if kind == 'M':
        A(f"v_add_f32 {Y}, {Y}, {vB2}"); rbf(Y, Y)
    A(f"v_add_f32 {TT}, {Y}, {vXres}")
    A(f"v_add_f32 {v(R+1)}, {Y}, {vXres}")
    A(f"v_add_f32 {Y}, {Y}, {vXres}")
    A("s_mov_b64 exec, -1")
    A(f"v_permlane32_swap_b32 {TT}, {v(R+1)}")
    A(f"v_cvt_pk_bf16_f32 {TT}, {TT}, {v(R+1)}")
    A("s_mov_b64 exec, 0xffff")
    if kind == 'M':
        A(f"s_cmp_lg_u32 {sL}, 0")
        A("s_cbranch_scc1 L_out")
    pub(f"buffer_store_dword {TT}, {vZst}, {srd(rWS)}, {{so}} offen{{fl}}")
    A("s_mov_b64 exec, -1")
    stamp()
    rbf(vXres, Y)
    if kind == 'M' or args.ms != 'x':
        A(f"v_mul_f32 {TT}, {vXres}, {vXres}")
        A(f"v_cndmask_b32 {TT}, {vXres}, {TT}, {mROW}")
        for k in (8, 4, 2): A(f"v_add_f32_dpp {TT}, {TT}, {TT} row_ror:{k} row_mask:0xf bank_mask:0xf")
        A(f"v_add_f32_dpp {Y}, {TT}, {TT} row_ror:1 row_mask:0xf bank_mask:0xf")
        A(f"v_add_f32_dpp {TT}, {TT}, {TT} row_ror:1 row_mask:0xf bank_mask:0xf")
        A(f"v_permlane32_swap_b32 {TT}, {Y}")
        A(f"v_add_f32 {TT}, {TT}, {Y}")
        A("s_mov_b64 exec, 0x10001")
        pub(f"buffer_store_dword {TT}, {vZSst}, {srd(rWS)}, {{so}} offen{{fl}}")
        A("s_mov_b64 exec, -1")
    A(f"v_add_u32 {vZSst}, 512, {vZSst}")
    A(f"v_add_u32 {vZst}, 2304, {vZst}")
    A(f"s_add_u32 {sXPo}, {sXPo}, {XPS}")

A(f"s_bitcmp1_b32 {sRole}, 0")
A("s_cbranch_scc1 L_mlp")
A(f"s_bitcmp1_b32 {sRole}, 1")
A("s_cbranch_scc0 L_probe" if args.near else "s_cbranch_scc0 L_next")
A(f"s_cmp_lg_u32 {sL}, 0")
A("s_cbranch_scc1 L_red")
A(f"v_lshlrev_b32 {vXres}, 16, {vXres}"); A(f"v_lshlrev_b32 {vB2}, 16, {vB2}")
zero(YG+6, 2)
for i in range(4): A(f"v_mov_b32 {v(YG+8+i)}, 0x3f80")
A("L_red:")
k0 = nst[0]
reducer('A'); reducer('M')
kr = nst[0]
A("s_branch L_next")
A("L_mlp:")
nst[0] = k0
A(f"s_cmp_lg_u32 {sL}, 0")
A("s_cbranch_scc1 L_m1")
A(f"s_mul_i32 {t0}, {sX}, 18"); A(f"s_add_u32 {t0}, {t0}, {sJ}")
A(f"s_lshl_b32 {t2}, {t0}, 6")
A(f"buffer_load_ushort {vB1}, {vB1}, {srd(rT1)}, 0 offen{NT}")
A(f"s_cmp_ge_u32 {sJ}, 16")
A("s_cbranch_scc1 L_m0b")
if args.xt:
    A(f"s_lshl_b32 {t1}, {sJ}, 2"); A(f"s_add_u32 {t1}, {t1}, {sW}"); A(f"s_mul_i32 {t1}, {t1}, 36")
    A(f"v_add_u32 {TT}, {t1}, v0")
    A(f"v_lshrrev_b32 {LS}, 6, {TT}"); A(f"v_mul_u32_u24 {MX}, 43, {LS}"); A(f"v_lshrrev_b32 {MX}, 7, {MX}"); A(f"v_add_u32 {LS}, {LS}, {MX}")
    A(f"v_bfe_u32 {MX}, {TT}, 3, 3"); A(f"v_lshl_add_u32 {LS}, {LS}, 3, {MX}"); A(f"v_and_b32 {TT}, 7, {TT}"); A(f"v_lshlrev_b32 {TT}, 7, {TT}"); A(f"v_lshl_add_u32 {TT}, {LS}, 13, {TT}")
    A(f"s_lshl_b32 {t1}, {sX}, 10"); A(f"s_add_u32 {t1}, {t1}, {XP_O}")
    A(f"v_mov_b32 {LS}, 0")
    A("s_mov_b32 exec_hi, 15")
    A(f"buffer_atomic_or {LS}, {TT}, {srd(rWS)}, {t1} offen")
    A("s_mov_b32 exec_hi, -1")
if 's' not in args.early + args.mid: slots_touch()
if '1' not in args.early + args.mid: w1_touch()
if '2' in args.early + args.mid: A("s_branch L_m0d")
A("L_m0b:")
w2_loads()
A("L_m0d:")
A(f"s_cmp_eq_u32 {sW}, 3")
A("s_cbranch_scc1 L_m0c")
A("L_m0a:")
A(f"s_mul_i32 {t0}, {sW}, {192*9216}"); A(f"s_add_u32 {t0}, {t0}, {t2}")
if args.w1dma:
    A(f"v_lshrrev_b32 {TT}, 2, v0"); A(f"v_mul_u32_u24 {TT}, 9216, {TT}"); A(f"v_and_b32 {LS}, 3, v0"); A(f"v_lshl_add_u32 {TT}, {LS}, 4, {TT}")
    A(f"s_mul_i32 {t1}, {sW}, 12288"); A(f"s_add_u32 {t1}, {t1}, {L_K}"); A(f"s_mov_b32 m0, {t1}")
    for i in range(12):
        A(f"buffer_load_dwordx4 {TT}, {srd(rW1)}, {t0} offen{NTM} lds")
        if i < 11: A(f"s_add_u32 {t0}, {t0}, {16*9216}"); A("s_add_u32 m0, m0, 1024")
    A(f"v_lshrrev_b32 {TT}, 4, v0"); A(f"v_lshlrev_b32 {TT}, 8, {TT}"); A(f"v_and_b32 {LS}, 15, v0"); A(f"v_lshl_add_u32 {TT}, {LS}, 2, {TT}"); A(f"v_add_u32 {TT}, {t1}, {TT}")
    A("s_waitcnt vmcnt(0)")
    for i in range(6):
        for hh in range(2):
            for p in range(2):
                A(f"ds_read2_b32 {a(aW1+8*i+4*hh+2*p,2)}, {TT} offset0:{32*p} offset1:{32*p+16}")
            if (i, hh) != (5, 1): A(f"v_add_u32 {TT}, 1024, {TT}")
    A("s_waitcnt lgkmcnt(0)")
else:
    A(f"v_lshrrev_b32 {TT}, 4, v0"); A(f"v_mul_u32_u24 {TT}, {4*9216}, {TT}"); A(f"v_and_b32 {LS}, 15, v0"); A(f"v_lshl_add_u32 {TT}, {LS}, 2, {TT}")
    prev = 0
    for i in range(6):
        for vv in range(8):
            row = 32*i + 16*(vv >> 2) + (vv & 3)
            if row != prev: A(f"s_add_u32 {t0}, {t0}, {(row-prev)*9216}")
            prev = row
            A(f"buffer_load_dword {a(aW1+8*i+vv)}, {TT}, {srd(rW1)}, {t0} offen{NTM}")
A("L_m0c:")
if ST: A("s_memrealtime s[94:95]"); A("s_waitcnt vmcnt(0)"); A("s_memrealtime s[96:97]")
A("s_waitcnt vmcnt(0)")
A(f"v_lshlrev_b32 {vB1}, 16, {vB1}")
A("L_m1:")
zero(D0, 8)
c0 = -2 * 1.4426950408889634 * 0.7978845608028654
A(f"v_mov_b32 {v(E)}, {f32(c0)}")
A(f"v_add_u32 {v(E+2)}, {4*1152}, {vMst}")
A(f"s_mul_i32 {t0}, {sL}, {Z3_O-Z1_O}"); A(f"s_add_u32 {t0}, {t0}, {sGp}"); A(f"s_add_u32 {t0}, {t0}, {Z1_O}")
if args.pre:
    A(f"s_cmp_eq_u32 {sL}, 0"); A("s_cbranch_scc1 L_m1b")
    quiet_wait(AN_O + 4)
    A("L_m1b:")
A(f"s_lshl_b32 {t1}, {sL}, 10"); A(f"s_add_u32 {t1}, {t1}, {sGp}"); A(f"s_add_u32 {t1}, {t1}, {ZS_O}")
A(f"v_lshrrev_b32 {v(E+1)}, 5, v0"); A(f"v_lshlrev_b32 {v(E+1)}, 3, {v(E+1)}")
A(f"s_cmp_eq_u32 {sW}, 3")
A("s_cbranch_scc1 L_m2")
poll_proj(vXAm, t0, 6, aW1)
A("s_mov_b32 exec_hi, 0")
A(f"ds_write_b128 {vHPw}, {v(D0,4)}")
A("s_mov_b32 exec_hi, -1")
A("s_branch L_m2b")
A("L_m2:")
if args.ms == 'x':
    if 'nostat' not in args.exp:
        poll(xs_loads(rWS, t0, ' sc1'), [v(XS+i) for i in range(9)], site='z')
        stats_x()
    else: A(f"v_mov_b32 {S_}, 0"); A(f"v_mov_b32 {Q_}, 1.0")
else:
    poll(zs_load(vZSg, t1), [v(ZG), v(ZG+1)], site='z')
    A(f"v_mov_b32 {S_}, {v(ZG)}"); A(f"v_mov_b32 {Q_}, {v(ZG+1)}")
    stats_tail1(); stats_tail2()
A(f"ds_write_b64 {v(E+1)}, {v(TM,2)} offset:{L_STAT}")
A("L_m2b:")
stamp()
A("s_waitcnt lgkmcnt(0)")
A("s_barrier")
H = TM + 12
A(f"ds_read2_b32 {v(H,2)}, {vHPr} offset0:0 offset1:2")
A(f"ds_read2_b32 {v(H+2,2)}, {vHPr} offset0:128 offset1:130")
A(f"ds_read_b32 {v(H+4)}, {vHPr} offset:1024"); A(f"ds_read_b32 {v(H+5)}, {vHPr} offset:1032")
A(f"ds_read_b64 {v(TM,2)}, {v(E+1)} offset:{L_STAT}")
zero(D0)
A("s_waitcnt lgkmcnt(0)")
A(f"v_add_f32 {v(H)}, {v(H)}, {v(H+2)}"); A(f"v_add_f32 {v(H+1)}, {v(H+1)}, {v(H+3)}")
A(f"v_add_f32 {v(H)}, {v(H)}, {v(H+4)}"); A(f"v_add_f32 {v(H+1)}, {v(H+1)}, {v(H+5)}")
A(f"v_fma_f32 {v(H)}, -{S_}, {v(H+1)}, {v(H)}")
A(f"v_mul_f32 {v(H)}, {v(H)}, {Q_}")
rbf(v(H), v(H))
A(f"v_add_f32 {v(H)}, {v(H)}, {vB1}")
rbf(v(H), v(H))
A(f"v_mul_f32 {TT}, {v(H)}, {v(H)}")
A(f"v_fmac_f32 {v(E)}, {f32(c0*0.044715)}, {TT}")
A(f"v_mul_f32 {TT}, {v(E)}, {v(H)}")
A(f"v_exp_f32 {TT}, {TT}")
A(f"v_add_f32 {TT}, 1.0, {TT}")
A(f"v_rcp_f32 {TT}, {TT}")
A(f"v_mul_f32 {TT}, {TT}, {v(H)}")
A(f"v_cvt_pk_bf16_f32 {TT}, {TT}, 0")
A(f"ds_write2_b32 {vPTw}, {TT}, {TT} offset1:5")
for i in range(4): A(f"ds_read_b128 {v(AO+4*i,4)}, {vPTr} offset:{128*i}")
stamp()
tile_out(aW2, aW2t, vMst, False)
A("L_m4:")
stamp()
nst[0] = kr
A("L_next:")
A(f"s_cmp_lg_u32 {sL}, 0")
A("s_cbranch_scc1 L_fin")
if ST:
    A("s_waitcnt lgkmcnt(0)")
    for k in range(14): A(f"v_writelane_b32 {v(SV)}, s{72+2*k}, {1+k}")
    for k in range(14): A(f"s_mov_b64 s[{72+2*k}:{73+2*k}], 0")
A(f"s_mov_b32 {sL}, 1")
if args.dirty:
    A(f"s_cmp_ge_u32 {sJ}, 16"); A("s_cbranch_scc1 L_dd")
    A(f"s_lshl_b32 {t0}, s2, 2"); A(f"s_add_u32 {t0}, {t0}, {sW}"); A(f"s_lshl_b32 {t0}, {t0}, 14"); A(f"s_add_u32 {t0}, {t0}, 0x2000000")
    for i in range(args.dirty):
        A(f"buffer_store_dwordx4 {v(EM,4)}, {vL16}, {srd(rWS)}, {t0} offen"); A(f"s_add_u32 {t0}, {t0}, 1024")
    A("L_dd:")
A(f"s_add_u32 {sXoff}, {sGp}, {Z2_O}")
for r in (vSTst, vSTg, vSTm): A(f"v_add_u32 {r}, {ST1_O-ST_O}, {r}")
if args.qc:
    assert QP_O % 512 == 0
    for r in (vQPst, vQPg):
        A(f"v_bfe_u32 {TT}, {r}, 1, 8"); A(f"v_and_b32 {r}, 0xfffffe00, {r}"); A(f"v_add_u32 {r}, {r}, {TT}")
    A(f"v_add_u32 {vQPg2}, 4096, {vQPg}")
A("s_branch L_layer")
A("L_out:")
A(f"buffer_store_dword {TT}, {vZo}, {srd(rOUT)}, 0 offen")
A(f"s_mov_b32 {t0}, {EP_O}")
A("s_mov_b64 exec, 1")
A(f"buffer_store_dword {FN}, {vL16}, {srd(rWS)}, {t0} offen")
if ST: A(f"s_memrealtime s[{72+2*13}:{73+2*13}]")
A("L_fin:")
if args.wb:
    A(f"s_cmp_lg_u32 {sJ}, 18"); A("s_cbranch_scc1 L_wb")
    A(f"s_cmp_lg_u32 {sW}, 0"); A("s_cbranch_scc1 L_wb")
    A("buffer_wbl2 sc1")
    A("L_wb:")
if args.enc:
    j0, j1 = [int(x) for x in args.encj.split(',')]
    A("s_memrealtime s[66:67]")
    A("s_waitcnt lgkmcnt(0)")
    if args.enc <= 14: A(f"v_readlane_b32 {t0}, {v(SV)}, {args.enc}"); A("s_nop 3")
    else: A(f"s_mov_b32 {t0}, s{72+2*(args.enc-15)}")
    A(f"s_cmp_eq_u32 {t0}, 0"); A("s_cbranch_scc1 L_enc2")
    A(f"s_cmp_lt_u32 {sJ}, {j0}"); A("s_cbranch_scc1 L_enc2")
    A(f"s_cmp_ge_u32 {sJ}, {j1}"); A("s_cbranch_scc1 L_enc2")
    if args.encref == 0: A(f"s_mov_b32 {t1}, s100")
    elif args.encref <= 14: A(f"v_readlane_b32 {t1}, {v(SV)}, {args.encref}"); A("s_nop 3")
    else: A(f"s_mov_b32 {t1}, s{72+2*(args.encref-15)}")
    A(f"s_sub_u32 {t0}, {t0}, {t1}"); A(f"s_min_u32 {t0}, {t0}, 10000"); A(f"s_lshl_b32 {t0}, {t0}, {4 if args.encref else 3}"); A(f"s_add_u32 {t0}, {t0}, s66")
    A("L_enc:")
    A("s_sleep 8")
    A("s_memrealtime s[64:65]"); A("s_waitcnt lgkmcnt(0)")
    A(f"s_sub_u32 {t1}, s64, {t0}"); A(f"s_cmp_lt_i32 {t1}, 0"); A("s_cbranch_scc1 L_enc")
    A("L_enc2:")
if ST:
    A("s_mov_b64 exec, -1")
    A("s_waitcnt lgkmcnt(0)")
    A(f"v_writelane_b32 {v(SV)}, s100, 0")
    for k in range(14): A(f"v_writelane_b32 {v(SV)}, s{72+2*k}, {15+k}")
    A(f"s_lshl_b32 {t0}, s2, 2"); A(f"s_add_u32 {t0}, {t0}, {sW}"); A(f"s_lshl_b32 {t0}, {t0}, 8"); A(f"s_add_u32 {t0}, {t0}, {STAMP_O}")
    A(f"v_mov_b32 {v(SV+1)}, 0")
    A(f"v_lshlrev_b32 {v(SV+2)}, 3, v0")
    A("s_mov_b32 exec_hi, 0")
    A(f"buffer_store_dwordx2 {v(SV,2)}, {v(SV+2)}, {srd(rWS)}, {t0} offen")
A("L_end:")
A("s_endpgm")
if args.near:
    A("L_probe:")
    A(f"s_cmp_lt_u32 {sJ}, 20"); A("s_cbranch_scc1 L_next")
    A(f"s_cmp_lg_u32 {sL}, 0"); A("s_cbranch_scc1 L_next")
    A(f"s_sub_u32 {t0}, {sJ}, 20"); A(f"s_lshl_b32 {t0}, {t0}, 18"); A(f"s_lshl_b32 {t1}, {sX}, 10"); A(f"s_add_u32 {t0}, {t0}, {t1}"); A(f"s_add_u32 {t0}, {t0}, {XP_O + 3*65536}")
    A(f"s_add_u32 s4, s{rWS}, {t0}"); A(f"s_addc_u32 s5, s{rWS+1}, 0")
    A(f"s_mov_b32 {t2}, -1"); A(f"s_mov_b32 {t3}, -1"); A(f"s_mov_b32 {t4}, 3")
    A("L_pr1:")
    A("s_memtime s[6:7]"); A("s_waitcnt lgkmcnt(0)")
    A(f"s_load_dword {t5}, s[4:5], 0 glc"); A("s_waitcnt lgkmcnt(0)")
    A("s_memtime s[8:9]"); A("s_waitcnt lgkmcnt(0)")
    A(f"s_load_dword {t5}, s[4:5], 0x2000 glc"); A("s_waitcnt lgkmcnt(0)")
    A("s_memtime s[10:11]"); A("s_waitcnt lgkmcnt(0)")
    A(f"s_sub_u32 {t0}, s8, s6"); A(f"s_sub_u32 {t1}, s10, s8")
    A(f"s_min_u32 {t2}, {t2}, {t0}"); A(f"s_min_u32 {t3}, {t3}, {t1}")
    A(f"s_sub_u32 {t4}, {t4}, 1"); A(f"s_cmp_lg_u32 {t4}, 0"); A("s_cbranch_scc1 L_pr1")
    A(f"s_cmp_lt_u32 {t3}, {t2}"); A(f"s_cselect_b32 {t0}, 0x2000, 0")
    A(f"v_mov_b32 {TT}, 0"); A(f"v_mov_b32 {LS}, {t0}")
    A(f"ds_write_b32 {TT}, {LS} offset:{L_NEAR}")
    A("s_branch L_next")
A("L_af2:")
A(f"s_cmp_eq_u32 {sMode}, {FB_O}")
A("s_cbranch_scc1 L_g2")
A(f"s_add_u32 {sMode}, {sMode}, 1")
A(f"s_lshl_b32 {t2}, {sX}, 10"); A(f"s_add_u32 {t2}, {t2}, {FL_O}")
A(f"s_lshl_b32 {t4}, {sL}, 2"); A(f"s_add_u32 {t1}, {t4}, {t2}")
A(f"s_cmp_lt_u32 {sMode}, {1 if args.forcefb else 40}")
A("s_cbranch_scc1 L_af5")
A("s_mov_b64 exec, 1")
A(f"buffer_store_dword {FN}, {vL16}, {srd(rWS)}, {t1} offen sc1")
A("s_mov_b32 exec_lo, -1")
A(f"buffer_load_dwordx4 {v(FG,4)}, {vL16}, {srd(rWS)}, {t2} offen sc1")
A("s_mov_b32 exec_hi, -1")
A("s_waitcnt vmcnt(0)")
flags_diff()
A(f"v_and_b32 {TT}, 0x0fffffff, {CK}")
A(f"v_cmp_ne_u32 vcc, 0, {TT}")
A("s_cmp_lg_u32 vcc_lo, 0")
A("s_cbranch_scc1 L_af5")
A(f"v_cmp_ne_u32 vcc, 0, {CK}")
A("s_cmp_lg_u32 vcc_lo, 0")
if args.forcefb: A("s_cmp_eq_u32 0, 0")
A("s_cbranch_scc1 L_spread")
A("L_af5:")
A(f"s_sub_u32 {sTO}, {sTO}, 1")
A("s_cbranch_scc0 L_g4")
A(f"s_mov_b32 {sTO}, 0")
A(f"s_mov_b32 {sMode}, 0")
A("s_branch L_g2")
A("L_spread:")
A(f"s_mov_b32 {sMode}, {FB_O}")
A(f"s_add_u32 {sGp}, {sGf}, {FB_O}")
empty_share(sGp, ' sc1')
A("s_mov_b32 exec_hi, 0")
A(qp_store.format(so=sGp, fl=' sc1'))
A("s_waitcnt vmcnt(0)")
A("s_mov_b64 exec, 1")
A(f"buffer_store_dword {FN}, {vL16}, {srd(rWS)}, {t1} offen offset:512 sc1")
A("s_mov_b32 exec_lo, -1")
A("L_sp1:")
A("s_mov_b32 exec_hi, 0")
A(f"buffer_load_dwordx4 {v(FG,4)}, {vL16}, {srd(rWS)}, {t2} offen offset:512 sc1")
A("s_mov_b32 exec_hi, -1")
A("s_waitcnt vmcnt(0)")
flags_diff()
A(f"v_and_b32 {CK}, 0x0fffffff, {CK}")
A(f"v_cmp_ne_u32 vcc, 0, {CK}")
A("s_cmp_eq_u32 vcc_lo, 0")
A("s_cbranch_scc1 L_g4")
A("s_sleep 4")
A(timeout("L_sp1", "L_g4"))
for t in tail: A(t)
A.raw('L_codeend:')
A.raw('    s_endpgm')
A.raw('.section .rodata,"a"')
A.raw(".p2align 6")
A.raw(f".amdhsa_kernel {NAME}_kernel")
A.raw(f"  .amdhsa_next_free_vgpr {ACC+NACC}")
A.raw("  .amdhsa_next_free_sgpr 102")
A.raw(f"  .amdhsa_accum_offset {ACC}")
A.raw("  .amdhsa_group_segment_fixed_size 0")
A.raw("  .amdhsa_kernarg_size 104")
A.raw("  .amdhsa_user_sgpr_count 2")
A.raw("  .amdhsa_user_sgpr_kernarg_segment_ptr 1")
A.raw("  .amdhsa_system_sgpr_workgroup_id_x 1")
A.raw(".end_amdhsa_kernel")
txt = A.text()
if args.cyc: txt = txt.replace('s_memrealtime', 's_memtime')
sys.stdout.write(txt)
```

```python
import sys, argparse, struct
sys.path.insert(0, 'dev')
from asmlib import Asm
NAME = "interleave_layers__sliding_block_cached__dense_activation_gelu__decode"
ap = argparse.ArgumentParser()
ap.add_argument('--stamps', action='store_true')
ap.add_argument('--pro', action='store_true')
ap.add_argument('--cyc', action='store_true')
ap.add_argument('--xt', type=int, default=0)
ap.add_argument('--xd', type=int, default=11)
ap.add_argument('--enc', type=int, default=0)
ap.add_argument('--encref', type=int, default=0)
ap.add_argument('--encj', default='0,32')
ap.add_argument('--only', default='')
ap.add_argument('--pQ', type=int, default=4)
ap.add_argument('--code', type=int, default=1)
ap.add_argument('--early', default='0')
ap.add_argument('--mid', default='')
ap.add_argument('--w1dma', type=int, default=0)
ap.add_argument('--near', type=int, default=1)
ap.add_argument('--pd', default='s22,y22,o22')
ap.add_argument('--wb', type=int, default=0)
ap.add_argument('--dirty', type=int, default=0)
ap.add_argument('--pre', type=int, default=1)
ap.add_argument('--qd', type=int, default=0)
ap.add_argument('--zs', type=int, default=0)
ap.add_argument('--sd', type=int, default=0)
ap.add_argument('--yd', type=int, default=0)
ap.add_argument('--zd', type=int, default=0)
ap.add_argument('--qc', type=int, default=1)
ap.add_argument('--ms', default='x')
ap.add_argument('--exp', default='')
ap.add_argument('--tlb', type=int, default=0)
ap.add_argument('--hw', type=int, default=2)
ap.add_argument('--prew', type=int, default=0)
ap.add_argument('--vw', type=int, default=1)
ap.add_argument('--di', type=int, default=1)
ap.add_argument('--dz', type=int, default=1)
ap.add_argument('--dxx', type=int, default=1)
ap.add_argument('--nt', default='k,v,2')
ap.add_argument('--forcefb', action='store_true')
args = ap.parse_args()
def ntf(c): return ' nt' if c in args.nt.split(',') else ''
NT = ntf('s'); NTK = ntf('k'); NTV = ntf('v'); NTQ = ntf('q'); NTO = ntf('o'); NTM = ntf('m'); NT2 = ntf('2'); NTT = ntf('t')
ST = args.stamps
PD = {x[0]: (int(x[1]), int(x[2:])) for x in args.pd.split(',') if x}

def f32(x): return '0x%08x' % struct.unpack('<I', struct.pack('<f', x))[0]

CLR = 944
OP_O = 0
Y_O = OP_O + 65536
ST_O = Y_O + 41472
ST1_O = ST_O + 2048
Z1_O = ST1_O + 2048
Z2_O = Z1_O + 2304
Z3_O = Z2_O + 2304
AN_O = Z3_O + 2304
ZS_O = AN_O + 128
assert ZS_O + 1536 <= 128 * CLR and (128 * CLR) % 128 == 0
QP_O = 128 * CLR
FF_O = QP_O + 65536
GB = FF_O + 1024
FB_O = 8 * GB
XP_O = 6 << 20
assert XP_O >= 16 * GB
XPS = 16384
FL_O = XP_O + 12 * 262144
EP_O = FL_O + 8 * 1024
STAMP_O = 0x8000000
L_NEAR = 8176
L_X = 640
L_QT, L_STAT, L_OT, L_PT, L_HP, L_K, L_WQ, L_SIZE = 0, 512, 1024, 2560, 8192, 16384, 49152, 67584

rK, rV, rWQ, rWO, rW1, rW2, rWS, rX, rOUT, rT1, rT2 = 4, 8, 12, 16, 20, 24, 28, 32, 36, 44, 48
sTask, kv0, kv1, sFlag = 's40', 's41', 's42', 's43'
def srd(n): return f"s[{n}:{n+3}]"
sW, sX, sJ, sGf, sGp, sXoff, sTO, sMode, sL, sWo = [f"s{i}" for i in range(52, 62)]
t0, t1, t2, t3, t4, t5 = [f"s{i}" for i in range(62, 68)]
mLO8 = "s[68:69]"; mROW = "s[70:71]"
MXA = "0x00330033"
sRole = "s3"
(vL4, vL16, vIdxD, vIdxP, vIdxS, vXAq, vXAm, vQPst, vQPg, vL128, vQTw, vQTr, vPTw, vPTr, vSTst, vOPst, vSTg, vOPg, vOTw, vOTr,
 vYst, vMst, vHPw, vSTm, vRg, vSTATr, vXPst, vXPg, vZst, vXres, vB2, vB1, vCq, vZo, vXS1, vXS2, vWrow, vHPr, vOnes) = [f"v{i}" for i in range(1, 40)]
XA, D0, D1, DP, AO, SG, YG, XG, XS, FG, TM, EM, KA, SV, OG, QG = 40, 64, 68, 72, 76, 104, 120, 132, 136, 148, 152, 176, 180, 184, 188, 196
vQPg2, vZSst, vZSg = 'v92', 'v93', 'v94'
ZG = 96; vLXr = 'v98'; KR = 100
ACC = 212
aWQ, aK, aV, aWO, aW1, aW2, aWOt, NACC = 0, 24, 56, 88, 120, 168, 200, 232
aW2t = aW1
def v(n, k=1): return f"v{n}" if k == 1 else f"v[{n}:{n+k-1}]"
def a(n, k=1): return f"a{n}" if k == 1 else f"a[{n}:{n+k-1}]"
CK = v(TM + 23); FN = v(TM + 22); vTag = v(TM + 21); DUM = v(TM + 20)
sEp, sXPo = kv0, kv1

A = Asm()
tail = []
nst = [0]
def pstamp(k):
    if args.pro: A(f"s_memrealtime s[{72+2*k}:{73+2*k}]")
def stamp():
    if ST and not args.pro:
        k = nst[0]; nst[0] += 1
        assert k < 13
        if ONLY is None or k in ONLY: A(f"s_memrealtime s[{72+2*k}:{73+2*k}]")
ONLY = set(int(x) for x in args.only.split(',')) if args.only else None
def lg(n): return 0 if (ST and ONLY is None) else n
def exec_xa(): return [f"s_mov_b32 exec_lo, {MXA}", f"s_mov_b32 exec_hi, {MXA}"]

def check_text(regs):
    regs = list(regs); o = []
    if len(regs) == 1: cur = regs[0]
    else:
        take = regs[:3]; regs = regs[3:]
        o.append(f"v_max3_u32 {CK}, {take[0]}, {take[1]}, {take[2]}" if len(take) == 3 else f"v_max_u32 {CK}, {take[0]}, {take[1]}")
        while regs:
            take = regs[:2]; regs = regs[2:]
            o.append(f"v_max3_u32 {CK}, {CK}, {take[0]}, {take[1]}" if len(take) == 2 else f"v_max_u32 {CK}, {CK}, {take[0]}")
        cur = CK
    o.append(f"v_cmp_eq_u32 vcc, -1, {cur}")
    return o
def nvm(loads): return sum(1 for l in loads if l.startswith('buffer_'))
def timeout(again, ok): return f"s_sub_u32 {sTO}, {sTO}, 1\ns_cbranch_scc0 {again}\ns_mov_b32 {sTO}, 0\ns_waitcnt vmcnt(0) lgkmcnt(0)\ns_branch {ok}"

def poll(loads, regs, primed=False, extra_wait="", chk=None, site=''):
    lp = A.newlabel('L_poll'); to = A.newlabel('L_to'); ok = A.newlabel('L_ok')
    depth, gap = PD.get(site, (1, 0))
    ck = chk or check_text(regs)
    pre = []
    for d in range(depth - 1):
        pre += loads + ([f"s_sleep {gap}"] if gap else [])
    loop = [f"{lp}:"] + loads + [f"s_sub_u32 {sTO}, {sTO}, 1", f"s_cbranch_scc1 {to}", f"s_waitcnt vmcnt({(depth-1)*nvm(loads)}){extra_wait}"] + ck + [f"s_cbranch_vccnz {lp}"]
    tmo = f"{to}:\ns_mov_b32 {sTO}, 0\ns_waitcnt vmcnt(0) lgkmcnt(0)\ns_branch {ok}"
    if primed:
        st = A.newlabel('L_more')
        A(f"s_waitcnt vmcnt(0){extra_wait}")
        for l in ck: A(l)
        A(f"s_cbranch_vccnz {st}")
        A(f"{ok}:")
        tail.append(f"{st}:\n" + "\n".join(pre + loop) + f"\ns_branch {ok}\n" + tmo)
        return
    for l in pre + loop: A(l)
    A(f"{ok}:")
    tail.append(tmo)

def sm(d, av, br, idx): A(f"v_smfmac_f32_16x16x64_bf16 {v(d,4)}, {v(av,4)}, {a(br,8)}, {idx}")
def xa_loads(rr, voff, so, n, fl, short_last=False):
    o = exec_xa()
    for i in range(n):
        if short_last and i == n - 1: o.append("s_mov_b64 exec, 0x33")
        o.append(f"buffer_load_dwordx4 {v(XA+4*i,4)}, {voff}, {srd(rr)}, {so} offen offset:{64*i}{fl}")
    return o + ["s_mov_b64 exec, -1"]
def poll_proj(voff, so, n, wbase, short_last=False, extra=[]):
    loads = extra[:-1] + xa_loads(rWS, voff, so, n, ' sc1', short_last)
    lds = [l for l in loads if l.startswith('buffer_')]
    lp = A.newlabel('L_poll'); rt = A.newlabel('L_retry'); ok = A.newlabel('L_ok'); gen = A.newlabel('L_nan')
    depth, gap = PD.get('p', (1, 0))
    for d in range(depth):
        if d: A(f"s_sleep {gap}")
        for l in loads: A(l)
    A(f"{lp}:")
    A(f"s_waitcnt vmcnt({(depth-1)*n})")
    for i in range(n): sm(D0, XA+4*i, wbase+8*i, vIdxD)
    for l in loads: A(l)
    A(f"v_cmp_u_f32 vcc, {v(D0)}, {v(D0+1)}")
    A(f"s_cbranch_vccnz {rt}")
    A(f"{ok}:")
    z = "\n".join(f"v_mov_b32 {v(D0+i)}, 0" for i in range(4))
    mm = "\n".join(f"v_smfmac_f32_16x16x64_bf16 {v(D0,4)}, {v(XA+4*i,4)}, {a(wbase+8*i,8)}, {vIdxD}" for i in range(n))
    if args.zs: z += f"\ns_sleep {args.zs}"
    tail.append(f"{rt}:\n{z}\ns_sub_u32 {sTO}, {sTO}, 1\ns_cbranch_scc1 {gen}\ns_and_b32 {t5}, {sTO}, 15\ns_cbranch_scc1 {lp}\n" +
                "\n".join(check_text([v(XA+i) for i in range(4*n)])) + f"\ns_cbranch_vccnz {lp}\n{gen}:\ns_max_i32 {sTO}, {sTO}, 0\n{mm}\ns_nop 7\ns_branch {ok}")

def pub(*fmts):
    for f in fmts: A(f.format(so=sGf, fl=''))
    sl = A.newlabel('L_slow'); bk = A.newlabel('L_back')
    A(f"s_cmp_lg_u32 {sMode}, 0")
    A(f"s_cbranch_scc1 {sl}")
    A(f"{bk}:")
    tail.append(f"{sl}:\n" + "\n".join(f.format(so=sGp, fl=' sc1') for f in fmts) + f"\ns_nop 1\ns_branch {bk}")

def rbf(dst, src):
    A(f"v_cvt_pk_bf16_f32 {dst}, {src}, {src}")
    A(f"v_and_b32 {dst}, 0xffff0000, {dst}")
def treduce(r):
    A(f"v_permlane32_swap_b32 {v(r)}, {v(r+2)}")
    A(f"v_permlane32_swap_b32 {v(r+1)}, {v(r+3)}")
    A(f"v_add_f32 {v(r)}, {v(r)}, {v(r+2)}")
    A(f"v_add_f32 {v(r+1)}, {v(r+1)}, {v(r+3)}")
    A(f"v_permlane16_swap_b32 {v(r)}, {v(r+1)}")
    A(f"v_add_f32 {v(r)}, {v(r)}, {v(r+1)}")
    A(f"v_add_f32_dpp {v(r)}, {v(r)}, {v(r)} row_ror:8 row_mask:0xf bank_mask:0xf")
S_, Q_ = v(TM), v(TM+1)
def stats_tail1():
    S, Q = S_, Q_
    A(f"v_permlane16_swap_b32 {S}, {Q}")
    A(f"v_add_f32 {S}, {S}, {Q}")
    for k in (8, 4, 2, 1):
        A(f"v_add_f32_dpp {S}, {S}, {S} row_ror:{k} row_mask:0xf bank_mask:0xf")
    A(f"v_mul_f32 {Q}, {f32(1/576)}, {S}")
    A(f"v_mul_f32 {S}, {f32(1/576)}, {S}")
def stats_tail2():
    S, Q = S_, Q_
    A(f"v_permlane16_swap_b32 {S}, {Q}")
    A(f"v_fma_f32 {Q}, -{S}, {S}, {Q}")
    A(f"v_max_f32 {Q}, 0, {Q}")
    A(f"v_cvt_pk_bf16_f32 {Q}, {S}, {Q}")
    A(f"v_lshlrev_b32 {S}, 16, {Q}")
    A(f"v_and_b32 {Q}, 0xffff0000, {Q}")
    A(f"v_add_f32 {Q}, {f32(1e-5)}, {Q}")
    rbf(Q, Q)
    A(f"v_sqrt_f32 {Q}, {Q}")
    rbf(Q, Q)
    A(f"v_rcp_f32 {Q}, {Q}")
def stats_x():
    A(f"v_mov_b32 {S_}, 0"); A(f"v_mov_b32 {Q_}, 0")
    for i in range(9):
        A(f"v_dot2c_f32_bf16 {S_}, {v(XS+i)}, {vOnes}")
        A(f"v_dot2c_f32_bf16 {Q_}, {v(XS+i)}, {v(XS+i)}")
    stats_tail1(); stats_tail2()
def zs_load(voff, so):
    return ["s_mov_b32 exec_lo, 0x3ffff", "s_mov_b32 exec_hi, 0x3ffff", f"buffer_load_dwordx2 {v(ZG,2)}, {voff}, {srd(rWS)}, {so} offen sc1", "s_mov_b64 exec, -1"]
def zero(r, n=4):
    for i in range(n): A(f"v_mov_b32 {v(r+i)}, 0")
def xs_loads(rr, so, fl):
    return [f"buffer_load_dwordx4 {v(XS,4)}, {vXS1}, {srd(rr)}, {so} offen{fl}",
            f"buffer_load_dwordx4 {v(XS+4,4)}, {vXS1}, {srd(rr)}, {so} offen offset:512{fl}",
            f"buffer_load_dword {v(XS+8)}, {vXS2}, {srd(rr)}, {so} offen offset:1024{fl}"]

A.raw(f"; @launch grid=(256,1,1) block=(256,1,1) lds={L_SIZE}")
A.raw('.amdgcn_target "amdgcn-amd-amdhsa--gfx950"')
A.raw(".text")
A.raw(f".globl {NAME}_kernel")
A.raw(".p2align 8")
A.raw(f".type {NAME}_kernel,@function")
A.raw(f"{NAME}_kernel:")
if ST:
    A("s_memrealtime s[100:101]")
    if args.pro:
        for k in range(1, 14): A(f"s_mov_b32 s{72+2*k}, 0")
for r, off in ((rWQ, 24), (rK, 8), (rWS, 96), (rX, 0), (rV, 16), (rWO, 32)):
    A(f"s_load_dwordx2 s[{r}:{r+1}], s[0:1], {off}")
A("s_cmp_ge_u32 s2, 256")
A("s_cbranch_scc1 L_end")
G, C, B2 = v(TM+3), v(TM+4), v(TM+5)
def size(r, n): A(f"s_mov_b32 s{r+2}, {n}"); A(f"s_mov_b32 s{r+3}, 0x20000")
A(f"v_readfirstlane_b32 {sW}, v0")
A(f"v_lshrrev_b32 {v(TM+6)}, 4, v0")
A(f"v_and_b32 {C}, 15, v0")
A(f"v_lshlrev_b32 {v(TM+6)}, 13, {v(TM+6)}")
A(f"v_lshl_add_u32 {v(TM+6)}, {C}, 4, {v(TM+6)}")
size(rWQ, 4718592)
A(f"s_and_b32 {sX}, s2, 7")
A(f"s_bfe_u32 {t2}, s2, 0x30003")
A(f"s_lshr_b32 {t3}, s2, 6"); A(f"s_lshl2_add_u32 {t0}, {sX}, {t3}"); A(f"s_lshl_b32 {t3}, {t0}, 8")
A(f"s_mul_i32 {sXoff}, {t2}, {72*8192}"); A(f"s_add_u32 {sXoff}, {sXoff}, {t3}")
A(f"s_lshl4_add_u32 m0, {sW}, {L_WQ}")
def setup_k():
    A(f"v_and_b32 v0, 63, v0")
    A(f"v_lshrrev_b32 {G}, 4, v0")
    A(f"s_and_b32 {t1}, {t0}, 1"); A(f"s_lshr_b32 {t0}, {t0}, 1")
    A(f"s_lshl4_add_u32 {kv0}, {t1}, {t0}"); A(f"s_lshl_b32 {kv0}, {kv0}, 5"); A(f"s_add_u32 {kv0}, {kv0}, {t2}"); A(f"s_lshl_b32 {kv0}, {kv0}, 8")
    A(f"s_add_u32 {kv0}, {kv0}, {sW}"); A(f"s_lshl_b32 {kv0}, {kv0}, 7"); A(f"s_add_u32 {kv0}, {kv0}, {3072*256}"); A(f"s_add_u32 {kv1}, {kv0}, 4096")
    size(rK, 33554432)
    A(f"v_xor_b32 {v(TM+7)}, {C}, {G}")
    A(f"v_lshlrev_b32 {v(TM+7)}, 4, {v(TM+7)}")
    A(f"v_lshl_add_u32 {v(KA)}, {G}, 8, {v(TM+7)}")
    for i in range(1, 4): A(f"v_xor_b32 {v(KA+i)}, {64*i}, {v(KA)}")
    A(f"s_lshr_b32 {sW}, {sW}, 6")
def setup_ws():
    size(rWS, 268435456); size(rX, 2304)
    A(f"s_lshr_b32 {sJ}, s2, 3")
    A(f"v_lshlrev_b32 {vL16}, 4, v0")
    for i in range(4): A(f"v_mov_b32 {v(EM+i)}, -1")
    A(f"s_mul_i32 {sGf}, {sX}, {GB}")
    A(f"s_lshl2_add_u32 {sL}, {sJ}, {sW}")
def setup_rest():
    size(rV, 33554432); size(rWO, 4718592)
    A("s_mov_b32 s68, 0x00ff00ff"); A("s_mov_b32 s69, 0x00ff00ff")
    A(f"v_lshlrev_b32 {vL128}, 7, v0")
    A(f"v_bfe_u32 {B2}, v0, 2, 1")
    A(f"v_mul_u32_u24 {vXAm}, 1152, {B2}")
    A(f"v_lshl_add_u32 {vXAm}, {G}, 4, {vXAm}")
    A(f"s_mul_i32 {t4}, {t2}, 144")
    A(f"v_add_u32 {vXAq}, {t4}, {vXAm}")
    for i in range(12): A(f"v_mov_b32 {v(XA+i)}, 0x3f803f80")
    A(f"s_lshl_b32 {t4}, {sL}, 9"); A(f"s_add_u32 {t4}, {t4}, {QP_O}")
    A(f"v_add_u32 {vQPst}, {t4}, {vL16}")
def constants():
    A(f"v_mul_u32_u24 {vWrow}, 1152, {G}")
    A(f"v_lshl_add_u32 {vWrow}, {C}, 4, {vWrow}")
    A(f"s_cmp_lt_u32 {sJ}, 18"); A(f"s_cselect_b32 {sRole}, 1, 0")
    A(f"s_cmp_ge_u32 {sJ}, 20"); A(f"s_cselect_b32 {t4}, 2, 0"); A(f"s_cmp_lt_u32 {sW}, 3"); A(f"s_cselect_b32 {t4}, {t4}, 0"); A(f"s_or_b32 {sRole}, {sRole}, {t4}")
    A(f"s_sub_u32 {sTask}, {sJ}, 20"); A(f"s_mul_i32 {sTask}, {sTask}, 3"); A(f"s_add_u32 {sTask}, {sTask}, {sW}"); A(f"s_min_u32 {sTask}, {sTask}, 35")
    A(f"s_lshl_b32 {t3}, {sX}, 4"); A(f"s_and_b32 {t4}, {sJ}, 15"); A(f"s_add_u32 {sWo}, {t3}, {t4}"); A(f"s_mul_i32 {sWo}, {sWo}, {32*1152}")
    A(f"s_lshl_b32 {t4}, {sW}, 8"); A(f"s_add_u32 {sWo}, {sWo}, {t4}")
    for r, n in ((rW1, 5308416), (rW2, 5308416), (rOUT, 2304), (rT1, 9216), (rT2, 1152)):
        A(f"s_mov_b32 s{r+2}, {n}"); A(f"s_mov_b32 s{r+3}, 0x20000")
    A("s_mov_b32 s70, 0xffff0000"); A("s_mov_b32 s71, 0xffff0000")
    A(f"v_lshlrev_b32 {vL4}, 2, v0")
    for i in range(12, 24): A(f"v_mov_b32 {v(XA+i)}, 0x3f803f80")
    A(f"s_lshl_b32 {t4}, {sW}, 13"); A(f"s_add_u32 {t4}, {t4}, {L_K}")
    A(f"v_lshl_add_u32 {v(KR)}, {C}, 8, {v(TM+7)}"); A(f"v_add_u32 {v(KR)}, {t4}, {v(KR)}")
    for i in range(1, 4): A(f"v_xor_b32 {v(KR+i)}, {64*i}, {v(KR)}")
    T_ = [v(TM+8+i) for i in range(10)]
    A(f"v_and_b32 {T_[0]}, 1, v0")
    A(f"v_mul_u32_u24 {vIdxP}, 0xaaaa, {T_[0]}"); A(f"v_add_u32 {vIdxP}, 0x4444, {vIdxP}")
    A(f"v_and_b32 {T_[1]}, 3, v0")
    A(f"v_mul_u32_u24 {vIdxS}, 0x5555, {T_[1]}")
    A(f"v_bfe_u32 {T_[2]}, v0, 4, 1")
    A(f"v_bfe_u32 {T_[3]}, v0, 2, 2")
    A(f"v_bfe_u32 {T_[4]}, v0, 3, 1")
    A(f"v_lshrrev_b32 {T_[5]}, 5, v0")
    A(f"v_and_b32 {T_[8]}, 7, v0")
    A(f"v_and_b32 {T_[9]}, 31, v0")
    A(f"s_lshr_b32 {t3}, {sJ}, 4")
    A(f"s_lshr_b32 {t5}, {sJ}, 3")
    A(f"s_lshl_b32 {t3}, {t3}, 1"); A(f"s_lshr_b32 {t4}, {sW}, 1"); A(f"s_add_u32 {t3}, {t3}, {t4}"); A(f"s_lshl_b32 {t3}, {t3}, 14")
    A(f"s_and_b32 {t4}, {sW}, 1"); A(f"s_lshl_b32 {t4}, {t4}, 10"); A(f"s_add_u32 {t3}, {t3}, {t4}")
    A(f"s_lshl_b32 {t4}, {t1}, 8"); A(f"s_add_u32 {t3}, {t3}, {t4}"); A(f"s_add_u32 {t3}, {t3}, {QP_O}")
    A(f"v_lshl_add_u32 {vQPg}, {T_[5]}, 4, {T_[2]}"); A(f"v_lshlrev_b32 {vQPg}, 9, {vQPg}"); A(f"v_lshl_add_u32 {vQPg}, {C}, 4, {vQPg}"); A(f"v_add_u32 {vQPg}, {t3}, {vQPg}")
    A(f"v_add_u32 {vQPg2}, 4096, {vQPg}")
    A(f"s_and_b32 {t3}, {sW}, 1"); A(f"s_lshl_b32 {t3}, {t3}, 8"); A(f"s_lshr_b32 {t4}, {sW}, 1"); A(f"s_lshl_b32 {t4}, {t4}, 7"); A(f"s_add_u32 {t3}, {t3}, {t4}")
    A(f"v_bfe_u32 {T_[6]}, v0, 3, 2"); A(f"v_bfe_u32 {T_[7]}, v0, 1, 2")
    A(f"v_lshlrev_b32 {vQTw}, 5, {T_[6]}"); A(f"v_lshl_add_u32 {vQTw}, {T_[0]}, 4, {vQTw}"); A(f"v_lshl_add_u32 {vQTw}, {T_[7]}, 2, {vQTw}")
    A(f"v_lshl_add_u32 {vQTw}, {T_[5]}, 1, {vQTw}"); A(f"v_add_u32 {vQTw}, {t3}, {vQTw}")
    A(f"v_lshlrev_b32 {vQTr}, 5, {G}"); A(f"v_lshl_add_u32 {vQTr}, {T_[4]}, 7, {vQTr}"); A(f"v_lshl_add_u32 {vQTr}, {T_[0]}, 4, {vQTr}")
    A(f"v_mul_u32_u24 {vOTr}, 640, {T_[4]}"); A(f"v_lshl_add_u32 {vOTr}, {G}, 5, {vOTr}"); A(f"v_lshl_add_u32 {vOTr}, {B2}, 4, {vOTr}")
    A(f"s_mul_i32 {t3}, {sW}, 1280"); A(f"s_add_u32 {t3}, {t3}, {L_PT}")
    A(f"v_add_u32 {vPTr}, {t3}, {vOTr}"); A(f"v_add_u32 {vOTr}, {L_OT}, {vOTr}")
    A(f"v_bfe_u32 {T_[6]}, v0, 1, 4")
    A(f"v_mul_u32_u24 {vPTw}, 640, {T_[5]}"); A(f"v_lshl_add_u32 {vPTw}, {T_[6]}, 5, {vPTw}"); A(f"v_lshl_add_u32 {vPTw}, {T_[0]}, 3, {vPTw}"); A(f"v_add_u32 {vPTw}, {t3}, {vPTw}")
    A(f"v_lshrrev_b32 {vHPr}, 1, v0"); A(f"v_lshlrev_b32 {vHPr}, 4, {vHPr}"); A(f"v_lshl_add_u32 {vHPr}, {T_[0]}, 2, {vHPr}"); A(f"v_add_u32 {vHPr}, {L_HP}, {vHPr}")
    A(f"s_lshl_b32 {t3}, {sW}, 9"); A(f"s_add_u32 {t3}, {t3}, {L_HP}"); A(f"v_add_u32 {vHPw}, {t3}, {vL16}")
    A(f"s_lshl_b32 {t3}, {t5}, 9"); A(f"s_add_u32 {t3}, {t3}, {ST_O}")
    A(f"s_lshl_b32 {t4}, {t2}, 2"); A(f"s_add_u32 {t4}, {t4}, {sW}"); A(f"s_lshl_b32 {t4}, {t4}, 2"); A(f"s_add_u32 {t4}, {t4}, {t3}")
    A(f"v_lshlrev_b32 {vSTst}, 8, {T_[5]}"); A(f"v_lshl_add_u32 {vSTst}, {T_[0]}, 7, {vSTst}"); A(f"v_add_u32 {vSTst}, {t4}, {vSTst}")
    A(f"s_lshl_b32 {t3}, {t1}, 1"); A(f"s_lshr_b32 {t4}, {sW}, 1"); A(f"s_add_u32 {t3}, {t3}, {t4}"); A(f"s_lshl_b32 {t3}, {t3}, 9"); A(f"s_add_u32 {t3}, {t3}, {ST_O}")
    A(f"s_lshr_b32 {t4}, {t2}, 2"); A(f"s_lshl_b32 {t4}, {t4}, 8"); A(f"s_add_u32 {t3}, {t3}, {t4}")
    A(f"v_lshrrev_b32 {T_[7]}, 3, v0")
    A(f"v_lshl_add_u32 {vSTg}, {T_[7]}, 4, {t3}")
    A(f"s_and_b32 {t4}, {sW}, 1"); A(f"s_lshl_b32 {t4}, {t4}, 3"); A(f"v_add_u32 {vSTm}, {t4}, {vSTg}")
    A(f"s_lshr_b32 {t3}, {sJ}, 4"); A(f"s_lshl_b32 {t3}, {t3}, 15"); A(f"s_lshl_b32 {t4}, {t1}, 11"); A(f"s_add_u32 {t3}, {t3}, {t4}")
    A(f"s_lshl_b32 {t4}, {sW}, 9"); A(f"s_add_u32 {t3}, {t3}, {t4}"); A(f"s_lshl_b32 {t4}, {t2}, 6"); A(f"s_add_u32 {t3}, {t3}, {t4}")
    A(f"v_lshlrev_b32 {T_[6]}, 4, {T_[1]}"); A(f"v_lshl_add_u32 {T_[6]}, {T_[2]}, 3, {T_[6]}")
    A(f"v_lshl_add_u32 {vOPst}, {T_[5]}, 2, {T_[3]}"); A(f"v_lshl_add_u32 {vOPst}, {vOPst}, 12, {T_[6]}"); A(f"v_add_u32 {vOPst}, {t3}, {vOPst}")
    A(f"s_and_b32 {t3}, {sJ}, 15"); A(f"s_lshl_b32 {t3}, {t3}, 12"); A(f"s_lshl_b32 {t4}, {sW}, 10"); A(f"s_add_u32 {t3}, {t3}, {t4}"); A(f"v_lshl_add_u32 {vOPg}, v0, 3, {t3}")
    A(f"s_lshr_b32 {t3}, {sW}, 1"); A(f"s_mul_i32 {t3}, {t3}, 640"); A(f"s_and_b32 {t4}, {sW}, 1"); A(f"s_lshl_b32 {t4}, {t4}, 1"); A(f"s_add_u32 {t3}, {t3}, {t4}"); A(f"s_add_u32 {t3}, {t3}, {L_OT}")
    A(f"v_mul_u32_u24 {vOTw}, 20, {T_[4]}"); A(f"v_lshl_add_u32 {vOTw}, {T_[8]}, 6, {vOTw}"); A(f"v_lshl_add_u32 {vOTw}, {T_[5]}, 5, {vOTw}")
    A(f"v_lshl_add_u32 {vOTw}, {T_[2]}, 3, {vOTw}"); A(f"v_add_u32 {vOTw}, {t3}, {vOTw}")
    A(f"s_mul_i32 {t3}, {sW}, {4*1152}"); A(f"s_lshl_b32 {t4}, {sJ}, 6"); A(f"s_add_u32 {t3}, {t3}, {t4}"); A(f"s_add_u32 {t3}, {t3}, {Y_O}")
    A(f"v_mul_u32_u24 {vMst}, 18, {T_[5]}"); A(f"v_add_u32 {vMst}, {vMst}, {T_[3]}"); A(f"v_mul_u32_u24 {vMst}, 1152, {vMst}")
    A(f"v_add3_u32 {vMst}, {vMst}, {T_[6]}, {t3}")
    A(f"v_subrev_u32 {vYst}, 1024, {vMst}")
    A(f"v_lshlrev_b32 {vZSg}, 3, v0")
    A(f"s_lshl_b32 {t3}, {t1}, 8"); A(f"s_add_u32 {t3}, {t3}, {ZS_O+512}"); A(f"v_lshl_add_u32 {vSTATr}, {T_[9]}, 3, {t3}")
    zero(ZG, 2)
    A(f"v_mul_u32_u24 {vXS1}, 1152, {T_[5]}"); A(f"v_lshl_add_u32 {vXS2}, {T_[9]}, 2, {vXS1}"); A(f"v_lshl_add_u32 {vXS1}, {T_[9]}, 4, {vXS1}")
    A(f"s_mul_i32 {t4}, {sW}, 384"); A(f"v_add_u32 {vXAm}, {t4}, {vXAm}")
    A(f"s_mul_i32 {t4}, {sX}, 18"); A(f"s_add_u32 {t4}, {t4}, {sJ}"); A(f"s_lshl_b32 {t5}, {t4}, 6")
    A(f"v_lshl_add_u32 {vB1}, {T_[9]}, 1, {t5}")
    A(f"s_mul_i32 {t4}, {sTask}, 1152"); A(f"s_add_u32 {t4}, {t4}, {Y_O}"); A(f"v_lshl_add_u32 {vRg}, v0, 3, {t4}")
    A(f"s_sub_u32 {t4}, {sL}, 80"); A(f"s_and_b32 {t4}, {t4}, 63"); A(f"s_lshl_b32 {t4}, {t4}, 16")
    A(f"s_lshl_b32 {t5}, {sX}, 10"); A(f"s_add_u32 {t5}, {t5}, {t4}"); A(f"v_lshl_add_u32 {vXPg}, v0, 3, {t5}")
    A(f"s_lshl_b32 {t5}, {sX}, 7"); A(f"s_add_u32 {t4}, {t4}, {t5}"); A(f"v_lshl_add_u32 {vXPst}, {T_[8]}, 4, {t4}")
    A(f"v_lshrrev_b32 {T_[7]}, 3, v0"); A(f"v_lshl_add_u32 {vXPst}, {T_[7]}, 10, {vXPst}")
    A(f"v_lshl_add_u32 {T_[7]}, {C}, 1, {T_[5]}")
    A(f"s_lshl_b32 {t4}, {sTask}, 6"); A(f"v_lshl_add_u32 {vZo}, {T_[7]}, 1, {t4}")
    A(f"v_add_u32 {vZst}, {Z1_O}, {vZo}")
    A(f"s_and_b32 {t5}, {sTask}, 7"); A(f"s_cmp_eq_u32 {t5}, {sX}"); A(f"s_cselect_b32 {t5}, 4, 0"); A(f"s_or_b32 {sRole}, {sRole}, {t5}")
    A(f"s_cmp_ge_u32 {sTask}, 18"); A(f"s_cselect_b32 {t5}, 1152, 0")
    A(f"v_subrev_u32 {vB2}, {t5}, {vZo}")
    A(f"s_cselect_b32 {t5}, {256-18*8}, 0"); A(f"s_lshl_b32 {t4}, {sTask}, 3"); A(f"s_add_u32 {t4}, {t4}, {t5}"); A(f"s_add_u32 {t4}, {t4}, {ZS_O}")
    A(f"v_lshl_add_u32 {vZSst}, {T_[2]}, 2, {t4}")

def constants1():
    A(f"v_and_b32 {v(TM+8)}, 1, v0")
    A(f"v_mul_u32_u24 {vIdxD}, 0x5555, {v(TM+8)}"); A(f"v_add_u32 {vIdxD}, 0x8888, {vIdxD}")
    A(f"v_mov_b32 {vOnes}, 0x3f803f80")
    A(f"s_lshl_b32 {t3}, {sW}, 6"); A(f"s_add_u32 {t3}, {t3}, {L_WQ}")
    A(f"v_lshlrev_b32 {vCq}, 10, {G}"); A(f"v_lshl_add_u32 {vCq}, {C}, 2, {vCq}"); A(f"v_add_u32 {vCq}, {t3}, {vCq}")
    for i in range(16, 24): A(f"v_accvgpr_write_b32 {a(aWQ+i)}, 0")
    zero(D0, 8)
    A(f"v_mul_u32_u24 {vLXr}, 144, {B2}"); A(f"v_lshl_add_u32 {vLXr}, {G}, 4, {vLXr}")
    A(f"s_lshl_b32 {t3}, {sW}, 11"); A(f"v_add_u32 {v(TM+8)}, {t3}, {vL16}")
    A(f"ds_write_b128 {v(TM+8)}, {v(D1,4)} offset:1024"); A(f"ds_write_b128 {v(TM+8)}, {v(D1,4)} offset:2048")
    A(f"s_mov_b32 {sTO}, 0x40000"); A(f"s_mov_b32 {sMode}, 0"); A(f"s_mov_b32 {sGp}, {sGf}")
def ln0(n_after):
    A(f"s_cmp_lg_u32 {sW}, 3")
    A("s_cbranch_scc1 L_c1")
    A(f"s_waitcnt vmcnt({n_after})")
    stats_x()
    for i in range(2):
        lo, hi = v(TM+8), v(TM+9)
        A(f"v_lshlrev_b32 {lo}, 16, {v(XG+i)}"); A(f"v_and_b32 {hi}, 0xffff0000, {v(XG+i)}")
        A(f"v_sub_f32 {lo}, {lo}, {S_}"); A(f"v_sub_f32 {hi}, {hi}, {S_}")
        A(f"v_cvt_pk_bf16_f32 {v(XG+i)}, {lo}, {hi}")
        A(f"v_lshlrev_b32 {lo}, 16, {v(XG+i)}"); A(f"v_and_b32 {hi}, 0xffff0000, {v(XG+i)}")
        A(f"v_mul_f32 {lo}, {lo}, {Q_}"); A(f"v_mul_f32 {hi}, {hi}, {Q_}")
        A(f"v_cvt_pk_bf16_f32 {v(XG+i)}, {lo}, {hi}")
    A(f"v_lshrrev_b32 {v(TM+8)}, 5, v0"); A(f"v_mul_u32_u24 {v(TM+8)}, 144, {v(TM+8)}"); A(f"v_and_b32 {v(TM+9)}, 31, v0"); A(f"v_lshl_add_u32 {v(TM+8)}, {v(TM+9)}, 3, {v(TM+8)}")
    A("s_mov_b32 exec_lo, 0x3ffff"); A("s_mov_b32 exec_hi, 0x3ffff")
    A(f"ds_write_b64 {v(TM+8)}, {v(XG,2)} offset:{L_X}")
    A("s_mov_b64 exec, -1")
    A("L_c1:")

fl_load = ["s_mov_b32 exec_hi, 0", f"buffer_load_dwordx4 {v(FG,4)}, {vL16}, {srd(rWS)}, {sXoff} offen sc1", "s_mov_b32 exec_hi, -1"]
qp_store = f"buffer_store_dwordx4 {v(D0,4)}, {vQPst}, {srd(rWS)}, {{so}} offen{{fl}}"
def qg(n): return [f"buffer_load_dwordx{n} {v(QG+4*p,n)}, {vQPg if p < 2 else vQPg2}, {srd(rWS)}, {sGp} offen offset:{2048*(p%2)} sc1" for p in range(4)]
qg4, qg2 = qg(4), qg(2)
def empty_share(base, fl):
    A(f"s_mul_i32 {t5}, {sL}, {CLR}"); A(f"s_add_u32 {t5}, {t5}, {base}")
    A(f"s_mov_b32 exec_hi, {(1 << (CLR//16-32)) - 1}")
    A(f"buffer_store_dwordx4 {v(EM,4)}, {vL16}, {srd(rWS)}, {t5} offen{fl}")
    A("s_mov_b32 exec_hi, -1")
if args.hw >= 2: setup_k()
if args.hw >= 3: setup_ws()
A("s_waitcnt lgkmcnt(0)")
pstamp(0)
for n in range(4):
    A(f"buffer_load_dwordx4 {v(TM+6)}, {srd(rWQ)}, {sXoff} offen{NTQ} lds")
    A("s_add_u32 m0, m0, 4096"); A(f"s_add_u32 {sXoff}, {sXoff}, {16*8192}")
if args.hw < 2: setup_k()
A(f"s_cmp_ge_u32 {sW}, 2"); A("s_cbranch_scc1 L_pro1")
A(f"buffer_load_dwordx4 {v(TM+6)}, {srd(rWQ)}, {sXoff} offen{NTQ} lds")
A("L_pro1:")
if args.hw < 3: setup_ws()
A(f"s_mov_b32 {t5}, {EP_O}")
A(f"buffer_load_dword {FN}, off, {srd(rWS)}, {t5}{NT}")
A(f"s_cmp_lg_u32 {sW}, 3")
A("s_cbranch_scc1 L_pro2")
A(f"v_lshrrev_b32 {v(TM+8)}, 5, v0"); A(f"v_and_b32 {v(TM+9)}, 31, v0")
A(f"v_mul_u32_u24 {vXS1}, 1152, {v(TM+8)}"); A(f"v_lshl_add_u32 {vXS2}, {v(TM+9)}, 2, {vXS1}"); A(f"v_lshl_add_u32 {v(TM+10)}, {v(TM+9)}, 3, {vXS1}"); A(f"v_lshl_add_u32 {vXS1}, {v(TM+9)}, 4, {vXS1}")
for l in xs_loads(rX, 0, NT): A(l)
A(f"s_mul_i32 {t5}, {t2}, 144")
A(f"buffer_load_dwordx2 {v(XG,2)}, {v(TM+10)}, {srd(rX)}, {t5} offen{NT}")
A("L_pro2:")
empty_share(sGf, '')
A(f"s_lshl_b32 {t4}, {sW}, 13"); A(f"s_add_u32 m0, {t4}, {L_K}")
for i in range(8):
    if i == 4: A(f"s_add_u32 m0, m0, 4096")
    A(f"buffer_load_dwordx4 {v(KA+i%4)}, {srd(rK)}, {kv0 if i < 4 else kv1} offen offset:{1024*(i%4)}{NTK} lds")
setup_rest()
if ST and not args.pro:
    for k in range(14): A(f"s_mov_b64 s[{72+2*k}:{73+2*k}], 0")
pstamp(3)
for r, off in ((rW1, 48), (rW2, 64), (rOUT, 80), (rT1, 56), (rT2, 72)):
    A(f"s_load_dwordx2 s[{r}:{r+1}], s[0:1], {off}")
constants1()
cnt = [8]
mark = {'K': 8}
def vm(s): A(s); cnt[0] += 1
A(f"s_lshl_b32 {t4}, {sL}, 9"); A(f"s_add_u32 {t4}, {t4}, {sGf}"); A(f"s_add_u32 {t4}, {t4}, {QP_O}")
A(f"s_add_u32 {sXoff}, {sGf}, {FF_O}")
A("s_mov_b64 exec, 15")
vm(f"buffer_load_dword {DUM}, {vL128}, {srd(rWS)}, {t4} offen sc1{NT}")
vm(f"buffer_load_dword {DUM}, {vL128}, {srd(rWS)}, {sXoff} offen sc1{NT}")
A("s_mov_b64 exec, -1")
def hookQ():
    ln0(1 + cnt[0])
    A(f"s_lshl_b32 {t4}, {sL}, 2"); A(f"s_add_u32 {t4}, {t4}, {sXoff}")
    A(f"s_getreg_b32 {t3}, hwreg(HW_REG_XCC_ID)"); A(f"s_lshl_b32 {t3}, {t3}, 28"); A(f"s_or_b32 {t3}, {t3}, 1")
    A(f"s_waitcnt vmcnt({cnt[0]}) lgkmcnt(0)")
    A("s_barrier")
    pstamp(2)
    for l in exec_xa(): A(l)
    for i in range(3):
        if i == 2: A("s_mov_b64 exec, 0x33")
        A(f"ds_read_b128 {v(XA+4*i,4)}, {vLXr} offset:{L_X+64*i}")
    A("s_mov_b64 exec, -1")
    for i in range(2):
        for vv in range(0, 8, 2):
            row = 32*i + 16*(vv >> 2) + (vv & 3)
            A(f"ds_read2st64_b32 {a(aWQ+8*i+vv,2)}, {vCq} offset0:{row} offset1:{row+1}")
    A("s_mov_b32 exec_hi, 0")
    for vv in (0, 2): A(f"ds_read2st64_b32 {a(aWQ+16+vv,2)}, {vCq} offset0:{64+vv} offset1:{65+vv}")
    A("s_mov_b32 exec_hi, -1")
    A(f"v_readfirstlane_b32 {sFlag}, {FN}")
    A(f"s_add_u32 {sFlag}, {sFlag}, 0x0e377902"); A(f"s_and_b32 {sFlag}, {sFlag}, 0x0fffffff"); A(f"s_or_b32 {sFlag}, {sFlag}, {t3}")
    A(f"v_mov_b32 {FN}, {sFlag}")
    A("s_mov_b64 exec, 1")
    vm(f"buffer_store_dword {FN}, {vL16}, {srd(rWS)}, {t4} offen")
    A("s_mov_b64 exec, -1")
    A(f"v_and_b32 {vTag}, 0xff, {FN}"); A(f"s_movk_i32 {t4}, 0xff")
    A("s_waitcnt lgkmcnt(0)")
    for i in range(3): sm(D0, XA+4*i, aWQ+8*i, vIdxD)
    for i in range(4): A(f"v_bfi_b32 {v(D0+i)}, {t4}, {vTag}, {v(D0+i)}")
    A("s_mov_b32 exec_hi, 0")
    vm(qp_store.format(so=sGf, fl=''))
    A("s_mov_b32 exec_hi, -1")
    pstamp(1)
for k in range(9):
    if k == args.pQ: hookQ()
    if k == 8 - args.vw: mark['V'] = cnt[0]
    if k < 8: vm(f"buffer_load_dwordx4 {a(aV+4*k,4)}, {vL16}, {srd(rV)}, {kv0 if k < 4 else kv1} offen offset:{1024*(k%4)}{NTV}")
    if k == 7: pstamp(9)
TT = v(TM+4)
def slots_touch():
    A(f"s_lshl_b32 {t1}, {sJ}, 2"); A(f"s_add_u32 {t1}, {t1}, {sW}")
    A(f"s_mul_i32 {t3}, {t1}, 896"); A(f"s_add_u32 {t3}, {t3}, {sGf}"); A(f"s_add_u32 {t3}, {t3}, {Y_O}")
    A("s_mov_b64 exec, 0x7f")
    A(f"buffer_load_dword {DUM}, {vL128}, {srd(rWS)}, {t3} offen sc1{NT}")
    A("s_mov_b64 exec, -1")
assert Y_O + 64 * 896 >= ZS_O + 1536
def w1_touch():
    A(f"s_lshl_b32 {t1}, {sJ}, 2"); A(f"s_add_u32 {t1}, {t1}, {sW}")
    A(f"s_mul_i32 {t4}, {sX}, 576"); A(f"s_add_u32 {t4}, {t4}, {t1}"); A(f"s_add_u32 {t4}, {t4}, 512"); A(f"s_mul_i32 {t4}, {t4}, 1152")
    A(f"s_mul_i32 {t1}, {t1}, {9*9216}")
    A(f"s_mul_i32 {t3}, {sX}, 1152"); A(f"s_add_u32 {t1}, {t1}, {t3}"); A(f"s_add_u32 {t3}, {t1}, {5*9216}")
    A(f"v_mul_u32_u24 {TT}, 57, v0"); A(f"v_lshrrev_b32 {TT}, 9, {TT}"); A(f"v_mul_u32_u24 {TT}, {9216-1152}, {TT}"); A(f"v_add_u32 {TT}, {TT}, {vL128}")
    A("s_mov_b32 exec_hi, 0x1fff")
    A(f"buffer_load_dword {DUM}, {TT}, {srd(rW1)}, {t1} offen{NTT}")
    A("s_mov_b32 exec_hi, 15")
    A(f"buffer_load_dword {DUM}, {TT}, {srd(rW1)}, {t3} offen{NTT}")
    A("s_mov_b64 exec, 0x1ff")
    A(f"buffer_load_dword {DUM}, {vL128}, {srd(rW2)}, {t4} offen{NTT}")
    A("s_mov_b64 exec, -1")
def w2_loads():
    l1 = A.newlabel('L_w2')
    A(f"s_mul_i32 {t0}, {sX}, 18"); A(f"s_add_u32 {t0}, {t0}, {sJ}"); A(f"s_mul_i32 {t0}, {t0}, {32*1152}")
    A(f"s_lshl_b32 {t1}, {sW}, 8"); A(f"s_add_u32 {t1}, {t1}, {t0}")
    for i in range(8):
        A(f"buffer_load_dwordx4 {a(aW2+4*i,4)}, {vWrow}, {srd(rW2)}, {t1} offen{NT2}")
        if i < 7: A(f"s_add_u32 {t1}, {t1}, 4608")
    A(f"s_cmp_lg_u32 {sW}, 3")
    A(f"s_cbranch_scc1 {l1}")
    A(f"s_mov_b64 exec, {mLO8}")
    for i in range(8):
        A(f"buffer_load_dwordx4 {a(aW2t+4*i,4)}, {vWrow}, {srd(rW2)}, {t0} offen offset:1024{NT2}")
        if i < 7: A(f"s_add_u32 {t0}, {t0}, 4608")
    A("s_mov_b64 exec, -1")
    A(f"{l1}:")
def wo_loads(k0, k1, with_tail):
    for k in range(k0, k1):
        A(f"buffer_load_dwordx4 {a(aWO+4*k,4)}, {vWrow}, {srd(rWO)}, {sWo} offen{NTO}")
        A(f"s_add_u32 {sWo}, {sWo}, 4608")
    if with_tail:
        l1 = A.newlabel('L_wt')
        A(f"s_cmp_lg_u32 {sW}, 3")
        A(f"s_cbranch_scc1 {l1}")
        A(f"s_mov_b64 exec, {mLO8}")
        for i in range(7, -1, -1):
            A(f"s_sub_u32 {sWo}, {sWo}, 4608")
            A(f"buffer_load_dwordx4 {a(aWOt+4*i,4)}, {vWrow}, {srd(rWO)}, {sWo} offen offset:256{NTO}")
        A("s_mov_b64 exec, -1")
        A(f"{l1}:")
constants()
pstamp(4)
stamp()
A("s_waitcnt lgkmcnt(0)")
A(f"s_mov_b32 {sXPo}, {XP_O}")
A(f"s_cmp_lt_u32 {sJ}, 16")
A("s_cbranch_scc1 L_g1n")
A(f"v_readfirstlane_b32 {t4}, {vOPg}"); A(f"v_readfirstlane_b32 {t5}, {vSTg}")
A(f"s_add_u32 {t4}, {t4}, {sGf}"); A(f"s_add_u32 {t5}, {t5}, {sGf}")
A("s_mov_b64 exec, 0xff")
A(f"buffer_load_dword {DUM}, {vL128}, {srd(rWS)}, {t4} offen sc1{NT}")
A("s_mov_b64 exec, 3")
A(f"buffer_load_dword {DUM}, {vL128}, {srd(rWS)}, {t5} offen sc1{NT}")
A("s_mov_b64 exec, -1")
A(f"buffer_load_ushort {vXres}, {vZo}, {srd(rX)}, 0 offen{NT}")
A(f"buffer_load_ushort {vB2}, {vB2}, {srd(rT2)}, 0 offen{NT}")
wo_loads(0, 8, True)
A("s_branch L_g1o")
A("L_g1n:")
if 's' in args.early: slots_touch()
if '1' in args.early: w1_touch()
if '2' in args.early: w2_loads()
A("L_g1o:")
pstamp(6)
A("s_waitcnt vmcnt(8)")
for T in range(2):
    for q in range(4): A(f"ds_read_b128 {a(aK+16*T+4*q,4)}, {v(KR+q)} offset:{4096*T}")
A(f"s_waitcnt vmcnt({args.vw})")
if ST and not args.pro and ONLY is None: A(f"s_memrealtime s[74:75]")
pstamp(5)
def flags_diff():
    A(f"v_xor_b32 {CK}, {sFlag}, {v(FG)}")
    for i in range(1, 4): A(f"v_bitop3_b32 {CK}, {CK}, {v(FG+i)}, {sFlag} bitop3:0xf6")
st_rd = f"ds_read_b64 {v(TM,2)}, {vSTATr}"
A("L_g4:")
for l in fl_load + qg4: A(l)
A("s_waitcnt vmcnt(0)")
pstamp(7)
flags_diff()
A(f"v_cmp_ne_u32 vcc, 0, {CK}")
A("s_cmp_lg_u32 vcc_lo, 0")
if args.forcefb: A("s_cmp_eq_u32 0, 0")
A("s_cbranch_scc1 L_af2")
A(f"s_mov_b32 {sMode}, 0")
A("L_g2:")
for i in range(16): A(f"v_xor_b32 {v(QG+i)}, {vTag}, {v(QG+i)}")
A(f"v_or3_b32 {CK}, {v(QG)}, {v(QG+1)}, {v(QG+2)}")
for i in range(3, 15, 2): A(f"v_or3_b32 {CK}, {CK}, {v(QG+i)}, {v(QG+i+1)}")
A(f"v_or_b32 {CK}, {CK}, {v(QG+15)}")
A(f"v_and_b32 {CK}, 0xff, {CK}")
A(f"v_cmp_ne_u32 vcc, 0, {CK}")
A("s_cbranch_vccnz L_g5")
A("L_g3:")
A(f"s_mov_b32 {sL}, 0")
zero(D0)
A(f"v_mov_b32 {v(TM)}, 0"); A(f"v_mov_b32 {v(TM+1)}, 1.0")
tail.append("L_g5:\n" + timeout("L_g4", "L_g3"))
pstamp(8)
A(f"v_add_f32 {v(TM+2)}, {v(QG+2)}, {v(QG+6)}"); A(f"v_add_f32 {v(TM+3)}, {v(QG+3)}, {v(QG+7)}")
A(f"v_add_f32 {v(TM+4)}, {v(QG+10)}, {v(QG+14)}"); A(f"v_add_f32 {v(TM+5)}, {v(QG+11)}, {v(QG+15)}")
A(f"v_add_f32 {v(TM+2)}, {v(TM+2)}, {v(TM+4)}"); A(f"v_add_f32 {v(TM+3)}, {v(TM+3)}, {v(TM+5)}")
A(f"v_permlane32_swap_b32 {v(TM+2)}, {v(TM+3)}")
A(f"v_add_f32 {vCq}, {v(TM+2)}, {v(TM+3)}")
A("s_branch L_qfin")

A("L_layer:")
zero(D0, 8)
def quiet_wait(so_add):
    if not args.pre: return
    A(f"s_add_u32 {t5}, {sGp}, {so_add}")
    A("s_mov_b64 exec, 1")
    poll([f"buffer_load_dword {DUM}, {vL16}, {srd(rWS)}, {t5} offen sc1"] + ([f"s_sleep {args.pre-1}"] if args.pre > 1 else []), [DUM])
    A("s_mov_b64 exec, -1")
    if args.zd: A(f"s_sleep {args.zd}")
if args.pre:
    A(f"s_bitcmp1_b32 {sRole}, 1"); A("s_cbranch_scc1 L_q0")
    quiet_wait(AN_O)
    A("L_q0:")
def q_pub():
    A(f"v_and_b32 {v(D0)}, -2, {v(D0)}"); A(f"v_and_b32 {v(D0+1)}, -2, {v(D0+1)}")
    A("s_mov_b32 exec_hi, 0")
    pub(f"buffer_store_dwordx2 {v(D0,2)}, {vQPst}, {srd(rWS)}, {{so}} offen{{fl}}")
    A("s_mov_b32 exec_hi, -1")
poll_proj(vXAq, sXoff, 3, aWQ, True)
q_pub()
nst[0] = 1
stamp()
zero(D0)
qregs = [v(QG+4*p+i) for p in range(4) for i in range(2)]
qchk1 = [f"v_or3_b32 {CK}, {qregs[0]}, {qregs[1]}, {qregs[2]}", f"v_or3_b32 {CK}, {CK}, {qregs[3]}, {qregs[4]}", f"v_or3_b32 {CK}, {CK}, {qregs[5]}, {qregs[6]}",
         f"v_bitop3_b32 {CK}, {CK}, {qregs[7]}, 1 bitop3:0xa8", f"v_cmp_ne_u32 vcc, 0, {CK}"]
poll(zs_load(vSTATr, sGp), [v(ZG), v(ZG+1)])
for l in qg2: A(l)
A(f"v_mov_b32 {S_}, {v(ZG)}"); A(f"v_mov_b32 {Q_}, {v(ZG+1)}")
stats_tail1(); stats_tail2()
poll(qg2, qregs, primed=True, chk=qchk1, site='q')
A("L_qfin:")
stamp()
A(f"v_add_f32 {v(TM+2)}, {v(QG)}, {v(QG+4)}"); A(f"v_add_f32 {v(TM+3)}, {v(QG+1)}, {v(QG+5)}")
A(f"v_add_f32 {v(TM+4)}, {v(QG+8)}, {v(QG+12)}"); A(f"v_add_f32 {v(TM+5)}, {v(QG+9)}, {v(QG+13)}")
A(f"v_add_f32 {v(TM+2)}, {v(TM+2)}, {v(TM+4)}"); A(f"v_add_f32 {v(TM+3)}, {v(TM+3)}, {v(TM+5)}")
A(f"v_permlane32_swap_b32 {v(TM+2)}, {v(TM+3)}")
A(f"v_add_f32 {v(TM+2)}, {v(TM+2)}, {v(TM+3)}")
A(f"v_fma_f32 {v(TM+2)}, -{v(TM)}, {vCq}, {v(TM+2)}")
A(f"v_mul_f32 {v(TM+2)}, {v(TM+2)}, {v(TM+1)}")
A(f"v_cvt_pk_bf16_f32 {v(TM+2)}, {v(TM+2)}, {v(TM+2)}")
A(f"ds_write_b16 {vQTw}, {v(TM+2)} offset:{L_QT}")
A("s_mov_b32 vcc_lo, 0xaaaaaaaa"); A("s_mov_b32 vcc_hi, 0xaaaaaaaa")
zero(DP)
A("s_waitcnt lgkmcnt(0)")
A("s_barrier")
A(f"ds_read_b128 {v(AO,4)}, {vQTr} offset:{L_QT}")
A(f"ds_read_b128 {v(AO+4,4)}, {vQTr} offset:{L_QT+256}")
if args.mid:
    A(f"s_lshr_b32 {t0}, {sJ}, 4"); A(f"s_or_b32 {t0}, {t0}, {sL}")
    A("s_cbranch_scc1 L_mid")
    if 's' in args.mid: slots_touch()
    if '1' in args.mid: w1_touch()
    if '2' in args.mid: w2_loads()
    A("L_mid:")
A(f"s_waitcnt lgkmcnt({lg(1)})")
sm(D0, AO, aK, vIdxP); sm(D1, AO, aK+16, vIdxP)
A("s_waitcnt lgkmcnt(0)")
sm(D0, AO+4, aK+8, vIdxP); sm(D1, AO+4, aK+24, vIdxP)
SC, MX, P_, LS, TT = v(TM), v(TM+1), v(TM+2), v(TM+3), v(TM+4)
A(f"v_add_f32 {SC}, {v(D0)}, {v(D0+1)}")
A(f"v_add_f32 {TT}, {v(D1)}, {v(D1+1)}")
A(f"v_cndmask_b32 {SC}, {SC}, {TT}, {mROW}")
rbf(SC, SC)
A(f"v_mul_f32 {SC}, {f32(128 ** -0.5)}, {SC}")
rbf(SC, SC)
A(f"v_mul_f32 {SC}, {f32(1.4426950408889634)}, {SC}")
zero(D0, 2)
A(f"v_max_f32_dpp {MX}, {SC}, {SC} row_ror:8 row_mask:0xf bank_mask:0xf")
for n, k in enumerate((4, 2, 1)):
    zero(D0+2+2*n, 2)
    if k == 1: A(f"v_max_f32_dpp {TT}, {MX}, {MX} row_ror:{k} row_mask:0xf bank_mask:0xf")
    A(f"v_max_f32_dpp {MX}, {MX}, {MX} row_ror:{k} row_mask:0xf bank_mask:0xf")
A(f"v_permlane16_swap_b32 {MX}, {TT}")
A(f"v_max_f32 {MX}, {MX}, {TT}")
A(f"v_sub_f32 {P_}, {SC}, {MX}")
A(f"v_exp_f32 {P_}, {P_}")
A(f"v_cvt_pk_bf16_f32 {TT}, {P_}, 0")
A(f"ds_write2_b32 {vPTw}, {TT}, {TT} offset1:5")
for i in range(4): A(f"ds_read_b128 {v(AO+4*i,4)}, {vPTr} offset:{128*i}")
A(f"v_add_f32_dpp {LS}, {P_}, {P_} row_ror:8 row_mask:0xf bank_mask:0xf")
for k in (4, 2, 1): A(f"v_add_f32_dpp {LS}, {LS}, {LS} row_ror:{k} row_mask:0xf bank_mask:0xf")
A(f"v_mov_b32 {SC}, {LS}")
A(f"v_permlane16_swap_b32 {LS}, {SC}")
A(f"v_add_f32 {LS}, {LS}, {SC}")
A(f"v_cndmask_b32 {SC}, {MX}, {LS}, vcc")
A("s_mov_b32 exec_lo, 3"); A("s_mov_b32 exec_hi, 3")
pub(f"buffer_store_dword {SC}, {vSTst}, {srd(rWS)}, {{so}} offen{{fl}}")
A("s_mov_b64 exec, -1")
for i in range(4):
    A(f"s_waitcnt lgkmcnt({lg(3-i)})")
    sm(DP, AO+4*i, aV+8*i, vIdxS)
def pack4(d):
    A(f"v_cvt_pk_bf16_f32 {v(d)}, {v(d)}, {v(d+1)}"); A(f"v_cvt_pk_bf16_f32 {v(d+1)}, {v(d+2)}, {v(d+3)}")
pack4(DP)
pub(f"buffer_store_dwordx2 {v(DP,2)}, {vOPst}, {srd(rWS)}, {{so}} offen{{fl}}")
stamp()
E = TM + 5
R = TM + 12
def tile_out(wb, tb, vst, drain):
    l1 = A.newlabel('L_t'); l2 = A.newlabel('L_t')
    for i in range(4):
        A(f"s_waitcnt lgkmcnt({lg(3-i)})")
        sm(D0, AO+4*i, wb+8*i, vIdxS)
    A(f"s_cmp_lg_u32 {sW}, 3")
    A(f"s_cbranch_scc1 {l1}")
    for i in range(1 if 'notail' in args.exp else 4): sm(D1, AO+4*i, tb+8*i, vIdxS)
    A(f"{l1}:")
    A("s_waitcnt vmcnt(0)" if drain else "s_nop 0")
    A("s_nop 4")
    pack4(D0)
    pub(f"buffer_store_dwordx2 {v(D0,2)}, {vst}, {srd(rWS)}, {{so}} offen{{fl}}")
    A(f"s_cmp_lg_u32 {sW}, 3")
    A(f"s_cbranch_scc1 {l2}")
    pack4(D1)
    A(f"s_mov_b64 exec, {mLO8}")
    pub(f"buffer_store_dwordx2 {v(D1,2)}, {v(E+2)}, {srd(rWS)}, {{so}} offen{{fl}}")
    A("s_mov_b64 exec, -1")
    A(f"{l2}:")
A(f"s_cmp_lt_u32 {sJ}, 16")
A("s_cbranch_scc1 L_mlp")
op_load = [f"buffer_load_dwordx2 {v(OG+2*i,2)}, {vOPg}, {srd(rWS)}, {sGp} offen offset:{512*i} sc1" for i in range(2)]
A(f"v_add_u32 {v(E+6)}, {4*1152}, {vYst}")
if args.sd: A(f"s_sleep {args.sd}")
if 'nost' not in args.exp.split(','): poll([f"buffer_load_dwordx4 {v(SG,4)}, {vSTg}, {srd(rWS)}, {sGp} offen sc1",
      f"buffer_load_dwordx4 {v(SG+4,4)}, {vSTg}, {srd(rWS)}, {sGp} offen offset:128 sc1",
      f"buffer_load_dwordx2 {v(SG+8,2)}, {vSTm}, {srd(rWS)}, {sGp} offen sc1"], [v(SG+i) for i in range(10 if 's' in PD else 8)], site='s')
for l in op_load: A(l)
if 'noweights' in args.exp: A("s_branch L_exw")
A(f"v_max3_f32 {MX}, {v(SG)}, {v(SG+1)}, {v(SG+2)}")
A(f"v_max_f32 {MX}, {MX}, {v(SG+3)}")
A(f"v_max_f32_dpp {TT}, {MX}, {MX} row_ror:8 row_mask:0xf bank_mask:0xf")
A(f"v_max_f32_dpp {MX}, {MX}, {MX} row_ror:8 row_mask:0xf bank_mask:0xf")
A(f"v_permlane16_swap_b32 {MX}, {TT}"); A(f"v_max_f32 {SC}, {MX}, {TT}"); A(f"v_max_f32 {MX}, {MX}, {TT}")
A(f"v_permlane32_swap_b32 {MX}, {SC}"); A(f"v_max_f32 {MX}, {MX}, {SC}")
for n, i in enumerate((0, 1, 2, 3, 8, 9)): A(f"v_sub_f32 {v(E+n)}, {v(SG+i)}, {MX}")
for n in range(6): A(f"v_exp_f32 {v(E+n)}, {v(E+n)}")
A(f"v_mul_f32 {LS}, {v(E)}, {v(SG+4)}")
for i in (1, 2, 3): A(f"v_fmac_f32 {LS}, {v(E+i)}, {v(SG+4+i)}")
A(f"v_add_f32_dpp {TT}, {LS}, {LS} row_ror:8 row_mask:0xf bank_mask:0xf")
A(f"v_add_f32_dpp {LS}, {LS}, {LS} row_ror:8 row_mask:0xf bank_mask:0xf")
A(f"v_permlane16_swap_b32 {LS}, {TT}"); A(f"v_add_f32 {SC}, {LS}, {TT}"); A(f"v_add_f32 {LS}, {LS}, {TT}")
A("L_exw:")
poll(op_load, [v(OG+i) for i in range(4)], primed=True, site='o')
stamp()
A(f"v_permlane32_swap_b32 {LS}, {SC}")
def unpack2(dst, src):
    for i in range(2):
        A(f"v_lshlrev_b32 {v(dst+2*i)}, 16, {v(src+i)}"); A(f"v_and_b32 {v(dst+2*i+1)}, 0xffff0000, {v(src+i)}")
unpack2(R, OG); unpack2(OG+4, OG+2)
for i in (0, 2): A(f"v_pk_mul_f32 {v(R+i,2)}, {v(R+i,2)}, {v(E+3,2)} op_sel:[0,1] op_sel_hi:[1,1]")
for i in (0, 2): A(f"v_pk_fma_f32 {v(R+i,2)}, {v(OG+4+i,2)}, {v(E+5,2)}, {v(R+i,2)} op_sel_hi:[1,0,1]")
A(f"v_add_f32 {LS}, {LS}, {SC}")
A(f"v_mov_b32 {v(E+2)}, {v(E+6)}")
A(f"v_permlane32_swap_b32 {v(R)}, {v(R+2)}")
A(f"v_permlane32_swap_b32 {v(R+1)}, {v(R+3)}")
A(f"v_add_f32 {v(R)}, {v(R)}, {v(R+2)}")
A(f"v_add_f32 {v(R+1)}, {v(R+1)}, {v(R+3)}")
A(f"v_rcp_f32 {LS}, {LS}")
A(f"v_permlane16_swap_b32 {v(R)}, {v(R+1)}")
A(f"v_add_f32 {v(R)}, {v(R)}, {v(R+1)}")
A(f"v_add_f32_dpp {v(R)}, {v(R)}, {v(R)} row_ror:8 row_mask:0xf bank_mask:0xf")
A(f"v_mul_f32 {v(R)}, {v(R)}, {LS}")
A(f"v_cvt_pk_bf16_f32 {TT}, {v(R)}, {v(R)}")
A(f"ds_write_b16 {vOTw}, {TT}")
A(f"s_cmp_lg_u32 {sL}, 0")
A("s_cbranch_scc1 L_o3")
pub(*[f"buffer_store_dwordx2 {v(EM,2)}, {vOPg}, {srd(rWS)}, {{so}} offen offset:{512*i}{{fl}}" for i in range(2)])
A("L_o3:")
A("s_waitcnt lgkmcnt(0)")
A("s_barrier")
for i in range(4): A(f"ds_read_b128 {v(AO+4*i,4)}, {vOTr} offset:{128*i}")
tile_out(aWO, aWOt, vYst, True)
stamp()

def reducer(kind):
    ld = [f"buffer_load_dwordx2 {v(YG+2*i,2)}, {vRg}, {srd(rWS)}, {sGp} offen offset:{512*i} sc1" for i in range(2)]
    A(f"s_movk_i32 {t4}, 0xff"); A(f"s_add_u32 {t3}, {sXPo}, 8192")
    zero(R)
    if kind == 'A': zero(YG+4, 2)
    if kind == 'A':
        if args.yd: A(f"s_sleep {args.yd}")
        poll(ld, [v(YG+i) for i in range(4)], site='y')
    else:
        poll(ld + ["s_mov_b64 exec, 0xffff", f"buffer_load_dwordx2 {v(YG+4,2)}, {vRg}, {srd(rWS)}, {sGp} offen offset:1024 sc1", "s_mov_b64 exec, -1"],
             [v(YG+i) for i in range(6)], site='y')
    stamp()
    A(f"v_smfmac_f32_16x16x64_bf16 {v(R,4)}, {v(YG+8,4)}, {v(YG,8)}, {vIdxS}")
    for i in range(4): A(f"v_add_f32_dpp {v(R+i)}, {v(R+i)}, {v(R+i)} row_ror:8 row_mask:0xf bank_mask:0xf")
    for i in range(4): A(f"v_bfi_b32 {v(R+i)}, {t4}, {vTag}, {v(R+i)}")
    A(f"buffer_store_dwordx4 {v(R,4)}, {vXPst}, {srd(rWS)}, {sXPo} offen sc1")
    if args.near: A(f"buffer_store_dwordx4 {v(R,4)}, {vXPst}, {srd(rWS)}, {t3} offen sc1")
    if kind == 'M':
        A(f"s_lshl_b32 {t0}, {sL}, 2"); A(f"s_andn2_b32 {t0}, {t0}, {sRole}")
        A("s_cbranch_scc1 L_fin")
    cl = [f"buffer_store_dwordx2 {v(EM,2)}, {vRg}, {srd(rWS)}, {{so}} offen offset:{512*i}{{fl}}" for i in range(2)]
    if kind == 'M': cl += ["s_mov_b64 exec, 0xffff", f"buffer_store_dwordx2 {v(EM,2)}, {vRg}, {srd(rWS)}, {{so}} offen offset:1024{{fl}}", "s_mov_b64 exec, -1"]
    pub(*cl)
    if args.pre:
        lb = A.newlabel('L_an')
        A(f"s_cmp_lg_u32 {sTask}, 0"); A(f"s_cbranch_scc1 {lb}")
        if kind == 'A': A(f"s_cmp_eq_u32 {sL}, 0"); A(f"s_cbranch_scc1 {lb}")
        A(f"v_mov_b32 {TT}, {AN_O + (0 if kind == 'M' else 4)}")
        A("s_mov_b64 exec, 1")
        pub(f"buffer_store_dword {vL16}, {TT}, {srd(rWS)}, {{so}} offen{{fl}}")
        A("s_mov_b64 exec, -1")
        A(f"{lb}:")
    if args.near:
        A(f"v_mov_b32 {TT}, 0")
        A(f"ds_read_b32 {TT}, {TT} offset:{L_NEAR}")
    if args.xd: A(f"s_sleep {args.xd}")
    if args.near:
        A("s_waitcnt lgkmcnt(0)")
        A(f"v_or_b32 {vXPg}, {vXPg}, {TT}")
    poll([f"buffer_load_dwordx2 {v(XG,2)}, {vXPg}, {srd(rWS)}, {sXPo} offen sc1",
          f"buffer_load_dwordx2 {v(XG+2,2)}, {vXPg}, {srd(rWS)}, {sXPo} offen offset:512 sc1"], None, site='x',
         chk=[f"v_xor_b32 {v(R+i)}, {vTag}, {v(XG+i)}" for i in range(4)] +
             [f"v_or3_b32 {CK}, {v(R)}, {v(R+1)}, {v(R+2)}", f"v_bitop3_b32 {CK}, {CK}, {v(R+3)}, {t4} bitop3:0xa8", f"v_cmp_ne_u32 vcc, 0, {CK}"])
    stamp()
    Y = v(R)
    A(f"v_add_f32 {v(R)}, {v(R)}, {v(R+2)}"); A(f"v_add_f32 {v(R+1)}, {v(R+1)}, {v(R+3)}")
    A(f"v_permlane32_swap_b32 {v(R)}, {v(R+1)}")
    A(f"v_add_f32 {TT}, {v(R)}, {v(R+1)}"); A(f"v_add_f32 {Y}, {v(R)}, {v(R+1)}")
    A(f"v_permlane16_swap_b32 {Y}, {TT}"); A(f"v_add_f32 {Y}, {Y}, {TT}")
    rbf(Y, Y)
    if kind == 'M':
        A(f"v_add_f32 {Y}, {Y}, {vB2}"); rbf(Y, Y)
    A(f"v_add_f32 {TT}, {Y}, {vXres}")
    A(f"v_add_f32 {v(R+1)}, {Y}, {vXres}")
    A(f"v_add_f32 {Y}, {Y}, {vXres}")
    A("s_mov_b64 exec, -1")
    A(f"v_permlane32_swap_b32 {TT}, {v(R+1)}")
    A(f"v_cvt_pk_bf16_f32 {TT}, {TT}, {v(R+1)}")
    A("s_mov_b64 exec, 0xffff")
    if kind == 'M':
        A(f"s_cmp_lg_u32 {sL}, 0")
        A("s_cbranch_scc1 L_out")
    pub(f"buffer_store_dword {TT}, {vZst}, {srd(rWS)}, {{so}} offen{{fl}}")
    A("s_mov_b64 exec, -1")
    stamp()
    rbf(vXres, Y)
    if kind == 'M' or args.ms != 'x':
        A(f"v_mul_f32 {TT}, {vXres}, {vXres}")
        A(f"v_cndmask_b32 {TT}, {vXres}, {TT}, {mROW}")
        for k in (8, 4, 2): A(f"v_add_f32_dpp {TT}, {TT}, {TT} row_ror:{k} row_mask:0xf bank_mask:0xf")
        A(f"v_add_f32_dpp {Y}, {TT}, {TT} row_ror:1 row_mask:0xf bank_mask:0xf")
        A(f"v_add_f32_dpp {TT}, {TT}, {TT} row_ror:1 row_mask:0xf bank_mask:0xf")
        A(f"v_permlane32_swap_b32 {TT}, {Y}")
        A(f"v_add_f32 {TT}, {TT}, {Y}")
        A("s_mov_b64 exec, 0x10001")
        pub(f"buffer_store_dword {TT}, {vZSst}, {srd(rWS)}, {{so}} offen{{fl}}")
        A("s_mov_b64 exec, -1")
    A(f"v_add_u32 {vZSst}, 512, {vZSst}")
    A(f"v_add_u32 {vZst}, 2304, {vZst}")
    A(f"s_add_u32 {sXPo}, {sXPo}, {XPS}")

A(f"s_bitcmp1_b32 {sRole}, 0")
A("s_cbranch_scc1 L_mlp")
A(f"s_bitcmp1_b32 {sRole}, 1")
A("s_cbranch_scc0 L_probe" if args.near else "s_cbranch_scc0 L_next")
A(f"s_cmp_lg_u32 {sL}, 0")
A("s_cbranch_scc1 L_red")
A(f"v_lshlrev_b32 {vXres}, 16, {vXres}"); A(f"v_lshlrev_b32 {vB2}, 16, {vB2}")
zero(YG+6, 2)
for i in range(4): A(f"v_mov_b32 {v(YG+8+i)}, 0x3f80")
A("L_red:")
k0 = nst[0]
reducer('A'); reducer('M')
kr = nst[0]
A("s_branch L_next")
A("L_mlp:")
nst[0] = k0
A(f"s_cmp_lg_u32 {sL}, 0")
A("s_cbranch_scc1 L_m1")
A(f"s_mul_i32 {t0}, {sX}, 18"); A(f"s_add_u32 {t0}, {t0}, {sJ}")
A(f"s_lshl_b32 {t2}, {t0}, 6")
A(f"buffer_load_ushort {vB1}, {vB1}, {srd(rT1)}, 0 offen{NT}")
A(f"s_cmp_ge_u32 {sJ}, 16")
A("s_cbranch_scc1 L_m0b")
if args.xt:
    A(f"s_lshl_b32 {t1}, {sJ}, 2"); A(f"s_add_u32 {t1}, {t1}, {sW}"); A(f"s_mul_i32 {t1}, {t1}, 36")
    A(f"v_add_u32 {TT}, {t1}, v0")
    A(f"v_lshrrev_b32 {LS}, 6, {TT}"); A(f"v_mul_u32_u24 {MX}, 43, {LS}"); A(f"v_lshrrev_b32 {MX}, 7, {MX}"); A(f"v_add_u32 {LS}, {LS}, {MX}")
    A(f"v_bfe_u32 {MX}, {TT}, 3, 3"); A(f"v_lshl_add_u32 {LS}, {LS}, 3, {MX}"); A(f"v_and_b32 {TT}, 7, {TT}"); A(f"v_lshlrev_b32 {TT}, 7, {TT}"); A(f"v_lshl_add_u32 {TT}, {LS}, 13, {TT}")
    A(f"s_lshl_b32 {t1}, {sX}, 10"); A(f"s_add_u32 {t1}, {t1}, {XP_O}")
    A(f"v_mov_b32 {LS}, 0")
    A("s_mov_b32 exec_hi, 15")
    A(f"buffer_atomic_or {LS}, {TT}, {srd(rWS)}, {t1} offen")
    A("s_mov_b32 exec_hi, -1")
if 's' not in args.early + args.mid: slots_touch()
if '1' not in args.early + args.mid: w1_touch()
if '2' in args.early + args.mid: A("s_branch L_m0d")
A("L_m0b:")
w2_loads()
A("L_m0d:")
A(f"s_cmp_eq_u32 {sW}, 3")
A("s_cbranch_scc1 L_m0c")
A("L_m0a:")
A(f"s_mul_i32 {t0}, {sW}, {192*9216}"); A(f"s_add_u32 {t0}, {t0}, {t2}")
if args.w1dma:
    A(f"v_lshrrev_b32 {TT}, 2, v0"); A(f"v_mul_u32_u24 {TT}, 9216, {TT}"); A(f"v_and_b32 {LS}, 3, v0"); A(f"v_lshl_add_u32 {TT}, {LS}, 4, {TT}")
    A(f"s_mul_i32 {t1}, {sW}, 12288"); A(f"s_add_u32 {t1}, {t1}, {L_K}"); A(f"s_mov_b32 m0, {t1}")
    for i in range(12):
        A(f"buffer_load_dwordx4 {TT}, {srd(rW1)}, {t0} offen{NTM} lds")
        if i < 11: A(f"s_add_u32 {t0}, {t0}, {16*9216}"); A("s_add_u32 m0, m0, 1024")
    A(f"v_lshrrev_b32 {TT}, 4, v0"); A(f"v_lshlrev_b32 {TT}, 8, {TT}"); A(f"v_and_b32 {LS}, 15, v0"); A(f"v_lshl_add_u32 {TT}, {LS}, 2, {TT}"); A(f"v_add_u32 {TT}, {t1}, {TT}")
    A("s_waitcnt vmcnt(0)")
    for i in range(6):
        for hh in range(2):
            for p in range(2):
                A(f"ds_read2_b32 {a(aW1+8*i+4*hh+2*p,2)}, {TT} offset0:{32*p} offset1:{32*p+16}")
            if (i, hh) != (5, 1): A(f"v_add_u32 {TT}, 1024, {TT}")
    A("s_waitcnt lgkmcnt(0)")
else:
    A(f"v_lshrrev_b32 {TT}, 4, v0"); A(f"v_mul_u32_u24 {TT}, {4*9216}, {TT}"); A(f"v_and_b32 {LS}, 15, v0"); A(f"v_lshl_add_u32 {TT}, {LS}, 2, {TT}")
    prev = 0
    for i in range(6):
        for vv in range(8):
            row = 32*i + 16*(vv >> 2) + (vv & 3)
            if row != prev: A(f"s_add_u32 {t0}, {t0}, {(row-prev)*9216}")
            prev = row
            A(f"buffer_load_dword {a(aW1+8*i+vv)}, {TT}, {srd(rW1)}, {t0} offen{NTM}")
A("L_m0c:")
if ST: A("s_memrealtime s[94:95]"); A("s_waitcnt vmcnt(0)"); A("s_memrealtime s[96:97]")
A("s_waitcnt vmcnt(0)")
A(f"v_lshlrev_b32 {vB1}, 16, {vB1}")
A("L_m1:")
zero(D0, 8)
c0 = -2 * 1.4426950408889634 * 0.7978845608028654
A(f"v_mov_b32 {v(E)}, {f32(c0)}")
A(f"v_add_u32 {v(E+2)}, {4*1152}, {vMst}")
A(f"s_mul_i32 {t0}, {sL}, {Z3_O-Z1_O}"); A(f"s_add_u32 {t0}, {t0}, {sGp}"); A(f"s_add_u32 {t0}, {t0}, {Z1_O}")
if args.pre:
    A(f"s_cmp_eq_u32 {sL}, 0"); A("s_cbranch_scc1 L_m1b")
    quiet_wait(AN_O + 4)
    A("L_m1b:")
A(f"s_lshl_b32 {t1}, {sL}, 10"); A(f"s_add_u32 {t1}, {t1}, {sGp}"); A(f"s_add_u32 {t1}, {t1}, {ZS_O}")
A(f"v_lshrrev_b32 {v(E+1)}, 5, v0"); A(f"v_lshlrev_b32 {v(E+1)}, 3, {v(E+1)}")
A(f"s_cmp_eq_u32 {sW}, 3")
A("s_cbranch_scc1 L_m2")
poll_proj(vXAm, t0, 6, aW1)
A("s_mov_b32 exec_hi, 0")
A(f"ds_write_b128 {vHPw}, {v(D0,4)}")
A("s_mov_b32 exec_hi, -1")
A("s_branch L_m2b")
A("L_m2:")
if args.ms == 'x':
    if 'nostat' not in args.exp:
        poll(xs_loads(rWS, t0, ' sc1'), [v(XS+i) for i in range(9)], site='z')
        stats_x()
    else: A(f"v_mov_b32 {S_}, 0"); A(f"v_mov_b32 {Q_}, 1.0")
else:
    poll(zs_load(vZSg, t1), [v(ZG), v(ZG+1)], site='z')
    A(f"v_mov_b32 {S_}, {v(ZG)}"); A(f"v_mov_b32 {Q_}, {v(ZG+1)}")
    stats_tail1(); stats_tail2()
A(f"ds_write_b64 {v(E+1)}, {v(TM,2)} offset:{L_STAT}")
A("L_m2b:")
stamp()
A("s_waitcnt lgkmcnt(0)")
A("s_barrier")
H = TM + 12
A(f"ds_read2_b32 {v(H,2)}, {vHPr} offset0:0 offset1:2")
A(f"ds_read2_b32 {v(H+2,2)}, {vHPr} offset0:128 offset1:130")
A(f"ds_read_b32 {v(H+4)}, {vHPr} offset:1024"); A(f"ds_read_b32 {v(H+5)}, {vHPr} offset:1032")
A(f"ds_read_b64 {v(TM,2)}, {v(E+1)} offset:{L_STAT}")
zero(D0)
A("s_waitcnt lgkmcnt(0)")
A(f"v_add_f32 {v(H)}, {v(H)}, {v(H+2)}"); A(f"v_add_f32 {v(H+1)}, {v(H+1)}, {v(H+3)}")
A(f"v_add_f32 {v(H)}, {v(H)}, {v(H+4)}"); A(f"v_add_f32 {v(H+1)}, {v(H+1)}, {v(H+5)}")
A(f"v_fma_f32 {v(H)}, -{S_}, {v(H+1)}, {v(H)}")
A(f"v_mul_f32 {v(H)}, {v(H)}, {Q_}")
rbf(v(H), v(H))
A(f"v_add_f32 {v(H)}, {v(H)}, {vB1}")
rbf(v(H), v(H))
A(f"v_mul_f32 {TT}, {v(H)}, {v(H)}")
A(f"v_fmac_f32 {v(E)}, {f32(c0*0.044715)}, {TT}")
A(f"v_mul_f32 {TT}, {v(E)}, {v(H)}")
A(f"v_exp_f32 {TT}, {TT}")
A(f"v_add_f32 {TT}, 1.0, {TT}")
A(f"v_rcp_f32 {TT}, {TT}")
A(f"v_mul_f32 {TT}, {TT}, {v(H)}")
A(f"v_cvt_pk_bf16_f32 {TT}, {TT}, 0")
A(f"ds_write2_b32 {vPTw}, {TT}, {TT} offset1:5")
for i in range(4): A(f"ds_read_b128 {v(AO+4*i,4)}, {vPTr} offset:{128*i}")
stamp()
tile_out(aW2, aW2t, vMst, False)
A("L_m4:")
stamp()
nst[0] = kr
A("L_next:")
A(f"s_cmp_lg_u32 {sL}, 0")
A("s_cbranch_scc1 L_fin")
if ST:
    A("s_waitcnt lgkmcnt(0)")
    for k in range(14): A(f"v_writelane_b32 {v(SV)}, s{72+2*k}, {1+k}")
    for k in range(14): A(f"s_mov_b64 s[{72+2*k}:{73+2*k}], 0")
A(f"s_mov_b32 {sL}, 1")
if args.dirty:
    A(f"s_cmp_ge_u32 {sJ}, 16"); A("s_cbranch_scc1 L_dd")
    A(f"s_lshl_b32 {t0}, s2, 2"); A(f"s_add_u32 {t0}, {t0}, {sW}"); A(f"s_lshl_b32 {t0}, {t0}, 14"); A(f"s_add_u32 {t0}, {t0}, 0x2000000")
    for i in range(args.dirty):
        A(f"buffer_store_dwordx4 {v(EM,4)}, {vL16}, {srd(rWS)}, {t0} offen"); A(f"s_add_u32 {t0}, {t0}, 1024")
    A("L_dd:")
A(f"s_add_u32 {sXoff}, {sGp}, {Z2_O}")
for r in (vSTst, vSTg, vSTm): A(f"v_add_u32 {r}, {ST1_O-ST_O}, {r}")
if args.qc:
    assert QP_O % 512 == 0
    for r in (vQPst, vQPg):
        A(f"v_bfe_u32 {TT}, {r}, 1, 8"); A(f"v_and_b32 {r}, 0xfffffe00, {r}"); A(f"v_add_u32 {r}, {r}, {TT}")
    A(f"v_add_u32 {vQPg2}, 4096, {vQPg}")
A("s_branch L_layer")
A("L_out:")
A(f"buffer_store_dword {TT}, {vZo}, {srd(rOUT)}, 0 offen")
A(f"s_mov_b32 {t0}, {EP_O}")
A("s_mov_b64 exec, 1")
A(f"buffer_store_dword {FN}, {vL16}, {srd(rWS)}, {t0} offen")
if ST: A(f"s_memrealtime s[{72+2*13}:{73+2*13}]")
A("L_fin:")
if args.wb:
    A(f"s_cmp_lg_u32 {sJ}, 18"); A("s_cbranch_scc1 L_wb")
    A(f"s_cmp_lg_u32 {sW}, 0"); A("s_cbranch_scc1 L_wb")
    A("buffer_wbl2 sc1")
    A("L_wb:")
if args.enc:
    j0, j1 = [int(x) for x in args.encj.split(',')]
    A("s_memrealtime s[66:67]")
    A("s_waitcnt lgkmcnt(0)")
    if args.enc <= 14: A(f"v_readlane_b32 {t0}, {v(SV)}, {args.enc}"); A("s_nop 3")
    else: A(f"s_mov_b32 {t0}, s{72+2*(args.enc-15)}")
    A(f"s_cmp_eq_u32 {t0}, 0"); A("s_cbranch_scc1 L_enc2")
    A(f"s_cmp_lt_u32 {sJ}, {j0}"); A("s_cbranch_scc1 L_enc2")
    A(f"s_cmp_ge_u32 {sJ}, {j1}"); A("s_cbranch_scc1 L_enc2")
    if args.encref == 0: A(f"s_mov_b32 {t1}, s100")
    elif args.encref <= 14: A(f"v_readlane_b32 {t1}, {v(SV)}, {args.encref}"); A("s_nop 3")
    else: A(f"s_mov_b32 {t1}, s{72+2*(args.encref-15)}")
    A(f"s_sub_u32 {t0}, {t0}, {t1}"); A(f"s_min_u32 {t0}, {t0}, 10000"); A(f"s_lshl_b32 {t0}, {t0}, {4 if args.encref else 3}"); A(f"s_add_u32 {t0}, {t0}, s66")
    A("L_enc:")
    A("s_sleep 8")
    A("s_memrealtime s[64:65]"); A("s_waitcnt lgkmcnt(0)")
    A(f"s_sub_u32 {t1}, s64, {t0}"); A(f"s_cmp_lt_i32 {t1}, 0"); A("s_cbranch_scc1 L_enc")
    A("L_enc2:")
if ST:
    A("s_mov_b64 exec, -1")
    A("s_waitcnt lgkmcnt(0)")
    A(f"v_writelane_b32 {v(SV)}, s100, 0")
    for k in range(14): A(f"v_writelane_b32 {v(SV)}, s{72+2*k}, {15+k}")
    A(f"s_lshl_b32 {t0}, s2, 2"); A(f"s_add_u32 {t0}, {t0}, {sW}"); A(f"s_lshl_b32 {t0}, {t0}, 8"); A(f"s_add_u32 {t0}, {t0}, {STAMP_O}")
    A(f"v_mov_b32 {v(SV+1)}, 0")
    A(f"v_lshlrev_b32 {v(SV+2)}, 3, v0")
    A("s_mov_b32 exec_hi, 0")
    A(f"buffer_store_dwordx2 {v(SV,2)}, {v(SV+2)}, {srd(rWS)}, {t0} offen")
A("L_end:")
A("s_endpgm")
if args.near:
    A("L_probe:")
    A(f"s_cmp_lt_u32 {sJ}, 20"); A("s_cbranch_scc1 L_next")
    A(f"s_cmp_lg_u32 {sL}, 0"); A("s_cbranch_scc1 L_next")
    A(f"s_sub_u32 {t0}, {sJ}, 20"); A(f"s_lshl_b32 {t0}, {t0}, 18"); A(f"s_lshl_b32 {t1}, {sX}, 10"); A(f"s_add_u32 {t0}, {t0}, {t1}"); A(f"s_add_u32 {t0}, {t0}, {XP_O + 3*65536}")
    A(f"s_add_u32 s4, s{rWS}, {t0}"); A(f"s_addc_u32 s5, s{rWS+1}, 0")
    A(f"s_mov_b32 {t2}, -1"); A(f"s_mov_b32 {t3}, -1"); A(f"s_mov_b32 {t4}, 3")
    A("L_pr1:")
    A("s_memtime s[6:7]"); A("s_waitcnt lgkmcnt(0)")
    A(f"s_load_dword {t5}, s[4:5], 0 glc"); A("s_waitcnt lgkmcnt(0)")
    A("s_memtime s[8:9]"); A("s_waitcnt lgkmcnt(0)")
    A(f"s_load_dword {t5}, s[4:5], 0x2000 glc"); A("s_waitcnt lgkmcnt(0)")
    A("s_memtime s[10:11]"); A("s_waitcnt lgkmcnt(0)")
    A(f"s_sub_u32 {t0}, s8, s6"); A(f"s_sub_u32 {t1}, s10, s8")
    A(f"s_min_u32 {t2}, {t2}, {t0}"); A(f"s_min_u32 {t3}, {t3}, {t1}")
    A(f"s_sub_u32 {t4}, {t4}, 1"); A(f"s_cmp_lg_u32 {t4}, 0"); A("s_cbranch_scc1 L_pr1")
    A(f"s_cmp_lt_u32 {t3}, {t2}"); A(f"s_cselect_b32 {t0}, 0x2000, 0")
    A(f"v_mov_b32 {TT}, 0"); A(f"v_mov_b32 {LS}, {t0}")
    A(f"ds_write_b32 {TT}, {LS} offset:{L_NEAR}")
    A("s_branch L_next")
A("L_af2:")
A(f"s_cmp_eq_u32 {sMode}, {FB_O}")
A("s_cbranch_scc1 L_g2")
A(f"s_add_u32 {sMode}, {sMode}, 1")
A(f"s_lshl_b32 {t2}, {sX}, 10"); A(f"s_add_u32 {t2}, {t2}, {FL_O}")
A(f"s_lshl_b32 {t4}, {sL}, 2"); A(f"s_add_u32 {t1}, {t4}, {t2}")
A(f"s_cmp_lt_u32 {sMode}, {1 if args.forcefb else 40}")
A("s_cbranch_scc1 L_af5")
A("s_mov_b64 exec, 1")
A(f"buffer_store_dword {FN}, {vL16}, {srd(rWS)}, {t1} offen sc1")
A("s_mov_b32 exec_lo, -1")
A(f"buffer_load_dwordx4 {v(FG,4)}, {vL16}, {srd(rWS)}, {t2} offen sc1")
A("s_mov_b32 exec_hi, -1")
A("s_waitcnt vmcnt(0)")
flags_diff()
A(f"v_and_b32 {TT}, 0x0fffffff, {CK}")
A(f"v_cmp_ne_u32 vcc, 0, {TT}")
A("s_cmp_lg_u32 vcc_lo, 0")
A("s_cbranch_scc1 L_af5")
A(f"v_cmp_ne_u32 vcc, 0, {CK}")
A("s_cmp_lg_u32 vcc_lo, 0")
if args.forcefb: A("s_cmp_eq_u32 0, 0")
A("s_cbranch_scc1 L_spread")
A("L_af5:")
A(f"s_sub_u32 {sTO}, {sTO}, 1")
A("s_cbranch_scc0 L_g4")
A(f"s_mov_b32 {sTO}, 0")
A(f"s_mov_b32 {sMode}, 0")
A("s_branch L_g2")
A("L_spread:")
A(f"s_mov_b32 {sMode}, {FB_O}")
A(f"s_add_u32 {sGp}, {sGf}, {FB_O}")
empty_share(sGp, ' sc1')
A("s_mov_b32 exec_hi, 0")
A(qp_store.format(so=sGp, fl=' sc1'))
A("s_waitcnt vmcnt(0)")
A("s_mov_b64 exec, 1")
A(f"buffer_store_dword {FN}, {vL16}, {srd(rWS)}, {t1} offen offset:512 sc1")
A("s_mov_b32 exec_lo, -1")
A("L_sp1:")
A("s_mov_b32 exec_hi, 0")
A(f"buffer_load_dwordx4 {v(FG,4)}, {vL16}, {srd(rWS)}, {t2} offen offset:512 sc1")
A("s_mov_b32 exec_hi, -1")
A("s_waitcnt vmcnt(0)")
flags_diff()
A(f"v_and_b32 {CK}, 0x0fffffff, {CK}")
A(f"v_cmp_ne_u32 vcc, 0, {CK}")
A("s_cmp_eq_u32 vcc_lo, 0")
A("s_cbranch_scc1 L_g4")
A("s_sleep 4")
A(timeout("L_sp1", "L_g4"))
for t in tail: A(t)

A.raw('.section .rodata,"a"')
A.raw(".p2align 6")
A.raw(f".amdhsa_kernel {NAME}_kernel")
A.raw(f"  .amdhsa_next_free_vgpr {ACC+NACC}")
A.raw("  .amdhsa_next_free_sgpr 102")
A.raw(f"  .amdhsa_accum_offset {ACC}")
A.raw("  .amdhsa_group_segment_fixed_size 0")
A.raw("  .amdhsa_kernarg_size 104")
A.raw("  .amdhsa_user_sgpr_count 2")
A.raw("  .amdhsa_user_sgpr_kernarg_segment_ptr 1")
A.raw("  .amdhsa_system_sgpr_workgroup_id_x 1")
A.raw(".end_amdhsa_kernel")
txt = A.text()
if args.cyc: txt = txt.replace('s_memrealtime', 's_memtime')
sys.stdout.write(txt)
```

```python
import sys, argparse, struct
sys.path.insert(0, 'dev')
from asmlib import Asm
NAME = "interleave_layers__sliding_block_cached__dense_activation_gelu__decode"
ap = argparse.ArgumentParser()
ap.add_argument('--stamps', action='store_true')
ap.add_argument('--pro', action='store_true')
ap.add_argument('--cyc', action='store_true')
ap.add_argument('--xt', type=int, default=0)
ap.add_argument('--xd', type=int, default=11)
ap.add_argument('--enc', type=int, default=0)
ap.add_argument('--encref', type=int, default=0)
ap.add_argument('--encj', default='0,32')
ap.add_argument('--only', default='')
ap.add_argument('--pQ', type=int, default=4)
ap.add_argument('--xf', type=int, default=0)
ap.add_argument('--kw', type=int, default=0)
ap.add_argument('--code', type=int, default=0)
ap.add_argument('--early', default='0')
ap.add_argument('--mid', default='')
ap.add_argument('--w1dma', type=int, default=0)
ap.add_argument('--near', type=int, default=1)
ap.add_argument('--pd', default='s22,y22,o22')
ap.add_argument('--wb', type=int, default=0)
ap.add_argument('--dirty', type=int, default=0)
ap.add_argument('--pre', type=int, default=1)
ap.add_argument('--qd', type=int, default=0)
ap.add_argument('--zs', type=int, default=0)
ap.add_argument('--sd', type=int, default=0)
ap.add_argument('--yd', type=int, default=0)
ap.add_argument('--zd', type=int, default=0)
ap.add_argument('--qc', type=int, default=1)
ap.add_argument('--ms', default='x')
ap.add_argument('--exp', default='')
ap.add_argument('--tlb', type=int, default=0)
ap.add_argument('--hw', type=int, default=2)
ap.add_argument('--prew', type=int, default=0)
ap.add_argument('--pS', type=int, default=0)
ap.add_argument('--pC', type=int, default=9)
ap.add_argument('--lnf', type=int, default=0)
ap.add_argument('--vw', type=int, default=1)
ap.add_argument('--di', type=int, default=1)
ap.add_argument('--dz', type=int, default=1)
ap.add_argument('--dxx', type=int, default=1)
ap.add_argument('--nt', default='k,v,2')
ap.add_argument('--forcefb', action='store_true')
args = ap.parse_args()
def ntf(c): return ' nt' if c in args.nt.split(',') else ''
NT = ntf('s'); NTK = ntf('k'); NTV = ntf('v'); NTQ = ntf('q'); NTO = ntf('o'); NTM = ntf('m'); NT2 = ntf('2'); NTT = ntf('t')
ST = args.stamps
PD = {x[0]: (int(x[1]), int(x[2:])) for x in args.pd.split(',') if x}

def f32(x): return '0x%08x' % struct.unpack('<I', struct.pack('<f', x))[0]

CLR = 944
OP_O = 0
Y_O = OP_O + 65536
ST_O = Y_O + 41472
ST1_O = ST_O + 2048
Z1_O = ST1_O + 2048
Z2_O = Z1_O + 2304
Z3_O = Z2_O + 2304
AN_O = Z3_O + 2304
ZS_O = AN_O + 128
assert ZS_O + 1536 <= 128 * CLR and (128 * CLR) % 128 == 0
QP_O = 128 * CLR
FF_O = QP_O + 65536
GB = FF_O + 1024
FB_O = 8 * GB
XP_O = 6 << 20
assert XP_O >= 16 * GB
XPS = 16384
FL_O = XP_O + 12 * 262144
EP_O = FL_O + 8 * 1024
STAMP_O = 0x8000000
L_NEAR = 8176
L_X = 640
L_QT, L_STAT, L_OT, L_PT, L_HP, L_K, L_WQ, L_SIZE = 0, 512, 1024, 2560, 8192, 16384, 49152, 67584

rK, rV, rWQ, rWO, rW1, rW2, rWS, rX, rOUT, rT1, rT2 = 4, 8, 12, 16, 20, 24, 28, 32, 36, 44, 48
sTask, kv0, kv1, sFlag = 's40', 's41', 's42', 's43'
def srd(n): return f"s[{n}:{n+3}]"
sW, sX, sJ, sGf, sGp, sXoff, sTO, sMode, sL, sWo = [f"s{i}" for i in range(52, 62)]
t0, t1, t2, t3, t4, t5 = [f"s{i}" for i in range(62, 68)]
mLO8 = "s[68:69]"; mROW = "s[70:71]"
MXA = "0x00330033"
sRole = "s3"
(vL4, vL16, vIdxD, vIdxP, vIdxS, vXAq, vXAm, vQPst, vQPg, vL128, vQTw, vQTr, vPTw, vPTr, vSTst, vOPst, vSTg, vOPg, vOTw, vOTr,
 vYst, vMst, vHPw, vSTm, vRg, vSTATr, vXPst, vXPg, vZst, vXres, vB2, vB1, vCq, vZo, vXS1, vXS2, vWrow, vHPr, vOnes) = [f"v{i}" for i in range(1, 40)]
XA, D0, D1, DP, AO, SG, YG, XG, XS, FG, TM, EM, KA, SV, OG, QG = 40, 64, 68, 72, 76, 104, 120, 132, 136, 148, 152, 176, 180, 184, 188, 196
vQPg2, vZSst, vZSg = 'v92', 'v93', 'v94'
ZG = 96; vLXr = 'v98'; KR = 100
ACC = 212
aWQ, aK, aV, aWO, aW1, aW2, aWOt, NACC = 0, 24, 56, 88, 120, 168, 200, 232
aW2t = aW1
def v(n, k=1): return f"v{n}" if k == 1 else f"v[{n}:{n+k-1}]"
def a(n, k=1): return f"a{n}" if k == 1 else f"a[{n}:{n+k-1}]"
CK = v(TM + 23); FN = v(TM + 22); vTag = v(TM + 21); DUM = v(TM + 20)
sEp, sXPo = kv0, kv1

A = Asm()
tail = []
nst = [0]
def pstamp(k):
    if args.pro: A(f"s_memrealtime s[{72+2*k}:{73+2*k}]")
def stamp():
    if ST and not args.pro:
        k = nst[0]; nst[0] += 1
        assert k < 13
        if ONLY is None or k in ONLY: A(f"s_memrealtime s[{72+2*k}:{73+2*k}]")
ONLY = set(int(x) for x in args.only.split(',')) if args.only else None
def lg(n): return 0 if (ST and ONLY is None) else n
def exec_xa(): return [f"s_mov_b32 exec_lo, {MXA}", f"s_mov_b32 exec_hi, {MXA}"]

def check_text(regs):
    regs = list(regs); o = []
    if len(regs) == 1: cur = regs[0]
    else:
        take = regs[:3]; regs = regs[3:]
        o.append(f"v_max3_u32 {CK}, {take[0]}, {take[1]}, {take[2]}" if len(take) == 3 else f"v_max_u32 {CK}, {take[0]}, {take[1]}")
        while regs:
            take = regs[:2]; regs = regs[2:]
            o.append(f"v_max3_u32 {CK}, {CK}, {take[0]}, {take[1]}" if len(take) == 2 else f"v_max_u32 {CK}, {CK}, {take[0]}")
        cur = CK
    o.append(f"v_cmp_eq_u32 vcc, -1, {cur}")
    return o
def nvm(loads): return sum(1 for l in loads if l.startswith('buffer_'))
def timeout(again, ok): return f"s_sub_u32 {sTO}, {sTO}, 1\ns_cbranch_scc0 {again}\ns_mov_b32 {sTO}, 0\ns_waitcnt vmcnt(0) lgkmcnt(0)\ns_branch {ok}"

def poll(loads, regs, primed=False, extra_wait="", chk=None, site=''):
    lp = A.newlabel('L_poll'); to = A.newlabel('L_to'); ok = A.newlabel('L_ok')
    depth, gap = PD.get(site, (1, 0))
    ck = chk or check_text(regs)
    pre = []
    for d in range(depth - 1):
        pre += loads + ([f"s_sleep {gap}"] if gap else [])
    loop = [f"{lp}:"] + loads + [f"s_sub_u32 {sTO}, {sTO}, 1", f"s_cbranch_scc1 {to}", f"s_waitcnt vmcnt({(depth-1)*nvm(loads)}){extra_wait}"] + ck + [f"s_cbranch_vccnz {lp}"]
    tmo = f"{to}:\ns_mov_b32 {sTO}, 0\ns_waitcnt vmcnt(0) lgkmcnt(0)\ns_branch {ok}"
    if primed:
        st = A.newlabel('L_more')
        A(f"s_waitcnt vmcnt(0){extra_wait}")
        for l in ck: A(l)
        A(f"s_cbranch_vccnz {st}")
        A(f"{ok}:")
        tail.append(f"{st}:\n" + "\n".join(pre + loop) + f"\ns_branch {ok}\n" + tmo)
        return
    for l in pre + loop: A(l)
    A(f"{ok}:")
    tail.append(tmo)

def sm(d, av, br, idx): A(f"v_smfmac_f32_16x16x64_bf16 {v(d,4)}, {v(av,4)}, {a(br,8)}, {idx}")
def xa_loads(rr, voff, so, n, fl, short_last=False):
    o = exec_xa()
    for i in range(n):
        if short_last and i == n - 1: o.append("s_mov_b64 exec, 0x33")
        o.append(f"buffer_load_dwordx4 {v(XA+4*i,4)}, {voff}, {srd(rr)}, {so} offen offset:{64*i}{fl}")
    return o + ["s_mov_b64 exec, -1"]
def poll_proj(voff, so, n, wbase, short_last=False, extra=[]):
    loads = extra[:-1] + xa_loads(rWS, voff, so, n, ' sc1', short_last)
    lds = [l for l in loads if l.startswith('buffer_')]
    lp = A.newlabel('L_poll'); rt = A.newlabel('L_retry'); ok = A.newlabel('L_ok'); gen = A.newlabel('L_nan')
    depth, gap = PD.get('p', (1, 0))
    for d in range(depth):
        if d: A(f"s_sleep {gap}")
        for l in loads: A(l)
    A(f"{lp}:")
    A(f"s_waitcnt vmcnt({(depth-1)*n})")
    for i in range(n): sm(D0, XA+4*i, wbase+8*i, vIdxD)
    for l in loads: A(l)
    A(f"v_cmp_u_f32 vcc, {v(D0)}, {v(D0+1)}")
    A(f"s_cbranch_vccnz {rt}")
    A(f"{ok}:")
    z = "\n".join(f"v_mov_b32 {v(D0+i)}, 0" for i in range(4))
    mm = "\n".join(f"v_smfmac_f32_16x16x64_bf16 {v(D0,4)}, {v(XA+4*i,4)}, {a(wbase+8*i,8)}, {vIdxD}" for i in range(n))
    if args.zs: z += f"\ns_sleep {args.zs}"
    tail.append(f"{rt}:\n{z}\ns_sub_u32 {sTO}, {sTO}, 1\ns_cbranch_scc1 {gen}\ns_and_b32 {t5}, {sTO}, 15\ns_cbranch_scc1 {lp}\n" +
                "\n".join(check_text([v(XA+i) for i in range(4*n)])) + f"\ns_cbranch_vccnz {lp}\n{gen}:\ns_max_i32 {sTO}, {sTO}, 0\n{mm}\ns_nop 7\ns_branch {ok}")

def pub(*fmts):
    for f in fmts: A(f.format(so=sGf, fl=''))
    sl = A.newlabel('L_slow'); bk = A.newlabel('L_back')
    A(f"s_cmp_lg_u32 {sMode}, 0")
    A(f"s_cbranch_scc1 {sl}")
    A(f"{bk}:")
    tail.append(f"{sl}:\n" + "\n".join(f.format(so=sGp, fl=' sc1') for f in fmts) + f"\ns_nop 1\ns_branch {bk}")

def rbf(dst, src):
    A(f"v_cvt_pk_bf16_f32 {dst}, {src}, {src}")
    A(f"v_and_b32 {dst}, 0xffff0000, {dst}")
def treduce(r):
    A(f"v_permlane32_swap_b32 {v(r)}, {v(r+2)}")
    A(f"v_permlane32_swap_b32 {v(r+1)}, {v(r+3)}")
    A(f"v_add_f32 {v(r)}, {v(r)}, {v(r+2)}")
    A(f"v_add_f32 {v(r+1)}, {v(r+1)}, {v(r+3)}")
    A(f"v_permlane16_swap_b32 {v(r)}, {v(r+1)}")
    A(f"v_add_f32 {v(r)}, {v(r)}, {v(r+1)}")
    A(f"v_add_f32_dpp {v(r)}, {v(r)}, {v(r)} row_ror:8 row_mask:0xf bank_mask:0xf")
S_, Q_ = v(TM), v(TM+1)
def stats_tail1():
    S, Q = S_, Q_
    A(f"v_permlane16_swap_b32 {S}, {Q}")
    A(f"v_add_f32 {S}, {S}, {Q}")
    for k in (8, 4, 2, 1):
        A(f"v_add_f32_dpp {S}, {S}, {S} row_ror:{k} row_mask:0xf bank_mask:0xf")
    A(f"v_mul_f32 {Q}, {f32(1/576)}, {S}")
    A(f"v_mul_f32 {S}, {f32(1/576)}, {S}")
def stats_tail2():
    S, Q = S_, Q_
    A(f"v_permlane16_swap_b32 {S}, {Q}")
    A(f"v_fma_f32 {Q}, -{S}, {S}, {Q}")
    A(f"v_max_f32 {Q}, 0, {Q}")
    A(f"v_cvt_pk_bf16_f32 {Q}, {S}, {Q}")
    A(f"v_lshlrev_b32 {S}, 16, {Q}")
    A(f"v_and_b32 {Q}, 0xffff0000, {Q}")
    A(f"v_add_f32 {Q}, {f32(1e-5)}, {Q}")
    rbf(Q, Q)
    A(f"v_sqrt_f32 {Q}, {Q}")
    rbf(Q, Q)
    A(f"v_rcp_f32 {Q}, {Q}")
def stats_x():
    A(f"v_mov_b32 {S_}, 0"); A(f"v_mov_b32 {Q_}, 0")
    for i in range(9):
        A(f"v_dot2c_f32_bf16 {S_}, {v(XS+i)}, {vOnes}")
        A(f"v_dot2c_f32_bf16 {Q_}, {v(XS+i)}, {v(XS+i)}")
    stats_tail1(); stats_tail2()
def zs_load(voff, so):
    return ["s_mov_b32 exec_lo, 0x3ffff", "s_mov_b32 exec_hi, 0x3ffff", f"buffer_load_dwordx2 {v(ZG,2)}, {voff}, {srd(rWS)}, {so} offen sc1", "s_mov_b64 exec, -1"]
def zero(r, n=4):
    for i in range(n): A(f"v_mov_b32 {v(r+i)}, 0")
def xs_loads(rr, so, fl):
    return [f"buffer_load_dwordx4 {v(XS,4)}, {vXS1}, {srd(rr)}, {so} offen{fl}",
            f"buffer_load_dwordx4 {v(XS+4,4)}, {vXS1}, {srd(rr)}, {so} offen offset:512{fl}",
            f"buffer_load_dword {v(XS+8)}, {vXS2}, {srd(rr)}, {so} offen offset:1024{fl}"]

A.raw(f"; @launch grid=(256,1,1) block=(256,1,1) lds={L_SIZE}")
A.raw('.amdgcn_target "amdgcn-amd-amdhsa--gfx950"')
A.raw(".text")
A.raw(f".globl {NAME}_kernel")
A.raw(".p2align 8")
A.raw(f".type {NAME}_kernel,@function")
A.raw(f"{NAME}_kernel:")
if ST:
    A("s_memrealtime s[100:101]")
    if args.pro:
        for k in range(1, 14): A(f"s_mov_b32 s{72+2*k}, 0")
for r, off in ((rWQ, 24), (rK, 8), (rWS, 96), (rX, 0), (rV, 16), (rWO, 32)):
    A(f"s_load_dwordx2 s[{r}:{r+1}], s[0:1], {off}")
A("s_cmp_ge_u32 s2, 256")
A("s_cbranch_scc1 L_end")
G, C, B2 = v(TM+3), v(TM+4), v(TM+5)
def size(r, n): A(f"s_mov_b32 s{r+2}, {n}"); A(f"s_mov_b32 s{r+3}, 0x20000")
A(f"v_readfirstlane_b32 {sW}, v0")
A(f"v_lshrrev_b32 {v(TM+6)}, 4, v0")
A(f"v_and_b32 {C}, 15, v0")
A(f"v_lshlrev_b32 {v(TM+6)}, 13, {v(TM+6)}")
A(f"v_lshl_add_u32 {v(TM+6)}, {C}, 4, {v(TM+6)}")
size(rWQ, 4718592)
A(f"s_and_b32 {sX}, s2, 7")
A(f"s_bfe_u32 {t2}, s2, 0x30003")
A(f"s_lshr_b32 {t3}, s2, 6"); A(f"s_lshl2_add_u32 {t0}, {sX}, {t3}"); A(f"s_lshl_b32 {t3}, {t0}, 8")
A(f"s_mul_i32 {sXoff}, {t2}, {72*8192}"); A(f"s_add_u32 {sXoff}, {sXoff}, {t3}")
A(f"s_lshl4_add_u32 m0, {sW}, {L_WQ}")
def setup_k():
    A(f"v_and_b32 v0, 63, v0")
    A(f"v_lshrrev_b32 {G}, 4, v0")
    A(f"s_and_b32 {t1}, {t0}, 1"); A(f"s_lshr_b32 {t0}, {t0}, 1")
    A(f"s_lshl4_add_u32 {kv0}, {t1}, {t0}"); A(f"s_lshl_b32 {kv0}, {kv0}, 5"); A(f"s_add_u32 {kv0}, {kv0}, {t2}"); A(f"s_lshl_b32 {kv0}, {kv0}, 8")
    A(f"s_add_u32 {kv0}, {kv0}, {sW}"); A(f"s_lshl_b32 {kv0}, {kv0}, 7"); A(f"s_add_u32 {kv0}, {kv0}, {3072*256}"); A(f"s_add_u32 {kv1}, {kv0}, 4096")
    size(rK, 33554432)
    A(f"v_xor_b32 {v(TM+7)}, {C}, {G}")
    A(f"v_lshlrev_b32 {v(TM+7)}, 4, {v(TM+7)}")
    A(f"v_lshl_add_u32 {v(KA)}, {G}, 8, {v(TM+7)}")
    for i in range(1, 4): A(f"v_xor_b32 {v(KA+i)}, {64*i}, {v(KA)}")
    A(f"s_lshr_b32 {sW}, {sW}, 6")
def setup_ws():
    size(rWS, 268435456); size(rX, 2304)
    A(f"s_lshr_b32 {sJ}, s2, 3")
    A(f"v_lshlrev_b32 {vL16}, 4, v0")
    for i in range(4): A(f"v_mov_b32 {v(EM+i)}, -1")
    A(f"s_mul_i32 {sGf}, {sX}, {GB}")
    A(f"s_lshl2_add_u32 {sL}, {sJ}, {sW}")
def setup_rest():
    size(rWO, 4718592)
    A("s_mov_b32 s68, 0x00ff00ff"); A("s_mov_b32 s69, 0x00ff00ff")
    A(f"v_lshlrev_b32 {vL128}, 7, v0")
    A(f"v_bfe_u32 {B2}, v0, 2, 1")
    A(f"v_mul_u32_u24 {vXAm}, 1152, {B2}")
    A(f"v_lshl_add_u32 {vXAm}, {G}, 4, {vXAm}")
    A(f"s_mul_i32 {t4}, {t2}, 144")
    A(f"v_add_u32 {vXAq}, {t4}, {vXAm}")
    for i in range(12): A(f"v_mov_b32 {v(XA+i)}, 0x3f803f80")
    A(f"s_lshl_b32 {t4}, {sL}, 9"); A(f"s_add_u32 {t4}, {t4}, {QP_O}")
    A(f"v_add_u32 {vQPst}, {t4}, {vL16}")
def constants():
    A(f"v_mul_u32_u24 {vWrow}, 1152, {G}")
    A(f"v_lshl_add_u32 {vWrow}, {C}, 4, {vWrow}")
    A(f"s_cmp_lt_u32 {sJ}, 18"); A(f"s_cselect_b32 {sRole}, 1, 0")
    A(f"s_cmp_ge_u32 {sJ}, 20"); A(f"s_cselect_b32 {t4}, 2, 0"); A(f"s_cmp_lt_u32 {sW}, 3"); A(f"s_cselect_b32 {t4}, {t4}, 0"); A(f"s_or_b32 {sRole}, {sRole}, {t4}")
    A(f"s_sub_u32 {sTask}, {sJ}, 20"); A(f"s_mul_i32 {sTask}, {sTask}, 3"); A(f"s_add_u32 {sTask}, {sTask}, {sW}"); A(f"s_min_u32 {sTask}, {sTask}, 35")
    A(f"s_lshl_b32 {t3}, {sX}, 4"); A(f"s_and_b32 {t4}, {sJ}, 15"); A(f"s_add_u32 {sWo}, {t3}, {t4}"); A(f"s_mul_i32 {sWo}, {sWo}, {32*1152}")
    A(f"s_lshl_b32 {t4}, {sW}, 8"); A(f"s_add_u32 {sWo}, {sWo}, {t4}")
    for r, n in ((rW1, 5308416), (rW2, 5308416), (rOUT, 2304), (rT1, 9216), (rT2, 1152)):
        A(f"s_mov_b32 s{r+2}, {n}"); A(f"s_mov_b32 s{r+3}, 0x20000")
    A("s_mov_b32 s70, 0xffff0000"); A("s_mov_b32 s71, 0xffff0000")
    A(f"v_lshlrev_b32 {vL4}, 2, v0")
    for i in range(12, 24): A(f"v_mov_b32 {v(XA+i)}, 0x3f803f80")
    A(f"s_lshl_b32 {t4}, {sW}, 13"); A(f"s_add_u32 {t4}, {t4}, {L_K}")
    A(f"v_lshl_add_u32 {v(KR)}, {C}, 8, {v(TM+7)}"); A(f"v_add_u32 {v(KR)}, {t4}, {v(KR)}")
    for i in range(1, 4): A(f"v_xor_b32 {v(KR+i)}, {64*i}, {v(KR)}")
    T_ = [v(TM+8+i) for i in range(10)]
    A(f"v_and_b32 {T_[0]}, 1, v0")
    A(f"v_mul_u32_u24 {vIdxP}, 0xaaaa, {T_[0]}"); A(f"v_add_u32 {vIdxP}, 0x4444, {vIdxP}")
    A(f"v_and_b32 {T_[1]}, 3, v0")
    A(f"v_mul_u32_u24 {vIdxS}, 0x5555, {T_[1]}")
    A(f"v_bfe_u32 {T_[2]}, v0, 4, 1")
    A(f"v_bfe_u32 {T_[3]}, v0, 2, 2")
    A(f"v_bfe_u32 {T_[4]}, v0, 3, 1")
    A(f"v_lshrrev_b32 {T_[5]}, 5, v0")
    A(f"v_and_b32 {T_[8]}, 7, v0")
    A(f"v_and_b32 {T_[9]}, 31, v0")
    A(f"s_lshr_b32 {t3}, {sJ}, 4")
    A(f"s_lshr_b32 {t5}, {sJ}, 3")
    A(f"s_lshl_b32 {t3}, {t3}, 1"); A(f"s_lshr_b32 {t4}, {sW}, 1"); A(f"s_add_u32 {t3}, {t3}, {t4}"); A(f"s_lshl_b32 {t3}, {t3}, 14")
    A(f"s_and_b32 {t4}, {sW}, 1"); A(f"s_lshl_b32 {t4}, {t4}, 10"); A(f"s_add_u32 {t3}, {t3}, {t4}")
    A(f"s_lshl_b32 {t4}, {t1}, 8"); A(f"s_add_u32 {t3}, {t3}, {t4}"); A(f"s_add_u32 {t3}, {t3}, {QP_O}")
    A(f"v_lshl_add_u32 {vQPg}, {T_[5]}, 4, {T_[2]}"); A(f"v_lshlrev_b32 {vQPg}, 9, {vQPg}"); A(f"v_lshl_add_u32 {vQPg}, {C}, 4, {vQPg}"); A(f"v_add_u32 {vQPg}, {t3}, {vQPg}")
    A(f"v_add_u32 {vQPg2}, 4096, {vQPg}")
    A(f"s_and_b32 {t3}, {sW}, 1"); A(f"s_lshl_b32 {t3}, {t3}, 8"); A(f"s_lshr_b32 {t4}, {sW}, 1"); A(f"s_lshl_b32 {t4}, {t4}, 7"); A(f"s_add_u32 {t3}, {t3}, {t4}")
    A(f"v_bfe_u32 {T_[6]}, v0, 3, 2"); A(f"v_bfe_u32 {T_[7]}, v0, 1, 2")
    A(f"v_lshlrev_b32 {vQTw}, 5, {T_[6]}"); A(f"v_lshl_add_u32 {vQTw}, {T_[0]}, 4, {vQTw}"); A(f"v_lshl_add_u32 {vQTw}, {T_[7]}, 2, {vQTw}")
    A(f"v_lshl_add_u32 {vQTw}, {T_[5]}, 1, {vQTw}"); A(f"v_add_u32 {vQTw}, {t3}, {vQTw}")
    A(f"v_lshlrev_b32 {vQTr}, 5, {G}"); A(f"v_lshl_add_u32 {vQTr}, {T_[4]}, 7, {vQTr}"); A(f"v_lshl_add_u32 {vQTr}, {T_[0]}, 4, {vQTr}")
    A(f"v_mul_u32_u24 {vOTr}, 640, {T_[4]}"); A(f"v_lshl_add_u32 {vOTr}, {G}, 5, {vOTr}"); A(f"v_lshl_add_u32 {vOTr}, {B2}, 4, {vOTr}")
    A(f"s_mul_i32 {t3}, {sW}, 1280"); A(f"s_add_u32 {t3}, {t3}, {L_PT}")
    A(f"v_add_u32 {vPTr}, {t3}, {vOTr}"); A(f"v_add_u32 {vOTr}, {L_OT}, {vOTr}")
    A(f"v_bfe_u32 {T_[6]}, v0, 1, 4")
    A(f"v_mul_u32_u24 {vPTw}, 640, {T_[5]}"); A(f"v_lshl_add_u32 {vPTw}, {T_[6]}, 5, {vPTw}"); A(f"v_lshl_add_u32 {vPTw}, {T_[0]}, 3, {vPTw}"); A(f"v_add_u32 {vPTw}, {t3}, {vPTw}")
    A(f"v_lshrrev_b32 {vHPr}, 1, v0"); A(f"v_lshlrev_b32 {vHPr}, 4, {vHPr}"); A(f"v_lshl_add_u32 {vHPr}, {T_[0]}, 2, {vHPr}"); A(f"v_add_u32 {vHPr}, {L_HP}, {vHPr}")
    A(f"s_lshl_b32 {t3}, {sW}, 9"); A(f"s_add_u32 {t3}, {t3}, {L_HP}"); A(f"v_add_u32 {vHPw}, {t3}, {vL16}")
    A(f"s_lshl_b32 {t3}, {t5}, 9"); A(f"s_add_u32 {t3}, {t3}, {ST_O}")
    A(f"s_lshl_b32 {t4}, {t2}, 2"); A(f"s_add_u32 {t4}, {t4}, {sW}"); A(f"s_lshl_b32 {t4}, {t4}, 2"); A(f"s_add_u32 {t4}, {t4}, {t3}")
    A(f"v_lshlrev_b32 {vSTst}, 8, {T_[5]}"); A(f"v_lshl_add_u32 {vSTst}, {T_[0]}, 7, {vSTst}"); A(f"v_add_u32 {vSTst}, {t4}, {vSTst}")
    A(f"s_lshl_b32 {t3}, {t1}, 1"); A(f"s_lshr_b32 {t4}, {sW}, 1"); A(f"s_add_u32 {t3}, {t3}, {t4}"); A(f"s_lshl_b32 {t3}, {t3}, 9"); A(f"s_add_u32 {t3}, {t3}, {ST_O}")
    A(f"s_lshr_b32 {t4}, {t2}, 2"); A(f"s_lshl_b32 {t4}, {t4}, 8"); A(f"s_add_u32 {t3}, {t3}, {t4}")
    A(f"v_lshrrev_b32 {T_[7]}, 3, v0")
    A(f"v_lshl_add_u32 {vSTg}, {T_[7]}, 4, {t3}")
    A(f"s_and_b32 {t4}, {sW}, 1"); A(f"s_lshl_b32 {t4}, {t4}, 3"); A(f"v_add_u32 {vSTm}, {t4}, {vSTg}")
    A(f"s_lshr_b32 {t3}, {sJ}, 4"); A(f"s_lshl_b32 {t3}, {t3}, 15"); A(f"s_lshl_b32 {t4}, {t1}, 11"); A(f"s_add_u32 {t3}, {t3}, {t4}")
    A(f"s_lshl_b32 {t4}, {sW}, 9"); A(f"s_add_u32 {t3}, {t3}, {t4}"); A(f"s_lshl_b32 {t4}, {t2}, 6"); A(f"s_add_u32 {t3}, {t3}, {t4}")
    A(f"v_lshlrev_b32 {T_[6]}, 4, {T_[1]}"); A(f"v_lshl_add_u32 {T_[6]}, {T_[2]}, 3, {T_[6]}")
    A(f"v_lshl_add_u32 {vOPst}, {T_[5]}, 2, {T_[3]}"); A(f"v_lshl_add_u32 {vOPst}, {vOPst}, 12, {T_[6]}"); A(f"v_add_u32 {vOPst}, {t3}, {vOPst}")
    A(f"s_and_b32 {t3}, {sJ}, 15"); A(f"s_lshl_b32 {t3}, {t3}, 12"); A(f"s_lshl_b32 {t4}, {sW}, 10"); A(f"s_add_u32 {t3}, {t3}, {t4}"); A(f"v_lshl_add_u32 {vOPg}, v0, 3, {t3}")
    A(f"s_lshr_b32 {t3}, {sW}, 1"); A(f"s_mul_i32 {t3}, {t3}, 640"); A(f"s_and_b32 {t4}, {sW}, 1"); A(f"s_lshl_b32 {t4}, {t4}, 1"); A(f"s_add_u32 {t3}, {t3}, {t4}"); A(f"s_add_u32 {t3}, {t3}, {L_OT}")
    A(f"v_mul_u32_u24 {vOTw}, 20, {T_[4]}"); A(f"v_lshl_add_u32 {vOTw}, {T_[8]}, 6, {vOTw}"); A(f"v_lshl_add_u32 {vOTw}, {T_[5]}, 5, {vOTw}")
    A(f"v_lshl_add_u32 {vOTw}, {T_[2]}, 3, {vOTw}"); A(f"v_add_u32 {vOTw}, {t3}, {vOTw}")
    A(f"s_mul_i32 {t3}, {sW}, {4*1152}"); A(f"s_lshl_b32 {t4}, {sJ}, 6"); A(f"s_add_u32 {t3}, {t3}, {t4}"); A(f"s_add_u32 {t3}, {t3}, {Y_O}")
    A(f"v_mul_u32_u24 {vMst}, 18, {T_[5]}"); A(f"v_add_u32 {vMst}, {vMst}, {T_[3]}"); A(f"v_mul_u32_u24 {vMst}, 1152, {vMst}")
    A(f"v_add3_u32 {vMst}, {vMst}, {T_[6]}, {t3}")
    A(f"v_subrev_u32 {vYst}, 1024, {vMst}")
    A(f"v_lshlrev_b32 {vZSg}, 3, v0")
    A(f"s_lshl_b32 {t3}, {t1}, 8"); A(f"s_add_u32 {t3}, {t3}, {ZS_O+512}"); A(f"v_lshl_add_u32 {vSTATr}, {T_[9]}, 3, {t3}")
    zero(ZG, 2)
    A(f"v_mul_u32_u24 {vXS1}, 1152, {T_[5]}"); A(f"v_lshl_add_u32 {vXS2}, {T_[9]}, 2, {vXS1}"); A(f"v_lshl_add_u32 {vXS1}, {T_[9]}, 4, {vXS1}")
    A(f"s_mul_i32 {t4}, {sW}, 384"); A(f"v_add_u32 {vXAm}, {t4}, {vXAm}")
    A(f"s_mul_i32 {t4}, {sX}, 18"); A(f"s_add_u32 {t4}, {t4}, {sJ}"); A(f"s_lshl_b32 {t5}, {t4}, 6")
    A(f"v_lshl_add_u32 {vB1}, {T_[9]}, 1, {t5}")
    A(f"s_mul_i32 {t4}, {sTask}, 1152"); A(f"s_add_u32 {t4}, {t4}, {Y_O}"); A(f"v_lshl_add_u32 {vRg}, v0, 3, {t4}")
    A(f"s_sub_u32 {t4}, {sL}, 80"); A(f"s_and_b32 {t4}, {t4}, 63"); A(f"s_lshl_b32 {t4}, {t4}, 16")
    A(f"s_lshl_b32 {t5}, {sX}, 10"); A(f"s_add_u32 {t5}, {t5}, {t4}"); A(f"v_lshl_add_u32 {vXPg}, v0, 3, {t5}")
    A(f"s_lshl_b32 {t5}, {sX}, 7"); A(f"s_add_u32 {t4}, {t4}, {t5}"); A(f"v_lshl_add_u32 {vXPst}, {T_[8]}, 4, {t4}")
    A(f"v_lshrrev_b32 {T_[7]}, 3, v0"); A(f"v_lshl_add_u32 {vXPst}, {T_[7]}, 10, {vXPst}")
    A(f"v_lshl_add_u32 {T_[7]}, {C}, 1, {T_[5]}")
    A(f"s_lshl_b32 {t4}, {sTask}, 6"); A(f"v_lshl_add_u32 {vZo}, {T_[7]}, 1, {t4}")
    A(f"v_add_u32 {vZst}, {Z1_O}, {vZo}")
    A(f"s_and_b32 {t5}, {sTask}, 7"); A(f"s_cmp_eq_u32 {t5}, {sX}"); A(f"s_cselect_b32 {t5}, 4, 0"); A(f"s_or_b32 {sRole}, {sRole}, {t5}")
    A(f"s_cmp_ge_u32 {sTask}, 18"); A(f"s_cselect_b32 {t5}, 1152, 0")
    A(f"v_subrev_u32 {vB2}, {t5}, {vZo}")
    A(f"s_cselect_b32 {t5}, {256-18*8}, 0"); A(f"s_lshl_b32 {t4}, {sTask}, 3"); A(f"s_add_u32 {t4}, {t4}, {t5}"); A(f"s_add_u32 {t4}, {t4}, {ZS_O}")
    A(f"v_lshl_add_u32 {vZSst}, {T_[2]}, 2, {t4}")

def constants1():
    A(f"v_and_b32 {v(TM+8)}, 1, v0")
    A(f"v_mul_u32_u24 {vIdxD}, 0x5555, {v(TM+8)}"); A(f"v_add_u32 {vIdxD}, 0x8888, {vIdxD}")
    A(f"v_mov_b32 {vOnes}, 0x3f803f80")
    A(f"s_lshl_b32 {t3}, {sW}, 6"); A(f"s_add_u32 {t3}, {t3}, {L_WQ}")
    A(f"v_lshlrev_b32 {vCq}, 10, {G}"); A(f"v_lshl_add_u32 {vCq}, {C}, 2, {vCq}"); A(f"v_add_u32 {vCq}, {t3}, {vCq}")
    for i in range(16, 24): A(f"v_accvgpr_write_b32 {a(aWQ+i)}, 0")
    zero(D0, 8)
    A(f"v_mul_u32_u24 {vLXr}, 144, {B2}"); A(f"v_lshl_add_u32 {vLXr}, {G}, 4, {vLXr}")
    A(f"s_lshl_b32 {t3}, {sW}, 11"); A(f"v_add_u32 {v(TM+8)}, {t3}, {vL16}")
    A(f"ds_write_b128 {v(TM+8)}, {v(D1,4)} offset:1024"); A(f"ds_write_b128 {v(TM+8)}, {v(D1,4)} offset:2048")
    A(f"s_mov_b32 {sTO}, 0x40000"); A(f"s_mov_b32 {sMode}, 0"); A(f"s_mov_b32 {sGp}, {sGf}")
def ln0(n_after):
    A(f"s_cmp_lg_u32 {sW}, 3")
    A("s_cbranch_scc1 L_c1")
    A(f"s_waitcnt vmcnt({n_after})")
    stats_x()
    for i in range(2):
        lo, hi = v(TM+8), v(TM+9)
        A(f"v_lshlrev_b32 {lo}, 16, {v(XG+i)}"); A(f"v_and_b32 {hi}, 0xffff0000, {v(XG+i)}")
        A(f"v_sub_f32 {lo}, {lo}, {S_}"); A(f"v_sub_f32 {hi}, {hi}, {S_}")
        A(f"v_cvt_pk_bf16_f32 {v(XG+i)}, {lo}, {hi}")
        A(f"v_lshlrev_b32 {lo}, 16, {v(XG+i)}"); A(f"v_and_b32 {hi}, 0xffff0000, {v(XG+i)}")
        A(f"v_mul_f32 {lo}, {lo}, {Q_}"); A(f"v_mul_f32 {hi}, {hi}, {Q_}")
        A(f"v_cvt_pk_bf16_f32 {v(XG+i)}, {lo}, {hi}")
    A(f"v_lshrrev_b32 {v(TM+8)}, 5, v0"); A(f"v_mul_u32_u24 {v(TM+8)}, 144, {v(TM+8)}"); A(f"v_and_b32 {v(TM+9)}, 31, v0"); A(f"v_lshl_add_u32 {v(TM+8)}, {v(TM+9)}, 3, {v(TM+8)}")
    A("s_mov_b32 exec_lo, 0x3ffff"); A("s_mov_b32 exec_hi, 0x3ffff")
    A(f"ds_write_b64 {v(TM+8)}, {v(XG,2)} offset:{L_X}")
    A("s_mov_b64 exec, -1")
    A("L_c1:")

fl_load = ["s_mov_b32 exec_hi, 0", f"buffer_load_dwordx4 {v(FG,4)}, {vL16}, {srd(rWS)}, {sXoff} offen sc1", "s_mov_b32 exec_hi, -1"]
qp_store = f"buffer_store_dwordx4 {v(D0,4)}, {vQPst}, {srd(rWS)}, {{so}} offen{{fl}}"
def qg(n): return [f"buffer_load_dwordx{n} {v(QG+4*p,n)}, {vQPg if p < 2 else vQPg2}, {srd(rWS)}, {sGp} offen offset:{2048*(p%2)} sc1" for p in range(4)]
qg4, qg2 = qg(4), qg(2)
def empty_share(base, fl):
    A(f"s_mul_i32 {t5}, {sL}, {CLR}"); A(f"s_add_u32 {t5}, {t5}, {base}")
    A(f"s_mov_b32 exec_hi, {(1 << (CLR//16-32)) - 1}")
    A(f"buffer_store_dwordx4 {v(EM,4)}, {vL16}, {srd(rWS)}, {t5} offen{fl}")
    A("s_mov_b32 exec_hi, -1")
def small_loads():
    A(f"s_mov_b32 {t5}, {EP_O}")
    A(f"buffer_load_dword {FN}, off, {srd(rWS)}, {t5}{NT}")
    A(f"s_cmp_lg_u32 {sW}, 3")
    A("s_cbranch_scc1 L_pro2")
    A(f"v_lshrrev_b32 {v(TM+8)}, 5, v0"); A(f"v_and_b32 {v(TM+9)}, 31, v0")
    A(f"v_mul_u32_u24 {vXS1}, 1152, {v(TM+8)}"); A(f"v_lshl_add_u32 {vXS2}, {v(TM+9)}, 2, {vXS1}"); A(f"v_lshl_add_u32 {v(TM+10)}, {v(TM+9)}, 3, {vXS1}"); A(f"v_lshl_add_u32 {vXS1}, {v(TM+9)}, 4, {vXS1}")
    for l in xs_loads(rX, 0, NT): A(l)
    A(f"s_mul_i32 {t5}, {t2}, 144")
    A(f"buffer_load_dwordx2 {v(XG,2)}, {v(TM+10)}, {srd(rX)}, {t5} offen{NT}")
    A("L_pro2:")
def code_prefetch():
    A(f"s_cmp_ge_u32 s2, 8"); A("s_cbranch_scc1 L_nc")
    A("s_getpc_b64 s[66:67]")
    A("L_pc:")
    A(f"v_lshl_add_u32 {v(TM+8)}, {sW}, 6, v0"); A(f"v_lshlrev_b32 {v(TM+8)}, 7, {v(TM+8)}")
    A(f"v_min_u32 {v(TM+8)}, L_codeend-L_pc-4, {v(TM+8)}")
    A(f"global_load_dword {DUM}, {v(TM+8)}, s[66:67]")
    A("L_nc:")
if args.hw >= 2: setup_k()
if args.code == 1: code_prefetch()
if args.hw >= 3: setup_ws()
A("s_waitcnt lgkmcnt(0)")
pstamp(0)
if args.xf: small_loads()
for n in range(4):
    A(f"buffer_load_dwordx4 {v(TM+6)}, {srd(rWQ)}, {sXoff} offen{NTQ} lds")
    A("s_add_u32 m0, m0, 4096"); A(f"s_add_u32 {sXoff}, {sXoff}, {16*8192}")
if args.hw < 2: setup_k()
A(f"s_cmp_ge_u32 {sW}, 2"); A("s_cbranch_scc1 L_pro1")
A(f"buffer_load_dwordx4 {v(TM+6)}, {srd(rWQ)}, {sXoff} offen{NTQ} lds")
A("L_pro1:")
if args.hw < 3: setup_ws()
if not args.xf: small_loads()
empty_share(sGf, '')
A(f"s_lshl_b32 {t4}, {sW}, 13"); A(f"s_add_u32 m0, {t4}, {L_K}")
for i in range(8):
    if i == 4: A(f"s_add_u32 m0, m0, 4096")
    A(f"buffer_load_dwordx4 {v(KA+i%4)}, {srd(rK)}, {kv0 if i < 4 else kv1} offen offset:{1024*(i%4)}{NTK} lds")
cnt = [8]
mark = {'K': 8}
def vm(s): A(s); cnt[0] += 1
size(rV, 33554432)
def hookS():
    setup_rest()
    if ST and not args.pro:
        for k in range(14): A(f"s_mov_b64 s[{72+2*k}:{73+2*k}], 0")
    pstamp(3)
    for r, off in ((rW1, 48), (rW2, 64), (rOUT, 80), (rT1, 56), (rT2, 72)):
        A(f"s_load_dwordx2 s[{r}:{r+1}], s[0:1], {off}")
    constants1()
    A(f"s_lshl_b32 {t4}, {sL}, 9"); A(f"s_add_u32 {t4}, {t4}, {sGf}"); A(f"s_add_u32 {t4}, {t4}, {QP_O}")
    A(f"s_add_u32 {sXoff}, {sGf}, {FF_O}")
    A("s_mov_b64 exec, 15")
    vm(f"buffer_load_dword {DUM}, {vL128}, {srd(rWS)}, {t4} offen sc1{NT}")
    vm(f"buffer_load_dword {DUM}, {vL128}, {srd(rWS)}, {sXoff} offen sc1{NT}")
    A("s_mov_b64 exec, -1")
def hookQ():
    if not args.lnf: ln0(1 + cnt[0] + (4 if args.xf else 0))
    A(f"s_lshl_b32 {t4}, {sL}, 2"); A(f"s_add_u32 {t4}, {t4}, {sXoff}")
    A(f"s_getreg_b32 {t3}, hwreg(HW_REG_XCC_ID)"); A(f"s_lshl_b32 {t3}, {t3}, 28"); A(f"s_or_b32 {t3}, {t3}, 1")
    A(f"s_waitcnt vmcnt({cnt[0]}) lgkmcnt(0)")
    A("s_barrier")
    pstamp(2)
    for l in exec_xa(): A(l)
    for i in range(3):
        if i == 2: A("s_mov_b64 exec, 0x33")
        A(f"ds_read_b128 {v(XA+4*i,4)}, {vLXr} offset:{L_X+64*i}")
    A("s_mov_b64 exec, -1")
    for i in range(2):
        for vv in range(0, 8, 2):
            row = 32*i + 16*(vv >> 2) + (vv & 3)
            A(f"ds_read2st64_b32 {a(aWQ+8*i+vv,2)}, {vCq} offset0:{row} offset1:{row+1}")
    A("s_mov_b32 exec_hi, 0")
    for vv in (0, 2): A(f"ds_read2st64_b32 {a(aWQ+16+vv,2)}, {vCq} offset0:{64+vv} offset1:{65+vv}")
    A("s_mov_b32 exec_hi, -1")
    A(f"v_readfirstlane_b32 {sFlag}, {FN}")
    A(f"s_add_u32 {sFlag}, {sFlag}, 0x0e377902"); A(f"s_and_b32 {sFlag}, {sFlag}, 0x0fffffff"); A(f"s_or_b32 {sFlag}, {sFlag}, {t3}")
    A(f"v_mov_b32 {FN}, {sFlag}")
    A("s_mov_b64 exec, 1")
    vm(f"buffer_store_dword {FN}, {vL16}, {srd(rWS)}, {t4} offen")
    A("s_mov_b64 exec, -1")
    A(f"v_and_b32 {vTag}, 0xff, {FN}"); A(f"s_movk_i32 {t4}, 0xff")
    A("s_waitcnt lgkmcnt(0)")
    for i in range(3): sm(D0, XA+4*i, aWQ+8*i, vIdxD)
    for i in range(4): A(f"v_bfi_b32 {v(D0+i)}, {t4}, {vTag}, {v(D0+i)}")
    A("s_mov_b32 exec_hi, 0")
    vm(qp_store.format(so=sGf, fl=''))
    A("s_mov_b32 exec_hi, -1")
    pstamp(1)
for k in range(9):
    if k == args.pS: hookS()
    if k == args.pC:
        if args.lnf: ln0(1 + cnt[0] + (4 if args.xf else 0))
        constants()
    if k == args.pQ: hookQ()
    if k == 8 - args.vw: mark['V'] = cnt[0]
    if k < 8: vm(f"buffer_load_dwordx4 {a(aV+4*k,4)}, {vL16}, {srd(rV)}, {kv0 if k < 4 else kv1} offen offset:{1024*(k%4)}{NTV}")
    if k == 7: pstamp(9)
TT = v(TM+4)
def slots_touch():
    A(f"s_lshl_b32 {t1}, {sJ}, 2"); A(f"s_add_u32 {t1}, {t1}, {sW}")
    A(f"s_mul_i32 {t3}, {t1}, 896"); A(f"s_add_u32 {t3}, {t3}, {sGf}"); A(f"s_add_u32 {t3}, {t3}, {Y_O}")
    A("s_mov_b64 exec, 0x7f")
    A(f"buffer_load_dword {DUM}, {vL128}, {srd(rWS)}, {t3} offen sc1{NT}")
    A("s_mov_b64 exec, -1")
assert Y_O + 64 * 896 >= ZS_O + 1536
def w1_touch():
    A(f"s_lshl_b32 {t1}, {sJ}, 2"); A(f"s_add_u32 {t1}, {t1}, {sW}")
    A(f"s_mul_i32 {t4}, {sX}, 576"); A(f"s_add_u32 {t4}, {t4}, {t1}"); A(f"s_add_u32 {t4}, {t4}, 512"); A(f"s_mul_i32 {t4}, {t4}, 1152")
    A(f"s_mul_i32 {t1}, {t1}, {9*9216}")
    A(f"s_mul_i32 {t3}, {sX}, 1152"); A(f"s_add_u32 {t1}, {t1}, {t3}"); A(f"s_add_u32 {t3}, {t1}, {5*9216}")
    A(f"v_mul_u32_u24 {TT}, 57, v0"); A(f"v_lshrrev_b32 {TT}, 9, {TT}"); A(f"v_mul_u32_u24 {TT}, {9216-1152}, {TT}"); A(f"v_add_u32 {TT}, {TT}, {vL128}")
    A("s_mov_b32 exec_hi, 0x1fff")
    A(f"buffer_load_dword {DUM}, {TT}, {srd(rW1)}, {t1} offen{NTT}")
    A("s_mov_b32 exec_hi, 15")
    A(f"buffer_load_dword {DUM}, {TT}, {srd(rW1)}, {t3} offen{NTT}")
    A("s_mov_b64 exec, 0x1ff")
    A(f"buffer_load_dword {DUM}, {vL128}, {srd(rW2)}, {t4} offen{NTT}")
    A("s_mov_b64 exec, -1")
def w2_loads():
    l1 = A.newlabel('L_w2')
    A(f"s_mul_i32 {t0}, {sX}, 18"); A(f"s_add_u32 {t0}, {t0}, {sJ}"); A(f"s_mul_i32 {t0}, {t0}, {32*1152}")
    A(f"s_lshl_b32 {t1}, {sW}, 8"); A(f"s_add_u32 {t1}, {t1}, {t0}")
    for i in range(8):
        A(f"buffer_load_dwordx4 {a(aW2+4*i,4)}, {vWrow}, {srd(rW2)}, {t1} offen{NT2}")
        if i < 7: A(f"s_add_u32 {t1}, {t1}, 4608")
    A(f"s_cmp_lg_u32 {sW}, 3")
    A(f"s_cbranch_scc1 {l1}")
    A(f"s_mov_b64 exec, {mLO8}")
    for i in range(8):
        A(f"buffer_load_dwordx4 {a(aW2t+4*i,4)}, {vWrow}, {srd(rW2)}, {t0} offen offset:1024{NT2}")
        if i < 7: A(f"s_add_u32 {t0}, {t0}, 4608")
    A("s_mov_b64 exec, -1")
    A(f"{l1}:")
def wo_loads(k0, k1, with_tail):
    for k in range(k0, k1):
        A(f"buffer_load_dwordx4 {a(aWO+4*k,4)}, {vWrow}, {srd(rWO)}, {sWo} offen{NTO}")
        A(f"s_add_u32 {sWo}, {sWo}, 4608")
    if with_tail:
        l1 = A.newlabel('L_wt')
        A(f"s_cmp_lg_u32 {sW}, 3")
        A(f"s_cbranch_scc1 {l1}")
        A(f"s_mov_b64 exec, {mLO8}")
        for i in range(7, -1, -1):
            A(f"s_sub_u32 {sWo}, {sWo}, 4608")
            A(f"buffer_load_dwordx4 {a(aWOt+4*i,4)}, {vWrow}, {srd(rWO)}, {sWo} offen offset:256{NTO}")
        A("s_mov_b64 exec, -1")
        A(f"{l1}:")
if args.pC > 8: constants()
pstamp(4)
stamp()
A("s_waitcnt lgkmcnt(0)")
if args.kw: A(f"s_waitcnt vmcnt({cnt[0]-mark['K']})")
A(f"s_mov_b32 {sXPo}, {XP_O}")
A(f"s_cmp_lt_u32 {sJ}, 16")
A("s_cbranch_scc1 L_g1n")
A(f"v_readfirstlane_b32 {t4}, {vOPg}"); A(f"v_readfirstlane_b32 {t5}, {vSTg}")
A(f"s_add_u32 {t4}, {t4}, {sGf}"); A(f"s_add_u32 {t5}, {t5}, {sGf}")
A("s_mov_b64 exec, 0xff")
A(f"buffer_load_dword {DUM}, {vL128}, {srd(rWS)}, {t4} offen sc1{NT}")
A("s_mov_b64 exec, 3")
A(f"buffer_load_dword {DUM}, {vL128}, {srd(rWS)}, {t5} offen sc1{NT}")
A("s_mov_b64 exec, -1")
A(f"buffer_load_ushort {vXres}, {vZo}, {srd(rX)}, 0 offen{NT}")
A(f"buffer_load_ushort {vB2}, {vB2}, {srd(rT2)}, 0 offen{NT}")
wo_loads(0, 8, True)
A("s_branch L_g1o")
A("L_g1n:")
if 's' in args.early: slots_touch()
if '1' in args.early: w1_touch()
if '2' in args.early: w2_loads()
A("L_g1o:")
pstamp(6)
A("s_waitcnt vmcnt(8)")
for T in range(2):
    for q in range(4): A(f"ds_read_b128 {a(aK+16*T+4*q,4)}, {v(KR+q)} offset:{4096*T}")
A(f"s_waitcnt vmcnt({args.vw})")
if ST and not args.pro and ONLY is None: A(f"s_memrealtime s[74:75]")
pstamp(5)
def flags_diff():
    A(f"v_xor_b32 {CK}, {sFlag}, {v(FG)}")
    for i in range(1, 4): A(f"v_bitop3_b32 {CK}, {CK}, {v(FG+i)}, {sFlag} bitop3:0xf6")
st_rd = f"ds_read_b64 {v(TM,2)}, {vSTATr}"
A("L_g4:")
for l in fl_load + qg4: A(l)
A("s_waitcnt vmcnt(0)")
pstamp(7)
flags_diff()
A(f"v_cmp_ne_u32 vcc, 0, {CK}")
A("s_cmp_lg_u32 vcc_lo, 0")
if args.forcefb: A("s_cmp_eq_u32 0, 0")
A("s_cbranch_scc1 L_af2")
A(f"s_mov_b32 {sMode}, 0")
A("L_g2:")
for i in range(16): A(f"v_xor_b32 {v(QG+i)}, {vTag}, {v(QG+i)}")
A(f"v_or3_b32 {CK}, {v(QG)}, {v(QG+1)}, {v(QG+2)}")
for i in range(3, 15, 2): A(f"v_or3_b32 {CK}, {CK}, {v(QG+i)}, {v(QG+i+1)}")
A(f"v_or_b32 {CK}, {CK}, {v(QG+15)}")
A(f"v_and_b32 {CK}, 0xff, {CK}")
A(f"v_cmp_ne_u32 vcc, 0, {CK}")
A("s_cbranch_vccnz L_g5")
A("L_g3:")
A(f"s_mov_b32 {sL}, 0")
zero(D0)
A(f"v_mov_b32 {v(TM)}, 0"); A(f"v_mov_b32 {v(TM+1)}, 1.0")
tail.append("L_g5:\n" + timeout("L_g4", "L_g3"))
pstamp(8)
A(f"v_add_f32 {v(TM+2)}, {v(QG+2)}, {v(QG+6)}"); A(f"v_add_f32 {v(TM+3)}, {v(QG+3)}, {v(QG+7)}")
A(f"v_add_f32 {v(TM+4)}, {v(QG+10)}, {v(QG+14)}"); A(f"v_add_f32 {v(TM+5)}, {v(QG+11)}, {v(QG+15)}")
A(f"v_add_f32 {v(TM+2)}, {v(TM+2)}, {v(TM+4)}"); A(f"v_add_f32 {v(TM+3)}, {v(TM+3)}, {v(TM+5)}")
A(f"v_permlane32_swap_b32 {v(TM+2)}, {v(TM+3)}")
A(f"v_add_f32 {vCq}, {v(TM+2)}, {v(TM+3)}")
A("s_branch L_qfin")

A("L_layer:")
zero(D0, 8)
def quiet_wait(so_add):
    if not args.pre: return
    A(f"s_add_u32 {t5}, {sGp}, {so_add}")
    A("s_mov_b64 exec, 1")
    poll([f"buffer_load_dword {DUM}, {vL16}, {srd(rWS)}, {t5} offen sc1"] + ([f"s_sleep {args.pre-1}"] if args.pre > 1 else []), [DUM])
    A("s_mov_b64 exec, -1")
    if args.zd: A(f"s_sleep {args.zd}")
if args.pre:
    A(f"s_bitcmp1_b32 {sRole}, 1"); A("s_cbranch_scc1 L_q0")
    quiet_wait(AN_O)
    A("L_q0:")
def q_pub():
    A(f"v_and_b32 {v(D0)}, -2, {v(D0)}"); A(f"v_and_b32 {v(D0+1)}, -2, {v(D0+1)}")
    A("s_mov_b32 exec_hi, 0")
    pub(f"buffer_store_dwordx2 {v(D0,2)}, {vQPst}, {srd(rWS)}, {{so}} offen{{fl}}")
    A("s_mov_b32 exec_hi, -1")
poll_proj(vXAq, sXoff, 3, aWQ, True)
q_pub()
nst[0] = 1
stamp()
zero(D0)
qregs = [v(QG+4*p+i) for p in range(4) for i in range(2)]
qchk1 = [f"v_or3_b32 {CK}, {qregs[0]}, {qregs[1]}, {qregs[2]}", f"v_or3_b32 {CK}, {CK}, {qregs[3]}, {qregs[4]}", f"v_or3_b32 {CK}, {CK}, {qregs[5]}, {qregs[6]}",
         f"v_bitop3_b32 {CK}, {CK}, {qregs[7]}, 1 bitop3:0xa8", f"v_cmp_ne_u32 vcc, 0, {CK}"]
poll(zs_load(vSTATr, sGp), [v(ZG), v(ZG+1)])
for l in qg2: A(l)
A(f"v_mov_b32 {S_}, {v(ZG)}"); A(f"v_mov_b32 {Q_}, {v(ZG+1)}")
stats_tail1(); stats_tail2()
poll(qg2, qregs, primed=True, chk=qchk1, site='q')
A("L_qfin:")
stamp()
A(f"v_add_f32 {v(TM+2)}, {v(QG)}, {v(QG+4)}"); A(f"v_add_f32 {v(TM+3)}, {v(QG+1)}, {v(QG+5)}")
A(f"v_add_f32 {v(TM+4)}, {v(QG+8)}, {v(QG+12)}"); A(f"v_add_f32 {v(TM+5)}, {v(QG+9)}, {v(QG+13)}")
A(f"v_add_f32 {v(TM+2)}, {v(TM+2)}, {v(TM+4)}"); A(f"v_add_f32 {v(TM+3)}, {v(TM+3)}, {v(TM+5)}")
A(f"v_permlane32_swap_b32 {v(TM+2)}, {v(TM+3)}")
A(f"v_add_f32 {v(TM+2)}, {v(TM+2)}, {v(TM+3)}")
A(f"v_fma_f32 {v(TM+2)}, -{v(TM)}, {vCq}, {v(TM+2)}")
A(f"v_mul_f32 {v(TM+2)}, {v(TM+2)}, {v(TM+1)}")
A(f"v_cvt_pk_bf16_f32 {v(TM+2)}, {v(TM+2)}, {v(TM+2)}")
A(f"ds_write_b16 {vQTw}, {v(TM+2)} offset:{L_QT}")
A("s_mov_b32 vcc_lo, 0xaaaaaaaa"); A("s_mov_b32 vcc_hi, 0xaaaaaaaa")
zero(DP)
A("s_waitcnt lgkmcnt(0)")
A("s_barrier")
A(f"ds_read_b128 {v(AO,4)}, {vQTr} offset:{L_QT}")
A(f"ds_read_b128 {v(AO+4,4)}, {vQTr} offset:{L_QT+256}")
if args.mid:
    A(f"s_lshr_b32 {t0}, {sJ}, 4"); A(f"s_or_b32 {t0}, {t0}, {sL}")
    A("s_cbranch_scc1 L_mid")
    if 's' in args.mid: slots_touch()
    if '1' in args.mid: w1_touch()
    if '2' in args.mid: w2_loads()
    A("L_mid:")
A(f"s_waitcnt lgkmcnt({lg(1)})")
sm(D0, AO, aK, vIdxP); sm(D1, AO, aK+16, vIdxP)
A("s_waitcnt lgkmcnt(0)")
sm(D0, AO+4, aK+8, vIdxP); sm(D1, AO+4, aK+24, vIdxP)
SC, MX, P_, LS, TT = v(TM), v(TM+1), v(TM+2), v(TM+3), v(TM+4)
A(f"v_add_f32 {SC}, {v(D0)}, {v(D0+1)}")
A(f"v_add_f32 {TT}, {v(D1)}, {v(D1+1)}")
A(f"v_cndmask_b32 {SC}, {SC}, {TT}, {mROW}")
rbf(SC, SC)
A(f"v_mul_f32 {SC}, {f32(128 ** -0.5)}, {SC}")
rbf(SC, SC)
A(f"v_mul_f32 {SC}, {f32(1.4426950408889634)}, {SC}")
zero(D0, 2)
A(f"v_max_f32_dpp {MX}, {SC}, {SC} row_ror:8 row_mask:0xf bank_mask:0xf")
for n, k in enumerate((4, 2, 1)):
    zero(D0+2+2*n, 2)
    if k == 1: A(f"v_max_f32_dpp {TT}, {MX}, {MX} row_ror:{k} row_mask:0xf bank_mask:0xf")
    A(f"v_max_f32_dpp {MX}, {MX}, {MX} row_ror:{k} row_mask:0xf bank_mask:0xf")
A(f"v_permlane16_swap_b32 {MX}, {TT}")
A(f"v_max_f32 {MX}, {MX}, {TT}")
A(f"v_sub_f32 {P_}, {SC}, {MX}")
A(f"v_exp_f32 {P_}, {P_}")
A(f"v_cvt_pk_bf16_f32 {TT}, {P_}, 0")
A(f"ds_write2_b32 {vPTw}, {TT}, {TT} offset1:5")
for i in range(4): A(f"ds_read_b128 {v(AO+4*i,4)}, {vPTr} offset:{128*i}")
A(f"v_add_f32_dpp {LS}, {P_}, {P_} row_ror:8 row_mask:0xf bank_mask:0xf")
for k in (4, 2, 1): A(f"v_add_f32_dpp {LS}, {LS}, {LS} row_ror:{k} row_mask:0xf bank_mask:0xf")
A(f"v_mov_b32 {SC}, {LS}")
A(f"v_permlane16_swap_b32 {LS}, {SC}")
A(f"v_add_f32 {LS}, {LS}, {SC}")
A(f"v_cndmask_b32 {SC}, {MX}, {LS}, vcc")
A("s_mov_b32 exec_lo, 3"); A("s_mov_b32 exec_hi, 3")
pub(f"buffer_store_dword {SC}, {vSTst}, {srd(rWS)}, {{so}} offen{{fl}}")
A("s_mov_b64 exec, -1")
for i in range(4):
    A(f"s_waitcnt lgkmcnt({lg(3-i)})")
    sm(DP, AO+4*i, aV+8*i, vIdxS)
def pack4(d):
    A(f"v_cvt_pk_bf16_f32 {v(d)}, {v(d)}, {v(d+1)}"); A(f"v_cvt_pk_bf16_f32 {v(d+1)}, {v(d+2)}, {v(d+3)}")
pack4(DP)
pub(f"buffer_store_dwordx2 {v(DP,2)}, {vOPst}, {srd(rWS)}, {{so}} offen{{fl}}")
stamp()
E = TM + 5
R = TM + 12
def tile_out(wb, tb, vst, drain):
    l1 = A.newlabel('L_t'); l2 = A.newlabel('L_t')
    for i in range(4):
        A(f"s_waitcnt lgkmcnt({lg(3-i)})")
        sm(D0, AO+4*i, wb+8*i, vIdxS)
    A(f"s_cmp_lg_u32 {sW}, 3")
    A(f"s_cbranch_scc1 {l1}")
    for i in range(1 if 'notail' in args.exp else 4): sm(D1, AO+4*i, tb+8*i, vIdxS)
    A(f"{l1}:")
    A("s_waitcnt vmcnt(0)" if drain else "s_nop 0")
    A("s_nop 4")
    pack4(D0)
    pub(f"buffer_store_dwordx2 {v(D0,2)}, {vst}, {srd(rWS)}, {{so}} offen{{fl}}")
    A(f"s_cmp_lg_u32 {sW}, 3")
    A(f"s_cbranch_scc1 {l2}")
    pack4(D1)
    A(f"s_mov_b64 exec, {mLO8}")
    pub(f"buffer_store_dwordx2 {v(D1,2)}, {v(E+2)}, {srd(rWS)}, {{so}} offen{{fl}}")
    A("s_mov_b64 exec, -1")
    A(f"{l2}:")
A(f"s_cmp_lt_u32 {sJ}, 16")
A("s_cbranch_scc1 L_mlp")
op_load = [f"buffer_load_dwordx2 {v(OG+2*i,2)}, {vOPg}, {srd(rWS)}, {sGp} offen offset:{512*i} sc1" for i in range(2)]
A(f"v_add_u32 {v(E+6)}, {4*1152}, {vYst}")
if args.sd: A(f"s_sleep {args.sd}")
if 'nost' not in args.exp.split(','): poll([f"buffer_load_dwordx4 {v(SG,4)}, {vSTg}, {srd(rWS)}, {sGp} offen sc1",
      f"buffer_load_dwordx4 {v(SG+4,4)}, {vSTg}, {srd(rWS)}, {sGp} offen offset:128 sc1",
      f"buffer_load_dwordx2 {v(SG+8,2)}, {vSTm}, {srd(rWS)}, {sGp} offen sc1"], [v(SG+i) for i in range(10 if 's' in PD else 8)], site='s')
for l in op_load: A(l)
if 'noweights' in args.exp: A("s_branch L_exw")
A(f"v_max3_f32 {MX}, {v(SG)}, {v(SG+1)}, {v(SG+2)}")
A(f"v_max_f32 {MX}, {MX}, {v(SG+3)}")
A(f"v_max_f32_dpp {TT}, {MX}, {MX} row_ror:8 row_mask:0xf bank_mask:0xf")
A(f"v_max_f32_dpp {MX}, {MX}, {MX} row_ror:8 row_mask:0xf bank_mask:0xf")
A(f"v_permlane16_swap_b32 {MX}, {TT}"); A(f"v_max_f32 {SC}, {MX}, {TT}"); A(f"v_max_f32 {MX}, {MX}, {TT}")
A(f"v_permlane32_swap_b32 {MX}, {SC}"); A(f"v_max_f32 {MX}, {MX}, {SC}")
for n, i in enumerate((0, 1, 2, 3, 8, 9)): A(f"v_sub_f32 {v(E+n)}, {v(SG+i)}, {MX}")
for n in range(6): A(f"v_exp_f32 {v(E+n)}, {v(E+n)}")
A(f"v_mul_f32 {LS}, {v(E)}, {v(SG+4)}")
for i in (1, 2, 3): A(f"v_fmac_f32 {LS}, {v(E+i)}, {v(SG+4+i)}")
A(f"v_add_f32_dpp {TT}, {LS}, {LS} row_ror:8 row_mask:0xf bank_mask:0xf")
A(f"v_add_f32_dpp {LS}, {LS}, {LS} row_ror:8 row_mask:0xf bank_mask:0xf")
A(f"v_permlane16_swap_b32 {LS}, {TT}"); A(f"v_add_f32 {SC}, {LS}, {TT}"); A(f"v_add_f32 {LS}, {LS}, {TT}")
A("L_exw:")
poll(op_load, [v(OG+i) for i in range(4)], primed=True, site='o')
stamp()
A(f"v_permlane32_swap_b32 {LS}, {SC}")
def unpack2(dst, src):
    for i in range(2):
        A(f"v_lshlrev_b32 {v(dst+2*i)}, 16, {v(src+i)}"); A(f"v_and_b32 {v(dst+2*i+1)}, 0xffff0000, {v(src+i)}")
unpack2(R, OG); unpack2(OG+4, OG+2)
for i in (0, 2): A(f"v_pk_mul_f32 {v(R+i,2)}, {v(R+i,2)}, {v(E+3,2)} op_sel:[0,1] op_sel_hi:[1,1]")
for i in (0, 2): A(f"v_pk_fma_f32 {v(R+i,2)}, {v(OG+4+i,2)}, {v(E+5,2)}, {v(R+i,2)} op_sel_hi:[1,0,1]")
A(f"v_add_f32 {LS}, {LS}, {SC}")
A(f"v_mov_b32 {v(E+2)}, {v(E+6)}")
A(f"v_permlane32_swap_b32 {v(R)}, {v(R+2)}")
A(f"v_permlane32_swap_b32 {v(R+1)}, {v(R+3)}")
A(f"v_add_f32 {v(R)}, {v(R)}, {v(R+2)}")
A(f"v_add_f32 {v(R+1)}, {v(R+1)}, {v(R+3)}")
A(f"v_rcp_f32 {LS}, {LS}")
A(f"v_permlane16_swap_b32 {v(R)}, {v(R+1)}")
A(f"v_add_f32 {v(R)}, {v(R)}, {v(R+1)}")
A(f"v_add_f32_dpp {v(R)}, {v(R)}, {v(R)} row_ror:8 row_mask:0xf bank_mask:0xf")
A(f"v_mul_f32 {v(R)}, {v(R)}, {LS}")
A(f"v_cvt_pk_bf16_f32 {TT}, {v(R)}, {v(R)}")
A(f"ds_write_b16 {vOTw}, {TT}")
A(f"s_cmp_lg_u32 {sL}, 0")
A("s_cbranch_scc1 L_o3")
pub(*[f"buffer_store_dwordx2 {v(EM,2)}, {vOPg}, {srd(rWS)}, {{so}} offen offset:{512*i}{{fl}}" for i in range(2)])
A("L_o3:")
A("s_waitcnt lgkmcnt(0)")
A("s_barrier")
for i in range(4): A(f"ds_read_b128 {v(AO+4*i,4)}, {vOTr} offset:{128*i}")
tile_out(aWO, aWOt, vYst, True)
stamp()

def reducer(kind):
    ld = [f"buffer_load_dwordx2 {v(YG+2*i,2)}, {vRg}, {srd(rWS)}, {sGp} offen offset:{512*i} sc1" for i in range(2)]
    A(f"s_movk_i32 {t4}, 0xff"); A(f"s_add_u32 {t3}, {sXPo}, 8192")
    zero(R)
    if kind == 'A': zero(YG+4, 2)
    if kind == 'A':
        if args.yd: A(f"s_sleep {args.yd}")
        poll(ld, [v(YG+i) for i in range(4)], site='y')
    else:
        poll(ld + ["s_mov_b64 exec, 0xffff", f"buffer_load_dwordx2 {v(YG+4,2)}, {vRg}, {srd(rWS)}, {sGp} offen offset:1024 sc1", "s_mov_b64 exec, -1"],
             [v(YG+i) for i in range(6)], site='y')
    stamp()
    A(f"v_smfmac_f32_16x16x64_bf16 {v(R,4)}, {v(YG+8,4)}, {v(YG,8)}, {vIdxS}")
    for i in range(4): A(f"v_add_f32_dpp {v(R+i)}, {v(R+i)}, {v(R+i)} row_ror:8 row_mask:0xf bank_mask:0xf")
    for i in range(4): A(f"v_bfi_b32 {v(R+i)}, {t4}, {vTag}, {v(R+i)}")
    A(f"buffer_store_dwordx4 {v(R,4)}, {vXPst}, {srd(rWS)}, {sXPo} offen sc1")
    if args.near: A(f"buffer_store_dwordx4 {v(R,4)}, {vXPst}, {srd(rWS)}, {t3} offen sc1")
    if kind == 'M':
        A(f"s_lshl_b32 {t0}, {sL}, 2"); A(f"s_andn2_b32 {t0}, {t0}, {sRole}")
        A("s_cbranch_scc1 L_fin")
    cl = [f"buffer_store_dwordx2 {v(EM,2)}, {vRg}, {srd(rWS)}, {{so}} offen offset:{512*i}{{fl}}" for i in range(2)]
    if kind == 'M': cl += ["s_mov_b64 exec, 0xffff", f"buffer_store_dwordx2 {v(EM,2)}, {vRg}, {srd(rWS)}, {{so}} offen offset:1024{{fl}}", "s_mov_b64 exec, -1"]
    pub(*cl)
    if args.pre:
        lb = A.newlabel('L_an')
        A(f"s_cmp_lg_u32 {sTask}, 0"); A(f"s_cbranch_scc1 {lb}")
        if kind == 'A': A(f"s_cmp_eq_u32 {sL}, 0"); A(f"s_cbranch_scc1 {lb}")
        A(f"v_mov_b32 {TT}, {AN_O + (0 if kind == 'M' else 4)}")
        A("s_mov_b64 exec, 1")
        pub(f"buffer_store_dword {vL16}, {TT}, {srd(rWS)}, {{so}} offen{{fl}}")
        A("s_mov_b64 exec, -1")
        A(f"{lb}:")
    if args.near:
        A(f"v_mov_b32 {TT}, 0")
        A(f"ds_read_b32 {TT}, {TT} offset:{L_NEAR}")
    if args.xd: A(f"s_sleep {args.xd}")
    if args.near:
        A("s_waitcnt lgkmcnt(0)")
        A(f"v_or_b32 {vXPg}, {vXPg}, {TT}")
    poll([f"buffer_load_dwordx2 {v(XG,2)}, {vXPg}, {srd(rWS)}, {sXPo} offen sc1",
          f"buffer_load_dwordx2 {v(XG+2,2)}, {vXPg}, {srd(rWS)}, {sXPo} offen offset:512 sc1"], None, site='x',
         chk=[f"v_xor_b32 {v(R+i)}, {vTag}, {v(XG+i)}" for i in range(4)] +
             [f"v_or3_b32 {CK}, {v(R)}, {v(R+1)}, {v(R+2)}", f"v_bitop3_b32 {CK}, {CK}, {v(R+3)}, {t4} bitop3:0xa8", f"v_cmp_ne_u32 vcc, 0, {CK}"])
    stamp()
    Y = v(R)
    A(f"v_add_f32 {v(R)}, {v(R)}, {v(R+2)}"); A(f"v_add_f32 {v(R+1)}, {v(R+1)}, {v(R+3)}")
    A(f"v_permlane32_swap_b32 {v(R)}, {v(R+1)}")
    A(f"v_add_f32 {TT}, {v(R)}, {v(R+1)}"); A(f"v_add_f32 {Y}, {v(R)}, {v(R+1)}")
    A(f"v_permlane16_swap_b32 {Y}, {TT}"); A(f"v_add_f32 {Y}, {Y}, {TT}")
    rbf(Y, Y)
    if kind == 'M':
        A(f"v_add_f32 {Y}, {Y}, {vB2}"); rbf(Y, Y)
    A(f"v_add_f32 {TT}, {Y}, {vXres}")
    A(f"v_add_f32 {v(R+1)}, {Y}, {vXres}")
    A(f"v_add_f32 {Y}, {Y}, {vXres}")
    A("s_mov_b64 exec, -1")
    A(f"v_permlane32_swap_b32 {TT}, {v(R+1)}")
    A(f"v_cvt_pk_bf16_f32 {TT}, {TT}, {v(R+1)}")
    A("s_mov_b64 exec, 0xffff")
    if kind == 'M':
        A(f"s_cmp_lg_u32 {sL}, 0")
        A("s_cbranch_scc1 L_out")
    pub(f"buffer_store_dword {TT}, {vZst}, {srd(rWS)}, {{so}} offen{{fl}}")
    A("s_mov_b64 exec, -1")
    stamp()
    rbf(vXres, Y)
    if kind == 'M' or args.ms != 'x':
        A(f"v_mul_f32 {TT}, {vXres}, {vXres}")
        A(f"v_cndmask_b32 {TT}, {vXres}, {TT}, {mROW}")
        for k in (8, 4, 2): A(f"v_add_f32_dpp {TT}, {TT}, {TT} row_ror:{k} row_mask:0xf bank_mask:0xf")
        A(f"v_add_f32_dpp {Y}, {TT}, {TT} row_ror:1 row_mask:0xf bank_mask:0xf")
        A(f"v_add_f32_dpp {TT}, {TT}, {TT} row_ror:1 row_mask:0xf bank_mask:0xf")
        A(f"v_permlane32_swap_b32 {TT}, {Y}")
        A(f"v_add_f32 {TT}, {TT}, {Y}")
        A("s_mov_b64 exec, 0x10001")
        pub(f"buffer_store_dword {TT}, {vZSst}, {srd(rWS)}, {{so}} offen{{fl}}")
        A("s_mov_b64 exec, -1")
    A(f"v_add_u32 {vZSst}, 512, {vZSst}")
    A(f"v_add_u32 {vZst}, 2304, {vZst}")
    A(f"s_add_u32 {sXPo}, {sXPo}, {XPS}")

A(f"s_bitcmp1_b32 {sRole}, 0")
A("s_cbranch_scc1 L_mlp")
A(f"s_bitcmp1_b32 {sRole}, 1")
A("s_cbranch_scc0 L_probe" if args.near else "s_cbranch_scc0 L_next")
A(f"s_cmp_lg_u32 {sL}, 0")
A("s_cbranch_scc1 L_red")
A(f"v_lshlrev_b32 {vXres}, 16, {vXres}"); A(f"v_lshlrev_b32 {vB2}, 16, {vB2}")
zero(YG+6, 2)
for i in range(4): A(f"v_mov_b32 {v(YG+8+i)}, 0x3f80")
A("L_red:")
k0 = nst[0]
reducer('A'); reducer('M')
kr = nst[0]
A("s_branch L_next")
A("L_mlp:")
nst[0] = k0
A(f"s_cmp_lg_u32 {sL}, 0")
A("s_cbranch_scc1 L_m1")
A(f"s_mul_i32 {t0}, {sX}, 18"); A(f"s_add_u32 {t0}, {t0}, {sJ}")
A(f"s_lshl_b32 {t2}, {t0}, 6")
A(f"buffer_load_ushort {vB1}, {vB1}, {srd(rT1)}, 0 offen{NT}")
A(f"s_cmp_ge_u32 {sJ}, 16")
A("s_cbranch_scc1 L_m0b")
if args.xt:
    A(f"s_lshl_b32 {t1}, {sJ}, 2"); A(f"s_add_u32 {t1}, {t1}, {sW}"); A(f"s_mul_i32 {t1}, {t1}, 36")
    A(f"v_add_u32 {TT}, {t1}, v0")
    A(f"v_lshrrev_b32 {LS}, 6, {TT}"); A(f"v_mul_u32_u24 {MX}, 43, {LS}"); A(f"v_lshrrev_b32 {MX}, 7, {MX}"); A(f"v_add_u32 {LS}, {LS}, {MX}")
    A(f"v_bfe_u32 {MX}, {TT}, 3, 3"); A(f"v_lshl_add_u32 {LS}, {LS}, 3, {MX}"); A(f"v_and_b32 {TT}, 7, {TT}"); A(f"v_lshlrev_b32 {TT}, 7, {TT}"); A(f"v_lshl_add_u32 {TT}, {LS}, 13, {TT}")
    A(f"s_lshl_b32 {t1}, {sX}, 10"); A(f"s_add_u32 {t1}, {t1}, {XP_O}")
    A(f"v_mov_b32 {LS}, 0")
    A("s_mov_b32 exec_hi, 15")
    A(f"buffer_atomic_or {LS}, {TT}, {srd(rWS)}, {t1} offen")
    A("s_mov_b32 exec_hi, -1")
if 's' not in args.early + args.mid: slots_touch()
if '1' not in args.early + args.mid: w1_touch()
if '2' in args.early + args.mid: A("s_branch L_m0d")
A("L_m0b:")
w2_loads()
A("L_m0d:")
A(f"s_cmp_eq_u32 {sW}, 3")
A("s_cbranch_scc1 L_m0c")
A("L_m0a:")
A(f"s_mul_i32 {t0}, {sW}, {192*9216}"); A(f"s_add_u32 {t0}, {t0}, {t2}")
if args.w1dma:
    A(f"v_lshrrev_b32 {TT}, 2, v0"); A(f"v_mul_u32_u24 {TT}, 9216, {TT}"); A(f"v_and_b32 {LS}, 3, v0"); A(f"v_lshl_add_u32 {TT}, {LS}, 4, {TT}")
    A(f"s_mul_i32 {t1}, {sW}, 12288"); A(f"s_add_u32 {t1}, {t1}, {L_K}"); A(f"s_mov_b32 m0, {t1}")
    for i in range(12):
        A(f"buffer_load_dwordx4 {TT}, {srd(rW1)}, {t0} offen{NTM} lds")
        if i < 11: A(f"s_add_u32 {t0}, {t0}, {16*9216}"); A("s_add_u32 m0, m0, 1024")
    A(f"v_lshrrev_b32 {TT}, 4, v0"); A(f"v_lshlrev_b32 {TT}, 8, {TT}"); A(f"v_and_b32 {LS}, 15, v0"); A(f"v_lshl_add_u32 {TT}, {LS}, 2, {TT}"); A(f"v_add_u32 {TT}, {t1}, {TT}")
    A("s_waitcnt vmcnt(0)")
    for i in range(6):
        for hh in range(2):
            for p in range(2):
                A(f"ds_read2_b32 {a(aW1+8*i+4*hh+2*p,2)}, {TT} offset0:{32*p} offset1:{32*p+16}")
            if (i, hh) != (5, 1): A(f"v_add_u32 {TT}, 1024, {TT}")
    A("s_waitcnt lgkmcnt(0)")
else:
    A(f"v_lshrrev_b32 {TT}, 4, v0"); A(f"v_mul_u32_u24 {TT}, {4*9216}, {TT}"); A(f"v_and_b32 {LS}, 15, v0"); A(f"v_lshl_add_u32 {TT}, {LS}, 2, {TT}")
    prev = 0
    for i in range(6):
        for vv in range(8):
            row = 32*i + 16*(vv >> 2) + (vv & 3)
            if row != prev: A(f"s_add_u32 {t0}, {t0}, {(row-prev)*9216}")
            prev = row
            A(f"buffer_load_dword {a(aW1+8*i+vv)}, {TT}, {srd(rW1)}, {t0} offen{NTM}")
A("L_m0c:")
if ST: A("s_memrealtime s[94:95]"); A("s_waitcnt vmcnt(0)"); A("s_memrealtime s[96:97]")
A("s_waitcnt vmcnt(0)")
A(f"v_lshlrev_b32 {vB1}, 16, {vB1}")
A("L_m1:")
zero(D0, 8)
c0 = -2 * 1.4426950408889634 * 0.7978845608028654
A(f"v_mov_b32 {v(E)}, {f32(c0)}")
A(f"v_add_u32 {v(E+2)}, {4*1152}, {vMst}")
A(f"s_mul_i32 {t0}, {sL}, {Z3_O-Z1_O}"); A(f"s_add_u32 {t0}, {t0}, {sGp}"); A(f"s_add_u32 {t0}, {t0}, {Z1_O}")
if args.pre:
    A(f"s_cmp_eq_u32 {sL}, 0"); A("s_cbranch_scc1 L_m1b")
    quiet_wait(AN_O + 4)
    A("L_m1b:")
A(f"s_lshl_b32 {t1}, {sL}, 10"); A(f"s_add_u32 {t1}, {t1}, {sGp}"); A(f"s_add_u32 {t1}, {t1}, {ZS_O}")
A(f"v_lshrrev_b32 {v(E+1)}, 5, v0"); A(f"v_lshlrev_b32 {v(E+1)}, 3, {v(E+1)}")
A(f"s_cmp_eq_u32 {sW}, 3")
A("s_cbranch_scc1 L_m2")
poll_proj(vXAm, t0, 6, aW1)
A("s_mov_b32 exec_hi, 0")
A(f"ds_write_b128 {vHPw}, {v(D0,4)}")
A("s_mov_b32 exec_hi, -1")
A("s_branch L_m2b")
A("L_m2:")
if args.ms == 'x':
    if 'nostat' not in args.exp:
        poll(xs_loads(rWS, t0, ' sc1'), [v(XS+i) for i in range(9)], site='z')
        stats_x()
    else: A(f"v_mov_b32 {S_}, 0"); A(f"v_mov_b32 {Q_}, 1.0")
else:
    poll(zs_load(vZSg, t1), [v(ZG), v(ZG+1)], site='z')
    A(f"v_mov_b32 {S_}, {v(ZG)}"); A(f"v_mov_b32 {Q_}, {v(ZG+1)}")
    stats_tail1(); stats_tail2()
A(f"ds_write_b64 {v(E+1)}, {v(TM,2)} offset:{L_STAT}")
A("L_m2b:")
stamp()
A("s_waitcnt lgkmcnt(0)")
A("s_barrier")
H = TM + 12
A(f"ds_read2_b32 {v(H,2)}, {vHPr} offset0:0 offset1:2")
A(f"ds_read2_b32 {v(H+2,2)}, {vHPr} offset0:128 offset1:130")
A(f"ds_read_b32 {v(H+4)}, {vHPr} offset:1024"); A(f"ds_read_b32 {v(H+5)}, {vHPr} offset:1032")
A(f"ds_read_b64 {v(TM,2)}, {v(E+1)} offset:{L_STAT}")
zero(D0)
A("s_waitcnt lgkmcnt(0)")
A(f"v_add_f32 {v(H)}, {v(H)}, {v(H+2)}"); A(f"v_add_f32 {v(H+1)}, {v(H+1)}, {v(H+3)}")
A(f"v_add_f32 {v(H)}, {v(H)}, {v(H+4)}"); A(f"v_add_f32 {v(H+1)}, {v(H+1)}, {v(H+5)}")
A(f"v_fma_f32 {v(H)}, -{S_}, {v(H+1)}, {v(H)}")
A(f"v_mul_f32 {v(H)}, {v(H)}, {Q_}")
rbf(v(H), v(H))
A(f"v_add_f32 {v(H)}, {v(H)}, {vB1}")
rbf(v(H), v(H))
A(f"v_mul_f32 {TT}, {v(H)}, {v(H)}")
A(f"v_fmac_f32 {v(E)}, {f32(c0*0.044715)}, {TT}")
A(f"v_mul_f32 {TT}, {v(E)}, {v(H)}")
A(f"v_exp_f32 {TT}, {TT}")
A(f"v_add_f32 {TT}, 1.0, {TT}")
A(f"v_rcp_f32 {TT}, {TT}")
A(f"v_mul_f32 {TT}, {TT}, {v(H)}")
A(f"v_cvt_pk_bf16_f32 {TT}, {TT}, 0")
A(f"ds_write2_b32 {vPTw}, {TT}, {TT} offset1:5")
for i in range(4): A(f"ds_read_b128 {v(AO+4*i,4)}, {vPTr} offset:{128*i}")
stamp()
tile_out(aW2, aW2t, vMst, False)
A("L_m4:")
stamp()
nst[0] = kr
A("L_next:")
A(f"s_cmp_lg_u32 {sL}, 0")
A("s_cbranch_scc1 L_fin")
if ST:
    A("s_waitcnt lgkmcnt(0)")
    for k in range(14): A(f"v_writelane_b32 {v(SV)}, s{72+2*k}, {1+k}")
    for k in range(14): A(f"s_mov_b64 s[{72+2*k}:{73+2*k}], 0")
A(f"s_mov_b32 {sL}, 1")
if args.dirty:
    A(f"s_cmp_ge_u32 {sJ}, 16"); A("s_cbranch_scc1 L_dd")
    A(f"s_lshl_b32 {t0}, s2, 2"); A(f"s_add_u32 {t0}, {t0}, {sW}"); A(f"s_lshl_b32 {t0}, {t0}, 14"); A(f"s_add_u32 {t0}, {t0}, 0x2000000")
    for i in range(args.dirty):
        A(f"buffer_store_dwordx4 {v(EM,4)}, {vL16}, {srd(rWS)}, {t0} offen"); A(f"s_add_u32 {t0}, {t0}, 1024")
    A("L_dd:")
A(f"s_add_u32 {sXoff}, {sGp}, {Z2_O}")
for r in (vSTst, vSTg, vSTm): A(f"v_add_u32 {r}, {ST1_O-ST_O}, {r}")
if args.qc:
    assert QP_O % 512 == 0
    for r in (vQPst, vQPg):
        A(f"v_bfe_u32 {TT}, {r}, 1, 8"); A(f"v_and_b32 {r}, 0xfffffe00, {r}"); A(f"v_add_u32 {r}, {r}, {TT}")
    A(f"v_add_u32 {vQPg2}, 4096, {vQPg}")
A("s_branch L_layer")
A("L_out:")
A(f"buffer_store_dword {TT}, {vZo}, {srd(rOUT)}, 0 offen")
A(f"s_mov_b32 {t0}, {EP_O}")
A("s_mov_b64 exec, 1")
A(f"buffer_store_dword {FN}, {vL16}, {srd(rWS)}, {t0} offen")
if ST: A(f"s_memrealtime s[{72+2*13}:{73+2*13}]")
A("L_fin:")
if args.wb:
    A(f"s_cmp_lg_u32 {sJ}, 18"); A("s_cbranch_scc1 L_wb")
    A(f"s_cmp_lg_u32 {sW}, 0"); A("s_cbranch_scc1 L_wb")
    A("buffer_wbl2 sc1")
    A("L_wb:")
if args.enc:
    j0, j1 = [int(x) for x in args.encj.split(',')]
    A("s_memrealtime s[66:67]")
    A("s_waitcnt lgkmcnt(0)")
    if args.enc <= 14: A(f"v_readlane_b32 {t0}, {v(SV)}, {args.enc}"); A("s_nop 3")
    else: A(f"s_mov_b32 {t0}, s{72+2*(args.enc-15)}")
    A(f"s_cmp_eq_u32 {t0}, 0"); A("s_cbranch_scc1 L_enc2")
    A(f"s_cmp_lt_u32 {sJ}, {j0}"); A("s_cbranch_scc1 L_enc2")
    A(f"s_cmp_ge_u32 {sJ}, {j1}"); A("s_cbranch_scc1 L_enc2")
    if args.encref == 0: A(f"s_mov_b32 {t1}, s100")
    elif args.encref <= 14: A(f"v_readlane_b32 {t1}, {v(SV)}, {args.encref}"); A("s_nop 3")
    else: A(f"s_mov_b32 {t1}, s{72+2*(args.encref-15)}")
    A(f"s_sub_u32 {t0}, {t0}, {t1}"); A(f"s_min_u32 {t0}, {t0}, 10000"); A(f"s_lshl_b32 {t0}, {t0}, {4 if args.encref else 3}"); A(f"s_add_u32 {t0}, {t0}, s66")
    A("L_enc:")
    A("s_sleep 8")
    A("s_memrealtime s[64:65]"); A("s_waitcnt lgkmcnt(0)")
    A(f"s_sub_u32 {t1}, s64, {t0}"); A(f"s_cmp_lt_i32 {t1}, 0"); A("s_cbranch_scc1 L_enc")
    A("L_enc2:")
if ST:
    A("s_mov_b64 exec, -1")
    A("s_waitcnt lgkmcnt(0)")
    A(f"v_writelane_b32 {v(SV)}, s100, 0")
    for k in range(14): A(f"v_writelane_b32 {v(SV)}, s{72+2*k}, {15+k}")
    A(f"s_lshl_b32 {t0}, s2, 2"); A(f"s_add_u32 {t0}, {t0}, {sW}"); A(f"s_lshl_b32 {t0}, {t0}, 8"); A(f"s_add_u32 {t0}, {t0}, {STAMP_O}")
    A(f"v_mov_b32 {v(SV+1)}, 0")
    A(f"v_lshlrev_b32 {v(SV+2)}, 3, v0")
    A("s_mov_b32 exec_hi, 0")
    A(f"buffer_store_dwordx2 {v(SV,2)}, {v(SV+2)}, {srd(rWS)}, {t0} offen")
A("L_end:")
A("s_endpgm")
if args.near:
    A("L_probe:")
    A(f"s_cmp_lt_u32 {sJ}, 20"); A("s_cbranch_scc1 L_next")
    A(f"s_cmp_lg_u32 {sL}, 0"); A("s_cbranch_scc1 L_next")
    A(f"s_sub_u32 {t0}, {sJ}, 20"); A(f"s_lshl_b32 {t0}, {t0}, 18"); A(f"s_lshl_b32 {t1}, {sX}, 10"); A(f"s_add_u32 {t0}, {t0}, {t1}"); A(f"s_add_u32 {t0}, {t0}, {XP_O + 3*65536}")
    A(f"s_add_u32 s4, s{rWS}, {t0}"); A(f"s_addc_u32 s5, s{rWS+1}, 0")
    A(f"s_mov_b32 {t2}, -1"); A(f"s_mov_b32 {t3}, -1"); A(f"s_mov_b32 {t4}, 3")
    A("L_pr1:")
    A("s_memtime s[6:7]"); A("s_waitcnt lgkmcnt(0)")
    A(f"s_load_dword {t5}, s[4:5], 0 glc"); A("s_waitcnt lgkmcnt(0)")
    A("s_memtime s[8:9]"); A("s_waitcnt lgkmcnt(0)")
    A(f"s_load_dword {t5}, s[4:5], 0x2000 glc"); A("s_waitcnt lgkmcnt(0)")
    A("s_memtime s[10:11]"); A("s_waitcnt lgkmcnt(0)")
    A(f"s_sub_u32 {t0}, s8, s6"); A(f"s_sub_u32 {t1}, s10, s8")
    A(f"s_min_u32 {t2}, {t2}, {t0}"); A(f"s_min_u32 {t3}, {t3}, {t1}")
    A(f"s_sub_u32 {t4}, {t4}, 1"); A(f"s_cmp_lg_u32 {t4}, 0"); A("s_cbranch_scc1 L_pr1")
    A(f"s_cmp_lt_u32 {t3}, {t2}"); A(f"s_cselect_b32 {t0}, 0x2000, 0")
    A(f"v_mov_b32 {TT}, 0"); A(f"v_mov_b32 {LS}, {t0}")
    A(f"ds_write_b32 {TT}, {LS} offset:{L_NEAR}")
    A("s_branch L_next")
A("L_af2:")
A(f"s_cmp_eq_u32 {sMode}, {FB_O}")
A("s_cbranch_scc1 L_g2")
A(f"s_add_u32 {sMode}, {sMode}, 1")
A(f"s_lshl_b32 {t2}, {sX}, 10"); A(f"s_add_u32 {t2}, {t2}, {FL_O}")
A(f"s_lshl_b32 {t4}, {sL}, 2"); A(f"s_add_u32 {t1}, {t4}, {t2}")
A(f"s_cmp_lt_u32 {sMode}, {1 if args.forcefb else 40}")
A("s_cbranch_scc1 L_af5")
A("s_mov_b64 exec, 1")
A(f"buffer_store_dword {FN}, {vL16}, {srd(rWS)}, {t1} offen sc1")
A("s_mov_b32 exec_lo, -1")
A(f"buffer_load_dwordx4 {v(FG,4)}, {vL16}, {srd(rWS)}, {t2} offen sc1")
A("s_mov_b32 exec_hi, -1")
A("s_waitcnt vmcnt(0)")
flags_diff()
A(f"v_and_b32 {TT}, 0x0fffffff, {CK}")
A(f"v_cmp_ne_u32 vcc, 0, {TT}")
A("s_cmp_lg_u32 vcc_lo, 0")
A("s_cbranch_scc1 L_af5")
A(f"v_cmp_ne_u32 vcc, 0, {CK}")
A("s_cmp_lg_u32 vcc_lo, 0")
if args.forcefb: A("s_cmp_eq_u32 0, 0")
A("s_cbranch_scc1 L_spread")
A("L_af5:")
A(f"s_sub_u32 {sTO}, {sTO}, 1")
A("s_cbranch_scc0 L_g4")
A(f"s_mov_b32 {sTO}, 0")
A(f"s_mov_b32 {sMode}, 0")
A("s_branch L_g2")
A("L_spread:")
A(f"s_mov_b32 {sMode}, {FB_O}")
A(f"s_add_u32 {sGp}, {sGf}, {FB_O}")
empty_share(sGp, ' sc1')
A("s_mov_b32 exec_hi, 0")
A(qp_store.format(so=sGp, fl=' sc1'))
A("s_waitcnt vmcnt(0)")
A("s_mov_b64 exec, 1")
A(f"buffer_store_dword {FN}, {vL16}, {srd(rWS)}, {t1} offen offset:512 sc1")
A("s_mov_b32 exec_lo, -1")
A("L_sp1:")
A("s_mov_b32 exec_hi, 0")
A(f"buffer_load_dwordx4 {v(FG,4)}, {vL16}, {srd(rWS)}, {t2} offen offset:512 sc1")
A("s_mov_b32 exec_hi, -1")
A("s_waitcnt vmcnt(0)")
flags_diff()
A(f"v_and_b32 {CK}, 0x0fffffff, {CK}")
A(f"v_cmp_ne_u32 vcc, 0, {CK}")
A("s_cmp_eq_u32 vcc_lo, 0")
A("s_cbranch_scc1 L_g4")
A("s_sleep 4")
A(timeout("L_sp1", "L_g4"))
for t in tail: A(t)
A.raw('L_codeend:')

A.raw('.section .rodata,"a"')
A.raw(".p2align 6")
A.raw(f".amdhsa_kernel {NAME}_kernel")
A.raw(f"  .amdhsa_next_free_vgpr {ACC+NACC}")
A.raw("  .amdhsa_next_free_sgpr 102")
A.raw(f"  .amdhsa_accum_offset {ACC}")
A.raw("  .amdhsa_group_segment_fixed_size 0")
A.raw("  .amdhsa_kernarg_size 104")
A.raw("  .amdhsa_user_sgpr_count 2")
A.raw("  .amdhsa_user_sgpr_kernarg_segment_ptr 1")
A.raw("  .amdhsa_system_sgpr_workgroup_id_x 1")
A.raw(".end_amdhsa_kernel")
txt = A.text()
if args.cyc: txt = txt.replace('s_memrealtime', 's_memtime')
sys.stdout.write(txt)
```

```python
import sys, argparse, struct
sys.path.insert(0, 'dev')
from asmlib import Asm
NAME = "interleave_layers__sliding_block_cached__dense_activation_gelu__decode"
ap = argparse.ArgumentParser()
ap.add_argument('--stamps', action='store_true')
ap.add_argument('--pro', action='store_true')
ap.add_argument('--cyc', action='store_true')
ap.add_argument('--xt', type=int, default=0)
ap.add_argument('--xd', type=int, default=11)
ap.add_argument('--enc', type=int, default=0)
ap.add_argument('--encref', type=int, default=0)
ap.add_argument('--encj', default='0,32')
ap.add_argument('--only', default='')
ap.add_argument('--pQ', type=int, default=4)
ap.add_argument('--xf', type=int, default=0)
ap.add_argument('--kw', type=int, default=0)
ap.add_argument('--code', type=int, default=0)
ap.add_argument('--early', default='0')
ap.add_argument('--mid', default='')
ap.add_argument('--w1dma', type=int, default=0)
ap.add_argument('--near', type=int, default=1)
ap.add_argument('--pd', default='s22,y22,o22')
ap.add_argument('--wb', type=int, default=0)
ap.add_argument('--dirty', type=int, default=0)
ap.add_argument('--pre', type=int, default=1)
ap.add_argument('--qd', type=int, default=0)
ap.add_argument('--zs', type=int, default=0)
ap.add_argument('--sd', type=int, default=0)
ap.add_argument('--yd', type=int, default=0)
ap.add_argument('--zd', type=int, default=0)
ap.add_argument('--qc', type=int, default=1)
ap.add_argument('--ms', default='x')
ap.add_argument('--exp', default='')
ap.add_argument('--tlb', type=int, default=0)
ap.add_argument('--hw', type=int, default=2)
ap.add_argument('--prew', type=int, default=0)
ap.add_argument('--pS', type=int, default=0)
ap.add_argument('--pC', type=int, default=9)
ap.add_argument('--lnf', type=int, default=0)
ap.add_argument('--vw', type=int, default=1)
ap.add_argument('--di', type=int, default=1)
ap.add_argument('--dz', type=int, default=1)
ap.add_argument('--dxx', type=int, default=1)
ap.add_argument('--nt', default='k,v,2')
ap.add_argument('--forcefb', action='store_true')
args = ap.parse_args()
def ntf(c): return ' nt' if c in args.nt.split(',') else ''
NT = ntf('s'); NTK = ntf('k'); NTV = ntf('v'); NTQ = ntf('q'); NTO = ntf('o'); NTM = ntf('m'); NT2 = ntf('2'); NTT = ntf('t')
ST = args.stamps
PD = {x[0]: (int(x[1]), int(x[2:])) for x in args.pd.split(',') if x}

def f32(x): return '0x%08x' % struct.unpack('<I', struct.pack('<f', x))[0]

CLR = 944
OP_O = 0
Y_O = OP_O + 65536
ST_O = Y_O + 41472
ST1_O = ST_O + 2048
Z1_O = ST1_O + 2048
Z2_O = Z1_O + 2304
Z3_O = Z2_O + 2304
AN_O = Z3_O + 2304
ZS_O = AN_O + 128
assert ZS_O + 1536 <= 128 * CLR and (128 * CLR) % 128 == 0
QP_O = 128 * CLR
FF_O = QP_O + 65536
GB = FF_O + 1024
FB_O = 8 * GB
XP_O = 6 << 20
assert XP_O >= 16 * GB
XPS = 16384
FL_O = XP_O + 12 * 262144
EP_O = FL_O + 8 * 1024
STAMP_O = 0x8000000
L_NEAR = 8176
L_X = 640
L_QT, L_STAT, L_OT, L_PT, L_HP, L_K, L_WQ, L_SIZE = 0, 512, 1024, 2560, 8192, 16384, 49152, 67584

rK, rV, rWQ, rWO, rW1, rW2, rWS, rX, rOUT, rT1, rT2 = 4, 8, 12, 16, 20, 24, 28, 32, 36, 44, 48
sTask, kv0, kv1, sFlag = 's40', 's41', 's42', 's43'
def srd(n): return f"s[{n}:{n+3}]"
sW, sX, sJ, sGf, sGp, sXoff, sTO, sMode, sL, sWo = [f"s{i}" for i in range(52, 62)]
t0, t1, t2, t3, t4, t5 = [f"s{i}" for i in range(62, 68)]
mLO8 = "s[68:69]"; mROW = "s[70:71]"
MXA = "0x00330033"
sRole = "s3"
(vL4, vL16, vIdxD, vIdxP, vIdxS, vXAq, vXAm, vQPst, vQPg, vL128, vQTw, vQTr, vPTw, vPTr, vSTst, vOPst, vSTg, vOPg, vOTw, vOTr,
 vYst, vMst, vHPw, vSTm, vRg, vSTATr, vXPst, vXPg, vZst, vXres, vB2, vB1, vCq, vZo, vXS1, vXS2, vWrow, vHPr, vOnes) = [f"v{i}" for i in range(1, 40)]
XA, D0, D1, DP, AO, SG, YG, XG, XS, FG, TM, EM, KA, SV, OG, QG = 40, 64, 68, 72, 76, 104, 120, 132, 136, 148, 152, 176, 180, 184, 188, 196
vQPg2, vZSst, vZSg = 'v92', 'v93', 'v94'
ZG = 96; vLXr = 'v98'; KR = 100
ACC = 212
aWQ, aK, aV, aWO, aW1, aW2, aWOt, NACC = 0, 24, 56, 88, 120, 168, 200, 232
aW2t = aW1
def v(n, k=1): return f"v{n}" if k == 1 else f"v[{n}:{n+k-1}]"
def a(n, k=1): return f"a{n}" if k == 1 else f"a[{n}:{n+k-1}]"
CK = v(TM + 23); FN = v(TM + 22); vTag = v(TM + 21); DUM = v(TM + 20)
sEp, sXPo = kv0, kv1

A = Asm()
tail = []
nst = [0]
def pstamp(k):
    if args.pro: A(f"s_memrealtime s[{72+2*k}:{73+2*k}]")
def stamp():
    if ST and not args.pro:
        k = nst[0]; nst[0] += 1
        assert k < 13
        if ONLY is None or k in ONLY: A(f"s_memrealtime s[{72+2*k}:{73+2*k}]")
ONLY = set(int(x) for x in args.only.split(',')) if args.only else None
def lg(n): return 0 if (ST and ONLY is None) else n
def exec_xa(): return [f"s_mov_b32 exec_lo, {MXA}", f"s_mov_b32 exec_hi, {MXA}"]

def check_text(regs):
    regs = list(regs); o = []
    if len(regs) == 1: cur = regs[0]
    else:
        take = regs[:3]; regs = regs[3:]
        o.append(f"v_max3_u32 {CK}, {take[0]}, {take[1]}, {take[2]}" if len(take) == 3 else f"v_max_u32 {CK}, {take[0]}, {take[1]}")
        while regs:
            take = regs[:2]; regs = regs[2:]
            o.append(f"v_max3_u32 {CK}, {CK}, {take[0]}, {take[1]}" if len(take) == 2 else f"v_max_u32 {CK}, {CK}, {take[0]}")
        cur = CK
    o.append(f"v_cmp_eq_u32 vcc, -1, {cur}")
    return o
def nvm(loads): return sum(1 for l in loads if l.startswith('buffer_'))
def timeout(again, ok): return f"s_sub_u32 {sTO}, {sTO}, 1\ns_cbranch_scc0 {again}\ns_mov_b32 {sTO}, 0\ns_waitcnt vmcnt(0) lgkmcnt(0)\ns_branch {ok}"

def poll(loads, regs, primed=False, extra_wait="", chk=None, site=''):
    lp = A.newlabel('L_poll'); to = A.newlabel('L_to'); ok = A.newlabel('L_ok')
    depth, gap = PD.get(site, (1, 0))
    ck = chk or check_text(regs)
    pre = []
    for d in range(depth - 1):
        pre += loads + ([f"s_sleep {gap}"] if gap else [])
    loop = [f"{lp}:"] + loads + [f"s_sub_u32 {sTO}, {sTO}, 1", f"s_cbranch_scc1 {to}", f"s_waitcnt vmcnt({(depth-1)*nvm(loads)}){extra_wait}"] + ck + [f"s_cbranch_vccnz {lp}"]
    tmo = f"{to}:\ns_mov_b32 {sTO}, 0\ns_waitcnt vmcnt(0) lgkmcnt(0)\ns_branch {ok}"
    if primed:
        st = A.newlabel('L_more')
        A(f"s_waitcnt vmcnt(0){extra_wait}")
        for l in ck: A(l)
        A(f"s_cbranch_vccnz {st}")
        A(f"{ok}:")
        tail.append(f"{st}:\n" + "\n".join(pre + loop) + f"\ns_branch {ok}\n" + tmo)
        return
    for l in pre + loop: A(l)
    A(f"{ok}:")
    tail.append(tmo)

def sm(d, av, br, idx): A(f"v_smfmac_f32_16x16x64_bf16 {v(d,4)}, {v(av,4)}, {a(br,8)}, {idx}")
def xa_loads(rr, voff, so, n, fl, short_last=False):
    o = exec_xa()
    for i in range(n):
        if short_last and i == n - 1: o.append("s_mov_b64 exec, 0x33")
        o.append(f"buffer_load_dwordx4 {v(XA+4*i,4)}, {voff}, {srd(rr)}, {so} offen offset:{64*i}{fl}")
    return o + ["s_mov_b64 exec, -1"]
def poll_proj(voff, so, n, wbase, short_last=False, extra=[]):
    loads = extra[:-1] + xa_loads(rWS, voff, so, n, ' sc1', short_last)
    lds = [l for l in loads if l.startswith('buffer_')]
    lp = A.newlabel('L_poll'); rt = A.newlabel('L_retry'); ok = A.newlabel('L_ok'); gen = A.newlabel('L_nan')
    depth, gap = PD.get('p', (1, 0))
    for d in range(depth):
        if d: A(f"s_sleep {gap}")
        for l in loads: A(l)
    A(f"{lp}:")
    A(f"s_waitcnt vmcnt({(depth-1)*n})")
    for i in range(n): sm(D0, XA+4*i, wbase+8*i, vIdxD)
    for l in loads: A(l)
    A(f"v_cmp_u_f32 vcc, {v(D0)}, {v(D0+1)}")
    A(f"s_cbranch_vccnz {rt}")
    A(f"{ok}:")
    z = "\n".join(f"v_mov_b32 {v(D0+i)}, 0" for i in range(4))
    mm = "\n".join(f"v_smfmac_f32_16x16x64_bf16 {v(D0,4)}, {v(XA+4*i,4)}, {a(wbase+8*i,8)}, {vIdxD}" for i in range(n))
    if args.zs: z += f"\ns_sleep {args.zs}"
    tail.append(f"{rt}:\n{z}\ns_sub_u32 {sTO}, {sTO}, 1\ns_cbranch_scc1 {gen}\ns_and_b32 {t5}, {sTO}, 15\ns_cbranch_scc1 {lp}\n" +
                "\n".join(check_text([v(XA+i) for i in range(4*n)])) + f"\ns_cbranch_vccnz {lp}\n{gen}:\ns_max_i32 {sTO}, {sTO}, 0\n{mm}\ns_nop 7\ns_branch {ok}")

def pub(*fmts):
    for f in fmts: A(f.format(so=sGf, fl=''))
    sl = A.newlabel('L_slow'); bk = A.newlabel('L_back')
    A(f"s_cmp_lg_u32 {sMode}, 0")
    A(f"s_cbranch_scc1 {sl}")
    A(f"{bk}:")
    tail.append(f"{sl}:\n" + "\n".join(f.format(so=sGp, fl=' sc1') for f in fmts) + f"\ns_nop 1\ns_branch {bk}")

def rbf(dst, src):
    A(f"v_cvt_pk_bf16_f32 {dst}, {src}, {src}")
    A(f"v_and_b32 {dst}, 0xffff0000, {dst}")
def treduce(r):
    A(f"v_permlane32_swap_b32 {v(r)}, {v(r+2)}")
    A(f"v_permlane32_swap_b32 {v(r+1)}, {v(r+3)}")
    A(f"v_add_f32 {v(r)}, {v(r)}, {v(r+2)}")
    A(f"v_add_f32 {v(r+1)}, {v(r+1)}, {v(r+3)}")
    A(f"v_permlane16_swap_b32 {v(r)}, {v(r+1)}")
    A(f"v_add_f32 {v(r)}, {v(r)}, {v(r+1)}")
    A(f"v_add_f32_dpp {v(r)}, {v(r)}, {v(r)} row_ror:8 row_mask:0xf bank_mask:0xf")
S_, Q_ = v(TM), v(TM+1)
def stats_tail1():
    S, Q = S_, Q_
    A(f"v_permlane16_swap_b32 {S}, {Q}")
    A(f"v_add_f32 {S}, {S}, {Q}")
    for k in (8, 4, 2, 1):
        A(f"v_add_f32_dpp {S}, {S}, {S} row_ror:{k} row_mask:0xf bank_mask:0xf")
    A(f"v_mul_f32 {Q}, {f32(1/576)}, {S}")
    A(f"v_mul_f32 {S}, {f32(1/576)}, {S}")
def stats_tail2():
    S, Q = S_, Q_
    A(f"v_permlane16_swap_b32 {S}, {Q}")
    A(f"v_fma_f32 {Q}, -{S}, {S}, {Q}")
    A(f"v_max_f32 {Q}, 0, {Q}")
    A(f"v_cvt_pk_bf16_f32 {Q}, {S}, {Q}")
    A(f"v_lshlrev_b32 {S}, 16, {Q}")
    A(f"v_and_b32 {Q}, 0xffff0000, {Q}")
    A(f"v_add_f32 {Q}, {f32(1e-5)}, {Q}")
    rbf(Q, Q)
    A(f"v_sqrt_f32 {Q}, {Q}")
    rbf(Q, Q)
    A(f"v_rcp_f32 {Q}, {Q}")
def stats_x():
    A(f"v_mov_b32 {S_}, 0"); A(f"v_mov_b32 {Q_}, 0")
    for i in range(9):
        A(f"v_dot2c_f32_bf16 {S_}, {v(XS+i)}, {vOnes}")
        A(f"v_dot2c_f32_bf16 {Q_}, {v(XS+i)}, {v(XS+i)}")
    stats_tail1(); stats_tail2()
def zs_load(voff, so):
    return ["s_mov_b32 exec_lo, 0x3ffff", "s_mov_b32 exec_hi, 0x3ffff", f"buffer_load_dwordx2 {v(ZG,2)}, {voff}, {srd(rWS)}, {so} offen sc1", "s_mov_b64 exec, -1"]
def zero(r, n=4):
    for i in range(n): A(f"v_mov_b32 {v(r+i)}, 0")
def xs_loads(rr, so, fl):
    return [f"buffer_load_dwordx4 {v(XS,4)}, {vXS1}, {srd(rr)}, {so} offen{fl}",
            f"buffer_load_dwordx4 {v(XS+4,4)}, {vXS1}, {srd(rr)}, {so} offen offset:512{fl}",
            f"buffer_load_dword {v(XS+8)}, {vXS2}, {srd(rr)}, {so} offen offset:1024{fl}"]

A.raw(f"; @launch grid=(256,1,1) block=(256,1,1) lds={L_SIZE}")
A.raw('.amdgcn_target "amdgcn-amd-amdhsa--gfx950"')
A.raw(".text")
A.raw(f".globl {NAME}_kernel")
A.raw(".p2align 8")
A.raw(f".type {NAME}_kernel,@function")
A.raw(f"{NAME}_kernel:")
if ST:
    A("s_memrealtime s[100:101]")
    if args.pro:
        for k in range(1, 14): A(f"s_mov_b32 s{72+2*k}, 0")
for r, off in ((rWQ, 24), (rK, 8), (rWS, 96), (rX, 0), (rV, 16), (rWO, 32)):
    A(f"s_load_dwordx2 s[{r}:{r+1}], s[0:1], {off}")
if args.code >= 2:
    A(f"s_cmp_ge_u32 s2, {8*(args.code-1)}"); A("s_cbranch_scc1 L_nc")
    A("s_getpc_b64 s[66:67]")
    A("L_pc:")
    A(f"v_lshlrev_b32 {v(TM+8)}, 7, v0")
    A(f"v_min_u32 {v(TM+8)}, L_codeend-L_pc-4, {v(TM+8)}")
    A(f"global_load_dword {DUM}, {v(TM+8)}, s[66:67]")
    A("L_nc:")
A("s_cmp_ge_u32 s2, 256")
A("s_cbranch_scc1 L_end")
G, C, B2 = v(TM+3), v(TM+4), v(TM+5)
def size(r, n): A(f"s_mov_b32 s{r+2}, {n}"); A(f"s_mov_b32 s{r+3}, 0x20000")
A(f"v_readfirstlane_b32 {sW}, v0")
A(f"v_lshrrev_b32 {v(TM+6)}, 4, v0")
A(f"v_and_b32 {C}, 15, v0")
A(f"v_lshlrev_b32 {v(TM+6)}, 13, {v(TM+6)}")
A(f"v_lshl_add_u32 {v(TM+6)}, {C}, 4, {v(TM+6)}")
size(rWQ, 4718592)
A(f"s_and_b32 {sX}, s2, 7")
A(f"s_bfe_u32 {t2}, s2, 0x30003")
A(f"s_lshr_b32 {t3}, s2, 6"); A(f"s_lshl2_add_u32 {t0}, {sX}, {t3}"); A(f"s_lshl_b32 {t3}, {t0}, 8")
A(f"s_mul_i32 {sXoff}, {t2}, {72*8192}"); A(f"s_add_u32 {sXoff}, {sXoff}, {t3}")
A(f"s_lshl4_add_u32 m0, {sW}, {L_WQ}")
def setup_k():
    A(f"v_and_b32 v0, 63, v0")
    A(f"v_lshrrev_b32 {G}, 4, v0")
    A(f"s_and_b32 {t1}, {t0}, 1"); A(f"s_lshr_b32 {t0}, {t0}, 1")
    A(f"s_lshl4_add_u32 {kv0}, {t1}, {t0}"); A(f"s_lshl_b32 {kv0}, {kv0}, 5"); A(f"s_add_u32 {kv0}, {kv0}, {t2}"); A(f"s_lshl_b32 {kv0}, {kv0}, 8")
    A(f"s_add_u32 {kv0}, {kv0}, {sW}"); A(f"s_lshl_b32 {kv0}, {kv0}, 7"); A(f"s_add_u32 {kv0}, {kv0}, {3072*256}"); A(f"s_add_u32 {kv1}, {kv0}, 4096")
    size(rK, 33554432)
    A(f"v_xor_b32 {v(TM+7)}, {C}, {G}")
    A(f"v_lshlrev_b32 {v(TM+7)}, 4, {v(TM+7)}")
    A(f"v_lshl_add_u32 {v(KA)}, {G}, 8, {v(TM+7)}")
    for i in range(1, 4): A(f"v_xor_b32 {v(KA+i)}, {64*i}, {v(KA)}")
    A(f"s_lshr_b32 {sW}, {sW}, 6")
def setup_ws():
    size(rWS, 268435456); size(rX, 2304)
    A(f"s_lshr_b32 {sJ}, s2, 3")
    A(f"v_lshlrev_b32 {vL16}, 4, v0")
    for i in range(4): A(f"v_mov_b32 {v(EM+i)}, -1")
    A(f"s_mul_i32 {sGf}, {sX}, {GB}")
    A(f"s_lshl2_add_u32 {sL}, {sJ}, {sW}")
def setup_rest():
    size(rWO, 4718592)
    A("s_mov_b32 s68, 0x00ff00ff"); A("s_mov_b32 s69, 0x00ff00ff")
    A(f"v_lshlrev_b32 {vL128}, 7, v0")
    A(f"v_bfe_u32 {B2}, v0, 2, 1")
    A(f"v_mul_u32_u24 {vXAm}, 1152, {B2}")
    A(f"v_lshl_add_u32 {vXAm}, {G}, 4, {vXAm}")
    A(f"s_mul_i32 {t4}, {t2}, 144")
    A(f"v_add_u32 {vXAq}, {t4}, {vXAm}")
    for i in range(12): A(f"v_mov_b32 {v(XA+i)}, 0x3f803f80")
    A(f"s_lshl_b32 {t4}, {sL}, 9"); A(f"s_add_u32 {t4}, {t4}, {QP_O}")
    A(f"v_add_u32 {vQPst}, {t4}, {vL16}")
def constants():
    A(f"v_mul_u32_u24 {vWrow}, 1152, {G}")
    A(f"v_lshl_add_u32 {vWrow}, {C}, 4, {vWrow}")
    A(f"s_cmp_lt_u32 {sJ}, 18"); A(f"s_cselect_b32 {sRole}, 1, 0")
    A(f"s_cmp_ge_u32 {sJ}, 20"); A(f"s_cselect_b32 {t4}, 2, 0"); A(f"s_cmp_lt_u32 {sW}, 3"); A(f"s_cselect_b32 {t4}, {t4}, 0"); A(f"s_or_b32 {sRole}, {sRole}, {t4}")
    A(f"s_sub_u32 {sTask}, {sJ}, 20"); A(f"s_mul_i32 {sTask}, {sTask}, 3"); A(f"s_add_u32 {sTask}, {sTask}, {sW}"); A(f"s_min_u32 {sTask}, {sTask}, 35")
    A(f"s_lshl_b32 {t3}, {sX}, 4"); A(f"s_and_b32 {t4}, {sJ}, 15"); A(f"s_add_u32 {sWo}, {t3}, {t4}"); A(f"s_mul_i32 {sWo}, {sWo}, {32*1152}")
    A(f"s_lshl_b32 {t4}, {sW}, 8"); A(f"s_add_u32 {sWo}, {sWo}, {t4}")
    for r, n in ((rW1, 5308416), (rW2, 5308416), (rOUT, 2304), (rT1, 9216), (rT2, 1152)):
        A(f"s_mov_b32 s{r+2}, {n}"); A(f"s_mov_b32 s{r+3}, 0x20000")
    A("s_mov_b32 s70, 0xffff0000"); A("s_mov_b32 s71, 0xffff0000")
    A(f"v_lshlrev_b32 {vL4}, 2, v0")
    for i in range(12, 24): A(f"v_mov_b32 {v(XA+i)}, 0x3f803f80")
    A(f"s_lshl_b32 {t4}, {sW}, 13"); A(f"s_add_u32 {t4}, {t4}, {L_K}")
    A(f"v_lshl_add_u32 {v(KR)}, {C}, 8, {v(TM+7)}"); A(f"v_add_u32 {v(KR)}, {t4}, {v(KR)}")
    for i in range(1, 4): A(f"v_xor_b32 {v(KR+i)}, {64*i}, {v(KR)}")
    T_ = [v(TM+8+i) for i in range(10)]
    A(f"v_and_b32 {T_[0]}, 1, v0")
    A(f"v_mul_u32_u24 {vIdxP}, 0xaaaa, {T_[0]}"); A(f"v_add_u32 {vIdxP}, 0x4444, {vIdxP}")
    A(f"v_and_b32 {T_[1]}, 3, v0")
    A(f"v_mul_u32_u24 {vIdxS}, 0x5555, {T_[1]}")
    A(f"v_bfe_u32 {T_[2]}, v0, 4, 1")
    A(f"v_bfe_u32 {T_[3]}, v0, 2, 2")
    A(f"v_bfe_u32 {T_[4]}, v0, 3, 1")
    A(f"v_lshrrev_b32 {T_[5]}, 5, v0")
    A(f"v_and_b32 {T_[8]}, 7, v0")
    A(f"v_and_b32 {T_[9]}, 31, v0")
    A(f"s_lshr_b32 {t3}, {sJ}, 4")
    A(f"s_lshr_b32 {t5}, {sJ}, 3")
    A(f"s_lshl_b32 {t3}, {t3}, 1"); A(f"s_lshr_b32 {t4}, {sW}, 1"); A(f"s_add_u32 {t3}, {t3}, {t4}"); A(f"s_lshl_b32 {t3}, {t3}, 14")
    A(f"s_and_b32 {t4}, {sW}, 1"); A(f"s_lshl_b32 {t4}, {t4}, 10"); A(f"s_add_u32 {t3}, {t3}, {t4}")
    A(f"s_lshl_b32 {t4}, {t1}, 8"); A(f"s_add_u32 {t3}, {t3}, {t4}"); A(f"s_add_u32 {t3}, {t3}, {QP_O}")
    A(f"v_lshl_add_u32 {vQPg}, {T_[5]}, 4, {T_[2]}"); A(f"v_lshlrev_b32 {vQPg}, 9, {vQPg}"); A(f"v_lshl_add_u32 {vQPg}, {C}, 4, {vQPg}"); A(f"v_add_u32 {vQPg}, {t3}, {vQPg}")
    A(f"v_add_u32 {vQPg2}, 4096, {vQPg}")
    A(f"s_and_b32 {t3}, {sW}, 1"); A(f"s_lshl_b32 {t3}, {t3}, 8"); A(f"s_lshr_b32 {t4}, {sW}, 1"); A(f"s_lshl_b32 {t4}, {t4}, 7"); A(f"s_add_u32 {t3}, {t3}, {t4}")
    A(f"v_bfe_u32 {T_[6]}, v0, 3, 2"); A(f"v_bfe_u32 {T_[7]}, v0, 1, 2")
    A(f"v_lshlrev_b32 {vQTw}, 5, {T_[6]}"); A(f"v_lshl_add_u32 {vQTw}, {T_[0]}, 4, {vQTw}"); A(f"v_lshl_add_u32 {vQTw}, {T_[7]}, 2, {vQTw}")
    A(f"v_lshl_add_u32 {vQTw}, {T_[5]}, 1, {vQTw}"); A(f"v_add_u32 {vQTw}, {t3}, {vQTw}")
    A(f"v_lshlrev_b32 {vQTr}, 5, {G}"); A(f"v_lshl_add_u32 {vQTr}, {T_[4]}, 7, {vQTr}"); A(f"v_lshl_add_u32 {vQTr}, {T_[0]}, 4, {vQTr}")
    A(f"v_mul_u32_u24 {vOTr}, 640, {T_[4]}"); A(f"v_lshl_add_u32 {vOTr}, {G}, 5, {vOTr}"); A(f"v_lshl_add_u32 {vOTr}, {B2}, 4, {vOTr}")
    A(f"s_mul_i32 {t3}, {sW}, 1280"); A(f"s_add_u32 {t3}, {t3}, {L_PT}")
    A(f"v_add_u32 {vPTr}, {t3}, {vOTr}"); A(f"v_add_u32 {vOTr}, {L_OT}, {vOTr}")
    A(f"v_bfe_u32 {T_[6]}, v0, 1, 4")
    A(f"v_mul_u32_u24 {vPTw}, 640, {T_[5]}"); A(f"v_lshl_add_u32 {vPTw}, {T_[6]}, 5, {vPTw}"); A(f"v_lshl_add_u32 {vPTw}, {T_[0]}, 3, {vPTw}"); A(f"v_add_u32 {vPTw}, {t3}, {vPTw}")
    A(f"v_lshrrev_b32 {vHPr}, 1, v0"); A(f"v_lshlrev_b32 {vHPr}, 4, {vHPr}"); A(f"v_lshl_add_u32 {vHPr}, {T_[0]}, 2, {vHPr}"); A(f"v_add_u32 {vHPr}, {L_HP}, {vHPr}")
    A(f"s_lshl_b32 {t3}, {sW}, 9"); A(f"s_add_u32 {t3}, {t3}, {L_HP}"); A(f"v_add_u32 {vHPw}, {t3}, {vL16}")
    A(f"s_lshl_b32 {t3}, {t5}, 9"); A(f"s_add_u32 {t3}, {t3}, {ST_O}")
    A(f"s_lshl_b32 {t4}, {t2}, 2"); A(f"s_add_u32 {t4}, {t4}, {sW}"); A(f"s_lshl_b32 {t4}, {t4}, 2"); A(f"s_add_u32 {t4}, {t4}, {t3}")
    A(f"v_lshlrev_b32 {vSTst}, 8, {T_[5]}"); A(f"v_lshl_add_u32 {vSTst}, {T_[0]}, 7, {vSTst}"); A(f"v_add_u32 {vSTst}, {t4}, {vSTst}")
    A(f"s_lshl_b32 {t3}, {t1}, 1"); A(f"s_lshr_b32 {t4}, {sW}, 1"); A(f"s_add_u32 {t3}, {t3}, {t4}"); A(f"s_lshl_b32 {t3}, {t3}, 9"); A(f"s_add_u32 {t3}, {t3}, {ST_O}")
    A(f"s_lshr_b32 {t4}, {t2}, 2"); A(f"s_lshl_b32 {t4}, {t4}, 8"); A(f"s_add_u32 {t3}, {t3}, {t4}")
    A(f"v_lshrrev_b32 {T_[7]}, 3, v0")
    A(f"v_lshl_add_u32 {vSTg}, {T_[7]}, 4, {t3}")
    A(f"s_and_b32 {t4}, {sW}, 1"); A(f"s_lshl_b32 {t4}, {t4}, 3"); A(f"v_add_u32 {vSTm}, {t4}, {vSTg}")
    A(f"s_lshr_b32 {t3}, {sJ}, 4"); A(f"s_lshl_b32 {t3}, {t3}, 15"); A(f"s_lshl_b32 {t4}, {t1}, 11"); A(f"s_add_u32 {t3}, {t3}, {t4}")
    A(f"s_lshl_b32 {t4}, {sW}, 9"); A(f"s_add_u32 {t3}, {t3}, {t4}"); A(f"s_lshl_b32 {t4}, {t2}, 6"); A(f"s_add_u32 {t3}, {t3}, {t4}")
    A(f"v_lshlrev_b32 {T_[6]}, 4, {T_[1]}"); A(f"v_lshl_add_u32 {T_[6]}, {T_[2]}, 3, {T_[6]}")
    A(f"v_lshl_add_u32 {vOPst}, {T_[5]}, 2, {T_[3]}"); A(f"v_lshl_add_u32 {vOPst}, {vOPst}, 12, {T_[6]}"); A(f"v_add_u32 {vOPst}, {t3}, {vOPst}")
    A(f"s_and_b32 {t3}, {sJ}, 15"); A(f"s_lshl_b32 {t3}, {t3}, 12"); A(f"s_lshl_b32 {t4}, {sW}, 10"); A(f"s_add_u32 {t3}, {t3}, {t4}"); A(f"v_lshl_add_u32 {vOPg}, v0, 3, {t3}")
    A(f"s_lshr_b32 {t3}, {sW}, 1"); A(f"s_mul_i32 {t3}, {t3}, 640"); A(f"s_and_b32 {t4}, {sW}, 1"); A(f"s_lshl_b32 {t4}, {t4}, 1"); A(f"s_add_u32 {t3}, {t3}, {t4}"); A(f"s_add_u32 {t3}, {t3}, {L_OT}")
    A(f"v_mul_u32_u24 {vOTw}, 20, {T_[4]}"); A(f"v_lshl_add_u32 {vOTw}, {T_[8]}, 6, {vOTw}"); A(f"v_lshl_add_u32 {vOTw}, {T_[5]}, 5, {vOTw}")
    A(f"v_lshl_add_u32 {vOTw}, {T_[2]}, 3, {vOTw}"); A(f"v_add_u32 {vOTw}, {t3}, {vOTw}")
    A(f"s_mul_i32 {t3}, {sW}, {4*1152}"); A(f"s_lshl_b32 {t4}, {sJ}, 6"); A(f"s_add_u32 {t3}, {t3}, {t4}"); A(f"s_add_u32 {t3}, {t3}, {Y_O}")
    A(f"v_mul_u32_u24 {vMst}, 18, {T_[5]}"); A(f"v_add_u32 {vMst}, {vMst}, {T_[3]}"); A(f"v_mul_u32_u24 {vMst}, 1152, {vMst}")
    A(f"v_add3_u32 {vMst}, {vMst}, {T_[6]}, {t3}")
    A(f"v_subrev_u32 {vYst}, 1024, {vMst}")
    A(f"v_lshlrev_b32 {vZSg}, 3, v0")
    A(f"s_lshl_b32 {t3}, {t1}, 8"); A(f"s_add_u32 {t3}, {t3}, {ZS_O+512}"); A(f"v_lshl_add_u32 {vSTATr}, {T_[9]}, 3, {t3}")
    zero(ZG, 2)
    A(f"v_mul_u32_u24 {vXS1}, 1152, {T_[5]}"); A(f"v_lshl_add_u32 {vXS2}, {T_[9]}, 2, {vXS1}"); A(f"v_lshl_add_u32 {vXS1}, {T_[9]}, 4, {vXS1}")
    A(f"s_mul_i32 {t4}, {sW}, 384"); A(f"v_add_u32 {vXAm}, {t4}, {vXAm}")
    A(f"s_mul_i32 {t4}, {sX}, 18"); A(f"s_add_u32 {t4}, {t4}, {sJ}"); A(f"s_lshl_b32 {t5}, {t4}, 6")
    A(f"v_lshl_add_u32 {vB1}, {T_[9]}, 1, {t5}")
    A(f"s_mul_i32 {t4}, {sTask}, 1152"); A(f"s_add_u32 {t4}, {t4}, {Y_O}"); A(f"v_lshl_add_u32 {vRg}, v0, 3, {t4}")
    A(f"s_sub_u32 {t4}, {sL}, 80"); A(f"s_and_b32 {t4}, {t4}, 63"); A(f"s_lshl_b32 {t4}, {t4}, 16")
    A(f"s_lshl_b32 {t5}, {sX}, 10"); A(f"s_add_u32 {t5}, {t5}, {t4}"); A(f"v_lshl_add_u32 {vXPg}, v0, 3, {t5}")
    A(f"s_lshl_b32 {t5}, {sX}, 7"); A(f"s_add_u32 {t4}, {t4}, {t5}"); A(f"v_lshl_add_u32 {vXPst}, {T_[8]}, 4, {t4}")
    A(f"v_lshrrev_b32 {T_[7]}, 3, v0"); A(f"v_lshl_add_u32 {vXPst}, {T_[7]}, 10, {vXPst}")
    A(f"v_lshl_add_u32 {T_[7]}, {C}, 1, {T_[5]}")
    A(f"s_lshl_b32 {t4}, {sTask}, 6"); A(f"v_lshl_add_u32 {vZo}, {T_[7]}, 1, {t4}")
    A(f"v_add_u32 {vZst}, {Z1_O}, {vZo}")
    A(f"s_and_b32 {t5}, {sTask}, 7"); A(f"s_cmp_eq_u32 {t5}, {sX}"); A(f"s_cselect_b32 {t5}, 4, 0"); A(f"s_or_b32 {sRole}, {sRole}, {t5}")
    A(f"s_cmp_ge_u32 {sTask}, 18"); A(f"s_cselect_b32 {t5}, 1152, 0")
    A(f"v_subrev_u32 {vB2}, {t5}, {vZo}")
    A(f"s_cselect_b32 {t5}, {256-18*8}, 0"); A(f"s_lshl_b32 {t4}, {sTask}, 3"); A(f"s_add_u32 {t4}, {t4}, {t5}"); A(f"s_add_u32 {t4}, {t4}, {ZS_O}")
    A(f"v_lshl_add_u32 {vZSst}, {T_[2]}, 2, {t4}")

def constants1():
    A(f"v_and_b32 {v(TM+8)}, 1, v0")
    A(f"v_mul_u32_u24 {vIdxD}, 0x5555, {v(TM+8)}"); A(f"v_add_u32 {vIdxD}, 0x8888, {vIdxD}")
    A(f"v_mov_b32 {vOnes}, 0x3f803f80")
    A(f"s_lshl_b32 {t3}, {sW}, 6"); A(f"s_add_u32 {t3}, {t3}, {L_WQ}")
    A(f"v_lshlrev_b32 {vCq}, 10, {G}"); A(f"v_lshl_add_u32 {vCq}, {C}, 2, {vCq}"); A(f"v_add_u32 {vCq}, {t3}, {vCq}")
    for i in range(16, 24): A(f"v_accvgpr_write_b32 {a(aWQ+i)}, 0")
    zero(D0, 8)
    A(f"v_mul_u32_u24 {vLXr}, 144, {B2}"); A(f"v_lshl_add_u32 {vLXr}, {G}, 4, {vLXr}")
    A(f"s_lshl_b32 {t3}, {sW}, 11"); A(f"v_add_u32 {v(TM+8)}, {t3}, {vL16}")
    A(f"ds_write_b128 {v(TM+8)}, {v(D1,4)} offset:1024"); A(f"ds_write_b128 {v(TM+8)}, {v(D1,4)} offset:2048")
    A(f"s_mov_b32 {sTO}, 0x40000"); A(f"s_mov_b32 {sMode}, 0"); A(f"s_mov_b32 {sGp}, {sGf}")
def ln0(n_after):
    A(f"s_cmp_lg_u32 {sW}, 3")
    A("s_cbranch_scc1 L_c1")
    A(f"s_waitcnt vmcnt({n_after})")
    stats_x()
    for i in range(2):
        lo, hi = v(TM+8), v(TM+9)
        A(f"v_lshlrev_b32 {lo}, 16, {v(XG+i)}"); A(f"v_and_b32 {hi}, 0xffff0000, {v(XG+i)}")
        A(f"v_sub_f32 {lo}, {lo}, {S_}"); A(f"v_sub_f32 {hi}, {hi}, {S_}")
        A(f"v_cvt_pk_bf16_f32 {v(XG+i)}, {lo}, {hi}")
        A(f"v_lshlrev_b32 {lo}, 16, {v(XG+i)}"); A(f"v_and_b32 {hi}, 0xffff0000, {v(XG+i)}")
        A(f"v_mul_f32 {lo}, {lo}, {Q_}"); A(f"v_mul_f32 {hi}, {hi}, {Q_}")
        A(f"v_cvt_pk_bf16_f32 {v(XG+i)}, {lo}, {hi}")
    A(f"v_lshrrev_b32 {v(TM+8)}, 5, v0"); A(f"v_mul_u32_u24 {v(TM+8)}, 144, {v(TM+8)}"); A(f"v_and_b32 {v(TM+9)}, 31, v0"); A(f"v_lshl_add_u32 {v(TM+8)}, {v(TM+9)}, 3, {v(TM+8)}")
    A("s_mov_b32 exec_lo, 0x3ffff"); A("s_mov_b32 exec_hi, 0x3ffff")
    A(f"ds_write_b64 {v(TM+8)}, {v(XG,2)} offset:{L_X}")
    A("s_mov_b64 exec, -1")
    A("L_c1:")

fl_load = ["s_mov_b32 exec_hi, 0", f"buffer_load_dwordx4 {v(FG,4)}, {vL16}, {srd(rWS)}, {sXoff} offen sc1", "s_mov_b32 exec_hi, -1"]
qp_store = f"buffer_store_dwordx4 {v(D0,4)}, {vQPst}, {srd(rWS)}, {{so}} offen{{fl}}"
def qg(n): return [f"buffer_load_dwordx{n} {v(QG+4*p,n)}, {vQPg if p < 2 else vQPg2}, {srd(rWS)}, {sGp} offen offset:{2048*(p%2)} sc1" for p in range(4)]
qg4, qg2 = qg(4), qg(2)
def empty_share(base, fl):
    A(f"s_mul_i32 {t5}, {sL}, {CLR}"); A(f"s_add_u32 {t5}, {t5}, {base}")
    A(f"s_mov_b32 exec_hi, {(1 << (CLR//16-32)) - 1}")
    A(f"buffer_store_dwordx4 {v(EM,4)}, {vL16}, {srd(rWS)}, {t5} offen{fl}")
    A("s_mov_b32 exec_hi, -1")
def small_loads():
    A(f"s_mov_b32 {t5}, {EP_O}")
    A(f"buffer_load_dword {FN}, off, {srd(rWS)}, {t5}{NT}")
    A(f"s_cmp_lg_u32 {sW}, 3")
    A("s_cbranch_scc1 L_pro2")
    A(f"v_lshrrev_b32 {v(TM+8)}, 5, v0"); A(f"v_and_b32 {v(TM+9)}, 31, v0")
    A(f"v_mul_u32_u24 {vXS1}, 1152, {v(TM+8)}"); A(f"v_lshl_add_u32 {vXS2}, {v(TM+9)}, 2, {vXS1}"); A(f"v_lshl_add_u32 {v(TM+10)}, {v(TM+9)}, 3, {vXS1}"); A(f"v_lshl_add_u32 {vXS1}, {v(TM+9)}, 4, {vXS1}")
    for l in xs_loads(rX, 0, NT): A(l)
    A(f"s_mul_i32 {t5}, {t2}, 144")
    A(f"buffer_load_dwordx2 {v(XG,2)}, {v(TM+10)}, {srd(rX)}, {t5} offen{NT}")
    A("L_pro2:")
def code_prefetch():
    A(f"s_cmp_ge_u32 s2, 8"); A("s_cbranch_scc1 L_nc")
    A("s_getpc_b64 s[66:67]")
    A("L_pc:")
    A(f"v_lshl_add_u32 {v(TM+8)}, {sW}, 6, v0"); A(f"v_lshlrev_b32 {v(TM+8)}, 7, {v(TM+8)}")
    A(f"v_min_u32 {v(TM+8)}, L_codeend-L_pc-4, {v(TM+8)}")
    A(f"global_load_dword {DUM}, {v(TM+8)}, s[66:67]")
    A("L_nc:")
if args.hw >= 2: setup_k()
if args.code == 1: code_prefetch()
if args.hw >= 3: setup_ws()
A("s_waitcnt lgkmcnt(0)")
pstamp(0)
if args.xf: small_loads()
for n in range(4):
    A(f"buffer_load_dwordx4 {v(TM+6)}, {srd(rWQ)}, {sXoff} offen{NTQ} lds")
    A("s_add_u32 m0, m0, 4096"); A(f"s_add_u32 {sXoff}, {sXoff}, {16*8192}")
if args.hw < 2: setup_k()
A(f"s_cmp_ge_u32 {sW}, 2"); A("s_cbranch_scc1 L_pro1")
A(f"buffer_load_dwordx4 {v(TM+6)}, {srd(rWQ)}, {sXoff} offen{NTQ} lds")
A("L_pro1:")
if args.hw < 3: setup_ws()
if not args.xf: small_loads()
empty_share(sGf, '')
A(f"s_lshl_b32 {t4}, {sW}, 13"); A(f"s_add_u32 m0, {t4}, {L_K}")
for i in range(8):
    if i == 4: A(f"s_add_u32 m0, m0, 4096")
    A(f"buffer_load_dwordx4 {v(KA+i%4)}, {srd(rK)}, {kv0 if i < 4 else kv1} offen offset:{1024*(i%4)}{NTK} lds")
cnt = [8]
mark = {'K': 8}
def vm(s): A(s); cnt[0] += 1
size(rV, 33554432)
def hookS():
    setup_rest()
    if ST and not args.pro:
        for k in range(14): A(f"s_mov_b64 s[{72+2*k}:{73+2*k}], 0")
    pstamp(3)
    for r, off in ((rW1, 48), (rW2, 64), (rOUT, 80), (rT1, 56), (rT2, 72)):
        A(f"s_load_dwordx2 s[{r}:{r+1}], s[0:1], {off}")
    constants1()
    if args.lnf == 2: ln0(1 + cnt[0] + (4 if args.xf else 0))
    A(f"s_lshl_b32 {t4}, {sL}, 9"); A(f"s_add_u32 {t4}, {t4}, {sGf}"); A(f"s_add_u32 {t4}, {t4}, {QP_O}")
    A(f"s_add_u32 {sXoff}, {sGf}, {FF_O}")
    A("s_mov_b64 exec, 15")
    vm(f"buffer_load_dword {DUM}, {vL128}, {srd(rWS)}, {t4} offen sc1{NT}")
    vm(f"buffer_load_dword {DUM}, {vL128}, {srd(rWS)}, {sXoff} offen sc1{NT}")
    A("s_mov_b64 exec, -1")
def hookQ():
    if not args.lnf: ln0(1 + cnt[0] + (4 if args.xf else 0))
    A(f"s_lshl_b32 {t4}, {sL}, 2"); A(f"s_add_u32 {t4}, {t4}, {sXoff}")
    A(f"s_getreg_b32 {t3}, hwreg(HW_REG_XCC_ID)"); A(f"s_lshl_b32 {t3}, {t3}, 28"); A(f"s_or_b32 {t3}, {t3}, 1")
    A(f"s_waitcnt vmcnt({cnt[0]}) lgkmcnt(0)")
    A("s_barrier")
    pstamp(2)
    for l in exec_xa(): A(l)
    for i in range(3):
        if i == 2: A("s_mov_b64 exec, 0x33")
        A(f"ds_read_b128 {v(XA+4*i,4)}, {vLXr} offset:{L_X+64*i}")
    A("s_mov_b64 exec, -1")
    for i in range(2):
        for vv in range(0, 8, 2):
            row = 32*i + 16*(vv >> 2) + (vv & 3)
            A(f"ds_read2st64_b32 {a(aWQ+8*i+vv,2)}, {vCq} offset0:{row} offset1:{row+1}")
    A("s_mov_b32 exec_hi, 0")
    for vv in (0, 2): A(f"ds_read2st64_b32 {a(aWQ+16+vv,2)}, {vCq} offset0:{64+vv} offset1:{65+vv}")
    A("s_mov_b32 exec_hi, -1")
    A(f"v_readfirstlane_b32 {sFlag}, {FN}")
    A(f"s_add_u32 {sFlag}, {sFlag}, 0x0e377902"); A(f"s_and_b32 {sFlag}, {sFlag}, 0x0fffffff"); A(f"s_or_b32 {sFlag}, {sFlag}, {t3}")
    A(f"v_mov_b32 {FN}, {sFlag}")
    A("s_mov_b64 exec, 1")
    vm(f"buffer_store_dword {FN}, {vL16}, {srd(rWS)}, {t4} offen")
    A("s_mov_b64 exec, -1")
    A(f"v_and_b32 {vTag}, 0xff, {FN}"); A(f"s_movk_i32 {t4}, 0xff")
    A("s_waitcnt lgkmcnt(0)")
    for i in range(3): sm(D0, XA+4*i, aWQ+8*i, vIdxD)
    for i in range(4): A(f"v_bfi_b32 {v(D0+i)}, {t4}, {vTag}, {v(D0+i)}")
    A("s_mov_b32 exec_hi, 0")
    vm(qp_store.format(so=sGf, fl=''))
    A("s_mov_b32 exec_hi, -1")
    pstamp(1)
for k in range(9):
    if k == args.pS: hookS()
    if k == args.pC:
        if args.lnf == 1: ln0(1 + cnt[0] + (4 if args.xf else 0))
        constants()
    if k == args.pQ: hookQ()
    if k == 8 - args.vw: mark['V'] = cnt[0]
    if k < 8: vm(f"buffer_load_dwordx4 {a(aV+4*k,4)}, {vL16}, {srd(rV)}, {kv0 if k < 4 else kv1} offen offset:{1024*(k%4)}{NTV}")
    if k == 7: pstamp(9)
TT = v(TM+4)
def slots_touch():
    A(f"s_lshl_b32 {t1}, {sJ}, 2"); A(f"s_add_u32 {t1}, {t1}, {sW}")
    A(f"s_mul_i32 {t3}, {t1}, 896"); A(f"s_add_u32 {t3}, {t3}, {sGf}"); A(f"s_add_u32 {t3}, {t3}, {Y_O}")
    A("s_mov_b64 exec, 0x7f")
    A(f"buffer_load_dword {DUM}, {vL128}, {srd(rWS)}, {t3} offen sc1{NT}")
    A("s_mov_b64 exec, -1")
assert Y_O + 64 * 896 >= ZS_O + 1536
def w1_touch():
    A(f"s_lshl_b32 {t1}, {sJ}, 2"); A(f"s_add_u32 {t1}, {t1}, {sW}")
    A(f"s_mul_i32 {t4}, {sX}, 576"); A(f"s_add_u32 {t4}, {t4}, {t1}"); A(f"s_add_u32 {t4}, {t4}, 512"); A(f"s_mul_i32 {t4}, {t4}, 1152")
    A(f"s_mul_i32 {t1}, {t1}, {9*9216}")
    A(f"s_mul_i32 {t3}, {sX}, 1152"); A(f"s_add_u32 {t1}, {t1}, {t3}"); A(f"s_add_u32 {t3}, {t1}, {5*9216}")
    A(f"v_mul_u32_u24 {TT}, 57, v0"); A(f"v_lshrrev_b32 {TT}, 9, {TT}"); A(f"v_mul_u32_u24 {TT}, {9216-1152}, {TT}"); A(f"v_add_u32 {TT}, {TT}, {vL128}")
    A("s_mov_b32 exec_hi, 0x1fff")
    A(f"buffer_load_dword {DUM}, {TT}, {srd(rW1)}, {t1} offen{NTT}")
    A("s_mov_b32 exec_hi, 15")
    A(f"buffer_load_dword {DUM}, {TT}, {srd(rW1)}, {t3} offen{NTT}")
    A("s_mov_b64 exec, 0x1ff")
    A(f"buffer_load_dword {DUM}, {vL128}, {srd(rW2)}, {t4} offen{NTT}")
    A("s_mov_b64 exec, -1")
def w2_loads():
    l1 = A.newlabel('L_w2')
    A(f"s_mul_i32 {t0}, {sX}, 18"); A(f"s_add_u32 {t0}, {t0}, {sJ}"); A(f"s_mul_i32 {t0}, {t0}, {32*1152}")
    A(f"s_lshl_b32 {t1}, {sW}, 8"); A(f"s_add_u32 {t1}, {t1}, {t0}")
    for i in range(8):
        A(f"buffer_load_dwordx4 {a(aW2+4*i,4)}, {vWrow}, {srd(rW2)}, {t1} offen{NT2}")
        if i < 7: A(f"s_add_u32 {t1}, {t1}, 4608")
    A(f"s_cmp_lg_u32 {sW}, 3")
    A(f"s_cbranch_scc1 {l1}")
    A(f"s_mov_b64 exec, {mLO8}")
    for i in range(8):
        A(f"buffer_load_dwordx4 {a(aW2t+4*i,4)}, {vWrow}, {srd(rW2)}, {t0} offen offset:1024{NT2}")
        if i < 7: A(f"s_add_u32 {t0}, {t0}, 4608")
    A("s_mov_b64 exec, -1")
    A(f"{l1}:")
def wo_loads(k0, k1, with_tail):
    for k in range(k0, k1):
        A(f"buffer_load_dwordx4 {a(aWO+4*k,4)}, {vWrow}, {srd(rWO)}, {sWo} offen{NTO}")
        A(f"s_add_u32 {sWo}, {sWo}, 4608")
    if with_tail:
        l1 = A.newlabel('L_wt')
        A(f"s_cmp_lg_u32 {sW}, 3")
        A(f"s_cbranch_scc1 {l1}")
        A(f"s_mov_b64 exec, {mLO8}")
        for i in range(7, -1, -1):
            A(f"s_sub_u32 {sWo}, {sWo}, 4608")
            A(f"buffer_load_dwordx4 {a(aWOt+4*i,4)}, {vWrow}, {srd(rWO)}, {sWo} offen offset:256{NTO}")
        A("s_mov_b64 exec, -1")
        A(f"{l1}:")
if args.pC > 8: constants()
pstamp(4)
stamp()
A("s_waitcnt lgkmcnt(0)")
if args.kw: A(f"s_waitcnt vmcnt({cnt[0]-mark['K']})")
A(f"s_mov_b32 {sXPo}, {XP_O}")
A(f"s_cmp_lt_u32 {sJ}, 16")
A("s_cbranch_scc1 L_g1n")
A(f"v_readfirstlane_b32 {t4}, {vOPg}"); A(f"v_readfirstlane_b32 {t5}, {vSTg}")
A(f"s_add_u32 {t4}, {t4}, {sGf}"); A(f"s_add_u32 {t5}, {t5}, {sGf}")
A("s_mov_b64 exec, 0xff")
A(f"buffer_load_dword {DUM}, {vL128}, {srd(rWS)}, {t4} offen sc1{NT}")
A("s_mov_b64 exec, 3")
A(f"buffer_load_dword {DUM}, {vL128}, {srd(rWS)}, {t5} offen sc1{NT}")
A("s_mov_b64 exec, -1")
A(f"buffer_load_ushort {vXres}, {vZo}, {srd(rX)}, 0 offen{NT}")
A(f"buffer_load_ushort {vB2}, {vB2}, {srd(rT2)}, 0 offen{NT}")
wo_loads(0, 8, True)
A("s_branch L_g1o")
A("L_g1n:")
if 's' in args.early: slots_touch()
if '1' in args.early: w1_touch()
if '2' in args.early: w2_loads()
A("L_g1o:")
pstamp(6)
A("s_waitcnt vmcnt(8)")
for T in range(2):
    for q in range(4): A(f"ds_read_b128 {a(aK+16*T+4*q,4)}, {v(KR+q)} offset:{4096*T}")
A(f"s_waitcnt vmcnt({args.vw})")
if ST and not args.pro and ONLY is None: A(f"s_memrealtime s[74:75]")
pstamp(5)
def flags_diff():
    A(f"v_xor_b32 {CK}, {sFlag}, {v(FG)}")
    for i in range(1, 4): A(f"v_bitop3_b32 {CK}, {CK}, {v(FG+i)}, {sFlag} bitop3:0xf6")
st_rd = f"ds_read_b64 {v(TM,2)}, {vSTATr}"
A("L_g4:")
for l in fl_load + qg4: A(l)
A("s_waitcnt vmcnt(0)")
pstamp(7)
flags_diff()
A(f"v_cmp_ne_u32 vcc, 0, {CK}")
A("s_cmp_lg_u32 vcc_lo, 0")
if args.forcefb: A("s_cmp_eq_u32 0, 0")
A("s_cbranch_scc1 L_af2")
A(f"s_mov_b32 {sMode}, 0")
A("L_g2:")
for i in range(16): A(f"v_xor_b32 {v(QG+i)}, {vTag}, {v(QG+i)}")
A(f"v_or3_b32 {CK}, {v(QG)}, {v(QG+1)}, {v(QG+2)}")
for i in range(3, 15, 2): A(f"v_or3_b32 {CK}, {CK}, {v(QG+i)}, {v(QG+i+1)}")
A(f"v_or_b32 {CK}, {CK}, {v(QG+15)}")
A(f"v_and_b32 {CK}, 0xff, {CK}")
A(f"v_cmp_ne_u32 vcc, 0, {CK}")
A("s_cbranch_vccnz L_g5")
A("L_g3:")
A(f"s_mov_b32 {sL}, 0")
zero(D0)
A(f"v_mov_b32 {v(TM)}, 0"); A(f"v_mov_b32 {v(TM+1)}, 1.0")
tail.append("L_g5:\n" + timeout("L_g4", "L_g3"))
pstamp(8)
A(f"v_add_f32 {v(TM+2)}, {v(QG+2)}, {v(QG+6)}"); A(f"v_add_f32 {v(TM+3)}, {v(QG+3)}, {v(QG+7)}")
A(f"v_add_f32 {v(TM+4)}, {v(QG+10)}, {v(QG+14)}"); A(f"v_add_f32 {v(TM+5)}, {v(QG+11)}, {v(QG+15)}")
A(f"v_add_f32 {v(TM+2)}, {v(TM+2)}, {v(TM+4)}"); A(f"v_add_f32 {v(TM+3)}, {v(TM+3)}, {v(TM+5)}")
A(f"v_permlane32_swap_b32 {v(TM+2)}, {v(TM+3)}")
A(f"v_add_f32 {vCq}, {v(TM+2)}, {v(TM+3)}")
A("s_branch L_qfin")

A("L_layer:")
zero(D0, 8)
def quiet_wait(so_add):
    if not args.pre: return
    A(f"s_add_u32 {t5}, {sGp}, {so_add}")
    A("s_mov_b64 exec, 1")
    poll([f"buffer_load_dword {DUM}, {vL16}, {srd(rWS)}, {t5} offen sc1"] + ([f"s_sleep {args.pre-1}"] if args.pre > 1 else []), [DUM])
    A("s_mov_b64 exec, -1")
    if args.zd: A(f"s_sleep {args.zd}")
if args.pre:
    A(f"s_bitcmp1_b32 {sRole}, 1"); A("s_cbranch_scc1 L_q0")
    quiet_wait(AN_O)
    A("L_q0:")
def q_pub():
    A(f"v_and_b32 {v(D0)}, -2, {v(D0)}"); A(f"v_and_b32 {v(D0+1)}, -2, {v(D0+1)}")
    A("s_mov_b32 exec_hi, 0")
    pub(f"buffer_store_dwordx2 {v(D0,2)}, {vQPst}, {srd(rWS)}, {{so}} offen{{fl}}")
    A("s_mov_b32 exec_hi, -1")
poll_proj(vXAq, sXoff, 3, aWQ, True)
q_pub()
nst[0] = 1
stamp()
zero(D0)
qregs = [v(QG+4*p+i) for p in range(4) for i in range(2)]
qchk1 = [f"v_or3_b32 {CK}, {qregs[0]}, {qregs[1]}, {qregs[2]}", f"v_or3_b32 {CK}, {CK}, {qregs[3]}, {qregs[4]}", f"v_or3_b32 {CK}, {CK}, {qregs[5]}, {qregs[6]}",
         f"v_bitop3_b32 {CK}, {CK}, {qregs[7]}, 1 bitop3:0xa8", f"v_cmp_ne_u32 vcc, 0, {CK}"]
poll(zs_load(vSTATr, sGp), [v(ZG), v(ZG+1)])
for l in qg2: A(l)
A(f"v_mov_b32 {S_}, {v(ZG)}"); A(f"v_mov_b32 {Q_}, {v(ZG+1)}")
stats_tail1(); stats_tail2()
poll(qg2, qregs, primed=True, chk=qchk1, site='q')
A("L_qfin:")
stamp()
A(f"v_add_f32 {v(TM+2)}, {v(QG)}, {v(QG+4)}"); A(f"v_add_f32 {v(TM+3)}, {v(QG+1)}, {v(QG+5)}")
A(f"v_add_f32 {v(TM+4)}, {v(QG+8)}, {v(QG+12)}"); A(f"v_add_f32 {v(TM+5)}, {v(QG+9)}, {v(QG+13)}")
A(f"v_add_f32 {v(TM+2)}, {v(TM+2)}, {v(TM+4)}"); A(f"v_add_f32 {v(TM+3)}, {v(TM+3)}, {v(TM+5)}")
A(f"v_permlane32_swap_b32 {v(TM+2)}, {v(TM+3)}")
A(f"v_add_f32 {v(TM+2)}, {v(TM+2)}, {v(TM+3)}")
A(f"v_fma_f32 {v(TM+2)}, -{v(TM)}, {vCq}, {v(TM+2)}")
A(f"v_mul_f32 {v(TM+2)}, {v(TM+2)}, {v(TM+1)}")
A(f"v_cvt_pk_bf16_f32 {v(TM+2)}, {v(TM+2)}, {v(TM+2)}")
A(f"ds_write_b16 {vQTw}, {v(TM+2)} offset:{L_QT}")
A("s_mov_b32 vcc_lo, 0xaaaaaaaa"); A("s_mov_b32 vcc_hi, 0xaaaaaaaa")
zero(DP)
A("s_waitcnt lgkmcnt(0)")
A("s_barrier")
A(f"ds_read_b128 {v(AO,4)}, {vQTr} offset:{L_QT}")
A(f"ds_read_b128 {v(AO+4,4)}, {vQTr} offset:{L_QT+256}")
if args.mid:
    A(f"s_lshr_b32 {t0}, {sJ}, 4"); A(f"s_or_b32 {t0}, {t0}, {sL}")
    A("s_cbranch_scc1 L_mid")
    if 's' in args.mid: slots_touch()
    if '1' in args.mid: w1_touch()
    if '2' in args.mid: w2_loads()
    A("L_mid:")
A(f"s_waitcnt lgkmcnt({lg(1)})")
sm(D0, AO, aK, vIdxP); sm(D1, AO, aK+16, vIdxP)
A("s_waitcnt lgkmcnt(0)")
sm(D0, AO+4, aK+8, vIdxP); sm(D1, AO+4, aK+24, vIdxP)
SC, MX, P_, LS, TT = v(TM), v(TM+1), v(TM+2), v(TM+3), v(TM+4)
A(f"v_add_f32 {SC}, {v(D0)}, {v(D0+1)}")
A(f"v_add_f32 {TT}, {v(D1)}, {v(D1+1)}")
A(f"v_cndmask_b32 {SC}, {SC}, {TT}, {mROW}")
rbf(SC, SC)
A(f"v_mul_f32 {SC}, {f32(128 ** -0.5)}, {SC}")
rbf(SC, SC)
A(f"v_mul_f32 {SC}, {f32(1.4426950408889634)}, {SC}")
zero(D0, 2)
A(f"v_max_f32_dpp {MX}, {SC}, {SC} row_ror:8 row_mask:0xf bank_mask:0xf")
for n, k in enumerate((4, 2, 1)):
    zero(D0+2+2*n, 2)
    if k == 1: A(f"v_max_f32_dpp {TT}, {MX}, {MX} row_ror:{k} row_mask:0xf bank_mask:0xf")
    A(f"v_max_f32_dpp {MX}, {MX}, {MX} row_ror:{k} row_mask:0xf bank_mask:0xf")
A(f"v_permlane16_swap_b32 {MX}, {TT}")
A(f"v_max_f32 {MX}, {MX}, {TT}")
A(f"v_sub_f32 {P_}, {SC}, {MX}")
A(f"v_exp_f32 {P_}, {P_}")
A(f"v_cvt_pk_bf16_f32 {TT}, {P_}, 0")
A(f"ds_write2_b32 {vPTw}, {TT}, {TT} offset1:5")
for i in range(4): A(f"ds_read_b128 {v(AO+4*i,4)}, {vPTr} offset:{128*i}")
A(f"v_add_f32_dpp {LS}, {P_}, {P_} row_ror:8 row_mask:0xf bank_mask:0xf")
for k in (4, 2, 1): A(f"v_add_f32_dpp {LS}, {LS}, {LS} row_ror:{k} row_mask:0xf bank_mask:0xf")
A(f"v_mov_b32 {SC}, {LS}")
A(f"v_permlane16_swap_b32 {LS}, {SC}")
A(f"v_add_f32 {LS}, {LS}, {SC}")
A(f"v_cndmask_b32 {SC}, {MX}, {LS}, vcc")
A("s_mov_b32 exec_lo, 3"); A("s_mov_b32 exec_hi, 3")
pub(f"buffer_store_dword {SC}, {vSTst}, {srd(rWS)}, {{so}} offen{{fl}}")
A("s_mov_b64 exec, -1")
for i in range(4):
    A(f"s_waitcnt lgkmcnt({lg(3-i)})")
    sm(DP, AO+4*i, aV+8*i, vIdxS)
def pack4(d):
    A(f"v_cvt_pk_bf16_f32 {v(d)}, {v(d)}, {v(d+1)}"); A(f"v_cvt_pk_bf16_f32 {v(d+1)}, {v(d+2)}, {v(d+3)}")
pack4(DP)
pub(f"buffer_store_dwordx2 {v(DP,2)}, {vOPst}, {srd(rWS)}, {{so}} offen{{fl}}")
stamp()
E = TM + 5
R = TM + 12
def tile_out(wb, tb, vst, drain):
    l1 = A.newlabel('L_t'); l2 = A.newlabel('L_t')
    for i in range(4):
        A(f"s_waitcnt lgkmcnt({lg(3-i)})")
        sm(D0, AO+4*i, wb+8*i, vIdxS)
    A(f"s_cmp_lg_u32 {sW}, 3")
    A(f"s_cbranch_scc1 {l1}")
    for i in range(1 if 'notail' in args.exp else 4): sm(D1, AO+4*i, tb+8*i, vIdxS)
    A(f"{l1}:")
    A("s_waitcnt vmcnt(0)" if drain else "s_nop 0")
    A("s_nop 4")
    pack4(D0)
    pub(f"buffer_store_dwordx2 {v(D0,2)}, {vst}, {srd(rWS)}, {{so}} offen{{fl}}")
    A(f"s_cmp_lg_u32 {sW}, 3")
    A(f"s_cbranch_scc1 {l2}")
    pack4(D1)
    A(f"s_mov_b64 exec, {mLO8}")
    pub(f"buffer_store_dwordx2 {v(D1,2)}, {v(E+2)}, {srd(rWS)}, {{so}} offen{{fl}}")
    A("s_mov_b64 exec, -1")
    A(f"{l2}:")
A(f"s_cmp_lt_u32 {sJ}, 16")
A("s_cbranch_scc1 L_mlp")
op_load = [f"buffer_load_dwordx2 {v(OG+2*i,2)}, {vOPg}, {srd(rWS)}, {sGp} offen offset:{512*i} sc1" for i in range(2)]
A(f"v_add_u32 {v(E+6)}, {4*1152}, {vYst}")
if args.sd: A(f"s_sleep {args.sd}")
if 'nost' not in args.exp.split(','): poll([f"buffer_load_dwordx4 {v(SG,4)}, {vSTg}, {srd(rWS)}, {sGp} offen sc1",
      f"buffer_load_dwordx4 {v(SG+4,4)}, {vSTg}, {srd(rWS)}, {sGp} offen offset:128 sc1",
      f"buffer_load_dwordx2 {v(SG+8,2)}, {vSTm}, {srd(rWS)}, {sGp} offen sc1"], [v(SG+i) for i in range(10 if 's' in PD else 8)], site='s')
for l in op_load: A(l)
if 'noweights' in args.exp: A("s_branch L_exw")
A(f"v_max3_f32 {MX}, {v(SG)}, {v(SG+1)}, {v(SG+2)}")
A(f"v_max_f32 {MX}, {MX}, {v(SG+3)}")
A(f"v_max_f32_dpp {TT}, {MX}, {MX} row_ror:8 row_mask:0xf bank_mask:0xf")
A(f"v_max_f32_dpp {MX}, {MX}, {MX} row_ror:8 row_mask:0xf bank_mask:0xf")
A(f"v_permlane16_swap_b32 {MX}, {TT}"); A(f"v_max_f32 {SC}, {MX}, {TT}"); A(f"v_max_f32 {MX}, {MX}, {TT}")
A(f"v_permlane32_swap_b32 {MX}, {SC}"); A(f"v_max_f32 {MX}, {MX}, {SC}")
for n, i in enumerate((0, 1, 2, 3, 8, 9)): A(f"v_sub_f32 {v(E+n)}, {v(SG+i)}, {MX}")
for n in range(6): A(f"v_exp_f32 {v(E+n)}, {v(E+n)}")
A(f"v_mul_f32 {LS}, {v(E)}, {v(SG+4)}")
for i in (1, 2, 3): A(f"v_fmac_f32 {LS}, {v(E+i)}, {v(SG+4+i)}")
A(f"v_add_f32_dpp {TT}, {LS}, {LS} row_ror:8 row_mask:0xf bank_mask:0xf")
A(f"v_add_f32_dpp {LS}, {LS}, {LS} row_ror:8 row_mask:0xf bank_mask:0xf")
A(f"v_permlane16_swap_b32 {LS}, {TT}"); A(f"v_add_f32 {SC}, {LS}, {TT}"); A(f"v_add_f32 {LS}, {LS}, {TT}")
A("L_exw:")
poll(op_load, [v(OG+i) for i in range(4)], primed=True, site='o')
stamp()
A(f"v_permlane32_swap_b32 {LS}, {SC}")
def unpack2(dst, src):
    for i in range(2):
        A(f"v_lshlrev_b32 {v(dst+2*i)}, 16, {v(src+i)}"); A(f"v_and_b32 {v(dst+2*i+1)}, 0xffff0000, {v(src+i)}")
unpack2(R, OG); unpack2(OG+4, OG+2)
for i in (0, 2): A(f"v_pk_mul_f32 {v(R+i,2)}, {v(R+i,2)}, {v(E+3,2)} op_sel:[0,1] op_sel_hi:[1,1]")
for i in (0, 2): A(f"v_pk_fma_f32 {v(R+i,2)}, {v(OG+4+i,2)}, {v(E+5,2)}, {v(R+i,2)} op_sel_hi:[1,0,1]")
A(f"v_add_f32 {LS}, {LS}, {SC}")
A(f"v_mov_b32 {v(E+2)}, {v(E+6)}")
A(f"v_permlane32_swap_b32 {v(R)}, {v(R+2)}")
A(f"v_permlane32_swap_b32 {v(R+1)}, {v(R+3)}")
A(f"v_add_f32 {v(R)}, {v(R)}, {v(R+2)}")
A(f"v_add_f32 {v(R+1)}, {v(R+1)}, {v(R+3)}")
A(f"v_rcp_f32 {LS}, {LS}")
A(f"v_permlane16_swap_b32 {v(R)}, {v(R+1)}")
A(f"v_add_f32 {v(R)}, {v(R)}, {v(R+1)}")
A(f"v_add_f32_dpp {v(R)}, {v(R)}, {v(R)} row_ror:8 row_mask:0xf bank_mask:0xf")
A(f"v_mul_f32 {v(R)}, {v(R)}, {LS}")
A(f"v_cvt_pk_bf16_f32 {TT}, {v(R)}, {v(R)}")
A(f"ds_write_b16 {vOTw}, {TT}")
A(f"s_cmp_lg_u32 {sL}, 0")
A("s_cbranch_scc1 L_o3")
pub(*[f"buffer_store_dwordx2 {v(EM,2)}, {vOPg}, {srd(rWS)}, {{so}} offen offset:{512*i}{{fl}}" for i in range(2)])
A("L_o3:")
A("s_waitcnt lgkmcnt(0)")
A("s_barrier")
for i in range(4): A(f"ds_read_b128 {v(AO+4*i,4)}, {vOTr} offset:{128*i}")
tile_out(aWO, aWOt, vYst, True)
stamp()

def reducer(kind):
    ld = [f"buffer_load_dwordx2 {v(YG+2*i,2)}, {vRg}, {srd(rWS)}, {sGp} offen offset:{512*i} sc1" for i in range(2)]
    A(f"s_movk_i32 {t4}, 0xff"); A(f"s_add_u32 {t3}, {sXPo}, 8192")
    zero(R)
    if kind == 'A': zero(YG+4, 2)
    if kind == 'A':
        if args.yd: A(f"s_sleep {args.yd}")
        poll(ld, [v(YG+i) for i in range(4)], site='y')
    else:
        poll(ld + ["s_mov_b64 exec, 0xffff", f"buffer_load_dwordx2 {v(YG+4,2)}, {vRg}, {srd(rWS)}, {sGp} offen offset:1024 sc1", "s_mov_b64 exec, -1"],
             [v(YG+i) for i in range(6)], site='y')
    stamp()
    A(f"v_smfmac_f32_16x16x64_bf16 {v(R,4)}, {v(YG+8,4)}, {v(YG,8)}, {vIdxS}")
    for i in range(4): A(f"v_add_f32_dpp {v(R+i)}, {v(R+i)}, {v(R+i)} row_ror:8 row_mask:0xf bank_mask:0xf")
    for i in range(4): A(f"v_bfi_b32 {v(R+i)}, {t4}, {vTag}, {v(R+i)}")
    A(f"buffer_store_dwordx4 {v(R,4)}, {vXPst}, {srd(rWS)}, {sXPo} offen sc1")
    if args.near: A(f"buffer_store_dwordx4 {v(R,4)}, {vXPst}, {srd(rWS)}, {t3} offen sc1")
    if kind == 'M':
        A(f"s_lshl_b32 {t0}, {sL}, 2"); A(f"s_andn2_b32 {t0}, {t0}, {sRole}")
        A("s_cbranch_scc1 L_fin")
    cl = [f"buffer_store_dwordx2 {v(EM,2)}, {vRg}, {srd(rWS)}, {{so}} offen offset:{512*i}{{fl}}" for i in range(2)]
    if kind == 'M': cl += ["s_mov_b64 exec, 0xffff", f"buffer_store_dwordx2 {v(EM,2)}, {vRg}, {srd(rWS)}, {{so}} offen offset:1024{{fl}}", "s_mov_b64 exec, -1"]
    pub(*cl)
    if args.pre:
        lb = A.newlabel('L_an')
        A(f"s_cmp_lg_u32 {sTask}, 0"); A(f"s_cbranch_scc1 {lb}")
        if kind == 'A': A(f"s_cmp_eq_u32 {sL}, 0"); A(f"s_cbranch_scc1 {lb}")
        A(f"v_mov_b32 {TT}, {AN_O + (0 if kind == 'M' else 4)}")
        A("s_mov_b64 exec, 1")
        pub(f"buffer_store_dword {vL16}, {TT}, {srd(rWS)}, {{so}} offen{{fl}}")
        A("s_mov_b64 exec, -1")
        A(f"{lb}:")
    if args.near:
        A(f"v_mov_b32 {TT}, 0")
        A(f"ds_read_b32 {TT}, {TT} offset:{L_NEAR}")
    if args.xd: A(f"s_sleep {args.xd}")
    if args.near:
        A("s_waitcnt lgkmcnt(0)")
        A(f"v_or_b32 {vXPg}, {vXPg}, {TT}")
    poll([f"buffer_load_dwordx2 {v(XG,2)}, {vXPg}, {srd(rWS)}, {sXPo} offen sc1",
          f"buffer_load_dwordx2 {v(XG+2,2)}, {vXPg}, {srd(rWS)}, {sXPo} offen offset:512 sc1"], None, site='x',
         chk=[f"v_xor_b32 {v(R+i)}, {vTag}, {v(XG+i)}" for i in range(4)] +
             [f"v_or3_b32 {CK}, {v(R)}, {v(R+1)}, {v(R+2)}", f"v_bitop3_b32 {CK}, {CK}, {v(R+3)}, {t4} bitop3:0xa8", f"v_cmp_ne_u32 vcc, 0, {CK}"])
    stamp()
    Y = v(R)
    A(f"v_add_f32 {v(R)}, {v(R)}, {v(R+2)}"); A(f"v_add_f32 {v(R+1)}, {v(R+1)}, {v(R+3)}")
    A(f"v_permlane32_swap_b32 {v(R)}, {v(R+1)}")
    A(f"v_add_f32 {TT}, {v(R)}, {v(R+1)}"); A(f"v_add_f32 {Y}, {v(R)}, {v(R+1)}")
    A(f"v_permlane16_swap_b32 {Y}, {TT}"); A(f"v_add_f32 {Y}, {Y}, {TT}")
    rbf(Y, Y)
    if kind == 'M':
        A(f"v_add_f32 {Y}, {Y}, {vB2}"); rbf(Y, Y)
    A(f"v_add_f32 {TT}, {Y}, {vXres}")
    A(f"v_add_f32 {v(R+1)}, {Y}, {vXres}")
    A(f"v_add_f32 {Y}, {Y}, {vXres}")
    A("s_mov_b64 exec, -1")
    A(f"v_permlane32_swap_b32 {TT}, {v(R+1)}")
    A(f"v_cvt_pk_bf16_f32 {TT}, {TT}, {v(R+1)}")
    A("s_mov_b64 exec, 0xffff")
    if kind == 'M':
        A(f"s_cmp_lg_u32 {sL}, 0")
        A("s_cbranch_scc1 L_out")
    pub(f"buffer_store_dword {TT}, {vZst}, {srd(rWS)}, {{so}} offen{{fl}}")
    A("s_mov_b64 exec, -1")
    stamp()
    rbf(vXres, Y)
    if kind == 'M' or args.ms != 'x':
        A(f"v_mul_f32 {TT}, {vXres}, {vXres}")
        A(f"v_cndmask_b32 {TT}, {vXres}, {TT}, {mROW}")
        for k in (8, 4, 2): A(f"v_add_f32_dpp {TT}, {TT}, {TT} row_ror:{k} row_mask:0xf bank_mask:0xf")
        A(f"v_add_f32_dpp {Y}, {TT}, {TT} row_ror:1 row_mask:0xf bank_mask:0xf")
        A(f"v_add_f32_dpp {TT}, {TT}, {TT} row_ror:1 row_mask:0xf bank_mask:0xf")
        A(f"v_permlane32_swap_b32 {TT}, {Y}")
        A(f"v_add_f32 {TT}, {TT}, {Y}")
        A("s_mov_b64 exec, 0x10001")
        pub(f"buffer_store_dword {TT}, {vZSst}, {srd(rWS)}, {{so}} offen{{fl}}")
        A("s_mov_b64 exec, -1")
    A(f"v_add_u32 {vZSst}, 512, {vZSst}")
    A(f"v_add_u32 {vZst}, 2304, {vZst}")
    A(f"s_add_u32 {sXPo}, {sXPo}, {XPS}")

A(f"s_bitcmp1_b32 {sRole}, 0")
A("s_cbranch_scc1 L_mlp")
A(f"s_bitcmp1_b32 {sRole}, 1")
A("s_cbranch_scc0 L_probe" if args.near else "s_cbranch_scc0 L_next")
A(f"s_cmp_lg_u32 {sL}, 0")
A("s_cbranch_scc1 L_red")
A(f"v_lshlrev_b32 {vXres}, 16, {vXres}"); A(f"v_lshlrev_b32 {vB2}, 16, {vB2}")
zero(YG+6, 2)
for i in range(4): A(f"v_mov_b32 {v(YG+8+i)}, 0x3f80")
A("L_red:")
k0 = nst[0]
reducer('A'); reducer('M')
kr = nst[0]
A("s_branch L_next")
A("L_mlp:")
nst[0] = k0
A(f"s_cmp_lg_u32 {sL}, 0")
A("s_cbranch_scc1 L_m1")
A(f"s_mul_i32 {t0}, {sX}, 18"); A(f"s_add_u32 {t0}, {t0}, {sJ}")
A(f"s_lshl_b32 {t2}, {t0}, 6")
A(f"buffer_load_ushort {vB1}, {vB1}, {srd(rT1)}, 0 offen{NT}")
A(f"s_cmp_ge_u32 {sJ}, 16")
A("s_cbranch_scc1 L_m0b")
if args.xt:
    A(f"s_lshl_b32 {t1}, {sJ}, 2"); A(f"s_add_u32 {t1}, {t1}, {sW}"); A(f"s_mul_i32 {t1}, {t1}, 36")
    A(f"v_add_u32 {TT}, {t1}, v0")
    A(f"v_lshrrev_b32 {LS}, 6, {TT}"); A(f"v_mul_u32_u24 {MX}, 43, {LS}"); A(f"v_lshrrev_b32 {MX}, 7, {MX}"); A(f"v_add_u32 {LS}, {LS}, {MX}")
    A(f"v_bfe_u32 {MX}, {TT}, 3, 3"); A(f"v_lshl_add_u32 {LS}, {LS}, 3, {MX}"); A(f"v_and_b32 {TT}, 7, {TT}"); A(f"v_lshlrev_b32 {TT}, 7, {TT}"); A(f"v_lshl_add_u32 {TT}, {LS}, 13, {TT}")
    A(f"s_lshl_b32 {t1}, {sX}, 10"); A(f"s_add_u32 {t1}, {t1}, {XP_O}")
    A(f"v_mov_b32 {LS}, 0")
    A("s_mov_b32 exec_hi, 15")
    A(f"buffer_atomic_or {LS}, {TT}, {srd(rWS)}, {t1} offen")
    A("s_mov_b32 exec_hi, -1")
if 's' not in args.early + args.mid: slots_touch()
if '1' not in args.early + args.mid: w1_touch()
if '2' in args.early + args.mid: A("s_branch L_m0d")
A("L_m0b:")
w2_loads()
A("L_m0d:")
A(f"s_cmp_eq_u32 {sW}, 3")
A("s_cbranch_scc1 L_m0c")
A("L_m0a:")
A(f"s_mul_i32 {t0}, {sW}, {192*9216}"); A(f"s_add_u32 {t0}, {t0}, {t2}")
if args.w1dma:
    A(f"v_lshrrev_b32 {TT}, 2, v0"); A(f"v_mul_u32_u24 {TT}, 9216, {TT}"); A(f"v_and_b32 {LS}, 3, v0"); A(f"v_lshl_add_u32 {TT}, {LS}, 4, {TT}")
    A(f"s_mul_i32 {t1}, {sW}, 12288"); A(f"s_add_u32 {t1}, {t1}, {L_K}"); A(f"s_mov_b32 m0, {t1}")
    for i in range(12):
        A(f"buffer_load_dwordx4 {TT}, {srd(rW1)}, {t0} offen{NTM} lds")
        if i < 11: A(f"s_add_u32 {t0}, {t0}, {16*9216}"); A("s_add_u32 m0, m0, 1024")
    A(f"v_lshrrev_b32 {TT}, 4, v0"); A(f"v_lshlrev_b32 {TT}, 8, {TT}"); A(f"v_and_b32 {LS}, 15, v0"); A(f"v_lshl_add_u32 {TT}, {LS}, 2, {TT}"); A(f"v_add_u32 {TT}, {t1}, {TT}")
    A("s_waitcnt vmcnt(0)")
    for i in range(6):
        for hh in range(2):
            for p in range(2):
                A(f"ds_read2_b32 {a(aW1+8*i+4*hh+2*p,2)}, {TT} offset0:{32*p} offset1:{32*p+16}")
            if (i, hh) != (5, 1): A(f"v_add_u32 {TT}, 1024, {TT}")
    A("s_waitcnt lgkmcnt(0)")
else:
    A(f"v_lshrrev_b32 {TT}, 4, v0"); A(f"v_mul_u32_u24 {TT}, {4*9216}, {TT}"); A(f"v_and_b32 {LS}, 15, v0"); A(f"v_lshl_add_u32 {TT}, {LS}, 2, {TT}")
    prev = 0
    for i in range(6):
        for vv in range(8):
            row = 32*i + 16*(vv >> 2) + (vv & 3)
            if row != prev: A(f"s_add_u32 {t0}, {t0}, {(row-prev)*9216}")
            prev = row
            A(f"buffer_load_dword {a(aW1+8*i+vv)}, {TT}, {srd(rW1)}, {t0} offen{NTM}")
A("L_m0c:")
if ST: A("s_memrealtime s[94:95]"); A("s_waitcnt vmcnt(0)"); A("s_memrealtime s[96:97]")
A("s_waitcnt vmcnt(0)")
A(f"v_lshlrev_b32 {vB1}, 16, {vB1}")
A("L_m1:")
zero(D0, 8)
c0 = -2 * 1.4426950408889634 * 0.7978845608028654
A(f"v_mov_b32 {v(E)}, {f32(c0)}")
A(f"v_add_u32 {v(E+2)}, {4*1152}, {vMst}")
A(f"s_mul_i32 {t0}, {sL}, {Z3_O-Z1_O}"); A(f"s_add_u32 {t0}, {t0}, {sGp}"); A(f"s_add_u32 {t0}, {t0}, {Z1_O}")
if args.pre:
    A(f"s_cmp_eq_u32 {sL}, 0"); A("s_cbranch_scc1 L_m1b")
    quiet_wait(AN_O + 4)
    A("L_m1b:")
A(f"s_lshl_b32 {t1}, {sL}, 10"); A(f"s_add_u32 {t1}, {t1}, {sGp}"); A(f"s_add_u32 {t1}, {t1}, {ZS_O}")
A(f"v_lshrrev_b32 {v(E+1)}, 5, v0"); A(f"v_lshlrev_b32 {v(E+1)}, 3, {v(E+1)}")
A(f"s_cmp_eq_u32 {sW}, 3")
A("s_cbranch_scc1 L_m2")
poll_proj(vXAm, t0, 6, aW1)
A("s_mov_b32 exec_hi, 0")
A(f"ds_write_b128 {vHPw}, {v(D0,4)}")
A("s_mov_b32 exec_hi, -1")
A("s_branch L_m2b")
A("L_m2:")
if args.ms == 'x':
    if 'nostat' not in args.exp:
        poll(xs_loads(rWS, t0, ' sc1'), [v(XS+i) for i in range(9)], site='z')
        stats_x()
    else: A(f"v_mov_b32 {S_}, 0"); A(f"v_mov_b32 {Q_}, 1.0")
else:
    poll(zs_load(vZSg, t1), [v(ZG), v(ZG+1)], site='z')
    A(f"v_mov_b32 {S_}, {v(ZG)}"); A(f"v_mov_b32 {Q_}, {v(ZG+1)}")
    stats_tail1(); stats_tail2()
A(f"ds_write_b64 {v(E+1)}, {v(TM,2)} offset:{L_STAT}")
A("L_m2b:")
stamp()
A("s_waitcnt lgkmcnt(0)")
A("s_barrier")
H = TM + 12
A(f"ds_read2_b32 {v(H,2)}, {vHPr} offset0:0 offset1:2")
A(f"ds_read2_b32 {v(H+2,2)}, {vHPr} offset0:128 offset1:130")
A(f"ds_read_b32 {v(H+4)}, {vHPr} offset:1024"); A(f"ds_read_b32 {v(H+5)}, {vHPr} offset:1032")
A(f"ds_read_b64 {v(TM,2)}, {v(E+1)} offset:{L_STAT}")
zero(D0)
A("s_waitcnt lgkmcnt(0)")
A(f"v_add_f32 {v(H)}, {v(H)}, {v(H+2)}"); A(f"v_add_f32 {v(H+1)}, {v(H+1)}, {v(H+3)}")
A(f"v_add_f32 {v(H)}, {v(H)}, {v(H+4)}"); A(f"v_add_f32 {v(H+1)}, {v(H+1)}, {v(H+5)}")
A(f"v_fma_f32 {v(H)}, -{S_}, {v(H+1)}, {v(H)}")
A(f"v_mul_f32 {v(H)}, {v(H)}, {Q_}")
rbf(v(H), v(H))
A(f"v_add_f32 {v(H)}, {v(H)}, {vB1}")
rbf(v(H), v(H))
A(f"v_mul_f32 {TT}, {v(H)}, {v(H)}")
A(f"v_fmac_f32 {v(E)}, {f32(c0*0.044715)}, {TT}")
A(f"v_mul_f32 {TT}, {v(E)}, {v(H)}")
A(f"v_exp_f32 {TT}, {TT}")
A(f"v_add_f32 {TT}, 1.0, {TT}")
A(f"v_rcp_f32 {TT}, {TT}")
A(f"v_mul_f32 {TT}, {TT}, {v(H)}")
A(f"v_cvt_pk_bf16_f32 {TT}, {TT}, 0")
A(f"ds_write2_b32 {vPTw}, {TT}, {TT} offset1:5")
for i in range(4): A(f"ds_read_b128 {v(AO+4*i,4)}, {vPTr} offset:{128*i}")
stamp()
tile_out(aW2, aW2t, vMst, False)
A("L_m4:")
stamp()
nst[0] = kr
A("L_next:")
A(f"s_cmp_lg_u32 {sL}, 0")
A("s_cbranch_scc1 L_fin")
if ST:
    A("s_waitcnt lgkmcnt(0)")
    for k in range(14): A(f"v_writelane_b32 {v(SV)}, s{72+2*k}, {1+k}")
    for k in range(14): A(f"s_mov_b64 s[{72+2*k}:{73+2*k}], 0")
A(f"s_mov_b32 {sL}, 1")
if args.dirty:
    A(f"s_cmp_ge_u32 {sJ}, 16"); A("s_cbranch_scc1 L_dd")
    A(f"s_lshl_b32 {t0}, s2, 2"); A(f"s_add_u32 {t0}, {t0}, {sW}"); A(f"s_lshl_b32 {t0}, {t0}, 14"); A(f"s_add_u32 {t0}, {t0}, 0x2000000")
    for i in range(args.dirty):
        A(f"buffer_store_dwordx4 {v(EM,4)}, {vL16}, {srd(rWS)}, {t0} offen"); A(f"s_add_u32 {t0}, {t0}, 1024")
    A("L_dd:")
A(f"s_add_u32 {sXoff}, {sGp}, {Z2_O}")
for r in (vSTst, vSTg, vSTm): A(f"v_add_u32 {r}, {ST1_O-ST_O}, {r}")
if args.qc:
    assert QP_O % 512 == 0
    for r in (vQPst, vQPg):
        A(f"v_bfe_u32 {TT}, {r}, 1, 8"); A(f"v_and_b32 {r}, 0xfffffe00, {r}"); A(f"v_add_u32 {r}, {r}, {TT}")
    A(f"v_add_u32 {vQPg2}, 4096, {vQPg}")
A("s_branch L_layer")
A("L_out:")
A(f"buffer_store_dword {TT}, {vZo}, {srd(rOUT)}, 0 offen")
A(f"s_mov_b32 {t0}, {EP_O}")
A("s_mov_b64 exec, 1")
A(f"buffer_store_dword {FN}, {vL16}, {srd(rWS)}, {t0} offen")
if ST: A(f"s_memrealtime s[{72+2*13}:{73+2*13}]")
A("L_fin:")
if args.wb:
    A(f"s_cmp_lg_u32 {sJ}, 18"); A("s_cbranch_scc1 L_wb")
    A(f"s_cmp_lg_u32 {sW}, 0"); A("s_cbranch_scc1 L_wb")
    A("buffer_wbl2 sc1")
    A("L_wb:")
if args.enc:
    j0, j1 = [int(x) for x in args.encj.split(',')]
    A("s_memrealtime s[66:67]")
    A("s_waitcnt lgkmcnt(0)")
    if args.enc <= 14: A(f"v_readlane_b32 {t0}, {v(SV)}, {args.enc}"); A("s_nop 3")
    else: A(f"s_mov_b32 {t0}, s{72+2*(args.enc-15)}")
    A(f"s_cmp_eq_u32 {t0}, 0"); A("s_cbranch_scc1 L_enc2")
    A(f"s_cmp_lt_u32 {sJ}, {j0}"); A("s_cbranch_scc1 L_enc2")
    A(f"s_cmp_ge_u32 {sJ}, {j1}"); A("s_cbranch_scc1 L_enc2")
    if args.encref == 0: A(f"s_mov_b32 {t1}, s100")
    elif args.encref <= 14: A(f"v_readlane_b32 {t1}, {v(SV)}, {args.encref}"); A("s_nop 3")
    else: A(f"s_mov_b32 {t1}, s{72+2*(args.encref-15)}")
    A(f"s_sub_u32 {t0}, {t0}, {t1}"); A(f"s_min_u32 {t0}, {t0}, 10000"); A(f"s_lshl_b32 {t0}, {t0}, {4 if args.encref else 3}"); A(f"s_add_u32 {t0}, {t0}, s66")
    A("L_enc:")
    A("s_sleep 8")
    A("s_memrealtime s[64:65]"); A("s_waitcnt lgkmcnt(0)")
    A(f"s_sub_u32 {t1}, s64, {t0}"); A(f"s_cmp_lt_i32 {t1}, 0"); A("s_cbranch_scc1 L_enc")
    A("L_enc2:")
if ST:
    A("s_mov_b64 exec, -1")
    A("s_waitcnt lgkmcnt(0)")
    A(f"v_writelane_b32 {v(SV)}, s100, 0")
    for k in range(14): A(f"v_writelane_b32 {v(SV)}, s{72+2*k}, {15+k}")
    A(f"s_lshl_b32 {t0}, s2, 2"); A(f"s_add_u32 {t0}, {t0}, {sW}"); A(f"s_lshl_b32 {t0}, {t0}, 8"); A(f"s_add_u32 {t0}, {t0}, {STAMP_O}")
    A(f"v_mov_b32 {v(SV+1)}, 0")
    A(f"v_lshlrev_b32 {v(SV+2)}, 3, v0")
    A("s_mov_b32 exec_hi, 0")
    A(f"buffer_store_dwordx2 {v(SV,2)}, {v(SV+2)}, {srd(rWS)}, {t0} offen")
A("L_end:")
A("s_endpgm")
if args.near:
    A("L_probe:")
    A(f"s_cmp_lt_u32 {sJ}, 20"); A("s_cbranch_scc1 L_next")
    A(f"s_cmp_lg_u32 {sL}, 0"); A("s_cbranch_scc1 L_next")
    A(f"s_sub_u32 {t0}, {sJ}, 20"); A(f"s_lshl_b32 {t0}, {t0}, 18"); A(f"s_lshl_b32 {t1}, {sX}, 10"); A(f"s_add_u32 {t0}, {t0}, {t1}"); A(f"s_add_u32 {t0}, {t0}, {XP_O + 3*65536}")
    A(f"s_add_u32 s4, s{rWS}, {t0}"); A(f"s_addc_u32 s5, s{rWS+1}, 0")
    A(f"s_mov_b32 {t2}, -1"); A(f"s_mov_b32 {t3}, -1"); A(f"s_mov_b32 {t4}, 3")
    A("L_pr1:")
    A("s_memtime s[6:7]"); A("s_waitcnt lgkmcnt(0)")
    A(f"s_load_dword {t5}, s[4:5], 0 glc"); A("s_waitcnt lgkmcnt(0)")
    A("s_memtime s[8:9]"); A("s_waitcnt lgkmcnt(0)")
    A(f"s_load_dword {t5}, s[4:5], 0x2000 glc"); A("s_waitcnt lgkmcnt(0)")
    A("s_memtime s[10:11]"); A("s_waitcnt lgkmcnt(0)")
    A(f"s_sub_u32 {t0}, s8, s6"); A(f"s_sub_u32 {t1}, s10, s8")
    A(f"s_min_u32 {t2}, {t2}, {t0}"); A(f"s_min_u32 {t3}, {t3}, {t1}")
    A(f"s_sub_u32 {t4}, {t4}, 1"); A(f"s_cmp_lg_u32 {t4}, 0"); A("s_cbranch_scc1 L_pr1")
    A(f"s_cmp_lt_u32 {t3}, {t2}"); A(f"s_cselect_b32 {t0}, 0x2000, 0")
    A(f"v_mov_b32 {TT}, 0"); A(f"v_mov_b32 {LS}, {t0}")
    A(f"ds_write_b32 {TT}, {LS} offset:{L_NEAR}")
    A("s_branch L_next")
A("L_af2:")
A(f"s_cmp_eq_u32 {sMode}, {FB_O}")
A("s_cbranch_scc1 L_g2")
A(f"s_add_u32 {sMode}, {sMode}, 1")
A(f"s_lshl_b32 {t2}, {sX}, 10"); A(f"s_add_u32 {t2}, {t2}, {FL_O}")
A(f"s_lshl_b32 {t4}, {sL}, 2"); A(f"s_add_u32 {t1}, {t4}, {t2}")
A(f"s_cmp_lt_u32 {sMode}, {1 if args.forcefb else 40}")
A("s_cbranch_scc1 L_af5")
A("s_mov_b64 exec, 1")
A(f"buffer_store_dword {FN}, {vL16}, {srd(rWS)}, {t1} offen sc1")
A("s_mov_b32 exec_lo, -1")
A(f"buffer_load_dwordx4 {v(FG,4)}, {vL16}, {srd(rWS)}, {t2} offen sc1")
A("s_mov_b32 exec_hi, -1")
A("s_waitcnt vmcnt(0)")
flags_diff()
A(f"v_and_b32 {TT}, 0x0fffffff, {CK}")
A(f"v_cmp_ne_u32 vcc, 0, {TT}")
A("s_cmp_lg_u32 vcc_lo, 0")
A("s_cbranch_scc1 L_af5")
A(f"v_cmp_ne_u32 vcc, 0, {CK}")
A("s_cmp_lg_u32 vcc_lo, 0")
if args.forcefb: A("s_cmp_eq_u32 0, 0")
A("s_cbranch_scc1 L_spread")
A("L_af5:")
A(f"s_sub_u32 {sTO}, {sTO}, 1")
A("s_cbranch_scc0 L_g4")
A(f"s_mov_b32 {sTO}, 0")
A(f"s_mov_b32 {sMode}, 0")
A("s_branch L_g2")
A("L_spread:")
A(f"s_mov_b32 {sMode}, {FB_O}")
A(f"s_add_u32 {sGp}, {sGf}, {FB_O}")
empty_share(sGp, ' sc1')
A("s_mov_b32 exec_hi, 0")
A(qp_store.format(so=sGp, fl=' sc1'))
A("s_waitcnt vmcnt(0)")
A("s_mov_b64 exec, 1")
A(f"buffer_store_dword {FN}, {vL16}, {srd(rWS)}, {t1} offen offset:512 sc1")
A("s_mov_b32 exec_lo, -1")
A("L_sp1:")
A("s_mov_b32 exec_hi, 0")
A(f"buffer_load_dwordx4 {v(FG,4)}, {vL16}, {srd(rWS)}, {t2} offen offset:512 sc1")
A("s_mov_b32 exec_hi, -1")
A("s_waitcnt vmcnt(0)")
flags_diff()
A(f"v_and_b32 {CK}, 0x0fffffff, {CK}")
A(f"v_cmp_ne_u32 vcc, 0, {CK}")
A("s_cmp_eq_u32 vcc_lo, 0")
A("s_cbranch_scc1 L_g4")
A("s_sleep 4")
A(timeout("L_sp1", "L_g4"))
for t in tail: A(t)
A.raw('L_codeend:')

A.raw('.section .rodata,"a"')
A.raw(".p2align 6")
A.raw(f".amdhsa_kernel {NAME}_kernel")
A.raw(f"  .amdhsa_next_free_vgpr {ACC+NACC}")
A.raw("  .amdhsa_next_free_sgpr 102")
A.raw(f"  .amdhsa_accum_offset {ACC}")
A.raw("  .amdhsa_group_segment_fixed_size 0")
A.raw("  .amdhsa_kernarg_size 104")
A.raw("  .amdhsa_user_sgpr_count 2")
A.raw("  .amdhsa_user_sgpr_kernarg_segment_ptr 1")
A.raw("  .amdhsa_system_sgpr_workgroup_id_x 1")
A.raw(".end_amdhsa_kernel")
txt = A.text()
if args.cyc: txt = txt.replace('s_memrealtime', 's_memtime')
sys.stdout.write(txt)
```

```python
import sys, argparse, struct
sys.path.insert(0, 'dev')
from asmlib import Asm
NAME = "interleave_layers__sliding_block_cached__dense_activation_gelu__decode"
ap = argparse.ArgumentParser()
ap.add_argument('--stamps', action='store_true')
ap.add_argument('--pro', action='store_true')
ap.add_argument('--cyc', action='store_true')
ap.add_argument('--xt', type=int, default=0)
ap.add_argument('--xd', type=int, default=11)
ap.add_argument('--enc', type=int, default=0)
ap.add_argument('--encref', type=int, default=0)
ap.add_argument('--encj', default='0,32')
ap.add_argument('--only', default='')
ap.add_argument('--pQ', type=int, default=4)
ap.add_argument('--xf', type=int, default=1)
ap.add_argument('--kw', type=int, default=1)
ap.add_argument('--code', type=int, default=3)
ap.add_argument('--early', default='0')
ap.add_argument('--mid', default='')
ap.add_argument('--w1dma', type=int, default=0)
ap.add_argument('--near', type=int, default=1)
ap.add_argument('--pd', default='s22,y22,o22')
ap.add_argument('--wb', type=int, default=0)
ap.add_argument('--dirty', type=int, default=0)
ap.add_argument('--pre', type=int, default=1)
ap.add_argument('--qd', type=int, default=0)
ap.add_argument('--zs', type=int, default=0)
ap.add_argument('--sd', type=int, default=0)
ap.add_argument('--yd', type=int, default=0)
ap.add_argument('--zd', type=int, default=0)
ap.add_argument('--qc', type=int, default=1)
ap.add_argument('--ms', default='x')
ap.add_argument('--exp', default='')
ap.add_argument('--tlb', type=int, default=0)
ap.add_argument('--hw', type=int, default=3)
ap.add_argument('--prew', type=int, default=0)
ap.add_argument('--pS', type=int, default=0)
ap.add_argument('--pC', type=int, default=9)
ap.add_argument('--lnf', type=int, default=2)
ap.add_argument('--vw', type=int, default=1)
ap.add_argument('--di', type=int, default=1)
ap.add_argument('--dz', type=int, default=1)
ap.add_argument('--dxx', type=int, default=1)
ap.add_argument('--nt', default='k,v,2')
ap.add_argument('--forcefb', action='store_true')
args = ap.parse_args()
def ntf(c): return ' nt' if c in args.nt.split(',') else ''
NT = ntf('s'); NTK = ntf('k'); NTV = ntf('v'); NTQ = ntf('q'); NTO = ntf('o'); NTM = ntf('m'); NT2 = ntf('2'); NTT = ntf('t')
ST = args.stamps
PD = {x[0]: (int(x[1]), int(x[2:])) for x in args.pd.split(',') if x}

def f32(x): return '0x%08x' % struct.unpack('<I', struct.pack('<f', x))[0]

CLR = 944
OP_O = 0
Y_O = OP_O + 65536
ST_O = Y_O + 41472
ST1_O = ST_O + 2048
Z1_O = ST1_O + 2048
Z2_O = Z1_O + 2304
Z3_O = Z2_O + 2304
AN_O = Z3_O + 2304
ZS_O = AN_O + 128
assert ZS_O + 1536 <= 128 * CLR and (128 * CLR) % 128 == 0
QP_O = 128 * CLR
FF_O = QP_O + 65536
GB = FF_O + 1024
FB_O = 8 * GB
XP_O = 6 << 20
assert XP_O >= 16 * GB
XPS = 16384
FL_O = XP_O + 12 * 262144
EP_O = FL_O + 8 * 1024
STAMP_O = 0x8000000
L_NEAR = 8176
L_X = 640
L_QT, L_STAT, L_OT, L_PT, L_HP, L_K, L_WQ, L_SIZE = 0, 512, 1024, 2560, 8192, 16384, 49152, 67584

rK, rV, rWQ, rWO, rW1, rW2, rWS, rX, rOUT, rT1, rT2 = 4, 8, 12, 16, 20, 24, 28, 32, 36, 44, 48
sTask, kv0, kv1, sFlag = 's40', 's41', 's42', 's43'
def srd(n): return f"s[{n}:{n+3}]"
sW, sX, sJ, sGf, sGp, sXoff, sTO, sMode, sL, sWo = [f"s{i}" for i in range(52, 62)]
t0, t1, t2, t3, t4, t5 = [f"s{i}" for i in range(62, 68)]
mLO8 = "s[68:69]"; mROW = "s[70:71]"
MXA = "0x00330033"
sRole = "s3"
(vL4, vL16, vIdxD, vIdxP, vIdxS, vXAq, vXAm, vQPst, vQPg, vL128, vQTw, vQTr, vPTw, vPTr, vSTst, vOPst, vSTg, vOPg, vOTw, vOTr,
 vYst, vMst, vHPw, vSTm, vRg, vSTATr, vXPst, vXPg, vZst, vXres, vB2, vB1, vCq, vZo, vXS1, vXS2, vWrow, vHPr, vOnes) = [f"v{i}" for i in range(1, 40)]
XA, D0, D1, DP, AO, SG, YG, XG, XS, FG, TM, EM, KA, SV, OG, QG = 40, 64, 68, 72, 76, 104, 120, 132, 136, 148, 152, 176, 180, 184, 188, 196
vQPg2, vZSst, vZSg = 'v92', 'v93', 'v94'
ZG = 96; vLXr = 'v98'; KR = 100
ACC = 212
aWQ, aK, aV, aWO, aW1, aW2, aWOt, NACC = 0, 24, 56, 88, 120, 168, 200, 232
aW2t = aW1
def v(n, k=1): return f"v{n}" if k == 1 else f"v[{n}:{n+k-1}]"
def a(n, k=1): return f"a{n}" if k == 1 else f"a[{n}:{n+k-1}]"
CK = v(TM + 23); FN = v(TM + 22); vTag = v(TM + 21); DUM = v(TM + 20)
sEp, sXPo = kv0, kv1

A = Asm()
tail = []
nst = [0]
def pstamp(k):
    if args.pro: A(f"s_memrealtime s[{72+2*k}:{73+2*k}]")
def stamp():
    if ST and not args.pro:
        k = nst[0]; nst[0] += 1
        assert k < 13
        if ONLY is None or k in ONLY: A(f"s_memrealtime s[{72+2*k}:{73+2*k}]")
ONLY = set(int(x) for x in args.only.split(',')) if args.only else None
def lg(n): return 0 if (ST and ONLY is None) else n
def exec_xa(): return [f"s_mov_b32 exec_lo, {MXA}", f"s_mov_b32 exec_hi, {MXA}"]

def check_text(regs):
    regs = list(regs); o = []
    if len(regs) == 1: cur = regs[0]
    else:
        take = regs[:3]; regs = regs[3:]
        o.append(f"v_max3_u32 {CK}, {take[0]}, {take[1]}, {take[2]}" if len(take) == 3 else f"v_max_u32 {CK}, {take[0]}, {take[1]}")
        while regs:
            take = regs[:2]; regs = regs[2:]
            o.append(f"v_max3_u32 {CK}, {CK}, {take[0]}, {take[1]}" if len(take) == 2 else f"v_max_u32 {CK}, {CK}, {take[0]}")
        cur = CK
    o.append(f"v_cmp_eq_u32 vcc, -1, {cur}")
    return o
def nvm(loads): return sum(1 for l in loads if l.startswith('buffer_'))
def timeout(again, ok): return f"s_sub_u32 {sTO}, {sTO}, 1\ns_cbranch_scc0 {again}\ns_mov_b32 {sTO}, 0\ns_waitcnt vmcnt(0) lgkmcnt(0)\ns_branch {ok}"

def poll(loads, regs, primed=False, extra_wait="", chk=None, site=''):
    lp = A.newlabel('L_poll'); to = A.newlabel('L_to'); ok = A.newlabel('L_ok')
    depth, gap = PD.get(site, (1, 0))
    ck = chk or check_text(regs)
    pre = []
    for d in range(depth - 1):
        pre += loads + ([f"s_sleep {gap}"] if gap else [])
    loop = [f"{lp}:"] + loads + [f"s_sub_u32 {sTO}, {sTO}, 1", f"s_cbranch_scc1 {to}", f"s_waitcnt vmcnt({(depth-1)*nvm(loads)}){extra_wait}"] + ck + [f"s_cbranch_vccnz {lp}"]
    tmo = f"{to}:\ns_mov_b32 {sTO}, 0\ns_waitcnt vmcnt(0) lgkmcnt(0)\ns_branch {ok}"
    if primed:
        st = A.newlabel('L_more')
        A(f"s_waitcnt vmcnt(0){extra_wait}")
        for l in ck: A(l)
        A(f"s_cbranch_vccnz {st}")
        A(f"{ok}:")
        tail.append(f"{st}:\n" + "\n".join(pre + loop) + f"\ns_branch {ok}\n" + tmo)
        return
    for l in pre + loop: A(l)
    A(f"{ok}:")
    tail.append(tmo)

def sm(d, av, br, idx): A(f"v_smfmac_f32_16x16x64_bf16 {v(d,4)}, {v(av,4)}, {a(br,8)}, {idx}")
def xa_loads(rr, voff, so, n, fl, short_last=False):
    o = exec_xa()
    for i in range(n):
        if short_last and i == n - 1: o.append("s_mov_b64 exec, 0x33")
        o.append(f"buffer_load_dwordx4 {v(XA+4*i,4)}, {voff}, {srd(rr)}, {so} offen offset:{64*i}{fl}")
    return o + ["s_mov_b64 exec, -1"]
def poll_proj(voff, so, n, wbase, short_last=False, extra=[]):
    loads = extra[:-1] + xa_loads(rWS, voff, so, n, ' sc1', short_last)
    lds = [l for l in loads if l.startswith('buffer_')]
    lp = A.newlabel('L_poll'); rt = A.newlabel('L_retry'); ok = A.newlabel('L_ok'); gen = A.newlabel('L_nan')
    depth, gap = PD.get('p', (1, 0))
    for d in range(depth):
        if d: A(f"s_sleep {gap}")
        for l in loads: A(l)
    A(f"{lp}:")
    A(f"s_waitcnt vmcnt({(depth-1)*n})")
    for i in range(n): sm(D0, XA+4*i, wbase+8*i, vIdxD)
    for l in loads: A(l)
    A(f"v_cmp_u_f32 vcc, {v(D0)}, {v(D0+1)}")
    A(f"s_cbranch_vccnz {rt}")
    A(f"{ok}:")
    z = "\n".join(f"v_mov_b32 {v(D0+i)}, 0" for i in range(4))
    mm = "\n".join(f"v_smfmac_f32_16x16x64_bf16 {v(D0,4)}, {v(XA+4*i,4)}, {a(wbase+8*i,8)}, {vIdxD}" for i in range(n))
    if args.zs: z += f"\ns_sleep {args.zs}"
    tail.append(f"{rt}:\n{z}\ns_sub_u32 {sTO}, {sTO}, 1\ns_cbranch_scc1 {gen}\ns_and_b32 {t5}, {sTO}, 15\ns_cbranch_scc1 {lp}\n" +
                "\n".join(check_text([v(XA+i) for i in range(4*n)])) + f"\ns_cbranch_vccnz {lp}\n{gen}:\ns_max_i32 {sTO}, {sTO}, 0\n{mm}\ns_nop 7\ns_branch {ok}")

def pub(*fmts):
    for f in fmts: A(f.format(so=sGf, fl=''))
    sl = A.newlabel('L_slow'); bk = A.newlabel('L_back')
    A(f"s_cmp_lg_u32 {sMode}, 0")
    A(f"s_cbranch_scc1 {sl}")
    A(f"{bk}:")
    tail.append(f"{sl}:\n" + "\n".join(f.format(so=sGp, fl=' sc1') for f in fmts) + f"\ns_nop 1\ns_branch {bk}")

def rbf(dst, src):
    A(f"v_cvt_pk_bf16_f32 {dst}, {src}, {src}")
    A(f"v_and_b32 {dst}, 0xffff0000, {dst}")
def treduce(r):
    A(f"v_permlane32_swap_b32 {v(r)}, {v(r+2)}")
    A(f"v_permlane32_swap_b32 {v(r+1)}, {v(r+3)}")
    A(f"v_add_f32 {v(r)}, {v(r)}, {v(r+2)}")
    A(f"v_add_f32 {v(r+1)}, {v(r+1)}, {v(r+3)}")
    A(f"v_permlane16_swap_b32 {v(r)}, {v(r+1)}")
    A(f"v_add_f32 {v(r)}, {v(r)}, {v(r+1)}")
    A(f"v_add_f32_dpp {v(r)}, {v(r)}, {v(r)} row_ror:8 row_mask:0xf bank_mask:0xf")
S_, Q_ = v(TM), v(TM+1)
def stats_tail1():
    S, Q = S_, Q_
    A(f"v_permlane16_swap_b32 {S}, {Q}")
    A(f"v_add_f32 {S}, {S}, {Q}")
    for k in (8, 4, 2, 1):
        A(f"v_add_f32_dpp {S}, {S}, {S} row_ror:{k} row_mask:0xf bank_mask:0xf")
    A(f"v_mul_f32 {Q}, {f32(1/576)}, {S}")
    A(f"v_mul_f32 {S}, {f32(1/576)}, {S}")
def stats_tail2():
    S, Q = S_, Q_
    A(f"v_permlane16_swap_b32 {S}, {Q}")
    A(f"v_fma_f32 {Q}, -{S}, {S}, {Q}")
    A(f"v_max_f32 {Q}, 0, {Q}")
    A(f"v_cvt_pk_bf16_f32 {Q}, {S}, {Q}")
    A(f"v_lshlrev_b32 {S}, 16, {Q}")
    A(f"v_and_b32 {Q}, 0xffff0000, {Q}")
    A(f"v_add_f32 {Q}, {f32(1e-5)}, {Q}")
    rbf(Q, Q)
    A(f"v_sqrt_f32 {Q}, {Q}")
    rbf(Q, Q)
    A(f"v_rcp_f32 {Q}, {Q}")
def stats_x():
    A(f"v_mov_b32 {S_}, 0"); A(f"v_mov_b32 {Q_}, 0")
    for i in range(9):
        A(f"v_dot2c_f32_bf16 {S_}, {v(XS+i)}, {vOnes}")
        A(f"v_dot2c_f32_bf16 {Q_}, {v(XS+i)}, {v(XS+i)}")
    stats_tail1(); stats_tail2()
def zs_load(voff, so):
    return ["s_mov_b32 exec_lo, 0x3ffff", "s_mov_b32 exec_hi, 0x3ffff", f"buffer_load_dwordx2 {v(ZG,2)}, {voff}, {srd(rWS)}, {so} offen sc1", "s_mov_b64 exec, -1"]
def zero(r, n=4):
    for i in range(n): A(f"v_mov_b32 {v(r+i)}, 0")
def xs_loads(rr, so, fl):
    return [f"buffer_load_dwordx4 {v(XS,4)}, {vXS1}, {srd(rr)}, {so} offen{fl}",
            f"buffer_load_dwordx4 {v(XS+4,4)}, {vXS1}, {srd(rr)}, {so} offen offset:512{fl}",
            f"buffer_load_dword {v(XS+8)}, {vXS2}, {srd(rr)}, {so} offen offset:1024{fl}"]

A.raw(f"; @launch grid=(256,1,1) block=(256,1,1) lds={L_SIZE}")
A.raw('.amdgcn_target "amdgcn-amd-amdhsa--gfx950"')
A.raw(".text")
A.raw(f".globl {NAME}_kernel")
A.raw(".p2align 8")
A.raw(f".type {NAME}_kernel,@function")
A.raw(f"{NAME}_kernel:")
if ST:
    A("s_memrealtime s[100:101]")
    if args.pro:
        for k in range(1, 14): A(f"s_mov_b32 s{72+2*k}, 0")
for r, off in ((rWQ, 24), (rK, 8), (rWS, 96), (rX, 0), (rV, 16), (rWO, 32)):
    A(f"s_load_dwordx2 s[{r}:{r+1}], s[0:1], {off}")
if args.code >= 2:
    A(f"s_cmp_ge_u32 s2, {8*(args.code-1)}"); A("s_cbranch_scc1 L_nc")
    A("s_getpc_b64 s[66:67]")
    A("L_pc:")
    A(f"v_lshlrev_b32 {v(TM+8)}, 7, v0")
    A(f"v_min_u32 {v(TM+8)}, L_codeend-L_pc-4, {v(TM+8)}")
    A(f"global_load_dword {DUM}, {v(TM+8)}, s[66:67]")
    A("L_nc:")
A("s_cmp_ge_u32 s2, 256")
A("s_cbranch_scc1 L_end")
G, C, B2 = v(TM+3), v(TM+4), v(TM+5)
def size(r, n): A(f"s_mov_b32 s{r+2}, {n}"); A(f"s_mov_b32 s{r+3}, 0x20000")
A(f"v_readfirstlane_b32 {sW}, v0")
A(f"v_lshrrev_b32 {v(TM+6)}, 4, v0")
A(f"v_and_b32 {C}, 15, v0")
A(f"v_lshlrev_b32 {v(TM+6)}, 13, {v(TM+6)}")
A(f"v_lshl_add_u32 {v(TM+6)}, {C}, 4, {v(TM+6)}")
size(rWQ, 4718592)
A(f"s_and_b32 {sX}, s2, 7")
A(f"s_bfe_u32 {t2}, s2, 0x30003")
A(f"s_lshr_b32 {t3}, s2, 6"); A(f"s_lshl2_add_u32 {t0}, {sX}, {t3}"); A(f"s_lshl_b32 {t3}, {t0}, 8")
A(f"s_mul_i32 {sXoff}, {t2}, {72*8192}"); A(f"s_add_u32 {sXoff}, {sXoff}, {t3}")
A(f"s_lshl4_add_u32 m0, {sW}, {L_WQ}")
def setup_k():
    A(f"v_and_b32 v0, 63, v0")
    A(f"v_lshrrev_b32 {G}, 4, v0")
    A(f"s_and_b32 {t1}, {t0}, 1"); A(f"s_lshr_b32 {t0}, {t0}, 1")
    A(f"s_lshl4_add_u32 {kv0}, {t1}, {t0}"); A(f"s_lshl_b32 {kv0}, {kv0}, 5"); A(f"s_add_u32 {kv0}, {kv0}, {t2}"); A(f"s_lshl_b32 {kv0}, {kv0}, 8")
    A(f"s_add_u32 {kv0}, {kv0}, {sW}"); A(f"s_lshl_b32 {kv0}, {kv0}, 7"); A(f"s_add_u32 {kv0}, {kv0}, {3072*256}"); A(f"s_add_u32 {kv1}, {kv0}, 4096")
    size(rK, 33554432)
    A(f"v_xor_b32 {v(TM+7)}, {C}, {G}")
    A(f"v_lshlrev_b32 {v(TM+7)}, 4, {v(TM+7)}")
    A(f"v_lshl_add_u32 {v(KA)}, {G}, 8, {v(TM+7)}")
    for i in range(1, 4): A(f"v_xor_b32 {v(KA+i)}, {64*i}, {v(KA)}")
    A(f"s_lshr_b32 {sW}, {sW}, 6")
def setup_ws():
    size(rWS, 268435456); size(rX, 2304)
    A(f"s_lshr_b32 {sJ}, s2, 3")
    A(f"v_lshlrev_b32 {vL16}, 4, v0")
    for i in range(4): A(f"v_mov_b32 {v(EM+i)}, -1")
    A(f"s_mul_i32 {sGf}, {sX}, {GB}")
    A(f"s_lshl2_add_u32 {sL}, {sJ}, {sW}")
def setup_rest():
    size(rWO, 4718592)
    A("s_mov_b32 s68, 0x00ff00ff"); A("s_mov_b32 s69, 0x00ff00ff")
    A(f"v_lshlrev_b32 {vL128}, 7, v0")
    A(f"v_bfe_u32 {B2}, v0, 2, 1")
    A(f"v_mul_u32_u24 {vXAm}, 1152, {B2}")
    A(f"v_lshl_add_u32 {vXAm}, {G}, 4, {vXAm}")
    A(f"s_mul_i32 {t4}, {t2}, 144")
    A(f"v_add_u32 {vXAq}, {t4}, {vXAm}")
    for i in range(12): A(f"v_mov_b32 {v(XA+i)}, 0x3f803f80")
    A(f"s_lshl_b32 {t4}, {sL}, 9"); A(f"s_add_u32 {t4}, {t4}, {QP_O}")
    A(f"v_add_u32 {vQPst}, {t4}, {vL16}")
def constants():
    A(f"v_mul_u32_u24 {vWrow}, 1152, {G}")
    A(f"v_lshl_add_u32 {vWrow}, {C}, 4, {vWrow}")
    A(f"s_cmp_lt_u32 {sJ}, 18"); A(f"s_cselect_b32 {sRole}, 1, 0")
    A(f"s_cmp_ge_u32 {sJ}, 20"); A(f"s_cselect_b32 {t4}, 2, 0"); A(f"s_cmp_lt_u32 {sW}, 3"); A(f"s_cselect_b32 {t4}, {t4}, 0"); A(f"s_or_b32 {sRole}, {sRole}, {t4}")
    A(f"s_sub_u32 {sTask}, {sJ}, 20"); A(f"s_mul_i32 {sTask}, {sTask}, 3"); A(f"s_add_u32 {sTask}, {sTask}, {sW}"); A(f"s_min_u32 {sTask}, {sTask}, 35")
    A(f"s_lshl_b32 {t3}, {sX}, 4"); A(f"s_and_b32 {t4}, {sJ}, 15"); A(f"s_add_u32 {sWo}, {t3}, {t4}"); A(f"s_mul_i32 {sWo}, {sWo}, {32*1152}")
    A(f"s_lshl_b32 {t4}, {sW}, 8"); A(f"s_add_u32 {sWo}, {sWo}, {t4}")
    for r, n in ((rW1, 5308416), (rW2, 5308416), (rOUT, 2304), (rT1, 9216), (rT2, 1152)):
        A(f"s_mov_b32 s{r+2}, {n}"); A(f"s_mov_b32 s{r+3}, 0x20000")
    A("s_mov_b32 s70, 0xffff0000"); A("s_mov_b32 s71, 0xffff0000")
    A(f"v_lshlrev_b32 {vL4}, 2, v0")
    for i in range(12, 24): A(f"v_mov_b32 {v(XA+i)}, 0x3f803f80")
    A(f"s_lshl_b32 {t4}, {sW}, 13"); A(f"s_add_u32 {t4}, {t4}, {L_K}")
    A(f"v_lshl_add_u32 {v(KR)}, {C}, 8, {v(TM+7)}"); A(f"v_add_u32 {v(KR)}, {t4}, {v(KR)}")
    for i in range(1, 4): A(f"v_xor_b32 {v(KR+i)}, {64*i}, {v(KR)}")
    T_ = [v(TM+8+i) for i in range(10)]
    A(f"v_and_b32 {T_[0]}, 1, v0")
    A(f"v_mul_u32_u24 {vIdxP}, 0xaaaa, {T_[0]}"); A(f"v_add_u32 {vIdxP}, 0x4444, {vIdxP}")
    A(f"v_and_b32 {T_[1]}, 3, v0")
    A(f"v_mul_u32_u24 {vIdxS}, 0x5555, {T_[1]}")
    A(f"v_bfe_u32 {T_[2]}, v0, 4, 1")
    A(f"v_bfe_u32 {T_[3]}, v0, 2, 2")
    A(f"v_bfe_u32 {T_[4]}, v0, 3, 1")
    A(f"v_lshrrev_b32 {T_[5]}, 5, v0")
    A(f"v_and_b32 {T_[8]}, 7, v0")
    A(f"v_and_b32 {T_[9]}, 31, v0")
    A(f"s_lshr_b32 {t3}, {sJ}, 4")
    A(f"s_lshr_b32 {t5}, {sJ}, 3")
    A(f"s_lshl_b32 {t3}, {t3}, 1"); A(f"s_lshr_b32 {t4}, {sW}, 1"); A(f"s_add_u32 {t3}, {t3}, {t4}"); A(f"s_lshl_b32 {t3}, {t3}, 14")
    A(f"s_and_b32 {t4}, {sW}, 1"); A(f"s_lshl_b32 {t4}, {t4}, 10"); A(f"s_add_u32 {t3}, {t3}, {t4}")
    A(f"s_lshl_b32 {t4}, {t1}, 8"); A(f"s_add_u32 {t3}, {t3}, {t4}"); A(f"s_add_u32 {t3}, {t3}, {QP_O}")
    A(f"v_lshl_add_u32 {vQPg}, {T_[5]}, 4, {T_[2]}"); A(f"v_lshlrev_b32 {vQPg}, 9, {vQPg}"); A(f"v_lshl_add_u32 {vQPg}, {C}, 4, {vQPg}"); A(f"v_add_u32 {vQPg}, {t3}, {vQPg}")
    A(f"v_add_u32 {vQPg2}, 4096, {vQPg}")
    A(f"s_and_b32 {t3}, {sW}, 1"); A(f"s_lshl_b32 {t3}, {t3}, 8"); A(f"s_lshr_b32 {t4}, {sW}, 1"); A(f"s_lshl_b32 {t4}, {t4}, 7"); A(f"s_add_u32 {t3}, {t3}, {t4}")
    A(f"v_bfe_u32 {T_[6]}, v0, 3, 2"); A(f"v_bfe_u32 {T_[7]}, v0, 1, 2")
    A(f"v_lshlrev_b32 {vQTw}, 5, {T_[6]}"); A(f"v_lshl_add_u32 {vQTw}, {T_[0]}, 4, {vQTw}"); A(f"v_lshl_add_u32 {vQTw}, {T_[7]}, 2, {vQTw}")
    A(f"v_lshl_add_u32 {vQTw}, {T_[5]}, 1, {vQTw}"); A(f"v_add_u32 {vQTw}, {t3}, {vQTw}")
    A(f"v_lshlrev_b32 {vQTr}, 5, {G}"); A(f"v_lshl_add_u32 {vQTr}, {T_[4]}, 7, {vQTr}"); A(f"v_lshl_add_u32 {vQTr}, {T_[0]}, 4, {vQTr}")
    A(f"v_mul_u32_u24 {vOTr}, 640, {T_[4]}"); A(f"v_lshl_add_u32 {vOTr}, {G}, 5, {vOTr}"); A(f"v_lshl_add_u32 {vOTr}, {B2}, 4, {vOTr}")
    A(f"s_mul_i32 {t3}, {sW}, 1280"); A(f"s_add_u32 {t3}, {t3}, {L_PT}")
    A(f"v_add_u32 {vPTr}, {t3}, {vOTr}"); A(f"v_add_u32 {vOTr}, {L_OT}, {vOTr}")
    A(f"v_bfe_u32 {T_[6]}, v0, 1, 4")
    A(f"v_mul_u32_u24 {vPTw}, 640, {T_[5]}"); A(f"v_lshl_add_u32 {vPTw}, {T_[6]}, 5, {vPTw}"); A(f"v_lshl_add_u32 {vPTw}, {T_[0]}, 3, {vPTw}"); A(f"v_add_u32 {vPTw}, {t3}, {vPTw}")
    A(f"v_lshrrev_b32 {vHPr}, 1, v0"); A(f"v_lshlrev_b32 {vHPr}, 4, {vHPr}"); A(f"v_lshl_add_u32 {vHPr}, {T_[0]}, 2, {vHPr}"); A(f"v_add_u32 {vHPr}, {L_HP}, {vHPr}")
    A(f"s_lshl_b32 {t3}, {sW}, 9"); A(f"s_add_u32 {t3}, {t3}, {L_HP}"); A(f"v_add_u32 {vHPw}, {t3}, {vL16}")
    A(f"s_lshl_b32 {t3}, {t5}, 9"); A(f"s_add_u32 {t3}, {t3}, {ST_O}")
    A(f"s_lshl_b32 {t4}, {t2}, 2"); A(f"s_add_u32 {t4}, {t4}, {sW}"); A(f"s_lshl_b32 {t4}, {t4}, 2"); A(f"s_add_u32 {t4}, {t4}, {t3}")
    A(f"v_lshlrev_b32 {vSTst}, 8, {T_[5]}"); A(f"v_lshl_add_u32 {vSTst}, {T_[0]}, 7, {vSTst}"); A(f"v_add_u32 {vSTst}, {t4}, {vSTst}")
    A(f"s_lshl_b32 {t3}, {t1}, 1"); A(f"s_lshr_b32 {t4}, {sW}, 1"); A(f"s_add_u32 {t3}, {t3}, {t4}"); A(f"s_lshl_b32 {t3}, {t3}, 9"); A(f"s_add_u32 {t3}, {t3}, {ST_O}")
    A(f"s_lshr_b32 {t4}, {t2}, 2"); A(f"s_lshl_b32 {t4}, {t4}, 8"); A(f"s_add_u32 {t3}, {t3}, {t4}")
    A(f"v_lshrrev_b32 {T_[7]}, 3, v0")
    A(f"v_lshl_add_u32 {vSTg}, {T_[7]}, 4, {t3}")
    A(f"s_and_b32 {t4}, {sW}, 1"); A(f"s_lshl_b32 {t4}, {t4}, 3"); A(f"v_add_u32 {vSTm}, {t4}, {vSTg}")
    A(f"s_lshr_b32 {t3}, {sJ}, 4"); A(f"s_lshl_b32 {t3}, {t3}, 15"); A(f"s_lshl_b32 {t4}, {t1}, 11"); A(f"s_add_u32 {t3}, {t3}, {t4}")
    A(f"s_lshl_b32 {t4}, {sW}, 9"); A(f"s_add_u32 {t3}, {t3}, {t4}"); A(f"s_lshl_b32 {t4}, {t2}, 6"); A(f"s_add_u32 {t3}, {t3}, {t4}")
    A(f"v_lshlrev_b32 {T_[6]}, 4, {T_[1]}"); A(f"v_lshl_add_u32 {T_[6]}, {T_[2]}, 3, {T_[6]}")
    A(f"v_lshl_add_u32 {vOPst}, {T_[5]}, 2, {T_[3]}"); A(f"v_lshl_add_u32 {vOPst}, {vOPst}, 12, {T_[6]}"); A(f"v_add_u32 {vOPst}, {t3}, {vOPst}")
    A(f"s_and_b32 {t3}, {sJ}, 15"); A(f"s_lshl_b32 {t3}, {t3}, 12"); A(f"s_lshl_b32 {t4}, {sW}, 10"); A(f"s_add_u32 {t3}, {t3}, {t4}"); A(f"v_lshl_add_u32 {vOPg}, v0, 3, {t3}")
    A(f"s_lshr_b32 {t3}, {sW}, 1"); A(f"s_mul_i32 {t3}, {t3}, 640"); A(f"s_and_b32 {t4}, {sW}, 1"); A(f"s_lshl_b32 {t4}, {t4}, 1"); A(f"s_add_u32 {t3}, {t3}, {t4}"); A(f"s_add_u32 {t3}, {t3}, {L_OT}")
    A(f"v_mul_u32_u24 {vOTw}, 20, {T_[4]}"); A(f"v_lshl_add_u32 {vOTw}, {T_[8]}, 6, {vOTw}"); A(f"v_lshl_add_u32 {vOTw}, {T_[5]}, 5, {vOTw}")
    A(f"v_lshl_add_u32 {vOTw}, {T_[2]}, 3, {vOTw}"); A(f"v_add_u32 {vOTw}, {t3}, {vOTw}")
    A(f"s_mul_i32 {t3}, {sW}, {4*1152}"); A(f"s_lshl_b32 {t4}, {sJ}, 6"); A(f"s_add_u32 {t3}, {t3}, {t4}"); A(f"s_add_u32 {t3}, {t3}, {Y_O}")
    A(f"v_mul_u32_u24 {vMst}, 18, {T_[5]}"); A(f"v_add_u32 {vMst}, {vMst}, {T_[3]}"); A(f"v_mul_u32_u24 {vMst}, 1152, {vMst}")
    A(f"v_add3_u32 {vMst}, {vMst}, {T_[6]}, {t3}")
    A(f"v_subrev_u32 {vYst}, 1024, {vMst}")
    A(f"v_lshlrev_b32 {vZSg}, 3, v0")
    A(f"s_lshl_b32 {t3}, {t1}, 8"); A(f"s_add_u32 {t3}, {t3}, {ZS_O+512}"); A(f"v_lshl_add_u32 {vSTATr}, {T_[9]}, 3, {t3}")
    zero(ZG, 2)
    A(f"v_mul_u32_u24 {vXS1}, 1152, {T_[5]}"); A(f"v_lshl_add_u32 {vXS2}, {T_[9]}, 2, {vXS1}"); A(f"v_lshl_add_u32 {vXS1}, {T_[9]}, 4, {vXS1}")
    A(f"s_mul_i32 {t4}, {sW}, 384"); A(f"v_add_u32 {vXAm}, {t4}, {vXAm}")
    A(f"s_mul_i32 {t4}, {sX}, 18"); A(f"s_add_u32 {t4}, {t4}, {sJ}"); A(f"s_lshl_b32 {t5}, {t4}, 6")
    A(f"v_lshl_add_u32 {vB1}, {T_[9]}, 1, {t5}")
    A(f"s_mul_i32 {t4}, {sTask}, 1152"); A(f"s_add_u32 {t4}, {t4}, {Y_O}"); A(f"v_lshl_add_u32 {vRg}, v0, 3, {t4}")
    A(f"s_sub_u32 {t4}, {sL}, 80"); A(f"s_and_b32 {t4}, {t4}, 63"); A(f"s_lshl_b32 {t4}, {t4}, 16")
    A(f"s_lshl_b32 {t5}, {sX}, 10"); A(f"s_add_u32 {t5}, {t5}, {t4}"); A(f"v_lshl_add_u32 {vXPg}, v0, 3, {t5}")
    A(f"s_lshl_b32 {t5}, {sX}, 7"); A(f"s_add_u32 {t4}, {t4}, {t5}"); A(f"v_lshl_add_u32 {vXPst}, {T_[8]}, 4, {t4}")
    A(f"v_lshrrev_b32 {T_[7]}, 3, v0"); A(f"v_lshl_add_u32 {vXPst}, {T_[7]}, 10, {vXPst}")
    A(f"v_lshl_add_u32 {T_[7]}, {C}, 1, {T_[5]}")
    A(f"s_lshl_b32 {t4}, {sTask}, 6"); A(f"v_lshl_add_u32 {vZo}, {T_[7]}, 1, {t4}")
    A(f"v_add_u32 {vZst}, {Z1_O}, {vZo}")
    A(f"s_and_b32 {t5}, {sTask}, 7"); A(f"s_cmp_eq_u32 {t5}, {sX}"); A(f"s_cselect_b32 {t5}, 4, 0"); A(f"s_or_b32 {sRole}, {sRole}, {t5}")
    A(f"s_cmp_ge_u32 {sTask}, 18"); A(f"s_cselect_b32 {t5}, 1152, 0")
    A(f"v_subrev_u32 {vB2}, {t5}, {vZo}")
    A(f"s_cselect_b32 {t5}, {256-18*8}, 0"); A(f"s_lshl_b32 {t4}, {sTask}, 3"); A(f"s_add_u32 {t4}, {t4}, {t5}"); A(f"s_add_u32 {t4}, {t4}, {ZS_O}")
    A(f"v_lshl_add_u32 {vZSst}, {T_[2]}, 2, {t4}")

def constants1():
    A(f"v_and_b32 {v(TM+8)}, 1, v0")
    A(f"v_mul_u32_u24 {vIdxD}, 0x5555, {v(TM+8)}"); A(f"v_add_u32 {vIdxD}, 0x8888, {vIdxD}")
    A(f"v_mov_b32 {vOnes}, 0x3f803f80")
    A(f"s_lshl_b32 {t3}, {sW}, 6"); A(f"s_add_u32 {t3}, {t3}, {L_WQ}")
    A(f"v_lshlrev_b32 {vCq}, 10, {G}"); A(f"v_lshl_add_u32 {vCq}, {C}, 2, {vCq}"); A(f"v_add_u32 {vCq}, {t3}, {vCq}")
    for i in range(16, 24): A(f"v_accvgpr_write_b32 {a(aWQ+i)}, 0")
    zero(D0, 8)
    A(f"v_mul_u32_u24 {vLXr}, 144, {B2}"); A(f"v_lshl_add_u32 {vLXr}, {G}, 4, {vLXr}")
    A(f"s_lshl_b32 {t3}, {sW}, 11"); A(f"v_add_u32 {v(TM+8)}, {t3}, {vL16}")
    A(f"ds_write_b128 {v(TM+8)}, {v(D1,4)} offset:1024"); A(f"ds_write_b128 {v(TM+8)}, {v(D1,4)} offset:2048")
    A(f"s_mov_b32 {sTO}, 0x40000"); A(f"s_mov_b32 {sMode}, 0"); A(f"s_mov_b32 {sGp}, {sGf}")
def ln0(n_after):
    A(f"s_cmp_lg_u32 {sW}, 3")
    A("s_cbranch_scc1 L_c1")
    A(f"s_waitcnt vmcnt({n_after})")
    stats_x()
    for i in range(2):
        lo, hi = v(TM+8), v(TM+9)
        A(f"v_lshlrev_b32 {lo}, 16, {v(XG+i)}"); A(f"v_and_b32 {hi}, 0xffff0000, {v(XG+i)}")
        A(f"v_sub_f32 {lo}, {lo}, {S_}"); A(f"v_sub_f32 {hi}, {hi}, {S_}")
        A(f"v_cvt_pk_bf16_f32 {v(XG+i)}, {lo}, {hi}")
        A(f"v_lshlrev_b32 {lo}, 16, {v(XG+i)}"); A(f"v_and_b32 {hi}, 0xffff0000, {v(XG+i)}")
        A(f"v_mul_f32 {lo}, {lo}, {Q_}"); A(f"v_mul_f32 {hi}, {hi}, {Q_}")
        A(f"v_cvt_pk_bf16_f32 {v(XG+i)}, {lo}, {hi}")
    A(f"v_lshrrev_b32 {v(TM+8)}, 5, v0"); A(f"v_mul_u32_u24 {v(TM+8)}, 144, {v(TM+8)}"); A(f"v_and_b32 {v(TM+9)}, 31, v0"); A(f"v_lshl_add_u32 {v(TM+8)}, {v(TM+9)}, 3, {v(TM+8)}")
    A("s_mov_b32 exec_lo, 0x3ffff"); A("s_mov_b32 exec_hi, 0x3ffff")
    A(f"ds_write_b64 {v(TM+8)}, {v(XG,2)} offset:{L_X}")
    A("s_mov_b64 exec, -1")
    A("L_c1:")

fl_load = ["s_mov_b32 exec_hi, 0", f"buffer_load_dwordx4 {v(FG,4)}, {vL16}, {srd(rWS)}, {sXoff} offen sc1", "s_mov_b32 exec_hi, -1"]
qp_store = f"buffer_store_dwordx4 {v(D0,4)}, {vQPst}, {srd(rWS)}, {{so}} offen{{fl}}"
def qg(n): return [f"buffer_load_dwordx{n} {v(QG+4*p,n)}, {vQPg if p < 2 else vQPg2}, {srd(rWS)}, {sGp} offen offset:{2048*(p%2)} sc1" for p in range(4)]
qg4, qg2 = qg(4), qg(2)
def empty_share(base, fl):
    A(f"s_mul_i32 {t5}, {sL}, {CLR}"); A(f"s_add_u32 {t5}, {t5}, {base}")
    A(f"s_mov_b32 exec_hi, {(1 << (CLR//16-32)) - 1}")
    A(f"buffer_store_dwordx4 {v(EM,4)}, {vL16}, {srd(rWS)}, {t5} offen{fl}")
    A("s_mov_b32 exec_hi, -1")
def small_loads():
    A(f"s_mov_b32 {t5}, {EP_O}")
    A(f"buffer_load_dword {FN}, off, {srd(rWS)}, {t5}{NT}")
    A(f"s_cmp_lg_u32 {sW}, 3")
    A("s_cbranch_scc1 L_pro2")
    A(f"v_lshrrev_b32 {v(TM+8)}, 5, v0"); A(f"v_and_b32 {v(TM+9)}, 31, v0")
    A(f"v_mul_u32_u24 {vXS1}, 1152, {v(TM+8)}"); A(f"v_lshl_add_u32 {vXS2}, {v(TM+9)}, 2, {vXS1}"); A(f"v_lshl_add_u32 {v(TM+10)}, {v(TM+9)}, 3, {vXS1}"); A(f"v_lshl_add_u32 {vXS1}, {v(TM+9)}, 4, {vXS1}")
    for l in xs_loads(rX, 0, NT): A(l)
    A(f"s_mul_i32 {t5}, {t2}, 144")
    A(f"buffer_load_dwordx2 {v(XG,2)}, {v(TM+10)}, {srd(rX)}, {t5} offen{NT}")
    A("L_pro2:")
def code_prefetch():
    A(f"s_cmp_ge_u32 s2, 8"); A("s_cbranch_scc1 L_nc")
    A("s_getpc_b64 s[66:67]")
    A("L_pc:")
    A(f"v_lshl_add_u32 {v(TM+8)}, {sW}, 6, v0"); A(f"v_lshlrev_b32 {v(TM+8)}, 7, {v(TM+8)}")
    A(f"v_min_u32 {v(TM+8)}, L_codeend-L_pc-4, {v(TM+8)}")
    A(f"global_load_dword {DUM}, {v(TM+8)}, s[66:67]")
    A("L_nc:")
if args.hw >= 2: setup_k()
if args.code == 1: code_prefetch()
if args.hw >= 3: setup_ws()
A("s_waitcnt lgkmcnt(0)")
pstamp(0)
if args.xf: small_loads()
for n in range(4):
    A(f"buffer_load_dwordx4 {v(TM+6)}, {srd(rWQ)}, {sXoff} offen{NTQ} lds")
    A("s_add_u32 m0, m0, 4096"); A(f"s_add_u32 {sXoff}, {sXoff}, {16*8192}")
if args.hw < 2: setup_k()
A(f"s_cmp_ge_u32 {sW}, 2"); A("s_cbranch_scc1 L_pro1")
A(f"buffer_load_dwordx4 {v(TM+6)}, {srd(rWQ)}, {sXoff} offen{NTQ} lds")
A("L_pro1:")
if args.hw < 3: setup_ws()
if not args.xf: small_loads()
empty_share(sGf, '')
A(f"s_lshl_b32 {t4}, {sW}, 13"); A(f"s_add_u32 m0, {t4}, {L_K}")
for i in range(8):
    if i == 4: A(f"s_add_u32 m0, m0, 4096")
    A(f"buffer_load_dwordx4 {v(KA+i%4)}, {srd(rK)}, {kv0 if i < 4 else kv1} offen offset:{1024*(i%4)}{NTK} lds")
cnt = [8]
mark = {'K': 8}
def vm(s): A(s); cnt[0] += 1
size(rV, 33554432)
def hookS():
    setup_rest()
    if ST and not args.pro:
        for k in range(14): A(f"s_mov_b64 s[{72+2*k}:{73+2*k}], 0")
    pstamp(3)
    for r, off in ((rW1, 48), (rW2, 64), (rOUT, 80), (rT1, 56), (rT2, 72)):
        A(f"s_load_dwordx2 s[{r}:{r+1}], s[0:1], {off}")
    constants1()
    if args.lnf == 2: ln0(1 + cnt[0] + (4 if args.xf else 0))
    A(f"s_lshl_b32 {t4}, {sL}, 9"); A(f"s_add_u32 {t4}, {t4}, {sGf}"); A(f"s_add_u32 {t4}, {t4}, {QP_O}")
    A(f"s_add_u32 {sXoff}, {sGf}, {FF_O}")
    A("s_mov_b64 exec, 15")
    vm(f"buffer_load_dword {DUM}, {vL128}, {srd(rWS)}, {t4} offen sc1{NT}")
    vm(f"buffer_load_dword {DUM}, {vL128}, {srd(rWS)}, {sXoff} offen sc1{NT}")
    A("s_mov_b64 exec, -1")
def hookQ():
    if not args.lnf: ln0(1 + cnt[0] + (4 if args.xf else 0))
    A(f"s_lshl_b32 {t4}, {sL}, 2"); A(f"s_add_u32 {t4}, {t4}, {sXoff}")
    A(f"s_getreg_b32 {t3}, hwreg(HW_REG_XCC_ID)"); A(f"s_lshl_b32 {t3}, {t3}, 28"); A(f"s_or_b32 {t3}, {t3}, 1")
    A(f"s_waitcnt vmcnt({cnt[0]}) lgkmcnt(0)")
    A("s_barrier")
    pstamp(2)
    for l in exec_xa(): A(l)
    for i in range(3):
        if i == 2: A("s_mov_b64 exec, 0x33")
        A(f"ds_read_b128 {v(XA+4*i,4)}, {vLXr} offset:{L_X+64*i}")
    A("s_mov_b64 exec, -1")
    for i in range(2):
        for vv in range(0, 8, 2):
            row = 32*i + 16*(vv >> 2) + (vv & 3)
            A(f"ds_read2st64_b32 {a(aWQ+8*i+vv,2)}, {vCq} offset0:{row} offset1:{row+1}")
    A("s_mov_b32 exec_hi, 0")
    for vv in (0, 2): A(f"ds_read2st64_b32 {a(aWQ+16+vv,2)}, {vCq} offset0:{64+vv} offset1:{65+vv}")
    A("s_mov_b32 exec_hi, -1")
    A(f"v_readfirstlane_b32 {sFlag}, {FN}")
    A(f"s_add_u32 {sFlag}, {sFlag}, 0x0e377902"); A(f"s_and_b32 {sFlag}, {sFlag}, 0x0fffffff"); A(f"s_or_b32 {sFlag}, {sFlag}, {t3}")
    A(f"v_mov_b32 {FN}, {sFlag}")
    A("s_mov_b64 exec, 1")
    vm(f"buffer_store_dword {FN}, {vL16}, {srd(rWS)}, {t4} offen")
    A("s_mov_b64 exec, -1")
    A(f"v_and_b32 {vTag}, 0xff, {FN}"); A(f"s_movk_i32 {t4}, 0xff")
    A("s_waitcnt lgkmcnt(0)")
    for i in range(3): sm(D0, XA+4*i, aWQ+8*i, vIdxD)
    for i in range(4): A(f"v_bfi_b32 {v(D0+i)}, {t4}, {vTag}, {v(D0+i)}")
    A("s_mov_b32 exec_hi, 0")
    vm(qp_store.format(so=sGf, fl=''))
    A("s_mov_b32 exec_hi, -1")
    pstamp(1)
for k in range(9):
    if k == args.pS: hookS()
    if k == args.pC:
        if args.lnf == 1: ln0(1 + cnt[0] + (4 if args.xf else 0))
        constants()
    if k == args.pQ: hookQ()
    if k == 8 - args.vw: mark['V'] = cnt[0]
    if k < 8: vm(f"buffer_load_dwordx4 {a(aV+4*k,4)}, {vL16}, {srd(rV)}, {kv0 if k < 4 else kv1} offen offset:{1024*(k%4)}{NTV}")
    if k == 7: pstamp(9)
TT = v(TM+4)
def slots_touch():
    A(f"s_lshl_b32 {t1}, {sJ}, 2"); A(f"s_add_u32 {t1}, {t1}, {sW}")
    A(f"s_mul_i32 {t3}, {t1}, 896"); A(f"s_add_u32 {t3}, {t3}, {sGf}"); A(f"s_add_u32 {t3}, {t3}, {Y_O}")
    A("s_mov_b64 exec, 0x7f")
    A(f"buffer_load_dword {DUM}, {vL128}, {srd(rWS)}, {t3} offen sc1{NT}")
    A("s_mov_b64 exec, -1")
assert Y_O + 64 * 896 >= ZS_O + 1536
def w1_touch():
    A(f"s_lshl_b32 {t1}, {sJ}, 2"); A(f"s_add_u32 {t1}, {t1}, {sW}")
    A(f"s_mul_i32 {t4}, {sX}, 576"); A(f"s_add_u32 {t4}, {t4}, {t1}"); A(f"s_add_u32 {t4}, {t4}, 512"); A(f"s_mul_i32 {t4}, {t4}, 1152")
    A(f"s_mul_i32 {t1}, {t1}, {9*9216}")
    A(f"s_mul_i32 {t3}, {sX}, 1152"); A(f"s_add_u32 {t1}, {t1}, {t3}"); A(f"s_add_u32 {t3}, {t1}, {5*9216}")
    A(f"v_mul_u32_u24 {TT}, 57, v0"); A(f"v_lshrrev_b32 {TT}, 9, {TT}"); A(f"v_mul_u32_u24 {TT}, {9216-1152}, {TT}"); A(f"v_add_u32 {TT}, {TT}, {vL128}")
    A("s_mov_b32 exec_hi, 0x1fff")
    A(f"buffer_load_dword {DUM}, {TT}, {srd(rW1)}, {t1} offen{NTT}")
    A("s_mov_b32 exec_hi, 15")
    A(f"buffer_load_dword {DUM}, {TT}, {srd(rW1)}, {t3} offen{NTT}")
    A("s_mov_b64 exec, 0x1ff")
    A(f"buffer_load_dword {DUM}, {vL128}, {srd(rW2)}, {t4} offen{NTT}")
    A("s_mov_b64 exec, -1")
def w2_loads():
    l1 = A.newlabel('L_w2')
    A(f"s_mul_i32 {t0}, {sX}, 18"); A(f"s_add_u32 {t0}, {t0}, {sJ}"); A(f"s_mul_i32 {t0}, {t0}, {32*1152}")
    A(f"s_lshl_b32 {t1}, {sW}, 8"); A(f"s_add_u32 {t1}, {t1}, {t0}")
    for i in range(8):
        A(f"buffer_load_dwordx4 {a(aW2+4*i,4)}, {vWrow}, {srd(rW2)}, {t1} offen{NT2}")
        if i < 7: A(f"s_add_u32 {t1}, {t1}, 4608")
    A(f"s_cmp_lg_u32 {sW}, 3")
    A(f"s_cbranch_scc1 {l1}")
    A(f"s_mov_b64 exec, {mLO8}")
    for i in range(8):
        A(f"buffer_load_dwordx4 {a(aW2t+4*i,4)}, {vWrow}, {srd(rW2)}, {t0} offen offset:1024{NT2}")
        if i < 7: A(f"s_add_u32 {t0}, {t0}, 4608")
    A("s_mov_b64 exec, -1")
    A(f"{l1}:")
def wo_loads(k0, k1, with_tail):
    for k in range(k0, k1):
        A(f"buffer_load_dwordx4 {a(aWO+4*k,4)}, {vWrow}, {srd(rWO)}, {sWo} offen{NTO}")
        A(f"s_add_u32 {sWo}, {sWo}, 4608")
    if with_tail:
        l1 = A.newlabel('L_wt')
        A(f"s_cmp_lg_u32 {sW}, 3")
        A(f"s_cbranch_scc1 {l1}")
        A(f"s_mov_b64 exec, {mLO8}")
        for i in range(7, -1, -1):
            A(f"s_sub_u32 {sWo}, {sWo}, 4608")
            A(f"buffer_load_dwordx4 {a(aWOt+4*i,4)}, {vWrow}, {srd(rWO)}, {sWo} offen offset:256{NTO}")
        A("s_mov_b64 exec, -1")
        A(f"{l1}:")
if args.pC > 8: constants()
pstamp(4)
stamp()
A("s_waitcnt lgkmcnt(0)")
if args.kw: A(f"s_waitcnt vmcnt({ {1: cnt[0]-mark['K'], 2: 6, 3: 4, 4: 2}[args.kw] })")
A(f"s_mov_b32 {sXPo}, {XP_O}")
A(f"s_cmp_lt_u32 {sJ}, 16")
A("s_cbranch_scc1 L_g1n")
A(f"v_readfirstlane_b32 {t4}, {vOPg}"); A(f"v_readfirstlane_b32 {t5}, {vSTg}")
A(f"s_add_u32 {t4}, {t4}, {sGf}"); A(f"s_add_u32 {t5}, {t5}, {sGf}")
A("s_mov_b64 exec, 0xff")
A(f"buffer_load_dword {DUM}, {vL128}, {srd(rWS)}, {t4} offen sc1{NT}")
A("s_mov_b64 exec, 3")
A(f"buffer_load_dword {DUM}, {vL128}, {srd(rWS)}, {t5} offen sc1{NT}")
A("s_mov_b64 exec, -1")
A(f"buffer_load_ushort {vXres}, {vZo}, {srd(rX)}, 0 offen{NT}")
A(f"buffer_load_ushort {vB2}, {vB2}, {srd(rT2)}, 0 offen{NT}")
wo_loads(0, 8, True)
A("s_branch L_g1o")
A("L_g1n:")
if 's' in args.early: slots_touch()
if '1' in args.early: w1_touch()
if '2' in args.early: w2_loads()
A("L_g1o:")
pstamp(6)
A("s_waitcnt vmcnt(8)")
for T in range(2):
    for q in range(4): A(f"ds_read_b128 {a(aK+16*T+4*q,4)}, {v(KR+q)} offset:{4096*T}")
A(f"s_waitcnt vmcnt({args.vw})")
if ST and not args.pro and ONLY is None: A(f"s_memrealtime s[74:75]")
pstamp(5)
def flags_diff():
    A(f"v_xor_b32 {CK}, {sFlag}, {v(FG)}")
    for i in range(1, 4): A(f"v_bitop3_b32 {CK}, {CK}, {v(FG+i)}, {sFlag} bitop3:0xf6")
st_rd = f"ds_read_b64 {v(TM,2)}, {vSTATr}"
A("L_g4:")
for l in fl_load + qg4: A(l)
A("s_waitcnt vmcnt(0)")
pstamp(7)
flags_diff()
A(f"v_cmp_ne_u32 vcc, 0, {CK}")
A("s_cmp_lg_u32 vcc_lo, 0")
if args.forcefb: A("s_cmp_eq_u32 0, 0")
A("s_cbranch_scc1 L_af2")
A(f"s_mov_b32 {sMode}, 0")
A("L_g2:")
for i in range(16): A(f"v_xor_b32 {v(QG+i)}, {vTag}, {v(QG+i)}")
A(f"v_or3_b32 {CK}, {v(QG)}, {v(QG+1)}, {v(QG+2)}")
for i in range(3, 15, 2): A(f"v_or3_b32 {CK}, {CK}, {v(QG+i)}, {v(QG+i+1)}")
A(f"v_or_b32 {CK}, {CK}, {v(QG+15)}")
A(f"v_and_b32 {CK}, 0xff, {CK}")
A(f"v_cmp_ne_u32 vcc, 0, {CK}")
A("s_cbranch_vccnz L_g5")
A("L_g3:")
A(f"s_mov_b32 {sL}, 0")
zero(D0)
A(f"v_mov_b32 {v(TM)}, 0"); A(f"v_mov_b32 {v(TM+1)}, 1.0")
tail.append("L_g5:\n" + timeout("L_g4", "L_g3"))
pstamp(8)
A(f"v_add_f32 {v(TM+2)}, {v(QG+2)}, {v(QG+6)}"); A(f"v_add_f32 {v(TM+3)}, {v(QG+3)}, {v(QG+7)}")
A(f"v_add_f32 {v(TM+4)}, {v(QG+10)}, {v(QG+14)}"); A(f"v_add_f32 {v(TM+5)}, {v(QG+11)}, {v(QG+15)}")
A(f"v_add_f32 {v(TM+2)}, {v(TM+2)}, {v(TM+4)}"); A(f"v_add_f32 {v(TM+3)}, {v(TM+3)}, {v(TM+5)}")
A(f"v_permlane32_swap_b32 {v(TM+2)}, {v(TM+3)}")
A(f"v_add_f32 {vCq}, {v(TM+2)}, {v(TM+3)}")
A("s_branch L_qfin")

A("L_layer:")
zero(D0, 8)
def quiet_wait(so_add):
    if not args.pre: return
    A(f"s_add_u32 {t5}, {sGp}, {so_add}")
    A("s_mov_b64 exec, 1")
    poll([f"buffer_load_dword {DUM}, {vL16}, {srd(rWS)}, {t5} offen sc1"] + ([f"s_sleep {args.pre-1}"] if args.pre > 1 else []), [DUM])
    A("s_mov_b64 exec, -1")
    if args.zd: A(f"s_sleep {args.zd}")
if args.pre:
    A(f"s_bitcmp1_b32 {sRole}, 1"); A("s_cbranch_scc1 L_q0")
    quiet_wait(AN_O)
    A("L_q0:")
def q_pub():
    A(f"v_and_b32 {v(D0)}, -2, {v(D0)}"); A(f"v_and_b32 {v(D0+1)}, -2, {v(D0+1)}")
    A("s_mov_b32 exec_hi, 0")
    pub(f"buffer_store_dwordx2 {v(D0,2)}, {vQPst}, {srd(rWS)}, {{so}} offen{{fl}}")
    A("s_mov_b32 exec_hi, -1")
poll_proj(vXAq, sXoff, 3, aWQ, True)
q_pub()
nst[0] = 1
stamp()
zero(D0)
qregs = [v(QG+4*p+i) for p in range(4) for i in range(2)]
qchk1 = [f"v_or3_b32 {CK}, {qregs[0]}, {qregs[1]}, {qregs[2]}", f"v_or3_b32 {CK}, {CK}, {qregs[3]}, {qregs[4]}", f"v_or3_b32 {CK}, {CK}, {qregs[5]}, {qregs[6]}",
         f"v_bitop3_b32 {CK}, {CK}, {qregs[7]}, 1 bitop3:0xa8", f"v_cmp_ne_u32 vcc, 0, {CK}"]
poll(zs_load(vSTATr, sGp), [v(ZG), v(ZG+1)])
for l in qg2: A(l)
A(f"v_mov_b32 {S_}, {v(ZG)}"); A(f"v_mov_b32 {Q_}, {v(ZG+1)}")
stats_tail1(); stats_tail2()
poll(qg2, qregs, primed=True, chk=qchk1, site='q')
A("L_qfin:")
stamp()
A(f"v_add_f32 {v(TM+2)}, {v(QG)}, {v(QG+4)}"); A(f"v_add_f32 {v(TM+3)}, {v(QG+1)}, {v(QG+5)}")
A(f"v_add_f32 {v(TM+4)}, {v(QG+8)}, {v(QG+12)}"); A(f"v_add_f32 {v(TM+5)}, {v(QG+9)}, {v(QG+13)}")
A(f"v_add_f32 {v(TM+2)}, {v(TM+2)}, {v(TM+4)}"); A(f"v_add_f32 {v(TM+3)}, {v(TM+3)}, {v(TM+5)}")
A(f"v_permlane32_swap_b32 {v(TM+2)}, {v(TM+3)}")
A(f"v_add_f32 {v(TM+2)}, {v(TM+2)}, {v(TM+3)}")
A(f"v_fma_f32 {v(TM+2)}, -{v(TM)}, {vCq}, {v(TM+2)}")
A(f"v_mul_f32 {v(TM+2)}, {v(TM+2)}, {v(TM+1)}")
A(f"v_cvt_pk_bf16_f32 {v(TM+2)}, {v(TM+2)}, {v(TM+2)}")
A(f"ds_write_b16 {vQTw}, {v(TM+2)} offset:{L_QT}")
A("s_mov_b32 vcc_lo, 0xaaaaaaaa"); A("s_mov_b32 vcc_hi, 0xaaaaaaaa")
zero(DP)
A("s_waitcnt lgkmcnt(0)")
A("s_barrier")
A(f"ds_read_b128 {v(AO,4)}, {vQTr} offset:{L_QT}")
A(f"ds_read_b128 {v(AO+4,4)}, {vQTr} offset:{L_QT+256}")
if args.mid:
    A(f"s_lshr_b32 {t0}, {sJ}, 4"); A(f"s_or_b32 {t0}, {t0}, {sL}")
    A("s_cbranch_scc1 L_mid")
    if 's' in args.mid: slots_touch()
    if '1' in args.mid: w1_touch()
    if '2' in args.mid: w2_loads()
    A("L_mid:")
A(f"s_waitcnt lgkmcnt({lg(1)})")
sm(D0, AO, aK, vIdxP); sm(D1, AO, aK+16, vIdxP)
A("s_waitcnt lgkmcnt(0)")
sm(D0, AO+4, aK+8, vIdxP); sm(D1, AO+4, aK+24, vIdxP)
SC, MX, P_, LS, TT = v(TM), v(TM+1), v(TM+2), v(TM+3), v(TM+4)
A(f"v_add_f32 {SC}, {v(D0)}, {v(D0+1)}")
A(f"v_add_f32 {TT}, {v(D1)}, {v(D1+1)}")
A(f"v_cndmask_b32 {SC}, {SC}, {TT}, {mROW}")
rbf(SC, SC)
A(f"v_mul_f32 {SC}, {f32(128 ** -0.5)}, {SC}")
rbf(SC, SC)
A(f"v_mul_f32 {SC}, {f32(1.4426950408889634)}, {SC}")
zero(D0, 2)
A(f"v_max_f32_dpp {MX}, {SC}, {SC} row_ror:8 row_mask:0xf bank_mask:0xf")
for n, k in enumerate((4, 2, 1)):
    zero(D0+2+2*n, 2)
    if k == 1: A(f"v_max_f32_dpp {TT}, {MX}, {MX} row_ror:{k} row_mask:0xf bank_mask:0xf")
    A(f"v_max_f32_dpp {MX}, {MX}, {MX} row_ror:{k} row_mask:0xf bank_mask:0xf")
A(f"v_permlane16_swap_b32 {MX}, {TT}")
A(f"v_max_f32 {MX}, {MX}, {TT}")
A(f"v_sub_f32 {P_}, {SC}, {MX}")
A(f"v_exp_f32 {P_}, {P_}")
A(f"v_cvt_pk_bf16_f32 {TT}, {P_}, 0")
A(f"ds_write2_b32 {vPTw}, {TT}, {TT} offset1:5")
for i in range(4): A(f"ds_read_b128 {v(AO+4*i,4)}, {vPTr} offset:{128*i}")
A(f"v_add_f32_dpp {LS}, {P_}, {P_} row_ror:8 row_mask:0xf bank_mask:0xf")
for k in (4, 2, 1): A(f"v_add_f32_dpp {LS}, {LS}, {LS} row_ror:{k} row_mask:0xf bank_mask:0xf")
A(f"v_mov_b32 {SC}, {LS}")
A(f"v_permlane16_swap_b32 {LS}, {SC}")
A(f"v_add_f32 {LS}, {LS}, {SC}")
A(f"v_cndmask_b32 {SC}, {MX}, {LS}, vcc")
A("s_mov_b32 exec_lo, 3"); A("s_mov_b32 exec_hi, 3")
pub(f"buffer_store_dword {SC}, {vSTst}, {srd(rWS)}, {{so}} offen{{fl}}")
A("s_mov_b64 exec, -1")
for i in range(4):
    A(f"s_waitcnt lgkmcnt({lg(3-i)})")
    sm(DP, AO+4*i, aV+8*i, vIdxS)
def pack4(d):
    A(f"v_cvt_pk_bf16_f32 {v(d)}, {v(d)}, {v(d+1)}"); A(f"v_cvt_pk_bf16_f32 {v(d+1)}, {v(d+2)}, {v(d+3)}")
pack4(DP)
pub(f"buffer_store_dwordx2 {v(DP,2)}, {vOPst}, {srd(rWS)}, {{so}} offen{{fl}}")
stamp()
E = TM + 5
R = TM + 12
def tile_out(wb, tb, vst, drain):
    l1 = A.newlabel('L_t'); l2 = A.newlabel('L_t')
    for i in range(4):
        A(f"s_waitcnt lgkmcnt({lg(3-i)})")
        sm(D0, AO+4*i, wb+8*i, vIdxS)
    A(f"s_cmp_lg_u32 {sW}, 3")
    A(f"s_cbranch_scc1 {l1}")
    for i in range(1 if 'notail' in args.exp else 4): sm(D1, AO+4*i, tb+8*i, vIdxS)
    A(f"{l1}:")
    A("s_waitcnt vmcnt(0)" if drain else "s_nop 0")
    A("s_nop 4")
    pack4(D0)
    pub(f"buffer_store_dwordx2 {v(D0,2)}, {vst}, {srd(rWS)}, {{so}} offen{{fl}}")
    A(f"s_cmp_lg_u32 {sW}, 3")
    A(f"s_cbranch_scc1 {l2}")
    pack4(D1)
    A(f"s_mov_b64 exec, {mLO8}")
    pub(f"buffer_store_dwordx2 {v(D1,2)}, {v(E+2)}, {srd(rWS)}, {{so}} offen{{fl}}")
    A("s_mov_b64 exec, -1")
    A(f"{l2}:")
A(f"s_cmp_lt_u32 {sJ}, 16")
A("s_cbranch_scc1 L_mlp")
op_load = [f"buffer_load_dwordx2 {v(OG+2*i,2)}, {vOPg}, {srd(rWS)}, {sGp} offen offset:{512*i} sc1" for i in range(2)]
A(f"v_add_u32 {v(E+6)}, {4*1152}, {vYst}")
if args.sd: A(f"s_sleep {args.sd}")
if 'nost' not in args.exp.split(','): poll([f"buffer_load_dwordx4 {v(SG,4)}, {vSTg}, {srd(rWS)}, {sGp} offen sc1",
      f"buffer_load_dwordx4 {v(SG+4,4)}, {vSTg}, {srd(rWS)}, {sGp} offen offset:128 sc1",
      f"buffer_load_dwordx2 {v(SG+8,2)}, {vSTm}, {srd(rWS)}, {sGp} offen sc1"], [v(SG+i) for i in range(10 if 's' in PD else 8)], site='s')
for l in op_load: A(l)
if 'noweights' in args.exp: A("s_branch L_exw")
A(f"v_max3_f32 {MX}, {v(SG)}, {v(SG+1)}, {v(SG+2)}")
A(f"v_max_f32 {MX}, {MX}, {v(SG+3)}")
A(f"v_max_f32_dpp {TT}, {MX}, {MX} row_ror:8 row_mask:0xf bank_mask:0xf")
A(f"v_max_f32_dpp {MX}, {MX}, {MX} row_ror:8 row_mask:0xf bank_mask:0xf")
A(f"v_permlane16_swap_b32 {MX}, {TT}"); A(f"v_max_f32 {SC}, {MX}, {TT}"); A(f"v_max_f32 {MX}, {MX}, {TT}")
A(f"v_permlane32_swap_b32 {MX}, {SC}"); A(f"v_max_f32 {MX}, {MX}, {SC}")
for n, i in enumerate((0, 1, 2, 3, 8, 9)): A(f"v_sub_f32 {v(E+n)}, {v(SG+i)}, {MX}")
for n in range(6): A(f"v_exp_f32 {v(E+n)}, {v(E+n)}")
A(f"v_mul_f32 {LS}, {v(E)}, {v(SG+4)}")
for i in (1, 2, 3): A(f"v_fmac_f32 {LS}, {v(E+i)}, {v(SG+4+i)}")
A(f"v_add_f32_dpp {TT}, {LS}, {LS} row_ror:8 row_mask:0xf bank_mask:0xf")
A(f"v_add_f32_dpp {LS}, {LS}, {LS} row_ror:8 row_mask:0xf bank_mask:0xf")
A(f"v_permlane16_swap_b32 {LS}, {TT}"); A(f"v_add_f32 {SC}, {LS}, {TT}"); A(f"v_add_f32 {LS}, {LS}, {TT}")
A("L_exw:")
poll(op_load, [v(OG+i) for i in range(4)], primed=True, site='o')
stamp()
A(f"v_permlane32_swap_b32 {LS}, {SC}")
def unpack2(dst, src):
    for i in range(2):
        A(f"v_lshlrev_b32 {v(dst+2*i)}, 16, {v(src+i)}"); A(f"v_and_b32 {v(dst+2*i+1)}, 0xffff0000, {v(src+i)}")
unpack2(R, OG); unpack2(OG+4, OG+2)
for i in (0, 2): A(f"v_pk_mul_f32 {v(R+i,2)}, {v(R+i,2)}, {v(E+3,2)} op_sel:[0,1] op_sel_hi:[1,1]")
for i in (0, 2): A(f"v_pk_fma_f32 {v(R+i,2)}, {v(OG+4+i,2)}, {v(E+5,2)}, {v(R+i,2)} op_sel_hi:[1,0,1]")
A(f"v_add_f32 {LS}, {LS}, {SC}")
A(f"v_mov_b32 {v(E+2)}, {v(E+6)}")
A(f"v_permlane32_swap_b32 {v(R)}, {v(R+2)}")
A(f"v_permlane32_swap_b32 {v(R+1)}, {v(R+3)}")
A(f"v_add_f32 {v(R)}, {v(R)}, {v(R+2)}")
A(f"v_add_f32 {v(R+1)}, {v(R+1)}, {v(R+3)}")
A(f"v_rcp_f32 {LS}, {LS}")
A(f"v_permlane16_swap_b32 {v(R)}, {v(R+1)}")
A(f"v_add_f32 {v(R)}, {v(R)}, {v(R+1)}")
A(f"v_add_f32_dpp {v(R)}, {v(R)}, {v(R)} row_ror:8 row_mask:0xf bank_mask:0xf")
A(f"v_mul_f32 {v(R)}, {v(R)}, {LS}")
A(f"v_cvt_pk_bf16_f32 {TT}, {v(R)}, {v(R)}")
A(f"ds_write_b16 {vOTw}, {TT}")
A(f"s_cmp_lg_u32 {sL}, 0")
A("s_cbranch_scc1 L_o3")
pub(*[f"buffer_store_dwordx2 {v(EM,2)}, {vOPg}, {srd(rWS)}, {{so}} offen offset:{512*i}{{fl}}" for i in range(2)])
A("L_o3:")
A("s_waitcnt lgkmcnt(0)")
A("s_barrier")
for i in range(4): A(f"ds_read_b128 {v(AO+4*i,4)}, {vOTr} offset:{128*i}")
tile_out(aWO, aWOt, vYst, True)
stamp()

def reducer(kind):
    ld = [f"buffer_load_dwordx2 {v(YG+2*i,2)}, {vRg}, {srd(rWS)}, {sGp} offen offset:{512*i} sc1" for i in range(2)]
    A(f"s_movk_i32 {t4}, 0xff"); A(f"s_add_u32 {t3}, {sXPo}, 8192")
    zero(R)
    if kind == 'A': zero(YG+4, 2)
    if kind == 'A':
        if args.yd: A(f"s_sleep {args.yd}")
        poll(ld, [v(YG+i) for i in range(4)], site='y')
    else:
        poll(ld + ["s_mov_b64 exec, 0xffff", f"buffer_load_dwordx2 {v(YG+4,2)}, {vRg}, {srd(rWS)}, {sGp} offen offset:1024 sc1", "s_mov_b64 exec, -1"],
             [v(YG+i) for i in range(6)], site='y')
    stamp()
    A(f"v_smfmac_f32_16x16x64_bf16 {v(R,4)}, {v(YG+8,4)}, {v(YG,8)}, {vIdxS}")
    for i in range(4): A(f"v_add_f32_dpp {v(R+i)}, {v(R+i)}, {v(R+i)} row_ror:8 row_mask:0xf bank_mask:0xf")
    for i in range(4): A(f"v_bfi_b32 {v(R+i)}, {t4}, {vTag}, {v(R+i)}")
    A(f"buffer_store_dwordx4 {v(R,4)}, {vXPst}, {srd(rWS)}, {sXPo} offen sc1")
    if args.near: A(f"buffer_store_dwordx4 {v(R,4)}, {vXPst}, {srd(rWS)}, {t3} offen sc1")
    if kind == 'M':
        A(f"s_lshl_b32 {t0}, {sL}, 2"); A(f"s_andn2_b32 {t0}, {t0}, {sRole}")
        A("s_cbranch_scc1 L_fin")
    cl = [f"buffer_store_dwordx2 {v(EM,2)}, {vRg}, {srd(rWS)}, {{so}} offen offset:{512*i}{{fl}}" for i in range(2)]
    if kind == 'M': cl += ["s_mov_b64 exec, 0xffff", f"buffer_store_dwordx2 {v(EM,2)}, {vRg}, {srd(rWS)}, {{so}} offen offset:1024{{fl}}", "s_mov_b64 exec, -1"]
    pub(*cl)
    if args.pre:
        lb = A.newlabel('L_an')
        A(f"s_cmp_lg_u32 {sTask}, 0"); A(f"s_cbranch_scc1 {lb}")
        if kind == 'A': A(f"s_cmp_eq_u32 {sL}, 0"); A(f"s_cbranch_scc1 {lb}")
        A(f"v_mov_b32 {TT}, {AN_O + (0 if kind == 'M' else 4)}")
        A("s_mov_b64 exec, 1")
        pub(f"buffer_store_dword {vL16}, {TT}, {srd(rWS)}, {{so}} offen{{fl}}")
        A("s_mov_b64 exec, -1")
        A(f"{lb}:")
    if args.near:
        A(f"v_mov_b32 {TT}, 0")
        A(f"ds_read_b32 {TT}, {TT} offset:{L_NEAR}")
    if args.xd: A(f"s_sleep {args.xd}")
    if args.near:
        A("s_waitcnt lgkmcnt(0)")
        A(f"v_or_b32 {vXPg}, {vXPg}, {TT}")
    poll([f"buffer_load_dwordx2 {v(XG,2)}, {vXPg}, {srd(rWS)}, {sXPo} offen sc1",
          f"buffer_load_dwordx2 {v(XG+2,2)}, {vXPg}, {srd(rWS)}, {sXPo} offen offset:512 sc1"], None, site='x',
         chk=[f"v_xor_b32 {v(R+i)}, {vTag}, {v(XG+i)}" for i in range(4)] +
             [f"v_or3_b32 {CK}, {v(R)}, {v(R+1)}, {v(R+2)}", f"v_bitop3_b32 {CK}, {CK}, {v(R+3)}, {t4} bitop3:0xa8", f"v_cmp_ne_u32 vcc, 0, {CK}"])
    stamp()
    Y = v(R)
    A(f"v_add_f32 {v(R)}, {v(R)}, {v(R+2)}"); A(f"v_add_f32 {v(R+1)}, {v(R+1)}, {v(R+3)}")
    A(f"v_permlane32_swap_b32 {v(R)}, {v(R+1)}")
    A(f"v_add_f32 {TT}, {v(R)}, {v(R+1)}"); A(f"v_add_f32 {Y}, {v(R)}, {v(R+1)}")
    A(f"v_permlane16_swap_b32 {Y}, {TT}"); A(f"v_add_f32 {Y}, {Y}, {TT}")
    rbf(Y, Y)
    if kind == 'M':
        A(f"v_add_f32 {Y}, {Y}, {vB2}"); rbf(Y, Y)
    A(f"v_add_f32 {TT}, {Y}, {vXres}")
    A(f"v_add_f32 {v(R+1)}, {Y}, {vXres}")
    A(f"v_add_f32 {Y}, {Y}, {vXres}")
    A("s_mov_b64 exec, -1")
    A(f"v_permlane32_swap_b32 {TT}, {v(R+1)}")
    A(f"v_cvt_pk_bf16_f32 {TT}, {TT}, {v(R+1)}")
    A("s_mov_b64 exec, 0xffff")
    if kind == 'M':
        A(f"s_cmp_lg_u32 {sL}, 0")
        A("s_cbranch_scc1 L_out")
    pub(f"buffer_store_dword {TT}, {vZst}, {srd(rWS)}, {{so}} offen{{fl}}")
    A("s_mov_b64 exec, -1")
    stamp()
    rbf(vXres, Y)
    if kind == 'M' or args.ms != 'x':
        A(f"v_mul_f32 {TT}, {vXres}, {vXres}")
        A(f"v_cndmask_b32 {TT}, {vXres}, {TT}, {mROW}")
        for k in (8, 4, 2): A(f"v_add_f32_dpp {TT}, {TT}, {TT} row_ror:{k} row_mask:0xf bank_mask:0xf")
        A(f"v_add_f32_dpp {Y}, {TT}, {TT} row_ror:1 row_mask:0xf bank_mask:0xf")
        A(f"v_add_f32_dpp {TT}, {TT}, {TT} row_ror:1 row_mask:0xf bank_mask:0xf")
        A(f"v_permlane32_swap_b32 {TT}, {Y}")
        A(f"v_add_f32 {TT}, {TT}, {Y}")
        A("s_mov_b64 exec, 0x10001")
        pub(f"buffer_store_dword {TT}, {vZSst}, {srd(rWS)}, {{so}} offen{{fl}}")
        A("s_mov_b64 exec, -1")
    A(f"v_add_u32 {vZSst}, 512, {vZSst}")
    A(f"v_add_u32 {vZst}, 2304, {vZst}")
    A(f"s_add_u32 {sXPo}, {sXPo}, {XPS}")

A(f"s_bitcmp1_b32 {sRole}, 0")
A("s_cbranch_scc1 L_mlp")
A(f"s_bitcmp1_b32 {sRole}, 1")
A("s_cbranch_scc0 L_probe" if args.near else "s_cbranch_scc0 L_next")
A(f"s_cmp_lg_u32 {sL}, 0")
A("s_cbranch_scc1 L_red")
A(f"v_lshlrev_b32 {vXres}, 16, {vXres}"); A(f"v_lshlrev_b32 {vB2}, 16, {vB2}")
zero(YG+6, 2)
for i in range(4): A(f"v_mov_b32 {v(YG+8+i)}, 0x3f80")
A("L_red:")
k0 = nst[0]
reducer('A'); reducer('M')
kr = nst[0]
A("s_branch L_next")
A("L_mlp:")
nst[0] = k0
A(f"s_cmp_lg_u32 {sL}, 0")
A("s_cbranch_scc1 L_m1")
A(f"s_mul_i32 {t0}, {sX}, 18"); A(f"s_add_u32 {t0}, {t0}, {sJ}")
A(f"s_lshl_b32 {t2}, {t0}, 6")
A(f"buffer_load_ushort {vB1}, {vB1}, {srd(rT1)}, 0 offen{NT}")
A(f"s_cmp_ge_u32 {sJ}, 16")
A("s_cbranch_scc1 L_m0b")
if args.xt:
    A(f"s_lshl_b32 {t1}, {sJ}, 2"); A(f"s_add_u32 {t1}, {t1}, {sW}"); A(f"s_mul_i32 {t1}, {t1}, 36")
    A(f"v_add_u32 {TT}, {t1}, v0")
    A(f"v_lshrrev_b32 {LS}, 6, {TT}"); A(f"v_mul_u32_u24 {MX}, 43, {LS}"); A(f"v_lshrrev_b32 {MX}, 7, {MX}"); A(f"v_add_u32 {LS}, {LS}, {MX}")
    A(f"v_bfe_u32 {MX}, {TT}, 3, 3"); A(f"v_lshl_add_u32 {LS}, {LS}, 3, {MX}"); A(f"v_and_b32 {TT}, 7, {TT}"); A(f"v_lshlrev_b32 {TT}, 7, {TT}"); A(f"v_lshl_add_u32 {TT}, {LS}, 13, {TT}")
    A(f"s_lshl_b32 {t1}, {sX}, 10"); A(f"s_add_u32 {t1}, {t1}, {XP_O}")
    A(f"v_mov_b32 {LS}, 0")
    A("s_mov_b32 exec_hi, 15")
    A(f"buffer_atomic_or {LS}, {TT}, {srd(rWS)}, {t1} offen")
    A("s_mov_b32 exec_hi, -1")
if 's' not in args.early + args.mid: slots_touch()
if '1' not in args.early + args.mid: w1_touch()
if '2' in args.early + args.mid: A("s_branch L_m0d")
A("L_m0b:")
w2_loads()
A("L_m0d:")
A(f"s_cmp_eq_u32 {sW}, 3")
A("s_cbranch_scc1 L_m0c")
A("L_m0a:")
A(f"s_mul_i32 {t0}, {sW}, {192*9216}"); A(f"s_add_u32 {t0}, {t0}, {t2}")
if args.w1dma:
    A(f"v_lshrrev_b32 {TT}, 2, v0"); A(f"v_mul_u32_u24 {TT}, 9216, {TT}"); A(f"v_and_b32 {LS}, 3, v0"); A(f"v_lshl_add_u32 {TT}, {LS}, 4, {TT}")
    A(f"s_mul_i32 {t1}, {sW}, 12288"); A(f"s_add_u32 {t1}, {t1}, {L_K}"); A(f"s_mov_b32 m0, {t1}")
    for i in range(12):
        A(f"buffer_load_dwordx4 {TT}, {srd(rW1)}, {t0} offen{NTM} lds")
        if i < 11: A(f"s_add_u32 {t0}, {t0}, {16*9216}"); A("s_add_u32 m0, m0, 1024")
    A(f"v_lshrrev_b32 {TT}, 4, v0"); A(f"v_lshlrev_b32 {TT}, 8, {TT}"); A(f"v_and_b32 {LS}, 15, v0"); A(f"v_lshl_add_u32 {TT}, {LS}, 2, {TT}"); A(f"v_add_u32 {TT}, {t1}, {TT}")
    A("s_waitcnt vmcnt(0)")
    for i in range(6):
        for hh in range(2):
            for p in range(2):
                A(f"ds_read2_b32 {a(aW1+8*i+4*hh+2*p,2)}, {TT} offset0:{32*p} offset1:{32*p+16}")
            if (i, hh) != (5, 1): A(f"v_add_u32 {TT}, 1024, {TT}")
    A("s_waitcnt lgkmcnt(0)")
else:
    A(f"v_lshrrev_b32 {TT}, 4, v0"); A(f"v_mul_u32_u24 {TT}, {4*9216}, {TT}"); A(f"v_and_b32 {LS}, 15, v0"); A(f"v_lshl_add_u32 {TT}, {LS}, 2, {TT}")
    prev = 0
    for i in range(6):
        for vv in range(8):
            row = 32*i + 16*(vv >> 2) + (vv & 3)
            if row != prev: A(f"s_add_u32 {t0}, {t0}, {(row-prev)*9216}")
            prev = row
            A(f"buffer_load_dword {a(aW1+8*i+vv)}, {TT}, {srd(rW1)}, {t0} offen{NTM}")
A("L_m0c:")
if ST: A("s_memrealtime s[94:95]"); A("s_waitcnt vmcnt(0)"); A("s_memrealtime s[96:97]")
A("s_waitcnt vmcnt(0)")
A(f"v_lshlrev_b32 {vB1}, 16, {vB1}")
A("L_m1:")
zero(D0, 8)
c0 = -2 * 1.4426950408889634 * 0.7978845608028654
A(f"v_mov_b32 {v(E)}, {f32(c0)}")
A(f"v_add_u32 {v(E+2)}, {4*1152}, {vMst}")
A(f"s_mul_i32 {t0}, {sL}, {Z3_O-Z1_O}"); A(f"s_add_u32 {t0}, {t0}, {sGp}"); A(f"s_add_u32 {t0}, {t0}, {Z1_O}")
if args.pre:
    A(f"s_cmp_eq_u32 {sL}, 0"); A("s_cbranch_scc1 L_m1b")
    quiet_wait(AN_O + 4)
    A("L_m1b:")
A(f"s_lshl_b32 {t1}, {sL}, 10"); A(f"s_add_u32 {t1}, {t1}, {sGp}"); A(f"s_add_u32 {t1}, {t1}, {ZS_O}")
A(f"v_lshrrev_b32 {v(E+1)}, 5, v0"); A(f"v_lshlrev_b32 {v(E+1)}, 3, {v(E+1)}")
A(f"s_cmp_eq_u32 {sW}, 3")
A("s_cbranch_scc1 L_m2")
poll_proj(vXAm, t0, 6, aW1)
A("s_mov_b32 exec_hi, 0")
A(f"ds_write_b128 {vHPw}, {v(D0,4)}")
A("s_mov_b32 exec_hi, -1")
A("s_branch L_m2b")
A("L_m2:")
if args.ms == 'x':
    if 'nostat' not in args.exp:
        poll(xs_loads(rWS, t0, ' sc1'), [v(XS+i) for i in range(9)], site='z')
        stats_x()
    else: A(f"v_mov_b32 {S_}, 0"); A(f"v_mov_b32 {Q_}, 1.0")
else:
    poll(zs_load(vZSg, t1), [v(ZG), v(ZG+1)], site='z')
    A(f"v_mov_b32 {S_}, {v(ZG)}"); A(f"v_mov_b32 {Q_}, {v(ZG+1)}")
    stats_tail1(); stats_tail2()
A(f"ds_write_b64 {v(E+1)}, {v(TM,2)} offset:{L_STAT}")
A("L_m2b:")
stamp()
A("s_waitcnt lgkmcnt(0)")
A("s_barrier")
H = TM + 12
A(f"ds_read2_b32 {v(H,2)}, {vHPr} offset0:0 offset1:2")
A(f"ds_read2_b32 {v(H+2,2)}, {vHPr} offset0:128 offset1:130")
A(f"ds_read_b32 {v(H+4)}, {vHPr} offset:1024"); A(f"ds_read_b32 {v(H+5)}, {vHPr} offset:1032")
A(f"ds_read_b64 {v(TM,2)}, {v(E+1)} offset:{L_STAT}")
zero(D0)
A("s_waitcnt lgkmcnt(0)")
A(f"v_add_f32 {v(H)}, {v(H)}, {v(H+2)}"); A(f"v_add_f32 {v(H+1)}, {v(H+1)}, {v(H+3)}")
A(f"v_add_f32 {v(H)}, {v(H)}, {v(H+4)}"); A(f"v_add_f32 {v(H+1)}, {v(H+1)}, {v(H+5)}")
A(f"v_fma_f32 {v(H)}, -{S_}, {v(H+1)}, {v(H)}")
A(f"v_mul_f32 {v(H)}, {v(H)}, {Q_}")
rbf(v(H), v(H))
A(f"v_add_f32 {v(H)}, {v(H)}, {vB1}")
rbf(v(H), v(H))
A(f"v_mul_f32 {TT}, {v(H)}, {v(H)}")
A(f"v_fmac_f32 {v(E)}, {f32(c0*0.044715)}, {TT}")
A(f"v_mul_f32 {TT}, {v(E)}, {v(H)}")
A(f"v_exp_f32 {TT}, {TT}")
A(f"v_add_f32 {TT}, 1.0, {TT}")
A(f"v_rcp_f32 {TT}, {TT}")
A(f"v_mul_f32 {TT}, {TT}, {v(H)}")
A(f"v_cvt_pk_bf16_f32 {TT}, {TT}, 0")
A(f"ds_write2_b32 {vPTw}, {TT}, {TT} offset1:5")
for i in range(4): A(f"ds_read_b128 {v(AO+4*i,4)}, {vPTr} offset:{128*i}")
stamp()
tile_out(aW2, aW2t, vMst, False)
A("L_m4:")
stamp()
nst[0] = kr
A("L_next:")
A(f"s_cmp_lg_u32 {sL}, 0")
A("s_cbranch_scc1 L_fin")
if ST:
    A("s_waitcnt lgkmcnt(0)")
    for k in range(14): A(f"v_writelane_b32 {v(SV)}, s{72+2*k}, {1+k}")
    for k in range(14): A(f"s_mov_b64 s[{72+2*k}:{73+2*k}], 0")
A(f"s_mov_b32 {sL}, 1")
if args.dirty:
    A(f"s_cmp_ge_u32 {sJ}, 16"); A("s_cbranch_scc1 L_dd")
    A(f"s_lshl_b32 {t0}, s2, 2"); A(f"s_add_u32 {t0}, {t0}, {sW}"); A(f"s_lshl_b32 {t0}, {t0}, 14"); A(f"s_add_u32 {t0}, {t0}, 0x2000000")
    for i in range(args.dirty):
        A(f"buffer_store_dwordx4 {v(EM,4)}, {vL16}, {srd(rWS)}, {t0} offen"); A(f"s_add_u32 {t0}, {t0}, 1024")
    A("L_dd:")
A(f"s_add_u32 {sXoff}, {sGp}, {Z2_O}")
for r in (vSTst, vSTg, vSTm): A(f"v_add_u32 {r}, {ST1_O-ST_O}, {r}")
if args.qc:
    assert QP_O % 512 == 0
    for r in (vQPst, vQPg):
        A(f"v_bfe_u32 {TT}, {r}, 1, 8"); A(f"v_and_b32 {r}, 0xfffffe00, {r}"); A(f"v_add_u32 {r}, {r}, {TT}")
    A(f"v_add_u32 {vQPg2}, 4096, {vQPg}")
A("s_branch L_layer")
A("L_out:")
A(f"buffer_store_dword {TT}, {vZo}, {srd(rOUT)}, 0 offen")
A(f"s_mov_b32 {t0}, {EP_O}")
A("s_mov_b64 exec, 1")
A(f"buffer_store_dword {FN}, {vL16}, {srd(rWS)}, {t0} offen")
if ST: A(f"s_memrealtime s[{72+2*13}:{73+2*13}]")
A("L_fin:")
if args.wb:
    A(f"s_cmp_lg_u32 {sJ}, 18"); A("s_cbranch_scc1 L_wb")
    A(f"s_cmp_lg_u32 {sW}, 0"); A("s_cbranch_scc1 L_wb")
    A("buffer_wbl2 sc1")
    A("L_wb:")
if args.enc:
    j0, j1 = [int(x) for x in args.encj.split(',')]
    A("s_memrealtime s[66:67]")
    A("s_waitcnt lgkmcnt(0)")
    if args.enc <= 14: A(f"v_readlane_b32 {t0}, {v(SV)}, {args.enc}"); A("s_nop 3")
    else: A(f"s_mov_b32 {t0}, s{72+2*(args.enc-15)}")
    A(f"s_cmp_eq_u32 {t0}, 0"); A("s_cbranch_scc1 L_enc2")
    A(f"s_cmp_lt_u32 {sJ}, {j0}"); A("s_cbranch_scc1 L_enc2")
    A(f"s_cmp_ge_u32 {sJ}, {j1}"); A("s_cbranch_scc1 L_enc2")
    if args.encref == 0: A(f"s_mov_b32 {t1}, s100")
    elif args.encref <= 14: A(f"v_readlane_b32 {t1}, {v(SV)}, {args.encref}"); A("s_nop 3")
    else: A(f"s_mov_b32 {t1}, s{72+2*(args.encref-15)}")
    A(f"s_sub_u32 {t0}, {t0}, {t1}"); A(f"s_min_u32 {t0}, {t0}, 10000"); A(f"s_lshl_b32 {t0}, {t0}, {4 if args.encref else 3}"); A(f"s_add_u32 {t0}, {t0}, s66")
    A("L_enc:")
    A("s_sleep 8")
    A("s_memrealtime s[64:65]"); A("s_waitcnt lgkmcnt(0)")
    A(f"s_sub_u32 {t1}, s64, {t0}"); A(f"s_cmp_lt_i32 {t1}, 0"); A("s_cbranch_scc1 L_enc")
    A("L_enc2:")
if ST:
    A("s_mov_b64 exec, -1")
    A("s_waitcnt lgkmcnt(0)")
    A(f"v_writelane_b32 {v(SV)}, s100, 0")
    for k in range(14): A(f"v_writelane_b32 {v(SV)}, s{72+2*k}, {15+k}")
    A(f"s_lshl_b32 {t0}, s2, 2"); A(f"s_add_u32 {t0}, {t0}, {sW}"); A(f"s_lshl_b32 {t0}, {t0}, 8"); A(f"s_add_u32 {t0}, {t0}, {STAMP_O}")
    A(f"v_mov_b32 {v(SV+1)}, 0")
    A(f"v_lshlrev_b32 {v(SV+2)}, 3, v0")
    A("s_mov_b32 exec_hi, 0")
    A(f"buffer_store_dwordx2 {v(SV,2)}, {v(SV+2)}, {srd(rWS)}, {t0} offen")
A("L_end:")
A("s_endpgm")
if args.near:
    A("L_probe:")
    A(f"s_cmp_lt_u32 {sJ}, 20"); A("s_cbranch_scc1 L_next")
    A(f"s_cmp_lg_u32 {sL}, 0"); A("s_cbranch_scc1 L_next")
    A(f"s_sub_u32 {t0}, {sJ}, 20"); A(f"s_lshl_b32 {t0}, {t0}, 18"); A(f"s_lshl_b32 {t1}, {sX}, 10"); A(f"s_add_u32 {t0}, {t0}, {t1}"); A(f"s_add_u32 {t0}, {t0}, {XP_O + 3*65536}")
    A(f"s_add_u32 s4, s{rWS}, {t0}"); A(f"s_addc_u32 s5, s{rWS+1}, 0")
    A(f"s_mov_b32 {t2}, -1"); A(f"s_mov_b32 {t3}, -1"); A(f"s_mov_b32 {t4}, 3")
    A("L_pr1:")
    A("s_memtime s[6:7]"); A("s_waitcnt lgkmcnt(0)")
    A(f"s_load_dword {t5}, s[4:5], 0 glc"); A("s_waitcnt lgkmcnt(0)")
    A("s_memtime s[8:9]"); A("s_waitcnt lgkmcnt(0)")
    A(f"s_load_dword {t5}, s[4:5], 0x2000 glc"); A("s_waitcnt lgkmcnt(0)")
    A("s_memtime s[10:11]"); A("s_waitcnt lgkmcnt(0)")
    A(f"s_sub_u32 {t0}, s8, s6"); A(f"s_sub_u32 {t1}, s10, s8")
    A(f"s_min_u32 {t2}, {t2}, {t0}"); A(f"s_min_u32 {t3}, {t3}, {t1}")
    A(f"s_sub_u32 {t4}, {t4}, 1"); A(f"s_cmp_lg_u32 {t4}, 0"); A("s_cbranch_scc1 L_pr1")
    A(f"s_cmp_lt_u32 {t3}, {t2}"); A(f"s_cselect_b32 {t0}, 0x2000, 0")
    A(f"v_mov_b32 {TT}, 0"); A(f"v_mov_b32 {LS}, {t0}")
    A(f"ds_write_b32 {TT}, {LS} offset:{L_NEAR}")
    A("s_branch L_next")
A("L_af2:")
A(f"s_cmp_eq_u32 {sMode}, {FB_O}")
A("s_cbranch_scc1 L_g2")
A(f"s_add_u32 {sMode}, {sMode}, 1")
A(f"s_lshl_b32 {t2}, {sX}, 10"); A(f"s_add_u32 {t2}, {t2}, {FL_O}")
A(f"s_lshl_b32 {t4}, {sL}, 2"); A(f"s_add_u32 {t1}, {t4}, {t2}")
A(f"s_cmp_lt_u32 {sMode}, {1 if args.forcefb else 40}")
A("s_cbranch_scc1 L_af5")
A("s_mov_b64 exec, 1")
A(f"buffer_store_dword {FN}, {vL16}, {srd(rWS)}, {t1} offen sc1")
A("s_mov_b32 exec_lo, -1")
A(f"buffer_load_dwordx4 {v(FG,4)}, {vL16}, {srd(rWS)}, {t2} offen sc1")
A("s_mov_b32 exec_hi, -1")
A("s_waitcnt vmcnt(0)")
flags_diff()
A(f"v_and_b32 {TT}, 0x0fffffff, {CK}")
A(f"v_cmp_ne_u32 vcc, 0, {TT}")
A("s_cmp_lg_u32 vcc_lo, 0")
A("s_cbranch_scc1 L_af5")
A(f"v_cmp_ne_u32 vcc, 0, {CK}")
A("s_cmp_lg_u32 vcc_lo, 0")
if args.forcefb: A("s_cmp_eq_u32 0, 0")
A("s_cbranch_scc1 L_spread")
A("L_af5:")
A(f"s_sub_u32 {sTO}, {sTO}, 1")
A("s_cbranch_scc0 L_g4")
A(f"s_mov_b32 {sTO}, 0")
A(f"s_mov_b32 {sMode}, 0")
A("s_branch L_g2")
A("L_spread:")
A(f"s_mov_b32 {sMode}, {FB_O}")
A(f"s_add_u32 {sGp}, {sGf}, {FB_O}")
empty_share(sGp, ' sc1')
A("s_mov_b32 exec_hi, 0")
A(qp_store.format(so=sGp, fl=' sc1'))
A("s_waitcnt vmcnt(0)")
A("s_mov_b64 exec, 1")
A(f"buffer_store_dword {FN}, {vL16}, {srd(rWS)}, {t1} offen offset:512 sc1")
A("s_mov_b32 exec_lo, -1")
A("L_sp1:")
A("s_mov_b32 exec_hi, 0")
A(f"buffer_load_dwordx4 {v(FG,4)}, {vL16}, {srd(rWS)}, {t2} offen offset:512 sc1")
A("s_mov_b32 exec_hi, -1")
A("s_waitcnt vmcnt(0)")
flags_diff()
A(f"v_and_b32 {CK}, 0x0fffffff, {CK}")
A(f"v_cmp_ne_u32 vcc, 0, {CK}")
A("s_cmp_eq_u32 vcc_lo, 0")
A("s_cbranch_scc1 L_g4")
A("s_sleep 4")
A(timeout("L_sp1", "L_g4"))
for t in tail: A(t)
A.raw('L_codeend:')

A.raw('.section .rodata,"a"')
A.raw(".p2align 6")
A.raw(f".amdhsa_kernel {NAME}_kernel")
A.raw(f"  .amdhsa_next_free_vgpr {ACC+NACC}")
A.raw("  .amdhsa_next_free_sgpr 102")
A.raw(f"  .amdhsa_accum_offset {ACC}")
A.raw("  .amdhsa_group_segment_fixed_size 0")
A.raw("  .amdhsa_kernarg_size 104")
A.raw("  .amdhsa_user_sgpr_count 2")
A.raw("  .amdhsa_user_sgpr_kernarg_segment_ptr 1")
A.raw("  .amdhsa_system_sgpr_workgroup_id_x 1")
A.raw(".end_amdhsa_kernel")
txt = A.text()
if args.cyc: txt = txt.replace('s_memrealtime', 's_memtime')
sys.stdout.write(txt)
```

```python
import sys, argparse, struct
sys.path.insert(0, 'dev')
from asmlib import Asm
NAME = "interleave_layers__sliding_block_cached__dense_activation_gelu__decode"
ap = argparse.ArgumentParser()
ap.add_argument('--stamps', action='store_true')
ap.add_argument('--pro', action='store_true')
ap.add_argument('--cyc', action='store_true')
ap.add_argument('--xt', type=int, default=0)
ap.add_argument('--xd', type=int, default=11)
ap.add_argument('--enc', type=int, default=0)
ap.add_argument('--encref', type=int, default=0)
ap.add_argument('--encj', default='0,32')
ap.add_argument('--only', default='')
ap.add_argument('--pQ', type=int, default=4)
ap.add_argument('--xf', type=int, default=1)
ap.add_argument('--kw', type=int, default=3)
ap.add_argument('--code', type=int, default=3)
ap.add_argument('--early', default='0')
ap.add_argument('--mid', default='')
ap.add_argument('--w1dma', type=int, default=0)
ap.add_argument('--near', type=int, default=1)
ap.add_argument('--pd', default='s22,y22,o22')
ap.add_argument('--wb', type=int, default=0)
ap.add_argument('--dirty', type=int, default=0)
ap.add_argument('--pre', type=int, default=1)
ap.add_argument('--qd', type=int, default=0)
ap.add_argument('--zs', type=int, default=0)
ap.add_argument('--sd', type=int, default=0)
ap.add_argument('--yd', type=int, default=0)
ap.add_argument('--zd', type=int, default=0)
ap.add_argument('--qc', type=int, default=1)
ap.add_argument('--ms', default='x')
ap.add_argument('--exp', default='')
ap.add_argument('--tlb', type=int, default=0)
ap.add_argument('--hw', type=int, default=3)
ap.add_argument('--prew', type=int, default=0)
ap.add_argument('--pS', type=int, default=0)
ap.add_argument('--pC', type=int, default=9)
ap.add_argument('--lnf', type=int, default=2)
ap.add_argument('--wl', default='8,0,0')
ap.add_argument('--vw', type=int, default=1)
ap.add_argument('--di', type=int, default=1)
ap.add_argument('--dz', type=int, default=1)
ap.add_argument('--dxx', type=int, default=1)
ap.add_argument('--nt', default='k,v,2')
ap.add_argument('--forcefb', action='store_true')
args = ap.parse_args()
def ntf(c): return ' nt' if c in args.nt.split(',') else ''
NT = ntf('s'); NTK = ntf('k'); NTV = ntf('v'); NTQ = ntf('q'); NTO = ntf('o'); NTM = ntf('m'); NT2 = ntf('2'); NTT = ntf('t')
ST = args.stamps
PD = {x[0]: (int(x[1]), int(x[2:])) for x in args.pd.split(',') if x}

def f32(x): return '0x%08x' % struct.unpack('<I', struct.pack('<f', x))[0]

CLR = 944
OP_O = 0
Y_O = OP_O + 65536
ST_O = Y_O + 41472
ST1_O = ST_O + 2048
Z1_O = ST1_O + 2048
Z2_O = Z1_O + 2304
Z3_O = Z2_O + 2304
AN_O = Z3_O + 2304
ZS_O = AN_O + 128
assert ZS_O + 1536 <= 128 * CLR and (128 * CLR) % 128 == 0
QP_O = 128 * CLR
FF_O = QP_O + 65536
GB = FF_O + 1024
FB_O = 8 * GB
XP_O = 6 << 20
assert XP_O >= 16 * GB
XPS = 16384
FL_O = XP_O + 12 * 262144
EP_O = FL_O + 8 * 1024
STAMP_O = 0x8000000
L_NEAR = 8176
L_X = 640
L_QT, L_STAT, L_OT, L_PT, L_HP, L_K, L_WQ, L_SIZE = 0, 512, 1024, 2560, 8192, 16384, 49152, 67584

rK, rV, rWQ, rWO, rW1, rW2, rWS, rX, rOUT, rT1, rT2 = 4, 8, 12, 16, 20, 24, 28, 32, 36, 44, 48
sTask, kv0, kv1, sFlag = 's40', 's41', 's42', 's43'
def srd(n): return f"s[{n}:{n+3}]"
sW, sX, sJ, sGf, sGp, sXoff, sTO, sMode, sL, sWo = [f"s{i}" for i in range(52, 62)]
t0, t1, t2, t3, t4, t5 = [f"s{i}" for i in range(62, 68)]
mLO8 = "s[68:69]"; mROW = "s[70:71]"
MXA = "0x00330033"
sRole = "s3"
(vL4, vL16, vIdxD, vIdxP, vIdxS, vXAq, vXAm, vQPst, vQPg, vL128, vQTw, vQTr, vPTw, vPTr, vSTst, vOPst, vSTg, vOPg, vOTw, vOTr,
 vYst, vMst, vHPw, vSTm, vRg, vSTATr, vXPst, vXPg, vZst, vXres, vB2, vB1, vCq, vZo, vXS1, vXS2, vWrow, vHPr, vOnes) = [f"v{i}" for i in range(1, 40)]
XA, D0, D1, DP, AO, SG, YG, XG, XS, FG, TM, EM, KA, SV, OG, QG = 40, 64, 68, 72, 76, 104, 120, 132, 136, 148, 152, 176, 180, 184, 188, 196
vQPg2, vZSst, vZSg = 'v92', 'v93', 'v94'
ZG = 96; vLXr = 'v98'; KR = 100
ACC = 212
aWQ, aK, aV, aWO, aW1, aW2, aWOt, NACC = 0, 24, 56, 88, 120, 168, 200, 232
aW2t = aW1
def v(n, k=1): return f"v{n}" if k == 1 else f"v[{n}:{n+k-1}]"
def a(n, k=1): return f"a{n}" if k == 1 else f"a[{n}:{n+k-1}]"
CK = v(TM + 23); FN = v(TM + 22); vTag = v(TM + 21); DUM = v(TM + 20)
sEp, sXPo = kv0, kv1

A = Asm()
tail = []
tail_raw = []
nst = [0]
def pstamp(k):
    if args.pro: A(f"s_memrealtime s[{72+2*k}:{73+2*k}]")
def stamp():
    if ST and not args.pro:
        k = nst[0]; nst[0] += 1
        assert k < 13
        if ONLY is None or k in ONLY: A(f"s_memrealtime s[{72+2*k}:{73+2*k}]")
ONLY = set(int(x) for x in args.only.split(',')) if args.only else None
def lg(n): return 0 if (ST and ONLY is None) else n
def exec_xa(): return [f"s_mov_b32 exec_lo, {MXA}", f"s_mov_b32 exec_hi, {MXA}"]

def check_text(regs):
    regs = list(regs); o = []
    if len(regs) == 1: cur = regs[0]
    else:
        take = regs[:3]; regs = regs[3:]
        o.append(f"v_max3_u32 {CK}, {take[0]}, {take[1]}, {take[2]}" if len(take) == 3 else f"v_max_u32 {CK}, {take[0]}, {take[1]}")
        while regs:
            take = regs[:2]; regs = regs[2:]
            o.append(f"v_max3_u32 {CK}, {CK}, {take[0]}, {take[1]}" if len(take) == 2 else f"v_max_u32 {CK}, {CK}, {take[0]}")
        cur = CK
    o.append(f"v_cmp_eq_u32 vcc, -1, {cur}")
    return o
def nvm(loads): return sum(1 for l in loads if l.startswith('buffer_'))
def timeout(again, ok): return f"s_sub_u32 {sTO}, {sTO}, 1\ns_cbranch_scc0 {again}\ns_mov_b32 {sTO}, 0\ns_waitcnt vmcnt(0) lgkmcnt(0)\ns_branch {ok}"

def poll(loads, regs, primed=False, extra_wait="", chk=None, site=''):
    lp = A.newlabel('L_poll'); to = A.newlabel('L_to'); ok = A.newlabel('L_ok')
    depth, gap = PD.get(site, (1, 0))
    ck = chk or check_text(regs)
    pre = []
    for d in range(depth - 1):
        pre += loads + ([f"s_sleep {gap}"] if gap else [])
    loop = [f"{lp}:"] + loads + [f"s_sub_u32 {sTO}, {sTO}, 1", f"s_cbranch_scc1 {to}", f"s_waitcnt vmcnt({(depth-1)*nvm(loads)}){extra_wait}"] + ck + [f"s_cbranch_vccnz {lp}"]
    tmo = f"{to}:\ns_mov_b32 {sTO}, 0\ns_waitcnt vmcnt(0) lgkmcnt(0)\ns_branch {ok}"
    if primed:
        st = A.newlabel('L_more')
        A(f"s_waitcnt vmcnt(0){extra_wait}")
        for l in ck: A(l)
        A(f"s_cbranch_vccnz {st}")
        A(f"{ok}:")
        tail.append(f"{st}:\n" + "\n".join(pre + loop) + f"\ns_branch {ok}\n" + tmo)
        return
    for l in pre + loop: A(l)
    A(f"{ok}:")
    tail.append(tmo)

def sm(d, av, br, idx): A(f"v_smfmac_f32_16x16x64_bf16 {v(d,4)}, {v(av,4)}, {a(br,8)}, {idx}")
def xa_loads(rr, voff, so, n, fl, short_last=False):
    o = exec_xa()
    for i in range(n):
        if short_last and i == n - 1: o.append("s_mov_b64 exec, 0x33")
        o.append(f"buffer_load_dwordx4 {v(XA+4*i,4)}, {voff}, {srd(rr)}, {so} offen offset:{64*i}{fl}")
    return o + ["s_mov_b64 exec, -1"]
def poll_proj(voff, so, n, wbase, short_last=False, extra=[]):
    loads = extra[:-1] + xa_loads(rWS, voff, so, n, ' sc1', short_last)
    lds = [l for l in loads if l.startswith('buffer_')]
    lp = A.newlabel('L_poll'); rt = A.newlabel('L_retry'); ok = A.newlabel('L_ok'); gen = A.newlabel('L_nan')
    depth, gap = PD.get('p', (1, 0))
    for d in range(depth):
        if d: A(f"s_sleep {gap}")
        for l in loads: A(l)
    A(f"{lp}:")
    A(f"s_waitcnt vmcnt({(depth-1)*n})")
    for i in range(n): sm(D0, XA+4*i, wbase+8*i, vIdxD)
    for l in loads: A(l)
    A(f"v_cmp_u_f32 vcc, {v(D0)}, {v(D0+1)}")
    A(f"s_cbranch_vccnz {rt}")
    A(f"{ok}:")
    z = "\n".join(f"v_mov_b32 {v(D0+i)}, 0" for i in range(4))
    mm = "\n".join(f"v_smfmac_f32_16x16x64_bf16 {v(D0,4)}, {v(XA+4*i,4)}, {a(wbase+8*i,8)}, {vIdxD}" for i in range(n))
    if args.zs: z += f"\ns_sleep {args.zs}"
    tail.append(f"{rt}:\n{z}\ns_sub_u32 {sTO}, {sTO}, 1\ns_cbranch_scc1 {gen}\ns_and_b32 {t5}, {sTO}, 15\ns_cbranch_scc1 {lp}\n" +
                "\n".join(check_text([v(XA+i) for i in range(4*n)])) + f"\ns_cbranch_vccnz {lp}\n{gen}:\ns_max_i32 {sTO}, {sTO}, 0\n{mm}\ns_nop 7\ns_branch {ok}")

def pub(*fmts):
    for f in fmts: A(f.format(so=sGf, fl=''))
    sl = A.newlabel('L_slow'); bk = A.newlabel('L_back')
    A(f"s_cmp_lg_u32 {sMode}, 0")
    A(f"s_cbranch_scc1 {sl}")
    A(f"{bk}:")
    tail.append(f"{sl}:\n" + "\n".join(f.format(so=sGp, fl=' sc1') for f in fmts) + f"\ns_nop 1\ns_branch {bk}")

def rbf(dst, src):
    A(f"v_cvt_pk_bf16_f32 {dst}, {src}, {src}")
    A(f"v_and_b32 {dst}, 0xffff0000, {dst}")
def treduce(r):
    A(f"v_permlane32_swap_b32 {v(r)}, {v(r+2)}")
    A(f"v_permlane32_swap_b32 {v(r+1)}, {v(r+3)}")
    A(f"v_add_f32 {v(r)}, {v(r)}, {v(r+2)}")
    A(f"v_add_f32 {v(r+1)}, {v(r+1)}, {v(r+3)}")
    A(f"v_permlane16_swap_b32 {v(r)}, {v(r+1)}")
    A(f"v_add_f32 {v(r)}, {v(r)}, {v(r+1)}")
    A(f"v_add_f32_dpp {v(r)}, {v(r)}, {v(r)} row_ror:8 row_mask:0xf bank_mask:0xf")
S_, Q_ = v(TM), v(TM+1)
def stats_tail1():
    S, Q = S_, Q_
    A(f"v_permlane16_swap_b32 {S}, {Q}")
    A(f"v_add_f32 {S}, {S}, {Q}")
    for k in (8, 4, 2, 1):
        A(f"v_add_f32_dpp {S}, {S}, {S} row_ror:{k} row_mask:0xf bank_mask:0xf")
    A(f"v_mul_f32 {Q}, {f32(1/576)}, {S}")
    A(f"v_mul_f32 {S}, {f32(1/576)}, {S}")
def stats_tail2():
    S, Q = S_, Q_
    A(f"v_permlane16_swap_b32 {S}, {Q}")
    A(f"v_fma_f32 {Q}, -{S}, {S}, {Q}")
    A(f"v_max_f32 {Q}, 0, {Q}")
    A(f"v_cvt_pk_bf16_f32 {Q}, {S}, {Q}")
    A(f"v_lshlrev_b32 {S}, 16, {Q}")
    A(f"v_and_b32 {Q}, 0xffff0000, {Q}")
    A(f"v_add_f32 {Q}, {f32(1e-5)}, {Q}")
    rbf(Q, Q)
    A(f"v_sqrt_f32 {Q}, {Q}")
    rbf(Q, Q)
    A(f"v_rcp_f32 {Q}, {Q}")
def stats_x():
    A(f"v_mov_b32 {S_}, 0"); A(f"v_mov_b32 {Q_}, 0")
    for i in range(9):
        A(f"v_dot2c_f32_bf16 {S_}, {v(XS+i)}, {vOnes}")
        A(f"v_dot2c_f32_bf16 {Q_}, {v(XS+i)}, {v(XS+i)}")
    stats_tail1(); stats_tail2()
def zs_load(voff, so):
    return ["s_mov_b32 exec_lo, 0x3ffff", "s_mov_b32 exec_hi, 0x3ffff", f"buffer_load_dwordx2 {v(ZG,2)}, {voff}, {srd(rWS)}, {so} offen sc1", "s_mov_b64 exec, -1"]
def zero(r, n=4):
    for i in range(n): A(f"v_mov_b32 {v(r+i)}, 0")
def xs_loads(rr, so, fl):
    return [f"buffer_load_dwordx4 {v(XS,4)}, {vXS1}, {srd(rr)}, {so} offen{fl}",
            f"buffer_load_dwordx4 {v(XS+4,4)}, {vXS1}, {srd(rr)}, {so} offen offset:512{fl}",
            f"buffer_load_dword {v(XS+8)}, {vXS2}, {srd(rr)}, {so} offen offset:1024{fl}"]

A.raw(f"; @launch grid=(256,1,1) block=(256,1,1) lds={L_SIZE}")
A.raw('.amdgcn_target "amdgcn-amd-amdhsa--gfx950"')
A.raw(".text")
A.raw(f".globl {NAME}_kernel")
A.raw(".p2align 8")
A.raw(f".type {NAME}_kernel,@function")
A.raw(f"{NAME}_kernel:")
if ST:
    A("s_memrealtime s[100:101]")
    if args.pro:
        for k in range(1, 14): A(f"s_mov_b32 s{72+2*k}, 0")
for r, off in ((rWQ, 24), (rK, 8), (rWS, 96), (rX, 0), (rV, 16), (rWO, 32)):
    A(f"s_load_dwordx2 s[{r}:{r+1}], s[0:1], {off}")
if args.code >= 2:
    A(f"s_cmp_ge_u32 s2, {8*(args.code-1)}"); A("s_cbranch_scc1 L_nc")
    A("s_getpc_b64 s[66:67]")
    A("L_pc:")
    A(f"v_lshlrev_b32 {v(TM+8)}, 7, v0")
    A(f"v_min_u32 {v(TM+8)}, L_codeend-L_pc-4, {v(TM+8)}")
    A(f"global_load_dword {DUM}, {v(TM+8)}, s[66:67]")
    A("L_nc:")
A("s_cmp_ge_u32 s2, 256")
A("s_cbranch_scc1 L_end")
G, C, B2 = v(TM+3), v(TM+4), v(TM+5)
def size(r, n): A(f"s_mov_b32 s{r+2}, {n}"); A(f"s_mov_b32 s{r+3}, 0x20000")
A(f"v_readfirstlane_b32 {sW}, v0")
A(f"v_lshrrev_b32 {v(TM+6)}, 4, v0")
A(f"v_and_b32 {C}, 15, v0")
A(f"v_lshlrev_b32 {v(TM+6)}, 13, {v(TM+6)}")
A(f"v_lshl_add_u32 {v(TM+6)}, {C}, 4, {v(TM+6)}")
size(rWQ, 4718592)
A(f"s_and_b32 {sX}, s2, 7")
A(f"s_bfe_u32 {t2}, s2, 0x30003")
A(f"s_lshr_b32 {t3}, s2, 6"); A(f"s_lshl2_add_u32 {t0}, {sX}, {t3}"); A(f"s_lshl_b32 {t3}, {t0}, 8")
A(f"s_mul_i32 {sXoff}, {t2}, {72*8192}"); A(f"s_add_u32 {sXoff}, {sXoff}, {t3}")
A(f"s_lshl4_add_u32 m0, {sW}, {L_WQ}")
def setup_k():
    A(f"v_and_b32 v0, 63, v0")
    A(f"v_lshrrev_b32 {G}, 4, v0")
    A(f"s_and_b32 {t1}, {t0}, 1"); A(f"s_lshr_b32 {t0}, {t0}, 1")
    A(f"s_lshl4_add_u32 {kv0}, {t1}, {t0}"); A(f"s_lshl_b32 {kv0}, {kv0}, 5"); A(f"s_add_u32 {kv0}, {kv0}, {t2}"); A(f"s_lshl_b32 {kv0}, {kv0}, 8")
    A(f"s_add_u32 {kv0}, {kv0}, {sW}"); A(f"s_lshl_b32 {kv0}, {kv0}, 7"); A(f"s_add_u32 {kv0}, {kv0}, {3072*256}"); A(f"s_add_u32 {kv1}, {kv0}, 4096")
    size(rK, 33554432)
    A(f"v_xor_b32 {v(TM+7)}, {C}, {G}")
    A(f"v_lshlrev_b32 {v(TM+7)}, 4, {v(TM+7)}")
    A(f"v_lshl_add_u32 {v(KA)}, {G}, 8, {v(TM+7)}")
    for i in range(1, 4): A(f"v_xor_b32 {v(KA+i)}, {64*i}, {v(KA)}")
    A(f"s_lshr_b32 {sW}, {sW}, 6")
def setup_ws():
    size(rWS, 268435456); size(rX, 2304)
    A(f"s_lshr_b32 {sJ}, s2, 3")
    A(f"v_lshlrev_b32 {vL16}, 4, v0")
    for i in range(4): A(f"v_mov_b32 {v(EM+i)}, -1")
    A(f"s_mul_i32 {sGf}, {sX}, {GB}")
    A(f"s_lshl2_add_u32 {sL}, {sJ}, {sW}")
def setup_rest():
    size(rWO, 4718592)
    A("s_mov_b32 s68, 0x00ff00ff"); A("s_mov_b32 s69, 0x00ff00ff")
    A(f"v_lshlrev_b32 {vL128}, 7, v0")
    A(f"v_bfe_u32 {B2}, v0, 2, 1")
    A(f"v_mul_u32_u24 {vXAm}, 1152, {B2}")
    A(f"v_lshl_add_u32 {vXAm}, {G}, 4, {vXAm}")
    A(f"s_mul_i32 {t4}, {t2}, 144")
    A(f"v_add_u32 {vXAq}, {t4}, {vXAm}")
    for i in range(12): A(f"v_mov_b32 {v(XA+i)}, 0x3f803f80")
    A(f"s_lshl_b32 {t4}, {sL}, 9"); A(f"s_add_u32 {t4}, {t4}, {QP_O}")
    A(f"v_add_u32 {vQPst}, {t4}, {vL16}")
def constants():
    A(f"v_mul_u32_u24 {vWrow}, 1152, {G}")
    A(f"v_lshl_add_u32 {vWrow}, {C}, 4, {vWrow}")
    A(f"s_cmp_lt_u32 {sJ}, 18"); A(f"s_cselect_b32 {sRole}, 1, 0")
    A(f"s_cmp_ge_u32 {sJ}, 20"); A(f"s_cselect_b32 {t4}, 2, 0"); A(f"s_cmp_lt_u32 {sW}, 3"); A(f"s_cselect_b32 {t4}, {t4}, 0"); A(f"s_or_b32 {sRole}, {sRole}, {t4}")
    A(f"s_sub_u32 {sTask}, {sJ}, 20"); A(f"s_mul_i32 {sTask}, {sTask}, 3"); A(f"s_add_u32 {sTask}, {sTask}, {sW}"); A(f"s_min_u32 {sTask}, {sTask}, 35")
    A(f"s_lshl_b32 {t3}, {sX}, 4"); A(f"s_and_b32 {t4}, {sJ}, 15"); A(f"s_add_u32 {sWo}, {t3}, {t4}"); A(f"s_mul_i32 {sWo}, {sWo}, {32*1152}")
    A(f"s_lshl_b32 {t4}, {sW}, 8"); A(f"s_add_u32 {sWo}, {sWo}, {t4}")
    for r, n in ((rW1, 5308416), (rW2, 5308416), (rOUT, 2304), (rT1, 9216), (rT2, 1152)):
        A(f"s_mov_b32 s{r+2}, {n}"); A(f"s_mov_b32 s{r+3}, 0x20000")
    A("s_mov_b32 s70, 0xffff0000"); A("s_mov_b32 s71, 0xffff0000")
    A(f"v_lshlrev_b32 {vL4}, 2, v0")
    for i in range(12, 24): A(f"v_mov_b32 {v(XA+i)}, 0x3f803f80")
    A(f"s_lshl_b32 {t4}, {sW}, 13"); A(f"s_add_u32 {t4}, {t4}, {L_K}")
    A(f"v_lshl_add_u32 {v(KR)}, {C}, 8, {v(TM+7)}"); A(f"v_add_u32 {v(KR)}, {t4}, {v(KR)}")
    for i in range(1, 4): A(f"v_xor_b32 {v(KR+i)}, {64*i}, {v(KR)}")
    T_ = [v(TM+8+i) for i in range(10)]
    A(f"v_and_b32 {T_[0]}, 1, v0")
    A(f"v_mul_u32_u24 {vIdxP}, 0xaaaa, {T_[0]}"); A(f"v_add_u32 {vIdxP}, 0x4444, {vIdxP}")
    A(f"v_and_b32 {T_[1]}, 3, v0")
    A(f"v_mul_u32_u24 {vIdxS}, 0x5555, {T_[1]}")
    A(f"v_bfe_u32 {T_[2]}, v0, 4, 1")
    A(f"v_bfe_u32 {T_[3]}, v0, 2, 2")
    A(f"v_bfe_u32 {T_[4]}, v0, 3, 1")
    A(f"v_lshrrev_b32 {T_[5]}, 5, v0")
    A(f"v_and_b32 {T_[8]}, 7, v0")
    A(f"v_and_b32 {T_[9]}, 31, v0")
    A(f"s_lshr_b32 {t3}, {sJ}, 4")
    A(f"s_lshr_b32 {t5}, {sJ}, 3")
    A(f"s_lshl_b32 {t3}, {t3}, 1"); A(f"s_lshr_b32 {t4}, {sW}, 1"); A(f"s_add_u32 {t3}, {t3}, {t4}"); A(f"s_lshl_b32 {t3}, {t3}, 14")
    A(f"s_and_b32 {t4}, {sW}, 1"); A(f"s_lshl_b32 {t4}, {t4}, 10"); A(f"s_add_u32 {t3}, {t3}, {t4}")
    A(f"s_lshl_b32 {t4}, {t1}, 8"); A(f"s_add_u32 {t3}, {t3}, {t4}"); A(f"s_add_u32 {t3}, {t3}, {QP_O}")
    A(f"v_lshl_add_u32 {vQPg}, {T_[5]}, 4, {T_[2]}"); A(f"v_lshlrev_b32 {vQPg}, 9, {vQPg}"); A(f"v_lshl_add_u32 {vQPg}, {C}, 4, {vQPg}"); A(f"v_add_u32 {vQPg}, {t3}, {vQPg}")
    A(f"v_add_u32 {vQPg2}, 4096, {vQPg}")
    A(f"s_and_b32 {t3}, {sW}, 1"); A(f"s_lshl_b32 {t3}, {t3}, 8"); A(f"s_lshr_b32 {t4}, {sW}, 1"); A(f"s_lshl_b32 {t4}, {t4}, 7"); A(f"s_add_u32 {t3}, {t3}, {t4}")
    A(f"v_bfe_u32 {T_[6]}, v0, 3, 2"); A(f"v_bfe_u32 {T_[7]}, v0, 1, 2")
    A(f"v_lshlrev_b32 {vQTw}, 5, {T_[6]}"); A(f"v_lshl_add_u32 {vQTw}, {T_[0]}, 4, {vQTw}"); A(f"v_lshl_add_u32 {vQTw}, {T_[7]}, 2, {vQTw}")
    A(f"v_lshl_add_u32 {vQTw}, {T_[5]}, 1, {vQTw}"); A(f"v_add_u32 {vQTw}, {t3}, {vQTw}")
    A(f"v_lshlrev_b32 {vQTr}, 5, {G}"); A(f"v_lshl_add_u32 {vQTr}, {T_[4]}, 7, {vQTr}"); A(f"v_lshl_add_u32 {vQTr}, {T_[0]}, 4, {vQTr}")
    A(f"v_mul_u32_u24 {vOTr}, 640, {T_[4]}"); A(f"v_lshl_add_u32 {vOTr}, {G}, 5, {vOTr}"); A(f"v_lshl_add_u32 {vOTr}, {B2}, 4, {vOTr}")
    A(f"s_mul_i32 {t3}, {sW}, 1280"); A(f"s_add_u32 {t3}, {t3}, {L_PT}")
    A(f"v_add_u32 {vPTr}, {t3}, {vOTr}"); A(f"v_add_u32 {vOTr}, {L_OT}, {vOTr}")
    A(f"v_bfe_u32 {T_[6]}, v0, 1, 4")
    A(f"v_mul_u32_u24 {vPTw}, 640, {T_[5]}"); A(f"v_lshl_add_u32 {vPTw}, {T_[6]}, 5, {vPTw}"); A(f"v_lshl_add_u32 {vPTw}, {T_[0]}, 3, {vPTw}"); A(f"v_add_u32 {vPTw}, {t3}, {vPTw}")
    A(f"v_lshrrev_b32 {vHPr}, 1, v0"); A(f"v_lshlrev_b32 {vHPr}, 4, {vHPr}"); A(f"v_lshl_add_u32 {vHPr}, {T_[0]}, 2, {vHPr}"); A(f"v_add_u32 {vHPr}, {L_HP}, {vHPr}")
    A(f"s_lshl_b32 {t3}, {sW}, 9"); A(f"s_add_u32 {t3}, {t3}, {L_HP}"); A(f"v_add_u32 {vHPw}, {t3}, {vL16}")
    A(f"s_lshl_b32 {t3}, {t5}, 9"); A(f"s_add_u32 {t3}, {t3}, {ST_O}")
    A(f"s_lshl_b32 {t4}, {t2}, 2"); A(f"s_add_u32 {t4}, {t4}, {sW}"); A(f"s_lshl_b32 {t4}, {t4}, 2"); A(f"s_add_u32 {t4}, {t4}, {t3}")
    A(f"v_lshlrev_b32 {vSTst}, 8, {T_[5]}"); A(f"v_lshl_add_u32 {vSTst}, {T_[0]}, 7, {vSTst}"); A(f"v_add_u32 {vSTst}, {t4}, {vSTst}")
    A(f"s_lshl_b32 {t3}, {t1}, 1"); A(f"s_lshr_b32 {t4}, {sW}, 1"); A(f"s_add_u32 {t3}, {t3}, {t4}"); A(f"s_lshl_b32 {t3}, {t3}, 9"); A(f"s_add_u32 {t3}, {t3}, {ST_O}")
    A(f"s_lshr_b32 {t4}, {t2}, 2"); A(f"s_lshl_b32 {t4}, {t4}, 8"); A(f"s_add_u32 {t3}, {t3}, {t4}")
    A(f"v_lshrrev_b32 {T_[7]}, 3, v0")
    A(f"v_lshl_add_u32 {vSTg}, {T_[7]}, 4, {t3}")
    A(f"s_and_b32 {t4}, {sW}, 1"); A(f"s_lshl_b32 {t4}, {t4}, 3"); A(f"v_add_u32 {vSTm}, {t4}, {vSTg}")
    A(f"s_lshr_b32 {t3}, {sJ}, 4"); A(f"s_lshl_b32 {t3}, {t3}, 15"); A(f"s_lshl_b32 {t4}, {t1}, 11"); A(f"s_add_u32 {t3}, {t3}, {t4}")
    A(f"s_lshl_b32 {t4}, {sW}, 9"); A(f"s_add_u32 {t3}, {t3}, {t4}"); A(f"s_lshl_b32 {t4}, {t2}, 6"); A(f"s_add_u32 {t3}, {t3}, {t4}")
    A(f"v_lshlrev_b32 {T_[6]}, 4, {T_[1]}"); A(f"v_lshl_add_u32 {T_[6]}, {T_[2]}, 3, {T_[6]}")
    A(f"v_lshl_add_u32 {vOPst}, {T_[5]}, 2, {T_[3]}"); A(f"v_lshl_add_u32 {vOPst}, {vOPst}, 12, {T_[6]}"); A(f"v_add_u32 {vOPst}, {t3}, {vOPst}")
    A(f"s_and_b32 {t3}, {sJ}, 15"); A(f"s_lshl_b32 {t3}, {t3}, 12"); A(f"s_lshl_b32 {t4}, {sW}, 10"); A(f"s_add_u32 {t3}, {t3}, {t4}"); A(f"v_lshl_add_u32 {vOPg}, v0, 3, {t3}")
    A(f"s_lshr_b32 {t3}, {sW}, 1"); A(f"s_mul_i32 {t3}, {t3}, 640"); A(f"s_and_b32 {t4}, {sW}, 1"); A(f"s_lshl_b32 {t4}, {t4}, 1"); A(f"s_add_u32 {t3}, {t3}, {t4}"); A(f"s_add_u32 {t3}, {t3}, {L_OT}")
    A(f"v_mul_u32_u24 {vOTw}, 20, {T_[4]}"); A(f"v_lshl_add_u32 {vOTw}, {T_[8]}, 6, {vOTw}"); A(f"v_lshl_add_u32 {vOTw}, {T_[5]}, 5, {vOTw}")
    A(f"v_lshl_add_u32 {vOTw}, {T_[2]}, 3, {vOTw}"); A(f"v_add_u32 {vOTw}, {t3}, {vOTw}")
    A(f"s_mul_i32 {t3}, {sW}, {4*1152}"); A(f"s_lshl_b32 {t4}, {sJ}, 6"); A(f"s_add_u32 {t3}, {t3}, {t4}"); A(f"s_add_u32 {t3}, {t3}, {Y_O}")
    A(f"v_mul_u32_u24 {vMst}, 18, {T_[5]}"); A(f"v_add_u32 {vMst}, {vMst}, {T_[3]}"); A(f"v_mul_u32_u24 {vMst}, 1152, {vMst}")
    A(f"v_add3_u32 {vMst}, {vMst}, {T_[6]}, {t3}")
    A(f"v_subrev_u32 {vYst}, 1024, {vMst}")
    A(f"v_lshlrev_b32 {vZSg}, 3, v0")
    A(f"s_lshl_b32 {t3}, {t1}, 8"); A(f"s_add_u32 {t3}, {t3}, {ZS_O+512}"); A(f"v_lshl_add_u32 {vSTATr}, {T_[9]}, 3, {t3}")
    zero(ZG, 2)
    A(f"v_mul_u32_u24 {vXS1}, 1152, {T_[5]}"); A(f"v_lshl_add_u32 {vXS2}, {T_[9]}, 2, {vXS1}"); A(f"v_lshl_add_u32 {vXS1}, {T_[9]}, 4, {vXS1}")
    A(f"s_mul_i32 {t4}, {sW}, 384"); A(f"v_add_u32 {vXAm}, {t4}, {vXAm}")
    A(f"s_mul_i32 {t4}, {sX}, 18"); A(f"s_add_u32 {t4}, {t4}, {sJ}"); A(f"s_lshl_b32 {t5}, {t4}, 6")
    A(f"v_lshl_add_u32 {vB1}, {T_[9]}, 1, {t5}")
    A(f"s_mul_i32 {t4}, {sTask}, 1152"); A(f"s_add_u32 {t4}, {t4}, {Y_O}"); A(f"v_lshl_add_u32 {vRg}, v0, 3, {t4}")
    A(f"s_sub_u32 {t4}, {sL}, 80"); A(f"s_and_b32 {t4}, {t4}, 63"); A(f"s_lshl_b32 {t4}, {t4}, 16")
    A(f"s_lshl_b32 {t5}, {sX}, 10"); A(f"s_add_u32 {t5}, {t5}, {t4}"); A(f"v_lshl_add_u32 {vXPg}, v0, 3, {t5}")
    A(f"s_lshl_b32 {t5}, {sX}, 7"); A(f"s_add_u32 {t4}, {t4}, {t5}"); A(f"v_lshl_add_u32 {vXPst}, {T_[8]}, 4, {t4}")
    A(f"v_lshrrev_b32 {T_[7]}, 3, v0"); A(f"v_lshl_add_u32 {vXPst}, {T_[7]}, 10, {vXPst}")
    A(f"v_lshl_add_u32 {T_[7]}, {C}, 1, {T_[5]}")
    A(f"s_lshl_b32 {t4}, {sTask}, 6"); A(f"v_lshl_add_u32 {vZo}, {T_[7]}, 1, {t4}")
    A(f"v_add_u32 {vZst}, {Z1_O}, {vZo}")
    A(f"s_and_b32 {t5}, {sTask}, 7"); A(f"s_cmp_eq_u32 {t5}, {sX}"); A(f"s_cselect_b32 {t5}, 4, 0"); A(f"s_or_b32 {sRole}, {sRole}, {t5}")
    A(f"s_cmp_ge_u32 {sTask}, 18"); A(f"s_cselect_b32 {t5}, 1152, 0")
    A(f"v_subrev_u32 {vB2}, {t5}, {vZo}")
    A(f"s_cselect_b32 {t5}, {256-18*8}, 0"); A(f"s_lshl_b32 {t4}, {sTask}, 3"); A(f"s_add_u32 {t4}, {t4}, {t5}"); A(f"s_add_u32 {t4}, {t4}, {ZS_O}")
    A(f"v_lshl_add_u32 {vZSst}, {T_[2]}, 2, {t4}")

def constants1():
    A(f"v_and_b32 {v(TM+8)}, 1, v0")
    A(f"v_mul_u32_u24 {vIdxD}, 0x5555, {v(TM+8)}"); A(f"v_add_u32 {vIdxD}, 0x8888, {vIdxD}")
    A(f"v_mov_b32 {vOnes}, 0x3f803f80")
    A(f"s_lshl_b32 {t3}, {sW}, 6"); A(f"s_add_u32 {t3}, {t3}, {L_WQ}")
    A(f"v_lshlrev_b32 {vCq}, 10, {G}"); A(f"v_lshl_add_u32 {vCq}, {C}, 2, {vCq}"); A(f"v_add_u32 {vCq}, {t3}, {vCq}")
    for i in range(16, 24): A(f"v_accvgpr_write_b32 {a(aWQ+i)}, 0")
    zero(D0, 8)
    A(f"v_mul_u32_u24 {vLXr}, 144, {B2}"); A(f"v_lshl_add_u32 {vLXr}, {G}, 4, {vLXr}")
    A(f"s_lshl_b32 {t3}, {sW}, 11"); A(f"v_add_u32 {v(TM+8)}, {t3}, {vL16}")
    A(f"ds_write_b128 {v(TM+8)}, {v(D1,4)} offset:1024"); A(f"ds_write_b128 {v(TM+8)}, {v(D1,4)} offset:2048")
    A(f"s_mov_b32 {sTO}, 0x40000"); A(f"s_mov_b32 {sMode}, 0"); A(f"s_mov_b32 {sGp}, {sGf}")
def ln0(n_after):
    A(f"s_cmp_lg_u32 {sW}, 3")
    A("s_cbranch_scc1 L_c1")
    A(f"s_waitcnt vmcnt({n_after})")
    stats_x()
    for i in range(2):
        lo, hi = v(TM+8), v(TM+9)
        A(f"v_lshlrev_b32 {lo}, 16, {v(XG+i)}"); A(f"v_and_b32 {hi}, 0xffff0000, {v(XG+i)}")
        A(f"v_sub_f32 {lo}, {lo}, {S_}"); A(f"v_sub_f32 {hi}, {hi}, {S_}")
        A(f"v_cvt_pk_bf16_f32 {v(XG+i)}, {lo}, {hi}")
        A(f"v_lshlrev_b32 {lo}, 16, {v(XG+i)}"); A(f"v_and_b32 {hi}, 0xffff0000, {v(XG+i)}")
        A(f"v_mul_f32 {lo}, {lo}, {Q_}"); A(f"v_mul_f32 {hi}, {hi}, {Q_}")
        A(f"v_cvt_pk_bf16_f32 {v(XG+i)}, {lo}, {hi}")
    A(f"v_lshrrev_b32 {v(TM+8)}, 5, v0"); A(f"v_mul_u32_u24 {v(TM+8)}, 144, {v(TM+8)}"); A(f"v_and_b32 {v(TM+9)}, 31, v0"); A(f"v_lshl_add_u32 {v(TM+8)}, {v(TM+9)}, 3, {v(TM+8)}")
    A("s_mov_b32 exec_lo, 0x3ffff"); A("s_mov_b32 exec_hi, 0x3ffff")
    A(f"ds_write_b64 {v(TM+8)}, {v(XG,2)} offset:{L_X}")
    A("s_mov_b64 exec, -1")
    A("L_c1:")

fl_load = ["s_mov_b32 exec_hi, 0", f"buffer_load_dwordx4 {v(FG,4)}, {vL16}, {srd(rWS)}, {sXoff} offen sc1", "s_mov_b32 exec_hi, -1"]
qp_store = f"buffer_store_dwordx4 {v(D0,4)}, {vQPst}, {srd(rWS)}, {{so}} offen{{fl}}"
def qg(n): return [f"buffer_load_dwordx{n} {v(QG+4*p,n)}, {vQPg if p < 2 else vQPg2}, {srd(rWS)}, {sGp} offen offset:{2048*(p%2)} sc1" for p in range(4)]
qg4, qg2 = qg(4), qg(2)
def empty_share(base, fl):
    A(f"s_mul_i32 {t5}, {sL}, {CLR}"); A(f"s_add_u32 {t5}, {t5}, {base}")
    A(f"s_mov_b32 exec_hi, {(1 << (CLR//16-32)) - 1}")
    A(f"buffer_store_dwordx4 {v(EM,4)}, {vL16}, {srd(rWS)}, {t5} offen{fl}")
    A("s_mov_b32 exec_hi, -1")
def small_loads():
    A(f"s_mov_b32 {t5}, {EP_O}")
    A(f"buffer_load_dword {FN}, off, {srd(rWS)}, {t5}{NT}")
    A(f"s_cmp_lg_u32 {sW}, 3")
    A("s_cbranch_scc1 L_pro2")
    A(f"v_lshrrev_b32 {v(TM+8)}, 5, v0"); A(f"v_and_b32 {v(TM+9)}, 31, v0")
    A(f"v_mul_u32_u24 {vXS1}, 1152, {v(TM+8)}"); A(f"v_lshl_add_u32 {vXS2}, {v(TM+9)}, 2, {vXS1}"); A(f"v_lshl_add_u32 {v(TM+10)}, {v(TM+9)}, 3, {vXS1}"); A(f"v_lshl_add_u32 {vXS1}, {v(TM+9)}, 4, {vXS1}")
    for l in xs_loads(rX, 0, NT): A(l)
    A(f"s_mul_i32 {t5}, {t2}, 144")
    A(f"buffer_load_dwordx2 {v(XG,2)}, {v(TM+10)}, {srd(rX)}, {t5} offen{NT}")
    A("L_pro2:")
def code_prefetch():
    A(f"s_cmp_ge_u32 s2, 8"); A("s_cbranch_scc1 L_nc")
    A("s_getpc_b64 s[66:67]")
    A("L_pc:")
    A(f"v_lshl_add_u32 {v(TM+8)}, {sW}, 6, v0"); A(f"v_lshlrev_b32 {v(TM+8)}, 7, {v(TM+8)}")
    A(f"v_min_u32 {v(TM+8)}, L_codeend-L_pc-4, {v(TM+8)}")
    A(f"global_load_dword {DUM}, {v(TM+8)}, s[66:67]")
    A("L_nc:")
if args.hw >= 2: setup_k()
if args.code == 1: code_prefetch()
if args.hw >= 3: setup_ws()
A("s_waitcnt lgkmcnt(0)")
pstamp(0)
if args.xf: small_loads()
for n in range(4):
    A(f"buffer_load_dwordx4 {v(TM+6)}, {srd(rWQ)}, {sXoff} offen{NTQ} lds")
    A("s_add_u32 m0, m0, 4096"); A(f"s_add_u32 {sXoff}, {sXoff}, {16*8192}")
if args.hw < 2: setup_k()
A(f"s_cmp_ge_u32 {sW}, 2"); A("s_cbranch_scc1 L_pro1")
A(f"buffer_load_dwordx4 {v(TM+6)}, {srd(rWQ)}, {sXoff} offen{NTQ} lds")
A("L_pro1:")
if args.hw < 3: setup_ws()
if not args.xf: small_loads()
empty_share(sGf, '')
A(f"s_lshl_b32 {t4}, {sW}, 13"); A(f"s_add_u32 m0, {t4}, {L_K}")
for i in range(8):
    if i == 4: A(f"s_add_u32 m0, m0, 4096")
    A(f"buffer_load_dwordx4 {v(KA+i%4)}, {srd(rK)}, {kv0 if i < 4 else kv1} offen offset:{1024*(i%4)}{NTK} lds")
cnt = [8]
mark = {'K': 8}
def vm(s): A(s); cnt[0] += 1
size(rV, 33554432)
def hookS():
    setup_rest()
    if ST and not args.pro:
        for k in range(14): A(f"s_mov_b64 s[{72+2*k}:{73+2*k}], 0")
    pstamp(3)
    for r, off in ((rW1, 48), (rW2, 64), (rOUT, 80), (rT1, 56), (rT2, 72)):
        A(f"s_load_dwordx2 s[{r}:{r+1}], s[0:1], {off}")
    constants1()
    if args.lnf == 2: ln0(1 + cnt[0] + (4 if args.xf else 0))
    A(f"s_lshl_b32 {t4}, {sL}, 9"); A(f"s_add_u32 {t4}, {t4}, {sGf}"); A(f"s_add_u32 {t4}, {t4}, {QP_O}")
    A(f"s_add_u32 {sXoff}, {sGf}, {FF_O}")
    A("s_mov_b64 exec, 15")
    vm(f"buffer_load_dword {DUM}, {vL128}, {srd(rWS)}, {t4} offen sc1{NT}")
    vm(f"buffer_load_dword {DUM}, {vL128}, {srd(rWS)}, {sXoff} offen sc1{NT}")
    A("s_mov_b64 exec, -1")
def hookQ():
    if not args.lnf: ln0(1 + cnt[0] + (4 if args.xf else 0))
    A(f"s_lshl_b32 {t4}, {sL}, 2"); A(f"s_add_u32 {t4}, {t4}, {sXoff}")
    A(f"s_getreg_b32 {t3}, hwreg(HW_REG_XCC_ID)"); A(f"s_lshl_b32 {t3}, {t3}, 28"); A(f"s_or_b32 {t3}, {t3}, 1")
    A(f"s_waitcnt vmcnt({cnt[0]}) lgkmcnt(0)")
    A("s_barrier")
    pstamp(2)
    for l in exec_xa(): A(l)
    for i in range(3):
        if i == 2: A("s_mov_b64 exec, 0x33")
        A(f"ds_read_b128 {v(XA+4*i,4)}, {vLXr} offset:{L_X+64*i}")
    A("s_mov_b64 exec, -1")
    for i in range(2):
        for vv in range(0, 8, 2):
            row = 32*i + 16*(vv >> 2) + (vv & 3)
            A(f"ds_read2st64_b32 {a(aWQ+8*i+vv,2)}, {vCq} offset0:{row} offset1:{row+1}")
    A("s_mov_b32 exec_hi, 0")
    for vv in (0, 2): A(f"ds_read2st64_b32 {a(aWQ+16+vv,2)}, {vCq} offset0:{64+vv} offset1:{65+vv}")
    A("s_mov_b32 exec_hi, -1")
    A(f"v_readfirstlane_b32 {sFlag}, {FN}")
    A(f"s_add_u32 {sFlag}, {sFlag}, 0x0e377902"); A(f"s_and_b32 {sFlag}, {sFlag}, 0x0fffffff"); A(f"s_or_b32 {sFlag}, {sFlag}, {t3}")
    A(f"v_mov_b32 {FN}, {sFlag}")
    A("s_mov_b64 exec, 1")
    vm(f"buffer_store_dword {FN}, {vL16}, {srd(rWS)}, {t4} offen")
    A("s_mov_b64 exec, -1")
    A(f"v_and_b32 {vTag}, 0xff, {FN}"); A(f"s_movk_i32 {t4}, 0xff")
    A("s_waitcnt lgkmcnt(0)")
    for i in range(3): sm(D0, XA+4*i, aWQ+8*i, vIdxD)
    for i in range(4): A(f"v_bfi_b32 {v(D0+i)}, {t4}, {vTag}, {v(D0+i)}")
    A("s_mov_b32 exec_hi, 0")
    vm(qp_store.format(so=sGf, fl=''))
    A("s_mov_b32 exec_hi, -1")
    pstamp(1)
for k in range(9):
    if k == args.pS: hookS()
    if k == args.pC:
        if args.lnf == 1: ln0(1 + cnt[0] + (4 if args.xf else 0))
        constants()
    if k == args.pQ: hookQ()
    if k == 8 - args.vw: mark['V'] = cnt[0]
    if k < 8: vm(f"buffer_load_dwordx4 {a(aV+4*k,4)}, {vL16}, {srd(rV)}, {kv0 if k < 4 else kv1} offen offset:{1024*(k%4)}{NTV}")
    if k == 7: pstamp(9)
TT = v(TM+4)
def slots_touch():
    A(f"s_lshl_b32 {t1}, {sJ}, 2"); A(f"s_add_u32 {t1}, {t1}, {sW}")
    A(f"s_mul_i32 {t3}, {t1}, 896"); A(f"s_add_u32 {t3}, {t3}, {sGf}"); A(f"s_add_u32 {t3}, {t3}, {Y_O}")
    A("s_mov_b64 exec, 0x7f")
    A(f"buffer_load_dword {DUM}, {vL128}, {srd(rWS)}, {t3} offen sc1{NT}")
    A("s_mov_b64 exec, -1")
assert Y_O + 64 * 896 >= ZS_O + 1536
def w1_touch():
    A(f"s_lshl_b32 {t1}, {sJ}, 2"); A(f"s_add_u32 {t1}, {t1}, {sW}")
    A(f"s_mul_i32 {t4}, {sX}, 576"); A(f"s_add_u32 {t4}, {t4}, {t1}"); A(f"s_add_u32 {t4}, {t4}, 512"); A(f"s_mul_i32 {t4}, {t4}, 1152")
    A(f"s_mul_i32 {t1}, {t1}, {9*9216}")
    A(f"s_mul_i32 {t3}, {sX}, 1152"); A(f"s_add_u32 {t1}, {t1}, {t3}"); A(f"s_add_u32 {t3}, {t1}, {5*9216}")
    A(f"v_mul_u32_u24 {TT}, 57, v0"); A(f"v_lshrrev_b32 {TT}, 9, {TT}"); A(f"v_mul_u32_u24 {TT}, {9216-1152}, {TT}"); A(f"v_add_u32 {TT}, {TT}, {vL128}")
    A("s_mov_b32 exec_hi, 0x1fff")
    A(f"buffer_load_dword {DUM}, {TT}, {srd(rW1)}, {t1} offen{NTT}")
    A("s_mov_b32 exec_hi, 15")
    A(f"buffer_load_dword {DUM}, {TT}, {srd(rW1)}, {t3} offen{NTT}")
    A("s_mov_b64 exec, 0x1ff")
    A(f"buffer_load_dword {DUM}, {vL128}, {srd(rW2)}, {t4} offen{NTT}")
    A("s_mov_b64 exec, -1")
def w2_loads():
    l1 = A.newlabel('L_w2')
    A(f"s_mul_i32 {t0}, {sX}, 18"); A(f"s_add_u32 {t0}, {t0}, {sJ}"); A(f"s_mul_i32 {t0}, {t0}, {32*1152}")
    A(f"s_lshl_b32 {t1}, {sW}, 8"); A(f"s_add_u32 {t1}, {t1}, {t0}")
    for i in range(8):
        A(f"buffer_load_dwordx4 {a(aW2+4*i,4)}, {vWrow}, {srd(rW2)}, {t1} offen{NT2}")
        if i < 7: A(f"s_add_u32 {t1}, {t1}, 4608")
    A(f"s_cmp_lg_u32 {sW}, 3")
    A(f"s_cbranch_scc1 {l1}")
    A(f"s_mov_b64 exec, {mLO8}")
    for i in range(8):
        A(f"buffer_load_dwordx4 {a(aW2t+4*i,4)}, {vWrow}, {srd(rW2)}, {t0} offen offset:1024{NT2}")
        if i < 7: A(f"s_add_u32 {t0}, {t0}, 4608")
    A("s_mov_b64 exec, -1")
    A(f"{l1}:")
def wo_loads(k0, k1, with_tail):
    for k in range(k0, k1):
        A(f"buffer_load_dwordx4 {a(aWO+4*k,4)}, {vWrow}, {srd(rWO)}, {sWo} offen{NTO}")
        A(f"s_add_u32 {sWo}, {sWo}, 4608")
    if with_tail:
        l1 = A.newlabel('L_wt')
        A(f"s_cmp_lg_u32 {sW}, 3")
        A(f"s_cbranch_scc1 {l1}")
        A(f"s_mov_b64 exec, {mLO8}")
        for i in range(7, -1, -1):
            A(f"s_sub_u32 {sWo}, {sWo}, 4608")
            A(f"buffer_load_dwordx4 {a(aWOt+4*i,4)}, {vWrow}, {srd(rWO)}, {sWo} offen offset:256{NTO}")
        A("s_mov_b64 exec, -1")
        A(f"{l1}:")
if args.pC > 8: constants()
pstamp(4)
stamp()
A("s_waitcnt lgkmcnt(0)")
if args.kw: A(f"s_waitcnt vmcnt({ {1: cnt[0]-mark['K'], 2: 6, 3: 4, 4: 2}[args.kw] })")
A(f"s_mov_b32 {sXPo}, {XP_O}")
A(f"s_cmp_lt_u32 {sJ}, 16")
A("s_cbranch_scc1 L_g1n")
A(f"v_readfirstlane_b32 {t4}, {vOPg}"); A(f"v_readfirstlane_b32 {t5}, {vSTg}")
A(f"s_add_u32 {t4}, {t4}, {sGf}"); A(f"s_add_u32 {t5}, {t5}, {sGf}")
A("s_mov_b64 exec, 0xff")
A(f"buffer_load_dword {DUM}, {vL128}, {srd(rWS)}, {t4} offen sc1{NT}")
A("s_mov_b64 exec, 3")
A(f"buffer_load_dword {DUM}, {vL128}, {srd(rWS)}, {t5} offen sc1{NT}")
A("s_mov_b64 exec, -1")
A(f"buffer_load_ushort {vXres}, {vZo}, {srd(rX)}, 0 offen{NT}")
A(f"buffer_load_ushort {vB2}, {vB2}, {srd(rT2)}, 0 offen{NT}")
WL = [int(x) for x in args.wl.split(',')]
wo_loads(0, WL[0], WL[0] == 8)
def wo_part(k0, k1, with_tail):
    if k0 >= k1 and not with_tail: return
    lo = A.newlabel('L_wp'); bk = A.newlabel('L_wb')
    A(f"s_bitcmp1_b32 {sRole}, 3")
    A(f"s_cbranch_scc1 {lo}")
    A(f"{bk}:")
    global A_main
    saved = (A.lines, A.hist); A.lines, A.hist = [], []
    A(f"{lo}:"); wo_loads(k0, k1, with_tail); A(f"s_branch {bk}")
    tail_raw.append(A.lines); A.lines, A.hist = saved
if WL[0] < 8: A(f"s_bitset1_b32 {sRole}, 3")
A("s_branch L_g1o")
A("L_g1n:")
if 's' in args.early: slots_touch()
if '1' in args.early: w1_touch()
if '2' in args.early: w2_loads()
A("L_g1o:")
pstamp(6)
A("s_waitcnt vmcnt(4)" if WL[0] < 8 else "s_waitcnt vmcnt(8)")
for T in range(2):
    for q in range(4): A(f"ds_read_b128 {a(aK+16*T+4*q,4)}, {v(KR+q)} offset:{4096*T}")
A(f"s_waitcnt vmcnt({args.vw})")
if ST and not args.pro and ONLY is None: A(f"s_memrealtime s[74:75]")
pstamp(5)
def flags_diff():
    A(f"v_xor_b32 {CK}, {sFlag}, {v(FG)}")
    for i in range(1, 4): A(f"v_bitop3_b32 {CK}, {CK}, {v(FG+i)}, {sFlag} bitop3:0xf6")
st_rd = f"ds_read_b64 {v(TM,2)}, {vSTATr}"
A("L_g4:")
for l in fl_load + qg4: A(l)
A("s_waitcnt vmcnt(0)")
pstamp(7)
flags_diff()
A(f"v_cmp_ne_u32 vcc, 0, {CK}")
A("s_cmp_lg_u32 vcc_lo, 0")
if args.forcefb: A("s_cmp_eq_u32 0, 0")
A("s_cbranch_scc1 L_af2")
A(f"s_mov_b32 {sMode}, 0")
A("L_g2:")
for i in range(16): A(f"v_xor_b32 {v(QG+i)}, {vTag}, {v(QG+i)}")
A(f"v_or3_b32 {CK}, {v(QG)}, {v(QG+1)}, {v(QG+2)}")
for i in range(3, 15, 2): A(f"v_or3_b32 {CK}, {CK}, {v(QG+i)}, {v(QG+i+1)}")
A(f"v_or_b32 {CK}, {CK}, {v(QG+15)}")
A(f"v_and_b32 {CK}, 0xff, {CK}")
A(f"v_cmp_ne_u32 vcc, 0, {CK}")
A("s_cbranch_vccnz L_g5")
A("L_g3:")
A(f"s_mov_b32 {sL}, 0")
zero(D0)
A(f"v_mov_b32 {v(TM)}, 0"); A(f"v_mov_b32 {v(TM+1)}, 1.0")
tail.append("L_g5:\n" + timeout("L_g4", "L_g3"))
pstamp(8)
A(f"v_add_f32 {v(TM+2)}, {v(QG+2)}, {v(QG+6)}"); A(f"v_add_f32 {v(TM+3)}, {v(QG+3)}, {v(QG+7)}")
A(f"v_add_f32 {v(TM+4)}, {v(QG+10)}, {v(QG+14)}"); A(f"v_add_f32 {v(TM+5)}, {v(QG+11)}, {v(QG+15)}")
A(f"v_add_f32 {v(TM+2)}, {v(TM+2)}, {v(TM+4)}"); A(f"v_add_f32 {v(TM+3)}, {v(TM+3)}, {v(TM+5)}")
A(f"v_permlane32_swap_b32 {v(TM+2)}, {v(TM+3)}")
A(f"v_add_f32 {vCq}, {v(TM+2)}, {v(TM+3)}")
A("s_branch L_qfin")

A("L_layer:")
zero(D0, 8)
def quiet_wait(so_add):
    if not args.pre: return
    A(f"s_add_u32 {t5}, {sGp}, {so_add}")
    A("s_mov_b64 exec, 1")
    poll([f"buffer_load_dword {DUM}, {vL16}, {srd(rWS)}, {t5} offen sc1"] + ([f"s_sleep {args.pre-1}"] if args.pre > 1 else []), [DUM])
    A("s_mov_b64 exec, -1")
    if args.zd: A(f"s_sleep {args.zd}")
if args.pre:
    A(f"s_bitcmp1_b32 {sRole}, 1"); A("s_cbranch_scc1 L_q0")
    quiet_wait(AN_O)
    A("L_q0:")
def q_pub():
    A(f"v_and_b32 {v(D0)}, -2, {v(D0)}"); A(f"v_and_b32 {v(D0+1)}, -2, {v(D0+1)}")
    A("s_mov_b32 exec_hi, 0")
    pub(f"buffer_store_dwordx2 {v(D0,2)}, {vQPst}, {srd(rWS)}, {{so}} offen{{fl}}")
    A("s_mov_b32 exec_hi, -1")
poll_proj(vXAq, sXoff, 3, aWQ, True)
q_pub()
nst[0] = 1
stamp()
zero(D0)
qregs = [v(QG+4*p+i) for p in range(4) for i in range(2)]
qchk1 = [f"v_or3_b32 {CK}, {qregs[0]}, {qregs[1]}, {qregs[2]}", f"v_or3_b32 {CK}, {CK}, {qregs[3]}, {qregs[4]}", f"v_or3_b32 {CK}, {CK}, {qregs[5]}, {qregs[6]}",
         f"v_bitop3_b32 {CK}, {CK}, {qregs[7]}, 1 bitop3:0xa8", f"v_cmp_ne_u32 vcc, 0, {CK}"]
poll(zs_load(vSTATr, sGp), [v(ZG), v(ZG+1)])
for l in qg2: A(l)
A(f"v_mov_b32 {S_}, {v(ZG)}"); A(f"v_mov_b32 {Q_}, {v(ZG+1)}")
stats_tail1(); stats_tail2()
poll(qg2, qregs, primed=True, chk=qchk1, site='q')
A("L_qfin:")
stamp()
A(f"v_add_f32 {v(TM+2)}, {v(QG)}, {v(QG+4)}"); A(f"v_add_f32 {v(TM+3)}, {v(QG+1)}, {v(QG+5)}")
A(f"v_add_f32 {v(TM+4)}, {v(QG+8)}, {v(QG+12)}"); A(f"v_add_f32 {v(TM+5)}, {v(QG+9)}, {v(QG+13)}")
A(f"v_add_f32 {v(TM+2)}, {v(TM+2)}, {v(TM+4)}"); A(f"v_add_f32 {v(TM+3)}, {v(TM+3)}, {v(TM+5)}")
A(f"v_permlane32_swap_b32 {v(TM+2)}, {v(TM+3)}")
A(f"v_add_f32 {v(TM+2)}, {v(TM+2)}, {v(TM+3)}")
A(f"v_fma_f32 {v(TM+2)}, -{v(TM)}, {vCq}, {v(TM+2)}")
A(f"v_mul_f32 {v(TM+2)}, {v(TM+2)}, {v(TM+1)}")
A(f"v_cvt_pk_bf16_f32 {v(TM+2)}, {v(TM+2)}, {v(TM+2)}")
A(f"ds_write_b16 {vQTw}, {v(TM+2)} offset:{L_QT}")
A("s_mov_b32 vcc_lo, 0xaaaaaaaa"); A("s_mov_b32 vcc_hi, 0xaaaaaaaa")
zero(DP)
A("s_waitcnt lgkmcnt(0)")
A("s_barrier")
A(f"ds_read_b128 {v(AO,4)}, {vQTr} offset:{L_QT}")
A(f"ds_read_b128 {v(AO+4,4)}, {vQTr} offset:{L_QT+256}")
if WL[0] < 8: wo_part(WL[0], WL[0]+WL[1], False)
if args.mid:
    A(f"s_lshr_b32 {t0}, {sJ}, 4"); A(f"s_or_b32 {t0}, {t0}, {sL}")
    A("s_cbranch_scc1 L_mid")
    if 's' in args.mid: slots_touch()
    if '1' in args.mid: w1_touch()
    if '2' in args.mid: w2_loads()
    A("L_mid:")
A(f"s_waitcnt lgkmcnt({lg(1)})")
sm(D0, AO, aK, vIdxP); sm(D1, AO, aK+16, vIdxP)
A("s_waitcnt lgkmcnt(0)")
sm(D0, AO+4, aK+8, vIdxP); sm(D1, AO+4, aK+24, vIdxP)
SC, MX, P_, LS, TT = v(TM), v(TM+1), v(TM+2), v(TM+3), v(TM+4)
A(f"v_add_f32 {SC}, {v(D0)}, {v(D0+1)}")
A(f"v_add_f32 {TT}, {v(D1)}, {v(D1+1)}")
A(f"v_cndmask_b32 {SC}, {SC}, {TT}, {mROW}")
rbf(SC, SC)
A(f"v_mul_f32 {SC}, {f32(128 ** -0.5)}, {SC}")
rbf(SC, SC)
A(f"v_mul_f32 {SC}, {f32(1.4426950408889634)}, {SC}")
zero(D0, 2)
A(f"v_max_f32_dpp {MX}, {SC}, {SC} row_ror:8 row_mask:0xf bank_mask:0xf")
for n, k in enumerate((4, 2, 1)):
    zero(D0+2+2*n, 2)
    if k == 1: A(f"v_max_f32_dpp {TT}, {MX}, {MX} row_ror:{k} row_mask:0xf bank_mask:0xf")
    A(f"v_max_f32_dpp {MX}, {MX}, {MX} row_ror:{k} row_mask:0xf bank_mask:0xf")
A(f"v_permlane16_swap_b32 {MX}, {TT}")
A(f"v_max_f32 {MX}, {MX}, {TT}")
A(f"v_sub_f32 {P_}, {SC}, {MX}")
A(f"v_exp_f32 {P_}, {P_}")
A(f"v_cvt_pk_bf16_f32 {TT}, {P_}, 0")
A(f"ds_write2_b32 {vPTw}, {TT}, {TT} offset1:5")
for i in range(4): A(f"ds_read_b128 {v(AO+4*i,4)}, {vPTr} offset:{128*i}")
if WL[0] < 8: wo_part(WL[0]+WL[1], sum(WL), False)
A(f"v_add_f32_dpp {LS}, {P_}, {P_} row_ror:8 row_mask:0xf bank_mask:0xf")
for k in (4, 2, 1): A(f"v_add_f32_dpp {LS}, {LS}, {LS} row_ror:{k} row_mask:0xf bank_mask:0xf")
A(f"v_mov_b32 {SC}, {LS}")
A(f"v_permlane16_swap_b32 {LS}, {SC}")
A(f"v_add_f32 {LS}, {LS}, {SC}")
A(f"v_cndmask_b32 {SC}, {MX}, {LS}, vcc")
A("s_mov_b32 exec_lo, 3"); A("s_mov_b32 exec_hi, 3")
pub(f"buffer_store_dword {SC}, {vSTst}, {srd(rWS)}, {{so}} offen{{fl}}")
A("s_mov_b64 exec, -1")
for i in range(4):
    A(f"s_waitcnt lgkmcnt({lg(3-i)})")
    sm(DP, AO+4*i, aV+8*i, vIdxS)
def pack4(d):
    A(f"v_cvt_pk_bf16_f32 {v(d)}, {v(d)}, {v(d+1)}"); A(f"v_cvt_pk_bf16_f32 {v(d+1)}, {v(d+2)}, {v(d+3)}")
pack4(DP)
pub(f"buffer_store_dwordx2 {v(DP,2)}, {vOPst}, {srd(rWS)}, {{so}} offen{{fl}}")
stamp()
if WL[0] < 8:
    wo_part(sum(WL), 8, True)
    A(f"s_bitset0_b32 {sRole}, 3")
E = TM + 5
R = TM + 12
def tile_out(wb, tb, vst, drain):
    l1 = A.newlabel('L_t'); l2 = A.newlabel('L_t')
    for i in range(4):
        A(f"s_waitcnt lgkmcnt({lg(3-i)})")
        sm(D0, AO+4*i, wb+8*i, vIdxS)
    A(f"s_cmp_lg_u32 {sW}, 3")
    A(f"s_cbranch_scc1 {l1}")
    for i in range(1 if 'notail' in args.exp else 4): sm(D1, AO+4*i, tb+8*i, vIdxS)
    A(f"{l1}:")
    A("s_waitcnt vmcnt(0)" if drain else "s_nop 0")
    A("s_nop 4")
    pack4(D0)
    pub(f"buffer_store_dwordx2 {v(D0,2)}, {vst}, {srd(rWS)}, {{so}} offen{{fl}}")
    A(f"s_cmp_lg_u32 {sW}, 3")
    A(f"s_cbranch_scc1 {l2}")
    pack4(D1)
    A(f"s_mov_b64 exec, {mLO8}")
    pub(f"buffer_store_dwordx2 {v(D1,2)}, {v(E+2)}, {srd(rWS)}, {{so}} offen{{fl}}")
    A("s_mov_b64 exec, -1")
    A(f"{l2}:")
A(f"s_cmp_lt_u32 {sJ}, 16")
A("s_cbranch_scc1 L_mlp")
op_load = [f"buffer_load_dwordx2 {v(OG+2*i,2)}, {vOPg}, {srd(rWS)}, {sGp} offen offset:{512*i} sc1" for i in range(2)]
A(f"v_add_u32 {v(E+6)}, {4*1152}, {vYst}")
if args.sd: A(f"s_sleep {args.sd}")
if 'nost' not in args.exp.split(','): poll([f"buffer_load_dwordx4 {v(SG,4)}, {vSTg}, {srd(rWS)}, {sGp} offen sc1",
      f"buffer_load_dwordx4 {v(SG+4,4)}, {vSTg}, {srd(rWS)}, {sGp} offen offset:128 sc1",
      f"buffer_load_dwordx2 {v(SG+8,2)}, {vSTm}, {srd(rWS)}, {sGp} offen sc1"], [v(SG+i) for i in range(10 if 's' in PD else 8)], site='s')
for l in op_load: A(l)
if 'noweights' in args.exp: A("s_branch L_exw")
A(f"v_max3_f32 {MX}, {v(SG)}, {v(SG+1)}, {v(SG+2)}")
A(f"v_max_f32 {MX}, {MX}, {v(SG+3)}")
A(f"v_max_f32_dpp {TT}, {MX}, {MX} row_ror:8 row_mask:0xf bank_mask:0xf")
A(f"v_max_f32_dpp {MX}, {MX}, {MX} row_ror:8 row_mask:0xf bank_mask:0xf")
A(f"v_permlane16_swap_b32 {MX}, {TT}"); A(f"v_max_f32 {SC}, {MX}, {TT}"); A(f"v_max_f32 {MX}, {MX}, {TT}")
A(f"v_permlane32_swap_b32 {MX}, {SC}"); A(f"v_max_f32 {MX}, {MX}, {SC}")
for n, i in enumerate((0, 1, 2, 3, 8, 9)): A(f"v_sub_f32 {v(E+n)}, {v(SG+i)}, {MX}")
for n in range(6): A(f"v_exp_f32 {v(E+n)}, {v(E+n)}")
A(f"v_mul_f32 {LS}, {v(E)}, {v(SG+4)}")
for i in (1, 2, 3): A(f"v_fmac_f32 {LS}, {v(E+i)}, {v(SG+4+i)}")
A(f"v_add_f32_dpp {TT}, {LS}, {LS} row_ror:8 row_mask:0xf bank_mask:0xf")
A(f"v_add_f32_dpp {LS}, {LS}, {LS} row_ror:8 row_mask:0xf bank_mask:0xf")
A(f"v_permlane16_swap_b32 {LS}, {TT}"); A(f"v_add_f32 {SC}, {LS}, {TT}"); A(f"v_add_f32 {LS}, {LS}, {TT}")
A("L_exw:")
poll(op_load, [v(OG+i) for i in range(4)], primed=True, site='o')
stamp()
A(f"v_permlane32_swap_b32 {LS}, {SC}")
def unpack2(dst, src):
    for i in range(2):
        A(f"v_lshlrev_b32 {v(dst+2*i)}, 16, {v(src+i)}"); A(f"v_and_b32 {v(dst+2*i+1)}, 0xffff0000, {v(src+i)}")
unpack2(R, OG); unpack2(OG+4, OG+2)
for i in (0, 2): A(f"v_pk_mul_f32 {v(R+i,2)}, {v(R+i,2)}, {v(E+3,2)} op_sel:[0,1] op_sel_hi:[1,1]")
for i in (0, 2): A(f"v_pk_fma_f32 {v(R+i,2)}, {v(OG+4+i,2)}, {v(E+5,2)}, {v(R+i,2)} op_sel_hi:[1,0,1]")
A(f"v_add_f32 {LS}, {LS}, {SC}")
A(f"v_mov_b32 {v(E+2)}, {v(E+6)}")
A(f"v_permlane32_swap_b32 {v(R)}, {v(R+2)}")
A(f"v_permlane32_swap_b32 {v(R+1)}, {v(R+3)}")
A(f"v_add_f32 {v(R)}, {v(R)}, {v(R+2)}")
A(f"v_add_f32 {v(R+1)}, {v(R+1)}, {v(R+3)}")
A(f"v_rcp_f32 {LS}, {LS}")
A(f"v_permlane16_swap_b32 {v(R)}, {v(R+1)}")
A(f"v_add_f32 {v(R)}, {v(R)}, {v(R+1)}")
A(f"v_add_f32_dpp {v(R)}, {v(R)}, {v(R)} row_ror:8 row_mask:0xf bank_mask:0xf")
A(f"v_mul_f32 {v(R)}, {v(R)}, {LS}")
A(f"v_cvt_pk_bf16_f32 {TT}, {v(R)}, {v(R)}")
A(f"ds_write_b16 {vOTw}, {TT}")
A(f"s_cmp_lg_u32 {sL}, 0")
A("s_cbranch_scc1 L_o3")
pub(*[f"buffer_store_dwordx2 {v(EM,2)}, {vOPg}, {srd(rWS)}, {{so}} offen offset:{512*i}{{fl}}" for i in range(2)])
A("L_o3:")
A("s_waitcnt lgkmcnt(0)")
A("s_barrier")
for i in range(4): A(f"ds_read_b128 {v(AO+4*i,4)}, {vOTr} offset:{128*i}")
tile_out(aWO, aWOt, vYst, True)
stamp()

def reducer(kind):
    ld = [f"buffer_load_dwordx2 {v(YG+2*i,2)}, {vRg}, {srd(rWS)}, {sGp} offen offset:{512*i} sc1" for i in range(2)]
    A(f"s_movk_i32 {t4}, 0xff"); A(f"s_add_u32 {t3}, {sXPo}, 8192")
    zero(R)
    if kind == 'A': zero(YG+4, 2)
    if kind == 'A':
        if args.yd: A(f"s_sleep {args.yd}")
        poll(ld, [v(YG+i) for i in range(4)], site='y')
    else:
        poll(ld + ["s_mov_b64 exec, 0xffff", f"buffer_load_dwordx2 {v(YG+4,2)}, {vRg}, {srd(rWS)}, {sGp} offen offset:1024 sc1", "s_mov_b64 exec, -1"],
             [v(YG+i) for i in range(6)], site='y')
    stamp()
    A(f"v_smfmac_f32_16x16x64_bf16 {v(R,4)}, {v(YG+8,4)}, {v(YG,8)}, {vIdxS}")
    for i in range(4): A(f"v_add_f32_dpp {v(R+i)}, {v(R+i)}, {v(R+i)} row_ror:8 row_mask:0xf bank_mask:0xf")
    for i in range(4): A(f"v_bfi_b32 {v(R+i)}, {t4}, {vTag}, {v(R+i)}")
    A(f"buffer_store_dwordx4 {v(R,4)}, {vXPst}, {srd(rWS)}, {sXPo} offen sc1")
    if args.near: A(f"buffer_store_dwordx4 {v(R,4)}, {vXPst}, {srd(rWS)}, {t3} offen sc1")
    if kind == 'M':
        A(f"s_lshl_b32 {t0}, {sL}, 2"); A(f"s_andn2_b32 {t0}, {t0}, {sRole}")
        A("s_cbranch_scc1 L_fin")
    cl = [f"buffer_store_dwordx2 {v(EM,2)}, {vRg}, {srd(rWS)}, {{so}} offen offset:{512*i}{{fl}}" for i in range(2)]
    if kind == 'M': cl += ["s_mov_b64 exec, 0xffff", f"buffer_store_dwordx2 {v(EM,2)}, {vRg}, {srd(rWS)}, {{so}} offen offset:1024{{fl}}", "s_mov_b64 exec, -1"]
    pub(*cl)
    if args.pre:
        lb = A.newlabel('L_an')
        A(f"s_cmp_lg_u32 {sTask}, 0"); A(f"s_cbranch_scc1 {lb}")
        if kind == 'A': A(f"s_cmp_eq_u32 {sL}, 0"); A(f"s_cbranch_scc1 {lb}")
        A(f"v_mov_b32 {TT}, {AN_O + (0 if kind == 'M' else 4)}")
        A("s_mov_b64 exec, 1")
        pub(f"buffer_store_dword {vL16}, {TT}, {srd(rWS)}, {{so}} offen{{fl}}")
        A("s_mov_b64 exec, -1")
        A(f"{lb}:")
    if args.near:
        A(f"v_mov_b32 {TT}, 0")
        A(f"ds_read_b32 {TT}, {TT} offset:{L_NEAR}")
    if args.xd: A(f"s_sleep {args.xd}")
    if args.near:
        A("s_waitcnt lgkmcnt(0)")
        A(f"v_or_b32 {vXPg}, {vXPg}, {TT}")
    poll([f"buffer_load_dwordx2 {v(XG,2)}, {vXPg}, {srd(rWS)}, {sXPo} offen sc1",
          f"buffer_load_dwordx2 {v(XG+2,2)}, {vXPg}, {srd(rWS)}, {sXPo} offen offset:512 sc1"], None, site='x',
         chk=[f"v_xor_b32 {v(R+i)}, {vTag}, {v(XG+i)}" for i in range(4)] +
             [f"v_or3_b32 {CK}, {v(R)}, {v(R+1)}, {v(R+2)}", f"v_bitop3_b32 {CK}, {CK}, {v(R+3)}, {t4} bitop3:0xa8", f"v_cmp_ne_u32 vcc, 0, {CK}"])
    stamp()
    Y = v(R)
    A(f"v_add_f32 {v(R)}, {v(R)}, {v(R+2)}"); A(f"v_add_f32 {v(R+1)}, {v(R+1)}, {v(R+3)}")
    A(f"v_permlane32_swap_b32 {v(R)}, {v(R+1)}")
    A(f"v_add_f32 {TT}, {v(R)}, {v(R+1)}"); A(f"v_add_f32 {Y}, {v(R)}, {v(R+1)}")
    A(f"v_permlane16_swap_b32 {Y}, {TT}"); A(f"v_add_f32 {Y}, {Y}, {TT}")
    rbf(Y, Y)
    if kind == 'M':
        A(f"v_add_f32 {Y}, {Y}, {vB2}"); rbf(Y, Y)
    A(f"v_add_f32 {TT}, {Y}, {vXres}")
    A(f"v_add_f32 {v(R+1)}, {Y}, {vXres}")
    A(f"v_add_f32 {Y}, {Y}, {vXres}")
    A("s_mov_b64 exec, -1")
    A(f"v_permlane32_swap_b32 {TT}, {v(R+1)}")
    A(f"v_cvt_pk_bf16_f32 {TT}, {TT}, {v(R+1)}")
    A("s_mov_b64 exec, 0xffff")
    if kind == 'M':
        A(f"s_cmp_lg_u32 {sL}, 0")
        A("s_cbranch_scc1 L_out")
    pub(f"buffer_store_dword {TT}, {vZst}, {srd(rWS)}, {{so}} offen{{fl}}")
    A("s_mov_b64 exec, -1")
    stamp()
    rbf(vXres, Y)
    if kind == 'M' or args.ms != 'x':
        A(f"v_mul_f32 {TT}, {vXres}, {vXres}")
        A(f"v_cndmask_b32 {TT}, {vXres}, {TT}, {mROW}")
        for k in (8, 4, 2): A(f"v_add_f32_dpp {TT}, {TT}, {TT} row_ror:{k} row_mask:0xf bank_mask:0xf")
        A(f"v_add_f32_dpp {Y}, {TT}, {TT} row_ror:1 row_mask:0xf bank_mask:0xf")
        A(f"v_add_f32_dpp {TT}, {TT}, {TT} row_ror:1 row_mask:0xf bank_mask:0xf")
        A(f"v_permlane32_swap_b32 {TT}, {Y}")
        A(f"v_add_f32 {TT}, {TT}, {Y}")
        A("s_mov_b64 exec, 0x10001")
        pub(f"buffer_store_dword {TT}, {vZSst}, {srd(rWS)}, {{so}} offen{{fl}}")
        A("s_mov_b64 exec, -1")
    A(f"v_add_u32 {vZSst}, 512, {vZSst}")
    A(f"v_add_u32 {vZst}, 2304, {vZst}")
    A(f"s_add_u32 {sXPo}, {sXPo}, {XPS}")

A(f"s_bitcmp1_b32 {sRole}, 0")
A("s_cbranch_scc1 L_mlp")
A(f"s_bitcmp1_b32 {sRole}, 1")
A("s_cbranch_scc0 L_probe" if args.near else "s_cbranch_scc0 L_next")
A(f"s_cmp_lg_u32 {sL}, 0")
A("s_cbranch_scc1 L_red")
A(f"v_lshlrev_b32 {vXres}, 16, {vXres}"); A(f"v_lshlrev_b32 {vB2}, 16, {vB2}")
zero(YG+6, 2)
for i in range(4): A(f"v_mov_b32 {v(YG+8+i)}, 0x3f80")
A("L_red:")
k0 = nst[0]
reducer('A'); reducer('M')
kr = nst[0]
A("s_branch L_next")
A("L_mlp:")
nst[0] = k0
A(f"s_cmp_lg_u32 {sL}, 0")
A("s_cbranch_scc1 L_m1")
A(f"s_mul_i32 {t0}, {sX}, 18"); A(f"s_add_u32 {t0}, {t0}, {sJ}")
A(f"s_lshl_b32 {t2}, {t0}, 6")
A(f"buffer_load_ushort {vB1}, {vB1}, {srd(rT1)}, 0 offen{NT}")
A(f"s_cmp_ge_u32 {sJ}, 16")
A("s_cbranch_scc1 L_m0b")
if args.xt:
    A(f"s_lshl_b32 {t1}, {sJ}, 2"); A(f"s_add_u32 {t1}, {t1}, {sW}"); A(f"s_mul_i32 {t1}, {t1}, 36")
    A(f"v_add_u32 {TT}, {t1}, v0")
    A(f"v_lshrrev_b32 {LS}, 6, {TT}"); A(f"v_mul_u32_u24 {MX}, 43, {LS}"); A(f"v_lshrrev_b32 {MX}, 7, {MX}"); A(f"v_add_u32 {LS}, {LS}, {MX}")
    A(f"v_bfe_u32 {MX}, {TT}, 3, 3"); A(f"v_lshl_add_u32 {LS}, {LS}, 3, {MX}"); A(f"v_and_b32 {TT}, 7, {TT}"); A(f"v_lshlrev_b32 {TT}, 7, {TT}"); A(f"v_lshl_add_u32 {TT}, {LS}, 13, {TT}")
    A(f"s_lshl_b32 {t1}, {sX}, 10"); A(f"s_add_u32 {t1}, {t1}, {XP_O}")
    A(f"v_mov_b32 {LS}, 0")
    A("s_mov_b32 exec_hi, 15")
    A(f"buffer_atomic_or {LS}, {TT}, {srd(rWS)}, {t1} offen")
    A("s_mov_b32 exec_hi, -1")
if 's' not in args.early + args.mid: slots_touch()
if '1' not in args.early + args.mid: w1_touch()
if '2' in args.early + args.mid: A("s_branch L_m0d")
A("L_m0b:")
w2_loads()
A("L_m0d:")
A(f"s_cmp_eq_u32 {sW}, 3")
A("s_cbranch_scc1 L_m0c")
A("L_m0a:")
A(f"s_mul_i32 {t0}, {sW}, {192*9216}"); A(f"s_add_u32 {t0}, {t0}, {t2}")
if args.w1dma:
    A(f"v_lshrrev_b32 {TT}, 2, v0"); A(f"v_mul_u32_u24 {TT}, 9216, {TT}"); A(f"v_and_b32 {LS}, 3, v0"); A(f"v_lshl_add_u32 {TT}, {LS}, 4, {TT}")
    A(f"s_mul_i32 {t1}, {sW}, 12288"); A(f"s_add_u32 {t1}, {t1}, {L_K}"); A(f"s_mov_b32 m0, {t1}")
    for i in range(12):
        A(f"buffer_load_dwordx4 {TT}, {srd(rW1)}, {t0} offen{NTM} lds")
        if i < 11: A(f"s_add_u32 {t0}, {t0}, {16*9216}"); A("s_add_u32 m0, m0, 1024")
    A(f"v_lshrrev_b32 {TT}, 4, v0"); A(f"v_lshlrev_b32 {TT}, 8, {TT}"); A(f"v_and_b32 {LS}, 15, v0"); A(f"v_lshl_add_u32 {TT}, {LS}, 2, {TT}"); A(f"v_add_u32 {TT}, {t1}, {TT}")
    A("s_waitcnt vmcnt(0)")
    for i in range(6):
        for hh in range(2):
            for p in range(2):
                A(f"ds_read2_b32 {a(aW1+8*i+4*hh+2*p,2)}, {TT} offset0:{32*p} offset1:{32*p+16}")
            if (i, hh) != (5, 1): A(f"v_add_u32 {TT}, 1024, {TT}")
    A("s_waitcnt lgkmcnt(0)")
else:
    A(f"v_lshrrev_b32 {TT}, 4, v0"); A(f"v_mul_u32_u24 {TT}, {4*9216}, {TT}"); A(f"v_and_b32 {LS}, 15, v0"); A(f"v_lshl_add_u32 {TT}, {LS}, 2, {TT}")
    prev = 0
    for i in range(6):
        for vv in range(8):
            row = 32*i + 16*(vv >> 2) + (vv & 3)
            if row != prev: A(f"s_add_u32 {t0}, {t0}, {(row-prev)*9216}")
            prev = row
            A(f"buffer_load_dword {a(aW1+8*i+vv)}, {TT}, {srd(rW1)}, {t0} offen{NTM}")
A("L_m0c:")
if ST: A("s_memrealtime s[94:95]"); A("s_waitcnt vmcnt(0)"); A("s_memrealtime s[96:97]")
A("s_waitcnt vmcnt(0)")
A(f"v_lshlrev_b32 {vB1}, 16, {vB1}")
A("L_m1:")
zero(D0, 8)
c0 = -2 * 1.4426950408889634 * 0.7978845608028654
A(f"v_mov_b32 {v(E)}, {f32(c0)}")
A(f"v_add_u32 {v(E+2)}, {4*1152}, {vMst}")
A(f"s_mul_i32 {t0}, {sL}, {Z3_O-Z1_O}"); A(f"s_add_u32 {t0}, {t0}, {sGp}"); A(f"s_add_u32 {t0}, {t0}, {Z1_O}")
if args.pre:
    A(f"s_cmp_eq_u32 {sL}, 0"); A("s_cbranch_scc1 L_m1b")
    quiet_wait(AN_O + 4)
    A("L_m1b:")
A(f"s_lshl_b32 {t1}, {sL}, 10"); A(f"s_add_u32 {t1}, {t1}, {sGp}"); A(f"s_add_u32 {t1}, {t1}, {ZS_O}")
A(f"v_lshrrev_b32 {v(E+1)}, 5, v0"); A(f"v_lshlrev_b32 {v(E+1)}, 3, {v(E+1)}")
A(f"s_cmp_eq_u32 {sW}, 3")
A("s_cbranch_scc1 L_m2")
poll_proj(vXAm, t0, 6, aW1)
A("s_mov_b32 exec_hi, 0")
A(f"ds_write_b128 {vHPw}, {v(D0,4)}")
A("s_mov_b32 exec_hi, -1")
A("s_branch L_m2b")
A("L_m2:")
if args.ms == 'x':
    if 'nostat' not in args.exp:
        poll(xs_loads(rWS, t0, ' sc1'), [v(XS+i) for i in range(9)], site='z')
        stats_x()
    else: A(f"v_mov_b32 {S_}, 0"); A(f"v_mov_b32 {Q_}, 1.0")
else:
    poll(zs_load(vZSg, t1), [v(ZG), v(ZG+1)], site='z')
    A(f"v_mov_b32 {S_}, {v(ZG)}"); A(f"v_mov_b32 {Q_}, {v(ZG+1)}")
    stats_tail1(); stats_tail2()
A(f"ds_write_b64 {v(E+1)}, {v(TM,2)} offset:{L_STAT}")
A("L_m2b:")
stamp()
A("s_waitcnt lgkmcnt(0)")
A("s_barrier")
H = TM + 12
A(f"ds_read2_b32 {v(H,2)}, {vHPr} offset0:0 offset1:2")
A(f"ds_read2_b32 {v(H+2,2)}, {vHPr} offset0:128 offset1:130")
A(f"ds_read_b32 {v(H+4)}, {vHPr} offset:1024"); A(f"ds_read_b32 {v(H+5)}, {vHPr} offset:1032")
A(f"ds_read_b64 {v(TM,2)}, {v(E+1)} offset:{L_STAT}")
zero(D0)
A("s_waitcnt lgkmcnt(0)")
A(f"v_add_f32 {v(H)}, {v(H)}, {v(H+2)}"); A(f"v_add_f32 {v(H+1)}, {v(H+1)}, {v(H+3)}")
A(f"v_add_f32 {v(H)}, {v(H)}, {v(H+4)}"); A(f"v_add_f32 {v(H+1)}, {v(H+1)}, {v(H+5)}")
A(f"v_fma_f32 {v(H)}, -{S_}, {v(H+1)}, {v(H)}")
A(f"v_mul_f32 {v(H)}, {v(H)}, {Q_}")
rbf(v(H), v(H))
A(f"v_add_f32 {v(H)}, {v(H)}, {vB1}")
rbf(v(H), v(H))
A(f"v_mul_f32 {TT}, {v(H)}, {v(H)}")
A(f"v_fmac_f32 {v(E)}, {f32(c0*0.044715)}, {TT}")
A(f"v_mul_f32 {TT}, {v(E)}, {v(H)}")
A(f"v_exp_f32 {TT}, {TT}")
A(f"v_add_f32 {TT}, 1.0, {TT}")
A(f"v_rcp_f32 {TT}, {TT}")
A(f"v_mul_f32 {TT}, {TT}, {v(H)}")
A(f"v_cvt_pk_bf16_f32 {TT}, {TT}, 0")
A(f"ds_write2_b32 {vPTw}, {TT}, {TT} offset1:5")
for i in range(4): A(f"ds_read_b128 {v(AO+4*i,4)}, {vPTr} offset:{128*i}")
stamp()
tile_out(aW2, aW2t, vMst, False)
A("L_m4:")
stamp()
nst[0] = kr
A("L_next:")
A(f"s_cmp_lg_u32 {sL}, 0")
A("s_cbranch_scc1 L_fin")
if ST:
    A("s_waitcnt lgkmcnt(0)")
    for k in range(14): A(f"v_writelane_b32 {v(SV)}, s{72+2*k}, {1+k}")
    for k in range(14): A(f"s_mov_b64 s[{72+2*k}:{73+2*k}], 0")
A(f"s_mov_b32 {sL}, 1")
if args.dirty:
    A(f"s_cmp_ge_u32 {sJ}, 16"); A("s_cbranch_scc1 L_dd")
    A(f"s_lshl_b32 {t0}, s2, 2"); A(f"s_add_u32 {t0}, {t0}, {sW}"); A(f"s_lshl_b32 {t0}, {t0}, 14"); A(f"s_add_u32 {t0}, {t0}, 0x2000000")
    for i in range(args.dirty):
        A(f"buffer_store_dwordx4 {v(EM,4)}, {vL16}, {srd(rWS)}, {t0} offen"); A(f"s_add_u32 {t0}, {t0}, 1024")
    A("L_dd:")
A(f"s_add_u32 {sXoff}, {sGp}, {Z2_O}")
for r in (vSTst, vSTg, vSTm): A(f"v_add_u32 {r}, {ST1_O-ST_O}, {r}")
if args.qc:
    assert QP_O % 512 == 0
    for r in (vQPst, vQPg):
        A(f"v_bfe_u32 {TT}, {r}, 1, 8"); A(f"v_and_b32 {r}, 0xfffffe00, {r}"); A(f"v_add_u32 {r}, {r}, {TT}")
    A(f"v_add_u32 {vQPg2}, 4096, {vQPg}")
A("s_branch L_layer")
A("L_out:")
A(f"buffer_store_dword {TT}, {vZo}, {srd(rOUT)}, 0 offen")
A(f"s_mov_b32 {t0}, {EP_O}")
A("s_mov_b64 exec, 1")
A(f"buffer_store_dword {FN}, {vL16}, {srd(rWS)}, {t0} offen")
if ST: A(f"s_memrealtime s[{72+2*13}:{73+2*13}]")
A("L_fin:")
if args.wb:
    A(f"s_cmp_lg_u32 {sJ}, 18"); A("s_cbranch_scc1 L_wb")
    A(f"s_cmp_lg_u32 {sW}, 0"); A("s_cbranch_scc1 L_wb")
    A("buffer_wbl2 sc1")
    A("L_wb:")
if args.enc:
    j0, j1 = [int(x) for x in args.encj.split(',')]
    A("s_memrealtime s[66:67]")
    A("s_waitcnt lgkmcnt(0)")
    if args.enc <= 14: A(f"v_readlane_b32 {t0}, {v(SV)}, {args.enc}"); A("s_nop 3")
    else: A(f"s_mov_b32 {t0}, s{72+2*(args.enc-15)}")
    A(f"s_cmp_eq_u32 {t0}, 0"); A("s_cbranch_scc1 L_enc2")
    A(f"s_cmp_lt_u32 {sJ}, {j0}"); A("s_cbranch_scc1 L_enc2")
    A(f"s_cmp_ge_u32 {sJ}, {j1}"); A("s_cbranch_scc1 L_enc2")
    if args.encref == 0: A(f"s_mov_b32 {t1}, s100")
    elif args.encref <= 14: A(f"v_readlane_b32 {t1}, {v(SV)}, {args.encref}"); A("s_nop 3")
    else: A(f"s_mov_b32 {t1}, s{72+2*(args.encref-15)}")
    A(f"s_sub_u32 {t0}, {t0}, {t1}"); A(f"s_min_u32 {t0}, {t0}, 10000"); A(f"s_lshl_b32 {t0}, {t0}, {4 if args.encref else 3}"); A(f"s_add_u32 {t0}, {t0}, s66")
    A("L_enc:")
    A("s_sleep 8")
    A("s_memrealtime s[64:65]"); A("s_waitcnt lgkmcnt(0)")
    A(f"s_sub_u32 {t1}, s64, {t0}"); A(f"s_cmp_lt_i32 {t1}, 0"); A("s_cbranch_scc1 L_enc")
    A("L_enc2:")
if ST:
    A("s_mov_b64 exec, -1")
    A("s_waitcnt lgkmcnt(0)")
    A(f"v_writelane_b32 {v(SV)}, s100, 0")
    for k in range(14): A(f"v_writelane_b32 {v(SV)}, s{72+2*k}, {15+k}")
    A(f"s_lshl_b32 {t0}, s2, 2"); A(f"s_add_u32 {t0}, {t0}, {sW}"); A(f"s_lshl_b32 {t0}, {t0}, 8"); A(f"s_add_u32 {t0}, {t0}, {STAMP_O}")
    A(f"v_mov_b32 {v(SV+1)}, 0")
    A(f"v_lshlrev_b32 {v(SV+2)}, 3, v0")
    A("s_mov_b32 exec_hi, 0")
    A(f"buffer_store_dwordx2 {v(SV,2)}, {v(SV+2)}, {srd(rWS)}, {t0} offen")
A("L_end:")
A("s_endpgm")
if args.near:
    A("L_probe:")
    A(f"s_cmp_lt_u32 {sJ}, 20"); A("s_cbranch_scc1 L_next")
    A(f"s_cmp_lg_u32 {sL}, 0"); A("s_cbranch_scc1 L_next")
    A(f"s_sub_u32 {t0}, {sJ}, 20"); A(f"s_lshl_b32 {t0}, {t0}, 18"); A(f"s_lshl_b32 {t1}, {sX}, 10"); A(f"s_add_u32 {t0}, {t0}, {t1}"); A(f"s_add_u32 {t0}, {t0}, {XP_O + 3*65536}")
    A(f"s_add_u32 s4, s{rWS}, {t0}"); A(f"s_addc_u32 s5, s{rWS+1}, 0")
    A(f"s_mov_b32 {t2}, -1"); A(f"s_mov_b32 {t3}, -1"); A(f"s_mov_b32 {t4}, 3")
    A("L_pr1:")
    A("s_memtime s[6:7]"); A("s_waitcnt lgkmcnt(0)")
    A(f"s_load_dword {t5}, s[4:5], 0 glc"); A("s_waitcnt lgkmcnt(0)")
    A("s_memtime s[8:9]"); A("s_waitcnt lgkmcnt(0)")
    A(f"s_load_dword {t5}, s[4:5], 0x2000 glc"); A("s_waitcnt lgkmcnt(0)")
    A("s_memtime s[10:11]"); A("s_waitcnt lgkmcnt(0)")
    A(f"s_sub_u32 {t0}, s8, s6"); A(f"s_sub_u32 {t1}, s10, s8")
    A(f"s_min_u32 {t2}, {t2}, {t0}"); A(f"s_min_u32 {t3}, {t3}, {t1}")
    A(f"s_sub_u32 {t4}, {t4}, 1"); A(f"s_cmp_lg_u32 {t4}, 0"); A("s_cbranch_scc1 L_pr1")
    A(f"s_cmp_lt_u32 {t3}, {t2}"); A(f"s_cselect_b32 {t0}, 0x2000, 0")
    A(f"v_mov_b32 {TT}, 0"); A(f"v_mov_b32 {LS}, {t0}")
    A(f"ds_write_b32 {TT}, {LS} offset:{L_NEAR}")
    A("s_branch L_next")
A("L_af2:")
A(f"s_cmp_eq_u32 {sMode}, {FB_O}")
A("s_cbranch_scc1 L_g2")
A(f"s_add_u32 {sMode}, {sMode}, 1")
A(f"s_lshl_b32 {t2}, {sX}, 10"); A(f"s_add_u32 {t2}, {t2}, {FL_O}")
A(f"s_lshl_b32 {t4}, {sL}, 2"); A(f"s_add_u32 {t1}, {t4}, {t2}")
A(f"s_cmp_lt_u32 {sMode}, {1 if args.forcefb else 40}")
A("s_cbranch_scc1 L_af5")
A("s_mov_b64 exec, 1")
A(f"buffer_store_dword {FN}, {vL16}, {srd(rWS)}, {t1} offen sc1")
A("s_mov_b32 exec_lo, -1")
A(f"buffer_load_dwordx4 {v(FG,4)}, {vL16}, {srd(rWS)}, {t2} offen sc1")
A("s_mov_b32 exec_hi, -1")
A("s_waitcnt vmcnt(0)")
flags_diff()
A(f"v_and_b32 {TT}, 0x0fffffff, {CK}")
A(f"v_cmp_ne_u32 vcc, 0, {TT}")
A("s_cmp_lg_u32 vcc_lo, 0")
A("s_cbranch_scc1 L_af5")
A(f"v_cmp_ne_u32 vcc, 0, {CK}")
A("s_cmp_lg_u32 vcc_lo, 0")
if args.forcefb: A("s_cmp_eq_u32 0, 0")
A("s_cbranch_scc1 L_spread")
A("L_af5:")
A(f"s_sub_u32 {sTO}, {sTO}, 1")
A("s_cbranch_scc0 L_g4")
A(f"s_mov_b32 {sTO}, 0")
A(f"s_mov_b32 {sMode}, 0")
A("s_branch L_g2")
A("L_spread:")
A(f"s_mov_b32 {sMode}, {FB_O}")
A(f"s_add_u32 {sGp}, {sGf}, {FB_O}")
empty_share(sGp, ' sc1')
A("s_mov_b32 exec_hi, 0")
A(qp_store.format(so=sGp, fl=' sc1'))
A("s_waitcnt vmcnt(0)")
A("s_mov_b64 exec, 1")
A(f"buffer_store_dword {FN}, {vL16}, {srd(rWS)}, {t1} offen offset:512 sc1")
A("s_mov_b32 exec_lo, -1")
A("L_sp1:")
A("s_mov_b32 exec_hi, 0")
A(f"buffer_load_dwordx4 {v(FG,4)}, {vL16}, {srd(rWS)}, {t2} offen offset:512 sc1")
A("s_mov_b32 exec_hi, -1")
A("s_waitcnt vmcnt(0)")
flags_diff()
A(f"v_and_b32 {CK}, 0x0fffffff, {CK}")
A(f"v_cmp_ne_u32 vcc, 0, {CK}")
A("s_cmp_eq_u32 vcc_lo, 0")
A("s_cbranch_scc1 L_g4")
A("s_sleep 4")
A(timeout("L_sp1", "L_g4"))
for t in tail: A(t)
for t in tail_raw: A.lines += t
A.raw('L_codeend:')

A.raw('.section .rodata,"a"')
A.raw(".p2align 6")
A.raw(f".amdhsa_kernel {NAME}_kernel")
A.raw(f"  .amdhsa_next_free_vgpr {ACC+NACC}")
A.raw("  .amdhsa_next_free_sgpr 102")
A.raw(f"  .amdhsa_accum_offset {ACC}")
A.raw("  .amdhsa_group_segment_fixed_size 0")
A.raw("  .amdhsa_kernarg_size 104")
A.raw("  .amdhsa_user_sgpr_count 2")
A.raw("  .amdhsa_user_sgpr_kernarg_segment_ptr 1")
A.raw("  .amdhsa_system_sgpr_workgroup_id_x 1")
A.raw(".end_amdhsa_kernel")
txt = A.text()
if args.cyc: txt = txt.replace('s_memrealtime', 's_memtime')
sys.stdout.write(txt)
```

```python
import sys, argparse, struct
sys.path.insert(0, 'dev')
from asmlib import Asm
NAME = "interleave_layers__sliding_block_cached__dense_activation_gelu__decode"
ap = argparse.ArgumentParser()
ap.add_argument('--stamps', action='store_true')
ap.add_argument('--pro', action='store_true')
ap.add_argument('--cyc', action='store_true')
ap.add_argument('--xt', type=int, default=0)
ap.add_argument('--xd', type=int, default=11)
ap.add_argument('--enc', type=int, default=0)
ap.add_argument('--encref', type=int, default=0)
ap.add_argument('--encj', default='0,32')
ap.add_argument('--only', default='')
ap.add_argument('--pQ', type=int, default=4)
ap.add_argument('--xf', type=int, default=1)
ap.add_argument('--kw', type=int, default=3)
ap.add_argument('--code', type=int, default=3)
ap.add_argument('--early', default='0')
ap.add_argument('--mid', default='')
ap.add_argument('--w1dma', type=int, default=0)
ap.add_argument('--near', type=int, default=1)
ap.add_argument('--pd', default='s22,y22,o22')
ap.add_argument('--wb', type=int, default=0)
ap.add_argument('--dirty', type=int, default=0)
ap.add_argument('--pre', type=int, default=1)
ap.add_argument('--qd', type=int, default=0)
ap.add_argument('--zs', type=int, default=0)
ap.add_argument('--sd', type=int, default=0)
ap.add_argument('--yd', type=int, default=0)
ap.add_argument('--zd', type=int, default=0)
ap.add_argument('--qc', type=int, default=1)
ap.add_argument('--ms', default='x')
ap.add_argument('--exp', default='')
ap.add_argument('--tlb', type=int, default=0)
ap.add_argument('--hw', type=int, default=3)
ap.add_argument('--prew', type=int, default=0)
ap.add_argument('--pS', type=int, default=0)
ap.add_argument('--pC', type=int, default=9)
ap.add_argument('--lnf', type=int, default=2)
ap.add_argument('--wl', default='8,0,0')
ap.add_argument('--mo', default='t2r')
ap.add_argument('--vw', type=int, default=1)
ap.add_argument('--di', type=int, default=1)
ap.add_argument('--dz', type=int, default=1)
ap.add_argument('--dxx', type=int, default=1)
ap.add_argument('--nt', default='k,v,2')
ap.add_argument('--forcefb', action='store_true')
args = ap.parse_args()
def ntf(c): return ' nt' if c in args.nt.split(',') else ''
NT = ntf('s'); NTK = ntf('k'); NTV = ntf('v'); NTQ = ntf('q'); NTO = ntf('o'); NTM = ntf('m'); NT2 = ntf('2'); NTT = ntf('t')
ST = args.stamps
PD = {x[0]: (int(x[1]), int(x[2:])) for x in args.pd.split(',') if x}

def f32(x): return '0x%08x' % struct.unpack('<I', struct.pack('<f', x))[0]

CLR = 944
OP_O = 0
Y_O = OP_O + 65536
ST_O = Y_O + 41472
ST1_O = ST_O + 2048
Z1_O = ST1_O + 2048
Z2_O = Z1_O + 2304
Z3_O = Z2_O + 2304
AN_O = Z3_O + 2304
ZS_O = AN_O + 128
assert ZS_O + 1536 <= 128 * CLR and (128 * CLR) % 128 == 0
QP_O = 128 * CLR
FF_O = QP_O + 65536
GB = FF_O + 1024
FB_O = 8 * GB
XP_O = 6 << 20
assert XP_O >= 16 * GB
XPS = 16384
FL_O = XP_O + 12 * 262144
EP_O = FL_O + 8 * 1024
STAMP_O = 0x8000000
L_NEAR = 8176
L_X = 640
L_QT, L_STAT, L_OT, L_PT, L_HP, L_K, L_WQ, L_SIZE = 0, 512, 1024, 2560, 8192, 16384, 49152, 67584

rK, rV, rWQ, rWO, rW1, rW2, rWS, rX, rOUT, rT1, rT2 = 4, 8, 12, 16, 20, 24, 28, 32, 36, 44, 48
sTask, kv0, kv1, sFlag = 's40', 's41', 's42', 's43'
def srd(n): return f"s[{n}:{n+3}]"
sW, sX, sJ, sGf, sGp, sXoff, sTO, sMode, sL, sWo = [f"s{i}" for i in range(52, 62)]
t0, t1, t2, t3, t4, t5 = [f"s{i}" for i in range(62, 68)]
mLO8 = "s[68:69]"; mROW = "s[70:71]"
MXA = "0x00330033"
sRole = "s3"
(vL4, vL16, vIdxD, vIdxP, vIdxS, vXAq, vXAm, vQPst, vQPg, vL128, vQTw, vQTr, vPTw, vPTr, vSTst, vOPst, vSTg, vOPg, vOTw, vOTr,
 vYst, vMst, vHPw, vSTm, vRg, vSTATr, vXPst, vXPg, vZst, vXres, vB2, vB1, vCq, vZo, vXS1, vXS2, vWrow, vHPr, vOnes) = [f"v{i}" for i in range(1, 40)]
XA, D0, D1, DP, AO, SG, YG, XG, XS, FG, TM, EM, KA, SV, OG, QG = 40, 64, 68, 72, 76, 104, 120, 132, 136, 148, 152, 176, 180, 184, 188, 196
vQPg2, vZSst, vZSg = 'v92', 'v93', 'v94'
ZG = 96; vLXr = 'v98'; KR = 100
ACC = 212
aWQ, aK, aV, aWO, aW1, aW2, aWOt, NACC = 0, 24, 56, 88, 120, 168, 200, 232
aW2t = aW1
def v(n, k=1): return f"v{n}" if k == 1 else f"v[{n}:{n+k-1}]"
def a(n, k=1): return f"a{n}" if k == 1 else f"a[{n}:{n+k-1}]"
CK = v(TM + 23); FN = v(TM + 22); vTag = v(TM + 21); DUM = v(TM + 20)
sEp, sXPo = kv0, kv1

A = Asm()
tail = []
tail_raw = []
nst = [0]
def pstamp(k):
    if args.pro: A(f"s_memrealtime s[{72+2*k}:{73+2*k}]")
def stamp():
    if ST and not args.pro:
        k = nst[0]; nst[0] += 1
        assert k < 13
        if ONLY is None or k in ONLY: A(f"s_memrealtime s[{72+2*k}:{73+2*k}]")
ONLY = set(int(x) for x in args.only.split(',')) if args.only else None
def lg(n): return 0 if (ST and ONLY is None) else n
def exec_xa(): return [f"s_mov_b32 exec_lo, {MXA}", f"s_mov_b32 exec_hi, {MXA}"]

def check_text(regs):
    regs = list(regs); o = []
    if len(regs) == 1: cur = regs[0]
    else:
        take = regs[:3]; regs = regs[3:]
        o.append(f"v_max3_u32 {CK}, {take[0]}, {take[1]}, {take[2]}" if len(take) == 3 else f"v_max_u32 {CK}, {take[0]}, {take[1]}")
        while regs:
            take = regs[:2]; regs = regs[2:]
            o.append(f"v_max3_u32 {CK}, {CK}, {take[0]}, {take[1]}" if len(take) == 2 else f"v_max_u32 {CK}, {CK}, {take[0]}")
        cur = CK
    o.append(f"v_cmp_eq_u32 vcc, -1, {cur}")
    return o
def nvm(loads): return sum(1 for l in loads if l.startswith('buffer_'))
def timeout(again, ok): return f"s_sub_u32 {sTO}, {sTO}, 1\ns_cbranch_scc0 {again}\ns_mov_b32 {sTO}, 0\ns_waitcnt vmcnt(0) lgkmcnt(0)\ns_branch {ok}"

def poll(loads, regs, primed=False, extra_wait="", chk=None, site=''):
    lp = A.newlabel('L_poll'); to = A.newlabel('L_to'); ok = A.newlabel('L_ok')
    depth, gap = PD.get(site, (1, 0))
    ck = chk or check_text(regs)
    pre = []
    for d in range(depth - 1):
        pre += loads + ([f"s_sleep {gap}    ; two polls in flight, half a round trip apart"] if gap else [])
    loop = [f"{lp}:"] + loads + [f"s_sub_u32 {sTO}, {sTO}, 1", f"s_cbranch_scc1 {to}", f"s_waitcnt vmcnt({(depth-1)*nvm(loads)}){extra_wait}"] + ck + [f"s_cbranch_vccnz {lp}"]
    tmo = f"{to}:\ns_mov_b32 {sTO}, 0\ns_waitcnt vmcnt(0) lgkmcnt(0)\ns_branch {ok}"
    if primed:
        st = A.newlabel('L_more')
        A(f"s_waitcnt vmcnt(0){extra_wait}")
        for l in ck: A(l)
        A(f"s_cbranch_vccnz {st}")
        A(f"{ok}:")
        tail.append(f"{st}:\n" + "\n".join(pre + loop) + f"\ns_branch {ok}\n" + tmo)
        return
    for l in pre + loop: A(l)
    A(f"{ok}:")
    tail.append(tmo)

def sm(d, av, br, idx): A(f"v_smfmac_f32_16x16x64_bf16 {v(d,4)}, {v(av,4)}, {a(br,8)}, {idx}")
def xa_loads(rr, voff, so, n, fl, short_last=False):
    o = exec_xa()
    for i in range(n):
        if short_last and i == n - 1: o.append("s_mov_b64 exec, 0x33")
        o.append(f"buffer_load_dwordx4 {v(XA+4*i,4)}, {voff}, {srd(rr)}, {so} offen offset:{64*i}{fl}")
    return o + ["s_mov_b64 exec, -1"]
def poll_proj(voff, so, n, wbase, short_last=False, extra=[]):
    loads = extra[:-1] + xa_loads(rWS, voff, so, n, ' sc1', short_last)
    lds = [l for l in loads if l.startswith('buffer_')]
    lp = A.newlabel('L_poll'); rt = A.newlabel('L_retry'); ok = A.newlabel('L_ok'); gen = A.newlabel('L_nan')
    depth, gap = PD.get('p', (1, 0))
    for d in range(depth):
        if d: A(f"s_sleep {gap}")
        for l in loads: A(l)
    A(f"{lp}:")
    A(f"s_waitcnt vmcnt({(depth-1)*n})")
    for i in range(n): sm(D0, XA+4*i, wbase+8*i, vIdxD)
    for l in loads: A(l)
    A(f"v_cmp_u_f32 vcc, {v(D0)}, {v(D0+1)}")
    A(f"s_cbranch_vccnz {rt}")
    A(f"{ok}:")
    z = "\n".join(f"v_mov_b32 {v(D0+i)}, 0" for i in range(4))
    mm = "\n".join(f"v_smfmac_f32_16x16x64_bf16 {v(D0,4)}, {v(XA+4*i,4)}, {a(wbase+8*i,8)}, {vIdxD}" for i in range(n))
    if args.zs: z += f"\ns_sleep {args.zs}"
    tail.append(f"{rt}:\n{z}\ns_sub_u32 {sTO}, {sTO}, 1\ns_cbranch_scc1 {gen}\ns_and_b32 {t5}, {sTO}, 15\ns_cbranch_scc1 {lp}\n" +
                "\n".join(check_text([v(XA+i) for i in range(4*n)])) + f"\ns_cbranch_vccnz {lp}\n{gen}:\ns_max_i32 {sTO}, {sTO}, 0\n{mm}\ns_nop 7\ns_branch {ok}")

def pub(*fmts):
    for f in fmts: A(f.format(so=sGf, fl=''))
    sl = A.newlabel('L_slow'); bk = A.newlabel('L_back')
    A(f"s_cmp_lg_u32 {sMode}, 0")
    A(f"s_cbranch_scc1 {sl}")
    A(f"{bk}:")
    tail.append(f"{sl}:\n" + "\n".join(f.format(so=sGp, fl=' sc1') for f in fmts) + f"\ns_nop 1\ns_branch {bk}")

def rbf(dst, src):
    A(f"v_cvt_pk_bf16_f32 {dst}, {src}, {src}")
    A(f"v_and_b32 {dst}, 0xffff0000, {dst}")
def treduce(r):
    A(f"v_permlane32_swap_b32 {v(r)}, {v(r+2)}")
    A(f"v_permlane32_swap_b32 {v(r+1)}, {v(r+3)}")
    A(f"v_add_f32 {v(r)}, {v(r)}, {v(r+2)}")
    A(f"v_add_f32 {v(r+1)}, {v(r+1)}, {v(r+3)}")
    A(f"v_permlane16_swap_b32 {v(r)}, {v(r+1)}")
    A(f"v_add_f32 {v(r)}, {v(r)}, {v(r+1)}")
    A(f"v_add_f32_dpp {v(r)}, {v(r)}, {v(r)} row_ror:8 row_mask:0xf bank_mask:0xf")
S_, Q_ = v(TM), v(TM+1)
def stats_tail1():
    S, Q = S_, Q_
    A(f"v_permlane16_swap_b32 {S}, {Q}")
    A(f"v_add_f32 {S}, {S}, {Q}")
    for k in (8, 4, 2, 1):
        A(f"v_add_f32_dpp {S}, {S}, {S} row_ror:{k} row_mask:0xf bank_mask:0xf")
    A(f"v_mul_f32 {Q}, {f32(1/576)}, {S}")
    A(f"v_mul_f32 {S}, {f32(1/576)}, {S}")
def stats_tail2():
    S, Q = S_, Q_
    A(f"v_permlane16_swap_b32 {S}, {Q}")
    A(f"v_fma_f32 {Q}, -{S}, {S}, {Q}")
    A(f"v_max_f32 {Q}, 0, {Q}")
    A(f"v_cvt_pk_bf16_f32 {Q}, {S}, {Q}")
    A(f"v_lshlrev_b32 {S}, 16, {Q}")
    A(f"v_and_b32 {Q}, 0xffff0000, {Q}")
    A(f"v_add_f32 {Q}, {f32(1e-5)}, {Q}")
    rbf(Q, Q)
    A(f"v_sqrt_f32 {Q}, {Q}")
    rbf(Q, Q)
    A(f"v_rcp_f32 {Q}, {Q}")
def stats_x():
    A(f"v_mov_b32 {S_}, 0"); A(f"v_mov_b32 {Q_}, 0")
    for i in range(9):
        A(f"v_dot2c_f32_bf16 {S_}, {v(XS+i)}, {vOnes}")
        A(f"v_dot2c_f32_bf16 {Q_}, {v(XS+i)}, {v(XS+i)}")
    stats_tail1(); stats_tail2()
def zs_load(voff, so):
    return ["s_mov_b32 exec_lo, 0x3ffff", "s_mov_b32 exec_hi, 0x3ffff", f"buffer_load_dwordx2 {v(ZG,2)}, {voff}, {srd(rWS)}, {so} offen sc1", "s_mov_b64 exec, -1"]
def zero(r, n=4):
    for i in range(n): A(f"v_mov_b32 {v(r+i)}, 0")
def xs_loads(rr, so, fl):
    return [f"buffer_load_dwordx4 {v(XS,4)}, {vXS1}, {srd(rr)}, {so} offen{fl}",
            f"buffer_load_dwordx4 {v(XS+4,4)}, {vXS1}, {srd(rr)}, {so} offen offset:512{fl}",
            f"buffer_load_dword {v(XS+8)}, {vXS2}, {srd(rr)}, {so} offen offset:1024{fl}"]

for l in """; Two decoder layers (attention + GELU MLP) for batch 2 in ONE persistent launch: 256 workgroups (one per CU) x 4 waves.
; All weights and the K/V window are read from memory once and stay in registers for both layers.
; Workgroup id = [kvhl 1][b 1][s 3][x 3]; the 32 workgroups with equal x form a group (j = id >> 3).
;   every workgroup : q projection tile (72 rows x 128 columns), scores/softmax/P.V for 128 keys and 2 heads
;   j >= 16         : merges the split-softmax partials (true running max) and applies a 32-row tile of wo
;   j <  18         : 32 hidden units of the MLP (w1 columns, GELU, w2 rows)
;   j >= 20, w < 3  : sums partial rows inside the group, exchanges them between the groups, adds the residual
; Matrix-vector products run on v_smfmac (the activation is the sparse operand, raw weight rows are the dense one).
; Hand-offs are self-validating data in d_ws: slots are marked empty (0xFFFFFFFF) by this launch, or carry a tag derived
; from an epoch word in d_ws that only serves to tell this launch's hand-offs from an earlier launch's.
; Inside a group, plain stores + L2 are used only after the group has verified at run time (die id in its flags) that all
; its members sit on one die; otherwise a second copy of the slots is used with write-through stores. All polls are bounded.
; Generated by a script of the author (no compiler output).""".split("\n"): A.raw(l)
A.raw(f"; @launch grid=(256,1,1) block=(256,1,1) lds={L_SIZE}")
A.raw('.amdgcn_target "amdgcn-amd-amdhsa--gfx950"')
A.raw(".text")
A.raw(f".globl {NAME}_kernel")
A.raw(".p2align 8")
A.raw(f".type {NAME}_kernel,@function")
A.raw(f"{NAME}_kernel:")
if ST:
    A("s_memrealtime s[100:101]")
    if args.pro:
        for k in range(1, 14): A(f"s_mov_b32 s{72+2*k}, 0")
for r, off in ((rWQ, 24), (rK, 8), (rWS, 96), (rX, 0), (rV, 16), (rWO, 32)):
    A(f"s_load_dwordx2 s[{r}:{r+1}], s[0:1], {off}")
if args.code >= 2:
    A(f"s_cmp_ge_u32 s2, {8*(args.code-1)}"); A("s_cbranch_scc1 L_nc")
    A("s_getpc_b64 s[66:67]")
    A("L_pc:")
    A(f"v_lshlrev_b32 {v(TM+8)}, 7, v0")
    A(f"v_min_u32 {v(TM+8)}, L_codeend-L_pc-4, {v(TM+8)}")
    A(f"global_load_dword {DUM}, {v(TM+8)}, s[66:67]")
    A("L_nc:")
A("s_cmp_ge_u32 s2, 256")
A("s_cbranch_scc1 L_end")
G, C, B2 = v(TM+3), v(TM+4), v(TM+5)
def size(r, n): A(f"s_mov_b32 s{r+2}, {n}"); A(f"s_mov_b32 s{r+3}, 0x20000")
A(f"v_readfirstlane_b32 {sW}, v0")
A(f"v_lshrrev_b32 {v(TM+6)}, 4, v0")
A(f"v_and_b32 {C}, 15, v0")
A(f"v_lshlrev_b32 {v(TM+6)}, 13, {v(TM+6)}")
A(f"v_lshl_add_u32 {v(TM+6)}, {C}, 4, {v(TM+6)}")
size(rWQ, 4718592)
A(f"s_and_b32 {sX}, s2, 7")
A(f"s_bfe_u32 {t2}, s2, 0x30003")
A(f"s_lshr_b32 {t3}, s2, 6"); A(f"s_lshl2_add_u32 {t0}, {sX}, {t3}"); A(f"s_lshl_b32 {t3}, {t0}, 8")
A(f"s_mul_i32 {sXoff}, {t2}, {72*8192}"); A(f"s_add_u32 {sXoff}, {sXoff}, {t3}")
A(f"s_lshl4_add_u32 m0, {sW}, {L_WQ}")
def setup_k():
    A(f"v_and_b32 v0, 63, v0")
    A(f"v_lshrrev_b32 {G}, 4, v0")
    A(f"s_and_b32 {t1}, {t0}, 1"); A(f"s_lshr_b32 {t0}, {t0}, 1")
    A(f"s_lshl4_add_u32 {kv0}, {t1}, {t0}"); A(f"s_lshl_b32 {kv0}, {kv0}, 5"); A(f"s_add_u32 {kv0}, {kv0}, {t2}"); A(f"s_lshl_b32 {kv0}, {kv0}, 8")
    A(f"s_add_u32 {kv0}, {kv0}, {sW}"); A(f"s_lshl_b32 {kv0}, {kv0}, 7"); A(f"s_add_u32 {kv0}, {kv0}, {3072*256}"); A(f"s_add_u32 {kv1}, {kv0}, 4096")
    size(rK, 33554432)
    A(f"v_xor_b32 {v(TM+7)}, {C}, {G}")
    A(f"v_lshlrev_b32 {v(TM+7)}, 4, {v(TM+7)}")
    A(f"v_lshl_add_u32 {v(KA)}, {G}, 8, {v(TM+7)}")
    for i in range(1, 4): A(f"v_xor_b32 {v(KA+i)}, {64*i}, {v(KA)}")
    A(f"s_lshr_b32 {sW}, {sW}, 6")
def setup_ws():
    size(rWS, 268435456); size(rX, 2304)
    A(f"s_lshr_b32 {sJ}, s2, 3")
    A(f"v_lshlrev_b32 {vL16}, 4, v0")
    for i in range(4): A(f"v_mov_b32 {v(EM+i)}, -1")
    A(f"s_mul_i32 {sGf}, {sX}, {GB}")
    A(f"s_lshl2_add_u32 {sL}, {sJ}, {sW}")
def setup_rest():
    size(rWO, 4718592)
    A("s_mov_b32 s68, 0x00ff00ff"); A("s_mov_b32 s69, 0x00ff00ff")
    A(f"v_lshlrev_b32 {vL128}, 7, v0")
    A(f"v_bfe_u32 {B2}, v0, 2, 1")
    A(f"v_mul_u32_u24 {vXAm}, 1152, {B2}")
    A(f"v_lshl_add_u32 {vXAm}, {G}, 4, {vXAm}")
    A(f"s_mul_i32 {t4}, {t2}, 144")
    A(f"v_add_u32 {vXAq}, {t4}, {vXAm}")
    for i in range(12): A(f"v_mov_b32 {v(XA+i)}, 0x3f803f80")
    A(f"s_lshl_b32 {t4}, {sL}, 9"); A(f"s_add_u32 {t4}, {t4}, {QP_O}")
    A(f"v_add_u32 {vQPst}, {t4}, {vL16}")
def constants():
    A(f"v_mul_u32_u24 {vWrow}, 1152, {G}")
    A(f"v_lshl_add_u32 {vWrow}, {C}, 4, {vWrow}")
    A(f"s_cmp_lt_u32 {sJ}, 18"); A(f"s_cselect_b32 {sRole}, 1, 0")
    A(f"s_cmp_ge_u32 {sJ}, 20"); A(f"s_cselect_b32 {t4}, 2, 0"); A(f"s_cmp_lt_u32 {sW}, 3"); A(f"s_cselect_b32 {t4}, {t4}, 0"); A(f"s_or_b32 {sRole}, {sRole}, {t4}")
    A(f"s_sub_u32 {sTask}, {sJ}, 20"); A(f"s_mul_i32 {sTask}, {sTask}, 3"); A(f"s_add_u32 {sTask}, {sTask}, {sW}"); A(f"s_min_u32 {sTask}, {sTask}, 35")
    A(f"s_lshl_b32 {t3}, {sX}, 4"); A(f"s_and_b32 {t4}, {sJ}, 15"); A(f"s_add_u32 {sWo}, {t3}, {t4}"); A(f"s_mul_i32 {sWo}, {sWo}, {32*1152}")
    A(f"s_lshl_b32 {t4}, {sW}, 8"); A(f"s_add_u32 {sWo}, {sWo}, {t4}")
    for r, n in ((rW1, 5308416), (rW2, 5308416), (rOUT, 2304), (rT1, 9216), (rT2, 1152)):
        A(f"s_mov_b32 s{r+2}, {n}"); A(f"s_mov_b32 s{r+3}, 0x20000")
    A("s_mov_b32 s70, 0xffff0000"); A("s_mov_b32 s71, 0xffff0000")
    A(f"v_lshlrev_b32 {vL4}, 2, v0")
    for i in range(12, 24): A(f"v_mov_b32 {v(XA+i)}, 0x3f803f80")
    A(f"s_lshl_b32 {t4}, {sW}, 13"); A(f"s_add_u32 {t4}, {t4}, {L_K}")
    A(f"v_lshl_add_u32 {v(KR)}, {C}, 8, {v(TM+7)}"); A(f"v_add_u32 {v(KR)}, {t4}, {v(KR)}")
    for i in range(1, 4): A(f"v_xor_b32 {v(KR+i)}, {64*i}, {v(KR)}")
    T_ = [v(TM+8+i) for i in range(10)]
    A(f"v_and_b32 {T_[0]}, 1, v0")
    A(f"v_mul_u32_u24 {vIdxP}, 0xaaaa, {T_[0]}"); A(f"v_add_u32 {vIdxP}, 0x4444, {vIdxP}")
    A(f"v_and_b32 {T_[1]}, 3, v0")
    A(f"v_mul_u32_u24 {vIdxS}, 0x5555, {T_[1]}")
    A(f"v_bfe_u32 {T_[2]}, v0, 4, 1")
    A(f"v_bfe_u32 {T_[3]}, v0, 2, 2")
    A(f"v_bfe_u32 {T_[4]}, v0, 3, 1")
    A(f"v_lshrrev_b32 {T_[5]}, 5, v0")
    A(f"v_and_b32 {T_[8]}, 7, v0")
    A(f"v_and_b32 {T_[9]}, 31, v0")
    A(f"s_lshr_b32 {t3}, {sJ}, 4")
    A(f"s_lshr_b32 {t5}, {sJ}, 3")
    A(f"s_lshl_b32 {t3}, {t3}, 1"); A(f"s_lshr_b32 {t4}, {sW}, 1"); A(f"s_add_u32 {t3}, {t3}, {t4}"); A(f"s_lshl_b32 {t3}, {t3}, 14")
    A(f"s_and_b32 {t4}, {sW}, 1"); A(f"s_lshl_b32 {t4}, {t4}, 10"); A(f"s_add_u32 {t3}, {t3}, {t4}")
    A(f"s_lshl_b32 {t4}, {t1}, 8"); A(f"s_add_u32 {t3}, {t3}, {t4}"); A(f"s_add_u32 {t3}, {t3}, {QP_O}")
    A(f"v_lshl_add_u32 {vQPg}, {T_[5]}, 4, {T_[2]}"); A(f"v_lshlrev_b32 {vQPg}, 9, {vQPg}"); A(f"v_lshl_add_u32 {vQPg}, {C}, 4, {vQPg}"); A(f"v_add_u32 {vQPg}, {t3}, {vQPg}")
    A(f"v_add_u32 {vQPg2}, 4096, {vQPg}")
    A(f"s_and_b32 {t3}, {sW}, 1"); A(f"s_lshl_b32 {t3}, {t3}, 8"); A(f"s_lshr_b32 {t4}, {sW}, 1"); A(f"s_lshl_b32 {t4}, {t4}, 7"); A(f"s_add_u32 {t3}, {t3}, {t4}")
    A(f"v_bfe_u32 {T_[6]}, v0, 3, 2"); A(f"v_bfe_u32 {T_[7]}, v0, 1, 2")
    A(f"v_lshlrev_b32 {vQTw}, 5, {T_[6]}"); A(f"v_lshl_add_u32 {vQTw}, {T_[0]}, 4, {vQTw}"); A(f"v_lshl_add_u32 {vQTw}, {T_[7]}, 2, {vQTw}")
    A(f"v_lshl_add_u32 {vQTw}, {T_[5]}, 1, {vQTw}"); A(f"v_add_u32 {vQTw}, {t3}, {vQTw}")
    A(f"v_lshlrev_b32 {vQTr}, 5, {G}"); A(f"v_lshl_add_u32 {vQTr}, {T_[4]}, 7, {vQTr}"); A(f"v_lshl_add_u32 {vQTr}, {T_[0]}, 4, {vQTr}")
    A(f"v_mul_u32_u24 {vOTr}, 640, {T_[4]}"); A(f"v_lshl_add_u32 {vOTr}, {G}, 5, {vOTr}"); A(f"v_lshl_add_u32 {vOTr}, {B2}, 4, {vOTr}")
    A(f"s_mul_i32 {t3}, {sW}, 1280"); A(f"s_add_u32 {t3}, {t3}, {L_PT}")
    A(f"v_add_u32 {vPTr}, {t3}, {vOTr}"); A(f"v_add_u32 {vOTr}, {L_OT}, {vOTr}")
    A(f"v_bfe_u32 {T_[6]}, v0, 1, 4")
    A(f"v_mul_u32_u24 {vPTw}, 640, {T_[5]}"); A(f"v_lshl_add_u32 {vPTw}, {T_[6]}, 5, {vPTw}"); A(f"v_lshl_add_u32 {vPTw}, {T_[0]}, 3, {vPTw}"); A(f"v_add_u32 {vPTw}, {t3}, {vPTw}")
    A(f"v_lshrrev_b32 {vHPr}, 1, v0"); A(f"v_lshlrev_b32 {vHPr}, 4, {vHPr}"); A(f"v_lshl_add_u32 {vHPr}, {T_[0]}, 2, {vHPr}"); A(f"v_add_u32 {vHPr}, {L_HP}, {vHPr}")
    A(f"s_lshl_b32 {t3}, {sW}, 9"); A(f"s_add_u32 {t3}, {t3}, {L_HP}"); A(f"v_add_u32 {vHPw}, {t3}, {vL16}")
    A(f"s_lshl_b32 {t3}, {t5}, 9"); A(f"s_add_u32 {t3}, {t3}, {ST_O}")
    A(f"s_lshl_b32 {t4}, {t2}, 2"); A(f"s_add_u32 {t4}, {t4}, {sW}"); A(f"s_lshl_b32 {t4}, {t4}, 2"); A(f"s_add_u32 {t4}, {t4}, {t3}")
    A(f"v_lshlrev_b32 {vSTst}, 8, {T_[5]}"); A(f"v_lshl_add_u32 {vSTst}, {T_[0]}, 7, {vSTst}"); A(f"v_add_u32 {vSTst}, {t4}, {vSTst}")
    A(f"s_lshl_b32 {t3}, {t1}, 1"); A(f"s_lshr_b32 {t4}, {sW}, 1"); A(f"s_add_u32 {t3}, {t3}, {t4}"); A(f"s_lshl_b32 {t3}, {t3}, 9"); A(f"s_add_u32 {t3}, {t3}, {ST_O}")
    A(f"s_lshr_b32 {t4}, {t2}, 2"); A(f"s_lshl_b32 {t4}, {t4}, 8"); A(f"s_add_u32 {t3}, {t3}, {t4}")
    A(f"v_lshrrev_b32 {T_[7]}, 3, v0")
    A(f"v_lshl_add_u32 {vSTg}, {T_[7]}, 4, {t3}")
    A(f"s_and_b32 {t4}, {sW}, 1"); A(f"s_lshl_b32 {t4}, {t4}, 3"); A(f"v_add_u32 {vSTm}, {t4}, {vSTg}")
    A(f"s_lshr_b32 {t3}, {sJ}, 4"); A(f"s_lshl_b32 {t3}, {t3}, 15"); A(f"s_lshl_b32 {t4}, {t1}, 11"); A(f"s_add_u32 {t3}, {t3}, {t4}")
    A(f"s_lshl_b32 {t4}, {sW}, 9"); A(f"s_add_u32 {t3}, {t3}, {t4}"); A(f"s_lshl_b32 {t4}, {t2}, 6"); A(f"s_add_u32 {t3}, {t3}, {t4}")
    A(f"v_lshlrev_b32 {T_[6]}, 4, {T_[1]}"); A(f"v_lshl_add_u32 {T_[6]}, {T_[2]}, 3, {T_[6]}")
    A(f"v_lshl_add_u32 {vOPst}, {T_[5]}, 2, {T_[3]}"); A(f"v_lshl_add_u32 {vOPst}, {vOPst}, 12, {T_[6]}"); A(f"v_add_u32 {vOPst}, {t3}, {vOPst}")
    A(f"s_and_b32 {t3}, {sJ}, 15"); A(f"s_lshl_b32 {t3}, {t3}, 12"); A(f"s_lshl_b32 {t4}, {sW}, 10"); A(f"s_add_u32 {t3}, {t3}, {t4}"); A(f"v_lshl_add_u32 {vOPg}, v0, 3, {t3}")
    A(f"s_lshr_b32 {t3}, {sW}, 1"); A(f"s_mul_i32 {t3}, {t3}, 640"); A(f"s_and_b32 {t4}, {sW}, 1"); A(f"s_lshl_b32 {t4}, {t4}, 1"); A(f"s_add_u32 {t3}, {t3}, {t4}"); A(f"s_add_u32 {t3}, {t3}, {L_OT}")
    A(f"v_mul_u32_u24 {vOTw}, 20, {T_[4]}"); A(f"v_lshl_add_u32 {vOTw}, {T_[8]}, 6, {vOTw}"); A(f"v_lshl_add_u32 {vOTw}, {T_[5]}, 5, {vOTw}")
    A(f"v_lshl_add_u32 {vOTw}, {T_[2]}, 3, {vOTw}"); A(f"v_add_u32 {vOTw}, {t3}, {vOTw}")
    A(f"s_mul_i32 {t3}, {sW}, {4*1152}"); A(f"s_lshl_b32 {t4}, {sJ}, 6"); A(f"s_add_u32 {t3}, {t3}, {t4}"); A(f"s_add_u32 {t3}, {t3}, {Y_O}")
    A(f"v_mul_u32_u24 {vMst}, 18, {T_[5]}"); A(f"v_add_u32 {vMst}, {vMst}, {T_[3]}"); A(f"v_mul_u32_u24 {vMst}, 1152, {vMst}")
    A(f"v_add3_u32 {vMst}, {vMst}, {T_[6]}, {t3}")
    A(f"v_subrev_u32 {vYst}, 1024, {vMst}")
    A(f"v_lshlrev_b32 {vZSg}, 3, v0")
    A(f"s_lshl_b32 {t3}, {t1}, 8"); A(f"s_add_u32 {t3}, {t3}, {ZS_O+512}"); A(f"v_lshl_add_u32 {vSTATr}, {T_[9]}, 3, {t3}")
    zero(ZG, 2)
    A(f"v_mul_u32_u24 {vXS1}, 1152, {T_[5]}"); A(f"v_lshl_add_u32 {vXS2}, {T_[9]}, 2, {vXS1}"); A(f"v_lshl_add_u32 {vXS1}, {T_[9]}, 4, {vXS1}")
    A(f"s_mul_i32 {t4}, {sW}, 384"); A(f"v_add_u32 {vXAm}, {t4}, {vXAm}")
    A(f"s_mul_i32 {t4}, {sX}, 18"); A(f"s_add_u32 {t4}, {t4}, {sJ}"); A(f"s_lshl_b32 {t5}, {t4}, 6")
    A(f"v_lshl_add_u32 {vB1}, {T_[9]}, 1, {t5}")
    A(f"s_mul_i32 {t4}, {sTask}, 1152"); A(f"s_add_u32 {t4}, {t4}, {Y_O}"); A(f"v_lshl_add_u32 {vRg}, v0, 3, {t4}")
    A(f"s_sub_u32 {t4}, {sL}, 80"); A(f"s_and_b32 {t4}, {t4}, 63"); A(f"s_lshl_b32 {t4}, {t4}, 16")
    A(f"s_lshl_b32 {t5}, {sX}, 10"); A(f"s_add_u32 {t5}, {t5}, {t4}"); A(f"v_lshl_add_u32 {vXPg}, v0, 3, {t5}")
    A(f"s_lshl_b32 {t5}, {sX}, 7"); A(f"s_add_u32 {t4}, {t4}, {t5}"); A(f"v_lshl_add_u32 {vXPst}, {T_[8]}, 4, {t4}")
    A(f"v_lshrrev_b32 {T_[7]}, 3, v0"); A(f"v_lshl_add_u32 {vXPst}, {T_[7]}, 10, {vXPst}")
    A(f"v_lshl_add_u32 {T_[7]}, {C}, 1, {T_[5]}")
    A(f"s_lshl_b32 {t4}, {sTask}, 6"); A(f"v_lshl_add_u32 {vZo}, {T_[7]}, 1, {t4}")
    A(f"v_add_u32 {vZst}, {Z1_O}, {vZo}")
    A(f"s_and_b32 {t5}, {sTask}, 7"); A(f"s_cmp_eq_u32 {t5}, {sX}"); A(f"s_cselect_b32 {t5}, 4, 0"); A(f"s_or_b32 {sRole}, {sRole}, {t5}")
    A(f"s_cmp_ge_u32 {sTask}, 18"); A(f"s_cselect_b32 {t5}, 1152, 0")
    A(f"v_subrev_u32 {vB2}, {t5}, {vZo}")
    A(f"s_cselect_b32 {t5}, {256-18*8}, 0"); A(f"s_lshl_b32 {t4}, {sTask}, 3"); A(f"s_add_u32 {t4}, {t4}, {t5}"); A(f"s_add_u32 {t4}, {t4}, {ZS_O}")
    A(f"v_lshl_add_u32 {vZSst}, {T_[2]}, 2, {t4}")

def constants1():
    A(f"v_and_b32 {v(TM+8)}, 1, v0")
    A(f"v_mul_u32_u24 {vIdxD}, 0x5555, {v(TM+8)}"); A(f"v_add_u32 {vIdxD}, 0x8888, {vIdxD}")
    A(f"v_mov_b32 {vOnes}, 0x3f803f80")
    A(f"s_lshl_b32 {t3}, {sW}, 6"); A(f"s_add_u32 {t3}, {t3}, {L_WQ}")
    A(f"v_lshlrev_b32 {vCq}, 10, {G}"); A(f"v_lshl_add_u32 {vCq}, {C}, 2, {vCq}"); A(f"v_add_u32 {vCq}, {t3}, {vCq}")
    for i in range(16, 24): A(f"v_accvgpr_write_b32 {a(aWQ+i)}, 0")
    zero(D0, 8)
    A(f"v_mul_u32_u24 {vLXr}, 144, {B2}"); A(f"v_lshl_add_u32 {vLXr}, {G}, 4, {vLXr}")
    A(f"s_lshl_b32 {t3}, {sW}, 11"); A(f"v_add_u32 {v(TM+8)}, {t3}, {vL16}")
    A(f"ds_write_b128 {v(TM+8)}, {v(D1,4)} offset:1024"); A(f"ds_write_b128 {v(TM+8)}, {v(D1,4)} offset:2048")
    A(f"s_mov_b32 {sTO}, 0x400000"); A(f"s_mov_b32 {sMode}, 0"); A(f"s_mov_b32 {sGp}, {sGf}")
def ln0(n_after):
    A(f"s_cmp_lg_u32 {sW}, 3")
    A("s_cbranch_scc1 L_c1")
    A(f"s_waitcnt vmcnt({n_after})")
    stats_x()
    for i in range(2):
        lo, hi = v(TM+8), v(TM+9)
        A(f"v_lshlrev_b32 {lo}, 16, {v(XG+i)}"); A(f"v_and_b32 {hi}, 0xffff0000, {v(XG+i)}")
        A(f"v_sub_f32 {lo}, {lo}, {S_}"); A(f"v_sub_f32 {hi}, {hi}, {S_}")
        A(f"v_cvt_pk_bf16_f32 {v(XG+i)}, {lo}, {hi}")
        A(f"v_lshlrev_b32 {lo}, 16, {v(XG+i)}"); A(f"v_and_b32 {hi}, 0xffff0000, {v(XG+i)}")
        A(f"v_mul_f32 {lo}, {lo}, {Q_}"); A(f"v_mul_f32 {hi}, {hi}, {Q_}")
        A(f"v_cvt_pk_bf16_f32 {v(XG+i)}, {lo}, {hi}")
    A(f"v_lshrrev_b32 {v(TM+8)}, 5, v0"); A(f"v_mul_u32_u24 {v(TM+8)}, 144, {v(TM+8)}"); A(f"v_and_b32 {v(TM+9)}, 31, v0"); A(f"v_lshl_add_u32 {v(TM+8)}, {v(TM+9)}, 3, {v(TM+8)}")
    A("s_mov_b32 exec_lo, 0x3ffff"); A("s_mov_b32 exec_hi, 0x3ffff")
    A(f"ds_write_b64 {v(TM+8)}, {v(XG,2)} offset:{L_X}")
    A("s_mov_b64 exec, -1")
    A("L_c1:")

fl_load = ["s_mov_b32 exec_hi, 0", f"buffer_load_dwordx4 {v(FG,4)}, {vL16}, {srd(rWS)}, {sXoff} offen sc1", "s_mov_b32 exec_hi, -1"]
qp_store = f"buffer_store_dwordx4 {v(D0,4)}, {vQPst}, {srd(rWS)}, {{so}} offen{{fl}}"
def qg(n): return [f"buffer_load_dwordx{n} {v(QG+4*p,n)}, {vQPg if p < 2 else vQPg2}, {srd(rWS)}, {sGp} offen offset:{2048*(p%2)} sc1" for p in range(4)]
qg4, qg2 = qg(4), qg(2)
def empty_share(base, fl):
    A(f"s_mul_i32 {t5}, {sL}, {CLR}"); A(f"s_add_u32 {t5}, {t5}, {base}")
    A(f"s_mov_b32 exec_hi, {(1 << (CLR//16-32)) - 1}")
    A(f"buffer_store_dwordx4 {v(EM,4)}, {vL16}, {srd(rWS)}, {t5} offen{fl}")
    A("s_mov_b32 exec_hi, -1")
def small_loads():
    A(f"s_mov_b32 {t5}, {EP_O}")
    A(f"buffer_load_dword {FN}, off, {srd(rWS)}, {t5}{NT}")
    A(f"s_cmp_lg_u32 {sW}, 3")
    A("s_cbranch_scc1 L_pro2")
    A(f"v_lshrrev_b32 {v(TM+8)}, 5, v0"); A(f"v_and_b32 {v(TM+9)}, 31, v0")
    A(f"v_mul_u32_u24 {vXS1}, 1152, {v(TM+8)}"); A(f"v_lshl_add_u32 {vXS2}, {v(TM+9)}, 2, {vXS1}"); A(f"v_lshl_add_u32 {v(TM+10)}, {v(TM+9)}, 3, {vXS1}"); A(f"v_lshl_add_u32 {vXS1}, {v(TM+9)}, 4, {vXS1}")
    for l in xs_loads(rX, 0, NT): A(l)
    A(f"s_mul_i32 {t5}, {t2}, 144")
    A(f"buffer_load_dwordx2 {v(XG,2)}, {v(TM+10)}, {srd(rX)}, {t5} offen{NT}")
    A("L_pro2:")
def code_prefetch():
    A(f"s_cmp_ge_u32 s2, 8"); A("s_cbranch_scc1 L_nc")
    A("s_getpc_b64 s[66:67]")
    A("L_pc:")
    A(f"v_lshl_add_u32 {v(TM+8)}, {sW}, 6, v0"); A(f"v_lshlrev_b32 {v(TM+8)}, 7, {v(TM+8)}")
    A(f"v_min_u32 {v(TM+8)}, L_codeend-L_pc-4, {v(TM+8)}")
    A(f"global_load_dword {DUM}, {v(TM+8)}, s[66:67]")
    A("L_nc:")
if args.hw >= 2: setup_k()
if args.code == 1: code_prefetch()
if args.hw >= 3: setup_ws()
A("s_waitcnt lgkmcnt(0)")
pstamp(0)
if args.xf: small_loads()
for n in range(4):
    A(f"buffer_load_dwordx4 {v(TM+6)}, {srd(rWQ)}, {sXoff} offen{NTQ} lds")
    A("s_add_u32 m0, m0, 4096"); A(f"s_add_u32 {sXoff}, {sXoff}, {16*8192}")
if args.hw < 2: setup_k()
A(f"s_cmp_ge_u32 {sW}, 2"); A("s_cbranch_scc1 L_pro1")
A(f"buffer_load_dwordx4 {v(TM+6)}, {srd(rWQ)}, {sXoff} offen{NTQ} lds")
A("L_pro1:")
if args.hw < 3: setup_ws()
if not args.xf: small_loads()
empty_share(sGf, '')
A(f"s_lshl_b32 {t4}, {sW}, 13"); A(f"s_add_u32 m0, {t4}, {L_K}")
for i in range(8):
    if i == 4: A(f"s_add_u32 m0, m0, 4096")
    A(f"buffer_load_dwordx4 {v(KA+i%4)}, {srd(rK)}, {kv0 if i < 4 else kv1} offen offset:{1024*(i%4)}{NTK} lds")
cnt = [8]
mark = {'K': 8}
def vm(s): A(s); cnt[0] += 1
size(rV, 33554432)
def hookS():
    setup_rest()
    if ST and not args.pro:
        for k in range(14): A(f"s_mov_b64 s[{72+2*k}:{73+2*k}], 0")
    pstamp(3)
    for r, off in ((rW1, 48), (rW2, 64), (rOUT, 80), (rT1, 56), (rT2, 72)):
        A(f"s_load_dwordx2 s[{r}:{r+1}], s[0:1], {off}")
    constants1()
    if args.lnf == 2: ln0(1 + cnt[0] + (4 if args.xf else 0))
    A(f"s_lshl_b32 {t4}, {sL}, 9"); A(f"s_add_u32 {t4}, {t4}, {sGf}"); A(f"s_add_u32 {t4}, {t4}, {QP_O}")
    A(f"s_add_u32 {sXoff}, {sGf}, {FF_O}")
    A("s_mov_b64 exec, 15")
    vm(f"buffer_load_dword {DUM}, {vL128}, {srd(rWS)}, {t4} offen sc1{NT}")
    vm(f"buffer_load_dword {DUM}, {vL128}, {srd(rWS)}, {sXoff} offen sc1{NT}")
    A("s_mov_b64 exec, -1")
def hookQ():
    if not args.lnf: ln0(1 + cnt[0] + (4 if args.xf else 0))
    A(f"s_lshl_b32 {t4}, {sL}, 2"); A(f"s_add_u32 {t4}, {t4}, {sXoff}")
    A(f"s_getreg_b32 {t3}, hwreg(HW_REG_XCC_ID)"); A(f"s_lshl_b32 {t3}, {t3}, 28"); A(f"s_or_b32 {t3}, {t3}, 1")
    A(f"s_waitcnt vmcnt({cnt[0]}) lgkmcnt(0)")
    A("s_barrier")
    pstamp(2)
    for l in exec_xa(): A(l)
    for i in range(3):
        if i == 2: A("s_mov_b64 exec, 0x33")
        A(f"ds_read_b128 {v(XA+4*i,4)}, {vLXr} offset:{L_X+64*i}")
    A("s_mov_b64 exec, -1")
    for i in range(2):
        for vv in range(0, 8, 2):
            row = 32*i + 16*(vv >> 2) + (vv & 3)
            A(f"ds_read2st64_b32 {a(aWQ+8*i+vv,2)}, {vCq} offset0:{row} offset1:{row+1}")
    A("s_mov_b32 exec_hi, 0")
    for vv in (0, 2): A(f"ds_read2st64_b32 {a(aWQ+16+vv,2)}, {vCq} offset0:{64+vv} offset1:{65+vv}")
    A("s_mov_b32 exec_hi, -1")
    A(f"v_readfirstlane_b32 {sFlag}, {FN}")
    A(f"s_add_u32 {sFlag}, {sFlag}, 0x0e377902"); A(f"s_and_b32 {sFlag}, {sFlag}, 0x0fffffff"); A(f"s_or_b32 {sFlag}, {sFlag}, {t3}")
    A(f"v_mov_b32 {FN}, {sFlag}")
    A("s_mov_b64 exec, 1")
    vm(f"buffer_store_dword {FN}, {vL16}, {srd(rWS)}, {t4} offen")
    A("s_mov_b64 exec, -1")
    A(f"v_and_b32 {vTag}, 0xff, {FN}"); A(f"s_movk_i32 {t4}, 0xff")
    A("s_waitcnt lgkmcnt(0)")
    for i in range(3): sm(D0, XA+4*i, aWQ+8*i, vIdxD)
    for i in range(4): A(f"v_bfi_b32 {v(D0+i)}, {t4}, {vTag}, {v(D0+i)}")
    A("s_mov_b32 exec_hi, 0")
    vm(qp_store.format(so=sGf, fl=''))
    A("s_mov_b32 exec_hi, -1")
    pstamp(1)
for k in range(9):
    if k == args.pS: hookS()
    if k == args.pC:
        if args.lnf == 1: ln0(1 + cnt[0] + (4 if args.xf else 0))
        constants()
    if k == args.pQ: hookQ()
    if k == 8 - args.vw: mark['V'] = cnt[0]
    if k < 8: vm(f"buffer_load_dwordx4 {a(aV+4*k,4)}, {vL16}, {srd(rV)}, {kv0 if k < 4 else kv1} offen offset:{1024*(k%4)}{NTV}")
    if k == 7: pstamp(9)
TT = v(TM+4)
def slots_touch():
    A(f"s_lshl_b32 {t1}, {sJ}, 2"); A(f"s_add_u32 {t1}, {t1}, {sW}")
    A(f"s_mul_i32 {t3}, {t1}, 896"); A(f"s_add_u32 {t3}, {t3}, {sGf}"); A(f"s_add_u32 {t3}, {t3}, {Y_O}")
    A("s_mov_b64 exec, 0x7f")
    A(f"buffer_load_dword {DUM}, {vL128}, {srd(rWS)}, {t3} offen sc1{NT}")
    A("s_mov_b64 exec, -1")
assert Y_O + 64 * 896 >= ZS_O + 1536
def w1_touch():
    A(f"s_lshl_b32 {t1}, {sJ}, 2"); A(f"s_add_u32 {t1}, {t1}, {sW}")
    A(f"s_mul_i32 {t4}, {sX}, 576"); A(f"s_add_u32 {t4}, {t4}, {t1}"); A(f"s_add_u32 {t4}, {t4}, 512"); A(f"s_mul_i32 {t4}, {t4}, 1152")
    A(f"s_mul_i32 {t1}, {t1}, {9*9216}")
    A(f"s_mul_i32 {t3}, {sX}, 1152"); A(f"s_add_u32 {t1}, {t1}, {t3}"); A(f"s_add_u32 {t3}, {t1}, {5*9216}")
    A(f"v_mul_u32_u24 {TT}, 57, v0"); A(f"v_lshrrev_b32 {TT}, 9, {TT}"); A(f"v_mul_u32_u24 {TT}, {9216-1152}, {TT}"); A(f"v_add_u32 {TT}, {TT}, {vL128}")
    A("s_mov_b32 exec_hi, 0x1fff")
    A(f"buffer_load_dword {DUM}, {TT}, {srd(rW1)}, {t1} offen{NTT}")
    A("s_mov_b32 exec_hi, 15")
    A(f"buffer_load_dword {DUM}, {TT}, {srd(rW1)}, {t3} offen{NTT}")
    A("s_mov_b64 exec, 0x1ff")
    A(f"buffer_load_dword {DUM}, {vL128}, {srd(rW2)}, {t4} offen{NTT}")
    A("s_mov_b64 exec, -1")
def w2_loads():
    l1 = A.newlabel('L_w2')
    A(f"s_mul_i32 {t0}, {sX}, 18"); A(f"s_add_u32 {t0}, {t0}, {sJ}"); A(f"s_mul_i32 {t0}, {t0}, {32*1152}")
    A(f"s_lshl_b32 {t1}, {sW}, 8"); A(f"s_add_u32 {t1}, {t1}, {t0}")
    for i in range(8):
        A(f"buffer_load_dwordx4 {a(aW2+4*i,4)}, {vWrow}, {srd(rW2)}, {t1} offen{NT2}")
        if i < 7: A(f"s_add_u32 {t1}, {t1}, 4608")
    A(f"s_cmp_lg_u32 {sW}, 3")
    A(f"s_cbranch_scc1 {l1}")
    A(f"s_mov_b64 exec, {mLO8}")
    for i in range(8):
        A(f"buffer_load_dwordx4 {a(aW2t+4*i,4)}, {vWrow}, {srd(rW2)}, {t0} offen offset:1024{NT2}")
        if i < 7: A(f"s_add_u32 {t0}, {t0}, 4608")
    A("s_mov_b64 exec, -1")
    A(f"{l1}:")
def wo_loads(k0, k1, with_tail):
    for k in range(k0, k1):
        A(f"buffer_load_dwordx4 {a(aWO+4*k,4)}, {vWrow}, {srd(rWO)}, {sWo} offen{NTO}")
        A(f"s_add_u32 {sWo}, {sWo}, 4608")
    if with_tail:
        l1 = A.newlabel('L_wt')
        A(f"s_cmp_lg_u32 {sW}, 3")
        A(f"s_cbranch_scc1 {l1}")
        A(f"s_mov_b64 exec, {mLO8}")
        for i in range(7, -1, -1):
            A(f"s_sub_u32 {sWo}, {sWo}, 4608")
            A(f"buffer_load_dwordx4 {a(aWOt+4*i,4)}, {vWrow}, {srd(rWO)}, {sWo} offen offset:256{NTO}")
        A("s_mov_b64 exec, -1")
        A(f"{l1}:")
if args.pC > 8: constants()
pstamp(4)
stamp()
A("s_waitcnt lgkmcnt(0)")
if args.kw: A(f"s_waitcnt vmcnt({ {1: cnt[0]-mark['K'], 2: 6, 3: 4, 4: 2}[args.kw] })")
A(f"s_mov_b32 {sXPo}, {XP_O}")
A(f"s_cmp_lt_u32 {sJ}, 16")
A("s_cbranch_scc1 L_g1n")
A(f"v_readfirstlane_b32 {t4}, {vOPg}"); A(f"v_readfirstlane_b32 {t5}, {vSTg}")
A(f"s_add_u32 {t4}, {t4}, {sGf}"); A(f"s_add_u32 {t5}, {t5}, {sGf}")
A("s_mov_b64 exec, 0xff")
A(f"buffer_load_dword {DUM}, {vL128}, {srd(rWS)}, {t4} offen sc1{NT}")
A("s_mov_b64 exec, 3")
A(f"buffer_load_dword {DUM}, {vL128}, {srd(rWS)}, {t5} offen sc1{NT}")
A("s_mov_b64 exec, -1")
A(f"buffer_load_ushort {vXres}, {vZo}, {srd(rX)}, 0 offen{NT}")
A(f"buffer_load_ushort {vB2}, {vB2}, {srd(rT2)}, 0 offen{NT}")
WL = [int(x) for x in args.wl.split(',')]
wo_loads(0, WL[0], WL[0] == 8)
def wo_part(k0, k1, with_tail):
    if k0 >= k1 and not with_tail: return
    lo = A.newlabel('L_wp'); bk = A.newlabel('L_wb')
    A(f"s_bitcmp1_b32 {sRole}, 3")
    A(f"s_cbranch_scc1 {lo}")
    A(f"{bk}:")
    global A_main
    saved = (A.lines, A.hist); A.lines, A.hist = [], []
    A(f"{lo}:"); wo_loads(k0, k1, with_tail); A(f"s_branch {bk}")
    tail_raw.append(A.lines); A.lines, A.hist = saved
if WL[0] < 8: A(f"s_bitset1_b32 {sRole}, 3")
A("s_branch L_g1o")
A("L_g1n:")
if 's' in args.early: slots_touch()
if '1' in args.early: w1_touch()
if '2' in args.early: w2_loads()
A("L_g1o:")
pstamp(6)
A("s_waitcnt vmcnt(4)" if WL[0] < 8 else "s_waitcnt vmcnt(8)")
for T in range(2):
    for q in range(4): A(f"ds_read_b128 {a(aK+16*T+4*q,4)}, {v(KR+q)} offset:{4096*T}")
A(f"s_waitcnt vmcnt({args.vw})")
if ST and not args.pro and ONLY is None: A(f"s_memrealtime s[74:75]")
pstamp(5)
def flags_diff():
    A(f"v_xor_b32 {CK}, {sFlag}, {v(FG)}")
    for i in range(1, 4): A(f"v_bitop3_b32 {CK}, {CK}, {v(FG+i)}, {sFlag} bitop3:0xf6")
st_rd = f"ds_read_b64 {v(TM,2)}, {vSTATr}"
A("L_g4:")
for l in fl_load + qg4: A(l)
A("s_waitcnt vmcnt(0)")
pstamp(7)
flags_diff()
A(f"v_cmp_ne_u32 vcc, 0, {CK}")
A("s_cmp_lg_u32 vcc_lo, 0")
if args.forcefb: A("s_cmp_eq_u32 0, 0")
A("s_cbranch_scc1 L_af2")
A(f"s_mov_b32 {sMode}, 0")
A("L_g2:")
for i in range(16): A(f"v_xor_b32 {v(QG+i)}, {vTag}, {v(QG+i)}")
A(f"v_or3_b32 {CK}, {v(QG)}, {v(QG+1)}, {v(QG+2)}")
for i in range(3, 15, 2): A(f"v_or3_b32 {CK}, {CK}, {v(QG+i)}, {v(QG+i+1)}")
A(f"v_or_b32 {CK}, {CK}, {v(QG+15)}")
A(f"v_and_b32 {CK}, 0xff, {CK}")
A(f"v_cmp_ne_u32 vcc, 0, {CK}")
A("s_cbranch_vccnz L_g5")
A("L_g3:")
A(f"s_mov_b32 {sL}, 0")
zero(D0)
A(f"v_mov_b32 {v(TM)}, 0"); A(f"v_mov_b32 {v(TM+1)}, 1.0")
tail.append("L_g5:\n" + timeout("L_g4", "L_g3"))
pstamp(8)
A(f"v_add_f32 {v(TM+2)}, {v(QG+2)}, {v(QG+6)}"); A(f"v_add_f32 {v(TM+3)}, {v(QG+3)}, {v(QG+7)}")
A(f"v_add_f32 {v(TM+4)}, {v(QG+10)}, {v(QG+14)}"); A(f"v_add_f32 {v(TM+5)}, {v(QG+11)}, {v(QG+15)}")
A(f"v_add_f32 {v(TM+2)}, {v(TM+2)}, {v(TM+4)}"); A(f"v_add_f32 {v(TM+3)}, {v(TM+3)}, {v(TM+5)}")
A(f"v_permlane32_swap_b32 {v(TM+2)}, {v(TM+3)}")
A(f"v_add_f32 {vCq}, {v(TM+2)}, {v(TM+3)}")
A("s_branch L_qfin")

A("L_layer:")
zero(D0, 8)
def quiet_wait(so_add):
    if not args.pre: return
    A(f"s_add_u32 {t5}, {sGp}, {so_add}")
    A("s_mov_b64 exec, 1")
    poll([f"buffer_load_dword {DUM}, {vL16}, {srd(rWS)}, {t5} offen sc1"] + ([f"s_sleep {args.pre-1}"] if args.pre > 1 else []), [DUM])
    A("s_mov_b64 exec, -1")
    if args.zd: A(f"s_sleep {args.zd}")
if args.pre:
    A(f"s_bitcmp1_b32 {sRole}, 1"); A("s_cbranch_scc1 L_q0")
    quiet_wait(AN_O)
    A("L_q0:")
def q_pub():
    A(f"v_and_b32 {v(D0)}, -2, {v(D0)}"); A(f"v_and_b32 {v(D0+1)}, -2, {v(D0+1)}")
    A("s_mov_b32 exec_hi, 0")
    pub(f"buffer_store_dwordx2 {v(D0,2)}, {vQPst}, {srd(rWS)}, {{so}} offen{{fl}}")
    A("s_mov_b32 exec_hi, -1")
poll_proj(vXAq, sXoff, 3, aWQ, True)
q_pub()
nst[0] = 1
stamp()
zero(D0)
qregs = [v(QG+4*p+i) for p in range(4) for i in range(2)]
qchk1 = [f"v_or3_b32 {CK}, {qregs[0]}, {qregs[1]}, {qregs[2]}", f"v_or3_b32 {CK}, {CK}, {qregs[3]}, {qregs[4]}", f"v_or3_b32 {CK}, {CK}, {qregs[5]}, {qregs[6]}",
         f"v_bitop3_b32 {CK}, {CK}, {qregs[7]}, 1 bitop3:0xa8", f"v_cmp_ne_u32 vcc, 0, {CK}"]
poll(zs_load(vSTATr, sGp), [v(ZG), v(ZG+1)])
for l in qg2: A(l)
A(f"v_mov_b32 {S_}, {v(ZG)}"); A(f"v_mov_b32 {Q_}, {v(ZG+1)}")
stats_tail1(); stats_tail2()
poll(qg2, qregs, primed=True, chk=qchk1, site='q')
A("L_qfin:")
stamp()
A(f"v_add_f32 {v(TM+2)}, {v(QG)}, {v(QG+4)}"); A(f"v_add_f32 {v(TM+3)}, {v(QG+1)}, {v(QG+5)}")
A(f"v_add_f32 {v(TM+4)}, {v(QG+8)}, {v(QG+12)}"); A(f"v_add_f32 {v(TM+5)}, {v(QG+9)}, {v(QG+13)}")
A(f"v_add_f32 {v(TM+2)}, {v(TM+2)}, {v(TM+4)}"); A(f"v_add_f32 {v(TM+3)}, {v(TM+3)}, {v(TM+5)}")
A(f"v_permlane32_swap_b32 {v(TM+2)}, {v(TM+3)}")
A(f"v_add_f32 {v(TM+2)}, {v(TM+2)}, {v(TM+3)}")
A(f"v_fma_f32 {v(TM+2)}, -{v(TM)}, {vCq}, {v(TM+2)}")
A(f"v_mul_f32 {v(TM+2)}, {v(TM+2)}, {v(TM+1)}")
A(f"v_cvt_pk_bf16_f32 {v(TM+2)}, {v(TM+2)}, {v(TM+2)}")
A(f"ds_write_b16 {vQTw}, {v(TM+2)} offset:{L_QT}")
A("s_mov_b32 vcc_lo, 0xaaaaaaaa"); A("s_mov_b32 vcc_hi, 0xaaaaaaaa")
zero(DP)
A("s_waitcnt lgkmcnt(0)")
A("s_barrier")
A(f"ds_read_b128 {v(AO,4)}, {vQTr} offset:{L_QT}")
A(f"ds_read_b128 {v(AO+4,4)}, {vQTr} offset:{L_QT+256}")
if WL[0] < 8: wo_part(WL[0], WL[0]+WL[1], False)
if args.mid:
    A(f"s_lshr_b32 {t0}, {sJ}, 4"); A(f"s_or_b32 {t0}, {t0}, {sL}")
    A("s_cbranch_scc1 L_mid")
    if 's' in args.mid: slots_touch()
    if '1' in args.mid: w1_touch()
    if '2' in args.mid: w2_loads()
    A("L_mid:")
A(f"s_waitcnt lgkmcnt({lg(1)})")
sm(D0, AO, aK, vIdxP); sm(D1, AO, aK+16, vIdxP)
A("s_waitcnt lgkmcnt(0)")
sm(D0, AO+4, aK+8, vIdxP); sm(D1, AO+4, aK+24, vIdxP)
SC, MX, P_, LS, TT = v(TM), v(TM+1), v(TM+2), v(TM+3), v(TM+4)
A(f"v_add_f32 {SC}, {v(D0)}, {v(D0+1)}")
A(f"v_add_f32 {TT}, {v(D1)}, {v(D1+1)}")
A(f"v_cndmask_b32 {SC}, {SC}, {TT}, {mROW}")
rbf(SC, SC)
A(f"v_mul_f32 {SC}, {f32(128 ** -0.5)}, {SC}")
rbf(SC, SC)
A(f"v_mul_f32 {SC}, {f32(1.4426950408889634)}, {SC}")
zero(D0, 2)
A(f"v_max_f32_dpp {MX}, {SC}, {SC} row_ror:8 row_mask:0xf bank_mask:0xf")
for n, k in enumerate((4, 2, 1)):
    zero(D0+2+2*n, 2)
    if k == 1: A(f"v_max_f32_dpp {TT}, {MX}, {MX} row_ror:{k} row_mask:0xf bank_mask:0xf")
    A(f"v_max_f32_dpp {MX}, {MX}, {MX} row_ror:{k} row_mask:0xf bank_mask:0xf")
A(f"v_permlane16_swap_b32 {MX}, {TT}")
A(f"v_max_f32 {MX}, {MX}, {TT}")
A(f"v_sub_f32 {P_}, {SC}, {MX}")
A(f"v_exp_f32 {P_}, {P_}")
A(f"v_cvt_pk_bf16_f32 {TT}, {P_}, 0")
A(f"ds_write2_b32 {vPTw}, {TT}, {TT} offset1:5")
for i in range(4): A(f"ds_read_b128 {v(AO+4*i,4)}, {vPTr} offset:{128*i}")
if WL[0] < 8: wo_part(WL[0]+WL[1], sum(WL), False)
A(f"v_add_f32_dpp {LS}, {P_}, {P_} row_ror:8 row_mask:0xf bank_mask:0xf")
for k in (4, 2, 1): A(f"v_add_f32_dpp {LS}, {LS}, {LS} row_ror:{k} row_mask:0xf bank_mask:0xf")
A(f"v_mov_b32 {SC}, {LS}")
A(f"v_permlane16_swap_b32 {LS}, {SC}")
A(f"v_add_f32 {LS}, {LS}, {SC}")
A(f"v_cndmask_b32 {SC}, {MX}, {LS}, vcc")
A("s_mov_b32 exec_lo, 3"); A("s_mov_b32 exec_hi, 3")
pub(f"buffer_store_dword {SC}, {vSTst}, {srd(rWS)}, {{so}} offen{{fl}}")
A("s_mov_b64 exec, -1")
for i in range(4):
    A(f"s_waitcnt lgkmcnt({lg(3-i)})")
    sm(DP, AO+4*i, aV+8*i, vIdxS)
def pack4(d):
    A(f"v_cvt_pk_bf16_f32 {v(d)}, {v(d)}, {v(d+1)}"); A(f"v_cvt_pk_bf16_f32 {v(d+1)}, {v(d+2)}, {v(d+3)}")
pack4(DP)
pub(f"buffer_store_dwordx2 {v(DP,2)}, {vOPst}, {srd(rWS)}, {{so}} offen{{fl}}")
stamp()
if WL[0] < 8:
    wo_part(sum(WL), 8, True)
    A(f"s_bitset0_b32 {sRole}, 3")
E = TM + 5
R = TM + 12
def tile_out(wb, tb, vst, drain):
    l1 = A.newlabel('L_t'); l2 = A.newlabel('L_t')
    for i in range(4):
        A(f"s_waitcnt lgkmcnt({lg(3-i)})")
        sm(D0, AO+4*i, wb+8*i, vIdxS)
    A(f"s_cmp_lg_u32 {sW}, 3")
    A(f"s_cbranch_scc1 {l1}")
    for i in range(1 if 'notail' in args.exp else 4): sm(D1, AO+4*i, tb+8*i, vIdxS)
    A(f"{l1}:")
    A("s_waitcnt vmcnt(0)" if drain else "s_nop 0")
    A("s_nop 4")
    pack4(D0)
    pub(f"buffer_store_dwordx2 {v(D0,2)}, {vst}, {srd(rWS)}, {{so}} offen{{fl}}")
    A(f"s_cmp_lg_u32 {sW}, 3")
    A(f"s_cbranch_scc1 {l2}")
    pack4(D1)
    A(f"s_mov_b64 exec, {mLO8}")
    pub(f"buffer_store_dwordx2 {v(D1,2)}, {v(E+2)}, {srd(rWS)}, {{so}} offen{{fl}}")
    A("s_mov_b64 exec, -1")
    A(f"{l2}:")
A(f"s_cmp_lt_u32 {sJ}, 16")
A("s_cbranch_scc1 L_mlp")
op_load = [f"buffer_load_dwordx2 {v(OG+2*i,2)}, {vOPg}, {srd(rWS)}, {sGp} offen offset:{512*i} sc1" for i in range(2)]
A(f"v_add_u32 {v(E+6)}, {4*1152}, {vYst}")
if args.sd: A(f"s_sleep {args.sd}")
if 'nost' not in args.exp.split(','): poll([f"buffer_load_dwordx4 {v(SG,4)}, {vSTg}, {srd(rWS)}, {sGp} offen sc1",
      f"buffer_load_dwordx4 {v(SG+4,4)}, {vSTg}, {srd(rWS)}, {sGp} offen offset:128 sc1",
      f"buffer_load_dwordx2 {v(SG+8,2)}, {vSTm}, {srd(rWS)}, {sGp} offen sc1"], [v(SG+i) for i in range(10 if 's' in PD else 8)], site='s')
for l in op_load: A(l)
if 'noweights' in args.exp: A("s_branch L_exw")
A(f"v_max3_f32 {MX}, {v(SG)}, {v(SG+1)}, {v(SG+2)}")
A(f"v_max_f32 {MX}, {MX}, {v(SG+3)}")
A(f"v_max_f32_dpp {TT}, {MX}, {MX} row_ror:8 row_mask:0xf bank_mask:0xf")
A(f"v_max_f32_dpp {MX}, {MX}, {MX} row_ror:8 row_mask:0xf bank_mask:0xf")
A(f"v_permlane16_swap_b32 {MX}, {TT}"); A(f"v_max_f32 {SC}, {MX}, {TT}"); A(f"v_max_f32 {MX}, {MX}, {TT}")
A(f"v_permlane32_swap_b32 {MX}, {SC}"); A(f"v_max_f32 {MX}, {MX}, {SC}")
for n, i in enumerate((0, 1, 2, 3, 8, 9)): A(f"v_sub_f32 {v(E+n)}, {v(SG+i)}, {MX}")
for n in range(6): A(f"v_exp_f32 {v(E+n)}, {v(E+n)}")
A(f"v_mul_f32 {LS}, {v(E)}, {v(SG+4)}")
for i in (1, 2, 3): A(f"v_fmac_f32 {LS}, {v(E+i)}, {v(SG+4+i)}")
A(f"v_add_f32_dpp {TT}, {LS}, {LS} row_ror:8 row_mask:0xf bank_mask:0xf")
A(f"v_add_f32_dpp {LS}, {LS}, {LS} row_ror:8 row_mask:0xf bank_mask:0xf")
A(f"v_permlane16_swap_b32 {LS}, {TT}"); A(f"v_add_f32 {SC}, {LS}, {TT}"); A(f"v_add_f32 {LS}, {LS}, {TT}")
A("L_exw:")
poll(op_load, [v(OG+i) for i in range(4)], primed=True, site='o')
stamp()
A(f"v_permlane32_swap_b32 {LS}, {SC}")
def unpack2(dst, src):
    for i in range(2):
        A(f"v_lshlrev_b32 {v(dst+2*i)}, 16, {v(src+i)}"); A(f"v_and_b32 {v(dst+2*i+1)}, 0xffff0000, {v(src+i)}")
unpack2(R, OG); unpack2(OG+4, OG+2)
for i in (0, 2): A(f"v_pk_mul_f32 {v(R+i,2)}, {v(R+i,2)}, {v(E+3,2)} op_sel:[0,1] op_sel_hi:[1,1]")
for i in (0, 2): A(f"v_pk_fma_f32 {v(R+i,2)}, {v(OG+4+i,2)}, {v(E+5,2)}, {v(R+i,2)} op_sel_hi:[1,0,1]")
A(f"v_add_f32 {LS}, {LS}, {SC}")
A(f"v_mov_b32 {v(E+2)}, {v(E+6)}")
A(f"v_permlane32_swap_b32 {v(R)}, {v(R+2)}")
A(f"v_permlane32_swap_b32 {v(R+1)}, {v(R+3)}")
A(f"v_add_f32 {v(R)}, {v(R)}, {v(R+2)}")
A(f"v_add_f32 {v(R+1)}, {v(R+1)}, {v(R+3)}")
A(f"v_rcp_f32 {LS}, {LS}")
A(f"v_permlane16_swap_b32 {v(R)}, {v(R+1)}")
A(f"v_add_f32 {v(R)}, {v(R)}, {v(R+1)}")
A(f"v_add_f32_dpp {v(R)}, {v(R)}, {v(R)} row_ror:8 row_mask:0xf bank_mask:0xf")
A(f"v_mul_f32 {v(R)}, {v(R)}, {LS}")
A(f"v_cvt_pk_bf16_f32 {TT}, {v(R)}, {v(R)}")
A(f"ds_write_b16 {vOTw}, {TT}")
A(f"s_cmp_lg_u32 {sL}, 0")
A("s_cbranch_scc1 L_o3")
pub(*[f"buffer_store_dwordx2 {v(EM,2)}, {vOPg}, {srd(rWS)}, {{so}} offen offset:{512*i}{{fl}}" for i in range(2)])
A("L_o3:")
A("s_waitcnt lgkmcnt(0)")
A("s_barrier")
for i in range(4): A(f"ds_read_b128 {v(AO+4*i,4)}, {vOTr} offset:{128*i}")
tile_out(aWO, aWOt, vYst, True)
stamp()

def reducer(kind):
    ld = [f"buffer_load_dwordx2 {v(YG+2*i,2)}, {vRg}, {srd(rWS)}, {sGp} offen offset:{512*i} sc1" for i in range(2)]
    A(f"s_movk_i32 {t4}, 0xff"); A(f"s_add_u32 {t3}, {sXPo}, 8192")
    zero(R)
    if kind == 'A': zero(YG+4, 2)
    if kind == 'A':
        if args.yd: A(f"s_sleep {args.yd}")
        poll(ld, [v(YG+i) for i in range(4)], site='y')
    else:
        poll(ld + ["s_mov_b64 exec, 0xffff", f"buffer_load_dwordx2 {v(YG+4,2)}, {vRg}, {srd(rWS)}, {sGp} offen offset:1024 sc1", "s_mov_b64 exec, -1"],
             [v(YG+i) for i in range(6)], site='y')
    stamp()
    A(f"v_smfmac_f32_16x16x64_bf16 {v(R,4)}, {v(YG+8,4)}, {v(YG,8)}, {vIdxS}")
    for i in range(4): A(f"v_add_f32_dpp {v(R+i)}, {v(R+i)}, {v(R+i)} row_ror:8 row_mask:0xf bank_mask:0xf")
    for i in range(4): A(f"v_bfi_b32 {v(R+i)}, {t4}, {vTag}, {v(R+i)}")
    A(f"buffer_store_dwordx4 {v(R,4)}, {vXPst}, {srd(rWS)}, {sXPo} offen sc1")
    if args.near: A(f"buffer_store_dwordx4 {v(R,4)}, {vXPst}, {srd(rWS)}, {t3} offen sc1")
    if kind == 'M':
        A(f"s_lshl_b32 {t0}, {sL}, 2"); A(f"s_andn2_b32 {t0}, {t0}, {sRole}")
        A("s_cbranch_scc1 L_fin")
    cl = [f"buffer_store_dwordx2 {v(EM,2)}, {vRg}, {srd(rWS)}, {{so}} offen offset:{512*i}{{fl}}" for i in range(2)]
    if kind == 'M': cl += ["s_mov_b64 exec, 0xffff", f"buffer_store_dwordx2 {v(EM,2)}, {vRg}, {srd(rWS)}, {{so}} offen offset:1024{{fl}}", "s_mov_b64 exec, -1"]
    pub(*cl)
    if args.pre:
        lb = A.newlabel('L_an')
        A(f"s_cmp_lg_u32 {sTask}, 0"); A(f"s_cbranch_scc1 {lb}")
        if kind == 'A': A(f"s_cmp_eq_u32 {sL}, 0"); A(f"s_cbranch_scc1 {lb}")
        A(f"v_mov_b32 {TT}, {AN_O + (0 if kind == 'M' else 4)}")
        A("s_mov_b64 exec, 1")
        pub(f"buffer_store_dword {vL16}, {TT}, {srd(rWS)}, {{so}} offen{{fl}}")
        A("s_mov_b64 exec, -1")
        A(f"{lb}:")
    if args.near:
        A(f"v_mov_b32 {TT}, 0")
        A(f"ds_read_b32 {TT}, {TT} offset:{L_NEAR}")
    if args.xd: A(f"s_sleep {args.xd}")
    if args.near:
        A("s_waitcnt lgkmcnt(0)")
        A(f"v_or_b32 {vXPg}, {vXPg}, {TT}")
    poll([f"buffer_load_dwordx2 {v(XG,2)}, {vXPg}, {srd(rWS)}, {sXPo} offen sc1",
          f"buffer_load_dwordx2 {v(XG+2,2)}, {vXPg}, {srd(rWS)}, {sXPo} offen offset:512 sc1"], None, site='x',
         chk=[f"v_xor_b32 {v(R+i)}, {vTag}, {v(XG+i)}" for i in range(4)] +
             [f"v_or3_b32 {CK}, {v(R)}, {v(R+1)}, {v(R+2)}", f"v_bitop3_b32 {CK}, {CK}, {v(R+3)}, {t4} bitop3:0xa8", f"v_cmp_ne_u32 vcc, 0, {CK}"])
    stamp()
    Y = v(R)
    A(f"v_add_f32 {v(R)}, {v(R)}, {v(R+2)}"); A(f"v_add_f32 {v(R+1)}, {v(R+1)}, {v(R+3)}")
    A(f"v_permlane32_swap_b32 {v(R)}, {v(R+1)}")
    A(f"v_add_f32 {TT}, {v(R)}, {v(R+1)}"); A(f"v_add_f32 {Y}, {v(R)}, {v(R+1)}")
    A(f"v_permlane16_swap_b32 {Y}, {TT}"); A(f"v_add_f32 {Y}, {Y}, {TT}")
    rbf(Y, Y)
    if kind == 'M':
        A(f"v_add_f32 {Y}, {Y}, {vB2}"); rbf(Y, Y)
    A(f"v_add_f32 {TT}, {Y}, {vXres}")
    A(f"v_add_f32 {v(R+1)}, {Y}, {vXres}")
    A(f"v_add_f32 {Y}, {Y}, {vXres}")
    A("s_mov_b64 exec, -1")
    A(f"v_permlane32_swap_b32 {TT}, {v(R+1)}")
    A(f"v_cvt_pk_bf16_f32 {TT}, {TT}, {v(R+1)}")
    A("s_mov_b64 exec, 0xffff")
    if kind == 'M':
        A(f"s_cmp_lg_u32 {sL}, 0")
        A("s_cbranch_scc1 L_out")
    pub(f"buffer_store_dword {TT}, {vZst}, {srd(rWS)}, {{so}} offen{{fl}}")
    A("s_mov_b64 exec, -1")
    stamp()
    rbf(vXres, Y)
    if kind == 'M' or args.ms != 'x':
        A(f"v_mul_f32 {TT}, {vXres}, {vXres}")
        A(f"v_cndmask_b32 {TT}, {vXres}, {TT}, {mROW}")
        for k in (8, 4, 2): A(f"v_add_f32_dpp {TT}, {TT}, {TT} row_ror:{k} row_mask:0xf bank_mask:0xf")
        A(f"v_add_f32_dpp {Y}, {TT}, {TT} row_ror:1 row_mask:0xf bank_mask:0xf")
        A(f"v_add_f32_dpp {TT}, {TT}, {TT} row_ror:1 row_mask:0xf bank_mask:0xf")
        A(f"v_permlane32_swap_b32 {TT}, {Y}")
        A(f"v_add_f32 {TT}, {TT}, {Y}")
        A("s_mov_b64 exec, 0x10001")
        pub(f"buffer_store_dword {TT}, {vZSst}, {srd(rWS)}, {{so}} offen{{fl}}")
        A("s_mov_b64 exec, -1")
    A(f"v_add_u32 {vZSst}, 512, {vZSst}")
    A(f"v_add_u32 {vZst}, 2304, {vZst}")
    A(f"s_add_u32 {sXPo}, {sXPo}, {XPS}")

A(f"s_bitcmp1_b32 {sRole}, 0")
A("s_cbranch_scc1 L_mlp")
A(f"s_bitcmp1_b32 {sRole}, 1")
A("s_cbranch_scc0 L_probe" if args.near else "s_cbranch_scc0 L_next")
A(f"s_cmp_lg_u32 {sL}, 0")
A("s_cbranch_scc1 L_red")
A(f"v_lshlrev_b32 {vXres}, 16, {vXres}"); A(f"v_lshlrev_b32 {vB2}, 16, {vB2}")
zero(YG+6, 2)
for i in range(4): A(f"v_mov_b32 {v(YG+8+i)}, 0x3f80")
A("L_red:")
k0 = nst[0]
reducer('A'); reducer('M')
kr = nst[0]
A("s_branch L_next")
A("L_mlp:")
nst[0] = k0
A(f"s_cmp_lg_u32 {sL}, 0")
A("s_cbranch_scc1 L_m1")
A(f"s_mul_i32 {t0}, {sX}, 18"); A(f"s_add_u32 {t0}, {t0}, {sJ}")
A(f"s_lshl_b32 {t2}, {t0}, 6")
A(f"buffer_load_ushort {vB1}, {vB1}, {srd(rT1)}, 0 offen{NT}")
A(f"s_cmp_ge_u32 {sJ}, 16")
A("s_cbranch_scc1 L_m0b")
if args.xt:
    A(f"s_lshl_b32 {t1}, {sJ}, 2"); A(f"s_add_u32 {t1}, {t1}, {sW}"); A(f"s_mul_i32 {t1}, {t1}, 36")
    A(f"v_add_u32 {TT}, {t1}, v0")
    A(f"v_lshrrev_b32 {LS}, 6, {TT}"); A(f"v_mul_u32_u24 {MX}, 43, {LS}"); A(f"v_lshrrev_b32 {MX}, 7, {MX}"); A(f"v_add_u32 {LS}, {LS}, {MX}")
    A(f"v_bfe_u32 {MX}, {TT}, 3, 3"); A(f"v_lshl_add_u32 {LS}, {LS}, 3, {MX}"); A(f"v_and_b32 {TT}, 7, {TT}"); A(f"v_lshlrev_b32 {TT}, 7, {TT}"); A(f"v_lshl_add_u32 {TT}, {LS}, 13, {TT}")
    A(f"s_lshl_b32 {t1}, {sX}, 10"); A(f"s_add_u32 {t1}, {t1}, {XP_O}")
    A(f"v_mov_b32 {LS}, 0")
    A("s_mov_b32 exec_hi, 15")
    A(f"buffer_atomic_or {LS}, {TT}, {srd(rWS)}, {t1} offen")
    A("s_mov_b32 exec_hi, -1")
if 's' not in args.early + args.mid: slots_touch()
A("L_m0b:")
def w1_real():
    lb = A.newlabel('L_w1')
    A(f"s_cmp_eq_u32 {sW}, 3")
    A(f"s_cbranch_scc1 {lb}")
    A(f"s_mul_i32 {t0}, {sW}, {192*9216}"); A(f"s_add_u32 {t0}, {t0}, {t2}")
    if args.w1dma:
        A(f"v_lshrrev_b32 {TT}, 2, v0"); A(f"v_mul_u32_u24 {TT}, 9216, {TT}"); A(f"v_and_b32 {LS}, 3, v0"); A(f"v_lshl_add_u32 {TT}, {LS}, 4, {TT}")
        A(f"s_mul_i32 {t1}, {sW}, 12288"); A(f"s_add_u32 {t1}, {t1}, {L_K}"); A(f"s_mov_b32 m0, {t1}")
        for i in range(12):
            A(f"buffer_load_dwordx4 {TT}, {srd(rW1)}, {t0} offen{NTM} lds")
            if i < 11: A(f"s_add_u32 {t0}, {t0}, {16*9216}"); A("s_add_u32 m0, m0, 1024")
        A(f"v_lshrrev_b32 {TT}, 4, v0"); A(f"v_lshlrev_b32 {TT}, 8, {TT}"); A(f"v_and_b32 {LS}, 15, v0"); A(f"v_lshl_add_u32 {TT}, {LS}, 2, {TT}"); A(f"v_add_u32 {TT}, {t1}, {TT}")
        A("s_waitcnt vmcnt(0)")
        for i in range(6):
            for hh in range(2):
                for p in range(2):
                    A(f"ds_read2_b32 {a(aW1+8*i+4*hh+2*p,2)}, {TT} offset0:{32*p} offset1:{32*p+16}")
                if (i, hh) != (5, 1): A(f"v_add_u32 {TT}, 1024, {TT}")
        A("s_waitcnt lgkmcnt(0)")
    else:
        A(f"v_lshrrev_b32 {TT}, 4, v0"); A(f"v_mul_u32_u24 {TT}, {4*9216}, {TT}"); A(f"v_and_b32 {LS}, 15, v0"); A(f"v_lshl_add_u32 {TT}, {LS}, 2, {TT}")
        prev = 0
        for i in range(6):
            for vv in range(8):
                row = 32*i + 16*(vv >> 2) + (vv & 3)
                if row != prev: A(f"s_add_u32 {t0}, {t0}, {(row-prev)*9216}")
                prev = row
                A(f"buffer_load_dword {a(aW1+8*i+vv)}, {TT}, {srd(rW1)}, {t0} offen{NTM}")
    A(f"{lb}:")
for c_ in args.mo:
    if c_ == 't':
        lb_ = A.newlabel('L_nt'); A(f"s_cmp_ge_u32 {sJ}, 16"); A(f"s_cbranch_scc1 {lb_}"); w1_touch(); A(f"{lb_}:")
    if c_ == '2': w2_loads()
    if c_ == 'r': w1_real()
    if c_ == 'w': A("s_waitcnt vmcnt(0)")
    if c_ == 'h': A("s_waitcnt vmcnt(6)")
    if c_ == 'g': A("s_waitcnt vmcnt(3)")
    if c_ == 'e': A("s_waitcnt vmcnt(8)")
A("L_m0c:")
if ST: A("s_memrealtime s[94:95]"); A("s_waitcnt vmcnt(0)"); A("s_memrealtime s[96:97]")
A("s_waitcnt vmcnt(0)")
A(f"v_lshlrev_b32 {vB1}, 16, {vB1}")
A("L_m1:")
zero(D0, 8)
c0 = -2 * 1.4426950408889634 * 0.7978845608028654
A(f"v_mov_b32 {v(E)}, {f32(c0)}")
A(f"v_add_u32 {v(E+2)}, {4*1152}, {vMst}")
A(f"s_mul_i32 {t0}, {sL}, {Z3_O-Z1_O}"); A(f"s_add_u32 {t0}, {t0}, {sGp}"); A(f"s_add_u32 {t0}, {t0}, {Z1_O}")
if args.pre:
    A(f"s_cmp_eq_u32 {sL}, 0"); A("s_cbranch_scc1 L_m1b")
    quiet_wait(AN_O + 4)
    A("L_m1b:")
A(f"s_lshl_b32 {t1}, {sL}, 10"); A(f"s_add_u32 {t1}, {t1}, {sGp}"); A(f"s_add_u32 {t1}, {t1}, {ZS_O}")
A(f"v_lshrrev_b32 {v(E+1)}, 5, v0"); A(f"v_lshlrev_b32 {v(E+1)}, 3, {v(E+1)}")
A(f"s_cmp_eq_u32 {sW}, 3")
A("s_cbranch_scc1 L_m2")
poll_proj(vXAm, t0, 6, aW1)
A("s_mov_b32 exec_hi, 0")
A(f"ds_write_b128 {vHPw}, {v(D0,4)}")
A("s_mov_b32 exec_hi, -1")
A("s_branch L_m2b")
A("L_m2:")
if args.ms == 'x':
    if 'nostat' not in args.exp:
        poll(xs_loads(rWS, t0, ' sc1'), [v(XS+i) for i in range(9)], site='z')
        stats_x()
    else: A(f"v_mov_b32 {S_}, 0"); A(f"v_mov_b32 {Q_}, 1.0")
else:
    poll(zs_load(vZSg, t1), [v(ZG), v(ZG+1)], site='z')
    A(f"v_mov_b32 {S_}, {v(ZG)}"); A(f"v_mov_b32 {Q_}, {v(ZG+1)}")
    stats_tail1(); stats_tail2()
A(f"ds_write_b64 {v(E+1)}, {v(TM,2)} offset:{L_STAT}")
A("L_m2b:")
stamp()
A("s_waitcnt lgkmcnt(0)")
A("s_barrier")
H = TM + 12
A(f"ds_read2_b32 {v(H,2)}, {vHPr} offset0:0 offset1:2")
A(f"ds_read2_b32 {v(H+2,2)}, {vHPr} offset0:128 offset1:130")
A(f"ds_read_b32 {v(H+4)}, {vHPr} offset:1024"); A(f"ds_read_b32 {v(H+5)}, {vHPr} offset:1032")
A(f"ds_read_b64 {v(TM,2)}, {v(E+1)} offset:{L_STAT}")
zero(D0)
A("s_waitcnt lgkmcnt(0)")
A(f"v_add_f32 {v(H)}, {v(H)}, {v(H+2)}"); A(f"v_add_f32 {v(H+1)}, {v(H+1)}, {v(H+3)}")
A(f"v_add_f32 {v(H)}, {v(H)}, {v(H+4)}"); A(f"v_add_f32 {v(H+1)}, {v(H+1)}, {v(H+5)}")
A(f"v_fma_f32 {v(H)}, -{S_}, {v(H+1)}, {v(H)}")
A(f"v_mul_f32 {v(H)}, {v(H)}, {Q_}")
rbf(v(H), v(H))
A(f"v_add_f32 {v(H)}, {v(H)}, {vB1}")
rbf(v(H), v(H))
A(f"v_mul_f32 {TT}, {v(H)}, {v(H)}")
A(f"v_fmac_f32 {v(E)}, {f32(c0*0.044715)}, {TT}")
A(f"v_mul_f32 {TT}, {v(E)}, {v(H)}")
A(f"v_exp_f32 {TT}, {TT}")
A(f"v_add_f32 {TT}, 1.0, {TT}")
A(f"v_rcp_f32 {TT}, {TT}")
A(f"v_mul_f32 {TT}, {TT}, {v(H)}")
A(f"v_cvt_pk_bf16_f32 {TT}, {TT}, 0")
A(f"ds_write2_b32 {vPTw}, {TT}, {TT} offset1:5")
for i in range(4): A(f"ds_read_b128 {v(AO+4*i,4)}, {vPTr} offset:{128*i}")
stamp()
tile_out(aW2, aW2t, vMst, False)
A("L_m4:")
stamp()
nst[0] = kr
A("L_next:")
A(f"s_cmp_lg_u32 {sL}, 0")
A("s_cbranch_scc1 L_fin")
if ST:
    A("s_waitcnt lgkmcnt(0)")
    for k in range(14): A(f"v_writelane_b32 {v(SV)}, s{72+2*k}, {1+k}")
    for k in range(14): A(f"s_mov_b64 s[{72+2*k}:{73+2*k}], 0")
A(f"s_mov_b32 {sL}, 1")
if args.dirty:
    A(f"s_cmp_ge_u32 {sJ}, 16"); A("s_cbranch_scc1 L_dd")
    A(f"s_lshl_b32 {t0}, s2, 2"); A(f"s_add_u32 {t0}, {t0}, {sW}"); A(f"s_lshl_b32 {t0}, {t0}, 14"); A(f"s_add_u32 {t0}, {t0}, 0x2000000")
    for i in range(args.dirty):
        A(f"buffer_store_dwordx4 {v(EM,4)}, {vL16}, {srd(rWS)}, {t0} offen"); A(f"s_add_u32 {t0}, {t0}, 1024")
    A("L_dd:")
A(f"s_add_u32 {sXoff}, {sGp}, {Z2_O}")
for r in (vSTst, vSTg, vSTm): A(f"v_add_u32 {r}, {ST1_O-ST_O}, {r}")
if args.qc:
    assert QP_O % 512 == 0
    for r in (vQPst, vQPg):
        A(f"v_bfe_u32 {TT}, {r}, 1, 8"); A(f"v_and_b32 {r}, 0xfffffe00, {r}"); A(f"v_add_u32 {r}, {r}, {TT}")
    A(f"v_add_u32 {vQPg2}, 4096, {vQPg}")
A("s_branch L_layer")
A("L_out:")
A(f"buffer_store_dword {TT}, {vZo}, {srd(rOUT)}, 0 offen")
A(f"s_mov_b32 {t0}, {EP_O}")
A("s_mov_b64 exec, 1")
A(f"buffer_store_dword {FN}, {vL16}, {srd(rWS)}, {t0} offen")
if ST: A(f"s_memrealtime s[{72+2*13}:{73+2*13}]")
A("L_fin:")
if args.wb:
    A(f"s_cmp_lg_u32 {sJ}, 18"); A("s_cbranch_scc1 L_wb")
    A(f"s_cmp_lg_u32 {sW}, 0"); A("s_cbranch_scc1 L_wb")
    A("buffer_wbl2 sc1")
    A("L_wb:")
if args.enc:
    j0, j1 = [int(x) for x in args.encj.split(',')]
    A("s_memrealtime s[66:67]")
    A("s_waitcnt lgkmcnt(0)")
    if args.enc <= 14: A(f"v_readlane_b32 {t0}, {v(SV)}, {args.enc}"); A("s_nop 3")
    else: A(f"s_mov_b32 {t0}, s{72+2*(args.enc-15)}")
    A(f"s_cmp_eq_u32 {t0}, 0"); A("s_cbranch_scc1 L_enc2")
    A(f"s_cmp_lt_u32 {sJ}, {j0}"); A("s_cbranch_scc1 L_enc2")
    A(f"s_cmp_ge_u32 {sJ}, {j1}"); A("s_cbranch_scc1 L_enc2")
    if args.encref == 0: A(f"s_mov_b32 {t1}, s100")
    elif args.encref <= 14: A(f"v_readlane_b32 {t1}, {v(SV)}, {args.encref}"); A("s_nop 3")
    else: A(f"s_mov_b32 {t1}, s{72+2*(args.encref-15)}")
    A(f"s_sub_u32 {t0}, {t0}, {t1}"); A(f"s_min_u32 {t0}, {t0}, 10000"); A(f"s_lshl_b32 {t0}, {t0}, {4 if args.encref else 3}"); A(f"s_add_u32 {t0}, {t0}, s66")
    A("L_enc:")
    A("s_sleep 8")
    A("s_memrealtime s[64:65]"); A("s_waitcnt lgkmcnt(0)")
    A(f"s_sub_u32 {t1}, s64, {t0}"); A(f"s_cmp_lt_i32 {t1}, 0"); A("s_cbranch_scc1 L_enc")
    A("L_enc2:")
if ST:
    A("s_mov_b64 exec, -1")
    A("s_waitcnt lgkmcnt(0)")
    A(f"v_writelane_b32 {v(SV)}, s100, 0")
    for k in range(14): A(f"v_writelane_b32 {v(SV)}, s{72+2*k}, {15+k}")
    A(f"s_lshl_b32 {t0}, s2, 2"); A(f"s_add_u32 {t0}, {t0}, {sW}"); A(f"s_lshl_b32 {t0}, {t0}, 8"); A(f"s_add_u32 {t0}, {t0}, {STAMP_O}")
    A(f"v_mov_b32 {v(SV+1)}, 0")
    A(f"v_lshlrev_b32 {v(SV+2)}, 3, v0")
    A("s_mov_b32 exec_hi, 0")
    A(f"buffer_store_dwordx2 {v(SV,2)}, {v(SV+2)}, {srd(rWS)}, {t0} offen")
A("L_end:")
A("s_endpgm")
if args.near:
    A("; ---- which copy of the cross-die inbox is closer to this die? (speed only, both are always written)")
    A("L_probe:")
    A(f"s_cmp_lt_u32 {sJ}, 20"); A("s_cbranch_scc1 L_next")
    A(f"s_cmp_lg_u32 {sL}, 0"); A("s_cbranch_scc1 L_next")
    A(f"s_sub_u32 {t0}, {sJ}, 20"); A(f"s_lshl_b32 {t0}, {t0}, 18"); A(f"s_lshl_b32 {t1}, {sX}, 10"); A(f"s_add_u32 {t0}, {t0}, {t1}"); A(f"s_add_u32 {t0}, {t0}, {XP_O + 3*65536}")
    A(f"s_add_u32 s4, s{rWS}, {t0}"); A(f"s_addc_u32 s5, s{rWS+1}, 0")
    A(f"s_mov_b32 {t2}, -1"); A(f"s_mov_b32 {t3}, -1"); A(f"s_mov_b32 {t4}, 3")
    A("L_pr1:")
    A("s_memtime s[6:7]"); A("s_waitcnt lgkmcnt(0)")
    A(f"s_load_dword {t5}, s[4:5], 0 glc"); A("s_waitcnt lgkmcnt(0)")
    A("s_memtime s[8:9]"); A("s_waitcnt lgkmcnt(0)")
    A(f"s_load_dword {t5}, s[4:5], 0x2000 glc"); A("s_waitcnt lgkmcnt(0)")
    A("s_memtime s[10:11]"); A("s_waitcnt lgkmcnt(0)")
    A(f"s_sub_u32 {t0}, s8, s6"); A(f"s_sub_u32 {t1}, s10, s8")
    A(f"s_min_u32 {t2}, {t2}, {t0}"); A(f"s_min_u32 {t3}, {t3}, {t1}")
    A(f"s_sub_u32 {t4}, {t4}, 1"); A(f"s_cmp_lg_u32 {t4}, 0"); A("s_cbranch_scc1 L_pr1")
    A(f"s_cmp_lt_u32 {t3}, {t2}"); A(f"s_cselect_b32 {t0}, 0x2000, 0")
    A(f"v_mov_b32 {TT}, 0"); A(f"v_mov_b32 {LS}, {t0}")
    A(f"ds_write_b32 {TT}, {LS} offset:{L_NEAR}")
    A("s_branch L_next")
A("L_af2:")
A(f"s_cmp_eq_u32 {sMode}, {FB_O}")
A("s_cbranch_scc1 L_g2")
A(f"s_add_u32 {sMode}, {sMode}, 1")
A(f"s_lshl_b32 {t2}, {sX}, 10"); A(f"s_add_u32 {t2}, {t2}, {FL_O}")
A(f"s_lshl_b32 {t4}, {sL}, 2"); A(f"s_add_u32 {t1}, {t4}, {t2}")
A(f"s_cmp_lt_u32 {sMode}, {1 if args.forcefb else 40}")
A("s_cbranch_scc1 L_af5")
A("s_mov_b64 exec, 1")
A(f"buffer_store_dword {FN}, {vL16}, {srd(rWS)}, {t1} offen sc1")
A("s_mov_b32 exec_lo, -1")
A(f"buffer_load_dwordx4 {v(FG,4)}, {vL16}, {srd(rWS)}, {t2} offen sc1")
A("s_mov_b32 exec_hi, -1")
A("s_waitcnt vmcnt(0)")
flags_diff()
A(f"v_and_b32 {TT}, 0x0fffffff, {CK}")
A(f"v_cmp_ne_u32 vcc, 0, {TT}")
A("s_cmp_lg_u32 vcc_lo, 0")
A("s_cbranch_scc1 L_af5")
A(f"v_cmp_ne_u32 vcc, 0, {CK}")
A("s_cmp_lg_u32 vcc_lo, 0")
if args.forcefb: A("s_cmp_eq_u32 0, 0")
A("s_cbranch_scc1 L_spread")
A("L_af5:")
A(f"s_sub_u32 {sTO}, {sTO}, 1")
A("s_cbranch_scc0 L_g4")
A(f"s_mov_b32 {sTO}, 0")
A(f"s_mov_b32 {sMode}, 0")
A("s_branch L_g2")
A("L_spread:")
A(f"s_mov_b32 {sMode}, {FB_O}")
A(f"s_add_u32 {sGp}, {sGf}, {FB_O}")
empty_share(sGp, ' sc1')
A("s_mov_b32 exec_hi, 0")
A(qp_store.format(so=sGp, fl=' sc1'))
A("s_waitcnt vmcnt(0)")
A("s_mov_b64 exec, 1")
A(f"buffer_store_dword {FN}, {vL16}, {srd(rWS)}, {t1} offen offset:512 sc1")
A("s_mov_b32 exec_lo, -1")
A("L_sp1:")
A("s_mov_b32 exec_hi, 0")
A(f"buffer_load_dwordx4 {v(FG,4)}, {vL16}, {srd(rWS)}, {t2} offen offset:512 sc1")
A("s_mov_b32 exec_hi, -1")
A("s_waitcnt vmcnt(0)")
flags_diff()
A(f"v_and_b32 {CK}, 0x0fffffff, {CK}")
A(f"v_cmp_ne_u32 vcc, 0, {CK}")
A("s_cmp_eq_u32 vcc_lo, 0")
A("s_cbranch_scc1 L_g4")
A("s_sleep 4")
A(timeout("L_sp1", "L_g4"))
for t in tail: A(t)
for t in tail_raw: A.lines += t
A.raw('L_codeend:')

A.raw('.section .rodata,"a"')
A.raw(".p2align 6")
A.raw(f".amdhsa_kernel {NAME}_kernel")
A.raw(f"  .amdhsa_next_free_vgpr {ACC+NACC}")
A.raw("  .amdhsa_next_free_sgpr 102")
A.raw(f"  .amdhsa_accum_offset {ACC}")
A.raw("  .amdhsa_group_segment_fixed_size 0")
A.raw("  .amdhsa_kernarg_size 104")
A.raw("  .amdhsa_user_sgpr_count 2")
A.raw("  .amdhsa_user_sgpr_kernarg_segment_ptr 1")
A.raw("  .amdhsa_system_sgpr_workgroup_id_x 1")
A.raw(".end_amdhsa_kernel")
txt = A.text()
if args.cyc: txt = txt.replace('s_memrealtime', 's_memtime')
sys.stdout.write(txt)
```

```python
import sys, argparse, struct
sys.path.insert(0, 'dev')
from asmlib import Asm
NAME = "interleave_layers__sliding_block_cached__dense_activation_gelu__decode"
ap = argparse.ArgumentParser()
ap.add_argument('--stamps', action='store_true')
ap.add_argument('--pro', action='store_true')
ap.add_argument('--cyc', action='store_true')
ap.add_argument('--xt', type=int, default=0)
ap.add_argument('--xd', type=int, default=11)
ap.add_argument('--enc', type=int, default=0)
ap.add_argument('--encref', type=int, default=0)
ap.add_argument('--encj', default='0,32')
ap.add_argument('--only', default='')
ap.add_argument('--pQ', type=int, default=4)
ap.add_argument('--xf', type=int, default=1)
ap.add_argument('--kw', type=int, default=3)
ap.add_argument('--code', type=int, default=3)
ap.add_argument('--early', default='0')
ap.add_argument('--mid', default='')
ap.add_argument('--w1dma', type=int, default=0)
ap.add_argument('--near', type=int, default=1)
ap.add_argument('--pd', default='s22,y22,o22')
ap.add_argument('--wb', type=int, default=0)
ap.add_argument('--dirty', type=int, default=0)
ap.add_argument('--pre', type=int, default=1)
ap.add_argument('--qd', type=int, default=0)
ap.add_argument('--zs', type=int, default=0)
ap.add_argument('--sd', type=int, default=0)
ap.add_argument('--yd', type=int, default=0)
ap.add_argument('--zd', type=int, default=0)
ap.add_argument('--qc', type=int, default=1)
ap.add_argument('--ms', default='x')
ap.add_argument('--exp', default='')
ap.add_argument('--tlb', type=int, default=0)
ap.add_argument('--hw', type=int, default=3)
ap.add_argument('--prew', type=int, default=0)
ap.add_argument('--pS', type=int, default=0)
ap.add_argument('--pC', type=int, default=9)
ap.add_argument('--lnf', type=int, default=2)
ap.add_argument('--wl', default='8,0,0')
ap.add_argument('--mo', default='t2hr')
ap.add_argument('--vw', type=int, default=1)
ap.add_argument('--di', type=int, default=1)
ap.add_argument('--dz', type=int, default=1)
ap.add_argument('--dxx', type=int, default=1)
ap.add_argument('--nt', default='k,v,2')
ap.add_argument('--forcefb', action='store_true')
args = ap.parse_args()
def ntf(c): return ' nt' if c in args.nt.split(',') else ''
NT = ntf('s'); NTK = ntf('k'); NTV = ntf('v'); NTQ = ntf('q'); NTO = ntf('o'); NTM = ntf('m'); NT2 = ntf('2'); NTT = ntf('t')
ST = args.stamps
PD = {x[0]: (int(x[1]), int(x[2:])) for x in args.pd.split(',') if x}

def f32(x): return '0x%08x' % struct.unpack('<I', struct.pack('<f', x))[0]

CLR = 944
OP_O = 0
Y_O = OP_O + 65536
ST_O = Y_O + 41472
ST1_O = ST_O + 2048
Z1_O = ST1_O + 2048
Z2_O = Z1_O + 2304
Z3_O = Z2_O + 2304
AN_O = Z3_O + 2304
ZS_O = AN_O + 128
assert ZS_O + 1536 <= 128 * CLR and (128 * CLR) % 128 == 0
QP_O = 128 * CLR
FF_O = QP_O + 65536
GB = FF_O + 1024
FB_O = 8 * GB
XP_O = 6 << 20
assert XP_O >= 16 * GB
XPS = 16384
FL_O = XP_O + 12 * 262144
EP_O = FL_O + 8 * 1024
STAMP_O = 0x8000000
L_NEAR = 8176
L_X = 640
L_QT, L_STAT, L_OT, L_PT, L_HP, L_K, L_WQ, L_SIZE = 0, 512, 1024, 2560, 8192, 16384, 49152, 67584

rK, rV, rWQ, rWO, rW1, rW2, rWS, rX, rOUT, rT1, rT2 = 4, 8, 12, 16, 20, 24, 28, 32, 36, 44, 48
sTask, kv0, kv1, sFlag = 's40', 's41', 's42', 's43'
def srd(n): return f"s[{n}:{n+3}]"
sW, sX, sJ, sGf, sGp, sXoff, sTO, sMode, sL, sWo = [f"s{i}" for i in range(52, 62)]
t0, t1, t2, t3, t4, t5 = [f"s{i}" for i in range(62, 68)]
mLO8 = "s[68:69]"; mROW = "s[70:71]"
MXA = "0x00330033"
sRole = "s3"
(vL4, vL16, vIdxD, vIdxP, vIdxS, vXAq, vXAm, vQPst, vQPg, vL128, vQTw, vQTr, vPTw, vPTr, vSTst, vOPst, vSTg, vOPg, vOTw, vOTr,
 vYst, vMst, vHPw, vSTm, vRg, vSTATr, vXPst, vXPg, vZst, vXres, vB2, vB1, vCq, vZo, vXS1, vXS2, vWrow, vHPr, vOnes) = [f"v{i}" for i in range(1, 40)]
XA, D0, D1, DP, AO, SG, YG, XG, XS, FG, TM, EM, KA, SV, OG, QG = 40, 64, 68, 72, 76, 104, 120, 132, 136, 148, 152, 176, 180, 184, 188, 196
vQPg2, vZSst, vZSg = 'v92', 'v93', 'v94'
ZG = 96; vLXr = 'v98'; KR = 100
ACC = 212
aWQ, aK, aV, aWO, aW1, aW2, aWOt, NACC = 0, 24, 56, 88, 120, 168, 200, 232
aW2t = aW1
def v(n, k=1): return f"v{n}" if k == 1 else f"v[{n}:{n+k-1}]"
def a(n, k=1): return f"a{n}" if k == 1 else f"a[{n}:{n+k-1}]"
CK = v(TM + 23); FN = v(TM + 22); vTag = v(TM + 21); DUM = v(TM + 20)
sEp, sXPo = kv0, kv1

A = Asm()
tail = []
tail_raw = []
nst = [0]
def pstamp(k):
    if args.pro: A(f"s_memrealtime s[{72+2*k}:{73+2*k}]")
def stamp():
    if ST and not args.pro:
        k = nst[0]; nst[0] += 1
        assert k < 13
        if ONLY is None or k in ONLY: A(f"s_memrealtime s[{72+2*k}:{73+2*k}]")
ONLY = set(int(x) for x in args.only.split(',')) if args.only else None
def lg(n): return 0 if (ST and ONLY is None) else n
def exec_xa(): return [f"s_mov_b32 exec_lo, {MXA}", f"s_mov_b32 exec_hi, {MXA}"]

def check_text(regs):
    regs = list(regs); o = []
    if len(regs) == 1: cur = regs[0]
    else:
        take = regs[:3]; regs = regs[3:]
        o.append(f"v_max3_u32 {CK}, {take[0]}, {take[1]}, {take[2]}" if len(take) == 3 else f"v_max_u32 {CK}, {take[0]}, {take[1]}")
        while regs:
            take = regs[:2]; regs = regs[2:]
            o.append(f"v_max3_u32 {CK}, {CK}, {take[0]}, {take[1]}" if len(take) == 2 else f"v_max_u32 {CK}, {CK}, {take[0]}")
        cur = CK
    o.append(f"v_cmp_eq_u32 vcc, -1, {cur}")
    return o
def nvm(loads): return sum(1 for l in loads if l.startswith('buffer_'))
def timeout(again, ok): return f"s_sub_u32 {sTO}, {sTO}, 1\ns_cbranch_scc0 {again}\ns_mov_b32 {sTO}, 0\ns_waitcnt vmcnt(0) lgkmcnt(0)\ns_branch {ok}"

def poll(loads, regs, primed=False, extra_wait="", chk=None, site=''):
    lp = A.newlabel('L_poll'); to = A.newlabel('L_to'); ok = A.newlabel('L_ok')
    depth, gap = PD.get(site, (1, 0))
    ck = chk or check_text(regs)
    pre = []
    for d in range(depth - 1):
        pre += loads + ([f"s_sleep {gap}    ; two polls in flight, half a round trip apart"] if gap else [])
    loop = [f"{lp}:"] + loads + [f"s_sub_u32 {sTO}, {sTO}, 1", f"s_cbranch_scc1 {to}", f"s_waitcnt vmcnt({(depth-1)*nvm(loads)}){extra_wait}"] + ck + [f"s_cbranch_vccnz {lp}"]
    tmo = f"{to}:\ns_mov_b32 {sTO}, 0\ns_waitcnt vmcnt(0) lgkmcnt(0)\ns_branch {ok}"
    if primed:
        st = A.newlabel('L_more')
        A(f"s_waitcnt vmcnt(0){extra_wait}")
        for l in ck: A(l)
        A(f"s_cbranch_vccnz {st}")
        A(f"{ok}:")
        tail.append(f"{st}:\n" + "\n".join(pre + loop) + f"\ns_branch {ok}\n" + tmo)
        return
    for l in pre + loop: A(l)
    A(f"{ok}:")
    tail.append(tmo)

def sm(d, av, br, idx): A(f"v_smfmac_f32_16x16x64_bf16 {v(d,4)}, {v(av,4)}, {a(br,8)}, {idx}")
def xa_loads(rr, voff, so, n, fl, short_last=False):
    o = exec_xa()
    for i in range(n):
        if short_last and i == n - 1: o.append("s_mov_b64 exec, 0x33")
        o.append(f"buffer_load_dwordx4 {v(XA+4*i,4)}, {voff}, {srd(rr)}, {so} offen offset:{64*i}{fl}")
    return o + ["s_mov_b64 exec, -1"]
def poll_proj(voff, so, n, wbase, short_last=False, extra=[]):
    loads = extra[:-1] + xa_loads(rWS, voff, so, n, ' sc1', short_last)
    lds = [l for l in loads if l.startswith('buffer_')]
    lp = A.newlabel('L_poll'); rt = A.newlabel('L_retry'); ok = A.newlabel('L_ok'); gen = A.newlabel('L_nan')
    depth, gap = PD.get('p', (1, 0))
    for d in range(depth):
        if d: A(f"s_sleep {gap}")
        for l in loads: A(l)
    A(f"{lp}:")
    A(f"s_waitcnt vmcnt({(depth-1)*n})")
    for i in range(n): sm(D0, XA+4*i, wbase+8*i, vIdxD)
    for l in loads: A(l)
    A(f"v_cmp_u_f32 vcc, {v(D0)}, {v(D0+1)}")
    A(f"s_cbranch_vccnz {rt}")
    A(f"{ok}:")
    z = "\n".join(f"v_mov_b32 {v(D0+i)}, 0" for i in range(4))
    mm = "\n".join(f"v_smfmac_f32_16x16x64_bf16 {v(D0,4)}, {v(XA+4*i,4)}, {a(wbase+8*i,8)}, {vIdxD}" for i in range(n))
    if args.zs: z += f"\ns_sleep {args.zs}"
    tail.append(f"{rt}:\n{z}\ns_sub_u32 {sTO}, {sTO}, 1\ns_cbranch_scc1 {gen}\ns_and_b32 {t5}, {sTO}, 15\ns_cbranch_scc1 {lp}\n" +
                "\n".join(check_text([v(XA+i) for i in range(4*n)])) + f"\ns_cbranch_vccnz {lp}\n{gen}:\ns_max_i32 {sTO}, {sTO}, 0\n{mm}\ns_nop 7\ns_branch {ok}")

def pub(*fmts):
    for f in fmts: A(f.format(so=sGf, fl=''))
    sl = A.newlabel('L_slow'); bk = A.newlabel('L_back')
    A(f"s_cmp_lg_u32 {sMode}, 0")
    A(f"s_cbranch_scc1 {sl}")
    A(f"{bk}:")
    tail.append(f"{sl}:\n" + "\n".join(f.format(so=sGp, fl=' sc1') for f in fmts) + f"\ns_nop 1\ns_branch {bk}")

def rbf(dst, src):
    A(f"v_cvt_pk_bf16_f32 {dst}, {src}, {src}")
    A(f"v_and_b32 {dst}, 0xffff0000, {dst}")
def treduce(r):
    A(f"v_permlane32_swap_b32 {v(r)}, {v(r+2)}")
    A(f"v_permlane32_swap_b32 {v(r+1)}, {v(r+3)}")
    A(f"v_add_f32 {v(r)}, {v(r)}, {v(r+2)}")
    A(f"v_add_f32 {v(r+1)}, {v(r+1)}, {v(r+3)}")
    A(f"v_permlane16_swap_b32 {v(r)}, {v(r+1)}")
    A(f"v_add_f32 {v(r)}, {v(r)}, {v(r+1)}")
    A(f"v_add_f32_dpp {v(r)}, {v(r)}, {v(r)} row_ror:8 row_mask:0xf bank_mask:0xf")
S_, Q_ = v(TM), v(TM+1)
def stats_tail1():
    S, Q = S_, Q_
    A(f"v_permlane16_swap_b32 {S}, {Q}")
    A(f"v_add_f32 {S}, {S}, {Q}")
    for k in (8, 4, 2, 1):
        A(f"v_add_f32_dpp {S}, {S}, {S} row_ror:{k} row_mask:0xf bank_mask:0xf")
    A(f"v_mul_f32 {Q}, {f32(1/576)}, {S}")
    A(f"v_mul_f32 {S}, {f32(1/576)}, {S}")
def stats_tail2():
    S, Q = S_, Q_
    A(f"v_permlane16_swap_b32 {S}, {Q}")
    A(f"v_fma_f32 {Q}, -{S}, {S}, {Q}")
    A(f"v_max_f32 {Q}, 0, {Q}")
    A(f"v_cvt_pk_bf16_f32 {Q}, {S}, {Q}")
    A(f"v_lshlrev_b32 {S}, 16, {Q}")
    A(f"v_and_b32 {Q}, 0xffff0000, {Q}")
    A(f"v_add_f32 {Q}, {f32(1e-5)}, {Q}")
    rbf(Q, Q)
    A(f"v_sqrt_f32 {Q}, {Q}")
    rbf(Q, Q)
    A(f"v_rcp_f32 {Q}, {Q}")
def stats_x():
    A(f"v_mov_b32 {S_}, 0"); A(f"v_mov_b32 {Q_}, 0")
    for i in range(9):
        A(f"v_dot2c_f32_bf16 {S_}, {v(XS+i)}, {vOnes}")
        A(f"v_dot2c_f32_bf16 {Q_}, {v(XS+i)}, {v(XS+i)}")
    stats_tail1(); stats_tail2()
def zs_load(voff, so):
    return ["s_mov_b32 exec_lo, 0x3ffff", "s_mov_b32 exec_hi, 0x3ffff", f"buffer_load_dwordx2 {v(ZG,2)}, {voff}, {srd(rWS)}, {so} offen sc1", "s_mov_b64 exec, -1"]
def zero(r, n=4):
    for i in range(n): A(f"v_mov_b32 {v(r+i)}, 0")
def xs_loads(rr, so, fl):
    return [f"buffer_load_dwordx4 {v(XS,4)}, {vXS1}, {srd(rr)}, {so} offen{fl}",
            f"buffer_load_dwordx4 {v(XS+4,4)}, {vXS1}, {srd(rr)}, {so} offen offset:512{fl}",
            f"buffer_load_dword {v(XS+8)}, {vXS2}, {srd(rr)}, {so} offen offset:1024{fl}"]

for l in """; Two decoder layers (attention + GELU MLP) for batch 2 in ONE persistent launch: 256 workgroups (one per CU) x 4 waves.
; All weights and the K/V window are read from memory once and stay in registers for both layers.
; Workgroup id = [kvhl 1][b 1][s 3][x 3]; the 32 workgroups with equal x form a group (j = id >> 3).
;   every workgroup : q projection tile (72 rows x 128 columns), scores/softmax/P.V for 128 keys and 2 heads
;   j >= 16         : merges the split-softmax partials (true running max) and applies a 32-row tile of wo
;   j <  18         : 32 hidden units of the MLP (w1 columns, GELU, w2 rows)
;   j >= 20, w < 3  : sums partial rows inside the group, exchanges them between the groups, adds the residual
; Matrix-vector products run on v_smfmac (the activation is the sparse operand, raw weight rows are the dense one).
; Hand-offs are self-validating data in d_ws: slots are marked empty (0xFFFFFFFF) by this launch, or carry a tag derived
; from an epoch word in d_ws that only serves to tell this launch's hand-offs from an earlier launch's.
; Inside a group, plain stores + L2 are used only after the group has verified at run time (die id in its flags) that all
; its members sit on one die; otherwise a second copy of the slots is used with write-through stores. All polls are bounded.
; Generated by a script of the author (no compiler output).""".split("\n"): A.raw(l)
A.raw(f"; @launch grid=(256,1,1) block=(256,1,1) lds={L_SIZE}")
A.raw('.amdgcn_target "amdgcn-amd-amdhsa--gfx950"')
A.raw(".text")
A.raw(f".globl {NAME}_kernel")
A.raw(".p2align 8")
A.raw(f".type {NAME}_kernel,@function")
A.raw(f"{NAME}_kernel:")
if ST:
    A("s_memrealtime s[100:101]")
    if args.pro:
        for k in range(1, 14): A(f"s_mov_b32 s{72+2*k}, 0")
for r, off in ((rWQ, 24), (rK, 8), (rWS, 96), (rX, 0), (rV, 16), (rWO, 32)):
    A(f"s_load_dwordx2 s[{r}:{r+1}], s[0:1], {off}")
if args.code >= 2:
    A(f"s_cmp_ge_u32 s2, {8*(args.code-1)}"); A("s_cbranch_scc1 L_nc")
    A("s_getpc_b64 s[66:67]")
    A("L_pc:")
    A(f"v_lshlrev_b32 {v(TM+8)}, 7, v0")
    A(f"v_min_u32 {v(TM+8)}, L_codeend-L_pc-4, {v(TM+8)}")
    A(f"global_load_dword {DUM}, {v(TM+8)}, s[66:67]")
    A("L_nc:")
A("s_cmp_ge_u32 s2, 256")
A("s_cbranch_scc1 L_end")
G, C, B2 = v(TM+3), v(TM+4), v(TM+5)
def size(r, n): A(f"s_mov_b32 s{r+2}, {n}"); A(f"s_mov_b32 s{r+3}, 0x20000")
A(f"v_readfirstlane_b32 {sW}, v0")
A(f"v_lshrrev_b32 {v(TM+6)}, 4, v0")
A(f"v_and_b32 {C}, 15, v0")
A(f"v_lshlrev_b32 {v(TM+6)}, 13, {v(TM+6)}")
A(f"v_lshl_add_u32 {v(TM+6)}, {C}, 4, {v(TM+6)}")
size(rWQ, 4718592)
A(f"s_and_b32 {sX}, s2, 7")
A(f"s_bfe_u32 {t2}, s2, 0x30003")
A(f"s_lshr_b32 {t3}, s2, 6"); A(f"s_lshl2_add_u32 {t0}, {sX}, {t3}"); A(f"s_lshl_b32 {t3}, {t0}, 8")
A(f"s_mul_i32 {sXoff}, {t2}, {72*8192}"); A(f"s_add_u32 {sXoff}, {sXoff}, {t3}")
A(f"s_lshl4_add_u32 m0, {sW}, {L_WQ}")
def setup_k():
    A(f"v_and_b32 v0, 63, v0")
    A(f"v_lshrrev_b32 {G}, 4, v0")
    A(f"s_and_b32 {t1}, {t0}, 1"); A(f"s_lshr_b32 {t0}, {t0}, 1")
    A(f"s_lshl4_add_u32 {kv0}, {t1}, {t0}"); A(f"s_lshl_b32 {kv0}, {kv0}, 5"); A(f"s_add_u32 {kv0}, {kv0}, {t2}"); A(f"s_lshl_b32 {kv0}, {kv0}, 8")
    A(f"s_add_u32 {kv0}, {kv0}, {sW}"); A(f"s_lshl_b32 {kv0}, {kv0}, 7"); A(f"s_add_u32 {kv0}, {kv0}, {3072*256}"); A(f"s_add_u32 {kv1}, {kv0}, 4096")
    size(rK, 33554432)
    A(f"v_xor_b32 {v(TM+7)}, {C}, {G}")
    A(f"v_lshlrev_b32 {v(TM+7)}, 4, {v(TM+7)}")
    A(f"v_lshl_add_u32 {v(KA)}, {G}, 8, {v(TM+7)}")
    for i in range(1, 4): A(f"v_xor_b32 {v(KA+i)}, {64*i}, {v(KA)}")
    A(f"s_lshr_b32 {sW}, {sW}, 6")
def setup_ws():
    size(rWS, 268435456); size(rX, 2304)
    A(f"s_lshr_b32 {sJ}, s2, 3")
    A(f"v_lshlrev_b32 {vL16}, 4, v0")
    for i in range(4): A(f"v_mov_b32 {v(EM+i)}, -1")
    A(f"s_mul_i32 {sGf}, {sX}, {GB}")
    A(f"s_lshl2_add_u32 {sL}, {sJ}, {sW}")
def setup_rest():
    size(rWO, 4718592)
    A("s_mov_b32 s68, 0x00ff00ff"); A("s_mov_b32 s69, 0x00ff00ff")
    A(f"v_lshlrev_b32 {vL128}, 7, v0")
    A(f"v_bfe_u32 {B2}, v0, 2, 1")
    A(f"v_mul_u32_u24 {vXAm}, 1152, {B2}")
    A(f"v_lshl_add_u32 {vXAm}, {G}, 4, {vXAm}")
    A(f"s_mul_i32 {t4}, {t2}, 144")
    A(f"v_add_u32 {vXAq}, {t4}, {vXAm}")
    for i in range(12): A(f"v_mov_b32 {v(XA+i)}, 0x3f803f80")
    A(f"s_lshl_b32 {t4}, {sL}, 9"); A(f"s_add_u32 {t4}, {t4}, {QP_O}")
    A(f"v_add_u32 {vQPst}, {t4}, {vL16}")
def constants():
    A(f"v_mul_u32_u24 {vWrow}, 1152, {G}")
    A(f"v_lshl_add_u32 {vWrow}, {C}, 4, {vWrow}")
    A(f"s_cmp_lt_u32 {sJ}, 18"); A(f"s_cselect_b32 {sRole}, 1, 0")
    A(f"s_cmp_ge_u32 {sJ}, 20"); A(f"s_cselect_b32 {t4}, 2, 0"); A(f"s_cmp_lt_u32 {sW}, 3"); A(f"s_cselect_b32 {t4}, {t4}, 0"); A(f"s_or_b32 {sRole}, {sRole}, {t4}")
    A(f"s_sub_u32 {sTask}, {sJ}, 20"); A(f"s_mul_i32 {sTask}, {sTask}, 3"); A(f"s_add_u32 {sTask}, {sTask}, {sW}"); A(f"s_min_u32 {sTask}, {sTask}, 35")
    A(f"s_lshl_b32 {t3}, {sX}, 4"); A(f"s_and_b32 {t4}, {sJ}, 15"); A(f"s_add_u32 {sWo}, {t3}, {t4}"); A(f"s_mul_i32 {sWo}, {sWo}, {32*1152}")
    A(f"s_lshl_b32 {t4}, {sW}, 8"); A(f"s_add_u32 {sWo}, {sWo}, {t4}")
    for r, n in ((rW1, 5308416), (rW2, 5308416), (rOUT, 2304), (rT1, 9216), (rT2, 1152)):
        A(f"s_mov_b32 s{r+2}, {n}"); A(f"s_mov_b32 s{r+3}, 0x20000")
    A("s_mov_b32 s70, 0xffff0000"); A("s_mov_b32 s71, 0xffff0000")
    A(f"v_lshlrev_b32 {vL4}, 2, v0")
    for i in range(12, 24): A(f"v_mov_b32 {v(XA+i)}, 0x3f803f80")
    A(f"s_lshl_b32 {t4}, {sW}, 13"); A(f"s_add_u32 {t4}, {t4}, {L_K}")
    A(f"v_lshl_add_u32 {v(KR)}, {C}, 8, {v(TM+7)}"); A(f"v_add_u32 {v(KR)}, {t4}, {v(KR)}")
    for i in range(1, 4): A(f"v_xor_b32 {v(KR+i)}, {64*i}, {v(KR)}")
    T_ = [v(TM+8+i) for i in range(10)]
    A(f"v_and_b32 {T_[0]}, 1, v0")
    A(f"v_mul_u32_u24 {vIdxP}, 0xaaaa, {T_[0]}"); A(f"v_add_u32 {vIdxP}, 0x4444, {vIdxP}")
    A(f"v_and_b32 {T_[1]}, 3, v0")
    A(f"v_mul_u32_u24 {vIdxS}, 0x5555, {T_[1]}")
    A(f"v_bfe_u32 {T_[2]}, v0, 4, 1")
    A(f"v_bfe_u32 {T_[3]}, v0, 2, 2")
    A(f"v_bfe_u32 {T_[4]}, v0, 3, 1")
    A(f"v_lshrrev_b32 {T_[5]}, 5, v0")
    A(f"v_and_b32 {T_[8]}, 7, v0")
    A(f"v_and_b32 {T_[9]}, 31, v0")
    A(f"s_lshr_b32 {t3}, {sJ}, 4")
    A(f"s_lshr_b32 {t5}, {sJ}, 3")
    A(f"s_lshl_b32 {t3}, {t3}, 1"); A(f"s_lshr_b32 {t4}, {sW}, 1"); A(f"s_add_u32 {t3}, {t3}, {t4}"); A(f"s_lshl_b32 {t3}, {t3}, 14")
    A(f"s_and_b32 {t4}, {sW}, 1"); A(f"s_lshl_b32 {t4}, {t4}, 10"); A(f"s_add_u32 {t3}, {t3}, {t4}")
    A(f"s_lshl_b32 {t4}, {t1}, 8"); A(f"s_add_u32 {t3}, {t3}, {t4}"); A(f"s_add_u32 {t3}, {t3}, {QP_O}")
    A(f"v_lshl_add_u32 {vQPg}, {T_[5]}, 4, {T_[2]}"); A(f"v_lshlrev_b32 {vQPg}, 9, {vQPg}"); A(f"v_lshl_add_u32 {vQPg}, {C}, 4, {vQPg}"); A(f"v_add_u32 {vQPg}, {t3}, {vQPg}")
    A(f"v_add_u32 {vQPg2}, 4096, {vQPg}")
    A(f"s_and_b32 {t3}, {sW}, 1"); A(f"s_lshl_b32 {t3}, {t3}, 8"); A(f"s_lshr_b32 {t4}, {sW}, 1"); A(f"s_lshl_b32 {t4}, {t4}, 7"); A(f"s_add_u32 {t3}, {t3}, {t4}")
    A(f"v_bfe_u32 {T_[6]}, v0, 3, 2"); A(f"v_bfe_u32 {T_[7]}, v0, 1, 2")
    A(f"v_lshlrev_b32 {vQTw}, 5, {T_[6]}"); A(f"v_lshl_add_u32 {vQTw}, {T_[0]}, 4, {vQTw}"); A(f"v_lshl_add_u32 {vQTw}, {T_[7]}, 2, {vQTw}")
    A(f"v_lshl_add_u32 {vQTw}, {T_[5]}, 1, {vQTw}"); A(f"v_add_u32 {vQTw}, {t3}, {vQTw}")
    A(f"v_lshlrev_b32 {vQTr}, 5, {G}"); A(f"v_lshl_add_u32 {vQTr}, {T_[4]}, 7, {vQTr}"); A(f"v_lshl_add_u32 {vQTr}, {T_[0]}, 4, {vQTr}")
    A(f"v_mul_u32_u24 {vOTr}, 640, {T_[4]}"); A(f"v_lshl_add_u32 {vOTr}, {G}, 5, {vOTr}"); A(f"v_lshl_add_u32 {vOTr}, {B2}, 4, {vOTr}")
    A(f"s_mul_i32 {t3}, {sW}, 1280"); A(f"s_add_u32 {t3}, {t3}, {L_PT}")
    A(f"v_add_u32 {vPTr}, {t3}, {vOTr}"); A(f"v_add_u32 {vOTr}, {L_OT}, {vOTr}")
    A(f"v_bfe_u32 {T_[6]}, v0, 1, 4")
    A(f"v_mul_u32_u24 {vPTw}, 640, {T_[5]}"); A(f"v_lshl_add_u32 {vPTw}, {T_[6]}, 5, {vPTw}"); A(f"v_lshl_add_u32 {vPTw}, {T_[0]}, 3, {vPTw}"); A(f"v_add_u32 {vPTw}, {t3}, {vPTw}")
    A(f"v_lshrrev_b32 {vHPr}, 1, v0"); A(f"v_lshlrev_b32 {vHPr}, 4, {vHPr}"); A(f"v_lshl_add_u32 {vHPr}, {T_[0]}, 2, {vHPr}"); A(f"v_add_u32 {vHPr}, {L_HP}, {vHPr}")
    A(f"s_lshl_b32 {t3}, {sW}, 9"); A(f"s_add_u32 {t3}, {t3}, {L_HP}"); A(f"v_add_u32 {vHPw}, {t3}, {vL16}")
    A(f"s_lshl_b32 {t3}, {t5}, 9"); A(f"s_add_u32 {t3}, {t3}, {ST_O}")
    A(f"s_lshl_b32 {t4}, {t2}, 2"); A(f"s_add_u32 {t4}, {t4}, {sW}"); A(f"s_lshl_b32 {t4}, {t4}, 2"); A(f"s_add_u32 {t4}, {t4}, {t3}")
    A(f"v_lshlrev_b32 {vSTst}, 8, {T_[5]}"); A(f"v_lshl_add_u32 {vSTst}, {T_[0]}, 7, {vSTst}"); A(f"v_add_u32 {vSTst}, {t4}, {vSTst}")
    A(f"s_lshl_b32 {t3}, {t1}, 1"); A(f"s_lshr_b32 {t4}, {sW}, 1"); A(f"s_add_u32 {t3}, {t3}, {t4}"); A(f"s_lshl_b32 {t3}, {t3}, 9"); A(f"s_add_u32 {t3}, {t3}, {ST_O}")
    A(f"s_lshr_b32 {t4}, {t2}, 2"); A(f"s_lshl_b32 {t4}, {t4}, 8"); A(f"s_add_u32 {t3}, {t3}, {t4}")
    A(f"v_lshrrev_b32 {T_[7]}, 3, v0")
    A(f"v_lshl_add_u32 {vSTg}, {T_[7]}, 4, {t3}")
    A(f"s_and_b32 {t4}, {sW}, 1"); A(f"s_lshl_b32 {t4}, {t4}, 3"); A(f"v_add_u32 {vSTm}, {t4}, {vSTg}")
    A(f"s_lshr_b32 {t3}, {sJ}, 4"); A(f"s_lshl_b32 {t3}, {t3}, 15"); A(f"s_lshl_b32 {t4}, {t1}, 11"); A(f"s_add_u32 {t3}, {t3}, {t4}")
    A(f"s_lshl_b32 {t4}, {sW}, 9"); A(f"s_add_u32 {t3}, {t3}, {t4}"); A(f"s_lshl_b32 {t4}, {t2}, 6"); A(f"s_add_u32 {t3}, {t3}, {t4}")
    A(f"v_lshlrev_b32 {T_[6]}, 4, {T_[1]}"); A(f"v_lshl_add_u32 {T_[6]}, {T_[2]}, 3, {T_[6]}")
    A(f"v_lshl_add_u32 {vOPst}, {T_[5]}, 2, {T_[3]}"); A(f"v_lshl_add_u32 {vOPst}, {vOPst}, 12, {T_[6]}"); A(f"v_add_u32 {vOPst}, {t3}, {vOPst}")
    A(f"s_and_b32 {t3}, {sJ}, 15"); A(f"s_lshl_b32 {t3}, {t3}, 12"); A(f"s_lshl_b32 {t4}, {sW}, 10"); A(f"s_add_u32 {t3}, {t3}, {t4}"); A(f"v_lshl_add_u32 {vOPg}, v0, 3, {t3}")
    A(f"s_lshr_b32 {t3}, {sW}, 1"); A(f"s_mul_i32 {t3}, {t3}, 640"); A(f"s_and_b32 {t4}, {sW}, 1"); A(f"s_lshl_b32 {t4}, {t4}, 1"); A(f"s_add_u32 {t3}, {t3}, {t4}"); A(f"s_add_u32 {t3}, {t3}, {L_OT}")
    A(f"v_mul_u32_u24 {vOTw}, 20, {T_[4]}"); A(f"v_lshl_add_u32 {vOTw}, {T_[8]}, 6, {vOTw}"); A(f"v_lshl_add_u32 {vOTw}, {T_[5]}, 5, {vOTw}")
    A(f"v_lshl_add_u32 {vOTw}, {T_[2]}, 3, {vOTw}"); A(f"v_add_u32 {vOTw}, {t3}, {vOTw}")
    A(f"s_mul_i32 {t3}, {sW}, {4*1152}"); A(f"s_lshl_b32 {t4}, {sJ}, 6"); A(f"s_add_u32 {t3}, {t3}, {t4}"); A(f"s_add_u32 {t3}, {t3}, {Y_O}")
    A(f"v_mul_u32_u24 {vMst}, 18, {T_[5]}"); A(f"v_add_u32 {vMst}, {vMst}, {T_[3]}"); A(f"v_mul_u32_u24 {vMst}, 1152, {vMst}")
    A(f"v_add3_u32 {vMst}, {vMst}, {T_[6]}, {t3}")
    A(f"v_subrev_u32 {vYst}, 1024, {vMst}")
    A(f"v_lshlrev_b32 {vZSg}, 3, v0")
    A(f"s_lshl_b32 {t3}, {t1}, 8"); A(f"s_add_u32 {t3}, {t3}, {ZS_O+512}"); A(f"v_lshl_add_u32 {vSTATr}, {T_[9]}, 3, {t3}")
    zero(ZG, 2)
    A(f"v_mul_u32_u24 {vXS1}, 1152, {T_[5]}"); A(f"v_lshl_add_u32 {vXS2}, {T_[9]}, 2, {vXS1}"); A(f"v_lshl_add_u32 {vXS1}, {T_[9]}, 4, {vXS1}")
    A(f"s_mul_i32 {t4}, {sW}, 384"); A(f"v_add_u32 {vXAm}, {t4}, {vXAm}")
    A(f"s_mul_i32 {t4}, {sX}, 18"); A(f"s_add_u32 {t4}, {t4}, {sJ}"); A(f"s_lshl_b32 {t5}, {t4}, 6")
    A(f"v_lshl_add_u32 {vB1}, {T_[9]}, 1, {t5}")
    A(f"s_mul_i32 {t4}, {sTask}, 1152"); A(f"s_add_u32 {t4}, {t4}, {Y_O}"); A(f"v_lshl_add_u32 {vRg}, v0, 3, {t4}")
    A(f"s_sub_u32 {t4}, {sL}, 80"); A(f"s_and_b32 {t4}, {t4}, 63"); A(f"s_lshl_b32 {t4}, {t4}, 16")
    A(f"s_lshl_b32 {t5}, {sX}, 10"); A(f"s_add_u32 {t5}, {t5}, {t4}"); A(f"v_lshl_add_u32 {vXPg}, v0, 3, {t5}")
    A(f"s_lshl_b32 {t5}, {sX}, 7"); A(f"s_add_u32 {t4}, {t4}, {t5}"); A(f"v_lshl_add_u32 {vXPst}, {T_[8]}, 4, {t4}")
    A(f"v_lshrrev_b32 {T_[7]}, 3, v0"); A(f"v_lshl_add_u32 {vXPst}, {T_[7]}, 10, {vXPst}")
    A(f"v_lshl_add_u32 {T_[7]}, {C}, 1, {T_[5]}")
    A(f"s_lshl_b32 {t4}, {sTask}, 6"); A(f"v_lshl_add_u32 {vZo}, {T_[7]}, 1, {t4}")
    A(f"v_add_u32 {vZst}, {Z1_O}, {vZo}")
    A(f"s_and_b32 {t5}, {sTask}, 7"); A(f"s_cmp_eq_u32 {t5}, {sX}"); A(f"s_cselect_b32 {t5}, 4, 0"); A(f"s_or_b32 {sRole}, {sRole}, {t5}")
    A(f"s_cmp_ge_u32 {sTask}, 18"); A(f"s_cselect_b32 {t5}, 1152, 0")
    A(f"v_subrev_u32 {vB2}, {t5}, {vZo}")
    A(f"s_cselect_b32 {t5}, {256-18*8}, 0"); A(f"s_lshl_b32 {t4}, {sTask}, 3"); A(f"s_add_u32 {t4}, {t4}, {t5}"); A(f"s_add_u32 {t4}, {t4}, {ZS_O}")
    A(f"v_lshl_add_u32 {vZSst}, {T_[2]}, 2, {t4}")

def constants1():
    A(f"v_and_b32 {v(TM+8)}, 1, v0")
    A(f"v_mul_u32_u24 {vIdxD}, 0x5555, {v(TM+8)}"); A(f"v_add_u32 {vIdxD}, 0x8888, {vIdxD}")
    A(f"v_mov_b32 {vOnes}, 0x3f803f80")
    A(f"s_lshl_b32 {t3}, {sW}, 6"); A(f"s_add_u32 {t3}, {t3}, {L_WQ}")
    A(f"v_lshlrev_b32 {vCq}, 10, {G}"); A(f"v_lshl_add_u32 {vCq}, {C}, 2, {vCq}"); A(f"v_add_u32 {vCq}, {t3}, {vCq}")
    for i in range(16, 24): A(f"v_accvgpr_write_b32 {a(aWQ+i)}, 0")
    zero(D0, 8)
    A(f"v_mul_u32_u24 {vLXr}, 144, {B2}"); A(f"v_lshl_add_u32 {vLXr}, {G}, 4, {vLXr}")
    A(f"s_lshl_b32 {t3}, {sW}, 11"); A(f"v_add_u32 {v(TM+8)}, {t3}, {vL16}")
    A(f"ds_write_b128 {v(TM+8)}, {v(D1,4)} offset:1024"); A(f"ds_write_b128 {v(TM+8)}, {v(D1,4)} offset:2048")
    A(f"s_mov_b32 {sTO}, 0x400000"); A(f"s_mov_b32 {sMode}, 0"); A(f"s_mov_b32 {sGp}, {sGf}")
def ln0(n_after):
    A(f"s_cmp_lg_u32 {sW}, 3")
    A("s_cbranch_scc1 L_c1")
    A(f"s_waitcnt vmcnt({n_after})")
    stats_x()
    for i in range(2):
        lo, hi = v(TM+8), v(TM+9)
        A(f"v_lshlrev_b32 {lo}, 16, {v(XG+i)}"); A(f"v_and_b32 {hi}, 0xffff0000, {v(XG+i)}")
        A(f"v_sub_f32 {lo}, {lo}, {S_}"); A(f"v_sub_f32 {hi}, {hi}, {S_}")
        A(f"v_cvt_pk_bf16_f32 {v(XG+i)}, {lo}, {hi}")
        A(f"v_lshlrev_b32 {lo}, 16, {v(XG+i)}"); A(f"v_and_b32 {hi}, 0xffff0000, {v(XG+i)}")
        A(f"v_mul_f32 {lo}, {lo}, {Q_}"); A(f"v_mul_f32 {hi}, {hi}, {Q_}")
        A(f"v_cvt_pk_bf16_f32 {v(XG+i)}, {lo}, {hi}")
    A(f"v_lshrrev_b32 {v(TM+8)}, 5, v0"); A(f"v_mul_u32_u24 {v(TM+8)}, 144, {v(TM+8)}"); A(f"v_and_b32 {v(TM+9)}, 31, v0"); A(f"v_lshl_add_u32 {v(TM+8)}, {v(TM+9)}, 3, {v(TM+8)}")
    A("s_mov_b32 exec_lo, 0x3ffff"); A("s_mov_b32 exec_hi, 0x3ffff")
    A(f"ds_write_b64 {v(TM+8)}, {v(XG,2)} offset:{L_X}")
    A("s_mov_b64 exec, -1")
    A("L_c1:")

fl_load = ["s_mov_b32 exec_hi, 0", f"buffer_load_dwordx4 {v(FG,4)}, {vL16}, {srd(rWS)}, {sXoff} offen sc1", "s_mov_b32 exec_hi, -1"]
qp_store = f"buffer_store_dwordx4 {v(D0,4)}, {vQPst}, {srd(rWS)}, {{so}} offen{{fl}}"
def qg(n): return [f"buffer_load_dwordx{n} {v(QG+4*p,n)}, {vQPg if p < 2 else vQPg2}, {srd(rWS)}, {sGp} offen offset:{2048*(p%2)} sc1" for p in range(4)]
qg4, qg2 = qg(4), qg(2)
def empty_share(base, fl):
    A(f"s_mul_i32 {t5}, {sL}, {CLR}"); A(f"s_add_u32 {t5}, {t5}, {base}")
    A(f"s_mov_b32 exec_hi, {(1 << (CLR//16-32)) - 1}")
    A(f"buffer_store_dwordx4 {v(EM,4)}, {vL16}, {srd(rWS)}, {t5} offen{fl}")
    A("s_mov_b32 exec_hi, -1")
def small_loads():
    A(f"s_mov_b32 {t5}, {EP_O}")
    A(f"buffer_load_dword {FN}, off, {srd(rWS)}, {t5}{NT}")
    A(f"s_cmp_lg_u32 {sW}, 3")
    A("s_cbranch_scc1 L_pro2")
    A(f"v_lshrrev_b32 {v(TM+8)}, 5, v0"); A(f"v_and_b32 {v(TM+9)}, 31, v0")
    A(f"v_mul_u32_u24 {vXS1}, 1152, {v(TM+8)}"); A(f"v_lshl_add_u32 {vXS2}, {v(TM+9)}, 2, {vXS1}"); A(f"v_lshl_add_u32 {v(TM+10)}, {v(TM+9)}, 3, {vXS1}"); A(f"v_lshl_add_u32 {vXS1}, {v(TM+9)}, 4, {vXS1}")
    for l in xs_loads(rX, 0, NT): A(l)
    A(f"s_mul_i32 {t5}, {t2}, 144")
    A(f"buffer_load_dwordx2 {v(XG,2)}, {v(TM+10)}, {srd(rX)}, {t5} offen{NT}")
    A("L_pro2:")
def code_prefetch():
    A(f"s_cmp_ge_u32 s2, 8"); A("s_cbranch_scc1 L_nc")
    A("s_getpc_b64 s[66:67]")
    A("L_pc:")
    A(f"v_lshl_add_u32 {v(TM+8)}, {sW}, 6, v0"); A(f"v_lshlrev_b32 {v(TM+8)}, 7, {v(TM+8)}")
    A(f"v_min_u32 {v(TM+8)}, L_codeend-L_pc-4, {v(TM+8)}")
    A(f"global_load_dword {DUM}, {v(TM+8)}, s[66:67]")
    A("L_nc:")
if args.hw >= 2: setup_k()
if args.code == 1: code_prefetch()
if args.hw >= 3: setup_ws()
A("s_waitcnt lgkmcnt(0)")
pstamp(0)
if args.xf: small_loads()
for n in range(4):
    A(f"buffer_load_dwordx4 {v(TM+6)}, {srd(rWQ)}, {sXoff} offen{NTQ} lds")
    A("s_add_u32 m0, m0, 4096"); A(f"s_add_u32 {sXoff}, {sXoff}, {16*8192}")
if args.hw < 2: setup_k()
A(f"s_cmp_ge_u32 {sW}, 2"); A("s_cbranch_scc1 L_pro1")
A(f"buffer_load_dwordx4 {v(TM+6)}, {srd(rWQ)}, {sXoff} offen{NTQ} lds")
A("L_pro1:")
if args.hw < 3: setup_ws()
if not args.xf: small_loads()
empty_share(sGf, '')
A(f"s_lshl_b32 {t4}, {sW}, 13"); A(f"s_add_u32 m0, {t4}, {L_K}")
for i in range(8):
    if i == 4: A(f"s_add_u32 m0, m0, 4096")
    A(f"buffer_load_dwordx4 {v(KA+i%4)}, {srd(rK)}, {kv0 if i < 4 else kv1} offen offset:{1024*(i%4)}{NTK} lds")
cnt = [8]
mark = {'K': 8}
def vm(s): A(s); cnt[0] += 1
size(rV, 33554432)
def hookS():
    setup_rest()
    if ST and not args.pro:
        for k in range(14): A(f"s_mov_b64 s[{72+2*k}:{73+2*k}], 0")
    pstamp(3)
    for r, off in ((rW1, 48), (rW2, 64), (rOUT, 80), (rT1, 56), (rT2, 72)):
        A(f"s_load_dwordx2 s[{r}:{r+1}], s[0:1], {off}")
    constants1()
    if args.lnf == 2: ln0(1 + cnt[0] + (4 if args.xf else 0))
    A(f"s_lshl_b32 {t4}, {sL}, 9"); A(f"s_add_u32 {t4}, {t4}, {sGf}"); A(f"s_add_u32 {t4}, {t4}, {QP_O}")
    A(f"s_add_u32 {sXoff}, {sGf}, {FF_O}")
    A("s_mov_b64 exec, 15")
    vm(f"buffer_load_dword {DUM}, {vL128}, {srd(rWS)}, {t4} offen sc1{NT}")
    vm(f"buffer_load_dword {DUM}, {vL128}, {srd(rWS)}, {sXoff} offen sc1{NT}")
    A("s_mov_b64 exec, -1")
def hookQ():
    if not args.lnf: ln0(1 + cnt[0] + (4 if args.xf else 0))
    A(f"s_lshl_b32 {t4}, {sL}, 2"); A(f"s_add_u32 {t4}, {t4}, {sXoff}")
    A(f"s_getreg_b32 {t3}, hwreg(HW_REG_XCC_ID)"); A(f"s_lshl_b32 {t3}, {t3}, 28"); A(f"s_or_b32 {t3}, {t3}, 1")
    A(f"s_waitcnt vmcnt({cnt[0]}) lgkmcnt(0)")
    A("s_barrier")
    pstamp(2)
    for l in exec_xa(): A(l)
    for i in range(3):
        if i == 2: A("s_mov_b64 exec, 0x33")
        A(f"ds_read_b128 {v(XA+4*i,4)}, {vLXr} offset:{L_X+64*i}")
    A("s_mov_b64 exec, -1")
    for i in range(2):
        for vv in range(0, 8, 2):
            row = 32*i + 16*(vv >> 2) + (vv & 3)
            A(f"ds_read2st64_b32 {a(aWQ+8*i+vv,2)}, {vCq} offset0:{row} offset1:{row+1}")
    A("s_mov_b32 exec_hi, 0")
    for vv in (0, 2): A(f"ds_read2st64_b32 {a(aWQ+16+vv,2)}, {vCq} offset0:{64+vv} offset1:{65+vv}")
    A("s_mov_b32 exec_hi, -1")
    A(f"v_readfirstlane_b32 {sFlag}, {FN}")
    A(f"s_add_u32 {sFlag}, {sFlag}, 0x0e377902"); A(f"s_and_b32 {sFlag}, {sFlag}, 0x0fffffff"); A(f"s_or_b32 {sFlag}, {sFlag}, {t3}")
    A(f"v_mov_b32 {FN}, {sFlag}")
    A("s_mov_b64 exec, 1")
    vm(f"buffer_store_dword {FN}, {vL16}, {srd(rWS)}, {t4} offen")
    A("s_mov_b64 exec, -1")
    A(f"v_and_b32 {vTag}, 0xff, {FN}"); A(f"s_movk_i32 {t4}, 0xff")
    A("s_waitcnt lgkmcnt(0)")
    for i in range(3): sm(D0, XA+4*i, aWQ+8*i, vIdxD)
    for i in range(4): A(f"v_bfi_b32 {v(D0+i)}, {t4}, {vTag}, {v(D0+i)}")
    A("s_mov_b32 exec_hi, 0")
    vm(qp_store.format(so=sGf, fl=''))
    A("s_mov_b32 exec_hi, -1")
    pstamp(1)
for k in range(9):
    if k == args.pS: hookS()
    if k == args.pC:
        if args.lnf == 1: ln0(1 + cnt[0] + (4 if args.xf else 0))
        constants()
    if k == args.pQ: hookQ()
    if k == 8 - args.vw: mark['V'] = cnt[0]
    if k < 8: vm(f"buffer_load_dwordx4 {a(aV+4*k,4)}, {vL16}, {srd(rV)}, {kv0 if k < 4 else kv1} offen offset:{1024*(k%4)}{NTV}")
    if k == 7: pstamp(9)
TT = v(TM+4)
def slots_touch():
    A(f"s_lshl_b32 {t1}, {sJ}, 2"); A(f"s_add_u32 {t1}, {t1}, {sW}")
    A(f"s_mul_i32 {t3}, {t1}, 896"); A(f"s_add_u32 {t3}, {t3}, {sGf}"); A(f"s_add_u32 {t3}, {t3}, {Y_O}")
    A("s_mov_b64 exec, 0x7f")
    A(f"buffer_load_dword {DUM}, {vL128}, {srd(rWS)}, {t3} offen sc1{NT}")
    A("s_mov_b64 exec, -1")
assert Y_O + 64 * 896 >= ZS_O + 1536
def w1_touch():
    A(f"s_lshl_b32 {t1}, {sJ}, 2"); A(f"s_add_u32 {t1}, {t1}, {sW}")
    A(f"s_mul_i32 {t4}, {sX}, 576"); A(f"s_add_u32 {t4}, {t4}, {t1}"); A(f"s_add_u32 {t4}, {t4}, 512"); A(f"s_mul_i32 {t4}, {t4}, 1152")
    A(f"s_mul_i32 {t1}, {t1}, {9*9216}")
    A(f"s_mul_i32 {t3}, {sX}, 1152"); A(f"s_add_u32 {t1}, {t1}, {t3}"); A(f"s_add_u32 {t3}, {t1}, {5*9216}")
    A(f"v_mul_u32_u24 {TT}, 57, v0"); A(f"v_lshrrev_b32 {TT}, 9, {TT}"); A(f"v_mul_u32_u24 {TT}, {9216-1152}, {TT}"); A(f"v_add_u32 {TT}, {TT}, {vL128}")
    A("s_mov_b32 exec_hi, 0x1fff")
    A(f"buffer_load_dword {DUM}, {TT}, {srd(rW1)}, {t1} offen{NTT}")
    A("s_mov_b32 exec_hi, 15")
    A(f"buffer_load_dword {DUM}, {TT}, {srd(rW1)}, {t3} offen{NTT}")
    A("s_mov_b64 exec, 0x1ff")
    A(f"buffer_load_dword {DUM}, {vL128}, {srd(rW2)}, {t4} offen{NTT}")
    A("s_mov_b64 exec, -1")
def w2_loads():
    l1 = A.newlabel('L_w2')
    A(f"s_mul_i32 {t0}, {sX}, 18"); A(f"s_add_u32 {t0}, {t0}, {sJ}"); A(f"s_mul_i32 {t0}, {t0}, {32*1152}")
    A(f"s_lshl_b32 {t1}, {sW}, 8"); A(f"s_add_u32 {t1}, {t1}, {t0}")
    for i in range(8):
        A(f"buffer_load_dwordx4 {a(aW2+4*i,4)}, {vWrow}, {srd(rW2)}, {t1} offen{NT2}")
        if i < 7: A(f"s_add_u32 {t1}, {t1}, 4608")
    A(f"s_cmp_lg_u32 {sW}, 3")
    A(f"s_cbranch_scc1 {l1}")
    A(f"s_mov_b64 exec, {mLO8}")
    for i in range(8):
        A(f"buffer_load_dwordx4 {a(aW2t+4*i,4)}, {vWrow}, {srd(rW2)}, {t0} offen offset:1024{NT2}")
        if i < 7: A(f"s_add_u32 {t0}, {t0}, 4608")
    A("s_mov_b64 exec, -1")
    A(f"{l1}:")
def wo_loads(k0, k1, with_tail):
    for k in range(k0, k1):
        A(f"buffer_load_dwordx4 {a(aWO+4*k,4)}, {vWrow}, {srd(rWO)}, {sWo} offen{NTO}")
        A(f"s_add_u32 {sWo}, {sWo}, 4608")
    if with_tail:
        l1 = A.newlabel('L_wt')
        A(f"s_cmp_lg_u32 {sW}, 3")
        A(f"s_cbranch_scc1 {l1}")
        A(f"s_mov_b64 exec, {mLO8}")
        for i in range(7, -1, -1):
            A(f"s_sub_u32 {sWo}, {sWo}, 4608")
            A(f"buffer_load_dwordx4 {a(aWOt+4*i,4)}, {vWrow}, {srd(rWO)}, {sWo} offen offset:256{NTO}")
        A("s_mov_b64 exec, -1")
        A(f"{l1}:")
if args.pC > 8: constants()
pstamp(4)
stamp()
A("s_waitcnt lgkmcnt(0)")
if args.kw: A(f"s_waitcnt vmcnt({ {1: cnt[0]-mark['K'], 2: 6, 3: 4, 4: 2}[args.kw] })")
A(f"s_mov_b32 {sXPo}, {XP_O}")
A(f"s_cmp_lt_u32 {sJ}, 16")
A("s_cbranch_scc1 L_g1n")
A(f"v_readfirstlane_b32 {t4}, {vOPg}"); A(f"v_readfirstlane_b32 {t5}, {vSTg}")
A(f"s_add_u32 {t4}, {t4}, {sGf}"); A(f"s_add_u32 {t5}, {t5}, {sGf}")
A("s_mov_b64 exec, 0xff")
A(f"buffer_load_dword {DUM}, {vL128}, {srd(rWS)}, {t4} offen sc1{NT}")
A("s_mov_b64 exec, 3")
A(f"buffer_load_dword {DUM}, {vL128}, {srd(rWS)}, {t5} offen sc1{NT}")
A("s_mov_b64 exec, -1")
A(f"buffer_load_ushort {vXres}, {vZo}, {srd(rX)}, 0 offen{NT}")
A(f"buffer_load_ushort {vB2}, {vB2}, {srd(rT2)}, 0 offen{NT}")
WL = [int(x) for x in args.wl.split(',')]
wo_loads(0, WL[0], WL[0] == 8)
def wo_part(k0, k1, with_tail):
    if k0 >= k1 and not with_tail: return
    lo = A.newlabel('L_wp'); bk = A.newlabel('L_wb')
    A(f"s_bitcmp1_b32 {sRole}, 3")
    A(f"s_cbranch_scc1 {lo}")
    A(f"{bk}:")
    global A_main
    saved = (A.lines, A.hist); A.lines, A.hist = [], []
    A(f"{lo}:"); wo_loads(k0, k1, with_tail); A(f"s_branch {bk}")
    tail_raw.append(A.lines); A.lines, A.hist = saved
if WL[0] < 8: A(f"s_bitset1_b32 {sRole}, 3")
A("s_branch L_g1o")
A("L_g1n:")
if 's' in args.early: slots_touch()
if '1' in args.early: w1_touch()
if '2' in args.early: w2_loads()
A("L_g1o:")
pstamp(6)
A("s_waitcnt vmcnt(4)" if WL[0] < 8 else "s_waitcnt vmcnt(8)")
for T in range(2):
    for q in range(4): A(f"ds_read_b128 {a(aK+16*T+4*q,4)}, {v(KR+q)} offset:{4096*T}")
A(f"s_waitcnt vmcnt({args.vw})")
if ST and not args.pro and ONLY is None: A(f"s_memrealtime s[74:75]")
pstamp(5)
def flags_diff():
    A(f"v_xor_b32 {CK}, {sFlag}, {v(FG)}")
    for i in range(1, 4): A(f"v_bitop3_b32 {CK}, {CK}, {v(FG+i)}, {sFlag} bitop3:0xf6")
st_rd = f"ds_read_b64 {v(TM,2)}, {vSTATr}"
A("L_g4:")
for l in fl_load + qg4: A(l)
A("s_waitcnt vmcnt(0)")
pstamp(7)
flags_diff()
A(f"v_cmp_ne_u32 vcc, 0, {CK}")
A("s_cmp_lg_u32 vcc_lo, 0")
if args.forcefb: A("s_cmp_eq_u32 0, 0")
A("s_cbranch_scc1 L_af2")
A(f"s_mov_b32 {sMode}, 0")
A("L_g2:")
for i in range(16): A(f"v_xor_b32 {v(QG+i)}, {vTag}, {v(QG+i)}")
A(f"v_or3_b32 {CK}, {v(QG)}, {v(QG+1)}, {v(QG+2)}")
for i in range(3, 15, 2): A(f"v_or3_b32 {CK}, {CK}, {v(QG+i)}, {v(QG+i+1)}")
A(f"v_or_b32 {CK}, {CK}, {v(QG+15)}")
A(f"v_and_b32 {CK}, 0xff, {CK}")
A(f"v_cmp_ne_u32 vcc, 0, {CK}")
A("s_cbranch_vccnz L_g5")
A("L_g3:")
A(f"s_mov_b32 {sL}, 0")
zero(D0)
A(f"v_mov_b32 {v(TM)}, 0"); A(f"v_mov_b32 {v(TM+1)}, 1.0")
tail.append("L_g5:\n" + timeout("L_g4", "L_g3"))
pstamp(8)
A(f"v_add_f32 {v(TM+2)}, {v(QG+2)}, {v(QG+6)}"); A(f"v_add_f32 {v(TM+3)}, {v(QG+3)}, {v(QG+7)}")
A(f"v_add_f32 {v(TM+4)}, {v(QG+10)}, {v(QG+14)}"); A(f"v_add_f32 {v(TM+5)}, {v(QG+11)}, {v(QG+15)}")
A(f"v_add_f32 {v(TM+2)}, {v(TM+2)}, {v(TM+4)}"); A(f"v_add_f32 {v(TM+3)}, {v(TM+3)}, {v(TM+5)}")
A(f"v_permlane32_swap_b32 {v(TM+2)}, {v(TM+3)}")
A(f"v_add_f32 {vCq}, {v(TM+2)}, {v(TM+3)}")
A("s_branch L_qfin")

A("L_layer:")
zero(D0, 8)
def quiet_wait(so_add):
    if not args.pre: return
    A(f"s_add_u32 {t5}, {sGp}, {so_add}")
    A("s_mov_b64 exec, 1")
    poll([f"buffer_load_dword {DUM}, {vL16}, {srd(rWS)}, {t5} offen sc1"] + ([f"s_sleep {args.pre-1}"] if args.pre > 1 else []), [DUM])
    A("s_mov_b64 exec, -1")
    if args.zd: A(f"s_sleep {args.zd}")
if args.pre:
    A(f"s_bitcmp1_b32 {sRole}, 1"); A("s_cbranch_scc1 L_q0")
    quiet_wait(AN_O)
    A("L_q0:")
def q_pub():
    A(f"v_and_b32 {v(D0)}, -2, {v(D0)}"); A(f"v_and_b32 {v(D0+1)}, -2, {v(D0+1)}")
    A("s_mov_b32 exec_hi, 0")
    pub(f"buffer_store_dwordx2 {v(D0,2)}, {vQPst}, {srd(rWS)}, {{so}} offen{{fl}}")
    A("s_mov_b32 exec_hi, -1")
poll_proj(vXAq, sXoff, 3, aWQ, True)
q_pub()
nst[0] = 1
stamp()
zero(D0)
qregs = [v(QG+4*p+i) for p in range(4) for i in range(2)]
qchk1 = [f"v_or3_b32 {CK}, {qregs[0]}, {qregs[1]}, {qregs[2]}", f"v_or3_b32 {CK}, {CK}, {qregs[3]}, {qregs[4]}", f"v_or3_b32 {CK}, {CK}, {qregs[5]}, {qregs[6]}",
         f"v_bitop3_b32 {CK}, {CK}, {qregs[7]}, 1 bitop3:0xa8", f"v_cmp_ne_u32 vcc, 0, {CK}"]
poll(zs_load(vSTATr, sGp), [v(ZG), v(ZG+1)])
for l in qg2: A(l)
A(f"v_mov_b32 {S_}, {v(ZG)}"); A(f"v_mov_b32 {Q_}, {v(ZG+1)}")
stats_tail1(); stats_tail2()
poll(qg2, qregs, primed=True, chk=qchk1, site='q')
A("L_qfin:")
stamp()
A(f"v_add_f32 {v(TM+2)}, {v(QG)}, {v(QG+4)}"); A(f"v_add_f32 {v(TM+3)}, {v(QG+1)}, {v(QG+5)}")
A(f"v_add_f32 {v(TM+4)}, {v(QG+8)}, {v(QG+12)}"); A(f"v_add_f32 {v(TM+5)}, {v(QG+9)}, {v(QG+13)}")
A(f"v_add_f32 {v(TM+2)}, {v(TM+2)}, {v(TM+4)}"); A(f"v_add_f32 {v(TM+3)}, {v(TM+3)}, {v(TM+5)}")
A(f"v_permlane32_swap_b32 {v(TM+2)}, {v(TM+3)}")
A(f"v_add_f32 {v(TM+2)}, {v(TM+2)}, {v(TM+3)}")
A(f"v_fma_f32 {v(TM+2)}, -{v(TM)}, {vCq}, {v(TM+2)}")
A(f"v_mul_f32 {v(TM+2)}, {v(TM+2)}, {v(TM+1)}")
A(f"v_cvt_pk_bf16_f32 {v(TM+2)}, {v(TM+2)}, {v(TM+2)}")
A(f"ds_write_b16 {vQTw}, {v(TM+2)} offset:{L_QT}")
A("s_mov_b32 vcc_lo, 0xaaaaaaaa"); A("s_mov_b32 vcc_hi, 0xaaaaaaaa")
zero(DP)
A("s_waitcnt lgkmcnt(0)")
A("s_barrier")
A(f"ds_read_b128 {v(AO,4)}, {vQTr} offset:{L_QT}")
A(f"ds_read_b128 {v(AO+4,4)}, {vQTr} offset:{L_QT+256}")
if WL[0] < 8: wo_part(WL[0], WL[0]+WL[1], False)
if args.mid:
    A(f"s_lshr_b32 {t0}, {sJ}, 4"); A(f"s_or_b32 {t0}, {t0}, {sL}")
    A("s_cbranch_scc1 L_mid")
    if 's' in args.mid: slots_touch()
    if '1' in args.mid: w1_touch()
    if '2' in args.mid: w2_loads()
    A("L_mid:")
A(f"s_waitcnt lgkmcnt({lg(1)})")
sm(D0, AO, aK, vIdxP); sm(D1, AO, aK+16, vIdxP)
A("s_waitcnt lgkmcnt(0)")
sm(D0, AO+4, aK+8, vIdxP); sm(D1, AO+4, aK+24, vIdxP)
SC, MX, P_, LS, TT = v(TM), v(TM+1), v(TM+2), v(TM+3), v(TM+4)
A(f"v_add_f32 {SC}, {v(D0)}, {v(D0+1)}")
A(f"v_add_f32 {TT}, {v(D1)}, {v(D1+1)}")
A(f"v_cndmask_b32 {SC}, {SC}, {TT}, {mROW}")
rbf(SC, SC)
A(f"v_mul_f32 {SC}, {f32(128 ** -0.5)}, {SC}")
rbf(SC, SC)
A(f"v_mul_f32 {SC}, {f32(1.4426950408889634)}, {SC}")
zero(D0, 2)
A(f"v_max_f32_dpp {MX}, {SC}, {SC} row_ror:8 row_mask:0xf bank_mask:0xf")
for n, k in enumerate((4, 2, 1)):
    zero(D0+2+2*n, 2)
    if k == 1: A(f"v_max_f32_dpp {TT}, {MX}, {MX} row_ror:{k} row_mask:0xf bank_mask:0xf")
    A(f"v_max_f32_dpp {MX}, {MX}, {MX} row_ror:{k} row_mask:0xf bank_mask:0xf")
A(f"v_permlane16_swap_b32 {MX}, {TT}")
A(f"v_max_f32 {MX}, {MX}, {TT}")
A(f"v_sub_f32 {P_}, {SC}, {MX}")
A(f"v_exp_f32 {P_}, {P_}")
A(f"v_cvt_pk_bf16_f32 {TT}, {P_}, 0")
A(f"ds_write2_b32 {vPTw}, {TT}, {TT} offset1:5")
for i in range(4): A(f"ds_read_b128 {v(AO+4*i,4)}, {vPTr} offset:{128*i}")
if WL[0] < 8: wo_part(WL[0]+WL[1], sum(WL), False)
A(f"v_add_f32_dpp {LS}, {P_}, {P_} row_ror:8 row_mask:0xf bank_mask:0xf")
for k in (4, 2, 1): A(f"v_add_f32_dpp {LS}, {LS}, {LS} row_ror:{k} row_mask:0xf bank_mask:0xf")
A(f"v_mov_b32 {SC}, {LS}")
A(f"v_permlane16_swap_b32 {LS}, {SC}")
A(f"v_add_f32 {LS}, {LS}, {SC}")
A(f"v_cndmask_b32 {SC}, {MX}, {LS}, vcc")
A("s_mov_b32 exec_lo, 3"); A("s_mov_b32 exec_hi, 3")
pub(f"buffer_store_dword {SC}, {vSTst}, {srd(rWS)}, {{so}} offen{{fl}}")
A("s_mov_b64 exec, -1")
for i in range(4):
    A(f"s_waitcnt lgkmcnt({lg(3-i)})")
    sm(DP, AO+4*i, aV+8*i, vIdxS)
def pack4(d):
    A(f"v_cvt_pk_bf16_f32 {v(d)}, {v(d)}, {v(d+1)}"); A(f"v_cvt_pk_bf16_f32 {v(d+1)}, {v(d+2)}, {v(d+3)}")
pack4(DP)
pub(f"buffer_store_dwordx2 {v(DP,2)}, {vOPst}, {srd(rWS)}, {{so}} offen{{fl}}")
stamp()
if WL[0] < 8:
    wo_part(sum(WL), 8, True)
    A(f"s_bitset0_b32 {sRole}, 3")
E = TM + 5
R = TM + 12
def tile_out(wb, tb, vst, drain):
    l1 = A.newlabel('L_t'); l2 = A.newlabel('L_t')
    for i in range(4):
        A(f"s_waitcnt lgkmcnt({lg(3-i)})")
        sm(D0, AO+4*i, wb+8*i, vIdxS)
    A(f"s_cmp_lg_u32 {sW}, 3")
    A(f"s_cbranch_scc1 {l1}")
    for i in range(1 if 'notail' in args.exp else 4): sm(D1, AO+4*i, tb+8*i, vIdxS)
    A(f"{l1}:")
    A("s_waitcnt vmcnt(0)" if drain else "s_nop 0")
    A("s_nop 4")
    pack4(D0)
    pub(f"buffer_store_dwordx2 {v(D0,2)}, {vst}, {srd(rWS)}, {{so}} offen{{fl}}")
    A(f"s_cmp_lg_u32 {sW}, 3")
    A(f"s_cbranch_scc1 {l2}")
    pack4(D1)
    A(f"s_mov_b64 exec, {mLO8}")
    pub(f"buffer_store_dwordx2 {v(D1,2)}, {v(E+2)}, {srd(rWS)}, {{so}} offen{{fl}}")
    A("s_mov_b64 exec, -1")
    A(f"{l2}:")
A(f"s_cmp_lt_u32 {sJ}, 16")
A("s_cbranch_scc1 L_mlp")
op_load = [f"buffer_load_dwordx2 {v(OG+2*i,2)}, {vOPg}, {srd(rWS)}, {sGp} offen offset:{512*i} sc1" for i in range(2)]
A(f"v_add_u32 {v(E+6)}, {4*1152}, {vYst}")
if args.sd: A(f"s_sleep {args.sd}")
if 'nost' not in args.exp.split(','): poll([f"buffer_load_dwordx4 {v(SG,4)}, {vSTg}, {srd(rWS)}, {sGp} offen sc1",
      f"buffer_load_dwordx4 {v(SG+4,4)}, {vSTg}, {srd(rWS)}, {sGp} offen offset:128 sc1",
      f"buffer_load_dwordx2 {v(SG+8,2)}, {vSTm}, {srd(rWS)}, {sGp} offen sc1"], [v(SG+i) for i in range(10 if 's' in PD else 8)], site='s')
for l in op_load: A(l)
if 'noweights' in args.exp: A("s_branch L_exw")
A(f"v_max3_f32 {MX}, {v(SG)}, {v(SG+1)}, {v(SG+2)}")
A(f"v_max_f32 {MX}, {MX}, {v(SG+3)}")
A(f"v_max_f32_dpp {TT}, {MX}, {MX} row_ror:8 row_mask:0xf bank_mask:0xf")
A(f"v_max_f32_dpp {MX}, {MX}, {MX} row_ror:8 row_mask:0xf bank_mask:0xf")
A(f"v_permlane16_swap_b32 {MX}, {TT}"); A(f"v_max_f32 {SC}, {MX}, {TT}"); A(f"v_max_f32 {MX}, {MX}, {TT}")
A(f"v_permlane32_swap_b32 {MX}, {SC}"); A(f"v_max_f32 {MX}, {MX}, {SC}")
for n, i in enumerate((0, 1, 2, 3, 8, 9)): A(f"v_sub_f32 {v(E+n)}, {v(SG+i)}, {MX}")
for n in range(6): A(f"v_exp_f32 {v(E+n)}, {v(E+n)}")
A(f"v_mul_f32 {LS}, {v(E)}, {v(SG+4)}")
for i in (1, 2, 3): A(f"v_fmac_f32 {LS}, {v(E+i)}, {v(SG+4+i)}")
A(f"v_add_f32_dpp {TT}, {LS}, {LS} row_ror:8 row_mask:0xf bank_mask:0xf")
A(f"v_add_f32_dpp {LS}, {LS}, {LS} row_ror:8 row_mask:0xf bank_mask:0xf")
A(f"v_permlane16_swap_b32 {LS}, {TT}"); A(f"v_add_f32 {SC}, {LS}, {TT}"); A(f"v_add_f32 {LS}, {LS}, {TT}")
A("L_exw:")
poll(op_load, [v(OG+i) for i in range(4)], primed=True, site='o')
stamp()
A(f"v_permlane32_swap_b32 {LS}, {SC}")
def unpack2(dst, src):
    for i in range(2):
        A(f"v_lshlrev_b32 {v(dst+2*i)}, 16, {v(src+i)}"); A(f"v_and_b32 {v(dst+2*i+1)}, 0xffff0000, {v(src+i)}")
unpack2(R, OG); unpack2(OG+4, OG+2)
for i in (0, 2): A(f"v_pk_mul_f32 {v(R+i,2)}, {v(R+i,2)}, {v(E+3,2)} op_sel:[0,1] op_sel_hi:[1,1]")
for i in (0, 2): A(f"v_pk_fma_f32 {v(R+i,2)}, {v(OG+4+i,2)}, {v(E+5,2)}, {v(R+i,2)} op_sel_hi:[1,0,1]")
A(f"v_add_f32 {LS}, {LS}, {SC}")
A(f"v_mov_b32 {v(E+2)}, {v(E+6)}")
A(f"v_permlane32_swap_b32 {v(R)}, {v(R+2)}")
A(f"v_permlane32_swap_b32 {v(R+1)}, {v(R+3)}")
A(f"v_add_f32 {v(R)}, {v(R)}, {v(R+2)}")
A(f"v_add_f32 {v(R+1)}, {v(R+1)}, {v(R+3)}")
A(f"v_rcp_f32 {LS}, {LS}")
A(f"v_permlane16_swap_b32 {v(R)}, {v(R+1)}")
A(f"v_add_f32 {v(R)}, {v(R)}, {v(R+1)}")
A(f"v_add_f32_dpp {v(R)}, {v(R)}, {v(R)} row_ror:8 row_mask:0xf bank_mask:0xf")
A(f"v_mul_f32 {v(R)}, {v(R)}, {LS}")
A(f"v_cvt_pk_bf16_f32 {TT}, {v(R)}, {v(R)}")
A(f"ds_write_b16 {vOTw}, {TT}")
A(f"s_cmp_lg_u32 {sL}, 0")
A("s_cbranch_scc1 L_o3")
pub(*[f"buffer_store_dwordx2 {v(EM,2)}, {vOPg}, {srd(rWS)}, {{so}} offen offset:{512*i}{{fl}}" for i in range(2)])
A("L_o3:")
A("s_waitcnt lgkmcnt(0)")
A("s_barrier")
for i in range(4): A(f"ds_read_b128 {v(AO+4*i,4)}, {vOTr} offset:{128*i}")
tile_out(aWO, aWOt, vYst, True)
stamp()

def reducer(kind):
    ld = [f"buffer_load_dwordx2 {v(YG+2*i,2)}, {vRg}, {srd(rWS)}, {sGp} offen offset:{512*i} sc1" for i in range(2)]
    A(f"s_movk_i32 {t4}, 0xff"); A(f"s_add_u32 {t3}, {sXPo}, 8192")
    zero(R)
    if kind == 'A': zero(YG+4, 2)
    if kind == 'A':
        if args.yd: A(f"s_sleep {args.yd}")
        poll(ld, [v(YG+i) for i in range(4)], site='y')
    else:
        poll(ld + ["s_mov_b64 exec, 0xffff", f"buffer_load_dwordx2 {v(YG+4,2)}, {vRg}, {srd(rWS)}, {sGp} offen offset:1024 sc1", "s_mov_b64 exec, -1"],
             [v(YG+i) for i in range(6)], site='y')
    stamp()
    A(f"v_smfmac_f32_16x16x64_bf16 {v(R,4)}, {v(YG+8,4)}, {v(YG,8)}, {vIdxS}")
    for i in range(4): A(f"v_add_f32_dpp {v(R+i)}, {v(R+i)}, {v(R+i)} row_ror:8 row_mask:0xf bank_mask:0xf")
    for i in range(4): A(f"v_bfi_b32 {v(R+i)}, {t4}, {vTag}, {v(R+i)}")
    A(f"buffer_store_dwordx4 {v(R,4)}, {vXPst}, {srd(rWS)}, {sXPo} offen sc1")
    if args.near: A(f"buffer_store_dwordx4 {v(R,4)}, {vXPst}, {srd(rWS)}, {t3} offen sc1")
    if kind == 'M':
        A(f"s_lshl_b32 {t0}, {sL}, 2"); A(f"s_andn2_b32 {t0}, {t0}, {sRole}")
        A("s_cbranch_scc1 L_fin")
    cl = [f"buffer_store_dwordx2 {v(EM,2)}, {vRg}, {srd(rWS)}, {{so}} offen offset:{512*i}{{fl}}" for i in range(2)]
    if kind == 'M': cl += ["s_mov_b64 exec, 0xffff", f"buffer_store_dwordx2 {v(EM,2)}, {vRg}, {srd(rWS)}, {{so}} offen offset:1024{{fl}}", "s_mov_b64 exec, -1"]
    pub(*cl)
    if args.pre:
        lb = A.newlabel('L_an')
        A(f"s_cmp_lg_u32 {sTask}, 0"); A(f"s_cbranch_scc1 {lb}")
        if kind == 'A': A(f"s_cmp_eq_u32 {sL}, 0"); A(f"s_cbranch_scc1 {lb}")
        A(f"v_mov_b32 {TT}, {AN_O + (0 if kind == 'M' else 4)}")
        A("s_mov_b64 exec, 1")
        pub(f"buffer_store_dword {vL16}, {TT}, {srd(rWS)}, {{so}} offen{{fl}}")
        A("s_mov_b64 exec, -1")
        A(f"{lb}:")
    if args.near:
        A(f"v_mov_b32 {TT}, 0")
        A(f"ds_read_b32 {TT}, {TT} offset:{L_NEAR}")
    if args.xd: A(f"s_sleep {args.xd}")
    if args.near:
        A("s_waitcnt lgkmcnt(0)")
        A(f"v_or_b32 {vXPg}, {vXPg}, {TT}")
    poll([f"buffer_load_dwordx2 {v(XG,2)}, {vXPg}, {srd(rWS)}, {sXPo} offen sc1",
          f"buffer_load_dwordx2 {v(XG+2,2)}, {vXPg}, {srd(rWS)}, {sXPo} offen offset:512 sc1"], None, site='x',
         chk=[f"v_xor_b32 {v(R+i)}, {vTag}, {v(XG+i)}" for i in range(4)] +
             [f"v_or3_b32 {CK}, {v(R)}, {v(R+1)}, {v(R+2)}", f"v_bitop3_b32 {CK}, {CK}, {v(R+3)}, {t4} bitop3:0xa8", f"v_cmp_ne_u32 vcc, 0, {CK}"])
    stamp()
    Y = v(R)
    A(f"v_add_f32 {v(R)}, {v(R)}, {v(R+2)}"); A(f"v_add_f32 {v(R+1)}, {v(R+1)}, {v(R+3)}")
    A(f"v_permlane32_swap_b32 {v(R)}, {v(R+1)}")
    A(f"v_add_f32 {TT}, {v(R)}, {v(R+1)}"); A(f"v_add_f32 {Y}, {v(R)}, {v(R+1)}")
    A(f"v_permlane16_swap_b32 {Y}, {TT}"); A(f"v_add_f32 {Y}, {Y}, {TT}")
    rbf(Y, Y)
    if kind == 'M':
        A(f"v_add_f32 {Y}, {Y}, {vB2}"); rbf(Y, Y)
    A(f"v_add_f32 {TT}, {Y}, {vXres}")
    A(f"v_add_f32 {v(R+1)}, {Y}, {vXres}")
    A(f"v_add_f32 {Y}, {Y}, {vXres}")
    A("s_mov_b64 exec, -1")
    A(f"v_permlane32_swap_b32 {TT}, {v(R+1)}")
    A(f"v_cvt_pk_bf16_f32 {TT}, {TT}, {v(R+1)}")
    A("s_mov_b64 exec, 0xffff")
    if kind == 'M':
        A(f"s_cmp_lg_u32 {sL}, 0")
        A("s_cbranch_scc1 L_out")
    pub(f"buffer_store_dword {TT}, {vZst}, {srd(rWS)}, {{so}} offen{{fl}}")
    A("s_mov_b64 exec, -1")
    stamp()
    rbf(vXres, Y)
    if kind == 'M' or args.ms != 'x':
        A(f"v_mul_f32 {TT}, {vXres}, {vXres}")
        A(f"v_cndmask_b32 {TT}, {vXres}, {TT}, {mROW}")
        for k in (8, 4, 2): A(f"v_add_f32_dpp {TT}, {TT}, {TT} row_ror:{k} row_mask:0xf bank_mask:0xf")
        A(f"v_add_f32_dpp {Y}, {TT}, {TT} row_ror:1 row_mask:0xf bank_mask:0xf")
        A(f"v_add_f32_dpp {TT}, {TT}, {TT} row_ror:1 row_mask:0xf bank_mask:0xf")
        A(f"v_permlane32_swap_b32 {TT}, {Y}")
        A(f"v_add_f32 {TT}, {TT}, {Y}")
        A("s_mov_b64 exec, 0x10001")
        pub(f"buffer_store_dword {TT}, {vZSst}, {srd(rWS)}, {{so}} offen{{fl}}")
        A("s_mov_b64 exec, -1")
    A(f"v_add_u32 {vZSst}, 512, {vZSst}")
    A(f"v_add_u32 {vZst}, 2304, {vZst}")
    A(f"s_add_u32 {sXPo}, {sXPo}, {XPS}")

A(f"s_bitcmp1_b32 {sRole}, 0")
A("s_cbranch_scc1 L_mlp")
A(f"s_bitcmp1_b32 {sRole}, 1")
A("s_cbranch_scc0 L_probe" if args.near else "s_cbranch_scc0 L_next")
A(f"s_cmp_lg_u32 {sL}, 0")
A("s_cbranch_scc1 L_red")
A(f"v_lshlrev_b32 {vXres}, 16, {vXres}"); A(f"v_lshlrev_b32 {vB2}, 16, {vB2}")
zero(YG+6, 2)
for i in range(4): A(f"v_mov_b32 {v(YG+8+i)}, 0x3f80")
A("L_red:")
k0 = nst[0]
reducer('A'); reducer('M')
kr = nst[0]
A("s_branch L_next")
A("L_mlp:")
nst[0] = k0
A(f"s_cmp_lg_u32 {sL}, 0")
A("s_cbranch_scc1 L_m1")
A(f"s_mul_i32 {t0}, {sX}, 18"); A(f"s_add_u32 {t0}, {t0}, {sJ}")
A(f"s_lshl_b32 {t2}, {t0}, 6")
A(f"buffer_load_ushort {vB1}, {vB1}, {srd(rT1)}, 0 offen{NT}")
A(f"s_cmp_ge_u32 {sJ}, 16")
A("s_cbranch_scc1 L_m0b")
if args.xt:
    A(f"s_lshl_b32 {t1}, {sJ}, 2"); A(f"s_add_u32 {t1}, {t1}, {sW}"); A(f"s_mul_i32 {t1}, {t1}, 36")
    A(f"v_add_u32 {TT}, {t1}, v0")
    A(f"v_lshrrev_b32 {LS}, 6, {TT}"); A(f"v_mul_u32_u24 {MX}, 43, {LS}"); A(f"v_lshrrev_b32 {MX}, 7, {MX}"); A(f"v_add_u32 {LS}, {LS}, {MX}")
    A(f"v_bfe_u32 {MX}, {TT}, 3, 3"); A(f"v_lshl_add_u32 {LS}, {LS}, 3, {MX}"); A(f"v_and_b32 {TT}, 7, {TT}"); A(f"v_lshlrev_b32 {TT}, 7, {TT}"); A(f"v_lshl_add_u32 {TT}, {LS}, 13, {TT}")
    A(f"s_lshl_b32 {t1}, {sX}, 10"); A(f"s_add_u32 {t1}, {t1}, {XP_O}")
    A(f"v_mov_b32 {LS}, 0")
    A("s_mov_b32 exec_hi, 15")
    A(f"buffer_atomic_or {LS}, {TT}, {srd(rWS)}, {t1} offen")
    A("s_mov_b32 exec_hi, -1")
if 's' not in args.early + args.mid: slots_touch()
A("L_m0b:")
def w1_real():
    lb = A.newlabel('L_w1')
    A(f"s_cmp_eq_u32 {sW}, 3")
    A(f"s_cbranch_scc1 {lb}")
    A(f"s_mul_i32 {t0}, {sW}, {192*9216}"); A(f"s_add_u32 {t0}, {t0}, {t2}")
    if args.w1dma:
        A(f"v_lshrrev_b32 {TT}, 2, v0"); A(f"v_mul_u32_u24 {TT}, 9216, {TT}"); A(f"v_and_b32 {LS}, 3, v0"); A(f"v_lshl_add_u32 {TT}, {LS}, 4, {TT}")
        A(f"s_mul_i32 {t1}, {sW}, 12288"); A(f"s_add_u32 {t1}, {t1}, {L_K}"); A(f"s_mov_b32 m0, {t1}")
        for i in range(12):
            A(f"buffer_load_dwordx4 {TT}, {srd(rW1)}, {t0} offen{NTM} lds")
            if i < 11: A(f"s_add_u32 {t0}, {t0}, {16*9216}"); A("s_add_u32 m0, m0, 1024")
        A(f"v_lshrrev_b32 {TT}, 4, v0"); A(f"v_lshlrev_b32 {TT}, 8, {TT}"); A(f"v_and_b32 {LS}, 15, v0"); A(f"v_lshl_add_u32 {TT}, {LS}, 2, {TT}"); A(f"v_add_u32 {TT}, {t1}, {TT}")
        A("s_waitcnt vmcnt(0)")
        for i in range(6):
            for hh in range(2):
                for p in range(2):
                    A(f"ds_read2_b32 {a(aW1+8*i+4*hh+2*p,2)}, {TT} offset0:{32*p} offset1:{32*p+16}")
                if (i, hh) != (5, 1): A(f"v_add_u32 {TT}, 1024, {TT}")
        A("s_waitcnt lgkmcnt(0)")
    else:
        A(f"v_lshrrev_b32 {TT}, 4, v0"); A(f"v_mul_u32_u24 {TT}, {4*9216}, {TT}"); A(f"v_and_b32 {LS}, 15, v0"); A(f"v_lshl_add_u32 {TT}, {LS}, 2, {TT}")
        prev = 0
        for i in range(6):
            for vv in range(8):
                row = 32*i + 16*(vv >> 2) + (vv & 3)
                if row != prev: A(f"s_add_u32 {t0}, {t0}, {(row-prev)*9216}")
                prev = row
                A(f"buffer_load_dword {a(aW1+8*i+vv)}, {TT}, {srd(rW1)}, {t0} offen{NTM}")
    A(f"{lb}:")
for c_ in args.mo:
    if c_ == 't':
        lb_ = A.newlabel('L_nt'); A(f"s_cmp_ge_u32 {sJ}, 16"); A(f"s_cbranch_scc1 {lb_}"); w1_touch(); A(f"{lb_}:")
    if c_ == '2': w2_loads()
    if c_ == 'r': w1_real()
    if c_ == 'w': A("s_waitcnt vmcnt(0)")
    if c_ == 'h': A("s_waitcnt vmcnt(6)")
    if c_ == 'g': A("s_waitcnt vmcnt(3)")
    if c_ == 'e': A("s_waitcnt vmcnt(8)")
A("L_m0c:")
if ST: A("s_memrealtime s[94:95]"); A("s_waitcnt vmcnt(0)"); A("s_memrealtime s[96:97]")
A("s_waitcnt vmcnt(0)")
A(f"v_lshlrev_b32 {vB1}, 16, {vB1}")
A("L_m1:")
zero(D0, 8)
c0 = -2 * 1.4426950408889634 * 0.7978845608028654
A(f"v_mov_b32 {v(E)}, {f32(c0)}")
A(f"v_add_u32 {v(E+2)}, {4*1152}, {vMst}")
A(f"s_mul_i32 {t0}, {sL}, {Z3_O-Z1_O}"); A(f"s_add_u32 {t0}, {t0}, {sGp}"); A(f"s_add_u32 {t0}, {t0}, {Z1_O}")
if args.pre:
    A(f"s_cmp_eq_u32 {sL}, 0"); A("s_cbranch_scc1 L_m1b")
    quiet_wait(AN_O + 4)
    A("L_m1b:")
A(f"s_lshl_b32 {t1}, {sL}, 10"); A(f"s_add_u32 {t1}, {t1}, {sGp}"); A(f"s_add_u32 {t1}, {t1}, {ZS_O}")
A(f"v_lshrrev_b32 {v(E+1)}, 5, v0"); A(f"v_lshlrev_b32 {v(E+1)}, 3, {v(E+1)}")
A(f"s_cmp_eq_u32 {sW}, 3")
A("s_cbranch_scc1 L_m2")
poll_proj(vXAm, t0, 6, aW1)
A("s_mov_b32 exec_hi, 0")
A(f"ds_write_b128 {vHPw}, {v(D0,4)}")
A("s_mov_b32 exec_hi, -1")
A("s_branch L_m2b")
A("L_m2:")
if args.ms == 'x':
    if 'nostat' not in args.exp:
        poll(xs_loads(rWS, t0, ' sc1'), [v(XS+i) for i in range(9)], site='z')
        stats_x()
    else: A(f"v_mov_b32 {S_}, 0"); A(f"v_mov_b32 {Q_}, 1.0")
else:
    poll(zs_load(vZSg, t1), [v(ZG), v(ZG+1)], site='z')
    A(f"v_mov_b32 {S_}, {v(ZG)}"); A(f"v_mov_b32 {Q_}, {v(ZG+1)}")
    stats_tail1(); stats_tail2()
A(f"ds_write_b64 {v(E+1)}, {v(TM,2)} offset:{L_STAT}")
A("L_m2b:")
stamp()
A("s_waitcnt lgkmcnt(0)")
A("s_barrier")
H = TM + 12
A(f"ds_read2_b32 {v(H,2)}, {vHPr} offset0:0 offset1:2")
A(f"ds_read2_b32 {v(H+2,2)}, {vHPr} offset0:128 offset1:130")
A(f"ds_read_b32 {v(H+4)}, {vHPr} offset:1024"); A(f"ds_read_b32 {v(H+5)}, {vHPr} offset:1032")
A(f"ds_read_b64 {v(TM,2)}, {v(E+1)} offset:{L_STAT}")
zero(D0)
A("s_waitcnt lgkmcnt(0)")
A(f"v_add_f32 {v(H)}, {v(H)}, {v(H+2)}"); A(f"v_add_f32 {v(H+1)}, {v(H+1)}, {v(H+3)}")
A(f"v_add_f32 {v(H)}, {v(H)}, {v(H+4)}"); A(f"v_add_f32 {v(H+1)}, {v(H+1)}, {v(H+5)}")
A(f"v_fma_f32 {v(H)}, -{S_}, {v(H+1)}, {v(H)}")
A(f"v_mul_f32 {v(H)}, {v(H)}, {Q_}")
rbf(v(H), v(H))
A(f"v_add_f32 {v(H)}, {v(H)}, {vB1}")
rbf(v(H), v(H))
A(f"v_mul_f32 {TT}, {v(H)}, {v(H)}")
A(f"v_fmac_f32 {v(E)}, {f32(c0*0.044715)}, {TT}")
A(f"v_mul_f32 {TT}, {v(E)}, {v(H)}")
A(f"v_exp_f32 {TT}, {TT}")
A(f"v_add_f32 {TT}, 1.0, {TT}")
A(f"v_rcp_f32 {TT}, {TT}")
A(f"v_mul_f32 {TT}, {TT}, {v(H)}")
A(f"v_cvt_pk_bf16_f32 {TT}, {TT}, 0")
A(f"ds_write2_b32 {vPTw}, {TT}, {TT} offset1:5")
for i in range(4): A(f"ds_read_b128 {v(AO+4*i,4)}, {vPTr} offset:{128*i}")
stamp()
tile_out(aW2, aW2t, vMst, False)
A("L_m4:")
stamp()
nst[0] = kr
A("L_next:")
A(f"s_cmp_lg_u32 {sL}, 0")
A("s_cbranch_scc1 L_fin")
if ST:
    A("s_waitcnt lgkmcnt(0)")
    for k in range(14): A(f"v_writelane_b32 {v(SV)}, s{72+2*k}, {1+k}")
    for k in range(14): A(f"s_mov_b64 s[{72+2*k}:{73+2*k}], 0")
A(f"s_mov_b32 {sL}, 1")
if args.dirty:
    A(f"s_cmp_ge_u32 {sJ}, 16"); A("s_cbranch_scc1 L_dd")
    A(f"s_lshl_b32 {t0}, s2, 2"); A(f"s_add_u32 {t0}, {t0}, {sW}"); A(f"s_lshl_b32 {t0}, {t0}, 14"); A(f"s_add_u32 {t0}, {t0}, 0x2000000")
    for i in range(args.dirty):
        A(f"buffer_store_dwordx4 {v(EM,4)}, {vL16}, {srd(rWS)}, {t0} offen"); A(f"s_add_u32 {t0}, {t0}, 1024")
    A("L_dd:")
A(f"s_add_u32 {sXoff}, {sGp}, {Z2_O}")
for r in (vSTst, vSTg, vSTm): A(f"v_add_u32 {r}, {ST1_O-ST_O}, {r}")
if args.qc:
    assert QP_O % 512 == 0
    for r in (vQPst, vQPg):
        A(f"v_bfe_u32 {TT}, {r}, 1, 8"); A(f"v_and_b32 {r}, 0xfffffe00, {r}"); A(f"v_add_u32 {r}, {r}, {TT}")
    A(f"v_add_u32 {vQPg2}, 4096, {vQPg}")
A("s_branch L_layer")
A("L_out:")
A(f"buffer_store_dword {TT}, {vZo}, {srd(rOUT)}, 0 offen")
A(f"s_mov_b32 {t0}, {EP_O}")
A("s_mov_b64 exec, 1")
A(f"buffer_store_dword {FN}, {vL16}, {srd(rWS)}, {t0} offen")
if ST: A(f"s_memrealtime s[{72+2*13}:{73+2*13}]")
A("L_fin:")
if args.wb:
    A(f"s_cmp_lg_u32 {sJ}, 18"); A("s_cbranch_scc1 L_wb")
    A(f"s_cmp_lg_u32 {sW}, 0"); A("s_cbranch_scc1 L_wb")
    A("buffer_wbl2 sc1")
    A("L_wb:")
if args.enc:
    j0, j1 = [int(x) for x in args.encj.split(',')]
    A("s_memrealtime s[66:67]")
    A("s_waitcnt lgkmcnt(0)")
    if args.enc <= 14: A(f"v_readlane_b32 {t0}, {v(SV)}, {args.enc}"); A("s_nop 3")
    else: A(f"s_mov_b32 {t0}, s{72+2*(args.enc-15)}")
    A(f"s_cmp_eq_u32 {t0}, 0"); A("s_cbranch_scc1 L_enc2")
    A(f"s_cmp_lt_u32 {sJ}, {j0}"); A("s_cbranch_scc1 L_enc2")
    A(f"s_cmp_ge_u32 {sJ}, {j1}"); A("s_cbranch_scc1 L_enc2")
    if args.encref == 0: A(f"s_mov_b32 {t1}, s100")
    elif args.encref <= 14: A(f"v_readlane_b32 {t1}, {v(SV)}, {args.encref}"); A("s_nop 3")
    else: A(f"s_mov_b32 {t1}, s{72+2*(args.encref-15)}")
    A(f"s_sub_u32 {t0}, {t0}, {t1}"); A(f"s_min_u32 {t0}, {t0}, 10000"); A(f"s_lshl_b32 {t0}, {t0}, {4 if args.encref else 3}"); A(f"s_add_u32 {t0}, {t0}, s66")
    A("L_enc:")
    A("s_sleep 8")
    A("s_memrealtime s[64:65]"); A("s_waitcnt lgkmcnt(0)")
    A(f"s_sub_u32 {t1}, s64, {t0}"); A(f"s_cmp_lt_i32 {t1}, 0"); A("s_cbranch_scc1 L_enc")
    A("L_enc2:")
if ST:
    A("s_mov_b64 exec, -1")
    A("s_waitcnt lgkmcnt(0)")
    A(f"v_writelane_b32 {v(SV)}, s100, 0")
    for k in range(14): A(f"v_writelane_b32 {v(SV)}, s{72+2*k}, {15+k}")
    A(f"s_lshl_b32 {t0}, s2, 2"); A(f"s_add_u32 {t0}, {t0}, {sW}"); A(f"s_lshl_b32 {t0}, {t0}, 8"); A(f"s_add_u32 {t0}, {t0}, {STAMP_O}")
    A(f"v_mov_b32 {v(SV+1)}, 0")
    A(f"v_lshlrev_b32 {v(SV+2)}, 3, v0")
    A("s_mov_b32 exec_hi, 0")
    A(f"buffer_store_dwordx2 {v(SV,2)}, {v(SV+2)}, {srd(rWS)}, {t0} offen")
A("L_end:")
A("s_endpgm")
if args.near:
    A("; ---- which copy of the cross-die inbox is closer to this die? (speed only, both are always written)")
    A("L_probe:")
    A(f"s_cmp_lt_u32 {sJ}, 20"); A("s_cbranch_scc1 L_next")
    A(f"s_cmp_lg_u32 {sL}, 0"); A("s_cbranch_scc1 L_next")
    A(f"s_sub_u32 {t0}, {sJ}, 20"); A(f"s_lshl_b32 {t0}, {t0}, 18"); A(f"s_lshl_b32 {t1}, {sX}, 10"); A(f"s_add_u32 {t0}, {t0}, {t1}"); A(f"s_add_u32 {t0}, {t0}, {XP_O + 3*65536}")
    A(f"s_add_u32 s4, s{rWS}, {t0}"); A(f"s_addc_u32 s5, s{rWS+1}, 0")
    A(f"s_mov_b32 {t2}, -1"); A(f"s_mov_b32 {t3}, -1"); A(f"s_mov_b32 {t4}, 3")
    A("L_pr1:")
    A("s_memtime s[6:7]"); A("s_waitcnt lgkmcnt(0)")
    A(f"s_load_dword {t5}, s[4:5], 0 glc"); A("s_waitcnt lgkmcnt(0)")
    A("s_memtime s[8:9]"); A("s_waitcnt lgkmcnt(0)")
    A(f"s_load_dword {t5}, s[4:5], 0x2000 glc"); A("s_waitcnt lgkmcnt(0)")
    A("s_memtime s[10:11]"); A("s_waitcnt lgkmcnt(0)")
    A(f"s_sub_u32 {t0}, s8, s6"); A(f"s_sub_u32 {t1}, s10, s8")
    A(f"s_min_u32 {t2}, {t2}, {t0}"); A(f"s_min_u32 {t3}, {t3}, {t1}")
    A(f"s_sub_u32 {t4}, {t4}, 1"); A(f"s_cmp_lg_u32 {t4}, 0"); A("s_cbranch_scc1 L_pr1")
    A(f"s_cmp_lt_u32 {t3}, {t2}"); A(f"s_cselect_b32 {t0}, 0x2000, 0")
    A(f"v_mov_b32 {TT}, 0"); A(f"v_mov_b32 {LS}, {t0}")
    A(f"ds_write_b32 {TT}, {LS} offset:{L_NEAR}")
    A("s_branch L_next")
A("L_af2:")
A(f"s_cmp_eq_u32 {sMode}, {FB_O}")
A("s_cbranch_scc1 L_g2")
A(f"s_add_u32 {sMode}, {sMode}, 1")
A(f"s_lshl_b32 {t2}, {sX}, 10"); A(f"s_add_u32 {t2}, {t2}, {FL_O}")
A(f"s_lshl_b32 {t4}, {sL}, 2"); A(f"s_add_u32 {t1}, {t4}, {t2}")
A(f"s_cmp_lt_u32 {sMode}, {1 if args.forcefb else 40}")
A("s_cbranch_scc1 L_af5")
A("s_mov_b64 exec, 1")
A(f"buffer_store_dword {FN}, {vL16}, {srd(rWS)}, {t1} offen sc1")
A("s_mov_b32 exec_lo, -1")
A(f"buffer_load_dwordx4 {v(FG,4)}, {vL16}, {srd(rWS)}, {t2} offen sc1")
A("s_mov_b32 exec_hi, -1")
A("s_waitcnt vmcnt(0)")
flags_diff()
A(f"v_and_b32 {TT}, 0x0fffffff, {CK}")
A(f"v_cmp_ne_u32 vcc, 0, {TT}")
A("s_cmp_lg_u32 vcc_lo, 0")
A("s_cbranch_scc1 L_af5")
A(f"v_cmp_ne_u32 vcc, 0, {CK}")
A("s_cmp_lg_u32 vcc_lo, 0")
if args.forcefb: A("s_cmp_eq_u32 0, 0")
A("s_cbranch_scc1 L_spread")
A("L_af5:")
A(f"s_sub_u32 {sTO}, {sTO}, 1")
A("s_cbranch_scc0 L_g4")
A(f"s_mov_b32 {sTO}, 0")
A(f"s_mov_b32 {sMode}, 0")
A("s_branch L_g2")
A("L_spread:")
A(f"s_mov_b32 {sMode}, {FB_O}")
A(f"s_add_u32 {sGp}, {sGf}, {FB_O}")
empty_share(sGp, ' sc1')
A("s_mov_b32 exec_hi, 0")
A(qp_store.format(so=sGp, fl=' sc1'))
A("s_waitcnt vmcnt(0)")
A("s_mov_b64 exec, 1")
A(f"buffer_store_dword {FN}, {vL16}, {srd(rWS)}, {t1} offen offset:512 sc1")
A("s_mov_b32 exec_lo, -1")
A("L_sp1:")
A("s_mov_b32 exec_hi, 0")
A(f"buffer_load_dwordx4 {v(FG,4)}, {vL16}, {srd(rWS)}, {t2} offen offset:512 sc1")
A("s_mov_b32 exec_hi, -1")
A("s_waitcnt vmcnt(0)")
flags_diff()
A(f"v_and_b32 {CK}, 0x0fffffff, {CK}")
A(f"v_cmp_ne_u32 vcc, 0, {CK}")
A("s_cmp_eq_u32 vcc_lo, 0")
A("s_cbranch_scc1 L_g4")
A("s_sleep 4")
A(timeout("L_sp1", "L_g4"))
for t in tail: A(t)
for t in tail_raw: A.lines += t
A.raw('L_codeend:')

A.raw('.section .rodata,"a"')
A.raw(".p2align 6")
A.raw(f".amdhsa_kernel {NAME}_kernel")
A.raw(f"  .amdhsa_next_free_vgpr {ACC+NACC}")
A.raw("  .amdhsa_next_free_sgpr 102")
A.raw(f"  .amdhsa_accum_offset {ACC}")
A.raw("  .amdhsa_group_segment_fixed_size 0")
A.raw("  .amdhsa_kernarg_size 104")
A.raw("  .amdhsa_user_sgpr_count 2")
A.raw("  .amdhsa_user_sgpr_kernarg_segment_ptr 1")
A.raw("  .amdhsa_system_sgpr_workgroup_id_x 1")
A.raw(".end_amdhsa_kernel")
txt = A.text()
if args.cyc: txt = txt.replace('s_memrealtime', 's_memtime')
sys.stdout.write(txt)
```

```python
import sys, argparse, struct
sys.path.insert(0, 'dev')
from asmlib import Asm
NAME = "interleave_layers__sliding_block_cached__dense_activation_gelu__decode"
ap = argparse.ArgumentParser()
ap.add_argument('--stamps', action='store_true')
ap.add_argument('--pro', action='store_true')
ap.add_argument('--cyc', action='store_true')
ap.add_argument('--xt', type=int, default=0)
ap.add_argument('--xd', type=int, default=11)
ap.add_argument('--enc', type=int, default=0)
ap.add_argument('--encref', type=int, default=0)
ap.add_argument('--encj', default='0,32')
ap.add_argument('--only', default='')
ap.add_argument('--pQ', type=int, default=4)
ap.add_argument('--xf', type=int, default=1)
ap.add_argument('--kw', type=int, default=1)
ap.add_argument('--code', type=int, default=3)
ap.add_argument('--early', default='0')
ap.add_argument('--mid', default='')
ap.add_argument('--w1dma', type=int, default=0)
ap.add_argument('--near', type=int, default=1)
ap.add_argument('--pd', default='s22,y22,o22')
ap.add_argument('--wb', type=int, default=0)
ap.add_argument('--dirty', type=int, default=0)
ap.add_argument('--pre', type=int, default=1)
ap.add_argument('--qd', type=int, default=0)
ap.add_argument('--zs', type=int, default=0)
ap.add_argument('--sd', type=int, default=0)
ap.add_argument('--yd', type=int, default=0)
ap.add_argument('--zd', type=int, default=0)
ap.add_argument('--qc', type=int, default=1)
ap.add_argument('--ms', default='x')
ap.add_argument('--exp', default='')
ap.add_argument('--tlb', type=int, default=0)
ap.add_argument('--hw', type=int, default=3)
ap.add_argument('--prew', type=int, default=0)
ap.add_argument('--pS', type=int, default=0)
ap.add_argument('--pC', type=int, default=9)
ap.add_argument('--lnf', type=int, default=2)
ap.add_argument('--wl', default='8,0,0')
ap.add_argument('--mo', default='t2hr')
ap.add_argument('--q2', type=int, default=0)
ap.add_argument('--kx', type=int, default=1)
ap.add_argument('--vw', type=int, default=1)
ap.add_argument('--di', type=int, default=1)
ap.add_argument('--dz', type=int, default=1)
ap.add_argument('--dxx', type=int, default=1)
ap.add_argument('--nt', default='k,v,2')
ap.add_argument('--forcefb', action='store_true')
args = ap.parse_args()
def ntf(c): return ' nt' if c in args.nt.split(',') else ''
NT = ntf('s'); NTK = ntf('k'); NTV = ntf('v'); NTQ = ntf('q'); NTO = ntf('o'); NTM = ntf('m'); NT2 = ntf('2'); NTT = ntf('t')
ST = args.stamps
PD = {x[0]: (int(x[1]), int(x[2:])) for x in args.pd.split(',') if x}

def f32(x): return '0x%08x' % struct.unpack('<I', struct.pack('<f', x))[0]

CLR = 944
OP_O = 0
Y_O = OP_O + 65536
ST_O = Y_O + 41472
ST1_O = ST_O + 2048
Z1_O = ST1_O + 2048
Z2_O = Z1_O + 2304
Z3_O = Z2_O + 2304
AN_O = Z3_O + 2304
ZS_O = AN_O + 128
assert ZS_O + 1536 <= 128 * CLR and (128 * CLR) % 128 == 0
QP_O = 128 * CLR
FF_O = QP_O + 65536
GB = FF_O + 1024
FB_O = 8 * GB
XP_O = 6 << 20
assert XP_O >= 16 * GB
XPS = 16384
FL_O = XP_O + 12 * 262144
EP_O = FL_O + 8 * 1024
STAMP_O = 0x8000000
L_NEAR = 8176
L_X = 640
L_QT, L_STAT, L_OT, L_PT, L_HP, L_K, L_WQ, L_SIZE = 0, 512, 1024, 2560, 8192, 16384, 49152, (86016 if args.q2 else 67584)

rK, rV, rWQ, rWO, rW1, rW2, rWS, rX, rOUT, rT1, rT2 = 4, 8, 12, 16, 20, 24, 28, 32, 36, 44, 48
sTask, kv0, kv1, sFlag = 's40', 's41', 's42', 's43'
def srd(n): return f"s[{n}:{n+3}]"
sW, sX, sJ, sGf, sGp, sXoff, sTO, sMode, sL, sWo = [f"s{i}" for i in range(52, 62)]
t0, t1, t2, t3, t4, t5 = [f"s{i}" for i in range(62, 68)]
mLO8 = "s[68:69]"; mROW = "s[70:71]"
MXA = "0x00330033"
sRole = "s3"
(vL4, vL16, vIdxD, vIdxP, vIdxS, vXAq, vXAm, vQPst, vQPg, vL128, vQTw, vQTr, vPTw, vPTr, vSTst, vOPst, vSTg, vOPg, vOTw, vOTr,
 vYst, vMst, vHPw, vSTm, vRg, vSTATr, vXPst, vXPg, vZst, vXres, vB2, vB1, vCq, vZo, vXS1, vXS2, vWrow, vHPr, vOnes) = [f"v{i}" for i in range(1, 40)]
XA, D0, D1, DP, AO, SG, YG, XG, XS, FG, TM, EM, KA, SV, OG, QG = 40, 64, 68, 72, 76, 104, 120, 132, 136, 148, 152, 176, 180, 184, 188, 196
vQPg2, vZSst, vZSg = 'v92', 'v93', 'v94'
ZG = 96; vLXr = 'v98'; KR = 100
ACC = 212
aWQ, aK, aV, aWO, aW1, aW2, aWOt, NACC = 0, 24, 56, 88, 120, 168, 200, 232
aWQ2 = aWO
aW2t = aW1
def v(n, k=1): return f"v{n}" if k == 1 else f"v[{n}:{n+k-1}]"
def a(n, k=1): return f"a{n}" if k == 1 else f"a[{n}:{n+k-1}]"
CK = v(TM + 23); FN = v(TM + 22); vTag = v(TM + 21); DUM = v(TM + 20)
sEp, sXPo = kv0, kv1

A = Asm()
tail = []
tail_raw = []
nst = [0]
def pstamp(k):
    if args.pro: A(f"s_memrealtime s[{72+2*k}:{73+2*k}]")
def stamp():
    if ST and not args.pro:
        k = nst[0]; nst[0] += 1
        assert k < 13
        if ONLY is None or k in ONLY: A(f"s_memrealtime s[{72+2*k}:{73+2*k}]")
ONLY = set(int(x) for x in args.only.split(',')) if args.only else None
def lg(n): return 0 if (ST and ONLY is None) else n
def exec_xa(): return [f"s_mov_b32 exec_lo, {MXA}", f"s_mov_b32 exec_hi, {MXA}"]

def check_text(regs):
    regs = list(regs); o = []
    if len(regs) == 1: cur = regs[0]
    else:
        take = regs[:3]; regs = regs[3:]
        o.append(f"v_max3_u32 {CK}, {take[0]}, {take[1]}, {take[2]}" if len(take) == 3 else f"v_max_u32 {CK}, {take[0]}, {take[1]}")
        while regs:
            take = regs[:2]; regs = regs[2:]
            o.append(f"v_max3_u32 {CK}, {CK}, {take[0]}, {take[1]}" if len(take) == 2 else f"v_max_u32 {CK}, {CK}, {take[0]}")
        cur = CK
    o.append(f"v_cmp_eq_u32 vcc, -1, {cur}")
    return o
def nvm(loads): return sum(1 for l in loads if l.startswith('buffer_'))
def timeout(again, ok): return f"s_sub_u32 {sTO}, {sTO}, 1\ns_cbranch_scc0 {again}\ns_mov_b32 {sTO}, 0\ns_waitcnt vmcnt(0) lgkmcnt(0)\ns_branch {ok}"

def poll(loads, regs, primed=False, extra_wait="", chk=None, site=''):
    lp = A.newlabel('L_poll'); to = A.newlabel('L_to'); ok = A.newlabel('L_ok')
    depth, gap = PD.get(site, (1, 0))
    ck = chk or check_text(regs)
    pre = []
    for d in range(depth - 1):
        pre += loads + ([f"s_sleep {gap}    ; two polls in flight, half a round trip apart"] if gap else [])
    loop = [f"{lp}:"] + loads + [f"s_sub_u32 {sTO}, {sTO}, 1", f"s_cbranch_scc1 {to}", f"s_waitcnt vmcnt({(depth-1)*nvm(loads)}){extra_wait}"] + ck + [f"s_cbranch_vccnz {lp}"]
    tmo = f"{to}:\ns_mov_b32 {sTO}, 0\ns_waitcnt vmcnt(0) lgkmcnt(0)\ns_branch {ok}"
    if primed:
        st = A.newlabel('L_more')
        A(f"s_waitcnt vmcnt(0){extra_wait}")
        for l in ck: A(l)
        A(f"s_cbranch_vccnz {st}")
        A(f"{ok}:")
        tail.append(f"{st}:\n" + "\n".join(pre + loop) + f"\ns_branch {ok}\n" + tmo)
        return
    for l in pre + loop: A(l)
    A(f"{ok}:")
    tail.append(tmo)

def sm(d, av, br, idx): A(f"v_smfmac_f32_16x16x64_bf16 {v(d,4)}, {v(av,4)}, {a(br,8)}, {idx}")
def xa_loads(rr, voff, so, n, fl, short_last=False):
    o = exec_xa()
    for i in range(n):
        if short_last and i == n - 1: o.append("s_mov_b64 exec, 0x33")
        o.append(f"buffer_load_dwordx4 {v(XA+4*i,4)}, {voff}, {srd(rr)}, {so} offen offset:{64*i}{fl}")
    return o + ["s_mov_b64 exec, -1"]
def poll_proj(voff, so, n, wbase, short_last=False, extra=[], wbase2=None):
    loads = extra[:-1] + xa_loads(rWS, voff, so, n, ' sc1', short_last)
    lds = [l for l in loads if l.startswith('buffer_')]
    lp = A.newlabel('L_poll'); rt = A.newlabel('L_retry'); ok = A.newlabel('L_ok'); gen = A.newlabel('L_nan')
    depth, gap = PD.get('p', (1, 0))
    for d in range(depth):
        if d: A(f"s_sleep {gap}")
        for l in loads: A(l)
    A(f"{lp}:")
    A(f"s_waitcnt vmcnt({(depth-1)*n})")
    for i in range(n):
        sm(D0, XA+4*i, wbase+8*i, vIdxD)
        if wbase2 is not None: sm(D1, XA+4*i, wbase2+8*i, vIdxD)
    for l in loads: A(l)
    A(f"v_cmp_u_f32 vcc, {v(D0)}, {v(D0+1)}")
    A(f"s_cbranch_vccnz {rt}")
    A(f"{ok}:")
    z = "\n".join(f"v_mov_b32 {v(D0+i)}, 0" for i in range(4 if wbase2 is None else 8))
    mm = "\n".join(f"v_smfmac_f32_16x16x64_bf16 {v(D0,4)}, {v(XA+4*i,4)}, {a(wbase+8*i,8)}, {vIdxD}" for i in range(n))
    if wbase2 is not None: mm += "\n" + "\n".join(f"v_smfmac_f32_16x16x64_bf16 {v(D1,4)}, {v(XA+4*i,4)}, {a(wbase2+8*i,8)}, {vIdxD}" for i in range(n))
    if args.zs: z += f"\ns_sleep {args.zs}"
    tail.append(f"{rt}:\n{z}\ns_sub_u32 {sTO}, {sTO}, 1\ns_cbranch_scc1 {gen}\ns_and_b32 {t5}, {sTO}, 15\ns_cbranch_scc1 {lp}\n" +
                "\n".join(check_text([v(XA+i) for i in range(4*n)])) + f"\ns_cbranch_vccnz {lp}\n{gen}:\ns_max_i32 {sTO}, {sTO}, 0\n{mm}\ns_nop 7\ns_branch {ok}")

def pub(*fmts):
    for f in fmts: A(f.format(so=sGf, fl=''))
    sl = A.newlabel('L_slow'); bk = A.newlabel('L_back')
    A(f"s_cmp_lg_u32 {sMode}, 0")
    A(f"s_cbranch_scc1 {sl}")
    A(f"{bk}:")
    tail.append(f"{sl}:\n" + "\n".join(f.format(so=sGp, fl=' sc1') for f in fmts) + f"\ns_nop 1\ns_branch {bk}")

def rbf(dst, src):
    A(f"v_cvt_pk_bf16_f32 {dst}, {src}, {src}")
    A(f"v_and_b32 {dst}, 0xffff0000, {dst}")
def treduce(r):
    A(f"v_permlane32_swap_b32 {v(r)}, {v(r+2)}")
    A(f"v_permlane32_swap_b32 {v(r+1)}, {v(r+3)}")
    A(f"v_add_f32 {v(r)}, {v(r)}, {v(r+2)}")
    A(f"v_add_f32 {v(r+1)}, {v(r+1)}, {v(r+3)}")
    A(f"v_permlane16_swap_b32 {v(r)}, {v(r+1)}")
    A(f"v_add_f32 {v(r)}, {v(r)}, {v(r+1)}")
    A(f"v_add_f32_dpp {v(r)}, {v(r)}, {v(r)} row_ror:8 row_mask:0xf bank_mask:0xf")
S_, Q_ = v(TM), v(TM+1)
def stats_tail1():
    S, Q = S_, Q_
    A(f"v_permlane16_swap_b32 {S}, {Q}")
    A(f"v_add_f32 {S}, {S}, {Q}")
    for k in (8, 4, 2, 1):
        A(f"v_add_f32_dpp {S}, {S}, {S} row_ror:{k} row_mask:0xf bank_mask:0xf")
    A(f"v_mul_f32 {Q}, {f32(1/576)}, {S}")
    A(f"v_mul_f32 {S}, {f32(1/576)}, {S}")
def stats_tail2():
    S, Q = S_, Q_
    A(f"v_permlane16_swap_b32 {S}, {Q}")
    A(f"v_fma_f32 {Q}, -{S}, {S}, {Q}")
    A(f"v_max_f32 {Q}, 0, {Q}")
    A(f"v_cvt_pk_bf16_f32 {Q}, {S}, {Q}")
    A(f"v_lshlrev_b32 {S}, 16, {Q}")
    A(f"v_and_b32 {Q}, 0xffff0000, {Q}")
    A(f"v_add_f32 {Q}, {f32(1e-5)}, {Q}")
    rbf(Q, Q)
    A(f"v_sqrt_f32 {Q}, {Q}")
    rbf(Q, Q)
    A(f"v_rcp_f32 {Q}, {Q}")
def stats_x():
    A(f"v_mov_b32 {S_}, 0"); A(f"v_mov_b32 {Q_}, 0")
    for i in range(9):
        A(f"v_dot2c_f32_bf16 {S_}, {v(XS+i)}, {vOnes}")
        A(f"v_dot2c_f32_bf16 {Q_}, {v(XS+i)}, {v(XS+i)}")
    stats_tail1(); stats_tail2()
def zs_load(voff, so):
    return ["s_mov_b32 exec_lo, 0x3ffff", "s_mov_b32 exec_hi, 0x3ffff", f"buffer_load_dwordx2 {v(ZG,2)}, {voff}, {srd(rWS)}, {so} offen sc1", "s_mov_b64 exec, -1"]
def zero(r, n=4):
    for i in range(n): A(f"v_mov_b32 {v(r+i)}, 0")
def xs_loads(rr, so, fl):
    return [f"buffer_load_dwordx4 {v(XS,4)}, {vXS1}, {srd(rr)}, {so} offen{fl}",
            f"buffer_load_dwordx4 {v(XS+4,4)}, {vXS1}, {srd(rr)}, {so} offen offset:512{fl}",
            f"buffer_load_dword {v(XS+8)}, {vXS2}, {srd(rr)}, {so} offen offset:1024{fl}"]

for l in """; Two decoder layers (attention + GELU MLP) for batch 2 in ONE persistent launch: 256 workgroups (one per CU) x 4 waves.
; All weights and the K/V window are read from memory once and stay in registers for both layers.
; Workgroup id = [kvhl 1][b 1][s 3][x 3]; the 32 workgroups with equal x form a group (j = id >> 3).
;   every workgroup : q projection tile (72 rows x 128 columns), scores/softmax/P.V for 128 keys and 2 heads
;   j >= 16         : merges the split-softmax partials (true running max) and applies a 32-row tile of wo
;   j <  18         : 32 hidden units of the MLP (w1 columns, GELU, w2 rows)
;   j >= 20, w < 3  : sums partial rows inside the group, exchanges them between the groups, adds the residual
; Matrix-vector products run on v_smfmac (the activation is the sparse operand, raw weight rows are the dense one).
; Hand-offs are self-validating data in d_ws: slots are marked empty (0xFFFFFFFF) by this launch, or carry a tag derived
; from an epoch word in d_ws that only serves to tell this launch's hand-offs from an earlier launch's.
; Inside a group, plain stores + L2 are used only after the group has verified at run time (die id in its flags) that all
; its members sit on one die; otherwise a second copy of the slots is used with write-through stores. All polls are bounded.
; Generated by a script of the author (no compiler output).""".split("\n"): A.raw(l)
A.raw(f"; @launch grid=(256,1,1) block=(256,1,1) lds={L_SIZE}")
A.raw('.amdgcn_target "amdgcn-amd-amdhsa--gfx950"')
A.raw(".text")
A.raw(f".globl {NAME}_kernel")
A.raw(".p2align 8")
A.raw(f".type {NAME}_kernel,@function")
A.raw(f"{NAME}_kernel:")
if ST:
    A("s_memrealtime s[100:101]")
    if args.pro:
        for k in range(1, 14): A(f"s_mov_b32 s{72+2*k}, 0")
for r, off in ((rWQ, 24), (rK, 8), (rWS, 96), (rX, 0), (rV, 16), (rWO, 32)):
    A(f"s_load_dwordx2 s[{r}:{r+1}], s[0:1], {off}")
if args.code >= 2:
    A(f"s_cmp_ge_u32 s2, {8*(args.code-1)}"); A("s_cbranch_scc1 L_nc")
    A("s_getpc_b64 s[66:67]")
    A("L_pc:")
    A(f"v_lshlrev_b32 {v(TM+8)}, 7, v0")
    A(f"v_min_u32 {v(TM+8)}, L_codeend-L_pc-4, {v(TM+8)}")
    A(f"global_load_dword {DUM}, {v(TM+8)}, s[66:67]")
    A("L_nc:")
A("s_cmp_ge_u32 s2, 256")
A("s_cbranch_scc1 L_end")
G, C, B2 = v(TM+3), v(TM+4), v(TM+5)
def size(r, n): A(f"s_mov_b32 s{r+2}, {n}"); A(f"s_mov_b32 s{r+3}, 0x20000")
A(f"v_readfirstlane_b32 {sW}, v0")
A(f"v_lshrrev_b32 {v(TM+6)}, 4, v0")
A(f"v_and_b32 {C}, 15, v0")
A(f"v_lshlrev_b32 {v(TM+6)}, 13, {v(TM+6)}")
A(f"v_lshl_add_u32 {v(TM+6)}, {C}, 4, {v(TM+6)}")
size(rWQ, 4718592)
A(f"s_and_b32 {sX}, s2, 7")
A(f"s_bfe_u32 {t2}, s2, 0x30003")
A(f"s_lshr_b32 {t3}, s2, 6"); A(f"s_lshl2_add_u32 {t0}, {sX}, {t3}"); A(f"s_lshl_b32 {t3}, {t0}, 8")
A(f"s_mul_i32 {sXoff}, {t2}, {72*8192}"); A(f"s_add_u32 {sXoff}, {sXoff}, {t3}")
A(f"s_lshl4_add_u32 m0, {sW}, {L_WQ}")
def setup_k():
    A(f"v_and_b32 v0, 63, v0")
    A(f"v_lshrrev_b32 {G}, 4, v0")
    A(f"s_and_b32 {t1}, {t0}, 1"); A(f"s_lshr_b32 {t0}, {t0}, 1")
    A(f"s_lshl4_add_u32 {kv0}, {t1}, {t0}"); A(f"s_lshl_b32 {kv0}, {kv0}, 5"); A(f"s_add_u32 {kv0}, {kv0}, {t2}"); A(f"s_lshl_b32 {kv0}, {kv0}, 8")
    A(f"s_add_u32 {kv0}, {kv0}, {sW}"); A(f"s_lshl_b32 {kv0}, {kv0}, 7"); A(f"s_add_u32 {kv0}, {kv0}, {3072*256}"); A(f"s_add_u32 {kv1}, {kv0}, 4096")
    size(rK, 33554432)
    A(f"v_xor_b32 {v(TM+7)}, {C}, {G}")
    A(f"v_lshlrev_b32 {v(TM+7)}, 4, {v(TM+7)}")
    A(f"v_lshl_add_u32 {v(KA)}, {G}, 8, {v(TM+7)}")
    for i in range(1, 4): A(f"v_xor_b32 {v(KA+i)}, {64*i}, {v(KA)}")
    A(f"s_lshr_b32 {sW}, {sW}, 6")
def setup_ws():
    size(rWS, 268435456); size(rX, 2304)
    A(f"s_lshr_b32 {sJ}, s2, 3")
    A(f"v_lshlrev_b32 {vL16}, 4, v0")
    for i in range(4): A(f"v_mov_b32 {v(EM+i)}, -1")
    A(f"s_mul_i32 {sGf}, {sX}, {GB}")
    A(f"s_lshl2_add_u32 {sL}, {sJ}, {sW}")
def setup_rest():
    size(rWO, 4718592)
    A("s_mov_b32 s68, 0x00ff00ff"); A("s_mov_b32 s69, 0x00ff00ff")
    A(f"v_lshlrev_b32 {vL128}, 7, v0")
    A(f"v_bfe_u32 {B2}, v0, 2, 1")
    A(f"v_mul_u32_u24 {vXAm}, 1152, {B2}")
    A(f"v_lshl_add_u32 {vXAm}, {G}, 4, {vXAm}")
    A(f"s_mul_i32 {t4}, {t2}, 144")
    A(f"v_add_u32 {vXAq}, {t4}, {vXAm}")
    for i in range(12): A(f"v_mov_b32 {v(XA+i)}, 0x3f803f80")
    A(f"s_lshl_b32 {t4}, {sL}, 9"); A(f"s_add_u32 {t4}, {t4}, {QP_O}")
    A(f"v_add_u32 {vQPst}, {t4}, {vL16}")
    if args.q2:
        A(f"v_lshrrev_b32 {v(TM+8)}, 5, v0"); A(f"v_mul_u32_u24 {v(TM+8)}, {32768-512}, {v(TM+8)}"); A(f"v_add_u32 {vQPst}, {vQPst}, {v(TM+8)}")
def constants():
    A(f"v_mul_u32_u24 {vWrow}, 1152, {G}")
    A(f"v_lshl_add_u32 {vWrow}, {C}, 4, {vWrow}")
    A(f"s_cmp_lt_u32 {sJ}, 18"); A(f"s_cselect_b32 {sRole}, 1, 0")
    A(f"s_cmp_ge_u32 {sJ}, 20"); A(f"s_cselect_b32 {t4}, 2, 0"); A(f"s_cmp_lt_u32 {sW}, 3"); A(f"s_cselect_b32 {t4}, {t4}, 0"); A(f"s_or_b32 {sRole}, {sRole}, {t4}")
    A(f"s_sub_u32 {sTask}, {sJ}, 20"); A(f"s_mul_i32 {sTask}, {sTask}, 3"); A(f"s_add_u32 {sTask}, {sTask}, {sW}"); A(f"s_min_u32 {sTask}, {sTask}, 35")
    A(f"s_lshl_b32 {t3}, {sX}, 4"); A(f"s_and_b32 {t4}, {sJ}, 15"); A(f"s_add_u32 {sWo}, {t3}, {t4}"); A(f"s_mul_i32 {sWo}, {sWo}, {32*1152}")
    A(f"s_lshl_b32 {t4}, {sW}, 8"); A(f"s_add_u32 {sWo}, {sWo}, {t4}")
    for r, n in ((rW1, 5308416), (rW2, 5308416), (rOUT, 2304), (rT1, 9216), (rT2, 1152)):
        A(f"s_mov_b32 s{r+2}, {n}"); A(f"s_mov_b32 s{r+3}, 0x20000")
    A("s_mov_b32 s70, 0xffff0000"); A("s_mov_b32 s71, 0xffff0000")
    A(f"v_lshlrev_b32 {vL4}, 2, v0")
    for i in range(12, 24): A(f"v_mov_b32 {v(XA+i)}, 0x3f803f80")
    A(f"s_lshl_b32 {t4}, {sW}, 13"); A(f"s_add_u32 {t4}, {t4}, {L_K}")
    A(f"v_lshl_add_u32 {v(KR)}, {C}, 8, {v(TM+7)}"); A(f"v_add_u32 {v(KR)}, {t4}, {v(KR)}")
    for i in range(1, 4): A(f"v_xor_b32 {v(KR+i)}, {64*i}, {v(KR)}")
    T_ = [v(TM+8+i) for i in range(10)]
    A(f"v_and_b32 {T_[0]}, 1, v0")
    A(f"v_mul_u32_u24 {vIdxP}, 0xaaaa, {T_[0]}"); A(f"v_add_u32 {vIdxP}, 0x4444, {vIdxP}")
    A(f"v_and_b32 {T_[1]}, 3, v0")
    A(f"v_mul_u32_u24 {vIdxS}, 0x5555, {T_[1]}")
    A(f"v_bfe_u32 {T_[2]}, v0, 4, 1")
    A(f"v_bfe_u32 {T_[3]}, v0, 2, 2")
    A(f"v_bfe_u32 {T_[4]}, v0, 3, 1")
    A(f"v_lshrrev_b32 {T_[5]}, 5, v0")
    A(f"v_and_b32 {T_[8]}, 7, v0")
    A(f"v_and_b32 {T_[9]}, 31, v0")
    A(f"s_lshr_b32 {t3}, {sJ}, 4")
    A(f"s_lshr_b32 {t5}, {sJ}, 3")
    A(f"s_lshl_b32 {t3}, {t3}, 1"); A(f"s_lshr_b32 {t4}, {sW}, 1"); A(f"s_add_u32 {t3}, {t3}, {t4}"); A(f"s_lshl_b32 {t3}, {t3}, 14")
    A(f"s_and_b32 {t4}, {sW}, 1"); A(f"s_lshl_b32 {t4}, {t4}, 10"); A(f"s_add_u32 {t3}, {t3}, {t4}")
    A(f"s_lshl_b32 {t4}, {t1}, 8"); A(f"s_add_u32 {t3}, {t3}, {t4}"); A(f"s_add_u32 {t3}, {t3}, {QP_O}")
    A(f"v_lshl_add_u32 {vQPg}, {T_[5]}, 4, {T_[2]}"); A(f"v_lshlrev_b32 {vQPg}, 9, {vQPg}"); A(f"v_lshl_add_u32 {vQPg}, {C}, 4, {vQPg}"); A(f"v_add_u32 {vQPg}, {t3}, {vQPg}")
    A(f"v_add_u32 {vQPg2}, 4096, {vQPg}")
    A(f"s_and_b32 {t3}, {sW}, 1"); A(f"s_lshl_b32 {t3}, {t3}, 8"); A(f"s_lshr_b32 {t4}, {sW}, 1"); A(f"s_lshl_b32 {t4}, {t4}, 7"); A(f"s_add_u32 {t3}, {t3}, {t4}")
    A(f"v_bfe_u32 {T_[6]}, v0, 3, 2"); A(f"v_bfe_u32 {T_[7]}, v0, 1, 2")
    A(f"v_lshlrev_b32 {vQTw}, 5, {T_[6]}"); A(f"v_lshl_add_u32 {vQTw}, {T_[0]}, 4, {vQTw}"); A(f"v_lshl_add_u32 {vQTw}, {T_[7]}, 2, {vQTw}")
    A(f"v_lshl_add_u32 {vQTw}, {T_[5]}, 1, {vQTw}"); A(f"v_add_u32 {vQTw}, {t3}, {vQTw}")
    A(f"v_lshlrev_b32 {vQTr}, 5, {G}"); A(f"v_lshl_add_u32 {vQTr}, {T_[4]}, 7, {vQTr}"); A(f"v_lshl_add_u32 {vQTr}, {T_[0]}, 4, {vQTr}")
    A(f"v_mul_u32_u24 {vOTr}, 640, {T_[4]}"); A(f"v_lshl_add_u32 {vOTr}, {G}, 5, {vOTr}"); A(f"v_lshl_add_u32 {vOTr}, {B2}, 4, {vOTr}")
    A(f"s_mul_i32 {t3}, {sW}, 1280"); A(f"s_add_u32 {t3}, {t3}, {L_PT}")
    A(f"v_add_u32 {vPTr}, {t3}, {vOTr}"); A(f"v_add_u32 {vOTr}, {L_OT}, {vOTr}")
    A(f"v_bfe_u32 {T_[6]}, v0, 1, 4")
    A(f"v_mul_u32_u24 {vPTw}, 640, {T_[5]}"); A(f"v_lshl_add_u32 {vPTw}, {T_[6]}, 5, {vPTw}"); A(f"v_lshl_add_u32 {vPTw}, {T_[0]}, 3, {vPTw}"); A(f"v_add_u32 {vPTw}, {t3}, {vPTw}")
    A(f"v_lshrrev_b32 {vHPr}, 1, v0"); A(f"v_lshlrev_b32 {vHPr}, 4, {vHPr}"); A(f"v_lshl_add_u32 {vHPr}, {T_[0]}, 2, {vHPr}"); A(f"v_add_u32 {vHPr}, {L_HP}, {vHPr}")
    A(f"s_lshl_b32 {t3}, {sW}, 9"); A(f"s_add_u32 {t3}, {t3}, {L_HP}"); A(f"v_add_u32 {vHPw}, {t3}, {vL16}")
    A(f"s_lshl_b32 {t3}, {t5}, 9"); A(f"s_add_u32 {t3}, {t3}, {ST_O}")
    A(f"s_lshl_b32 {t4}, {t2}, 2"); A(f"s_add_u32 {t4}, {t4}, {sW}"); A(f"s_lshl_b32 {t4}, {t4}, 2"); A(f"s_add_u32 {t4}, {t4}, {t3}")
    A(f"v_lshlrev_b32 {vSTst}, 8, {T_[5]}"); A(f"v_lshl_add_u32 {vSTst}, {T_[0]}, 7, {vSTst}"); A(f"v_add_u32 {vSTst}, {t4}, {vSTst}")
    A(f"s_lshl_b32 {t3}, {t1}, 1"); A(f"s_lshr_b32 {t4}, {sW}, 1"); A(f"s_add_u32 {t3}, {t3}, {t4}"); A(f"s_lshl_b32 {t3}, {t3}, 9"); A(f"s_add_u32 {t3}, {t3}, {ST_O}")
    A(f"s_lshr_b32 {t4}, {t2}, 2"); A(f"s_lshl_b32 {t4}, {t4}, 8"); A(f"s_add_u32 {t3}, {t3}, {t4}")
    A(f"v_lshrrev_b32 {T_[7]}, 3, v0")
    A(f"v_lshl_add_u32 {vSTg}, {T_[7]}, 4, {t3}")
    A(f"s_and_b32 {t4}, {sW}, 1"); A(f"s_lshl_b32 {t4}, {t4}, 3"); A(f"v_add_u32 {vSTm}, {t4}, {vSTg}")
    A(f"s_lshr_b32 {t3}, {sJ}, 4"); A(f"s_lshl_b32 {t3}, {t3}, 15"); A(f"s_lshl_b32 {t4}, {t1}, 11"); A(f"s_add_u32 {t3}, {t3}, {t4}")
    A(f"s_lshl_b32 {t4}, {sW}, 9"); A(f"s_add_u32 {t3}, {t3}, {t4}"); A(f"s_lshl_b32 {t4}, {t2}, 6"); A(f"s_add_u32 {t3}, {t3}, {t4}")
    A(f"v_lshlrev_b32 {T_[6]}, 4, {T_[1]}"); A(f"v_lshl_add_u32 {T_[6]}, {T_[2]}, 3, {T_[6]}")
    A(f"v_lshl_add_u32 {vOPst}, {T_[5]}, 2, {T_[3]}"); A(f"v_lshl_add_u32 {vOPst}, {vOPst}, 12, {T_[6]}"); A(f"v_add_u32 {vOPst}, {t3}, {vOPst}")
    A(f"s_and_b32 {t3}, {sJ}, 15"); A(f"s_lshl_b32 {t3}, {t3}, 12"); A(f"s_lshl_b32 {t4}, {sW}, 10"); A(f"s_add_u32 {t3}, {t3}, {t4}"); A(f"v_lshl_add_u32 {vOPg}, v0, 3, {t3}")
    A(f"s_lshr_b32 {t3}, {sW}, 1"); A(f"s_mul_i32 {t3}, {t3}, 640"); A(f"s_and_b32 {t4}, {sW}, 1"); A(f"s_lshl_b32 {t4}, {t4}, 1"); A(f"s_add_u32 {t3}, {t3}, {t4}"); A(f"s_add_u32 {t3}, {t3}, {L_OT}")
    A(f"v_mul_u32_u24 {vOTw}, 20, {T_[4]}"); A(f"v_lshl_add_u32 {vOTw}, {T_[8]}, 6, {vOTw}"); A(f"v_lshl_add_u32 {vOTw}, {T_[5]}, 5, {vOTw}")
    A(f"v_lshl_add_u32 {vOTw}, {T_[2]}, 3, {vOTw}"); A(f"v_add_u32 {vOTw}, {t3}, {vOTw}")
    A(f"s_mul_i32 {t3}, {sW}, {4*1152}"); A(f"s_lshl_b32 {t4}, {sJ}, 6"); A(f"s_add_u32 {t3}, {t3}, {t4}"); A(f"s_add_u32 {t3}, {t3}, {Y_O}")
    A(f"v_mul_u32_u24 {vMst}, 18, {T_[5]}"); A(f"v_add_u32 {vMst}, {vMst}, {T_[3]}"); A(f"v_mul_u32_u24 {vMst}, 1152, {vMst}")
    A(f"v_add3_u32 {vMst}, {vMst}, {T_[6]}, {t3}")
    A(f"v_subrev_u32 {vYst}, 1024, {vMst}")
    A(f"v_lshlrev_b32 {vZSg}, 3, v0")
    A(f"s_lshl_b32 {t3}, {t1}, 8"); A(f"s_add_u32 {t3}, {t3}, {ZS_O+512}"); A(f"v_lshl_add_u32 {vSTATr}, {T_[9]}, 3, {t3}")
    zero(ZG, 2)
    A(f"v_mul_u32_u24 {vXS1}, 1152, {T_[5]}"); A(f"v_lshl_add_u32 {vXS2}, {T_[9]}, 2, {vXS1}"); A(f"v_lshl_add_u32 {vXS1}, {T_[9]}, 4, {vXS1}")
    A(f"s_mul_i32 {t4}, {sW}, 384"); A(f"v_add_u32 {vXAm}, {t4}, {vXAm}")
    A(f"s_mul_i32 {t4}, {sX}, 18"); A(f"s_add_u32 {t4}, {t4}, {sJ}"); A(f"s_lshl_b32 {t5}, {t4}, 6")
    A(f"v_lshl_add_u32 {vB1}, {T_[9]}, 1, {t5}")
    A(f"s_mul_i32 {t4}, {sTask}, 1152"); A(f"s_add_u32 {t4}, {t4}, {Y_O}"); A(f"v_lshl_add_u32 {vRg}, v0, 3, {t4}")
    A(f"s_sub_u32 {t4}, {sL}, 80"); A(f"s_and_b32 {t4}, {t4}, 63"); A(f"s_lshl_b32 {t4}, {t4}, 16")
    A(f"s_lshl_b32 {t5}, {sX}, 10"); A(f"s_add_u32 {t5}, {t5}, {t4}"); A(f"v_lshl_add_u32 {vXPg}, v0, 3, {t5}")
    A(f"s_lshl_b32 {t5}, {sX}, 7"); A(f"s_add_u32 {t4}, {t4}, {t5}"); A(f"v_lshl_add_u32 {vXPst}, {T_[8]}, 4, {t4}")
    A(f"v_lshrrev_b32 {T_[7]}, 3, v0"); A(f"v_lshl_add_u32 {vXPst}, {T_[7]}, 10, {vXPst}")
    A(f"v_lshl_add_u32 {T_[7]}, {C}, 1, {T_[5]}")
    A(f"s_lshl_b32 {t4}, {sTask}, 6"); A(f"v_lshl_add_u32 {vZo}, {T_[7]}, 1, {t4}")
    A(f"v_add_u32 {vZst}, {Z1_O}, {vZo}")
    A(f"s_and_b32 {t5}, {sTask}, 7"); A(f"s_cmp_eq_u32 {t5}, {sX}"); A(f"s_cselect_b32 {t5}, 4, 0"); A(f"s_or_b32 {sRole}, {sRole}, {t5}")
    A(f"s_cmp_ge_u32 {sTask}, 18"); A(f"s_cselect_b32 {t5}, 1152, 0")
    A(f"v_subrev_u32 {vB2}, {t5}, {vZo}")
    A(f"s_cselect_b32 {t5}, {256-18*8}, 0"); A(f"s_lshl_b32 {t4}, {sTask}, 3"); A(f"s_add_u32 {t4}, {t4}, {t5}"); A(f"s_add_u32 {t4}, {t4}, {ZS_O}")
    A(f"v_lshl_add_u32 {vZSst}, {T_[2]}, 2, {t4}")

def constants1():
    A(f"v_and_b32 {v(TM+8)}, 1, v0")
    A(f"v_mul_u32_u24 {vIdxD}, 0x5555, {v(TM+8)}"); A(f"v_add_u32 {vIdxD}, 0x8888, {vIdxD}")
    A(f"v_mov_b32 {vOnes}, 0x3f803f80")
    A(f"s_lshl_b32 {t3}, {sW}, 6"); A(f"s_add_u32 {t3}, {t3}, {L_WQ}")
    A(f"v_lshlrev_b32 {vCq}, 10, {G}"); A(f"v_lshl_add_u32 {vCq}, {C}, 2, {vCq}"); A(f"v_add_u32 {vCq}, {t3}, {vCq}")
    for i in range(16, 24): A(f"v_accvgpr_write_b32 {a(aWQ+i)}, 0")
    if args.q2:
        for i in range(16, 24): A(f"v_accvgpr_write_b32 {a(aWQ2+i)}, 0")
    zero(D0, 8)
    A(f"v_mul_u32_u24 {vLXr}, 144, {B2}"); A(f"v_lshl_add_u32 {vLXr}, {G}, 4, {vLXr}")
    A(f"s_lshl_b32 {t3}, {sW}, 11"); A(f"v_add_u32 {v(TM+8)}, {t3}, {vL16}")
    A(f"ds_write_b128 {v(TM+8)}, {v(D1,4)} offset:1024"); A(f"ds_write_b128 {v(TM+8)}, {v(D1,4)} offset:2048")
    A(f"s_mov_b32 {sTO}, 0x400000"); A(f"s_mov_b32 {sMode}, 0"); A(f"s_mov_b32 {sGp}, {sGf}")
def ln0(n_after):
    if args.q2: A(f"s_and_b32 {t5}, {sL}, 0x43"); A(f"s_cmp_lg_u32 {t5}, 3")
    else: A(f"s_cmp_lg_u32 {sW}, 3")
    A("s_cbranch_scc1 L_c1")
    A(f"s_waitcnt vmcnt({n_after})")
    stats_x()
    for i in range(2):
        lo, hi = v(TM+8), v(TM+9)
        A(f"v_lshlrev_b32 {lo}, 16, {v(XG+i)}"); A(f"v_and_b32 {hi}, 0xffff0000, {v(XG+i)}")
        A(f"v_sub_f32 {lo}, {lo}, {S_}"); A(f"v_sub_f32 {hi}, {hi}, {S_}")
        A(f"v_cvt_pk_bf16_f32 {v(XG+i)}, {lo}, {hi}")
        A(f"v_lshlrev_b32 {lo}, 16, {v(XG+i)}"); A(f"v_and_b32 {hi}, 0xffff0000, {v(XG+i)}")
        A(f"v_mul_f32 {lo}, {lo}, {Q_}"); A(f"v_mul_f32 {hi}, {hi}, {Q_}")
        A(f"v_cvt_pk_bf16_f32 {v(XG+i)}, {lo}, {hi}")
    A(f"v_lshrrev_b32 {v(TM+8)}, 5, v0"); A(f"v_mul_u32_u24 {v(TM+8)}, 144, {v(TM+8)}"); A(f"v_and_b32 {v(TM+9)}, 31, v0"); A(f"v_lshl_add_u32 {v(TM+8)}, {v(TM+9)}, 3, {v(TM+8)}")
    A("s_mov_b32 exec_lo, 0x3ffff"); A("s_mov_b32 exec_hi, 0x3ffff")
    A(f"ds_write_b64 {v(TM+8)}, {v(XG,2)} offset:{L_X}")
    A("s_mov_b64 exec, -1")
    A("L_c1:")

fl_load = ["s_mov_b32 exec_hi, 0", f"buffer_load_dwordx4 {v(FG,4)}, {vL16}, {srd(rWS)}, {sXoff} offen sc1", "s_mov_b32 exec_hi, -1"]
qp_store = f"buffer_store_dwordx4 {v(D0,4)}, {vQPst}, {srd(rWS)}, {{so}} offen{{fl}}"
def qg(n): return [f"buffer_load_dwordx{n} {v(QG+4*p,n)}, {vQPg if p < 2 else vQPg2}, {srd(rWS)}, {sGp} offen offset:{2048*(p%2)} sc1" for p in range(4)]
qg4, qg2 = qg(4), qg(2)
def empty_share(base, fl):
    A(f"s_mul_i32 {t5}, {sL}, {CLR}"); A(f"s_add_u32 {t5}, {t5}, {base}")
    A(f"s_mov_b32 exec_hi, {(1 << (CLR//16-32)) - 1}")
    A(f"buffer_store_dwordx4 {v(EM,4)}, {vL16}, {srd(rWS)}, {t5} offen{fl}")
    A("s_mov_b32 exec_hi, -1")
def small_loads():
    A(f"s_mov_b32 {t5}, {EP_O}")
    A(f"buffer_load_dword {FN}, off, {srd(rWS)}, {t5}{NT}")
    if args.q2: A(f"s_and_b32 {t5}, {sL}, 0x43"); A(f"s_cmp_lg_u32 {t5}, 3")
    else: A(f"s_cmp_lg_u32 {sW}, 3")
    A("s_cbranch_scc1 L_pro2")
    A(f"v_lshrrev_b32 {v(TM+8)}, 5, v0"); A(f"v_and_b32 {v(TM+9)}, 31, v0")
    A(f"v_mul_u32_u24 {vXS1}, 1152, {v(TM+8)}"); A(f"v_lshl_add_u32 {vXS2}, {v(TM+9)}, 2, {vXS1}"); A(f"v_lshl_add_u32 {v(TM+10)}, {v(TM+9)}, 3, {vXS1}"); A(f"v_lshl_add_u32 {vXS1}, {v(TM+9)}, 4, {vXS1}")
    for l in xs_loads(rX, 0, NT): A(l)
    A(f"s_mul_i32 {t5}, {t2}, 144")
    A(f"buffer_load_dwordx2 {v(XG,2)}, {v(TM+10)}, {srd(rX)}, {t5} offen{NT}")
    A("L_pro2:")
def code_prefetch():
    A(f"s_cmp_ge_u32 s2, 8"); A("s_cbranch_scc1 L_nc")
    A("s_getpc_b64 s[66:67]")
    A("L_pc:")
    A(f"v_lshl_add_u32 {v(TM+8)}, {sW}, 6, v0"); A(f"v_lshlrev_b32 {v(TM+8)}, 7, {v(TM+8)}")
    A(f"v_min_u32 {v(TM+8)}, L_codeend-L_pc-4, {v(TM+8)}")
    A(f"global_load_dword {DUM}, {v(TM+8)}, s[66:67]")
    A("L_nc:")
if args.hw >= 2: setup_k()
if args.code == 1: code_prefetch()
if args.hw >= 3: setup_ws()
A("s_waitcnt lgkmcnt(0)")
pstamp(0)
if args.xf: small_loads()
assert args.hw >= 3
if args.q2:
    A("s_cmp_ge_u32 s2, 128"); A("s_cbranch_scc1 L_pro1")
    for n in range(4):
        A(f"buffer_load_dwordx4 {v(TM+6)}, {srd(rWQ)}, {sXoff} offen{NTQ} lds")
        A(f"s_add_u32 m0, m0, {18432-512}")
        A(f"buffer_load_dwordx4 {v(TM+6)}, {srd(rWQ)}, {sXoff} offen offset:512{NTQ} lds")
        A(f"s_sub_u32 m0, m0, {18432-512-4096}"); A(f"s_add_u32 {sXoff}, {sXoff}, {16*8192}")
    A(f"s_cmp_ge_u32 {sW}, 2"); A(f"s_cselect_b32 {t3}, {-8*8192+512}, 0"); A(f"s_cselect_b32 {t4}, {18432-2048}, 0")
    A(f"s_add_u32 m0, m0, {t4}"); A(f"s_add_u32 {sXoff}, {sXoff}, {t3}")
    A(f"buffer_load_dwordx4 {v(TM+6)}, {srd(rWQ)}, {sXoff} offen{NTQ} lds")
else:
    for n in range(4):
        A(f"buffer_load_dwordx4 {v(TM+6)}, {srd(rWQ)}, {sXoff} offen{NTQ} lds")
        A("s_add_u32 m0, m0, 4096"); A(f"s_add_u32 {sXoff}, {sXoff}, {16*8192}")
    A(f"s_cmp_ge_u32 {sW}, 2"); A("s_cbranch_scc1 L_pro1")
    A(f"buffer_load_dwordx4 {v(TM+6)}, {srd(rWQ)}, {sXoff} offen{NTQ} lds")
A("L_pro1:")
if args.hw < 3: setup_ws()
if not args.xf: small_loads()
empty_share(sGf, '')
A(f"s_lshl_b32 {t4}, {sW}, 13"); A(f"s_add_u32 m0, {t4}, {L_K}")
if args.kx:
    A(f"s_lshl1_add_u32 {t4}, {sW}, {sJ}"); A(f"s_add_u32 {t4}, {t4}, {sX}"); A(f"s_and_b32 {t4}, {t4}, 7"); A(f"s_lshl_b32 {t4}, {t4}, 10"); A(f"s_or_b32 {kv0}, {kv0}, {t4}")
for i in range(8):
    if args.kx:
        if i: A(f"s_add_u32 m0, m0, 1024"); A(f"s_xor_b32 {kv1}, {kv0}, {i<<10}")
        A(f"buffer_load_dwordx4 {v(KA+i%4)}, {srd(rK)}, {kv1 if i else kv0} offen{NTK} lds")
    else:
        if i == 4: A(f"s_add_u32 m0, m0, 4096")
        A(f"buffer_load_dwordx4 {v(KA+i%4)}, {srd(rK)}, {kv0 if i < 4 else kv1} offen offset:{1024*(i%4)}{NTK} lds")
cnt = [8]
mark = {'K': 8}
def vm(s): A(s); cnt[0] += 1
size(rV, 33554432)
def hookS():
    setup_rest()
    if ST and not args.pro:
        for k in range(14): A(f"s_mov_b64 s[{72+2*k}:{73+2*k}], 0")
    pstamp(3)
    for r, off in ((rW1, 48), (rW2, 64), (rOUT, 80), (rT1, 56), (rT2, 72)):
        A(f"s_load_dwordx2 s[{r}:{r+1}], s[0:1], {off}")
    constants1()
    if args.lnf == 2: ln0(1 + cnt[0] + ((9 if args.q2 else 4) if args.xf else 0))
    A(f"s_lshl_b32 {t4}, {sL}, 9"); A(f"s_add_u32 {t4}, {t4}, {sGf}"); A(f"s_add_u32 {t4}, {t4}, {QP_O}")
    A(f"s_add_u32 {sXoff}, {sGf}, {FF_O}")
    A("s_mov_b64 exec, 15")
    vm(f"buffer_load_dword {DUM}, {vL128}, {srd(rWS)}, {t4} offen sc1{NT}")
    vm(f"buffer_load_dword {DUM}, {vL128}, {srd(rWS)}, {sXoff} offen sc1{NT}")
    A("s_mov_b64 exec, -1")
def hookQ():
    if not args.lnf: ln0(1 + cnt[0] + ((9 if args.q2 else 4) if args.xf else 0))
    A(f"s_lshl_b32 {t4}, {sL}, 2"); A(f"s_add_u32 {t4}, {t4}, {sXoff}")
    A(f"s_getreg_b32 {t3}, hwreg(HW_REG_XCC_ID)"); A(f"s_lshl_b32 {t3}, {t3}, 28"); A(f"s_or_b32 {t3}, {t3}, 1")
    A(f"s_waitcnt vmcnt({cnt[0]}) lgkmcnt(0)")
    A("s_barrier")
    pstamp(2)
    A(f"v_readfirstlane_b32 {sFlag}, {FN}")
    A(f"s_add_u32 {sFlag}, {sFlag}, 0x0e377902"); A(f"s_and_b32 {sFlag}, {sFlag}, 0x0fffffff"); A(f"s_or_b32 {sFlag}, {sFlag}, {t3}")
    A(f"v_mov_b32 {FN}, {sFlag}")
    A("s_mov_b64 exec, 1")
    vm(f"buffer_store_dword {FN}, {vL16}, {srd(rWS)}, {t4} offen")
    A("s_mov_b64 exec, -1")
    A(f"v_and_b32 {vTag}, 0xff, {FN}"); A(f"s_movk_i32 {t4}, 0xff")
    if args.q2: A("s_cmp_ge_u32 s2, 128"); A("s_cbranch_scc1 L_hQ")
    for l in exec_xa(): A(l)
    for i in range(3):
        if i == 2: A("s_mov_b64 exec, 0x33")
        A(f"ds_read_b128 {v(XA+4*i,4)}, {vLXr} offset:{L_X+64*i}")
    A("s_mov_b64 exec, -1")
    tiles = ((aWQ, 0, D0), (aWQ2, 72, D1)) if args.q2 else ((aWQ, 0, D0),)
    for wb, r0, d in tiles:
        for i in range(2):
            for vv in range(0, 8, 2):
                row = r0 + 32*i + 16*(vv >> 2) + (vv & 3)
                A(f"ds_read2st64_b32 {a(wb+8*i+vv,2)}, {vCq} offset0:{row} offset1:{row+1}")
        A("s_mov_b32 exec_hi, 0")
        for vv in (0, 2): A(f"ds_read2st64_b32 {a(wb+16+vv,2)}, {vCq} offset0:{r0+64+vv} offset1:{r0+65+vv}")
        A("s_mov_b32 exec_hi, -1")
    A("s_waitcnt lgkmcnt(0)")
    for i in range(3):
        for wb, r0, d in tiles: sm(d, XA+4*i, wb+8*i, vIdxD)
    if args.q2:
        for i in range(4): A(f"v_permlane32_swap_b32 {v(D0+i)}, {v(D1+i)}")
    for i in range(4): A(f"v_bfi_b32 {v(D0+i)}, {t4}, {vTag}, {v(D0+i)}")
    if not args.q2: A("s_mov_b32 exec_hi, 0")
    A(qp_store.format(so=sGf, fl=''))
    A("s_mov_b32 exec_hi, -1")
    if args.q2: zero(D1)
    A("L_hQ:")
    if not args.q2: cnt[0] += 1
    pstamp(1)
for k in range(9):
    if k == args.pS: hookS()
    if k == args.pC:
        if args.lnf == 1: ln0(1 + cnt[0] + ((9 if args.q2 else 4) if args.xf else 0))
        constants()
    if k == args.pQ: hookQ()
    if k == 8 - args.vw: mark['V'] = cnt[0]
    if k < 8 and args.kx:
        if k: A(f"s_xor_b32 {kv1}, {kv0}, {k<<10}")
        vm(f"buffer_load_dwordx4 {a(aV+4*k,4)}, {vL16}, {srd(rV)}, {kv1 if k else kv0} offen{NTV}")
    elif k < 8: vm(f"buffer_load_dwordx4 {a(aV+4*k,4)}, {vL16}, {srd(rV)}, {kv0 if k < 4 else kv1} offen offset:{1024*(k%4)}{NTV}")
    if k == 7: pstamp(9)
TT = v(TM+4)
def slots_touch():
    A(f"s_lshl_b32 {t1}, {sJ}, 2"); A(f"s_add_u32 {t1}, {t1}, {sW}")
    A(f"s_mul_i32 {t3}, {t1}, 896"); A(f"s_add_u32 {t3}, {t3}, {sGf}"); A(f"s_add_u32 {t3}, {t3}, {Y_O}")
    A("s_mov_b64 exec, 0x7f")
    A(f"buffer_load_dword {DUM}, {vL128}, {srd(rWS)}, {t3} offen sc1{NT}")
    A("s_mov_b64 exec, -1")
assert Y_O + 64 * 896 >= ZS_O + 1536
def w1_touch():
    A(f"s_lshl_b32 {t1}, {sJ}, 2"); A(f"s_add_u32 {t1}, {t1}, {sW}")
    A(f"s_mul_i32 {t4}, {sX}, 576"); A(f"s_add_u32 {t4}, {t4}, {t1}"); A(f"s_add_u32 {t4}, {t4}, 512"); A(f"s_mul_i32 {t4}, {t4}, 1152")
    A(f"s_mul_i32 {t1}, {t1}, {9*9216}")
    A(f"s_mul_i32 {t3}, {sX}, 1152"); A(f"s_add_u32 {t1}, {t1}, {t3}"); A(f"s_add_u32 {t3}, {t1}, {5*9216}")
    A(f"v_mul_u32_u24 {TT}, 57, v0"); A(f"v_lshrrev_b32 {TT}, 9, {TT}"); A(f"v_mul_u32_u24 {TT}, {9216-1152}, {TT}"); A(f"v_add_u32 {TT}, {TT}, {vL128}")
    A("s_mov_b32 exec_hi, 0x1fff")
    A(f"buffer_load_dword {DUM}, {TT}, {srd(rW1)}, {t1} offen{NTT}")
    A("s_mov_b32 exec_hi, 15")
    A(f"buffer_load_dword {DUM}, {TT}, {srd(rW1)}, {t3} offen{NTT}")
    A("s_mov_b64 exec, 0x1ff")
    A(f"buffer_load_dword {DUM}, {vL128}, {srd(rW2)}, {t4} offen{NTT}")
    A("s_mov_b64 exec, -1")
def w2_loads():
    l1 = A.newlabel('L_w2')
    A(f"s_mul_i32 {t0}, {sX}, 18"); A(f"s_add_u32 {t0}, {t0}, {sJ}"); A(f"s_mul_i32 {t0}, {t0}, {32*1152}")
    A(f"s_lshl_b32 {t1}, {sW}, 8"); A(f"s_add_u32 {t1}, {t1}, {t0}")
    for i in range(8):
        A(f"buffer_load_dwordx4 {a(aW2+4*i,4)}, {vWrow}, {srd(rW2)}, {t1} offen{NT2}")
        if i < 7: A(f"s_add_u32 {t1}, {t1}, 4608")
    A(f"s_cmp_lg_u32 {sW}, 3")
    A(f"s_cbranch_scc1 {l1}")
    A(f"s_mov_b64 exec, {mLO8}")
    for i in range(8):
        A(f"buffer_load_dwordx4 {a(aW2t+4*i,4)}, {vWrow}, {srd(rW2)}, {t0} offen offset:1024{NT2}")
        if i < 7: A(f"s_add_u32 {t0}, {t0}, 4608")
    A("s_mov_b64 exec, -1")
    A(f"{l1}:")
def wo_loads(k0, k1, with_tail):
    for k in range(k0, k1):
        A(f"buffer_load_dwordx4 {a(aWO+4*k,4)}, {vWrow}, {srd(rWO)}, {sWo} offen{NTO}")
        A(f"s_add_u32 {sWo}, {sWo}, 4608")
    if with_tail:
        l1 = A.newlabel('L_wt')
        A(f"s_cmp_lg_u32 {sW}, 3")
        A(f"s_cbranch_scc1 {l1}")
        A(f"s_mov_b64 exec, {mLO8}")
        for i in range(7, -1, -1):
            A(f"s_sub_u32 {sWo}, {sWo}, 4608")
            A(f"buffer_load_dwordx4 {a(aWOt+4*i,4)}, {vWrow}, {srd(rWO)}, {sWo} offen offset:256{NTO}")
        A("s_mov_b64 exec, -1")
        A(f"{l1}:")
if args.pC > 8: constants()
pstamp(4)
stamp()
A("s_waitcnt lgkmcnt(0)")
if args.kw: A(f"s_waitcnt vmcnt({ {1: cnt[0]-mark['K'], 2: 6, 3: 4, 4: 2}[args.kw] })")
A(f"s_mov_b32 {sXPo}, {XP_O}")
A(f"s_cmp_lt_u32 {sJ}, 16")
A("s_cbranch_scc1 L_g1n")
A(f"v_readfirstlane_b32 {t4}, {vOPg}"); A(f"v_readfirstlane_b32 {t5}, {vSTg}")
A(f"s_add_u32 {t4}, {t4}, {sGf}"); A(f"s_add_u32 {t5}, {t5}, {sGf}")
A("s_mov_b64 exec, 0xff")
A(f"buffer_load_dword {DUM}, {vL128}, {srd(rWS)}, {t4} offen sc1{NT}")
A("s_mov_b64 exec, 3")
A(f"buffer_load_dword {DUM}, {vL128}, {srd(rWS)}, {t5} offen sc1{NT}")
A("s_mov_b64 exec, -1")
A(f"buffer_load_ushort {vXres}, {vZo}, {srd(rX)}, 0 offen{NT}")
A(f"buffer_load_ushort {vB2}, {vB2}, {srd(rT2)}, 0 offen{NT}")
WL = [int(x) for x in args.wl.split(',')]
wo_loads(0, WL[0], WL[0] == 8)
def wo_part(k0, k1, with_tail):
    if k0 >= k1 and not with_tail: return
    lo = A.newlabel('L_wp'); bk = A.newlabel('L_wb')
    A(f"s_bitcmp1_b32 {sRole}, 3")
    A(f"s_cbranch_scc1 {lo}")
    A(f"{bk}:")
    global A_main
    saved = (A.lines, A.hist); A.lines, A.hist = [], []
    A(f"{lo}:"); wo_loads(k0, k1, with_tail); A(f"s_branch {bk}")
    tail_raw.append(A.lines); A.lines, A.hist = saved
if WL[0] < 8: A(f"s_bitset1_b32 {sRole}, 3")
A("s_branch L_g1o")
A("L_g1n:")
if 's' in args.early: slots_touch()
if '1' in args.early: w1_touch()
if '2' in args.early: w2_loads()
A("L_g1o:")
pstamp(6)
A("s_waitcnt vmcnt(4)" if WL[0] < 8 else "s_waitcnt vmcnt(8)")
for T in range(2):
    for q in range(4): A(f"ds_read_b128 {a(aK+16*T+4*q,4)}, {v(KR+q)} offset:{4096*T}")
A(f"s_waitcnt vmcnt({args.vw})")
if ST and not args.pro and ONLY is None: A(f"s_memrealtime s[74:75]")
pstamp(5)
def flags_diff():
    A(f"v_xor_b32 {CK}, {sFlag}, {v(FG)}")
    for i in range(1, 4): A(f"v_bitop3_b32 {CK}, {CK}, {v(FG+i)}, {sFlag} bitop3:0xf6")
st_rd = f"ds_read_b64 {v(TM,2)}, {vSTATr}"
A("L_g4:")
for l in fl_load + qg4: A(l)
A("s_waitcnt vmcnt(0)")
pstamp(7)
flags_diff()
A(f"v_cmp_ne_u32 vcc, 0, {CK}")
A("s_cmp_lg_u32 vcc_lo, 0")
if args.forcefb: A("s_cmp_eq_u32 0, 0")
A("s_cbranch_scc1 L_af2")
A(f"s_mov_b32 {sMode}, 0")
A("L_g2:")
for i in range(16): A(f"v_xor_b32 {v(QG+i)}, {vTag}, {v(QG+i)}")
A(f"v_or3_b32 {CK}, {v(QG)}, {v(QG+1)}, {v(QG+2)}")
for i in range(3, 15, 2): A(f"v_or3_b32 {CK}, {CK}, {v(QG+i)}, {v(QG+i+1)}")
A(f"v_or_b32 {CK}, {CK}, {v(QG+15)}")
A(f"v_and_b32 {CK}, 0xff, {CK}")
A(f"v_cmp_ne_u32 vcc, 0, {CK}")
A("s_cbranch_vccnz L_g5")
A("L_g3:")
A(f"s_mov_b32 {sL}, 0")
zero(D0)
A(f"v_mov_b32 {v(TM)}, 0"); A(f"v_mov_b32 {v(TM+1)}, 1.0")
tail.append("L_g5:\n" + timeout("L_g4", "L_g3"))
pstamp(8)
A(f"v_add_f32 {v(TM+2)}, {v(QG+2)}, {v(QG+6)}"); A(f"v_add_f32 {v(TM+3)}, {v(QG+3)}, {v(QG+7)}")
A(f"v_add_f32 {v(TM+4)}, {v(QG+10)}, {v(QG+14)}"); A(f"v_add_f32 {v(TM+5)}, {v(QG+11)}, {v(QG+15)}")
A(f"v_add_f32 {v(TM+2)}, {v(TM+2)}, {v(TM+4)}"); A(f"v_add_f32 {v(TM+3)}, {v(TM+3)}, {v(TM+5)}")
A(f"v_permlane32_swap_b32 {v(TM+2)}, {v(TM+3)}")
A(f"v_add_f32 {vCq}, {v(TM+2)}, {v(TM+3)}")
A("s_branch L_qfin")

A("L_layer:")
zero(D0, 8)
def quiet_wait(so_add):
    if not args.pre: return
    A(f"s_add_u32 {t5}, {sGp}, {so_add}")
    A("s_mov_b64 exec, 1")
    poll([f"buffer_load_dword {DUM}, {vL16}, {srd(rWS)}, {t5} offen sc1"] + ([f"s_sleep {args.pre-1}"] if args.pre > 1 else []), [DUM])
    A("s_mov_b64 exec, -1")
    if args.zd: A(f"s_sleep {args.zd}")
if args.pre:
    A(f"s_bitcmp1_b32 {sRole}, 1"); A("s_cbranch_scc1 L_q0")
    quiet_wait(AN_O)
    A("L_q0:")
def q_pub():
    if args.q2:
        for i in range(2): A(f"v_permlane32_swap_b32 {v(D0+i)}, {v(D1+i)}")
    A(f"v_and_b32 {v(D0)}, -2, {v(D0)}"); A(f"v_and_b32 {v(D0+1)}, -2, {v(D0+1)}")
    if not args.q2: A("s_mov_b32 exec_hi, 0")
    pub(f"buffer_store_dwordx2 {v(D0,2)}, {vQPst}, {srd(rWS)}, {{so}} offen{{fl}}")
    A("s_mov_b32 exec_hi, -1")
if args.q2: A("s_cmp_ge_u32 s2, 128"); A("s_cbranch_scc1 L_q1")
poll_proj(vXAq, sXoff, 3, aWQ, True, wbase2=aWQ2 if args.q2 else None)
q_pub()
nst[0] = 1
stamp()
zero(D0, 8 if args.q2 else 4)
A("L_q1:")
qregs = [v(QG+4*p+i) for p in range(4) for i in range(2)]
qchk1 = [f"v_or3_b32 {CK}, {qregs[0]}, {qregs[1]}, {qregs[2]}", f"v_or3_b32 {CK}, {CK}, {qregs[3]}, {qregs[4]}", f"v_or3_b32 {CK}, {CK}, {qregs[5]}, {qregs[6]}",
         f"v_bitop3_b32 {CK}, {CK}, {qregs[7]}, 1 bitop3:0xa8", f"v_cmp_ne_u32 vcc, 0, {CK}"]
poll(zs_load(vSTATr, sGp), [v(ZG), v(ZG+1)])
for l in qg2: A(l)
A(f"v_mov_b32 {S_}, {v(ZG)}"); A(f"v_mov_b32 {Q_}, {v(ZG+1)}")
stats_tail1(); stats_tail2()
poll(qg2, qregs, primed=True, chk=qchk1, site='q')
A("L_qfin:")
stamp()
A(f"v_add_f32 {v(TM+2)}, {v(QG)}, {v(QG+4)}"); A(f"v_add_f32 {v(TM+3)}, {v(QG+1)}, {v(QG+5)}")
A(f"v_add_f32 {v(TM+4)}, {v(QG+8)}, {v(QG+12)}"); A(f"v_add_f32 {v(TM+5)}, {v(QG+9)}, {v(QG+13)}")
A(f"v_add_f32 {v(TM+2)}, {v(TM+2)}, {v(TM+4)}"); A(f"v_add_f32 {v(TM+3)}, {v(TM+3)}, {v(TM+5)}")
A(f"v_permlane32_swap_b32 {v(TM+2)}, {v(TM+3)}")
A(f"v_add_f32 {v(TM+2)}, {v(TM+2)}, {v(TM+3)}")
A(f"v_fma_f32 {v(TM+2)}, -{v(TM)}, {vCq}, {v(TM+2)}")
A(f"v_mul_f32 {v(TM+2)}, {v(TM+2)}, {v(TM+1)}")
A(f"v_cvt_pk_bf16_f32 {v(TM+2)}, {v(TM+2)}, {v(TM+2)}")
A(f"ds_write_b16 {vQTw}, {v(TM+2)} offset:{L_QT}")
A("s_mov_b32 vcc_lo, 0xaaaaaaaa"); A("s_mov_b32 vcc_hi, 0xaaaaaaaa")
zero(DP)
A("s_waitcnt lgkmcnt(0)")
A("s_barrier")
A(f"ds_read_b128 {v(AO,4)}, {vQTr} offset:{L_QT}")
A(f"ds_read_b128 {v(AO+4,4)}, {vQTr} offset:{L_QT+256}")
if WL[0] < 8: wo_part(WL[0], WL[0]+WL[1], False)
if args.mid:
    A(f"s_lshr_b32 {t0}, {sJ}, 4"); A(f"s_or_b32 {t0}, {t0}, {sL}")
    A("s_cbranch_scc1 L_mid")
    if 's' in args.mid: slots_touch()
    if '1' in args.mid: w1_touch()
    if '2' in args.mid: w2_loads()
    A("L_mid:")
A(f"s_waitcnt lgkmcnt({lg(1)})")
sm(D0, AO, aK, vIdxP); sm(D1, AO, aK+16, vIdxP)
A("s_waitcnt lgkmcnt(0)")
sm(D0, AO+4, aK+8, vIdxP); sm(D1, AO+4, aK+24, vIdxP)
SC, MX, P_, LS, TT = v(TM), v(TM+1), v(TM+2), v(TM+3), v(TM+4)
A(f"v_add_f32 {SC}, {v(D0)}, {v(D0+1)}")
A(f"v_add_f32 {TT}, {v(D1)}, {v(D1+1)}")
A(f"v_cndmask_b32 {SC}, {SC}, {TT}, {mROW}")
rbf(SC, SC)
A(f"v_mul_f32 {SC}, {f32(128 ** -0.5)}, {SC}")
rbf(SC, SC)
A(f"v_mul_f32 {SC}, {f32(1.4426950408889634)}, {SC}")
zero(D0, 2)
A(f"v_max_f32_dpp {MX}, {SC}, {SC} row_ror:8 row_mask:0xf bank_mask:0xf")
for n, k in enumerate((4, 2, 1)):
    zero(D0+2+2*n, 2)
    if k == 1: A(f"v_max_f32_dpp {TT}, {MX}, {MX} row_ror:{k} row_mask:0xf bank_mask:0xf")
    A(f"v_max_f32_dpp {MX}, {MX}, {MX} row_ror:{k} row_mask:0xf bank_mask:0xf")
A(f"v_permlane16_swap_b32 {MX}, {TT}")
A(f"v_max_f32 {MX}, {MX}, {TT}")
A(f"v_sub_f32 {P_}, {SC}, {MX}")
A(f"v_exp_f32 {P_}, {P_}")
A(f"v_cvt_pk_bf16_f32 {TT}, {P_}, 0")
A(f"ds_write2_b32 {vPTw}, {TT}, {TT} offset1:5")
for i in range(4): A(f"ds_read_b128 {v(AO+4*i,4)}, {vPTr} offset:{128*i}")
if WL[0] < 8: wo_part(WL[0]+WL[1], sum(WL), False)
A(f"v_add_f32_dpp {LS}, {P_}, {P_} row_ror:8 row_mask:0xf bank_mask:0xf")
for k in (4, 2, 1): A(f"v_add_f32_dpp {LS}, {LS}, {LS} row_ror:{k} row_mask:0xf bank_mask:0xf")
A(f"v_mov_b32 {SC}, {LS}")
A(f"v_permlane16_swap_b32 {LS}, {SC}")
A(f"v_add_f32 {LS}, {LS}, {SC}")
A(f"v_cndmask_b32 {SC}, {MX}, {LS}, vcc")
A("s_mov_b32 exec_lo, 3"); A("s_mov_b32 exec_hi, 3")
pub(f"buffer_store_dword {SC}, {vSTst}, {srd(rWS)}, {{so}} offen{{fl}}")
A("s_mov_b64 exec, -1")
for i in range(4):
    A(f"s_waitcnt lgkmcnt({lg(3-i)})")
    sm(DP, AO+4*i, aV+8*i, vIdxS)
def pack4(d):
    A(f"v_cvt_pk_bf16_f32 {v(d)}, {v(d)}, {v(d+1)}"); A(f"v_cvt_pk_bf16_f32 {v(d+1)}, {v(d+2)}, {v(d+3)}")
pack4(DP)
pub(f"buffer_store_dwordx2 {v(DP,2)}, {vOPst}, {srd(rWS)}, {{so}} offen{{fl}}")
stamp()
if WL[0] < 8:
    wo_part(sum(WL), 8, True)
    A(f"s_bitset0_b32 {sRole}, 3")
E = TM + 5
R = TM + 12
def tile_out(wb, tb, vst, drain):
    l1 = A.newlabel('L_t'); l2 = A.newlabel('L_t')
    for i in range(4):
        A(f"s_waitcnt lgkmcnt({lg(3-i)})")
        sm(D0, AO+4*i, wb+8*i, vIdxS)
    A(f"s_cmp_lg_u32 {sW}, 3")
    A(f"s_cbranch_scc1 {l1}")
    for i in range(1 if 'notail' in args.exp else 4): sm(D1, AO+4*i, tb+8*i, vIdxS)
    A(f"{l1}:")
    A("s_waitcnt vmcnt(0)" if drain else "s_nop 0")
    A("s_nop 4")
    pack4(D0)
    pub(f"buffer_store_dwordx2 {v(D0,2)}, {vst}, {srd(rWS)}, {{so}} offen{{fl}}")
    A(f"s_cmp_lg_u32 {sW}, 3")
    A(f"s_cbranch_scc1 {l2}")
    pack4(D1)
    A(f"s_mov_b64 exec, {mLO8}")
    pub(f"buffer_store_dwordx2 {v(D1,2)}, {v(E+2)}, {srd(rWS)}, {{so}} offen{{fl}}")
    A("s_mov_b64 exec, -1")
    A(f"{l2}:")
A(f"s_cmp_lt_u32 {sJ}, 16")
A("s_cbranch_scc1 L_mlp")
op_load = [f"buffer_load_dwordx2 {v(OG+2*i,2)}, {vOPg}, {srd(rWS)}, {sGp} offen offset:{512*i} sc1" for i in range(2)]
A(f"v_add_u32 {v(E+6)}, {4*1152}, {vYst}")
if args.sd: A(f"s_sleep {args.sd}")
if 'nost' not in args.exp.split(','): poll([f"buffer_load_dwordx4 {v(SG,4)}, {vSTg}, {srd(rWS)}, {sGp} offen sc1",
      f"buffer_load_dwordx4 {v(SG+4,4)}, {vSTg}, {srd(rWS)}, {sGp} offen offset:128 sc1",
      f"buffer_load_dwordx2 {v(SG+8,2)}, {vSTm}, {srd(rWS)}, {sGp} offen sc1"], [v(SG+i) for i in range(10 if 's' in PD else 8)], site='s')
for l in op_load: A(l)
if 'noweights' in args.exp: A("s_branch L_exw")
A(f"v_max3_f32 {MX}, {v(SG)}, {v(SG+1)}, {v(SG+2)}")
A(f"v_max_f32 {MX}, {MX}, {v(SG+3)}")
A(f"v_max_f32_dpp {TT}, {MX}, {MX} row_ror:8 row_mask:0xf bank_mask:0xf")
A(f"v_max_f32_dpp {MX}, {MX}, {MX} row_ror:8 row_mask:0xf bank_mask:0xf")
A(f"v_permlane16_swap_b32 {MX}, {TT}"); A(f"v_max_f32 {SC}, {MX}, {TT}"); A(f"v_max_f32 {MX}, {MX}, {TT}")
A(f"v_permlane32_swap_b32 {MX}, {SC}"); A(f"v_max_f32 {MX}, {MX}, {SC}")
for n, i in enumerate((0, 1, 2, 3, 8, 9)): A(f"v_sub_f32 {v(E+n)}, {v(SG+i)}, {MX}")
for n in range(6): A(f"v_exp_f32 {v(E+n)}, {v(E+n)}")
A(f"v_mul_f32 {LS}, {v(E)}, {v(SG+4)}")
for i in (1, 2, 3): A(f"v_fmac_f32 {LS}, {v(E+i)}, {v(SG+4+i)}")
A(f"v_add_f32_dpp {TT}, {LS}, {LS} row_ror:8 row_mask:0xf bank_mask:0xf")
A(f"v_add_f32_dpp {LS}, {LS}, {LS} row_ror:8 row_mask:0xf bank_mask:0xf")
A(f"v_permlane16_swap_b32 {LS}, {TT}"); A(f"v_add_f32 {SC}, {LS}, {TT}"); A(f"v_add_f32 {LS}, {LS}, {TT}")
A("L_exw:")
poll(op_load, [v(OG+i) for i in range(4)], primed=True, site='o')
stamp()
A(f"v_permlane32_swap_b32 {LS}, {SC}")
def unpack2(dst, src):
    for i in range(2):
        A(f"v_lshlrev_b32 {v(dst+2*i)}, 16, {v(src+i)}"); A(f"v_and_b32 {v(dst+2*i+1)}, 0xffff0000, {v(src+i)}")
unpack2(R, OG); unpack2(OG+4, OG+2)
for i in (0, 2): A(f"v_pk_mul_f32 {v(R+i,2)}, {v(R+i,2)}, {v(E+3,2)} op_sel:[0,1] op_sel_hi:[1,1]")
for i in (0, 2): A(f"v_pk_fma_f32 {v(R+i,2)}, {v(OG+4+i,2)}, {v(E+5,2)}, {v(R+i,2)} op_sel_hi:[1,0,1]")
A(f"v_add_f32 {LS}, {LS}, {SC}")
A(f"v_mov_b32 {v(E+2)}, {v(E+6)}")
A(f"v_permlane32_swap_b32 {v(R)}, {v(R+2)}")
A(f"v_permlane32_swap_b32 {v(R+1)}, {v(R+3)}")
A(f"v_add_f32 {v(R)}, {v(R)}, {v(R+2)}")
A(f"v_add_f32 {v(R+1)}, {v(R+1)}, {v(R+3)}")
A(f"v_rcp_f32 {LS}, {LS}")
A(f"v_permlane16_swap_b32 {v(R)}, {v(R+1)}")
A(f"v_add_f32 {v(R)}, {v(R)}, {v(R+1)}")
A(f"v_add_f32_dpp {v(R)}, {v(R)}, {v(R)} row_ror:8 row_mask:0xf bank_mask:0xf")
A(f"v_mul_f32 {v(R)}, {v(R)}, {LS}")
A(f"v_cvt_pk_bf16_f32 {TT}, {v(R)}, {v(R)}")
A(f"ds_write_b16 {vOTw}, {TT}")
A(f"s_cmp_lg_u32 {sL}, 0")
A("s_cbranch_scc1 L_o3")
pub(*[f"buffer_store_dwordx2 {v(EM,2)}, {vOPg}, {srd(rWS)}, {{so}} offen offset:{512*i}{{fl}}" for i in range(2)])
A("L_o3:")
A("s_waitcnt lgkmcnt(0)")
A("s_barrier")
for i in range(4): A(f"ds_read_b128 {v(AO+4*i,4)}, {vOTr} offset:{128*i}")
tile_out(aWO, aWOt, vYst, True)
stamp()

def reducer(kind):
    ld = [f"buffer_load_dwordx2 {v(YG+2*i,2)}, {vRg}, {srd(rWS)}, {sGp} offen offset:{512*i} sc1" for i in range(2)]
    A(f"s_movk_i32 {t4}, 0xff"); A(f"s_add_u32 {t3}, {sXPo}, 8192")
    zero(R)
    if kind == 'A': zero(YG+4, 2)
    if kind == 'A':
        if args.yd: A(f"s_sleep {args.yd}")
        poll(ld, [v(YG+i) for i in range(4)], site='y')
    else:
        poll(ld + ["s_mov_b64 exec, 0xffff", f"buffer_load_dwordx2 {v(YG+4,2)}, {vRg}, {srd(rWS)}, {sGp} offen offset:1024 sc1", "s_mov_b64 exec, -1"],
             [v(YG+i) for i in range(6)], site='y')
    stamp()
    A(f"v_smfmac_f32_16x16x64_bf16 {v(R,4)}, {v(YG+8,4)}, {v(YG,8)}, {vIdxS}")
    for i in range(4): A(f"v_add_f32_dpp {v(R+i)}, {v(R+i)}, {v(R+i)} row_ror:8 row_mask:0xf bank_mask:0xf")
    for i in range(4): A(f"v_bfi_b32 {v(R+i)}, {t4}, {vTag}, {v(R+i)}")
    A(f"buffer_store_dwordx4 {v(R,4)}, {vXPst}, {srd(rWS)}, {sXPo} offen sc1")
    if args.near: A(f"buffer_store_dwordx4 {v(R,4)}, {vXPst}, {srd(rWS)}, {t3} offen sc1")
    if kind == 'M':
        A(f"s_lshl_b32 {t0}, {sL}, 2"); A(f"s_andn2_b32 {t0}, {t0}, {sRole}")
        A("s_cbranch_scc1 L_fin")
    cl = [f"buffer_store_dwordx2 {v(EM,2)}, {vRg}, {srd(rWS)}, {{so}} offen offset:{512*i}{{fl}}" for i in range(2)]
    if kind == 'M': cl += ["s_mov_b64 exec, 0xffff", f"buffer_store_dwordx2 {v(EM,2)}, {vRg}, {srd(rWS)}, {{so}} offen offset:1024{{fl}}", "s_mov_b64 exec, -1"]
    pub(*cl)
    if args.pre:
        lb = A.newlabel('L_an')
        A(f"s_cmp_lg_u32 {sTask}, 0"); A(f"s_cbranch_scc1 {lb}")
        if kind == 'A': A(f"s_cmp_eq_u32 {sL}, 0"); A(f"s_cbranch_scc1 {lb}")
        A(f"v_mov_b32 {TT}, {AN_O + (0 if kind == 'M' else 4)}")
        A("s_mov_b64 exec, 1")
        pub(f"buffer_store_dword {vL16}, {TT}, {srd(rWS)}, {{so}} offen{{fl}}")
        A("s_mov_b64 exec, -1")
        A(f"{lb}:")
    if args.near:
        A(f"v_mov_b32 {TT}, 0")
        A(f"ds_read_b32 {TT}, {TT} offset:{L_NEAR}")
    if args.xd: A(f"s_sleep {args.xd}")
    if args.near:
        A("s_waitcnt lgkmcnt(0)")
        A(f"v_or_b32 {vXPg}, {vXPg}, {TT}")
    poll([f"buffer_load_dwordx2 {v(XG,2)}, {vXPg}, {srd(rWS)}, {sXPo} offen sc1",
          f"buffer_load_dwordx2 {v(XG+2,2)}, {vXPg}, {srd(rWS)}, {sXPo} offen offset:512 sc1"], None, site='x',
         chk=[f"v_xor_b32 {v(R+i)}, {vTag}, {v(XG+i)}" for i in range(4)] +
             [f"v_or3_b32 {CK}, {v(R)}, {v(R+1)}, {v(R+2)}", f"v_bitop3_b32 {CK}, {CK}, {v(R+3)}, {t4} bitop3:0xa8", f"v_cmp_ne_u32 vcc, 0, {CK}"])
    stamp()
    Y = v(R)
    A(f"v_add_f32 {v(R)}, {v(R)}, {v(R+2)}"); A(f"v_add_f32 {v(R+1)}, {v(R+1)}, {v(R+3)}")
    A(f"v_permlane32_swap_b32 {v(R)}, {v(R+1)}")
    A(f"v_add_f32 {TT}, {v(R)}, {v(R+1)}"); A(f"v_add_f32 {Y}, {v(R)}, {v(R+1)}")
    A(f"v_permlane16_swap_b32 {Y}, {TT}"); A(f"v_add_f32 {Y}, {Y}, {TT}")
    rbf(Y, Y)
    if kind == 'M':
        A(f"v_add_f32 {Y}, {Y}, {vB2}"); rbf(Y, Y)
    A(f"v_add_f32 {TT}, {Y}, {vXres}")
    A(f"v_add_f32 {v(R+1)}, {Y}, {vXres}")
    A(f"v_add_f32 {Y}, {Y}, {vXres}")
    A("s_mov_b64 exec, -1")
    A(f"v_permlane32_swap_b32 {TT}, {v(R+1)}")
    A(f"v_cvt_pk_bf16_f32 {TT}, {TT}, {v(R+1)}")
    A("s_mov_b64 exec, 0xffff")
    if kind == 'M':
        A(f"s_cmp_lg_u32 {sL}, 0")
        A("s_cbranch_scc1 L_out")
    pub(f"buffer_store_dword {TT}, {vZst}, {srd(rWS)}, {{so}} offen{{fl}}")
    A("s_mov_b64 exec, -1")
    stamp()
    rbf(vXres, Y)
    if kind == 'M' or args.ms != 'x':
        A(f"v_mul_f32 {TT}, {vXres}, {vXres}")
        A(f"v_cndmask_b32 {TT}, {vXres}, {TT}, {mROW}")
        for k in (8, 4, 2): A(f"v_add_f32_dpp {TT}, {TT}, {TT} row_ror:{k} row_mask:0xf bank_mask:0xf")
        A(f"v_add_f32_dpp {Y}, {TT}, {TT} row_ror:1 row_mask:0xf bank_mask:0xf")
        A(f"v_add_f32_dpp {TT}, {TT}, {TT} row_ror:1 row_mask:0xf bank_mask:0xf")
        A(f"v_permlane32_swap_b32 {TT}, {Y}")
        A(f"v_add_f32 {TT}, {TT}, {Y}")
        A("s_mov_b64 exec, 0x10001")
        pub(f"buffer_store_dword {TT}, {vZSst}, {srd(rWS)}, {{so}} offen{{fl}}")
        A("s_mov_b64 exec, -1")
    A(f"v_add_u32 {vZSst}, 512, {vZSst}")
    A(f"v_add_u32 {vZst}, 2304, {vZst}")
    A(f"s_add_u32 {sXPo}, {sXPo}, {XPS}")

A(f"s_bitcmp1_b32 {sRole}, 0")
A("s_cbranch_scc1 L_mlp")
A(f"s_bitcmp1_b32 {sRole}, 1")
A("s_cbranch_scc0 L_probe" if args.near else "s_cbranch_scc0 L_next")
A(f"s_cmp_lg_u32 {sL}, 0")
A("s_cbranch_scc1 L_red")
A(f"v_lshlrev_b32 {vXres}, 16, {vXres}"); A(f"v_lshlrev_b32 {vB2}, 16, {vB2}")
zero(YG+6, 2)
for i in range(4): A(f"v_mov_b32 {v(YG+8+i)}, 0x3f80")
A("L_red:")
k0 = nst[0]
reducer('A'); reducer('M')
kr = nst[0]
A("s_branch L_next")
A("L_mlp:")
nst[0] = k0
A(f"s_cmp_lg_u32 {sL}, 0")
A("s_cbranch_scc1 L_m1")
A(f"s_mul_i32 {t0}, {sX}, 18"); A(f"s_add_u32 {t0}, {t0}, {sJ}")
A(f"s_lshl_b32 {t2}, {t0}, 6")
A(f"buffer_load_ushort {vB1}, {vB1}, {srd(rT1)}, 0 offen{NT}")
A(f"s_cmp_ge_u32 {sJ}, 16")
A("s_cbranch_scc1 L_m0b")
if args.xt:
    A(f"s_lshl_b32 {t1}, {sJ}, 2"); A(f"s_add_u32 {t1}, {t1}, {sW}"); A(f"s_mul_i32 {t1}, {t1}, 36")
    A(f"v_add_u32 {TT}, {t1}, v0")
    A(f"v_lshrrev_b32 {LS}, 6, {TT}"); A(f"v_mul_u32_u24 {MX}, 43, {LS}"); A(f"v_lshrrev_b32 {MX}, 7, {MX}"); A(f"v_add_u32 {LS}, {LS}, {MX}")
    A(f"v_bfe_u32 {MX}, {TT}, 3, 3"); A(f"v_lshl_add_u32 {LS}, {LS}, 3, {MX}"); A(f"v_and_b32 {TT}, 7, {TT}"); A(f"v_lshlrev_b32 {TT}, 7, {TT}"); A(f"v_lshl_add_u32 {TT}, {LS}, 13, {TT}")
    A(f"s_lshl_b32 {t1}, {sX}, 10"); A(f"s_add_u32 {t1}, {t1}, {XP_O}")
    A(f"v_mov_b32 {LS}, 0")
    A("s_mov_b32 exec_hi, 15")
    A(f"buffer_atomic_or {LS}, {TT}, {srd(rWS)}, {t1} offen")
    A("s_mov_b32 exec_hi, -1")
if 's' not in args.early + args.mid: slots_touch()
A("L_m0b:")
def w1_real():
    lb = A.newlabel('L_w1')
    A(f"s_cmp_eq_u32 {sW}, 3")
    A(f"s_cbranch_scc1 {lb}")
    A(f"s_mul_i32 {t0}, {sW}, {192*9216}"); A(f"s_add_u32 {t0}, {t0}, {t2}")
    if args.w1dma:
        A(f"v_lshrrev_b32 {TT}, 2, v0"); A(f"v_mul_u32_u24 {TT}, 9216, {TT}"); A(f"v_and_b32 {LS}, 3, v0"); A(f"v_lshl_add_u32 {TT}, {LS}, 4, {TT}")
        A(f"s_mul_i32 {t1}, {sW}, 12288"); A(f"s_add_u32 {t1}, {t1}, {L_K}"); A(f"s_mov_b32 m0, {t1}")
        for i in range(12):
            A(f"buffer_load_dwordx4 {TT}, {srd(rW1)}, {t0} offen{NTM} lds")
            if i < 11: A(f"s_add_u32 {t0}, {t0}, {16*9216}"); A("s_add_u32 m0, m0, 1024")
        A(f"v_lshrrev_b32 {TT}, 4, v0"); A(f"v_lshlrev_b32 {TT}, 8, {TT}"); A(f"v_and_b32 {LS}, 15, v0"); A(f"v_lshl_add_u32 {TT}, {LS}, 2, {TT}"); A(f"v_add_u32 {TT}, {t1}, {TT}")
        A("s_waitcnt vmcnt(0)")
        for i in range(6):
            for hh in range(2):
                for p in range(2):
                    A(f"ds_read2_b32 {a(aW1+8*i+4*hh+2*p,2)}, {TT} offset0:{32*p} offset1:{32*p+16}")
                if (i, hh) != (5, 1): A(f"v_add_u32 {TT}, 1024, {TT}")
        A("s_waitcnt lgkmcnt(0)")
    else:
        A(f"v_lshrrev_b32 {TT}, 4, v0"); A(f"v_mul_u32_u24 {TT}, {4*9216}, {TT}"); A(f"v_and_b32 {LS}, 15, v0"); A(f"v_lshl_add_u32 {TT}, {LS}, 2, {TT}")
        prev = 0
        for i in range(6):
            for vv in range(8):
                row = 32*i + 16*(vv >> 2) + (vv & 3)
                if row != prev: A(f"s_add_u32 {t0}, {t0}, {(row-prev)*9216}")
                prev = row
                A(f"buffer_load_dword {a(aW1+8*i+vv)}, {TT}, {srd(rW1)}, {t0} offen{NTM}")
    A(f"{lb}:")
for c_ in args.mo:
    if c_ == 't':
        lb_ = A.newlabel('L_nt'); A(f"s_cmp_ge_u32 {sJ}, 16"); A(f"s_cbranch_scc1 {lb_}"); w1_touch(); A(f"{lb_}:")
    if c_ == '2': w2_loads()
    if c_ == 'b':
        lb_ = A.newlabel('L_nb'); A(f"s_cmp_lt_u32 {sJ}, 16"); A(f"s_cbranch_scc1 {lb_}"); w2_loads(); A(f"{lb_}:")
    if c_ == 'r': w1_real()
    if c_ == 'w': A("s_waitcnt vmcnt(0)")
    if c_ == 'h': A("s_waitcnt vmcnt(6)")
    if c_ == 'g': A("s_waitcnt vmcnt(3)")
    if c_ == 'e': A("s_waitcnt vmcnt(8)")
A("L_m0c:")
if ST: A("s_memrealtime s[94:95]"); A("s_waitcnt vmcnt(0)"); A("s_memrealtime s[96:97]")
A("s_waitcnt vmcnt(0)")
A(f"v_lshlrev_b32 {vB1}, 16, {vB1}")
A("L_m1:")
zero(D0, 8)
c0 = -2 * 1.4426950408889634 * 0.7978845608028654
A(f"v_mov_b32 {v(E)}, {f32(c0)}")
A(f"v_add_u32 {v(E+2)}, {4*1152}, {vMst}")
A(f"s_mul_i32 {t0}, {sL}, {Z3_O-Z1_O}"); A(f"s_add_u32 {t0}, {t0}, {sGp}"); A(f"s_add_u32 {t0}, {t0}, {Z1_O}")
if args.pre:
    A(f"s_cmp_eq_u32 {sL}, 0"); A("s_cbranch_scc1 L_m1b")
    quiet_wait(AN_O + 4)
    A("L_m1b:")
A(f"s_lshl_b32 {t1}, {sL}, 10"); A(f"s_add_u32 {t1}, {t1}, {sGp}"); A(f"s_add_u32 {t1}, {t1}, {ZS_O}")
A(f"v_lshrrev_b32 {v(E+1)}, 5, v0"); A(f"v_lshlrev_b32 {v(E+1)}, 3, {v(E+1)}")
A(f"s_cmp_eq_u32 {sW}, 3")
A("s_cbranch_scc1 L_m2")
poll_proj(vXAm, t0, 6, aW1)
A("s_mov_b32 exec_hi, 0")
A(f"ds_write_b128 {vHPw}, {v(D0,4)}")
A("s_mov_b32 exec_hi, -1")
A("s_branch L_m2b")
A("L_m2:")
if args.ms == 'x':
    if 'nostat' not in args.exp:
        poll(xs_loads(rWS, t0, ' sc1'), [v(XS+i) for i in range(9)], site='z')
        stats_x()
    else: A(f"v_mov_b32 {S_}, 0"); A(f"v_mov_b32 {Q_}, 1.0")
else:
    poll(zs_load(vZSg, t1), [v(ZG), v(ZG+1)], site='z')
    A(f"v_mov_b32 {S_}, {v(ZG)}"); A(f"v_mov_b32 {Q_}, {v(ZG+1)}")
    stats_tail1(); stats_tail2()
A(f"ds_write_b64 {v(E+1)}, {v(TM,2)} offset:{L_STAT}")
A("L_m2b:")
stamp()
A("s_waitcnt lgkmcnt(0)")
A("s_barrier")
H = TM + 12
A(f"ds_read2_b32 {v(H,2)}, {vHPr} offset0:0 offset1:2")
A(f"ds_read2_b32 {v(H+2,2)}, {vHPr} offset0:128 offset1:130")
A(f"ds_read_b32 {v(H+4)}, {vHPr} offset:1024"); A(f"ds_read_b32 {v(H+5)}, {vHPr} offset:1032")
A(f"ds_read_b64 {v(TM,2)}, {v(E+1)} offset:{L_STAT}")
zero(D0)
A("s_waitcnt lgkmcnt(0)")
A(f"v_add_f32 {v(H)}, {v(H)}, {v(H+2)}"); A(f"v_add_f32 {v(H+1)}, {v(H+1)}, {v(H+3)}")
A(f"v_add_f32 {v(H)}, {v(H)}, {v(H+4)}"); A(f"v_add_f32 {v(H+1)}, {v(H+1)}, {v(H+5)}")
A(f"v_fma_f32 {v(H)}, -{S_}, {v(H+1)}, {v(H)}")
A(f"v_mul_f32 {v(H)}, {v(H)}, {Q_}")
rbf(v(H), v(H))
A(f"v_add_f32 {v(H)}, {v(H)}, {vB1}")
rbf(v(H), v(H))
A(f"v_mul_f32 {TT}, {v(H)}, {v(H)}")
A(f"v_fmac_f32 {v(E)}, {f32(c0*0.044715)}, {TT}")
A(f"v_mul_f32 {TT}, {v(E)}, {v(H)}")
A(f"v_exp_f32 {TT}, {TT}")
A(f"v_add_f32 {TT}, 1.0, {TT}")
A(f"v_rcp_f32 {TT}, {TT}")
A(f"v_mul_f32 {TT}, {TT}, {v(H)}")
A(f"v_cvt_pk_bf16_f32 {TT}, {TT}, 0")
A(f"ds_write2_b32 {vPTw}, {TT}, {TT} offset1:5")
for i in range(4): A(f"ds_read_b128 {v(AO+4*i,4)}, {vPTr} offset:{128*i}")
stamp()
tile_out(aW2, aW2t, vMst, False)
A("L_m4:")
stamp()
nst[0] = kr
A("L_next:")
A(f"s_cmp_lg_u32 {sL}, 0")
A("s_cbranch_scc1 L_fin")
if ST:
    A("s_waitcnt lgkmcnt(0)")
    for k in range(14): A(f"v_writelane_b32 {v(SV)}, s{72+2*k}, {1+k}")
    for k in range(14): A(f"s_mov_b64 s[{72+2*k}:{73+2*k}], 0")
A(f"s_mov_b32 {sL}, 1")
if args.dirty:
    A(f"s_cmp_ge_u32 {sJ}, 16"); A("s_cbranch_scc1 L_dd")
    A(f"s_lshl_b32 {t0}, s2, 2"); A(f"s_add_u32 {t0}, {t0}, {sW}"); A(f"s_lshl_b32 {t0}, {t0}, 14"); A(f"s_add_u32 {t0}, {t0}, 0x2000000")
    for i in range(args.dirty):
        A(f"buffer_store_dwordx4 {v(EM,4)}, {vL16}, {srd(rWS)}, {t0} offen"); A(f"s_add_u32 {t0}, {t0}, 1024")
    A("L_dd:")
A(f"s_add_u32 {sXoff}, {sGp}, {Z2_O}")
for r in (vSTst, vSTg, vSTm): A(f"v_add_u32 {r}, {ST1_O-ST_O}, {r}")
if args.qc:
    assert QP_O % 512 == 0
    for r in (vQPst, vQPg):
        A(f"v_bfe_u32 {TT}, {r}, 1, 8"); A(f"v_and_b32 {r}, 0xfffffe00, {r}"); A(f"v_add_u32 {r}, {r}, {TT}")
    A(f"v_add_u32 {vQPg2}, 4096, {vQPg}")
A("s_branch L_layer")
A("L_out:")
A(f"buffer_store_dword {TT}, {vZo}, {srd(rOUT)}, 0 offen")
A(f"s_mov_b32 {t0}, {EP_O}")
A("s_mov_b64 exec, 1")
A(f"buffer_store_dword {FN}, {vL16}, {srd(rWS)}, {t0} offen")
if ST: A(f"s_memrealtime s[{72+2*13}:{73+2*13}]")
A("L_fin:")
if args.wb:
    A(f"s_cmp_lg_u32 {sJ}, 18"); A("s_cbranch_scc1 L_wb")
    A(f"s_cmp_lg_u32 {sW}, 0"); A("s_cbranch_scc1 L_wb")
    A("buffer_wbl2 sc1")
    A("L_wb:")
if args.enc:
    j0, j1 = [int(x) for x in args.encj.split(',')]
    A("s_memrealtime s[66:67]")
    A("s_waitcnt lgkmcnt(0)")
    if args.enc <= 14: A(f"v_readlane_b32 {t0}, {v(SV)}, {args.enc}"); A("s_nop 3")
    else: A(f"s_mov_b32 {t0}, s{72+2*(args.enc-15)}")
    A(f"s_cmp_eq_u32 {t0}, 0"); A("s_cbranch_scc1 L_enc2")
    A(f"s_cmp_lt_u32 {sJ}, {j0}"); A("s_cbranch_scc1 L_enc2")
    A(f"s_cmp_ge_u32 {sJ}, {j1}"); A("s_cbranch_scc1 L_enc2")
    if args.encref == 0: A(f"s_mov_b32 {t1}, s100")
    elif args.encref <= 14: A(f"v_readlane_b32 {t1}, {v(SV)}, {args.encref}"); A("s_nop 3")
    else: A(f"s_mov_b32 {t1}, s{72+2*(args.encref-15)}")
    A(f"s_sub_u32 {t0}, {t0}, {t1}"); A(f"s_min_u32 {t0}, {t0}, 10000"); A(f"s_lshl_b32 {t0}, {t0}, {4 if args.encref else 3}"); A(f"s_add_u32 {t0}, {t0}, s66")
    A("L_enc:")
    A("s_sleep 8")
    A("s_memrealtime s[64:65]"); A("s_waitcnt lgkmcnt(0)")
    A(f"s_sub_u32 {t1}, s64, {t0}"); A(f"s_cmp_lt_i32 {t1}, 0"); A("s_cbranch_scc1 L_enc")
    A("L_enc2:")
if ST:
    A("s_mov_b64 exec, -1")
    A("s_waitcnt lgkmcnt(0)")
    A(f"v_writelane_b32 {v(SV)}, s100, 0")
    for k in range(14): A(f"v_writelane_b32 {v(SV)}, s{72+2*k}, {15+k}")
    A(f"s_lshl_b32 {t0}, s2, 2"); A(f"s_add_u32 {t0}, {t0}, {sW}"); A(f"s_lshl_b32 {t0}, {t0}, 8"); A(f"s_add_u32 {t0}, {t0}, {STAMP_O}")
    A(f"v_mov_b32 {v(SV+1)}, 0")
    A(f"v_lshlrev_b32 {v(SV+2)}, 3, v0")
    A("s_mov_b32 exec_hi, 0")
    A(f"buffer_store_dwordx2 {v(SV,2)}, {v(SV+2)}, {srd(rWS)}, {t0} offen")
A("L_end:")
A("s_endpgm")
if args.near:
    A("; ---- which copy of the cross-die inbox is closer to this die? (speed only, both are always written)")
    A("L_probe:")
    A(f"s_cmp_lt_u32 {sJ}, 20"); A("s_cbranch_scc1 L_next")
    A(f"s_cmp_lg_u32 {sL}, 0"); A("s_cbranch_scc1 L_next")
    A(f"s_sub_u32 {t0}, {sJ}, 20"); A(f"s_lshl_b32 {t0}, {t0}, 18"); A(f"s_lshl_b32 {t1}, {sX}, 10"); A(f"s_add_u32 {t0}, {t0}, {t1}"); A(f"s_add_u32 {t0}, {t0}, {XP_O + 3*65536}")
    A(f"s_add_u32 s4, s{rWS}, {t0}"); A(f"s_addc_u32 s5, s{rWS+1}, 0")
    A(f"s_mov_b32 {t2}, -1"); A(f"s_mov_b32 {t3}, -1"); A(f"s_mov_b32 {t4}, 3")
    A("L_pr1:")
    A("s_memtime s[6:7]"); A("s_waitcnt lgkmcnt(0)")
    A(f"s_load_dword {t5}, s[4:5], 0 glc"); A("s_waitcnt lgkmcnt(0)")
    A("s_memtime s[8:9]"); A("s_waitcnt lgkmcnt(0)")
    A(f"s_load_dword {t5}, s[4:5], 0x2000 glc"); A("s_waitcnt lgkmcnt(0)")
    A("s_memtime s[10:11]"); A("s_waitcnt lgkmcnt(0)")
    A(f"s_sub_u32 {t0}, s8, s6"); A(f"s_sub_u32 {t1}, s10, s8")
    A(f"s_min_u32 {t2}, {t2}, {t0}"); A(f"s_min_u32 {t3}, {t3}, {t1}")
    A(f"s_sub_u32 {t4}, {t4}, 1"); A(f"s_cmp_lg_u32 {t4}, 0"); A("s_cbranch_scc1 L_pr1")
    A(f"s_cmp_lt_u32 {t3}, {t2}"); A(f"s_cselect_b32 {t0}, 0x2000, 0")
    A(f"v_mov_b32 {TT}, 0"); A(f"v_mov_b32 {LS}, {t0}")
    A(f"ds_write_b32 {TT}, {LS} offset:{L_NEAR}")
    A("s_branch L_next")
A("L_af2:")
A(f"s_cmp_eq_u32 {sMode}, {FB_O}")
A("s_cbranch_scc1 L_g2")
A(f"s_add_u32 {sMode}, {sMode}, 1")
A(f"s_lshl_b32 {t2}, {sX}, 10"); A(f"s_add_u32 {t2}, {t2}, {FL_O}")
A(f"s_lshl_b32 {t4}, {sL}, 2"); A(f"s_add_u32 {t1}, {t4}, {t2}")
A(f"s_cmp_lt_u32 {sMode}, {1 if args.forcefb else 40}")
A("s_cbranch_scc1 L_af5")
A("s_mov_b64 exec, 1")
A(f"buffer_store_dword {FN}, {vL16}, {srd(rWS)}, {t1} offen sc1")
A("s_mov_b32 exec_lo, -1")
A(f"buffer_load_dwordx4 {v(FG,4)}, {vL16}, {srd(rWS)}, {t2} offen sc1")
A("s_mov_b32 exec_hi, -1")
A("s_waitcnt vmcnt(0)")
flags_diff()
A(f"v_and_b32 {TT}, 0x0fffffff, {CK}")
A(f"v_cmp_ne_u32 vcc, 0, {TT}")
A("s_cmp_lg_u32 vcc_lo, 0")
A("s_cbranch_scc1 L_af5")
A(f"v_cmp_ne_u32 vcc, 0, {CK}")
A("s_cmp_lg_u32 vcc_lo, 0")
if args.forcefb: A("s_cmp_eq_u32 0, 0")
A("s_cbranch_scc1 L_spread")
A("L_af5:")
A(f"s_sub_u32 {sTO}, {sTO}, 1")
A("s_cbranch_scc0 L_g4")
A(f"s_mov_b32 {sTO}, 0")
A(f"s_mov_b32 {sMode}, 0")
A("s_branch L_g2")
A("L_spread:")
A(f"s_mov_b32 {sMode}, {FB_O}")
A(f"s_add_u32 {sGp}, {sGf}, {FB_O}")
empty_share(sGp, ' sc1')
if args.q2: A("s_cmp_ge_u32 s2, 128"); A("s_cbranch_scc1 L_sp0")
else: A("s_mov_b32 exec_hi, 0")
A(qp_store.format(so=sGp, fl=' sc1'))
A("L_sp0:")
A("s_waitcnt vmcnt(0)")
A("s_mov_b64 exec, 1")
A(f"buffer_store_dword {FN}, {vL16}, {srd(rWS)}, {t1} offen offset:512 sc1")
A("s_mov_b32 exec_lo, -1")
A("L_sp1:")
A("s_mov_b32 exec_hi, 0")
A(f"buffer_load_dwordx4 {v(FG,4)}, {vL16}, {srd(rWS)}, {t2} offen offset:512 sc1")
A("s_mov_b32 exec_hi, -1")
A("s_waitcnt vmcnt(0)")
flags_diff()
A(f"v_and_b32 {CK}, 0x0fffffff, {CK}")
A(f"v_cmp_ne_u32 vcc, 0, {CK}")
A("s_cmp_eq_u32 vcc_lo, 0")
A("s_cbranch_scc1 L_g4")
A("s_sleep 4")
A(timeout("L_sp1", "L_g4"))
for t in tail: A(t)
for t in tail_raw: A.lines += t
A.raw('L_codeend:')

A.raw('.section .rodata,"a"')
A.raw(".p2align 6")
A.raw(f".amdhsa_kernel {NAME}_kernel")
A.raw(f"  .amdhsa_next_free_vgpr {ACC+NACC}")
A.raw("  .amdhsa_next_free_sgpr 102")
A.raw(f"  .amdhsa_accum_offset {ACC}")
A.raw("  .amdhsa_group_segment_fixed_size 0")
A.raw("  .amdhsa_kernarg_size 104")
A.raw("  .amdhsa_user_sgpr_count 2")
A.raw("  .amdhsa_user_sgpr_kernarg_segment_ptr 1")
A.raw("  .amdhsa_system_sgpr_workgroup_id_x 1")
A.raw(".end_amdhsa_kernel")
txt = A.text()
if args.cyc: txt = txt.replace('s_memrealtime', 's_memtime')
sys.stdout.write(txt)
```
